```python
import torch

def _softmax(x, axis=-1):
    return torch.softmax(x, dim=axis)
def _gelu(x):
    return torch.nn.functional.gelu(x, approximate="tanh")
def _silu(x):
    return torch.nn.functional.silu(x)
def _sigmoid(x):
    return torch.sigmoid(x)
def _layernorm(x, axis=-1, eps=1e-5):
    m = x.mean(dim=axis, keepdim=True)
    v = x.var(dim=axis, keepdim=True, unbiased=False)
    return (x - m) / torch.sqrt(v + eps)
def _scatter_add(tgt, idx, src, axis=0):
    return tgt.clone().index_add_(axis, idx, src)
def _segment_sum(src, seg, n):
    out = torch.zeros((n,) + src.shape[1:], dtype=src.dtype)
    return out.index_add_(0, seg, src)
def _pad(x, pw):
    flat = tuple(v for pair in reversed(pw) for v in pair)
    return torch.nn.functional.pad(x, flat)

kernel_name = 'gated_mix__linear_attn_block__ssm_conv_h3__prompt'

def setup_inputs():

    _w = (lambda a: (lambda t: t.to(torch.bfloat16) if t.is_floating_point() else t)(torch.as_tensor(a)))
    def _A_setup():
        B, S, D = 1, 2048, 640
        return {
            "x": _w((lambda *s: torch.randn(*s, dtype=torch.bfloat16) * 0.05)(B, S, D)),
            "wqkv": _w((lambda *s: torch.randn(*s, dtype=torch.bfloat16) * 1.6)(D, 3 * D)),
            "wo": _w((lambda *s: torch.randn(*s, dtype=torch.bfloat16) * 0.1)(D, D)),
        }
    _A_in = _A_setup()

    def _B_setup():
        B, S, D = 1, 2048, 640
        ks = 4
        return {
            "q": _w((lambda *s: torch.randn(*s, dtype=torch.bfloat16) * 0.05)(B, S, D)),
            "k": _w((lambda *s: torch.randn(*s, dtype=torch.bfloat16) * 0.8)(B, S, D)),
            "v": _w((lambda *s: torch.randn(*s, dtype=torch.bfloat16) * 0.8)(B, S, D)),
            "shift_k": _w((lambda *s: torch.randn(*s, dtype=torch.bfloat16) * 0.8)(D, ks) * 0.5),
            "ssm_k": _w((lambda *s: torch.randn(*s, dtype=torch.bfloat16) * 0.8)(D, S) * (1.0 / S ** 0.5)),
            "ssm_D": _w((lambda *s: torch.randn(*s, dtype=torch.bfloat16) * 0.8)(D)),
        }
    _B_in = _B_setup()

    return {
        "A_x": _A_in["x"],
        "A_wqkv": _A_in["wqkv"],
        "A_wo": _A_in["wo"],
        "B_q": _B_in["q"],
        "B_k": _B_in["k"],
        "B_v": _B_in["v"],
        "B_shift_k": _B_in["shift_k"],
        "B_ssm_k": _B_in["ssm_k"],
        "B_ssm_D": _B_in["ssm_D"],
        "gate_w": _w((lambda *s: torch.randn(*s, dtype=torch.bfloat16) * 0.05)(640) * 16.0),
    }

def reference(A_x, A_wqkv, A_wo, B_q, B_k, B_v, B_shift_k, B_ssm_k, B_ssm_D, gate_w):
    def _A_ref(x, wqkv, wo):
        B, S, D = x.shape
        H = 32; Dh = D // H
        qkv = (lambda x, *d: x.permute(*d))((x @ wqkv).reshape(B, S, 3, H, Dh), 2, 0, 3, 1, 4)
        q, k, v = qkv[0], qkv[1], qkv[2]
        phi = lambda t: torch.where(t > 0, t + 1, torch.exp(t)) + 1e-6
        pq, pk = phi(q), phi(k)
        kv = torch.einsum("bhsd,bhse->bhde", pk, v)
        z = torch.einsum("bhsd->bhd", pk)
        num = torch.einsum("bhqd,bhde->bhqe", pq, kv)
        den = torch.einsum("bhqd,bhd->bhq", pq, z)[..., None] + 1e-6
        o = num / den
        return (lambda x, *d: x.permute(*d))(o, 0, 2, 1, 3).reshape(B, S, D) @ wo

    def _B_ref(q, k, v, shift_k, ssm_k, ssm_D):
        B, S, D = q.shape
        ks = shift_k.shape[-1]
        k_pad = _pad(k, ((0, 0), (ks - 1, 0), (0, 0)))
        k_shift = torch.zeros_like(k)
        for t in range(ks):
            k_shift = k_shift + k_pad[:, t:t + S, :] * shift_k[:, ks - 1 - t][None, None, :]
        kv = k_shift * v
        L = 2 * S
        kv_pad = _pad(kv, ((0, 0), (0, S), (0, 0)))
        kf_pad = _pad(ssm_k, ((0, 0), (0, S)))
        kv_f = (lambda x, axes=(-2,-1): torch.fft.rfft2(x.float(), dim=axes))(kv_pad[:, None, :, :], axes=(1, 2))
        kf_f = (lambda x, axes=(-2,-1): torch.fft.rfft2(x.float(), dim=axes))(kf_pad[:, None, :], axes=(1, 2))
        kf_f = (lambda x, *d: x.permute(*d))(kf_f, 1, 2, 0)
        y_f = kv_f * kf_f[None, :, :, :]
        y = (lambda x, s, axes=(-2,-1): torch.fft.irfft2(x, s=s, dim=axes).to(torch.bfloat16))(y_f, (1, L), axes=(1, 2))[:, 0, :S, :]
        y = y + kv * ssm_D[None, None, :]
        return q * y

    x = A_x
    g = _sigmoid((x * gate_w).sum(-1, keepdims=True))
    a = _A_ref(x, A_wqkv, A_wo)
    b = _B_ref(x, B_k, B_v, B_shift_k, B_ssm_k, B_ssm_D)
    return g * a + (1 - g) * b
```

```python
import re

TRANS = ("v_exp_f32", "v_log_f32", "v_rcp_f32", "v_rsq_f32", "v_sqrt_f32", "v_sin_f32", "v_cos_f32")

def _regs(tok):
    tok = tok.strip()
    tok = tok.lstrip("-")
    m = re.fullmatch(r"abs\((.*)\)", tok) or re.fullmatch(r"\|(.*)\|", tok)
    if m: tok = m.group(1)
    m = re.fullmatch(r"([vsa])(\d+)", tok)
    if m: return [(m.group(1), int(m.group(2)))]
    m = re.fullmatch(r"([vsa])\[(\d+):(\d+)\]", tok)
    if m: return [(m.group(1), i) for i in range(int(m.group(2)), int(m.group(3)) + 1)]
    if tok == "vcc": return [("s", 106), ("s", 107)]
    if tok == "vcc_lo": return [("s", 106)]
    if tok == "vcc_hi": return [("s", 107)]
    if tok == "m0": return [("s", 124)]
    if tok == "exec": return [("s", 126), ("s", 127)]
    if tok == "exec_lo": return [("s", 126)]
    if tok == "exec_hi": return [("s", 127)]
    return []

class Ins:
    def __init__(self, text):
        self.text = text
        t = text.split(";")[0].strip()
        self.label = t.endswith(":")
        self.directive = t.startswith(".")
        self.mn = ""
        self.wr = set(); self.rd = set()
        self.cls = "other"
        self.states = 1
        if self.label or self.directive or not t:
            self.states = 0
            return
        parts = t.split(None, 1)
        mn = parts[0]
        self.mn = mn
        rest = parts[1] if len(parts) > 1 else ""
        ops = []; cur = ""; depth = 0
        for ch in rest:
            if ch == "[": depth += 1
            if ch == "]": depth -= 1
            if ch == "," and depth == 0:
                ops.append(cur); cur = ""
            else: cur += ch
        if cur.strip(): ops.append(cur)
        mods = ""
        if ops:
            lp = ops[-1].strip().split(None, 1)
            ops[-1] = lp[0]
            mods = lp[1] if len(lp) > 1 else ""
        self.mods = mods
        ops = [o.strip() for o in ops]
        self.ops = ops
        R = [_regs(o) for o in ops]
        base = re.sub(r"_(e32|e64|dpp|sdwa)$", "", mn)
        self.base = base
        self.dpp = mn.endswith("_dpp")
        if mn == "s_nop":
            self.cls = "nop"; self.states = int(ops[0], 0) + 1
        elif mn.startswith("v_mfma"):
            self.cls = "mfma"
            self.passes = 8 if "32x32x16" in mn else 4
            self.wr = set(R[0]); self.A = set(R[1]) | set(R[2]); self.C = set(R[3]); self.Cl = R[3]; self.Dl = R[0]
            self.rd = self.A | self.C
        elif mn.startswith("v_"):
            self.cls = "valu"
            if base.startswith("v_cmp"):
                self.wr = set(R[0]); self.rd = set(sum(R[1:], []))
            elif base in ("v_add_co_u32", "v_sub_co_u32", "v_addc_co_u32"):
                self.wr = set(R[0]) | set(R[1]); self.rd = set(sum(R[2:], []))
            elif "permlane" in base and "swap" in base:
                self.wr = set(R[0]) | set(R[1]); self.rd = set(self.wr)
            else:
                self.wr = set(R[0]); self.rd = set(sum(R[1:], []))
                if base in ("v_fmac_f32", "v_dot2c_f32_bf16", "v_writelane_b32") or self.dpp:
                    self.rd |= set(R[0])
            self.trans = base in TRANS
            self.dot = base.startswith("v_dot")
        elif mn.startswith("buffer_") or mn.startswith("global_"):
            self.cls = "vmem"
            self.lds = " lds" in (" " + mods)
            allr = set(sum(R, []))
            if "load" in mn and not self.lds:
                self.wr = set(R[0]); self.rd = set(sum(R[1:], []))
            else:
                self.rd = allr
            if self.lds: self.rd |= {("s", 124)}
            self.widestore = ("store_dwordx4" in mn or "store_dwordx3" in mn)
            if self.widestore:
                self.sdata = set(R[0]) if mn.startswith("buffer_") else set(R[1])
        elif mn.startswith("ds_"):
            self.cls = "ds"
            if "read" in mn or "rtn" in mn or "permute" in mn or "swizzle" in mn:
                self.wr = set(R[0]); self.rd = set(sum(R[1:], []))
            else:
                self.rd = set(sum(R, []))
        elif mn.startswith("s_load") or mn.startswith("s_mem") or mn.startswith("s_buffer"):
            self.cls = "smem"; self.wr = set(R[0]); self.rd = set(sum(R[1:], []))
        elif mn.startswith("s_"):
            self.cls = "salu"
            if mn.startswith("s_cmp") or mn.startswith("s_bitcmp") or mn.startswith("s_cbranch") or mn in ("s_branch", "s_waitcnt", "s_barrier", "s_sleep", "s_setprio", "s_endpgm"):
                self.rd = set(sum(R, []))
            elif R:
                self.wr = set(R[0]); self.rd = set(sum(R[1:], []))
                if "saveexec" in mn: self.wr |= {("s", 126), ("s", 127)}

def need(p, c):
    n = 0
    vw = {r for r in p.wr if r[0] in "va"}
    sw = {r for r in p.wr if r[0] == "s"}
    if p.cls == "valu":
        if c.cls == "mfma" and vw & c.rd: n = max(n, 3 if p.dot else 2)
        if c.cls == "valu":
            if p.trans and not c.trans and vw & c.rd: n = max(n, 1)
            if p.trans and c.trans and vw & c.rd: n = max(n, 1)
            if c.dpp and vw & c.rd: n = max(n, 2)
            if "permlane" in c.base and vw & c.rd: n = max(n, 2)
            if c.base in ("v_readlane_b32", "v_readfirstlane_b32") and vw & c.rd: n = max(n, 1)
            if sw & c.rd: n = max(n, 4 if c.base in ("v_readlane_b32", "v_writelane_b32") else 2)
            if p.dot and (vw & (c.rd | c.wr)):
                same_c = (c.base == p.base and not (vw & set(sum([_regs(o) for o in c.ops[1:3]], []))))
                if not same_c: n = max(n, 3)
        if c.cls in ("vmem", "ds") and p.dot and vw & c.rd: n = max(n, 3)
        if c.cls == "vmem" and sw & c.rd: n = max(n, 5)
        if c.cls in ("salu",) and sw & c.rd: n = max(n, 1)
    if p.cls == "mfma":
        big = 12 if p.passes == 8 else 8
        if c.cls == "mfma":
            if p.wr & c.A: n = max(n, big)
            if p.wr & c.C and not (c.Cl == p.Dl and c.passes == p.passes): n = max(n, 10 if p.passes == 8 else 6)
            if p.wr & c.wr and not (p.wr & c.C): n = max(n, big)
        elif c.cls in ("valu", "vmem", "ds"):
            if p.wr & (c.rd | c.wr): n = max(n, big)
            if c.cls == "valu" and p.C & c.wr: n = max(n, 7 if p.passes == 8 else 3)
    if p.cls == "salu":
        if ("s", 124) in p.wr and c.cls == "vmem" and c.lds: n = max(n, 1)
    if p.cls == "vmem" and getattr(p, "widestore", False):
        if c.cls == "valu" and p.sdata & c.wr: n = max(n, 2)
        elif p.sdata & c.wr: n = max(n, 1)
    return n

class Asm:
    def __init__(self):
        self.ins = []
        self.nlab = 0
    def __call__(self, text):
        for line in text.strip().split("\n"):
            line = line.strip()
            if line: self._emit(Ins(line))
    def _emit(self, c):
        if c.states > 0 and c.cls != "nop":
            dist = 0; pad = 0
            for p in reversed(self.ins):
                if dist >= 20: break
                if p.states == 0: continue
                if p.mn in ("s_branch", "s_endpgm"): break
                nd = need(p, c)
                if nd > dist: pad = max(pad, nd - dist)
                dist += p.states
            while pad > 0:
                k = min(pad, 16)
                self.ins.append(Ins("s_nop %d" % (k - 1))); pad -= k
        self.ins.append(c)
    def label(self, name): self.ins.append(Ins(name + ":"))
    def newlabel(self, p="L"):
        self.nlab += 1
        return "%s_%d" % (p, self.nlab)
    def c(self, comment): self.ins.append(Ins("; " + comment))
    def text(self):
        out = []
        for i in self.ins:
            out.append(i.text if (i.label or i.directive) else "    " + i.text)
        return "\n".join(out) + "\n"

def vr(a, n=1):
    return "v%d" % a if n == 1 else "v[%d:%d]" % (a, a + n - 1)
def sr(a, n=1):
    return "s%d" % a if n == 1 else "s[%d:%d]" % (a, a + n - 1)
```

```python
import sys
from asmlib import Asm, vr, sr

NAME = "gated_mix__linear_attn_block__ssm_conv_h3__prompt"
DIAG = "--diag" in sys.argv

WS_U = 0
WS_PQ = 0x280000
WS_Y = 0x500000
WS_WOP = 0x780000
WS_KV = 0x850000
WS_G = 0x860000
WS_F0 = 0x870000
WS_FC = 0x878000
WS_FQ = 0x87A000
WS_FK = 0x87C000
WS_FY = 0x880000
WS_TS = 0x890000
WS_SIZE = 0x900000
KVH = 1792

SLOT = 36864
L_OFR = 36864
L_KVS = 77824
L_YST = [92160, 100352, 0, 8192]
L_PB = 0
L_RB = 77824
L_UB = 110592
L_UD = L_UB + 2048
L_HB = 129024
HSTR = 4224
L_SP = 145920
SPSTR = 544
L_CNT = 148096
L_YT = L_UD
L_S0C = 16384
L_RPC = 49152
LDS_BYTES = 148224

SX, SWQ, SWO, SK, SV, SSK, SH, SGW, SOUT, SDBG, SWS = [4 + 4 * i for i in range(11)]
SD = 48
sW, sXCD, sIDX, sRP, sCP, sTAG, sCNT = range(50, 57)
sRB, sCG, sQUAD, sCHL, sLC, sVAR, sCH, sYST = range(57, 65)
sT0, sT1, sT2, sT3, sT4, sT5, sT6, sT7 = range(66, 74)
sLOG = 74
sCI = 76
sDV = 77
STS = 80
def srd(b): return sr(b, 4)

vL = 0
VWO = 156

a = Asm()
nstamp = [0]
def stamp(i):
    if DIAG:
        a(f"s_memrealtime {sr(78,2)}")
        a("s_waitcnt lgkmcnt(0)")
        a(f"s_mov_b32 s{STS+i}, s78")

def poll(vaddr, soff, vdst, first_issued=False):
    L = a.newlabel("Lpoll"); D = a.newlabel("Lpd"); C = a.newlabel("Lpc")
    a(f"s_mov_b32 s{sCNT}, 0x20000")
    if first_issued: a(f"s_branch {C}")
    a.label(L)
    a(f"buffer_load_dword v{vdst}, v{vaddr}, {srd(SWS)}, {soff} offen sc1")
    a.label(C)
    a("s_waitcnt vmcnt(0)")
    a(f"v_cmp_ne_u32 vcc, s{sTAG}, v{vdst}")
    a(f"s_cbranch_vccz {D}")
    a(f"s_sub_u32 s{sCNT}, s{sCNT}, 1")
    a(f"s_cbranch_scc1 {D}")
    a("s_sleep 1")
    a(f"s_branch {L}")
    a.label(D)

def tag_issue(vz, vdst):
    a(f"v_mov_b32 v{vz}, 0")
    a(f"buffer_load_dword v{vdst}, v{vz}, {srd(SDBG)}, 0 offen sc1")

def tag_get(vz, vdst):
    L = a.newlabel("Ltag"); D = a.newlabel("Ltd"); C = a.newlabel("Ltc")
    a(f"s_mov_b32 s{sCNT}, 0x20000")
    a(f"s_branch {C}")
    a.label(L)
    a(f"buffer_load_dword v{vdst}, v{vz}, {srd(SDBG)}, 0 offen sc1")
    a.label(C)
    a("s_waitcnt vmcnt(0)")
    a(f"v_readfirstlane_b32 s{sTAG}, v{vdst}")
    a(f"s_cmp_lg_u32 s{sTAG}, 0")
    a(f"s_cbranch_scc1 {D}")
    a(f"s_sub_u32 s{sCNT}, s{sCNT}, 1")
    a(f"s_cbranch_scc1 {D}")
    a("s_sleep 1")
    a(f"s_branch {L}")
    a.label(D)

def flag_store(vt0, vt1, soff):
    a(f"v_mov_b32 v{vt0}, 0")
    a(f"v_mov_b32 v{vt1}, s{sTAG}")
    a("s_mov_b64 exec, 1")
    a(f"buffer_store_dword v{vt1}, v{vt0}, {srd(SWS)}, {soff} offen sc1")
    a("s_mov_b64 exec, -1")

def lds_sync(vaddr, vtmp, target):
    L = a.newlabel("Lls"); D = a.newlabel("Lld")
    a(f"v_mov_b32 v{vtmp}, 1")
    a("s_mov_b64 exec, 1")
    a(f"ds_add_u32 v{vaddr}, v{vtmp}")
    a("s_mov_b64 exec, -1")
    a(f"s_mov_b32 s{sCNT}, 0x400000")
    a.label(L)
    a(f"ds_read_b32 v{vtmp}, v{vaddr}")
    a("s_waitcnt lgkmcnt(0)")
    a(f"v_readfirstlane_b32 s{sT7}, v{vtmp}")
    a(f"s_cmp_ge_u32 s{sT7}, {target}")
    a(f"s_cbranch_scc1 {D}")
    a(f"s_sub_u32 s{sCNT}, s{sCNT}, 1")
    a(f"s_cbranch_scc0 {L}")
    a.label(D)

def div20(vq, vr_, vp):
    a(f"v_mul_u32_u24 v{vq}, 3277, v{vp}")
    a(f"v_lshrrev_b32 v{vq}, 16, v{vq}")
    a(f"v_mul_u32_u24 v{vr_}, 20, v{vq}")
    a(f"v_sub_u32 v{vr_}, v{vp}, v{vr_}")
for p in range(1000): assert (p * 3277) >> 16 == p // 20

def entry():
    a(f"s_cmp_ge_u32 s2, 256")
    a("s_cbranch_scc1 Lend")
    for s, off in ((SX, 0), (SWQ, 8), (SK, 32), (SV, 40), (SSK, 48), (SWS, 96), (SDBG, 88), (SH, 56), (SWO, 16), (SGW, 72), (SOUT, 80), (SD, 64)):
        a(f"s_load_dwordx2 {sr(s,2)}, s[0:1], {off}")
    a("v_lshrrev_b32 v1, 6, v0")
    a(f"v_and_b32 v{vL}, 63, v0")
    a(f"v_readfirstlane_b32 s{sW}, v1")
    for s, n in ((SX, 2621440), (SWQ, 2457600), (SWO, 819200), (SK, 2621440), (SV, 2621440), (SSK, 5120), (SH, 2621440), (SGW, 1280), (SOUT, 2621440), (SDBG, 256), (SWS, WS_SIZE)):
        a(f"s_mov_b32 s{s+2}, {n}")
        a(f"s_mov_b32 s{s+3}, 0x20000")
    a(f"s_and_b32 s{sXCD}, s2, 7")
    a(f"s_lshr_b32 s{sIDX}, s2, 3")
    a(f"s_and_b32 s{sRP}, s2, 3")
    a(f"s_lshr_b32 s{sCP}, s{sXCD}, 2")
    a(f"s_mov_b32 s{sLOG}, 0x3fb8aa3b")
    a(f"s_mov_b32 s{sLOG+1}, 0x3fb8aa3b")
    a(f"s_mov_b32 s{sTAG}, 0")
    a(f"s_and_b32 s{sT0}, s{sIDX}, 3")
    a(f"s_lshl_b32 s{sRB}, s{sRP}, 2")
    a(f"s_add_u32 s{sRB}, s{sRB}, s{sT0}")
    a(f"s_and_b32 s{sT0}, s{sIDX}, 7")
    a(f"s_lshl_b32 s{sCI}, s{sXCD}, 3")
    a(f"s_add_u32 s{sCI}, s{sCI}, s{sT0}")
    if DIAG:
        for i in range(16): a(f"s_mov_b32 s{STS+i}, 0")
    stamp(0)
    if DIAG:
        a(f"s_memtime {sr(78,2)}")
        a("s_waitcnt lgkmcnt(0)")
        a(f"s_mov_b32 s{STS+14}, s78")
    a(f"s_cmp_ge_u32 s{sIDX}, 24")
    a("s_cbranch_scc1 Lctype")
    a(f"s_cmp_ge_u32 s{sW}, 4")
    a("s_cbranch_scc1 Lbwave")
    a(f"s_cmp_ge_u32 s{sIDX}, 16")
    a("s_cbranch_scc1 Lqa")
    a("s_branch Lkva")

def s0_loads(s_chb):
    a.c("S0 loads")
    a(f"v_lshrrev_b32 v1, 3, v{vL}")
    a(f"v_and_b32 v2, 7, v{vL}")
    a(f"v_mul_u32_u24 v3, 5120, v1")
    a(f"v_lshl_add_u32 v3, v2, 4, v3")
    a(f"s_mul_i32 s{sT0}, s{sCI}, 40960")
    a(f"s_lshl_b32 s{sT1}, s{s_chb}, 7")
    a(f"s_add_u32 s{sT0}, s{sT0}, s{sT1}")
    a(f"v_add_u32 v136, s{sT0}, v3")
    a(f"v_subrev_u32 v137, 3840, v136")
    a(f"v_lshlrev_b32 v138, 6, v2")
    a(f"s_lshl_b32 s{sT1}, s{s_chb}, 9")
    a("s_waitcnt lgkmcnt(0)")
    for i in range(3): a(f"buffer_load_dwordx4 {vr(4+4*i,4)}, v137, {srd(SK)}, 0 offen offset:{1280*i}")
    for i in range(4): a(f"buffer_load_dwordx4 {vr(16+4*i,4)}, v136, {srd(SK)}, 0 offen offset:{1280*i}")
    for i in range(4): a(f"buffer_load_dwordx4 {vr(32+4*i,4)}, v136, {srd(SV)}, 0 offen offset:{1280*i}")
    for i in range(4): a(f"buffer_load_dwordx4 {vr(48+4*i,4)}, v138, {srd(SSK)}, s{sT1} offen offset:{16*i}")

def s0_compute(s_chb, s_scr, nafter):
    a.c("S0 compute")
    a(f"v_mul_u32_u24 v139, 576, v1")
    a(f"v_lshl_add_u32 v139, v2, 4, v139")
    a(f"v_add_u32 v139, s{s_scr}, v139")
    a(f"v_and_b32 v140, 15, v{vL}")
    a(f"v_mul_u32_u24 v141, 144, v140")
    a(f"v_lshrrev_b32 v142, 4, v{vL}")
    a(f"v_lshl_add_u32 v141, v142, 3, v141")
    a(f"v_add_u32 v141, s{s_scr}, v141")
    a(f"s_and_b32 s{sT0}, s{sCI}, 3")
    a(f"v_xor_b32 v140, s{sT0}, v140")
    a(f"v_lshlrev_b32 v140, 4, v140")
    a(f"v_lshl_add_u32 v140, v142, 14, v140")
    a(f"s_lshl_b32 s{sT0}, s{s_chb}, 18")
    a(f"s_lshl_b32 s{sT1}, s{sCI}, 8")
    a(f"s_add_u32 s{sT0}, s{sT0}, s{sT1}")
    a(f"s_waitcnt vmcnt({nafter})")
    KF, VF, WF, AC, UO = 64, 78, 86, 94, 104
    for p in range(4):
        for cc in range(2):
            c = 2 * p + cc
            for h in range(2):
                a(f"v_lshlrev_b32 v{WF+4*h+cc}, 16, v{48+2*c+h}")
                a(f"v_and_b32 v{WF+4*h+2+cc}, 0xffff0000, v{48+2*c+h}")
        for r in range(7):
            a(f"v_lshlrev_b32 v{KF+2*r}, 16, v{4+4*r+p}")
            a(f"v_and_b32 v{KF+2*r+1}, 0xffff0000, v{4+4*r+p}")
        for r in range(4):
            a(f"v_lshlrev_b32 v{VF+2*r}, 16, v{32+4*r+p}")
            a(f"v_and_b32 v{VF+2*r+1}, 0xffff0000, v{32+4*r+p}")
        for i in range(4): a(f"v_pk_mul_f32 {vr(AC+2*i,2)}, {vr(KF+2*(i+3),2)}, {vr(WF,2)}")
        for d in range(1, 4):
            for i in range(4): a(f"v_pk_fma_f32 {vr(AC+2*i,2)}, {vr(KF+2*(i+3-d),2)}, {vr(WF+2*d,2)}, {vr(AC+2*i,2)}")
        for i in range(4): a(f"v_pk_mul_f32 {vr(AC+2*i,2)}, {vr(AC+2*i,2)}, {vr(VF+2*i,2)}")
        for i in range(4): a(f"v_cvt_pk_bf16_f32 v{UO+4*i+p}, v{AC+2*i}, v{AC+2*i+1}")
    for i in range(4): a(f"ds_write_b128 v139, {vr(UO+4*i,4)} offset:{144*i}")
    a("s_waitcnt lgkmcnt(0)")
    for j in range(4):
        a(f"ds_read_b64_tr_b16 {vr(120+4*j,2)}, v141 offset:{32*j}")
        a(f"ds_read_b64_tr_b16 {vr(122+4*j,2)}, v141 offset:{32*j+2304}")
    for j in range(4):
        a(f"s_waitcnt lgkmcnt({6-2*j})")
        a(f"buffer_store_dwordx4 {vr(120+4*j,4)}, v140, {srd(SWS)}, s{sT0} offen sc1")
        if j < 3: a(f"s_add_u32 s{sT0}, s{sT0}, 65536")

def f0_soff(s_chb, sdst):
    a(f"s_lshl_b32 s{sdst}, s{s_chb}, 6")
    a(f"s_add_u32 s{sdst}, s{sdst}, s{sCI}")
    a(f"s_lshl_b32 s{sdst}, s{sdst}, 5")
    a(f"s_add_u32 s{sdst}, s{sdst}, {WS_F0}")

ACC = 76
FB = [4, 40]
vX0, vX1, vWe, vWo = 160, 161, 162, 163
sC, sSL = sT2, sT3

def a_setup():
    a.c("A-wave address setup")
    a(f"s_and_b32 s{sT0}, s{sW}, 1")
    a(f"s_lshr_b32 s{sT1}, s{sW}, 1")
    a(f"v_and_b32 v164, 15, v{vL}")
    a(f"v_lshrrev_b32 v165, 4, v{vL}")
    a(f"v_lshrrev_b32 v166, 1, v164")
    a(f"v_xor_b32 v166, v165, v166")
    a(f"v_lshlrev_b32 v166, 4, v166")
    a(f"v_lshl_add_u32 v166, v164, 7, v166")
    a(f"s_lshl_b32 s{sT4}, s{sT1}, 13")
    a(f"v_add_u32 v{vX0}, s{sT4}, v166")
    a(f"v_xor_b32 v{vX1}, 64, v{vX0}")
    a(f"v_bfe_u32 v166, v{vL}, 2, 2")
    a(f"v_lshl_add_u32 v166, v165, 3, v166")
    a(f"v_mul_u32_u24 v166, 320, v166")
    a(f"v_and_b32 v167, 3, v{vL}")
    a(f"v_lshl_add_u32 v166, v167, 3, v166")
    a(f"s_mul_i32 s{sT4}, s{sT0}, 160")
    a(f"s_add_u32 s{sT4}, s{sT4}, 16384")
    a(f"v_add_u32 v166, s{sT4}, v166")
    a(f"v_and_b32 v167, 1, v165")
    a(f"s_lshl_b32 s{sT4}, s{sT0}, 6")
    a(f"s_sub_u32 s{sT4}, 32, s{sT4}")
    a(f"v_mul_lo_u32 v167, s{sT4}, v167")
    a(f"v_add_u32 v{vWe}, v166, v167")
    a(f"v_sub_u32 v{vWo}, v166, v167")

def a_reads(buf, ks):
    out = []
    b = FB[buf]
    xs = [f"ds_read_b128 {vr(b+4*rt,4)}, v{vX1 if ks else vX0} offset:{2048*rt}" for rt in range(4)]
    ws = []
    for tt in range(5):
        for sec in range(2):
            ws.append(f"ds_read_b64_tr_b16 {vr(b+16+4*tt+2*sec,2)}, v{vWo if tt&1 else vWe} offset:{tt*32+ks*10240+sec*1280}")
    return [xs[0], ws[0], ws[1], xs[1], ws[2], ws[3], xs[2], ws[4], ws[5], xs[3]] + ws[6:]

def a_mfmas(buf, qtype, first=False):
    b = FB[buf]
    out = []
    for tt in range(5):
        for rt in range(4):
            d = vr(ACC + 4 * (rt * 5 + tt), 4)
            xf = vr(b + 4 * rt, 4); wf = vr(b + 16 + 4 * tt, 4)
            A, B = (wf, xf) if qtype else (xf, wf)
            out.append(f"v_mfma_f32_16x16x32_bf16 {d}, {A}, {B}, {'0' if first else d}")
    return out

def interleave(mf, rd):
    j = 0
    for i, m in enumerate(mf):
        a(m)
        if j < len(rd): a(rd[j]); j += 1
    while j < len(rd): a(rd[j]); j += 1

def a_mainloop(qtype, hook=None):
    t = "q" if qtype else "k"
    a.c("A main loop")
    for i in range(80): a(f"v_mov_b32 v{ACC+i}, 0")
    a(f"s_mov_b32 s{sC}, 0")
    a(f"s_mov_b32 s{sSL}, 0")
    a("s_waitcnt lgkmcnt(0)")
    a("s_barrier")
    stamp(1)
    for r in a_reads(0, 0): a(r)
    a(".p2align 6")
    a.label(f"Lml{t}")
    a("s_waitcnt lgkmcnt(0)")
    interleave(a_mfmas(0, qtype), a_reads(1, 1))
    a(f"s_add_u32 s{sSL}, s{sSL}, 1")
    a(f"s_cmp_eq_u32 s{sSL}, 3")
    a(f"s_mov_b32 s{sT4}, {SLOT}")
    a(f"s_cselect_b32 s{sT4}, {-2*SLOT & 0xffffffff}, s{sT4}")
    a(f"s_cselect_b32 s{sSL}, 0, s{sSL}")
    a(f"s_add_u32 s{sC}, s{sC}, 1")
    a("s_waitcnt lgkmcnt(0)")
    for v in (vX0, vX1, vWe, vWo): a(f"v_add_u32 v{v}, s{sT4}, v{v}")
    a(f"s_cmp_eq_u32 s{sC}, 10")
    a(f"s_cbranch_scc1 Lmx{t}")
    if hook:
        a(f"s_cmp_eq_u32 s{sC}, 3")
        a(f"s_cbranch_scc1 Lhook{t}")
        a.label(f"Lhookd{t}")
    a("s_barrier")
    interleave(a_mfmas(1, qtype), a_reads(0, 0))
    a(f"s_branch Lml{t}")
    if hook:
        a.label(f"Lhook{t}")
        hook()
        a(f"s_branch Lhookd{t}")
    a.label(f"Lmx{t}")
    for m in a_mfmas(1, qtype): a(m)
    stamp(2)

def phi_pairs(regs, tmp):
    B = 4
    for i in range(0, len(regs), B):
        batch = regs[i:i + B]
        for j, r in enumerate(batch): a(f"v_pk_mul_f32 {vr(tmp+2*j,2)}, {vr(r,2)}, {sr(sLOG,2)}")
        for j, r in enumerate(batch):
            a(f"v_exp_f32_e64 v{tmp+2*j}, v{tmp+2*j} clamp")
            a(f"v_exp_f32_e64 v{tmp+2*j+1}, v{tmp+2*j+1} clamp")
        for j, r in enumerate(batch):
            a(f"v_max_f32 v{r}, 0x358637bd, v{r}")
            a(f"v_max_f32 v{r+1}, 0x358637bd, v{r+1}")
        for j, r in enumerate(batch): a(f"v_pk_add_f32 {vr(r,2)}, {vr(r,2)}, {vr(tmp+2*j,2)}")

def acc(rt, tt): return ACC + 4 * (rt * 5 + tt)

def fc_addr(v):
    a(f"v_lshlrev_b32 v{v}, 5, v{vL}")
    a(f"v_add_u32 v{v}, {WS_FC}, v{v}")

def kva():
    a.label("Lkva")
    a(f"s_or_b32 s{sT0}, s2, s{sW}")
    a(f"s_cmp_lg_u32 s{sT0}, 0")
    a("s_cbranch_scc1 Lkva1")
    a(f"s_memrealtime {sr(sT0,2)}")
    a("s_waitcnt lgkmcnt(0)")
    a(f"s_lshl_b32 s{sT1}, s{sT1}, 27")
    a(f"s_xor_b32 s{sT0}, s{sT0}, s{sT1}")
    a(f"s_or_b32 s{sT0}, s{sT0}, 1")
    a("v_mov_b32 v1, 0")
    a(f"v_mov_b32 v2, s{sT0}")
    a("s_mov_b64 exec, 1")
    a(f"buffer_store_dword v2, v1, {srd(SDBG)}, 0 offen sc1")
    a("s_mov_b64 exec, -1")
    a.label("Lkva1")
    a(f"s_lshr_b32 s{sT0}, s{sIDX}, 2")
    a(f"s_lshl_b32 s{sCG}, s{sCP}, 2")
    a(f"s_add_u32 s{sCG}, s{sCG}, s{sT0}")
    a_setup()
    a(f"s_mul_i32 s{sT4}, s{sW}, 3584")
    a(f"s_add_u32 s{sT4}, s{sT4}, {L_KVS}")
    a("v_mul_u32_u24 v166, 336, v165")
    a(f"v_add_u32 v166, s{sT4}, v166")
    a("v_lshl_add_u32 v168, v164, 4, v166")
    a("v_add_u32 v167, 8, v164")
    a("v_subrev_u32 v170, 12, v164")
    a("v_cmp_lt_u32 vcc, 11, v164")
    a("v_cndmask_b32 v167, v167, v170, vcc")
    a("v_cmp_eq_u32 vcc, 0, v164")
    a("v_mov_b32 v170, 20")
    a("v_cndmask_b32 v167, v167, v170, vcc")
    a("v_lshl_add_u32 v169, v167, 4, v166")
    a_mainloop(False)
    a.c("KV epilogue")
    tag_issue(171, 172)
    fc_addr(173)
    a(f"buffer_load_dword v174, v173, {srd(SWS)}, 0 offen sc1")
    TM = 4
    XS = 12
    for rt in range(4):
        for i in range(4): a(f"v_mov_b32 v{XS+4*rt+i}, v{acc(rt,4)+i}")
    regs = []
    for rt in range(4):
        for tt in (0, 1, 4): regs += [acc(rt, tt), acc(rt, tt) + 2]
    phi_pairs(regs, TM)
    FRG = 28
    def fr(t, p): return FRG + 8 * t + 4 * p
    a("v_cmp_gt_u32 vcc, 8, v164")
    a("v_mov_b32 v175, 0x3f803f80")
    for rt in range(4):
        for tt in range(5):
            for h in range(2):
                a(f"v_cvt_pk_bf16_f32 v{fr(tt,rt>>1)+2*(rt&1)+h}, v{acc(rt,tt)+2*h}, v{acc(rt,tt)+2*h+1}")
        for h in range(2):
            d = fr(5, rt >> 1) + 2 * (rt & 1) + h
            a(f"v_cvt_pk_bf16_f32 v{d}, v{XS+4*rt+2*h}, v{XS+4*rt+2*h+1}")
            a(f"v_cndmask_b32 v{d}, v{d}, v175, vcc")
    prods = [(0, 2), (0, 5), (4, 2), (4, 5), (1, 3), (1, 5), (4, 3)]
    PD = 80
    for p in range(2):
        for i, (ta, tb) in enumerate(prods):
            d = vr(PD + 4 * i, 4)
            a(f"v_mfma_f32_16x16x32_bf16 {d}, {vr(fr(ta,p),4)}, {vr(fr(tb,p),4)}, {'0' if p==0 else d}")
    def wr(i, va, off, mlo, mhi):
        a(f"s_mov_b32 exec_lo, {mlo}")
        a(f"s_mov_b32 exec_hi, {mhi}")
        a(f"ds_write_b128 v{va}, {vr(PD+4*i,4)} offset:{off}")
    wr(0, 168, 0, -1, -1)
    wr(1, 169, 0, 0x0f010f01, 0x0f010f01)
    wr(2, 168, 4 * 336, 0xffff, 0)
    wr(3, 169, 4 * 336, 0x0f01, 0)
    wr(3, 169, KVH - 336, 0xf0010000, 0)
    wr(4, 168, KVH + 336 + 64, -1, -1)
    wr(5, 169, KVH + 336, 0xf001f001, 0xf001f001)
    wr(6, 168, KVH + 64 - 336, 0xffff0000, 0)
    a("s_mov_b64 exec, -1")
    a(f"s_and_b32 s{sT0}, s{sW}, 1")
    a(f"s_lshr_b32 s{sT1}, s{sW}, 1")
    a(f"s_lshl_b32 s{sT4}, s{sT0}, 2")
    a(f"s_add_u32 s{sT4}, s{sT4}, {L_CNT}")
    a(f"v_mov_b32 v176, s{sT4}")
    a(f"s_mul_i32 s{sT4}, s{sT0}, 3584")
    a(f"s_mul_i32 s{sT5}, s{sT1}, {KVH}")
    a(f"s_add_u32 s{sT4}, s{sT4}, s{sT5}")
    a(f"v_lshlrev_b32 v178, 2, v{vL}")
    a(f"s_add_u32 s{sT5}, s{sT4}, {L_KVS}")
    a(f"v_add_u32 v179, s{sT5}, v178")
    a(f"s_mul_i32 s{sT5}, s{sCG}, {4*KVH}")
    a(f"s_add_u32 s{sT4}, s{sT4}, s{sT5}")
    a(f"s_add_u32 s{sT4}, s{sT4}, {WS_KV}")
    a("s_waitcnt lgkmcnt(0)")
    lds_sync(176, 177, 2)
    for i in range(7):
        a(f"ds_read_b32 v{4+i}, v179 offset:{256*i}")
        a(f"ds_read_b32 v{12+i}, v179 offset:{256*i+7168}")
    tag_get(171, 172)
    poll(173, "0", 174, first_issued=True)
    stamp(3)
    for i in range(7):
        a(f"s_waitcnt lgkmcnt({12-2*i})")
        a(f"v_add_f32 v{4+i}, v{4+i}, v{12+i}")
        a(f"buffer_atomic_add_f32 v{4+i}, v178, {srd(SWS)}, s{sT4} offen offset:{256*i}")
    a(f"s_lshl_b32 s{sT5}, s{sCG}, 4")
    a(f"s_add_u32 s{sT5}, s{sT5}, s{sRB}")
    a(f"s_lshl_b32 s{sT5}, s{sT5}, 2")
    a(f"s_add_u32 s{sT5}, s{sT5}, s{sW}")
    a(f"s_lshl_b32 s{sT5}, s{sT5}, 5")
    a(f"s_add_u32 s{sT5}, s{sT5}, {WS_FK}")
    a("s_waitcnt vmcnt(0)")
    flag_store(4, 5, f"s{sT5}")
    stamp(4)
    a("s_branch Ls3wo")

def qa():
    a.label("Lqa")
    a(f"s_add_u32 s{sCHL}, s{sW}, 6")
    s0_loads(sCHL)
    a(f"s_mul_i32 s{sLC}, s{sW}, 4608")
    a(f"s_add_u32 s{sLC}, s{sLC}, {L_UB}")
    s0_compute(sCHL, sLC, 0)
    tag_issue(171, 172)
    a(f"s_bfe_u32 s{sT0}, s{sIDX}, 0x10002")
    a(f"s_lshl_b32 s{sCG}, s{sCP}, 1")
    a(f"s_add_u32 s{sCG}, s{sCG}, s{sT0}")
    a_setup()
    def hook():
        tag_get(171, 172)
        f0_soff(sCHL, sT5)
        flag_store(173, 174, f"s{sT5}")
    a_mainloop(True, hook)
    a.c("Q epilogue")
    fc_addr(173)
    a(f"buffer_load_dword v174, v173, {srd(SWS)}, 0 offen sc1")
    a("v_lshrrev_b32 v166, 1, v165")
    a("v_and_b32 v167, 1, v165")
    a("v_lshlrev_b32 v168, 4, v164")
    a("v_lshl_add_u32 v168, v167, 9, v168")
    a("v_lshl_add_u32 v169, v166, 3, v168")
    a("v_add_u32 v169, 4096, v169")
    a("v_lshl_add_u32 v168, v166, 10, v168")
    a(f"s_and_b32 s{sT0}, s{sW}, 1")
    a(f"s_lshr_b32 s{sT1}, s{sW}, 1")
    a(f"s_lshl_b32 s{sT4}, s{sRB}, 1")
    a(f"s_add_u32 s{sT4}, s{sT4}, s{sT1}")
    a(f"s_lshl_b32 s{sT5}, s{sCG}, 1")
    a(f"s_add_u32 s{sT5}, s{sT5}, s{sT0}")
    a(f"s_mul_i32 s{sT0}, s{sT4}, {80*1024}")
    a(f"s_mul_i32 s{sT1}, s{sT5}, {5*1024}")
    a(f"s_add_u32 s{sT0}, s{sT0}, s{sT1}")
    a(f"s_add_u32 s{sT0}, s{sT0}, {WS_PQ}")
    a(f"s_add_u32 s{sT1}, s{sT0}, {40*1024}")
    a(f"s_lshl_b32 s{sT4}, s{sT4}, 3")
    a(f"s_add_u32 s{sT4}, s{sT4}, s{sT5}")
    a(f"s_lshl_b32 s{sT4}, s{sT4}, 5")
    a(f"s_add_u32 s{sT4}, s{sT4}, {WS_FQ}")
    for rt in range(4):
        regs = []
        for tt in range(5): regs += [acc(rt, tt), acc(rt, tt) + 2]
        phi_pairs(regs, 4)
        O = 16 + 12 * rt
        for tt in range(5):
            for h in range(2): a(f"v_cvt_pk_bf16_f32 v{O+2*tt+h}, v{acc(rt,tt)+2*h}, v{acc(rt,tt)+2*h+1}")
        so = f"s{sT1 if rt>>1 else sT0}"
        for p in range(2):
            a(f"buffer_store_dwordx4 {vr(O+4*p,4)}, v168, {srd(SWS)}, {so} offen offset:{256*(rt&1)+2048*p} sc1")
        a(f"buffer_store_dwordx2 {vr(O+8,2)}, v169, {srd(SWS)}, {so} offen offset:{256*(rt&1)} sc1")
    stamp(3)
    a("s_waitcnt vmcnt(0)")
    flag_store(4, 5, f"s{sT4}")
    a(f"v_cmp_ne_u32 vcc, s{sTAG}, v174")
    a("s_cbranch_vccz Lqfc")
    poll(173, "0", 174)
    a.label("Lqfc")
    stamp(4)
    a("s_branch Ls3wo")

def h_dma(nper):
    a(f"v_lshlrev_b32 v150, 4, v{vL}")
    a(f"s_lshr_b32 s{sT4}, s{sT0}, 1")
    a(f"s_and_b32 s{sT5}, s{sT0}, 1")
    a(f"s_lshl_b32 s{sT5}, s{sT5}, 11")
    a(f"s_add_u32 s{sT6}, s{sT1}, s{sT4}")
    a(f"s_lshl_b32 s{sT6}, s{sT6}, 12")
    a(f"s_add_u32 s{sT6}, s{sT6}, s{sT5}")
    a(f"s_mul_i32 s{sT4}, s{sT4}, {HSTR}")
    a(f"s_add_u32 s{sT4}, s{sT4}, s{sT5}")
    a(f"s_add_u32 m0, s{sT4}, {L_HB+128}")
    a(f"buffer_load_dwordx4 v150, {srd(SH)}, s{sT6} offen lds")
    a(f"buffer_load_dwordx4 v150, {srd(SH)}, s{sT6} offen offset:1024 lds")

def conv_params(j):
    a(f"s_lshr_b32 s{sLC}, s{j}, 1")
    a(f"s_and_b32 s{sVAR}, s{j}, 1")
    a(f"s_add_u32 s{sCHL}, s{sT1}, s{sLC}")
    a(f"s_lshl_b32 s{sCH}, s{sQUAD}, 2")
    a(f"s_add_u32 s{sCH}, s{sCH}, s{sCHL}")
    a(f"s_and_b32 s{sT4}, s{sLC}, 1")
    a(f"s_lshl_b32 s{sT4}, s{sT4}, 13")
    a(f"s_cmp_lt_u32 s{sLC}, 2")
    a(f"s_cselect_b32 s{sYST}, {L_YST[0]}, 0")
    a(f"s_add_u32 s{sYST}, s{sYST}, s{sT4}")
    a(f"s_lshl_b32 s{sT4}, s{sCH}, 1")
    a(f"s_and_b32 s{sT4}, s{sT4}, -4")
    a(f"s_load_dword s{sDV}, {sr(SD,2)}, s{sT4}")

def zero_pads(j):
    a("v_mov_b32 v24, 0")
    a("v_mov_b32 v25, 0")
    a(f"v_lshlrev_b32 v22, 3, v{vL}")
    a(f"s_and_b32 s{sT6}, s{j}, 3")
    a(f"s_lshl_b32 s{sT4}, s{sT6}, 9")
    a(f"s_add_u32 s{sT4}, s{sT4}, {L_UB}")
    a(f"v_add_u32 v23, s{sT4}, v22")
    a("ds_write_b64 v23, v[24:25]")
    a(f"s_mul_i32 s{sT4}, s{sT6}, {HSTR}")
    a(f"s_add_u32 s{sT4}, s{sT4}, {L_HB}")
    a(f"v_add_u32 v23, s{sT4}, v22")
    a("s_mov_b64 exec, 0xffff")
    a("ds_write_b64 v23, v[24:25]")
    a(f"v_add_u32 v23, {L_CNT}, v22")
    a("s_mov_b64 exec, 0xff")
    a("ds_write_b64 v23, v[24:25]")
    a(f"s_mul_i32 s{sT4}, s{sT6}, {SPSTR}")
    a(f"s_add_u32 s{sT4}, s{sT4}, {L_SP}")
    a(f"v_add_u32 v23, s{sT4}, v22")
    a("s_mov_b64 exec, 3")
    a("ds_write_b64 v23, v[24:25]")
    a("s_mov_b64 exec, -1")

def f0_addr(v):
    a(f"s_lshr_b32 s{sT4}, s{sQUAD}, 4")
    a(f"s_lshl_b32 s{sT4}, s{sT4}, 11")
    a(f"s_add_u32 s{sT4}, s{sT4}, {WS_F0}")
    a(f"v_lshlrev_b32 v{v}, 5, v{vL}")
    a(f"v_add_u32 v{v}, s{sT4}, v{v}")

def wo_loads():
    a(f"s_lshr_b32 s{sT4}, s{sIDX}, 4")
    a(f"s_lshl_b32 s{sT5}, s{sCP}, 1")
    a(f"s_add_u32 s{sT4}, s{sT4}, s{sT5}")
    a(f"s_lshl_b32 s{sT4}, s{sT4}, 3")
    a(f"s_add_u32 s{sT4}, s{sT4}, s{sW}")
    a(f"s_mul_i32 s{sT4}, s{sT4}, 25600")
    a(f"s_add_u32 s{sT4}, s{sT4}, {WS_WOP}")
    a(f"v_lshlrev_b32 v1, 4, v{vL}")
    for i in range(25):
        a(f"buffer_load_dwordx4 {vr(VWO+4*i,4)}, v1, {srd(SWS)}, s{sT4} offen offset:{1024*(i&3)} sc1")
        if (i & 3) == 3: a(f"s_add_u32 s{sT4}, s{sT4}, 4096")

def u_dma(j, nper):
    a(f"v_lshlrev_b32 v150, 4, v{vL}")
    a(f"s_mul_i32 s{sT4}, s{j}, {1024*nper}")
    a(f"s_lshl_b32 s{sT5}, s{sQUAD}, 14")
    a(f"s_add_u32 s{sT5}, s{sT5}, s{sT4}")
    a(f"s_add_u32 m0, s{sT4}, {L_UD}")
    for i in range(nper): a(f"buffer_load_dwordx4 v150, {srd(SWS)}, s{sT5} offen offset:{1024*i} sc1 lds")

def bwave():
    a.label("Lbwave")
    sJ = sCG
    sXO, sWO_ = sT2, sT3
    a(f"s_sub_u32 s{sJ}, s{sW}, 4")
    a(f"v_lshrrev_b32 v1, 3, v{vL}")
    a(f"v_mul_u32_u24 v1, 1280, v1")
    a(f"v_lshrrev_b32 v2, 4, v{vL}")
    a(f"v_and_b32 v3, 7, v{vL}")
    a("v_xor_b32 v2, v2, v3")
    a("v_lshl_add_u32 v4, v2, 4, v1")
    a("v_xor_b32 v5, 64, v4")
    a("v_add_u32 v5, 10240, v5")
    a(f"s_lshl_b32 s{sXO}, s{sRB}, 2")
    a(f"s_add_u32 s{sXO}, s{sXO}, s{sJ}")
    a(f"s_mul_i32 s{sXO}, s{sXO}, 40960")
    kvc = [0, 1, 3, 4, 0, 1, 3, 4, 2, 2]; kvb = [0, 0, 0, 0, 1, 1, 1, 1, 0, 1]
    qch = [0, 2, 1, 3, 4, 6, 5, 7, 8, 9]
    T1kv = sum(c << (3 * i) for i, c in enumerate(kvc)); T2kv = sum(b << i for i, b in enumerate(kvb))
    T1q = sum((c & 7) << (3 * i) for i, c in enumerate(qch)); T2q = sum((c >> 3) << i for i, c in enumerate(qch))
    a(f"s_lshr_b32 s{sT0}, s{sIDX}, 2")
    a(f"s_lshl_b32 s{sT1}, s{sCP}, 2")
    a(f"s_add_u32 s{sT1}, s{sT1}, s{sT0}")
    a(f"s_mul_i32 s{sT1}, s{sT1}, 160")
    a(f"s_add_u32 s{sT1}, s{sT1}, 1280")
    a(f"s_and_b32 s{sT0}, s{sT0}, 1")
    a(f"s_lshl_b32 s{sT4}, s{sCP}, 1")
    a(f"s_add_u32 s{sT0}, s{sT0}, s{sT4}")
    a(f"s_mul_i32 s{sT0}, s{sT0}, 320")
    a(f"s_cmp_ge_u32 s{sIDX}, 16")
    a(f"s_cselect_b32 s{sWO_}, s{sT0}, s{sT1}")
    a(f"s_mov_b32 s{sT4}, {T1kv}")
    a(f"s_cselect_b32 s{sT4}, {T1q}, s{sT4}")
    a(f"s_mov_b32 s{sT5}, {T2kv}")
    a(f"s_cselect_b32 s{sT5}, {T2q}, s{sT5}")
    a(f"s_mov_b32 s{sT6}, 1280")
    a(f"s_cselect_b32 s{sT6}, 128, s{sT6}")
    a(f"s_mov_b32 s{sT7}, 80")
    a(f"s_cselect_b32 s{sT7}, 160, s{sT7}")
    a(f"s_mul_i32 s{sT0}, s{sJ}, {16*3840}")
    a(f"s_add_u32 s{sWO_}, s{sWO_}, s{sT0}")
    sM = sYST
    sMW = sCH
    a(f"s_lshl_b32 s{sM}, s{sJ}, 12")
    a(f"s_mul_i32 s{sMW}, s{sJ}, 5120")
    a(f"s_add_u32 s{sMW}, s{sMW}, 16384")
    def chunk_x():
        a(f"s_mov_b32 m0, s{sM}")
        a(f"buffer_load_dwordx4 v4, {srd(SX)}, s{sXO} offen lds")
        a(f"s_add_u32 m0, s{sM}, 1024")
        a(f"buffer_load_dwordx4 v5, {srd(SX)}, s{sXO} offen lds")
        a(f"s_add_u32 m0, s{sM}, 2048")
        a(f"buffer_load_dwordx4 v6, {srd(SX)}, s{sXO} offen lds")
        a(f"s_add_u32 m0, s{sM}, 3072")
        a(f"buffer_load_dwordx4 v7, {srd(SX)}, s{sXO} offen lds")
        a(f"s_add_u32 s{sXO}, s{sXO}, 128")
    def chunk_w():
        for i in range(5):
            a(f"s_add_u32 m0, s{sMW}, {1024*i}")
            a(f"buffer_load_dwordx4 v{8+i}, {srd(SWQ)}, s{sWO_} offen lds")
        a(f"s_add_u32 s{sWO_}, s{sWO_}, {64*3840}")
    def adv(sd):
        a(f"s_add_u32 s{sM}, s{sM}, {sd}")
        a(f"s_add_u32 s{sMW}, s{sMW}, {sd}")
    a("v_add_u32 v6, 20480, v4")
    a("v_add_u32 v7, 20480, v5")
    for i in range(5):
        a(f"v_add_u32 v14, {64*i}, v{vL}")
        div20(15, 16, 14)
        a("v_lshrrev_b32 v17, 2, v15")
        a("v_and_b32 v17, 2, v17")
        a("v_xor_b32 v16, v16, v17")
        a("v_cmp_lt_u32 vcc, 9, v16")
        a("v_mul_u32_u24 v15, 3840, v15")
        a("v_cndmask_b32 v17, 0, 1, vcc")
        a("v_mul_u32_u24 v18, 10, v17")
        a("v_sub_u32 v16, v16, v18")
        a(f"v_mad_u32_u24 v15, v17, s{sT7}, v15")
        a("v_mul_u32_u24 v18, 3, v16")
        a(f"v_bfe_u32 v18, s{sT4}, v18, 3")
        a("v_lshl_add_u32 v15, v18, 4, v15")
        a(f"v_bfe_u32 v18, s{sT5}, v16, 1")
        a(f"v_mad_u32_u24 v{8+i}, v18, s{sT6}, v15")
    a("s_waitcnt lgkmcnt(0)")
    for c in range(3):
        chunk_x(); chunk_w(); adv(SLOT if c < 2 else (-2 * SLOT & 0xffffffff))
    a(f"s_mul_i32 s{sT0}, s{sXCD}, 24")
    a(f"s_add_u32 s{sT0}, s{sT0}, s{sIDX}")
    a(f"s_lshr_b32 s{sQUAD}, s{sT0}, 1")
    a(f"s_add_u32 s{sQUAD}, s{sQUAD}, 64")
    a(f"s_lshl_b32 s{sT1}, s{sT0}, 1")
    a(f"s_add_u32 s{sT1}, s{sT1}, 256")
    a(f"s_mov_b32 s{sT0}, s{sJ}")
    h_dma(2)
    a("s_waitcnt vmcnt(20)")
    a("s_barrier")
    stamp(1)
    zero_pads(sJ)
    a("s_waitcnt vmcnt(11) lgkmcnt(0)")
    a("s_barrier")
    a(f"s_mov_b32 s{sLC}, 1")
    a(f"s_mov_b32 s{sVAR}, 0")
    a.label("Lbl")
    chunk_x(); chunk_w()
    a(f"s_add_u32 s{sVAR}, s{sVAR}, 1")
    a(f"s_cmp_eq_u32 s{sVAR}, 3")
    a(f"s_mov_b32 s{sT4}, {SLOT}")
    a(f"s_cselect_b32 s{sT4}, {-2*SLOT & 0xffffffff}, s{sT4}")
    a(f"s_cselect_b32 s{sVAR}, 0, s{sVAR}")
    adv(f"s{sT4}")
    a(f"s_add_u32 s{sLC}, s{sLC}, 1")
    a("s_waitcnt vmcnt(9)")
    a("s_barrier")
    a(f"s_cmp_lt_u32 s{sLC}, 8")
    a("s_cbranch_scc1 Lbl")
    tag_issue(26, 27)
    f0_addr(28)
    fc_addr(30)
    a(f"buffer_load_dword v29, v28, {srd(SWS)}, 0 offen sc1")
    a(f"buffer_load_dword v31, v30, {srd(SWS)}, 0 offen sc1")
    a(f"s_and_b32 s{sT1}, s{sIDX}, 1")
    a(f"s_lshl_b32 s{sT1}, s{sT1}, 1")
    conv_params(sJ)
    a("s_waitcnt vmcnt(3)")
    a("s_barrier")
    stamp(2)
    tag_get(26, 27)
    poll(28, "0", 29, first_issued=True)
    u_dma(sJ, 4)
    a(f"v_cmp_ne_u32 vcc, s{sTAG}, v31")
    a("s_cbranch_vccz Lbfc")
    poll(30, "0", 31)
    a.label("Lbfc")
    wo_loads()
    a(f"v_mov_b32 v26, {L_CNT+8}")
    a("s_waitcnt vmcnt(25)")
    lds_sync(26, 27, 4)
    stamp(3)
    a("s_branch Lconv")

def ctype():
    a.label("Lctype")
    a(f"s_mov_b32 s{sQUAD}, s{sCI}")
    a(f"s_cmp_ge_u32 s{sW}, 6")
    a("s_cbranch_scc1 Lcgate")
    s0_loads(sW)
    a(f"s_mov_b32 s{sT0}, s{sW}")
    a(f"s_lshl_b32 s{sT1}, s{sCI}, 2")
    h_dma(2)
    a(f"s_mul_i32 s{sLC}, s{sW}, 4608")
    a(f"s_add_u32 s{sLC}, s{sLC}, {L_S0C}")
    s0_compute(sW, sLC, 2)
    stamp(1)
    tag_issue(26, 27)
    zero_pads(sW)
    a(f"s_mul_i32 s{sVAR}, s{sCI}, 3")
    a(f"s_add_u32 s{sVAR}, s{sVAR}, s{sW}")
    a(f"s_cmp_ge_u32 s{sW}, 3")
    a(f"s_cselect_b32 s{sVAR}, 1000, s{sVAR}")
    a(f"s_cmp_ge_u32 s{sVAR}, 160")
    a("s_cbranch_scc1 Lcnorp1")
    sKQ, sF, sCGR = sCHL, sCH, sYST
    a(f"s_lshr_b32 s{sT0}, s{sVAR}, 2")
    a(f"s_and_b32 s{sCGR}, s{sVAR}, 3")
    a(f"s_mul_i32 s{sKQ}, s{sT0}, 52")
    a(f"s_lshr_b32 s{sKQ}, s{sKQ}, 8")
    a(f"s_mul_i32 s{sT1}, s{sKQ}, 5")
    a(f"s_sub_u32 s{sF}, s{sT0}, s{sT1}")
    a(f"s_mul_i32 s{sT0}, s{sF}, 20")
    a(f"s_cmp_eq_u32 s{sF}, 4")
    a(f"s_cselect_b32 s{sT0}, 16, s{sT0}")
    a(f"s_cselect_b32 s{sT2}, 16, 0")
    a(f"s_mul_i32 s{sT1}, s{sKQ}, 80")
    a(f"s_add_u32 s{sT0}, s{sT0}, s{sT1}")
    a(f"s_mul_i32 s{sT0}, s{sT0}, 1280")
    a(f"s_mul_i32 s{sT1}, s{sCGR}, 320")
    a(f"s_add_u32 s{sT0}, s{sT0}, s{sT1}")
    a(f"s_mul_i32 s{sT3}, s{sW}, 5120")
    a(f"s_add_u32 s{sT3}, s{sT3}, {L_RPC}")
    for i in range(5):
        a(f"v_add_u32 v14, {64*i}, v{vL}")
        div20(15, 16, 14)
        a("v_lshrrev_b32 v17, 2, v15")
        a(f"v_mad_u32_u24 v15, v17, s{sT2}, v15")
        a("v_mul_u32_u24 v15, 1280, v15")
        a("v_lshl_add_u32 v15, v16, 4, v15")
        a(f"s_add_u32 m0, s{sT3}, {1024*i}")
        a(f"buffer_load_dwordx4 v15, {srd(SWO)}, s{sT0} offen lds")
    a.label("Lcnorp1")
    tag_get(26, 27)
    f0_soff(sW, sT5)
    flag_store(28, 29, f"s{sT5}")
    stamp(2)
    a(f"s_cmp_ge_u32 s{sVAR}, 160")
    a("s_cbranch_scc1 Lcnorp2")
    a(f"v_lshrrev_b32 v14, 5, v{vL}")
    a(f"v_bfe_u32 v15, v{vL}, 2, 2")
    a("v_lshl_add_u32 v14, v14, 2, v15")
    a("v_mul_u32_u24 v14, 320, v14")
    a(f"v_bfe_u32 v15, v{vL}, 4, 1")
    a("v_lshl_add_u32 v14, v15, 5, v14")
    a(f"v_and_b32 v15, 3, v{vL}")
    a("v_lshl_add_u32 v14, v15, 3, v14")
    a(f"v_add_u32 v14, s{sT3}, v14")
    for t in range(5):
        for jh in range(2): a(f"ds_read_b64_tr_b16 {vr(32+4*t+2*jh,2)}, v14 offset:{jh*2560+t*64}")
    a(f"s_mul_i32 s{sT0}, s{sKQ}, 5")
    a(f"s_add_u32 s{sT0}, s{sT0}, s{sF}")
    a(f"s_cmp_ge_u32 s{sKQ}, 3")
    a(f"s_cselect_b32 s{sT1}, 10, 0")
    a(f"s_cmp_ge_u32 s{sKQ}, 6")
    a(f"s_cselect_b32 s{sT1}, -15, s{sT1}")
    a(f"s_cselect_b32 s{sT2}, 25, 50")
    a(f"s_add_u32 s{sT0}, s{sT0}, s{sT1}")
    a(f"s_mul_i32 s{sT1}, s{sCGR}, 200")
    a(f"s_add_u32 s{sT0}, s{sT0}, s{sT1}")
    a(f"s_lshl_b32 s{sT0}, s{sT0}, 10")
    a(f"s_add_u32 s{sT0}, s{sT0}, {WS_WOP}")
    a(f"s_lshl_b32 s{sT2}, s{sT2}, 10")
    a(f"s_lshr_b32 s{sT4}, s{sKQ}, 1")
    a(f"s_mul_i32 s{sT4}, s{sT4}, 25")
    a(f"s_and_b32 s{sT5}, s{sKQ}, 1")
    a(f"s_mul_i32 s{sT5}, s{sT5}, 5")
    a(f"s_add_u32 s{sT4}, s{sT4}, s{sT5}")
    a(f"s_add_u32 s{sT4}, s{sT4}, s{sF}")
    a(f"s_add_u32 s{sT4}, s{sT4}, s{sT1}")
    a(f"s_add_u32 s{sT4}, s{sT4}, 115")
    a(f"s_lshl_b32 s{sT4}, s{sT4}, 10")
    a(f"s_add_u32 s{sT4}, s{sT4}, {WS_WOP}")
    a(f"v_lshlrev_b32 v15, 4, v{vL}")
    a("s_waitcnt lgkmcnt(0)")
    for t in range(4):
        a(f"buffer_store_dwordx4 {vr(32+4*t,4)}, v15, {srd(SWS)}, s{sT0} offen sc1")
        a(f"s_add_u32 s{sT0}, s{sT0}, s{sT2}")
    a(f"buffer_store_dwordx4 {vr(48,4)}, v15, {srd(SWS)}, s{sT4} offen sc1")
    a.label("Lcnorp2")
    a(f"s_cmp_lg_u32 s{sW}, 3")
    a("s_cbranch_scc1 Lcjoin")
    a(f"s_cmp_ge_u32 s{sCI}, 56")
    a("s_cbranch_scc1 Lcjoin")
    for i in range(4): a(f"v_mov_b32 v{32+i}, 0")
    a(f"v_lshlrev_b32 v15, 4, v{vL}")
    a(f"s_lshl_b32 s{sT0}, s{sCI}, 10")
    a(f"s_add_u32 s{sT0}, s{sT0}, {WS_KV}")
    a(f"buffer_store_dwordx4 v[32:35], v15, {srd(SWS)}, s{sT0} offen sc1")
    a("s_branch Lcjoin")

    a.label("Lcgate")
    a(f"s_lshl_b32 s{sT0}, s{sCI}, 1")
    a(f"s_add_u32 s{sT0}, s{sT0}, s{sW}")
    a(f"s_sub_u32 s{sT0}, s{sT0}, 6")
    a(f"v_lshlrev_b32 v1, 7, v{vL}")
    a(f"s_lshl_b32 s{sT1}, s{sT0}, 13")
    a(f"v_lshrrev_b32 v2, 3, v{vL}")
    a(f"v_and_b32 v3, 7, v{vL}")
    a("v_lshlrev_b32 v3, 4, v3")
    a("v_mul_u32_u24 v4, 1280, v2")
    a("v_add_u32 v4, v4, v3")
    a(f"s_mul_i32 s{sT2}, s{sT0}, {16*1280}")
    a(f"s_add_u32 s{sT3}, s{sT2}, {8*1280}")
    a("s_waitcnt lgkmcnt(0)")
    for i in range(3):
        a(f"buffer_load_dword v{5+i}, v1, {srd(SWQ)}, s{sT1} offen")
        if i < 2: a(f"s_add_u32 s{sT1}, s{sT1}, {1<<20}")
    for j in range(10): a(f"buffer_load_dwordx4 {vr(8+4*j,4)}, v4, {srd(SX)}, s{sT2} offen offset:{128*j}")
    for j in range(10): a(f"buffer_load_dwordx4 {vr(48+4*j,4)}, v4, {srd(SX)}, s{sT3} offen offset:{128*j}")
    for j in range(10): a(f"buffer_load_dwordx4 {vr(88+4*j,4)}, v3, {srd(SGW)}, 0 offen offset:{128*j}")
    a(f"s_lshl_b32 s{sT3}, s{sT0}, 6")
    a(f"s_add_u32 s{sT3}, s{sT3}, {WS_G}")
    a(f"s_mov_b32 s{sT0}, s{sW}")
    a(f"s_lshl_b32 s{sT1}, s{sCI}, 2")
    h_dma(2)
    tag_issue(132, 133)
    a("v_mov_b32 v128, 0")
    a("v_mov_b32 v129, 0")
    a("s_waitcnt vmcnt(3)")
    for j in range(40):
        a(f"v_dot2c_f32_bf16 v128, v{8+j}, v{88+j}")
        a(f"v_dot2c_f32_bf16 v129, v{48+j}, v{88+j}")
    for ctl in ("quad_perm:[1,0,3,2]", "quad_perm:[2,3,0,1]", "row_half_mirror"):
        a(f"v_add_f32_dpp v128, v128, v128 {ctl} row_mask:0xf bank_mask:0xf")
        a(f"v_add_f32_dpp v129, v129, v129 {ctl} row_mask:0xf bank_mask:0xf")
    for r in (128, 129):
        a(f"v_mul_f32 v{r}, 0xbfb8aa3b, v{r}")
        a(f"v_exp_f32 v{r}, v{r}")
        a(f"v_add_f32 v{r}, 1.0, v{r}")
        a(f"v_rcp_f32 v{r}, v{r}")
    a("v_lshlrev_b32 v2, 2, v2")
    a("s_mov_b32 exec_lo, 0x01010101")
    a("s_mov_b32 exec_hi, 0x01010101")
    a(f"buffer_store_dword v128, v2, {srd(SWS)}, s{sT3} offen sc1")
    a(f"buffer_store_dword v129, v2, {srd(SWS)}, s{sT3} offen offset:32 sc1")
    a("s_mov_b64 exec, -1")
    tag_get(132, 133)

    a.label("Lcjoin")
    a(f"s_mov_b32 s{sT1}, 0")
    conv_params(sW)
    f0_addr(28)
    fc_addr(30)
    a("s_waitcnt vmcnt(0) lgkmcnt(0)")
    a("s_barrier")
    a(f"s_cmp_lg_u32 s{sW}, 0")
    a("s_cbranch_scc1 Lcj2")
    a(f"s_lshl_b32 s{sT5}, s{sCI}, 5")
    a(f"s_add_u32 s{sT5}, s{sT5}, {WS_FC}")
    flag_store(26, 27, f"s{sT5}")
    a.label("Lcj2")
    poll(28, "0", 29)
    u_dma(sW, 2)
    poll(30, "0", 31)
    wo_loads()
    a("s_barrier")
    stamp(3)

CACC = 8
CPOOL = 72
CD = 136
vUe, vUo, vH = 140, 141, 142

def conv_body(tiles):
    seq = []
    for b in range(4):
        for aa in range(8):
            for ti, T in enumerate(tiles):
                d = T - aa
                if d >= 0:
                    seq.append((ti, ("H", 4 * aa + b), ("U", 4 * d - b)))
                    if b == 0 and aa == 0: seq.append((ti, ("D", 0), ("U", 4 * d)))
    last = {}
    order = []
    for i, (ti, h, u) in enumerate(seq):
        for k in (u, h):
            if k[0] == "D": continue
            if k not in last: order.append(k)
            last[k] = i
    free = list(range(16))
    where = {}; done_at = {}
    nds = [0]; li = [0]
    def issue(maxn):
        n = 0
        while li[0] < len(order) and free and n < maxn:
            k = order[li[0]]; li[0] += 1
            bfr = free.pop(0); where[k] = bfr
            r = CPOOL + 4 * bfr
            if k[0] == "U":
                a(f"ds_read_b128 {vr(r,4)}, v{vUo if k[1]&1 else vUe} offset:{(k[1]+3)*512}")
                nds[0] += 1; n += 1
            else:
                a(f"ds_read_b64_tr_b16 {vr(r,2)}, v{vH} offset:{128*k[1]+32}")
                a(f"ds_read_b64_tr_b16 {vr(r+2,2)}, v{vH} offset:{128*k[1]}")
                nds[0] += 2; n += 2
            done_at[k] = nds[0]
    issue(12)
    started = set(); known = 0
    for i, (ti, h, u) in enumerate(seq):
        needn = max(done_at[k] for k in (u, h) if k[0] != "D")
        if needn > known:
            cnt = min(nds[0] - needn, 15)
            a(f"s_waitcnt lgkmcnt({cnt})")
            known = nds[0] - cnt
        d = vr(CACC + 16 * ti, 16)
        hb = CD if h[0] == "D" else CPOOL + 4 * where[h]
        a(f"v_mfma_f32_32x32x16_bf16 {d}, {vr(CPOOL+4*where[u],4)}, {vr(hb,4)}, {d if ti in started else '0'}")
        started.add(ti)
        for k in (u, h):
            if k[0] != "D" and last[k] == i: free.append(where[k])
        issue(2)

def conv():
    a.label("Lconv")
    a.c("conv setup")
    a(f"v_and_b32 v2, 31, v{vL}")
    a(f"v_lshrrev_b32 v3, 5, v{vL}")
    a("v_lshl_add_u32 v4, v3, 2, v2")
    a("v_lshrrev_b32 v5, 2, v4")
    a("v_add_u32 v5, 3, v5")
    a("v_and_b32 v5, 3, v5")
    a(f"v_xor_b32 v5, s{sCHL}, v5")
    a("v_lshlrev_b32 v5, 4, v5")
    a("v_lshl_add_u32 v5, v4, 6, v5")
    a(f"v_add_u32 v{vUe}, {L_UD-28*64}, v5")
    a(f"v_xor_b32 v{vUo}, 32, v{vUe}")
    a(f"v_bfe_u32 v4, v{vL}, 4, 1")
    a(f"v_and_b32 v5, 3, v{vL}")
    a("v_lshl_add_u32 v4, v4, 2, v5")
    a(f"v_bfe_u32 v5, v{vL}, 2, 2")
    a("v_sub_u32 v4, v4, v5")
    a("v_lshlrev_b32 v5, 3, v3")
    a("v_sub_u32 v4, v4, v5")
    a("v_lshlrev_b32 v4, 3, v4")
    a(f"s_mul_i32 s{sT4}, s{sLC}, {HSTR}")
    a(f"s_add_u32 s{sT4}, s{sT4}, {L_HB+128+32}")
    a(f"v_add_u32 v{vH}, s{sT4}, v4")
    a("s_waitcnt lgkmcnt(0)")
    a(f"s_and_b32 s{sT4}, s{sCH}, 1")
    a(f"s_lshl_b32 s{sT4}, s{sT4}, 4")
    a(f"s_lshr_b32 s{sDV}, s{sDV}, s{sT4}")
    a(f"s_and_b32 s{sDV}, s{sDV}, 0xffff")
    a(f"v_lshlrev_b32 v4, 2, v{vL}")
    a("v_and_b32 v4, 16, v4")
    a(f"v_lshlrev_b32 v4, v4, s{sDV}")
    a(f"v_and_b32 v5, 59, v{vL}")
    for r in range(4):
        a(f"v_cmp_eq_u32 vcc, {32+8*r}, v5")
        a(f"v_cndmask_b32 v{CD+r}, 0, v4, vcc")
    a(f"s_cmp_eq_u32 s{sVAR}, 1")
    a("s_cbranch_scc1 Lconvy")
    conv_body([0, 1, 6, 7])
    a(f"s_mov_b32 s{sT0}, 0")
    a(f"s_mov_b32 s{sT1}, 6")
    a("s_branch Lconve")
    a.label("Lconvy")
    conv_body([2, 3, 4, 5])
    a(f"s_mov_b32 s{sT0}, 2")
    a(f"s_mov_b32 s{sT1}, 4")
    a.label("Lconve")
    stamp(4)
    a.c("conv epilogue")
    a(f"v_lshlrev_b32 v2, 2, v{vL}")
    a(f"s_lshl_b32 s{sT4}, s{sT0}, 10")
    a(f"s_add_u32 s{sT4}, s{sT4}, s{sYST}")
    a(f"v_add_u32 v3, s{sT4}, v2")
    a(f"s_lshl_b32 s{sT4}, s{sT1}, 10")
    a(f"s_add_u32 s{sT4}, s{sT4}, s{sYST}")
    a(f"v_add_u32 v4, s{sT4}, v2")
    a(f"s_mul_i32 s{sT2}, s{sLC}, {SPSTR}")
    a(f"s_add_u32 s{sT2}, s{sT2}, {L_SP}")
    a(f"s_lshl_b32 s{sT4}, s{sT0}, 6")
    a(f"s_add_u32 s{sT4}, s{sT4}, s{sT2}")
    a(f"v_mov_b32 v5, s{sT4}")
    a(f"s_lshl_b32 s{sT4}, s{sT1}, 6")
    a(f"s_add_u32 s{sT4}, s{sT4}, s{sT2}")
    a(f"v_mov_b32 v6, s{sT4}")
    a("s_nop 7")
    for step in (2, 1, 0):
        for g in range(16):
            r = CACC + 4 * g + step
            a(f"v_add_f32_dpp v{r}, v{r+1}, v{r} wave_shr:1 row_mask:0xf bank_mask:0xf bound_ctrl:0")
    for g in range(16): a(f"ds_write_b32 v{3 if g<8 else 4}, v{CACC+4*g} offset:{256*(g&7)}")
    a("s_mov_b32 exec_lo, 0")
    a("s_mov_b32 exec_hi, 0x80000000")
    for g in range(16): a(f"ds_write_b128 v{5 if g<8 else 6}, {vr(CACC+4*g,4)} offset:{16+16*(g&7)}")
    a("s_mov_b64 exec, -1")
    a(f"s_lshl_b32 s{sT4}, s{sVAR}, 12")
    a(f"s_add_u32 s{sT4}, s{sT4}, s{sYST}")
    a(f"v_lshlrev_b32 v3, 5, v{vL}")
    a(f"v_add_u32 v3, s{sT4}, v3")
    a(f"v_lshlrev_b32 v4, 1, v{vL}")
    a(f"s_lshl_b32 s{sT4}, s{sVAR}, 8")
    a(f"v_add_u32 v4, s{sT4}, v4")
    a("v_add_u32 v5, 128, v4")
    a(f"v_and_b32 v6, 7, v{vL}")
    a("v_cmp_eq_u32 vcc, 0, v6")
    a("v_cndmask_b32 v4, 0, v4, vcc")
    a("v_cndmask_b32 v5, 0, v5, vcc")
    a(f"v_add_u32 v4, s{sT2}, v4")
    a(f"v_add_u32 v5, s{sT2}, v5")
    a(f"v_lshrrev_b32 v6, 2, v{vL}")
    a("v_mul_u32_u24 v6, 40960, v6")
    a(f"v_and_b32 v7, 3, v{vL}")
    a("v_lshl_add_u32 v6, v7, 4, v6")
    a(f"s_mul_i32 s{sT4}, s{sVAR}, {32*40960}")
    a(f"s_lshl_b32 s{sT5}, s{sCH}, 6")
    a(f"s_add_u32 s{sT4}, s{sT4}, s{sT5}")
    a(f"s_add_u32 s{sT4}, s{sT4}, {WS_Y}")
    a(f"s_add_u32 s{sT5}, s{sT4}, {16*40960}")
    a(f"s_lshl_b32 s{sT6}, s{sLC}, 2")
    a(f"s_add_u32 s{sT6}, s{sT6}, {L_CNT+16}")
    a(f"v_mov_b32 v7, s{sT6}")
    a("s_waitcnt lgkmcnt(0)")
    lds_sync(7, 2, 2)
    for n in range(2):
        a(f"ds_read_b128 {vr(72+12*n,4)}, v3 offset:{2048*n}")
        a(f"ds_read_b128 {vr(76+12*n,4)}, v3 offset:{2048*n+16}")
        a(f"ds_read_b128 {vr(80+12*n,4)}, v{4+n}")
    for n in range(2):
        a(f"s_waitcnt lgkmcnt({3-3*n})")
        b = 72 + 12 * n
        for i in range(3): a(f"v_add_f32 v{b+i}, v{b+i}, v{b+9+i}")
        for i in range(4): a(f"v_cvt_pk_bf16_f32 v{100+4*n+i}, v{b+2*i}, v{b+2*i+1}")
        a(f"buffer_store_dwordx4 {vr(100+4*n,4)}, v6, {srd(SWS)}, s{sT5 if n else sT4} offen sc1")
    a(f"s_mul_i32 s{sT4}, s{sVAR}, 640")
    a(f"s_add_u32 s{sT4}, s{sT4}, s{sCH}")
    a(f"s_lshl_b32 s{sT4}, s{sT4}, 4")
    a(f"s_add_u32 s{sT4}, s{sT4}, {WS_FY}")
    a("s_waitcnt vmcnt(0)")
    flag_store(2, 3, f"s{sT4}")
    stamp(5)
    a("s_branch Ls3")

def s3():
    a.label("Ls3wo")
    wo_loads()
    a.label("Ls3")
    a.c("S3")
    sRB3, sCG3 = sRB, sCG
    a(f"s_and_b32 s{sT0}, s{sIDX}, 15")
    a(f"s_lshl_b32 s{sRB3}, s{sRP}, 4")
    a(f"s_add_u32 s{sRB3}, s{sRB3}, s{sT0}")
    a(f"s_lshr_b32 s{sT0}, s{sIDX}, 4")
    a(f"s_lshl_b32 s{sCG3}, s{sCP}, 1")
    a(f"s_add_u32 s{sCG3}, s{sCG3}, s{sT0}")
    FP = 120
    a(f"s_mul_i32 s{sCH}, s{sRB3}, 40960")
    a(f"s_mul_i32 s{sT1}, s{sCG3}, 320")
    a(f"s_add_u32 s{sCH}, s{sCH}, s{sT1}")
    a(f"s_lshl_b32 s{sT2}, s{sRB3}, 7")
    a(f"s_add_u32 s{sT2}, s{sT2}, {WS_G}")
    for n in range(2):
        B = FP + 16 * n
        a(f"s_lshl_b32 s{sT0}, s{sW}, 4")
        if n:
            a(f"s_and_b32 s{sT0}, s{sT0}, 16")
            a(f"s_add_u32 s{sT0}, s{sT0}, 128")
        a(f"v_lshrrev_b32 v2, 2, v{vL}")
        a(f"v_add_u32 v2, s{sT0}, v2")
        div20(3, 4, 2)
        a(f"v_and_b32 v5, 3, v{vL}")
        a("v_lshl_add_u32 v6, v3, 2, v5")
        a(f"v_mul_u32_u24 v{B}, 1280, v6")
        a(f"v_lshl_add_u32 v{B}, v4, 4, v{B}")
        a(f"buffer_load_dwordx4 {vr(B+8,4)}, v{B}, {srd(SX)}, s{sCH} offen")
        a("v_lshlrev_b32 v7, 2, v6")
        a(f"buffer_load_dword v{B+12}, v7, {srd(SWS)}, s{sT2} offen sc1")
        a("v_bfe_u32 v7, v6, 1, 1")
        a("v_and_b32 v8, 1, v6")
        a("v_lshl_or_b32 v7, v8, 1, v7")
        a("v_and_or_b32 v7, v6, 4, v7")
        a("v_and_b32 v8, 3, v4")
        a("v_lshlrev_b32 v8, 1, v8")
        a("v_xor_b32 v7, v7, v8")
        a("v_lshlrev_b32 v7, 4, v7")
        a("v_lshl_add_u32 v7, v6, 7, v7")
        a("v_lshrrev_b32 v8, 2, v4")
        a("v_cmp_gt_u32 vcc, 4, v8")
        a("v_lshlrev_b32 v9, 13, v8")
        a(f"v_mov_b32 v10, {L_RB+4*4096-L_PB}")
        a("v_cndmask_b32 v9, v10, v9, vcc")
        a(f"v_add3_u32 v{B+1}, v9, v7, {L_PB}")
        a(f"v_xor_b32 v{B+2}, 16, v{B+1}")
        a("v_lshlrev_b32 v9, 12, v8")
        a(f"v_mov_b32 v10, {6*4096}")
        a("v_cndmask_b32 v9, v10, v9, vcc")
        a(f"v_add_u32 v9, {L_RB}, v9")
        a(f"v_add_u32 v{B+3}, v9, v7")
        a(f"v_xor_b32 v{B+4}, 16, v{B+3}")
        a(f"v_add_u32 v9, {L_RB+7*4096}, v7")
        a(f"v_mov_b32 v10, {L_HB+64}")
        a(f"v_cndmask_b32 v{B+5}, v9, v10, vcc")
        a(f"v_xor_b32 v{B+6}, 16, v{B+5}")
        a(f"v_lshrrev_b32 v2, 4, v{vL}")
        a("v_lshl_add_u32 v2, v2, 2, v5")
        a(f"v_add_u32 v2, s{sT0}, v2")
        div20(3, 4, 2)
        a(f"v_bfe_u32 v5, v{vL}, 2, 2")
        a("v_lshl_add_u32 v4, v4, 3, v5")
        a("v_lshlrev_b32 v4, 6, v4")
        a("v_lshl_add_u32 v4, v3, 3, v4")
        a(f"v_add_u32 v{B+7}, {L_YT}, v4")
    a(f"v_and_b32 v2, 31, v{vL}")
    a(f"v_lshrrev_b32 v3, 5, v{vL}")
    a("v_mul_u32_u24 v3, 336, v3")
    a("v_mov_b32 v6, 0x7f000000")
    a("v_min_u32 v4, 20, v2")
    a("v_lshl_add_u32 v4, v4, 4, v3")
    a("v_lshrrev_b32 v7, 2, v2")
    a("v_cmp_eq_u32 vcc, 5, v7")
    a("v_cndmask_b32 v10, v4, v6, vcc")
    a("v_subrev_u32 v5, 4, v2")
    a("v_lshl_add_u32 v5, v5, 4, v3")
    a("v_cndmask_b32 v11, v4, v5, vcc")
    a("v_cmp_eq_u32 vcc, 4, v7")
    a("v_cndmask_b32 v11, v11, v6, vcc")
    a(f"v_lshlrev_b32 v1, 4, v{vL}")
    a(f"s_lshr_b32 s{sT0}, s{sRB3}, 1")
    a(f"s_lshl_b32 s{sT0}, s{sT0}, 3")
    a(f"s_add_u32 s{sT0}, s{sT0}, s{sW}")
    a(f"s_lshl_b32 s{sT0}, s{sT0}, 5")
    a(f"s_add_u32 s{sT0}, s{sT0}, {WS_FQ}")
    a(f"v_mov_b32 v12, s{sT0}")
    a(f"s_lshl_b32 s{sT0}, s{sW}, 11")
    a(f"s_add_u32 s{sT0}, s{sT0}, {WS_FK}")
    a(f"v_lshlrev_b32 v13, 5, v{vL}")
    a(f"v_add_u32 v13, s{sT0}, v13")
    RAW = 40
    PQ = 16
    for i in range(64): a(f"v_mov_b32 v{RAW+i}, 0")
    a(f"s_mul_i32 s{sT0}, s{sRB3}, 40")
    a(f"s_mul_i32 s{sT1}, s{sW}, 5")
    a(f"s_add_u32 s{sT0}, s{sT0}, s{sT1}")
    a(f"s_lshl_b32 s{sT0}, s{sT0}, 10")
    a(f"s_add_u32 s{sT0}, s{sT0}, {WS_PQ}")
    a(f"s_add_u32 s{sT1}, s{sT0}, 4096")
    a(f"s_mul_i32 s{sT2}, s{sW}, {4*KVH}")
    a(f"s_add_u32 s{sT2}, s{sT2}, {WS_KV}")
    a(f"s_add_u32 s{sT3}, s{sT2}, {2*KVH}")
    poll(12, "0", 14)
    for f in range(4): a(f"buffer_load_dwordx4 {vr(PQ+4*f,4)}, v1, {srd(SWS)}, s{sT0} offen offset:{1024*f} sc1")
    a(f"buffer_load_dwordx4 {vr(PQ+16,4)}, v1, {srd(SWS)}, s{sT1} offen sc1")
    poll(13, "0", 14)
    stamp(6)
    nload = []
    for i in range(4):
        cnt = 0
        for st in range(2):
            f = i + st
            for jh in range(2):
                du0 = 4 * f + 2 * jh - 5 * i
                v0ok = 0 <= du0 <= 4; v1ok = 0 <= du0 + 1 <= 4
                if not (v0ok or v1ok): continue
                off = (i & 1) * KVH + du0 * 336
                assert 0 <= off < 4096
                part = not (v0ok and v1ok)
                if part:
                    a(f"s_mov_b32 exec_lo, {-1 if v0ok else 0}")
                    a(f"s_mov_b32 exec_hi, {-1 if v1ok else 0}")
                a(f"buffer_load_dwordx4 {vr(RAW+16*i+8*st+4*jh,4)}, v{11 if i&1 else 10}, {srd(SWS)}, s{sT3 if i>>1 else sT2} offen offset:{off} sc1")
                if part: a("s_mov_b64 exec, -1")
                cnt += 1
        nload.append(cnt)
    a(f"s_mul_i32 s{sT0}, s{sW}, 5120")
    a(f"s_add_u32 s{sT0}, s{sT0}, {L_OFR}")
    a(f"v_add_u32 v2, s{sT0}, v1")
    a(f"s_and_b32 s{sT0}, s{sW}, 1")
    a(f"s_mul_i32 s{sT0}, s{sT0}, {15*1024}")
    a(f"s_add_u32 s{sT0}, s{sT0}, {L_OFR}")
    a(f"v_add_u32 v3, s{sT0}, v1")
    a(f"s_sub_u32 s{sT0}, s{sW}, 4")
    a(f"s_cmp_lt_u32 s{sW}, 4")
    a(f"s_cselect_b32 s{sT0}, 3, s{sT0}")
    a(f"s_mul_i32 s{sT0}, s{sT0}, {10*1024}")
    a(f"s_add_u32 s{sT0}, s{sT0}, {L_OFR}")
    a(f"v_add_u32 v4, s{sT0}, v1")
    a(f"v_and_b32 v5, 31, v{vL}")
    a("v_bfe_u32 v6, v5, 1, 1")
    a("v_and_b32 v7, 1, v5")
    a("v_lshl_or_b32 v6, v7, 1, v6")
    a("v_and_or_b32 v6, v5, 4, v6")
    a(f"v_lshrrev_b32 v7, 5, v{vL}")
    a("v_xor_b32 v6, v6, v7")
    a("v_lshlrev_b32 v6, 4, v6")
    a("v_lshl_add_u32 v6, v5, 7, v6")
    a(f"s_lshl_b32 s{sT0}, s{sW}, 12")
    a(f"v_add_u32 v6, s{sT0}, v6")
    for q in range(1, 4): a(f"v_xor_b32 v{6+q}, {32*q}, v6")
    a(f"s_lshr_b32 s{sT0}, s{sRB3}, 5")
    a(f"s_mul_i32 s{sT0}, s{sT0}, 640")
    a(f"s_mul_i32 s{sT1}, s{sCG3}, 160")
    a(f"s_min_u32 s{sT4}, s{sW}, 4")
    a(f"s_lshl_b32 s{sT4}, s{sT4}, 5")
    a(f"s_add_u32 s{sT1}, s{sT1}, s{sT4}")
    a(f"s_add_u32 s{sT0}, s{sT0}, s{sT1}")
    a(f"s_lshl_b32 s{sT0}, s{sT0}, 4")
    a(f"s_add_u32 s{sT0}, s{sT0}, {WS_FY}")
    a("v_lshlrev_b32 v12, 4, v5")
    a(f"v_add_u32 v12, s{sT0}, v12")
    a(f"s_mul_i32 s{sYST}, s{sRB3}, 40960")
    a(f"s_lshl_b32 s{sT1}, s{sT1}, 6")
    a(f"s_add_u32 s{sYST}, s{sYST}, s{sT1}")
    a(f"s_add_u32 s{sYST}, s{sYST}, {WS_Y}")
    a(f"s_lshl_b32 s{sQUAD}, s{sT4}, 6")
    a(f"s_add_u32 s{sQUAD}, s{sQUAD}, {L_YT}")
    KF = 104
    rem = sum(nload)
    for i in range(4):
        rem -= nload[i]
        a(f"s_waitcnt vmcnt({rem})")
        kf = KF + 8 * (i & 1)
        for j in range(8): a(f"v_cvt_pk_bf16_f32 v{kf+j}, v{RAW+16*i+2*j}, v{RAW+16*i+2*j+1}")
        d = vr(RAW + 16 * i, 16)
        a(f"v_mfma_f32_32x32x16_bf16 {d}, {vr(kf,4)}, {vr(PQ+4*i,4)}, 0")
        a(f"v_mfma_f32_32x32x16_bf16 {d}, {vr(kf+4,4)}, {vr(PQ+4*i+4,4)}, {d}")
    OF = 16
    for i in range(4):
        D = RAW + 16 * i
        a(f"v_add_f32 v{D+12}, 0x358637bd, v{D+12}")
        a(f"v_rcp_f32 v{D+12}, v{D+12}")
        for j in range(4): a(f"v_pk_mul_f32 {vr(D+2*j,2)}, {vr(D+2*j,2)}, {vr(D+12,2)} op_sel_hi:[1,0]")
        if i & 1 == 0:
            for j in range(2): a(f"v_pk_mul_f32 {vr(D+8+2*j,2)}, {vr(D+8+2*j,2)}, {vr(D+12,2)} op_sel_hi:[1,0]")
        else:
            for j in range(2): a(f"v_pk_fma_f32 {vr(D+8+2*j,2)}, {vr(D+8+2*j,2)}, {vr(D+12,2)}, {vr(D-16+8+2*j,2)} op_sel_hi:[1,0,1]")
        for j in range(4): a(f"v_cvt_pk_bf16_f32 v{KF+4*(i&1)+j}, v{D+2*j}, v{D+2*j+1}")
        a(f"ds_write_b128 v2, {vr(KF+4*(i&1),4)} offset:{1024*i}")
        if i & 1:
            for j in range(2): a(f"v_cvt_pk_bf16_f32 v{KF+8+2*(i>>1)+j}, v{D+8+2*j}, v{D+8+2*j+1}")
    a(f"ds_write_b128 v2, {vr(KF+8,4)} offset:4096")
    a("s_waitcnt lgkmcnt(0)")
    a("s_barrier")
    stamp(7)
    a(f"buffer_load_dword v14, v12, {srd(SWS)}, 0 offen sc1")
    NB = 8
    def ord_(i): return (3, 1024 * i) if i < 15 else (4, 1024 * (i - 15))
    for i in range(NB):
        v, o = ord_(i); a(f"ds_read_b128 {vr(40+4*i,4)}, v{v} offset:{o}")
    extra = 0
    issued = NB
    log = list(range(NB))
    for i in range(25):
        pos = log.index(i)
        a(f"s_waitcnt lgkmcnt({min(len(log)-1-pos,15)})")
        d = vr(72 if i < 15 else 88, 16)
        a(f"v_mfma_f32_32x32x16_bf16 {d}, {vr(VWO+4*i,4)}, {vr(40+4*(i%NB),4)}, {'0' if i in (0,15) else d}")
        if issued < 25:
            v, o = ord_(issued); a(f"ds_read_b128 {vr(40+4*(issued%NB),4)}, v{v} offset:{o}"); log.append(issued); issued += 1
        if i == 14:
            a(f"s_cmp_ge_u32 s{sW}, 5")
            a("s_cbranch_scc1 Ls3ny")
            poll(12, "0", 14, first_issued=True)
            a(f"s_mov_b32 m0, s{sQUAD}")
            a(f"buffer_load_dwordx4 v1, {srd(SWS)}, s{sYST} offen sc1 lds")
            a(f"buffer_load_dwordx4 v1, {srd(SWS)}, s{sYST} offen offset:1024 sc1 lds")
            a.label("Ls3ny")
        if 19 <= i < 23:
            q = i - 19
            a(f"ds_write_b128 v{6+q}, {vr(72+4*q,4)} offset:{L_PB}"); log.append(-1)
    for q in range(4): a(f"v_add_u32 v{6+q}, {L_RB}, v{6+q}")
    for q in range(4): a(f"ds_write_b128 v{6+q}, {vr(88+4*q,4)}")
    a("s_waitcnt vmcnt(0) lgkmcnt(0)")
    a("s_barrier")
    stamp(8)
    def final(n):
        B = FP + 16 * n
        R = 16
        a(f"ds_read_b128 {vr(R,4)}, v{B+1}")
        a(f"ds_read_b128 {vr(R+4,4)}, v{B+2}")
        a(f"ds_read_b128 {vr(R+8,4)}, v{B+1} offset:4096")
        a(f"ds_read_b128 {vr(R+12,4)}, v{B+2} offset:4096")
        for j in range(4): a(f"ds_read_b128 {vr(R+16+4*j,4)}, v{B+3+j}")
        a(f"ds_read_b64_tr_b16 {vr(R+32,2)}, v{B+7}")
        a(f"ds_read_b64_tr_b16 {vr(R+34,2)}, v{B+7} offset:256")
        XF = R + 36; YF = R + 44
        a(f"v_sub_f32 v{B+14}, 1.0, v{B+12}")
        for j in range(4):
            a(f"v_lshlrev_b32 v{XF+2*j}, 16, v{B+8+j}")
            a(f"v_and_b32 v{XF+2*j+1}, 0xffff0000, v{B+8+j}")
        for j in range(4): a(f"v_pk_mul_f32 {vr(XF+2*j,2)}, {vr(XF+2*j,2)}, {vr(B+14,2)} op_sel_hi:[1,0]")
        a("s_waitcnt lgkmcnt(6)")
        for j in range(4): a(f"v_pk_add_f32 {vr(R+2*j,2)}, {vr(R+2*j,2)}, {vr(R+8+2*j,2)}")
        a("s_waitcnt lgkmcnt(2)")
        for j in range(4): a(f"v_pk_add_f32 {vr(R+16+2*j,2)}, {vr(R+16+2*j,2)}, {vr(R+24+2*j,2)}")
        for j in range(4): a(f"v_pk_add_f32 {vr(R+2*j,2)}, {vr(R+2*j,2)}, {vr(R+16+2*j,2)}")
        a("s_waitcnt lgkmcnt(0)")
        for j in range(4):
            a(f"v_lshlrev_b32 v{YF+2*j}, 16, v{R+32+j}")
            a(f"v_and_b32 v{YF+2*j+1}, 0xffff0000, v{R+32+j}")
        for j in range(4): a(f"v_pk_mul_f32 {vr(XF+2*j,2)}, {vr(XF+2*j,2)}, {vr(YF+2*j,2)}")
        for j in range(4): a(f"v_pk_fma_f32 {vr(R+2*j,2)}, {vr(R+2*j,2)}, {vr(B+12,2)}, {vr(XF+2*j,2)} op_sel_hi:[1,0,1]")
        for j in range(4): a(f"v_cvt_pk_bf16_f32 v{B+8+j}, v{R+2*j}, v{R+2*j+1}")
        a(f"buffer_store_dwordx4 {vr(B+8,4)}, v{B}, {srd(SOUT)}, s{sCH} offen")
    final(0)
    a(f"s_cmp_ge_u32 s{sW}, 2")
    a("s_cbranch_scc1 Lfin")
    final(1)
    a.label("Lfin")
    if DIAG:
        a("s_waitcnt vmcnt(0)")
        stamp(9)
        a(f"s_memtime {sr(78,2)}")
        a("s_waitcnt lgkmcnt(0)")
        a(f"s_mov_b32 s{STS+15}, s78")
        a("v_mov_b32 v2, 0")
        for i in range(16): a(f"v_writelane_b32 v2, s{STS+i}, {i}")
        a(f"v_lshlrev_b32 v3, 2, v{vL}")
        a(f"s_lshl_b32 s{sT0}, s2, 3")
        a(f"s_add_u32 s{sT0}, s{sT0}, s{sW}")
        a(f"s_lshl_b32 s{sT0}, s{sT0}, 6")
        a(f"s_add_u32 s{sT0}, s{sT0}, {WS_TS}")
        a("s_mov_b64 exec, 0xffff")
        a(f"buffer_store_dword v2, v3, {srd(SWS)}, s{sT0} offen")
    a.label("Lend")
    a("s_endpgm")

entry(); kva(); qa(); bwave(); ctype(); conv(); s3()

ref = open("cdna_kernels/%s.s.ref" % NAME).read()
head = [l for l in ref.split("\n") if l.startswith(";") and "@launch" not in l]
out = "\n".join(head) + "\n"
out += "; @launch grid=(256,1,1) block=(512,1,1) lds=%d\n" % LDS_BYTES
out += '.amdgcn_target "amdgcn-amd-amdhsa--gfx950"\n.text\n.globl %s_kernel\n.p2align 8\n.type %s_kernel,@function\n%s_kernel:\n' % (NAME, NAME, NAME)
out += a.text()
out += '''.section .rodata,"a"
.p2align 6
.amdhsa_kernel %s_kernel
  .amdhsa_next_free_vgpr 256
  .amdhsa_next_free_sgpr 102
  .amdhsa_accum_offset 256
  .amdhsa_group_segment_fixed_size 0
  .amdhsa_kernarg_size 104
  .amdhsa_user_sgpr_count 2
  .amdhsa_user_sgpr_kernarg_segment_ptr 1
  .amdhsa_system_sgpr_workgroup_id_x 1
.end_amdhsa_kernel
''' % NAME
dst = [x for x in sys.argv[1:] if not x.startswith("--")]
open(dst[0] if dst else "cdna_kernels/%s.s" % NAME, "w").write(out)
```

```python
import sys
from asmlib import Asm, vr, sr

NAME = "gated_mix__linear_attn_block__ssm_conv_h3__prompt"
DIAG = "--diag" in sys.argv
EXP = [x[6:] for x in sys.argv if x.startswith("--exp=")]

WS_U = 0
WS_PQ = 0x280000
WS_Y = 0x500000
WS_WOP = 0x780000
WS_KV = 0x850000
WS_C = 0x860000
CDELTA = 0x20000
WS_FK = WS_C
WS_FY = WS_C + 32 * 256
WS_F0 = WS_C + 72 * 256
WS_FC = WS_C + 88 * 256
WS_FG = WS_C + 128 * 256
WS_FQ = WS_C + 256 * 256
WS_G = 0x88C000
WS_TS = 0x890000
WS_SIZE = 0x900000
KVH = 1792

SLOT = 36864
L_OFR = 36864
L_KVS = 77824
L_YST = 92160
L_PART = 77824
L_UB = 110592
L_UD = L_UB + 2048
L_HB = 129024
HSTR = 4224
L_SP = 145920
L_CNT = 146048
L_TAG = 146112
L_YT = 146176
L_S0C = 0
L_RPC = 49152
LDS_BYTES = L_YT + 10240

SX, SWQ, SWO, SK, SV, SSK, SH, SGW, SOUT, SDBG, SWS = [4 + 4 * i for i in range(11)]
SD = 48
sW, sXCD, sIDX, sRP, sCP, sTAG, sCNT = range(50, 57)
sRB, sCG, sQUAD, sCHL, sLC, sVAR, sCH, sJ, sUD = range(57, 66)
sT0, sT1, sT2, sT3, sT4, sT5, sT6, sT7 = range(66, 74)
sLOG = 74
sCI = 76
sDV = 77
STS = 80
sXOFF, sPQO, sKVO, sTB, sYO, sYM = 96, 97, 98, 99, 100, 101
sCHB = 65
sRD = 3
sWOO = 2
sEPS = 79
sBID = 78
def srd(b): return sr(b, 4)

vL = 0
VWO = 156
vL16, vOW, vPR, vRR, vPW = 1, 2, 3, 4, 5
vKE, vKO, vFK, vFY, vZ, vOUT, vPA, vPB, vYT, vFT, vGO = 9, 10, 11, 12, 13, 14, 15, 16, 17, 18, 19
vXD, vG, vXD2 = 20, 24, 28
vFQ, vFE = 27, 25

a = Asm()
BST = [None]
def stamp(i, force=False):
    if "bst" in EXP and not force and i not in (0, 10): return
    if DIAG:
        a(f"{'s_memtime' if 'cyc' in EXP else 's_memrealtime'} vcc")
        a("s_waitcnt lgkmcnt(0)")
        a(f"s_mov_b32 s{STS+i}, vcc_lo")

def poll(vaddr, vdst, state="none", sleep=2):
    L = a.newlabel("Lpoll"); D = a.newlabel("Lpd")
    if state != "none":
        if state == "issued": a("s_waitcnt vmcnt(0)")
        a(f"v_cmp_ne_u32 vcc, s{sTAG}, v{vdst}")
        a(f"s_cbranch_vccz {D}")
    a(f"s_mov_b32 s{sCNT}, 0x20000")
    a.label(L)
    a(f"buffer_load_dword v{vdst}, v{vaddr}, {srd(SWS)}, 0 offen sc1")
    a("s_waitcnt vmcnt(0)")
    a(f"v_cmp_ne_u32 vcc, s{sTAG}, v{vdst}")
    a(f"s_cbranch_vccz {D}")
    if sleep: a(f"s_sleep {sleep}")
    a(f"s_sub_u32 s{sCNT}, s{sCNT}, 1")
    a(f"s_cbranch_scc0 {L}")
    a.label(D)

def cnt_load(S, vaddr, vdst):
    a(f"buffer_load_dword v{vdst}, v{vaddr}, {srd(S)}, 0 offen sc1")

def tag_get(vz, vdst, state="issued"):
    L = a.newlabel("Ltag"); D = a.newlabel("Ltd")
    if state != "none":
        if state == "issued": a("s_waitcnt vmcnt(0)")
        a(f"v_readfirstlane_b32 s{sTAG}, v{vdst}")
        a(f"s_cmp_lg_u32 s{sTAG}, 0")
        a(f"s_cbranch_scc1 {D}")
    a(f"s_mov_b32 s{sCNT}, 0x20000")
    a.label(L)
    a(f"buffer_load_dword v{vdst}, v{vz}, {srd(SDBG)}, 0 offen sc1")
    a("s_waitcnt vmcnt(0)")
    a(f"v_readfirstlane_b32 s{sTAG}, v{vdst}")
    a(f"s_cmp_lg_u32 s{sTAG}, 0")
    a(f"s_cbranch_scc1 {D}")
    a("s_sleep 2")
    a(f"s_sub_u32 s{sCNT}, s{sCNT}, 1")
    a(f"s_cbranch_scc0 {L}")
    a.label(D)

def tag_lds(vtmp):
    a(f"v_mov_b32 v{vtmp}, {L_TAG}")
    a(f"ds_read_b32 v{vtmp}, v{vtmp}")
    a("s_waitcnt lgkmcnt(0)")
    a(f"v_readfirstlane_b32 s{sTAG}, v{vtmp}")

def arr_prep(vt0, vt1):
    a(f"v_mov_b32 v{vt0}, {CDELTA}")
    a(f"v_mov_b32 v{vt1}, 1")
def arr_issue(vt0, vt1, soff):
    a("s_mov_b64 exec, 1")
    a(f"buffer_atomic_add v{vt1}, v{vt0}, {srd(SWS)}, {soff} offen sc0 sc1")
    a("s_mov_b64 exec, -1")
def arr_finish(vt0, vt1, soff, n, wait=0):
    D = a.newlabel("Lal")
    a(f"s_waitcnt vmcnt({wait})")
    a(f"v_readfirstlane_b32 s{sT7}, v{vt1}")
    a(f"s_cmp_lg_u32 s{sT7}, {n-1}")
    a(f"s_cbranch_scc1 {D}")
    flag_store(vt0, vt1, soff)
    a.label(D)
def flag_store(vt0, vt1, soff):
    a(f"v_mov_b32 v{vt0}, 0")
    a(f"v_mov_b32 v{vt1}, s{sTAG}")
    a("s_mov_b64 exec, 1")
    a(f"buffer_store_dword v{vt1}, v{vt0}, {srd(SWS)}, {soff} offen sc1")
    a("s_mov_b64 exec, -1")

def lds_arrive(vaddr, vtmp):
    a(f"v_mov_b32 v{vtmp}, 1")
    a("s_mov_b64 exec, 1")
    a(f"ds_add_u32 v{vaddr}, v{vtmp}")
    a("s_mov_b64 exec, -1")
def lds_wait(vaddr, vtmp, target):
    L = a.newlabel("Lls"); D = a.newlabel("Lld")
    a(f"s_mov_b32 s{sCNT}, 0x400000")
    a.label(L)
    a(f"ds_read_b32 v{vtmp}, v{vaddr}")
    a("s_waitcnt lgkmcnt(0)")
    a(f"v_readfirstlane_b32 s{sT7}, v{vtmp}")
    a(f"s_cmp_ge_u32 s{sT7}, {target}")
    a(f"s_cbranch_scc1 {D}")
    a(f"s_sub_u32 s{sCNT}, s{sCNT}, 1")
    a(f"s_cbranch_scc0 {L}")
    a.label(D)

def div20(vq, vr_, vp):
    a(f"v_mul_u32_u24 v{vq}, 3277, v{vp}")
    a(f"v_lshrrev_b32 v{vq}, 16, v{vq}")
    a(f"v_mul_u32_u24 v{vr_}, 20, v{vq}")
    a(f"v_sub_u32 v{vr_}, v{vp}, v{vr_}")
for p in range(1000): assert (p * 3277) >> 16 == p // 20

SIZES = {SX: 2621440, SWQ: 2457600, SWO: 819200, SK: 2621440, SV: 2621440, SSK: 5120, SH: 2621440, SGW: 1280, SOUT: 2621440, SDBG: 256, SWS: WS_SIZE}
def srd_init(lst):
    for s in lst:
        a(f"s_mov_b32 s{s+2}, {SIZES[s]}")
        a(f"s_mov_b32 s{s+3}, 0x20000")
def common_scalars():
    a(f"s_mov_b32 s{sLOG}, 0x3fb8aa3b")
    a(f"s_mov_b32 s{sLOG+1}, 0x3fb8aa3b")
    a(f"s_mov_b32 s{sEPS}, 0x358637bd")
    a(f"s_and_b32 s{sT0}, s{sIDX}, 7")
    a(f"s_lshl_b32 s{sCI}, s{sXCD}, 3")
    a(f"s_add_u32 s{sCI}, s{sCI}, s{sT0}")

def entry():
    a.label("Lentry")
    a(f"s_cmp_ge_u32 s2, 256")
    a("s_cbranch_scc1 Lend")
    if DIAG: a(f"s_memrealtime {sr(sT6,2)}")
    a(f"s_getpc_b64 {sr(sT0,2)}")
    a.label("Lpcref")
    a(f"s_and_b32 s{sT2}, s2, 0xf8")
    a(f"v_and_or_b32 v1, v0, 7, s{sT2}")
    a("v_lshlrev_b32 v1, 7, v1")
    a("v_min_u32 v1, Lend-Lpcref, v1")
    a(f"global_load_dword v255, v1, {sr(sT0,2)}")
    for s, off in ((SX, 0), (SWQ, 8), (SK, 32), (SV, 40), (SSK, 48), (SWS, 96), (SDBG, 88), (SH, 56), (SWO, 16), (SGW, 72), (SOUT, 80), (SD, 64)):
        a(f"s_load_dwordx2 {sr(s,2)}, s[0:1], {off}")
    a("v_lshrrev_b32 v1, 6, v0")
    a(f"v_and_b32 v{vL}, 63, v0")
    a(f"v_readfirstlane_b32 s{sW}, v1")
    a(f"s_and_b32 s{sXCD}, s2, 7")
    a(f"s_lshr_b32 s{sIDX}, s2, 3")
    a(f"s_and_b32 s{sRP}, s2, 3")
    a(f"s_bfe_u32 s{sCP}, s2, 0x10002")
    a(f"s_mov_b32 s{sBID}, s2")
    a(f"s_and_b32 s{sT0}, s{sIDX}, 3")
    a(f"s_lshl_b32 s{sRB}, s{sRP}, 2")
    a(f"s_add_u32 s{sRB}, s{sRB}, s{sT0}")
    if DIAG:
        for i in range(16): a(f"s_mov_b32 s{STS+i}, 0")
        stamp(0)
        a(f"s_mov_b32 s{STS+10}, s{sT6}")
        a(f"s_memtime vcc")
        a("s_waitcnt lgkmcnt(0)")
        a(f"s_mov_b32 s{STS+14}, vcc_lo")
    a(f"s_cmp_ge_u32 s{sIDX}, 24")
    a("s_cbranch_scc1 Lctype")
    a(f"s_cmp_lt_u32 s{sW}, 4")
    a("s_cbranch_scc1 Lawave")

def s3_setup(split=None):
    a.c("S3 setup")
    sR3, sC3 = sT2, sT3
    a(f"s_lshr_b32 s{sT0}, s{sIDX}, 1")
    a(f"s_lshl_b32 s{sR3}, s{sRP}, 4")
    a(f"s_add_u32 s{sR3}, s{sR3}, s{sT0}")
    a(f"s_and_b32 s{sT0}, s{sIDX}, 1")
    a(f"s_lshl_b32 s{sC3}, s{sCP}, 1")
    a(f"s_add_u32 s{sC3}, s{sC3}, s{sT0}")
    a(f"v_lshlrev_b32 v{vL16}, 4, v{vL}")
    a(f"v_mov_b32 v{vZ}, 0")
    a(f"v_lshrrev_b32 v24, 4, v{vL}")
    a(f"v_and_b32 v25, 3, v{vL}")
    a(f"v_bfe_u32 v26, v{vL}, 2, 2")
    a(f"s_and_b32 s{sT0}, s{sW}, 1")
    a(f"s_lshl_b32 s{sT1}, s{sT0}, 4")
    a("v_lshl_add_u32 v27, v24, 2, v25")
    a(f"v_add_u32 v27, s{sT1}, v27")
    a(f"v_mul_u32_u24 v{vOUT}, 1280, v27")
    a(f"v_lshl_add_u32 v{vOUT}, v26, 4, v{vOUT}")
    a(f"s_mul_i32 s{sXOFF}, s{sR3}, 40960")
    a(f"s_mul_i32 s{sT4}, s{sC3}, 320")
    a(f"s_add_u32 s{sYO}, s{sXOFF}, {WS_Y}")
    a(f"s_add_u32 s{sXOFF}, s{sXOFF}, s{sT4}")
    a(f"s_lshr_b32 s{sT4}, s{sW}, 1")
    a(f"s_lshl_b32 s{sT5}, s{sT4}, 6")
    a(f"s_add_u32 s{sXOFF}, s{sXOFF}, s{sT5}")
    a(f"s_lshl_b32 s{sT5}, s{sR3}, 7")
    a(f"s_add_u32 s{sT5}, s{sT5}, {WS_G}")
    a(f"v_lshlrev_b32 v{vGO}, 2, v27")
    a(f"v_add_u32 v{vGO}, s{sT5}, v{vGO}")
    a(f"v_bfe_u32 v{vPA}, v27, 1, 1")
    a(f"v_and_b32 v{vPB}, 1, v27")
    a(f"v_lshl_or_b32 v{vPA}, v{vPB}, 1, v{vPA}")
    a(f"v_and_or_b32 v{vPA}, v27, 4, v{vPA}")
    a(f"v_lshlrev_b32 v{vPB}, 1, v26")
    a(f"v_xor_b32 v{vPA}, v{vPA}, v{vPB}")
    a(f"v_lshlrev_b32 v{vPA}, 4, v{vPA}")
    a(f"v_lshl_add_u32 v{vPA}, v27, 7, v{vPA}")
    a(f"s_mul_i32 s{sT5}, s{sT4}, 12288")
    a(f"s_add_u32 s{sT5}, s{sT5}, {L_PART}")
    a(f"v_add_u32 v{vPA}, s{sT5}, v{vPA}")
    a(f"v_xor_b32 v{vPB}, 16, v{vPA}")
    a(f"v_lshl_add_u32 v{vYT}, v25, 3, v26")
    a(f"v_lshlrev_b32 v{vYT}, 6, v{vYT}")
    a(f"v_lshl_add_u32 v{vYT}, v24, 3, v{vYT}")
    a(f"s_lshl_b32 s{sT4}, s{sT4}, 11")
    a(f"s_lshl_b32 s{sT1}, s{sT1}, 1")
    a(f"s_add_u32 s{sT4}, s{sT4}, s{sT1}")
    a(f"s_add_u32 s{sT4}, s{sT4}, {L_YT}")
    a(f"v_add_u32 v{vYT}, s{sT4}, v{vYT}")
    if split: split(0)
    a(f"v_and_b32 v24, 31, v{vL}")
    a(f"v_lshrrev_b32 v25, 5, v{vL}")
    a(f"v_bfe_u32 v{vPW}, v24, 1, 1")
    a("v_and_b32 v26, 1, v24")
    a(f"v_lshl_or_b32 v{vPW}, v26, 1, v{vPW}")
    a(f"v_and_or_b32 v{vPW}, v24, 4, v{vPW}")
    a(f"v_xor_b32 v{vPW}, v{vPW}, v25")
    a(f"v_lshlrev_b32 v{vPW}, 4, v{vPW}")
    a(f"v_lshl_add_u32 v{vPW}, v24, 7, v{vPW}")
    a(f"s_lshl_b32 s{sT4}, s{sT0}, 12")
    a(f"s_add_u32 s{sT5}, s{sT5}, s{sT4}")
    a(f"v_add_u32 v{vPW}, s{sT5}, v{vPW}")
    for q in range(1, 4): a(f"v_xor_b32 v{vPW+q}, {32*q}, v{vPW}")
    a(f"s_mul_i32 s{sT4}, s{sW}, 12288")
    a(f"s_add_u32 s{sT4}, s{sT4}, {L_PART+8192}")
    a(f"s_lshl_b32 s{sT1}, s{sW}, 12")
    a(f"s_add_u32 s{sT1}, s{sT1}, {L_PART+49152-16384}")
    a(f"s_cmp_lt_u32 s{sW}, 4")
    a(f"s_cselect_b32 s{sT4}, s{sT4}, s{sT1}")
    a(f"s_sub_u32 s{sRD}, s{sT4}, s{sT5}")
    a(f"s_sub_u32 s{sT1}, s{sW}, 4")
    a(f"s_cmp_lt_u32 s{sW}, 4")
    a(f"s_cselect_b32 s{sT1}, 3, s{sT1}")
    a(f"s_mul_i32 s{sT1}, s{sT1}, {10*1024}")
    a(f"s_add_u32 s{sT1}, s{sT1}, {L_OFR}")
    a(f"v_add_u32 v{vRR}, s{sT1}, v{vL16}")
    a(f"s_mul_i32 s{sT1}, s{sT0}, {15*1024}")
    a(f"s_add_u32 s{sT1}, s{sT1}, {L_OFR}")
    a(f"v_add_u32 v{vPR}, s{sT1}, v{vL16}")
    a(f"s_mul_i32 s{sT1}, s{sW}, 5120")
    a(f"s_add_u32 s{sT4}, s{sT1}, {L_OFR}")
    a(f"v_add_u32 v{vOW}, s{sT4}, v{vL16}")
    a(f"s_add_u32 s{sPQO}, s{sYO}, s{sT1}")
    a(f"s_add_u32 s{sPQO}, s{sPQO}, {(WS_PQ-WS_Y)&0xffffffff}")
    if split: split(1)
    a("v_mul_u32_u24 v25, 336, v25")
    a("v_min_u32 v26, 20, v24")
    a("v_lshl_add_u32 v26, v26, 4, v25")
    a("v_lshrrev_b32 v27, 2, v24")
    a(f"v_mov_b32 v{vFT}, 0x7f000000")
    a("v_cmp_eq_u32 vcc, 5, v27")
    a(f"v_subrev_u32 v{vKO}, 4, v24")
    a(f"v_lshl_add_u32 v{vKO}, v{vKO}, 4, v25")
    a(f"v_cndmask_b32 v{vKE}, v26, v{vFT}, vcc")
    a(f"v_cndmask_b32 v{vKO}, v26, v{vKO}, vcc")
    a("v_cmp_eq_u32 vcc, 4, v27")
    a(f"s_mul_i32 s{sKVO}, s{sW}, {4*KVH}")
    a(f"s_add_u32 s{sKVO}, s{sKVO}, {WS_KV}")
    a(f"v_cndmask_b32 v{vKO}, v{vKO}, v{vFT}, vcc")
    a(f"s_lshr_b32 s{sT1}, s{sR3}, 1")
    a(f"s_lshl_b32 s{sT1}, s{sT1}, 3")
    a(f"s_add_u32 s{sT1}, s{sT1}, s{sW}")
    a(f"s_lshl_b32 s{sT1}, s{sT1}, 8")
    a(f"s_add_u32 s{sT1}, s{sT1}, {WS_FQ}")
    a(f"s_lshl_b32 s{sT4}, s{sR3}, 8")
    a(f"s_add_u32 s{sT4}, s{sT4}, {WS_FG}")
    a(f"v_lshlrev_b32 v26, 2, v{vL}")
    a(f"v_add_u32 v26, s{sT4}, v26")
    a(f"v_cmp_gt_u32 vcc, 4, v{vL}")
    a(f"v_mov_b32 v{vFQ}, s{sT1}")
    a(f"v_cndmask_b32 v{vFQ}, v{vFQ}, v26, vcc")
    a(f"s_lshl_b32 s{sT1}, s{sW}, 10")
    a(f"s_add_u32 s{sT1}, s{sT1}, {WS_FK}")
    a(f"v_and_b32 v{vFK}, 3, v{vL}")
    a(f"v_lshlrev_b32 v{vFK}, 8, v{vFK}")
    a(f"v_add_u32 v{vFK}, s{sT1}, v{vFK}")
    a(f"s_lshr_b32 s{sT1}, s{sR3}, 3")
    a(f"s_add_u32 s{sT1}, s{sT1}, 2")
    a(f"s_bfe_u32 s{sT1}, s{sT1}, 0x10002")
    a(f"s_mul_i32 s{sT1}, s{sT1}, 20")
    a(f"s_mul_i32 s{sT4}, s{sC3}, 5")
    a(f"s_min_u32 s{sT5}, s{sW}, 4")
    a(f"s_add_u32 s{sT4}, s{sT4}, s{sT5}")
    a(f"s_add_u32 s{sT1}, s{sT1}, s{sT4}")
    a(f"s_lshl_b32 s{sT1}, s{sT1}, 8")
    a(f"s_add_u32 s{sT1}, s{sT1}, {WS_FY}")
    a(f"v_mov_b32 v{vFY}, s{sT1}")
    a(f"s_lshl_b32 s{sT4}, s{sT4}, 11")
    a(f"s_add_u32 s{sYO}, s{sYO}, s{sT4}")
    a(f"s_lshl_b32 s{sYM}, s{sT5}, 11")
    a(f"s_add_u32 s{sYM}, s{sYM}, {L_YT}")

def x_loads():
    a(f"buffer_load_dwordx4 {vr(vXD,4)}, v{vOUT}, {srd(SX)}, s{sXOFF} offen")
    a(f"buffer_load_dwordx4 {vr(vXD2,4)}, v{vOUT}, {srd(SX)}, s{sXOFF} offen offset:256")

def wo_prep(vtmp):
    a(f"s_and_b32 s{sT4}, s{sIDX}, 1")
    a(f"s_lshl_b32 s{sT5}, s{sCP}, 1")
    a(f"s_add_u32 s{sT4}, s{sT4}, s{sT5}")
    a(f"s_lshl_b32 s{sT4}, s{sT4}, 3")
    a(f"s_add_u32 s{sT4}, s{sT4}, s{sW}")
    a(f"s_mul_i32 s{sT4}, s{sT4}, 25600")
    a(f"s_add_u32 s{sWOO}, s{sT4}, {WS_WOP}")
    a(f"v_lshlrev_b32 v{vtmp}, 4, v{vL}")
def wo_list(vtmp, order=None):
    out = []
    for i in range(25):
        t = f"buffer_load_dwordx4 {vr(VWO+4*i,4)}, v{vtmp}, {srd(SWS)}, s{sWOO} offen offset:{1024*(i&3)} sc1"
        if (i & 3) == 3: t += f"\ns_add_u32 s{sWOO}, s{sWOO}, 4096"
        out.append(t)
    return out

S0B = 156
def s0_task(st):
    a(f"s_mul_i32 s{sTB}, s{st}, 6554")
    a(f"s_lshr_b32 s{sTB}, s{sTB}, 16")
    a(f"s_mul_i32 s{sCHB}, s{sTB}, 10")
    a(f"s_sub_u32 s{sCHB}, s{st}, s{sCHB}")
for t in range(640): assert (t * 6554) >> 16 == t // 10

def s0_loads():
    a.c("S0 loads")
    B = S0B
    a(f"v_lshrrev_b32 v{B+1}, 3, v{vL}")
    a(f"v_and_b32 v{B+2}, 7, v{vL}")
    a(f"v_mul_u32_u24 v{B+3}, 5120, v{B+1}")
    a(f"v_lshl_add_u32 v{B+3}, v{B+2}, 4, v{B+3}")
    a(f"s_mul_i32 s{sT0}, s{sTB}, 40960")
    a(f"s_lshl_b32 s{sT1}, s{sCHB}, 7")
    a(f"s_add_u32 s{sT0}, s{sT0}, s{sT1}")
    a(f"v_add_u32 v{B+64}, s{sT0}, v{B+3}")
    a(f"v_subrev_u32 v{B+65}, 3840, v{B+64}")
    a(f"v_lshlrev_b32 v{B+66}, 6, v{B+2}")
    a(f"s_lshl_b32 s{sT1}, s{sCHB}, 9")
    srd_init([SK, SV, SSK])
    a("s_waitcnt lgkmcnt(0)")
    for i in range(4): a(f"buffer_load_dwordx4 {vr(B+16+4*i,4)}, v{B+64}, {srd(SK)}, 0 offen offset:{1280*i}")
    for i in range(3): a(f"buffer_load_dwordx4 {vr(B+4+4*i,4)}, v{B+65}, {srd(SK)}, 0 offen offset:{1280*i}")
    for i in range(4): a(f"buffer_load_dwordx4 {vr(B+32+4*i,4)}, v{B+64}, {srd(SV)}, 0 offen offset:{1280*i}")
    for i in range(4): a(f"buffer_load_dwordx4 {vr(B+48+4*i,4)}, v{B+66}, {srd(SSK)}, s{sT1} offen offset:{16*i}")

def s0_addr(s_scr):
    B = S0B
    a(f"v_mul_u32_u24 v{B+67}, 576, v{B+1}")
    a(f"v_lshl_add_u32 v{B+67}, v{B+2}, 4, v{B+67}")
    a(f"v_add_u32 v{B+67}, s{s_scr}, v{B+67}")
    a(f"v_and_b32 v{B+68}, 15, v{vL}")
    a(f"v_mul_u32_u24 v{B+69}, 144, v{B+68}")
    a(f"v_lshrrev_b32 v{B+70}, 4, v{vL}")
    a(f"v_lshl_add_u32 v{B+69}, v{B+70}, 3, v{B+69}")
    a(f"v_add_u32 v{B+69}, s{s_scr}, v{B+69}")
    a(f"s_and_b32 s{sT0}, s{sTB}, 3")
    a(f"v_xor_b32 v{B+68}, s{sT0}, v{B+68}")
    a(f"v_lshlrev_b32 v{B+68}, 4, v{B+68}")
    a(f"v_lshl_add_u32 v{B+68}, v{B+70}, 14, v{B+68}")
    a(f"s_lshl_b32 s{sT0}, s{sCHB}, 18")
    a(f"s_lshl_b32 s{sT1}, s{sTB}, 8")
    a(f"s_add_u32 s{sT0}, s{sT0}, s{sT1}")
    a(f"s_mov_b32 s{sT1}, 0xffff0000")

def s0_compute(split=None, pk=True):
    a.c("S0 compute")
    B = S0B
    KF, VF, WF, AC, UO = 56, 70, 78, 86, B + 72
    for p in range(4):
        for cc in range(2):
            c = 2 * p + cc
            for h in range(2):
                a(f"v_lshlrev_b32 v{WF+4*h+cc}, 16, v{B+48+2*c+h}")
                a(f"v_and_b32 v{WF+4*h+2+cc}, s{sT1}, v{B+48+2*c+h}")
        for r in range(7):
            a(f"v_lshlrev_b32 v{KF+2*r}, 16, v{B+4+4*r+p}")
            a(f"v_and_b32 v{KF+2*r+1}, s{sT1}, v{B+4+4*r+p}")
        for r in range(4):
            a(f"v_lshlrev_b32 v{VF+2*r}, 16, v{B+32+4*r+p}")
            a(f"v_and_b32 v{VF+2*r+1}, s{sT1}, v{B+32+4*r+p}")
        if pk:
            for i in range(4): a(f"v_pk_mul_f32 {vr(AC+2*i,2)}, {vr(KF+2*(i+3),2)}, {vr(WF,2)}")
            for d in range(1, 4):
                for i in range(4): a(f"v_pk_fma_f32 {vr(AC+2*i,2)}, {vr(KF+2*(i+3-d),2)}, {vr(WF+2*d,2)}, {vr(AC+2*i,2)}")
            for i in range(4): a(f"v_pk_mul_f32 {vr(AC+2*i,2)}, {vr(AC+2*i,2)}, {vr(VF+2*i,2)}")
        else:
            for i in range(8): a(f"v_mul_f32 v{AC+i}, v{KF+6+i}, v{WF+(i&1)}")
            for d in range(1, 4):
                for i in range(8): a(f"v_fmac_f32 v{AC+i}, v{KF+6+i-2*d}, v{WF+2*d+(i&1)}")
            for i in range(8): a(f"v_mul_f32 v{AC+i}, v{AC+i}, v{VF+i}")
        for i in range(4): a(f"v_cvt_pk_bf16_f32 v{UO+4*i+p}, v{AC+2*i}, v{AC+2*i+1}")
        if split: split(p)
    for i in range(4): a(f"ds_write_b128 v{B+67}, {vr(UO+4*i,4)} offset:{144*i}")
    for j in range(4):
        a(f"ds_read_b64_tr_b16 {vr(B+4+4*j,2)}, v{B+69} offset:{32*j}")
        a(f"ds_read_b64_tr_b16 {vr(B+6+4*j,2)}, v{B+69} offset:{32*j+2304}")
    for j in range(4):
        a(f"s_waitcnt lgkmcnt({6-2*j})")
        a(f"buffer_store_dwordx4 {vr(B+4+4*j,4)}, v{B+68}, {srd(SWS)}, s{sT0} offen sc1")
        if j < 3: a(f"s_add_u32 s{sT0}, s{sT0}, 65536")

def f0_off(sd):
    a(f"s_lshl_b32 s{sd}, s{sCHB}, 8")
    a(f"s_add_u32 s{sd}, s{sd}, {WS_F0}")

ACC = 32
FB = [112, 156]
vX0, vX1, vWA, vWX = 148, 149, 150, 154
vA1, vA2, vC16, vG4 = 16, 17, 18, 19
sC, sSL = sT2, sT3

def a_setup():
    a.c("A-wave address setup")
    a(f"s_and_b32 s{sT0}, s{sW}, 1")
    a(f"s_lshr_b32 s{sT1}, s{sW}, 1")
    a(f"v_and_b32 v{vC16}, 15, v{vL}")
    a(f"v_lshrrev_b32 v{vG4}, 4, v{vL}")
    a(f"v_lshrrev_b32 v8, 1, v{vC16}")
    a(f"v_xor_b32 v8, v{vG4}, v8")
    a(f"v_lshlrev_b32 v8, 4, v8")
    a(f"v_lshl_add_u32 v8, v{vC16}, 7, v8")
    a(f"s_lshl_b32 s{sT4}, s{sT1}, 13")
    a(f"v_add_u32 v{vX0}, s{sT4}, v8")
    a(f"v_xor_b32 v{vX1}, 64, v{vX0}")
    a(f"v_bfe_u32 v8, v{vL}, 2, 2")
    a(f"v_lshl_add_u32 v9, v{vG4}, 3, v8")
    a(f"v_and_b32 v10, 1, v{vG4}")
    a(f"v_xor_b32 v10, s{sT0}, v10")
    a(f"v_and_b32 v11, 3, v{vL}")
    a("v_lshlrev_b32 v11, 3, v11")
    a(f"v_lshl_add_u32 v{vWX}, v9, 6, v11")
    a(f"v_lshl_add_u32 v{vWX}, v10, 5, v{vWX}")
    a(f"v_add_u32 v{vWX}, 32768, v{vWX}")
    a("v_lshl_or_b32 v8, v10, 2, v8")
    a("v_lshl_add_u32 v8, v8, 5, v11")
    a("v_lshl_add_u32 v8, v9, 8, v8")
    a(f"v_add_u32 v{vWA}, 16384, v8")
    for tt in range(1, 4): a(f"v_xor_b32 v{vWA+tt}, {32*tt}, v{vWA}")

def a_reads(buf, ks):
    b = FB[buf]
    xs = [f"ds_read_b128 {vr(b+4*rt,4)}, v{vX1 if ks else vX0} offset:{2048*rt}" for rt in range(4)]
    ws = []
    for tt in range(5):
        for sec in range(2):
            if tt < 4: ws.append(f"ds_read_b64_tr_b16 {vr(b+16+4*tt+2*sec,2)}, v{vWA+tt} offset:{ks*8192+sec*1024}")
            else: ws.append(f"ds_read_b64_tr_b16 {vr(b+16+4*tt+2*sec,2)}, v{vWX} offset:{ks*2048+sec*256}")
    return [xs[0], ws[0], ws[1], xs[1], ws[2], ws[3], xs[2], ws[4], ws[5], xs[3]] + ws[6:]

def acc(rt, tt): return ACC + 4 * (rt * 5 + tt)

def a_mfmas(buf, qtype, order=None):
    b = FB[buf]
    out = []
    for (rt, tt) in (order or [(rt, tt) for tt in range(5) for rt in range(4)]):
        d = vr(acc(rt, tt), 4)
        xf = vr(b + 4 * rt, 4); wf = vr(b + 16 + 4 * tt, 4)
        A, B = (wf, xf) if qtype else (xf, wf)
        out.append(f"v_mfma_f32_16x16x32_bf16 {d}, {A}, {B}, {d}")
    return out

def interleave(mf, rd):
    j = 0
    for i, m in enumerate(mf):
        a(m)
        if j < len(rd): a(rd[j]); j += 1
    while j < len(rd): a(rd[j]); j += 1

def a_mainloop(qtype, hooks):
    t = "q" if qtype else "k"
    a.c("A main loop")
    for i in range(80): a(f"v_mov_b32 v{ACC+i}, 0")
    a(f"s_mov_b32 s{sC}, 0")
    a(f"s_mov_b32 s{sSL}, 0")
    mask = sum(1 << c for c in hooks) | (1 << 10)
    a(f"s_mov_b32 s{sT6}, {mask}")
    if "noprio" not in EXP: a("s_setprio 2")
    a("s_waitcnt lgkmcnt(0)")
    a("s_barrier")
    stamp(1)
    for r in a_reads(0, 0): a(r)
    a(".p2align 3")
    a.label(f"Lml{t}")
    a("s_waitcnt lgkmcnt(0)")
    a("s_nop 0") if False else None
    book = [
        f"s_add_u32 s{sSL}, s{sSL}, 1\ns_cmp_eq_u32 s{sSL}, 3",
        f"s_mov_b32 s{sT4}, {SLOT}",
        f"s_cselect_b32 s{sT4}, {-2*SLOT & 0xffffffff}, s{sT4}",
        f"s_cselect_b32 s{sSL}, 0, s{sSL}\ns_add_u32 s{sC}, s{sC}, 1",
    ]
    rd = a_reads(1, 1)
    seq = []
    for i, r in enumerate(rd): seq.append(r + ("\n" + book[i - 2] if 2 <= i < 6 else ""))
    seq += [f"v_add_u32 v{vX0}, s{sT4}, v{vX0}\nv_add_u32 v{vX1}, s{sT4}, v{vX1}",
            f"v_add_u32 v{vWA}, s{sT4}, v{vWA}\nv_add_u32 v{vWA+1}, s{sT4}, v{vWA+1}",
            f"v_add_u32 v{vWA+2}, s{sT4}, v{vWA+2}\nv_add_u32 v{vWA+3}, s{sT4}, v{vWA+3}",
            f"v_add_u32 v{vWX}, s{sT4}, v{vWX}\ns_bitcmp1_b32 s{sT6}, s{sC}"]
    interleave(a_mfmas(0, qtype), seq)
    a("s_waitcnt lgkmcnt(0)")
    a(f"s_cbranch_scc1 Lhook{t}")
    a.label(f"Lhookd{t}")
    a("s_barrier")
    interleave(a_mfmas(1, qtype), a_reads(0, 0))
    a(f"s_branch Lml{t}")
    a.label(f"Lhook{t}")
    if hooks:
        a(f"s_cmp_eq_u32 s{sC}, 10")
        a(f"s_cbranch_scc1 Lmx{t}")
    items = sorted(hooks.items())
    for n, (c, f) in enumerate(items):
        nxt = a.newlabel("Lhk")
        if n < len(items) - 1:
            a(f"s_cmp_lg_u32 s{sC}, {c}")
            a(f"s_cbranch_scc1 {nxt}")
        f()
        a(f"s_branch Lhookd{t}")
        a.label(nxt)
    a.label(f"Lmx{t}")

def phi_list(regs, tmp):
    out = []
    B = 4
    for i in range(0, len(regs), B):
        batch = regs[i:i + B]
        for j, r in enumerate(batch):
            out.append(f"v_mul_f32 v{tmp+2*j}, s{sLOG}, v{r}")
            out.append(f"v_mul_f32 v{tmp+2*j+1}, s{sLOG}, v{r+1}")
        for j, r in enumerate(batch):
            out.append(f"v_exp_f32_e64 v{tmp+2*j}, v{tmp+2*j} clamp")
            out.append(f"v_exp_f32_e64 v{tmp+2*j+1}, v{tmp+2*j+1} clamp")
        for j, r in enumerate(batch):
            out.append(f"v_max_f32 v{r}, s{sEPS}, v{r}")
            out.append(f"v_max_f32 v{r+1}, s{sEPS}, v{r+1}")
        for j, r in enumerate(batch):
            out.append(f"v_add_f32 v{r}, v{r}, v{tmp+2*j}")
            out.append(f"v_add_f32 v{r+1}, v{r+1}, v{tmp+2*j+1}")
    return out

def sprinkle(main, extra, every, start=0):
    j = 0
    for i, m in enumerate(main):
        a(m)
        if i >= start and (i - start) % every == every - 1 and j < len(extra):
            a(extra[j]); j += 1
    return extra[j:]

def fc_addr(v):
    a(f"v_and_b32 v{v}, 7, v{vL}")
    a(f"v_lshlrev_b32 v{v}, 8, v{v}")
    a(f"v_add_u32 v{v}, {WS_FC}, v{v}")
def f0_addr(v):
    a(f"s_lshr_b32 s{sT4}, s{sQUAD}, 4")
    a(f"s_lshl_b32 s{sT4}, s{sT4}, 8")
    a(f"s_add_u32 s{sT4}, s{sT4}, {WS_F0}")
    a(f"v_mov_b32 v{v}, s{sT4}")

def awave():
    a.label("Lawave")
    common_scalars()
    srd_init([SX, SWS, SDBG, SOUT])
    a(f"s_cmp_ge_u32 s{sIDX}, 16")
    a("s_cbranch_scc1 Lqa")

def kva():
    a(f"s_or_b32 s{sT0}, s{sBID}, s{sW}")
    a(f"s_cmp_lg_u32 s{sT0}, 0")
    a("s_cbranch_scc1 Lkva1")
    a(f"s_memrealtime {sr(sT2,2)}")
    a(f"v_lshlrev_b32 v1, 8, v{vL}")
    a("v_mov_b32 v2, 0")
    a(f"s_mov_b32 s{sT0}, {WS_C + CDELTA}")
    a(f"s_mov_b32 s{sT1}, {WS_C + CDELTA + 16384}")
    a("s_waitcnt lgkmcnt(0)")
    a("s_mov_b32 exec_hi, 0")
    a(f"buffer_store_dword v2, v1, {srd(SWS)}, s{sT1} offen sc1")
    a("s_mov_b32 exec_hi, -1")
    a(f"buffer_store_dword v2, v1, {srd(SWS)}, s{sT0} offen sc1")
    a(f"s_lshl_b32 s{sT3}, s{sT3}, 27")
    a(f"s_xor_b32 s{sT2}, s{sT2}, s{sT3}")
    a(f"s_or_b32 s{sT2}, s{sT2}, 1")
    a(f"v_mov_b32 v3, s{sT2}")
    a("s_waitcnt vmcnt(0)")
    a("s_mov_b64 exec, 1")
    a(f"buffer_store_dword v3, v2, {srd(SDBG)}, 0 offen sc1")
    a("s_mov_b64 exec, -1")
    a.label("Lkva1")
    a(f"s_lshr_b32 s{sT0}, s{sIDX}, 2")
    a(f"s_lshl_b32 s{sCG}, s{sCP}, 2")
    a(f"s_add_u32 s{sCG}, s{sCG}, s{sT0}")
    a_setup()
    a(f"s_mul_i32 s{sT4}, s{sW}, 3584")
    a(f"s_add_u32 s{sT4}, s{sT4}, {L_KVS}")
    a(f"v_mul_u32_u24 v8, 336, v{vG4}")
    a(f"v_add_u32 v8, s{sT4}, v8")
    a(f"v_lshl_add_u32 v{vA1}, v{vC16}, 4, v8")
    a(f"v_add_u32 v9, 8, v{vC16}")
    a(f"v_subrev_u32 v10, 12, v{vC16}")
    a(f"v_cmp_lt_u32 vcc, 11, v{vC16}")
    a("v_cndmask_b32 v9, v9, v10, vcc")
    a(f"v_cmp_eq_u32 vcc, 0, v{vC16}")
    a("v_mov_b32 v10, 20")
    a("v_cndmask_b32 v9, v9, v10, vcc")
    a(f"v_lshl_add_u32 v{vA2}, v9, 4, v8")
    a(f"s_lshl_b32 s{sT4}, s{sT0}, 2")
    a(f"s_add_u32 s{sT4}, s{sT4}, {L_CNT}")
    a(f"v_mov_b32 v20, s{sT4}")
    a(f"s_mul_i32 s{sT4}, s{sT0}, 3584")
    a(f"s_mul_i32 s{sT5}, s{sT1}, {KVH}")
    a(f"s_add_u32 s{sT4}, s{sT4}, s{sT5}")
    a(f"v_lshlrev_b32 v21, 2, v{vL}")
    a(f"s_add_u32 s{sT5}, s{sT4}, {L_KVS}")
    a(f"v_add_u32 v22, s{sT5}, v21")
    a(f"s_mul_i32 s{sT5}, s{sCG}, {4*KVH}")
    a(f"s_add_u32 s{sT4}, s{sT4}, s{sT5}")
    a(f"s_add_u32 s{sCH}, s{sT4}, {WS_KV}")
    a("v_mov_b32 v23, 0x3f803f80")
    a(f"s_lshl_b32 s{sLC}, s{sCG}, 1")
    a(f"s_add_u32 s{sLC}, s{sLC}, s{sT0}")
    a(f"s_lshl_b32 s{sLC}, s{sLC}, 1")
    a(f"s_add_u32 s{sLC}, s{sLC}, s{sT1}")
    a(f"s_lshl_b32 s{sLC}, s{sLC}, 8")
    a(f"s_add_u32 s{sLC}, s{sLC}, {WS_FK}")
    wo_prep(28)
    a_mainloop(False, {})
    a.c("KV epilogue")
    order = [(rt, tt) for tt in (4, 0, 1, 2, 3) for rt in range(4)]
    mf = a_mfmas(1, False, order)
    for m in mf[:12]: a(m)
    XP = 112
    TM = 120
    a(f"v_cmp_gt_u32 vcc, 8, v{vC16}")
    L = []
    for rt in range(4):
        for h in range(2): L.append(f"v_cvt_pk_bf16_f32 v{XP+2*rt+h}, v{acc(rt,4)+2*h}, v{acc(rt,4)+2*h+1}")
    for j in range(8): L.append(f"v_cndmask_b32 v{XP+j}, v{XP+j}, v23, vcc")
    regs = []
    for tt in (4, 0, 1):
        for rt in range(4): regs += [acc(rt, tt), acc(rt, tt) + 2]
    L += phi_list(regs, TM)
    for i, m in enumerate(mf[12:]):
        a(m)
        for x in L[2 * i:2 * i + 2]: a(x)
    L = L[16:]
    stamp(2)
    for tt in (2, 3, 4, 0, 1):
        for rt in range(4):
            for h in range(2):
                L.append(f"v_cvt_pk_bf16_f32 v{acc(rt&2,tt)+2*(rt&1)+h}, v{acc(rt,tt)+2*h}, v{acc(rt,tt)+2*h+1}")
    rest = sprinkle(L, wo_list(28), 9)
    for x in rest: a(x)
    def fr(t, p): return XP + 4 * p if t == 5 else acc(2 * p, t)
    prods = [(0, 2), (0, 5), (4, 2), (4, 5), (1, 3), (1, 5), (4, 3)]
    PD = 120
    for p in range(2):
        for i, (ta, tb) in enumerate(prods):
            d = vr(PD + 4 * i, 4)
            a(f"v_mfma_f32_16x16x32_bf16 {d}, {vr(fr(ta,p),4)}, {vr(fr(tb,p),4)}, {'0' if p==0 else d}")
    def wr(i, va, off, mlo, mhi):
        if mlo is not None: a(f"s_mov_b32 exec_lo, {mlo}")
        if mhi is not None: a(f"s_mov_b32 exec_hi, {mhi}")
        a(f"ds_write_b128 v{va}, {vr(PD+4*i,4)} offset:{off}")
    wr(0, vA1, 0, None, None)
    wr(4, vA1, KVH + 336 + 64, None, None)
    wr(1, vA2, 0, 0x0f010f01, 0x0f010f01)
    wr(5, vA2, KVH + 336, 0xf001f001, 0xf001f001)
    wr(2, vA1, 4 * 336, 0xffff, 0)
    wr(3, vA2, 4 * 336, 0x0f01, None)
    wr(3, vA2, KVH - 336, 0xf0010000, None)
    wr(6, vA1, KVH + 64 - 336, 0xffff0000, None)
    a("v_mov_b32 v24, 1") if False else None
    a("s_mov_b64 exec, 1")
    a("v_mov_b32 v24, 1")
    a(f"ds_add_u32 v20, v24")
    a("s_mov_b64 exec, -1")
    lds_wait(20, 24, 2)
    for i in range(7):
        a(f"ds_read_b32 v{32+i}, v22 offset:{256*i}")
        a(f"ds_read_b32 v{40+i}, v22 offset:{256*i+7168}")
    stamp(3)
    for i in range(7):
        a(f"s_waitcnt lgkmcnt({12-2*i})")
        a(f"v_add_f32 v{32+i}, v{32+i}, v{40+i}")
        a(f"buffer_atomic_add_f32 v{32+i}, v21, {srd(SWS)}, s{sCH} offen offset:{256*i}")
    a("s_setprio 0")
    arr_prep(48, 49)
    tag_lds(50)
    a("s_waitcnt vmcnt(0)")
    arr_issue(48, 49, f"s{sLC}")
    s3_setup()
    arr_finish(48, 49, f"s{sLC}", 16)
    stamp(4)
    a("s_branch Ls3")

def qa():
    a.label("Lqa")
    a(f"s_bfe_u32 s{sT0}, s{sIDX}, 0x10002")
    a(f"s_lshl_b32 s{sCG}, s{sCP}, 1")
    a(f"s_add_u32 s{sCG}, s{sCG}, s{sT0}")
    a_setup()
    a(f"v_lshrrev_b32 v8, 1, v{vG4}")
    a(f"v_and_b32 v9, 1, v{vG4}")
    a(f"v_lshlrev_b32 v20, 4, v{vC16}")
    a("v_lshl_add_u32 v20, v9, 9, v20")
    a("v_lshl_add_u32 v21, v8, 3, v20")
    a("v_add_u32 v21, 4096, v21")
    a("v_lshl_add_u32 v20, v8, 10, v20")
    a(f"s_lshl_b32 s{sT4}, s{sRB}, 1")
    a(f"s_add_u32 s{sT4}, s{sT4}, s{sT1}")
    a(f"s_lshl_b32 s{sT5}, s{sCG}, 1")
    a(f"s_add_u32 s{sT5}, s{sT5}, s{sT0}")
    a(f"s_mul_i32 s{sT0}, s{sT4}, {80*1024}")
    a(f"s_mul_i32 s{sT1}, s{sT5}, {5*1024}")
    a(f"s_add_u32 s{sT0}, s{sT0}, s{sT1}")
    a(f"s_add_u32 s{sCH}, s{sT0}, {WS_PQ}")
    a(f"s_add_u32 s{sVAR}, s{sCH}, {40*1024}")
    a(f"s_lshl_b32 s{sT4}, s{sT4}, 3")
    a(f"s_add_u32 s{sT4}, s{sT4}, s{sT5}")
    a(f"s_lshl_b32 s{sT4}, s{sT4}, 8")
    a(f"s_add_u32 s{sLC}, s{sT4}, {WS_FQ}")
    wo_prep(28)
    a_mainloop(True, {})
    a.c("Q epilogue")
    order = [(rt, tt) for rt in range(4) for tt in range(5)]
    mf = a_mfmas(1, True, order)
    for m in mf[:9]: a(m)
    L = []
    for rt in range(4):
        regs = []
        for tt in range(5): regs += [acc(rt, tt), acc(rt, tt) + 2]
        L += phi_list(regs, 112)
        O = acc(rt, 0)
        for tt in range(5):
            for h in range(2): L.append(f"v_cvt_pk_bf16_f32 v{O+2*tt+h}, v{acc(rt,tt)+2*h}, v{acc(rt,tt)+2*h+1}")
        so = f"s{sVAR if rt>>1 else sCH}"
        for p in range(2):
            L.append(f"buffer_store_dwordx4 {vr(O+4*p,4)}, v20, {srd(SWS)}, {so} offen offset:{256*(rt&1)+2048*p} sc1")
        L.append(f"buffer_store_dwordx2 {vr(O+8,2)}, v21, {srd(SWS)}, {so} offen offset:{256*(rt&1)} sc1")
    for i, m in enumerate(mf[9:]):
        a(m)
        for x in L[2 * i:2 * i + 2]: a(x)
    L = L[22:]
    stamp(2)
    rest = sprinkle(L, wo_list(28), 10)
    assert not rest
    stamp(3)
    a("s_setprio 0")
    tag_lds(120)
    s3_setup()
    a("s_waitcnt vmcnt(0)")
    flag_store(120, 121, f"s{sLC}")
    stamp(4)
    a("s_branch Ls3")

def h_dma(sj, sch0):
    a(f"s_lshr_b32 s{sT4}, s{sj}, 1")
    a(f"s_and_b32 s{sT5}, s{sj}, 1")
    a(f"s_lshl_b32 s{sT5}, s{sT5}, 11")
    a(f"s_add_u32 s{sT6}, s{sch0}, s{sT4}")
    a(f"s_lshl_b32 s{sT6}, s{sT6}, 12")
    a(f"s_add_u32 s{sT6}, s{sT6}, s{sT5}")
    a(f"s_mul_i32 s{sT4}, s{sT4}, {HSTR}")
    a(f"s_add_u32 s{sT4}, s{sT4}, s{sT5}")
    a(f"s_add_u32 m0, s{sT4}, {L_HB+128}")
    a(f"buffer_load_dwordx4 v{vL16}, {srd(SH)}, s{sT6} offen lds")
    a(f"buffer_load_dwordx4 v{vL16}, {srd(SH)}, s{sT6} offen offset:1024 lds")

CACC = 32
CPOOL = 96
NPOOL = 12
CD = 144
vUe, vUo, vH, vCW, vCT, vCS, vCY, vCN = range(148, 156)

def conv_setup(j, chl0, split=None):
    a.c("conv setup")
    a(f"s_lshr_b32 s{sLC}, s{j}, 1")
    a(f"s_and_b32 s{sVAR}, s{j}, 1")
    a(f"s_add_u32 s{sCHL}, s{chl0}, s{sLC}")
    a(f"s_lshl_b32 s{sCH}, s{sQUAD}, 2")
    a(f"s_add_u32 s{sCH}, s{sCH}, s{sCHL}")
    a(f"s_lshl_b32 s{sT4}, s{sCH}, 1")
    a(f"s_and_b32 s{sT4}, s{sT4}, -4")
    a(f"s_load_dword s{sDV}, {sr(SD,2)}, s{sT4}")
    a(f"v_and_b32 v96, 31, v{vL}")
    a(f"v_lshrrev_b32 v97, 5, v{vL}")
    a("v_lshl_add_u32 v98, v97, 2, v96")
    a("v_lshrrev_b32 v99, 2, v98")
    a("v_add_u32 v99, 3, v99")
    a("v_and_b32 v99, 3, v99")
    a(f"v_xor_b32 v99, s{sCHL}, v99")
    a("v_lshlrev_b32 v99, 4, v99")
    a("v_lshl_add_u32 v99, v98, 6, v99")
    a(f"v_add_u32 v{vUe}, {L_UD-28*64}, v99")
    a(f"v_xor_b32 v{vUo}, 32, v{vUe}")
    a(f"v_bfe_u32 v98, v{vL}, 4, 1")
    a(f"v_and_b32 v99, 3, v{vL}")
    a("v_lshl_add_u32 v98, v98, 2, v99")
    a(f"v_bfe_u32 v96, v{vL}, 2, 2")
    a("v_sub_u32 v98, v98, v96")
    a("v_lshlrev_b32 v97, 3, v97")
    a("v_sub_u32 v98, v98, v97")
    a("v_lshlrev_b32 v98, 3, v98")
    a(f"s_mul_i32 s{sT4}, s{sLC}, {HSTR}")
    a(f"s_add_u32 s{sT4}, s{sT4}, {L_HB+128+32}")
    a(f"v_add_u32 v{vH}, s{sT4}, v98")
    a(f"s_lshl_b32 s{sT4}, s{sW}, 11")
    a(f"s_add_u32 s{sT4}, s{sT4}, {L_YST}")
    a(f"v_lshlrev_b32 v{vCW}, 4, v{vL}")
    a(f"v_add_u32 v{vCW}, s{sT4}, v{vCW}")
    if split: split(0)
    a(f"v_lshrrev_b32 v97, 4, v{vL}")
    a("v_lshrrev_b32 v98, 1, v99")
    a("v_lshl_add_u32 v98, v97, 1, v98")
    a("v_lshl_add_u32 v98, v98, 3, v96")
    a("v_lshlrev_b32 v98, 4, v98")
    a("v_and_b32 v99, 1, v99")
    a("v_lshl_add_u32 v98, v99, 3, v98")
    a(f"v_add_u32 v{vCT}, s{sT4}, v98")
    a(f"v_and_b32 v98, 7, v{vL}")
    a(f"v_lshrrev_b32 v99, 5, v{vL}")
    a("v_lshl_add_u32 v98, v98, 1, v99")
    a(f"v_mul_u32_u24 v98, 40960, v98")
    a(f"v_bfe_u32 v99, v{vL}, 3, 2")
    a(f"v_lshl_add_u32 v{vCY}, v99, 4, v98")
    a(f"s_lshl_b32 s{sT4}, s{j}, 4")
    a(f"s_add_u32 s{sT4}, s{sT4}, {L_SP}")
    a(f"v_mov_b32 v{vCS}, s{sT4}")
    a(f"s_lshl_b32 s{sT4}, s{sLC}, 2")
    a(f"s_add_u32 s{sT4}, s{sT4}, {L_CNT+16}")
    a(f"v_mov_b32 v{vCN}, s{sT4}")

def conv_dfrag():
    a("s_waitcnt lgkmcnt(0)")
    a(f"s_and_b32 s{sT4}, s{sCH}, 1")
    a(f"s_lshl_b32 s{sT4}, s{sT4}, 4")
    a(f"s_lshr_b32 s{sDV}, s{sDV}, s{sT4}")
    a(f"s_and_b32 s{sDV}, s{sDV}, 0xffff")
    a(f"v_lshlrev_b32 v98, 2, v{vL}")
    a("v_and_b32 v98, 16, v98")
    a(f"v_lshlrev_b32 v98, v98, s{sDV}")
    a(f"v_and_b32 v99, 59, v{vL}")
    for r in range(4):
        a(f"v_cmp_eq_u32 vcc, {32+8*r}, v99")
        a(f"v_cndmask_b32 v{CD+r}, 0, v98, vcc")

def zero_pads(j):
    a("v_mov_b32 v100, 0")
    a("v_mov_b32 v101, 0")
    a(f"v_lshlrev_b32 v102, 3, v{vL}")
    a(f"s_and_b32 s{sT6}, s{j}, 3")
    a(f"s_lshl_b32 s{sT4}, s{sT6}, 9")
    a(f"s_add_u32 s{sT4}, s{sT4}, {L_UB}")
    a(f"v_add_u32 v103, s{sT4}, v102")
    a("ds_write_b64 v103, v[100:101]")
    a(f"s_mul_i32 s{sT4}, s{sT6}, {HSTR}")
    a(f"s_add_u32 s{sT4}, s{sT4}, {L_HB}")
    a(f"v_add_u32 v103, s{sT4}, v102")
    a("s_mov_b64 exec, 0xffff")
    a("ds_write_b64 v103, v[100:101]")
    a(f"v_add_u32 v103, {L_CNT}, v102")
    a("s_mov_b64 exec, 0xff")
    a("ds_write_b64 v103, v[100:101]")
    a("s_mov_b64 exec, -1")

def u_dma(j, nper):
    a(f"s_mul_i32 s{sT4}, s{j}, {1024*nper}")
    a(f"s_lshl_b32 s{sT5}, s{sQUAD}, 14")
    a(f"s_add_u32 s{sT5}, s{sT5}, s{sT4}")
    a(f"s_add_u32 m0, s{sT4}, {L_UD}")
    for i in range(nper): a(f"buffer_load_dwordx4 v{vL16}, {srd(SWS)}, s{sT5} offen offset:{1024*i} sc1 lds")

def bwave():
    a.c("B wave")
    sXB, sWB, sM, sMW, sROT, sSTEP, sQ2, sQ3 = sCG, sUD, sTAG, sCNT, sCI, sLOG, sLOG + 1, sEPS
    VX, VW = 32, 36
    a(f"s_sub_u32 s{sJ}, s{sW}, 4")
    a(f"s_cmp_ge_u32 s{sW}, 6")
    a("s_cbranch_scc1 Lworker")
    a(f"v_lshrrev_b32 v1, 3, v{vL}")
    a(f"v_mul_u32_u24 v1, 1280, v1")
    a(f"v_lshrrev_b32 v2, 4, v{vL}")
    a(f"v_and_b32 v3, 7, v{vL}")
    a("v_xor_b32 v2, v2, v3")
    a(f"v_lshl_add_u32 v{VX}, v2, 4, v1")
    a(f"v_xor_b32 v{VX+1}, 64, v{VX}")
    a(f"v_add_u32 v{VX+1}, {10240-1024}, v{VX+1}")
    a(f"v_add_u32 v{VX+2}, {20480-2048}, v{VX}")
    a(f"v_add_u32 v{VX+3}, {20480-2048}, v{VX+1}")
    a(f"s_lshl_b32 s{sXB}, s{sRB}, 1")
    a(f"s_add_u32 s{sXB}, s{sXB}, s{sJ}")
    a(f"s_mul_i32 s{sXB}, s{sXB}, 81920")
    a(f"s_lshr_b32 s{sT0}, s{sIDX}, 2")
    a(f"s_add_u32 s{sROT}, s{sT0}, s{sIDX}")
    a(f"s_and_b32 s{sROT}, s{sROT}, 3")
    a(f"s_add_u32 s{sM}, s{sRP}, s{sCP}")
    a(f"s_and_b32 s{sM}, s{sM}, 1")
    a(f"s_lshl_b32 s{sM}, s{sM}, 2")
    a(f"s_or_b32 s{sROT}, s{sROT}, s{sM}")
    a(f"s_lshl_b32 s{sM}, s{sJ}, 13")
    srd_init([SX, SWQ])
    def chunk_x(sc):
        a(f"s_mov_b32 m0, s{sM}")
        a(f"s_lshl_b32 s{sQ2}, s{sc}, 7")
        a(f"s_add_u32 s{sQ2}, s{sQ2}, s{sXB}")
        for i in range(4):
            a(f"buffer_load_dwordx4 v{VX+i}, {srd(SX)}, s{sQ2} offen offset:{1024*i} lds")
        a(f"s_add_u32 m0, s{sM}, 4096")
        a(f"s_add_u32 s{sQ2}, s{sQ2}, 40960")
        for i in range(4):
            a(f"buffer_load_dwordx4 v{VX+i}, {srd(SX)}, s{sQ2} offen offset:{1024*i} lds")
    def chunk_w(sc):
        a(f"s_add_u32 m0, s{sM}, 16384")
        a(f"s_mul_i32 s{sQ3}, s{sc}, {64*3840}")
        a(f"s_add_u32 s{sQ3}, s{sQ3}, s{sWB}")
        for hf in range(2):
            if hf:
                a(f"s_add_u32 m0, s{sM}, {16384+4096}")
                a(f"s_add_u32 s{sQ3}, s{sQ3}, {16*3840}")
            for i in (0, 1, 4, 2, 3):
                if i == 2: a(f"s_add_u32 m0, s{sM}, {16384+4096*hf}")
                if i == 4: a(f"s_add_u32 m0, s{sMW}, {1024*hf}")
                a(f"buffer_load_dwordx4 v{VW+i}, {srd(SWQ)}, s{sQ3} offen offset:{1024*(i&3)} lds")
    a("s_waitcnt lgkmcnt(0)")
    stamp(11)
    chunk_x(sROT)
    a(f"s_lshl_b32 s{sT1}, s{sCP}, 2")
    a(f"s_add_u32 s{sT1}, s{sT1}, s{sT0}")
    a(f"s_add_u32 s{sT1}, s{sT1}, 8")
    a(f"s_lshl_b32 s{sT0}, s{sT0}, 1")
    a(f"s_lshl_b32 s{sT4}, s{sCP}, 2")
    a(f"s_add_u32 s{sT0}, s{sT0}, s{sT4}")
    a(f"s_sub_u32 s{sT0}, s{sT0}, 8")
    a(f"s_cmp_ge_u32 s{sIDX}, 16")
    a(f"s_cselect_b32 s{sWB}, s{sT0}, s{sT1}")
    a(f"s_cselect_b32 s{sT4}, 10, 5")
    a(f"s_cselect_b32 s{sT5}, 4, 0x50")
    a(f"s_cselect_b32 s{sT6}, 1, 3")
    a(f"s_cselect_b32 s{sT7}, 2, 1")
    a(f"s_cselect_b32 s{sT0}, 1, 0x50")
    a(f"s_cselect_b32 s{sT1}, 8, 2")
    a(f"s_mulk_i32 s{sWB}, 160")
    a(f"s_mul_i32 s{sT2}, s{sJ}, {32*3840}")
    a(f"s_add_u32 s{sWB}, s{sWB}, s{sT2}")
    a(f"s_lshl_b32 s{sMW}, s{sJ}, 11")
    a(f"s_add_u32 s{sMW}, s{sMW}, 32768")
    a(f"v_lshrrev_b32 v14, 4, v{vL}")
    a(f"v_lshrrev_b32 v15, 1, v{vL}")
    a("v_xor_b32 v15, v15, v14")
    a(f"v_and_b32 v16, 1, v{vL}")
    a("v_mul_u32_u24 v14, 240, v14")
    a(f"v_mad_u32_u24 v14, v16, s{sT7}, v14")
    a("v_and_b32 v17, 1, v15")
    a(f"v_mad_u32_u24 v14, v17, s{sT6}, v14")
    a("v_bfe_u32 v17, v15, 1, 1")
    a(f"v_mad_u32_u24 v14, v17, s{sT5}, v14")
    a("v_bfe_u32 v17, v15, 2, 1")
    a(f"v_mad_u32_u24 v18, v17, s{sT4}, v14")
    a(f"v_lshlrev_b32 v{VW}, 4, v18")
    a(f"v_add_u32 v{VW+1}, {15360-1024}, v{VW}")
    a("v_xor_b32 v17, 1, v17")
    a(f"v_mad_u32_u24 v18, v17, s{sT4}, v14")
    a(f"v_lshlrev_b32 v18, 4, v18")
    a(f"v_add_u32 v{VW+2}, {30720-2048}, v18")
    a(f"v_add_u32 v{VW+3}, {46080-3072}, v18")
    a(f"v_lshrrev_b32 v14, 2, v{vL}")
    a("v_mul_u32_u24 v14, 240, v14")
    a(f"v_mad_u32_u24 v14, v16, s{sT0}, v14")
    a(f"v_lshrrev_b32 v17, 4, v{vL}")
    a(f"v_xor_b32 v17, v17, v{vL}")
    a("v_bfe_u32 v17, v17, 1, 1")
    a(f"v_mad_u32_u24 v14, v17, s{sT4}, v14")
    a(f"v_add_lshl_u32 v{VW+4}, v14, s{sT1}, 4")
    chunk_w(sROT)
    stamp(12)
    def issue(step):
        d = SLOT if step % 3 else (-2 * SLOT & 0xffffffff)
        a(f"s_add_u32 s{sM}, s{sM}, {d}")
        a(f"s_add_u32 s{sMW}, s{sMW}, {d}")
        if step == 8: a(f"s_and_b32 s{sROT}, s{sROT}, 1")
        a(f"s_xor_b32 s{sSTEP}, s{sROT}, {step}")
        if "nodma" in EXP and step >= 2: return
        chunk_x(sSTEP); chunk_w(sSTEP)
    bn = [1]
    def bar(n, nxt=None):
        a(f"s_waitcnt vmcnt({n}) lgkmcnt(0)")
        if "bst" in EXP and "pre" in EXP: stamp(bn[0], True)
        a("s_barrier")
        if "bst" in EXP and "pre" not in EXP: stamp(bn[0], True)
        bn[0] += 1
        if nxt is not None: issue(nxt)
    def g_setup():
        srd_init([SX, SH, SWS, SDBG, SOUT])
        a(f"s_mul_i32 s{sT7}, s{sXCD}, 24")
        a(f"s_add_u32 s{sT7}, s{sT7}, s{sIDX}")
        a(f"s_lshr_b32 s{sQUAD}, s{sT7}, 1")
        a(f"s_add_u32 s{sQUAD}, s{sQUAD}, 64")
        a(f"s_and_b32 s{sT1}, s{sIDX}, 1")
        a(f"s_lshl_b32 s{sT1}, s{sT1}, 1")
        a("s_waitcnt lgkmcnt(0)")
        conv_setup(sJ, sT1)
        s3_setup()
        wo_prep(vL16)
    g_setup()
    issue(1)
    bar(18)
    stamp(1)
    issue(2)
    for c in range(1, 8): bar(18, c + 2)
    a(f"s_mov_b32 s{sEPS}, 0x358637bd")
    wl = wo_list(vL16)
    conv_dfrag()
    bar(18)
    x_loads()
    for x in wl[:6]: a(x)
    a("s_waitcnt vmcnt(8)")
    a("s_barrier")
    stamp(2)
    for x in wl[6:12]: a(x)
    tag_lds(48)
    a("s_branch Lbu")

    a.label("Lworker")
    a(f"s_mul_i32 s{sT7}, s{sXCD}, 24")
    a(f"s_add_u32 s{sT7}, s{sT7}, s{sIDX}")
    a(f"s_lshl_b32 s{sT7}, s{sT7}, 1")
    a(f"s_add_u32 s{sT7}, s{sT7}, s{sW}")
    a(f"s_add_u32 s{sT7}, s{sT7}, 250")
    s0_task(sT7)
    s0_loads()
    stamp(11)
    g_setup()
    a(f"s_mul_i32 s{sT2}, s{sJ}, 4608")
    a(f"s_add_u32 s{sT2}, s{sT2}, {L_UB}")
    fc_addr(46)
    f0_addr(44)
    f0_off(sCG)
    conv_dfrag()
    s0_addr(sT2)
    a(f"s_mov_b32 s{sEPS}, 0x358637bd")
    a("s_setprio 3")
    a("s_barrier")
    stamp(1)
    a("s_waitcnt vmcnt(0)")
    cnt_load(SDBG, vZ, 47)
    s0_compute(lambda p: a("s_barrier") if p == 1 else None, False)
    a("s_setprio 0")
    stamp(12)
    a("s_barrier")
    arr_prep(50, 51)
    a("s_waitcnt vmcnt(4)")
    tag_get(vZ, 47, "landed")
    a(f"v_mov_b32 v52, {L_TAG}")
    a(f"v_mov_b32 v53, s{sTAG}")
    a("ds_write_b32 v52, v53")
    a("s_barrier")
    a("s_waitcnt vmcnt(0)")
    arr_issue(50, 51, f"s{sCG}")
    a(f"s_sub_u32 s{sT0}, s{sJ}, 2")
    zero_pads(sT0)
    zero_pads(sJ)
    a("s_waitcnt lgkmcnt(0)")
    a("s_barrier")
    arr_finish(50, 51, f"s{sCG}", 64)
    a("s_barrier")
    a("s_barrier")
    cnt_load(SWS, 46, 47)
    cnt_load(SWS, 44, 45)
    a("s_barrier")
    a(f"s_sub_u32 s{sT1}, s{sCH}, s{sLC}")
    a(f"s_add_u32 s{sT1}, s{sT1}, s{sT0}")
    a(f"s_lshl_b32 s{sT1}, s{sT1}, 12")
    a(f"s_mul_i32 s{sT2}, s{sT0}, {HSTR}")
    poll(46, 47, "issued")
    a(f"v_cmp_ne_u32 vcc, s{sTAG}, v45")
    a("s_cbranch_vccz Lwe1")
    cnt_load(SWS, 44, 45)
    a.label("Lwe1")
    a("s_barrier")
    def h4():
        a(f"s_add_u32 m0, s{sT2}, {L_HB+128}")
        for i in range(4): a(f"buffer_load_dwordx4 v{vL16}, {srd(SH)}, s{sT1} offen offset:{1024*i} lds")
    def u8():
        a(f"s_lshl_b32 s{sT4}, s{sT0}, 13")
        a(f"s_lshl_b32 s{sT5}, s{sQUAD}, 14")
        a(f"s_add_u32 s{sT5}, s{sT5}, s{sT4}")
        for hf in range(2):
            a(f"s_add_u32 m0, s{sT4}, {L_UD+4096*hf}")
            for i in range(4): a(f"buffer_load_dwordx4 v{vL16}, {srd(SWS)}, s{sT5} offen offset:{1024*i} sc1 lds")
            if hf == 0: a(f"s_add_u32 s{sT5}, s{sT5}, 4096")
    a("s_waitcnt vmcnt(0)")
    a(f"v_cmp_ne_u32 vcc, s{sTAG}, v45")
    h4()
    a("s_cbranch_vccnz Lwlate")
    u8()
    a("s_barrier")
    a("s_branch Lw2")
    a.label("Lwlate")
    a("s_barrier")
    poll(44, 45)
    u8()
    a.label("Lw2")
    stamp(2)
    x_loads()
    for x in wl[:12]: a(x)
    a(f"v_mov_b32 v48, {L_CNT+8}")
    a("s_waitcnt vmcnt(14)")
    lds_arrive(48, 49)
    a.label("Lbu")
    a(f"v_mov_b32 v48, {L_CNT+8}")
    lds_wait(48, 49, 2)
    stamp(3)
    a("s_branch Lconv")

def ctype():
    a.label("Lctype")
    common_scalars()
    a(f"s_mov_b32 s{sQUAD}, s{sCI}")
    a(f"s_cmp_ge_u32 s{sW}, 4")
    a("s_cbranch_scc1 Lcaux")
    a(f"s_lshl_b32 s{sT7}, s{sCI}, 2")
    a(f"s_add_u32 s{sT7}, s{sT7}, s{sW}")
    s0_task(sT7)
    s0_loads()
    srd_init([SX, SH, SWS, SDBG, SOUT])
    zero_pads(sW)
    a(f"s_mov_b32 s{sT1}, 0")
    conv_setup(sW, sT1)
    s3_setup()
    wo_prep(vL16)
    conv_dfrag()
    a(f"s_mul_i32 s{sT2}, s{sW}, 4608")
    a(f"s_add_u32 s{sT2}, s{sT2}, {L_S0C}")
    s0_addr(sT2)
    a("s_waitcnt vmcnt(0)")
    s0_compute()
    stamp(1)
    f0_off(sCG)
    arr_prep(50, 51)
    tag_get(vZ, 47, "none")
    arr_issue(50, 51, f"s{sCG}")
    arr_finish(50, 51, f"s{sCG}", 64)
    stamp(2)
    a("s_branch Lcjoin")

    a.label("Lcaux")
    srd_init([SWO, SWS, SX, SWQ, SGW, SH, SDBG, SOUT])
    a(f"s_sub_u32 s{sUD}, s{sW}, 4")
    a(f"s_mul_i32 s{sVAR}, s{sCI}, 3")
    a(f"s_add_u32 s{sVAR}, s{sVAR}, s{sUD}")
    a(f"s_cmp_ge_u32 s{sUD}, 3")
    a(f"s_cselect_b32 s{sVAR}, 1000, s{sVAR}")
    a(f"s_cmp_ge_u32 s{sVAR}, 160")
    a("s_cbranch_scc1 Lcnorp2")
    sKQ, sF, sCGR = sCHL, sCH, sJ
    a(f"s_lshr_b32 s{sT0}, s{sVAR}, 2")
    a(f"s_and_b32 s{sCGR}, s{sVAR}, 3")
    a(f"s_mul_i32 s{sKQ}, s{sT0}, 52")
    a(f"s_lshr_b32 s{sKQ}, s{sKQ}, 8")
    a(f"s_mul_i32 s{sT1}, s{sKQ}, 5")
    a(f"s_sub_u32 s{sF}, s{sT0}, s{sT1}")
    a(f"s_mul_i32 s{sT0}, s{sF}, 20")
    a(f"s_cmp_eq_u32 s{sF}, 4")
    a(f"s_cselect_b32 s{sT0}, 16, s{sT0}")
    a(f"s_cselect_b32 s{sT2}, 16, 0")
    a(f"s_mul_i32 s{sT1}, s{sKQ}, 80")
    a(f"s_add_u32 s{sT0}, s{sT0}, s{sT1}")
    a(f"s_mul_i32 s{sT0}, s{sT0}, 1280")
    a(f"s_mul_i32 s{sT1}, s{sCGR}, 320")
    a(f"s_add_u32 s{sT0}, s{sT0}, s{sT1}")
    a(f"s_mul_i32 s{sT3}, s{sUD}, 5120")
    a(f"s_add_u32 s{sT3}, s{sT3}, {L_RPC}")
    a("s_waitcnt lgkmcnt(0)")
    for i in range(5):
        a(f"v_add_u32 v14, {64*i}, v{vL}")
        div20(15, 16, 14)
        a("v_lshrrev_b32 v17, 2, v15")
        a(f"v_mad_u32_u24 v15, v17, s{sT2}, v15")
        a("v_mul_u32_u24 v15, 1280, v15")
        a("v_lshl_add_u32 v15, v16, 4, v15")
        a(f"s_add_u32 m0, s{sT3}, {1024*i}")
        a(f"buffer_load_dwordx4 v15, {srd(SWO)}, s{sT0} offen lds")
    a(f"v_lshrrev_b32 v14, 5, v{vL}")
    a(f"v_bfe_u32 v15, v{vL}, 2, 2")
    a("v_lshl_add_u32 v14, v14, 2, v15")
    a("v_mul_u32_u24 v14, 320, v14")
    a(f"v_bfe_u32 v15, v{vL}, 4, 1")
    a("v_lshl_add_u32 v14, v15, 5, v14")
    a(f"v_and_b32 v15, 3, v{vL}")
    a("v_lshl_add_u32 v14, v15, 3, v14")
    a(f"v_add_u32 v14, s{sT3}, v14")
    a(f"s_mul_i32 s{sT0}, s{sKQ}, 5")
    a(f"s_add_u32 s{sT0}, s{sT0}, s{sF}")
    a(f"s_cmp_ge_u32 s{sKQ}, 3")
    a(f"s_cselect_b32 s{sT1}, 10, 0")
    a(f"s_cmp_ge_u32 s{sKQ}, 6")
    a(f"s_cselect_b32 s{sT1}, -15, s{sT1}")
    a(f"s_cselect_b32 s{sT2}, 25, 50")
    a(f"s_add_u32 s{sT0}, s{sT0}, s{sT1}")
    a(f"s_mul_i32 s{sT1}, s{sCGR}, 200")
    a(f"s_add_u32 s{sT0}, s{sT0}, s{sT1}")
    a(f"s_lshl_b32 s{sT0}, s{sT0}, 10")
    a(f"s_add_u32 s{sT0}, s{sT0}, {WS_WOP}")
    a(f"s_lshl_b32 s{sT2}, s{sT2}, 10")
    a(f"s_lshr_b32 s{sT4}, s{sKQ}, 1")
    a(f"s_mul_i32 s{sT4}, s{sT4}, 25")
    a(f"s_and_b32 s{sT5}, s{sKQ}, 1")
    a(f"s_mul_i32 s{sT5}, s{sT5}, 5")
    a(f"s_add_u32 s{sT4}, s{sT4}, s{sT5}")
    a(f"s_add_u32 s{sT4}, s{sT4}, s{sF}")
    a(f"s_add_u32 s{sT4}, s{sT4}, s{sT1}")
    a(f"s_add_u32 s{sT4}, s{sT4}, 115")
    a(f"s_lshl_b32 s{sT4}, s{sT4}, 10")
    a(f"s_add_u32 s{sT4}, s{sT4}, {WS_WOP}")
    a(f"v_lshlrev_b32 v15, 4, v{vL}")
    a("s_waitcnt vmcnt(0)")
    for t in range(5):
        for jh in range(2): a(f"ds_read_b64_tr_b16 {vr(32+4*t+2*jh,2)}, v14 offset:{jh*2560+t*64}")
    a("s_waitcnt lgkmcnt(0)")
    for t in range(4):
        a(f"buffer_store_dwordx4 {vr(32+4*t,4)}, v15, {srd(SWS)}, s{sT0} offen sc1")
        a(f"s_add_u32 s{sT0}, s{sT0}, s{sT2}")
    a(f"buffer_store_dwordx4 {vr(48,4)}, v15, {srd(SWS)}, s{sT4} offen sc1")
    a.label("Lcnorp2")
    a(f"s_cmp_lg_u32 s{sUD}, 3")
    a("s_cbranch_scc1 Lcrz")
    for i in range(4): a(f"v_mov_b32 v{32+i}, 0")
    a(f"v_lshlrev_b32 v15, 4, v{vL}")
    a(f"s_lshl_b32 s{sT0}, s{sCI}, 10")
    a(f"s_add_u32 s{sT0}, s{sT0}, {WS_KV}")
    a("s_waitcnt lgkmcnt(0)")
    a(f"buffer_store_dwordx4 v[32:35], v15, {srd(SWS)}, s{sT0} offen sc1")
    a.label("Lcrz")


    a(f"s_lshl_b32 s{sT0}, s{sCI}, 2")
    a(f"s_add_u32 s{sT0}, s{sT0}, s{sUD}")
    a(f"v_lshrrev_b32 v1, 3, v{vL}")
    a(f"v_and_b32 v2, 7, v{vL}")
    a("v_lshlrev_b32 v3, 4, v2")
    a("v_mul_u32_u24 v4, 1280, v1")
    a("v_add_u32 v4, v4, v3")
    a(f"s_mul_i32 s{sT2}, s{sT0}, {8*1280}")
    arr_prep(146, 147)
    a("v_mov_b32 v6, 0")
    a(f"s_lshl_b32 s{sT3}, s{sXCD}, 8")
    a(f"s_add_u32 s{sT3}, s{sT3}, {WS_FC}")
    a("s_waitcnt lgkmcnt(0)")
    tag_get(6, 7, "none")
    arr_issue(146, 147, f"s{sT3}")
    arr_finish(146, 147, f"s{sT3}", 32)
    stamp(1)
    a(f"s_cmp_lg_u32 s{sW}, 7")
    a("s_cbranch_scc1 Lc5")
    a(f"v_lshlrev_b32 v5, 7, v{vL}")
    a(f"s_mul_i32 s{sT3}, s{sCI}, 7680")
    a(f"s_add_u32 s{sT3}, s{sT3}, {512*3840}")
    a(f"buffer_load_dword v131, v5, {srd(SWQ)}, s{sT3} offen")
    a.label("Lc5")
    for j in (8, 9, 0, 1, 2, 3, 4, 5, 6, 7): a(f"buffer_load_dwordx4 {vr(160+4*j,4)}, v4, {srd(SX)}, s{sT2} offen offset:{128*j}")
    for j in range(10): a(f"buffer_load_dwordx4 {vr(200+4*j,4)}, v3, {srd(SGW)}, 0 offen offset:{128*j}")
    a(f"s_lshl_b32 s{sTB}, s{sT0}, 5")
    a(f"s_add_u32 s{sTB}, s{sTB}, {WS_G}")
    a("v_lshlrev_b32 v130, 2, v1")
    a(f"s_mov_b32 s{sT1}, 0")
    conv_setup(sW, sT1)
    s3_setup()
    wo_prep(vL16)
    conv_dfrag()
    a("v_mov_b32 v128, 0")
    a("v_mov_b32 v129, 0")
    a("s_waitcnt vmcnt(0)")
    for j in range(20):
        a(f"v_dot2c_f32_bf16 v128, v{160+2*j}, v{200+2*j}")
        a(f"v_dot2c_f32_bf16 v129, v{161+2*j}, v{201+2*j}")
    a("v_add_f32 v128, v128, v129")
    for ctl in ("quad_perm:[1,0,3,2]", "quad_perm:[2,3,0,1]", "row_half_mirror"):
        a(f"v_add_f32_dpp v128, v128, v128 {ctl} row_mask:0xf bank_mask:0xf")
    a(f"v_mul_f32 v128, 0xbfb8aa3b, v128")
    a(f"v_exp_f32 v128, v128")
    a(f"v_add_f32 v128, 1.0, v128")
    a(f"v_rcp_f32 v128, v128")
    a("s_mov_b32 exec_lo, 0x01010101")
    a("s_mov_b32 exec_hi, 0x01010101")
    a(f"buffer_store_dword v128, v130, {srd(SWS)}, s{sTB} offen sc1")
    a("s_mov_b64 exec, -1")
    a("s_waitcnt vmcnt(0)")
    a(f"s_lshl_b32 s{sT0}, s{sCI}, 8")
    a(f"s_lshl_b32 s{sT1}, s{sUD}, 2")
    a(f"s_add_u32 s{sT0}, s{sT0}, s{sT1}")
    a(f"s_add_u32 s{sT0}, s{sT0}, {WS_FG}")
    flag_store(50, 51, f"s{sT0}")
    stamp(2)

    a.label("Lcjoin")
    a(f"s_lshl_b32 s{sT1}, s{sCI}, 2")
    h_dma(sW, sT1)
    x_loads()
    a(f"s_cmp_lg_u32 s{sW}, 0")
    a("s_cbranch_scc1 Lc8")
    fc_addr(46)
    f0_addr(44)
    poll(46, 47)
    poll(44, 45)
    a.label("Lc8")
    stamp(11)
    a("s_barrier")
    stamp(12)
    u_dma(sW, 2)
    for x in wo_list(vL16)[:12]: a(x)
    a("s_waitcnt vmcnt(12) lgkmcnt(0)")
    a("s_barrier")
    stamp(3)

def conv_body(tiles):
    seq = []
    for b in range(4):
        if tiles[0] == 0:
            for aa in range(8):
                for ti in (3, 2):
                    d = tiles[ti] - aa
                    if d >= 0:
                        seq.append((ti, ("H", 4 * aa + b, 0), ("U", 4 * d - b)))
                        if b == 0 and aa == 0: seq.append((ti, ("D",), ("U", 4 * d)))
                if aa == 5:
                    seq.append((1, ("H", b, 1), ("U", 4 - b)))
                    if b == 0: seq.append((1, ("D",), ("U", 4)))
                if aa == 6:
                    seq.append((0, ("H", b, 1), ("U", -b)))
                    if b == 0: seq.append((0, ("D",), ("U", 0)))
                    seq.append((1, ("H", 4 + b, 1), ("U", -b)))
        else:
            for aa in range(6):
                for ti in (3, 2, 1, 0):
                    d = tiles[ti] - aa
                    if d >= 0:
                        seq.append((ti, ("H", 4 * aa + b, 0), ("U", 4 * d - b)))
                        if b == 0 and aa == 0: seq.append((ti, ("D",), ("U", 4 * d)))
    assert len(seq) == 76
    last = {}; order = []
    for i, (ti, h, u) in enumerate(seq):
        for k in (u, h):
            if k[0] == "D": continue
            if k not in last: order.append(k)
            last[k] = i
    free = list(range(NPOOL))
    where = {}; done_at = {}
    nds = [0]; li = [0]
    def issue(maxn):
        n = 0
        while li[0] < len(order) and free and n < maxn:
            k = order[li[0]]; li[0] += 1
            bfr = free.pop(0); where[k] = bfr
            r = CPOOL + 4 * bfr
            if k[0] == "U":
                a(f"ds_read_b128 {vr(r,4)}, v{vUo if k[1]&1 else vUe} offset:{(k[1]+3)*512}")
                nds[0] += 1; n += 1
            else:
                a(f"ds_read_b64_tr_b16 {vr(r,2)}, v{vH} offset:{128*k[1]+32}")
                a(f"ds_read_b64_tr_b16 {vr(r+2,2)}, v{vH} offset:{128*k[1]}")
                nds[0] += 2; n += 2
            done_at[k] = nds[0]
    issue(10)
    started = set(); known = 0
    wl = wo_list(vL16); wi = 12
    for i, (ti, h, u) in enumerate(seq):
        needn = max(done_at[k] for k in (u, h) if k[0] != "D")
        if needn > known:
            cnt = min(nds[0] - needn, 15)
            a(f"s_waitcnt lgkmcnt({cnt})")
            known = nds[0] - cnt
        d = vr(CACC + 16 * ti, 16)
        hb = CD if h[0] == "D" else CPOOL + 4 * where[h]
        a(f"v_mfma_f32_32x32x16_bf16 {d}, {vr(CPOOL+4*where[u],4)}, {vr(hb,4)}, {d if ti in started else '0'}")
        started.add(ti)
        for k in (u, h):
            if k[0] != "D" and last[k] == i: free.append(where[k])
        issue(2)
        if i % 3 == 1 and wi < 25: a(wl[wi]); wi += 1
    assert wi == 25

def conv_epi(var):
    runs = [[*range(0, 8)], [*range(8, 16)]] if var == 0 else [[*range(16)]]
    out_g = 7 if var == 0 else 15
    in_g = 8 if var == 0 else 0
    SPL = 96
    a("s_nop 7")
    a("s_nop 3")
    for step in (2, 1, 0):
        a("s_mov_b32 exec_lo, 0")
        a("s_mov_b32 exec_hi, 0x80000000")
        a(f"v_mov_b32 v{SPL+step}, v{CACC+4*out_g+step+1}")
        for run in runs:
            for g in reversed(run):
                src = f"v{CACC+4*(g-1)+step+1}" if g != run[0] else "0"
                a(f"v_mov_b32 v{CACC+4*g+step+1}, {src}")
        if step == 0:
            a(f"ds_write_b96 v{vCS}, {vr(SPL,3)}")
            a("v_mov_b32 v100, 1")
            a(f"ds_add_u32 v{vCN}, v100")
        a("s_mov_b64 exec, -1")
        for g in reversed(range(16)):
            r = CACC + 4 * g + step
            a(f"v_add_f32_dpp v{r}, v{r+1}, v{r} wave_ror:1 row_mask:0xf bank_mask:0xf")
    a(f"v_xor_b32 v101, 16, v{vCS}")
    a(f"v_lshl_add_u32 v101, v{vL}, 2, v101")
    PK = 104
    other = [k for k in range(8) if k != in_g // 2]
    for k in other: a(f"v_cvt_pk_bf16_f32 v{PK+k}, v{CACC+8*k}, v{CACC+8*k+4}")
    oh = 1 - in_g // 8
    a(f"ds_write_b128 v{vCW}, {vr(PK+4*oh,4)} offset:{1024*oh}")
    lds_wait(vCN, 100, 2)
    a("s_mov_b64 exec, 7")
    a("ds_read_b32 v100, v101")
    a("s_waitcnt lgkmcnt(0)")
    a(f"v_add_f32 v{CACC+4*in_g}, v{CACC+4*in_g}, v100")
    a("s_mov_b64 exec, -1")
    k = in_g // 2
    a(f"v_cvt_pk_bf16_f32 v{PK+k}, v{CACC+8*k}, v{CACC+8*k+4}")
    a(f"ds_write_b128 v{vCW}, {vr(PK+4*(1-oh),4)} offset:{1024*(1-oh)}")
    T0, T1 = (0, 6) if var == 0 else (2, 4)
    a(f"s_lshl_b32 s{sT5}, s{sCH}, 6")
    a(f"s_add_u32 s{sT4}, s{sT5}, {WS_Y + T0*8*40960}")
    a(f"s_add_u32 s{sT5}, s{sT5}, {WS_Y + T1*8*40960}")
    a(f"s_lshr_b32 s{sT6}, s{sCH}, 5")
    a(f"s_lshl_b32 s{sT6}, s{sT6}, 8")
    a(f"s_add_u32 s{sT6}, s{sT6}, {WS_FY + var*20*256}")

def conv():
    a.label("Lconv")
    a(f"s_cmp_eq_u32 s{sVAR}, 1")
    a("s_cbranch_scc1 Lconvy")
    conv_body([0, 1, 6, 7])
    stamp(4)
    conv_epi(0)
    a("s_branch Lconve")
    a.label("Lconvy")
    conv_body([2, 3, 4, 5])
    stamp(4)
    conv_epi(1)
    a.label("Lconve")
    for n in range(2):
        a(f"ds_read_b64_tr_b16 {vr(112+4*n,2)}, v{vCT} offset:{1024*n}")
        a(f"ds_read_b64_tr_b16 {vr(114+4*n,2)}, v{vCT} offset:{1024*n+64}")
    arr_prep(100, 101)
    for n in range(2):
        a(f"s_waitcnt lgkmcnt({2-2*n})")
        a(f"buffer_store_dwordx4 {vr(112+4*n,4)}, v{vCY}, {srd(SWS)}, s{sT5 if n else sT4} offen sc1")
    stamp(13)
    a("s_waitcnt vmcnt(0)")
    arr_issue(100, 101, f"s{sT6}")
    arr_finish(100, 101, f"s{sT6}", 32)
    stamp(5)
    a("s_branch Ls3b")

def s3():
    a.label("Ls3")
    x_loads()
    a.label("Ls3b")
    a.c("S3")
    PQ, RAW, KF = 32, 52, 116
    plan = []
    for i in range(4):
        for st in range(2):
            for jh in range(2):
                du0 = 4 * (i + st) + 2 * jh - 5 * i
                plan.append((i, st, jh, du0, 0 <= du0 <= 4, 0 <= du0 + 1 <= 4))
    a(f"buffer_load_dword v{vFT}, v{vFQ}, {srd(SWS)}, 0 offen sc1")
    for (i, st, jh, du0, v0ok, v1ok) in plan:
        if v0ok != v1ok:
            for j in range(4): a(f"v_mov_b32 v{RAW+16*i+8*st+4*jh+j}, 0")
    a(f"s_add_u32 s{sT1}, s{sPQO}, 4096")
    a(f"s_add_u32 s{sT3}, s{sKVO}, {2*KVH}")
    poll(vFQ, vFT, "issued")
    a(f"buffer_load_dword v{vFT}, v{vFK}, {srd(SWS)}, 0 offen sc1")
    for f in range(4): a(f"buffer_load_dwordx4 {vr(PQ+4*f,4)}, v{vL16}, {srd(SWS)}, s{sPQO} offen offset:{1024*f} sc1")
    a(f"buffer_load_dwordx4 {vr(PQ+16,4)}, v{vL16}, {srd(SWS)}, s{sT1} offen sc1")
    a(f"buffer_load_dword v{vG}, v{vGO}, {srd(SWS)}, 0 offen sc1")
    a("s_waitcnt vmcnt(6)")
    poll(vFK, vFT, "landed")
    stamp(6)
    nload = [0] * 4
    for (i, st, jh, du0, v0ok, v1ok) in plan:
        if not (v0ok or v1ok): continue
        off = (i & 1) * KVH + du0 * 336
        part = v0ok != v1ok
        if part: a(f"s_mov_b32 exec_{'hi' if v0ok else 'lo'}, 0")
        a(f"buffer_load_dwordx4 {vr(RAW+16*i+8*st+4*jh,4)}, v{vKO if i&1 else vKE}, {srd(SWS)}, s{sT3 if i>>1 else sKVO} offen offset:{off} sc1")
        if part: a("s_mov_b64 exec, -1")
        nload[i] += 1
    a(f"buffer_load_dword v{vFT}, v{vFY}, {srd(SWS)}, 0 offen sc1")
    rem = sum(nload) + 1
    for i in range(4):
        rem -= nload[i]
        a(f"s_waitcnt vmcnt({rem})")
        kf = KF + 8 * (i & 1)
        for (i2, st, jh, du0, v0ok, v1ok) in plan:
            if i2 != i: continue
            for j in range(2):
                d = kf + 4 * st + 2 * jh + j; s = RAW + 16 * i + 8 * st + 4 * jh + 2 * j
                if v0ok or v1ok: a(f"v_cvt_pk_bf16_f32 v{d}, v{s}, v{s+1}")
                else: a(f"v_mov_b32 v{d}, 0")
        d = vr(RAW + 16 * i, 16)
        a(f"v_mfma_f32_32x32x16_bf16 {d}, {vr(kf,4)}, {vr(PQ+4*i,4)}, 0")
        a(f"v_mfma_f32_32x32x16_bf16 {d}, {vr(kf+4,4)}, {vr(PQ+4*i+4,4)}, {d}")
    OF = 132
    for i in range(4):
        D = RAW + 16 * i
        a(f"v_add_f32 v{D+12}, s{sEPS}, v{D+12}")
        a(f"v_rcp_f32 v{D+12}, v{D+12}")
        for j in range(8): a(f"v_mul_f32 v{D+j}, v{D+j}, v{D+12}")
        for j in range(4): a(f"v_cvt_pk_bf16_f32 v{OF+4*i+j}, v{D+2*j}, v{D+2*j+1}")
        a(f"ds_write_b128 v{vOW}, {vr(OF+4*i,4)} offset:{1024*i}")
        if i & 1 == 0:
            for j in range(4): a(f"v_mul_f32 v{D+8+j}, v{D+8+j}, v{D+12}")
        else:
            for j in range(4): a(f"v_fmac_f32 v{D-8+j}, v{D+8+j}, v{D+12}")
            for j in range(2): a(f"v_cvt_pk_bf16_f32 v{OF+16+2*(i>>1)+j}, v{D-8+2*j}, v{D-8+2*j+1}")
    a(f"ds_write_b128 v{vOW}, {vr(OF+16,4)} offset:4096")
    a(f"s_mov_b32 s{sUD}, 1")
    a(f"s_cmp_ge_u32 s{sW}, 5")
    a("s_cbranch_scc1 Ls3y1")
    a("s_waitcnt vmcnt(0)")
    a(f"v_cmp_ne_u32 vcc, s{sTAG}, v{vFT}")
    a(f"s_mov_b32 m0, s{sYM}")
    a("s_cbranch_vccnz Ls3y0")
    a(f"buffer_load_dwordx4 v{vL16}, {srd(SWS)}, s{sYO} offen sc1 lds")
    a(f"buffer_load_dwordx4 v{vL16}, {srd(SWS)}, s{sYO} offen offset:1024 sc1 lds")
    a("s_branch Ls3y1")
    a.label("Ls3y0")
    a(f"s_mov_b32 s{sUD}, 0")
    a(f"buffer_load_dword v{vFT}, v{vFY}, {srd(SWS)}, 0 offen sc1")
    a.label("Ls3y1")
    if "nog3prio" not in EXP:
        a(f"s_cmp_ge_u32 s{sW}, 4")
        a("s_cbranch_scc1 Ls3y2")
        a("s_setprio 1")
        a.label("Ls3y2")
    a("s_waitcnt lgkmcnt(0)")
    a("s_barrier")
    stamp(7)
    NB = 8; POOL = 32; AP, AR = 64, 80
    def ord_(i): return (vPR, 1024 * i) if i < 15 else (vRR, 1024 * (i - 15))
    for i in range(NB):
        v, o = ord_(i); a(f"ds_read_b128 {vr(POOL+4*i,4)}, v{v} offset:{o}")
    XF = 96
    pre = [f"v_sub_f32 v{vG+2}, 1.0, v{vG}", f"s_mov_b32 s{sT0}, 0xffff0000"]
    for n, xd in enumerate((vXD, vXD2)):
        for j in range(4):
            pre.append(f"v_lshlrev_b32 v{XF+8*n+2*j}, 16, v{xd+j}")
            pre.append(f"v_and_b32 v{XF+8*n+2*j+1}, s{sT0}, v{xd+j}")
        for j in range(8): pre.append(f"v_mul_f32 v{XF+8*n+j}, v{XF+8*n+j}, v{vG+2}")
    issued = NB
    log = list(range(NB))
    for i in range(25):
        pos = log.index(i)
        a(f"s_waitcnt lgkmcnt({min(len(log)-1-pos,15)})")
        d = vr(AP if i < 15 else AR, 16)
        a(f"v_mfma_f32_32x32x16_bf16 {d}, {vr(VWO+4*i,4)}, {vr(POOL+4*(i%NB),4)}, {'0' if i in (0,15) else d}")
        if issued < 25:
            v, o = ord_(issued); a(f"ds_read_b128 {vr(POOL+4*(issued%NB),4)}, v{v} offset:{o}"); log.append(issued); issued += 1
        if i < 12:
            for x in pre[3 * i:3 * i + 3]: a(x)
        if i == 14:
            a(f"s_cmp_eq_u32 s{sUD}, 1")
            a("s_cbranch_scc1 Ls3ny")
            poll(vFY, vFT, "issued")
            a(f"buffer_load_dwordx4 v{vL16}, {srd(SWS)}, s{sYO} offen sc1 lds")
            a(f"buffer_load_dwordx4 v{vL16}, {srd(SWS)}, s{sYO} offen offset:1024 sc1 lds")
            a.label("Ls3ny")
        if 19 <= i < 23:
            q = i - 19
            a(f"ds_write_b128 v{vPW+q}, {vr(AP+4*q,4)}"); log.append(-1)
            a(f"v_add_u32 v{vPW+q}, s{sRD}, v{vPW+q}")
    for q in range(4): a(f"ds_write_b128 v{vPW+q}, {vr(AR+4*q,4)}")
    a("s_waitcnt vmcnt(0) lgkmcnt(0)")
    a("s_barrier")
    stamp(8)
    def f_reads(n, R):
        np_ = 3 + n
        for p in range(np_):
            a(f"ds_read_b128 {vr(R+8*p,4)}, v{vPA} offset:{49152*n+4096*p}")
            a(f"ds_read_b128 {vr(R+8*p+4,4)}, v{vPB} offset:{49152*n+4096*p}")
        a(f"ds_read_b64_tr_b16 {vr(R+32,2)}, v{vYT} offset:{8192*n}")
        a(f"ds_read_b64_tr_b16 {vr(R+34,2)}, v{vYT} offset:{8192*n+256}")
    def f_math(n, R, after):
        np_ = 3 + n
        X = XF + 8 * n; YF = R + 36
        a(f"s_waitcnt lgkmcnt({min(after+2*np_+2-4,15)})")
        for j in range(4): a(f"v_pk_add_f32 {vr(R+2*j,2)}, {vr(R+2*j,2)}, {vr(R+8+2*j,2)}")
        a(f"s_waitcnt lgkmcnt({after+2})")
        for p in range(2, np_):
            for j in range(4): a(f"v_pk_add_f32 {vr(R+2*j,2)}, {vr(R+2*j,2)}, {vr(R+8*p+2*j,2)}")
        a(f"s_waitcnt lgkmcnt({after})")
        for j in range(4):
            a(f"v_lshlrev_b32 v{YF+2*j}, 16, v{R+32+j}")
            a(f"v_and_b32 v{YF+2*j+1}, s{sT0}, v{R+32+j}")
        for j in range(4): a(f"v_pk_mul_f32 {vr(X+2*j,2)}, {vr(X+2*j,2)}, {vr(YF+2*j,2)}")
        for j in range(4): a(f"v_pk_fma_f32 {vr(R+2*j,2)}, {vr(R+2*j,2)}, {vr(vG,2)}, {vr(X+2*j,2)} op_sel_hi:[1,0,1]")
        for j in range(4): a(f"v_cvt_pk_bf16_f32 v{R+32+j}, v{R+2*j}, v{R+2*j+1}")
        a(f"buffer_store_dwordx4 {vr(R+32,4)}, v{vOUT}, {srd(SOUT)}, s{sXOFF} offen offset:{256*n}")
    f_reads(0, 32)
    a(f"s_cmp_lt_u32 s{sW}, 2")
    a("s_cbranch_scc1 Lfin2")
    f_math(0, 32, 0)
    a("s_branch Lfin")
    a.label("Lfin2")
    f_reads(1, 112)
    f_math(0, 32, 10)
    f_math(1, 112, 0)
    a.label("Lfin")
    if DIAG:
        a("s_waitcnt vmcnt(0)")
        stamp(9)
        a(f"s_memtime vcc")
        a("s_waitcnt lgkmcnt(0)")
        a(f"s_mov_b32 s{STS+15}, vcc_lo")
        a("v_mov_b32 v2, 0")
        for i in range(16): a(f"v_writelane_b32 v2, s{STS+i}, {i}")
        a(f"v_lshlrev_b32 v3, 2, v{vL}")
        a(f"s_lshl_b32 s{sT0}, s{sBID}, 3")
        a(f"s_add_u32 s{sT0}, s{sT0}, s{sW}")
        a(f"s_lshl_b32 s{sT0}, s{sT0}, 6")
        a(f"s_add_u32 s{sT0}, s{sT0}, {WS_TS}")
        a("s_mov_b64 exec, 0xffff")
        a(f"buffer_store_dword v2, v3, {srd(SWS)}, s{sT0} offen")
    a.label("Lend")
    a("s_endpgm")

entry(); bwave(); awave(); kva(); qa(); ctype(); conv(); s3()

ref = open("cdna_kernels/%s.s.ref" % NAME).read()
head = [l for l in ref.split("\n") if l.startswith(";") and "@launch" not in l]
out = "\n".join(head) + "\n"
out += "; @launch grid=(256,1,1) block=(512,1,1) lds=%d\n" % LDS_BYTES
out += '.amdgcn_target "amdgcn-amd-amdhsa--gfx950"\n.text\n.globl %s_kernel\n.p2align 8\n.type %s_kernel,@function\n%s_kernel:\n' % (NAME, NAME, NAME)
out += a.text()
out += '''.section .rodata,"a"
.p2align 6
.amdhsa_kernel %s_kernel
  .amdhsa_next_free_vgpr 256
  .amdhsa_next_free_sgpr 102
  .amdhsa_accum_offset 256
  .amdhsa_group_segment_fixed_size 0
  .amdhsa_kernarg_size 104
  .amdhsa_user_sgpr_count 2
  .amdhsa_user_sgpr_kernarg_segment_ptr 1
  .amdhsa_system_sgpr_workgroup_id_x 1
.end_amdhsa_kernel
''' % NAME
dst = [x for x in sys.argv[1:] if not x.startswith("--")]
open(dst[0] if dst else "cdna_kernels/%s.s" % NAME, "w").write(out)
```

```python
import sys
from asmlib import Asm, vr, sr

NAME = "gated_mix__linear_attn_block__ssm_conv_h3__prompt"
DIAG = "--diag" in sys.argv
EXP = [x[6:] for x in sys.argv if x.startswith("--exp=")]

WS_U = 0
WS_PQ = 0x280000
WS_Y = 0x500000
WS_WOP = 0x780000
WS_KV = 0x850000
WS_C = 0x860000
CDELTA = 0x20000
WS_FK = WS_C
WS_FY = WS_C + 32 * 256
WS_F0 = WS_C + 72 * 256
WS_FC = WS_C + 88 * 256
WS_FG = WS_C + 128 * 256
WS_FQ = WS_C + 256 * 256
WS_G = 0x88C000
WS_TS = 0x890000
WS_SIZE = 0x900000
KVH = 1792

SLOT = 36864
L_OFR = 36864
L_KVS = 77824
L_YST = 92160
L_PART = 77824
L_UB = 110592
L_UD = L_UB + 2048
L_HB = 129024
HSTR = 4224
L_SP = 145920
L_CNT = 146048
L_TAG = 146112
L_YT = 146176
L_S0C = 0
L_RPC = 49152
LDS_BYTES = L_YT + 10240

SX, SWQ, SWO, SK, SV, SSK, SH, SGW, SOUT, SDBG, SWS = [4 + 4 * i for i in range(11)]
SD = 48
sW, sXCD, sIDX, sRP, sCP, sTAG, sCNT = range(50, 57)
sRB, sCG, sQUAD, sCHL, sLC, sVAR, sCH, sJ, sUD = range(57, 66)
sT0, sT1, sT2, sT3, sT4, sT5, sT6, sT7 = range(66, 74)
sLOG = 74
sCI = 76
sDV = 77
STS = 80
sXOFF, sPQO, sKVO, sTB, sYO, sYM = 96, 97, 98, 99, 100, 101
sCHB = 65
sRD = 3
sWOO = 2
sEPS = 79
sBID = 78
def srd(b): return sr(b, 4)

vL = 0
VWO = 156
vL16, vOW, vPR, vRR, vPW = 1, 2, 3, 4, 5
vKE, vKO, vFK, vFY, vZ, vOUT, vPA, vPB, vYT, vFT, vGO = 9, 10, 11, 12, 13, 14, 15, 16, 17, 18, 19
vXD, vG, vXD2 = 20, 24, 28
vFQ, vFE = 27, 25

a = Asm()
BST = [None]
def stamp(i, force=False):
    if "bst" in EXP and not force and i not in (0, 10): return
    if DIAG:
        a(f"{'s_memtime' if 'cyc' in EXP else 's_memrealtime'} vcc")
        a("s_waitcnt lgkmcnt(0)")
        a(f"s_mov_b32 s{STS+i}, vcc_lo")

def poll(vaddr, vdst, state="none", sleep=2):
    L = a.newlabel("Lpoll"); D = a.newlabel("Lpd")
    if state != "none":
        if state == "issued": a("s_waitcnt vmcnt(0)")
        a(f"v_cmp_ne_u32 vcc, s{sTAG}, v{vdst}")
        a(f"s_cbranch_vccz {D}")
    a(f"s_mov_b32 s{sCNT}, 0x20000")
    a.label(L)
    a(f"buffer_load_dword v{vdst}, v{vaddr}, {srd(SWS)}, 0 offen sc1")
    a("s_waitcnt vmcnt(0)")
    a(f"v_cmp_ne_u32 vcc, s{sTAG}, v{vdst}")
    a(f"s_cbranch_vccz {D}")
    if sleep: a(f"s_sleep {sleep}")
    a(f"s_sub_u32 s{sCNT}, s{sCNT}, 1")
    a(f"s_cbranch_scc0 {L}")
    a.label(D)

def cnt_load(S, vaddr, vdst):
    a(f"buffer_load_dword v{vdst}, v{vaddr}, {srd(S)}, 0 offen sc1")

def tag_get(vz, vdst, state="issued"):
    L = a.newlabel("Ltag"); D = a.newlabel("Ltd")
    if state != "none":
        if state == "issued": a("s_waitcnt vmcnt(0)")
        a(f"v_readfirstlane_b32 s{sTAG}, v{vdst}")
        a(f"s_cmp_lg_u32 s{sTAG}, 0")
        a(f"s_cbranch_scc1 {D}")
    a(f"s_mov_b32 s{sCNT}, 0x20000")
    a.label(L)
    a(f"buffer_load_dword v{vdst}, v{vz}, {srd(SDBG)}, 0 offen sc1")
    a("s_waitcnt vmcnt(0)")
    a(f"v_readfirstlane_b32 s{sTAG}, v{vdst}")
    a(f"s_cmp_lg_u32 s{sTAG}, 0")
    a(f"s_cbranch_scc1 {D}")
    a("s_sleep 2")
    a(f"s_sub_u32 s{sCNT}, s{sCNT}, 1")
    a(f"s_cbranch_scc0 {L}")
    a.label(D)

def tag_lds(vtmp):
    a(f"v_mov_b32 v{vtmp}, {L_TAG}")
    a(f"ds_read_b32 v{vtmp}, v{vtmp}")
    a("s_waitcnt lgkmcnt(0)")
    a(f"v_readfirstlane_b32 s{sTAG}, v{vtmp}")

def arr_prep(vt0, vt1):
    a(f"v_mov_b32 v{vt0}, {CDELTA}")
    a(f"v_mov_b32 v{vt1}, 1")
def arr_issue(vt0, vt1, soff):
    a("s_mov_b64 exec, 1")
    a(f"buffer_atomic_add v{vt1}, v{vt0}, {srd(SWS)}, {soff} offen sc0 sc1")
    a("s_mov_b64 exec, -1")
def arr_finish(vt0, vt1, soff, n, wait=0):
    D = a.newlabel("Lal")
    a(f"s_waitcnt vmcnt({wait})")
    a(f"v_readfirstlane_b32 s{sT7}, v{vt1}")
    a(f"s_cmp_lg_u32 s{sT7}, {n-1}")
    a(f"s_cbranch_scc1 {D}")
    flag_store(vt0, vt1, soff)
    a.label(D)
def flag_store(vt0, vt1, soff):
    a(f"v_mov_b32 v{vt0}, 0")
    a(f"v_mov_b32 v{vt1}, s{sTAG}")
    a("s_mov_b64 exec, 1")
    a(f"buffer_store_dword v{vt1}, v{vt0}, {srd(SWS)}, {soff} offen sc1")
    a("s_mov_b64 exec, -1")

def lds_arrive(vaddr, vtmp):
    a(f"v_mov_b32 v{vtmp}, 1")
    a("s_mov_b64 exec, 1")
    a(f"ds_add_u32 v{vaddr}, v{vtmp}")
    a("s_mov_b64 exec, -1")
def lds_wait(vaddr, vtmp, target):
    L = a.newlabel("Lls"); D = a.newlabel("Lld")
    a(f"s_mov_b32 s{sCNT}, 0x400000")
    a.label(L)
    a(f"ds_read_b32 v{vtmp}, v{vaddr}")
    a("s_waitcnt lgkmcnt(0)")
    a(f"v_readfirstlane_b32 s{sT7}, v{vtmp}")
    a(f"s_cmp_ge_u32 s{sT7}, {target}")
    a(f"s_cbranch_scc1 {D}")
    a(f"s_sub_u32 s{sCNT}, s{sCNT}, 1")
    a(f"s_cbranch_scc0 {L}")
    a.label(D)

def div20(vq, vr_, vp):
    a(f"v_mul_u32_u24 v{vq}, 3277, v{vp}")
    a(f"v_lshrrev_b32 v{vq}, 16, v{vq}")
    a(f"v_mul_u32_u24 v{vr_}, 20, v{vq}")
    a(f"v_sub_u32 v{vr_}, v{vp}, v{vr_}")
for p in range(1000): assert (p * 3277) >> 16 == p // 20

SIZES = {SX: 2621440, SWQ: 2457600, SWO: 819200, SK: 2621440, SV: 2621440, SSK: 5120, SH: 2621440, SGW: 1280, SOUT: 2621440, SDBG: 256, SWS: WS_SIZE}
def srd_init(lst):
    for s in lst:
        a(f"s_mov_b32 s{s+2}, {SIZES[s]}")
        a(f"s_mov_b32 s{s+3}, 0x20000")
def common_scalars():
    a(f"s_mov_b32 s{sLOG}, 0x3fb8aa3b")
    a(f"s_mov_b32 s{sLOG+1}, 0x3fb8aa3b")
    a(f"s_mov_b32 s{sEPS}, 0x358637bd")
    a(f"s_and_b32 s{sT0}, s{sIDX}, 7")
    a(f"s_lshl_b32 s{sCI}, s{sXCD}, 3")
    a(f"s_add_u32 s{sCI}, s{sCI}, s{sT0}")

def entry():
    a.label("Lentry")
    a(f"s_cmp_ge_u32 s2, 256")
    a("s_cbranch_scc1 Lend")
    if DIAG: a(f"s_memrealtime {sr(sT6,2)}")
    a(f"s_getpc_b64 {sr(sT0,2)}")
    a.label("Lpcref")
    a(f"s_and_b32 s{sT2}, s2, 0xf8")
    a(f"v_and_or_b32 v1, v0, 7, s{sT2}")
    a("v_lshlrev_b32 v1, 7, v1")
    a("v_min_u32 v1, Lend-Lpcref, v1")
    a(f"global_load_dword v255, v1, {sr(sT0,2)}")
    for s, off in ((SX, 0), (SWQ, 8), (SK, 32), (SV, 40), (SSK, 48), (SWS, 96), (SDBG, 88), (SH, 56), (SWO, 16), (SGW, 72), (SOUT, 80), (SD, 64)):
        a(f"s_load_dwordx2 {sr(s,2)}, s[0:1], {off}")
    a("v_lshrrev_b32 v1, 6, v0")
    a(f"v_and_b32 v{vL}, 63, v0")
    a(f"v_readfirstlane_b32 s{sW}, v1")
    a(f"s_and_b32 s{sXCD}, s2, 7")
    a(f"s_lshr_b32 s{sIDX}, s2, 3")
    a(f"s_and_b32 s{sRP}, s2, 3")
    a(f"s_bfe_u32 s{sCP}, s2, 0x10002")
    a(f"s_mov_b32 s{sBID}, s2")
    a(f"s_and_b32 s{sT0}, s{sIDX}, 3")
    a(f"s_lshl_b32 s{sRB}, s{sRP}, 2")
    a(f"s_add_u32 s{sRB}, s{sRB}, s{sT0}")
    if DIAG:
        for i in range(16): a(f"s_mov_b32 s{STS+i}, 0")
        stamp(0)
        a(f"s_mov_b32 s{STS+10}, s{sT6}")
        a(f"s_memtime vcc")
        a("s_waitcnt lgkmcnt(0)")
        a(f"s_mov_b32 s{STS+14}, vcc_lo")
    a(f"s_cmp_ge_u32 s{sIDX}, 24")
    a("s_cbranch_scc1 Lctype")
    a(f"s_cmp_lt_u32 s{sW}, 4")
    a("s_cbranch_scc1 Lawave")

def s3_setup(split=None):
    a.c("S3 setup")
    sR3, sC3 = sT2, sT3
    a(f"s_lshr_b32 s{sT0}, s{sIDX}, 1")
    a(f"s_lshl_b32 s{sR3}, s{sRP}, 4")
    a(f"s_add_u32 s{sR3}, s{sR3}, s{sT0}")
    a(f"s_and_b32 s{sT0}, s{sIDX}, 1")
    a(f"s_lshl_b32 s{sC3}, s{sCP}, 1")
    a(f"s_add_u32 s{sC3}, s{sC3}, s{sT0}")
    a(f"v_lshlrev_b32 v{vL16}, 4, v{vL}")
    a(f"v_mov_b32 v{vZ}, 0")
    a(f"v_lshrrev_b32 v24, 4, v{vL}")
    a(f"v_and_b32 v25, 3, v{vL}")
    a(f"v_bfe_u32 v26, v{vL}, 2, 2")
    a(f"s_and_b32 s{sT0}, s{sW}, 1")
    a(f"s_lshl_b32 s{sT1}, s{sT0}, 4")
    a("v_lshl_add_u32 v27, v24, 2, v25")
    a(f"v_add_u32 v27, s{sT1}, v27")
    a(f"v_mul_u32_u24 v{vOUT}, 1280, v27")
    a(f"v_lshl_add_u32 v{vOUT}, v26, 4, v{vOUT}")
    a(f"s_mul_i32 s{sXOFF}, s{sR3}, 40960")
    a(f"s_mul_i32 s{sT4}, s{sC3}, 320")
    a(f"s_add_u32 s{sYO}, s{sXOFF}, {WS_Y}")
    a(f"s_add_u32 s{sXOFF}, s{sXOFF}, s{sT4}")
    a(f"s_lshr_b32 s{sT4}, s{sW}, 1")
    a(f"s_lshl_b32 s{sT5}, s{sT4}, 6")
    a(f"s_add_u32 s{sXOFF}, s{sXOFF}, s{sT5}")
    a(f"s_lshl_b32 s{sT5}, s{sR3}, 7")
    a(f"s_add_u32 s{sT5}, s{sT5}, {WS_G}")
    a(f"v_lshlrev_b32 v{vGO}, 2, v27")
    a(f"v_add_u32 v{vGO}, s{sT5}, v{vGO}")
    a(f"v_bfe_u32 v{vPA}, v27, 1, 1")
    a(f"v_and_b32 v{vPB}, 1, v27")
    a(f"v_lshl_or_b32 v{vPA}, v{vPB}, 1, v{vPA}")
    a(f"v_and_or_b32 v{vPA}, v27, 4, v{vPA}")
    a(f"v_lshlrev_b32 v{vPB}, 1, v26")
    a(f"v_xor_b32 v{vPA}, v{vPA}, v{vPB}")
    a(f"v_lshlrev_b32 v{vPA}, 4, v{vPA}")
    a(f"v_lshl_add_u32 v{vPA}, v27, 7, v{vPA}")
    a(f"s_mul_i32 s{sT5}, s{sT4}, 12288")
    a(f"s_add_u32 s{sT5}, s{sT5}, {L_PART}")
    a(f"v_add_u32 v{vPA}, s{sT5}, v{vPA}")
    a(f"v_xor_b32 v{vPB}, 16, v{vPA}")
    a(f"v_lshl_add_u32 v{vYT}, v25, 3, v26")
    a(f"v_lshlrev_b32 v{vYT}, 6, v{vYT}")
    a(f"v_lshl_add_u32 v{vYT}, v24, 3, v{vYT}")
    a(f"s_lshl_b32 s{sT4}, s{sT4}, 11")
    a(f"s_lshl_b32 s{sT1}, s{sT1}, 1")
    a(f"s_add_u32 s{sT4}, s{sT4}, s{sT1}")
    a(f"s_add_u32 s{sT4}, s{sT4}, {L_YT}")
    a(f"v_add_u32 v{vYT}, s{sT4}, v{vYT}")
    if split: split(0)
    a(f"v_and_b32 v24, 31, v{vL}")
    a(f"v_lshrrev_b32 v25, 5, v{vL}")
    a(f"v_bfe_u32 v{vPW}, v24, 1, 1")
    a("v_and_b32 v26, 1, v24")
    a(f"v_lshl_or_b32 v{vPW}, v26, 1, v{vPW}")
    a(f"v_and_or_b32 v{vPW}, v24, 4, v{vPW}")
    a(f"v_xor_b32 v{vPW}, v{vPW}, v25")
    a(f"v_lshlrev_b32 v{vPW}, 4, v{vPW}")
    a(f"v_lshl_add_u32 v{vPW}, v24, 7, v{vPW}")
    a(f"s_lshl_b32 s{sT4}, s{sT0}, 12")
    a(f"s_add_u32 s{sT5}, s{sT5}, s{sT4}")
    a(f"v_add_u32 v{vPW}, s{sT5}, v{vPW}")
    for q in range(1, 4): a(f"v_xor_b32 v{vPW+q}, {32*q}, v{vPW}")
    a(f"s_mul_i32 s{sT4}, s{sW}, 12288")
    a(f"s_add_u32 s{sT4}, s{sT4}, {L_PART+8192}")
    a(f"s_lshl_b32 s{sT1}, s{sW}, 12")
    a(f"s_add_u32 s{sT1}, s{sT1}, {L_PART+49152-16384}")
    a(f"s_cmp_lt_u32 s{sW}, 4")
    a(f"s_cselect_b32 s{sT4}, s{sT4}, s{sT1}")
    a(f"s_sub_u32 s{sRD}, s{sT4}, s{sT5}")
    a(f"s_sub_u32 s{sT1}, s{sW}, 4")
    a(f"s_cmp_lt_u32 s{sW}, 4")
    a(f"s_cselect_b32 s{sT1}, 3, s{sT1}")
    a(f"s_mul_i32 s{sT1}, s{sT1}, {10*1024}")
    a(f"s_add_u32 s{sT1}, s{sT1}, {L_OFR}")
    a(f"v_add_u32 v{vRR}, s{sT1}, v{vL16}")
    a(f"s_mul_i32 s{sT1}, s{sT0}, {15*1024}")
    a(f"s_add_u32 s{sT1}, s{sT1}, {L_OFR}")
    a(f"v_add_u32 v{vPR}, s{sT1}, v{vL16}")
    a(f"s_mul_i32 s{sT1}, s{sW}, 5120")
    a(f"s_add_u32 s{sT4}, s{sT1}, {L_OFR}")
    a(f"v_add_u32 v{vOW}, s{sT4}, v{vL16}")
    a(f"s_add_u32 s{sPQO}, s{sYO}, s{sT1}")
    a(f"s_add_u32 s{sPQO}, s{sPQO}, {(WS_PQ-WS_Y)&0xffffffff}")
    if split: split(1)
    a("v_mul_u32_u24 v25, 336, v25")
    a("v_min_u32 v26, 20, v24")
    a("v_lshl_add_u32 v26, v26, 4, v25")
    a("v_lshrrev_b32 v27, 2, v24")
    a(f"v_mov_b32 v{vFT}, 0x7f000000")
    a("v_cmp_eq_u32 vcc, 5, v27")
    a(f"v_subrev_u32 v{vKO}, 4, v24")
    a(f"v_lshl_add_u32 v{vKO}, v{vKO}, 4, v25")
    a(f"v_cndmask_b32 v{vKE}, v26, v{vFT}, vcc")
    a(f"v_cndmask_b32 v{vKO}, v26, v{vKO}, vcc")
    a("v_cmp_eq_u32 vcc, 4, v27")
    a(f"s_mul_i32 s{sKVO}, s{sW}, {4*KVH}")
    a(f"s_add_u32 s{sKVO}, s{sKVO}, {WS_KV}")
    a(f"v_cndmask_b32 v{vKO}, v{vKO}, v{vFT}, vcc")
    a(f"s_lshr_b32 s{sT1}, s{sR3}, 1")
    a(f"s_lshl_b32 s{sT1}, s{sT1}, 3")
    a(f"s_add_u32 s{sT1}, s{sT1}, s{sW}")
    a(f"s_lshl_b32 s{sT1}, s{sT1}, 8")
    a(f"s_add_u32 s{sT1}, s{sT1}, {WS_FQ}")
    a(f"s_lshl_b32 s{sT4}, s{sR3}, 8")
    a(f"s_add_u32 s{sT4}, s{sT4}, {WS_FG}")
    a(f"v_lshlrev_b32 v26, 2, v{vL}")
    a(f"v_add_u32 v26, s{sT4}, v26")
    a(f"v_cmp_gt_u32 vcc, 4, v{vL}")
    a(f"v_mov_b32 v{vFQ}, s{sT1}")
    a(f"v_cndmask_b32 v{vFQ}, v{vFQ}, v26, vcc")
    a(f"s_lshl_b32 s{sT1}, s{sW}, 10")
    a(f"s_add_u32 s{sT1}, s{sT1}, {WS_FK}")
    a(f"v_and_b32 v{vFK}, 3, v{vL}")
    a(f"v_lshlrev_b32 v{vFK}, 8, v{vFK}")
    a(f"v_add_u32 v{vFK}, s{sT1}, v{vFK}")
    a(f"s_lshr_b32 s{sT1}, s{sR3}, 3")
    a(f"s_add_u32 s{sT1}, s{sT1}, 2")
    a(f"s_bfe_u32 s{sT1}, s{sT1}, 0x10002")
    a(f"s_mul_i32 s{sT1}, s{sT1}, 20")
    a(f"s_mul_i32 s{sT4}, s{sC3}, 5")
    a(f"s_min_u32 s{sT5}, s{sW}, 4")
    a(f"s_add_u32 s{sT4}, s{sT4}, s{sT5}")
    a(f"s_add_u32 s{sT1}, s{sT1}, s{sT4}")
    a(f"s_lshl_b32 s{sT1}, s{sT1}, 8")
    a(f"s_add_u32 s{sT1}, s{sT1}, {WS_FY}")
    a(f"v_mov_b32 v{vFY}, s{sT1}")
    a(f"s_lshl_b32 s{sT4}, s{sT4}, 11")
    a(f"s_add_u32 s{sYO}, s{sYO}, s{sT4}")
    a(f"s_lshl_b32 s{sYM}, s{sT5}, 11")
    a(f"s_add_u32 s{sYM}, s{sYM}, {L_YT}")

def x_loads():
    a(f"buffer_load_dwordx4 {vr(vXD,4)}, v{vOUT}, {srd(SX)}, s{sXOFF} offen")
    a(f"buffer_load_dwordx4 {vr(vXD2,4)}, v{vOUT}, {srd(SX)}, s{sXOFF} offen offset:256")

def wo_prep(vtmp):
    a(f"s_and_b32 s{sT4}, s{sIDX}, 1")
    a(f"s_lshl_b32 s{sT5}, s{sCP}, 1")
    a(f"s_add_u32 s{sT4}, s{sT4}, s{sT5}")
    a(f"s_lshl_b32 s{sT4}, s{sT4}, 3")
    a(f"s_add_u32 s{sT4}, s{sT4}, s{sW}")
    a(f"s_mul_i32 s{sT4}, s{sT4}, 25600")
    a(f"s_add_u32 s{sWOO}, s{sT4}, {WS_WOP}")
    a(f"v_lshlrev_b32 v{vtmp}, 4, v{vL}")
def wo_list(vtmp, order=None):
    out = []
    for i in range(25):
        t = f"buffer_load_dwordx4 {vr(VWO+4*i,4)}, v{vtmp}, {srd(SWS)}, s{sWOO} offen offset:{1024*(i&3)} sc1"
        if (i & 3) == 3: t += f"\ns_add_u32 s{sWOO}, s{sWOO}, 4096"
        out.append(t)
    return out

S0B = 156
def s0_task(st):
    a(f"s_mul_i32 s{sTB}, s{st}, 6554")
    a(f"s_lshr_b32 s{sTB}, s{sTB}, 16")
    a(f"s_mul_i32 s{sCHB}, s{sTB}, 10")
    a(f"s_sub_u32 s{sCHB}, s{st}, s{sCHB}")
for t in range(640): assert (t * 6554) >> 16 == t // 10

def s0_loads():
    a.c("S0 loads")
    B = S0B
    a(f"v_lshrrev_b32 v{B+1}, 3, v{vL}")
    a(f"v_and_b32 v{B+2}, 7, v{vL}")
    a(f"v_mul_u32_u24 v{B+3}, 5120, v{B+1}")
    a(f"v_lshl_add_u32 v{B+3}, v{B+2}, 4, v{B+3}")
    a(f"s_mul_i32 s{sT0}, s{sTB}, 40960")
    a(f"s_lshl_b32 s{sT1}, s{sCHB}, 7")
    a(f"s_add_u32 s{sT0}, s{sT0}, s{sT1}")
    a(f"v_add_u32 v{B+64}, s{sT0}, v{B+3}")
    a(f"v_subrev_u32 v{B+65}, 3840, v{B+64}")
    a(f"v_lshlrev_b32 v{B+66}, 6, v{B+2}")
    a(f"s_lshl_b32 s{sT1}, s{sCHB}, 9")
    srd_init([SK, SV, SSK])
    a("s_waitcnt lgkmcnt(0)")
    for i in range(4): a(f"buffer_load_dwordx4 {vr(B+16+4*i,4)}, v{B+64}, {srd(SK)}, 0 offen offset:{1280*i}")
    for i in range(3): a(f"buffer_load_dwordx4 {vr(B+4+4*i,4)}, v{B+65}, {srd(SK)}, 0 offen offset:{1280*i}")
    for i in range(4): a(f"buffer_load_dwordx4 {vr(B+32+4*i,4)}, v{B+64}, {srd(SV)}, 0 offen offset:{1280*i}")
    for i in range(4): a(f"buffer_load_dwordx4 {vr(B+48+4*i,4)}, v{B+66}, {srd(SSK)}, s{sT1} offen offset:{16*i}")

def s0_addr(s_scr):
    B = S0B
    a(f"v_mul_u32_u24 v{B+67}, 576, v{B+1}")
    a(f"v_lshl_add_u32 v{B+67}, v{B+2}, 4, v{B+67}")
    a(f"v_add_u32 v{B+67}, s{s_scr}, v{B+67}")
    a(f"v_and_b32 v{B+68}, 15, v{vL}")
    a(f"v_mul_u32_u24 v{B+69}, 144, v{B+68}")
    a(f"v_lshrrev_b32 v{B+70}, 4, v{vL}")
    a(f"v_lshl_add_u32 v{B+69}, v{B+70}, 3, v{B+69}")
    a(f"v_add_u32 v{B+69}, s{s_scr}, v{B+69}")
    a(f"s_and_b32 s{sT0}, s{sTB}, 3")
    a(f"v_xor_b32 v{B+68}, s{sT0}, v{B+68}")
    a(f"v_lshlrev_b32 v{B+68}, 4, v{B+68}")
    a(f"v_lshl_add_u32 v{B+68}, v{B+70}, 14, v{B+68}")
    a(f"s_lshl_b32 s{sT0}, s{sCHB}, 18")
    a(f"s_lshl_b32 s{sT1}, s{sTB}, 8")
    a(f"s_add_u32 s{sT0}, s{sT0}, s{sT1}")
    a(f"s_mov_b32 s{sT1}, 0xffff0000")

def s0_compute(split=None, pk=True):
    a.c("S0 compute")
    B = S0B
    KF, VF, WF, AC, UO = 56, 70, 78, 86, B + 72
    for p in range(4):
        for cc in range(2):
            c = 2 * p + cc
            for h in range(2):
                a(f"v_lshlrev_b32 v{WF+4*h+cc}, 16, v{B+48+2*c+h}")
                a(f"v_and_b32 v{WF+4*h+2+cc}, s{sT1}, v{B+48+2*c+h}")
        for r in range(7):
            a(f"v_lshlrev_b32 v{KF+2*r}, 16, v{B+4+4*r+p}")
            a(f"v_and_b32 v{KF+2*r+1}, s{sT1}, v{B+4+4*r+p}")
        for r in range(4):
            a(f"v_lshlrev_b32 v{VF+2*r}, 16, v{B+32+4*r+p}")
            a(f"v_and_b32 v{VF+2*r+1}, s{sT1}, v{B+32+4*r+p}")
        if pk:
            for i in range(4): a(f"v_pk_mul_f32 {vr(AC+2*i,2)}, {vr(KF+2*(i+3),2)}, {vr(WF,2)}")
            for d in range(1, 4):
                for i in range(4): a(f"v_pk_fma_f32 {vr(AC+2*i,2)}, {vr(KF+2*(i+3-d),2)}, {vr(WF+2*d,2)}, {vr(AC+2*i,2)}")
            for i in range(4): a(f"v_pk_mul_f32 {vr(AC+2*i,2)}, {vr(AC+2*i,2)}, {vr(VF+2*i,2)}")
        else:
            for i in range(8): a(f"v_mul_f32 v{AC+i}, v{KF+6+i}, v{WF+(i&1)}")
            for d in range(1, 4):
                for i in range(8): a(f"v_fmac_f32 v{AC+i}, v{KF+6+i-2*d}, v{WF+2*d+(i&1)}")
            for i in range(8): a(f"v_mul_f32 v{AC+i}, v{AC+i}, v{VF+i}")
        for i in range(4): a(f"v_cvt_pk_bf16_f32 v{UO+4*i+p}, v{AC+2*i}, v{AC+2*i+1}")
        if split: split(p)
    for i in range(4): a(f"ds_write_b128 v{B+67}, {vr(UO+4*i,4)} offset:{144*i}")
    for j in range(4):
        a(f"ds_read_b64_tr_b16 {vr(B+4+4*j,2)}, v{B+69} offset:{32*j}")
        a(f"ds_read_b64_tr_b16 {vr(B+6+4*j,2)}, v{B+69} offset:{32*j+2304}")
    for j in range(4):
        a(f"s_waitcnt lgkmcnt({6-2*j})")
        a(f"buffer_store_dwordx4 {vr(B+4+4*j,4)}, v{B+68}, {srd(SWS)}, s{sT0} offen sc1")
        if j < 3: a(f"s_add_u32 s{sT0}, s{sT0}, 65536")

def f0_off(sd):
    a(f"s_lshl_b32 s{sd}, s{sCHB}, 8")
    a(f"s_add_u32 s{sd}, s{sd}, {WS_F0}")

ACC = 32
FB = [112, 156]
vX0, vX1, vWA, vWX = 148, 149, 150, 154
vA1, vA2, vC16, vG4 = 16, 17, 18, 19
sC, sSL = sT2, sT3

def a_setup():
    a.c("A-wave address setup")
    a(f"s_and_b32 s{sT0}, s{sW}, 1")
    a(f"s_lshr_b32 s{sT1}, s{sW}, 1")
    a(f"v_and_b32 v{vC16}, 15, v{vL}")
    a(f"v_lshrrev_b32 v{vG4}, 4, v{vL}")
    a(f"v_lshrrev_b32 v8, 1, v{vC16}")
    a(f"v_xor_b32 v8, v{vG4}, v8")
    a(f"v_lshlrev_b32 v8, 4, v8")
    a(f"v_lshl_add_u32 v8, v{vC16}, 7, v8")
    a(f"s_lshl_b32 s{sT4}, s{sT1}, 13")
    a(f"v_add_u32 v{vX0}, s{sT4}, v8")
    a(f"v_xor_b32 v{vX1}, 64, v{vX0}")
    a(f"v_bfe_u32 v8, v{vL}, 2, 2")
    a(f"v_lshl_add_u32 v9, v{vG4}, 3, v8")
    a(f"v_and_b32 v10, 1, v{vG4}")
    a(f"v_xor_b32 v10, s{sT0}, v10")
    a(f"v_and_b32 v11, 3, v{vL}")
    a("v_lshlrev_b32 v11, 3, v11")
    a(f"v_lshl_add_u32 v{vWX}, v9, 6, v11")
    a(f"v_lshl_add_u32 v{vWX}, v10, 5, v{vWX}")
    a(f"v_add_u32 v{vWX}, 32768, v{vWX}")
    a("v_lshl_or_b32 v8, v10, 2, v8")
    a("v_lshl_add_u32 v8, v8, 5, v11")
    a("v_lshl_add_u32 v8, v9, 8, v8")
    a(f"v_add_u32 v{vWA}, 16384, v8")
    for tt in range(1, 4): a(f"v_xor_b32 v{vWA+tt}, {32*tt}, v{vWA}")

def a_reads(buf, ks):
    b = FB[buf]
    xs = [f"ds_read_b128 {vr(b+4*rt,4)}, v{vX1 if ks else vX0} offset:{2048*rt}" for rt in range(4)]
    ws = []
    for tt in range(5):
        for sec in range(2):
            if tt < 4: ws.append(f"ds_read_b64_tr_b16 {vr(b+16+4*tt+2*sec,2)}, v{vWA+tt} offset:{ks*8192+sec*1024}")
            else: ws.append(f"ds_read_b64_tr_b16 {vr(b+16+4*tt+2*sec,2)}, v{vWX} offset:{ks*2048+sec*256}")
    return [xs[0], ws[0], ws[1], xs[1], ws[2], ws[3], xs[2], ws[4], ws[5], xs[3]] + ws[6:]

def acc(rt, tt): return ACC + 4 * (rt * 5 + tt)

def a_mfmas(buf, qtype, order=None):
    b = FB[buf]
    out = []
    for (rt, tt) in (order or [(rt, tt) for tt in range(5) for rt in range(4)]):
        d = vr(acc(rt, tt), 4)
        xf = vr(b + 4 * rt, 4); wf = vr(b + 16 + 4 * tt, 4)
        A, B = (wf, xf) if qtype else (xf, wf)
        out.append(f"v_mfma_f32_16x16x32_bf16 {d}, {A}, {B}, {d}")
    return out

def interleave(mf, rd):
    j = 0
    for i, m in enumerate(mf):
        a(m)
        if j < len(rd): a(rd[j]); j += 1
    while j < len(rd): a(rd[j]); j += 1

def a_mainloop(qtype, hooks):
    t = "q" if qtype else "k"
    a.c("A main loop")
    for i in range(80): a(f"v_mov_b32 v{ACC+i}, 0")
    a(f"s_mov_b32 s{sC}, 0")
    a(f"s_mov_b32 s{sSL}, 0")
    mask = sum(1 << c for c in hooks) | (1 << 10)
    a(f"s_mov_b32 s{sT6}, {mask}")
    if "noprio" not in EXP: a("s_setprio 2")
    a("s_waitcnt lgkmcnt(0)")
    a("s_barrier")
    stamp(1)
    for r in a_reads(0, 0): a(r)
    a(".p2align 3")
    a.label(f"Lml{t}")
    a("s_waitcnt lgkmcnt(0)")
    a("s_nop 0") if False else None
    book = [
        f"s_add_u32 s{sSL}, s{sSL}, 1\ns_cmp_eq_u32 s{sSL}, 3",
        f"s_mov_b32 s{sT4}, {SLOT}",
        f"s_cselect_b32 s{sT4}, {-2*SLOT & 0xffffffff}, s{sT4}",
        f"s_cselect_b32 s{sSL}, 0, s{sSL}\ns_add_u32 s{sC}, s{sC}, 1",
    ]
    rd = a_reads(1, 1)
    seq = []
    for i, r in enumerate(rd): seq.append(r + ("\n" + book[i - 2] if 2 <= i < 6 else ""))
    seq += [f"v_add_u32 v{vX0}, s{sT4}, v{vX0}\nv_add_u32 v{vX1}, s{sT4}, v{vX1}",
            f"v_add_u32 v{vWA}, s{sT4}, v{vWA}\nv_add_u32 v{vWA+1}, s{sT4}, v{vWA+1}",
            f"v_add_u32 v{vWA+2}, s{sT4}, v{vWA+2}\nv_add_u32 v{vWA+3}, s{sT4}, v{vWA+3}",
            f"v_add_u32 v{vWX}, s{sT4}, v{vWX}\ns_bitcmp1_b32 s{sT6}, s{sC}"]
    interleave(a_mfmas(0, qtype), seq)
    a("s_waitcnt lgkmcnt(0)")
    a(f"s_cbranch_scc1 Lhook{t}")
    a.label(f"Lhookd{t}")
    a("s_barrier")
    interleave(a_mfmas(1, qtype), a_reads(0, 0))
    a(f"s_branch Lml{t}")
    a.label(f"Lhook{t}")
    if hooks:
        a(f"s_cmp_eq_u32 s{sC}, 10")
        a(f"s_cbranch_scc1 Lmx{t}")
    items = sorted(hooks.items())
    for n, (c, f) in enumerate(items):
        nxt = a.newlabel("Lhk")
        if n < len(items) - 1:
            a(f"s_cmp_lg_u32 s{sC}, {c}")
            a(f"s_cbranch_scc1 {nxt}")
        f()
        a(f"s_branch Lhookd{t}")
        a.label(nxt)
    a.label(f"Lmx{t}")

def phi_list(regs, tmp):
    out = []
    B = 4
    for i in range(0, len(regs), B):
        batch = regs[i:i + B]
        for j, r in enumerate(batch):
            out.append(f"v_mul_f32 v{tmp+2*j}, s{sLOG}, v{r}")
            out.append(f"v_mul_f32 v{tmp+2*j+1}, s{sLOG}, v{r+1}")
        for j, r in enumerate(batch):
            out.append(f"v_exp_f32_e64 v{tmp+2*j}, v{tmp+2*j} clamp")
            out.append(f"v_exp_f32_e64 v{tmp+2*j+1}, v{tmp+2*j+1} clamp")
        for j, r in enumerate(batch):
            out.append(f"v_max_f32 v{r}, s{sEPS}, v{r}")
            out.append(f"v_max_f32 v{r+1}, s{sEPS}, v{r+1}")
        for j, r in enumerate(batch):
            out.append(f"v_add_f32 v{r}, v{r}, v{tmp+2*j}")
            out.append(f"v_add_f32 v{r+1}, v{r+1}, v{tmp+2*j+1}")
    return out

def sprinkle(main, extra, every, start=0):
    j = 0
    for i, m in enumerate(main):
        a(m)
        if i >= start and (i - start) % every == every - 1 and j < len(extra):
            a(extra[j]); j += 1
    return extra[j:]

def fc_addr(v):
    a(f"v_and_b32 v{v}, 7, v{vL}")
    a(f"v_lshlrev_b32 v{v}, 8, v{v}")
    a(f"v_add_u32 v{v}, {WS_FC}, v{v}")
def f0_addr(v):
    a(f"s_lshr_b32 s{sT4}, s{sQUAD}, 4")
    a(f"s_lshl_b32 s{sT4}, s{sT4}, 8")
    a(f"s_add_u32 s{sT4}, s{sT4}, {WS_F0}")
    a(f"v_mov_b32 v{v}, s{sT4}")

def awave():
    a.label("Lawave")
    common_scalars()
    srd_init([SX, SWS, SDBG, SOUT])
    a(f"s_cmp_ge_u32 s{sIDX}, 16")
    a("s_cbranch_scc1 Lqa")

def kva():
    a(f"s_or_b32 s{sT0}, s{sBID}, s{sW}")
    a(f"s_cmp_lg_u32 s{sT0}, 0")
    a("s_cbranch_scc1 Lkva1")
    a(f"s_memrealtime {sr(sT2,2)}")
    a(f"v_lshlrev_b32 v1, 8, v{vL}")
    a("v_mov_b32 v2, 0")
    a(f"s_mov_b32 s{sT0}, {WS_C + CDELTA}")
    a(f"s_mov_b32 s{sT1}, {WS_C + CDELTA + 16384}")
    a("s_waitcnt lgkmcnt(0)")
    a("s_mov_b32 exec_hi, 0")
    a(f"buffer_store_dword v2, v1, {srd(SWS)}, s{sT1} offen sc1")
    a("s_mov_b32 exec_hi, -1")
    a(f"buffer_store_dword v2, v1, {srd(SWS)}, s{sT0} offen sc1")
    a(f"s_lshl_b32 s{sT3}, s{sT3}, 27")
    a(f"s_xor_b32 s{sT2}, s{sT2}, s{sT3}")
    a(f"s_or_b32 s{sT2}, s{sT2}, 1")
    a(f"v_mov_b32 v3, s{sT2}")
    a("s_waitcnt vmcnt(0)")
    a("s_mov_b64 exec, 1")
    a(f"buffer_store_dword v3, v2, {srd(SDBG)}, 0 offen sc1")
    a("s_mov_b64 exec, -1")
    a.label("Lkva1")
    a(f"s_lshr_b32 s{sT0}, s{sIDX}, 2")
    a(f"s_lshl_b32 s{sCG}, s{sCP}, 2")
    a(f"s_add_u32 s{sCG}, s{sCG}, s{sT0}")
    a_setup()
    a(f"s_mul_i32 s{sT4}, s{sW}, 3584")
    a(f"s_add_u32 s{sT4}, s{sT4}, {L_KVS}")
    a(f"v_mul_u32_u24 v8, 336, v{vG4}")
    a(f"v_add_u32 v8, s{sT4}, v8")
    a(f"v_lshl_add_u32 v{vA1}, v{vC16}, 4, v8")
    a(f"v_add_u32 v9, 8, v{vC16}")
    a(f"v_subrev_u32 v10, 12, v{vC16}")
    a(f"v_cmp_lt_u32 vcc, 11, v{vC16}")
    a("v_cndmask_b32 v9, v9, v10, vcc")
    a(f"v_cmp_eq_u32 vcc, 0, v{vC16}")
    a("v_mov_b32 v10, 20")
    a("v_cndmask_b32 v9, v9, v10, vcc")
    a(f"v_lshl_add_u32 v{vA2}, v9, 4, v8")
    a(f"s_lshl_b32 s{sT4}, s{sT0}, 2")
    a(f"s_add_u32 s{sT4}, s{sT4}, {L_CNT}")
    a(f"v_mov_b32 v20, s{sT4}")
    a(f"s_mul_i32 s{sT4}, s{sT0}, 3584")
    a(f"s_mul_i32 s{sT5}, s{sT1}, {KVH}")
    a(f"s_add_u32 s{sT4}, s{sT4}, s{sT5}")
    a(f"v_lshlrev_b32 v21, 2, v{vL}")
    a(f"s_add_u32 s{sT5}, s{sT4}, {L_KVS}")
    a(f"v_add_u32 v22, s{sT5}, v21")
    a(f"s_mul_i32 s{sT5}, s{sCG}, {4*KVH}")
    a(f"s_add_u32 s{sT4}, s{sT4}, s{sT5}")
    a(f"s_add_u32 s{sCH}, s{sT4}, {WS_KV}")
    a("v_mov_b32 v23, 0x3f803f80")
    a(f"s_lshl_b32 s{sLC}, s{sCG}, 1")
    a(f"s_add_u32 s{sLC}, s{sLC}, s{sT0}")
    a(f"s_lshl_b32 s{sLC}, s{sLC}, 1")
    a(f"s_add_u32 s{sLC}, s{sLC}, s{sT1}")
    a(f"s_lshl_b32 s{sLC}, s{sLC}, 8")
    a(f"s_add_u32 s{sLC}, s{sLC}, {WS_FK}")
    wo_prep(28)
    a_mainloop(False, {})
    a.c("KV epilogue")
    order = [(rt, tt) for tt in (4, 0, 1, 2, 3) for rt in range(4)]
    mf = a_mfmas(1, False, order)
    for m in mf[:12]: a(m)
    XP = 112
    TM = 120
    a(f"v_cmp_gt_u32 vcc, 8, v{vC16}")
    L = []
    for rt in range(4):
        for h in range(2): L.append(f"v_cvt_pk_bf16_f32 v{XP+2*rt+h}, v{acc(rt,4)+2*h}, v{acc(rt,4)+2*h+1}")
    for j in range(8): L.append(f"v_cndmask_b32 v{XP+j}, v{XP+j}, v23, vcc")
    regs = []
    for tt in (4, 0, 1):
        for rt in range(4): regs += [acc(rt, tt), acc(rt, tt) + 2]
    L += phi_list(regs, TM)
    for i, m in enumerate(mf[12:]):
        a(m)
        for x in L[2 * i:2 * i + 2]: a(x)
    L = L[16:]
    stamp(2)
    for tt in (2, 3, 4, 0, 1):
        for rt in range(4):
            for h in range(2):
                L.append(f"v_cvt_pk_bf16_f32 v{acc(rt&2,tt)+2*(rt&1)+h}, v{acc(rt,tt)+2*h}, v{acc(rt,tt)+2*h+1}")
    rest = sprinkle(L, wo_list(28), 9)
    for x in rest: a(x)
    def fr(t, p): return XP + 4 * p if t == 5 else acc(2 * p, t)
    prods = [(0, 2), (0, 5), (4, 2), (4, 5), (1, 3), (1, 5), (4, 3)]
    PD = 120
    for p in range(2):
        for i, (ta, tb) in enumerate(prods):
            d = vr(PD + 4 * i, 4)
            a(f"v_mfma_f32_16x16x32_bf16 {d}, {vr(fr(ta,p),4)}, {vr(fr(tb,p),4)}, {'0' if p==0 else d}")
    def wr(i, va, off, mlo, mhi):
        if mlo is not None: a(f"s_mov_b32 exec_lo, {mlo}")
        if mhi is not None: a(f"s_mov_b32 exec_hi, {mhi}")
        a(f"ds_write_b128 v{va}, {vr(PD+4*i,4)} offset:{off}")
    wr(0, vA1, 0, None, None)
    wr(4, vA1, KVH + 336 + 64, None, None)
    wr(1, vA2, 0, 0x0f010f01, 0x0f010f01)
    wr(5, vA2, KVH + 336, 0xf001f001, 0xf001f001)
    wr(2, vA1, 4 * 336, 0xffff, 0)
    wr(3, vA2, 4 * 336, 0x0f01, None)
    wr(3, vA2, KVH - 336, 0xf0010000, None)
    wr(6, vA1, KVH + 64 - 336, 0xffff0000, None)
    a("v_mov_b32 v24, 1") if False else None
    a("s_mov_b64 exec, 1")
    a("v_mov_b32 v24, 1")
    a(f"ds_add_u32 v20, v24")
    a("s_mov_b64 exec, -1")
    lds_wait(20, 24, 2)
    for i in range(7):
        a(f"ds_read_b32 v{32+i}, v22 offset:{256*i}")
        a(f"ds_read_b32 v{40+i}, v22 offset:{256*i+7168}")
    stamp(3)
    for i in range(7):
        a(f"s_waitcnt lgkmcnt({12-2*i})")
        a(f"v_add_f32 v{32+i}, v{32+i}, v{40+i}")
        a(f"buffer_atomic_add_f32 v{32+i}, v21, {srd(SWS)}, s{sCH} offen offset:{256*i}")
    a("s_setprio 0")
    arr_prep(48, 49)
    tag_lds(50)
    a("s_waitcnt vmcnt(0)")
    arr_issue(48, 49, f"s{sLC}")
    s3_setup()
    arr_finish(48, 49, f"s{sLC}", 16)
    stamp(4)
    a("s_branch Ls3")

def qa():
    a.label("Lqa")
    a(f"s_bfe_u32 s{sT0}, s{sIDX}, 0x10002")
    a(f"s_lshl_b32 s{sCG}, s{sCP}, 1")
    a(f"s_add_u32 s{sCG}, s{sCG}, s{sT0}")
    a_setup()
    a(f"v_lshrrev_b32 v8, 1, v{vG4}")
    a(f"v_and_b32 v9, 1, v{vG4}")
    a(f"v_lshlrev_b32 v20, 4, v{vC16}")
    a("v_lshl_add_u32 v20, v9, 9, v20")
    a("v_lshl_add_u32 v21, v8, 3, v20")
    a("v_add_u32 v21, 4096, v21")
    a("v_lshl_add_u32 v20, v8, 10, v20")
    a(f"s_lshl_b32 s{sT4}, s{sRB}, 1")
    a(f"s_add_u32 s{sT4}, s{sT4}, s{sT1}")
    a(f"s_lshl_b32 s{sT5}, s{sCG}, 1")
    a(f"s_add_u32 s{sT5}, s{sT5}, s{sT0}")
    a(f"s_mul_i32 s{sT0}, s{sT4}, {80*1024}")
    a(f"s_mul_i32 s{sT1}, s{sT5}, {5*1024}")
    a(f"s_add_u32 s{sT0}, s{sT0}, s{sT1}")
    a(f"s_add_u32 s{sCH}, s{sT0}, {WS_PQ}")
    a(f"s_add_u32 s{sVAR}, s{sCH}, {40*1024}")
    a(f"s_lshl_b32 s{sT4}, s{sT4}, 3")
    a(f"s_add_u32 s{sT4}, s{sT4}, s{sT5}")
    a(f"s_lshl_b32 s{sT4}, s{sT4}, 8")
    a(f"s_add_u32 s{sLC}, s{sT4}, {WS_FQ}")
    wo_prep(28)
    a_mainloop(True, {})
    a.c("Q epilogue")
    order = [(rt, tt) for rt in range(4) for tt in range(5)]
    mf = a_mfmas(1, True, order)
    for m in mf[:9]: a(m)
    L = []
    for rt in range(4):
        regs = []
        for tt in range(5): regs += [acc(rt, tt), acc(rt, tt) + 2]
        L += phi_list(regs, 112)
        O = acc(rt, 0)
        for tt in range(5):
            for h in range(2): L.append(f"v_cvt_pk_bf16_f32 v{O+2*tt+h}, v{acc(rt,tt)+2*h}, v{acc(rt,tt)+2*h+1}")
        so = f"s{sVAR if rt>>1 else sCH}"
        for p in range(2):
            L.append(f"buffer_store_dwordx4 {vr(O+4*p,4)}, v20, {srd(SWS)}, {so} offen offset:{256*(rt&1)+2048*p} sc1")
        L.append(f"buffer_store_dwordx2 {vr(O+8,2)}, v21, {srd(SWS)}, {so} offen offset:{256*(rt&1)} sc1")
    for i, m in enumerate(mf[9:]):
        a(m)
        for x in L[2 * i:2 * i + 2]: a(x)
    L = L[22:]
    stamp(2)
    rest = sprinkle(L, wo_list(28), 10)
    assert not rest
    stamp(3)
    a("s_setprio 0")
    tag_lds(120)
    s3_setup()
    a("s_waitcnt vmcnt(0)")
    flag_store(120, 121, f"s{sLC}")
    stamp(4)
    a("s_branch Ls3")

def h_dma(sj, sch0):
    a(f"s_lshr_b32 s{sT4}, s{sj}, 1")
    a(f"s_and_b32 s{sT5}, s{sj}, 1")
    a(f"s_lshl_b32 s{sT5}, s{sT5}, 11")
    a(f"s_add_u32 s{sT6}, s{sch0}, s{sT4}")
    a(f"s_lshl_b32 s{sT6}, s{sT6}, 12")
    a(f"s_add_u32 s{sT6}, s{sT6}, s{sT5}")
    a(f"s_mul_i32 s{sT4}, s{sT4}, {HSTR}")
    a(f"s_add_u32 s{sT4}, s{sT4}, s{sT5}")
    a(f"s_add_u32 m0, s{sT4}, {L_HB+128}")
    a(f"buffer_load_dwordx4 v{vL16}, {srd(SH)}, s{sT6} offen lds")
    a(f"buffer_load_dwordx4 v{vL16}, {srd(SH)}, s{sT6} offen offset:1024 lds")

CACC = 32
CPOOL = 96
NPOOL = 12
CD = 144
vUe, vUo, vH, vCW, vCT, vCS, vCY, vCN = range(148, 156)

def conv_setup(j, chl0, split=None):
    a.c("conv setup")
    a(f"s_lshr_b32 s{sLC}, s{j}, 1")
    a(f"s_and_b32 s{sVAR}, s{j}, 1")
    a(f"s_add_u32 s{sCHL}, s{chl0}, s{sLC}")
    a(f"s_lshl_b32 s{sCH}, s{sQUAD}, 2")
    a(f"s_add_u32 s{sCH}, s{sCH}, s{sCHL}")
    a(f"s_lshl_b32 s{sT4}, s{sCH}, 1")
    a(f"s_and_b32 s{sT4}, s{sT4}, -4")
    a(f"s_load_dword s{sDV}, {sr(SD,2)}, s{sT4}")
    a(f"v_and_b32 v96, 31, v{vL}")
    a(f"v_lshrrev_b32 v97, 5, v{vL}")
    a("v_lshl_add_u32 v98, v97, 2, v96")
    a("v_lshrrev_b32 v99, 2, v98")
    a("v_add_u32 v99, 3, v99")
    a("v_and_b32 v99, 3, v99")
    a(f"v_xor_b32 v99, s{sCHL}, v99")
    a("v_lshlrev_b32 v99, 4, v99")
    a("v_lshl_add_u32 v99, v98, 6, v99")
    a(f"v_add_u32 v{vUe}, {L_UD-28*64}, v99")
    a(f"v_xor_b32 v{vUo}, 32, v{vUe}")
    a(f"v_bfe_u32 v98, v{vL}, 4, 1")
    a(f"v_and_b32 v99, 3, v{vL}")
    a("v_lshl_add_u32 v98, v98, 2, v99")
    a(f"v_bfe_u32 v96, v{vL}, 2, 2")
    a("v_sub_u32 v98, v98, v96")
    a("v_lshlrev_b32 v97, 3, v97")
    a("v_sub_u32 v98, v98, v97")
    a("v_lshlrev_b32 v98, 3, v98")
    a(f"s_mul_i32 s{sT4}, s{sLC}, {HSTR}")
    a(f"s_add_u32 s{sT4}, s{sT4}, {L_HB+128+32}")
    a(f"v_add_u32 v{vH}, s{sT4}, v98")
    a(f"s_lshl_b32 s{sT4}, s{sW}, 11")
    a(f"s_add_u32 s{sT4}, s{sT4}, {L_YST}")
    a(f"v_lshlrev_b32 v{vCW}, 4, v{vL}")
    a(f"v_add_u32 v{vCW}, s{sT4}, v{vCW}")
    if split: split(0)
    a(f"v_lshrrev_b32 v97, 4, v{vL}")
    a("v_lshrrev_b32 v98, 1, v99")
    a("v_lshl_add_u32 v98, v97, 1, v98")
    a("v_lshl_add_u32 v98, v98, 3, v96")
    a("v_lshlrev_b32 v98, 4, v98")
    a("v_and_b32 v99, 1, v99")
    a("v_lshl_add_u32 v98, v99, 3, v98")
    a(f"v_add_u32 v{vCT}, s{sT4}, v98")
    a(f"v_and_b32 v98, 7, v{vL}")
    a(f"v_lshrrev_b32 v99, 5, v{vL}")
    a("v_lshl_add_u32 v98, v98, 1, v99")
    a(f"v_mul_u32_u24 v98, 40960, v98")
    a(f"v_bfe_u32 v99, v{vL}, 3, 2")
    a(f"v_lshl_add_u32 v{vCY}, v99, 4, v98")
    a(f"s_lshl_b32 s{sT4}, s{j}, 4")
    a(f"s_add_u32 s{sT4}, s{sT4}, {L_SP}")
    a(f"v_mov_b32 v{vCS}, s{sT4}")
    a(f"s_lshl_b32 s{sT4}, s{sLC}, 2")
    a(f"s_add_u32 s{sT4}, s{sT4}, {L_CNT+16}")
    a(f"v_mov_b32 v{vCN}, s{sT4}")

def conv_dfrag():
    a("s_waitcnt lgkmcnt(0)")
    a(f"s_and_b32 s{sT4}, s{sCH}, 1")
    a(f"s_lshl_b32 s{sT4}, s{sT4}, 4")
    a(f"s_lshr_b32 s{sDV}, s{sDV}, s{sT4}")
    a(f"s_and_b32 s{sDV}, s{sDV}, 0xffff")
    a(f"v_lshlrev_b32 v98, 2, v{vL}")
    a("v_and_b32 v98, 16, v98")
    a(f"v_lshlrev_b32 v98, v98, s{sDV}")
    a(f"v_and_b32 v99, 59, v{vL}")
    for r in range(4):
        a(f"v_cmp_eq_u32 vcc, {32+8*r}, v99")
        a(f"v_cndmask_b32 v{CD+r}, 0, v98, vcc")

def zero_pads(j):
    a("v_mov_b32 v100, 0")
    a("v_mov_b32 v101, 0")
    a(f"v_lshlrev_b32 v102, 3, v{vL}")
    a(f"s_and_b32 s{sT6}, s{j}, 3")
    a(f"s_lshl_b32 s{sT4}, s{sT6}, 9")
    a(f"s_add_u32 s{sT4}, s{sT4}, {L_UB}")
    a(f"v_add_u32 v103, s{sT4}, v102")
    a("ds_write_b64 v103, v[100:101]")
    a(f"s_mul_i32 s{sT4}, s{sT6}, {HSTR}")
    a(f"s_add_u32 s{sT4}, s{sT4}, {L_HB}")
    a(f"v_add_u32 v103, s{sT4}, v102")
    a("s_mov_b64 exec, 0xffff")
    a("ds_write_b64 v103, v[100:101]")
    a(f"v_add_u32 v103, {L_CNT}, v102")
    a("s_mov_b64 exec, 0xff")
    a("ds_write_b64 v103, v[100:101]")
    a("s_mov_b64 exec, -1")

def u_dma(j, nper):
    a(f"s_mul_i32 s{sT4}, s{j}, {1024*nper}")
    a(f"s_lshl_b32 s{sT5}, s{sQUAD}, 14")
    a(f"s_add_u32 s{sT5}, s{sT5}, s{sT4}")
    a(f"s_add_u32 m0, s{sT4}, {L_UD}")
    for i in range(nper): a(f"buffer_load_dwordx4 v{vL16}, {srd(SWS)}, s{sT5} offen offset:{1024*i} sc1 lds")

def bwave():
    a.c("B wave")
    sXB, sWB, sM, sMW, sROT, sSTEP, sQ2, sQ3 = sCG, sUD, sTAG, sCNT, sCI, sLOG, sLOG + 1, sEPS
    VX, VW = 32, 36
    a(f"s_sub_u32 s{sJ}, s{sW}, 4")
    a(f"s_cmp_ge_u32 s{sW}, 6")
    a("s_cbranch_scc1 Lworker")
    a(f"v_lshrrev_b32 v1, 3, v{vL}")
    a(f"v_mul_u32_u24 v1, 1280, v1")
    a(f"v_lshrrev_b32 v2, 4, v{vL}")
    a(f"v_and_b32 v3, 7, v{vL}")
    a("v_xor_b32 v2, v2, v3")
    a(f"v_lshl_add_u32 v{VX}, v2, 4, v1")
    a(f"v_xor_b32 v{VX+1}, 64, v{VX}")
    a(f"v_add_u32 v{VX+1}, {10240-1024}, v{VX+1}")
    a(f"v_add_u32 v{VX+2}, {20480-2048}, v{VX}")
    a(f"v_add_u32 v{VX+3}, {20480-2048}, v{VX+1}")
    a(f"s_lshl_b32 s{sXB}, s{sRB}, 1")
    a(f"s_add_u32 s{sXB}, s{sXB}, s{sJ}")
    a(f"s_mul_i32 s{sXB}, s{sXB}, 81920")
    a(f"s_lshr_b32 s{sT0}, s{sIDX}, 2")
    a(f"s_add_u32 s{sROT}, s{sT0}, s{sIDX}")
    a(f"s_and_b32 s{sROT}, s{sROT}, 3")
    a(f"s_add_u32 s{sM}, s{sRP}, s{sCP}")
    a(f"s_and_b32 s{sM}, s{sM}, 1")
    a(f"s_lshl_b32 s{sM}, s{sM}, 2")
    a(f"s_or_b32 s{sROT}, s{sROT}, s{sM}")
    a(f"s_lshl_b32 s{sM}, s{sJ}, 13")
    srd_init([SX, SWQ])
    def chunk_x(sc):
        a(f"s_mov_b32 m0, s{sM}")
        a(f"s_lshl_b32 s{sQ2}, s{sc}, 7")
        a(f"s_add_u32 s{sQ2}, s{sQ2}, s{sXB}")
        for i in range(4):
            a(f"buffer_load_dwordx4 v{VX+i}, {srd(SX)}, s{sQ2} offen offset:{1024*i} lds")
        a(f"s_add_u32 m0, s{sM}, 4096")
        a(f"s_add_u32 s{sQ2}, s{sQ2}, 40960")
        for i in range(4):
            a(f"buffer_load_dwordx4 v{VX+i}, {srd(SX)}, s{sQ2} offen offset:{1024*i} lds")
    def chunk_w(sc):
        a(f"s_add_u32 m0, s{sM}, 16384")
        a(f"s_mul_i32 s{sQ3}, s{sc}, {64*3840}")
        a(f"s_add_u32 s{sQ3}, s{sQ3}, s{sWB}")
        for hf in range(2):
            if hf:
                a(f"s_add_u32 m0, s{sM}, {16384+4096}")
                a(f"s_add_u32 s{sQ3}, s{sQ3}, {16*3840}")
            for i in (0, 1, 4, 2, 3):
                if i == 2: a(f"s_add_u32 m0, s{sM}, {16384+4096*hf}")
                if i == 4: a(f"s_add_u32 m0, s{sMW}, {1024*hf}")
                a(f"buffer_load_dwordx4 v{VW+i}, {srd(SWQ)}, s{sQ3} offen offset:{1024*(i&3)} lds")
    a("s_waitcnt lgkmcnt(0)")
    stamp(11)
    chunk_x(sROT)
    a(f"s_lshl_b32 s{sT1}, s{sCP}, 2")
    a(f"s_add_u32 s{sT1}, s{sT1}, s{sT0}")
    a(f"s_add_u32 s{sT1}, s{sT1}, 8")
    a(f"s_lshl_b32 s{sT0}, s{sT0}, 1")
    a(f"s_lshl_b32 s{sT4}, s{sCP}, 2")
    a(f"s_add_u32 s{sT0}, s{sT0}, s{sT4}")
    a(f"s_sub_u32 s{sT0}, s{sT0}, 8")
    a(f"s_cmp_ge_u32 s{sIDX}, 16")
    a(f"s_cselect_b32 s{sWB}, s{sT0}, s{sT1}")
    a(f"s_cselect_b32 s{sT4}, 10, 5")
    a(f"s_cselect_b32 s{sT5}, 4, 0x50")
    a(f"s_cselect_b32 s{sT6}, 1, 3")
    a(f"s_cselect_b32 s{sT7}, 2, 1")
    a(f"s_cselect_b32 s{sT0}, 1, 0x50")
    a(f"s_cselect_b32 s{sT1}, 8, 2")
    a(f"s_mulk_i32 s{sWB}, 160")
    a(f"s_mul_i32 s{sT2}, s{sJ}, {32*3840}")
    a(f"s_add_u32 s{sWB}, s{sWB}, s{sT2}")
    a(f"s_lshl_b32 s{sMW}, s{sJ}, 11")
    a(f"s_add_u32 s{sMW}, s{sMW}, 32768")
    a(f"v_lshrrev_b32 v14, 4, v{vL}")
    a(f"v_lshrrev_b32 v15, 1, v{vL}")
    a("v_xor_b32 v15, v15, v14")
    a(f"v_and_b32 v16, 1, v{vL}")
    a("v_mul_u32_u24 v14, 240, v14")
    a(f"v_mad_u32_u24 v14, v16, s{sT7}, v14")
    a("v_and_b32 v17, 1, v15")
    a(f"v_mad_u32_u24 v14, v17, s{sT6}, v14")
    a("v_bfe_u32 v17, v15, 1, 1")
    a(f"v_mad_u32_u24 v14, v17, s{sT5}, v14")
    a("v_bfe_u32 v17, v15, 2, 1")
    a(f"v_mad_u32_u24 v18, v17, s{sT4}, v14")
    a(f"v_lshlrev_b32 v{VW}, 4, v18")
    a(f"v_add_u32 v{VW+1}, {15360-1024}, v{VW}")
    a("v_xor_b32 v17, 1, v17")
    a(f"v_mad_u32_u24 v18, v17, s{sT4}, v14")
    a(f"v_lshlrev_b32 v18, 4, v18")
    a(f"v_add_u32 v{VW+2}, {30720-2048}, v18")
    a(f"v_add_u32 v{VW+3}, {46080-3072}, v18")
    a(f"v_lshrrev_b32 v14, 2, v{vL}")
    a("v_mul_u32_u24 v14, 240, v14")
    a(f"v_mad_u32_u24 v14, v16, s{sT0}, v14")
    a(f"v_lshrrev_b32 v17, 4, v{vL}")
    a(f"v_xor_b32 v17, v17, v{vL}")
    a("v_bfe_u32 v17, v17, 1, 1")
    a(f"v_mad_u32_u24 v14, v17, s{sT4}, v14")
    a(f"v_add_lshl_u32 v{VW+4}, v14, s{sT1}, 4")
    chunk_w(sROT)
    stamp(12)
    def issue(step):
        d = SLOT if step % 3 else (-2 * SLOT & 0xffffffff)
        a(f"s_add_u32 s{sM}, s{sM}, {d}")
        a(f"s_add_u32 s{sMW}, s{sMW}, {d}")
        if step == 8: a(f"s_and_b32 s{sROT}, s{sROT}, 1")
        a(f"s_xor_b32 s{sSTEP}, s{sROT}, {step}")
        if "nodma" in EXP and step >= 2: return
        chunk_x(sSTEP); chunk_w(sSTEP)
    bn = [1]
    def bar(n, nxt=None):
        a(f"s_waitcnt vmcnt({n}) lgkmcnt(0)")
        if "bst" in EXP and "pre" in EXP: stamp(bn[0], True)
        a("s_barrier")
        if "bst" in EXP and "pre" not in EXP: stamp(bn[0], True)
        bn[0] += 1
        if nxt is not None: issue(nxt)
    def g_setup():
        srd_init([SX, SH, SWS, SDBG, SOUT])
        a(f"s_mul_i32 s{sT7}, s{sXCD}, 24")
        a(f"s_add_u32 s{sT7}, s{sT7}, s{sIDX}")
        a(f"s_lshr_b32 s{sQUAD}, s{sT7}, 1")
        a(f"s_add_u32 s{sQUAD}, s{sQUAD}, 64")
        a(f"s_and_b32 s{sT1}, s{sIDX}, 1")
        a(f"s_lshl_b32 s{sT1}, s{sT1}, 1")
        a("s_waitcnt lgkmcnt(0)")
        conv_setup(sJ, sT1)
        s3_setup()
        wo_prep(vL16)
    g_setup()
    issue(1)
    bar(18)
    stamp(1)
    issue(2)
    for c in range(1, 8): bar(18, c + 2)
    a(f"s_mov_b32 s{sEPS}, 0x358637bd")
    wl = wo_list(vL16)
    conv_dfrag()
    bar(18)
    x_loads()
    for x in wl[:6]: a(x)
    a("s_waitcnt vmcnt(8)")
    a("s_barrier")
    stamp(2)
    for x in wl[6:12]: a(x)
    tag_lds(48)
    a("s_branch Lbu")

    a.label("Lworker")
    a(f"s_mul_i32 s{sT7}, s{sXCD}, 24")
    a(f"s_add_u32 s{sT7}, s{sT7}, s{sIDX}")
    a(f"s_lshl_b32 s{sT7}, s{sT7}, 1")
    a(f"s_add_u32 s{sT7}, s{sT7}, s{sW}")
    a(f"s_add_u32 s{sT7}, s{sT7}, 250")
    s0_task(sT7)
    s0_loads()
    stamp(11)
    g_setup()
    a(f"s_mul_i32 s{sT2}, s{sJ}, 4608")
    a(f"s_add_u32 s{sT2}, s{sT2}, {L_UB}")
    fc_addr(46)
    f0_addr(44)
    f0_off(sCG)
    conv_dfrag()
    s0_addr(sT2)
    a(f"s_mov_b32 s{sEPS}, 0x358637bd")
    a("s_setprio 3")
    a("s_barrier")
    stamp(1)
    a("s_waitcnt vmcnt(0)")
    cnt_load(SDBG, vZ, 47)
    s0_compute(lambda p: a("s_barrier") if p == 1 else None, False)
    a("s_setprio 0")
    stamp(12)
    a("s_barrier")
    arr_prep(50, 51)
    a("s_waitcnt vmcnt(4)")
    tag_get(vZ, 47, "landed")
    a(f"v_mov_b32 v52, {L_TAG}")
    a(f"v_mov_b32 v53, s{sTAG}")
    a("ds_write_b32 v52, v53")
    a("s_barrier")
    a("s_waitcnt vmcnt(0)")
    arr_issue(50, 51, f"s{sCG}")
    a(f"s_sub_u32 s{sT0}, s{sJ}, 2")
    zero_pads(sT0)
    zero_pads(sJ)
    a("s_waitcnt lgkmcnt(0)")
    a("s_barrier")
    arr_finish(50, 51, f"s{sCG}", 64)
    a("s_barrier")
    a("s_barrier")
    cnt_load(SWS, 46, 47)
    cnt_load(SWS, 44, 45)
    a("s_barrier")
    a(f"s_sub_u32 s{sT1}, s{sCH}, s{sLC}")
    a(f"s_add_u32 s{sT1}, s{sT1}, s{sT0}")
    a(f"s_lshl_b32 s{sT1}, s{sT1}, 12")
    a(f"s_mul_i32 s{sT2}, s{sT0}, {HSTR}")
    poll(46, 47, "issued")
    a(f"v_cmp_ne_u32 vcc, s{sTAG}, v45")
    a("s_cbranch_vccz Lwe1")
    cnt_load(SWS, 44, 45)
    a.label("Lwe1")
    a("s_barrier")
    def h4():
        a(f"s_add_u32 m0, s{sT2}, {L_HB+128}")
        for i in range(4): a(f"buffer_load_dwordx4 v{vL16}, {srd(SH)}, s{sT1} offen offset:{1024*i} lds")
    def u8():
        a(f"s_lshl_b32 s{sT4}, s{sT0}, 13")
        a(f"s_lshl_b32 s{sT5}, s{sQUAD}, 14")
        a(f"s_add_u32 s{sT5}, s{sT5}, s{sT4}")
        for hf in range(2):
            a(f"s_add_u32 m0, s{sT4}, {L_UD+4096*hf}")
            for i in range(4): a(f"buffer_load_dwordx4 v{vL16}, {srd(SWS)}, s{sT5} offen offset:{1024*i} sc1 lds")
            if hf == 0: a(f"s_add_u32 s{sT5}, s{sT5}, 4096")
    a("s_waitcnt vmcnt(0)")
    a(f"v_cmp_ne_u32 vcc, s{sTAG}, v45")
    h4()
    a("s_cbranch_vccnz Lwlate")
    u8()
    a("s_barrier")
    a("s_branch Lw2")
    a.label("Lwlate")
    a("s_barrier")
    poll(44, 45)
    u8()
    a.label("Lw2")
    stamp(2)
    x_loads()
    for x in wl[:12]: a(x)
    a(f"v_mov_b32 v48, {L_CNT+8}")
    a("s_waitcnt vmcnt(14)")
    lds_arrive(48, 49)
    a.label("Lbu")
    a(f"v_mov_b32 v48, {L_CNT+8}")
    lds_wait(48, 49, 2)
    stamp(3)
    a("s_branch Lconv")

def ctype():
    a.label("Lctype")
    common_scalars()
    a(f"s_mov_b32 s{sQUAD}, s{sCI}")
    a(f"s_cmp_ge_u32 s{sW}, 4")
    a("s_cbranch_scc1 Lcaux")
    a(f"s_lshl_b32 s{sT7}, s{sCI}, 2")
    a(f"s_add_u32 s{sT7}, s{sT7}, s{sW}")
    s0_task(sT7)
    s0_loads()
    srd_init([SX, SH, SWS, SDBG, SOUT])
    zero_pads(sW)
    a(f"s_mov_b32 s{sT1}, 0")
    conv_setup(sW, sT1)
    s3_setup()
    wo_prep(vL16)
    conv_dfrag()
    a(f"s_mul_i32 s{sT2}, s{sW}, 4608")
    a(f"s_add_u32 s{sT2}, s{sT2}, {L_S0C}")
    s0_addr(sT2)
    a("s_waitcnt vmcnt(0)")
    s0_compute()
    stamp(1)
    f0_off(sCG)
    arr_prep(50, 51)
    tag_get(vZ, 47, "none")
    arr_issue(50, 51, f"s{sCG}")
    arr_finish(50, 51, f"s{sCG}", 64)
    stamp(2)
    a("s_branch Lcjoin")

    a.label("Lcaux")
    srd_init([SWO, SWS, SX, SWQ, SGW, SH, SDBG, SOUT])
    a(f"s_sub_u32 s{sUD}, s{sW}, 4")
    a(f"s_mul_i32 s{sVAR}, s{sCI}, 3")
    a(f"s_add_u32 s{sVAR}, s{sVAR}, s{sUD}")
    a(f"s_cmp_ge_u32 s{sUD}, 3")
    a(f"s_cselect_b32 s{sVAR}, 1000, s{sVAR}")
    a(f"s_cmp_ge_u32 s{sVAR}, 160")
    a("s_cbranch_scc1 Lcnorp2")
    sKQ, sF, sCGR = sCHL, sCH, sJ
    a(f"s_lshr_b32 s{sT0}, s{sVAR}, 2")
    a(f"s_and_b32 s{sCGR}, s{sVAR}, 3")
    a(f"s_mul_i32 s{sKQ}, s{sT0}, 52")
    a(f"s_lshr_b32 s{sKQ}, s{sKQ}, 8")
    a(f"s_mul_i32 s{sT1}, s{sKQ}, 5")
    a(f"s_sub_u32 s{sF}, s{sT0}, s{sT1}")
    a(f"s_mul_i32 s{sT0}, s{sF}, 20")
    a(f"s_cmp_eq_u32 s{sF}, 4")
    a(f"s_cselect_b32 s{sT0}, 16, s{sT0}")
    a(f"s_cselect_b32 s{sT2}, 16, 0")
    a(f"s_mul_i32 s{sT1}, s{sKQ}, 80")
    a(f"s_add_u32 s{sT0}, s{sT0}, s{sT1}")
    a(f"s_mul_i32 s{sT0}, s{sT0}, 1280")
    a(f"s_mul_i32 s{sT1}, s{sCGR}, 320")
    a(f"s_add_u32 s{sT0}, s{sT0}, s{sT1}")
    a(f"s_mul_i32 s{sT3}, s{sUD}, 5120")
    a(f"s_add_u32 s{sT3}, s{sT3}, {L_RPC}")
    a("s_waitcnt lgkmcnt(0)")
    for i in range(5):
        a(f"v_add_u32 v14, {64*i}, v{vL}")
        div20(15, 16, 14)
        a("v_lshrrev_b32 v17, 2, v15")
        a(f"v_mad_u32_u24 v15, v17, s{sT2}, v15")
        a("v_mul_u32_u24 v15, 1280, v15")
        a("v_lshl_add_u32 v15, v16, 4, v15")
        a(f"s_add_u32 m0, s{sT3}, {1024*i}")
        a(f"buffer_load_dwordx4 v15, {srd(SWO)}, s{sT0} offen lds")
    a(f"v_lshrrev_b32 v14, 5, v{vL}")
    a(f"v_bfe_u32 v15, v{vL}, 2, 2")
    a("v_lshl_add_u32 v14, v14, 2, v15")
    a("v_mul_u32_u24 v14, 320, v14")
    a(f"v_bfe_u32 v15, v{vL}, 4, 1")
    a("v_lshl_add_u32 v14, v15, 5, v14")
    a(f"v_and_b32 v15, 3, v{vL}")
    a("v_lshl_add_u32 v14, v15, 3, v14")
    a(f"v_add_u32 v14, s{sT3}, v14")
    a(f"s_mul_i32 s{sT0}, s{sKQ}, 5")
    a(f"s_add_u32 s{sT0}, s{sT0}, s{sF}")
    a(f"s_cmp_ge_u32 s{sKQ}, 3")
    a(f"s_cselect_b32 s{sT1}, 10, 0")
    a(f"s_cmp_ge_u32 s{sKQ}, 6")
    a(f"s_cselect_b32 s{sT1}, -15, s{sT1}")
    a(f"s_cselect_b32 s{sT2}, 25, 50")
    a(f"s_add_u32 s{sT0}, s{sT0}, s{sT1}")
    a(f"s_mul_i32 s{sT1}, s{sCGR}, 200")
    a(f"s_add_u32 s{sT0}, s{sT0}, s{sT1}")
    a(f"s_lshl_b32 s{sT0}, s{sT0}, 10")
    a(f"s_add_u32 s{sT0}, s{sT0}, {WS_WOP}")
    a(f"s_lshl_b32 s{sT2}, s{sT2}, 10")
    a(f"s_lshr_b32 s{sT4}, s{sKQ}, 1")
    a(f"s_mul_i32 s{sT4}, s{sT4}, 25")
    a(f"s_and_b32 s{sT5}, s{sKQ}, 1")
    a(f"s_mul_i32 s{sT5}, s{sT5}, 5")
    a(f"s_add_u32 s{sT4}, s{sT4}, s{sT5}")
    a(f"s_add_u32 s{sT4}, s{sT4}, s{sF}")
    a(f"s_add_u32 s{sT4}, s{sT4}, s{sT1}")
    a(f"s_add_u32 s{sT4}, s{sT4}, 115")
    a(f"s_lshl_b32 s{sT4}, s{sT4}, 10")
    a(f"s_add_u32 s{sT4}, s{sT4}, {WS_WOP}")
    a(f"v_lshlrev_b32 v15, 4, v{vL}")
    a("s_waitcnt vmcnt(0)")
    for t in range(5):
        for jh in range(2): a(f"ds_read_b64_tr_b16 {vr(32+4*t+2*jh,2)}, v14 offset:{jh*2560+t*64}")
    a("s_waitcnt lgkmcnt(0)")
    for t in range(4):
        a(f"buffer_store_dwordx4 {vr(32+4*t,4)}, v15, {srd(SWS)}, s{sT0} offen sc1")
        a(f"s_add_u32 s{sT0}, s{sT0}, s{sT2}")
    a(f"buffer_store_dwordx4 {vr(48,4)}, v15, {srd(SWS)}, s{sT4} offen sc1")
    a.label("Lcnorp2")
    a(f"s_cmp_lg_u32 s{sUD}, 3")
    a("s_cbranch_scc1 Lcrz")
    for i in range(4): a(f"v_mov_b32 v{32+i}, 0")
    a(f"v_lshlrev_b32 v15, 4, v{vL}")
    a(f"s_lshl_b32 s{sT0}, s{sCI}, 10")
    a(f"s_add_u32 s{sT0}, s{sT0}, {WS_KV}")
    a("s_waitcnt lgkmcnt(0)")
    a(f"buffer_store_dwordx4 v[32:35], v15, {srd(SWS)}, s{sT0} offen sc1")
    a.label("Lcrz")


    a(f"s_lshl_b32 s{sT0}, s{sCI}, 2")
    a(f"s_add_u32 s{sT0}, s{sT0}, s{sUD}")
    a(f"v_lshrrev_b32 v1, 3, v{vL}")
    a(f"v_and_b32 v2, 7, v{vL}")
    a("v_lshlrev_b32 v3, 4, v2")
    a("v_mul_u32_u24 v4, 1280, v1")
    a("v_add_u32 v4, v4, v3")
    a(f"s_mul_i32 s{sT2}, s{sT0}, {8*1280}")
    arr_prep(146, 147)
    a("v_mov_b32 v6, 0")
    a(f"s_lshl_b32 s{sT3}, s{sXCD}, 8")
    a(f"s_add_u32 s{sT3}, s{sT3}, {WS_FC}")
    a("s_waitcnt lgkmcnt(0)")
    tag_get(6, 7, "none")
    arr_issue(146, 147, f"s{sT3}")
    arr_finish(146, 147, f"s{sT3}", 32)
    stamp(1)
    a(f"s_cmp_lg_u32 s{sW}, 7")
    a("s_cbranch_scc1 Lc5")
    a(f"v_lshlrev_b32 v5, 7, v{vL}")
    a(f"s_mul_i32 s{sT3}, s{sCI}, 7680")
    a(f"s_add_u32 s{sT3}, s{sT3}, {512*3840}")
    a(f"buffer_load_dword v131, v5, {srd(SWQ)}, s{sT3} offen")
    a.label("Lc5")
    for j in (8, 9, 0, 1, 2, 3, 4, 5, 6, 7): a(f"buffer_load_dwordx4 {vr(160+4*j,4)}, v4, {srd(SX)}, s{sT2} offen offset:{128*j}")
    for j in range(10): a(f"buffer_load_dwordx4 {vr(200+4*j,4)}, v3, {srd(SGW)}, 0 offen offset:{128*j}")
    a(f"s_lshl_b32 s{sTB}, s{sT0}, 5")
    a(f"s_add_u32 s{sTB}, s{sTB}, {WS_G}")
    a("v_lshlrev_b32 v130, 2, v1")
    a(f"s_mov_b32 s{sT1}, 0")
    conv_setup(sW, sT1)
    s3_setup()
    wo_prep(vL16)
    conv_dfrag()
    a("v_mov_b32 v128, 0")
    a("v_mov_b32 v129, 0")
    a("s_waitcnt vmcnt(0)")
    for j in range(20):
        a(f"v_dot2c_f32_bf16 v128, v{160+2*j}, v{200+2*j}")
        a(f"v_dot2c_f32_bf16 v129, v{161+2*j}, v{201+2*j}")
    a("v_add_f32 v128, v128, v129")
    for ctl in ("quad_perm:[1,0,3,2]", "quad_perm:[2,3,0,1]", "row_half_mirror"):
        a(f"v_add_f32_dpp v128, v128, v128 {ctl} row_mask:0xf bank_mask:0xf")
    a(f"v_mul_f32 v128, 0xbfb8aa3b, v128")
    a(f"v_exp_f32 v128, v128")
    a(f"v_add_f32 v128, 1.0, v128")
    a(f"v_rcp_f32 v128, v128")
    a("s_mov_b32 exec_lo, 0x01010101")
    a("s_mov_b32 exec_hi, 0x01010101")
    a(f"buffer_store_dword v128, v130, {srd(SWS)}, s{sTB} offen sc1")
    a("s_mov_b64 exec, -1")
    a("s_waitcnt vmcnt(0)")
    a(f"s_lshl_b32 s{sT0}, s{sCI}, 8")
    a(f"s_lshl_b32 s{sT1}, s{sUD}, 2")
    a(f"s_add_u32 s{sT0}, s{sT0}, s{sT1}")
    a(f"s_add_u32 s{sT0}, s{sT0}, {WS_FG}")
    flag_store(50, 51, f"s{sT0}")
    stamp(2)

    a.label("Lcjoin")
    a(f"s_lshl_b32 s{sT1}, s{sCI}, 2")
    h_dma(sW, sT1)
    x_loads()
    a(f"s_cmp_lg_u32 s{sW}, 0")
    a("s_cbranch_scc1 Lc8")
    fc_addr(46)
    f0_addr(44)
    poll(46, 47)
    poll(44, 45)
    a.label("Lc8")
    stamp(11)
    a("s_barrier")
    stamp(12)
    u_dma(sW, 2)
    for x in wo_list(vL16)[:12]: a(x)
    a("s_waitcnt vmcnt(12) lgkmcnt(0)")
    a("s_barrier")
    stamp(3)

def conv_body(tiles):
    seq = []
    for b in range(4):
        if tiles[0] == 0:
            for aa in range(8):
                for ti in (3, 2):
                    d = tiles[ti] - aa
                    if d >= 0:
                        seq.append((ti, ("H", 4 * aa + b, 0), ("U", 4 * d - b)))
                        if b == 0 and aa == 0: seq.append((ti, ("D",), ("U", 4 * d)))
                if aa == 5:
                    seq.append((1, ("H", b, 1), ("U", 4 - b)))
                    if b == 0: seq.append((1, ("D",), ("U", 4)))
                if aa == 6:
                    seq.append((0, ("H", b, 1), ("U", -b)))
                    if b == 0: seq.append((0, ("D",), ("U", 0)))
                    seq.append((1, ("H", 4 + b, 1), ("U", -b)))
        else:
            for aa in range(6):
                for ti in (3, 2, 1, 0):
                    d = tiles[ti] - aa
                    if d >= 0:
                        seq.append((ti, ("H", 4 * aa + b, 0), ("U", 4 * d - b)))
                        if b == 0 and aa == 0: seq.append((ti, ("D",), ("U", 4 * d)))
    assert len(seq) == 76
    last = {}; order = []
    for i, (ti, h, u) in enumerate(seq):
        for k in (u, h):
            if k[0] == "D": continue
            if k not in last: order.append(k)
            last[k] = i
    free = list(range(NPOOL))
    where = {}; done_at = {}
    nds = [0]; li = [0]
    def issue(maxn):
        n = 0
        while li[0] < len(order) and free and n < maxn:
            k = order[li[0]]; li[0] += 1
            bfr = free.pop(0); where[k] = bfr
            r = CPOOL + 4 * bfr
            if k[0] == "U":
                a(f"ds_read_b128 {vr(r,4)}, v{vUo if k[1]&1 else vUe} offset:{(k[1]+3)*512}")
                nds[0] += 1; n += 1
            else:
                a(f"ds_read_b64_tr_b16 {vr(r,2)}, v{vH} offset:{128*k[1]+32}")
                a(f"ds_read_b64_tr_b16 {vr(r+2,2)}, v{vH} offset:{128*k[1]}")
                nds[0] += 2; n += 2
            done_at[k] = nds[0]
    issue(10)
    started = set(); known = 0
    wl = wo_list(vL16); wi = 12
    for i, (ti, h, u) in enumerate(seq):
        needn = max(done_at[k] for k in (u, h) if k[0] != "D")
        if needn > known:
            cnt = min(nds[0] - needn, 15)
            a(f"s_waitcnt lgkmcnt({cnt})")
            known = nds[0] - cnt
        d = vr(CACC + 16 * ti, 16)
        hb = CD if h[0] == "D" else CPOOL + 4 * where[h]
        a(f"v_mfma_f32_32x32x16_bf16 {d}, {vr(CPOOL+4*where[u],4)}, {vr(hb,4)}, {d if ti in started else '0'}")
        started.add(ti)
        for k in (u, h):
            if k[0] != "D" and last[k] == i: free.append(where[k])
        issue(2)
        if i % 3 == 1 and wi < 25: a(wl[wi]); wi += 1
    assert wi == 25

def conv_epi(var):
    runs = [[*range(0, 8)], [*range(8, 16)]] if var == 0 else [[*range(16)]]
    out_g = 7 if var == 0 else 15
    in_g = 8 if var == 0 else 0
    SPL = 96
    a("s_nop 7")
    a("s_nop 3")
    for step in (2, 1, 0):
        a("s_mov_b32 exec_lo, 0")
        a("s_mov_b32 exec_hi, 0x80000000")
        a(f"v_mov_b32 v{SPL+step}, v{CACC+4*out_g+step+1}")
        for run in runs:
            for g in reversed(run):
                src = f"v{CACC+4*(g-1)+step+1}" if g != run[0] else "0"
                a(f"v_mov_b32 v{CACC+4*g+step+1}, {src}")
        if step == 0:
            a(f"ds_write_b96 v{vCS}, {vr(SPL,3)}")
            a("v_mov_b32 v100, 1")
            a(f"ds_add_u32 v{vCN}, v100")
        a("s_mov_b64 exec, -1")
        for g in reversed(range(16)):
            r = CACC + 4 * g + step
            a(f"v_add_f32_dpp v{r}, v{r+1}, v{r} wave_ror:1 row_mask:0xf bank_mask:0xf")
    a(f"v_xor_b32 v101, 16, v{vCS}")
    a(f"v_lshl_add_u32 v101, v{vL}, 2, v101")
    PK = 104
    other = [k for k in range(8) if k != in_g // 2]
    for k in other: a(f"v_cvt_pk_bf16_f32 v{PK+k}, v{CACC+8*k}, v{CACC+8*k+4}")
    oh = 1 - in_g // 8
    a(f"ds_write_b128 v{vCW}, {vr(PK+4*oh,4)} offset:{1024*oh}")
    lds_wait(vCN, 100, 2)
    a("s_mov_b64 exec, 7")
    a("ds_read_b32 v100, v101")
    a("s_waitcnt lgkmcnt(0)")
    a(f"v_add_f32 v{CACC+4*in_g}, v{CACC+4*in_g}, v100")
    a("s_mov_b64 exec, -1")
    k = in_g // 2
    a(f"v_cvt_pk_bf16_f32 v{PK+k}, v{CACC+8*k}, v{CACC+8*k+4}")
    a(f"ds_write_b128 v{vCW}, {vr(PK+4*(1-oh),4)} offset:{1024*(1-oh)}")
    T0, T1 = (0, 6) if var == 0 else (2, 4)
    a(f"s_lshl_b32 s{sT5}, s{sCH}, 6")
    a(f"s_add_u32 s{sT4}, s{sT5}, {WS_Y + T0*8*40960}")
    a(f"s_add_u32 s{sT5}, s{sT5}, {WS_Y + T1*8*40960}")
    a(f"s_lshr_b32 s{sT6}, s{sCH}, 5")
    a(f"s_lshl_b32 s{sT6}, s{sT6}, 8")
    a(f"s_add_u32 s{sT6}, s{sT6}, {WS_FY + var*20*256}")

def conv():
    a.label("Lconv")
    a(f"s_cmp_eq_u32 s{sVAR}, 1")
    a("s_cbranch_scc1 Lconvy")
    conv_body([0, 1, 6, 7])
    stamp(4)
    conv_epi(0)
    a("s_branch Lconve")
    a.label("Lconvy")
    conv_body([2, 3, 4, 5])
    stamp(4)
    conv_epi(1)
    a.label("Lconve")
    for n in range(2):
        a(f"ds_read_b64_tr_b16 {vr(112+4*n,2)}, v{vCT} offset:{1024*n}")
        a(f"ds_read_b64_tr_b16 {vr(114+4*n,2)}, v{vCT} offset:{1024*n+64}")
    arr_prep(100, 101)
    for n in range(2):
        a(f"s_waitcnt lgkmcnt({2-2*n})")
        a(f"buffer_store_dwordx4 {vr(112+4*n,4)}, v{vCY}, {srd(SWS)}, s{sT5 if n else sT4} offen sc1")
    stamp(13)
    a("s_waitcnt vmcnt(0)")
    arr_issue(100, 101, f"s{sT6}")
    arr_finish(100, 101, f"s{sT6}", 32)
    stamp(5)
    a("s_branch Ls3b")

def s3():
    a.label("Ls3")
    x_loads()
    a.label("Ls3b")
    a.c("S3")
    PQ, RAW, KF = 32, 52, 116
    plan = []
    for i in range(4):
        for st in range(2):
            for jh in range(2):
                du0 = 4 * (i + st) + 2 * jh - 5 * i
                plan.append((i, st, jh, du0, 0 <= du0 <= 4, 0 <= du0 + 1 <= 4))
    a(f"buffer_load_dword v{vFT}, v{vFQ}, {srd(SWS)}, 0 offen sc1")
    for (i, st, jh, du0, v0ok, v1ok) in plan:
        if v0ok != v1ok:
            for j in range(4): a(f"v_mov_b32 v{RAW+16*i+8*st+4*jh+j}, 0")
    a(f"s_add_u32 s{sT1}, s{sPQO}, 4096")
    a(f"s_add_u32 s{sT3}, s{sKVO}, {2*KVH}")
    poll(vFQ, vFT, "issued")
    a(f"buffer_load_dword v{vFT}, v{vFK}, {srd(SWS)}, 0 offen sc1")
    for f in range(4): a(f"buffer_load_dwordx4 {vr(PQ+4*f,4)}, v{vL16}, {srd(SWS)}, s{sPQO} offen offset:{1024*f} sc1")
    a(f"buffer_load_dwordx4 {vr(PQ+16,4)}, v{vL16}, {srd(SWS)}, s{sT1} offen sc1")
    a(f"buffer_load_dword v{vG}, v{vGO}, {srd(SWS)}, 0 offen sc1")
    a("s_waitcnt vmcnt(6)")
    poll(vFK, vFT, "landed")
    stamp(6)
    nload = [0] * 4
    for (i, st, jh, du0, v0ok, v1ok) in plan:
        if not (v0ok or v1ok): continue
        off = (i & 1) * KVH + du0 * 336
        part = v0ok != v1ok
        if part: a(f"s_mov_b32 exec_{'hi' if v0ok else 'lo'}, 0")
        a(f"buffer_load_dwordx4 {vr(RAW+16*i+8*st+4*jh,4)}, v{vKO if i&1 else vKE}, {srd(SWS)}, s{sT3 if i>>1 else sKVO} offen offset:{off} sc1")
        if part: a("s_mov_b64 exec, -1")
        nload[i] += 1
    a(f"buffer_load_dword v{vFT}, v{vFY}, {srd(SWS)}, 0 offen sc1")
    rem = sum(nload) + 1
    for i in range(4):
        rem -= nload[i]
        a(f"s_waitcnt vmcnt({rem})")
        kf = KF + 8 * (i & 1)
        for (i2, st, jh, du0, v0ok, v1ok) in plan:
            if i2 != i: continue
            for j in range(2):
                d = kf + 4 * st + 2 * jh + j; s = RAW + 16 * i + 8 * st + 4 * jh + 2 * j
                if v0ok or v1ok: a(f"v_cvt_pk_bf16_f32 v{d}, v{s}, v{s+1}")
                else: a(f"v_mov_b32 v{d}, 0")
        d = vr(RAW + 16 * i, 16)
        a(f"v_mfma_f32_32x32x16_bf16 {d}, {vr(kf,4)}, {vr(PQ+4*i,4)}, 0")
        a(f"v_mfma_f32_32x32x16_bf16 {d}, {vr(kf+4,4)}, {vr(PQ+4*i+4,4)}, {d}")
    OF = 132
    for i in range(4):
        D = RAW + 16 * i
        a(f"v_add_f32 v{D+12}, s{sEPS}, v{D+12}")
        a(f"v_rcp_f32 v{D+12}, v{D+12}")
        for j in range(8): a(f"v_mul_f32 v{D+j}, v{D+j}, v{D+12}")
        for j in range(4): a(f"v_cvt_pk_bf16_f32 v{OF+4*i+j}, v{D+2*j}, v{D+2*j+1}")
        a(f"ds_write_b128 v{vOW}, {vr(OF+4*i,4)} offset:{1024*i}")
        if i & 1 == 0:
            for j in range(4): a(f"v_mul_f32 v{D+8+j}, v{D+8+j}, v{D+12}")
        else:
            for j in range(4): a(f"v_fmac_f32 v{D-8+j}, v{D+8+j}, v{D+12}")
            for j in range(2): a(f"v_cvt_pk_bf16_f32 v{OF+16+2*(i>>1)+j}, v{D-8+2*j}, v{D-8+2*j+1}")
    a(f"ds_write_b128 v{vOW}, {vr(OF+16,4)} offset:4096")
    a(f"s_mov_b32 s{sUD}, 1")
    a(f"s_cmp_ge_u32 s{sW}, 5")
    a("s_cbranch_scc1 Ls3y1")
    a("s_waitcnt vmcnt(0)")
    a(f"v_cmp_ne_u32 vcc, s{sTAG}, v{vFT}")
    a(f"s_mov_b32 m0, s{sYM}")
    a("s_cbranch_vccnz Ls3y0")
    a(f"buffer_load_dwordx4 v{vL16}, {srd(SWS)}, s{sYO} offen sc1 lds")
    a(f"buffer_load_dwordx4 v{vL16}, {srd(SWS)}, s{sYO} offen offset:1024 sc1 lds")
    a("s_branch Ls3y1")
    a.label("Ls3y0")
    a(f"s_mov_b32 s{sUD}, 0")
    a(f"buffer_load_dword v{vFT}, v{vFY}, {srd(SWS)}, 0 offen sc1")
    a.label("Ls3y1")
    if "nog3prio" not in EXP:
        a(f"s_cmp_ge_u32 s{sW}, 4")
        a("s_cbranch_scc1 Ls3y2")
        a("s_setprio 1")
        a.label("Ls3y2")
    a("s_waitcnt lgkmcnt(0)")
    a("s_barrier")
    stamp(7)
    NB = 8; POOL = 32; AP, AR = 64, 80
    def ord_(i): return (vPR, 1024 * i) if i < 15 else (vRR, 1024 * (i - 15))
    for i in range(NB):
        v, o = ord_(i); a(f"ds_read_b128 {vr(POOL+4*i,4)}, v{v} offset:{o}")
    XF = 96
    pre = [f"v_sub_f32 v{vG+2}, 1.0, v{vG}", f"s_mov_b32 s{sT0}, 0xffff0000"]
    for n, xd in enumerate((vXD, vXD2)):
        for j in range(4):
            pre.append(f"v_lshlrev_b32 v{XF+8*n+2*j}, 16, v{xd+j}")
            pre.append(f"v_and_b32 v{XF+8*n+2*j+1}, s{sT0}, v{xd+j}")
        for j in range(8): pre.append(f"v_mul_f32 v{XF+8*n+j}, v{XF+8*n+j}, v{vG+2}")
    issued = NB
    log = list(range(NB))
    for i in range(25):
        pos = log.index(i)
        a(f"s_waitcnt lgkmcnt({min(len(log)-1-pos,15)})")
        d = vr(AP if i < 15 else AR, 16)
        a(f"v_mfma_f32_32x32x16_bf16 {d}, {vr(VWO+4*i,4)}, {vr(POOL+4*(i%NB),4)}, {'0' if i in (0,15) else d}")
        if issued < 25:
            v, o = ord_(issued); a(f"ds_read_b128 {vr(POOL+4*(issued%NB),4)}, v{v} offset:{o}"); log.append(issued); issued += 1
        if i < 12:
            for x in pre[3 * i:3 * i + 3]: a(x)
        if i == 14:
            a(f"s_cmp_eq_u32 s{sUD}, 1")
            a("s_cbranch_scc1 Ls3ny")
            poll(vFY, vFT, "issued")
            a(f"buffer_load_dwordx4 v{vL16}, {srd(SWS)}, s{sYO} offen sc1 lds")
            a(f"buffer_load_dwordx4 v{vL16}, {srd(SWS)}, s{sYO} offen offset:1024 sc1 lds")
            a.label("Ls3ny")
        if 19 <= i < 23:
            q = i - 19
            a(f"ds_write_b128 v{vPW+q}, {vr(AP+4*q,4)}"); log.append(-1)
            a(f"v_add_u32 v{vPW+q}, s{sRD}, v{vPW+q}")
    for q in range(4): a(f"ds_write_b128 v{vPW+q}, {vr(AR+4*q,4)}")
    a("s_waitcnt vmcnt(0) lgkmcnt(0)")
    a("s_barrier")
    stamp(8)
    def f_reads(n, R):
        np_ = 3 + n
        for p in range(np_):
            a(f"ds_read_b128 {vr(R+8*p,4)}, v{vPA} offset:{49152*n+4096*p}")
            a(f"ds_read_b128 {vr(R+8*p+4,4)}, v{vPB} offset:{49152*n+4096*p}")
        a(f"ds_read_b64_tr_b16 {vr(R+32,2)}, v{vYT} offset:{8192*n}")
        a(f"ds_read_b64_tr_b16 {vr(R+34,2)}, v{vYT} offset:{8192*n+256}")
    def f_math(n, R, after):
        np_ = 3 + n
        X = XF + 8 * n; YF = R + 36
        a(f"s_waitcnt lgkmcnt({min(after+2*np_+2-4,15)})")
        for j in range(4): a(f"v_pk_add_f32 {vr(R+2*j,2)}, {vr(R+2*j,2)}, {vr(R+8+2*j,2)}")
        a(f"s_waitcnt lgkmcnt({after+2})")
        for p in range(2, np_):
            for j in range(4): a(f"v_pk_add_f32 {vr(R+2*j,2)}, {vr(R+2*j,2)}, {vr(R+8*p+2*j,2)}")
        a(f"s_waitcnt lgkmcnt({after})")
        for j in range(4):
            a(f"v_lshlrev_b32 v{YF+2*j}, 16, v{R+32+j}")
            a(f"v_and_b32 v{YF+2*j+1}, s{sT0}, v{R+32+j}")
        for j in range(4): a(f"v_pk_mul_f32 {vr(X+2*j,2)}, {vr(X+2*j,2)}, {vr(YF+2*j,2)}")
        for j in range(4): a(f"v_pk_fma_f32 {vr(R+2*j,2)}, {vr(R+2*j,2)}, {vr(vG,2)}, {vr(X+2*j,2)} op_sel_hi:[1,0,1]")
        for j in range(4): a(f"v_cvt_pk_bf16_f32 v{R+32+j}, v{R+2*j}, v{R+2*j+1}")
        a(f"buffer_store_dwordx4 {vr(R+32,4)}, v{vOUT}, {srd(SOUT)}, s{sXOFF} offen offset:{256*n}")
    f_reads(0, 32)
    a(f"s_cmp_lt_u32 s{sW}, 2")
    a("s_cbranch_scc1 Lfin2")
    f_math(0, 32, 0)
    a("s_branch Lfin")
    a.label("Lfin2")
    f_reads(1, 112)
    f_math(0, 32, 10)
    f_math(1, 112, 0)
    a.label("Lfin")
    if DIAG:
        a("s_waitcnt vmcnt(0)")
        stamp(9)
        a(f"s_memtime vcc")
        a("s_waitcnt lgkmcnt(0)")
        a(f"s_mov_b32 s{STS+15}, vcc_lo")
        a("v_mov_b32 v2, 0")
        for i in range(16): a(f"v_writelane_b32 v2, s{STS+i}, {i}")
        a(f"v_lshlrev_b32 v3, 2, v{vL}")
        a(f"s_lshl_b32 s{sT0}, s{sBID}, 3")
        a(f"s_add_u32 s{sT0}, s{sT0}, s{sW}")
        a(f"s_lshl_b32 s{sT0}, s{sT0}, 6")
        a(f"s_add_u32 s{sT0}, s{sT0}, {WS_TS}")
        a("s_mov_b64 exec, 0xffff")
        a(f"buffer_store_dword v2, v3, {srd(SWS)}, s{sT0} offen")
        if "dbgts" in EXP:
            a(f"s_cmp_lg_u32 s{sW}, {int([e for e in EXP if e.startswith('wv')][0][2:])}")
            a("s_cbranch_scc1 Lend")
            a(f"s_cmp_ge_u32 s{sIDX}, 16")
            a("s_cbranch_scc1 Lend")
            a("v_cmp_ne_u32 vcc, 0, v2")
            a(f"v_subrev_u32 v2, s{sTAG}, v2")
            a("v_add_u32 v2, 100, v2")
            a("v_and_b32 v2, 0x7ffffff, v2")
            a("v_cndmask_b32 v2, 0, v2, vcc")
            a("s_mov_b64 exec, 0x3fff")
            a(f"buffer_atomic_umax v2, v3, {srd(SDBG)}, 0 offen offset:4 sc1")
    a.label("Lend")
    a("s_endpgm")

entry(); bwave(); awave(); kva(); qa(); ctype(); conv(); s3()

ref = open("cdna_kernels/%s.s.ref" % NAME).read()
head = [l for l in ref.split("\n") if l.startswith(";") and "@launch" not in l]
out = "\n".join(head) + "\n"
out += "; @launch grid=(256,1,1) block=(512,1,1) lds=%d\n" % LDS_BYTES
out += '.amdgcn_target "amdgcn-amd-amdhsa--gfx950"\n.text\n.globl %s_kernel\n.p2align 8\n.type %s_kernel,@function\n%s_kernel:\n' % (NAME, NAME, NAME)
out += a.text()
out += '''.section .rodata,"a"
.p2align 6
.amdhsa_kernel %s_kernel
  .amdhsa_next_free_vgpr 256
  .amdhsa_next_free_sgpr 102
  .amdhsa_accum_offset 256
  .amdhsa_group_segment_fixed_size 0
  .amdhsa_kernarg_size 104
  .amdhsa_user_sgpr_count 2
  .amdhsa_user_sgpr_kernarg_segment_ptr 1
  .amdhsa_system_sgpr_workgroup_id_x 1
.end_amdhsa_kernel
''' % NAME
dst = [x for x in sys.argv[1:] if not x.startswith("--")]
open(dst[0] if dst else "cdna_kernels/%s.s" % NAME, "w").write(out)
```

```python
import sys
from asmlib import Asm, vr, sr

NAME = "gated_mix__linear_attn_block__ssm_conv_h3__prompt"
DIAG = "--diag" in sys.argv
EXP = [x[6:] for x in sys.argv if x.startswith("--exp=")]

WS_U = 0
WS_PQ = 0x280000
WS_Y = 0x500000
WS_WOP = 0x780000
WS_KV = 0x850000
WS_C = 0x860000
CDELTA = 0x20000
WS_FK = WS_C
WS_FY = WS_C + 32 * 256
WS_F0 = WS_C + 72 * 256
WS_FC = WS_C + 88 * 256
WS_FG = WS_C + 128 * 256
WS_FQ = WS_C + 256 * 256
WS_G = 0x88C000
WS_TS = 0x890000
WS_SIZE = 0x900000
KVH = 1792

SLOT = 36864
L_OFR = 36864
L_KVS = 77824
L_YST = 92160
L_PART = 77824
L_UB = 110592
L_UD = L_UB + 2048
L_HB = 129024
HSTR = 4224
L_SP = 145920
L_CNT = 146048
L_TAG = 146112
L_YT = 146176
L_S0C = 0
L_RPC = 49152
LDS_BYTES = L_YT + 10240

SX, SWQ, SWO, SK, SV, SSK, SH, SGW, SOUT, SDBG, SWS = [4 + 4 * i for i in range(11)]
SD = 48
sW, sXCD, sIDX, sRP, sCP, sTAG, sCNT = range(50, 57)
sRB, sCG, sQUAD, sCHL, sLC, sVAR, sCH, sJ, sUD = range(57, 66)
sT0, sT1, sT2, sT3, sT4, sT5, sT6, sT7 = range(66, 74)
sLOG = 74
sCI = 76
sDV = 77
STS = 80
sXOFF, sPQO, sKVO, sTB, sYO, sYM = 96, 97, 98, 99, 100, 101
sCHB = 65
sRD = 3
sWOO = 2
sEPS = 79
sBID = 78
def srd(b): return sr(b, 4)

vL = 0
VWO = 156
vL16, vOW, vPR, vRR, vPW = 1, 2, 3, 4, 5
vKE, vKO, vFK, vFY, vZ, vOUT, vPA, vPB, vYT, vFT, vGO = 9, 10, 11, 12, 13, 14, 15, 16, 17, 18, 19
vXD, vG, vXD2 = 20, 24, 28
vFQ, vFE = 27, 25

a = Asm()
BST = [None]
def stamp(i, force=False):
    if "bst" in EXP and not force and i not in (0, 10): return
    if DIAG:
        a(f"{'s_memtime' if 'cyc' in EXP else 's_memrealtime'} vcc")
        a("s_waitcnt lgkmcnt(0)")
        a(f"s_mov_b32 s{STS+i}, vcc_lo")

def poll(vaddr, vdst, state="none", sleep=2):
    L = a.newlabel("Lpoll"); D = a.newlabel("Lpd")
    if state != "none":
        if state == "issued": a("s_waitcnt vmcnt(0)")
        a(f"v_cmp_ne_u32 vcc, s{sTAG}, v{vdst}")
        a(f"s_cbranch_vccz {D}")
    a(f"s_mov_b32 s{sCNT}, 0x20000")
    a.label(L)
    a(f"buffer_load_dword v{vdst}, v{vaddr}, {srd(SWS)}, 0 offen sc1")
    a("s_waitcnt vmcnt(0)")
    a(f"v_cmp_ne_u32 vcc, s{sTAG}, v{vdst}")
    a(f"s_cbranch_vccz {D}")
    if sleep: a(f"s_sleep {sleep}")
    a(f"s_sub_u32 s{sCNT}, s{sCNT}, 1")
    a(f"s_cbranch_scc0 {L}")
    a.label(D)

def cnt_load(S, vaddr, vdst):
    a(f"buffer_load_dword v{vdst}, v{vaddr}, {srd(S)}, 0 offen sc1")

def tag_get(vz, vdst, state="issued"):
    L = a.newlabel("Ltag"); D = a.newlabel("Ltd")
    if state != "none":
        if state == "issued": a("s_waitcnt vmcnt(0)")
        a(f"v_readfirstlane_b32 s{sTAG}, v{vdst}")
        a(f"s_cmp_lg_u32 s{sTAG}, 0")
        a(f"s_cbranch_scc1 {D}")
    a(f"s_mov_b32 s{sCNT}, 0x20000")
    a.label(L)
    a(f"buffer_load_dword v{vdst}, v{vz}, {srd(SDBG)}, 0 offen sc1")
    a("s_waitcnt vmcnt(0)")
    a(f"v_readfirstlane_b32 s{sTAG}, v{vdst}")
    a(f"s_cmp_lg_u32 s{sTAG}, 0")
    a(f"s_cbranch_scc1 {D}")
    a("s_sleep 2")
    a(f"s_sub_u32 s{sCNT}, s{sCNT}, 1")
    a(f"s_cbranch_scc0 {L}")
    a.label(D)

def tag_lds(vtmp):
    a(f"v_mov_b32 v{vtmp}, {L_TAG}")
    a(f"ds_read_b32 v{vtmp}, v{vtmp}")
    a("s_waitcnt lgkmcnt(0)")
    a(f"v_readfirstlane_b32 s{sTAG}, v{vtmp}")

def arr_prep(vt0, vt1):
    a(f"v_mov_b32 v{vt0}, {CDELTA}")
    a(f"v_mov_b32 v{vt1}, 1")
def arr_issue(vt0, vt1, soff):
    a("s_mov_b64 exec, 1")
    a(f"buffer_atomic_add v{vt1}, v{vt0}, {srd(SWS)}, {soff} offen sc0 sc1")
    a("s_mov_b64 exec, -1")
def arr_finish(vt0, vt1, soff, n, wait=0):
    D = a.newlabel("Lal")
    a(f"s_waitcnt vmcnt({wait})")
    a(f"v_readfirstlane_b32 s{sT7}, v{vt1}")
    a(f"s_cmp_lg_u32 s{sT7}, {n-1}")
    a(f"s_cbranch_scc1 {D}")
    flag_store(vt0, vt1, soff)
    a.label(D)
def flag_store(vt0, vt1, soff):
    a(f"v_mov_b32 v{vt0}, 0")
    a(f"v_mov_b32 v{vt1}, s{sTAG}")
    a("s_mov_b64 exec, 1")
    a(f"buffer_store_dword v{vt1}, v{vt0}, {srd(SWS)}, {soff} offen sc1")
    a("s_mov_b64 exec, -1")

def lds_arrive(vaddr, vtmp):
    a(f"v_mov_b32 v{vtmp}, 1")
    a("s_mov_b64 exec, 1")
    a(f"ds_add_u32 v{vaddr}, v{vtmp}")
    a("s_mov_b64 exec, -1")
def lds_wait(vaddr, vtmp, target):
    L = a.newlabel("Lls"); D = a.newlabel("Lld")
    a(f"s_mov_b32 s{sCNT}, 0x400000")
    a.label(L)
    a(f"ds_read_b32 v{vtmp}, v{vaddr}")
    a("s_waitcnt lgkmcnt(0)")
    a(f"v_readfirstlane_b32 s{sT7}, v{vtmp}")
    a(f"s_cmp_ge_u32 s{sT7}, {target}")
    a(f"s_cbranch_scc1 {D}")
    a(f"s_sub_u32 s{sCNT}, s{sCNT}, 1")
    a(f"s_cbranch_scc0 {L}")
    a.label(D)

def div20(vq, vr_, vp):
    a(f"v_mul_u32_u24 v{vq}, 3277, v{vp}")
    a(f"v_lshrrev_b32 v{vq}, 16, v{vq}")
    a(f"v_mul_u32_u24 v{vr_}, 20, v{vq}")
    a(f"v_sub_u32 v{vr_}, v{vp}, v{vr_}")
for p in range(1000): assert (p * 3277) >> 16 == p // 20

SIZES = {SX: 2621440, SWQ: 2457600, SWO: 819200, SK: 2621440, SV: 2621440, SSK: 5120, SH: 2621440, SGW: 1280, SOUT: 2621440, SDBG: 256, SWS: WS_SIZE}
def srd_init(lst):
    for s in lst:
        a(f"s_mov_b32 s{s+2}, {SIZES[s]}")
        a(f"s_mov_b32 s{s+3}, 0x20000")
def common_scalars():
    a(f"s_mov_b32 s{sLOG}, 0x3fb8aa3b")
    a(f"s_mov_b32 s{sLOG+1}, 0x3fb8aa3b")
    a(f"s_mov_b32 s{sEPS}, 0x358637bd")
    a(f"s_and_b32 s{sT0}, s{sIDX}, 7")
    a(f"s_lshl_b32 s{sCI}, s{sXCD}, 3")
    a(f"s_add_u32 s{sCI}, s{sCI}, s{sT0}")

def entry():
    a.label("Lentry")
    a(f"s_cmp_ge_u32 s2, 256")
    a("s_cbranch_scc1 Lend")
    if DIAG: a(f"s_memrealtime {sr(sT6,2)}")
    a(f"s_getpc_b64 {sr(sT0,2)}")
    a.label("Lpcref")
    a(f"s_and_b32 s{sT2}, s2, 0xf8")
    a(f"v_and_or_b32 v1, v0, 7, s{sT2}")
    a("v_lshlrev_b32 v1, 7, v1")
    a("v_min_u32 v1, Lend-Lpcref, v1")
    a(f"global_load_dword v255, v1, {sr(sT0,2)}")
    for s, off in ((SX, 0), (SWQ, 8), (SK, 32), (SV, 40), (SSK, 48), (SWS, 96), (SDBG, 88), (SH, 56), (SWO, 16), (SGW, 72), (SOUT, 80), (SD, 64)):
        a(f"s_load_dwordx2 {sr(s,2)}, s[0:1], {off}")
    a("v_lshrrev_b32 v1, 6, v0")
    a(f"v_and_b32 v{vL}, 63, v0")
    a(f"v_readfirstlane_b32 s{sW}, v1")
    a(f"s_and_b32 s{sXCD}, s2, 7")
    a(f"s_lshr_b32 s{sIDX}, s2, 3")
    a(f"s_and_b32 s{sRP}, s2, 3")
    a(f"s_bfe_u32 s{sCP}, s2, 0x10002")
    a(f"s_mov_b32 s{sBID}, s2")
    a(f"s_and_b32 s{sT0}, s{sIDX}, 3")
    a(f"s_lshl_b32 s{sRB}, s{sRP}, 2")
    a(f"s_add_u32 s{sRB}, s{sRB}, s{sT0}")
    if DIAG:
        for i in range(16): a(f"s_mov_b32 s{STS+i}, 0")
        stamp(0)
        a(f"s_mov_b32 s{STS+10}, s{sT6}")
        a(f"s_memtime vcc")
        a("s_waitcnt lgkmcnt(0)")
        a(f"s_mov_b32 s{STS+14}, vcc_lo")
    a(f"s_cmp_ge_u32 s{sIDX}, 24")
    a("s_cbranch_scc1 Lctype")
    a(f"s_cmp_lt_u32 s{sW}, 4")
    a("s_cbranch_scc1 Lawave")

def s3_setup(split=None):
    a.c("S3 setup")
    sR3, sC3 = sT2, sT3
    a(f"s_lshr_b32 s{sT0}, s{sIDX}, 1")
    a(f"s_lshl_b32 s{sR3}, s{sRP}, 4")
    a(f"s_add_u32 s{sR3}, s{sR3}, s{sT0}")
    a(f"s_and_b32 s{sT0}, s{sIDX}, 1")
    a(f"s_lshl_b32 s{sC3}, s{sCP}, 1")
    a(f"s_add_u32 s{sC3}, s{sC3}, s{sT0}")
    a(f"v_lshlrev_b32 v{vL16}, 4, v{vL}")
    a(f"v_mov_b32 v{vZ}, 0")
    a(f"v_lshrrev_b32 v24, 4, v{vL}")
    a(f"v_and_b32 v25, 3, v{vL}")
    a(f"v_bfe_u32 v26, v{vL}, 2, 2")
    a(f"s_and_b32 s{sT0}, s{sW}, 1")
    a(f"s_lshl_b32 s{sT1}, s{sT0}, 4")
    a("v_lshl_add_u32 v27, v24, 2, v25")
    a(f"v_add_u32 v27, s{sT1}, v27")
    a(f"v_mul_u32_u24 v{vOUT}, 1280, v27")
    a(f"v_lshl_add_u32 v{vOUT}, v26, 4, v{vOUT}")
    a(f"s_mul_i32 s{sXOFF}, s{sR3}, 40960")
    a(f"s_mul_i32 s{sT4}, s{sC3}, 320")
    a(f"s_add_u32 s{sYO}, s{sXOFF}, {WS_Y}")
    a(f"s_add_u32 s{sXOFF}, s{sXOFF}, s{sT4}")
    a(f"s_lshr_b32 s{sT4}, s{sW}, 1")
    a(f"s_lshl_b32 s{sT5}, s{sT4}, 6")
    a(f"s_add_u32 s{sXOFF}, s{sXOFF}, s{sT5}")
    a(f"s_lshl_b32 s{sT5}, s{sR3}, 7")
    a(f"s_add_u32 s{sT5}, s{sT5}, {WS_G}")
    a(f"v_lshlrev_b32 v{vGO}, 2, v27")
    a(f"v_add_u32 v{vGO}, s{sT5}, v{vGO}")
    a(f"v_bfe_u32 v{vPA}, v27, 1, 1")
    a(f"v_and_b32 v{vPB}, 1, v27")
    a(f"v_lshl_or_b32 v{vPA}, v{vPB}, 1, v{vPA}")
    a(f"v_and_or_b32 v{vPA}, v27, 4, v{vPA}")
    a(f"v_lshlrev_b32 v{vPB}, 1, v26")
    a(f"v_xor_b32 v{vPA}, v{vPA}, v{vPB}")
    a(f"v_lshlrev_b32 v{vPA}, 4, v{vPA}")
    a(f"v_lshl_add_u32 v{vPA}, v27, 7, v{vPA}")
    a(f"s_mul_i32 s{sT5}, s{sT4}, 12288")
    a(f"s_add_u32 s{sT5}, s{sT5}, {L_PART}")
    a(f"v_add_u32 v{vPA}, s{sT5}, v{vPA}")
    a(f"v_xor_b32 v{vPB}, 16, v{vPA}")
    a(f"v_lshl_add_u32 v{vYT}, v25, 3, v26")
    a(f"v_lshlrev_b32 v{vYT}, 6, v{vYT}")
    a(f"v_lshl_add_u32 v{vYT}, v24, 3, v{vYT}")
    a(f"s_lshl_b32 s{sT4}, s{sT4}, 11")
    a(f"s_lshl_b32 s{sT1}, s{sT1}, 1")
    a(f"s_add_u32 s{sT4}, s{sT4}, s{sT1}")
    a(f"s_add_u32 s{sT4}, s{sT4}, {L_YT}")
    a(f"v_add_u32 v{vYT}, s{sT4}, v{vYT}")
    if split: split(0)
    a(f"v_and_b32 v24, 31, v{vL}")
    a(f"v_lshrrev_b32 v25, 5, v{vL}")
    a(f"v_bfe_u32 v{vPW}, v24, 1, 1")
    a("v_and_b32 v26, 1, v24")
    a(f"v_lshl_or_b32 v{vPW}, v26, 1, v{vPW}")
    a(f"v_and_or_b32 v{vPW}, v24, 4, v{vPW}")
    a(f"v_xor_b32 v{vPW}, v{vPW}, v25")
    a(f"v_lshlrev_b32 v{vPW}, 4, v{vPW}")
    a(f"v_lshl_add_u32 v{vPW}, v24, 7, v{vPW}")
    a(f"s_lshl_b32 s{sT4}, s{sT0}, 12")
    a(f"s_add_u32 s{sT5}, s{sT5}, s{sT4}")
    a(f"v_add_u32 v{vPW}, s{sT5}, v{vPW}")
    for q in range(1, 4): a(f"v_xor_b32 v{vPW+q}, {32*q}, v{vPW}")
    a(f"s_mul_i32 s{sT4}, s{sW}, 12288")
    a(f"s_add_u32 s{sT4}, s{sT4}, {L_PART+8192}")
    a(f"s_lshl_b32 s{sT1}, s{sW}, 12")
    a(f"s_add_u32 s{sT1}, s{sT1}, {L_PART+49152-16384}")
    a(f"s_cmp_lt_u32 s{sW}, 4")
    a(f"s_cselect_b32 s{sT4}, s{sT4}, s{sT1}")
    a(f"s_sub_u32 s{sRD}, s{sT4}, s{sT5}")
    a(f"s_sub_u32 s{sT1}, s{sW}, 4")
    a(f"s_cmp_lt_u32 s{sW}, 4")
    a(f"s_cselect_b32 s{sT1}, 3, s{sT1}")
    a(f"s_mul_i32 s{sT1}, s{sT1}, {10*1024}")
    a(f"s_add_u32 s{sT1}, s{sT1}, {L_OFR}")
    a(f"v_add_u32 v{vRR}, s{sT1}, v{vL16}")
    a(f"s_mul_i32 s{sT1}, s{sT0}, {15*1024}")
    a(f"s_add_u32 s{sT1}, s{sT1}, {L_OFR}")
    a(f"v_add_u32 v{vPR}, s{sT1}, v{vL16}")
    a(f"s_mul_i32 s{sT1}, s{sW}, 5120")
    a(f"s_add_u32 s{sT4}, s{sT1}, {L_OFR}")
    a(f"v_add_u32 v{vOW}, s{sT4}, v{vL16}")
    a(f"s_add_u32 s{sPQO}, s{sYO}, s{sT1}")
    a(f"s_add_u32 s{sPQO}, s{sPQO}, {(WS_PQ-WS_Y)&0xffffffff}")
    if split: split(1)
    a("v_mul_u32_u24 v25, 336, v25")
    a("v_min_u32 v26, 20, v24")
    a("v_lshl_add_u32 v26, v26, 4, v25")
    a("v_lshrrev_b32 v27, 2, v24")
    a(f"v_mov_b32 v{vFT}, 0x7f000000")
    a("v_cmp_eq_u32 vcc, 5, v27")
    a(f"v_subrev_u32 v{vKO}, 4, v24")
    a(f"v_lshl_add_u32 v{vKO}, v{vKO}, 4, v25")
    a(f"v_cndmask_b32 v{vKE}, v26, v{vFT}, vcc")
    a(f"v_cndmask_b32 v{vKO}, v26, v{vKO}, vcc")
    a("v_cmp_eq_u32 vcc, 4, v27")
    a(f"s_mul_i32 s{sKVO}, s{sW}, {4*KVH}")
    a(f"s_add_u32 s{sKVO}, s{sKVO}, {WS_KV}")
    a(f"v_cndmask_b32 v{vKO}, v{vKO}, v{vFT}, vcc")
    a(f"s_lshr_b32 s{sT1}, s{sR3}, 1")
    a(f"s_lshl_b32 s{sT1}, s{sT1}, 3")
    a(f"s_add_u32 s{sT1}, s{sT1}, s{sW}")
    a(f"s_lshl_b32 s{sT1}, s{sT1}, 8")
    a(f"s_add_u32 s{sT1}, s{sT1}, {WS_FQ}")
    a(f"s_lshl_b32 s{sT4}, s{sR3}, 8")
    a(f"s_add_u32 s{sT4}, s{sT4}, {WS_FG}")
    a(f"v_lshlrev_b32 v26, 2, v{vL}")
    a(f"v_add_u32 v26, s{sT4}, v26")
    a(f"v_cmp_gt_u32 vcc, 4, v{vL}")
    a(f"v_mov_b32 v{vFQ}, s{sT1}")
    a(f"v_cndmask_b32 v{vFQ}, v{vFQ}, v26, vcc")
    a(f"s_lshl_b32 s{sT1}, s{sW}, 10")
    a(f"s_add_u32 s{sT1}, s{sT1}, {WS_FK}")
    a(f"v_and_b32 v{vFK}, 3, v{vL}")
    a(f"v_lshlrev_b32 v{vFK}, 8, v{vFK}")
    a(f"v_add_u32 v{vFK}, s{sT1}, v{vFK}")
    a(f"s_lshr_b32 s{sT1}, s{sR3}, 3")
    a(f"s_add_u32 s{sT1}, s{sT1}, 2")
    a(f"s_bfe_u32 s{sT1}, s{sT1}, 0x10002")
    a(f"s_mul_i32 s{sT1}, s{sT1}, 20")
    a(f"s_mul_i32 s{sT4}, s{sC3}, 5")
    a(f"s_min_u32 s{sT5}, s{sW}, 4")
    a(f"s_add_u32 s{sT4}, s{sT4}, s{sT5}")
    a(f"s_add_u32 s{sT1}, s{sT1}, s{sT4}")
    a(f"s_lshl_b32 s{sT1}, s{sT1}, 8")
    a(f"s_add_u32 s{sT1}, s{sT1}, {WS_FY}")
    a(f"v_mov_b32 v{vFY}, s{sT1}")
    a(f"s_lshl_b32 s{sT4}, s{sT4}, 11")
    a(f"s_add_u32 s{sYO}, s{sYO}, s{sT4}")
    a(f"s_lshl_b32 s{sYM}, s{sT5}, 11")
    a(f"s_add_u32 s{sYM}, s{sYM}, {L_YT}")

def x_loads():
    a(f"buffer_load_dwordx4 {vr(vXD,4)}, v{vOUT}, {srd(SX)}, s{sXOFF} offen")
    a(f"buffer_load_dwordx4 {vr(vXD2,4)}, v{vOUT}, {srd(SX)}, s{sXOFF} offen offset:256")

def wo_prep(vtmp):
    a(f"s_and_b32 s{sT4}, s{sIDX}, 1")
    a(f"s_lshl_b32 s{sT5}, s{sCP}, 1")
    a(f"s_add_u32 s{sT4}, s{sT4}, s{sT5}")
    a(f"s_lshl_b32 s{sT4}, s{sT4}, 3")
    a(f"s_add_u32 s{sT4}, s{sT4}, s{sW}")
    a(f"s_mul_i32 s{sT4}, s{sT4}, 25600")
    a(f"s_add_u32 s{sWOO}, s{sT4}, {WS_WOP}")
    a(f"v_lshlrev_b32 v{vtmp}, 4, v{vL}")
def wo_list(vtmp, order=None):
    out = []
    for i in range(25):
        t = f"buffer_load_dwordx4 {vr(VWO+4*i,4)}, v{vtmp}, {srd(SWS)}, s{sWOO} offen offset:{1024*(i&3)} sc1"
        if (i & 3) == 3: t += f"\ns_add_u32 s{sWOO}, s{sWOO}, 4096"
        out.append(t)
    return out

S0B = 156
def s0_task(st):
    a(f"s_mul_i32 s{sTB}, s{st}, 6554")
    a(f"s_lshr_b32 s{sTB}, s{sTB}, 16")
    a(f"s_mul_i32 s{sCHB}, s{sTB}, 10")
    a(f"s_sub_u32 s{sCHB}, s{st}, s{sCHB}")
for t in range(640): assert (t * 6554) >> 16 == t // 10

def s0_loads():
    a.c("S0 loads")
    B = S0B
    a(f"v_lshrrev_b32 v{B+1}, 3, v{vL}")
    a(f"v_and_b32 v{B+2}, 7, v{vL}")
    a(f"v_mul_u32_u24 v{B+3}, 5120, v{B+1}")
    a(f"v_lshl_add_u32 v{B+3}, v{B+2}, 4, v{B+3}")
    a(f"s_mul_i32 s{sT0}, s{sTB}, 40960")
    a(f"s_lshl_b32 s{sT1}, s{sCHB}, 7")
    a(f"s_add_u32 s{sT0}, s{sT0}, s{sT1}")
    a(f"v_add_u32 v{B+64}, s{sT0}, v{B+3}")
    a(f"v_subrev_u32 v{B+65}, 3840, v{B+64}")
    a(f"v_lshlrev_b32 v{B+66}, 6, v{B+2}")
    a(f"s_lshl_b32 s{sT1}, s{sCHB}, 9")
    srd_init([SK, SV, SSK])
    a("s_waitcnt lgkmcnt(0)")
    for i in range(4): a(f"buffer_load_dwordx4 {vr(B+16+4*i,4)}, v{B+64}, {srd(SK)}, 0 offen offset:{1280*i}")
    for i in range(3): a(f"buffer_load_dwordx4 {vr(B+4+4*i,4)}, v{B+65}, {srd(SK)}, 0 offen offset:{1280*i}")
    for i in range(4): a(f"buffer_load_dwordx4 {vr(B+32+4*i,4)}, v{B+64}, {srd(SV)}, 0 offen offset:{1280*i}")
    for i in range(4): a(f"buffer_load_dwordx4 {vr(B+48+4*i,4)}, v{B+66}, {srd(SSK)}, s{sT1} offen offset:{16*i}")

def s0_addr(s_scr):
    B = S0B
    a(f"v_mul_u32_u24 v{B+67}, 576, v{B+1}")
    a(f"v_lshl_add_u32 v{B+67}, v{B+2}, 4, v{B+67}")
    a(f"v_add_u32 v{B+67}, s{s_scr}, v{B+67}")
    a(f"v_and_b32 v{B+68}, 15, v{vL}")
    a(f"v_mul_u32_u24 v{B+69}, 144, v{B+68}")
    a(f"v_lshrrev_b32 v{B+70}, 4, v{vL}")
    a(f"v_lshl_add_u32 v{B+69}, v{B+70}, 3, v{B+69}")
    a(f"v_add_u32 v{B+69}, s{s_scr}, v{B+69}")
    a(f"s_and_b32 s{sT0}, s{sTB}, 3")
    a(f"v_xor_b32 v{B+68}, s{sT0}, v{B+68}")
    a(f"v_lshlrev_b32 v{B+68}, 4, v{B+68}")
    a(f"v_lshl_add_u32 v{B+68}, v{B+70}, 14, v{B+68}")
    a(f"s_lshl_b32 s{sT0}, s{sCHB}, 18")
    a(f"s_lshl_b32 s{sT1}, s{sTB}, 8")
    a(f"s_add_u32 s{sT0}, s{sT0}, s{sT1}")
    a(f"s_mov_b32 s{sT1}, 0xffff0000")

def s0_compute(split=None, pk=True):
    a.c("S0 compute")
    B = S0B
    KF, VF, WF, AC, UO = 56, 70, 78, 86, B + 72
    for p in range(4):
        for cc in range(2):
            c = 2 * p + cc
            for h in range(2):
                a(f"v_lshlrev_b32 v{WF+4*h+cc}, 16, v{B+48+2*c+h}")
                a(f"v_and_b32 v{WF+4*h+2+cc}, s{sT1}, v{B+48+2*c+h}")
        for r in range(7):
            a(f"v_lshlrev_b32 v{KF+2*r}, 16, v{B+4+4*r+p}")
            a(f"v_and_b32 v{KF+2*r+1}, s{sT1}, v{B+4+4*r+p}")
        for r in range(4):
            a(f"v_lshlrev_b32 v{VF+2*r}, 16, v{B+32+4*r+p}")
            a(f"v_and_b32 v{VF+2*r+1}, s{sT1}, v{B+32+4*r+p}")
        if pk:
            for i in range(4): a(f"v_pk_mul_f32 {vr(AC+2*i,2)}, {vr(KF+2*(i+3),2)}, {vr(WF,2)}")
            for d in range(1, 4):
                for i in range(4): a(f"v_pk_fma_f32 {vr(AC+2*i,2)}, {vr(KF+2*(i+3-d),2)}, {vr(WF+2*d,2)}, {vr(AC+2*i,2)}")
            for i in range(4): a(f"v_pk_mul_f32 {vr(AC+2*i,2)}, {vr(AC+2*i,2)}, {vr(VF+2*i,2)}")
        else:
            for i in range(8): a(f"v_mul_f32 v{AC+i}, v{KF+6+i}, v{WF+(i&1)}")
            for d in range(1, 4):
                for i in range(8): a(f"v_fmac_f32 v{AC+i}, v{KF+6+i-2*d}, v{WF+2*d+(i&1)}")
            for i in range(8): a(f"v_mul_f32 v{AC+i}, v{AC+i}, v{VF+i}")
        for i in range(4): a(f"v_cvt_pk_bf16_f32 v{UO+4*i+p}, v{AC+2*i}, v{AC+2*i+1}")
        if split: split(p)
    for i in range(4): a(f"ds_write_b128 v{B+67}, {vr(UO+4*i,4)} offset:{144*i}")
    for j in range(4):
        a(f"ds_read_b64_tr_b16 {vr(B+4+4*j,2)}, v{B+69} offset:{32*j}")
        a(f"ds_read_b64_tr_b16 {vr(B+6+4*j,2)}, v{B+69} offset:{32*j+2304}")
    for j in range(4):
        a(f"s_waitcnt lgkmcnt({6-2*j})")
        a(f"buffer_store_dwordx4 {vr(B+4+4*j,4)}, v{B+68}, {srd(SWS)}, s{sT0} offen sc1")
        if j < 3: a(f"s_add_u32 s{sT0}, s{sT0}, 65536")

def f0_off(sd):
    a(f"s_lshl_b32 s{sd}, s{sCHB}, 8")
    a(f"s_add_u32 s{sd}, s{sd}, {WS_F0}")

ACC = 32
FB = [112, 156]
vX0, vX1, vWA, vWX = 148, 149, 150, 154
vA1, vA2, vC16, vG4 = 16, 17, 18, 19
sC, sSL = sT2, sT3

def a_setup():
    a.c("A-wave address setup")
    a(f"s_and_b32 s{sT0}, s{sW}, 1")
    a(f"s_lshr_b32 s{sT1}, s{sW}, 1")
    a(f"v_and_b32 v{vC16}, 15, v{vL}")
    a(f"v_lshrrev_b32 v{vG4}, 4, v{vL}")
    a(f"v_lshrrev_b32 v8, 1, v{vC16}")
    a(f"v_xor_b32 v8, v{vG4}, v8")
    a(f"v_lshlrev_b32 v8, 4, v8")
    a(f"v_lshl_add_u32 v8, v{vC16}, 7, v8")
    a(f"s_lshl_b32 s{sT4}, s{sT1}, 13")
    a(f"v_add_u32 v{vX0}, s{sT4}, v8")
    a(f"v_xor_b32 v{vX1}, 64, v{vX0}")
    a(f"v_bfe_u32 v8, v{vL}, 2, 2")
    a(f"v_lshl_add_u32 v9, v{vG4}, 3, v8")
    a(f"v_and_b32 v10, 1, v{vG4}")
    a(f"v_xor_b32 v10, s{sT0}, v10")
    a(f"v_and_b32 v11, 3, v{vL}")
    a("v_lshlrev_b32 v11, 3, v11")
    a(f"v_lshl_add_u32 v{vWX}, v9, 6, v11")
    a(f"v_lshl_add_u32 v{vWX}, v10, 5, v{vWX}")
    a(f"v_add_u32 v{vWX}, 32768, v{vWX}")
    a("v_lshl_or_b32 v8, v10, 2, v8")
    a("v_lshl_add_u32 v8, v8, 5, v11")
    a("v_lshl_add_u32 v8, v9, 8, v8")
    a(f"v_add_u32 v{vWA}, 16384, v8")
    for tt in range(1, 4): a(f"v_xor_b32 v{vWA+tt}, {32*tt}, v{vWA}")

def a_reads(buf, ks):
    b = FB[buf]
    xs = [f"ds_read_b128 {vr(b+4*rt,4)}, v{vX1 if ks else vX0} offset:{2048*rt}" for rt in range(4)]
    ws = []
    for tt in range(5):
        for sec in range(2):
            if tt < 4: ws.append(f"ds_read_b64_tr_b16 {vr(b+16+4*tt+2*sec,2)}, v{vWA+tt} offset:{ks*8192+sec*1024}")
            else: ws.append(f"ds_read_b64_tr_b16 {vr(b+16+4*tt+2*sec,2)}, v{vWX} offset:{ks*2048+sec*256}")
    return [xs[0], ws[0], ws[1], xs[1], ws[2], ws[3], xs[2], ws[4], ws[5], xs[3]] + ws[6:]

def acc(rt, tt): return ACC + 4 * (rt * 5 + tt)

def a_mfmas(buf, qtype, order=None):
    b = FB[buf]
    out = []
    for (rt, tt) in (order or [(rt, tt) for tt in range(5) for rt in range(4)]):
        d = vr(acc(rt, tt), 4)
        xf = vr(b + 4 * rt, 4); wf = vr(b + 16 + 4 * tt, 4)
        A, B = (wf, xf) if qtype else (xf, wf)
        out.append(f"v_mfma_f32_16x16x32_bf16 {d}, {A}, {B}, {d}")
    return out

def interleave(mf, rd):
    j = 0
    for i, m in enumerate(mf):
        a(m)
        if j < len(rd): a(rd[j]); j += 1
    while j < len(rd): a(rd[j]); j += 1

def a_mainloop(qtype, hooks):
    t = "q" if qtype else "k"
    a.c("A main loop")
    for i in range(80): a(f"v_mov_b32 v{ACC+i}, 0")
    a(f"s_mov_b32 s{sC}, 0")
    a(f"s_mov_b32 s{sSL}, 0")
    mask = sum(1 << c for c in hooks) | (1 << 10)
    a(f"s_mov_b32 s{sT6}, {mask}")
    if "noprio" not in EXP: a("s_setprio 2")
    a("s_waitcnt lgkmcnt(0)")
    a("s_barrier")
    stamp(1)
    for r in a_reads(0, 0): a(r)
    a(".p2align 3")
    a.label(f"Lml{t}")
    a("s_waitcnt lgkmcnt(0)")
    a("s_nop 0") if False else None
    book = [
        f"s_add_u32 s{sSL}, s{sSL}, 1\ns_cmp_eq_u32 s{sSL}, 3",
        f"s_mov_b32 s{sT4}, {SLOT}",
        f"s_cselect_b32 s{sT4}, {-2*SLOT & 0xffffffff}, s{sT4}",
        f"s_cselect_b32 s{sSL}, 0, s{sSL}\ns_add_u32 s{sC}, s{sC}, 1",
    ]
    rd = a_reads(1, 1)
    seq = []
    for i, r in enumerate(rd): seq.append(r + ("\n" + book[i - 2] if 2 <= i < 6 else ""))
    seq += [f"v_add_u32 v{vX0}, s{sT4}, v{vX0}\nv_add_u32 v{vX1}, s{sT4}, v{vX1}",
            f"v_add_u32 v{vWA}, s{sT4}, v{vWA}\nv_add_u32 v{vWA+1}, s{sT4}, v{vWA+1}",
            f"v_add_u32 v{vWA+2}, s{sT4}, v{vWA+2}\nv_add_u32 v{vWA+3}, s{sT4}, v{vWA+3}",
            f"v_add_u32 v{vWX}, s{sT4}, v{vWX}\ns_bitcmp1_b32 s{sT6}, s{sC}"]
    interleave(a_mfmas(0, qtype), seq)
    a("s_waitcnt lgkmcnt(0)")
    a(f"s_cbranch_scc1 Lhook{t}")
    a.label(f"Lhookd{t}")
    a("s_barrier")
    interleave(a_mfmas(1, qtype), a_reads(0, 0))
    a(f"s_branch Lml{t}")
    a.label(f"Lhook{t}")
    if hooks:
        a(f"s_cmp_eq_u32 s{sC}, 10")
        a(f"s_cbranch_scc1 Lmx{t}")
    items = sorted(hooks.items())
    for n, (c, f) in enumerate(items):
        nxt = a.newlabel("Lhk")
        if n < len(items) - 1:
            a(f"s_cmp_lg_u32 s{sC}, {c}")
            a(f"s_cbranch_scc1 {nxt}")
        f()
        a(f"s_branch Lhookd{t}")
        a.label(nxt)
    a.label(f"Lmx{t}")

def phi_list(regs, tmp):
    out = []
    B = 4
    for i in range(0, len(regs), B):
        batch = regs[i:i + B]
        for j, r in enumerate(batch):
            out.append(f"v_mul_f32 v{tmp+2*j}, s{sLOG}, v{r}")
            out.append(f"v_mul_f32 v{tmp+2*j+1}, s{sLOG}, v{r+1}")
        for j, r in enumerate(batch):
            out.append(f"v_exp_f32_e64 v{tmp+2*j}, v{tmp+2*j} clamp")
            out.append(f"v_exp_f32_e64 v{tmp+2*j+1}, v{tmp+2*j+1} clamp")
        for j, r in enumerate(batch):
            out.append(f"v_max_f32 v{r}, s{sEPS}, v{r}")
            out.append(f"v_max_f32 v{r+1}, s{sEPS}, v{r+1}")
        for j, r in enumerate(batch):
            out.append(f"v_add_f32 v{r}, v{r}, v{tmp+2*j}")
            out.append(f"v_add_f32 v{r+1}, v{r+1}, v{tmp+2*j+1}")
    return out

def sprinkle(main, extra, every, start=0):
    j = 0
    for i, m in enumerate(main):
        a(m)
        if i >= start and (i - start) % every == every - 1 and j < len(extra):
            a(extra[j]); j += 1
    return extra[j:]

def fc_addr(v):
    a(f"v_and_b32 v{v}, 7, v{vL}")
    a(f"v_lshlrev_b32 v{v}, 8, v{v}")
    a(f"v_add_u32 v{v}, {WS_FC}, v{v}")
def f0_addr(v):
    a(f"s_lshr_b32 s{sT4}, s{sQUAD}, 4")
    a(f"s_lshl_b32 s{sT4}, s{sT4}, 8")
    a(f"s_add_u32 s{sT4}, s{sT4}, {WS_F0}")
    a(f"v_mov_b32 v{v}, s{sT4}")

def awave():
    a.label("Lawave")
    common_scalars()
    srd_init([SX, SWS, SDBG, SOUT])
    a(f"s_cmp_ge_u32 s{sIDX}, 16")
    a("s_cbranch_scc1 Lqa")

def kva():
    a(f"s_or_b32 s{sT0}, s{sBID}, s{sW}")
    a(f"s_cmp_lg_u32 s{sT0}, 0")
    a("s_cbranch_scc1 Lkva1")
    a(f"s_memrealtime {sr(sT2,2)}")
    a(f"v_lshlrev_b32 v1, 8, v{vL}")
    a("v_mov_b32 v2, 0")
    a(f"s_mov_b32 s{sT0}, {WS_C + CDELTA}")
    a(f"s_mov_b32 s{sT1}, {WS_C + CDELTA + 16384}")
    a("s_waitcnt lgkmcnt(0)")
    a("s_mov_b32 exec_hi, 0")
    a(f"buffer_store_dword v2, v1, {srd(SWS)}, s{sT1} offen sc1")
    a("s_mov_b32 exec_hi, -1")
    a(f"buffer_store_dword v2, v1, {srd(SWS)}, s{sT0} offen sc1")
    a(f"s_lshl_b32 s{sT3}, s{sT3}, 27")
    a(f"s_xor_b32 s{sT2}, s{sT2}, s{sT3}")
    a(f"s_or_b32 s{sT2}, s{sT2}, 1")
    a(f"v_mov_b32 v3, s{sT2}")
    a("s_waitcnt vmcnt(0)")
    a("s_mov_b64 exec, 1")
    a(f"buffer_store_dword v3, v2, {srd(SDBG)}, 0 offen sc1")
    a("s_mov_b64 exec, -1")
    a.label("Lkva1")
    a(f"s_lshr_b32 s{sT0}, s{sIDX}, 2")
    a(f"s_lshl_b32 s{sCG}, s{sCP}, 2")
    a(f"s_add_u32 s{sCG}, s{sCG}, s{sT0}")
    a_setup()
    a(f"s_mul_i32 s{sT4}, s{sW}, 3584")
    a(f"s_add_u32 s{sT4}, s{sT4}, {L_KVS}")
    a(f"v_mul_u32_u24 v8, 336, v{vG4}")
    a(f"v_add_u32 v8, s{sT4}, v8")
    a(f"v_lshl_add_u32 v{vA1}, v{vC16}, 4, v8")
    a(f"v_add_u32 v9, 8, v{vC16}")
    a(f"v_subrev_u32 v10, 12, v{vC16}")
    a(f"v_cmp_lt_u32 vcc, 11, v{vC16}")
    a("v_cndmask_b32 v9, v9, v10, vcc")
    a(f"v_cmp_eq_u32 vcc, 0, v{vC16}")
    a("v_mov_b32 v10, 20")
    a("v_cndmask_b32 v9, v9, v10, vcc")
    a(f"v_lshl_add_u32 v{vA2}, v9, 4, v8")
    a(f"s_lshl_b32 s{sT4}, s{sT0}, 2")
    a(f"s_add_u32 s{sT4}, s{sT4}, {L_CNT}")
    a(f"v_mov_b32 v20, s{sT4}")
    a(f"s_mul_i32 s{sT4}, s{sT0}, 3584")
    a(f"s_mul_i32 s{sT5}, s{sT1}, {KVH}")
    a(f"s_add_u32 s{sT4}, s{sT4}, s{sT5}")
    a(f"v_lshlrev_b32 v21, 2, v{vL}")
    a(f"s_add_u32 s{sT5}, s{sT4}, {L_KVS}")
    a(f"v_add_u32 v22, s{sT5}, v21")
    a(f"s_mul_i32 s{sT5}, s{sCG}, {4*KVH}")
    a(f"s_add_u32 s{sT4}, s{sT4}, s{sT5}")
    a(f"s_add_u32 s{sCH}, s{sT4}, {WS_KV}")
    a("v_mov_b32 v23, 0x3f803f80")
    a(f"s_lshl_b32 s{sLC}, s{sCG}, 1")
    a(f"s_add_u32 s{sLC}, s{sLC}, s{sT0}")
    a(f"s_lshl_b32 s{sLC}, s{sLC}, 1")
    a(f"s_add_u32 s{sLC}, s{sLC}, s{sT1}")
    a(f"s_lshl_b32 s{sLC}, s{sLC}, 8")
    a(f"s_add_u32 s{sLC}, s{sLC}, {WS_FK}")
    wo_prep(28)
    a_mainloop(False, {})
    a.c("KV epilogue")
    order = [(rt, tt) for tt in (4, 0, 1, 2, 3) for rt in range(4)]
    mf = a_mfmas(1, False, order)
    for m in mf[:12]: a(m)
    XP = 112
    TM = 120
    a(f"v_cmp_gt_u32 vcc, 8, v{vC16}")
    L = []
    for rt in range(4):
        for h in range(2): L.append(f"v_cvt_pk_bf16_f32 v{XP+2*rt+h}, v{acc(rt,4)+2*h}, v{acc(rt,4)+2*h+1}")
    for j in range(8): L.append(f"v_cndmask_b32 v{XP+j}, v{XP+j}, v23, vcc")
    regs = []
    for tt in (4, 0, 1):
        for rt in range(4): regs += [acc(rt, tt), acc(rt, tt) + 2]
    L += phi_list(regs, TM)
    for i, m in enumerate(mf[12:]):
        a(m)
        for x in L[2 * i:2 * i + 2]: a(x)
    L = L[16:]
    stamp(2)
    for tt in (2, 3, 4, 0, 1):
        for rt in range(4):
            for h in range(2):
                L.append(f"v_cvt_pk_bf16_f32 v{acc(rt&2,tt)+2*(rt&1)+h}, v{acc(rt,tt)+2*h}, v{acc(rt,tt)+2*h+1}")
    rest = sprinkle(L, wo_list(28), 9)
    for x in rest: a(x)
    def fr(t, p): return XP + 4 * p if t == 5 else acc(2 * p, t)
    prods = [(0, 2), (0, 5), (4, 2), (4, 5), (1, 3), (1, 5), (4, 3)]
    PD = 120
    for p in range(2):
        for i, (ta, tb) in enumerate(prods):
            d = vr(PD + 4 * i, 4)
            a(f"v_mfma_f32_16x16x32_bf16 {d}, {vr(fr(ta,p),4)}, {vr(fr(tb,p),4)}, {'0' if p==0 else d}")
    def wr(i, va, off, mlo, mhi):
        if mlo is not None: a(f"s_mov_b32 exec_lo, {mlo}")
        if mhi is not None: a(f"s_mov_b32 exec_hi, {mhi}")
        a(f"ds_write_b128 v{va}, {vr(PD+4*i,4)} offset:{off}")
    wr(0, vA1, 0, None, None)
    wr(4, vA1, KVH + 336 + 64, None, None)
    wr(1, vA2, 0, 0x0f010f01, 0x0f010f01)
    wr(5, vA2, KVH + 336, 0xf001f001, 0xf001f001)
    wr(2, vA1, 4 * 336, 0xffff, 0)
    wr(3, vA2, 4 * 336, 0x0f01, None)
    wr(3, vA2, KVH - 336, 0xf0010000, None)
    wr(6, vA1, KVH + 64 - 336, 0xffff0000, None)
    a("v_mov_b32 v24, 1") if False else None
    a("s_mov_b64 exec, 1")
    a("v_mov_b32 v24, 1")
    a(f"ds_add_u32 v20, v24")
    a("s_mov_b64 exec, -1")
    lds_wait(20, 24, 2)
    for i in range(7):
        a(f"ds_read_b32 v{32+i}, v22 offset:{256*i}")
        a(f"ds_read_b32 v{40+i}, v22 offset:{256*i+7168}")
    stamp(3)
    for i in range(7):
        a(f"s_waitcnt lgkmcnt({12-2*i})")
        a(f"v_add_f32 v{32+i}, v{32+i}, v{40+i}")
        a(f"buffer_atomic_add_f32 v{32+i}, v21, {srd(SWS)}, s{sCH} offen offset:{256*i}")
    a("s_setprio 0")
    arr_prep(48, 49)
    tag_lds(50)
    a("s_waitcnt vmcnt(0)")
    arr_issue(48, 49, f"s{sLC}")
    s3_setup()
    arr_finish(48, 49, f"s{sLC}", 16)
    stamp(4)
    a("s_branch Ls3")

def qa():
    a.label("Lqa")
    a(f"s_bfe_u32 s{sT0}, s{sIDX}, 0x10002")
    a(f"s_lshl_b32 s{sCG}, s{sCP}, 1")
    a(f"s_add_u32 s{sCG}, s{sCG}, s{sT0}")
    a_setup()
    a(f"v_lshrrev_b32 v8, 1, v{vG4}")
    a(f"v_and_b32 v9, 1, v{vG4}")
    a(f"v_lshlrev_b32 v20, 4, v{vC16}")
    a("v_lshl_add_u32 v20, v9, 9, v20")
    a("v_lshl_add_u32 v21, v8, 3, v20")
    a("v_add_u32 v21, 4096, v21")
    a("v_lshl_add_u32 v20, v8, 10, v20")
    a(f"s_lshl_b32 s{sT4}, s{sRB}, 1")
    a(f"s_add_u32 s{sT4}, s{sT4}, s{sT1}")
    a(f"s_lshl_b32 s{sT5}, s{sCG}, 1")
    a(f"s_add_u32 s{sT5}, s{sT5}, s{sT0}")
    a(f"s_mul_i32 s{sT0}, s{sT4}, {80*1024}")
    a(f"s_mul_i32 s{sT1}, s{sT5}, {5*1024}")
    a(f"s_add_u32 s{sT0}, s{sT0}, s{sT1}")
    a(f"s_add_u32 s{sCH}, s{sT0}, {WS_PQ}")
    a(f"s_add_u32 s{sVAR}, s{sCH}, {40*1024}")
    a(f"s_lshl_b32 s{sT4}, s{sT4}, 3")
    a(f"s_add_u32 s{sT4}, s{sT4}, s{sT5}")
    a(f"s_lshl_b32 s{sT4}, s{sT4}, 8")
    a(f"s_add_u32 s{sLC}, s{sT4}, {WS_FQ}")
    wo_prep(28)
    a_mainloop(True, {})
    a.c("Q epilogue")
    order = [(rt, tt) for rt in range(4) for tt in range(5)]
    mf = a_mfmas(1, True, order)
    for m in mf[:9]: a(m)
    L = []
    for rt in range(4):
        regs = []
        for tt in range(5): regs += [acc(rt, tt), acc(rt, tt) + 2]
        L += phi_list(regs, 112)
        O = acc(rt, 0)
        for tt in range(5):
            for h in range(2): L.append(f"v_cvt_pk_bf16_f32 v{O+2*tt+h}, v{acc(rt,tt)+2*h}, v{acc(rt,tt)+2*h+1}")
        so = f"s{sVAR if rt>>1 else sCH}"
        for p in range(2):
            L.append(f"buffer_store_dwordx4 {vr(O+4*p,4)}, v20, {srd(SWS)}, {so} offen offset:{256*(rt&1)+2048*p} sc1")
        L.append(f"buffer_store_dwordx2 {vr(O+8,2)}, v21, {srd(SWS)}, {so} offen offset:{256*(rt&1)} sc1")
    for i, m in enumerate(mf[9:]):
        a(m)
        for x in L[2 * i:2 * i + 2]: a(x)
    L = L[22:]
    stamp(2)
    rest = sprinkle(L, wo_list(28), 10)
    assert not rest
    stamp(3)
    a("s_setprio 0")
    tag_lds(120)
    s3_setup()
    a("s_waitcnt vmcnt(0)")
    flag_store(120, 121, f"s{sLC}")
    stamp(4)
    a("s_branch Ls3")

def h_dma(sj, sch0):
    a(f"s_lshr_b32 s{sT4}, s{sj}, 1")
    a(f"s_and_b32 s{sT5}, s{sj}, 1")
    a(f"s_lshl_b32 s{sT5}, s{sT5}, 11")
    a(f"s_add_u32 s{sT6}, s{sch0}, s{sT4}")
    a(f"s_lshl_b32 s{sT6}, s{sT6}, 12")
    a(f"s_add_u32 s{sT6}, s{sT6}, s{sT5}")
    a(f"s_mul_i32 s{sT4}, s{sT4}, {HSTR}")
    a(f"s_add_u32 s{sT4}, s{sT4}, s{sT5}")
    a(f"s_add_u32 m0, s{sT4}, {L_HB+128}")
    a(f"buffer_load_dwordx4 v{vL16}, {srd(SH)}, s{sT6} offen lds")
    a(f"buffer_load_dwordx4 v{vL16}, {srd(SH)}, s{sT6} offen offset:1024 lds")

CACC = 32
CPOOL = 96
NPOOL = 12
CD = 144
vUe, vUo, vH, vCW, vCT, vCS, vCY, vCN = range(148, 156)

def conv_setup(j, chl0, split=None):
    a.c("conv setup")
    a(f"s_lshr_b32 s{sLC}, s{j}, 1")
    a(f"s_and_b32 s{sVAR}, s{j}, 1")
    a(f"s_add_u32 s{sCHL}, s{chl0}, s{sLC}")
    a(f"s_lshl_b32 s{sCH}, s{sQUAD}, 2")
    a(f"s_add_u32 s{sCH}, s{sCH}, s{sCHL}")
    a(f"s_lshl_b32 s{sT4}, s{sCH}, 1")
    a(f"s_and_b32 s{sT4}, s{sT4}, -4")
    a(f"s_load_dword s{sDV}, {sr(SD,2)}, s{sT4}")
    a(f"v_and_b32 v96, 31, v{vL}")
    a(f"v_lshrrev_b32 v97, 5, v{vL}")
    a("v_lshl_add_u32 v98, v97, 2, v96")
    a("v_lshrrev_b32 v99, 2, v98")
    a("v_add_u32 v99, 3, v99")
    a("v_and_b32 v99, 3, v99")
    a(f"v_xor_b32 v99, s{sCHL}, v99")
    a("v_lshlrev_b32 v99, 4, v99")
    a("v_lshl_add_u32 v99, v98, 6, v99")
    a(f"v_add_u32 v{vUe}, {L_UD-28*64}, v99")
    a(f"v_xor_b32 v{vUo}, 32, v{vUe}")
    a(f"v_bfe_u32 v98, v{vL}, 4, 1")
    a(f"v_and_b32 v99, 3, v{vL}")
    a("v_lshl_add_u32 v98, v98, 2, v99")
    a(f"v_bfe_u32 v96, v{vL}, 2, 2")
    a("v_sub_u32 v98, v98, v96")
    a("v_lshlrev_b32 v97, 3, v97")
    a("v_sub_u32 v98, v98, v97")
    a("v_lshlrev_b32 v98, 3, v98")
    a(f"s_mul_i32 s{sT4}, s{sLC}, {HSTR}")
    a(f"s_add_u32 s{sT4}, s{sT4}, {L_HB+128+32}")
    a(f"v_add_u32 v{vH}, s{sT4}, v98")
    a(f"s_lshl_b32 s{sT4}, s{sW}, 11")
    a(f"s_add_u32 s{sT4}, s{sT4}, {L_YST}")
    a(f"v_lshlrev_b32 v{vCW}, 4, v{vL}")
    a(f"v_add_u32 v{vCW}, s{sT4}, v{vCW}")
    if split: split(0)
    a(f"v_lshrrev_b32 v97, 4, v{vL}")
    a("v_lshrrev_b32 v98, 1, v99")
    a("v_lshl_add_u32 v98, v97, 1, v98")
    a("v_lshl_add_u32 v98, v98, 3, v96")
    a("v_lshlrev_b32 v98, 4, v98")
    a("v_and_b32 v99, 1, v99")
    a("v_lshl_add_u32 v98, v99, 3, v98")
    a(f"v_add_u32 v{vCT}, s{sT4}, v98")
    a(f"v_and_b32 v98, 7, v{vL}")
    a(f"v_lshrrev_b32 v99, 5, v{vL}")
    a("v_lshl_add_u32 v98, v98, 1, v99")
    a(f"v_mul_u32_u24 v98, 40960, v98")
    a(f"v_bfe_u32 v99, v{vL}, 3, 2")
    a(f"v_lshl_add_u32 v{vCY}, v99, 4, v98")
    a(f"s_lshl_b32 s{sT4}, s{j}, 4")
    a(f"s_add_u32 s{sT4}, s{sT4}, {L_SP}")
    a(f"v_mov_b32 v{vCS}, s{sT4}")
    a(f"s_lshl_b32 s{sT4}, s{sLC}, 2")
    a(f"s_add_u32 s{sT4}, s{sT4}, {L_CNT+16}")
    a(f"v_mov_b32 v{vCN}, s{sT4}")

def conv_dfrag():
    a("s_waitcnt lgkmcnt(0)")
    a(f"s_and_b32 s{sT4}, s{sCH}, 1")
    a(f"s_lshl_b32 s{sT4}, s{sT4}, 4")
    a(f"s_lshr_b32 s{sDV}, s{sDV}, s{sT4}")
    a(f"s_and_b32 s{sDV}, s{sDV}, 0xffff")
    a(f"v_lshlrev_b32 v98, 2, v{vL}")
    a("v_and_b32 v98, 16, v98")
    a(f"v_lshlrev_b32 v98, v98, s{sDV}")
    a(f"v_and_b32 v99, 59, v{vL}")
    for r in range(4):
        a(f"v_cmp_eq_u32 vcc, {32+8*r}, v99")
        a(f"v_cndmask_b32 v{CD+r}, 0, v98, vcc")

def zero_pads(j):
    a("v_mov_b32 v100, 0")
    a("v_mov_b32 v101, 0")
    a(f"v_lshlrev_b32 v102, 3, v{vL}")
    a(f"s_and_b32 s{sT6}, s{j}, 3")
    a(f"s_lshl_b32 s{sT4}, s{sT6}, 9")
    a(f"s_add_u32 s{sT4}, s{sT4}, {L_UB}")
    a(f"v_add_u32 v103, s{sT4}, v102")
    a("ds_write_b64 v103, v[100:101]")
    a(f"s_mul_i32 s{sT4}, s{sT6}, {HSTR}")
    a(f"s_add_u32 s{sT4}, s{sT4}, {L_HB}")
    a(f"v_add_u32 v103, s{sT4}, v102")
    a("s_mov_b64 exec, 0xffff")
    a("ds_write_b64 v103, v[100:101]")
    a(f"v_add_u32 v103, {L_CNT}, v102")
    a("s_mov_b64 exec, 0xff")
    a("ds_write_b64 v103, v[100:101]")
    a("s_mov_b64 exec, -1")

def u_dma(j, nper):
    a(f"s_mul_i32 s{sT4}, s{j}, {1024*nper}")
    a(f"s_lshl_b32 s{sT5}, s{sQUAD}, 14")
    a(f"s_add_u32 s{sT5}, s{sT5}, s{sT4}")
    a(f"s_add_u32 m0, s{sT4}, {L_UD}")
    for i in range(nper): a(f"buffer_load_dwordx4 v{vL16}, {srd(SWS)}, s{sT5} offen offset:{1024*i} sc1 lds")

def bwave():
    a.c("B wave")
    sXB, sWB, sM, sMW, sROT, sSTEP, sQ2, sQ3 = sCG, sUD, sTAG, sCNT, sCI, sLOG, sLOG + 1, sEPS
    VX, VW = 32, 36
    a(f"s_sub_u32 s{sJ}, s{sW}, 4")
    a(f"s_cmp_ge_u32 s{sW}, 6")
    a("s_cbranch_scc1 Lworker")
    a(f"v_lshrrev_b32 v1, 3, v{vL}")
    a(f"v_mul_u32_u24 v1, 1280, v1")
    a(f"v_lshrrev_b32 v2, 4, v{vL}")
    a(f"v_and_b32 v3, 7, v{vL}")
    a("v_xor_b32 v2, v2, v3")
    a(f"v_lshl_add_u32 v{VX}, v2, 4, v1")
    a(f"v_xor_b32 v{VX+1}, 64, v{VX}")
    a(f"v_add_u32 v{VX+1}, {10240-1024}, v{VX+1}")
    a(f"v_add_u32 v{VX+2}, {20480-2048}, v{VX}")
    a(f"v_add_u32 v{VX+3}, {20480-2048}, v{VX+1}")
    a(f"s_lshl_b32 s{sXB}, s{sRB}, 1")
    a(f"s_add_u32 s{sXB}, s{sXB}, s{sJ}")
    a(f"s_mul_i32 s{sXB}, s{sXB}, 81920")
    a(f"s_lshr_b32 s{sT0}, s{sIDX}, 2")
    a(f"s_add_u32 s{sROT}, s{sT0}, s{sIDX}")
    a(f"s_and_b32 s{sROT}, s{sROT}, 3")
    a(f"s_add_u32 s{sM}, s{sRP}, s{sCP}")
    a(f"s_and_b32 s{sM}, s{sM}, 1")
    a(f"s_lshl_b32 s{sM}, s{sM}, 2")
    a(f"s_or_b32 s{sROT}, s{sROT}, s{sM}")
    a(f"s_lshl_b32 s{sM}, s{sJ}, 13")
    srd_init([SX, SWQ])
    def chunk_x(sc):
        a(f"s_mov_b32 m0, s{sM}")
        a(f"s_lshl_b32 s{sQ2}, s{sc}, 7")
        a(f"s_add_u32 s{sQ2}, s{sQ2}, s{sXB}")
        for i in range(4):
            a(f"buffer_load_dwordx4 v{VX+i}, {srd(SX)}, s{sQ2} offen offset:{1024*i} lds")
        a(f"s_add_u32 m0, s{sM}, 4096")
        a(f"s_add_u32 s{sQ2}, s{sQ2}, 40960")
        for i in range(4):
            a(f"buffer_load_dwordx4 v{VX+i}, {srd(SX)}, s{sQ2} offen offset:{1024*i} lds")
    def chunk_w(sc):
        a(f"s_add_u32 m0, s{sM}, 16384")
        a(f"s_mul_i32 s{sQ3}, s{sc}, {64*3840}")
        a(f"s_add_u32 s{sQ3}, s{sQ3}, s{sWB}")
        for hf in range(2):
            if hf:
                a(f"s_add_u32 m0, s{sM}, {16384+4096}")
                a(f"s_add_u32 s{sQ3}, s{sQ3}, {16*3840}")
            for i in (0, 1, 4, 2, 3):
                if i == 2: a(f"s_add_u32 m0, s{sM}, {16384+4096*hf}")
                if i == 4: a(f"s_add_u32 m0, s{sMW}, {1024*hf}")
                a(f"buffer_load_dwordx4 v{VW+i}, {srd(SWQ)}, s{sQ3} offen offset:{1024*(i&3)} lds")
    a("s_waitcnt lgkmcnt(0)")
    stamp(11)
    chunk_x(sROT)
    a(f"s_lshl_b32 s{sT1}, s{sCP}, 2")
    a(f"s_add_u32 s{sT1}, s{sT1}, s{sT0}")
    a(f"s_add_u32 s{sT1}, s{sT1}, 8")
    a(f"s_lshl_b32 s{sT0}, s{sT0}, 1")
    a(f"s_lshl_b32 s{sT4}, s{sCP}, 2")
    a(f"s_add_u32 s{sT0}, s{sT0}, s{sT4}")
    a(f"s_sub_u32 s{sT0}, s{sT0}, 8")
    a(f"s_cmp_ge_u32 s{sIDX}, 16")
    a(f"s_cselect_b32 s{sWB}, s{sT0}, s{sT1}")
    a(f"s_cselect_b32 s{sT4}, 10, 5")
    a(f"s_cselect_b32 s{sT5}, 4, 0x50")
    a(f"s_cselect_b32 s{sT6}, 1, 3")
    a(f"s_cselect_b32 s{sT7}, 2, 1")
    a(f"s_cselect_b32 s{sT0}, 1, 0x50")
    a(f"s_cselect_b32 s{sT1}, 8, 2")
    a(f"s_mulk_i32 s{sWB}, 160")
    a(f"s_mul_i32 s{sT2}, s{sJ}, {32*3840}")
    a(f"s_add_u32 s{sWB}, s{sWB}, s{sT2}")
    a(f"s_lshl_b32 s{sMW}, s{sJ}, 11")
    a(f"s_add_u32 s{sMW}, s{sMW}, 32768")
    a(f"v_lshrrev_b32 v14, 4, v{vL}")
    a(f"v_lshrrev_b32 v15, 1, v{vL}")
    a("v_xor_b32 v15, v15, v14")
    a(f"v_and_b32 v16, 1, v{vL}")
    a("v_mul_u32_u24 v14, 240, v14")
    a(f"v_mad_u32_u24 v14, v16, s{sT7}, v14")
    a("v_and_b32 v17, 1, v15")
    a(f"v_mad_u32_u24 v14, v17, s{sT6}, v14")
    a("v_bfe_u32 v17, v15, 1, 1")
    a(f"v_mad_u32_u24 v14, v17, s{sT5}, v14")
    a("v_bfe_u32 v17, v15, 2, 1")
    a(f"v_mad_u32_u24 v18, v17, s{sT4}, v14")
    a(f"v_lshlrev_b32 v{VW}, 4, v18")
    a(f"v_add_u32 v{VW+1}, {15360-1024}, v{VW}")
    a("v_xor_b32 v17, 1, v17")
    a(f"v_mad_u32_u24 v18, v17, s{sT4}, v14")
    a(f"v_lshlrev_b32 v18, 4, v18")
    a(f"v_add_u32 v{VW+2}, {30720-2048}, v18")
    a(f"v_add_u32 v{VW+3}, {46080-3072}, v18")
    a(f"v_lshrrev_b32 v14, 2, v{vL}")
    a("v_mul_u32_u24 v14, 240, v14")
    a(f"v_mad_u32_u24 v14, v16, s{sT0}, v14")
    a(f"v_lshrrev_b32 v17, 4, v{vL}")
    a(f"v_xor_b32 v17, v17, v{vL}")
    a("v_bfe_u32 v17, v17, 1, 1")
    a(f"v_mad_u32_u24 v14, v17, s{sT4}, v14")
    a(f"v_add_lshl_u32 v{VW+4}, v14, s{sT1}, 4")
    chunk_w(sROT)
    stamp(12)
    def issue(step):
        d = SLOT if step % 3 else (-2 * SLOT & 0xffffffff)
        a(f"s_add_u32 s{sM}, s{sM}, {d}")
        a(f"s_add_u32 s{sMW}, s{sMW}, {d}")
        if step == 8: a(f"s_and_b32 s{sROT}, s{sROT}, 1")
        a(f"s_xor_b32 s{sSTEP}, s{sROT}, {step}")
        if "nodma" in EXP and step >= 2: return
        chunk_x(sSTEP); chunk_w(sSTEP)
    bn = [1]
    def bar(n, nxt=None):
        a(f"s_waitcnt vmcnt({n}) lgkmcnt(0)")
        if "bst" in EXP and "pre" in EXP: stamp(bn[0], True)
        a("s_barrier")
        if "bst" in EXP and "pre" not in EXP: stamp(bn[0], True)
        bn[0] += 1
        if nxt is not None: issue(nxt)
    def g_setup():
        srd_init([SX, SH, SWS, SDBG, SOUT])
        a(f"s_mul_i32 s{sT7}, s{sXCD}, 24")
        a(f"s_add_u32 s{sT7}, s{sT7}, s{sIDX}")
        a(f"s_lshr_b32 s{sQUAD}, s{sT7}, 1")
        a(f"s_add_u32 s{sQUAD}, s{sQUAD}, 64")
        a(f"s_and_b32 s{sT1}, s{sIDX}, 1")
        a(f"s_lshl_b32 s{sT1}, s{sT1}, 1")
        a("s_waitcnt lgkmcnt(0)")
        conv_setup(sJ, sT1)
        s3_setup()
        wo_prep(vL16)
    g_setup()
    issue(1)
    bar(18)
    stamp(1)
    issue(2)
    for c in range(1, 8): bar(18, c + 2)
    a(f"s_mov_b32 s{sEPS}, 0x358637bd")
    wl = wo_list(vL16)
    conv_dfrag()
    bar(18)
    x_loads()
    for x in wl[:6]: a(x)
    a("s_waitcnt vmcnt(8)")
    a("s_barrier")
    stamp(2)
    for x in wl[6:12]: a(x)
    tag_lds(48)
    a("s_branch Lbu")

    a.label("Lworker")
    a(f"s_mul_i32 s{sT7}, s{sXCD}, 24")
    a(f"s_add_u32 s{sT7}, s{sT7}, s{sIDX}")
    a(f"s_lshl_b32 s{sT7}, s{sT7}, 1")
    a(f"s_add_u32 s{sT7}, s{sT7}, s{sW}")
    a(f"s_add_u32 s{sT7}, s{sT7}, 250")
    s0_task(sT7)
    s0_loads()
    stamp(11)
    g_setup()
    a(f"s_mul_i32 s{sT2}, s{sJ}, 4608")
    a(f"s_add_u32 s{sT2}, s{sT2}, {L_UB}")
    fc_addr(46)
    f0_addr(44)
    f0_off(sCG)
    conv_dfrag()
    s0_addr(sT2)
    a(f"s_mov_b32 s{sEPS}, 0x358637bd")
    a("s_setprio 3")
    a("s_barrier")
    stamp(1)
    a("s_waitcnt vmcnt(0)")
    cnt_load(SDBG, vZ, 47)
    s0_compute(lambda p: a("s_barrier") if p == 1 else None, False)
    a("s_setprio 0")
    stamp(12)
    a("s_barrier")
    arr_prep(50, 51)
    a("s_waitcnt vmcnt(4)")
    tag_get(vZ, 47, "landed")
    a(f"v_mov_b32 v52, {L_TAG}")
    a(f"v_mov_b32 v53, s{sTAG}")
    a("ds_write_b32 v52, v53")
    a("s_barrier")
    a("s_waitcnt vmcnt(0)")
    arr_issue(50, 51, f"s{sCG}")
    a(f"s_sub_u32 s{sT0}, s{sJ}, 2")
    zero_pads(sT0)
    zero_pads(sJ)
    a("s_waitcnt lgkmcnt(0)")
    a("s_barrier")
    arr_finish(50, 51, f"s{sCG}", 64)
    a("s_barrier")
    a("s_barrier")
    cnt_load(SWS, 46, 47)
    cnt_load(SWS, 44, 45)
    a("s_barrier")
    a(f"s_sub_u32 s{sT1}, s{sCH}, s{sLC}")
    a(f"s_add_u32 s{sT1}, s{sT1}, s{sT0}")
    a(f"s_lshl_b32 s{sT1}, s{sT1}, 12")
    a(f"s_mul_i32 s{sT2}, s{sT0}, {HSTR}")
    poll(46, 47, "issued")
    a(f"v_cmp_ne_u32 vcc, s{sTAG}, v45")
    a("s_cbranch_vccz Lwe1")
    cnt_load(SWS, 44, 45)
    a.label("Lwe1")
    a("s_barrier")
    def h4():
        a(f"s_add_u32 m0, s{sT2}, {L_HB+128}")
        for i in range(4): a(f"buffer_load_dwordx4 v{vL16}, {srd(SH)}, s{sT1} offen offset:{1024*i} lds")
    def u8():
        a(f"s_lshl_b32 s{sT4}, s{sT0}, 13")
        a(f"s_lshl_b32 s{sT5}, s{sQUAD}, 14")
        a(f"s_add_u32 s{sT5}, s{sT5}, s{sT4}")
        for hf in range(2):
            a(f"s_add_u32 m0, s{sT4}, {L_UD+4096*hf}")
            for i in range(4): a(f"buffer_load_dwordx4 v{vL16}, {srd(SWS)}, s{sT5} offen offset:{1024*i} sc1 lds")
            if hf == 0: a(f"s_add_u32 s{sT5}, s{sT5}, 4096")
    a("s_waitcnt vmcnt(0)")
    a(f"v_cmp_ne_u32 vcc, s{sTAG}, v45")
    h4()
    a("s_cbranch_vccnz Lwlate")
    u8()
    a("s_barrier")
    a("s_branch Lw2")
    a.label("Lwlate")
    a("s_barrier")
    poll(44, 45)
    u8()
    a.label("Lw2")
    stamp(2)
    x_loads()
    for x in wl[:12]: a(x)
    a(f"v_mov_b32 v48, {L_CNT+8}")
    a("s_waitcnt vmcnt(14)")
    lds_arrive(48, 49)
    a.label("Lbu")
    a(f"v_mov_b32 v48, {L_CNT+8}")
    lds_wait(48, 49, 2)
    stamp(3)
    a("s_branch Lconv")

def ctype():
    a.label("Lctype")
    common_scalars()
    a(f"s_mov_b32 s{sQUAD}, s{sCI}")
    a(f"s_cmp_ge_u32 s{sW}, 4")
    a("s_cbranch_scc1 Lcaux")
    a(f"s_lshl_b32 s{sT7}, s{sCI}, 2")
    a(f"s_add_u32 s{sT7}, s{sT7}, s{sW}")
    s0_task(sT7)
    s0_loads()
    srd_init([SX, SH, SWS, SDBG, SOUT])
    zero_pads(sW)
    a(f"s_mov_b32 s{sT1}, 0")
    conv_setup(sW, sT1)
    s3_setup()
    wo_prep(vL16)
    conv_dfrag()
    a(f"s_mul_i32 s{sT2}, s{sW}, 4608")
    a(f"s_add_u32 s{sT2}, s{sT2}, {L_S0C}")
    s0_addr(sT2)
    a("s_waitcnt vmcnt(0)")
    s0_compute()
    stamp(1)
    f0_off(sCG)
    arr_prep(50, 51)
    tag_get(vZ, 47, "none")
    arr_issue(50, 51, f"s{sCG}")
    arr_finish(50, 51, f"s{sCG}", 64)
    stamp(2)
    a("s_branch Lcjoin")

    a.label("Lcaux")
    srd_init([SWO, SWS, SX, SWQ, SGW, SH, SDBG, SOUT])
    a(f"s_sub_u32 s{sUD}, s{sW}, 4")
    a(f"s_mul_i32 s{sVAR}, s{sCI}, 3")
    a(f"s_add_u32 s{sVAR}, s{sVAR}, s{sUD}")
    a(f"s_cmp_ge_u32 s{sUD}, 3")
    a(f"s_cselect_b32 s{sVAR}, 1000, s{sVAR}")
    a(f"s_cmp_ge_u32 s{sVAR}, 160")
    a("s_cbranch_scc1 Lcnorp2")
    sKQ, sF, sCGR = sCHL, sCH, sJ
    a(f"s_lshr_b32 s{sT0}, s{sVAR}, 2")
    a(f"s_and_b32 s{sCGR}, s{sVAR}, 3")
    a(f"s_mul_i32 s{sKQ}, s{sT0}, 52")
    a(f"s_lshr_b32 s{sKQ}, s{sKQ}, 8")
    a(f"s_mul_i32 s{sT1}, s{sKQ}, 5")
    a(f"s_sub_u32 s{sF}, s{sT0}, s{sT1}")
    a(f"s_mul_i32 s{sT0}, s{sF}, 20")
    a(f"s_cmp_eq_u32 s{sF}, 4")
    a(f"s_cselect_b32 s{sT0}, 16, s{sT0}")
    a(f"s_cselect_b32 s{sT2}, 16, 0")
    a(f"s_mul_i32 s{sT1}, s{sKQ}, 80")
    a(f"s_add_u32 s{sT0}, s{sT0}, s{sT1}")
    a(f"s_mul_i32 s{sT0}, s{sT0}, 1280")
    a(f"s_mul_i32 s{sT1}, s{sCGR}, 320")
    a(f"s_add_u32 s{sT0}, s{sT0}, s{sT1}")
    a(f"s_mul_i32 s{sT3}, s{sUD}, 5120")
    a(f"s_add_u32 s{sT3}, s{sT3}, {L_RPC}")
    a("s_waitcnt lgkmcnt(0)")
    for i in range(5):
        a(f"v_add_u32 v14, {64*i}, v{vL}")
        div20(15, 16, 14)
        a("v_lshrrev_b32 v17, 2, v15")
        a(f"v_mad_u32_u24 v15, v17, s{sT2}, v15")
        a("v_mul_u32_u24 v15, 1280, v15")
        a("v_lshl_add_u32 v15, v16, 4, v15")
        a(f"s_add_u32 m0, s{sT3}, {1024*i}")
        a(f"buffer_load_dwordx4 v15, {srd(SWO)}, s{sT0} offen lds")
    a(f"v_lshrrev_b32 v14, 5, v{vL}")
    a(f"v_bfe_u32 v15, v{vL}, 2, 2")
    a("v_lshl_add_u32 v14, v14, 2, v15")
    a("v_mul_u32_u24 v14, 320, v14")
    a(f"v_bfe_u32 v15, v{vL}, 4, 1")
    a("v_lshl_add_u32 v14, v15, 5, v14")
    a(f"v_and_b32 v15, 3, v{vL}")
    a("v_lshl_add_u32 v14, v15, 3, v14")
    a(f"v_add_u32 v14, s{sT3}, v14")
    a(f"s_mul_i32 s{sT0}, s{sKQ}, 5")
    a(f"s_add_u32 s{sT0}, s{sT0}, s{sF}")
    a(f"s_cmp_ge_u32 s{sKQ}, 3")
    a(f"s_cselect_b32 s{sT1}, 10, 0")
    a(f"s_cmp_ge_u32 s{sKQ}, 6")
    a(f"s_cselect_b32 s{sT1}, -15, s{sT1}")
    a(f"s_cselect_b32 s{sT2}, 25, 50")
    a(f"s_add_u32 s{sT0}, s{sT0}, s{sT1}")
    a(f"s_mul_i32 s{sT1}, s{sCGR}, 200")
    a(f"s_add_u32 s{sT0}, s{sT0}, s{sT1}")
    a(f"s_lshl_b32 s{sT0}, s{sT0}, 10")
    a(f"s_add_u32 s{sT0}, s{sT0}, {WS_WOP}")
    a(f"s_lshl_b32 s{sT2}, s{sT2}, 10")
    a(f"s_lshr_b32 s{sT4}, s{sKQ}, 1")
    a(f"s_mul_i32 s{sT4}, s{sT4}, 25")
    a(f"s_and_b32 s{sT5}, s{sKQ}, 1")
    a(f"s_mul_i32 s{sT5}, s{sT5}, 5")
    a(f"s_add_u32 s{sT4}, s{sT4}, s{sT5}")
    a(f"s_add_u32 s{sT4}, s{sT4}, s{sF}")
    a(f"s_add_u32 s{sT4}, s{sT4}, s{sT1}")
    a(f"s_add_u32 s{sT4}, s{sT4}, 115")
    a(f"s_lshl_b32 s{sT4}, s{sT4}, 10")
    a(f"s_add_u32 s{sT4}, s{sT4}, {WS_WOP}")
    a(f"v_lshlrev_b32 v15, 4, v{vL}")
    a("s_waitcnt vmcnt(0)")
    for t in range(5):
        for jh in range(2): a(f"ds_read_b64_tr_b16 {vr(32+4*t+2*jh,2)}, v14 offset:{jh*2560+t*64}")
    a("s_waitcnt lgkmcnt(0)")
    for t in range(4):
        a(f"buffer_store_dwordx4 {vr(32+4*t,4)}, v15, {srd(SWS)}, s{sT0} offen sc1")
        a(f"s_add_u32 s{sT0}, s{sT0}, s{sT2}")
    a(f"buffer_store_dwordx4 {vr(48,4)}, v15, {srd(SWS)}, s{sT4} offen sc1")
    a.label("Lcnorp2")
    a(f"s_cmp_lg_u32 s{sUD}, 3")
    a("s_cbranch_scc1 Lcrz")
    for i in range(4): a(f"v_mov_b32 v{32+i}, 0")
    a(f"v_lshlrev_b32 v15, 4, v{vL}")
    a(f"s_lshl_b32 s{sT0}, s{sCI}, 10")
    a(f"s_add_u32 s{sT0}, s{sT0}, {WS_KV}")
    a("s_waitcnt lgkmcnt(0)")
    a(f"buffer_store_dwordx4 v[32:35], v15, {srd(SWS)}, s{sT0} offen sc1")
    a.label("Lcrz")


    a(f"s_lshl_b32 s{sT0}, s{sCI}, 2")
    a(f"s_add_u32 s{sT0}, s{sT0}, s{sUD}")
    a(f"v_lshrrev_b32 v1, 3, v{vL}")
    a(f"v_and_b32 v2, 7, v{vL}")
    a("v_lshlrev_b32 v3, 4, v2")
    a("v_mul_u32_u24 v4, 1280, v1")
    a("v_add_u32 v4, v4, v3")
    a(f"s_mul_i32 s{sT2}, s{sT0}, {8*1280}")
    arr_prep(146, 147)
    a("v_mov_b32 v6, 0")
    a(f"s_lshl_b32 s{sT3}, s{sXCD}, 8")
    a(f"s_add_u32 s{sT3}, s{sT3}, {WS_FC}")
    a("s_waitcnt lgkmcnt(0)")
    tag_get(6, 7, "none")
    arr_issue(146, 147, f"s{sT3}")
    arr_finish(146, 147, f"s{sT3}", 32)
    stamp(1)
    a(f"s_cmp_lg_u32 s{sW}, 7")
    a("s_cbranch_scc1 Lc5")
    a(f"v_lshlrev_b32 v5, 7, v{vL}")
    a(f"s_mul_i32 s{sT3}, s{sCI}, 7680")
    a(f"s_add_u32 s{sT3}, s{sT3}, {512*3840}")
    a(f"buffer_load_dword v131, v5, {srd(SWQ)}, s{sT3} offen")
    a.label("Lc5")
    for j in (8, 9, 0, 1, 2, 3, 4, 5, 6, 7): a(f"buffer_load_dwordx4 {vr(160+4*j,4)}, v4, {srd(SX)}, s{sT2} offen offset:{128*j}")
    for j in range(10): a(f"buffer_load_dwordx4 {vr(200+4*j,4)}, v3, {srd(SGW)}, 0 offen offset:{128*j}")
    a(f"s_lshl_b32 s{sTB}, s{sT0}, 5")
    a(f"s_add_u32 s{sTB}, s{sTB}, {WS_G}")
    a("v_lshlrev_b32 v130, 2, v1")
    a(f"s_mov_b32 s{sT1}, 0")
    conv_setup(sW, sT1)
    s3_setup()
    wo_prep(vL16)
    conv_dfrag()
    a("v_mov_b32 v128, 0")
    a("v_mov_b32 v129, 0")
    a("s_waitcnt vmcnt(0)")
    for j in range(20):
        a(f"v_dot2c_f32_bf16 v128, v{160+2*j}, v{200+2*j}")
        a(f"v_dot2c_f32_bf16 v129, v{161+2*j}, v{201+2*j}")
    a("v_add_f32 v128, v128, v129")
    for ctl in ("quad_perm:[1,0,3,2]", "quad_perm:[2,3,0,1]", "row_half_mirror"):
        a(f"v_add_f32_dpp v128, v128, v128 {ctl} row_mask:0xf bank_mask:0xf")
    a(f"v_mul_f32 v128, 0xbfb8aa3b, v128")
    a(f"v_exp_f32 v128, v128")
    a(f"v_add_f32 v128, 1.0, v128")
    a(f"v_rcp_f32 v128, v128")
    a("s_mov_b32 exec_lo, 0x01010101")
    a("s_mov_b32 exec_hi, 0x01010101")
    a(f"buffer_store_dword v128, v130, {srd(SWS)}, s{sTB} offen sc1")
    a("s_mov_b64 exec, -1")
    a("s_waitcnt vmcnt(0)")
    a(f"s_lshl_b32 s{sT0}, s{sCI}, 8")
    a(f"s_lshl_b32 s{sT1}, s{sUD}, 2")
    a(f"s_add_u32 s{sT0}, s{sT0}, s{sT1}")
    a(f"s_add_u32 s{sT0}, s{sT0}, {WS_FG}")
    flag_store(50, 51, f"s{sT0}")
    stamp(2)

    a.label("Lcjoin")
    a(f"s_lshl_b32 s{sT1}, s{sCI}, 2")
    h_dma(sW, sT1)
    x_loads()
    a(f"s_cmp_lg_u32 s{sW}, 0")
    a("s_cbranch_scc1 Lc8")
    fc_addr(46)
    f0_addr(44)
    poll(46, 47)
    poll(44, 45)
    a.label("Lc8")
    stamp(11)
    a("s_barrier")
    stamp(12)
    u_dma(sW, 2)
    for x in wo_list(vL16)[:12]: a(x)
    a("s_waitcnt vmcnt(12) lgkmcnt(0)")
    a("s_barrier")
    stamp(3)

def conv_body(tiles):
    seq = []
    for b in range(4):
        if tiles[0] == 0:
            for aa in range(8):
                for ti in (3, 2):
                    d = tiles[ti] - aa
                    if d >= 0:
                        seq.append((ti, ("H", 4 * aa + b, 0), ("U", 4 * d - b)))
                        if b == 0 and aa == 0: seq.append((ti, ("D",), ("U", 4 * d)))
                if aa == 5:
                    seq.append((1, ("H", b, 1), ("U", 4 - b)))
                    if b == 0: seq.append((1, ("D",), ("U", 4)))
                if aa == 6:
                    seq.append((0, ("H", b, 1), ("U", -b)))
                    if b == 0: seq.append((0, ("D",), ("U", 0)))
                    seq.append((1, ("H", 4 + b, 1), ("U", -b)))
        else:
            for aa in range(6):
                for ti in (3, 2, 1, 0):
                    d = tiles[ti] - aa
                    if d >= 0:
                        seq.append((ti, ("H", 4 * aa + b, 0), ("U", 4 * d - b)))
                        if b == 0 and aa == 0: seq.append((ti, ("D",), ("U", 4 * d)))
    assert len(seq) == 76
    last = {}; order = []
    for i, (ti, h, u) in enumerate(seq):
        for k in (u, h):
            if k[0] == "D": continue
            if k not in last: order.append(k)
            last[k] = i
    free = list(range(NPOOL))
    where = {}; done_at = {}
    nds = [0]; li = [0]
    def issue(maxn):
        n = 0
        while li[0] < len(order) and free and n < maxn:
            k = order[li[0]]; li[0] += 1
            bfr = free.pop(0); where[k] = bfr
            r = CPOOL + 4 * bfr
            if k[0] == "U":
                a(f"ds_read_b128 {vr(r,4)}, v{vUo if k[1]&1 else vUe} offset:{(k[1]+3)*512}")
                nds[0] += 1; n += 1
            else:
                a(f"ds_read_b64_tr_b16 {vr(r,2)}, v{vH} offset:{128*k[1]+32}")
                a(f"ds_read_b64_tr_b16 {vr(r+2,2)}, v{vH} offset:{128*k[1]}")
                nds[0] += 2; n += 2
            done_at[k] = nds[0]
    issue(10)
    started = set(); known = 0
    wl = wo_list(vL16); wi = 12
    for i, (ti, h, u) in enumerate(seq):
        needn = max(done_at[k] for k in (u, h) if k[0] != "D")
        if needn > known:
            cnt = min(nds[0] - needn, 15)
            a(f"s_waitcnt lgkmcnt({cnt})")
            known = nds[0] - cnt
        d = vr(CACC + 16 * ti, 16)
        hb = CD if h[0] == "D" else CPOOL + 4 * where[h]
        a(f"v_mfma_f32_32x32x16_bf16 {d}, {vr(CPOOL+4*where[u],4)}, {vr(hb,4)}, {d if ti in started else '0'}")
        started.add(ti)
        for k in (u, h):
            if k[0] != "D" and last[k] == i: free.append(where[k])
        issue(2)
        if i % 3 == 1 and wi < 25: a(wl[wi]); wi += 1
    assert wi == 25

def conv_epi(var):
    runs = [[*range(0, 8)], [*range(8, 16)]] if var == 0 else [[*range(16)]]
    out_g = 7 if var == 0 else 15
    in_g = 8 if var == 0 else 0
    SPL = 96
    a("s_nop 7")
    a("s_nop 3")
    for step in (2, 1, 0):
        a("s_mov_b32 exec_lo, 0")
        a("s_mov_b32 exec_hi, 0x80000000")
        a(f"v_mov_b32 v{SPL+step}, v{CACC+4*out_g+step+1}")
        for run in runs:
            for g in reversed(run):
                src = f"v{CACC+4*(g-1)+step+1}" if g != run[0] else "0"
                a(f"v_mov_b32 v{CACC+4*g+step+1}, {src}")
        if step == 0:
            a(f"ds_write_b96 v{vCS}, {vr(SPL,3)}")
            a("v_mov_b32 v100, 1")
            a(f"ds_add_u32 v{vCN}, v100")
        a("s_mov_b64 exec, -1")
        for g in reversed(range(16)):
            r = CACC + 4 * g + step
            a(f"v_add_f32_dpp v{r}, v{r+1}, v{r} wave_ror:1 row_mask:0xf bank_mask:0xf")
    a(f"v_xor_b32 v101, 16, v{vCS}")
    a(f"v_lshl_add_u32 v101, v{vL}, 2, v101")
    PK = 104
    other = [k for k in range(8) if k != in_g // 2]
    for k in other: a(f"v_cvt_pk_bf16_f32 v{PK+k}, v{CACC+8*k}, v{CACC+8*k+4}")
    oh = 1 - in_g // 8
    a(f"ds_write_b128 v{vCW}, {vr(PK+4*oh,4)} offset:{1024*oh}")
    lds_wait(vCN, 100, 2)
    a("s_mov_b64 exec, 7")
    a("ds_read_b32 v100, v101")
    a("s_waitcnt lgkmcnt(0)")
    a(f"v_add_f32 v{CACC+4*in_g}, v{CACC+4*in_g}, v100")
    a("s_mov_b64 exec, -1")
    k = in_g // 2
    a(f"v_cvt_pk_bf16_f32 v{PK+k}, v{CACC+8*k}, v{CACC+8*k+4}")
    a(f"ds_write_b128 v{vCW}, {vr(PK+4*(1-oh),4)} offset:{1024*(1-oh)}")
    T0, T1 = (0, 6) if var == 0 else (2, 4)
    a(f"s_lshl_b32 s{sT5}, s{sCH}, 6")
    a(f"s_add_u32 s{sT4}, s{sT5}, {WS_Y + T0*8*40960}")
    a(f"s_add_u32 s{sT5}, s{sT5}, {WS_Y + T1*8*40960}")
    a(f"s_lshr_b32 s{sT6}, s{sCH}, 5")
    a(f"s_lshl_b32 s{sT6}, s{sT6}, 8")
    a(f"s_add_u32 s{sT6}, s{sT6}, {WS_FY + var*20*256}")

def conv():
    a.label("Lconv")
    a(f"s_cmp_eq_u32 s{sVAR}, 1")
    a("s_cbranch_scc1 Lconvy")
    conv_body([0, 1, 6, 7])
    stamp(4)
    conv_epi(0)
    a("s_branch Lconve")
    a.label("Lconvy")
    conv_body([2, 3, 4, 5])
    stamp(4)
    conv_epi(1)
    a.label("Lconve")
    for n in range(2):
        a(f"ds_read_b64_tr_b16 {vr(112+4*n,2)}, v{vCT} offset:{1024*n}")
        a(f"ds_read_b64_tr_b16 {vr(114+4*n,2)}, v{vCT} offset:{1024*n+64}")
    arr_prep(100, 101)
    for n in range(2):
        a(f"s_waitcnt lgkmcnt({2-2*n})")
        a(f"buffer_store_dwordx4 {vr(112+4*n,4)}, v{vCY}, {srd(SWS)}, s{sT5 if n else sT4} offen sc1")
    stamp(13)
    a("s_waitcnt vmcnt(0)")
    arr_issue(100, 101, f"s{sT6}")
    arr_finish(100, 101, f"s{sT6}", 32)
    stamp(5)
    a("s_branch Ls3b")

def s3():
    a.label("Ls3")
    x_loads()
    a.label("Ls3b")
    a.c("S3")
    PQ, RAW, KF = 32, 52, 116
    plan = []
    for i in range(4):
        for st in range(2):
            for jh in range(2):
                du0 = 4 * (i + st) + 2 * jh - 5 * i
                plan.append((i, st, jh, du0, 0 <= du0 <= 4, 0 <= du0 + 1 <= 4))
    a(f"buffer_load_dword v{vFT}, v{vFQ}, {srd(SWS)}, 0 offen sc1")
    for (i, st, jh, du0, v0ok, v1ok) in plan:
        if v0ok != v1ok:
            for j in range(4): a(f"v_mov_b32 v{RAW+16*i+8*st+4*jh+j}, 0")
    a(f"s_add_u32 s{sT1}, s{sPQO}, 4096")
    a(f"s_add_u32 s{sT3}, s{sKVO}, {2*KVH}")
    poll(vFQ, vFT, "issued")
    a(f"buffer_load_dword v{vFT}, v{vFK}, {srd(SWS)}, 0 offen sc1")
    for f in range(4): a(f"buffer_load_dwordx4 {vr(PQ+4*f,4)}, v{vL16}, {srd(SWS)}, s{sPQO} offen offset:{1024*f} sc1")
    a(f"buffer_load_dwordx4 {vr(PQ+16,4)}, v{vL16}, {srd(SWS)}, s{sT1} offen sc1")
    a(f"buffer_load_dword v{vG}, v{vGO}, {srd(SWS)}, 0 offen sc1")
    a("s_waitcnt vmcnt(6)")
    poll(vFK, vFT, "landed")
    stamp(6)
    nload = [0] * 4
    for (i, st, jh, du0, v0ok, v1ok) in plan:
        if not (v0ok or v1ok): continue
        off = (i & 1) * KVH + du0 * 336
        part = v0ok != v1ok
        if part: a(f"s_mov_b32 exec_{'hi' if v0ok else 'lo'}, 0")
        a(f"buffer_load_dwordx4 {vr(RAW+16*i+8*st+4*jh,4)}, v{vKO if i&1 else vKE}, {srd(SWS)}, s{sT3 if i>>1 else sKVO} offen offset:{off} sc1")
        if part: a("s_mov_b64 exec, -1")
        nload[i] += 1
    a(f"buffer_load_dword v{vFT}, v{vFY}, {srd(SWS)}, 0 offen sc1")
    rem = sum(nload) + 1
    for i in range(4):
        rem -= nload[i]
        a(f"s_waitcnt vmcnt({rem})")
        kf = KF + 8 * (i & 1)
        for (i2, st, jh, du0, v0ok, v1ok) in plan:
            if i2 != i: continue
            for j in range(2):
                d = kf + 4 * st + 2 * jh + j; s = RAW + 16 * i + 8 * st + 4 * jh + 2 * j
                if v0ok or v1ok: a(f"v_cvt_pk_bf16_f32 v{d}, v{s}, v{s+1}")
                else: a(f"v_mov_b32 v{d}, 0")
        d = vr(RAW + 16 * i, 16)
        a(f"v_mfma_f32_32x32x16_bf16 {d}, {vr(kf,4)}, {vr(PQ+4*i,4)}, 0")
        a(f"v_mfma_f32_32x32x16_bf16 {d}, {vr(kf+4,4)}, {vr(PQ+4*i+4,4)}, {d}")
    OF = 132
    for i in range(4):
        D = RAW + 16 * i
        a(f"v_add_f32 v{D+12}, s{sEPS}, v{D+12}")
        a(f"v_rcp_f32 v{D+12}, v{D+12}")
        for j in range(8): a(f"v_mul_f32 v{D+j}, v{D+j}, v{D+12}")
        for j in range(4): a(f"v_cvt_pk_bf16_f32 v{OF+4*i+j}, v{D+2*j}, v{D+2*j+1}")
        a(f"ds_write_b128 v{vOW}, {vr(OF+4*i,4)} offset:{1024*i}")
        if i & 1 == 0:
            for j in range(4): a(f"v_mul_f32 v{D+8+j}, v{D+8+j}, v{D+12}")
        else:
            for j in range(4): a(f"v_fmac_f32 v{D-8+j}, v{D+8+j}, v{D+12}")
            for j in range(2): a(f"v_cvt_pk_bf16_f32 v{OF+16+2*(i>>1)+j}, v{D-8+2*j}, v{D-8+2*j+1}")
    a(f"ds_write_b128 v{vOW}, {vr(OF+16,4)} offset:4096")
    a(f"s_mov_b32 s{sUD}, 1")
    a(f"s_cmp_ge_u32 s{sW}, 5")
    a("s_cbranch_scc1 Ls3y1")
    a("s_waitcnt vmcnt(0)")
    a(f"v_cmp_ne_u32 vcc, s{sTAG}, v{vFT}")
    a(f"s_mov_b32 m0, s{sYM}")
    a("s_cbranch_vccnz Ls3y0")
    a(f"buffer_load_dwordx4 v{vL16}, {srd(SWS)}, s{sYO} offen sc1 lds")
    a(f"buffer_load_dwordx4 v{vL16}, {srd(SWS)}, s{sYO} offen offset:1024 sc1 lds")
    a("s_branch Ls3y1")
    a.label("Ls3y0")
    a(f"s_mov_b32 s{sUD}, 0")
    a(f"buffer_load_dword v{vFT}, v{vFY}, {srd(SWS)}, 0 offen sc1")
    a.label("Ls3y1")
    if "nog3prio" not in EXP:
        a(f"s_cmp_ge_u32 s{sW}, 4")
        a("s_cbranch_scc1 Ls3y2")
        a("s_setprio 1")
        a.label("Ls3y2")
    a("s_waitcnt lgkmcnt(0)")
    a("s_barrier")
    stamp(7)
    NB = 8; POOL = 32; AP, AR = 64, 80
    def ord_(i): return (vPR, 1024 * i) if i < 15 else (vRR, 1024 * (i - 15))
    for i in range(NB):
        v, o = ord_(i); a(f"ds_read_b128 {vr(POOL+4*i,4)}, v{v} offset:{o}")
    XF = 96
    pre = [f"v_sub_f32 v{vG+2}, 1.0, v{vG}", f"s_mov_b32 s{sT0}, 0xffff0000"]
    for n, xd in enumerate((vXD, vXD2)):
        for j in range(4):
            pre.append(f"v_lshlrev_b32 v{XF+8*n+2*j}, 16, v{xd+j}")
            pre.append(f"v_and_b32 v{XF+8*n+2*j+1}, s{sT0}, v{xd+j}")
        for j in range(8): pre.append(f"v_mul_f32 v{XF+8*n+j}, v{XF+8*n+j}, v{vG+2}")
    issued = NB
    log = list(range(NB))
    for i in range(25):
        pos = log.index(i)
        a(f"s_waitcnt lgkmcnt({min(len(log)-1-pos,15)})")
        d = vr(AP if i < 15 else AR, 16)
        a(f"v_mfma_f32_32x32x16_bf16 {d}, {vr(VWO+4*i,4)}, {vr(POOL+4*(i%NB),4)}, {'0' if i in (0,15) else d}")
        if issued < 25:
            v, o = ord_(issued); a(f"ds_read_b128 {vr(POOL+4*(issued%NB),4)}, v{v} offset:{o}"); log.append(issued); issued += 1
        if i < 12:
            for x in pre[3 * i:3 * i + 3]: a(x)
        if i == 14:
            a(f"s_cmp_eq_u32 s{sUD}, 1")
            a("s_cbranch_scc1 Ls3ny")
            poll(vFY, vFT, "issued")
            a(f"buffer_load_dwordx4 v{vL16}, {srd(SWS)}, s{sYO} offen sc1 lds")
            a(f"buffer_load_dwordx4 v{vL16}, {srd(SWS)}, s{sYO} offen offset:1024 sc1 lds")
            a.label("Ls3ny")
        if 19 <= i < 23:
            q = i - 19
            a(f"ds_write_b128 v{vPW+q}, {vr(AP+4*q,4)}"); log.append(-1)
            a(f"v_add_u32 v{vPW+q}, s{sRD}, v{vPW+q}")
    for q in range(4): a(f"ds_write_b128 v{vPW+q}, {vr(AR+4*q,4)}")
    a("s_waitcnt vmcnt(0) lgkmcnt(0)")
    a("s_barrier")
    stamp(8)
    def f_reads(n, R):
        np_ = 3 + n
        for p in range(np_):
            a(f"ds_read_b128 {vr(R+8*p,4)}, v{vPA} offset:{49152*n+4096*p}")
            a(f"ds_read_b128 {vr(R+8*p+4,4)}, v{vPB} offset:{49152*n+4096*p}")
        a(f"ds_read_b64_tr_b16 {vr(R+32,2)}, v{vYT} offset:{8192*n}")
        a(f"ds_read_b64_tr_b16 {vr(R+34,2)}, v{vYT} offset:{8192*n+256}")
    def f_math(n, R, after):
        np_ = 3 + n
        X = XF + 8 * n; YF = R + 36
        a(f"s_waitcnt lgkmcnt({min(after+2*np_+2-4,15)})")
        for j in range(4): a(f"v_pk_add_f32 {vr(R+2*j,2)}, {vr(R+2*j,2)}, {vr(R+8+2*j,2)}")
        a(f"s_waitcnt lgkmcnt({after+2})")
        for p in range(2, np_):
            for j in range(4): a(f"v_pk_add_f32 {vr(R+2*j,2)}, {vr(R+2*j,2)}, {vr(R+8*p+2*j,2)}")
        a(f"s_waitcnt lgkmcnt({after})")
        for j in range(4):
            a(f"v_lshlrev_b32 v{YF+2*j}, 16, v{R+32+j}")
            a(f"v_and_b32 v{YF+2*j+1}, s{sT0}, v{R+32+j}")
        for j in range(4): a(f"v_pk_mul_f32 {vr(X+2*j,2)}, {vr(X+2*j,2)}, {vr(YF+2*j,2)}")
        for j in range(4): a(f"v_pk_fma_f32 {vr(R+2*j,2)}, {vr(R+2*j,2)}, {vr(vG,2)}, {vr(X+2*j,2)} op_sel_hi:[1,0,1]")
        for j in range(4): a(f"v_cvt_pk_bf16_f32 v{R+32+j}, v{R+2*j}, v{R+2*j+1}")
        a(f"buffer_store_dwordx4 {vr(R+32,4)}, v{vOUT}, {srd(SOUT)}, s{sXOFF} offen offset:{256*n}")
    f_reads(0, 32)
    a(f"s_cmp_lt_u32 s{sW}, 2")
    a("s_cbranch_scc1 Lfin2")
    f_math(0, 32, 0)
    a("s_branch Lfin")
    a.label("Lfin2")
    f_reads(1, 112)
    f_math(0, 32, 10)
    f_math(1, 112, 0)
    a.label("Lfin")
    if DIAG:
        a("s_waitcnt vmcnt(0)")
        stamp(9)
        a(f"s_memtime vcc")
        a("s_waitcnt lgkmcnt(0)")
        a(f"s_mov_b32 s{STS+15}, vcc_lo")
        a("v_mov_b32 v2, 0")
        for i in range(16): a(f"v_writelane_b32 v2, s{STS+i}, {i}")
        a(f"v_lshlrev_b32 v3, 2, v{vL}")
        a(f"s_lshl_b32 s{sT0}, s{sBID}, 3")
        a(f"s_add_u32 s{sT0}, s{sT0}, s{sW}")
        a(f"s_lshl_b32 s{sT0}, s{sT0}, 6")
        a(f"s_add_u32 s{sT0}, s{sT0}, {WS_TS}")
        a("s_mov_b64 exec, 0xffff")
        a(f"buffer_store_dword v2, v3, {srd(SWS)}, s{sT0} offen")
        sp = [e for e in EXP if e.startswith("spin")]
        if sp:
            si, wv, lo, hi = [int(x) for x in sp[0][4:].split("_")]
            a(f"s_cmp_lg_u32 s{sW}, {wv}")
            a("s_cbranch_scc1 Lend")
            a(f"s_cmp_lt_u32 s{sIDX}, {lo}")
            a("s_cbranch_scc1 Lend")
            a(f"s_cmp_ge_u32 s{sIDX}, {hi}")
            a("s_cbranch_scc1 Lend")
            if si < 16:
                if "neg" in EXP: a(f"s_sub_u32 s{sT0}, s{sTAG}, s{STS+si}")
                else: a(f"s_sub_u32 s{sT0}, s{STS+si}, s{sTAG}")
                a(f"s_add_u32 s{sT0}, s{sT0}, 5000")
                a(f"s_and_b32 s{sT0}, s{sT0}, 0x7ffffff")
                a(f"s_min_u32 s{sT0}, s{sT0}, 20000")
            else: a(f"s_mov_b32 s{sT0}, 5000")
            a.label("Lspin")
            a("s_memrealtime vcc")
            a("s_waitcnt lgkmcnt(0)")
            a(f"s_sub_u32 s{sT1}, vcc_lo, s{sTAG}")
            a(f"s_and_b32 s{sT1}, s{sT1}, 0x7ffffff")
            a(f"s_cmp_lt_u32 s{sT1}, s{sT0}")
            a("s_cbranch_scc1 Lspin")
        if "dbgts" in EXP:
            a(f"s_cmp_lg_u32 s{sW}, {int([e for e in EXP if e.startswith('wv')][0][2:])}")
            a("s_cbranch_scc1 Lend")
            a(f"s_cmp_ge_u32 s{sIDX}, 16")
            a("s_cbranch_scc1 Lend")
            a("v_cmp_ne_u32 vcc, 0, v2")
            a(f"v_subrev_u32 v2, s{sTAG}, v2")
            a("v_add_u32 v2, 100, v2")
            a("v_and_b32 v2, 0x7ffffff, v2")
            a("v_cndmask_b32 v2, 0, v2, vcc")
            a("s_mov_b64 exec, 0x3fff")
            a(f"buffer_atomic_umax v2, v3, {srd(SDBG)}, 0 offen offset:4 sc1")
    a.label("Lend")
    a("s_endpgm")

entry(); bwave(); awave(); kva(); qa(); ctype(); conv(); s3()

ref = open("cdna_kernels/%s.s.ref" % NAME).read()
head = [l for l in ref.split("\n") if l.startswith(";") and "@launch" not in l]
out = "\n".join(head) + "\n"
out += "; @launch grid=(256,1,1) block=(512,1,1) lds=%d\n" % LDS_BYTES
out += '.amdgcn_target "amdgcn-amd-amdhsa--gfx950"\n.text\n.globl %s_kernel\n.p2align 8\n.type %s_kernel,@function\n%s_kernel:\n' % (NAME, NAME, NAME)
out += a.text()
out += '''.section .rodata,"a"
.p2align 6
.amdhsa_kernel %s_kernel
  .amdhsa_next_free_vgpr 256
  .amdhsa_next_free_sgpr 102
  .amdhsa_accum_offset 256
  .amdhsa_group_segment_fixed_size 0
  .amdhsa_kernarg_size 104
  .amdhsa_user_sgpr_count 2
  .amdhsa_user_sgpr_kernarg_segment_ptr 1
  .amdhsa_system_sgpr_workgroup_id_x 1
.end_amdhsa_kernel
''' % NAME
dst = [x for x in sys.argv[1:] if not x.startswith("--")]
open(dst[0] if dst else "cdna_kernels/%s.s" % NAME, "w").write(out)
```

```python
import sys
from asmlib import Asm, vr, sr

NAME = "gated_mix__linear_attn_block__ssm_conv_h3__prompt"
DIAG = "--diag" in sys.argv
EXP = [x[6:] for x in sys.argv if x.startswith("--exp=")]

WS_U = 0
WS_PQ = 0x280000
WS_Y = 0x500000
WS_WOP = 0x780000
WS_KV = 0x850000
WS_C = 0x860000
CDELTA = 0x20000
WS_FK = WS_C
WS_FY = WS_C + 32 * 256
WS_F0 = WS_C + 72 * 256
WS_FC = WS_C + 88 * 256
WS_FG = WS_C + 128 * 256
WS_FQ = WS_C + 256 * 256
WS_G = 0x88C000
WS_TS = 0x890000
WS_SIZE = 0x900000
KVH = 1792

SLOT = 36864
L_OFR = 36864
L_KVS = 77824
L_YST = 92160
L_PART = 77824
L_UB = 110592
L_UD = L_UB + 2048
L_HB = 129024
HSTR = 4224
L_SP = 145920
L_CNT = 146048
L_TAG = 146112
L_YT = 146176
L_S0C = 0
L_RPC = 49152
L_GW = L_YT + 10240
LDS_BYTES = L_GW + 2048

SX, SWQ, SWO, SK, SV, SSK, SH, SGW, SOUT, SDBG, SWS = [4 + 4 * i for i in range(11)]
SD = 48
sW, sXCD, sIDX, sRP, sCP, sTAG, sCNT = range(50, 57)
sRB, sCG, sQUAD, sCHL, sLC, sVAR, sCH, sJ, sUD = range(57, 66)
sT0, sT1, sT2, sT3, sT4, sT5, sT6, sT7 = range(66, 74)
sLOG = 74
sCI = 76
sDV = 77
STS = 80
sXOFF, sPQO, sKVO, sTB, sYO, sYM = 96, 97, 98, 99, 100, 101
sCHB = 65
sRD = 3
sWOO = 2
sEPS = 79
sBID = 78
def srd(b): return sr(b, 4)

vL = 0
VWO = 156
vL16, vOW, vPR, vRR, vPW = 1, 2, 3, 4, 5
vKE, vKO, vFK, vFY, vZ, vOUT, vPA, vPB, vYT, vFT, vGO = 9, 10, 11, 12, 13, 14, 15, 16, 17, 18, 19
vXD, vG, vXD2 = 20, 24, 28
vFQ, vFE = 27, 25

a = Asm()
BST = [None]
def stamp(i, force=False):
    if "bst" in EXP and not force and i not in (0, 10): return
    if DIAG:
        a(f"{'s_memtime' if 'cyc' in EXP else 's_memrealtime'} vcc")
        a("s_waitcnt lgkmcnt(0)")
        a(f"s_mov_b32 s{STS+i}, vcc_lo")

def poll(vaddr, vdst, state="none", sleep=2):
    L = a.newlabel("Lpoll"); D = a.newlabel("Lpd")
    if state != "none":
        if state == "issued": a("s_waitcnt vmcnt(0)")
        a(f"v_cmp_ne_u32 vcc, s{sTAG}, v{vdst}")
        a(f"s_cbranch_vccz {D}")
    a(f"s_mov_b32 s{sCNT}, 0x20000")
    a.label(L)
    a(f"buffer_load_dword v{vdst}, v{vaddr}, {srd(SWS)}, 0 offen sc1")
    a("s_waitcnt vmcnt(0)")
    a(f"v_cmp_ne_u32 vcc, s{sTAG}, v{vdst}")
    a(f"s_cbranch_vccz {D}")
    if sleep: a(f"s_sleep {sleep}")
    a(f"s_sub_u32 s{sCNT}, s{sCNT}, 1")
    a(f"s_cbranch_scc0 {L}")
    a.label(D)

def cnt_load(S, vaddr, vdst):
    a(f"buffer_load_dword v{vdst}, v{vaddr}, {srd(S)}, 0 offen sc1")

def tag_get(vz, vdst, state="issued"):
    L = a.newlabel("Ltag"); D = a.newlabel("Ltd")
    if state != "none":
        if state == "issued": a("s_waitcnt vmcnt(0)")
        a(f"v_readfirstlane_b32 s{sTAG}, v{vdst}")
        a(f"s_cmp_lg_u32 s{sTAG}, 0")
        a(f"s_cbranch_scc1 {D}")
    a(f"s_mov_b32 s{sCNT}, 0x20000")
    a.label(L)
    a(f"buffer_load_dword v{vdst}, v{vz}, {srd(SDBG)}, 0 offen sc1")
    a("s_waitcnt vmcnt(0)")
    a(f"v_readfirstlane_b32 s{sTAG}, v{vdst}")
    a(f"s_cmp_lg_u32 s{sTAG}, 0")
    a(f"s_cbranch_scc1 {D}")
    a("s_sleep 2")
    a(f"s_sub_u32 s{sCNT}, s{sCNT}, 1")
    a(f"s_cbranch_scc0 {L}")
    a.label(D)

def tag_lds(vtmp):
    a(f"v_mov_b32 v{vtmp}, {L_TAG}")
    a(f"ds_read_b32 v{vtmp}, v{vtmp}")
    a("s_waitcnt lgkmcnt(0)")
    a(f"v_readfirstlane_b32 s{sTAG}, v{vtmp}")

def arr_prep(vt0, vt1):
    a(f"v_mov_b32 v{vt0}, {CDELTA}")
    a(f"v_mov_b32 v{vt1}, 1")
def arr_issue(vt0, vt1, soff):
    a("s_mov_b64 exec, 1")
    a(f"buffer_atomic_add v{vt1}, v{vt0}, {srd(SWS)}, {soff} offen sc0 sc1")
    a("s_mov_b64 exec, -1")
def arr_finish(vt0, vt1, soff, n, wait=0):
    D = a.newlabel("Lal")
    a(f"s_waitcnt vmcnt({wait})")
    a(f"v_readfirstlane_b32 s{sT7}, v{vt1}")
    a(f"s_cmp_lg_u32 s{sT7}, {n-1}")
    a(f"s_cbranch_scc1 {D}")
    flag_store(vt0, vt1, soff)
    a.label(D)
def flag_store(vt0, vt1, soff):
    a(f"v_mov_b32 v{vt0}, 0")
    a(f"v_mov_b32 v{vt1}, s{sTAG}")
    a("s_mov_b64 exec, 1")
    a(f"buffer_store_dword v{vt1}, v{vt0}, {srd(SWS)}, {soff} offen sc1")
    a("s_mov_b64 exec, -1")

def lds_arrive(vaddr, vtmp):
    a(f"v_mov_b32 v{vtmp}, 1")
    a("s_mov_b64 exec, 1")
    a(f"ds_add_u32 v{vaddr}, v{vtmp}")
    a("s_mov_b64 exec, -1")
def lds_wait(vaddr, vtmp, target):
    L = a.newlabel("Lls"); D = a.newlabel("Lld")
    a(f"s_mov_b32 s{sCNT}, 0x400000")
    a.label(L)
    a(f"ds_read_b32 v{vtmp}, v{vaddr}")
    a("s_waitcnt lgkmcnt(0)")
    a(f"v_readfirstlane_b32 s{sT7}, v{vtmp}")
    a(f"s_cmp_ge_u32 s{sT7}, {target}")
    a(f"s_cbranch_scc1 {D}")
    a(f"s_sub_u32 s{sCNT}, s{sCNT}, 1")
    a(f"s_cbranch_scc0 {L}")
    a.label(D)

def div20(vq, vr_, vp):
    a(f"v_mul_u32_u24 v{vq}, 3277, v{vp}")
    a(f"v_lshrrev_b32 v{vq}, 16, v{vq}")
    a(f"v_mul_u32_u24 v{vr_}, 20, v{vq}")
    a(f"v_sub_u32 v{vr_}, v{vp}, v{vr_}")
for p in range(1000): assert (p * 3277) >> 16 == p // 20

SIZES = {SX: 2621440, SWQ: 2457600, SWO: 819200, SK: 2621440, SV: 2621440, SSK: 5120, SH: 2621440, SGW: 1280, SOUT: 2621440, SDBG: 256, SWS: WS_SIZE}
def srd_init(lst):
    for s in lst:
        a(f"s_mov_b32 s{s+2}, {SIZES[s]}")
        a(f"s_mov_b32 s{s+3}, 0x20000")
def common_scalars():
    a(f"s_mov_b32 s{sLOG}, 0x3fb8aa3b")
    a(f"s_mov_b32 s{sLOG+1}, 0x3fb8aa3b")
    a(f"s_mov_b32 s{sEPS}, 0x358637bd")
    a(f"s_and_b32 s{sT0}, s{sIDX}, 7")
    a(f"s_lshl_b32 s{sCI}, s{sXCD}, 3")
    a(f"s_add_u32 s{sCI}, s{sCI}, s{sT0}")

def entry():
    a.label("Lentry")
    a(f"s_cmp_ge_u32 s2, 256")
    a("s_cbranch_scc1 Lend")
    if DIAG: a(f"s_memrealtime {sr(sT6,2)}")
    a(f"s_getpc_b64 {sr(sT0,2)}")
    a.label("Lpcref")
    a(f"s_lshr_b32 s{sIDX}, s2, 3")
    a(f"s_mul_i32 s{sT2}, s{sIDX}, 9")
    a("v_min_u32 v1, 8, v0")
    a(f"v_add_lshl_u32 v1, v1, s{sT2}, 7")
    a("v_min_u32 v1, Lend-Lpcref, v1")
    a(f"global_load_dword v255, v1, {sr(sT0,2)}")
    for s, off in ((SX, 0), (SWQ, 8), (SK, 32), (SV, 40), (SSK, 48), (SWS, 96), (SDBG, 88), (SH, 56), (SWO, 16), (SGW, 72), (SOUT, 80), (SD, 64)):
        a(f"s_load_dwordx2 {sr(s,2)}, s[0:1], {off}")
    a("v_lshrrev_b32 v1, 6, v0")
    a(f"v_and_b32 v{vL}, 63, v0")
    a(f"v_readfirstlane_b32 s{sW}, v1")
    a(f"s_and_b32 s{sXCD}, s2, 7")
    a(f"s_and_b32 s{sRP}, s2, 3")
    a(f"s_bfe_u32 s{sCP}, s2, 0x10002")
    a(f"s_mov_b32 s{sBID}, s2")
    a(f"s_and_b32 s{sT0}, s{sIDX}, 3")
    a(f"s_lshl_b32 s{sRB}, s{sRP}, 2")
    a(f"s_add_u32 s{sRB}, s{sRB}, s{sT0}")
    if DIAG:
        for i in range(16): a(f"s_mov_b32 s{STS+i}, 0")
        stamp(0)
        a(f"s_mov_b32 s{STS+10}, s{sT6}")
        a(f"s_memtime vcc")
        a("s_waitcnt lgkmcnt(0)")
        a(f"s_mov_b32 s{STS+14}, vcc_lo")
    a(f"s_cmp_ge_u32 s{sIDX}, 24")
    a("s_cbranch_scc1 Lctype")
    a(f"s_cmp_lt_u32 s{sW}, 4")
    a("s_cbranch_scc1 Lawave")

def s3_setup(split=None):
    a.c("S3 setup")
    sR3, sC3 = sT2, sT3
    a(f"s_lshr_b32 s{sT0}, s{sIDX}, 1")
    a(f"s_lshl_b32 s{sR3}, s{sRP}, 4")
    a(f"s_add_u32 s{sR3}, s{sR3}, s{sT0}")
    a(f"s_and_b32 s{sT0}, s{sIDX}, 1")
    a(f"s_lshl_b32 s{sC3}, s{sCP}, 1")
    a(f"s_add_u32 s{sC3}, s{sC3}, s{sT0}")
    a(f"v_lshlrev_b32 v{vL16}, 4, v{vL}")
    a(f"v_mov_b32 v{vZ}, 0")
    a(f"v_lshrrev_b32 v24, 4, v{vL}")
    a(f"v_and_b32 v25, 3, v{vL}")
    a(f"v_bfe_u32 v26, v{vL}, 2, 2")
    a(f"s_and_b32 s{sT0}, s{sW}, 1")
    a(f"s_lshl_b32 s{sT1}, s{sT0}, 4")
    a("v_lshl_add_u32 v27, v24, 2, v25")
    a(f"v_add_u32 v27, s{sT1}, v27")
    a(f"v_mul_u32_u24 v{vOUT}, 1280, v27")
    a(f"v_lshl_add_u32 v{vOUT}, v26, 4, v{vOUT}")
    a(f"s_mul_i32 s{sXOFF}, s{sR3}, 40960")
    a(f"s_mul_i32 s{sT4}, s{sC3}, 320")
    a(f"s_add_u32 s{sYO}, s{sXOFF}, {WS_Y}")
    a(f"s_add_u32 s{sXOFF}, s{sXOFF}, s{sT4}")
    a(f"s_lshr_b32 s{sT4}, s{sW}, 1")
    a(f"s_lshl_b32 s{sT5}, s{sT4}, 6")
    a(f"s_add_u32 s{sXOFF}, s{sXOFF}, s{sT5}")
    a(f"s_lshl_b32 s{sT5}, s{sR3}, 7")
    a(f"s_add_u32 s{sT5}, s{sT5}, {WS_G}")
    a(f"v_lshlrev_b32 v{vGO}, 2, v27")
    a(f"v_add_u32 v{vGO}, s{sT5}, v{vGO}")
    a(f"v_bfe_u32 v{vPA}, v27, 1, 1")
    a(f"v_and_b32 v{vPB}, 1, v27")
    a(f"v_lshl_or_b32 v{vPA}, v{vPB}, 1, v{vPA}")
    a(f"v_and_or_b32 v{vPA}, v27, 4, v{vPA}")
    a(f"v_lshlrev_b32 v{vPB}, 1, v26")
    a(f"v_xor_b32 v{vPA}, v{vPA}, v{vPB}")
    a(f"v_lshlrev_b32 v{vPA}, 4, v{vPA}")
    a(f"v_lshl_add_u32 v{vPA}, v27, 7, v{vPA}")
    a(f"s_mul_i32 s{sT5}, s{sT4}, 12288")
    a(f"s_add_u32 s{sT5}, s{sT5}, {L_PART}")
    a(f"v_add_u32 v{vPA}, s{sT5}, v{vPA}")
    a(f"v_xor_b32 v{vPB}, 16, v{vPA}")
    a(f"v_lshl_add_u32 v{vYT}, v25, 3, v26")
    a(f"v_lshlrev_b32 v{vYT}, 6, v{vYT}")
    a(f"v_lshl_add_u32 v{vYT}, v24, 3, v{vYT}")
    a(f"s_lshl_b32 s{sT4}, s{sT4}, 11")
    a(f"s_lshl_b32 s{sT1}, s{sT1}, 1")
    a(f"s_add_u32 s{sT4}, s{sT4}, s{sT1}")
    a(f"s_add_u32 s{sT4}, s{sT4}, {L_YT}")
    a(f"v_add_u32 v{vYT}, s{sT4}, v{vYT}")
    if split: split(0)
    a(f"v_and_b32 v24, 31, v{vL}")
    a(f"v_lshrrev_b32 v25, 5, v{vL}")
    a(f"v_bfe_u32 v{vPW}, v24, 1, 1")
    a("v_and_b32 v26, 1, v24")
    a(f"v_lshl_or_b32 v{vPW}, v26, 1, v{vPW}")
    a(f"v_and_or_b32 v{vPW}, v24, 4, v{vPW}")
    a(f"v_xor_b32 v{vPW}, v{vPW}, v25")
    a(f"v_lshlrev_b32 v{vPW}, 4, v{vPW}")
    a(f"v_lshl_add_u32 v{vPW}, v24, 7, v{vPW}")
    a(f"s_lshl_b32 s{sT4}, s{sT0}, 12")
    a(f"s_add_u32 s{sT5}, s{sT5}, s{sT4}")
    a(f"v_add_u32 v{vPW}, s{sT5}, v{vPW}")
    for q in range(1, 4): a(f"v_xor_b32 v{vPW+q}, {32*q}, v{vPW}")
    a(f"s_mul_i32 s{sT4}, s{sW}, 12288")
    a(f"s_add_u32 s{sT4}, s{sT4}, {L_PART+8192}")
    a(f"s_lshl_b32 s{sT1}, s{sW}, 12")
    a(f"s_add_u32 s{sT1}, s{sT1}, {L_PART+49152-16384}")
    a(f"s_cmp_lt_u32 s{sW}, 4")
    a(f"s_cselect_b32 s{sT4}, s{sT4}, s{sT1}")
    a(f"s_sub_u32 s{sRD}, s{sT4}, s{sT5}")
    a(f"s_sub_u32 s{sT1}, s{sW}, 4")
    a(f"s_cmp_lt_u32 s{sW}, 4")
    a(f"s_cselect_b32 s{sT1}, 3, s{sT1}")
    a(f"s_mul_i32 s{sT1}, s{sT1}, {10*1024}")
    a(f"s_add_u32 s{sT1}, s{sT1}, {L_OFR}")
    a(f"v_add_u32 v{vRR}, s{sT1}, v{vL16}")
    a(f"s_mul_i32 s{sT1}, s{sT0}, {15*1024}")
    a(f"s_add_u32 s{sT1}, s{sT1}, {L_OFR}")
    a(f"v_add_u32 v{vPR}, s{sT1}, v{vL16}")
    a(f"s_mul_i32 s{sT1}, s{sW}, 5120")
    a(f"s_add_u32 s{sT4}, s{sT1}, {L_OFR}")
    a(f"v_add_u32 v{vOW}, s{sT4}, v{vL16}")
    a(f"s_add_u32 s{sPQO}, s{sYO}, s{sT1}")
    a(f"s_add_u32 s{sPQO}, s{sPQO}, {(WS_PQ-WS_Y)&0xffffffff}")
    if split: split(1)
    a("v_mul_u32_u24 v25, 336, v25")
    a("v_min_u32 v26, 20, v24")
    a("v_lshl_add_u32 v26, v26, 4, v25")
    a("v_lshrrev_b32 v27, 2, v24")
    a(f"v_mov_b32 v{vFT}, 0x7f000000")
    a("v_cmp_eq_u32 vcc, 5, v27")
    a(f"v_subrev_u32 v{vKO}, 4, v24")
    a(f"v_lshl_add_u32 v{vKO}, v{vKO}, 4, v25")
    a(f"v_cndmask_b32 v{vKE}, v26, v{vFT}, vcc")
    a(f"v_cndmask_b32 v{vKO}, v26, v{vKO}, vcc")
    a("v_cmp_eq_u32 vcc, 4, v27")
    a(f"s_mul_i32 s{sKVO}, s{sW}, {4*KVH}")
    a(f"s_add_u32 s{sKVO}, s{sKVO}, {WS_KV}")
    a(f"v_cndmask_b32 v{vKO}, v{vKO}, v{vFT}, vcc")
    a(f"s_lshr_b32 s{sT1}, s{sR3}, 1")
    a(f"s_lshl_b32 s{sT1}, s{sT1}, 3")
    a(f"s_add_u32 s{sT1}, s{sT1}, s{sW}")
    a(f"s_lshl_b32 s{sT1}, s{sT1}, 8")
    a(f"s_add_u32 s{sT1}, s{sT1}, {WS_FQ}")
    a(f"s_lshl_b32 s{sT4}, s{sR3}, 8")
    a(f"s_add_u32 s{sT4}, s{sT4}, {WS_FG}")
    a(f"v_lshlrev_b32 v26, 2, v{vL}")
    a(f"v_add_u32 v26, s{sT4}, v26")
    a(f"v_cmp_gt_u32 vcc, 4, v{vL}")
    a(f"v_mov_b32 v{vFQ}, s{sT1}")
    a(f"v_cndmask_b32 v{vFQ}, v{vFQ}, v26, vcc")
    a(f"s_lshl_b32 s{sT1}, s{sW}, 10")
    a(f"s_add_u32 s{sT1}, s{sT1}, {WS_FK}")
    a(f"v_and_b32 v{vFK}, 3, v{vL}")
    a(f"v_lshlrev_b32 v{vFK}, 8, v{vFK}")
    a(f"v_add_u32 v{vFK}, s{sT1}, v{vFK}")
    a(f"s_lshr_b32 s{sT1}, s{sR3}, 3")
    a(f"s_add_u32 s{sT1}, s{sT1}, 2")
    a(f"s_bfe_u32 s{sT1}, s{sT1}, 0x10002")
    a(f"s_mul_i32 s{sT1}, s{sT1}, 20")
    a(f"s_mul_i32 s{sT4}, s{sC3}, 5")
    a(f"s_min_u32 s{sT5}, s{sW}, 4")
    a(f"s_add_u32 s{sT4}, s{sT4}, s{sT5}")
    a(f"s_add_u32 s{sT1}, s{sT1}, s{sT4}")
    a(f"s_lshl_b32 s{sT1}, s{sT1}, 8")
    a(f"s_add_u32 s{sT1}, s{sT1}, {WS_FY}")
    a(f"v_mov_b32 v{vFY}, s{sT1}")
    a(f"s_lshl_b32 s{sT4}, s{sT4}, 11")
    a(f"s_add_u32 s{sYO}, s{sYO}, s{sT4}")
    a(f"s_lshl_b32 s{sYM}, s{sT5}, 11")
    a(f"s_add_u32 s{sYM}, s{sYM}, {L_YT}")

def x_loads():
    a(f"buffer_load_dwordx4 {vr(vXD,4)}, v{vOUT}, {srd(SX)}, s{sXOFF} offen")
    a(f"buffer_load_dwordx4 {vr(vXD2,4)}, v{vOUT}, {srd(SX)}, s{sXOFF} offen offset:256")

def wo_prep(vtmp):
    a(f"s_and_b32 s{sT4}, s{sIDX}, 1")
    a(f"s_lshl_b32 s{sT5}, s{sCP}, 1")
    a(f"s_add_u32 s{sT4}, s{sT4}, s{sT5}")
    a(f"s_lshl_b32 s{sT4}, s{sT4}, 3")
    a(f"s_add_u32 s{sT4}, s{sT4}, s{sW}")
    a(f"s_mul_i32 s{sT4}, s{sT4}, 25600")
    a(f"s_add_u32 s{sWOO}, s{sT4}, {WS_WOP}")
    a(f"v_lshlrev_b32 v{vtmp}, 4, v{vL}")
def wo_list(vtmp, order=None):
    out = []
    for i in range(25):
        t = f"buffer_load_dwordx4 {vr(VWO+4*i,4)}, v{vtmp}, {srd(SWS)}, s{sWOO} offen offset:{1024*(i&3)} sc1"
        if (i & 3) == 3: t += f"\ns_add_u32 s{sWOO}, s{sWOO}, 4096"
        out.append(t)
    return out

S0B = 156
def s0_task(st):
    a(f"s_mul_i32 s{sTB}, s{st}, 6554")
    a(f"s_lshr_b32 s{sTB}, s{sTB}, 16")
    a(f"s_mul_i32 s{sCHB}, s{sTB}, 10")
    a(f"s_sub_u32 s{sCHB}, s{st}, s{sCHB}")
for t in range(640): assert (t * 6554) >> 16 == t // 10

def s0_loads():
    a.c("S0 loads")
    B = S0B
    a(f"v_lshrrev_b32 v{B+1}, 3, v{vL}")
    a(f"v_and_b32 v{B+2}, 7, v{vL}")
    a(f"v_mul_u32_u24 v{B+3}, 5120, v{B+1}")
    a(f"v_lshl_add_u32 v{B+3}, v{B+2}, 4, v{B+3}")
    a(f"s_mul_i32 s{sT0}, s{sTB}, 40960")
    a(f"s_lshl_b32 s{sT1}, s{sCHB}, 7")
    a(f"s_add_u32 s{sT0}, s{sT0}, s{sT1}")
    a(f"v_add_u32 v{B+64}, s{sT0}, v{B+3}")
    a(f"v_subrev_u32 v{B+65}, 3840, v{B+64}")
    a(f"v_lshlrev_b32 v{B+66}, 6, v{B+2}")
    a(f"s_lshl_b32 s{sT1}, s{sCHB}, 9")
    srd_init([SK, SV, SSK])
    a("s_waitcnt lgkmcnt(0)")
    for i in range(4): a(f"buffer_load_dwordx4 {vr(B+16+4*i,4)}, v{B+64}, {srd(SK)}, 0 offen offset:{1280*i}")
    for i in range(3): a(f"buffer_load_dwordx4 {vr(B+4+4*i,4)}, v{B+65}, {srd(SK)}, 0 offen offset:{1280*i}")
    for i in range(4): a(f"buffer_load_dwordx4 {vr(B+32+4*i,4)}, v{B+64}, {srd(SV)}, 0 offen offset:{1280*i}")
    for i in range(4): a(f"buffer_load_dwordx4 {vr(B+48+4*i,4)}, v{B+66}, {srd(SSK)}, s{sT1} offen offset:{16*i}")

def s0_addr(s_scr):
    B = S0B
    a(f"v_mul_u32_u24 v{B+67}, 576, v{B+1}")
    a(f"v_lshl_add_u32 v{B+67}, v{B+2}, 4, v{B+67}")
    a(f"v_add_u32 v{B+67}, s{s_scr}, v{B+67}")
    a(f"v_and_b32 v{B+68}, 15, v{vL}")
    a(f"v_mul_u32_u24 v{B+69}, 144, v{B+68}")
    a(f"v_lshrrev_b32 v{B+70}, 4, v{vL}")
    a(f"v_lshl_add_u32 v{B+69}, v{B+70}, 3, v{B+69}")
    a(f"v_add_u32 v{B+69}, s{s_scr}, v{B+69}")
    a(f"s_and_b32 s{sT0}, s{sTB}, 3")
    a(f"v_xor_b32 v{B+68}, s{sT0}, v{B+68}")
    a(f"v_lshlrev_b32 v{B+68}, 4, v{B+68}")
    a(f"v_lshl_add_u32 v{B+68}, v{B+70}, 14, v{B+68}")
    a(f"s_lshl_b32 s{sT0}, s{sCHB}, 18")
    a(f"s_lshl_b32 s{sT1}, s{sTB}, 8")
    a(f"s_add_u32 s{sT0}, s{sT0}, s{sT1}")
    a(f"s_mov_b32 s{sT1}, 0xffff0000")

def s0_compute(split=None, pk=True):
    a.c("S0 compute")
    B = S0B
    KF, VF, WF, AC, UO = 112, 126, 134, B + 88, B + 72
    for p in range(4):
        for cc in range(2):
            c = 2 * p + cc
            for h in range(2):
                a(f"v_lshlrev_b32 v{WF+4*h+cc}, 16, v{B+48+2*c+h}")
                a(f"v_and_b32 v{WF+4*h+2+cc}, s{sT1}, v{B+48+2*c+h}")
        for r in range(7):
            a(f"v_lshlrev_b32 v{KF+2*r}, 16, v{B+4+4*r+p}")
            a(f"v_and_b32 v{KF+2*r+1}, s{sT1}, v{B+4+4*r+p}")
        for r in range(4):
            a(f"v_lshlrev_b32 v{VF+2*r}, 16, v{B+32+4*r+p}")
            a(f"v_and_b32 v{VF+2*r+1}, s{sT1}, v{B+32+4*r+p}")
        if pk:
            for i in range(4): a(f"v_pk_mul_f32 {vr(AC+2*i,2)}, {vr(KF+2*(i+3),2)}, {vr(WF,2)}")
            for d in range(1, 4):
                for i in range(4): a(f"v_pk_fma_f32 {vr(AC+2*i,2)}, {vr(KF+2*(i+3-d),2)}, {vr(WF+2*d,2)}, {vr(AC+2*i,2)}")
            for i in range(4): a(f"v_pk_mul_f32 {vr(AC+2*i,2)}, {vr(AC+2*i,2)}, {vr(VF+2*i,2)}")
        else:
            for i in range(8): a(f"v_mul_f32 v{AC+i}, v{KF+6+i}, v{WF+(i&1)}")
            for d in range(1, 4):
                for i in range(8): a(f"v_fmac_f32 v{AC+i}, v{KF+6+i-2*d}, v{WF+2*d+(i&1)}")
            for i in range(8): a(f"v_mul_f32 v{AC+i}, v{AC+i}, v{VF+i}")
        for i in range(4): a(f"v_cvt_pk_bf16_f32 v{UO+4*i+p}, v{AC+2*i}, v{AC+2*i+1}")
        if split: split(p)
    for i in range(4): a(f"ds_write_b128 v{B+67}, {vr(UO+4*i,4)} offset:{144*i}")
    for j in range(4):
        a(f"ds_read_b64_tr_b16 {vr(B+4+4*j,2)}, v{B+69} offset:{32*j}")
        a(f"ds_read_b64_tr_b16 {vr(B+6+4*j,2)}, v{B+69} offset:{32*j+2304}")
    for j in range(4):
        a(f"s_waitcnt lgkmcnt({6-2*j})")
        a(f"buffer_store_dwordx4 {vr(B+4+4*j,4)}, v{B+68}, {srd(SWS)}, s{sT0} offen sc1")
        if j < 3: a(f"s_add_u32 s{sT0}, s{sT0}, 65536")

def f0_off(sd):
    a(f"s_lshl_b32 s{sd}, s{sCHB}, 8")
    a(f"s_add_u32 s{sd}, s{sd}, {WS_F0}")

ACC = 32
FB = [112, 156]
vX0, vX1, vWA, vWX = 148, 149, 150, 154
vA1, vA2, vC16, vG4 = 16, 17, 18, 19
sC, sSL = sT2, sT3

def a_setup():
    a.c("A-wave address setup")
    a(f"s_and_b32 s{sT0}, s{sW}, 1")
    a(f"s_lshr_b32 s{sT1}, s{sW}, 1")
    a(f"v_and_b32 v{vC16}, 15, v{vL}")
    a(f"v_lshrrev_b32 v{vG4}, 4, v{vL}")
    a(f"v_lshrrev_b32 v8, 1, v{vC16}")
    a(f"v_xor_b32 v8, v{vG4}, v8")
    a(f"v_lshlrev_b32 v8, 4, v8")
    a(f"v_lshl_add_u32 v8, v{vC16}, 7, v8")
    a(f"s_lshl_b32 s{sT4}, s{sT1}, 13")
    a(f"v_add_u32 v{vX0}, s{sT4}, v8")
    a(f"v_xor_b32 v{vX1}, 64, v{vX0}")
    a(f"v_bfe_u32 v8, v{vL}, 2, 2")
    a(f"v_lshl_add_u32 v9, v{vG4}, 3, v8")
    a(f"v_and_b32 v10, 1, v{vG4}")
    a(f"v_xor_b32 v10, s{sT0}, v10")
    a(f"v_and_b32 v11, 3, v{vL}")
    a("v_lshlrev_b32 v11, 3, v11")
    a(f"v_lshl_add_u32 v{vWX}, v9, 6, v11")
    a(f"v_lshl_add_u32 v{vWX}, v10, 5, v{vWX}")
    a(f"v_add_u32 v{vWX}, 32768, v{vWX}")
    a("v_lshl_or_b32 v8, v10, 2, v8")
    a("v_lshl_add_u32 v8, v8, 5, v11")
    a("v_lshl_add_u32 v8, v9, 8, v8")
    a(f"v_add_u32 v{vWA}, 16384, v8")
    for tt in range(1, 4): a(f"v_xor_b32 v{vWA+tt}, {32*tt}, v{vWA}")

def a_reads(buf, ks):
    b = FB[buf]
    xs = [f"ds_read_b128 {vr(b+4*rt,4)}, v{vX1 if ks else vX0} offset:{2048*rt}" for rt in range(4)]
    ws = []
    for tt in range(5):
        for sec in range(2):
            if tt < 4: ws.append(f"ds_read_b64_tr_b16 {vr(b+16+4*tt+2*sec,2)}, v{vWA+tt} offset:{ks*8192+sec*1024}")
            else: ws.append(f"ds_read_b64_tr_b16 {vr(b+16+4*tt+2*sec,2)}, v{vWX} offset:{ks*2048+sec*256}")
    return [xs[0], ws[0], ws[1], xs[1], ws[2], ws[3], xs[2], ws[4], ws[5], xs[3]] + ws[6:]

def acc(rt, tt): return ACC + 4 * (rt * 5 + tt)

def a_mfmas(buf, qtype, order=None):
    b = FB[buf]
    out = []
    for (rt, tt) in (order or [(rt, tt) for tt in range(5) for rt in range(4)]):
        d = vr(acc(rt, tt), 4)
        xf = vr(b + 4 * rt, 4); wf = vr(b + 16 + 4 * tt, 4)
        A, B = (wf, xf) if qtype else (xf, wf)
        out.append(f"v_mfma_f32_16x16x32_bf16 {d}, {A}, {B}, {d}")
    return out

def interleave(mf, rd):
    j = 0
    for i, m in enumerate(mf):
        a(m)
        if j < len(rd): a(rd[j]); j += 1
    while j < len(rd): a(rd[j]); j += 1

def a_s0_loads():
    D = a.newlabel("Las")
    a(f"s_cmp_ge_u32 s{sW}, 2")
    a(f"s_cbranch_scc1 {D}")
    a(f"s_mul_i32 s{sT7}, s{sXCD}, 24")
    a(f"s_add_u32 s{sT7}, s{sT7}, s{sIDX}")
    a(f"s_lshl_b32 s{sT7}, s{sT7}, 1")
    a(f"s_add_u32 s{sT7}, s{sT7}, s{sW}")
    a(f"s_add_u32 s{sT7}, s{sT7}, 256")
    s0_task(sT7)
    s0_loads()
    a.label(D)

def a_s0_compute():
    D = a.newlabel("Lac")
    a(f"s_cmp_ge_u32 s{sW}, 2")
    a(f"s_cbranch_scc1 {D}")
    a(f"s_mul_i32 s{sT2}, s{sW}, 4608")
    a(f"s_add_u32 s{sT2}, s{sT2}, {L_UD}")
    f0_off(sQUAD)
    s0_addr(sT2)
    a("s_waitcnt vmcnt(0)")
    stamp(11)
    s0_compute()
    stamp(12)
    a.label(D)

def a_mainloop(qtype):
    t = "q" if qtype else "k"
    a.c("A main loop")
    a(f"s_mov_b32 s{sC}, 0")
    a(f"s_mov_b32 s{sSL}, 0")
    a(f"s_mov_b32 s{sT6}, {(1<<1)|(1<<3)|(1<<8)}")
    arr_prep(30, 31)
    a("v_mov_b32 v24, 0")
    if "noprio" not in EXP: a("s_setprio 2")
    a("s_waitcnt lgkmcnt(0)")
    a(f"s_cmp_ge_u32 s{sW}, 2")
    a(f"s_cbranch_scc1 Lnt{t}")
    cnt_load(SDBG, 24, 25)
    a.label(f"Lnt{t}")
    if "ast" in EXP: stamp(1, True)
    a("s_barrier")
    stamp(1)
    for r in a_reads(0, 0): a(r)
    book = [
        f"s_add_u32 s{sSL}, s{sSL}, 1\ns_cmp_eq_u32 s{sSL}, 3",
        f"s_mov_b32 s{sT4}, {SLOT}",
        f"s_cselect_b32 s{sT4}, {-2*SLOT & 0xffffffff}, s{sT4}",
        f"s_cselect_b32 s{sSL}, 0, s{sSL}\ns_add_u32 s{sC}, s{sC}, 1",
    ]
    def adv(src_):
        return [f"v_add_u32 v{vX0}, {src_}, v{vX0}\nv_add_u32 v{vX1}, {src_}, v{vX1}",
                f"v_add_u32 v{vWA}, {src_}, v{vWA}\nv_add_u32 v{vWA+1}, {src_}, v{vWA+1}",
                f"v_add_u32 v{vWA+2}, {src_}, v{vWA+2}\nv_add_u32 v{vWA+3}, {src_}, v{vWA+3}",
                f"v_add_u32 v{vWX}, {src_}, v{vWX}"]
    rd = a_reads(1, 1)
    seq = []
    for i, r in enumerate(rd): seq.append(r + ("\n" + book[i - 2] if 2 <= i < 6 else ""))
    seq += adv(f"s{sT4}")
    seq[-1] += f"\ns_bitcmp1_b32 s{sT6}, s{sC}"
    a(".p2align 3")
    a.label(f"Lml{t}")
    a("s_waitcnt lgkmcnt(0)")
    interleave(a_mfmas(0, qtype), seq)
    a("s_waitcnt lgkmcnt(0)")
    a(f"s_cbranch_scc1 Lhook{t}")
    a.label(f"Lhookd{t}")
    if "ast" in EXP:
        a("s_memrealtime vcc")
        a("s_waitcnt lgkmcnt(0)")
        a(f"s_mov_b32 m0, s{sC}")
        a("v_writelane_b32 v29, vcc_lo, m0")
    a("s_barrier")
    interleave(a_mfmas(1, qtype), a_reads(0, 0))
    a(f"s_branch Lml{t}")
    a.label(f"Lhook{t}")
    a(f"s_cmp_eq_u32 s{sC}, 8")
    a(f"s_cbranch_scc1 Lmx{t}")
    N2 = a.newlabel("Lhk"); N3 = a.newlabel("Lhk")
    a(f"s_cmp_ge_u32 s{sW}, 2")
    a(f"s_cbranch_scc1 {N3}")
    a(f"s_cmp_lg_u32 s{sC}, 1")
    a(f"s_cbranch_scc1 {N2}")
    tag_get(24, 25, "issued")
    arr_issue(30, 31, f"s{sQUAD}")
    a(f"s_branch Lhookd{t}")
    a.label(N2)
    arr_finish(30, 31, f"s{sQUAD}", 64)
    a(f"s_branch Lhookd{t}")
    a.label(N3)
    a(f"s_cmp_lg_u32 s{sC}, 3")
    a(f"s_cbranch_scc1 Lhookd{t}")
    cnt_load(SDBG, 24, 25)
    a(f"s_branch Lhookd{t}")
    a.label(f"Lmx{t}")
    tag_get(24, 25, "issued")
    a(f"s_add_u32 s{sT5}, s{sWOO}, {9*1024}")
    def wl(k):
        out = [f"buffer_load_dwordx4 {vr(VWO+4*(9+4*k+i),4)}, v28, {srd(SWS)}, s{sT5} offen offset:{1024*i} sc1" for i in range(4)]
        out[-1] += f"\ns_add_u32 s{sT5}, s{sT5}, 4096"
        return out
    def mix(rd, extra, k):
        seq = list(rd) + [""] * (20 - len(rd))
        for i, x in enumerate(extra): seq[14 + i] = x
        for i, x in enumerate([] if "noawo" in EXP else wl(k)): seq[3 + 5 * i] = (seq[3 + 5 * i] + "\n" + x).strip()
        return [s_ if s_ else "; -" for s_ in seq]
    if "ast" in EXP:
        for c in range(1, 8): a(f"v_readlane_b32 s{STS+1+c}, v29, {c}")
        stamp(9, True)
    a("s_barrier")
    interleave(a_mfmas(1, qtype), mix(a_reads(0, 0), [], 0))
    a("s_waitcnt lgkmcnt(0)")
    a(f"s_mov_b32 s{sT4}, {-2*SLOT & 0xffffffff}")
    interleave(a_mfmas(0, qtype), mix(a_reads(1, 1), adv(f"s{sT4}"), 1))
    a("s_waitcnt lgkmcnt(0)")
    a("s_barrier")
    interleave(a_mfmas(1, qtype), mix(a_reads(0, 0), [], 2))
    a("s_waitcnt lgkmcnt(0)")
    interleave(a_mfmas(0, qtype), mix(a_reads(1, 1), [], 3))
    a("s_waitcnt lgkmcnt(0)")

def acc_zero():
    for i in range(80): a(f"v_mov_b32 v{ACC+i}, 0")

def phi_list(regs, tmp):
    out = []
    B = 4
    for i in range(0, len(regs), B):
        batch = regs[i:i + B]
        for j, r in enumerate(batch):
            out.append(f"v_mul_f32 v{tmp+2*j}, s{sLOG}, v{r}")
            out.append(f"v_mul_f32 v{tmp+2*j+1}, s{sLOG}, v{r+1}")
        for j, r in enumerate(batch):
            out.append(f"v_exp_f32_e64 v{tmp+2*j}, v{tmp+2*j} clamp")
            out.append(f"v_exp_f32_e64 v{tmp+2*j+1}, v{tmp+2*j+1} clamp")
        for j, r in enumerate(batch):
            out.append(f"v_max_f32 v{r}, s{sEPS}, v{r}")
            out.append(f"v_max_f32 v{r+1}, s{sEPS}, v{r+1}")
        for j, r in enumerate(batch):
            out.append(f"v_add_f32 v{r}, v{r}, v{tmp+2*j}")
            out.append(f"v_add_f32 v{r+1}, v{r+1}, v{tmp+2*j+1}")
    return out

def sprinkle(main, extra, every, start=0):
    j = 0
    for i, m in enumerate(main):
        a(m)
        if i >= start and (i - start) % every == every - 1 and j < len(extra):
            a(extra[j]); j += 1
    return extra[j:]

def fc_addr(v):
    a(f"v_and_b32 v{v}, 7, v{vL}")
    a(f"v_lshlrev_b32 v{v}, 8, v{v}")
    a(f"v_add_u32 v{v}, {WS_FC}, v{v}")
def f0_addr(v):
    a(f"s_lshr_b32 s{sT4}, s{sQUAD}, 4")
    a(f"s_lshl_b32 s{sT4}, s{sT4}, 8")
    a(f"s_add_u32 s{sT4}, s{sT4}, {WS_F0}")
    a(f"v_mov_b32 v{v}, s{sT4}")

def awave():
    a.label("Lawave")
    a_s0_loads()
    srd_init([SWS, SDBG])
    a(f"s_lshl_b32 s{sT0}, s{sBID}, 2")
    a(f"s_or_b32 s{sT0}, s{sT0}, s{sW}")
    a(f"s_cmp_lg_u32 s{sT0}, 3")
    a("s_cbranch_scc1 Lkva1")
    a(f"s_memrealtime {sr(sT2,2)}")
    a(f"v_lshlrev_b32 v1, 8, v{vL}")
    a("v_mov_b32 v2, 0")
    a(f"s_mov_b32 s{sT0}, {WS_C + CDELTA}")
    a(f"s_mov_b32 s{sT1}, {WS_C + CDELTA + 16384}")
    a("s_waitcnt lgkmcnt(0)")
    a("s_mov_b32 exec_hi, 0")
    a(f"buffer_store_dword v2, v1, {srd(SWS)}, s{sT1} offen sc1")
    a("s_mov_b32 exec_hi, -1")
    a(f"buffer_store_dword v2, v1, {srd(SWS)}, s{sT0} offen sc1")
    a(f"s_lshl_b32 s{sT3}, s{sT3}, 27")
    a(f"s_xor_b32 s{sT2}, s{sT2}, s{sT3}")
    a(f"s_or_b32 s{sT2}, s{sT2}, 1")
    a(f"v_mov_b32 v3, s{sT2}")
    a("s_waitcnt vmcnt(0)")
    a("s_mov_b64 exec, 1")
    a(f"buffer_store_dword v3, v2, {srd(SDBG)}, 0 offen sc1")
    a("s_mov_b64 exec, -1")
    a.label("Lkva1")
    common_scalars()
    srd_init([SX, SOUT])
    acc_zero()
    a(f"s_cmp_ge_u32 s{sIDX}, 16")
    a("s_cbranch_scc1 Lqa")

def kva():
    a(f"s_lshr_b32 s{sT0}, s{sIDX}, 2")
    a(f"s_lshl_b32 s{sCG}, s{sCP}, 2")
    a(f"s_add_u32 s{sCG}, s{sCG}, s{sT0}")
    a_setup()
    a(f"s_mul_i32 s{sT4}, s{sW}, 3584")
    a(f"s_add_u32 s{sT4}, s{sT4}, {L_KVS}")
    a(f"v_mul_u32_u24 v8, 336, v{vG4}")
    a(f"v_add_u32 v8, s{sT4}, v8")
    a(f"v_lshl_add_u32 v{vA1}, v{vC16}, 4, v8")
    a(f"v_add_u32 v9, 8, v{vC16}")
    a(f"v_subrev_u32 v10, 12, v{vC16}")
    a(f"v_cmp_lt_u32 vcc, 11, v{vC16}")
    a("v_cndmask_b32 v9, v9, v10, vcc")
    a(f"v_cmp_eq_u32 vcc, 0, v{vC16}")
    a("v_mov_b32 v10, 20")
    a("v_cndmask_b32 v9, v9, v10, vcc")
    a(f"v_lshl_add_u32 v{vA2}, v9, 4, v8")
    a(f"s_lshl_b32 s{sT4}, s{sT0}, 2")
    a(f"s_add_u32 s{sT4}, s{sT4}, {L_CNT}")
    a(f"v_mov_b32 v20, s{sT4}")
    a(f"s_mul_i32 s{sT4}, s{sT0}, 3584")
    a(f"s_mul_i32 s{sT5}, s{sT1}, {KVH}")
    a(f"s_add_u32 s{sT4}, s{sT4}, s{sT5}")
    a(f"v_lshlrev_b32 v21, 2, v{vL}")
    a(f"s_add_u32 s{sT5}, s{sT4}, {L_KVS}")
    a(f"v_add_u32 v22, s{sT5}, v21")
    a(f"s_mul_i32 s{sT5}, s{sCG}, {4*KVH}")
    a(f"s_add_u32 s{sT4}, s{sT4}, s{sT5}")
    a(f"s_add_u32 s{sCH}, s{sT4}, {WS_KV}")
    a("v_mov_b32 v23, 0x3f803f80")
    a(f"s_lshl_b32 s{sLC}, s{sCG}, 1")
    a(f"s_add_u32 s{sLC}, s{sLC}, s{sT0}")
    a(f"s_lshl_b32 s{sLC}, s{sLC}, 1")
    a(f"s_add_u32 s{sLC}, s{sLC}, s{sT1}")
    a(f"s_lshl_b32 s{sLC}, s{sLC}, 8")
    a(f"s_add_u32 s{sLC}, s{sLC}, {WS_FK}")
    wo_prep(28)
    a_s0_compute()
    a_mainloop(False)
    a.c("KV epilogue")
    order = [(rt, tt) for tt in (4, 0, 1, 2, 3) for rt in range(4)]
    mf = a_mfmas(1, False, order)
    for m in mf[:12]: a(m)
    XP = 112
    TM = 120
    a(f"v_cmp_gt_u32 vcc, 8, v{vC16}")
    L = []
    for rt in range(4):
        for h in range(2): L.append(f"v_cvt_pk_bf16_f32 v{XP+2*rt+h}, v{acc(rt,4)+2*h}, v{acc(rt,4)+2*h+1}")
    for j in range(8): L.append(f"v_cndmask_b32 v{XP+j}, v{XP+j}, v23, vcc")
    regs = []
    for tt in (4, 0, 1):
        for rt in range(4): regs += [acc(rt, tt), acc(rt, tt) + 2]
    L += phi_list(regs, TM)
    for i, m in enumerate(mf[12:]):
        a(m)
        for x in L[2 * i:2 * i + 2]: a(x)
    L = L[16:]
    stamp(2)
    for tt in (2, 3, 4, 0, 1):
        for rt in range(4):
            for h in range(2):
                L.append(f"v_cvt_pk_bf16_f32 v{acc(rt&2,tt)+2*(rt&1)+h}, v{acc(rt,tt)+2*h}, v{acc(rt,tt)+2*h+1}")
    for x in L: a(x)
    def fr(t, p): return XP + 4 * p if t == 5 else acc(2 * p, t)
    prods = [(0, 2), (0, 5), (4, 2), (4, 5), (1, 3), (1, 5), (4, 3)]
    PD = 120
    for p in range(2):
        for i, (ta, tb) in enumerate(prods):
            d = vr(PD + 4 * i, 4)
            a(f"v_mfma_f32_16x16x32_bf16 {d}, {vr(fr(ta,p),4)}, {vr(fr(tb,p),4)}, {'0' if p==0 else d}")
    def wr(i, va, off, mlo, mhi):
        if mlo is not None: a(f"s_mov_b32 exec_lo, {mlo}")
        if mhi is not None: a(f"s_mov_b32 exec_hi, {mhi}")
        a(f"ds_write_b128 v{va}, {vr(PD+4*i,4)} offset:{off}")
    wr(0, vA1, 0, None, None)
    wr(4, vA1, KVH + 336 + 64, None, None)
    wr(1, vA2, 0, 0x0f010f01, 0x0f010f01)
    wr(5, vA2, KVH + 336, 0xf001f001, 0xf001f001)
    wr(2, vA1, 4 * 336, 0xffff, 0)
    wr(3, vA2, 4 * 336, 0x0f01, None)
    wr(3, vA2, KVH - 336, 0xf0010000, None)
    wr(6, vA1, KVH + 64 - 336, 0xffff0000, None)
    a("v_mov_b32 v24, 1") if False else None
    a("s_mov_b64 exec, 1")
    a("v_mov_b32 v24, 1")
    a(f"ds_add_u32 v20, v24")
    a("s_mov_b64 exec, -1")
    lds_wait(20, 24, 2)
    for i in range(7):
        a(f"ds_read_b32 v{32+i}, v22 offset:{256*i}")
        a(f"ds_read_b32 v{40+i}, v22 offset:{256*i+7168}")
    stamp(3)
    for i in range(7):
        a(f"s_waitcnt lgkmcnt({12-2*i})")
        a(f"v_add_f32 v{32+i}, v{32+i}, v{40+i}")
        a(f"buffer_atomic_add_f32 v{32+i}, v21, {srd(SWS)}, s{sCH} offen offset:{256*i}")
    a("s_setprio 0")
    if "delayconv" in EXP:
        a(f"v_mov_b32 v50, {L_CNT+8}")
        lds_arrive(50, 51)
    arr_prep(48, 49)
    s3_setup()
    a("s_waitcnt vmcnt(0)")
    arr_issue(48, 49, f"s{sLC}")
    for x in wo_list(vL16)[:4]: a(x)
    arr_finish(48, 49, f"s{sLC}", 16, 4)
    stamp(4)
    a("s_branch Ls3")

def qa():
    a.label("Lqa")
    a(f"s_bfe_u32 s{sT0}, s{sIDX}, 0x10002")
    a(f"s_lshl_b32 s{sCG}, s{sCP}, 1")
    a(f"s_add_u32 s{sCG}, s{sCG}, s{sT0}")
    a_setup()
    a(f"v_lshrrev_b32 v8, 1, v{vG4}")
    a(f"v_and_b32 v9, 1, v{vG4}")
    a(f"v_lshlrev_b32 v20, 4, v{vC16}")
    a("v_lshl_add_u32 v20, v9, 9, v20")
    a("v_lshl_add_u32 v21, v8, 3, v20")
    a("v_add_u32 v21, 4096, v21")
    a("v_lshl_add_u32 v20, v8, 10, v20")
    a(f"s_lshl_b32 s{sT4}, s{sRB}, 1")
    a(f"s_add_u32 s{sT4}, s{sT4}, s{sT1}")
    a(f"s_lshl_b32 s{sT5}, s{sCG}, 1")
    a(f"s_add_u32 s{sT5}, s{sT5}, s{sT0}")
    a(f"s_mul_i32 s{sT0}, s{sT4}, {80*1024}")
    a(f"s_mul_i32 s{sT1}, s{sT5}, {5*1024}")
    a(f"s_add_u32 s{sT0}, s{sT0}, s{sT1}")
    a(f"s_add_u32 s{sCH}, s{sT0}, {WS_PQ}")
    a(f"s_add_u32 s{sVAR}, s{sCH}, {40*1024}")
    a(f"s_lshl_b32 s{sT4}, s{sT4}, 3")
    a(f"s_add_u32 s{sT4}, s{sT4}, s{sT5}")
    a(f"s_lshl_b32 s{sT4}, s{sT4}, 8")
    a(f"s_add_u32 s{sLC}, s{sT4}, {WS_FQ}")
    wo_prep(28)
    a_s0_compute()
    a_mainloop(True)
    a.c("Q epilogue")
    order = [(rt, tt) for rt in range(4) for tt in range(5)]
    mf = a_mfmas(1, True, order)
    for m in mf[:9]: a(m)
    L = []
    for rt in range(4):
        regs = []
        for tt in range(5): regs += [acc(rt, tt), acc(rt, tt) + 2]
        L += phi_list(regs, 112)
        O = acc(rt, 0)
        for tt in range(5):
            for h in range(2): L.append(f"v_cvt_pk_bf16_f32 v{O+2*tt+h}, v{acc(rt,tt)+2*h}, v{acc(rt,tt)+2*h+1}")
        so = f"s{sVAR if rt>>1 else sCH}"
        for p in range(2):
            L.append(f"buffer_store_dwordx4 {vr(O+4*p,4)}, v20, {srd(SWS)}, {so} offen offset:{256*(rt&1)+2048*p} sc1")
        L.append(f"buffer_store_dwordx2 {vr(O+8,2)}, v21, {srd(SWS)}, {so} offen offset:{256*(rt&1)} sc1")
    for i, m in enumerate(mf[9:]):
        a(m)
        for x in L[2 * i:2 * i + 2]: a(x)
    L = L[22:]
    stamp(2)
    for x in L: a(x)
    stamp(3)
    a("s_setprio 0")
    if "delayconv" in EXP:
        a(f"v_mov_b32 v130, {L_CNT+8}")
        lds_arrive(130, 131)
    s3_setup()
    a("s_waitcnt vmcnt(0)")
    flag_store(120, 121, f"s{sLC}")
    for x in wo_list(vL16)[:4]: a(x)
    stamp(4)
    a("s_branch Ls3")

def h_dma(sj, sch0):
    a(f"s_lshr_b32 s{sT4}, s{sj}, 1")
    a(f"s_and_b32 s{sT5}, s{sj}, 1")
    a(f"s_lshl_b32 s{sT5}, s{sT5}, 11")
    a(f"s_add_u32 s{sT6}, s{sch0}, s{sT4}")
    a(f"s_lshl_b32 s{sT6}, s{sT6}, 12")
    a(f"s_add_u32 s{sT6}, s{sT6}, s{sT5}")
    a(f"s_mul_i32 s{sT4}, s{sT4}, {HSTR}")
    a(f"s_add_u32 s{sT4}, s{sT4}, s{sT5}")
    a(f"s_add_u32 m0, s{sT4}, {L_HB+128}")
    a(f"buffer_load_dwordx4 v{vL16}, {srd(SH)}, s{sT6} offen lds")
    a(f"buffer_load_dwordx4 v{vL16}, {srd(SH)}, s{sT6} offen offset:1024 lds")

CACC = 32
CPOOL = 96
NPOOL = 12
CD = 144
vUe, vUo, vH, vCW, vCT, vCS, vCY, vCN = range(148, 156)

def conv_setup(j, chl0, split=None):
    a.c("conv setup")
    a(f"s_lshr_b32 s{sLC}, s{j}, 1")
    a(f"s_and_b32 s{sVAR}, s{j}, 1")
    a(f"s_add_u32 s{sCHL}, s{chl0}, s{sLC}")
    a(f"s_lshl_b32 s{sCH}, s{sQUAD}, 2")
    a(f"s_add_u32 s{sCH}, s{sCH}, s{sCHL}")
    a(f"s_lshl_b32 s{sT4}, s{sCH}, 1")
    a(f"s_and_b32 s{sT4}, s{sT4}, -4")
    a(f"s_load_dword s{sDV}, {sr(SD,2)}, s{sT4}")
    a(f"v_and_b32 v96, 31, v{vL}")
    a(f"v_lshrrev_b32 v97, 5, v{vL}")
    a("v_lshl_add_u32 v98, v97, 2, v96")
    a("v_lshrrev_b32 v99, 2, v98")
    a("v_add_u32 v99, 3, v99")
    a("v_and_b32 v99, 3, v99")
    a(f"v_xor_b32 v99, s{sCHL}, v99")
    a("v_lshlrev_b32 v99, 4, v99")
    a("v_lshl_add_u32 v99, v98, 6, v99")
    a(f"v_add_u32 v{vUe}, {L_UD-28*64}, v99")
    a(f"v_xor_b32 v{vUo}, 32, v{vUe}")
    a(f"v_bfe_u32 v98, v{vL}, 4, 1")
    a(f"v_and_b32 v99, 3, v{vL}")
    a("v_lshl_add_u32 v98, v98, 2, v99")
    a(f"v_bfe_u32 v96, v{vL}, 2, 2")
    a("v_sub_u32 v98, v98, v96")
    a("v_lshlrev_b32 v97, 3, v97")
    a("v_sub_u32 v98, v98, v97")
    a("v_lshlrev_b32 v98, 3, v98")
    a(f"s_mul_i32 s{sT4}, s{sLC}, {HSTR}")
    a(f"s_add_u32 s{sT4}, s{sT4}, {L_HB+128+32}")
    a(f"v_add_u32 v{vH}, s{sT4}, v98")
    a(f"s_lshl_b32 s{sT4}, s{sW}, 11")
    a(f"s_add_u32 s{sT4}, s{sT4}, {L_YST}")
    a(f"v_lshlrev_b32 v{vCW}, 4, v{vL}")
    a(f"v_add_u32 v{vCW}, s{sT4}, v{vCW}")
    if split: split(0)
    a(f"v_lshrrev_b32 v97, 4, v{vL}")
    a("v_lshrrev_b32 v98, 1, v99")
    a("v_lshl_add_u32 v98, v97, 1, v98")
    a("v_lshl_add_u32 v98, v98, 3, v96")
    a("v_lshlrev_b32 v98, 4, v98")
    a("v_and_b32 v99, 1, v99")
    a("v_lshl_add_u32 v98, v99, 3, v98")
    a(f"v_add_u32 v{vCT}, s{sT4}, v98")
    a(f"v_and_b32 v98, 7, v{vL}")
    a(f"v_lshrrev_b32 v99, 5, v{vL}")
    a("v_lshl_add_u32 v98, v98, 1, v99")
    a(f"v_mul_u32_u24 v98, 40960, v98")
    a(f"v_bfe_u32 v99, v{vL}, 3, 2")
    a(f"v_lshl_add_u32 v{vCY}, v99, 4, v98")
    a(f"s_lshl_b32 s{sT4}, s{j}, 4")
    a(f"s_add_u32 s{sT4}, s{sT4}, {L_SP}")
    a(f"v_mov_b32 v{vCS}, s{sT4}")
    a(f"s_lshl_b32 s{sT4}, s{sLC}, 2")
    a(f"s_add_u32 s{sT4}, s{sT4}, {L_CNT+16}")
    a(f"v_mov_b32 v{vCN}, s{sT4}")

def conv_dfrag():
    a("s_waitcnt lgkmcnt(0)")
    a(f"s_and_b32 s{sT4}, s{sCH}, 1")
    a(f"s_lshl_b32 s{sT4}, s{sT4}, 4")
    a(f"s_lshr_b32 s{sDV}, s{sDV}, s{sT4}")
    a(f"s_and_b32 s{sDV}, s{sDV}, 0xffff")
    a(f"v_lshlrev_b32 v98, 2, v{vL}")
    a("v_and_b32 v98, 16, v98")
    a(f"v_lshlrev_b32 v98, v98, s{sDV}")
    a(f"v_and_b32 v99, 59, v{vL}")
    for r in range(4):
        a(f"v_cmp_eq_u32 vcc, {32+8*r}, v99")
        a(f"v_cndmask_b32 v{CD+r}, 0, v98, vcc")

def zero_pads(j):
    a("v_mov_b32 v100, 0")
    a("v_mov_b32 v101, 0")
    a(f"v_lshlrev_b32 v102, 3, v{vL}")
    a(f"s_and_b32 s{sT6}, s{j}, 3")
    a(f"s_lshl_b32 s{sT4}, s{sT6}, 9")
    a(f"s_add_u32 s{sT4}, s{sT4}, {L_UB}")
    a(f"v_add_u32 v103, s{sT4}, v102")
    a("ds_write_b64 v103, v[100:101]")
    a(f"s_mul_i32 s{sT4}, s{sT6}, {HSTR}")
    a(f"s_add_u32 s{sT4}, s{sT4}, {L_HB}")
    a(f"v_add_u32 v103, s{sT4}, v102")
    a("s_mov_b64 exec, 0xffff")
    a("ds_write_b64 v103, v[100:101]")
    a(f"v_add_u32 v103, {L_CNT}, v102")
    a("s_mov_b64 exec, 0xff")
    a("ds_write_b64 v103, v[100:101]")
    a("s_mov_b64 exec, -1")

def u_dma(j, nper):
    a(f"s_mul_i32 s{sT4}, s{j}, {1024*nper}")
    a(f"s_lshl_b32 s{sT5}, s{sQUAD}, 14")
    a(f"s_add_u32 s{sT5}, s{sT5}, s{sT4}")
    a(f"s_add_u32 m0, s{sT4}, {L_UD}")
    for i in range(nper): a(f"buffer_load_dwordx4 v{vL16}, {srd(SWS)}, s{sT5} offen offset:{1024*i} sc1 lds")

def bwave():
    a.c("B wave")
    sXB, sWB, sM, sMW, sROT, sSTEP, sQ2, sQ3 = sCG, sUD, sTB, sRB, sCI, sLOG, sLOG + 1, sEPS
    VX, VW = 32, 36
    a(f"s_sub_u32 s{sJ}, s{sW}, 4")
    a(f"v_lshrrev_b32 v1, 3, v{vL}")
    a(f"v_mul_u32_u24 v1, 1280, v1")
    a(f"v_lshrrev_b32 v2, 4, v{vL}")
    a(f"v_and_b32 v3, 7, v{vL}")
    a("v_xor_b32 v2, v2, v3")
    a(f"v_lshl_add_u32 v{VX}, v2, 4, v1")
    a(f"v_xor_b32 v{VX+1}, 64, v{VX}")
    a(f"v_add_u32 v{VX+1}, {10240-1024}, v{VX+1}")
    a(f"v_add_u32 v{VX+2}, {20480-2048}, v{VX}")
    a(f"v_add_u32 v{VX+3}, {20480-2048}, v{VX+1}")
    a(f"s_lshl_b32 s{sXB}, s{sRB}, 2")
    a(f"s_add_u32 s{sXB}, s{sXB}, s{sJ}")
    a(f"s_mul_i32 s{sXB}, s{sXB}, 40960")
    a(f"s_lshr_b32 s{sT0}, s{sIDX}, 2")
    a(f"s_add_u32 s{sROT}, s{sT0}, s{sIDX}")
    a(f"s_and_b32 s{sROT}, s{sROT}, 3")
    a(f"s_add_u32 s{sM}, s{sRP}, s{sCP}")
    a(f"s_and_b32 s{sM}, s{sM}, 1")
    a(f"s_lshl_b32 s{sM}, s{sM}, 2")
    a(f"s_or_b32 s{sROT}, s{sROT}, s{sM}")
    a(f"s_lshl_b32 s{sM}, s{sJ}, 12")
    srd_init([SX, SWQ])
    def chunk_x(sc):
        a(f"s_mov_b32 m0, s{sM}")
        a(f"s_lshl_b32 s{sQ2}, s{sc}, 7")
        a(f"s_add_u32 s{sQ2}, s{sQ2}, s{sXB}")
        for i in range(4):
            a(f"buffer_load_dwordx4 v{VX+i}, {srd(SX)}, s{sQ2} offen offset:{1024*i} lds")
    def chunk_w(sc):
        a(f"s_add_u32 m0, s{sM}, 16384")
        a(f"s_mul_i32 s{sQ3}, s{sc}, {64*3840}")
        a(f"s_add_u32 s{sQ3}, s{sQ3}, s{sWB}")
        for hf in range(1):
            if hf:
                a(f"s_add_u32 m0, s{sM}, {16384+4096}")
                a(f"s_add_u32 s{sQ3}, s{sQ3}, {16*3840}")
            for i in (0, 1, 4, 2, 3):
                if i == 2: a(f"s_add_u32 m0, s{sM}, {16384+4096*hf}")
                if i == 4: a(f"s_add_u32 m0, s{sMW}, {1024*hf}")
                a(f"buffer_load_dwordx4 v{VW+i}, {srd(SWQ)}, s{sQ3} offen offset:{1024*(i&3)} lds")
    a(f"s_lshl_b32 s{sT1}, s{sCP}, 2")
    a(f"s_add_u32 s{sT1}, s{sT1}, s{sT0}")
    a(f"s_add_u32 s{sT1}, s{sT1}, 8")
    a(f"s_lshl_b32 s{sT0}, s{sT0}, 1")
    a(f"s_lshl_b32 s{sT4}, s{sCP}, 2")
    a(f"s_add_u32 s{sT0}, s{sT0}, s{sT4}")
    a(f"s_sub_u32 s{sT0}, s{sT0}, 8")
    a(f"s_cmp_ge_u32 s{sIDX}, 16")
    a(f"s_cselect_b32 s{sWB}, s{sT0}, s{sT1}")
    a(f"s_cselect_b32 s{sT4}, 10, 5")
    a(f"s_cselect_b32 s{sT5}, 4, 0x50")
    a(f"s_cselect_b32 s{sT6}, 1, 3")
    a(f"s_cselect_b32 s{sT7}, 2, 1")
    a(f"s_cselect_b32 s{sT0}, 1, 0x50")
    a(f"s_cselect_b32 s{sT1}, 8, 2")
    a(f"s_mulk_i32 s{sWB}, 160")
    a(f"s_mul_i32 s{sT2}, s{sJ}, {16*3840}")
    a(f"s_add_u32 s{sWB}, s{sWB}, s{sT2}")
    a(f"s_lshl_b32 s{sMW}, s{sJ}, 10")
    a(f"s_add_u32 s{sMW}, s{sMW}, 32768")
    a(f"v_lshrrev_b32 v14, 4, v{vL}")
    a(f"v_lshrrev_b32 v15, 1, v{vL}")
    a("v_xor_b32 v15, v15, v14")
    a(f"v_and_b32 v16, 1, v{vL}")
    a("v_mul_u32_u24 v14, 240, v14")
    a(f"v_mad_u32_u24 v14, v16, s{sT7}, v14")
    a("v_and_b32 v17, 1, v15")
    a(f"v_mad_u32_u24 v14, v17, s{sT6}, v14")
    a("v_bfe_u32 v17, v15, 1, 1")
    a(f"v_mad_u32_u24 v14, v17, s{sT5}, v14")
    a("v_bfe_u32 v17, v15, 2, 1")
    a(f"v_mad_u32_u24 v18, v17, s{sT4}, v14")
    a(f"v_lshlrev_b32 v{VW}, 4, v18")
    a(f"v_add_u32 v{VW+1}, {15360-1024}, v{VW}")
    a("v_xor_b32 v17, 1, v17")
    a(f"v_mad_u32_u24 v18, v17, s{sT4}, v14")
    a(f"v_lshlrev_b32 v18, 4, v18")
    a(f"v_add_u32 v{VW+2}, {30720-2048}, v18")
    a(f"v_add_u32 v{VW+3}, {46080-3072}, v18")
    a(f"v_lshrrev_b32 v14, 2, v{vL}")
    a("v_mul_u32_u24 v14, 240, v14")
    a(f"v_mad_u32_u24 v14, v16, s{sT0}, v14")
    a(f"v_lshrrev_b32 v17, 4, v{vL}")
    a(f"v_xor_b32 v17, v17, v{vL}")
    a("v_bfe_u32 v17, v17, 1, 1")
    a(f"v_mad_u32_u24 v14, v17, s{sT4}, v14")
    a(f"v_add_lshl_u32 v{VW+4}, v14, s{sT1}, 4")
    a("s_waitcnt lgkmcnt(0)")
    stamp(11)
    chunk_x(sROT)
    chunk_w(sROT)
    stamp(12)
    def issue(step):
        d = SLOT if step % 3 else (-2 * SLOT & 0xffffffff)
        a(f"s_add_u32 s{sM}, s{sM}, {d}")
        a(f"s_add_u32 s{sMW}, s{sMW}, {d}")
        if step == 8: a(f"s_and_b32 s{sROT}, s{sROT}, 1")
        a(f"s_xor_b32 s{sSTEP}, s{sROT}, {step}")
        if "nodma" in EXP and step >= 2: return
        chunk_x(sSTEP); chunk_w(sSTEP)
    bn = [1]
    def bar(n, nxt=None):
        a(f"s_waitcnt vmcnt({n}) lgkmcnt(0)")
        if "bst" in EXP and "pre" in EXP: stamp(bn[0], True)
        a("s_barrier")
        if "bst" in EXP and "pre" not in EXP: stamp(bn[0], True)
        bn[0] += 1
        if nxt is not None: issue(nxt)
    def g_setup():
        srd_init([SX, SH, SWS, SDBG, SOUT])
        a(f"s_mul_i32 s{sT7}, s{sXCD}, 24")
        a(f"s_add_u32 s{sT7}, s{sT7}, s{sIDX}")
        a(f"s_lshr_b32 s{sQUAD}, s{sT7}, 1")
        a(f"s_add_u32 s{sQUAD}, s{sQUAD}, 64")
        a(f"s_and_b32 s{sT1}, s{sIDX}, 1")
        a(f"s_lshl_b32 s{sT1}, s{sT1}, 1")
        a("s_waitcnt lgkmcnt(0)")
        conv_setup(sJ, sT1)
        s3_setup()
        wo_prep(vL16)
    sGS, sGO = 1, 0
    a(f"s_lshr_b32 s{sT0}, s{sIDX}, 2")
    a(f"s_lshl_b32 s{sT1}, s{sCP}, 2")
    a(f"s_add_u32 s{sT0}, s{sT0}, s{sT1}")
    a(f"s_and_b32 s{sT0}, s{sT0}, 7")
    a(f"s_lshl_b32 s{sT0}, s{sT0}, 1")
    a(f"s_and_b32 s{sT1}, s{sJ}, 1")
    a(f"s_add_u32 s{sT0}, s{sT0}, s{sT1}")
    a(f"s_and_b32 s{sT2}, s{sIDX}, 3")
    a(f"s_lshl_b32 s{sT3}, s{sRP}, 2")
    a(f"s_add_u32 s{sT2}, s{sT2}, s{sT3}")
    a(f"s_lshl_b32 s{sGO}, s{sT2}, 4")
    a(f"s_add_u32 s{sGO}, s{sGO}, s{sT0}")
    a(f"s_cmp_lt_u32 s{sIDX}, 16")
    a(f"s_cselect_b32 s{sGS}, 1, 0")
    a(f"s_cmp_lt_u32 s{sJ}, 2")
    a(f"s_cselect_b32 s{sGS}, s{sGS}, 0")
    a(f"s_lshl_b32 s{sT0}, s{sT0}, 10")
    a(f"v_lshlrev_b32 v41, 4, v{vL}")
    srd_init([SGW])
    a(f"s_mov_b32 m0, {L_GW}")
    a(f"v_add_u32 v42, s{sT0}, v41")
    a(f"buffer_load_dwordx4 v41, {srd(SGW)}, 0 offen lds")
    a(f"buffer_load_dwordx4 v41, {srd(SGW)}, 0 offen offset:1024 lds")
    a(f"s_lshl_b32 s{sT1}, s{sT1}, 2")
    a(f"v_xor_b32 v43, s{sT1}, v2")
    a("v_lshlrev_b32 v43, 4, v43")
    a(f"v_add_u32 v43, {L_GW}, v43")
    a("v_mov_b32 v52, 0")
    a("v_mov_b32 v53, 0")
    g_setup()
    fc_addr(46)
    f0_addr(44)
    zero_pads(sJ)
    conv_dfrag()
    a(f"s_mov_b32 s{sT6}, s{sROT}")
    def gate(step):
        if "nogate" in EXP: return
        a(f"s_and_b32 s{sT0}, s{sT6}, {7 if step < 8 else 1}")
        a(f"s_xor_b32 s{sT0}, s{sT0}, {step}")
        a(f"s_lshl_b32 s{sT0}, s{sT0}, 7")
        a(f"v_add_u32 v54, s{sT0}, v43")
        if step % 3 == 2: a("ds_read_b128 v[56:59], v55")
        else: a(f"ds_read_b128 v[56:59], v42 offset:{SLOT*(step%3)}")
        a("ds_read_b128 v[60:63], v54")
    def gdot():
        if "nogate" in EXP: return
        a("s_waitcnt lgkmcnt(0)")
        for i in range(4): a(f"v_dot2c_f32_bf16 v{52+(i&1)}, v{56+i}, v{60+i}")
    a(f"v_add_u32 v55, {2*SLOT}, v42")
    issue(1)
    for c in range(0, 5):
        bar(9)
        if c == 0: stamp(1)
        gate(c); issue(c + 2); gdot()
    bar(9)
    cnt_load(SDBG, vZ, 47)
    cnt_load(SWS, 46, 48)
    gate(5); issue(7); gdot()
    bar(11)
    gate(6); issue(8); gdot()
    a("s_waitcnt vmcnt(18)")
    tag_get(vZ, 47, "landed")
    poll(46, 48, "landed")
    bar(9)
    gate(7)
    cnt_load(SWS, 44, 45)
    issue(9)
    gdot()
    a(f"s_mov_b32 s{sEPS}, 0x358637bd")
    a(f"s_sub_u32 s{sT1}, s{sCH}, s{sLC}")
    a(f"s_mov_b32 s{sT7}, s{sT6}")
    h_dma(sJ, sT1)
    a(f"s_mov_b32 s{sT6}, s{sT7}")
    bar(11)
    gate(8)
    a(f"v_cmp_ne_u32 vcc, s{sTAG}, v45")
    a("s_cbranch_vccnz Lblate")
    u_dma(sJ, 4)
    gdot()
    a("s_waitcnt vmcnt(6)")
    a("s_barrier")
    a("s_branch Lbu")
    a.label("Lblate")
    cnt_load(SWS, 44, 45)
    gdot()
    a("s_waitcnt vmcnt(3)")
    a("s_barrier")
    poll(44, 45, "issued")
    u_dma(sJ, 4)
    a.label("Lbu")
    stamp(2)
    gate(9)
    x_loads()
    gdot()
    a(f"s_cmp_eq_u32 s{sGS}, 0")
    a("s_cbranch_scc1 Lbg")
    a("v_add_f32 v52, v52, v53")
    for ctl in ("quad_perm:[1,0,3,2]", "quad_perm:[2,3,0,1]", "row_half_mirror"):
        a(f"v_add_f32_dpp v52, v52, v52 {ctl} row_mask:0xf bank_mask:0xf")
    a(f"v_mul_f32 v52, 0xbfb8aa3b, v52")
    a(f"v_exp_f32 v52, v52")
    a(f"v_lshrrev_b32 v53, 1, v{vL}")
    a(f"v_add_f32 v52, 1.0, v52")
    a(f"v_rcp_f32 v52, v52")
    a(f"s_lshl_b32 s{sT0}, s{sGO}, 5")
    a(f"s_add_u32 s{sT0}, s{sT0}, {WS_G}")
    a("s_mov_b32 exec_lo, 0x01010101")
    a("s_mov_b32 exec_hi, 0x01010101")
    a(f"buffer_store_dword v52, v53, {srd(SWS)}, s{sT0} offen sc1")
    a("s_mov_b64 exec, -1")
    a(f"s_lshr_b32 s{sT0}, s{sGO}, 2")
    a(f"s_lshl_b32 s{sT0}, s{sT0}, 8")
    a(f"s_and_b32 s{sGO}, s{sGO}, 3")
    a(f"s_lshl_b32 s{sGO}, s{sGO}, 2")
    a(f"s_add_u32 s{sGO}, s{sGO}, s{sT0}")
    a(f"s_add_u32 s{sGO}, s{sGO}, {WS_FG}")
    a("s_waitcnt vmcnt(3)")
    a.label("Lbg")
    a(f"v_mov_b32 v48, {L_CNT+8}")
    a(f"s_cmp_eq_u32 s{sGS}, 1")
    a("s_cbranch_scc1 Lbg2")
    a("s_waitcnt vmcnt(2)")
    a.label("Lbg2")
    lds_arrive(48, 49)
    if "delayconv" in EXP:
        for x in wo_list(vL16): a(x)
    lds_wait(48, 49, 8 if "delayconv" in EXP else 4)
    stamp(3)
    a("s_branch Lconv")

def ctype():
    a.label("Lctype")
    common_scalars()
    a(f"s_mov_b32 s{sQUAD}, s{sCI}")
    a(f"s_cmp_ge_u32 s{sW}, 4")
    a("s_cbranch_scc1 Lcaux")
    a(f"s_lshl_b32 s{sT7}, s{sCI}, 2")
    a(f"s_add_u32 s{sT7}, s{sT7}, s{sW}")
    s0_task(sT7)
    s0_loads()
    srd_init([SX, SH, SWS, SDBG, SOUT])
    zero_pads(sW)
    a(f"s_mov_b32 s{sT1}, 0")
    conv_setup(sW, sT1)
    s3_setup()
    wo_prep(vL16)
    conv_dfrag()
    a(f"s_mul_i32 s{sT2}, s{sW}, 4608")
    a(f"s_add_u32 s{sT2}, s{sT2}, {L_S0C}")
    s0_addr(sT2)
    a("s_waitcnt vmcnt(0)")
    s0_compute()
    stamp(1)
    f0_off(sCG)
    arr_prep(50, 51)
    tag_get(vZ, 47, "none")
    arr_issue(50, 51, f"s{sCG}")
    arr_finish(50, 51, f"s{sCG}", 64)
    stamp(2)
    a("s_branch Lcjoin")

    a.label("Lcaux")
    srd_init([SWO, SWS, SX, SWQ, SGW, SH, SDBG, SOUT])
    a(f"s_sub_u32 s{sUD}, s{sW}, 4")
    a(f"s_mul_i32 s{sVAR}, s{sCI}, 3")
    a(f"s_add_u32 s{sVAR}, s{sVAR}, s{sUD}")
    a(f"s_cmp_ge_u32 s{sUD}, 3")
    a(f"s_cselect_b32 s{sVAR}, 1000, s{sVAR}")
    a(f"s_cmp_ge_u32 s{sVAR}, 160")
    a("s_cbranch_scc1 Lcnorp2")
    sKQ, sF, sCGR = sCHL, sCH, sJ
    a(f"s_lshr_b32 s{sT0}, s{sVAR}, 2")
    a(f"s_and_b32 s{sCGR}, s{sVAR}, 3")
    a(f"s_mul_i32 s{sKQ}, s{sT0}, 52")
    a(f"s_lshr_b32 s{sKQ}, s{sKQ}, 8")
    a(f"s_mul_i32 s{sT1}, s{sKQ}, 5")
    a(f"s_sub_u32 s{sF}, s{sT0}, s{sT1}")
    a(f"s_mul_i32 s{sT0}, s{sF}, 20")
    a(f"s_cmp_eq_u32 s{sF}, 4")
    a(f"s_cselect_b32 s{sT0}, 16, s{sT0}")
    a(f"s_cselect_b32 s{sT2}, 16, 0")
    a(f"s_mul_i32 s{sT1}, s{sKQ}, 80")
    a(f"s_add_u32 s{sT0}, s{sT0}, s{sT1}")
    a(f"s_mul_i32 s{sT0}, s{sT0}, 1280")
    a(f"s_mul_i32 s{sT1}, s{sCGR}, 320")
    a(f"s_add_u32 s{sT0}, s{sT0}, s{sT1}")
    a(f"s_mul_i32 s{sT3}, s{sUD}, 5120")
    a(f"s_add_u32 s{sT3}, s{sT3}, {L_RPC}")
    a("s_waitcnt lgkmcnt(0)")
    for i in range(5):
        a(f"v_add_u32 v14, {64*i}, v{vL}")
        div20(15, 16, 14)
        a("v_lshrrev_b32 v17, 2, v15")
        a(f"v_mad_u32_u24 v15, v17, s{sT2}, v15")
        a("v_mul_u32_u24 v15, 1280, v15")
        a("v_lshl_add_u32 v15, v16, 4, v15")
        a(f"s_add_u32 m0, s{sT3}, {1024*i}")
        a(f"buffer_load_dwordx4 v15, {srd(SWO)}, s{sT0} offen lds")
    a(f"v_lshrrev_b32 v14, 5, v{vL}")
    a(f"v_bfe_u32 v15, v{vL}, 2, 2")
    a("v_lshl_add_u32 v14, v14, 2, v15")
    a("v_mul_u32_u24 v14, 320, v14")
    a(f"v_bfe_u32 v15, v{vL}, 4, 1")
    a("v_lshl_add_u32 v14, v15, 5, v14")
    a(f"v_and_b32 v15, 3, v{vL}")
    a("v_lshl_add_u32 v14, v15, 3, v14")
    a(f"v_add_u32 v14, s{sT3}, v14")
    a(f"s_mul_i32 s{sT0}, s{sKQ}, 5")
    a(f"s_add_u32 s{sT0}, s{sT0}, s{sF}")
    a(f"s_cmp_ge_u32 s{sKQ}, 3")
    a(f"s_cselect_b32 s{sT1}, 10, 0")
    a(f"s_cmp_ge_u32 s{sKQ}, 6")
    a(f"s_cselect_b32 s{sT1}, -15, s{sT1}")
    a(f"s_cselect_b32 s{sT2}, 25, 50")
    a(f"s_add_u32 s{sT0}, s{sT0}, s{sT1}")
    a(f"s_mul_i32 s{sT1}, s{sCGR}, 200")
    a(f"s_add_u32 s{sT0}, s{sT0}, s{sT1}")
    a(f"s_lshl_b32 s{sT0}, s{sT0}, 10")
    a(f"s_add_u32 s{sT0}, s{sT0}, {WS_WOP}")
    a(f"s_lshl_b32 s{sT2}, s{sT2}, 10")
    a(f"s_lshr_b32 s{sT4}, s{sKQ}, 1")
    a(f"s_mul_i32 s{sT4}, s{sT4}, 25")
    a(f"s_and_b32 s{sT5}, s{sKQ}, 1")
    a(f"s_mul_i32 s{sT5}, s{sT5}, 5")
    a(f"s_add_u32 s{sT4}, s{sT4}, s{sT5}")
    a(f"s_add_u32 s{sT4}, s{sT4}, s{sF}")
    a(f"s_add_u32 s{sT4}, s{sT4}, s{sT1}")
    a(f"s_add_u32 s{sT4}, s{sT4}, 115")
    a(f"s_lshl_b32 s{sT4}, s{sT4}, 10")
    a(f"s_add_u32 s{sT4}, s{sT4}, {WS_WOP}")
    a(f"v_lshlrev_b32 v15, 4, v{vL}")
    a("s_waitcnt vmcnt(0)")
    for t in range(5):
        for jh in range(2): a(f"ds_read_b64_tr_b16 {vr(32+4*t+2*jh,2)}, v14 offset:{jh*2560+t*64}")
    a("s_waitcnt lgkmcnt(0)")
    for t in range(4):
        a(f"buffer_store_dwordx4 {vr(32+4*t,4)}, v15, {srd(SWS)}, s{sT0} offen sc1")
        a(f"s_add_u32 s{sT0}, s{sT0}, s{sT2}")
    a(f"buffer_store_dwordx4 {vr(48,4)}, v15, {srd(SWS)}, s{sT4} offen sc1")
    a.label("Lcnorp2")
    a(f"s_cmp_lg_u32 s{sUD}, 3")
    a("s_cbranch_scc1 Lcrz")
    for i in range(4): a(f"v_mov_b32 v{32+i}, 0")
    a(f"v_lshlrev_b32 v15, 4, v{vL}")
    a(f"s_lshl_b32 s{sT0}, s{sCI}, 10")
    a(f"s_add_u32 s{sT0}, s{sT0}, {WS_KV}")
    a("s_waitcnt lgkmcnt(0)")
    a(f"buffer_store_dwordx4 v[32:35], v15, {srd(SWS)}, s{sT0} offen sc1")
    a.label("Lcrz")


    arr_prep(146, 147)
    a("v_mov_b32 v6, 0")
    a(f"s_lshl_b32 s{sT3}, s{sXCD}, 8")
    a(f"s_add_u32 s{sT3}, s{sT3}, {WS_FC}")
    a("s_waitcnt lgkmcnt(0)")
    tag_get(6, 7, "none")
    arr_issue(146, 147, f"s{sT3}")
    arr_finish(146, 147, f"s{sT3}", 32)
    stamp(1)
    a(f"s_cmp_lg_u32 s{sW}, 7")
    a("s_cbranch_scc1 Lc5")
    a(f"v_lshlrev_b32 v5, 7, v{vL}")
    a(f"s_mul_i32 s{sT3}, s{sCI}, 7680")
    a(f"s_add_u32 s{sT3}, s{sT3}, {512*3840}")
    a(f"buffer_load_dword v131, v5, {srd(SWQ)}, s{sT3} offen")
    a(f"v_lshrrev_b32 v4, 1, v{vL}")
    a("v_mul_u32_u24 v4, 1280, v4")
    a(f"v_and_b32 v5, 1, v{vL}")
    a("v_lshl_add_u32 v4, v5, 7, v4")
    a(f"s_mul_i32 s{sT3}, s{sCI}, 40960")
    a(f"buffer_load_dword v130, v4, {srd(SX)}, s{sT3} offen offset:1024")
    a("s_branch Lc5b")
    a.label("Lc5")
    a(f"s_mul_i32 s{sT3}, s{sCI}, 3")
    a(f"s_add_u32 s{sT3}, s{sT3}, s{sUD}")
    a(f"s_lshl_b32 s{sT3}, s{sT3}, 13")
    a(f"s_add_u32 s{sT3}, s{sT3}, {256*4096}")
    a(f"v_lshlrev_b32 v5, 7, v{vL}")
    a(f"buffer_load_dword v131, v5, {srd(SH)}, s{sT3} offen")
    a.label("Lc5b")
    a(f"s_mov_b32 s{sT1}, 0")
    conv_setup(sW, sT1)
    s3_setup()
    wo_prep(vL16)
    conv_dfrag()
    stamp(2)

    a.label("Lcjoin")
    a(f"s_lshl_b32 s{sT1}, s{sCI}, 2")
    h_dma(sW, sT1)
    a(f"s_cmp_lg_u32 s{sW}, 0")
    a("s_cbranch_scc1 Lc8")
    fc_addr(46)
    f0_addr(44)
    poll(46, 47)
    poll(44, 45)
    a.label("Lc8")
    a("s_mov_b32 s1, 0")
    stamp(11)
    a("s_barrier")
    stamp(12)
    u_dma(sW, 2)
    x_loads()
    if "delayconv" in EXP:
        for x in wo_list(vL16): a(x)
    a("s_waitcnt vmcnt(%d) lgkmcnt(0)" % (27 if "delayconv" in EXP else 2))
    a("s_barrier")
    stamp(3)

def conv_body(tiles):
    seq = []
    for b in range(4):
        if tiles[0] == 0:
            for aa in range(8):
                for ti in (3, 2):
                    d = tiles[ti] - aa
                    if d >= 0:
                        seq.append((ti, ("H", 4 * aa + b, 0), ("U", 4 * d - b)))
                        if b == 0 and aa == 0: seq.append((ti, ("D",), ("U", 4 * d)))
                if aa == 5:
                    seq.append((1, ("H", b, 1), ("U", 4 - b)))
                    if b == 0: seq.append((1, ("D",), ("U", 4)))
                if aa == 6:
                    seq.append((0, ("H", b, 1), ("U", -b)))
                    if b == 0: seq.append((0, ("D",), ("U", 0)))
                    seq.append((1, ("H", 4 + b, 1), ("U", -b)))
        else:
            for aa in range(6):
                for ti in (3, 2, 1, 0):
                    d = tiles[ti] - aa
                    if d >= 0:
                        seq.append((ti, ("H", 4 * aa + b, 0), ("U", 4 * d - b)))
                        if b == 0 and aa == 0: seq.append((ti, ("D",), ("U", 4 * d)))
    assert len(seq) == 76
    last = {}; order = []
    for i, (ti, h, u) in enumerate(seq):
        for k in (u, h):
            if k[0] == "D": continue
            if k not in last: order.append(k)
            last[k] = i
    free = list(range(NPOOL))
    where = {}; done_at = {}
    nds = [0]; li = [0]
    def issue(maxn):
        n = 0
        while li[0] < len(order) and free and n < maxn:
            k = order[li[0]]; li[0] += 1
            bfr = free.pop(0); where[k] = bfr
            r = CPOOL + 4 * bfr
            if k[0] == "U":
                a(f"ds_read_b128 {vr(r,4)}, v{vUo if k[1]&1 else vUe} offset:{(k[1]+3)*512}")
                nds[0] += 1; n += 1
            else:
                a(f"ds_read_b64_tr_b16 {vr(r,2)}, v{vH} offset:{128*k[1]+32}")
                a(f"ds_read_b64_tr_b16 {vr(r+2,2)}, v{vH} offset:{128*k[1]}")
                nds[0] += 2; n += 2
            done_at[k] = nds[0]
    issue(10)
    started = set(); known = 0
    wl = wo_list(vL16); wi = 25 if "delayconv" in EXP else 0
    for i, (ti, h, u) in enumerate(seq):
        needn = max(done_at[k] for k in (u, h) if k[0] != "D")
        if needn > known:
            cnt = min(nds[0] - needn, 15)
            a(f"s_waitcnt lgkmcnt({cnt})")
            known = nds[0] - cnt
        d = vr(CACC + 16 * ti, 16)
        hb = CD if h[0] == "D" else CPOOL + 4 * where[h]
        a(f"v_mfma_f32_32x32x16_bf16 {d}, {vr(CPOOL+4*where[u],4)}, {vr(hb,4)}, {d if ti in started else '0'}")
        started.add(ti)
        for k in (u, h):
            if k[0] != "D" and last[k] == i: free.append(where[k])
        issue(2)
        if i == 30:
            D = a.newlabel("Lgf")
            a("s_cmp_eq_u32 s1, 0")
            a(f"s_cbranch_scc1 {D}")
            a(f"s_waitcnt vmcnt({wi})")
            flag_store(vG, vG + 1, "s0")
            a.label(D)
        if wi < 25 and ("wo3" not in EXP or i % 3 == 1): a(wl[wi]); wi += 1
    assert wi == 25

def conv_epi(var):
    runs = [[*range(0, 8)], [*range(8, 16)]] if var == 0 else [[*range(16)]]
    out_g = 7 if var == 0 else 15
    in_g = 8 if var == 0 else 0
    SPL = 96
    a("s_nop 7")
    a("s_nop 3")
    for step in (2, 1, 0):
        a("s_mov_b32 exec_lo, 0")
        a("s_mov_b32 exec_hi, 0x80000000")
        a(f"v_mov_b32 v{SPL+step}, v{CACC+4*out_g+step+1}")
        for run in runs:
            for g in reversed(run):
                src = f"v{CACC+4*(g-1)+step+1}" if g != run[0] else "0"
                a(f"v_mov_b32 v{CACC+4*g+step+1}, {src}")
        if step == 0:
            a(f"ds_write_b96 v{vCS}, {vr(SPL,3)}")
            a("v_mov_b32 v100, 1")
            a(f"ds_add_u32 v{vCN}, v100")
        a("s_mov_b64 exec, -1")
        for g in reversed(range(16)):
            r = CACC + 4 * g + step
            a(f"v_add_f32_dpp v{r}, v{r+1}, v{r} wave_ror:1 row_mask:0xf bank_mask:0xf")
    a(f"v_xor_b32 v101, 16, v{vCS}")
    a(f"v_lshl_add_u32 v101, v{vL}, 2, v101")
    PK = 104
    other = [k for k in range(8) if k != in_g // 2]
    for k in other: a(f"v_cvt_pk_bf16_f32 v{PK+k}, v{CACC+8*k}, v{CACC+8*k+4}")
    oh = 1 - in_g // 8
    a(f"ds_write_b128 v{vCW}, {vr(PK+4*oh,4)} offset:{1024*oh}")
    lds_wait(vCN, 100, 2)
    a("s_mov_b64 exec, 7")
    a("ds_read_b32 v100, v101")
    a("s_waitcnt lgkmcnt(0)")
    a(f"v_add_f32 v{CACC+4*in_g}, v{CACC+4*in_g}, v100")
    a("s_mov_b64 exec, -1")
    k = in_g // 2
    a(f"v_cvt_pk_bf16_f32 v{PK+k}, v{CACC+8*k}, v{CACC+8*k+4}")
    a(f"ds_write_b128 v{vCW}, {vr(PK+4*(1-oh),4)} offset:{1024*(1-oh)}")
    T0, T1 = (0, 6) if var == 0 else (2, 4)
    a(f"s_lshl_b32 s{sT5}, s{sCH}, 6")
    a(f"s_add_u32 s{sT4}, s{sT5}, {WS_Y + T0*8*40960}")
    a(f"s_add_u32 s{sT5}, s{sT5}, {WS_Y + T1*8*40960}")
    a(f"s_lshr_b32 s{sT6}, s{sCH}, 5")
    a(f"s_lshl_b32 s{sT6}, s{sT6}, 8")
    a(f"s_add_u32 s{sT6}, s{sT6}, {WS_FY + var*20*256}")

def conv():
    a.label("Lconv")
    a(f"s_cmp_eq_u32 s{sVAR}, 1")
    a("s_cbranch_scc1 Lconvy")
    conv_body([0, 1, 6, 7])
    stamp(4)
    conv_epi(0)
    a("s_branch Lconve")
    a.label("Lconvy")
    conv_body([2, 3, 4, 5])
    stamp(4)
    conv_epi(1)
    a.label("Lconve")
    for n in range(2):
        a(f"ds_read_b64_tr_b16 {vr(112+4*n,2)}, v{vCT} offset:{1024*n}")
        a(f"ds_read_b64_tr_b16 {vr(114+4*n,2)}, v{vCT} offset:{1024*n+64}")
    arr_prep(152, 153)
    for n in range(2):
        a(f"s_waitcnt lgkmcnt({2-2*n})")
        a(f"buffer_store_dwordx4 {vr(112+4*n,4)}, v{vCY}, {srd(SWS)}, s{sT5 if n else sT4} offen sc1")
    stamp(13)
    a(f"s_mov_b32 s{sUD}, 1")
    a(f"buffer_load_dword v{vFT}, v{vFQ}, {srd(SWS)}, 0 offen sc1")
    a("s_branch Ls3b")

def s3():
    a.label("Ls3")
    a.c("S3")
    PQ, RAW, KF = 32, 52, 116
    plan = []
    for i in range(4):
        for st in range(2):
            for jh in range(2):
                du0 = 4 * (i + st) + 2 * jh - 5 * i
                plan.append((i, st, jh, du0, 0 <= du0 <= 4, 0 <= du0 + 1 <= 4))
    for x in wo_list(vL16)[4:25 if "noawo" in EXP else 9]: a(x)
    x_loads()
    a(f"s_mov_b32 s{sUD}, 0")
    a(f"buffer_load_dword v{vFT}, v{vFQ}, {srd(SWS)}, 0 offen sc1")
    a.label("Ls3b")
    for (i, st, jh, du0, v0ok, v1ok) in plan:
        if v0ok != v1ok:
            for j in range(4): a(f"v_mov_b32 v{RAW+16*i+8*st+4*jh+j}, 0")
    a(f"s_add_u32 s{sT1}, s{sPQO}, 4096")
    a(f"s_add_u32 s{sT3}, s{sKVO}, {2*KVH}")
    a("s_waitcnt vmcnt(0)")
    a(f"s_cmp_eq_u32 s{sUD}, 0")
    a("s_cbranch_scc1 Ls3c")
    arr_issue(152, 153, f"s{sT6}")
    a(f"v_cmp_ne_u32 vcc, s{sTAG}, v{vFT}")
    a("s_cbranch_vccz Ls3d")
    arr_finish(152, 153, f"s{sT6}", 32)
    a(f"s_mov_b32 s{sUD}, 0")
    a.label("Ls3c")
    poll(vFQ, vFT, "landed")
    a.label("Ls3d")
    stamp(5)
    a(f"buffer_load_dword v{vFT}, v{vFK}, {srd(SWS)}, 0 offen sc1")
    for f in range(4): a(f"buffer_load_dwordx4 {vr(PQ+4*f,4)}, v{vL16}, {srd(SWS)}, s{sPQO} offen offset:{1024*f} sc1")
    a(f"buffer_load_dwordx4 {vr(PQ+16,4)}, v{vL16}, {srd(SWS)}, s{sT1} offen sc1")
    a(f"buffer_load_dword v{vG}, v{vGO}, {srd(SWS)}, 0 offen sc1")
    a("s_waitcnt vmcnt(6)")
    a(f"s_cmp_eq_u32 s{sUD}, 0")
    a("s_cbranch_scc1 Ls3e")
    arr_finish(152, 153, f"s{sT6}", 32, 6)
    a.label("Ls3e")
    poll(vFK, vFT, "landed")
    stamp(6)
    nload = [0] * 4
    for (i, st, jh, du0, v0ok, v1ok) in plan:
        if not (v0ok or v1ok): continue
        off = (i & 1) * KVH + du0 * 336
        part = v0ok != v1ok
        if part: a(f"s_mov_b32 exec_{'hi' if v0ok else 'lo'}, 0")
        a(f"buffer_load_dwordx4 {vr(RAW+16*i+8*st+4*jh,4)}, v{vKO if i&1 else vKE}, {srd(SWS)}, s{sT3 if i>>1 else sKVO} offen offset:{off} sc1")
        if part: a("s_mov_b64 exec, -1")
        nload[i] += 1
    a(f"buffer_load_dword v{vFT}, v{vFY}, {srd(SWS)}, 0 offen sc1")
    rem = sum(nload) + 1
    for i in range(4):
        rem -= nload[i]
        a(f"s_waitcnt vmcnt({rem})")
        kf = KF + 8 * (i & 1)
        for (i2, st, jh, du0, v0ok, v1ok) in plan:
            if i2 != i: continue
            for j in range(2):
                d = kf + 4 * st + 2 * jh + j; s = RAW + 16 * i + 8 * st + 4 * jh + 2 * j
                if v0ok or v1ok: a(f"v_cvt_pk_bf16_f32 v{d}, v{s}, v{s+1}")
                else: a(f"v_mov_b32 v{d}, 0")
        d = vr(RAW + 16 * i, 16)
        a(f"v_mfma_f32_32x32x16_bf16 {d}, {vr(kf,4)}, {vr(PQ+4*i,4)}, 0")
        a(f"v_mfma_f32_32x32x16_bf16 {d}, {vr(kf+4,4)}, {vr(PQ+4*i+4,4)}, {d}")
    OF = 132
    for i in range(4):
        D = RAW + 16 * i
        a(f"v_add_f32 v{D+12}, s{sEPS}, v{D+12}")
        a(f"v_rcp_f32 v{D+12}, v{D+12}")
        for j in range(8): a(f"v_mul_f32 v{D+j}, v{D+j}, v{D+12}")
        for j in range(4): a(f"v_cvt_pk_bf16_f32 v{OF+4*i+j}, v{D+2*j}, v{D+2*j+1}")
        a(f"ds_write_b128 v{vOW}, {vr(OF+4*i,4)} offset:{1024*i}")
        if i & 1 == 0:
            for j in range(4): a(f"v_mul_f32 v{D+8+j}, v{D+8+j}, v{D+12}")
        else:
            for j in range(4): a(f"v_fmac_f32 v{D-8+j}, v{D+8+j}, v{D+12}")
            for j in range(2): a(f"v_cvt_pk_bf16_f32 v{OF+16+2*(i>>1)+j}, v{D-8+2*j}, v{D-8+2*j+1}")
    a(f"ds_write_b128 v{vOW}, {vr(OF+16,4)} offset:4096")
    a(f"s_mov_b32 s{sUD}, 1")
    a(f"s_cmp_ge_u32 s{sW}, 5")
    a("s_cbranch_scc1 Ls3y1")
    a("s_waitcnt vmcnt(0)")
    a(f"v_cmp_ne_u32 vcc, s{sTAG}, v{vFT}")
    a(f"s_mov_b32 m0, s{sYM}")
    a("s_cbranch_vccnz Ls3y0")
    a(f"buffer_load_dwordx4 v{vL16}, {srd(SWS)}, s{sYO} offen sc1 lds")
    a(f"buffer_load_dwordx4 v{vL16}, {srd(SWS)}, s{sYO} offen offset:1024 sc1 lds")
    a("s_branch Ls3y1")
    a.label("Ls3y0")
    a(f"s_mov_b32 s{sUD}, 0")
    a(f"buffer_load_dword v{vFT}, v{vFY}, {srd(SWS)}, 0 offen sc1")
    a.label("Ls3y1")
    if "nog3prio" not in EXP:
        a(f"s_cmp_ge_u32 s{sW}, 4")
        a("s_cbranch_scc1 Ls3y2")
        a("s_setprio 1")
        a.label("Ls3y2")
    a("s_waitcnt lgkmcnt(0)")
    a("s_barrier")
    stamp(7)
    NB = 8; POOL = 32; AP, AR = 64, 80
    def ord_(i): return (vPR, 1024 * i) if i < 15 else (vRR, 1024 * (i - 15))
    for i in range(NB):
        v, o = ord_(i); a(f"ds_read_b128 {vr(POOL+4*i,4)}, v{v} offset:{o}")
    XF = 96
    pre = [f"v_sub_f32 v{vG+2}, 1.0, v{vG}", f"s_mov_b32 s{sT0}, 0xffff0000"]
    for n, xd in enumerate((vXD, vXD2)):
        for j in range(4):
            pre.append(f"v_lshlrev_b32 v{XF+8*n+2*j}, 16, v{xd+j}")
            pre.append(f"v_and_b32 v{XF+8*n+2*j+1}, s{sT0}, v{xd+j}")
        for j in range(8): pre.append(f"v_mul_f32 v{XF+8*n+j}, v{XF+8*n+j}, v{vG+2}")
    issued = NB
    log = list(range(NB))
    for i in range(25):
        pos = log.index(i)
        a(f"s_waitcnt lgkmcnt({min(len(log)-1-pos,15)})")
        d = vr(AP if i < 15 else AR, 16)
        a(f"v_mfma_f32_32x32x16_bf16 {d}, {vr(VWO+4*i,4)}, {vr(POOL+4*(i%NB),4)}, {'0' if i in (0,15) else d}")
        if issued < 25:
            v, o = ord_(issued); a(f"ds_read_b128 {vr(POOL+4*(issued%NB),4)}, v{v} offset:{o}"); log.append(issued); issued += 1
        if i < 12:
            for x in pre[3 * i:3 * i + 3]: a(x)
        if i == 14:
            a(f"s_cmp_eq_u32 s{sUD}, 1")
            a("s_cbranch_scc1 Ls3ny")
            poll(vFY, vFT, "issued")
            a(f"buffer_load_dwordx4 v{vL16}, {srd(SWS)}, s{sYO} offen sc1 lds")
            a(f"buffer_load_dwordx4 v{vL16}, {srd(SWS)}, s{sYO} offen offset:1024 sc1 lds")
            a.label("Ls3ny")
        if 19 <= i < 23:
            q = i - 19
            a(f"ds_write_b128 v{vPW+q}, {vr(AP+4*q,4)}"); log.append(-1)
            a(f"v_add_u32 v{vPW+q}, s{sRD}, v{vPW+q}")
    for q in range(4): a(f"ds_write_b128 v{vPW+q}, {vr(AR+4*q,4)}")
    a("s_waitcnt vmcnt(0) lgkmcnt(0)")
    a("s_barrier")
    stamp(8)
    def f_reads(n, R):
        np_ = 3 + n
        for p in range(np_):
            a(f"ds_read_b128 {vr(R+8*p,4)}, v{vPA} offset:{49152*n+4096*p}")
            a(f"ds_read_b128 {vr(R+8*p+4,4)}, v{vPB} offset:{49152*n+4096*p}")
        a(f"ds_read_b64_tr_b16 {vr(R+32,2)}, v{vYT} offset:{8192*n}")
        a(f"ds_read_b64_tr_b16 {vr(R+34,2)}, v{vYT} offset:{8192*n+256}")
    def f_math(n, R, after):
        np_ = 3 + n
        X = XF + 8 * n; YF = R + 36
        a(f"s_waitcnt lgkmcnt({min(after+2*np_+2-4,15)})")
        for j in range(4): a(f"v_pk_add_f32 {vr(R+2*j,2)}, {vr(R+2*j,2)}, {vr(R+8+2*j,2)}")
        a(f"s_waitcnt lgkmcnt({after+2})")
        for p in range(2, np_):
            for j in range(4): a(f"v_pk_add_f32 {vr(R+2*j,2)}, {vr(R+2*j,2)}, {vr(R+8*p+2*j,2)}")
        a(f"s_waitcnt lgkmcnt({after})")
        for j in range(4):
            a(f"v_lshlrev_b32 v{YF+2*j}, 16, v{R+32+j}")
            a(f"v_and_b32 v{YF+2*j+1}, s{sT0}, v{R+32+j}")
        for j in range(4): a(f"v_pk_mul_f32 {vr(X+2*j,2)}, {vr(X+2*j,2)}, {vr(YF+2*j,2)}")
        for j in range(4): a(f"v_pk_fma_f32 {vr(R+2*j,2)}, {vr(R+2*j,2)}, {vr(vG,2)}, {vr(X+2*j,2)} op_sel_hi:[1,0,1]")
        for j in range(4): a(f"v_cvt_pk_bf16_f32 v{R+32+j}, v{R+2*j}, v{R+2*j+1}")
        a(f"buffer_store_dwordx4 {vr(R+32,4)}, v{vOUT}, {srd(SOUT)}, s{sXOFF} offen offset:{256*n}" + (" sc1" if "osc1" in EXP else " nt" if "ont" in EXP else " sc0 sc1" if "osys" in EXP else ""))
    f_reads(0, 32)
    a(f"s_cmp_lt_u32 s{sW}, 2")
    a("s_cbranch_scc1 Lfin2")
    f_math(0, 32, 0)
    a("s_branch Lfin")
    a.label("Lfin2")
    f_reads(1, 112)
    f_math(0, 32, 10)
    f_math(1, 112, 0)
    a.label("Lfin")
    if DIAG:
        a("s_waitcnt vmcnt(0)")
        stamp(9)
        a(f"s_memtime vcc")
        a("s_waitcnt lgkmcnt(0)")
        a(f"s_mov_b32 s{STS+15}, vcc_lo")
        a("v_mov_b32 v2, 0")
        for i in range(16): a(f"v_writelane_b32 v2, s{STS+i}, {i}")
        a(f"v_lshlrev_b32 v3, 2, v{vL}")
        a(f"s_lshl_b32 s{sT0}, s{sBID}, 3")
        a(f"s_add_u32 s{sT0}, s{sT0}, s{sW}")
        a(f"s_lshl_b32 s{sT0}, s{sT0}, 6")
        a(f"s_add_u32 s{sT0}, s{sT0}, {WS_TS}")
        a("s_mov_b64 exec, 0xffff")
        a(f"buffer_store_dword v2, v3, {srd(SWS)}, s{sT0} offen")
        sp = [e for e in EXP if e.startswith("spin")]
        if sp:
            si, wv, lo, hi = [int(x) for x in sp[0][4:].split("_")]
            a(f"s_cmp_lg_u32 s{sW}, {wv}")
            a("s_cbranch_scc1 Lend")
            a(f"s_cmp_lt_u32 s{sIDX}, {lo}")
            a("s_cbranch_scc1 Lend")
            a(f"s_cmp_ge_u32 s{sIDX}, {hi}")
            a("s_cbranch_scc1 Lend")
            if si < 16:
                if "neg" in EXP: a(f"s_sub_u32 s{sT0}, s{sTAG}, s{STS+si}")
                else: a(f"s_sub_u32 s{sT0}, s{STS+si}, s{sTAG}")
                a(f"s_add_u32 s{sT0}, s{sT0}, 5000")
                a(f"s_and_b32 s{sT0}, s{sT0}, 0x7ffffff")
                a(f"s_min_u32 s{sT0}, s{sT0}, 20000")
            else: a(f"s_mov_b32 s{sT0}, 5000")
            a.label("Lspin")
            a("s_memrealtime vcc")
            a("s_waitcnt lgkmcnt(0)")
            a(f"s_sub_u32 s{sT1}, vcc_lo, s{sTAG}")
            a(f"s_and_b32 s{sT1}, s{sT1}, 0x7ffffff")
            a(f"s_cmp_lt_u32 s{sT1}, s{sT0}")
            a("s_cbranch_scc1 Lspin")
        if "dbgts" in EXP:
            a(f"s_cmp_lg_u32 s{sW}, {int([e for e in EXP if e.startswith('wv')][0][2:])}")
            a("s_cbranch_scc1 Lend")
            a(f"s_cmp_ge_u32 s{sIDX}, 16")
            a("s_cbranch_scc1 Lend")
            a("v_cmp_ne_u32 vcc, 0, v2")
            a(f"v_subrev_u32 v2, s{sTAG}, v2")
            a("v_add_u32 v2, 100, v2")
            a("v_and_b32 v2, 0x7ffffff, v2")
            a("v_cndmask_b32 v2, 0, v2, vcc")
            a("s_mov_b64 exec, 0x3fff")
            a(f"buffer_atomic_umax v2, v3, {srd(SDBG)}, 0 offen offset:4 sc1")
    a.label("Lend")
    a("s_endpgm")

entry(); bwave(); awave(); kva(); qa(); ctype(); conv(); s3()

ref = open("cdna_kernels/%s.s.ref" % NAME).read()
head = [l for l in ref.split("\n") if l.startswith(";") and "@launch" not in l]
out = "\n".join(head) + "\n"
out += "; @launch grid=(256,1,1) block=(512,1,1) lds=%d\n" % LDS_BYTES
out += '.amdgcn_target "amdgcn-amd-amdhsa--gfx950"\n.text\n.globl %s_kernel\n.p2align 8\n.type %s_kernel,@function\n%s_kernel:\n' % (NAME, NAME, NAME)
out += a.text()
out += '''.section .rodata,"a"
.p2align 6
.amdhsa_kernel %s_kernel
  .amdhsa_next_free_vgpr 256
  .amdhsa_next_free_sgpr 102
  .amdhsa_accum_offset 256
  .amdhsa_group_segment_fixed_size 0
  .amdhsa_kernarg_size 104
  .amdhsa_user_sgpr_count 2
  .amdhsa_user_sgpr_kernarg_segment_ptr 1
  .amdhsa_system_sgpr_workgroup_id_x 1
.end_amdhsa_kernel
''' % NAME
dst = [x for x in sys.argv[1:] if not x.startswith("--")]
open(dst[0] if dst else "cdna_kernels/%s.s" % NAME, "w").write(out)
```

```python
import sys
from asmlib import Asm, vr, sr

NAME = "gated_mix__linear_attn_block__ssm_conv_h3__prompt"
DIAG = "--diag" in sys.argv
EXP = [x[6:] for x in sys.argv if x.startswith("--exp=")]

WS_U = 0
WS_PQ = 0x280000
WS_Y = 0x500000
WS_WOP = 0x780000
WS_KV = 0x850000
WS_C = 0x860000
CDELTA = 0x20000
WS_FK = WS_C
WS_FY = WS_C + 32 * 256
WS_F0 = WS_C + 72 * 256
WS_FC = WS_C + 88 * 256
WS_FG = WS_C + 128 * 256
WS_FQ = WS_C + 256 * 256
WS_G = 0x88C000
WS_TS = 0x890000
WS_SIZE = 0x900000
KVH = 1792

SLOT = 36864
L_OFR = 36864
L_KVS = 77824
L_YST = 92160
L_PART = 77824
L_UB = 110592
L_UD = L_UB + 2048
L_HB = 129024
HSTR = 4224
L_SP = 145920
L_CNT = 146048
L_TAG = 146112
L_YT = 146176
L_S0C = 0
L_RPC = 49152
LDS_BYTES = L_YT + 10240

SX, SWQ, SWO, SK, SV, SSK, SH, SGW, SOUT, SDBG, SWS = [4 + 4 * i for i in range(11)]
SD = 48
sW, sXCD, sIDX, sRP, sCP, sTAG, sCNT = range(50, 57)
sRB, sCG, sQUAD, sCHL, sLC, sVAR, sCH, sJ, sUD = range(57, 66)
sT0, sT1, sT2, sT3, sT4, sT5, sT6, sT7 = range(66, 74)
sLOG = 74
sCI = 76
sDV = 77
STS = 80
sXOFF, sPQO, sKVO, sTB, sYO, sYM = 96, 97, 98, 99, 100, 101
sCHB = 65
sRD = 3
sWOO = 2
sEPS = 79
sBID = 78
def srd(b): return sr(b, 4)

vL = 0
VWO = 156
vL16, vOW, vPR, vRR, vPW = 1, 2, 3, 4, 5
vKE, vKO, vFK, vFY, vZ, vOUT, vPA, vPB, vYT, vFT, vGO = 9, 10, 11, 12, 13, 14, 15, 16, 17, 18, 19
vXD, vG, vXD2 = 20, 24, 28
vFQ, vFE = 27, 25

a = Asm()
BST = [None]
def stamp(i, force=False):
    if "bst" in EXP and not force and i not in (0, 10): return
    if DIAG:
        a(f"{'s_memtime' if 'cyc' in EXP else 's_memrealtime'} vcc")
        a("s_waitcnt lgkmcnt(0)")
        a(f"s_mov_b32 s{STS+i}, vcc_lo")

def poll(vaddr, vdst, state="none", sleep=2):
    L = a.newlabel("Lpoll"); D = a.newlabel("Lpd")
    if state != "none":
        if state == "issued": a("s_waitcnt vmcnt(0)")
        a(f"v_cmp_ne_u32 vcc, s{sTAG}, v{vdst}")
        a(f"s_cbranch_vccz {D}")
    a(f"s_mov_b32 s{sCNT}, 0x20000")
    a.label(L)
    a(f"buffer_load_dword v{vdst}, v{vaddr}, {srd(SWS)}, 0 offen sc1")
    a("s_waitcnt vmcnt(0)")
    a(f"v_cmp_ne_u32 vcc, s{sTAG}, v{vdst}")
    a(f"s_cbranch_vccz {D}")
    if sleep: a(f"s_sleep {sleep}")
    a(f"s_sub_u32 s{sCNT}, s{sCNT}, 1")
    a(f"s_cbranch_scc0 {L}")
    a.label(D)

def cnt_load(S, vaddr, vdst):
    a(f"buffer_load_dword v{vdst}, v{vaddr}, {srd(S)}, 0 offen sc1")

def tag_get(vz, vdst, state="issued"):
    L = a.newlabel("Ltag"); D = a.newlabel("Ltd")
    if state != "none":
        if state == "issued": a("s_waitcnt vmcnt(0)")
        a(f"v_readfirstlane_b32 s{sTAG}, v{vdst}")
        a(f"s_cmp_lg_u32 s{sTAG}, 0")
        a(f"s_cbranch_scc1 {D}")
    a(f"s_mov_b32 s{sCNT}, 0x20000")
    a.label(L)
    a(f"buffer_load_dword v{vdst}, v{vz}, {srd(SDBG)}, 0 offen sc1")
    a("s_waitcnt vmcnt(0)")
    a(f"v_readfirstlane_b32 s{sTAG}, v{vdst}")
    a(f"s_cmp_lg_u32 s{sTAG}, 0")
    a(f"s_cbranch_scc1 {D}")
    a("s_sleep 2")
    a(f"s_sub_u32 s{sCNT}, s{sCNT}, 1")
    a(f"s_cbranch_scc0 {L}")
    a.label(D)

def tag_lds(vtmp):
    a(f"v_mov_b32 v{vtmp}, {L_TAG}")
    a(f"ds_read_b32 v{vtmp}, v{vtmp}")
    a("s_waitcnt lgkmcnt(0)")
    a(f"v_readfirstlane_b32 s{sTAG}, v{vtmp}")

def arr_prep(vt0, vt1):
    a(f"v_mov_b32 v{vt0}, {CDELTA}")
    a(f"v_mov_b32 v{vt1}, 1")
def arr_issue(vt0, vt1, soff):
    a("s_mov_b64 exec, 1")
    a(f"buffer_atomic_add v{vt1}, v{vt0}, {srd(SWS)}, {soff} offen sc0 sc1")
    a("s_mov_b64 exec, -1")
def arr_finish(vt0, vt1, soff, n, wait=0):
    D = a.newlabel("Lal")
    a(f"s_waitcnt vmcnt({wait})")
    a(f"v_readfirstlane_b32 s{sT7}, v{vt1}")
    a(f"s_cmp_lg_u32 s{sT7}, {n-1}")
    a(f"s_cbranch_scc1 {D}")
    flag_store(vt0, vt1, soff)
    a.label(D)
def flag_store(vt0, vt1, soff):
    a(f"v_mov_b32 v{vt0}, 0")
    a(f"v_mov_b32 v{vt1}, s{sTAG}")
    a("s_mov_b64 exec, 1")
    a(f"buffer_store_dword v{vt1}, v{vt0}, {srd(SWS)}, {soff} offen sc1")
    a("s_mov_b64 exec, -1")

def lds_arrive(vaddr, vtmp):
    a(f"v_mov_b32 v{vtmp}, 1")
    a("s_mov_b64 exec, 1")
    a(f"ds_add_u32 v{vaddr}, v{vtmp}")
    a("s_mov_b64 exec, -1")
def lds_wait(vaddr, vtmp, target):
    L = a.newlabel("Lls"); D = a.newlabel("Lld")
    a(f"s_mov_b32 s{sCNT}, 0x400000")
    a.label(L)
    a(f"ds_read_b32 v{vtmp}, v{vaddr}")
    a("s_waitcnt lgkmcnt(0)")
    a(f"v_readfirstlane_b32 s{sT7}, v{vtmp}")
    a(f"s_cmp_ge_u32 s{sT7}, {target}")
    a(f"s_cbranch_scc1 {D}")
    a(f"s_sub_u32 s{sCNT}, s{sCNT}, 1")
    a(f"s_cbranch_scc0 {L}")
    a.label(D)

def div20(vq, vr_, vp):
    a(f"v_mul_u32_u24 v{vq}, 3277, v{vp}")
    a(f"v_lshrrev_b32 v{vq}, 16, v{vq}")
    a(f"v_mul_u32_u24 v{vr_}, 20, v{vq}")
    a(f"v_sub_u32 v{vr_}, v{vp}, v{vr_}")
for p in range(1000): assert (p * 3277) >> 16 == p // 20

SIZES = {SX: 2621440, SWQ: 2457600, SWO: 819200, SK: 2621440, SV: 2621440, SSK: 5120, SH: 2621440, SGW: 1280, SOUT: 2621440, SDBG: 256, SWS: WS_SIZE}
def srd_init(lst):
    for s in lst:
        a(f"s_mov_b32 s{s+2}, {SIZES[s]}")
        a(f"s_mov_b32 s{s+3}, 0x20000")
def common_scalars():
    a(f"s_mov_b32 s{sLOG}, 0x3fb8aa3b")
    a(f"s_mov_b32 s{sLOG+1}, 0x3fb8aa3b")
    a(f"s_mov_b32 s{sEPS}, 0x358637bd")
    a(f"s_and_b32 s{sT0}, s{sIDX}, 7")
    a(f"s_lshl_b32 s{sCI}, s{sXCD}, 3")
    a(f"s_add_u32 s{sCI}, s{sCI}, s{sT0}")

def entry():
    a.label("Lentry")
    a(f"s_cmp_ge_u32 s2, 256")
    a("s_cbranch_scc1 Lend")
    if DIAG: a(f"s_memrealtime {sr(sT6,2)}")
    a(f"s_getpc_b64 {sr(sT0,2)}")
    a.label("Lpcref")
    a(f"s_lshr_b32 s{sIDX}, s2, 3")
    a(f"s_mul_i32 s{sT2}, s{sIDX}, 9")
    a("v_min_u32 v1, 8, v0")
    a(f"v_add_lshl_u32 v1, v1, s{sT2}, 7")
    a("v_min_u32 v1, Lend-Lpcref, v1")
    a(f"global_load_dword v255, v1, {sr(sT0,2)}")
    for s, off in ((SX, 0), (SWQ, 8), (SK, 32), (SV, 40), (SSK, 48), (SWS, 96), (SDBG, 88), (SH, 56), (SWO, 16), (SGW, 72), (SOUT, 80), (SD, 64)):
        a(f"s_load_dwordx2 {sr(s,2)}, s[0:1], {off}")
    a("v_lshrrev_b32 v1, 6, v0")
    a(f"v_and_b32 v{vL}, 63, v0")
    a(f"v_readfirstlane_b32 s{sW}, v1")
    a(f"s_and_b32 s{sXCD}, s2, 7")
    a(f"s_and_b32 s{sRP}, s2, 3")
    a(f"s_bfe_u32 s{sCP}, s2, 0x10002")
    a(f"s_mov_b32 s{sBID}, s2")
    a(f"s_and_b32 s{sT0}, s{sIDX}, 3")
    a(f"s_lshl_b32 s{sRB}, s{sRP}, 2")
    a(f"s_add_u32 s{sRB}, s{sRB}, s{sT0}")
    if DIAG:
        for i in range(16): a(f"s_mov_b32 s{STS+i}, 0")
        stamp(0)
        a(f"s_mov_b32 s{STS+10}, s{sT6}")
        a(f"s_memtime vcc")
        a("s_waitcnt lgkmcnt(0)")
        a(f"s_mov_b32 s{STS+14}, vcc_lo")
    a(f"s_cmp_ge_u32 s{sIDX}, 24")
    a("s_cbranch_scc1 Lctype")
    a(f"s_cmp_lt_u32 s{sW}, 4")
    a("s_cbranch_scc1 Lawave")

def s3_setup(split=None):
    a.c("S3 setup")
    sR3, sC3 = sT2, sT3
    a(f"s_lshr_b32 s{sT0}, s{sIDX}, 1")
    a(f"s_lshl_b32 s{sR3}, s{sRP}, 4")
    a(f"s_add_u32 s{sR3}, s{sR3}, s{sT0}")
    a(f"s_and_b32 s{sT0}, s{sIDX}, 1")
    a(f"s_lshl_b32 s{sC3}, s{sCP}, 1")
    a(f"s_add_u32 s{sC3}, s{sC3}, s{sT0}")
    a(f"v_lshlrev_b32 v{vL16}, 4, v{vL}")
    a(f"v_mov_b32 v{vZ}, 0")
    a(f"v_lshrrev_b32 v24, 4, v{vL}")
    a(f"v_and_b32 v25, 3, v{vL}")
    a(f"v_bfe_u32 v26, v{vL}, 2, 2")
    a(f"s_and_b32 s{sT0}, s{sW}, 1")
    a(f"s_lshl_b32 s{sT1}, s{sT0}, 4")
    a("v_lshl_add_u32 v27, v24, 2, v25")
    a(f"v_add_u32 v27, s{sT1}, v27")
    a(f"v_mul_u32_u24 v{vOUT}, 1280, v27")
    a(f"v_lshl_add_u32 v{vOUT}, v26, 4, v{vOUT}")
    a(f"s_mul_i32 s{sXOFF}, s{sR3}, 40960")
    a(f"s_mul_i32 s{sT4}, s{sC3}, 320")
    a(f"s_add_u32 s{sYO}, s{sXOFF}, {WS_Y}")
    a(f"s_add_u32 s{sXOFF}, s{sXOFF}, s{sT4}")
    a(f"s_lshr_b32 s{sT4}, s{sW}, 1")
    a(f"s_lshl_b32 s{sT5}, s{sT4}, 6")
    a(f"s_add_u32 s{sXOFF}, s{sXOFF}, s{sT5}")
    a(f"s_lshl_b32 s{sT5}, s{sR3}, 7")
    a(f"s_add_u32 s{sT5}, s{sT5}, {WS_G}")
    a(f"v_lshlrev_b32 v{vGO}, 2, v27")
    a(f"v_add_u32 v{vGO}, s{sT5}, v{vGO}")
    a(f"v_bfe_u32 v{vPA}, v27, 1, 1")
    a(f"v_and_b32 v{vPB}, 1, v27")
    a(f"v_lshl_or_b32 v{vPA}, v{vPB}, 1, v{vPA}")
    a(f"v_and_or_b32 v{vPA}, v27, 4, v{vPA}")
    a(f"v_lshlrev_b32 v{vPB}, 1, v26")
    a(f"v_xor_b32 v{vPA}, v{vPA}, v{vPB}")
    a(f"v_lshlrev_b32 v{vPA}, 4, v{vPA}")
    a(f"v_lshl_add_u32 v{vPA}, v27, 7, v{vPA}")
    a(f"s_mul_i32 s{sT5}, s{sT4}, 12288")
    a(f"s_add_u32 s{sT5}, s{sT5}, {L_PART}")
    a(f"v_add_u32 v{vPA}, s{sT5}, v{vPA}")
    a(f"v_xor_b32 v{vPB}, 16, v{vPA}")
    a(f"v_lshl_add_u32 v{vYT}, v25, 3, v26")
    a(f"v_lshlrev_b32 v{vYT}, 6, v{vYT}")
    a(f"v_lshl_add_u32 v{vYT}, v24, 3, v{vYT}")
    a(f"s_lshl_b32 s{sT4}, s{sT4}, 11")
    a(f"s_lshl_b32 s{sT1}, s{sT1}, 1")
    a(f"s_add_u32 s{sT4}, s{sT4}, s{sT1}")
    a(f"s_add_u32 s{sT4}, s{sT4}, {L_YT}")
    a(f"v_add_u32 v{vYT}, s{sT4}, v{vYT}")
    if split: split(0)
    a(f"v_and_b32 v24, 31, v{vL}")
    a(f"v_lshrrev_b32 v25, 5, v{vL}")
    a(f"v_bfe_u32 v{vPW}, v24, 1, 1")
    a("v_and_b32 v26, 1, v24")
    a(f"v_lshl_or_b32 v{vPW}, v26, 1, v{vPW}")
    a(f"v_and_or_b32 v{vPW}, v24, 4, v{vPW}")
    a(f"v_xor_b32 v{vPW}, v{vPW}, v25")
    a(f"v_lshlrev_b32 v{vPW}, 4, v{vPW}")
    a(f"v_lshl_add_u32 v{vPW}, v24, 7, v{vPW}")
    a(f"s_lshl_b32 s{sT4}, s{sT0}, 12")
    a(f"s_add_u32 s{sT5}, s{sT5}, s{sT4}")
    a(f"v_add_u32 v{vPW}, s{sT5}, v{vPW}")
    for q in range(1, 4): a(f"v_xor_b32 v{vPW+q}, {32*q}, v{vPW}")
    a(f"s_mul_i32 s{sT4}, s{sW}, 12288")
    a(f"s_add_u32 s{sT4}, s{sT4}, {L_PART+8192}")
    a(f"s_lshl_b32 s{sT1}, s{sW}, 12")
    a(f"s_add_u32 s{sT1}, s{sT1}, {L_PART+49152-16384}")
    a(f"s_cmp_lt_u32 s{sW}, 4")
    a(f"s_cselect_b32 s{sT4}, s{sT4}, s{sT1}")
    a(f"s_sub_u32 s{sRD}, s{sT4}, s{sT5}")
    a(f"s_sub_u32 s{sT1}, s{sW}, 4")
    a(f"s_cmp_lt_u32 s{sW}, 4")
    a(f"s_cselect_b32 s{sT1}, 3, s{sT1}")
    a(f"s_mul_i32 s{sT1}, s{sT1}, {10*1024}")
    a(f"s_add_u32 s{sT1}, s{sT1}, {L_OFR}")
    a(f"v_add_u32 v{vRR}, s{sT1}, v{vL16}")
    a(f"s_mul_i32 s{sT1}, s{sT0}, {15*1024}")
    a(f"s_add_u32 s{sT1}, s{sT1}, {L_OFR}")
    a(f"v_add_u32 v{vPR}, s{sT1}, v{vL16}")
    a(f"s_mul_i32 s{sT1}, s{sW}, 5120")
    a(f"s_add_u32 s{sT4}, s{sT1}, {L_OFR}")
    a(f"v_add_u32 v{vOW}, s{sT4}, v{vL16}")
    a(f"s_add_u32 s{sPQO}, s{sYO}, s{sT1}")
    a(f"s_add_u32 s{sPQO}, s{sPQO}, {(WS_PQ-WS_Y)&0xffffffff}")
    if split: split(1)
    a("v_mul_u32_u24 v25, 336, v25")
    a("v_min_u32 v26, 20, v24")
    a("v_lshl_add_u32 v26, v26, 4, v25")
    a("v_lshrrev_b32 v27, 2, v24")
    a(f"v_mov_b32 v{vFT}, 0x7f000000")
    a("v_cmp_eq_u32 vcc, 5, v27")
    a(f"v_subrev_u32 v{vKO}, 4, v24")
    a(f"v_lshl_add_u32 v{vKO}, v{vKO}, 4, v25")
    a(f"v_cndmask_b32 v{vKE}, v26, v{vFT}, vcc")
    a(f"v_cndmask_b32 v{vKO}, v26, v{vKO}, vcc")
    a("v_cmp_eq_u32 vcc, 4, v27")
    a(f"s_mul_i32 s{sKVO}, s{sW}, {4*KVH}")
    a(f"s_add_u32 s{sKVO}, s{sKVO}, {WS_KV}")
    a(f"v_cndmask_b32 v{vKO}, v{vKO}, v{vFT}, vcc")
    a(f"s_lshl_b32 s{sT1}, s{sW}, 8")
    a(f"s_add_u32 s{sT1}, s{sT1}, {WS_FK}")
    a(f"v_mov_b32 v{vFQ}, s{sT1}")
    a(f"s_lshr_b32 s{sT1}, s{sR3}, 3")
    a(f"s_add_u32 s{sT1}, s{sT1}, 2")
    a(f"s_bfe_u32 s{sT1}, s{sT1}, 0x10002")
    a(f"s_mul_i32 s{sT1}, s{sT1}, 20")
    a(f"s_mul_i32 s{sT4}, s{sC3}, 5")
    a(f"s_min_u32 s{sT5}, s{sW}, 4")
    a(f"s_add_u32 s{sT4}, s{sT4}, s{sT5}")
    a(f"s_add_u32 s{sT1}, s{sT1}, s{sT4}")
    a(f"s_lshl_b32 s{sT1}, s{sT1}, 8")
    a(f"s_add_u32 s{sT1}, s{sT1}, {WS_FY}")
    a(f"v_mov_b32 v{vFY}, s{sT1}")
    a(f"s_lshl_b32 s{sT4}, s{sT4}, 11")
    a(f"s_add_u32 s{sYO}, s{sYO}, s{sT4}")
    a(f"s_lshl_b32 s{sYM}, s{sT5}, 11")
    a(f"s_add_u32 s{sYM}, s{sYM}, {L_YT}")

def x_loads():
    a(f"buffer_load_dwordx4 {vr(vXD,4)}, v{vOUT}, {srd(SX)}, s{sXOFF} offen")
    a(f"buffer_load_dwordx4 {vr(vXD2,4)}, v{vOUT}, {srd(SX)}, s{sXOFF} offen offset:256")

def wo_prep(vtmp):
    a(f"s_and_b32 s{sT4}, s{sIDX}, 1")
    a(f"s_lshl_b32 s{sT5}, s{sCP}, 1")
    a(f"s_add_u32 s{sT4}, s{sT4}, s{sT5}")
    a(f"s_lshl_b32 s{sT4}, s{sT4}, 3")
    a(f"s_add_u32 s{sT4}, s{sT4}, s{sW}")
    a(f"s_mul_i32 s{sT4}, s{sT4}, 25600")
    a(f"s_add_u32 s{sWOO}, s{sT4}, {WS_WOP}")
    a(f"v_lshlrev_b32 v{vtmp}, 4, v{vL}")
def wo_list(vtmp, order=None):
    out = []
    for i in range(25):
        t = f"buffer_load_dwordx4 {vr(VWO+4*i,4)}, v{vtmp}, {srd(SWS)}, s{sWOO} offen offset:{1024*(i&3)} sc1"
        if (i & 3) == 3: t += f"\ns_add_u32 s{sWOO}, s{sWOO}, 4096"
        out.append(t)
    return out

S0B = 156
def s0_task(st):
    a(f"s_mul_i32 s{sTB}, s{st}, 6554")
    a(f"s_lshr_b32 s{sTB}, s{sTB}, 16")
    a(f"s_mul_i32 s{sCHB}, s{sTB}, 10")
    a(f"s_sub_u32 s{sCHB}, s{st}, s{sCHB}")
for t in range(640): assert (t * 6554) >> 16 == t // 10

def s0_loads():
    a.c("S0 loads")
    B = S0B
    a(f"v_lshrrev_b32 v{B+1}, 3, v{vL}")
    a(f"v_and_b32 v{B+2}, 7, v{vL}")
    a(f"v_mul_u32_u24 v{B+3}, 5120, v{B+1}")
    a(f"v_lshl_add_u32 v{B+3}, v{B+2}, 4, v{B+3}")
    a(f"s_mul_i32 s{sT0}, s{sTB}, 40960")
    a(f"s_lshl_b32 s{sT1}, s{sCHB}, 7")
    a(f"s_add_u32 s{sT0}, s{sT0}, s{sT1}")
    a(f"v_add_u32 v{B+64}, s{sT0}, v{B+3}")
    a(f"v_subrev_u32 v{B+65}, 3840, v{B+64}")
    a(f"v_lshlrev_b32 v{B+66}, 6, v{B+2}")
    a(f"s_lshl_b32 s{sT1}, s{sCHB}, 9")
    srd_init([SK, SV, SSK])
    a("s_waitcnt lgkmcnt(0)")
    for i in range(4): a(f"buffer_load_dwordx4 {vr(B+16+4*i,4)}, v{B+64}, {srd(SK)}, 0 offen offset:{1280*i}")
    for i in range(3): a(f"buffer_load_dwordx4 {vr(B+4+4*i,4)}, v{B+65}, {srd(SK)}, 0 offen offset:{1280*i}")
    for i in range(4): a(f"buffer_load_dwordx4 {vr(B+32+4*i,4)}, v{B+64}, {srd(SV)}, 0 offen offset:{1280*i}")
    for i in range(4): a(f"buffer_load_dwordx4 {vr(B+48+4*i,4)}, v{B+66}, {srd(SSK)}, s{sT1} offen offset:{16*i}")

def s0_addr(s_scr):
    B = S0B
    a(f"v_mul_u32_u24 v{B+67}, 576, v{B+1}")
    a(f"v_lshl_add_u32 v{B+67}, v{B+2}, 4, v{B+67}")
    a(f"v_add_u32 v{B+67}, s{s_scr}, v{B+67}")
    a(f"v_and_b32 v{B+68}, 15, v{vL}")
    a(f"v_mul_u32_u24 v{B+69}, 144, v{B+68}")
    a(f"v_lshrrev_b32 v{B+70}, 4, v{vL}")
    a(f"v_lshl_add_u32 v{B+69}, v{B+70}, 3, v{B+69}")
    a(f"v_add_u32 v{B+69}, s{s_scr}, v{B+69}")
    a(f"s_and_b32 s{sT0}, s{sTB}, 3")
    a(f"v_xor_b32 v{B+68}, s{sT0}, v{B+68}")
    a(f"v_lshlrev_b32 v{B+68}, 4, v{B+68}")
    a(f"v_lshl_add_u32 v{B+68}, v{B+70}, 14, v{B+68}")
    a(f"s_lshl_b32 s{sT0}, s{sCHB}, 18")
    a(f"s_lshl_b32 s{sT1}, s{sTB}, 8")
    a(f"s_add_u32 s{sT0}, s{sT0}, s{sT1}")
    a(f"s_mov_b32 s{sT1}, 0xffff0000")

def s0_compute(split=None, pk=True):
    a.c("S0 compute")
    B = S0B
    KF, VF, WF, AC, UO = 112, 126, 134, B + 88, B + 72
    for p in range(4):
        for cc in range(2):
            c = 2 * p + cc
            for h in range(2):
                a(f"v_lshlrev_b32 v{WF+4*h+cc}, 16, v{B+48+2*c+h}")
                a(f"v_and_b32 v{WF+4*h+2+cc}, s{sT1}, v{B+48+2*c+h}")
        for r in range(7):
            a(f"v_lshlrev_b32 v{KF+2*r}, 16, v{B+4+4*r+p}")
            a(f"v_and_b32 v{KF+2*r+1}, s{sT1}, v{B+4+4*r+p}")
        for r in range(4):
            a(f"v_lshlrev_b32 v{VF+2*r}, 16, v{B+32+4*r+p}")
            a(f"v_and_b32 v{VF+2*r+1}, s{sT1}, v{B+32+4*r+p}")
        if pk:
            for i in range(4): a(f"v_pk_mul_f32 {vr(AC+2*i,2)}, {vr(KF+2*(i+3),2)}, {vr(WF,2)}")
            for d in range(1, 4):
                for i in range(4): a(f"v_pk_fma_f32 {vr(AC+2*i,2)}, {vr(KF+2*(i+3-d),2)}, {vr(WF+2*d,2)}, {vr(AC+2*i,2)}")
            for i in range(4): a(f"v_pk_mul_f32 {vr(AC+2*i,2)}, {vr(AC+2*i,2)}, {vr(VF+2*i,2)}")
        else:
            for i in range(8): a(f"v_mul_f32 v{AC+i}, v{KF+6+i}, v{WF+(i&1)}")
            for d in range(1, 4):
                for i in range(8): a(f"v_fmac_f32 v{AC+i}, v{KF+6+i-2*d}, v{WF+2*d+(i&1)}")
            for i in range(8): a(f"v_mul_f32 v{AC+i}, v{AC+i}, v{VF+i}")
        for i in range(4): a(f"v_cvt_pk_bf16_f32 v{UO+4*i+p}, v{AC+2*i}, v{AC+2*i+1}")
        if split: split(p)
    for i in range(4): a(f"ds_write_b128 v{B+67}, {vr(UO+4*i,4)} offset:{144*i}")
    for j in range(4):
        a(f"ds_read_b64_tr_b16 {vr(B+4+4*j,2)}, v{B+69} offset:{32*j}")
        a(f"ds_read_b64_tr_b16 {vr(B+6+4*j,2)}, v{B+69} offset:{32*j+2304}")
    for j in range(4):
        a(f"s_waitcnt lgkmcnt({6-2*j})")
        a(f"buffer_store_dwordx4 {vr(B+4+4*j,4)}, v{B+68}, {srd(SWS)}, s{sT0} offen sc1")
        if j < 3: a(f"s_add_u32 s{sT0}, s{sT0}, 65536")

def f0_off(sd):
    a(f"s_lshl_b32 s{sd}, s{sCHB}, 8")
    a(f"s_add_u32 s{sd}, s{sd}, {WS_F0}")

ACC = 32
FB = [112, 156]
vX0, vX1, vWA, vWX = 148, 149, 150, 154
vA1, vA2, vC16, vG4 = 16, 17, 18, 19
sC, sSL = sT2, sT3

def a_setup():
    a.c("A-wave address setup")
    a(f"s_and_b32 s{sT0}, s{sW}, 1")
    a(f"s_lshr_b32 s{sT1}, s{sW}, 1")
    a(f"v_and_b32 v{vC16}, 15, v{vL}")
    a(f"v_lshrrev_b32 v{vG4}, 4, v{vL}")
    a(f"v_lshrrev_b32 v8, 1, v{vC16}")
    a(f"v_xor_b32 v8, v{vG4}, v8")
    a(f"v_lshlrev_b32 v8, 4, v8")
    a(f"v_lshl_add_u32 v8, v{vC16}, 7, v8")
    a(f"s_lshl_b32 s{sT4}, s{sT1}, 13")
    a(f"v_add_u32 v{vX0}, s{sT4}, v8")
    a(f"v_xor_b32 v{vX1}, 64, v{vX0}")
    a(f"v_bfe_u32 v8, v{vL}, 2, 2")
    a(f"v_lshl_add_u32 v9, v{vG4}, 3, v8")
    a(f"v_and_b32 v10, 1, v{vG4}")
    a(f"v_xor_b32 v10, s{sT0}, v10")
    a(f"v_and_b32 v11, 3, v{vL}")
    a("v_lshlrev_b32 v11, 3, v11")
    a(f"v_lshl_add_u32 v{vWX}, v9, 6, v11")
    a(f"v_lshl_add_u32 v{vWX}, v10, 5, v{vWX}")
    a(f"v_add_u32 v{vWX}, 32768, v{vWX}")
    a("v_lshl_or_b32 v8, v10, 2, v8")
    a("v_lshl_add_u32 v8, v8, 5, v11")
    a("v_lshl_add_u32 v8, v9, 8, v8")
    a(f"v_add_u32 v{vWA}, 16384, v8")
    for tt in range(1, 4): a(f"v_xor_b32 v{vWA+tt}, {32*tt}, v{vWA}")

def a_reads(buf, ks):
    b = FB[buf]
    xs = [f"ds_read_b128 {vr(b+4*rt,4)}, v{vX1 if ks else vX0} offset:{2048*rt}" for rt in range(4)]
    ws = []
    for tt in range(5):
        for sec in range(2):
            if tt < 4: ws.append(f"ds_read_b64_tr_b16 {vr(b+16+4*tt+2*sec,2)}, v{vWA+tt} offset:{ks*8192+sec*1024}")
            else: ws.append(f"ds_read_b64_tr_b16 {vr(b+16+4*tt+2*sec,2)}, v{vWX} offset:{ks*2048+sec*256}")
    return [xs[0], ws[0], ws[1], xs[1], ws[2], ws[3], xs[2], ws[4], ws[5], xs[3]] + ws[6:]

def acc(rt, tt): return ACC + 4 * (rt * 5 + tt)

def a_mfmas(buf, qtype, order=None):
    b = FB[buf]
    out = []
    for (rt, tt) in (order or [(rt, tt) for tt in range(5) for rt in range(4)]):
        d = vr(acc(rt, tt), 4)
        xf = vr(b + 4 * rt, 4); wf = vr(b + 16 + 4 * tt, 4)
        A, B = (wf, xf) if qtype else (xf, wf)
        out.append(f"v_mfma_f32_16x16x32_bf16 {d}, {A}, {B}, {d}")
    return out

def interleave(mf, rd):
    j = 0
    for i, m in enumerate(mf):
        a(m)
        if j < len(rd): a(rd[j]); j += 1
    while j < len(rd): a(rd[j]); j += 1

def a_mainloop(qtype):
    t = "q" if qtype else "k"
    a.c("A main loop")
    a(f"s_mov_b32 s{sC}, 0")
    a(f"s_mov_b32 s{sSL}, 0")
    a(f"s_mov_b32 s{sT6}, {((1<<1)|(1<<3) if qtype else 0)|(1<<10)}")
    if "noprio" not in EXP: a("s_setprio 2")
    a("s_waitcnt lgkmcnt(0)")
    if "ast" in EXP: stamp(1, True)
    a("s_barrier")
    stamp(1)
    for r in a_reads(0, 0): a(r)
    book = [
        f"s_add_u32 s{sSL}, s{sSL}, 1\ns_cmp_eq_u32 s{sSL}, 3",
        f"s_mov_b32 s{sT4}, {SLOT}",
        f"s_cselect_b32 s{sT4}, {-2*SLOT & 0xffffffff}, s{sT4}",
        f"s_cselect_b32 s{sSL}, 0, s{sSL}\ns_add_u32 s{sC}, s{sC}, 1",
    ]
    src_ = f"s{sT4}"
    rd = a_reads(1, 1)
    seq = []
    for i, r in enumerate(rd): seq.append(r + ("\n" + book[i - 2] if 2 <= i < 6 else ""))
    seq += [f"v_add_u32 v{vX0}, {src_}, v{vX0}\nv_add_u32 v{vX1}, {src_}, v{vX1}",
            f"v_add_u32 v{vWA}, {src_}, v{vWA}\nv_add_u32 v{vWA+1}, {src_}, v{vWA+1}",
            f"v_add_u32 v{vWA+2}, {src_}, v{vWA+2}\nv_add_u32 v{vWA+3}, {src_}, v{vWA+3}",
            f"v_add_u32 v{vWX}, {src_}, v{vWX}\ns_bitcmp1_b32 s{sT6}, s{sC}"]
    a(".p2align 3")
    a.label(f"Lml{t}")
    a("s_waitcnt lgkmcnt(0)")
    interleave(a_mfmas(0, qtype), seq)
    a("s_waitcnt lgkmcnt(0)")
    a(f"s_cbranch_scc1 Lhook{t}")
    a.label(f"Lhookd{t}")
    if "ast" in EXP:
        a("s_memrealtime vcc")
        a("s_waitcnt lgkmcnt(0)")
        a(f"s_mov_b32 m0, s{sC}")
        a("v_writelane_b32 v29, vcc_lo, m0")
    a("s_barrier")
    interleave(a_mfmas(1, qtype), a_reads(0, 0))
    a(f"s_branch Lml{t}")
    a.label(f"Lhook{t}")
    if qtype:
        a(f"s_cmp_eq_u32 s{sC}, 10")
        a(f"s_cbranch_scc1 Lmx{t}")
        N2 = a.newlabel("Lhk")
        a(f"s_cmp_lg_u32 s{sC}, 1")
        a(f"s_cbranch_scc1 {N2}")
        tag_get(24, 25, "issued")
        arr_issue(30, 31, f"s{sQUAD}")
        a(f"s_branch Lhookd{t}")
        a.label(N2)
        arr_finish(30, 31, f"s{sQUAD}", 64)
        a(f"s_branch Lhookd{t}")
        a.label(f"Lmx{t}")
    if "ast" in EXP:
        for c in range(1, 9): a(f"v_readlane_b32 s{STS+1+c}, v29, {c}")

def acc_zero():
    for i in range(80): a(f"v_mov_b32 v{ACC+i}, 0")

def phi_list(regs, tmp, pk=False):
    out = []
    B = 4
    for i in range(0, len(regs), B):
        batch = regs[i:i + B]
        for j, r in enumerate(batch):
            if pk:
                out.append(f"v_pk_mul_f32 {vr(tmp+2*j,2)}, {vr(r,2)}, {sr(sLOG,2)}"); continue
            out.append(f"v_mul_f32 v{tmp+2*j}, s{sLOG}, v{r}")
            out.append(f"v_mul_f32 v{tmp+2*j+1}, s{sLOG}, v{r+1}")
        for j, r in enumerate(batch):
            out.append(f"v_exp_f32_e64 v{tmp+2*j}, v{tmp+2*j} clamp")
            out.append(f"v_exp_f32_e64 v{tmp+2*j+1}, v{tmp+2*j+1} clamp")
        for j, r in enumerate(batch):
            out.append(f"v_max_f32 v{r}, s{sEPS}, v{r}")
            out.append(f"v_max_f32 v{r+1}, s{sEPS}, v{r+1}")
        for j, r in enumerate(batch):
            if pk:
                out.append(f"v_pk_add_f32 {vr(r,2)}, {vr(r,2)}, {vr(tmp+2*j,2)}"); continue
            out.append(f"v_add_f32 v{r}, v{r}, v{tmp+2*j}")
            out.append(f"v_add_f32 v{r+1}, v{r+1}, v{tmp+2*j+1}")
    return out

def sprinkle(main, extra, every, start=0):
    j = 0
    for i, m in enumerate(main):
        a(m)
        if i >= start and (i - start) % every == every - 1 and j < len(extra):
            a(extra[j]); j += 1
    return extra[j:]

def fc_addr(v):
    a(f"v_and_b32 v{v}, 7, v{vL}")
    a(f"v_lshlrev_b32 v{v}, 8, v{v}")
    a(f"v_add_u32 v{v}, {WS_FC}, v{v}")
def f0_addr(v):
    a(f"s_lshr_b32 s{sT4}, s{sQUAD}, 4")
    a(f"s_lshl_b32 s{sT4}, s{sT4}, 8")
    a(f"s_add_u32 s{sT4}, s{sT4}, {WS_F0}")
    a(f"v_mov_b32 v{v}, s{sT4}")

def awave():
    a.label("Lawave")
    a(f"s_cmp_ge_u32 s{sIDX}, 16")
    a("s_cbranch_scc1 Lqa")
    srd_init([SWS, SDBG])
    a(f"s_lshl_b32 s{sT0}, s{sBID}, 2")
    a(f"s_or_b32 s{sT0}, s{sT0}, s{sW}")
    a(f"s_cmp_lg_u32 s{sT0}, 3")
    a("s_cbranch_scc1 Lkva1")
    a(f"s_memrealtime {sr(sT2,2)}")
    a(f"v_lshlrev_b32 v1, 8, v{vL}")
    a("v_mov_b32 v2, 0")
    a(f"s_mov_b32 s{sT0}, {WS_C + CDELTA}")
    a(f"s_mov_b32 s{sT1}, {WS_C + CDELTA + 16384}")
    a("s_waitcnt lgkmcnt(0)")
    a("s_mov_b32 exec_hi, 0")
    a(f"buffer_store_dword v2, v1, {srd(SWS)}, s{sT1} offen sc1")
    a("s_mov_b32 exec_hi, -1")
    a(f"buffer_store_dword v2, v1, {srd(SWS)}, s{sT0} offen sc1")
    a(f"s_lshl_b32 s{sT3}, s{sT3}, 27")
    a(f"s_xor_b32 s{sT2}, s{sT2}, s{sT3}")
    a(f"s_or_b32 s{sT2}, s{sT2}, 1")
    a(f"v_mov_b32 v3, s{sT2}")
    a("s_waitcnt vmcnt(0)")
    a("s_mov_b64 exec, 1")
    a(f"buffer_store_dword v3, v2, {srd(SDBG)}, 0 offen sc1")
    a("s_mov_b64 exec, -1")
    a.label("Lkva1")
    common_scalars()
    srd_init([SX, SOUT])
    acc_zero()

def kva():
    a(f"s_lshr_b32 s{sT0}, s{sIDX}, 2")
    a(f"s_lshl_b32 s{sCG}, s{sCP}, 2")
    a(f"s_add_u32 s{sCG}, s{sCG}, s{sT0}")
    a_setup()
    a(f"s_mul_i32 s{sT4}, s{sW}, 3584")
    a(f"s_add_u32 s{sT4}, s{sT4}, {L_KVS}")
    a(f"v_mul_u32_u24 v8, 336, v{vG4}")
    a(f"v_add_u32 v8, s{sT4}, v8")
    a(f"v_lshl_add_u32 v{vA1}, v{vC16}, 4, v8")
    a(f"v_add_u32 v9, 8, v{vC16}")
    a(f"v_subrev_u32 v10, 12, v{vC16}")
    a(f"v_cmp_lt_u32 vcc, 11, v{vC16}")
    a("v_cndmask_b32 v9, v9, v10, vcc")
    a(f"v_cmp_eq_u32 vcc, 0, v{vC16}")
    a("v_mov_b32 v10, 20")
    a("v_cndmask_b32 v9, v9, v10, vcc")
    a(f"v_lshl_add_u32 v{vA2}, v9, 4, v8")
    a(f"s_lshl_b32 s{sT4}, s{sT0}, 2")
    a(f"s_add_u32 s{sT4}, s{sT4}, {L_CNT}")
    a(f"v_mov_b32 v20, s{sT4}")
    a(f"s_mul_i32 s{sT4}, s{sT0}, 3584")
    a(f"s_mul_i32 s{sT5}, s{sT1}, {KVH}")
    a(f"s_add_u32 s{sT4}, s{sT4}, s{sT5}")
    a(f"v_lshlrev_b32 v21, 2, v{vL}")
    a(f"s_add_u32 s{sT5}, s{sT4}, {L_KVS}")
    a(f"v_add_u32 v22, s{sT5}, v21")
    a(f"s_mul_i32 s{sT5}, s{sCG}, {4*KVH}")
    a(f"s_add_u32 s{sT4}, s{sT4}, s{sT5}")
    a(f"s_add_u32 s{sCH}, s{sT4}, {WS_KV}")
    a("v_mov_b32 v23, 0x3f803f80")
    a(f"s_lshl_b32 s{sLC}, s{sCG}, 8")
    a(f"s_add_u32 s{sLC}, s{sLC}, {WS_FK}")
    wo_prep(28)
    a_mainloop(False)
    a.c("KV epilogue")
    order = [(rt, tt) for tt in (4, 0, 2, 1, 3) for rt in range(4)]
    mf = a_mfmas(1, False, order)
    for m in mf[:8]: a(m)
    XP = 112
    TM = 12
    TM = 8
    a(f"v_cmp_gt_u32 vcc, 8, v{vC16}")
    def pairs(tt): return sum([[acc(rt, tt), acc(rt, tt) + 2] for rt in range(4)], [])
    def cvts(tt): return [f"v_cvt_pk_bf16_f32 v{acc(rt&2,tt)+2*(rt&1)+h}, v{acc(rt,tt)+2*h}, v{acc(rt,tt)+2*h+1}" for rt in range(4) for h in range(2)]
    L = []
    for rt in range(4):
        for h in range(2): L.append(f"v_cvt_pk_bf16_f32 v{XP+2*rt+h}, v{acc(rt,4)+2*h}, v{acc(rt,4)+2*h+1}")
    for j in range(8): L.append(f"v_cndmask_b32 v{XP+j}, v{XP+j}, v23, vcc")
    L += phi_list(pairs(4)[:4], TM, False)
    for i, m in enumerate(mf[8:]):
        a(m)
        for x in L[2 * i:2 * i + 2]: a(x)
    L = L[24:]
    stamp(2)
    pk = "nopk" not in EXP
    L += phi_list(pairs(4)[4:], TM, pk) + cvts(4) + phi_list(pairs(0), TM, pk) + cvts(0) + cvts(2) + cvts(3)
    if "aspr" in EXP: assert not sprinkle(L, wo_list(28), len(L) // 25)
    else:
        for x in L: a(x)
    def fr(t, p): return XP + 4 * p if t == 5 else acc(2 * p, t)
    prods = [(0, 2), (0, 5), (4, 2), (4, 5), (1, 3), (1, 5), (4, 3)]
    PD = 120
    def pm(lst):
        for p in range(2):
            for i in lst:
                ta, tb = prods[i]
                d = vr(PD + 4 * i, 4)
                a(f"v_mfma_f32_16x16x32_bf16 {d}, {vr(fr(ta,p),4)}, {vr(fr(tb,p),4)}, {'0' if p==0 else d}")
    def wr(i, va, off, mlo, mhi):
        t = ""
        if mlo != -1: t += f"s_mov_b32 exec_lo, {mlo}\ns_mov_b32 exec_hi, {mhi}\n"
        t += f"ds_write_b128 v{va}, {vr(PD+4*i,4)} offset:{off}"
        if mlo != -1: t += "\ns_mov_b64 exec, -1"
        return t
    pm([0, 1, 2, 3, 6])
    W1 = [wr(0, vA1, 0, -1, -1), wr(1, vA2, 0, 0x0f010f01, 0x0f010f01), wr(2, vA1, 4 * 336, 0xffff, 0),
          wr(3, vA2, 4 * 336, 0x0f01, 0), wr(3, vA2, KVH - 336, 0xf0010000, 0), wr(6, vA1, KVH + 64 - 336, 0xffff0000, 0)]
    rest = sprinkle(phi_list(pairs(1)[:4], TM, False) + phi_list(pairs(1)[4:], TM, pk) + cvts(1), W1, 8, 6)
    assert not rest
    pm([4, 5])
    a(wr(4, vA1, KVH + 336 + 64, -1, -1))
    a(wr(5, vA2, KVH + 336, 0xf001f001, 0xf001f001))
    a("s_waitcnt lgkmcnt(0)")
    a("s_barrier")
    for i in range(7):
        a(f"ds_read_b32 v{32+i}, v22 offset:{256*i}")
        a(f"ds_read_b32 v{40+i}, v22 offset:{256*i+7168}")
    stamp(3)
    for i in range(7):
        a(f"s_waitcnt lgkmcnt({12-2*i})")
        a(f"v_add_f32 v{32+i}, v{32+i}, v{40+i}")
        a(f"buffer_atomic_add_f32 v{32+i}, v21, {srd(SWS)}, s{sCH} offen offset:{256*i}")
    tag_lds(50)
    arr_prep(48, 49)
    s3_setup()
    a("s_waitcnt vmcnt(0)")
    arr_issue(48, 49, f"s{sLC}")
    arr_finish(48, 49, f"s{sLC}", 128, 0)
    a("s_setprio 0")
    stamp(4)
    a("s_branch Ls3x" if "aspr" in EXP else "s_branch Ls3")

def qa():
    a.label("Lqa")
    common_scalars()
    a(f"s_mov_b32 s{sTB}, s{sCI}")
    a(f"s_add_u32 s{sCHB}, s{sW}, 6")
    s0_loads()
    srd_init([SWS, SDBG, SX, SOUT])
    acc_zero()
    a(f"s_bfe_u32 s{sT0}, s{sIDX}, 0x10002")
    a(f"s_lshl_b32 s{sCG}, s{sCP}, 1")
    a(f"s_add_u32 s{sCG}, s{sCG}, s{sT0}")
    a_setup()
    a(f"v_lshrrev_b32 v8, 1, v{vG4}")
    a(f"v_and_b32 v9, 1, v{vG4}")
    a(f"v_lshlrev_b32 v20, 4, v{vC16}")
    a("v_lshl_add_u32 v20, v9, 9, v20")
    a("v_lshl_add_u32 v21, v8, 3, v20")
    a("v_add_u32 v21, 4096, v21")
    a("v_lshl_add_u32 v20, v8, 10, v20")
    a(f"s_lshl_b32 s{sT4}, s{sRB}, 1")
    a(f"s_add_u32 s{sT4}, s{sT4}, s{sT1}")
    a(f"s_lshl_b32 s{sT5}, s{sCG}, 1")
    a(f"s_add_u32 s{sT5}, s{sT5}, s{sT0}")
    a(f"s_mul_i32 s{sT0}, s{sT4}, {80*1024}")
    a(f"s_mul_i32 s{sT1}, s{sT5}, {5*1024}")
    a(f"s_add_u32 s{sT0}, s{sT0}, s{sT1}")
    a(f"s_add_u32 s{sCH}, s{sT0}, {WS_PQ}")
    a(f"s_add_u32 s{sVAR}, s{sCH}, {40*1024}")
    a(f"s_lshl_b32 s{sT4}, s{sT5}, 8")
    a(f"s_add_u32 s{sLC}, s{sT4}, {WS_FK}")
    wo_prep(28)
    arr_prep(30, 31)
    a("v_mov_b32 v24, 0")
    a(f"s_mul_i32 s{sT2}, s{sW}, 4608")
    a(f"s_add_u32 s{sT2}, s{sT2}, {2*SLOT}")
    f0_off(sQUAD)
    s0_addr(sT2)
    a("s_waitcnt vmcnt(0)")
    stamp(11)
    s0_compute()
    stamp(12)
    cnt_load(SDBG, 24, 25)
    a_mainloop(True)
    a.c("Q epilogue")
    order = [(rt, tt) for rt in range(4) for tt in range(5)]
    mf = a_mfmas(1, True, order)
    for m in mf[:9]: a(m)
    L = []
    for rt in range(4):
        regs = []
        for tt in range(5): regs += [acc(rt, tt), acc(rt, tt) + 2]
        L += phi_list(regs, 112, rt > 0 and "nopk" not in EXP)
        O = acc(rt, 0)
        for tt in range(5):
            for h in range(2): L.append(f"v_cvt_pk_bf16_f32 v{O+2*tt+h}, v{acc(rt,tt)+2*h}, v{acc(rt,tt)+2*h+1}")
        so = f"s{sVAR if rt>>1 else sCH}"
        for p in range(2):
            L.append(f"buffer_store_dwordx4 {vr(O+4*p,4)}, v20, {srd(SWS)}, {so} offen offset:{256*(rt&1)+2048*p} sc1")
        L.append(f"buffer_store_dwordx2 {vr(O+8,2)}, v21, {srd(SWS)}, {so} offen offset:{256*(rt&1)} sc1")
    for i, m in enumerate(mf[9:]):
        a(m)
        for x in L[2 * i:2 * i + 2]: a(x)
    L = L[22:]
    stamp(2)
    if "aspr" in EXP: assert not sprinkle(L, wo_list(28), 8)
    else:
        for x in L: a(x)
    stamp(3)
    a("s_barrier")
    arr_prep(120, 121)
    s3_setup()
    a("s_waitcnt vmcnt(0)")
    arr_issue(120, 121, f"s{sLC}")
    arr_finish(120, 121, f"s{sLC}", 128, 0)
    a("s_setprio 0")
    stamp(4)
    a("s_branch Ls3x" if "aspr" in EXP else "s_branch Ls3")

def h_dma(sj, sch0):
    a(f"s_lshr_b32 s{sT4}, s{sj}, 1")
    a(f"s_and_b32 s{sT5}, s{sj}, 1")
    a(f"s_lshl_b32 s{sT5}, s{sT5}, 11")
    a(f"s_add_u32 s{sT6}, s{sch0}, s{sT4}")
    a(f"s_lshl_b32 s{sT6}, s{sT6}, 12")
    a(f"s_add_u32 s{sT6}, s{sT6}, s{sT5}")
    a(f"s_mul_i32 s{sT4}, s{sT4}, {HSTR}")
    a(f"s_add_u32 s{sT4}, s{sT4}, s{sT5}")
    a(f"s_add_u32 m0, s{sT4}, {L_HB+128}")
    a(f"buffer_load_dwordx4 v{vL16}, {srd(SH)}, s{sT6} offen lds")
    a(f"buffer_load_dwordx4 v{vL16}, {srd(SH)}, s{sT6} offen offset:1024 lds")

CACC = 32
CPOOL = 96
NPOOL = 12
CD = 144
vUe, vUo, vH, vCW, vCT, vCS, vCY, vCN = range(148, 156)

def conv_setup(j, chl0, split=None):
    a.c("conv setup")
    a(f"s_lshr_b32 s{sLC}, s{j}, 1")
    a(f"s_and_b32 s{sVAR}, s{j}, 1")
    a(f"s_add_u32 s{sCHL}, s{chl0}, s{sLC}")
    a(f"s_lshl_b32 s{sCH}, s{sQUAD}, 2")
    a(f"s_add_u32 s{sCH}, s{sCH}, s{sCHL}")
    a(f"s_lshl_b32 s{sT4}, s{sCH}, 1")
    a(f"s_and_b32 s{sT4}, s{sT4}, -4")
    a(f"s_load_dword s{sDV}, {sr(SD,2)}, s{sT4}")
    a(f"v_and_b32 v96, 31, v{vL}")
    a(f"v_lshrrev_b32 v97, 5, v{vL}")
    a("v_lshl_add_u32 v98, v97, 2, v96")
    a("v_lshrrev_b32 v99, 2, v98")
    a("v_add_u32 v99, 3, v99")
    a("v_and_b32 v99, 3, v99")
    a(f"v_xor_b32 v99, s{sCHL}, v99")
    a("v_lshlrev_b32 v99, 4, v99")
    a("v_lshl_add_u32 v99, v98, 6, v99")
    a(f"v_add_u32 v{vUe}, {L_UD-28*64}, v99")
    a(f"v_xor_b32 v{vUo}, 32, v{vUe}")
    a(f"v_bfe_u32 v98, v{vL}, 4, 1")
    a(f"v_and_b32 v99, 3, v{vL}")
    a("v_lshl_add_u32 v98, v98, 2, v99")
    a(f"v_bfe_u32 v96, v{vL}, 2, 2")
    a("v_sub_u32 v98, v98, v96")
    a("v_lshlrev_b32 v97, 3, v97")
    a("v_sub_u32 v98, v98, v97")
    a("v_lshlrev_b32 v98, 3, v98")
    a(f"s_mul_i32 s{sT4}, s{sLC}, {HSTR}")
    a(f"s_add_u32 s{sT4}, s{sT4}, {L_HB+128+32}")
    a(f"v_add_u32 v{vH}, s{sT4}, v98")
    a(f"s_lshl_b32 s{sT4}, s{sW}, 11")
    a(f"s_add_u32 s{sT4}, s{sT4}, {L_YST}")
    a(f"v_lshlrev_b32 v{vCW}, 4, v{vL}")
    a(f"v_add_u32 v{vCW}, s{sT4}, v{vCW}")
    if split: split(0)
    a(f"v_lshrrev_b32 v97, 4, v{vL}")
    a("v_lshrrev_b32 v98, 1, v99")
    a("v_lshl_add_u32 v98, v97, 1, v98")
    a("v_lshl_add_u32 v98, v98, 3, v96")
    a("v_lshlrev_b32 v98, 4, v98")
    a("v_and_b32 v99, 1, v99")
    a("v_lshl_add_u32 v98, v99, 3, v98")
    a(f"v_add_u32 v{vCT}, s{sT4}, v98")
    a(f"v_and_b32 v98, 7, v{vL}")
    a(f"v_lshrrev_b32 v99, 5, v{vL}")
    a("v_lshl_add_u32 v98, v98, 1, v99")
    a(f"v_mul_u32_u24 v98, 40960, v98")
    a(f"v_bfe_u32 v99, v{vL}, 3, 2")
    a(f"v_lshl_add_u32 v{vCY}, v99, 4, v98")
    a(f"s_lshl_b32 s{sT4}, s{j}, 4")
    a(f"s_add_u32 s{sT4}, s{sT4}, {L_SP}")
    a(f"v_mov_b32 v{vCS}, s{sT4}")
    a(f"s_lshl_b32 s{sT4}, s{sLC}, 2")
    a(f"s_add_u32 s{sT4}, s{sT4}, {L_CNT+16}")
    a(f"v_mov_b32 v{vCN}, s{sT4}")

def conv_dfrag():
    a("s_waitcnt lgkmcnt(0)")
    a(f"s_and_b32 s{sT4}, s{sCH}, 1")
    a(f"s_lshl_b32 s{sT4}, s{sT4}, 4")
    a(f"s_lshr_b32 s{sDV}, s{sDV}, s{sT4}")
    a(f"s_and_b32 s{sDV}, s{sDV}, 0xffff")
    a(f"v_lshlrev_b32 v98, 2, v{vL}")
    a("v_and_b32 v98, 16, v98")
    a(f"v_lshlrev_b32 v98, v98, s{sDV}")
    a(f"v_and_b32 v99, 59, v{vL}")
    for r in range(4):
        a(f"v_cmp_eq_u32 vcc, {32+8*r}, v99")
        a(f"v_cndmask_b32 v{CD+r}, 0, v98, vcc")

def zero_pads(j):
    a("v_mov_b32 v100, 0")
    a("v_mov_b32 v101, 0")
    a(f"v_lshlrev_b32 v102, 3, v{vL}")
    a(f"s_and_b32 s{sT6}, s{j}, 3")
    a(f"s_lshl_b32 s{sT4}, s{sT6}, 9")
    a(f"s_add_u32 s{sT4}, s{sT4}, {L_UB}")
    a(f"v_add_u32 v103, s{sT4}, v102")
    a("ds_write_b64 v103, v[100:101]")
    a(f"s_mul_i32 s{sT4}, s{sT6}, {HSTR}")
    a(f"s_add_u32 s{sT4}, s{sT4}, {L_HB}")
    a(f"v_add_u32 v103, s{sT4}, v102")
    a("s_mov_b64 exec, 0xffff")
    a("ds_write_b64 v103, v[100:101]")
    a(f"v_add_u32 v103, {L_CNT}, v102")
    a("s_mov_b64 exec, 0xff")
    a("ds_write_b64 v103, v[100:101]")
    a("s_mov_b64 exec, -1")

def u_dma(j, nper):
    a(f"s_mul_i32 s{sT4}, s{j}, {1024*nper}")
    a(f"s_lshl_b32 s{sT5}, s{sQUAD}, 14")
    a(f"s_add_u32 s{sT5}, s{sT5}, s{sT4}")
    a(f"s_add_u32 m0, s{sT4}, {L_UD}")
    for i in range(nper): a(f"buffer_load_dwordx4 v{vL16}, {srd(SWS)}, s{sT5} offen offset:{1024*i} sc1 lds")

def bwave():
    a.c("B wave")
    sXB, sWB, sM, sMW, sROT, sSTEP, sQ2, sQ3 = sCG, sUD, sTB, sRB, sCI, sLOG, sLOG + 1, sEPS
    VX, VW = 32, 36
    a(f"s_sub_u32 s{sJ}, s{sW}, 4")
    a(f"v_lshrrev_b32 v1, 3, v{vL}")
    a(f"v_mul_u32_u24 v1, 1280, v1")
    a(f"v_lshrrev_b32 v2, 4, v{vL}")
    a(f"v_and_b32 v3, 7, v{vL}")
    a("v_xor_b32 v2, v2, v3")
    a(f"v_lshl_add_u32 v{VX}, v2, 4, v1")
    a(f"v_xor_b32 v{VX+1}, 64, v{VX}")
    a(f"v_add_u32 v{VX+1}, {10240-1024}, v{VX+1}")
    a(f"v_add_u32 v{VX+2}, {20480-2048}, v{VX}")
    a(f"v_add_u32 v{VX+3}, {20480-2048}, v{VX+1}")
    a(f"s_lshl_b32 s{sXB}, s{sRB}, 2")
    a(f"s_add_u32 s{sXB}, s{sXB}, s{sJ}")
    a(f"s_mul_i32 s{sXB}, s{sXB}, 40960")
    a(f"s_lshr_b32 s{sT0}, s{sIDX}, 2")
    a(f"s_add_u32 s{sROT}, s{sT0}, s{sIDX}")
    a(f"s_and_b32 s{sROT}, s{sROT}, 3")
    a(f"s_add_u32 s{sM}, s{sRP}, s{sCP}")
    a(f"s_and_b32 s{sM}, s{sM}, 1")
    a(f"s_lshl_b32 s{sM}, s{sM}, 2")
    a(f"s_or_b32 s{sROT}, s{sROT}, s{sM}")
    a(f"s_lshl_b32 s{sM}, s{sJ}, 12")
    srd_init([SX, SWQ])
    def chunk_x(sc):
        a(f"s_mov_b32 m0, s{sM}")
        a(f"s_lshl_b32 s{sQ2}, s{sc}, 7")
        a(f"s_add_u32 s{sQ2}, s{sQ2}, s{sXB}")
        for i in range(4):
            a(f"buffer_load_dwordx4 v{VX+i}, {srd(SX)}, s{sQ2} offen offset:{1024*i} lds")
    def chunk_w(sc):
        a(f"s_add_u32 m0, s{sM}, 16384")
        a(f"s_mul_i32 s{sQ3}, s{sc}, {64*3840}")
        a(f"s_add_u32 s{sQ3}, s{sQ3}, s{sWB}")
        for hf in range(1):
            if hf:
                a(f"s_add_u32 m0, s{sM}, {16384+4096}")
                a(f"s_add_u32 s{sQ3}, s{sQ3}, {16*3840}")
            for i in (0, 1, 4, 2, 3):
                if i == 2: a(f"s_add_u32 m0, s{sM}, {16384+4096*hf}")
                if i == 4: a(f"s_add_u32 m0, s{sMW}, {1024*hf}")
                a(f"buffer_load_dwordx4 v{VW+i}, {srd(SWQ)}, s{sQ3} offen offset:{1024*(i&3)} lds")
    a(f"s_lshl_b32 s{sT1}, s{sCP}, 2")
    a(f"s_add_u32 s{sT1}, s{sT1}, s{sT0}")
    a(f"s_add_u32 s{sT1}, s{sT1}, 8")
    a(f"s_lshl_b32 s{sT0}, s{sT0}, 1")
    a(f"s_lshl_b32 s{sT4}, s{sCP}, 2")
    a(f"s_add_u32 s{sT0}, s{sT0}, s{sT4}")
    a(f"s_sub_u32 s{sT0}, s{sT0}, 8")
    a(f"s_cmp_ge_u32 s{sIDX}, 16")
    a(f"s_cselect_b32 s{sWB}, s{sT0}, s{sT1}")
    a(f"s_cselect_b32 s{sT4}, 10, 5")
    a(f"s_cselect_b32 s{sT5}, 4, 0x50")
    a(f"s_cselect_b32 s{sT6}, 1, 3")
    a(f"s_cselect_b32 s{sT7}, 2, 1")
    a(f"s_cselect_b32 s{sT0}, 1, 0x50")
    a(f"s_cselect_b32 s{sT1}, 8, 2")
    a(f"s_mulk_i32 s{sWB}, 160")
    a(f"s_mul_i32 s{sT2}, s{sJ}, {16*3840}")
    a(f"s_add_u32 s{sWB}, s{sWB}, s{sT2}")
    a(f"s_lshl_b32 s{sMW}, s{sJ}, 10")
    a(f"s_add_u32 s{sMW}, s{sMW}, 32768")
    a(f"v_lshrrev_b32 v14, 4, v{vL}")
    a(f"v_lshrrev_b32 v15, 1, v{vL}")
    a("v_xor_b32 v15, v15, v14")
    a(f"v_and_b32 v16, 1, v{vL}")
    a("v_mul_u32_u24 v14, 240, v14")
    a(f"v_mad_u32_u24 v14, v16, s{sT7}, v14")
    a("v_and_b32 v17, 1, v15")
    a(f"v_mad_u32_u24 v14, v17, s{sT6}, v14")
    a("v_bfe_u32 v17, v15, 1, 1")
    a(f"v_mad_u32_u24 v14, v17, s{sT5}, v14")
    a("v_bfe_u32 v17, v15, 2, 1")
    a(f"v_mad_u32_u24 v18, v17, s{sT4}, v14")
    a(f"v_lshlrev_b32 v{VW}, 4, v18")
    a(f"v_add_u32 v{VW+1}, {15360-1024}, v{VW}")
    a("v_xor_b32 v17, 1, v17")
    a(f"v_mad_u32_u24 v18, v17, s{sT4}, v14")
    a(f"v_lshlrev_b32 v18, 4, v18")
    a(f"v_add_u32 v{VW+2}, {30720-2048}, v18")
    a(f"v_add_u32 v{VW+3}, {46080-3072}, v18")
    a(f"v_lshrrev_b32 v14, 2, v{vL}")
    a("v_mul_u32_u24 v14, 240, v14")
    a(f"v_mad_u32_u24 v14, v16, s{sT0}, v14")
    a(f"v_lshrrev_b32 v17, 4, v{vL}")
    a(f"v_xor_b32 v17, v17, v{vL}")
    a("v_bfe_u32 v17, v17, 1, 1")
    a(f"v_mad_u32_u24 v14, v17, s{sT4}, v14")
    a(f"v_add_lshl_u32 v{VW+4}, v14, s{sT1}, 4")
    a("s_waitcnt lgkmcnt(0)")
    stamp(11)
    chunk_x(sROT)
    chunk_w(sROT)
    stamp(12)
    def issue(step):
        d = SLOT if step % 3 else (-2 * SLOT & 0xffffffff)
        a(f"s_add_u32 s{sM}, s{sM}, {d}")
        a(f"s_add_u32 s{sMW}, s{sMW}, {d}")
        if step == 8: a(f"s_and_b32 s{sROT}, s{sROT}, 1")
        a(f"s_xor_b32 s{sSTEP}, s{sROT}, {step}")
        if "nodma" in EXP and step >= 2: return
        chunk_x(sSTEP); chunk_w(sSTEP)
    bn = [1]
    def bar(n, nxt=None):
        a(f"s_waitcnt vmcnt({n}) lgkmcnt(0)")
        if "bst" in EXP and "pre" in EXP: stamp(bn[0], True)
        a("s_barrier")
        if "bst" in EXP and "pre" not in EXP: stamp(bn[0], True)
        bn[0] += 1
        if nxt is not None: issue(nxt)
    def g_setup():
        srd_init([SX, SH, SWS, SDBG, SOUT])
        a(f"s_mul_i32 s{sT7}, s{sXCD}, 24")
        a(f"s_add_u32 s{sT7}, s{sT7}, s{sIDX}")
        a(f"s_lshr_b32 s{sQUAD}, s{sT7}, 1")
        a(f"s_add_u32 s{sQUAD}, s{sQUAD}, 64")
        a(f"s_and_b32 s{sT1}, s{sIDX}, 1")
        a(f"s_lshl_b32 s{sT1}, s{sT1}, 1")
        a("s_waitcnt lgkmcnt(0)")
        conv_setup(sJ, sT1)
        s3_setup()
        wo_prep(vL16)
    g_setup()
    fc_addr(46)
    f0_addr(44)
    zero_pads(sJ)
    conv_dfrag()
    issue(1)
    for c in range(0, 8):
        bar(9)
        if c == 0: stamp(1)
        issue(c + 2)
    cnt_load(SDBG, vZ, 47)
    cnt_load(SWS, 46, 48)
    cnt_load(SWS, 44, 45)
    a(f"s_mov_b32 s{sEPS}, 0x358637bd")
    a(f"s_sub_u32 s{sT1}, s{sCH}, s{sLC}")
    h_dma(sJ, sT1)
    bar(14)
    a("s_waitcnt vmcnt(2)")
    if "aspr" not in EXP: a("s_barrier")
    tag_get(vZ, 47, "landed")
    a(f"v_mov_b32 v50, {L_TAG}")
    a(f"v_mov_b32 v51, s{sTAG}")
    a("ds_write_b32 v50, v51")
    poll(46, 48, "landed")
    if "aspr" in EXP: a("s_barrier")
    stamp(2)
    a("s_waitcnt lgkmcnt(0)")
    a(f"v_mov_b32 v48, {L_CNT+8}")
    a(f"v_cmp_ne_u32 vcc, s{sTAG}, v45")
    a("s_cbranch_vccnz Lblate")
    u_dma(sJ, 4)
    for x in wo_list(vL16): a(x)
    x_loads()
    a("s_waitcnt vmcnt(27)")
    lds_arrive(48, 49)
    a("s_barrier")
    a("s_branch Lbu")
    a.label("Lblate")
    for x in wo_list(vL16): a(x)
    x_loads()
    a("s_barrier")
    poll(44, 45)
    u_dma(sJ, 4)
    a("s_waitcnt vmcnt(0)")
    lds_arrive(48, 49)
    a.label("Lbu")
    lds_wait(48, 49, 4)
    stamp(3)
    a("s_branch Lconv")

def ctype():
    a.label("Lctype")
    common_scalars()
    a(f"s_mov_b32 s{sQUAD}, s{sCI}")
    a(f"s_cmp_ge_u32 s{sW}, 6")
    a("s_cbranch_scc1 Lcaux")
    a(f"s_mov_b32 s{sTB}, s{sCI}")
    a(f"s_mov_b32 s{sCHB}, s{sW}")
    s0_loads()
    srd_init([SX, SWQ, SGW, SH, SWS, SDBG, SOUT])
    zero_pads(sW)
    a(f"s_mov_b32 s{sT1}, 0")
    conv_setup(sW, sT1)
    s3_setup()
    wo_prep(vL16)
    conv_dfrag()
    a(f"s_mul_i32 s{sT2}, s{sW}, 4608")
    a(f"s_add_u32 s{sT2}, s{sT2}, {L_S0C}")
    s0_addr(sT2)
    a("s_waitcnt vmcnt(0)")
    s0_compute()
    stamp(1)
    f0_off(sCG)
    arr_prep(50, 51)
    tag_get(vZ, 47, "none")
    arr_issue(50, 51, f"s{sCG}")
    arr_finish(50, 51, f"s{sCG}", 64)
    stamp(2)
    if "nopf" not in EXP:
        a(f"s_cmp_lg_u32 s{sW}, 4")
        a("s_cbranch_scc1 Lcnpf")
        a(f"v_lshlrev_b32 v53, 7, v{vL}")
        a(f"s_mul_i32 s{sT3}, s{sCI}, 7680")
        a(f"s_add_u32 s{sT3}, s{sT3}, {512*3840}")
        a(f"buffer_load_dword v131, v53, {srd(SWQ)}, s{sT3} offen")
        a.label("Lcnpf")
    a("s_branch Lcjoin")

    a.label("Lcaux")
    srd_init([SWO, SWS, SX, SH, SDBG, SOUT])
    a(f"s_sub_u32 s{sUD}, s{sW}, 6")
    a(f"s_lshl_b32 s{sVAR}, s{sCI}, 1")
    a(f"s_add_u32 s{sVAR}, s{sVAR}, s{sUD}")
    for i in range(4): a(f"v_mov_b32 v{52+i}, 0")
    a(f"v_lshlrev_b32 v15, 3, v{vL}")
    a(f"s_lshl_b32 s{sT0}, s{sVAR}, 9")
    a(f"s_add_u32 s{sT0}, s{sT0}, {WS_KV}")
    a("s_waitcnt lgkmcnt(0)")
    a(f"buffer_store_dwordx2 v[52:53], v15, {srd(SWS)}, s{sT0} offen sc1")
    a.label("Lcrp")
    sKQ, sF, sCGR = sCHL, sCH, sJ
    a(f"s_lshr_b32 s{sT0}, s{sVAR}, 2")
    a(f"s_and_b32 s{sCGR}, s{sVAR}, 3")
    a(f"s_mul_i32 s{sKQ}, s{sT0}, 52")
    a(f"s_lshr_b32 s{sKQ}, s{sKQ}, 8")
    a(f"s_mul_i32 s{sT1}, s{sKQ}, 5")
    a(f"s_sub_u32 s{sF}, s{sT0}, s{sT1}")
    a(f"s_mul_i32 s{sT0}, s{sF}, 20")
    a(f"s_cmp_eq_u32 s{sF}, 4")
    a(f"s_cselect_b32 s{sT0}, 16, s{sT0}")
    a(f"s_cselect_b32 s{sT2}, 16, 0")
    a(f"s_mul_i32 s{sT1}, s{sKQ}, 80")
    a(f"s_add_u32 s{sT0}, s{sT0}, s{sT1}")
    a(f"s_mul_i32 s{sT0}, s{sT0}, 1280")
    a(f"s_mul_i32 s{sT1}, s{sCGR}, 320")
    a(f"s_add_u32 s{sT0}, s{sT0}, s{sT1}")
    a(f"s_lshr_b32 s{sT3}, s{sVAR}, 7")
    a(f"s_lshl_b32 s{sT3}, s{sT3}, 1")
    a(f"s_add_u32 s{sT3}, s{sT3}, s{sUD}")
    a(f"s_mul_i32 s{sT3}, s{sT3}, 5120")
    a(f"s_add_u32 s{sT3}, s{sT3}, {L_RPC}")
    a("s_waitcnt lgkmcnt(0)")
    for i in range(5):
        a(f"v_add_u32 v14, {64*i}, v{vL}")
        div20(15, 16, 14)
        a("v_lshrrev_b32 v17, 2, v15")
        a(f"v_mad_u32_u24 v15, v17, s{sT2}, v15")
        a("v_mul_u32_u24 v15, 1280, v15")
        a("v_lshl_add_u32 v15, v16, 4, v15")
        a(f"s_add_u32 m0, s{sT3}, {1024*i}")
        a(f"buffer_load_dwordx4 v15, {srd(SWO)}, s{sT0} offen lds")
    a(f"s_add_u32 s{sVAR}, s{sVAR}, 128")
    a(f"s_cmp_lt_u32 s{sVAR}, 160")
    a("s_cbranch_scc1 Lcrp")
    a(f"s_and_b32 s{sVAR}, s{sVAR}, 127")
    a("s_waitcnt vmcnt(0)")
    a.label("Lcrp2")
    sKQ, sF, sCGR = sCHL, sCH, sJ
    a(f"s_lshr_b32 s{sT0}, s{sVAR}, 2")
    a(f"s_and_b32 s{sCGR}, s{sVAR}, 3")
    a(f"s_mul_i32 s{sKQ}, s{sT0}, 52")
    a(f"s_lshr_b32 s{sKQ}, s{sKQ}, 8")
    a(f"s_mul_i32 s{sT1}, s{sKQ}, 5")
    a(f"s_sub_u32 s{sF}, s{sT0}, s{sT1}")
    a(f"s_lshr_b32 s{sT3}, s{sVAR}, 7")
    a(f"s_lshl_b32 s{sT3}, s{sT3}, 1")
    a(f"s_add_u32 s{sT3}, s{sT3}, s{sUD}")
    a(f"s_mul_i32 s{sT3}, s{sT3}, 5120")
    a(f"s_add_u32 s{sT3}, s{sT3}, {L_RPC}")
    a(f"v_lshrrev_b32 v14, 5, v{vL}")
    a(f"v_bfe_u32 v15, v{vL}, 2, 2")
    a("v_lshl_add_u32 v14, v14, 2, v15")
    a("v_mul_u32_u24 v14, 320, v14")
    a(f"v_bfe_u32 v15, v{vL}, 4, 1")
    a("v_lshl_add_u32 v14, v15, 5, v14")
    a(f"v_and_b32 v15, 3, v{vL}")
    a("v_lshl_add_u32 v14, v15, 3, v14")
    a(f"v_add_u32 v14, s{sT3}, v14")
    a(f"s_mul_i32 s{sT0}, s{sKQ}, 5")
    a(f"s_add_u32 s{sT0}, s{sT0}, s{sF}")
    a(f"s_cmp_ge_u32 s{sKQ}, 3")
    a(f"s_cselect_b32 s{sT1}, 10, 0")
    a(f"s_cmp_ge_u32 s{sKQ}, 6")
    a(f"s_cselect_b32 s{sT1}, -15, s{sT1}")
    a(f"s_cselect_b32 s{sT2}, 25, 50")
    a(f"s_add_u32 s{sT0}, s{sT0}, s{sT1}")
    a(f"s_mul_i32 s{sT1}, s{sCGR}, 200")
    a(f"s_add_u32 s{sT0}, s{sT0}, s{sT1}")
    a(f"s_lshl_b32 s{sT0}, s{sT0}, 10")
    a(f"s_add_u32 s{sT0}, s{sT0}, {WS_WOP}")
    a(f"s_lshl_b32 s{sT2}, s{sT2}, 10")
    a(f"s_lshr_b32 s{sT4}, s{sKQ}, 1")
    a(f"s_mul_i32 s{sT4}, s{sT4}, 25")
    a(f"s_and_b32 s{sT5}, s{sKQ}, 1")
    a(f"s_mul_i32 s{sT5}, s{sT5}, 5")
    a(f"s_add_u32 s{sT4}, s{sT4}, s{sT5}")
    a(f"s_add_u32 s{sT4}, s{sT4}, s{sF}")
    a(f"s_add_u32 s{sT4}, s{sT4}, s{sT1}")
    a(f"s_add_u32 s{sT4}, s{sT4}, 115")
    a(f"s_lshl_b32 s{sT4}, s{sT4}, 10")
    a(f"s_add_u32 s{sT4}, s{sT4}, {WS_WOP}")
    a(f"v_lshlrev_b32 v15, 4, v{vL}")
    for t in range(5):
        for jh in range(2): a(f"ds_read_b64_tr_b16 {vr(32+4*t+2*jh,2)}, v14 offset:{jh*2560+t*64}")
    a("s_waitcnt lgkmcnt(0)")
    for t in range(4):
        a(f"buffer_store_dwordx4 {vr(32+4*t,4)}, v15, {srd(SWS)}, s{sT0} offen sc1")
        a(f"s_add_u32 s{sT0}, s{sT0}, s{sT2}")
    a(f"buffer_store_dwordx4 {vr(48,4)}, v15, {srd(SWS)}, s{sT4} offen sc1")
    a(f"s_add_u32 s{sVAR}, s{sVAR}, 128")
    a(f"s_cmp_lt_u32 s{sVAR}, 160")
    a("s_cbranch_scc1 Lcrp2")
    arr_prep(146, 147)
    a("v_mov_b32 v6, 0")
    a(f"s_lshl_b32 s{sT3}, s{sXCD}, 8")
    a(f"s_add_u32 s{sT3}, s{sT3}, {WS_FC}")
    tag_get(6, 7, "none")
    arr_issue(146, 147, f"s{sT3}")
    arr_finish(146, 147, f"s{sT3}", 16)
    stamp(1)
    a(f"s_lshl_b32 s{sT3}, s{sCI}, 1")
    a(f"s_add_u32 s{sT3}, s{sT3}, s{sUD}")
    a(f"s_mul_i32 s{sT3}, s{sT3}, {3*4096}")
    a(f"s_add_u32 s{sT3}, s{sT3}, {256*4096}")
    a(f"v_lshlrev_b32 v5, 7, v{vL}")
    a(f"buffer_load_dword v131, v5, {srd(SH)}, s{sT3} offen")
    a(f"s_add_u32 s{sT3}, s{sT3}, 4096")
    a(f"buffer_load_dword v130, v5, {srd(SH)}, s{sT3} offen")
    a(f"s_mov_b32 s{sT1}, 0")
    conv_setup(sW, sT1)
    s3_setup()
    wo_prep(vL16)
    conv_dfrag()
    stamp(2)

    a.label("Lcjoin")
    a(f"s_lshl_b32 s{sT1}, s{sCI}, 2")
    h_dma(sW, sT1)
    a(f"s_cmp_ge_u32 s{sW}, 4")
    a("s_cbranch_scc1 Lc7")
    srd_init([SGW])
    a(f"s_lshl_b32 s{sT0}, s{sCI}, 2")
    a(f"s_add_u32 s{sT0}, s{sT0}, s{sW}")
    a(f"v_and_b32 v53, 7, v{vL}")
    a(f"v_lshlrev_b32 v53, 4, v53")
    a(f"v_lshrrev_b32 v55, 3, v{vL}")
    a(f"v_mul_u32_u24 v54, 1280, v55")
    a("v_add_u32 v54, v54, v53")
    a(f"v_lshlrev_b32 v55, 2, v55")
    a(f"s_mul_i32 s{sT2}, s{sT0}, {8*1280}")
    for j in (8, 9, 0, 1, 2, 3, 4, 5, 6, 7): a(f"buffer_load_dwordx4 {vr(160+4*j,4)}, v54, {srd(SX)}, s{sT2} offen offset:{128*j}")
    for j in range(10): a(f"buffer_load_dwordx4 {vr(200+4*j,4)}, v53, {srd(SGW)}, 0 offen offset:{128*j}")
    a(f"s_lshl_b32 s{sT3}, s{sT0}, 5")
    a(f"s_add_u32 s{sT3}, s{sT3}, {WS_G}")
    a("v_mov_b32 v128, 0")
    a("v_mov_b32 v129, 0")
    a("s_waitcnt vmcnt(0)")
    for j in range(20):
        a(f"v_dot2c_f32_bf16 v128, v{160+2*j}, v{200+2*j}")
        a(f"v_dot2c_f32_bf16 v129, v{161+2*j}, v{201+2*j}")
    a("v_add_f32 v128, v128, v129")
    for ctl in ("quad_perm:[1,0,3,2]", "quad_perm:[2,3,0,1]", "row_half_mirror"):
        a(f"v_add_f32_dpp v128, v128, v128 {ctl} row_mask:0xf bank_mask:0xf")
    a(f"v_mul_f32 v128, 0xbfb8aa3b, v128")
    a(f"v_exp_f32 v128, v128")
    a(f"v_add_f32 v128, 1.0, v128")
    a(f"v_rcp_f32 v128, v128")
    a("s_mov_b32 exec_lo, 0x01010101")
    a("s_mov_b32 exec_hi, 0x01010101")
    a(f"buffer_store_dword v128, v55, {srd(SWS)}, s{sT3} offen sc1")
    a("s_mov_b64 exec, -1")
    a(f"s_and_b32 s{sT0}, s{sCI}, 7")
    a(f"s_lshl_b32 s{sT0}, s{sT0}, 8")
    a(f"s_add_u32 s{sT0}, s{sT0}, {WS_FK}")
    arr_prep(50, 51)
    a("s_waitcnt vmcnt(0)")
    arr_issue(50, 51, f"s{sT0}")
    arr_finish(50, 51, f"s{sT0}", 128, 0)
    a.label("Lc7")
    a(f"s_cmp_lg_u32 s{sW}, 7")
    a("s_cbranch_scc1 Lc8")
    fc_addr(46)
    f0_addr(44)
    poll(46, 47)
    poll(44, 45)
    a.label("Lc8")
    stamp(11)
    a("s_barrier")
    stamp(12)
    u_dma(sW, 2)
    a("s_waitcnt vmcnt(0) lgkmcnt(0)")
    a("s_barrier")
    stamp(3)
    a("s_setprio 2")
    a(f"s_cmp_lt_u32 s{sW}, 4")
    a("s_cbranch_scc1 Lconv2")
    a("s_setprio 0")
    for x in wo_list(vL16): a(x)
    x_loads()

def conv_body(tiles):
    seq = []
    for b in range(4):
        if tiles[0] == 0:
            for aa in range(8):
                for ti in (3, 2):
                    d = tiles[ti] - aa
                    if d >= 0:
                        seq.append((ti, ("H", 4 * aa + b, 0), ("U", 4 * d - b)))
                        if b == 0 and aa == 0: seq.append((ti, ("D",), ("U", 4 * d)))
                if aa == 5:
                    seq.append((1, ("H", b, 1), ("U", 4 - b)))
                    if b == 0: seq.append((1, ("D",), ("U", 4)))
                if aa == 6:
                    seq.append((0, ("H", b, 1), ("U", -b)))
                    if b == 0: seq.append((0, ("D",), ("U", 0)))
                    seq.append((1, ("H", 4 + b, 1), ("U", -b)))
        else:
            for aa in range(6):
                for ti in (3, 2, 1, 0):
                    d = tiles[ti] - aa
                    if d >= 0:
                        seq.append((ti, ("H", 4 * aa + b, 0), ("U", 4 * d - b)))
                        if b == 0 and aa == 0: seq.append((ti, ("D",), ("U", 4 * d)))
    assert len(seq) == 76
    last = {}; order = []
    for i, (ti, h, u) in enumerate(seq):
        for k in (u, h):
            if k[0] == "D": continue
            if k not in last: order.append(k)
            last[k] = i
    free = list(range(NPOOL))
    where = {}; done_at = {}
    nds = [0]; li = [0]
    def issue(maxn):
        n = 0
        while li[0] < len(order) and free and n < maxn:
            k = order[li[0]]; li[0] += 1
            bfr = free.pop(0); where[k] = bfr
            r = CPOOL + 4 * bfr
            if k[0] == "U":
                a(f"ds_read_b128 {vr(r,4)}, v{vUo if k[1]&1 else vUe} offset:{(k[1]+3)*512}")
                nds[0] += 1; n += 1
            else:
                a(f"ds_read_b64_tr_b16 {vr(r,2)}, v{vH} offset:{128*k[1]+32}")
                a(f"ds_read_b64_tr_b16 {vr(r+2,2)}, v{vH} offset:{128*k[1]}")
                nds[0] += 2; n += 2
            done_at[k] = nds[0]
    issue(10)
    started = set(); known = 0
    wl = wo_list(vL16); wi = 25 if "delayconv" in EXP else 0
    for i, (ti, h, u) in enumerate(seq):
        needn = max(done_at[k] for k in (u, h) if k[0] != "D")
        if needn > known:
            cnt = min(nds[0] - needn, 15)
            a(f"s_waitcnt lgkmcnt({cnt})")
            known = nds[0] - cnt
        d = vr(CACC + 16 * ti, 16)
        hb = CD if h[0] == "D" else CPOOL + 4 * where[h]
        a(f"v_mfma_f32_32x32x16_bf16 {d}, {vr(CPOOL+4*where[u],4)}, {vr(hb,4)}, {d if ti in started else '0'}")
        started.add(ti)
        for k in (u, h):
            if k[0] != "D" and last[k] == i: free.append(where[k])
        issue(2)

def conv_epi(var):
    runs = [[*range(0, 8)], [*range(8, 16)]] if var == 0 else [[*range(16)]]
    out_g = 7 if var == 0 else 15
    in_g = 8 if var == 0 else 0
    SPL = 96
    a(f"buffer_load_dword v{vFT}, v{vFQ}, {srd(SWS)}, 0 offen sc1")
    a("s_nop 7")
    a("s_nop 3")
    for step in (2, 1, 0):
        a("s_mov_b32 exec_lo, 0")
        a("s_mov_b32 exec_hi, 0x80000000")
        a(f"v_mov_b32 v{SPL+step}, v{CACC+4*out_g+step+1}")
        for run in runs:
            for g in reversed(run):
                src = f"v{CACC+4*(g-1)+step+1}" if g != run[0] else "0"
                a(f"v_mov_b32 v{CACC+4*g+step+1}, {src}")
        if step == 0:
            a(f"ds_write_b96 v{vCS}, {vr(SPL,3)}")
            a("v_mov_b32 v100, 1")
            a(f"ds_add_u32 v{vCN}, v100")
        a("s_mov_b64 exec, -1")
        for g in reversed(range(16)):
            r = CACC + 4 * g + step
            a(f"v_add_f32_dpp v{r}, v{r+1}, v{r} wave_ror:1 row_mask:0xf bank_mask:0xf")
    a(f"v_xor_b32 v101, 16, v{vCS}")
    a(f"v_lshl_add_u32 v101, v{vL}, 2, v101")
    PK = 104
    other = [k for k in range(8) if k != in_g // 2]
    for k in other: a(f"v_cvt_pk_bf16_f32 v{PK+k}, v{CACC+8*k}, v{CACC+8*k+4}")
    oh = 1 - in_g // 8
    a(f"ds_write_b128 v{vCW}, {vr(PK+4*oh,4)} offset:{1024*oh}")
    lds_wait(vCN, 100, 2)
    a("s_mov_b64 exec, 7")
    a("ds_read_b32 v100, v101")
    a("s_waitcnt lgkmcnt(0)")
    a(f"v_add_f32 v{CACC+4*in_g}, v{CACC+4*in_g}, v100")
    a("s_mov_b64 exec, -1")
    k = in_g // 2
    a(f"v_cvt_pk_bf16_f32 v{PK+k}, v{CACC+8*k}, v{CACC+8*k+4}")
    a(f"ds_write_b128 v{vCW}, {vr(PK+4*(1-oh),4)} offset:{1024*(1-oh)}")
    T0, T1 = (0, 6) if var == 0 else (2, 4)
    a(f"s_lshl_b32 s{sT5}, s{sCH}, 6")
    a(f"s_add_u32 s{sT4}, s{sT5}, {WS_Y + T0*8*40960}")
    a(f"s_add_u32 s{sT5}, s{sT5}, {WS_Y + T1*8*40960}")
    a(f"s_lshr_b32 s{sT6}, s{sCH}, 5")
    a(f"s_lshl_b32 s{sT6}, s{sT6}, 8")
    a(f"s_add_u32 s{sT6}, s{sT6}, {WS_FY + var*20*256}")

def conv():
    a.label("Lconv")
    a("s_setprio 1")
    a.label("Lconv2")
    a(f"s_cmp_eq_u32 s{sVAR}, 1")
    a("s_cbranch_scc1 Lconvy")
    conv_body([0, 1, 6, 7])
    stamp(4)
    conv_epi(0)
    a("s_branch Lconve")
    a.label("Lconvy")
    conv_body([2, 3, 4, 5])
    stamp(4)
    conv_epi(1)
    a.label("Lconve")
    for n in range(2):
        a(f"ds_read_b64_tr_b16 {vr(136+4*n,2)}, v{vCT} offset:{1024*n}")
        a(f"ds_read_b64_tr_b16 {vr(138+4*n,2)}, v{vCT} offset:{1024*n+64}")
    arr_prep(152, 153)
    for n in range(2):
        a(f"s_waitcnt lgkmcnt({2-2*n})")
        a(f"buffer_store_dwordx4 {vr(136+4*n,4)}, v{vCY}, {srd(SWS)}, s{sT5 if n else sT4} offen sc1")
    stamp(13)
    a(f"s_cmp_ge_u32 s{sW}, 4")
    a("s_cbranch_scc1 Ls3b")
    a("s_waitcnt vmcnt(0)")
    arr_issue(152, 153, f"s{sT6}")
    arr_finish(152, 153, f"s{sT6}", 32, 0)
    a("s_setprio 0")

def s3():
    a.label("Ls3")
    a.c("S3")
    PQ, RAW, KF = 32, 52, 116
    plan = []
    for i in range(4):
        for st in range(2):
            for jh in range(2):
                du0 = 4 * (i + st) + 2 * jh - 5 * i
                plan.append((i, st, jh, du0, 0 <= du0 <= 4, 0 <= du0 + 1 <= 4))
    sPD = sT2
    def fl(): a(f"buffer_load_dword v{vFT}, v{vFQ}, {srd(SWS)}, 0 offen sc1")
    def pql():
        for f in range(4): a(f"buffer_load_dwordx4 {vr(PQ+4*f,4)}, v{vL16}, {srd(SWS)}, s{sPQO} offen offset:{1024*f} sc1")
        a(f"buffer_load_dwordx4 {vr(PQ+16,4)}, v{vL16}, {srd(SWS)}, s{sT1} offen sc1")
    def pre():
        for (i, st, jh, du0, v0ok, v1ok) in plan:
            if v0ok != v1ok:
                for j in range(4): a(f"v_mov_b32 v{RAW+16*i+8*st+4*jh+j}, 0")
        a(f"s_add_u32 s{sT1}, s{sPQO}, 4096")
        a(f"s_add_u32 s{sT3}, s{sKVO}, {2*KVH}")
        a(f"s_mov_b32 s{sPD}, 0")
        a(f"s_mov_b32 s{sCNT}, 0x40000")
    wl = wo_list(vL16)
    for x in wl: a(x)
    a.label("Ls3x")
    x_loads()
    a("s_setprio 1")
    pre()
    a(f"s_mov_b32 s{sUD}, 0")
    a("s_branch Ls3lp")
    a.label("Ls3b")
    pre()
    a(f"s_mov_b32 s{sUD}, 2")
    a("s_waitcnt vmcnt(2)")
    a("s_branch Ls3ev")
    a.label("Ls3sl")
    a("s_sleep 2")
    a.label("Ls3lp")
    fl()
    a("s_waitcnt vmcnt(0)")
    a(f"s_cmp_eq_u32 s{sUD}, 0")
    a("s_cbranch_scc1 Ls3ev")
    a(f"s_sub_u32 s{sUD}, s{sUD}, 1")
    a(f"s_cmp_eq_u32 s{sUD}, 0")
    a("s_cbranch_scc1 Ls3af")
    arr_issue(152, 153, f"s{sT6}")
    a("s_branch Ls3ev")
    a.label("Ls3af")
    arr_finish(152, 153, f"s{sT6}", 32)
    a.label("Ls3ev")
    a(f"v_cmp_ne_u32 vcc, s{sTAG}, v{vFT}")
    a(f"s_sub_u32 s{sCNT}, s{sCNT}, 1")
    a("s_cbranch_scc1 Ls3go")
    a("s_cbranch_vccnz Ls3sl")
    a.label("Ls3go")
    stamp(6)
    pql()
    nload = [0] * 4
    for (i, st, jh, du0, v0ok, v1ok) in plan:
        if not (v0ok or v1ok): continue
        off = (i & 1) * KVH + du0 * 336
        part = v0ok != v1ok
        if part: a(f"s_mov_b32 exec_{'hi' if v0ok else 'lo'}, 0")
        a(f"buffer_load_dwordx4 {vr(RAW+16*i+8*st+4*jh,4)}, v{vKO if i&1 else vKE}, {srd(SWS)}, s{sT3 if i>>1 else sKVO} offen offset:{off} sc1")
        if part: a("s_mov_b64 exec, -1")
        nload[i] += 1
    a(f"s_cmp_lg_u32 s{sUD}, 2")
    a("s_cbranch_scc1 Ls3n2")
    a("s_waitcnt vmcnt(17)")
    arr_issue(152, 153, f"s{sT6}")
    a("s_branch Ls3n3")
    a.label("Ls3n2")
    a(f"buffer_load_dword v{vFT}, v{vFY}, {srd(SWS)}, 0 offen sc1")
    a.label("Ls3n3")
    a(f"buffer_load_dword v{vFT}, v{vFY}, {srd(SWS)}, 0 offen sc1")
    rem = sum(nload) + 2
    for i in range(4):
        rem -= nload[i]
        a(f"s_waitcnt vmcnt({rem})")
        kf = KF + 8 * (i & 1)
        for (i2, st, jh, du0, v0ok, v1ok) in plan:
            if i2 != i: continue
            for j in range(2):
                d = kf + 4 * st + 2 * jh + j; s = RAW + 16 * i + 8 * st + 4 * jh + 2 * j
                if v0ok or v1ok: a(f"v_cvt_pk_bf16_f32 v{d}, v{s}, v{s+1}")
                else: a(f"v_mov_b32 v{d}, 0")
        d = vr(RAW + 16 * i, 16)
        a(f"v_mfma_f32_32x32x16_bf16 {d}, {vr(kf,4)}, {vr(PQ+4*i,4)}, 0")
        a(f"v_mfma_f32_32x32x16_bf16 {d}, {vr(kf+4,4)}, {vr(PQ+4*i+4,4)}, {d}")
    OF = 132
    for i in range(4):
        D = RAW + 16 * i
        a(f"v_add_f32 v{D+12}, s{sEPS}, v{D+12}")
        a(f"v_rcp_f32 v{D+12}, v{D+12}")
        for j in range(8): a(f"v_mul_f32 v{D+j}, v{D+j}, v{D+12}")
        for j in range(4): a(f"v_cvt_pk_bf16_f32 v{OF+4*i+j}, v{D+2*j}, v{D+2*j+1}")
        a(f"ds_write_b128 v{vOW}, {vr(OF+4*i,4)} offset:{1024*i}")
        if i & 1 == 0:
            for j in range(4): a(f"v_mul_f32 v{D+8+j}, v{D+8+j}, v{D+12}")
        else:
            for j in range(4): a(f"v_fmac_f32 v{D-8+j}, v{D+8+j}, v{D+12}")
            for j in range(2): a(f"v_cvt_pk_bf16_f32 v{OF+16+2*(i>>1)+j}, v{D-8+2*j}, v{D-8+2*j+1}")
    a(f"ds_write_b128 v{vOW}, {vr(OF+16,4)} offset:4096")
    a(f"s_cmp_eq_u32 s{sUD}, 0")
    a("s_cbranch_scc1 Ls3n4")
    arr_finish(152, 153, f"s{sT6}", 32, 1)
    a.label("Ls3n4")
    a(f"s_mov_b32 s{sUD}, 1")
    a(f"s_cmp_ge_u32 s{sW}, 5")
    a("s_cbranch_scc1 Ls3y1")
    a("s_waitcnt vmcnt(0)")
    a(f"v_cmp_ne_u32 vcc, s{sTAG}, v{vFT}")
    a(f"s_mov_b32 m0, s{sYM}")
    a("s_cbranch_vccnz Ls3y0")
    a(f"buffer_load_dwordx4 v{vL16}, {srd(SWS)}, s{sYO} offen sc1 lds")
    a(f"buffer_load_dwordx4 v{vL16}, {srd(SWS)}, s{sYO} offen offset:1024 sc1 lds")
    a("s_branch Ls3y1")
    a.label("Ls3y0")
    a(f"s_mov_b32 s{sUD}, 0")
    a(f"buffer_load_dword v{vFT}, v{vFY}, {srd(SWS)}, 0 offen sc1")
    a.label("Ls3y1")
    if "nog3prio" not in EXP:
        a(f"s_cmp_ge_u32 s{sW}, 4")
        a("s_cbranch_scc1 Ls3y2")
        a("s_setprio 2")
        a.label("Ls3y2")
    a("s_waitcnt lgkmcnt(0)")
    a("s_barrier")
    stamp(7)
    a(f"buffer_load_dword v{vG}, v{vGO}, {srd(SWS)}, 0 offen sc1")
    NB = 8; POOL = 32; AP, AR = 64, 80
    def ord_(i): return (vPR, 1024 * i) if i < 15 else (vRR, 1024 * (i - 15))
    for i in range(NB):
        v, o = ord_(i); a(f"ds_read_b128 {vr(POOL+4*i,4)}, v{v} offset:{o}")
    XF = 96
    pre = [f"s_mov_b32 s{sT0}, 0xffff0000"]
    for n, xd in enumerate((vXD, vXD2)):
        for j in range(4):
            pre.append(f"v_lshlrev_b32 v{XF+8*n+2*j}, 16, v{xd+j}")
            pre.append(f"v_and_b32 v{XF+8*n+2*j+1}, s{sT0}, v{xd+j}")
    issued = NB
    log = list(range(NB))
    for i in range(25):
        pos = log.index(i)
        a(f"s_waitcnt lgkmcnt({min(len(log)-1-pos,15)})")
        d = vr(AP if i < 15 else AR, 16)
        a(f"v_mfma_f32_32x32x16_bf16 {d}, {vr(VWO+4*i,4)}, {vr(POOL+4*(i%NB),4)}, {'0' if i in (0,15) else d}")
        if issued < 25:
            v, o = ord_(issued); a(f"ds_read_b128 {vr(POOL+4*(issued%NB),4)}, v{v} offset:{o}"); log.append(issued); issued += 1
        if i < 12:
            for x in pre[3 * i:3 * i + 3]: a(x)
        if i == 14:
            a(f"s_cmp_eq_u32 s{sUD}, 1")
            a("s_cbranch_scc1 Ls3ny")
            poll(vFY, vFT, "issued")
            a(f"buffer_load_dwordx4 v{vL16}, {srd(SWS)}, s{sYO} offen sc1 lds")
            a(f"buffer_load_dwordx4 v{vL16}, {srd(SWS)}, s{sYO} offen offset:1024 sc1 lds")
            a.label("Ls3ny")
        if 19 <= i < 23:
            q = i - 19
            a(f"ds_write_b128 v{vPW+q}, {vr(AP+4*q,4)}"); log.append(-1)
            a(f"v_add_u32 v{vPW+q}, s{sRD}, v{vPW+q}")
    for q in range(4): a(f"ds_write_b128 v{vPW+q}, {vr(AR+4*q,4)}")
    a("s_waitcnt vmcnt(0) lgkmcnt(0)")
    a("s_barrier")
    stamp(8)
    def f_reads(n, R):
        np_ = 3 + n
        for p in range(np_):
            a(f"ds_read_b128 {vr(R+8*p,4)}, v{vPA} offset:{49152*n+4096*p}")
            a(f"ds_read_b128 {vr(R+8*p+4,4)}, v{vPB} offset:{49152*n+4096*p}")
        a(f"ds_read_b64_tr_b16 {vr(R+32,2)}, v{vYT} offset:{8192*n}")
        a(f"ds_read_b64_tr_b16 {vr(R+34,2)}, v{vYT} offset:{8192*n+256}")
    def f_math(n, R, after):
        np_ = 3 + n
        X = XF + 8 * n; YF = R + 36
        a(f"s_waitcnt lgkmcnt({min(after+2*np_+2-4,15)})")
        for j in range(4): a(f"v_pk_add_f32 {vr(R+2*j,2)}, {vr(R+2*j,2)}, {vr(R+8+2*j,2)}")
        a(f"s_waitcnt lgkmcnt({after+2})")
        for p in range(2, np_):
            for j in range(4): a(f"v_pk_add_f32 {vr(R+2*j,2)}, {vr(R+2*j,2)}, {vr(R+8*p+2*j,2)}")
        a(f"s_waitcnt lgkmcnt({after})")
        for j in range(4):
            a(f"v_lshlrev_b32 v{YF+2*j}, 16, v{R+32+j}")
            a(f"v_and_b32 v{YF+2*j+1}, s{sT0}, v{R+32+j}")
        for j in range(4): a(f"v_pk_mul_f32 {vr(X+2*j,2)}, {vr(X+2*j,2)}, {vr(YF+2*j,2)}")
        for j in range(4): a(f"v_pk_add_f32 {vr(R+2*j,2)}, {vr(R+2*j,2)}, {vr(X+2*j,2)} neg_lo:[0,1] neg_hi:[0,1]")
        for j in range(4): a(f"v_pk_fma_f32 {vr(R+2*j,2)}, {vr(R+2*j,2)}, {vr(vG,2)}, {vr(X+2*j,2)} op_sel_hi:[1,0,1]")
        for j in range(4): a(f"v_cvt_pk_bf16_f32 v{R+32+j}, v{R+2*j}, v{R+2*j+1}")
        a(f"buffer_store_dwordx4 {vr(R+32,4)}, v{vOUT}, {srd(SOUT)}, s{sXOFF} offen offset:{256*n}" + (" sc1" if "osc1" in EXP else " nt" if "ont" in EXP else " sc0 sc1" if "osys" in EXP else ""))
    f_reads(0, 32)
    a(f"s_cmp_lt_u32 s{sW}, 2")
    a("s_cbranch_scc1 Lfin2")
    f_math(0, 32, 0)
    a("s_branch Lfin")
    a.label("Lfin2")
    f_reads(1, 112)
    f_math(0, 32, 10)
    f_math(1, 112, 0)
    a.label("Lfin")
    if DIAG:
        a("s_waitcnt vmcnt(0)")
        stamp(9)
        a(f"s_memtime vcc")
        a("s_waitcnt lgkmcnt(0)")
        a(f"s_mov_b32 s{STS+15}, vcc_lo")
        a("v_mov_b32 v2, 0")
        for i in range(16): a(f"v_writelane_b32 v2, s{STS+i}, {i}")
        a(f"v_lshlrev_b32 v3, 2, v{vL}")
        a(f"s_lshl_b32 s{sT0}, s{sBID}, 3")
        a(f"s_add_u32 s{sT0}, s{sT0}, s{sW}")
        a(f"s_lshl_b32 s{sT0}, s{sT0}, 6")
        a(f"s_add_u32 s{sT0}, s{sT0}, {WS_TS}")
        a("s_mov_b64 exec, 0xffff")
        a(f"buffer_store_dword v2, v3, {srd(SWS)}, s{sT0} offen")
        sp = [e for e in EXP if e.startswith("spin")]
        if sp:
            si, wv, lo, hi = [int(x) for x in sp[0][4:].split("_")]
            a(f"s_cmp_lg_u32 s{sW}, {wv}")
            a("s_cbranch_scc1 Lend")
            a(f"s_cmp_lt_u32 s{sIDX}, {lo}")
            a("s_cbranch_scc1 Lend")
            a(f"s_cmp_ge_u32 s{sIDX}, {hi}")
            a("s_cbranch_scc1 Lend")
            if si < 16:
                if "neg" in EXP: a(f"s_sub_u32 s{sT0}, s{sTAG}, s{STS+si}")
                else: a(f"s_sub_u32 s{sT0}, s{STS+si}, s{sTAG}")
                a(f"s_add_u32 s{sT0}, s{sT0}, 5000")
                a(f"s_and_b32 s{sT0}, s{sT0}, 0x7ffffff")
                a(f"s_min_u32 s{sT0}, s{sT0}, 20000")
            else: a(f"s_mov_b32 s{sT0}, 5000")
            a.label("Lspin")
            a("s_memrealtime vcc")
            a("s_waitcnt lgkmcnt(0)")
            a(f"s_sub_u32 s{sT1}, vcc_lo, s{sTAG}")
            a(f"s_and_b32 s{sT1}, s{sT1}, 0x7ffffff")
            a(f"s_cmp_lt_u32 s{sT1}, s{sT0}")
            a("s_cbranch_scc1 Lspin")
        if "dbgts" in EXP:
            a(f"s_cmp_lg_u32 s{sW}, {int([e for e in EXP if e.startswith('wv')][0][2:])}")
            a("s_cbranch_scc1 Lend")
            a(f"s_cmp_ge_u32 s{sIDX}, 16")
            a("s_cbranch_scc1 Lend")
            a("v_cmp_ne_u32 vcc, 0, v2")
            a(f"v_subrev_u32 v2, s{sTAG}, v2")
            a("v_add_u32 v2, 100, v2")
            a("v_and_b32 v2, 0x7ffffff, v2")
            a("v_cndmask_b32 v2, 0, v2, vcc")
            a("s_mov_b64 exec, 0x3fff")
            a(f"buffer_atomic_umax v2, v3, {srd(SDBG)}, 0 offen offset:4 sc1")
    a.label("Lend")
    a("s_endpgm")

entry(); bwave(); awave(); kva(); qa(); ctype(); conv(); s3()

ref = open("cdna_kernels/%s.s.ref" % NAME).read()
head = [l for l in ref.split("\n") if l.startswith(";") and "@launch" not in l]
out = "\n".join(head) + "\n"
out += "; @launch grid=(256,1,1) block=(512,1,1) lds=%d\n" % LDS_BYTES
out += '.amdgcn_target "amdgcn-amd-amdhsa--gfx950"\n.text\n.globl %s_kernel\n.p2align 8\n.type %s_kernel,@function\n%s_kernel:\n' % (NAME, NAME, NAME)
out += a.text()
out += '''.section .rodata,"a"
.p2align 6
.amdhsa_kernel %s_kernel
  .amdhsa_next_free_vgpr 256
  .amdhsa_next_free_sgpr 102
  .amdhsa_accum_offset 256
  .amdhsa_group_segment_fixed_size 0
  .amdhsa_kernarg_size 104
  .amdhsa_user_sgpr_count 2
  .amdhsa_user_sgpr_kernarg_segment_ptr 1
  .amdhsa_system_sgpr_workgroup_id_x 1
.end_amdhsa_kernel
''' % NAME
dst = [x for x in sys.argv[1:] if not x.startswith("--")]
open(dst[0] if dst else "cdna_kernels/%s.s" % NAME, "w").write(out)
```

```python
import sys
from asmlib import Asm, vr, sr

NAME = "gated_mix__linear_attn_block__ssm_conv_h3__prompt"
DIAG = "--diag" in sys.argv
EXP = [x[6:] for x in sys.argv if x.startswith("--exp=")]

WS_U = 0
WS_PQ = 0x280000
WS_Y = 0x500000
WS_WOP = 0x780000
WS_KV = 0x850000
WS_C = 0x860000
CDELTA = 0x20000
WS_FK = WS_C
WS_FY = WS_C + 32 * 256
WS_F0 = WS_C + 72 * 256
WS_FC = WS_C + 88 * 256
WS_FG = WS_C + 128 * 256
WS_FQ = WS_C + 256 * 256
WS_G = 0x88C000
WS_TS = 0x890000
WS_SIZE = 0x900000
KVH = 1792

SLOT = 36864
L_OFR = 36864
L_KVS = 77824
L_YST = 92160
L_PART = 77824
L_UB = 110592
L_UD = L_UB + 2048
L_HB = 129024
HSTR = 4224
L_SP = 145920
L_CNT = 146048
L_TAG = 146112
L_YT = 146176
L_S0C = 0
L_RPC = 49152
LDS_BYTES = L_YT + 10240

SX, SWQ, SWO, SK, SV, SSK, SH, SGW, SOUT, SDBG, SWS = [4 + 4 * i for i in range(11)]
SD = 48
sW, sXCD, sIDX, sRP, sCP, sTAG, sCNT = range(50, 57)
sRB, sCG, sQUAD, sCHL, sLC, sVAR, sCH, sJ, sUD = range(57, 66)
sT0, sT1, sT2, sT3, sT4, sT5, sT6, sT7 = range(66, 74)
sLOG = 74
sCI = 76
sDV = 77
STS = 80
sXOFF, sPQO, sKVO, sTB, sYO, sYM = 96, 97, 98, 99, 100, 101
sCHB = 65
sRD = 3
sWOO = 2
sEPS = 79
sBID = 78
def srd(b): return sr(b, 4)

vL = 0
VWO = 156
vL16, vOW, vPR, vRR, vPW = 1, 2, 3, 4, 5
vKE, vKO, vFK, vFY, vZ, vOUT, vPA, vPB, vYT, vFT, vGO = 9, 10, 11, 12, 13, 14, 15, 16, 17, 18, 19
vXD, vG, vXD2 = 20, 24, 28
vFQ, vFE = 27, 25

a = Asm()
BST = [None]
def stamp(i, force=False):
    if "bst" in EXP and not force and i not in (0, 10): return
    if DIAG:
        a(f"{'s_memtime' if 'cyc' in EXP else 's_memrealtime'} vcc")
        a("s_waitcnt lgkmcnt(0)")
        a(f"s_mov_b32 s{STS+i}, vcc_lo")

def poll(vaddr, vdst, state="none", sleep=2):
    L = a.newlabel("Lpoll"); D = a.newlabel("Lpd")
    if state != "none":
        if state == "issued": a("s_waitcnt vmcnt(0)")
        a(f"v_cmp_ne_u32 vcc, s{sTAG}, v{vdst}")
        a(f"s_cbranch_vccz {D}")
    a(f"s_mov_b32 s{sCNT}, 0x20000")
    a.label(L)
    a(f"buffer_load_dword v{vdst}, v{vaddr}, {srd(SWS)}, 0 offen sc1")
    a("s_waitcnt vmcnt(0)")
    a(f"v_cmp_ne_u32 vcc, s{sTAG}, v{vdst}")
    a(f"s_cbranch_vccz {D}")
    if sleep: a(f"s_sleep {sleep}")
    a(f"s_sub_u32 s{sCNT}, s{sCNT}, 1")
    a(f"s_cbranch_scc0 {L}")
    a.label(D)

def cnt_load(S, vaddr, vdst):
    a(f"buffer_load_dword v{vdst}, v{vaddr}, {srd(S)}, 0 offen sc1")

def tag_get(vz, vdst, state="issued"):
    L = a.newlabel("Ltag"); D = a.newlabel("Ltd")
    if state != "none":
        if state == "issued": a("s_waitcnt vmcnt(0)")
        a(f"v_readfirstlane_b32 s{sTAG}, v{vdst}")
        a(f"s_cmp_lg_u32 s{sTAG}, 0")
        a(f"s_cbranch_scc1 {D}")
    a(f"s_mov_b32 s{sCNT}, 0x20000")
    a.label(L)
    a(f"buffer_load_dword v{vdst}, v{vz}, {srd(SDBG)}, 0 offen sc1")
    a("s_waitcnt vmcnt(0)")
    a(f"v_readfirstlane_b32 s{sTAG}, v{vdst}")
    a(f"s_cmp_lg_u32 s{sTAG}, 0")
    a(f"s_cbranch_scc1 {D}")
    a("s_sleep 2")
    a(f"s_sub_u32 s{sCNT}, s{sCNT}, 1")
    a(f"s_cbranch_scc0 {L}")
    a.label(D)

def tag_lds(vtmp):
    a(f"v_mov_b32 v{vtmp}, {L_TAG}")
    a(f"ds_read_b32 v{vtmp}, v{vtmp}")
    a("s_waitcnt lgkmcnt(0)")
    a(f"v_readfirstlane_b32 s{sTAG}, v{vtmp}")

def arr_prep(vt0, vt1):
    a(f"v_mov_b32 v{vt0}, {CDELTA}")
    a(f"v_mov_b32 v{vt1}, 1")
def arr_issue(vt0, vt1, soff):
    a("s_mov_b64 exec, 1")
    a(f"buffer_atomic_add v{vt1}, v{vt0}, {srd(SWS)}, {soff} offen sc0 sc1")
    a("s_mov_b64 exec, -1")
def arr_finish(vt0, vt1, soff, n, wait=0):
    D = a.newlabel("Lal")
    a(f"s_waitcnt vmcnt({wait})")
    a(f"v_readfirstlane_b32 s{sT7}, v{vt1}")
    a(f"s_cmp_lg_u32 s{sT7}, {n-1}")
    a(f"s_cbranch_scc1 {D}")
    flag_store(vt0, vt1, soff)
    a.label(D)
def flag_store(vt0, vt1, soff):
    a(f"v_mov_b32 v{vt0}, 0")
    a(f"v_mov_b32 v{vt1}, s{sTAG}")
    a("s_mov_b64 exec, 1")
    a(f"buffer_store_dword v{vt1}, v{vt0}, {srd(SWS)}, {soff} offen sc1")
    a("s_mov_b64 exec, -1")

def lds_arrive(vaddr, vtmp):
    a(f"v_mov_b32 v{vtmp}, 1")
    a("s_mov_b64 exec, 1")
    a(f"ds_add_u32 v{vaddr}, v{vtmp}")
    a("s_mov_b64 exec, -1")
def lds_wait(vaddr, vtmp, target):
    L = a.newlabel("Lls"); D = a.newlabel("Lld")
    a(f"s_mov_b32 s{sCNT}, 0x400000")
    a.label(L)
    a(f"ds_read_b32 v{vtmp}, v{vaddr}")
    a("s_waitcnt lgkmcnt(0)")
    a(f"v_readfirstlane_b32 s{sT7}, v{vtmp}")
    a(f"s_cmp_ge_u32 s{sT7}, {target}")
    a(f"s_cbranch_scc1 {D}")
    a(f"s_sub_u32 s{sCNT}, s{sCNT}, 1")
    a(f"s_cbranch_scc0 {L}")
    a.label(D)

def div20(vq, vr_, vp):
    a(f"v_mul_u32_u24 v{vq}, 3277, v{vp}")
    a(f"v_lshrrev_b32 v{vq}, 16, v{vq}")
    a(f"v_mul_u32_u24 v{vr_}, 20, v{vq}")
    a(f"v_sub_u32 v{vr_}, v{vp}, v{vr_}")
for p in range(1000): assert (p * 3277) >> 16 == p // 20

SIZES = {SX: 2621440, SWQ: 2457600, SWO: 819200, SK: 2621440, SV: 2621440, SSK: 5120, SH: 2621440, SGW: 1280, SOUT: 2621440, SDBG: 256, SWS: WS_SIZE}
def srd_init(lst):
    for s in lst:
        a(f"s_mov_b32 s{s+2}, {SIZES[s]}")
        a(f"s_mov_b32 s{s+3}, 0x20000")
def common_scalars():
    a(f"s_mov_b32 s{sLOG}, 0x3fb8aa3b")
    a(f"s_mov_b32 s{sLOG+1}, 0x3fb8aa3b")
    a(f"s_mov_b32 s{sEPS}, 0x358637bd")
    a(f"s_and_b32 s{sT0}, s{sIDX}, 7")
    a(f"s_lshl_b32 s{sCI}, s{sXCD}, 3")
    a(f"s_add_u32 s{sCI}, s{sCI}, s{sT0}")

def entry():
    a.label("Lentry")
    a(f"s_cmp_ge_u32 s2, 256")
    a("s_cbranch_scc1 Lend")
    if DIAG: a(f"s_memrealtime {sr(sT6,2)}")
    a(f"s_getpc_b64 {sr(sT0,2)}")
    a.label("Lpcref")
    a(f"s_lshr_b32 s{sIDX}, s2, 3")
    a(f"s_mul_i32 s{sT2}, s{sIDX}, 9")
    a("v_min_u32 v1, 8, v0")
    a(f"v_add_lshl_u32 v1, v1, s{sT2}, 7")
    a("v_min_u32 v1, Lend-Lpcref, v1")
    a(f"global_load_dword v255, v1, {sr(sT0,2)}")
    for s, off in ((SX, 0), (SWQ, 8), (SK, 32), (SV, 40), (SSK, 48), (SWS, 96), (SDBG, 88), (SH, 56), (SWO, 16), (SGW, 72), (SOUT, 80), (SD, 64)):
        a(f"s_load_dwordx2 {sr(s,2)}, s[0:1], {off}")
    a("v_lshrrev_b32 v1, 6, v0")
    a(f"v_and_b32 v{vL}, 63, v0")
    a(f"v_readfirstlane_b32 s{sW}, v1")
    a(f"s_and_b32 s{sXCD}, s2, 7")
    a(f"s_and_b32 s{sRP}, s2, 3")
    a(f"s_bfe_u32 s{sCP}, s2, 0x10002")
    a(f"s_mov_b32 s{sBID}, s2")
    a(f"s_and_b32 s{sT0}, s{sIDX}, 3")
    a(f"s_lshl_b32 s{sRB}, s{sRP}, 2")
    a(f"s_add_u32 s{sRB}, s{sRB}, s{sT0}")
    if DIAG:
        for i in range(16): a(f"s_mov_b32 s{STS+i}, 0")
        stamp(0)
        a(f"s_mov_b32 s{STS+10}, s{sT6}")
        a(f"s_memtime vcc")
        a("s_waitcnt lgkmcnt(0)")
        a(f"s_mov_b32 s{STS+14}, vcc_lo")
    a(f"s_cmp_ge_u32 s{sIDX}, 24")
    a("s_cbranch_scc1 Lctype")
    a(f"s_cmp_lt_u32 s{sW}, 4")
    a("s_cbranch_scc1 Lawave")

def s3_setup(split=None):
    a.c("S3 setup")
    sR3, sC3 = sT2, sT3
    a(f"s_lshr_b32 s{sT0}, s{sIDX}, 1")
    a(f"s_lshl_b32 s{sR3}, s{sRP}, 4")
    a(f"s_add_u32 s{sR3}, s{sR3}, s{sT0}")
    a(f"s_and_b32 s{sT0}, s{sIDX}, 1")
    a(f"s_lshl_b32 s{sC3}, s{sCP}, 1")
    a(f"s_add_u32 s{sC3}, s{sC3}, s{sT0}")
    a(f"v_lshlrev_b32 v{vL16}, 4, v{vL}")
    a(f"v_mov_b32 v{vZ}, 0")
    a(f"v_lshrrev_b32 v24, 4, v{vL}")
    a(f"v_and_b32 v25, 3, v{vL}")
    a(f"v_bfe_u32 v26, v{vL}, 2, 2")
    a(f"s_and_b32 s{sT0}, s{sW}, 1")
    a(f"s_lshl_b32 s{sT1}, s{sT0}, 4")
    a("v_lshl_add_u32 v27, v24, 2, v25")
    a(f"v_add_u32 v27, s{sT1}, v27")
    a(f"v_mul_u32_u24 v{vOUT}, 1280, v27")
    a(f"v_lshl_add_u32 v{vOUT}, v26, 4, v{vOUT}")
    a(f"s_mul_i32 s{sXOFF}, s{sR3}, 40960")
    a(f"s_mul_i32 s{sT4}, s{sC3}, 320")
    a(f"s_add_u32 s{sYO}, s{sXOFF}, {WS_Y}")
    a(f"s_add_u32 s{sXOFF}, s{sXOFF}, s{sT4}")
    a(f"s_lshr_b32 s{sT4}, s{sW}, 1")
    a(f"s_lshl_b32 s{sT5}, s{sT4}, 6")
    a(f"s_add_u32 s{sXOFF}, s{sXOFF}, s{sT5}")
    a(f"s_lshl_b32 s{sT5}, s{sR3}, 7")
    a(f"s_add_u32 s{sT5}, s{sT5}, {WS_G}")
    a(f"v_lshlrev_b32 v{vGO}, 2, v27")
    a(f"v_add_u32 v{vGO}, s{sT5}, v{vGO}")
    a(f"v_bfe_u32 v{vPA}, v27, 1, 1")
    a(f"v_and_b32 v{vPB}, 1, v27")
    a(f"v_lshl_or_b32 v{vPA}, v{vPB}, 1, v{vPA}")
    a(f"v_and_or_b32 v{vPA}, v27, 4, v{vPA}")
    a(f"v_lshlrev_b32 v{vPB}, 1, v26")
    a(f"v_xor_b32 v{vPA}, v{vPA}, v{vPB}")
    a(f"v_lshlrev_b32 v{vPA}, 4, v{vPA}")
    a(f"v_lshl_add_u32 v{vPA}, v27, 7, v{vPA}")
    a(f"s_mul_i32 s{sT5}, s{sT4}, 12288")
    a(f"s_add_u32 s{sT5}, s{sT5}, {L_PART}")
    a(f"v_add_u32 v{vPA}, s{sT5}, v{vPA}")
    a(f"v_xor_b32 v{vPB}, 16, v{vPA}")
    a(f"v_lshl_add_u32 v{vYT}, v25, 3, v26")
    a(f"v_lshlrev_b32 v{vYT}, 6, v{vYT}")
    a(f"v_lshl_add_u32 v{vYT}, v24, 3, v{vYT}")
    a(f"s_lshl_b32 s{sT4}, s{sT4}, 11")
    a(f"s_lshl_b32 s{sT1}, s{sT1}, 1")
    a(f"s_add_u32 s{sT4}, s{sT4}, s{sT1}")
    a(f"s_add_u32 s{sT4}, s{sT4}, {L_YT}")
    a(f"v_add_u32 v{vYT}, s{sT4}, v{vYT}")
    if split: split(0)
    a(f"v_and_b32 v24, 31, v{vL}")
    a(f"v_lshrrev_b32 v25, 5, v{vL}")
    a(f"v_bfe_u32 v{vPW}, v24, 1, 1")
    a("v_and_b32 v26, 1, v24")
    a(f"v_lshl_or_b32 v{vPW}, v26, 1, v{vPW}")
    a(f"v_and_or_b32 v{vPW}, v24, 4, v{vPW}")
    a(f"v_xor_b32 v{vPW}, v{vPW}, v25")
    a(f"v_lshlrev_b32 v{vPW}, 4, v{vPW}")
    a(f"v_lshl_add_u32 v{vPW}, v24, 7, v{vPW}")
    a(f"s_lshl_b32 s{sT4}, s{sT0}, 12")
    a(f"s_add_u32 s{sT5}, s{sT5}, s{sT4}")
    a(f"v_add_u32 v{vPW}, s{sT5}, v{vPW}")
    for q in range(1, 4): a(f"v_xor_b32 v{vPW+q}, {32*q}, v{vPW}")
    a(f"s_mul_i32 s{sT4}, s{sW}, 12288")
    a(f"s_add_u32 s{sT4}, s{sT4}, {L_PART+8192}")
    a(f"s_lshl_b32 s{sT1}, s{sW}, 12")
    a(f"s_add_u32 s{sT1}, s{sT1}, {L_PART+49152-16384}")
    a(f"s_cmp_lt_u32 s{sW}, 4")
    a(f"s_cselect_b32 s{sT4}, s{sT4}, s{sT1}")
    a(f"s_sub_u32 s{sRD}, s{sT4}, s{sT5}")
    a(f"s_sub_u32 s{sT1}, s{sW}, 4")
    a(f"s_cmp_lt_u32 s{sW}, 4")
    a(f"s_cselect_b32 s{sT1}, 3, s{sT1}")
    a(f"s_mul_i32 s{sT1}, s{sT1}, {10*1024}")
    a(f"s_add_u32 s{sT1}, s{sT1}, {L_OFR}")
    a(f"v_add_u32 v{vRR}, s{sT1}, v{vL16}")
    a(f"s_mul_i32 s{sT1}, s{sT0}, {15*1024}")
    a(f"s_add_u32 s{sT1}, s{sT1}, {L_OFR}")
    a(f"v_add_u32 v{vPR}, s{sT1}, v{vL16}")
    a(f"s_mul_i32 s{sT1}, s{sW}, 5120")
    a(f"s_add_u32 s{sT4}, s{sT1}, {L_OFR}")
    a(f"v_add_u32 v{vOW}, s{sT4}, v{vL16}")
    a(f"s_add_u32 s{sPQO}, s{sYO}, s{sT1}")
    a(f"s_add_u32 s{sPQO}, s{sPQO}, {(WS_PQ-WS_Y)&0xffffffff}")
    if split: split(1)
    a("v_mul_u32_u24 v25, 336, v25")
    a("v_min_u32 v26, 20, v24")
    a("v_lshl_add_u32 v26, v26, 4, v25")
    a("v_lshrrev_b32 v27, 2, v24")
    a(f"v_mov_b32 v{vFT}, 0x7f000000")
    a("v_cmp_eq_u32 vcc, 5, v27")
    a(f"v_subrev_u32 v{vKO}, 4, v24")
    a(f"v_lshl_add_u32 v{vKO}, v{vKO}, 4, v25")
    a(f"v_cndmask_b32 v{vKE}, v26, v{vFT}, vcc")
    a(f"v_cndmask_b32 v{vKO}, v26, v{vKO}, vcc")
    a("v_cmp_eq_u32 vcc, 4, v27")
    a(f"s_mul_i32 s{sKVO}, s{sW}, {4*KVH}")
    a(f"s_add_u32 s{sKVO}, s{sKVO}, {WS_KV}")
    a(f"v_cndmask_b32 v{vKO}, v{vKO}, v{vFT}, vcc")
    a(f"s_lshl_b32 s{sT1}, s{sW}, 8")
    a(f"s_add_u32 s{sT1}, s{sT1}, {WS_FK}")
    a(f"v_mov_b32 v{vFQ}, s{sT1}")
    a(f"s_lshr_b32 s{sT1}, s{sR3}, 3")
    a(f"s_add_u32 s{sT1}, s{sT1}, 2")
    a(f"s_bfe_u32 s{sT1}, s{sT1}, 0x10002")
    a(f"s_mul_i32 s{sT1}, s{sT1}, 20")
    a(f"s_mul_i32 s{sT4}, s{sC3}, 5")
    a(f"s_min_u32 s{sT5}, s{sW}, 4")
    a(f"s_add_u32 s{sT4}, s{sT4}, s{sT5}")
    a(f"s_add_u32 s{sT1}, s{sT1}, s{sT4}")
    a(f"s_lshl_b32 s{sT1}, s{sT1}, 8")
    a(f"s_add_u32 s{sT1}, s{sT1}, {WS_FY}")
    a(f"v_mov_b32 v{vFY}, s{sT1}")
    a(f"s_lshl_b32 s{sT4}, s{sT4}, 11")
    a(f"s_add_u32 s{sYO}, s{sYO}, s{sT4}")
    a(f"s_lshl_b32 s{sYM}, s{sT5}, 11")
    a(f"s_add_u32 s{sYM}, s{sYM}, {L_YT}")

def x_loads():
    a(f"buffer_load_dwordx4 {vr(vXD,4)}, v{vOUT}, {srd(SX)}, s{sXOFF} offen")
    a(f"buffer_load_dwordx4 {vr(vXD2,4)}, v{vOUT}, {srd(SX)}, s{sXOFF} offen offset:256")

def wo_prep(vtmp):
    a(f"s_and_b32 s{sT4}, s{sIDX}, 1")
    a(f"s_lshl_b32 s{sT5}, s{sCP}, 1")
    a(f"s_add_u32 s{sT4}, s{sT4}, s{sT5}")
    a(f"s_lshl_b32 s{sT4}, s{sT4}, 3")
    a(f"s_add_u32 s{sT4}, s{sT4}, s{sW}")
    a(f"s_mul_i32 s{sT4}, s{sT4}, 25600")
    a(f"s_add_u32 s{sWOO}, s{sT4}, {WS_WOP}")
    a(f"v_lshlrev_b32 v{vtmp}, 4, v{vL}")
def wo_list(vtmp, order=None):
    out = []
    for i in range(25):
        t = f"buffer_load_dwordx4 {vr(VWO+4*i,4)}, v{vtmp}, {srd(SWS)}, s{sWOO} offen offset:{1024*(i&3)} sc1"
        if (i & 3) == 3: t += f"\ns_add_u32 s{sWOO}, s{sWOO}, 4096"
        out.append(t)
    return out

S0B = 156
def s0_task(st):
    a(f"s_mul_i32 s{sTB}, s{st}, 6554")
    a(f"s_lshr_b32 s{sTB}, s{sTB}, 16")
    a(f"s_mul_i32 s{sCHB}, s{sTB}, 10")
    a(f"s_sub_u32 s{sCHB}, s{st}, s{sCHB}")
for t in range(640): assert (t * 6554) >> 16 == t // 10

def s0_loads():
    a.c("S0 loads")
    B = S0B
    a(f"v_lshrrev_b32 v{B+1}, 3, v{vL}")
    a(f"v_and_b32 v{B+2}, 7, v{vL}")
    a(f"v_mul_u32_u24 v{B+3}, 5120, v{B+1}")
    a(f"v_lshl_add_u32 v{B+3}, v{B+2}, 4, v{B+3}")
    a(f"s_mul_i32 s{sT0}, s{sTB}, 40960")
    a(f"s_lshl_b32 s{sT1}, s{sCHB}, 7")
    a(f"s_add_u32 s{sT0}, s{sT0}, s{sT1}")
    a(f"v_add_u32 v{B+64}, s{sT0}, v{B+3}")
    a(f"v_subrev_u32 v{B+65}, 3840, v{B+64}")
    a(f"v_lshlrev_b32 v{B+66}, 6, v{B+2}")
    a(f"s_lshl_b32 s{sT1}, s{sCHB}, 9")
    srd_init([SK, SV, SSK])
    a("s_waitcnt lgkmcnt(0)")
    for i in range(4): a(f"buffer_load_dwordx4 {vr(B+16+4*i,4)}, v{B+64}, {srd(SK)}, 0 offen offset:{1280*i}")
    for i in range(3): a(f"buffer_load_dwordx4 {vr(B+4+4*i,4)}, v{B+65}, {srd(SK)}, 0 offen offset:{1280*i}")
    for i in range(4): a(f"buffer_load_dwordx4 {vr(B+32+4*i,4)}, v{B+64}, {srd(SV)}, 0 offen offset:{1280*i}")
    for i in range(4): a(f"buffer_load_dwordx4 {vr(B+48+4*i,4)}, v{B+66}, {srd(SSK)}, s{sT1} offen offset:{16*i}")

def s0_addr(s_scr):
    B = S0B
    a(f"v_mul_u32_u24 v{B+67}, 576, v{B+1}")
    a(f"v_lshl_add_u32 v{B+67}, v{B+2}, 4, v{B+67}")
    a(f"v_add_u32 v{B+67}, s{s_scr}, v{B+67}")
    a(f"v_and_b32 v{B+68}, 15, v{vL}")
    a(f"v_mul_u32_u24 v{B+69}, 144, v{B+68}")
    a(f"v_lshrrev_b32 v{B+70}, 4, v{vL}")
    a(f"v_lshl_add_u32 v{B+69}, v{B+70}, 3, v{B+69}")
    a(f"v_add_u32 v{B+69}, s{s_scr}, v{B+69}")
    a(f"s_and_b32 s{sT0}, s{sTB}, 3")
    a(f"v_xor_b32 v{B+68}, s{sT0}, v{B+68}")
    a(f"v_lshlrev_b32 v{B+68}, 4, v{B+68}")
    a(f"v_lshl_add_u32 v{B+68}, v{B+70}, 14, v{B+68}")
    a(f"s_lshl_b32 s{sT0}, s{sCHB}, 18")
    a(f"s_lshl_b32 s{sT1}, s{sTB}, 8")
    a(f"s_add_u32 s{sT0}, s{sT0}, s{sT1}")
    a(f"s_mov_b32 s{sT1}, 0xffff0000")

def s0_compute(split=None, pk=True):
    a.c("S0 compute")
    B = S0B
    KF, VF, WF, AC, UO = 112, 126, 134, B + 88, B + 72
    for p in range(4):
        for cc in range(2):
            c = 2 * p + cc
            for h in range(2):
                a(f"v_lshlrev_b32 v{WF+4*h+cc}, 16, v{B+48+2*c+h}")
                a(f"v_and_b32 v{WF+4*h+2+cc}, s{sT1}, v{B+48+2*c+h}")
        for r in range(7):
            a(f"v_lshlrev_b32 v{KF+2*r}, 16, v{B+4+4*r+p}")
            a(f"v_and_b32 v{KF+2*r+1}, s{sT1}, v{B+4+4*r+p}")
        for r in range(4):
            a(f"v_lshlrev_b32 v{VF+2*r}, 16, v{B+32+4*r+p}")
            a(f"v_and_b32 v{VF+2*r+1}, s{sT1}, v{B+32+4*r+p}")
        if pk:
            for i in range(4): a(f"v_pk_mul_f32 {vr(AC+2*i,2)}, {vr(KF+2*(i+3),2)}, {vr(WF,2)}")
            for d in range(1, 4):
                for i in range(4): a(f"v_pk_fma_f32 {vr(AC+2*i,2)}, {vr(KF+2*(i+3-d),2)}, {vr(WF+2*d,2)}, {vr(AC+2*i,2)}")
            for i in range(4): a(f"v_pk_mul_f32 {vr(AC+2*i,2)}, {vr(AC+2*i,2)}, {vr(VF+2*i,2)}")
        else:
            for i in range(8): a(f"v_mul_f32 v{AC+i}, v{KF+6+i}, v{WF+(i&1)}")
            for d in range(1, 4):
                for i in range(8): a(f"v_fmac_f32 v{AC+i}, v{KF+6+i-2*d}, v{WF+2*d+(i&1)}")
            for i in range(8): a(f"v_mul_f32 v{AC+i}, v{AC+i}, v{VF+i}")
        for i in range(4): a(f"v_cvt_pk_bf16_f32 v{UO+4*i+p}, v{AC+2*i}, v{AC+2*i+1}")
        if split: split(p)
    for i in range(4): a(f"ds_write_b128 v{B+67}, {vr(UO+4*i,4)} offset:{144*i}")
    for j in range(4):
        a(f"ds_read_b64_tr_b16 {vr(B+4+4*j,2)}, v{B+69} offset:{32*j}")
        a(f"ds_read_b64_tr_b16 {vr(B+6+4*j,2)}, v{B+69} offset:{32*j+2304}")
    for j in range(4):
        a(f"s_waitcnt lgkmcnt({6-2*j})")
        a(f"buffer_store_dwordx4 {vr(B+4+4*j,4)}, v{B+68}, {srd(SWS)}, s{sT0} offen sc1")
        if j < 3: a(f"s_add_u32 s{sT0}, s{sT0}, 65536")

def f0_off(sd):
    a(f"s_lshl_b32 s{sd}, s{sCHB}, 8")
    a(f"s_add_u32 s{sd}, s{sd}, {WS_F0}")

ACC = 32
FB = [112, 156]
vX0, vX1, vWA, vWX = 148, 149, 150, 154
vA1, vA2, vC16, vG4 = 16, 17, 18, 19
sC, sSL = sT2, sT3

def a_setup():
    a.c("A-wave address setup")
    a(f"s_and_b32 s{sT0}, s{sW}, 1")
    a(f"s_lshr_b32 s{sT1}, s{sW}, 1")
    a(f"v_and_b32 v{vC16}, 15, v{vL}")
    a(f"v_lshrrev_b32 v{vG4}, 4, v{vL}")
    a(f"v_lshrrev_b32 v8, 1, v{vC16}")
    a(f"v_xor_b32 v8, v{vG4}, v8")
    a(f"v_lshlrev_b32 v8, 4, v8")
    a(f"v_lshl_add_u32 v8, v{vC16}, 7, v8")
    a(f"s_lshl_b32 s{sT4}, s{sT1}, 13")
    a(f"v_add_u32 v{vX0}, s{sT4}, v8")
    a(f"v_xor_b32 v{vX1}, 64, v{vX0}")
    a(f"v_bfe_u32 v8, v{vL}, 2, 2")
    a(f"v_lshl_add_u32 v9, v{vG4}, 3, v8")
    a(f"v_and_b32 v10, 1, v{vG4}")
    a(f"v_xor_b32 v10, s{sT0}, v10")
    a(f"v_and_b32 v11, 3, v{vL}")
    a("v_lshlrev_b32 v11, 3, v11")
    a(f"v_lshl_add_u32 v{vWX}, v9, 6, v11")
    a(f"v_lshl_add_u32 v{vWX}, v10, 5, v{vWX}")
    a(f"v_add_u32 v{vWX}, 32768, v{vWX}")
    a("v_lshl_or_b32 v8, v10, 2, v8")
    a("v_lshl_add_u32 v8, v8, 5, v11")
    a("v_lshl_add_u32 v8, v9, 8, v8")
    a(f"v_add_u32 v{vWA}, 16384, v8")
    for tt in range(1, 4): a(f"v_xor_b32 v{vWA+tt}, {32*tt}, v{vWA}")

def a_reads(buf, ks):
    b = FB[buf]
    xs = [f"ds_read_b128 {vr(b+4*rt,4)}, v{vX1 if ks else vX0} offset:{2048*rt}" for rt in range(4)]
    ws = []
    for tt in range(5):
        for sec in range(2):
            if tt < 4: ws.append(f"ds_read_b64_tr_b16 {vr(b+16+4*tt+2*sec,2)}, v{vWA+tt} offset:{ks*8192+sec*1024}")
            else: ws.append(f"ds_read_b64_tr_b16 {vr(b+16+4*tt+2*sec,2)}, v{vWX} offset:{ks*2048+sec*256}")
    return [xs[0], ws[0], ws[1], xs[1], ws[2], ws[3], xs[2], ws[4], ws[5], xs[3]] + ws[6:]

def acc(rt, tt): return ACC + 4 * (rt * 5 + tt)

def a_mfmas(buf, qtype, order=None):
    b = FB[buf]
    out = []
    for (rt, tt) in (order or [(rt, tt) for tt in range(5) for rt in range(4)]):
        d = vr(acc(rt, tt), 4)
        xf = vr(b + 4 * rt, 4); wf = vr(b + 16 + 4 * tt, 4)
        A, B = (wf, xf) if qtype else (xf, wf)
        out.append(f"v_mfma_f32_16x16x32_bf16 {d}, {A}, {B}, {d}")
    return out

def interleave(mf, rd):
    j = 0
    for i, m in enumerate(mf):
        a(m)
        if j < len(rd): a(rd[j]); j += 1
    while j < len(rd): a(rd[j]); j += 1

def a_mainloop(qtype):
    t = "q" if qtype else "k"
    a.c("A main loop")
    a(f"s_mov_b32 s{sC}, 0")
    a(f"s_mov_b32 s{sSL}, 0")
    a(f"s_mov_b32 s{sT6}, {((1<<1)|(1<<3) if qtype else 0)|(1<<10)}")
    if "noprio" not in EXP: a("s_setprio 2")
    a("s_waitcnt lgkmcnt(0)")
    if "ast" in EXP: stamp(1, True)
    a("s_barrier")
    stamp(1)
    for r in a_reads(0, 0): a(r)
    book = [
        f"s_add_u32 s{sSL}, s{sSL}, 1\ns_cmp_eq_u32 s{sSL}, 3",
        f"s_mov_b32 s{sT4}, {SLOT}",
        f"s_cselect_b32 s{sT4}, {-2*SLOT & 0xffffffff}, s{sT4}",
        f"s_cselect_b32 s{sSL}, 0, s{sSL}\ns_add_u32 s{sC}, s{sC}, 1",
    ]
    src_ = f"s{sT4}"
    rd = a_reads(1, 1)
    seq = []
    for i, r in enumerate(rd): seq.append(r + ("\n" + book[i - 2] if 2 <= i < 6 else ""))
    seq += [f"v_add_u32 v{vX0}, {src_}, v{vX0}\nv_add_u32 v{vX1}, {src_}, v{vX1}",
            f"v_add_u32 v{vWA}, {src_}, v{vWA}\nv_add_u32 v{vWA+1}, {src_}, v{vWA+1}",
            f"v_add_u32 v{vWA+2}, {src_}, v{vWA+2}\nv_add_u32 v{vWA+3}, {src_}, v{vWA+3}",
            f"v_add_u32 v{vWX}, {src_}, v{vWX}\ns_bitcmp1_b32 s{sT6}, s{sC}"]
    a(".p2align 3")
    a.label(f"Lml{t}")
    a("s_waitcnt lgkmcnt(0)")
    interleave(a_mfmas(0, qtype), seq)
    a("s_waitcnt lgkmcnt(0)")
    a(f"s_cbranch_scc1 Lhook{t}")
    a.label(f"Lhookd{t}")
    if "ast" in EXP:
        a("s_memrealtime vcc")
        a("s_waitcnt lgkmcnt(0)")
        a(f"s_mov_b32 m0, s{sC}")
        a("v_writelane_b32 v29, vcc_lo, m0")
    a("s_barrier")
    interleave(a_mfmas(1, qtype), a_reads(0, 0))
    a(f"s_branch Lml{t}")
    a.label(f"Lhook{t}")
    if qtype:
        a(f"s_cmp_eq_u32 s{sC}, 10")
        a(f"s_cbranch_scc1 Lmx{t}")
        N2 = a.newlabel("Lhk")
        a(f"s_cmp_lg_u32 s{sC}, 1")
        a(f"s_cbranch_scc1 {N2}")
        tag_get(24, 25, "issued")
        arr_issue(30, 31, f"s{sQUAD}")
        a(f"s_branch Lhookd{t}")
        a.label(N2)
        arr_finish(30, 31, f"s{sQUAD}", 64)
        a(f"s_branch Lhookd{t}")
        a.label(f"Lmx{t}")
    if "ast" in EXP:
        for c in range(1, 9): a(f"v_readlane_b32 s{STS+1+c}, v29, {c}")

def acc_zero():
    for i in range(80): a(f"v_mov_b32 v{ACC+i}, 0")

def phi_list(regs, tmp, pk=False):
    out = []
    B = 4
    for i in range(0, len(regs), B):
        batch = regs[i:i + B]
        for j, r in enumerate(batch):
            if pk:
                out.append(f"v_pk_mul_f32 {vr(tmp+2*j,2)}, {vr(r,2)}, {sr(sLOG,2)}"); continue
            out.append(f"v_mul_f32 v{tmp+2*j}, s{sLOG}, v{r}")
            out.append(f"v_mul_f32 v{tmp+2*j+1}, s{sLOG}, v{r+1}")
        for j, r in enumerate(batch):
            out.append(f"v_exp_f32_e64 v{tmp+2*j}, v{tmp+2*j} clamp")
            out.append(f"v_exp_f32_e64 v{tmp+2*j+1}, v{tmp+2*j+1} clamp")
        for j, r in enumerate(batch):
            out.append(f"v_max_f32 v{r}, s{sEPS}, v{r}")
            out.append(f"v_max_f32 v{r+1}, s{sEPS}, v{r+1}")
        for j, r in enumerate(batch):
            if pk:
                out.append(f"v_pk_add_f32 {vr(r,2)}, {vr(r,2)}, {vr(tmp+2*j,2)}"); continue
            out.append(f"v_add_f32 v{r}, v{r}, v{tmp+2*j}")
            out.append(f"v_add_f32 v{r+1}, v{r+1}, v{tmp+2*j+1}")
    return out

def sprinkle(main, extra, every, start=0):
    j = 0
    for i, m in enumerate(main):
        a(m)
        if i >= start and (i - start) % every == every - 1 and j < len(extra):
            a(extra[j]); j += 1
    return extra[j:]

def fc_addr(v):
    a(f"v_and_b32 v{v}, 7, v{vL}")
    a(f"v_lshlrev_b32 v{v}, 8, v{v}")
    a(f"v_add_u32 v{v}, {WS_FC}, v{v}")
def f0_addr(v):
    a(f"s_lshr_b32 s{sT4}, s{sQUAD}, 4")
    a(f"s_lshl_b32 s{sT4}, s{sT4}, 8")
    a(f"s_add_u32 s{sT4}, s{sT4}, {WS_F0}")
    a(f"v_mov_b32 v{v}, s{sT4}")

def awave():
    a.label("Lawave")
    a(f"s_cmp_ge_u32 s{sIDX}, 16")
    a("s_cbranch_scc1 Lqa")
    srd_init([SWS, SDBG])
    a(f"s_lshl_b32 s{sT0}, s{sBID}, 2")
    a(f"s_or_b32 s{sT0}, s{sT0}, s{sW}")
    a(f"s_cmp_lg_u32 s{sT0}, 3")
    a("s_cbranch_scc1 Lkva1")
    a(f"s_memrealtime {sr(sT2,2)}")
    a(f"v_lshlrev_b32 v1, 8, v{vL}")
    a("v_mov_b32 v2, 0")
    a(f"s_mov_b32 s{sT0}, {WS_C + CDELTA}")
    a(f"s_mov_b32 s{sT1}, {WS_C + CDELTA + 16384}")
    a("s_waitcnt lgkmcnt(0)")
    a("s_mov_b32 exec_hi, 0")
    a(f"buffer_store_dword v2, v1, {srd(SWS)}, s{sT1} offen sc1")
    a("s_mov_b32 exec_hi, -1")
    a(f"buffer_store_dword v2, v1, {srd(SWS)}, s{sT0} offen sc1")
    a(f"s_lshl_b32 s{sT3}, s{sT3}, 27")
    a(f"s_xor_b32 s{sT2}, s{sT2}, s{sT3}")
    a(f"s_or_b32 s{sT2}, s{sT2}, 1")
    a(f"v_mov_b32 v3, s{sT2}")
    a("s_waitcnt vmcnt(0)")
    a("s_mov_b64 exec, 1")
    a(f"buffer_store_dword v3, v2, {srd(SDBG)}, 0 offen sc1")
    a("s_mov_b64 exec, -1")
    a.label("Lkva1")
    common_scalars()
    srd_init([SX, SOUT])
    acc_zero()

def kva():
    a(f"s_lshr_b32 s{sT0}, s{sIDX}, 2")
    a(f"s_lshl_b32 s{sCG}, s{sCP}, 2")
    a(f"s_add_u32 s{sCG}, s{sCG}, s{sT0}")
    a_setup()
    a(f"s_mul_i32 s{sT4}, s{sW}, 3584")
    a(f"s_add_u32 s{sT4}, s{sT4}, {L_KVS}")
    a(f"v_mul_u32_u24 v8, 336, v{vG4}")
    a(f"v_add_u32 v8, s{sT4}, v8")
    a(f"v_lshl_add_u32 v{vA1}, v{vC16}, 4, v8")
    a(f"v_add_u32 v9, 8, v{vC16}")
    a(f"v_subrev_u32 v10, 12, v{vC16}")
    a(f"v_cmp_lt_u32 vcc, 11, v{vC16}")
    a("v_cndmask_b32 v9, v9, v10, vcc")
    a(f"v_cmp_eq_u32 vcc, 0, v{vC16}")
    a("v_mov_b32 v10, 20")
    a("v_cndmask_b32 v9, v9, v10, vcc")
    a(f"v_lshl_add_u32 v{vA2}, v9, 4, v8")
    a(f"s_lshl_b32 s{sT4}, s{sT0}, 2")
    a(f"s_add_u32 s{sT4}, s{sT4}, {L_CNT}")
    a(f"v_mov_b32 v20, s{sT4}")
    a(f"s_mul_i32 s{sT4}, s{sT0}, 3584")
    a(f"s_mul_i32 s{sT5}, s{sT1}, {KVH}")
    a(f"s_add_u32 s{sT4}, s{sT4}, s{sT5}")
    a(f"v_lshlrev_b32 v21, 2, v{vL}")
    a(f"s_add_u32 s{sT5}, s{sT4}, {L_KVS}")
    a(f"v_add_u32 v22, s{sT5}, v21")
    a(f"s_mul_i32 s{sT5}, s{sCG}, {4*KVH}")
    a(f"s_add_u32 s{sT4}, s{sT4}, s{sT5}")
    a(f"s_add_u32 s{sCH}, s{sT4}, {WS_KV}")
    a("v_mov_b32 v23, 0x3f803f80")
    a(f"s_lshl_b32 s{sLC}, s{sCG}, 8")
    a(f"s_add_u32 s{sLC}, s{sLC}, {WS_FK}")
    wo_prep(28)
    a_mainloop(False)
    a.c("KV epilogue")
    order = [(rt, tt) for tt in (4, 0, 2, 1, 3) for rt in range(4)]
    mf = a_mfmas(1, False, order)
    for m in mf[:8]: a(m)
    XP = 112
    TM = 12
    TM = 8
    a(f"v_cmp_gt_u32 vcc, 8, v{vC16}")
    def pairs(tt): return sum([[acc(rt, tt), acc(rt, tt) + 2] for rt in range(4)], [])
    def cvts(tt): return [f"v_cvt_pk_bf16_f32 v{acc(rt&2,tt)+2*(rt&1)+h}, v{acc(rt,tt)+2*h}, v{acc(rt,tt)+2*h+1}" for rt in range(4) for h in range(2)]
    L = []
    for rt in range(4):
        for h in range(2): L.append(f"v_cvt_pk_bf16_f32 v{XP+2*rt+h}, v{acc(rt,4)+2*h}, v{acc(rt,4)+2*h+1}")
    for j in range(8): L.append(f"v_cndmask_b32 v{XP+j}, v{XP+j}, v23, vcc")
    L += phi_list(pairs(4)[:4], TM, False)
    for i, m in enumerate(mf[8:]):
        a(m)
        for x in L[2 * i:2 * i + 2]: a(x)
    L = L[24:]
    stamp(2)
    pk = "nopk" not in EXP
    L += phi_list(pairs(4)[4:], TM, pk) + cvts(4) + phi_list(pairs(0), TM, pk) + cvts(0) + cvts(2) + cvts(3)
    if "aspr" in EXP: assert not sprinkle(L, wo_list(28), len(L) // 25)
    else:
        for x in L: a(x)
    def fr(t, p): return XP + 4 * p if t == 5 else acc(2 * p, t)
    prods = [(0, 2), (0, 5), (4, 2), (4, 5), (1, 3), (1, 5), (4, 3)]
    PD = 120
    def pm(lst):
        for p in range(2):
            for i in lst:
                ta, tb = prods[i]
                d = vr(PD + 4 * i, 4)
                a(f"v_mfma_f32_16x16x32_bf16 {d}, {vr(fr(ta,p),4)}, {vr(fr(tb,p),4)}, {'0' if p==0 else d}")
    def wr(i, va, off, mlo, mhi):
        t = ""
        if mlo != -1: t += f"s_mov_b32 exec_lo, {mlo}\ns_mov_b32 exec_hi, {mhi}\n"
        t += f"ds_write_b128 v{va}, {vr(PD+4*i,4)} offset:{off}"
        if mlo != -1: t += "\ns_mov_b64 exec, -1"
        return t
    pm([0, 1, 2, 3, 6])
    W1 = [wr(0, vA1, 0, -1, -1), wr(1, vA2, 0, 0x0f010f01, 0x0f010f01), wr(2, vA1, 4 * 336, 0xffff, 0),
          wr(3, vA2, 4 * 336, 0x0f01, 0), wr(3, vA2, KVH - 336, 0xf0010000, 0), wr(6, vA1, KVH + 64 - 336, 0xffff0000, 0)]
    rest = sprinkle(phi_list(pairs(1)[:4], TM, False) + phi_list(pairs(1)[4:], TM, pk) + cvts(1), W1, 8, 6)
    assert not rest
    pm([4, 5])
    a(wr(4, vA1, KVH + 336 + 64, -1, -1))
    a(wr(5, vA2, KVH + 336, 0xf001f001, 0xf001f001))
    a("s_waitcnt lgkmcnt(0)")
    a("s_barrier")
    for i in range(7):
        a(f"ds_read_b32 v{32+i}, v22 offset:{256*i}")
        a(f"ds_read_b32 v{40+i}, v22 offset:{256*i+7168}")
    stamp(3)
    for i in range(7):
        a(f"s_waitcnt lgkmcnt({12-2*i})")
        a(f"v_add_f32 v{32+i}, v{32+i}, v{40+i}")
        a(f"buffer_atomic_add_f32 v{32+i}, v21, {srd(SWS)}, s{sCH} offen offset:{256*i}")
    tag_lds(50)
    arr_prep(48, 49)
    s3_setup()
    a("s_waitcnt vmcnt(0)")
    arr_issue(48, 49, f"s{sLC}")
    arr_finish(48, 49, f"s{sLC}", 128, 0)
    a("s_setprio 0")
    stamp(4)
    a("s_branch Ls3x" if "aspr" in EXP else "s_branch Ls3")

def qa():
    a.label("Lqa")
    common_scalars()
    a(f"s_mov_b32 s{sTB}, s{sCI}")
    a(f"s_add_u32 s{sCHB}, s{sW}, 6")
    s0_loads()
    srd_init([SWS, SDBG, SX, SOUT])
    acc_zero()
    a(f"s_bfe_u32 s{sT0}, s{sIDX}, 0x10002")
    a(f"s_lshl_b32 s{sCG}, s{sCP}, 1")
    a(f"s_add_u32 s{sCG}, s{sCG}, s{sT0}")
    a_setup()
    a(f"v_lshrrev_b32 v8, 1, v{vG4}")
    a(f"v_and_b32 v9, 1, v{vG4}")
    a(f"v_lshlrev_b32 v20, 4, v{vC16}")
    a("v_lshl_add_u32 v20, v9, 9, v20")
    a("v_lshl_add_u32 v21, v8, 3, v20")
    a("v_add_u32 v21, 4096, v21")
    a("v_lshl_add_u32 v20, v8, 10, v20")
    a(f"s_lshl_b32 s{sT4}, s{sRB}, 1")
    a(f"s_add_u32 s{sT4}, s{sT4}, s{sT1}")
    a(f"s_lshl_b32 s{sT5}, s{sCG}, 1")
    a(f"s_add_u32 s{sT5}, s{sT5}, s{sT0}")
    a(f"s_mul_i32 s{sT0}, s{sT4}, {80*1024}")
    a(f"s_mul_i32 s{sT1}, s{sT5}, {5*1024}")
    a(f"s_add_u32 s{sT0}, s{sT0}, s{sT1}")
    a(f"s_add_u32 s{sCH}, s{sT0}, {WS_PQ}")
    a(f"s_add_u32 s{sVAR}, s{sCH}, {40*1024}")
    a(f"s_lshl_b32 s{sT4}, s{sT5}, 8")
    a(f"s_add_u32 s{sLC}, s{sT4}, {WS_FK}")
    wo_prep(28)
    arr_prep(30, 31)
    a("v_mov_b32 v24, 0")
    a(f"s_mul_i32 s{sT2}, s{sW}, 4608")
    a(f"s_add_u32 s{sT2}, s{sT2}, {2*SLOT}")
    f0_off(sQUAD)
    s0_addr(sT2)
    a("s_waitcnt vmcnt(0)")
    stamp(11)
    s0_compute()
    stamp(12)
    cnt_load(SDBG, 24, 25)
    a_mainloop(True)
    a.c("Q epilogue")
    order = [(rt, tt) for rt in range(4) for tt in range(5)]
    mf = a_mfmas(1, True, order)
    for m in mf[:9]: a(m)
    L = []
    for rt in range(4):
        regs = []
        for tt in range(5): regs += [acc(rt, tt), acc(rt, tt) + 2]
        L += phi_list(regs, 112, rt > 0 and "nopk" not in EXP)
        O = acc(rt, 0)
        for tt in range(5):
            for h in range(2): L.append(f"v_cvt_pk_bf16_f32 v{O+2*tt+h}, v{acc(rt,tt)+2*h}, v{acc(rt,tt)+2*h+1}")
        so = f"s{sVAR if rt>>1 else sCH}"
        for p in range(2):
            L.append(f"buffer_store_dwordx4 {vr(O+4*p,4)}, v20, {srd(SWS)}, {so} offen offset:{256*(rt&1)+2048*p} sc1")
        L.append(f"buffer_store_dwordx2 {vr(O+8,2)}, v21, {srd(SWS)}, {so} offen offset:{256*(rt&1)} sc1")
    for i, m in enumerate(mf[9:]):
        a(m)
        for x in L[2 * i:2 * i + 2]: a(x)
    L = L[22:]
    stamp(2)
    if "aspr" in EXP: assert not sprinkle(L, wo_list(28), 8)
    else:
        for x in L: a(x)
    stamp(3)
    a("s_barrier")
    arr_prep(120, 121)
    s3_setup()
    a("s_waitcnt vmcnt(0)")
    arr_issue(120, 121, f"s{sLC}")
    arr_finish(120, 121, f"s{sLC}", 128, 0)
    a("s_setprio 0")
    stamp(4)
    a("s_branch Ls3x" if "aspr" in EXP else "s_branch Ls3")

def h_dma(sj, sch0):
    a(f"s_lshr_b32 s{sT4}, s{sj}, 1")
    a(f"s_and_b32 s{sT5}, s{sj}, 1")
    a(f"s_lshl_b32 s{sT5}, s{sT5}, 11")
    a(f"s_add_u32 s{sT6}, s{sch0}, s{sT4}")
    a(f"s_lshl_b32 s{sT6}, s{sT6}, 12")
    a(f"s_add_u32 s{sT6}, s{sT6}, s{sT5}")
    a(f"s_mul_i32 s{sT4}, s{sT4}, {HSTR}")
    a(f"s_add_u32 s{sT4}, s{sT4}, s{sT5}")
    a(f"s_add_u32 m0, s{sT4}, {L_HB+128}")
    a(f"buffer_load_dwordx4 v{vL16}, {srd(SH)}, s{sT6} offen lds")
    a(f"buffer_load_dwordx4 v{vL16}, {srd(SH)}, s{sT6} offen offset:1024 lds")

CACC = 32
CPOOL = 96
NPOOL = 12
CD = 144
vUe, vUo, vH, vCW, vCT, vCS, vCY, vCN = range(148, 156)

def conv_setup(j, chl0, split=None):
    a.c("conv setup")
    a(f"s_lshr_b32 s{sLC}, s{j}, 1")
    a(f"s_and_b32 s{sVAR}, s{j}, 1")
    a(f"s_add_u32 s{sCHL}, s{chl0}, s{sLC}")
    a(f"s_lshl_b32 s{sCH}, s{sQUAD}, 2")
    a(f"s_add_u32 s{sCH}, s{sCH}, s{sCHL}")
    a(f"s_lshl_b32 s{sT4}, s{sCH}, 1")
    a(f"s_and_b32 s{sT4}, s{sT4}, -4")
    a(f"s_load_dword s{sDV}, {sr(SD,2)}, s{sT4}")
    a(f"v_and_b32 v96, 31, v{vL}")
    a(f"v_lshrrev_b32 v97, 5, v{vL}")
    a("v_lshl_add_u32 v98, v97, 2, v96")
    a("v_lshrrev_b32 v99, 2, v98")
    a("v_add_u32 v99, 3, v99")
    a("v_and_b32 v99, 3, v99")
    a(f"v_xor_b32 v99, s{sCHL}, v99")
    a("v_lshlrev_b32 v99, 4, v99")
    a("v_lshl_add_u32 v99, v98, 6, v99")
    a(f"v_add_u32 v{vUe}, {L_UD-28*64}, v99")
    a(f"v_xor_b32 v{vUo}, 32, v{vUe}")
    a(f"v_bfe_u32 v98, v{vL}, 4, 1")
    a(f"v_and_b32 v99, 3, v{vL}")
    a("v_lshl_add_u32 v98, v98, 2, v99")
    a(f"v_bfe_u32 v96, v{vL}, 2, 2")
    a("v_sub_u32 v98, v98, v96")
    a("v_lshlrev_b32 v97, 3, v97")
    a("v_sub_u32 v98, v98, v97")
    a("v_lshlrev_b32 v98, 3, v98")
    a(f"s_mul_i32 s{sT4}, s{sLC}, {HSTR}")
    a(f"s_add_u32 s{sT4}, s{sT4}, {L_HB+128+32}")
    a(f"v_add_u32 v{vH}, s{sT4}, v98")
    a(f"s_lshl_b32 s{sT4}, s{sW}, 11")
    a(f"s_add_u32 s{sT4}, s{sT4}, {L_YST}")
    a(f"v_lshlrev_b32 v{vCW}, 4, v{vL}")
    a(f"v_add_u32 v{vCW}, s{sT4}, v{vCW}")
    if split: split(0)
    a(f"v_lshrrev_b32 v97, 4, v{vL}")
    a("v_lshrrev_b32 v98, 1, v99")
    a("v_lshl_add_u32 v98, v97, 1, v98")
    a("v_lshl_add_u32 v98, v98, 3, v96")
    a("v_lshlrev_b32 v98, 4, v98")
    a("v_and_b32 v99, 1, v99")
    a("v_lshl_add_u32 v98, v99, 3, v98")
    a(f"v_add_u32 v{vCT}, s{sT4}, v98")
    a(f"v_and_b32 v98, 7, v{vL}")
    a(f"v_lshrrev_b32 v99, 5, v{vL}")
    a("v_lshl_add_u32 v98, v98, 1, v99")
    a(f"v_mul_u32_u24 v98, 40960, v98")
    a(f"v_bfe_u32 v99, v{vL}, 3, 2")
    a(f"v_lshl_add_u32 v{vCY}, v99, 4, v98")
    a(f"s_lshl_b32 s{sT4}, s{j}, 4")
    a(f"s_add_u32 s{sT4}, s{sT4}, {L_SP}")
    a(f"v_mov_b32 v{vCS}, s{sT4}")
    a(f"s_lshl_b32 s{sT4}, s{sLC}, 2")
    a(f"s_add_u32 s{sT4}, s{sT4}, {L_CNT+16}")
    a(f"v_mov_b32 v{vCN}, s{sT4}")

def conv_dfrag():
    a("s_waitcnt lgkmcnt(0)")
    a(f"s_and_b32 s{sT4}, s{sCH}, 1")
    a(f"s_lshl_b32 s{sT4}, s{sT4}, 4")
    a(f"s_lshr_b32 s{sDV}, s{sDV}, s{sT4}")
    a(f"s_and_b32 s{sDV}, s{sDV}, 0xffff")
    a(f"v_lshlrev_b32 v98, 2, v{vL}")
    a("v_and_b32 v98, 16, v98")
    a(f"v_lshlrev_b32 v98, v98, s{sDV}")
    a(f"v_and_b32 v99, 59, v{vL}")
    for r in range(4):
        a(f"v_cmp_eq_u32 vcc, {32+8*r}, v99")
        a(f"v_cndmask_b32 v{CD+r}, 0, v98, vcc")

def zero_pads(j):
    a("v_mov_b32 v100, 0")
    a("v_mov_b32 v101, 0")
    a(f"v_lshlrev_b32 v102, 3, v{vL}")
    a(f"s_and_b32 s{sT6}, s{j}, 3")
    a(f"s_lshl_b32 s{sT4}, s{sT6}, 9")
    a(f"s_add_u32 s{sT4}, s{sT4}, {L_UB}")
    a(f"v_add_u32 v103, s{sT4}, v102")
    a("ds_write_b64 v103, v[100:101]")
    a(f"s_mul_i32 s{sT4}, s{sT6}, {HSTR}")
    a(f"s_add_u32 s{sT4}, s{sT4}, {L_HB}")
    a(f"v_add_u32 v103, s{sT4}, v102")
    a("s_mov_b64 exec, 0xffff")
    a("ds_write_b64 v103, v[100:101]")
    a(f"v_add_u32 v103, {L_CNT}, v102")
    a("s_mov_b64 exec, 0xff")
    a("ds_write_b64 v103, v[100:101]")
    a("s_mov_b64 exec, -1")

def u_dma(j, nper):
    a(f"s_mul_i32 s{sT4}, s{j}, {1024*nper}")
    a(f"s_lshl_b32 s{sT5}, s{sQUAD}, 14")
    a(f"s_add_u32 s{sT5}, s{sT5}, s{sT4}")
    a(f"s_add_u32 m0, s{sT4}, {L_UD}")
    for i in range(nper): a(f"buffer_load_dwordx4 v{vL16}, {srd(SWS)}, s{sT5} offen offset:{1024*i} sc1 lds")

def bwave():
    a.c("B wave")
    sXB, sWB, sM, sMW, sROT, sSTEP, sQ2, sQ3 = sCG, sUD, sTB, sRB, sCI, sLOG, sLOG + 1, sEPS
    VX, VW = 32, 36
    a(f"s_sub_u32 s{sJ}, s{sW}, 4")
    a(f"v_lshrrev_b32 v1, 3, v{vL}")
    a(f"v_mul_u32_u24 v1, 1280, v1")
    a(f"v_lshrrev_b32 v2, 4, v{vL}")
    a(f"v_and_b32 v3, 7, v{vL}")
    a("v_xor_b32 v2, v2, v3")
    a(f"v_lshl_add_u32 v{VX}, v2, 4, v1")
    a(f"v_xor_b32 v{VX+1}, 64, v{VX}")
    a(f"v_add_u32 v{VX+1}, {10240-1024}, v{VX+1}")
    a(f"v_add_u32 v{VX+2}, {20480-2048}, v{VX}")
    a(f"v_add_u32 v{VX+3}, {20480-2048}, v{VX+1}")
    a(f"s_lshl_b32 s{sXB}, s{sRB}, 2")
    a(f"s_add_u32 s{sXB}, s{sXB}, s{sJ}")
    a(f"s_mul_i32 s{sXB}, s{sXB}, 40960")
    a(f"s_lshr_b32 s{sT0}, s{sIDX}, 2")
    a(f"s_add_u32 s{sROT}, s{sT0}, s{sIDX}")
    a(f"s_and_b32 s{sROT}, s{sROT}, 3")
    a(f"s_add_u32 s{sM}, s{sRP}, s{sCP}")
    a(f"s_and_b32 s{sM}, s{sM}, 1")
    a(f"s_lshl_b32 s{sM}, s{sM}, 2")
    a(f"s_or_b32 s{sROT}, s{sROT}, s{sM}")
    a(f"s_lshl_b32 s{sM}, s{sJ}, 12")
    srd_init([SX, SWQ])
    def chunk_x(sc):
        a(f"s_mov_b32 m0, s{sM}")
        a(f"s_lshl_b32 s{sQ2}, s{sc}, 7")
        a(f"s_add_u32 s{sQ2}, s{sQ2}, s{sXB}")
        for i in range(4):
            a(f"buffer_load_dwordx4 v{VX+i}, {srd(SX)}, s{sQ2} offen offset:{1024*i} lds")
    def chunk_w(sc):
        a(f"s_add_u32 m0, s{sM}, 16384")
        a(f"s_mul_i32 s{sQ3}, s{sc}, {64*3840}")
        a(f"s_add_u32 s{sQ3}, s{sQ3}, s{sWB}")
        for hf in range(1):
            if hf:
                a(f"s_add_u32 m0, s{sM}, {16384+4096}")
                a(f"s_add_u32 s{sQ3}, s{sQ3}, {16*3840}")
            for i in (0, 1, 4, 2, 3):
                if i == 2: a(f"s_add_u32 m0, s{sM}, {16384+4096*hf}")
                if i == 4: a(f"s_add_u32 m0, s{sMW}, {1024*hf}")
                a(f"buffer_load_dwordx4 v{VW+i}, {srd(SWQ)}, s{sQ3} offen offset:{1024*(i&3)} lds")
    a(f"s_lshl_b32 s{sT1}, s{sCP}, 2")
    a(f"s_add_u32 s{sT1}, s{sT1}, s{sT0}")
    a(f"s_add_u32 s{sT1}, s{sT1}, 8")
    a(f"s_lshl_b32 s{sT0}, s{sT0}, 1")
    a(f"s_lshl_b32 s{sT4}, s{sCP}, 2")
    a(f"s_add_u32 s{sT0}, s{sT0}, s{sT4}")
    a(f"s_sub_u32 s{sT0}, s{sT0}, 8")
    a(f"s_cmp_ge_u32 s{sIDX}, 16")
    a(f"s_cselect_b32 s{sWB}, s{sT0}, s{sT1}")
    a(f"s_cselect_b32 s{sT4}, 10, 5")
    a(f"s_cselect_b32 s{sT5}, 4, 0x50")
    a(f"s_cselect_b32 s{sT6}, 1, 3")
    a(f"s_cselect_b32 s{sT7}, 2, 1")
    a(f"s_cselect_b32 s{sT0}, 1, 0x50")
    a(f"s_cselect_b32 s{sT1}, 8, 2")
    a(f"s_mulk_i32 s{sWB}, 160")
    a(f"s_mul_i32 s{sT2}, s{sJ}, {16*3840}")
    a(f"s_add_u32 s{sWB}, s{sWB}, s{sT2}")
    a(f"s_lshl_b32 s{sMW}, s{sJ}, 10")
    a(f"s_add_u32 s{sMW}, s{sMW}, 32768")
    a(f"v_lshrrev_b32 v14, 4, v{vL}")
    a(f"v_lshrrev_b32 v15, 1, v{vL}")
    a("v_xor_b32 v15, v15, v14")
    a(f"v_and_b32 v16, 1, v{vL}")
    a("v_mul_u32_u24 v14, 240, v14")
    a(f"v_mad_u32_u24 v14, v16, s{sT7}, v14")
    a("v_and_b32 v17, 1, v15")
    a(f"v_mad_u32_u24 v14, v17, s{sT6}, v14")
    a("v_bfe_u32 v17, v15, 1, 1")
    a(f"v_mad_u32_u24 v14, v17, s{sT5}, v14")
    a("v_bfe_u32 v17, v15, 2, 1")
    a(f"v_mad_u32_u24 v18, v17, s{sT4}, v14")
    a(f"v_lshlrev_b32 v{VW}, 4, v18")
    a(f"v_add_u32 v{VW+1}, {15360-1024}, v{VW}")
    a("v_xor_b32 v17, 1, v17")
    a(f"v_mad_u32_u24 v18, v17, s{sT4}, v14")
    a(f"v_lshlrev_b32 v18, 4, v18")
    a(f"v_add_u32 v{VW+2}, {30720-2048}, v18")
    a(f"v_add_u32 v{VW+3}, {46080-3072}, v18")
    a(f"v_lshrrev_b32 v14, 2, v{vL}")
    a("v_mul_u32_u24 v14, 240, v14")
    a(f"v_mad_u32_u24 v14, v16, s{sT0}, v14")
    a(f"v_lshrrev_b32 v17, 4, v{vL}")
    a(f"v_xor_b32 v17, v17, v{vL}")
    a("v_bfe_u32 v17, v17, 1, 1")
    a(f"v_mad_u32_u24 v14, v17, s{sT4}, v14")
    a(f"v_add_lshl_u32 v{VW+4}, v14, s{sT1}, 4")
    a("s_waitcnt lgkmcnt(0)")
    stamp(11)
    chunk_x(sROT)
    chunk_w(sROT)
    stamp(12)
    def issue(step):
        d = SLOT if step % 3 else (-2 * SLOT & 0xffffffff)
        a(f"s_add_u32 s{sM}, s{sM}, {d}")
        a(f"s_add_u32 s{sMW}, s{sMW}, {d}")
        if step == 8: a(f"s_and_b32 s{sROT}, s{sROT}, 1")
        a(f"s_xor_b32 s{sSTEP}, s{sROT}, {step}")
        if "nodma" in EXP and step >= 2: return
        chunk_x(sSTEP); chunk_w(sSTEP)
    bn = [1]
    def bar(n, nxt=None):
        a(f"s_waitcnt vmcnt({n}) lgkmcnt(0)")
        if "bst" in EXP and "pre" in EXP: stamp(bn[0], True)
        a("s_barrier")
        if "bst" in EXP and "pre" not in EXP: stamp(bn[0], True)
        bn[0] += 1
        if nxt is not None: issue(nxt)
    def g_setup():
        srd_init([SX, SH, SWS, SDBG, SOUT])
        a(f"s_mul_i32 s{sT7}, s{sXCD}, 24")
        a(f"s_add_u32 s{sT7}, s{sT7}, s{sIDX}")
        a(f"s_lshr_b32 s{sQUAD}, s{sT7}, 1")
        a(f"s_add_u32 s{sQUAD}, s{sQUAD}, 64")
        a(f"s_and_b32 s{sT1}, s{sIDX}, 1")
        a(f"s_lshl_b32 s{sT1}, s{sT1}, 1")
        a("s_waitcnt lgkmcnt(0)")
        conv_setup(sJ, sT1)
        s3_setup()
        wo_prep(vL16)
    g_setup()
    fc_addr(46)
    f0_addr(44)
    zero_pads(sJ)
    conv_dfrag()
    issue(1)
    for c in range(0, 8):
        bar(9)
        if c == 0: stamp(1)
        issue(c + 2)
    cnt_load(SDBG, vZ, 47)
    cnt_load(SWS, 46, 48)
    cnt_load(SWS, 44, 45)
    a(f"s_mov_b32 s{sEPS}, 0x358637bd")
    a(f"s_sub_u32 s{sT1}, s{sCH}, s{sLC}")
    h_dma(sJ, sT1)
    bar(14)
    a("s_waitcnt vmcnt(2)")
    if "aspr" not in EXP: a("s_barrier")
    tag_get(vZ, 47, "landed")
    a(f"v_mov_b32 v50, {L_TAG}")
    a(f"v_mov_b32 v51, s{sTAG}")
    a("ds_write_b32 v50, v51")
    poll(46, 48, "landed")
    if "aspr" in EXP: a("s_barrier")
    stamp(2)
    a("s_waitcnt lgkmcnt(0)")
    a(f"v_mov_b32 v48, {L_CNT+8}")
    a(f"v_cmp_ne_u32 vcc, s{sTAG}, v45")
    a("s_cbranch_vccnz Lblate")
    u_dma(sJ, 4)
    for x in wo_list(vL16): a(x)
    x_loads()
    a("s_waitcnt vmcnt(27)")
    lds_arrive(48, 49)
    a("s_barrier")
    a("s_branch Lbu")
    a.label("Lblate")
    for x in wo_list(vL16): a(x)
    x_loads()
    a("s_barrier")
    poll(44, 45)
    u_dma(sJ, 4)
    a("s_waitcnt vmcnt(0)")
    lds_arrive(48, 49)
    a.label("Lbu")
    lds_wait(48, 49, 4)
    stamp(3)
    a("s_branch Lconv")

def ctype():
    a.label("Lctype")
    common_scalars()
    a(f"s_mov_b32 s{sQUAD}, s{sCI}")
    a(f"s_cmp_ge_u32 s{sW}, 6")
    a("s_cbranch_scc1 Lcaux")
    a(f"s_mov_b32 s{sTB}, s{sCI}")
    a(f"s_mov_b32 s{sCHB}, s{sW}")
    s0_loads()
    srd_init([SX, SWQ, SGW, SH, SWS, SDBG, SOUT])
    zero_pads(sW)
    a(f"s_mov_b32 s{sT1}, 0")
    conv_setup(sW, sT1)
    s3_setup()
    wo_prep(vL16)
    conv_dfrag()
    a(f"s_mul_i32 s{sT2}, s{sW}, 4608")
    a(f"s_add_u32 s{sT2}, s{sT2}, {L_S0C}")
    s0_addr(sT2)
    a("s_waitcnt vmcnt(0)")
    s0_compute()
    stamp(1)
    f0_off(sCG)
    arr_prep(50, 51)
    tag_get(vZ, 47, "none")
    arr_issue(50, 51, f"s{sCG}")
    arr_finish(50, 51, f"s{sCG}", 64)
    stamp(2)
    if "nopf" not in EXP:
        a(f"s_cmp_lg_u32 s{sW}, 4")
        a("s_cbranch_scc1 Lcnpf")
        a(f"v_lshlrev_b32 v53, 7, v{vL}")
        a(f"s_mul_i32 s{sT3}, s{sCI}, 7680")
        a(f"s_add_u32 s{sT3}, s{sT3}, {512*3840}")
        a(f"buffer_load_dword v131, v53, {srd(SWQ)}, s{sT3} offen")
        a.label("Lcnpf")
    a("s_branch Lcjoin")

    a.label("Lcaux")
    srd_init([SWO, SWS, SX, SH, SDBG, SOUT])
    a(f"s_sub_u32 s{sUD}, s{sW}, 6")
    a(f"s_lshl_b32 s{sVAR}, s{sCI}, 1")
    a(f"s_add_u32 s{sVAR}, s{sVAR}, s{sUD}")
    for i in range(4): a(f"v_mov_b32 v{52+i}, 0")
    a(f"v_lshlrev_b32 v15, 3, v{vL}")
    a(f"s_lshl_b32 s{sT0}, s{sVAR}, 9")
    a(f"s_add_u32 s{sT0}, s{sT0}, {WS_KV}")
    a("s_waitcnt lgkmcnt(0)")
    a(f"buffer_store_dwordx2 v[52:53], v15, {srd(SWS)}, s{sT0} offen sc1")
    a.label("Lcrp")
    sKQ, sF, sCGR = sCHL, sCH, sJ
    a(f"s_lshr_b32 s{sT0}, s{sVAR}, 2")
    a(f"s_and_b32 s{sCGR}, s{sVAR}, 3")
    a(f"s_mul_i32 s{sKQ}, s{sT0}, 52")
    a(f"s_lshr_b32 s{sKQ}, s{sKQ}, 8")
    a(f"s_mul_i32 s{sT1}, s{sKQ}, 5")
    a(f"s_sub_u32 s{sF}, s{sT0}, s{sT1}")
    a(f"s_mul_i32 s{sT0}, s{sF}, 20")
    a(f"s_cmp_eq_u32 s{sF}, 4")
    a(f"s_cselect_b32 s{sT0}, 16, s{sT0}")
    a(f"s_cselect_b32 s{sT2}, 16, 0")
    a(f"s_mul_i32 s{sT1}, s{sKQ}, 80")
    a(f"s_add_u32 s{sT0}, s{sT0}, s{sT1}")
    a(f"s_mul_i32 s{sT0}, s{sT0}, 1280")
    a(f"s_mul_i32 s{sT1}, s{sCGR}, 320")
    a(f"s_add_u32 s{sT0}, s{sT0}, s{sT1}")
    a(f"s_lshr_b32 s{sT3}, s{sVAR}, 7")
    a(f"s_lshl_b32 s{sT3}, s{sT3}, 1")
    a(f"s_add_u32 s{sT3}, s{sT3}, s{sUD}")
    a(f"s_mul_i32 s{sT3}, s{sT3}, 5120")
    a(f"s_add_u32 s{sT3}, s{sT3}, {L_RPC}")
    a("s_waitcnt lgkmcnt(0)")
    for i in range(5):
        a(f"v_add_u32 v14, {64*i}, v{vL}")
        div20(15, 16, 14)
        a("v_lshrrev_b32 v17, 2, v15")
        a(f"v_mad_u32_u24 v15, v17, s{sT2}, v15")
        a("v_mul_u32_u24 v15, 1280, v15")
        a("v_lshl_add_u32 v15, v16, 4, v15")
        a(f"s_add_u32 m0, s{sT3}, {1024*i}")
        a(f"buffer_load_dwordx4 v15, {srd(SWO)}, s{sT0} offen lds")
    a(f"s_add_u32 s{sVAR}, s{sVAR}, 128")
    a(f"s_cmp_lt_u32 s{sVAR}, 160")
    a("s_cbranch_scc1 Lcrp")
    a(f"s_and_b32 s{sVAR}, s{sVAR}, 127")
    a("s_waitcnt vmcnt(0)")
    a.label("Lcrp2")
    sKQ, sF, sCGR = sCHL, sCH, sJ
    a(f"s_lshr_b32 s{sT0}, s{sVAR}, 2")
    a(f"s_and_b32 s{sCGR}, s{sVAR}, 3")
    a(f"s_mul_i32 s{sKQ}, s{sT0}, 52")
    a(f"s_lshr_b32 s{sKQ}, s{sKQ}, 8")
    a(f"s_mul_i32 s{sT1}, s{sKQ}, 5")
    a(f"s_sub_u32 s{sF}, s{sT0}, s{sT1}")
    a(f"s_lshr_b32 s{sT3}, s{sVAR}, 7")
    a(f"s_lshl_b32 s{sT3}, s{sT3}, 1")
    a(f"s_add_u32 s{sT3}, s{sT3}, s{sUD}")
    a(f"s_mul_i32 s{sT3}, s{sT3}, 5120")
    a(f"s_add_u32 s{sT3}, s{sT3}, {L_RPC}")
    a(f"v_lshrrev_b32 v14, 5, v{vL}")
    a(f"v_bfe_u32 v15, v{vL}, 2, 2")
    a("v_lshl_add_u32 v14, v14, 2, v15")
    a("v_mul_u32_u24 v14, 320, v14")
    a(f"v_bfe_u32 v15, v{vL}, 4, 1")
    a("v_lshl_add_u32 v14, v15, 5, v14")
    a(f"v_and_b32 v15, 3, v{vL}")
    a("v_lshl_add_u32 v14, v15, 3, v14")
    a(f"v_add_u32 v14, s{sT3}, v14")
    a(f"s_mul_i32 s{sT0}, s{sKQ}, 5")
    a(f"s_add_u32 s{sT0}, s{sT0}, s{sF}")
    a(f"s_cmp_ge_u32 s{sKQ}, 3")
    a(f"s_cselect_b32 s{sT1}, 10, 0")
    a(f"s_cmp_ge_u32 s{sKQ}, 6")
    a(f"s_cselect_b32 s{sT1}, -15, s{sT1}")
    a(f"s_cselect_b32 s{sT2}, 25, 50")
    a(f"s_add_u32 s{sT0}, s{sT0}, s{sT1}")
    a(f"s_mul_i32 s{sT1}, s{sCGR}, 200")
    a(f"s_add_u32 s{sT0}, s{sT0}, s{sT1}")
    a(f"s_lshl_b32 s{sT0}, s{sT0}, 10")
    a(f"s_add_u32 s{sT0}, s{sT0}, {WS_WOP}")
    a(f"s_lshl_b32 s{sT2}, s{sT2}, 10")
    a(f"s_lshr_b32 s{sT4}, s{sKQ}, 1")
    a(f"s_mul_i32 s{sT4}, s{sT4}, 25")
    a(f"s_and_b32 s{sT5}, s{sKQ}, 1")
    a(f"s_mul_i32 s{sT5}, s{sT5}, 5")
    a(f"s_add_u32 s{sT4}, s{sT4}, s{sT5}")
    a(f"s_add_u32 s{sT4}, s{sT4}, s{sF}")
    a(f"s_add_u32 s{sT4}, s{sT4}, s{sT1}")
    a(f"s_add_u32 s{sT4}, s{sT4}, 115")
    a(f"s_lshl_b32 s{sT4}, s{sT4}, 10")
    a(f"s_add_u32 s{sT4}, s{sT4}, {WS_WOP}")
    a(f"v_lshlrev_b32 v15, 4, v{vL}")
    for t in range(5):
        for jh in range(2): a(f"ds_read_b64_tr_b16 {vr(32+4*t+2*jh,2)}, v14 offset:{jh*2560+t*64}")
    a("s_waitcnt lgkmcnt(0)")
    for t in range(4):
        a(f"buffer_store_dwordx4 {vr(32+4*t,4)}, v15, {srd(SWS)}, s{sT0} offen sc1")
        a(f"s_add_u32 s{sT0}, s{sT0}, s{sT2}")
    a(f"buffer_store_dwordx4 {vr(48,4)}, v15, {srd(SWS)}, s{sT4} offen sc1")
    a(f"s_add_u32 s{sVAR}, s{sVAR}, 128")
    a(f"s_cmp_lt_u32 s{sVAR}, 160")
    a("s_cbranch_scc1 Lcrp2")
    arr_prep(146, 147)
    a("v_mov_b32 v6, 0")
    a(f"s_lshl_b32 s{sT3}, s{sXCD}, 8")
    a(f"s_add_u32 s{sT3}, s{sT3}, {WS_FC}")
    tag_get(6, 7, "none")
    arr_issue(146, 147, f"s{sT3}")
    arr_finish(146, 147, f"s{sT3}", 16)
    stamp(1)
    a(f"s_lshl_b32 s{sT3}, s{sCI}, 1")
    a(f"s_add_u32 s{sT3}, s{sT3}, s{sUD}")
    a(f"s_mul_i32 s{sT3}, s{sT3}, {3*4096}")
    a(f"s_add_u32 s{sT3}, s{sT3}, {256*4096}")
    a(f"v_lshlrev_b32 v5, 7, v{vL}")
    a(f"buffer_load_dword v131, v5, {srd(SH)}, s{sT3} offen")
    a(f"s_add_u32 s{sT3}, s{sT3}, 4096")
    a(f"buffer_load_dword v130, v5, {srd(SH)}, s{sT3} offen")
    a(f"s_mov_b32 s{sT1}, 0")
    conv_setup(sW, sT1)
    s3_setup()
    wo_prep(vL16)
    conv_dfrag()
    stamp(2)

    a.label("Lcjoin")
    a(f"s_lshl_b32 s{sT1}, s{sCI}, 2")
    h_dma(sW, sT1)
    a(f"s_cmp_ge_u32 s{sW}, 4")
    a("s_cbranch_scc1 Lc7")
    srd_init([SGW])
    a(f"s_lshl_b32 s{sT0}, s{sCI}, 2")
    a(f"s_add_u32 s{sT0}, s{sT0}, s{sW}")
    a(f"v_and_b32 v53, 7, v{vL}")
    a(f"v_lshlrev_b32 v53, 4, v53")
    a(f"v_lshrrev_b32 v55, 3, v{vL}")
    a(f"v_mul_u32_u24 v54, 1280, v55")
    a("v_add_u32 v54, v54, v53")
    a(f"v_lshlrev_b32 v55, 2, v55")
    a(f"s_mul_i32 s{sT2}, s{sT0}, {8*1280}")
    for j in (8, 9, 0, 1, 2, 3, 4, 5, 6, 7): a(f"buffer_load_dwordx4 {vr(160+4*j,4)}, v54, {srd(SX)}, s{sT2} offen offset:{128*j}")
    for j in range(10): a(f"buffer_load_dwordx4 {vr(200+4*j,4)}, v53, {srd(SGW)}, 0 offen offset:{128*j}")
    a(f"s_lshl_b32 s{sT3}, s{sT0}, 5")
    a(f"s_add_u32 s{sT3}, s{sT3}, {WS_G}")
    a("v_mov_b32 v128, 0")
    a("v_mov_b32 v129, 0")
    a("s_waitcnt vmcnt(0)")
    for j in range(20):
        a(f"v_dot2c_f32_bf16 v128, v{160+2*j}, v{200+2*j}")
        a(f"v_dot2c_f32_bf16 v129, v{161+2*j}, v{201+2*j}")
    a("v_add_f32 v128, v128, v129")
    for ctl in ("quad_perm:[1,0,3,2]", "quad_perm:[2,3,0,1]", "row_half_mirror"):
        a(f"v_add_f32_dpp v128, v128, v128 {ctl} row_mask:0xf bank_mask:0xf")
    a(f"v_mul_f32 v128, 0xbfb8aa3b, v128")
    a(f"v_exp_f32 v128, v128")
    a(f"v_add_f32 v128, 1.0, v128")
    a(f"v_rcp_f32 v128, v128")
    a("s_mov_b32 exec_lo, 0x01010101")
    a("s_mov_b32 exec_hi, 0x01010101")
    a(f"buffer_store_dword v128, v55, {srd(SWS)}, s{sT3} offen sc1")
    a("s_mov_b64 exec, -1")
    a(f"s_and_b32 s{sT0}, s{sCI}, 7")
    a(f"s_lshl_b32 s{sT0}, s{sT0}, 8")
    a(f"s_add_u32 s{sT0}, s{sT0}, {WS_FK}")
    arr_prep(50, 51)
    a("s_waitcnt vmcnt(0)")
    arr_issue(50, 51, f"s{sT0}")
    arr_finish(50, 51, f"s{sT0}", 128, 0)
    a.label("Lc7")
    a(f"s_cmp_lg_u32 s{sW}, 7")
    a("s_cbranch_scc1 Lc8")
    fc_addr(46)
    f0_addr(44)
    poll(46, 47)
    poll(44, 45)
    a.label("Lc8")
    stamp(11)
    a("s_barrier")
    stamp(12)
    u_dma(sW, 2)
    a("s_waitcnt vmcnt(0) lgkmcnt(0)")
    a("s_barrier")
    stamp(3)
    a("s_setprio 2")
    a(f"s_cmp_lt_u32 s{sW}, 4")
    a("s_cbranch_scc1 Lconv2")
    a("s_setprio 0")
    for x in wo_list(vL16): a(x)
    x_loads()

def conv_body(tiles):
    seq = []
    for b in range(4):
        if tiles[0] == 0:
            for aa in range(8):
                for ti in (3, 2):
                    d = tiles[ti] - aa
                    if d >= 0:
                        seq.append((ti, ("H", 4 * aa + b, 0), ("U", 4 * d - b)))
                        if b == 0 and aa == 0: seq.append((ti, ("D",), ("U", 4 * d)))
                if aa == 5:
                    seq.append((1, ("H", b, 1), ("U", 4 - b)))
                    if b == 0: seq.append((1, ("D",), ("U", 4)))
                if aa == 6:
                    seq.append((0, ("H", b, 1), ("U", -b)))
                    if b == 0: seq.append((0, ("D",), ("U", 0)))
                    seq.append((1, ("H", 4 + b, 1), ("U", -b)))
        else:
            for aa in range(6):
                for ti in (3, 2, 1, 0):
                    d = tiles[ti] - aa
                    if d >= 0:
                        seq.append((ti, ("H", 4 * aa + b, 0), ("U", 4 * d - b)))
                        if b == 0 and aa == 0: seq.append((ti, ("D",), ("U", 4 * d)))
    assert len(seq) == 76
    last = {}; order = []
    for i, (ti, h, u) in enumerate(seq):
        for k in (u, h):
            if k[0] == "D": continue
            if k not in last: order.append(k)
            last[k] = i
    free = list(range(NPOOL))
    where = {}; done_at = {}
    nds = [0]; li = [0]
    def issue(maxn):
        n = 0
        while li[0] < len(order) and free and n < maxn:
            k = order[li[0]]; li[0] += 1
            bfr = free.pop(0); where[k] = bfr
            r = CPOOL + 4 * bfr
            if k[0] == "U":
                a(f"ds_read_b128 {vr(r,4)}, v{vUo if k[1]&1 else vUe} offset:{(k[1]+3)*512}")
                nds[0] += 1; n += 1
            else:
                a(f"ds_read_b64_tr_b16 {vr(r,2)}, v{vH} offset:{128*k[1]+32}")
                a(f"ds_read_b64_tr_b16 {vr(r+2,2)}, v{vH} offset:{128*k[1]}")
                nds[0] += 2; n += 2
            done_at[k] = nds[0]
    issue(10)
    started = set(); known = 0
    wl = wo_list(vL16); wi = 25 if "delayconv" in EXP else 0
    for i, (ti, h, u) in enumerate(seq):
        needn = max(done_at[k] for k in (u, h) if k[0] != "D")
        if needn > known:
            cnt = min(nds[0] - needn, 15)
            a(f"s_waitcnt lgkmcnt({cnt})")
            known = nds[0] - cnt
        d = vr(CACC + 16 * ti, 16)
        hb = CD if h[0] == "D" else CPOOL + 4 * where[h]
        a(f"v_mfma_f32_32x32x16_bf16 {d}, {vr(CPOOL+4*where[u],4)}, {vr(hb,4)}, {d if ti in started else '0'}")
        started.add(ti)
        for k in (u, h):
            if k[0] != "D" and last[k] == i: free.append(where[k])
        issue(2)

def conv_epi(var):
    runs = [[*range(0, 8)], [*range(8, 16)]] if var == 0 else [[*range(16)]]
    out_g = 7 if var == 0 else 15
    in_g = 8 if var == 0 else 0
    SPL = 96
    a(f"buffer_load_dword v{vFT}, v{vFQ}, {srd(SWS)}, 0 offen sc1")
    a("s_nop 7")
    a("s_nop 3")
    for step in (2, 1, 0):
        a("s_mov_b32 exec_lo, 0")
        a("s_mov_b32 exec_hi, 0x80000000")
        a(f"v_mov_b32 v{SPL+step}, v{CACC+4*out_g+step+1}")
        for run in runs:
            for g in reversed(run):
                src = f"v{CACC+4*(g-1)+step+1}" if g != run[0] else "0"
                a(f"v_mov_b32 v{CACC+4*g+step+1}, {src}")
        if step == 0:
            a(f"ds_write_b96 v{vCS}, {vr(SPL,3)}")
            a("v_mov_b32 v100, 1")
            a(f"ds_add_u32 v{vCN}, v100")
        a("s_mov_b64 exec, -1")
        for g in reversed(range(16)):
            r = CACC + 4 * g + step
            a(f"v_add_f32_dpp v{r}, v{r+1}, v{r} wave_ror:1 row_mask:0xf bank_mask:0xf")
    a(f"v_xor_b32 v101, 16, v{vCS}")
    a(f"v_lshl_add_u32 v101, v{vL}, 2, v101")
    PK = 104
    other = [k for k in range(8) if k != in_g // 2]
    for k in other: a(f"v_cvt_pk_bf16_f32 v{PK+k}, v{CACC+8*k}, v{CACC+8*k+4}")
    oh = 1 - in_g // 8
    a(f"ds_write_b128 v{vCW}, {vr(PK+4*oh,4)} offset:{1024*oh}")
    lds_wait(vCN, 100, 2)
    a("s_mov_b64 exec, 7")
    a("ds_read_b32 v100, v101")
    a("s_waitcnt lgkmcnt(0)")
    a(f"v_add_f32 v{CACC+4*in_g}, v{CACC+4*in_g}, v100")
    a("s_mov_b64 exec, -1")
    k = in_g // 2
    a(f"v_cvt_pk_bf16_f32 v{PK+k}, v{CACC+8*k}, v{CACC+8*k+4}")
    a(f"ds_write_b128 v{vCW}, {vr(PK+4*(1-oh),4)} offset:{1024*(1-oh)}")
    T0, T1 = (0, 6) if var == 0 else (2, 4)
    a(f"s_lshl_b32 s{sT5}, s{sCH}, 6")
    a(f"s_add_u32 s{sT4}, s{sT5}, {WS_Y + T0*8*40960}")
    a(f"s_add_u32 s{sT5}, s{sT5}, {WS_Y + T1*8*40960}")
    a(f"s_lshr_b32 s{sT6}, s{sCH}, 5")
    a(f"s_lshl_b32 s{sT6}, s{sT6}, 8")
    a(f"s_add_u32 s{sT6}, s{sT6}, {WS_FY + var*20*256}")

def conv():
    a.label("Lconv")
    a("s_setprio 1")
    a.label("Lconv2")
    a(f"s_cmp_eq_u32 s{sVAR}, 1")
    a("s_cbranch_scc1 Lconvy")
    conv_body([0, 1, 6, 7])
    stamp(4)
    conv_epi(0)
    a("s_branch Lconve")
    a.label("Lconvy")
    conv_body([2, 3, 4, 5])
    stamp(4)
    conv_epi(1)
    a.label("Lconve")
    for n in range(2):
        a(f"ds_read_b64_tr_b16 {vr(136+4*n,2)}, v{vCT} offset:{1024*n}")
        a(f"ds_read_b64_tr_b16 {vr(138+4*n,2)}, v{vCT} offset:{1024*n+64}")
    arr_prep(152, 153)
    for n in range(2):
        a(f"s_waitcnt lgkmcnt({2-2*n})")
        a(f"buffer_store_dwordx4 {vr(136+4*n,4)}, v{vCY}, {srd(SWS)}, s{sT5 if n else sT4} offen sc1")
    stamp(13)
    a(f"s_cmp_ge_u32 s{sW}, 4")
    a("s_cbranch_scc1 Ls3b")
    a("s_waitcnt vmcnt(0)")
    arr_issue(152, 153, f"s{sT6}")
    arr_finish(152, 153, f"s{sT6}", 32, 0)
    a("s_setprio 0")

def s3():
    a.label("Ls3")
    a.c("S3")
    PQ, RAW, KF = 32, 52, 116
    plan = []
    for i in range(4):
        for st in range(2):
            for jh in range(2):
                du0 = 4 * (i + st) + 2 * jh - 5 * i
                plan.append((i, st, jh, du0, 0 <= du0 <= 4, 0 <= du0 + 1 <= 4))
    sPD = sT2
    def fl(): a(f"buffer_load_dword v{vFT}, v{vFQ}, {srd(SWS)}, 0 offen sc1")
    def pql():
        for f in range(4): a(f"buffer_load_dwordx4 {vr(PQ+4*f,4)}, v{vL16}, {srd(SWS)}, s{sPQO} offen offset:{1024*f} sc1")
        a(f"buffer_load_dwordx4 {vr(PQ+16,4)}, v{vL16}, {srd(SWS)}, s{sT1} offen sc1")
    def pre():
        for (i, st, jh, du0, v0ok, v1ok) in plan:
            if v0ok != v1ok:
                for j in range(4): a(f"v_mov_b32 v{RAW+16*i+8*st+4*jh+j}, 0")
        a(f"s_add_u32 s{sT1}, s{sPQO}, 4096")
        a(f"s_add_u32 s{sT3}, s{sKVO}, {2*KVH}")
        a(f"s_mov_b32 s{sPD}, 0")
        a(f"s_mov_b32 s{sCNT}, 0x40000")
    wl = wo_list(vL16)
    for x in wl: a(x)
    a.label("Ls3x")
    x_loads()
    a("s_setprio 1")
    pre()
    a(f"s_mov_b32 s{sUD}, 0")
    a("s_branch Ls3lp")
    a.label("Ls3b")
    pre()
    a(f"s_mov_b32 s{sUD}, 2")
    a("s_waitcnt vmcnt(2)")
    a("s_branch Ls3ev")
    a.label("Ls3sl")
    a("s_sleep 2")
    a.label("Ls3lp")
    fl()
    a("s_waitcnt vmcnt(0)")
    a(f"s_cmp_eq_u32 s{sUD}, 0")
    a("s_cbranch_scc1 Ls3ev")
    a(f"s_sub_u32 s{sUD}, s{sUD}, 1")
    a(f"s_cmp_eq_u32 s{sUD}, 0")
    a("s_cbranch_scc1 Ls3af")
    arr_issue(152, 153, f"s{sT6}")
    a("s_branch Ls3ev")
    a.label("Ls3af")
    arr_finish(152, 153, f"s{sT6}", 32)
    a.label("Ls3ev")
    a(f"v_cmp_ne_u32 vcc, s{sTAG}, v{vFT}")
    a(f"s_sub_u32 s{sCNT}, s{sCNT}, 1")
    a("s_cbranch_scc1 Ls3go")
    a("s_cbranch_vccnz Ls3sl")
    a.label("Ls3go")
    stamp(6)
    pql()
    nload = [0] * 4
    for (i, st, jh, du0, v0ok, v1ok) in plan:
        if not (v0ok or v1ok): continue
        off = (i & 1) * KVH + du0 * 336
        part = v0ok != v1ok
        if part: a(f"s_mov_b32 exec_{'hi' if v0ok else 'lo'}, 0")
        a(f"buffer_load_dwordx4 {vr(RAW+16*i+8*st+4*jh,4)}, v{vKO if i&1 else vKE}, {srd(SWS)}, s{sT3 if i>>1 else sKVO} offen offset:{off} sc1")
        if part: a("s_mov_b64 exec, -1")
        nload[i] += 1
    a(f"s_cmp_lg_u32 s{sUD}, 2")
    a("s_cbranch_scc1 Ls3n2")
    a("s_waitcnt vmcnt(17)")
    arr_issue(152, 153, f"s{sT6}")
    a("s_branch Ls3n3")
    a.label("Ls3n2")
    a(f"buffer_load_dword v{vFT}, v{vFY}, {srd(SWS)}, 0 offen sc1")
    a.label("Ls3n3")
    a(f"buffer_load_dword v{vFT}, v{vFY}, {srd(SWS)}, 0 offen sc1")
    rem = sum(nload) + 2
    for i in range(4):
        rem -= nload[i]
        a(f"s_waitcnt vmcnt({rem})")
        kf = KF + 8 * (i & 1)
        for (i2, st, jh, du0, v0ok, v1ok) in plan:
            if i2 != i: continue
            for j in range(2):
                d = kf + 4 * st + 2 * jh + j; s = RAW + 16 * i + 8 * st + 4 * jh + 2 * j
                if v0ok or v1ok: a(f"v_cvt_pk_bf16_f32 v{d}, v{s}, v{s+1}")
                else: a(f"v_mov_b32 v{d}, 0")
        d = vr(RAW + 16 * i, 16)
        a(f"v_mfma_f32_32x32x16_bf16 {d}, {vr(kf,4)}, {vr(PQ+4*i,4)}, 0")
        a(f"v_mfma_f32_32x32x16_bf16 {d}, {vr(kf+4,4)}, {vr(PQ+4*i+4,4)}, {d}")
    OF = 132
    for i in range(4):
        D = RAW + 16 * i
        a(f"v_add_f32 v{D+12}, s{sEPS}, v{D+12}")
        a(f"v_rcp_f32 v{D+12}, v{D+12}")
        for j in range(8): a(f"v_mul_f32 v{D+j}, v{D+j}, v{D+12}")
        for j in range(4): a(f"v_cvt_pk_bf16_f32 v{OF+4*i+j}, v{D+2*j}, v{D+2*j+1}")
        a(f"ds_write_b128 v{vOW}, {vr(OF+4*i,4)} offset:{1024*i}")
        if i & 1 == 0:
            for j in range(4): a(f"v_mul_f32 v{D+8+j}, v{D+8+j}, v{D+12}")
        else:
            for j in range(4): a(f"v_fmac_f32 v{D-8+j}, v{D+8+j}, v{D+12}")
            for j in range(2): a(f"v_cvt_pk_bf16_f32 v{OF+16+2*(i>>1)+j}, v{D-8+2*j}, v{D-8+2*j+1}")
    a(f"ds_write_b128 v{vOW}, {vr(OF+16,4)} offset:4096")
    a(f"s_cmp_eq_u32 s{sUD}, 0")
    a("s_cbranch_scc1 Ls3n4")
    arr_finish(152, 153, f"s{sT6}", 32, 1)
    a.label("Ls3n4")
    a(f"s_mov_b32 s{sUD}, 1")
    a(f"s_cmp_ge_u32 s{sW}, 5")
    a("s_cbranch_scc1 Ls3y1")
    a("s_waitcnt vmcnt(0)")
    a(f"v_cmp_ne_u32 vcc, s{sTAG}, v{vFT}")
    a(f"s_mov_b32 m0, s{sYM}")
    a("s_cbranch_vccnz Ls3y0")
    a(f"buffer_load_dwordx4 v{vL16}, {srd(SWS)}, s{sYO} offen sc1 lds")
    a(f"buffer_load_dwordx4 v{vL16}, {srd(SWS)}, s{sYO} offen offset:1024 sc1 lds")
    a("s_branch Ls3y1")
    a.label("Ls3y0")
    a(f"s_mov_b32 s{sUD}, 0")
    a(f"buffer_load_dword v{vFT}, v{vFY}, {srd(SWS)}, 0 offen sc1")
    a.label("Ls3y1")
    if "nog3prio" not in EXP:
        a(f"s_cmp_ge_u32 s{sW}, 4")
        a("s_cbranch_scc1 Ls3y2")
        a("s_setprio 2")
        a.label("Ls3y2")
    a("s_waitcnt lgkmcnt(0)")
    a("s_barrier")
    stamp(7)
    a(f"buffer_load_dword v{vG}, v{vGO}, {srd(SWS)}, 0 offen sc1")
    NB = 8; POOL = 32; AP, AR = 64, 80
    def ord_(i): return (vPR, 1024 * i) if i < 15 else (vRR, 1024 * (i - 15))
    for i in range(NB):
        v, o = ord_(i); a(f"ds_read_b128 {vr(POOL+4*i,4)}, v{v} offset:{o}")
    XF = 96
    pre = [f"s_mov_b32 s{sT0}, 0xffff0000"]
    for n, xd in enumerate((vXD, vXD2)):
        for j in range(4):
            pre.append(f"v_lshlrev_b32 v{XF+8*n+2*j}, 16, v{xd+j}")
            pre.append(f"v_and_b32 v{XF+8*n+2*j+1}, s{sT0}, v{xd+j}")
    issued = NB
    log = list(range(NB))
    for i in range(25):
        pos = log.index(i)
        a(f"s_waitcnt lgkmcnt({min(len(log)-1-pos,15)})")
        d = vr(AP if i < 15 else AR, 16)
        a(f"v_mfma_f32_32x32x16_bf16 {d}, {vr(VWO+4*i,4)}, {vr(POOL+4*(i%NB),4)}, {'0' if i in (0,15) else d}")
        if issued < 25:
            v, o = ord_(issued); a(f"ds_read_b128 {vr(POOL+4*(issued%NB),4)}, v{v} offset:{o}"); log.append(issued); issued += 1
        if i < 12:
            for x in pre[3 * i:3 * i + 3]: a(x)
        if i == 14:
            a(f"s_cmp_eq_u32 s{sUD}, 1")
            a("s_cbranch_scc1 Ls3ny")
            poll(vFY, vFT, "issued")
            a(f"buffer_load_dwordx4 v{vL16}, {srd(SWS)}, s{sYO} offen sc1 lds")
            a(f"buffer_load_dwordx4 v{vL16}, {srd(SWS)}, s{sYO} offen offset:1024 sc1 lds")
            a.label("Ls3ny")
        if 19 <= i < 23:
            q = i - 19
            a(f"ds_write_b128 v{vPW+q}, {vr(AP+4*q,4)}"); log.append(-1)
            a(f"v_add_u32 v{vPW+q}, s{sRD}, v{vPW+q}")
    for q in range(4): a(f"ds_write_b128 v{vPW+q}, {vr(AR+4*q,4)}")
    a("s_waitcnt vmcnt(0) lgkmcnt(0)")
    a("s_barrier")
    stamp(8)
    def f_reads(n, R):
        np_ = 3 + n
        for p in range(np_):
            a(f"ds_read_b128 {vr(R+8*p,4)}, v{vPA} offset:{49152*n+4096*p}")
            a(f"ds_read_b128 {vr(R+8*p+4,4)}, v{vPB} offset:{49152*n+4096*p}")
        a(f"ds_read_b64_tr_b16 {vr(R+32,2)}, v{vYT} offset:{8192*n}")
        a(f"ds_read_b64_tr_b16 {vr(R+34,2)}, v{vYT} offset:{8192*n+256}")
    def f_math(n, R, after):
        np_ = 3 + n
        X = XF + 8 * n; YF = R + 36
        a(f"s_waitcnt lgkmcnt({min(after+2*np_+2-4,15)})")
        for j in range(4): a(f"v_pk_add_f32 {vr(R+2*j,2)}, {vr(R+2*j,2)}, {vr(R+8+2*j,2)}")
        a(f"s_waitcnt lgkmcnt({after+2})")
        for p in range(2, np_):
            for j in range(4): a(f"v_pk_add_f32 {vr(R+2*j,2)}, {vr(R+2*j,2)}, {vr(R+8*p+2*j,2)}")
        a(f"s_waitcnt lgkmcnt({after})")
        for j in range(4):
            a(f"v_lshlrev_b32 v{YF+2*j}, 16, v{R+32+j}")
            a(f"v_and_b32 v{YF+2*j+1}, s{sT0}, v{R+32+j}")
        for j in range(4): a(f"v_pk_mul_f32 {vr(X+2*j,2)}, {vr(X+2*j,2)}, {vr(YF+2*j,2)}")
        for j in range(4): a(f"v_pk_add_f32 {vr(R+2*j,2)}, {vr(R+2*j,2)}, {vr(X+2*j,2)} neg_lo:[0,1] neg_hi:[0,1]")
        for j in range(4): a(f"v_pk_fma_f32 {vr(R+2*j,2)}, {vr(R+2*j,2)}, {vr(vG,2)}, {vr(X+2*j,2)} op_sel_hi:[1,0,1]")
        for j in range(4): a(f"v_cvt_pk_bf16_f32 v{R+32+j}, v{R+2*j}, v{R+2*j+1}")
        a(f"buffer_store_dwordx4 {vr(R+32,4)}, v{vOUT}, {srd(SOUT)}, s{sXOFF} offen offset:{256*n}" + (" sc1" if "osc1" in EXP else " nt" if "ont" in EXP else " sc0 sc1" if "osys" in EXP else ""))
    f_reads(0, 32)
    a(f"s_cmp_lt_u32 s{sW}, 2")
    a("s_cbranch_scc1 Lfin2")
    f_math(0, 32, 0)
    a("s_branch Lfin")
    a.label("Lfin2")
    f_reads(1, 112)
    f_math(0, 32, 10)
    f_math(1, 112, 0)
    a.label("Lfin")
    if DIAG:
        a("s_waitcnt vmcnt(0)")
        stamp(9)
        a(f"s_memtime vcc")
        a("s_waitcnt lgkmcnt(0)")
        a(f"s_mov_b32 s{STS+15}, vcc_lo")
        a("v_mov_b32 v2, 0")
        for i in range(16): a(f"v_writelane_b32 v2, s{STS+i}, {i}")
        a(f"v_lshlrev_b32 v3, 2, v{vL}")
        a(f"s_lshl_b32 s{sT0}, s{sBID}, 3")
        a(f"s_add_u32 s{sT0}, s{sT0}, s{sW}")
        a(f"s_lshl_b32 s{sT0}, s{sT0}, 6")
        a(f"s_add_u32 s{sT0}, s{sT0}, {WS_TS}")
        a("s_mov_b64 exec, 0xffff")
        a(f"buffer_store_dword v2, v3, {srd(SWS)}, s{sT0} offen")
        sp = [e for e in EXP if e.startswith("spin")]
        if sp:
            si, wv, lo, hi = [int(x) for x in sp[0][4:].split("_")]
            a(f"s_cmp_lg_u32 s{sW}, {wv}")
            a("s_cbranch_scc1 Lend")
            a(f"s_cmp_lt_u32 s{sIDX}, {lo}")
            a("s_cbranch_scc1 Lend")
            a(f"s_cmp_ge_u32 s{sIDX}, {hi}")
            a("s_cbranch_scc1 Lend")
            if si < 16:
                if "neg" in EXP: a(f"s_sub_u32 s{sT0}, s{sTAG}, s{STS+si}")
                else: a(f"s_sub_u32 s{sT0}, s{STS+si}, s{sTAG}")
                a(f"s_add_u32 s{sT0}, s{sT0}, 5000")
                a(f"s_and_b32 s{sT0}, s{sT0}, 0x7ffffff")
                a(f"s_min_u32 s{sT0}, s{sT0}, 20000")
            else: a(f"s_mov_b32 s{sT0}, 5000")
            a.label("Lspin")
            a("s_memrealtime vcc")
            a("s_waitcnt lgkmcnt(0)")
            a(f"s_sub_u32 s{sT1}, vcc_lo, s{sTAG}")
            a(f"s_and_b32 s{sT1}, s{sT1}, 0x7ffffff")
            a(f"s_cmp_lt_u32 s{sT1}, s{sT0}")
            a("s_cbranch_scc1 Lspin")
        if "dbgts" in EXP:
            a(f"s_cmp_lg_u32 s{sW}, {int([e for e in EXP if e.startswith('wv')][0][2:])}")
            a("s_cbranch_scc1 Lend")
            a(f"s_cmp_ge_u32 s{sIDX}, 16")
            a("s_cbranch_scc1 Lend")
            a("v_cmp_ne_u32 vcc, 0, v2")
            a(f"v_subrev_u32 v2, s{sTAG}, v2")
            a("v_add_u32 v2, 100, v2")
            a("v_and_b32 v2, 0x7ffffff, v2")
            a("v_cndmask_b32 v2, 0, v2, vcc")
            a("s_mov_b64 exec, 0x3fff")
            a(f"buffer_atomic_umax v2, v3, {srd(SDBG)}, 0 offen offset:4 sc1")
    a.label("Lend")
    a("s_endpgm")

entry(); bwave(); awave(); kva(); qa(); ctype(); conv(); s3()

ref = open("cdna_kernels/%s.s.ref" % NAME).read()
head = [l for l in ref.split("\n") if l.startswith(";") and "@launch" not in l]
out = "\n".join(head) + "\n"
out += "; @launch grid=(256,1,1) block=(512,1,1) lds=%d\n" % LDS_BYTES
out += '.amdgcn_target "amdgcn-amd-amdhsa--gfx950"\n.text\n.globl %s_kernel\n.p2align 8\n.type %s_kernel,@function\n%s_kernel:\n' % (NAME, NAME, NAME)
import re
body = a.text()
ntset = []
if "nont" not in EXP: ntset += [SK, SV, SH, SWO, SSK, SGW]
if "ntx" in EXP: ntset += [SX, SWQ]
for s_ in ntset:
    body = re.sub(r"(buffer_load_dword\S* [^\n]*%s, [^\n]*?offen(?: offset:\d+)?)( lds)?\n" % re.escape(srd(s_)), lambda m: m.group(1) + " nt" + (m.group(2) or "") + "\n", body)
out += body
out += '''.section .rodata,"a"
.p2align 6
.amdhsa_kernel %s_kernel
  .amdhsa_next_free_vgpr 256
  .amdhsa_next_free_sgpr 102
  .amdhsa_accum_offset 256
  .amdhsa_group_segment_fixed_size 0
  .amdhsa_kernarg_size 104
  .amdhsa_user_sgpr_count 2
  .amdhsa_user_sgpr_kernarg_segment_ptr 1
  .amdhsa_system_sgpr_workgroup_id_x 1
.end_amdhsa_kernel
''' % NAME
dst = [x for x in sys.argv[1:] if not x.startswith("--")]
open(dst[0] if dst else "cdna_kernels/%s.s" % NAME, "w").write(out)
```

```python
import sys
from asmlib import Asm, vr, sr

NAME = "gated_mix__linear_attn_block__ssm_conv_h3__prompt"
DIAG = "--diag" in sys.argv
EXP = [x[6:] for x in sys.argv if x.startswith("--exp=")]

WS_U = 0
WS_PQ = 0x280000
WS_Y = 0x500000
WS_WOP = 0x780000
WS_KV = 0x850000
WS_C = 0x860000
CDELTA = 0x20000
WS_FK = WS_C
WS_FY = WS_C + 32 * 256
WS_F0 = WS_C + 72 * 256
WS_FC = WS_C + 88 * 256
WS_FG = WS_C + 128 * 256
WS_FQ = WS_C + 256 * 256
WS_G = 0x88C000
WS_TS = 0x890000
WS_SIZE = 0x900000
KVH = 1792

SLOT = 36864
L_OFR = 36864
L_KVS = 77824
L_YST = 92160
L_PART = 77824
L_UB = 110592
L_UD = L_UB + 2048
L_HB = 129024
HSTR = 4224
L_SP = 145920
L_CNT = 146048
L_TAG = 146112
L_YT = 146176
L_S0C = 0
L_RPC = 49152
LDS_BYTES = L_YT + 10240

SX, SWQ, SWO, SK, SV, SSK, SH, SGW, SOUT, SDBG, SWS = [4 + 4 * i for i in range(11)]
SD = 48
sW, sXCD, sIDX, sRP, sCP, sTAG, sCNT = range(50, 57)
sRB, sCG, sQUAD, sCHL, sLC, sVAR, sCH, sJ, sUD = range(57, 66)
sT0, sT1, sT2, sT3, sT4, sT5, sT6, sT7 = range(66, 74)
sLOG = 74
sCI = 76
sDV = 77
STS = 80
sXOFF, sPQO, sKVO, sTB, sYO, sYM = 96, 97, 98, 99, 100, 101
sCHB = 65
sRD = 3
sWOO = 2
sEPS = 79
sBID = 78
def srd(b): return sr(b, 4)

vL = 0
VWO = 156
vL16, vOW, vPR, vRR, vPW = 1, 2, 3, 4, 5
vKE, vKO, vFK, vFY, vZ, vOUT, vPA, vPB, vYT, vFT, vGO = 9, 10, 11, 12, 13, 14, 15, 16, 17, 18, 19
vXD, vG, vXD2 = 20, 24, 28
vFQ, vFE = 27, 25

a = Asm()
BST = [None]
def stamp(i, force=False):
    if "bst" in EXP and not force and i not in (0, 10): return
    if DIAG:
        a(f"{'s_memtime' if 'cyc' in EXP else 's_memrealtime'} vcc")
        a("s_waitcnt lgkmcnt(0)")
        a(f"s_mov_b32 s{STS+i}, vcc_lo")

def poll(vaddr, vdst, state="none", sleep=2):
    L = a.newlabel("Lpoll"); D = a.newlabel("Lpd")
    if state != "none":
        if state == "issued": a("s_waitcnt vmcnt(0)")
        a(f"v_cmp_ne_u32 vcc, s{sTAG}, v{vdst}")
        a(f"s_cbranch_vccz {D}")
    a(f"s_mov_b32 s{sCNT}, 0x20000")
    a.label(L)
    a(f"buffer_load_dword v{vdst}, v{vaddr}, {srd(SWS)}, 0 offen sc1")
    a("s_waitcnt vmcnt(0)")
    a(f"v_cmp_ne_u32 vcc, s{sTAG}, v{vdst}")
    a(f"s_cbranch_vccz {D}")
    if sleep: a(f"s_sleep {sleep}")
    a(f"s_sub_u32 s{sCNT}, s{sCNT}, 1")
    a(f"s_cbranch_scc0 {L}")
    a.label(D)

def cnt_load(S, vaddr, vdst):
    a(f"buffer_load_dword v{vdst}, v{vaddr}, {srd(S)}, 0 offen sc1")

def tag_get(vz, vdst, state="issued"):
    L = a.newlabel("Ltag"); D = a.newlabel("Ltd")
    if state != "none":
        if state == "issued": a("s_waitcnt vmcnt(0)")
        a(f"v_readfirstlane_b32 s{sTAG}, v{vdst}")
        a(f"s_cmp_lg_u32 s{sTAG}, 0")
        a(f"s_cbranch_scc1 {D}")
    a(f"s_mov_b32 s{sCNT}, 0x20000")
    a.label(L)
    a(f"buffer_load_dword v{vdst}, v{vz}, {srd(SDBG)}, 0 offen sc1")
    a("s_waitcnt vmcnt(0)")
    a(f"v_readfirstlane_b32 s{sTAG}, v{vdst}")
    a(f"s_cmp_lg_u32 s{sTAG}, 0")
    a(f"s_cbranch_scc1 {D}")
    a("s_sleep 2")
    a(f"s_sub_u32 s{sCNT}, s{sCNT}, 1")
    a(f"s_cbranch_scc0 {L}")
    a.label(D)

def tag_lds(vtmp):
    a(f"v_mov_b32 v{vtmp}, {L_TAG}")
    a(f"ds_read_b32 v{vtmp}, v{vtmp}")
    a("s_waitcnt lgkmcnt(0)")
    a(f"v_readfirstlane_b32 s{sTAG}, v{vtmp}")

def arr_prep(vt0, vt1):
    a(f"v_mov_b32 v{vt0}, {CDELTA}")
    a(f"v_mov_b32 v{vt1}, 1")
def arr_issue(vt0, vt1, soff):
    a("s_mov_b64 exec, 1")
    a(f"buffer_atomic_add v{vt1}, v{vt0}, {srd(SWS)}, {soff} offen sc0 sc1")
    a("s_mov_b64 exec, -1")
def arr_finish(vt0, vt1, soff, n, wait=0):
    D = a.newlabel("Lal")
    a(f"s_waitcnt vmcnt({wait})")
    a(f"v_readfirstlane_b32 s{sT7}, v{vt1}")
    a(f"s_cmp_lg_u32 s{sT7}, {n-1}")
    a(f"s_cbranch_scc1 {D}")
    flag_store(vt0, vt1, soff)
    a.label(D)
def flag_store(vt0, vt1, soff):
    a(f"v_mov_b32 v{vt0}, 0")
    a(f"v_mov_b32 v{vt1}, s{sTAG}")
    a("s_mov_b64 exec, 1")
    a(f"buffer_store_dword v{vt1}, v{vt0}, {srd(SWS)}, {soff} offen sc1")
    a("s_mov_b64 exec, -1")

def lds_arrive(vaddr, vtmp):
    a(f"v_mov_b32 v{vtmp}, 1")
    a("s_mov_b64 exec, 1")
    a(f"ds_add_u32 v{vaddr}, v{vtmp}")
    a("s_mov_b64 exec, -1")
def lds_wait(vaddr, vtmp, target):
    L = a.newlabel("Lls"); D = a.newlabel("Lld")
    a(f"s_mov_b32 s{sCNT}, 0x400000")
    a.label(L)
    a(f"ds_read_b32 v{vtmp}, v{vaddr}")
    a("s_waitcnt lgkmcnt(0)")
    a(f"v_readfirstlane_b32 s{sT7}, v{vtmp}")
    a(f"s_cmp_ge_u32 s{sT7}, {target}")
    a(f"s_cbranch_scc1 {D}")
    a(f"s_sub_u32 s{sCNT}, s{sCNT}, 1")
    a(f"s_cbranch_scc0 {L}")
    a.label(D)

def div20(vq, vr_, vp):
    a(f"v_mul_u32_u24 v{vq}, 3277, v{vp}")
    a(f"v_lshrrev_b32 v{vq}, 16, v{vq}")
    a(f"v_mul_u32_u24 v{vr_}, 20, v{vq}")
    a(f"v_sub_u32 v{vr_}, v{vp}, v{vr_}")
for p in range(1000): assert (p * 3277) >> 16 == p // 20

SIZES = {SX: 2621440, SWQ: 2457600, SWO: 819200, SK: 2621440, SV: 2621440, SSK: 5120, SH: 2621440, SGW: 1280, SOUT: 2621440, SDBG: 256, SWS: WS_SIZE}
def srd_init(lst):
    for s in lst:
        a(f"s_mov_b32 s{s+2}, {SIZES[s]}")
        a(f"s_mov_b32 s{s+3}, 0x20000")
def ka_rest():
    if "ka1" not in EXP: return
    for s, off in ((SK, 32), (SV, 40), (SSK, 48), (SWS, 96), (SDBG, 88), (SH, 56), (SWO, 16), (SGW, 72), (SOUT, 80), (SD, 64)):
        a(f"s_load_dwordx2 {sr(s,2)}, s[0:1], {off}")
def common_scalars():
    a(f"s_mov_b32 s{sLOG}, 0x3fb8aa3b")
    a(f"s_mov_b32 s{sLOG+1}, 0x3fb8aa3b")
    a(f"s_mov_b32 s{sEPS}, 0x358637bd")
    a(f"s_and_b32 s{sT0}, s{sIDX}, 7")
    a(f"s_lshl_b32 s{sCI}, s{sXCD}, 3")
    a(f"s_add_u32 s{sCI}, s{sCI}, s{sT0}")

def entry():
    a.label("Lentry")
    a(f"s_cmp_ge_u32 s2, 256")
    a("s_cbranch_scc1 Lend")
    if DIAG: a(f"s_memrealtime {sr(sT6,2)}")
    a(f"s_getpc_b64 {sr(sT0,2)}")
    a.label("Lpcref")
    a(f"s_lshr_b32 s{sIDX}, s2, 3")
    a(f"s_mul_i32 s{sT2}, s{sIDX}, 9")
    a("v_min_u32 v1, 8, v0")
    a(f"v_add_lshl_u32 v1, v1, s{sT2}, 7")
    a("v_min_u32 v1, Lend-Lpcref, v1")
    a(f"global_load_dword v255, v1, {sr(sT0,2)}")
    for s, off in ((SX, 0), (SWQ, 8), (SK, 32), (SV, 40), (SSK, 48), (SWS, 96), (SDBG, 88), (SH, 56), (SWO, 16), (SGW, 72), (SOUT, 80), (SD, 64)):
        if "ka1" in EXP and off >= 16: continue
        a(f"s_load_dwordx2 {sr(s,2)}, s[0:1], {off}")
    a("v_lshrrev_b32 v1, 6, v0")
    a(f"v_and_b32 v{vL}, 63, v0")
    a(f"v_readfirstlane_b32 s{sW}, v1")
    a(f"s_and_b32 s{sXCD}, s2, 7")
    a(f"s_and_b32 s{sRP}, s2, 3")
    a(f"s_bfe_u32 s{sCP}, s2, 0x10002")
    a(f"s_mov_b32 s{sBID}, s2")
    a(f"s_and_b32 s{sT0}, s{sIDX}, 3")
    a(f"s_lshl_b32 s{sRB}, s{sRP}, 2")
    a(f"s_add_u32 s{sRB}, s{sRB}, s{sT0}")
    if DIAG:
        for i in range(16): a(f"s_mov_b32 s{STS+i}, 0")
        stamp(0)
        a(f"s_mov_b32 s{STS+10}, s{sT6}")
        a(f"s_memtime vcc")
        a("s_waitcnt lgkmcnt(0)")
        a(f"s_mov_b32 s{STS+14}, vcc_lo")
    a(f"s_cmp_ge_u32 s{sIDX}, 24")
    a("s_cbranch_scc1 Lctype")
    a(f"s_cmp_lt_u32 s{sW}, 4")
    a("s_cbranch_scc1 Lawave")

def s3_setup(split=None):
    a.c("S3 setup")
    sR3, sC3 = sT2, sT3
    a(f"s_lshr_b32 s{sT0}, s{sIDX}, 1")
    a(f"s_lshl_b32 s{sR3}, s{sRP}, 4")
    a(f"s_add_u32 s{sR3}, s{sR3}, s{sT0}")
    a(f"s_and_b32 s{sT0}, s{sIDX}, 1")
    a(f"s_lshl_b32 s{sC3}, s{sCP}, 1")
    a(f"s_add_u32 s{sC3}, s{sC3}, s{sT0}")
    a(f"v_lshlrev_b32 v{vL16}, 4, v{vL}")
    a(f"v_mov_b32 v{vZ}, 0")
    a(f"v_lshrrev_b32 v24, 4, v{vL}")
    a(f"v_and_b32 v25, 3, v{vL}")
    a(f"v_bfe_u32 v26, v{vL}, 2, 2")
    a(f"s_and_b32 s{sT0}, s{sW}, 1")
    a(f"s_lshl_b32 s{sT1}, s{sT0}, 4")
    a("v_lshl_add_u32 v27, v24, 2, v25")
    a(f"v_add_u32 v27, s{sT1}, v27")
    a(f"v_mul_u32_u24 v{vOUT}, 1280, v27")
    a(f"v_lshl_add_u32 v{vOUT}, v26, 4, v{vOUT}")
    a(f"s_mul_i32 s{sXOFF}, s{sR3}, 40960")
    a(f"s_mul_i32 s{sT4}, s{sC3}, 320")
    a(f"s_add_u32 s{sYO}, s{sXOFF}, {WS_Y}")
    a(f"s_add_u32 s{sXOFF}, s{sXOFF}, s{sT4}")
    a(f"s_lshr_b32 s{sT4}, s{sW}, 1")
    a(f"s_lshl_b32 s{sT5}, s{sT4}, 6")
    a(f"s_add_u32 s{sXOFF}, s{sXOFF}, s{sT5}")
    a(f"s_lshl_b32 s{sT5}, s{sR3}, 7")
    a(f"s_add_u32 s{sT5}, s{sT5}, {WS_G}")
    a(f"v_lshlrev_b32 v{vGO}, 2, v27")
    a(f"v_add_u32 v{vGO}, s{sT5}, v{vGO}")
    a(f"v_bfe_u32 v{vPA}, v27, 1, 1")
    a(f"v_and_b32 v{vPB}, 1, v27")
    a(f"v_lshl_or_b32 v{vPA}, v{vPB}, 1, v{vPA}")
    a(f"v_and_or_b32 v{vPA}, v27, 4, v{vPA}")
    a(f"v_lshlrev_b32 v{vPB}, 1, v26")
    a(f"v_xor_b32 v{vPA}, v{vPA}, v{vPB}")
    a(f"v_lshlrev_b32 v{vPA}, 4, v{vPA}")
    a(f"v_lshl_add_u32 v{vPA}, v27, 7, v{vPA}")
    a(f"s_mul_i32 s{sT5}, s{sT4}, 12288")
    a(f"s_add_u32 s{sT5}, s{sT5}, {L_PART}")
    a(f"v_add_u32 v{vPA}, s{sT5}, v{vPA}")
    a(f"v_xor_b32 v{vPB}, 16, v{vPA}")
    a(f"v_lshl_add_u32 v{vYT}, v25, 3, v26")
    a(f"v_lshlrev_b32 v{vYT}, 6, v{vYT}")
    a(f"v_lshl_add_u32 v{vYT}, v24, 3, v{vYT}")
    a(f"s_lshl_b32 s{sT4}, s{sT4}, 11")
    a(f"s_lshl_b32 s{sT1}, s{sT1}, 1")
    a(f"s_add_u32 s{sT4}, s{sT4}, s{sT1}")
    a(f"s_add_u32 s{sT4}, s{sT4}, {L_YT}")
    a(f"v_add_u32 v{vYT}, s{sT4}, v{vYT}")
    if split: split(0)
    a(f"v_and_b32 v24, 31, v{vL}")
    a(f"v_lshrrev_b32 v25, 5, v{vL}")
    a(f"v_bfe_u32 v{vPW}, v24, 1, 1")
    a("v_and_b32 v26, 1, v24")
    a(f"v_lshl_or_b32 v{vPW}, v26, 1, v{vPW}")
    a(f"v_and_or_b32 v{vPW}, v24, 4, v{vPW}")
    a(f"v_xor_b32 v{vPW}, v{vPW}, v25")
    a(f"v_lshlrev_b32 v{vPW}, 4, v{vPW}")
    a(f"v_lshl_add_u32 v{vPW}, v24, 7, v{vPW}")
    a(f"s_lshl_b32 s{sT4}, s{sT0}, 12")
    a(f"s_add_u32 s{sT5}, s{sT5}, s{sT4}")
    a(f"v_add_u32 v{vPW}, s{sT5}, v{vPW}")
    for q in range(1, 4): a(f"v_xor_b32 v{vPW+q}, {32*q}, v{vPW}")
    a(f"s_mul_i32 s{sT4}, s{sW}, 12288")
    a(f"s_add_u32 s{sT4}, s{sT4}, {L_PART+8192}")
    a(f"s_lshl_b32 s{sT1}, s{sW}, 12")
    a(f"s_add_u32 s{sT1}, s{sT1}, {L_PART+49152-16384}")
    a(f"s_cmp_lt_u32 s{sW}, 4")
    a(f"s_cselect_b32 s{sT4}, s{sT4}, s{sT1}")
    a(f"s_sub_u32 s{sRD}, s{sT4}, s{sT5}")
    a(f"s_sub_u32 s{sT1}, s{sW}, 4")
    a(f"s_cmp_lt_u32 s{sW}, 4")
    a(f"s_cselect_b32 s{sT1}, 3, s{sT1}")
    a(f"s_mul_i32 s{sT1}, s{sT1}, {10*1024}")
    a(f"s_add_u32 s{sT1}, s{sT1}, {L_OFR}")
    a(f"v_add_u32 v{vRR}, s{sT1}, v{vL16}")
    a(f"s_mul_i32 s{sT1}, s{sT0}, {15*1024}")
    a(f"s_add_u32 s{sT1}, s{sT1}, {L_OFR}")
    a(f"v_add_u32 v{vPR}, s{sT1}, v{vL16}")
    a(f"s_mul_i32 s{sT1}, s{sW}, 5120")
    a(f"s_add_u32 s{sT4}, s{sT1}, {L_OFR}")
    a(f"v_add_u32 v{vOW}, s{sT4}, v{vL16}")
    a(f"s_add_u32 s{sPQO}, s{sYO}, s{sT1}")
    a(f"s_add_u32 s{sPQO}, s{sPQO}, {(WS_PQ-WS_Y)&0xffffffff}")
    if split: split(1)
    a("v_mul_u32_u24 v25, 336, v25")
    a("v_min_u32 v26, 20, v24")
    a("v_lshl_add_u32 v26, v26, 4, v25")
    a("v_lshrrev_b32 v27, 2, v24")
    a(f"v_mov_b32 v{vFT}, 0x7f000000")
    a("v_cmp_eq_u32 vcc, 5, v27")
    a(f"v_subrev_u32 v{vKO}, 4, v24")
    a(f"v_lshl_add_u32 v{vKO}, v{vKO}, 4, v25")
    a(f"v_cndmask_b32 v{vKE}, v26, v{vFT}, vcc")
    a(f"v_cndmask_b32 v{vKO}, v26, v{vKO}, vcc")
    a("v_cmp_eq_u32 vcc, 4, v27")
    a(f"s_mul_i32 s{sKVO}, s{sW}, {4*KVH}")
    a(f"s_add_u32 s{sKVO}, s{sKVO}, {WS_KV}")
    a(f"v_cndmask_b32 v{vKO}, v{vKO}, v{vFT}, vcc")
    a(f"s_lshl_b32 s{sT1}, s{sW}, 8")
    a(f"s_add_u32 s{sT1}, s{sT1}, {WS_FK}")
    a(f"v_mov_b32 v{vFQ}, s{sT1}")
    a(f"s_lshr_b32 s{sT1}, s{sR3}, 3")
    a(f"s_add_u32 s{sT1}, s{sT1}, 2")
    a(f"s_bfe_u32 s{sT1}, s{sT1}, 0x10002")
    a(f"s_mul_i32 s{sT1}, s{sT1}, 20")
    a(f"s_mul_i32 s{sT4}, s{sC3}, 5")
    a(f"s_min_u32 s{sT5}, s{sW}, 4")
    a(f"s_add_u32 s{sT4}, s{sT4}, s{sT5}")
    a(f"s_add_u32 s{sT1}, s{sT1}, s{sT4}")
    a(f"s_lshl_b32 s{sT1}, s{sT1}, 8")
    a(f"s_add_u32 s{sT1}, s{sT1}, {WS_FY}")
    a(f"v_mov_b32 v{vFY}, s{sT1}")
    a(f"s_lshl_b32 s{sT4}, s{sT4}, 11")
    a(f"s_add_u32 s{sYO}, s{sYO}, s{sT4}")
    a(f"s_lshl_b32 s{sYM}, s{sT5}, 11")
    a(f"s_add_u32 s{sYM}, s{sYM}, {L_YT}")

def x_loads():
    a(f"buffer_load_dwordx4 {vr(vXD,4)}, v{vOUT}, {srd(SX)}, s{sXOFF} offen")
    a(f"buffer_load_dwordx4 {vr(vXD2,4)}, v{vOUT}, {srd(SX)}, s{sXOFF} offen offset:256")

def wo_prep(vtmp):
    a(f"s_and_b32 s{sT4}, s{sIDX}, 1")
    a(f"s_lshl_b32 s{sT5}, s{sCP}, 1")
    a(f"s_add_u32 s{sT4}, s{sT4}, s{sT5}")
    a(f"s_lshl_b32 s{sT4}, s{sT4}, 3")
    a(f"s_add_u32 s{sT4}, s{sT4}, s{sW}")
    a(f"s_mul_i32 s{sT4}, s{sT4}, 25600")
    a(f"s_add_u32 s{sWOO}, s{sT4}, {WS_WOP}")
    a(f"v_lshlrev_b32 v{vtmp}, 4, v{vL}")
def wo_list(vtmp, order=None):
    out = []
    for i in range(25):
        t = f"buffer_load_dwordx4 {vr(VWO+4*i,4)}, v{vtmp}, {srd(SWS)}, s{sWOO} offen offset:{1024*(i&3)} sc1"
        if (i & 3) == 3: t += f"\ns_add_u32 s{sWOO}, s{sWOO}, 4096"
        out.append(t)
    return out

S0B = 156
def s0_task(st):
    a(f"s_mul_i32 s{sTB}, s{st}, 6554")
    a(f"s_lshr_b32 s{sTB}, s{sTB}, 16")
    a(f"s_mul_i32 s{sCHB}, s{sTB}, 10")
    a(f"s_sub_u32 s{sCHB}, s{st}, s{sCHB}")
for t in range(640): assert (t * 6554) >> 16 == t // 10

def s0_loads():
    a.c("S0 loads")
    B = S0B
    a(f"v_lshrrev_b32 v{B+1}, 3, v{vL}")
    a(f"v_and_b32 v{B+2}, 7, v{vL}")
    a(f"v_mul_u32_u24 v{B+3}, 5120, v{B+1}")
    a(f"v_lshl_add_u32 v{B+3}, v{B+2}, 4, v{B+3}")
    a(f"s_mul_i32 s{sT0}, s{sTB}, 40960")
    a(f"s_lshl_b32 s{sT1}, s{sCHB}, 7")
    a(f"s_add_u32 s{sT0}, s{sT0}, s{sT1}")
    a(f"v_add_u32 v{B+64}, s{sT0}, v{B+3}")
    a(f"v_subrev_u32 v{B+65}, 3840, v{B+64}")
    a(f"v_lshlrev_b32 v{B+66}, 6, v{B+2}")
    a(f"s_lshl_b32 s{sT1}, s{sCHB}, 9")
    srd_init([SK, SV, SSK])
    a("s_waitcnt lgkmcnt(0)")
    for i in range(4): a(f"buffer_load_dwordx4 {vr(B+16+4*i,4)}, v{B+64}, {srd(SK)}, 0 offen offset:{1280*i}")
    for i in range(3): a(f"buffer_load_dwordx4 {vr(B+4+4*i,4)}, v{B+65}, {srd(SK)}, 0 offen offset:{1280*i}")
    for i in range(4): a(f"buffer_load_dwordx4 {vr(B+32+4*i,4)}, v{B+64}, {srd(SV)}, 0 offen offset:{1280*i}")
    for i in range(4): a(f"buffer_load_dwordx4 {vr(B+48+4*i,4)}, v{B+66}, {srd(SSK)}, s{sT1} offen offset:{16*i}")

def s0_addr(s_scr):
    B = S0B
    a(f"v_mul_u32_u24 v{B+67}, 576, v{B+1}")
    a(f"v_lshl_add_u32 v{B+67}, v{B+2}, 4, v{B+67}")
    a(f"v_add_u32 v{B+67}, s{s_scr}, v{B+67}")
    a(f"v_and_b32 v{B+68}, 15, v{vL}")
    a(f"v_mul_u32_u24 v{B+69}, 144, v{B+68}")
    a(f"v_lshrrev_b32 v{B+70}, 4, v{vL}")
    a(f"v_lshl_add_u32 v{B+69}, v{B+70}, 3, v{B+69}")
    a(f"v_add_u32 v{B+69}, s{s_scr}, v{B+69}")
    a(f"s_and_b32 s{sT0}, s{sTB}, 3")
    a(f"v_xor_b32 v{B+68}, s{sT0}, v{B+68}")
    a(f"v_lshlrev_b32 v{B+68}, 4, v{B+68}")
    a(f"v_lshl_add_u32 v{B+68}, v{B+70}, 14, v{B+68}")
    a(f"s_lshl_b32 s{sT0}, s{sCHB}, 18")
    a(f"s_lshl_b32 s{sT1}, s{sTB}, 8")
    a(f"s_add_u32 s{sT0}, s{sT0}, s{sT1}")
    a(f"s_mov_b32 s{sT1}, 0xffff0000")

def s0_compute(split=None, pk=True):
    a.c("S0 compute")
    B = S0B
    KF, VF, WF, AC, UO = 112, 126, 134, B + 88, B + 72
    for p in range(4):
        for cc in range(2):
            c = 2 * p + cc
            for h in range(2):
                a(f"v_lshlrev_b32 v{WF+4*h+cc}, 16, v{B+48+2*c+h}")
                a(f"v_and_b32 v{WF+4*h+2+cc}, s{sT1}, v{B+48+2*c+h}")
        for r in range(7):
            a(f"v_lshlrev_b32 v{KF+2*r}, 16, v{B+4+4*r+p}")
            a(f"v_and_b32 v{KF+2*r+1}, s{sT1}, v{B+4+4*r+p}")
        for r in range(4):
            a(f"v_lshlrev_b32 v{VF+2*r}, 16, v{B+32+4*r+p}")
            a(f"v_and_b32 v{VF+2*r+1}, s{sT1}, v{B+32+4*r+p}")
        if pk:
            for i in range(4): a(f"v_pk_mul_f32 {vr(AC+2*i,2)}, {vr(KF+2*(i+3),2)}, {vr(WF,2)}")
            for d in range(1, 4):
                for i in range(4): a(f"v_pk_fma_f32 {vr(AC+2*i,2)}, {vr(KF+2*(i+3-d),2)}, {vr(WF+2*d,2)}, {vr(AC+2*i,2)}")
            for i in range(4): a(f"v_pk_mul_f32 {vr(AC+2*i,2)}, {vr(AC+2*i,2)}, {vr(VF+2*i,2)}")
        else:
            for i in range(8): a(f"v_mul_f32 v{AC+i}, v{KF+6+i}, v{WF+(i&1)}")
            for d in range(1, 4):
                for i in range(8): a(f"v_fmac_f32 v{AC+i}, v{KF+6+i-2*d}, v{WF+2*d+(i&1)}")
            for i in range(8): a(f"v_mul_f32 v{AC+i}, v{AC+i}, v{VF+i}")
        for i in range(4): a(f"v_cvt_pk_bf16_f32 v{UO+4*i+p}, v{AC+2*i}, v{AC+2*i+1}")
        if split: split(p)
    for i in range(4): a(f"ds_write_b128 v{B+67}, {vr(UO+4*i,4)} offset:{144*i}")
    for j in range(4):
        a(f"ds_read_b64_tr_b16 {vr(B+4+4*j,2)}, v{B+69} offset:{32*j}")
        a(f"ds_read_b64_tr_b16 {vr(B+6+4*j,2)}, v{B+69} offset:{32*j+2304}")
    for j in range(4):
        a(f"s_waitcnt lgkmcnt({6-2*j})")
        a(f"buffer_store_dwordx4 {vr(B+4+4*j,4)}, v{B+68}, {srd(SWS)}, s{sT0} offen sc1")
        if j < 3: a(f"s_add_u32 s{sT0}, s{sT0}, 65536")

def f0_off(sd):
    a(f"s_lshl_b32 s{sd}, s{sCHB}, 8")
    a(f"s_add_u32 s{sd}, s{sd}, {WS_F0}")

ACC = 32
FB = [112, 156]
vX0, vX1, vWA, vWX = 148, 149, 150, 154
vA1, vA2, vC16, vG4 = 16, 17, 18, 19
sC, sSL = sT2, sT3

def a_setup():
    a.c("A-wave address setup")
    a(f"s_and_b32 s{sT0}, s{sW}, 1")
    a(f"s_lshr_b32 s{sT1}, s{sW}, 1")
    a(f"v_and_b32 v{vC16}, 15, v{vL}")
    a(f"v_lshrrev_b32 v{vG4}, 4, v{vL}")
    a(f"v_lshrrev_b32 v8, 1, v{vC16}")
    a(f"v_xor_b32 v8, v{vG4}, v8")
    a(f"v_lshlrev_b32 v8, 4, v8")
    a(f"v_lshl_add_u32 v8, v{vC16}, 7, v8")
    a(f"s_lshl_b32 s{sT4}, s{sT1}, 13")
    a(f"v_add_u32 v{vX0}, s{sT4}, v8")
    a(f"v_xor_b32 v{vX1}, 64, v{vX0}")
    a(f"v_bfe_u32 v8, v{vL}, 2, 2")
    a(f"v_lshl_add_u32 v9, v{vG4}, 3, v8")
    a(f"v_and_b32 v10, 1, v{vG4}")
    a(f"v_xor_b32 v10, s{sT0}, v10")
    a(f"v_and_b32 v11, 3, v{vL}")
    a("v_lshlrev_b32 v11, 3, v11")
    a(f"v_lshl_add_u32 v{vWX}, v9, 6, v11")
    a(f"v_lshl_add_u32 v{vWX}, v10, 5, v{vWX}")
    a(f"v_add_u32 v{vWX}, 32768, v{vWX}")
    a("v_lshl_or_b32 v8, v10, 2, v8")
    a("v_lshl_add_u32 v8, v8, 5, v11")
    a("v_lshl_add_u32 v8, v9, 8, v8")
    a(f"v_add_u32 v{vWA}, 16384, v8")
    for tt in range(1, 4): a(f"v_xor_b32 v{vWA+tt}, {32*tt}, v{vWA}")

def a_reads(buf, ks):
    b = FB[buf]
    xs = [f"ds_read_b128 {vr(b+4*rt,4)}, v{vX1 if ks else vX0} offset:{2048*rt}" for rt in range(4)]
    ws = []
    for tt in range(5):
        for sec in range(2):
            if tt < 4: ws.append(f"ds_read_b64_tr_b16 {vr(b+16+4*tt+2*sec,2)}, v{vWA+tt} offset:{ks*8192+sec*1024}")
            else: ws.append(f"ds_read_b64_tr_b16 {vr(b+16+4*tt+2*sec,2)}, v{vWX} offset:{ks*2048+sec*256}")
    return [xs[0], ws[0], ws[1], xs[1], ws[2], ws[3], xs[2], ws[4], ws[5], xs[3]] + ws[6:]

def acc(rt, tt): return ACC + 4 * (rt * 5 + tt)

def a_mfmas(buf, qtype, order=None):
    b = FB[buf]
    out = []
    for (rt, tt) in (order or [(rt, tt) for tt in range(5) for rt in range(4)]):
        d = vr(acc(rt, tt), 4)
        xf = vr(b + 4 * rt, 4); wf = vr(b + 16 + 4 * tt, 4)
        A, B = (wf, xf) if qtype else (xf, wf)
        out.append(f"v_mfma_f32_16x16x32_bf16 {d}, {A}, {B}, {d}")
    return out

def interleave(mf, rd):
    j = 0
    for i, m in enumerate(mf):
        a(m)
        if j < len(rd): a(rd[j]); j += 1
    while j < len(rd): a(rd[j]); j += 1

def a_mainloop(qtype):
    t = "q" if qtype else "k"
    a.c("A main loop")
    a(f"s_mov_b32 s{sC}, 0")
    a(f"s_mov_b32 s{sSL}, 0")
    a(f"s_mov_b32 s{sT6}, {((1<<1)|(1<<3) if qtype else 0)|(1<<10)}")
    if "noprio" not in EXP: a("s_setprio 2")
    a("s_waitcnt lgkmcnt(0)")
    if "ast" in EXP: stamp(1, True)
    a("s_barrier")
    stamp(1)
    for r in a_reads(0, 0): a(r)
    book = [
        f"s_add_u32 s{sSL}, s{sSL}, 1\ns_cmp_eq_u32 s{sSL}, 3",
        f"s_mov_b32 s{sT4}, {SLOT}",
        f"s_cselect_b32 s{sT4}, {-2*SLOT & 0xffffffff}, s{sT4}",
        f"s_cselect_b32 s{sSL}, 0, s{sSL}\ns_add_u32 s{sC}, s{sC}, 1",
    ]
    src_ = f"s{sT4}"
    rd = a_reads(1, 1)
    seq = []
    for i, r in enumerate(rd): seq.append(r + ("\n" + book[i - 2] if 2 <= i < 6 else ""))
    seq += [f"v_add_u32 v{vX0}, {src_}, v{vX0}\nv_add_u32 v{vX1}, {src_}, v{vX1}",
            f"v_add_u32 v{vWA}, {src_}, v{vWA}\nv_add_u32 v{vWA+1}, {src_}, v{vWA+1}",
            f"v_add_u32 v{vWA+2}, {src_}, v{vWA+2}\nv_add_u32 v{vWA+3}, {src_}, v{vWA+3}",
            f"v_add_u32 v{vWX}, {src_}, v{vWX}\ns_bitcmp1_b32 s{sT6}, s{sC}"]
    a(".p2align 3")
    a.label(f"Lml{t}")
    a("s_waitcnt lgkmcnt(0)")
    interleave(a_mfmas(0, qtype), seq)
    a("s_waitcnt lgkmcnt(0)")
    a(f"s_cbranch_scc1 Lhook{t}")
    a.label(f"Lhookd{t}")
    if "ast" in EXP:
        a("s_memrealtime vcc")
        a("s_waitcnt lgkmcnt(0)")
        a(f"s_mov_b32 m0, s{sC}")
        a("v_writelane_b32 v29, vcc_lo, m0")
    a("s_barrier")
    interleave(a_mfmas(1, qtype), a_reads(0, 0))
    a(f"s_branch Lml{t}")
    a.label(f"Lhook{t}")
    if qtype:
        a(f"s_cmp_eq_u32 s{sC}, 10")
        a(f"s_cbranch_scc1 Lmx{t}")
        N2 = a.newlabel("Lhk")
        a(f"s_cmp_lg_u32 s{sC}, 1")
        a(f"s_cbranch_scc1 {N2}")
        tag_get(24, 25, "issued")
        arr_issue(30, 31, f"s{sQUAD}")
        a(f"s_branch Lhookd{t}")
        a.label(N2)
        arr_finish(30, 31, f"s{sQUAD}", 64)
        a(f"s_branch Lhookd{t}")
        a.label(f"Lmx{t}")
    if "ast" in EXP:
        for c in range(1, 9): a(f"v_readlane_b32 s{STS+1+c}, v29, {c}")

def acc_zero():
    for i in range(80): a(f"v_mov_b32 v{ACC+i}, 0")

def phi_list(regs, tmp, pk=False):
    out = []
    B = 4
    for i in range(0, len(regs), B):
        batch = regs[i:i + B]
        for j, r in enumerate(batch):
            if pk:
                out.append(f"v_pk_mul_f32 {vr(tmp+2*j,2)}, {vr(r,2)}, {sr(sLOG,2)}"); continue
            out.append(f"v_mul_f32 v{tmp+2*j}, s{sLOG}, v{r}")
            out.append(f"v_mul_f32 v{tmp+2*j+1}, s{sLOG}, v{r+1}")
        for j, r in enumerate(batch):
            out.append(f"v_exp_f32_e64 v{tmp+2*j}, v{tmp+2*j} clamp")
            out.append(f"v_exp_f32_e64 v{tmp+2*j+1}, v{tmp+2*j+1} clamp")
        for j, r in enumerate(batch):
            out.append(f"v_max_f32 v{r}, s{sEPS}, v{r}")
            out.append(f"v_max_f32 v{r+1}, s{sEPS}, v{r+1}")
        for j, r in enumerate(batch):
            if pk:
                out.append(f"v_pk_add_f32 {vr(r,2)}, {vr(r,2)}, {vr(tmp+2*j,2)}"); continue
            out.append(f"v_add_f32 v{r}, v{r}, v{tmp+2*j}")
            out.append(f"v_add_f32 v{r+1}, v{r+1}, v{tmp+2*j+1}")
    return out

def sprinkle(main, extra, every, start=0):
    j = 0
    for i, m in enumerate(main):
        a(m)
        if i >= start and (i - start) % every == every - 1 and j < len(extra):
            a(extra[j]); j += 1
    return extra[j:]

def fc_addr(v):
    a(f"v_and_b32 v{v}, 7, v{vL}")
    a(f"v_lshlrev_b32 v{v}, 8, v{v}")
    a(f"v_add_u32 v{v}, {WS_FC}, v{v}")
def f0_addr(v):
    a(f"s_lshr_b32 s{sT4}, s{sQUAD}, 4")
    a(f"s_lshl_b32 s{sT4}, s{sT4}, 8")
    a(f"s_add_u32 s{sT4}, s{sT4}, {WS_F0}")
    a(f"v_mov_b32 v{v}, s{sT4}")

def awave():
    a.label("Lawave")
    ka_rest()
    a(f"s_cmp_ge_u32 s{sIDX}, 16")
    a("s_cbranch_scc1 Lqa")
    srd_init([SWS, SDBG])
    a(f"s_lshl_b32 s{sT0}, s{sBID}, 2")
    a(f"s_or_b32 s{sT0}, s{sT0}, s{sW}")
    a(f"s_cmp_lg_u32 s{sT0}, 3")
    a("s_cbranch_scc1 Lkva1")
    a(f"s_memrealtime {sr(sT2,2)}")
    a(f"v_lshlrev_b32 v1, 8, v{vL}")
    a("v_mov_b32 v2, 0")
    a(f"s_mov_b32 s{sT0}, {WS_C + CDELTA}")
    a(f"s_mov_b32 s{sT1}, {WS_C + CDELTA + 16384}")
    a("s_waitcnt lgkmcnt(0)")
    a("s_mov_b32 exec_hi, 0")
    a(f"buffer_store_dword v2, v1, {srd(SWS)}, s{sT1} offen sc1")
    a("s_mov_b32 exec_hi, -1")
    a(f"buffer_store_dword v2, v1, {srd(SWS)}, s{sT0} offen sc1")
    a(f"s_lshl_b32 s{sT3}, s{sT3}, 27")
    a(f"s_xor_b32 s{sT2}, s{sT2}, s{sT3}")
    a(f"s_or_b32 s{sT2}, s{sT2}, 1")
    a(f"v_mov_b32 v3, s{sT2}")
    a("s_waitcnt vmcnt(0)")
    a("s_mov_b64 exec, 1")
    a(f"buffer_store_dword v3, v2, {srd(SDBG)}, 0 offen sc1")
    a("s_mov_b64 exec, -1")
    a.label("Lkva1")
    common_scalars()
    srd_init([SX, SOUT])
    acc_zero()

def kva():
    a(f"s_lshr_b32 s{sT0}, s{sIDX}, 2")
    a(f"s_lshl_b32 s{sCG}, s{sCP}, 2")
    a(f"s_add_u32 s{sCG}, s{sCG}, s{sT0}")
    a_setup()
    a(f"s_mul_i32 s{sT4}, s{sW}, 3584")
    a(f"s_add_u32 s{sT4}, s{sT4}, {L_KVS}")
    a(f"v_mul_u32_u24 v8, 336, v{vG4}")
    a(f"v_add_u32 v8, s{sT4}, v8")
    a(f"v_lshl_add_u32 v{vA1}, v{vC16}, 4, v8")
    a(f"v_add_u32 v9, 8, v{vC16}")
    a(f"v_subrev_u32 v10, 12, v{vC16}")
    a(f"v_cmp_lt_u32 vcc, 11, v{vC16}")
    a("v_cndmask_b32 v9, v9, v10, vcc")
    a(f"v_cmp_eq_u32 vcc, 0, v{vC16}")
    a("v_mov_b32 v10, 20")
    a("v_cndmask_b32 v9, v9, v10, vcc")
    a(f"v_lshl_add_u32 v{vA2}, v9, 4, v8")
    a(f"s_lshl_b32 s{sT4}, s{sT0}, 2")
    a(f"s_add_u32 s{sT4}, s{sT4}, {L_CNT}")
    a(f"v_mov_b32 v20, s{sT4}")
    a(f"s_mul_i32 s{sT4}, s{sT0}, 3584")
    a(f"s_mul_i32 s{sT5}, s{sT1}, {KVH}")
    a(f"s_add_u32 s{sT4}, s{sT4}, s{sT5}")
    a(f"v_lshlrev_b32 v21, 2, v{vL}")
    a(f"s_add_u32 s{sT5}, s{sT4}, {L_KVS}")
    a(f"v_add_u32 v22, s{sT5}, v21")
    a(f"s_mul_i32 s{sT5}, s{sCG}, {4*KVH}")
    a(f"s_add_u32 s{sT4}, s{sT4}, s{sT5}")
    a(f"s_add_u32 s{sCH}, s{sT4}, {WS_KV}")
    a("v_mov_b32 v23, 0x3f803f80")
    a(f"s_lshl_b32 s{sLC}, s{sCG}, 8")
    a(f"s_add_u32 s{sLC}, s{sLC}, {WS_FK}")
    wo_prep(28)
    a_mainloop(False)
    a.c("KV epilogue")
    order = [(rt, tt) for tt in (4, 0, 2, 1, 3) for rt in range(4)]
    mf = a_mfmas(1, False, order)
    for m in mf[:8]: a(m)
    XP = 112
    TM = 12
    TM = 8
    a(f"v_cmp_gt_u32 vcc, 8, v{vC16}")
    def pairs(tt): return sum([[acc(rt, tt), acc(rt, tt) + 2] for rt in range(4)], [])
    def cvts(tt): return [f"v_cvt_pk_bf16_f32 v{acc(rt&2,tt)+2*(rt&1)+h}, v{acc(rt,tt)+2*h}, v{acc(rt,tt)+2*h+1}" for rt in range(4) for h in range(2)]
    L = []
    for rt in range(4):
        for h in range(2): L.append(f"v_cvt_pk_bf16_f32 v{XP+2*rt+h}, v{acc(rt,4)+2*h}, v{acc(rt,4)+2*h+1}")
    for j in range(8): L.append(f"v_cndmask_b32 v{XP+j}, v{XP+j}, v23, vcc")
    L += phi_list(pairs(4)[:4], TM, False)
    for i, m in enumerate(mf[8:]):
        a(m)
        for x in L[2 * i:2 * i + 2]: a(x)
    L = L[24:]
    stamp(2)
    pk = "nopk" not in EXP
    L += phi_list(pairs(4)[4:], TM, pk) + cvts(4) + phi_list(pairs(0), TM, pk) + cvts(0) + cvts(2) + cvts(3)
    if "aspr" in EXP: assert not sprinkle(L, wo_list(28), len(L) // 25)
    else:
        for x in L: a(x)
    def fr(t, p): return XP + 4 * p if t == 5 else acc(2 * p, t)
    prods = [(0, 2), (0, 5), (4, 2), (4, 5), (1, 3), (1, 5), (4, 3)]
    PD = 120
    def pm(lst):
        for p in range(2):
            for i in lst:
                ta, tb = prods[i]
                d = vr(PD + 4 * i, 4)
                a(f"v_mfma_f32_16x16x32_bf16 {d}, {vr(fr(ta,p),4)}, {vr(fr(tb,p),4)}, {'0' if p==0 else d}")
    def wr(i, va, off, mlo, mhi):
        t = ""
        if mlo != -1: t += f"s_mov_b32 exec_lo, {mlo}\ns_mov_b32 exec_hi, {mhi}\n"
        t += f"ds_write_b128 v{va}, {vr(PD+4*i,4)} offset:{off}"
        if mlo != -1: t += "\ns_mov_b64 exec, -1"
        return t
    pm([0, 1, 2, 3, 6])
    W1 = [wr(0, vA1, 0, -1, -1), wr(1, vA2, 0, 0x0f010f01, 0x0f010f01), wr(2, vA1, 4 * 336, 0xffff, 0),
          wr(3, vA2, 4 * 336, 0x0f01, 0), wr(3, vA2, KVH - 336, 0xf0010000, 0), wr(6, vA1, KVH + 64 - 336, 0xffff0000, 0)]
    rest = sprinkle(phi_list(pairs(1)[:4], TM, False) + phi_list(pairs(1)[4:], TM, pk) + cvts(1), W1, 8, 6)
    assert not rest
    pm([4, 5])
    a(wr(4, vA1, KVH + 336 + 64, -1, -1))
    a(wr(5, vA2, KVH + 336, 0xf001f001, 0xf001f001))
    a("s_waitcnt lgkmcnt(0)")
    a("s_barrier")
    for i in range(7):
        a(f"ds_read_b32 v{32+i}, v22 offset:{256*i}")
        a(f"ds_read_b32 v{40+i}, v22 offset:{256*i+7168}")
    stamp(3)
    for i in range(7):
        a(f"s_waitcnt lgkmcnt({12-2*i})")
        a(f"v_add_f32 v{32+i}, v{32+i}, v{40+i}")
        a(f"buffer_atomic_add_f32 v{32+i}, v21, {srd(SWS)}, s{sCH} offen offset:{256*i}")
    tag_lds(50)
    arr_prep(48, 49)
    s3_setup()
    a("s_waitcnt vmcnt(0)")
    arr_issue(48, 49, f"s{sLC}")
    arr_finish(48, 49, f"s{sLC}", 128, 0)
    a("s_setprio 0")
    stamp(4)
    a("s_branch Ls3x" if "aspr" in EXP else "s_branch Ls3")

def qa():
    a.label("Lqa")
    common_scalars()
    a(f"s_mov_b32 s{sTB}, s{sCI}")
    a(f"s_add_u32 s{sCHB}, s{sW}, 6")
    s0_loads()
    srd_init([SWS, SDBG, SX, SOUT])
    acc_zero()
    a(f"s_bfe_u32 s{sT0}, s{sIDX}, 0x10002")
    a(f"s_lshl_b32 s{sCG}, s{sCP}, 1")
    a(f"s_add_u32 s{sCG}, s{sCG}, s{sT0}")
    a_setup()
    a(f"v_lshrrev_b32 v8, 1, v{vG4}")
    a(f"v_and_b32 v9, 1, v{vG4}")
    a(f"v_lshlrev_b32 v20, 4, v{vC16}")
    a("v_lshl_add_u32 v20, v9, 9, v20")
    a("v_lshl_add_u32 v21, v8, 3, v20")
    a("v_add_u32 v21, 4096, v21")
    a("v_lshl_add_u32 v20, v8, 10, v20")
    a(f"s_lshl_b32 s{sT4}, s{sRB}, 1")
    a(f"s_add_u32 s{sT4}, s{sT4}, s{sT1}")
    a(f"s_lshl_b32 s{sT5}, s{sCG}, 1")
    a(f"s_add_u32 s{sT5}, s{sT5}, s{sT0}")
    a(f"s_mul_i32 s{sT0}, s{sT4}, {80*1024}")
    a(f"s_mul_i32 s{sT1}, s{sT5}, {5*1024}")
    a(f"s_add_u32 s{sT0}, s{sT0}, s{sT1}")
    a(f"s_add_u32 s{sCH}, s{sT0}, {WS_PQ}")
    a(f"s_add_u32 s{sVAR}, s{sCH}, {40*1024}")
    a(f"s_lshl_b32 s{sT4}, s{sT5}, 8")
    a(f"s_add_u32 s{sLC}, s{sT4}, {WS_FK}")
    wo_prep(28)
    arr_prep(30, 31)
    a("v_mov_b32 v24, 0")
    a(f"s_mul_i32 s{sT2}, s{sW}, 4608")
    a(f"s_add_u32 s{sT2}, s{sT2}, {2*SLOT}")
    f0_off(sQUAD)
    s0_addr(sT2)
    a("s_waitcnt vmcnt(0)")
    stamp(11)
    s0_compute()
    stamp(12)
    cnt_load(SDBG, 24, 25)
    a_mainloop(True)
    a.c("Q epilogue")
    order = [(rt, tt) for rt in range(4) for tt in range(5)]
    mf = a_mfmas(1, True, order)
    for m in mf[:9]: a(m)
    L = []
    for rt in range(4):
        regs = []
        for tt in range(5): regs += [acc(rt, tt), acc(rt, tt) + 2]
        L += phi_list(regs, 112, rt > 0 and "nopk" not in EXP)
        O = acc(rt, 0)
        for tt in range(5):
            for h in range(2): L.append(f"v_cvt_pk_bf16_f32 v{O+2*tt+h}, v{acc(rt,tt)+2*h}, v{acc(rt,tt)+2*h+1}")
        so = f"s{sVAR if rt>>1 else sCH}"
        for p in range(2):
            L.append(f"buffer_store_dwordx4 {vr(O+4*p,4)}, v20, {srd(SWS)}, {so} offen offset:{256*(rt&1)+2048*p} sc1")
        L.append(f"buffer_store_dwordx2 {vr(O+8,2)}, v21, {srd(SWS)}, {so} offen offset:{256*(rt&1)} sc1")
    for i, m in enumerate(mf[9:]):
        a(m)
        for x in L[2 * i:2 * i + 2]: a(x)
    L = L[22:]
    stamp(2)
    if "aspr" in EXP: assert not sprinkle(L, wo_list(28), 8)
    else:
        for x in L: a(x)
    stamp(3)
    a("s_barrier")
    arr_prep(120, 121)
    s3_setup()
    a("s_waitcnt vmcnt(0)")
    arr_issue(120, 121, f"s{sLC}")
    arr_finish(120, 121, f"s{sLC}", 128, 0)
    a("s_setprio 0")
    stamp(4)
    a("s_branch Ls3x" if "aspr" in EXP else "s_branch Ls3")

def h_dma(sj, sch0):
    a(f"s_lshr_b32 s{sT4}, s{sj}, 1")
    a(f"s_and_b32 s{sT5}, s{sj}, 1")
    a(f"s_lshl_b32 s{sT5}, s{sT5}, 11")
    a(f"s_add_u32 s{sT6}, s{sch0}, s{sT4}")
    a(f"s_lshl_b32 s{sT6}, s{sT6}, 12")
    a(f"s_add_u32 s{sT6}, s{sT6}, s{sT5}")
    a(f"s_mul_i32 s{sT4}, s{sT4}, {HSTR}")
    a(f"s_add_u32 s{sT4}, s{sT4}, s{sT5}")
    a(f"s_add_u32 m0, s{sT4}, {L_HB+128}")
    a(f"buffer_load_dwordx4 v{vL16}, {srd(SH)}, s{sT6} offen lds")
    a(f"buffer_load_dwordx4 v{vL16}, {srd(SH)}, s{sT6} offen offset:1024 lds")

CACC = 32
CPOOL = 96
NPOOL = 12
CD = 144
vUe, vUo, vH, vCW, vCT, vCS, vCY, vCN = range(148, 156)

def conv_setup(j, chl0, split=None):
    a.c("conv setup")
    a(f"s_lshr_b32 s{sLC}, s{j}, 1")
    a(f"s_and_b32 s{sVAR}, s{j}, 1")
    a(f"s_add_u32 s{sCHL}, s{chl0}, s{sLC}")
    a(f"s_lshl_b32 s{sCH}, s{sQUAD}, 2")
    a(f"s_add_u32 s{sCH}, s{sCH}, s{sCHL}")
    a(f"s_lshl_b32 s{sT4}, s{sCH}, 1")
    a(f"s_and_b32 s{sT4}, s{sT4}, -4")
    a(f"s_load_dword s{sDV}, {sr(SD,2)}, s{sT4}")
    a(f"v_and_b32 v96, 31, v{vL}")
    a(f"v_lshrrev_b32 v97, 5, v{vL}")
    a("v_lshl_add_u32 v98, v97, 2, v96")
    a("v_lshrrev_b32 v99, 2, v98")
    a("v_add_u32 v99, 3, v99")
    a("v_and_b32 v99, 3, v99")
    a(f"v_xor_b32 v99, s{sCHL}, v99")
    a("v_lshlrev_b32 v99, 4, v99")
    a("v_lshl_add_u32 v99, v98, 6, v99")
    a(f"v_add_u32 v{vUe}, {L_UD-28*64}, v99")
    a(f"v_xor_b32 v{vUo}, 32, v{vUe}")
    a(f"v_bfe_u32 v98, v{vL}, 4, 1")
    a(f"v_and_b32 v99, 3, v{vL}")
    a("v_lshl_add_u32 v98, v98, 2, v99")
    a(f"v_bfe_u32 v96, v{vL}, 2, 2")
    a("v_sub_u32 v98, v98, v96")
    a("v_lshlrev_b32 v97, 3, v97")
    a("v_sub_u32 v98, v98, v97")
    a("v_lshlrev_b32 v98, 3, v98")
    a(f"s_mul_i32 s{sT4}, s{sLC}, {HSTR}")
    a(f"s_add_u32 s{sT4}, s{sT4}, {L_HB+128+32}")
    a(f"v_add_u32 v{vH}, s{sT4}, v98")
    a(f"s_lshl_b32 s{sT4}, s{sW}, 11")
    a(f"s_add_u32 s{sT4}, s{sT4}, {L_YST}")
    a(f"v_lshlrev_b32 v{vCW}, 4, v{vL}")
    a(f"v_add_u32 v{vCW}, s{sT4}, v{vCW}")
    if split: split(0)
    a(f"v_lshrrev_b32 v97, 4, v{vL}")
    a("v_lshrrev_b32 v98, 1, v99")
    a("v_lshl_add_u32 v98, v97, 1, v98")
    a("v_lshl_add_u32 v98, v98, 3, v96")
    a("v_lshlrev_b32 v98, 4, v98")
    a("v_and_b32 v99, 1, v99")
    a("v_lshl_add_u32 v98, v99, 3, v98")
    a(f"v_add_u32 v{vCT}, s{sT4}, v98")
    a(f"v_and_b32 v98, 7, v{vL}")
    a(f"v_lshrrev_b32 v99, 5, v{vL}")
    a("v_lshl_add_u32 v98, v98, 1, v99")
    a(f"v_mul_u32_u24 v98, 40960, v98")
    a(f"v_bfe_u32 v99, v{vL}, 3, 2")
    a(f"v_lshl_add_u32 v{vCY}, v99, 4, v98")
    a(f"s_lshl_b32 s{sT4}, s{j}, 4")
    a(f"s_add_u32 s{sT4}, s{sT4}, {L_SP}")
    a(f"v_mov_b32 v{vCS}, s{sT4}")
    a(f"s_lshl_b32 s{sT4}, s{sLC}, 2")
    a(f"s_add_u32 s{sT4}, s{sT4}, {L_CNT+16}")
    a(f"v_mov_b32 v{vCN}, s{sT4}")

def conv_dfrag():
    a("s_waitcnt lgkmcnt(0)")
    a(f"s_and_b32 s{sT4}, s{sCH}, 1")
    a(f"s_lshl_b32 s{sT4}, s{sT4}, 4")
    a(f"s_lshr_b32 s{sDV}, s{sDV}, s{sT4}")
    a(f"s_and_b32 s{sDV}, s{sDV}, 0xffff")
    a(f"v_lshlrev_b32 v98, 2, v{vL}")
    a("v_and_b32 v98, 16, v98")
    a(f"v_lshlrev_b32 v98, v98, s{sDV}")
    a(f"v_and_b32 v99, 59, v{vL}")
    for r in range(4):
        a(f"v_cmp_eq_u32 vcc, {32+8*r}, v99")
        a(f"v_cndmask_b32 v{CD+r}, 0, v98, vcc")

def zero_pads(j):
    a("v_mov_b32 v100, 0")
    a("v_mov_b32 v101, 0")
    a(f"v_lshlrev_b32 v102, 3, v{vL}")
    a(f"s_and_b32 s{sT6}, s{j}, 3")
    a(f"s_lshl_b32 s{sT4}, s{sT6}, 9")
    a(f"s_add_u32 s{sT4}, s{sT4}, {L_UB}")
    a(f"v_add_u32 v103, s{sT4}, v102")
    a("ds_write_b64 v103, v[100:101]")
    a(f"s_mul_i32 s{sT4}, s{sT6}, {HSTR}")
    a(f"s_add_u32 s{sT4}, s{sT4}, {L_HB}")
    a(f"v_add_u32 v103, s{sT4}, v102")
    a("s_mov_b64 exec, 0xffff")
    a("ds_write_b64 v103, v[100:101]")
    a(f"v_add_u32 v103, {L_CNT}, v102")
    a("s_mov_b64 exec, 0xff")
    a("ds_write_b64 v103, v[100:101]")
    a("s_mov_b64 exec, -1")

def u_dma(j, nper):
    a(f"s_mul_i32 s{sT4}, s{j}, {1024*nper}")
    a(f"s_lshl_b32 s{sT5}, s{sQUAD}, 14")
    a(f"s_add_u32 s{sT5}, s{sT5}, s{sT4}")
    a(f"s_add_u32 m0, s{sT4}, {L_UD}")
    for i in range(nper): a(f"buffer_load_dwordx4 v{vL16}, {srd(SWS)}, s{sT5} offen offset:{1024*i} sc1 lds")

def bwave():
    a.c("B wave")
    sXB, sWB, sM, sMW, sROT, sSTEP, sQ2, sQ3 = sCG, sUD, sTB, sRB, sCI, sLOG, sLOG + 1, sEPS
    VX, VW = 32, 36
    a(f"s_sub_u32 s{sJ}, s{sW}, 4")
    a(f"v_lshrrev_b32 v1, 3, v{vL}")
    a(f"v_mul_u32_u24 v1, 1280, v1")
    a(f"v_lshrrev_b32 v2, 4, v{vL}")
    a(f"v_and_b32 v3, 7, v{vL}")
    a("v_xor_b32 v2, v2, v3")
    a(f"v_lshl_add_u32 v{VX}, v2, 4, v1")
    a(f"v_xor_b32 v{VX+1}, 64, v{VX}")
    a(f"v_add_u32 v{VX+1}, {10240-1024}, v{VX+1}")
    a(f"v_add_u32 v{VX+2}, {20480-2048}, v{VX}")
    a(f"v_add_u32 v{VX+3}, {20480-2048}, v{VX+1}")
    a(f"s_lshl_b32 s{sXB}, s{sRB}, 2")
    a(f"s_add_u32 s{sXB}, s{sXB}, s{sJ}")
    a(f"s_mul_i32 s{sXB}, s{sXB}, 40960")
    a(f"s_lshr_b32 s{sT0}, s{sIDX}, 2")
    a(f"s_add_u32 s{sROT}, s{sT0}, s{sIDX}")
    a(f"s_and_b32 s{sROT}, s{sROT}, 3")
    a(f"s_add_u32 s{sM}, s{sRP}, s{sCP}")
    a(f"s_and_b32 s{sM}, s{sM}, 1")
    a(f"s_lshl_b32 s{sM}, s{sM}, 2")
    a(f"s_or_b32 s{sROT}, s{sROT}, s{sM}")
    a(f"s_lshl_b32 s{sM}, s{sJ}, 12")
    srd_init([SX, SWQ])
    def chunk_x(sc):
        a(f"s_mov_b32 m0, s{sM}")
        a(f"s_lshl_b32 s{sQ2}, s{sc}, 7")
        a(f"s_add_u32 s{sQ2}, s{sQ2}, s{sXB}")
        for i in range(4):
            a(f"buffer_load_dwordx4 v{VX+i}, {srd(SX)}, s{sQ2} offen offset:{1024*i} lds")
    def chunk_w(sc):
        a(f"s_add_u32 m0, s{sM}, 16384")
        a(f"s_mul_i32 s{sQ3}, s{sc}, {64*3840}")
        a(f"s_add_u32 s{sQ3}, s{sQ3}, s{sWB}")
        for hf in range(1):
            if hf:
                a(f"s_add_u32 m0, s{sM}, {16384+4096}")
                a(f"s_add_u32 s{sQ3}, s{sQ3}, {16*3840}")
            for i in (0, 1, 4, 2, 3):
                if i == 2: a(f"s_add_u32 m0, s{sM}, {16384+4096*hf}")
                if i == 4: a(f"s_add_u32 m0, s{sMW}, {1024*hf}")
                a(f"buffer_load_dwordx4 v{VW+i}, {srd(SWQ)}, s{sQ3} offen offset:{1024*(i&3)} lds")
    a(f"s_lshl_b32 s{sT1}, s{sCP}, 2")
    a(f"s_add_u32 s{sT1}, s{sT1}, s{sT0}")
    a(f"s_add_u32 s{sT1}, s{sT1}, 8")
    a(f"s_lshl_b32 s{sT0}, s{sT0}, 1")
    a(f"s_lshl_b32 s{sT4}, s{sCP}, 2")
    a(f"s_add_u32 s{sT0}, s{sT0}, s{sT4}")
    a(f"s_sub_u32 s{sT0}, s{sT0}, 8")
    a(f"s_cmp_ge_u32 s{sIDX}, 16")
    a(f"s_cselect_b32 s{sWB}, s{sT0}, s{sT1}")
    a(f"s_cselect_b32 s{sT4}, 10, 5")
    a(f"s_cselect_b32 s{sT5}, 4, 0x50")
    a(f"s_cselect_b32 s{sT6}, 1, 3")
    a(f"s_cselect_b32 s{sT7}, 2, 1")
    a(f"s_cselect_b32 s{sT0}, 1, 0x50")
    a(f"s_cselect_b32 s{sT1}, 8, 2")
    a(f"s_mulk_i32 s{sWB}, 160")
    a(f"s_mul_i32 s{sT2}, s{sJ}, {16*3840}")
    a(f"s_add_u32 s{sWB}, s{sWB}, s{sT2}")
    a(f"s_lshl_b32 s{sMW}, s{sJ}, 10")
    a(f"s_add_u32 s{sMW}, s{sMW}, 32768")
    a(f"v_lshrrev_b32 v14, 4, v{vL}")
    a(f"v_lshrrev_b32 v15, 1, v{vL}")
    a("v_xor_b32 v15, v15, v14")
    a(f"v_and_b32 v16, 1, v{vL}")
    a("v_mul_u32_u24 v14, 240, v14")
    a(f"v_mad_u32_u24 v14, v16, s{sT7}, v14")
    a("v_and_b32 v17, 1, v15")
    a(f"v_mad_u32_u24 v14, v17, s{sT6}, v14")
    a("v_bfe_u32 v17, v15, 1, 1")
    a(f"v_mad_u32_u24 v14, v17, s{sT5}, v14")
    a("v_bfe_u32 v17, v15, 2, 1")
    a(f"v_mad_u32_u24 v18, v17, s{sT4}, v14")
    a(f"v_lshlrev_b32 v{VW}, 4, v18")
    a(f"v_add_u32 v{VW+1}, {15360-1024}, v{VW}")
    a("v_xor_b32 v17, 1, v17")
    a(f"v_mad_u32_u24 v18, v17, s{sT4}, v14")
    a(f"v_lshlrev_b32 v18, 4, v18")
    a(f"v_add_u32 v{VW+2}, {30720-2048}, v18")
    a(f"v_add_u32 v{VW+3}, {46080-3072}, v18")
    a(f"v_lshrrev_b32 v14, 2, v{vL}")
    a("v_mul_u32_u24 v14, 240, v14")
    a(f"v_mad_u32_u24 v14, v16, s{sT0}, v14")
    a(f"v_lshrrev_b32 v17, 4, v{vL}")
    a(f"v_xor_b32 v17, v17, v{vL}")
    a("v_bfe_u32 v17, v17, 1, 1")
    a(f"v_mad_u32_u24 v14, v17, s{sT4}, v14")
    a(f"v_add_lshl_u32 v{VW+4}, v14, s{sT1}, 4")
    a("s_waitcnt lgkmcnt(0)")
    stamp(11)
    chunk_x(sROT)
    chunk_w(sROT)
    ka_rest()
    stamp(12)
    def issue(step):
        d = SLOT if step % 3 else (-2 * SLOT & 0xffffffff)
        a(f"s_add_u32 s{sM}, s{sM}, {d}")
        a(f"s_add_u32 s{sMW}, s{sMW}, {d}")
        if step == 8: a(f"s_and_b32 s{sROT}, s{sROT}, 1")
        a(f"s_xor_b32 s{sSTEP}, s{sROT}, {step}")
        if "nodma" in EXP and step >= 2: return
        chunk_x(sSTEP); chunk_w(sSTEP)
    bn = [1]
    def bar(n, nxt=None):
        a(f"s_waitcnt vmcnt({n}) lgkmcnt(0)")
        if "bst" in EXP and "pre" in EXP: stamp(bn[0], True)
        a("s_barrier")
        if "bst" in EXP and "pre" not in EXP: stamp(bn[0], True)
        bn[0] += 1
        if nxt is not None: issue(nxt)
    def g_setup():
        srd_init([SX, SH, SWS, SDBG, SOUT])
        a(f"s_mul_i32 s{sT7}, s{sXCD}, 24")
        a(f"s_add_u32 s{sT7}, s{sT7}, s{sIDX}")
        a(f"s_lshr_b32 s{sQUAD}, s{sT7}, 1")
        a(f"s_add_u32 s{sQUAD}, s{sQUAD}, 64")
        a(f"s_and_b32 s{sT1}, s{sIDX}, 1")
        a(f"s_lshl_b32 s{sT1}, s{sT1}, 1")
        a("s_waitcnt lgkmcnt(0)")
        conv_setup(sJ, sT1)
        s3_setup()
        wo_prep(vL16)
    g_setup()
    fc_addr(46)
    f0_addr(44)
    zero_pads(sJ)
    conv_dfrag()
    issue(1)
    for c in range(0, 8):
        bar(9)
        if c == 0: stamp(1)
        issue(c + 2)
    a(f"s_mov_b32 s{sEPS}, 0x358637bd")
    a(f"s_sub_u32 s{sT1}, s{sCH}, s{sLC}")
    bar(9)
    cnt_load(SDBG, vZ, 47)
    cnt_load(SWS, 46, 48)
    cnt_load(SWS, 44, 45)
    h_dma(sJ, sT1)
    a("s_waitcnt vmcnt(5)")
    if "aspr" not in EXP: a("s_barrier")
    a("s_waitcnt vmcnt(2)")
    tag_get(vZ, 47, "landed")
    a(f"v_mov_b32 v50, {L_TAG}")
    a(f"v_mov_b32 v51, s{sTAG}")
    a("ds_write_b32 v50, v51")
    poll(46, 48, "landed")
    if "aspr" in EXP: a("s_barrier")
    stamp(2)
    a("s_waitcnt lgkmcnt(0)")
    a(f"v_mov_b32 v48, {L_CNT+8}")
    a(f"v_cmp_ne_u32 vcc, s{sTAG}, v45")
    a("s_cbranch_vccnz Lblate")
    u_dma(sJ, 4)
    for x in wo_list(vL16): a(x)
    x_loads()
    a("s_waitcnt vmcnt(27)")
    lds_arrive(48, 49)
    a("s_barrier")
    a("s_branch Lbu")
    a.label("Lblate")
    for x in wo_list(vL16): a(x)
    x_loads()
    a("s_barrier")
    poll(44, 45)
    u_dma(sJ, 4)
    a("s_waitcnt vmcnt(0)")
    lds_arrive(48, 49)
    a.label("Lbu")
    lds_wait(48, 49, 4)
    stamp(3)
    a("s_branch Lconv")

def ctype():
    a.label("Lctype")
    ka_rest()
    common_scalars()
    a(f"s_mov_b32 s{sQUAD}, s{sCI}")
    a(f"s_cmp_ge_u32 s{sW}, 6")
    a("s_cbranch_scc1 Lcaux")
    a(f"s_mov_b32 s{sTB}, s{sCI}")
    a(f"s_mov_b32 s{sCHB}, s{sW}")
    s0_loads()
    srd_init([SX, SWQ, SGW, SH, SWS, SDBG, SOUT])
    zero_pads(sW)
    a(f"s_mov_b32 s{sT1}, 0")
    conv_setup(sW, sT1)
    s3_setup()
    wo_prep(vL16)
    conv_dfrag()
    a(f"s_mul_i32 s{sT2}, s{sW}, 4608")
    a(f"s_add_u32 s{sT2}, s{sT2}, {L_S0C}")
    s0_addr(sT2)
    a("s_waitcnt vmcnt(0)")
    s0_compute()
    stamp(1)
    f0_off(sCG)
    arr_prep(50, 51)
    tag_get(vZ, 47, "none")
    arr_issue(50, 51, f"s{sCG}")
    arr_finish(50, 51, f"s{sCG}", 64)
    stamp(2)
    if "nopf" not in EXP:
        a(f"s_cmp_lg_u32 s{sW}, 4")
        a("s_cbranch_scc1 Lcnpf")
        a(f"v_lshlrev_b32 v53, 7, v{vL}")
        a(f"s_mul_i32 s{sT3}, s{sCI}, 7680")
        a(f"s_add_u32 s{sT3}, s{sT3}, {512*3840}")
        a(f"buffer_load_dword v131, v53, {srd(SWQ)}, s{sT3} offen")
        a.label("Lcnpf")
    a("s_branch Lcjoin")

    a.label("Lcaux")
    srd_init([SWO, SWS, SX, SH, SDBG, SOUT])
    a(f"s_sub_u32 s{sUD}, s{sW}, 6")
    a(f"s_lshl_b32 s{sVAR}, s{sCI}, 1")
    a(f"s_add_u32 s{sVAR}, s{sVAR}, s{sUD}")
    for i in range(4): a(f"v_mov_b32 v{52+i}, 0")
    a(f"v_lshlrev_b32 v15, 3, v{vL}")
    a(f"s_lshl_b32 s{sT0}, s{sVAR}, 9")
    a(f"s_add_u32 s{sT0}, s{sT0}, {WS_KV}")
    a("s_waitcnt lgkmcnt(0)")
    a(f"buffer_store_dwordx2 v[52:53], v15, {srd(SWS)}, s{sT0} offen sc1")
    a.label("Lcrp")
    sKQ, sF, sCGR = sCHL, sCH, sJ
    a(f"s_lshr_b32 s{sT0}, s{sVAR}, 2")
    a(f"s_and_b32 s{sCGR}, s{sVAR}, 3")
    a(f"s_mul_i32 s{sKQ}, s{sT0}, 52")
    a(f"s_lshr_b32 s{sKQ}, s{sKQ}, 8")
    a(f"s_mul_i32 s{sT1}, s{sKQ}, 5")
    a(f"s_sub_u32 s{sF}, s{sT0}, s{sT1}")
    a(f"s_mul_i32 s{sT0}, s{sF}, 20")
    a(f"s_cmp_eq_u32 s{sF}, 4")
    a(f"s_cselect_b32 s{sT0}, 16, s{sT0}")
    a(f"s_cselect_b32 s{sT2}, 16, 0")
    a(f"s_mul_i32 s{sT1}, s{sKQ}, 80")
    a(f"s_add_u32 s{sT0}, s{sT0}, s{sT1}")
    a(f"s_mul_i32 s{sT0}, s{sT0}, 1280")
    a(f"s_mul_i32 s{sT1}, s{sCGR}, 320")
    a(f"s_add_u32 s{sT0}, s{sT0}, s{sT1}")
    a(f"s_lshr_b32 s{sT3}, s{sVAR}, 7")
    a(f"s_lshl_b32 s{sT3}, s{sT3}, 1")
    a(f"s_add_u32 s{sT3}, s{sT3}, s{sUD}")
    a(f"s_mul_i32 s{sT3}, s{sT3}, 5120")
    a(f"s_add_u32 s{sT3}, s{sT3}, {L_RPC}")
    a("s_waitcnt lgkmcnt(0)")
    for i in range(5):
        a(f"v_add_u32 v14, {64*i}, v{vL}")
        div20(15, 16, 14)
        a("v_lshrrev_b32 v17, 2, v15")
        a(f"v_mad_u32_u24 v15, v17, s{sT2}, v15")
        a("v_mul_u32_u24 v15, 1280, v15")
        a("v_lshl_add_u32 v15, v16, 4, v15")
        a(f"s_add_u32 m0, s{sT3}, {1024*i}")
        a(f"buffer_load_dwordx4 v15, {srd(SWO)}, s{sT0} offen lds")
    a(f"s_add_u32 s{sVAR}, s{sVAR}, 128")
    a(f"s_cmp_lt_u32 s{sVAR}, 160")
    a("s_cbranch_scc1 Lcrp")
    a(f"s_and_b32 s{sVAR}, s{sVAR}, 127")
    a("s_waitcnt vmcnt(0)")
    a.label("Lcrp2")
    sKQ, sF, sCGR = sCHL, sCH, sJ
    a(f"s_lshr_b32 s{sT0}, s{sVAR}, 2")
    a(f"s_and_b32 s{sCGR}, s{sVAR}, 3")
    a(f"s_mul_i32 s{sKQ}, s{sT0}, 52")
    a(f"s_lshr_b32 s{sKQ}, s{sKQ}, 8")
    a(f"s_mul_i32 s{sT1}, s{sKQ}, 5")
    a(f"s_sub_u32 s{sF}, s{sT0}, s{sT1}")
    a(f"s_lshr_b32 s{sT3}, s{sVAR}, 7")
    a(f"s_lshl_b32 s{sT3}, s{sT3}, 1")
    a(f"s_add_u32 s{sT3}, s{sT3}, s{sUD}")
    a(f"s_mul_i32 s{sT3}, s{sT3}, 5120")
    a(f"s_add_u32 s{sT3}, s{sT3}, {L_RPC}")
    a(f"v_lshrrev_b32 v14, 5, v{vL}")
    a(f"v_bfe_u32 v15, v{vL}, 2, 2")
    a("v_lshl_add_u32 v14, v14, 2, v15")
    a("v_mul_u32_u24 v14, 320, v14")
    a(f"v_bfe_u32 v15, v{vL}, 4, 1")
    a("v_lshl_add_u32 v14, v15, 5, v14")
    a(f"v_and_b32 v15, 3, v{vL}")
    a("v_lshl_add_u32 v14, v15, 3, v14")
    a(f"v_add_u32 v14, s{sT3}, v14")
    a(f"s_mul_i32 s{sT0}, s{sKQ}, 5")
    a(f"s_add_u32 s{sT0}, s{sT0}, s{sF}")
    a(f"s_cmp_ge_u32 s{sKQ}, 3")
    a(f"s_cselect_b32 s{sT1}, 10, 0")
    a(f"s_cmp_ge_u32 s{sKQ}, 6")
    a(f"s_cselect_b32 s{sT1}, -15, s{sT1}")
    a(f"s_cselect_b32 s{sT2}, 25, 50")
    a(f"s_add_u32 s{sT0}, s{sT0}, s{sT1}")
    a(f"s_mul_i32 s{sT1}, s{sCGR}, 200")
    a(f"s_add_u32 s{sT0}, s{sT0}, s{sT1}")
    a(f"s_lshl_b32 s{sT0}, s{sT0}, 10")
    a(f"s_add_u32 s{sT0}, s{sT0}, {WS_WOP}")
    a(f"s_lshl_b32 s{sT2}, s{sT2}, 10")
    a(f"s_lshr_b32 s{sT4}, s{sKQ}, 1")
    a(f"s_mul_i32 s{sT4}, s{sT4}, 25")
    a(f"s_and_b32 s{sT5}, s{sKQ}, 1")
    a(f"s_mul_i32 s{sT5}, s{sT5}, 5")
    a(f"s_add_u32 s{sT4}, s{sT4}, s{sT5}")
    a(f"s_add_u32 s{sT4}, s{sT4}, s{sF}")
    a(f"s_add_u32 s{sT4}, s{sT4}, s{sT1}")
    a(f"s_add_u32 s{sT4}, s{sT4}, 115")
    a(f"s_lshl_b32 s{sT4}, s{sT4}, 10")
    a(f"s_add_u32 s{sT4}, s{sT4}, {WS_WOP}")
    a(f"v_lshlrev_b32 v15, 4, v{vL}")
    for t in range(5):
        for jh in range(2): a(f"ds_read_b64_tr_b16 {vr(32+4*t+2*jh,2)}, v14 offset:{jh*2560+t*64}")
    a("s_waitcnt lgkmcnt(0)")
    for t in range(4):
        a(f"buffer_store_dwordx4 {vr(32+4*t,4)}, v15, {srd(SWS)}, s{sT0} offen sc1")
        a(f"s_add_u32 s{sT0}, s{sT0}, s{sT2}")
    a(f"buffer_store_dwordx4 {vr(48,4)}, v15, {srd(SWS)}, s{sT4} offen sc1")
    a(f"s_add_u32 s{sVAR}, s{sVAR}, 128")
    a(f"s_cmp_lt_u32 s{sVAR}, 160")
    a("s_cbranch_scc1 Lcrp2")
    arr_prep(146, 147)
    a("v_mov_b32 v6, 0")
    a(f"s_lshl_b32 s{sT3}, s{sXCD}, 8")
    a(f"s_add_u32 s{sT3}, s{sT3}, {WS_FC}")
    tag_get(6, 7, "none")
    arr_issue(146, 147, f"s{sT3}")
    arr_finish(146, 147, f"s{sT3}", 16)
    stamp(1)
    a(f"s_lshl_b32 s{sT3}, s{sCI}, 1")
    a(f"s_add_u32 s{sT3}, s{sT3}, s{sUD}")
    a(f"s_mul_i32 s{sT3}, s{sT3}, {3*4096}")
    a(f"s_add_u32 s{sT3}, s{sT3}, {256*4096}")
    a(f"v_lshlrev_b32 v5, 7, v{vL}")
    a(f"buffer_load_dword v131, v5, {srd(SH)}, s{sT3} offen")
    a(f"s_add_u32 s{sT3}, s{sT3}, 4096")
    a(f"buffer_load_dword v130, v5, {srd(SH)}, s{sT3} offen")
    a(f"s_mov_b32 s{sT1}, 0")
    conv_setup(sW, sT1)
    s3_setup()
    wo_prep(vL16)
    conv_dfrag()
    stamp(2)

    a.label("Lcjoin")
    a(f"s_lshl_b32 s{sT1}, s{sCI}, 2")
    h_dma(sW, sT1)
    a(f"s_cmp_ge_u32 s{sW}, 4")
    a("s_cbranch_scc1 Lc7")
    srd_init([SGW])
    a(f"s_lshl_b32 s{sT0}, s{sCI}, 2")
    a(f"s_add_u32 s{sT0}, s{sT0}, s{sW}")
    a(f"v_and_b32 v53, 7, v{vL}")
    a(f"v_lshlrev_b32 v53, 4, v53")
    a(f"v_lshrrev_b32 v55, 3, v{vL}")
    a(f"v_mul_u32_u24 v54, 1280, v55")
    a("v_add_u32 v54, v54, v53")
    a(f"v_lshlrev_b32 v55, 2, v55")
    a(f"s_mul_i32 s{sT2}, s{sT0}, {8*1280}")
    for j in (8, 9, 0, 1, 2, 3, 4, 5, 6, 7): a(f"buffer_load_dwordx4 {vr(160+4*j,4)}, v54, {srd(SX)}, s{sT2} offen offset:{128*j}")
    for j in range(10): a(f"buffer_load_dwordx4 {vr(200+4*j,4)}, v53, {srd(SGW)}, 0 offen offset:{128*j}")
    a(f"s_lshl_b32 s{sT3}, s{sT0}, 5")
    a(f"s_add_u32 s{sT3}, s{sT3}, {WS_G}")
    a("v_mov_b32 v128, 0")
    a("v_mov_b32 v129, 0")
    a("s_waitcnt vmcnt(0)")
    for j in range(20):
        a(f"v_dot2c_f32_bf16 v128, v{160+2*j}, v{200+2*j}")
        a(f"v_dot2c_f32_bf16 v129, v{161+2*j}, v{201+2*j}")
    a("v_add_f32 v128, v128, v129")
    for ctl in ("quad_perm:[1,0,3,2]", "quad_perm:[2,3,0,1]", "row_half_mirror"):
        a(f"v_add_f32_dpp v128, v128, v128 {ctl} row_mask:0xf bank_mask:0xf")
    a(f"v_mul_f32 v128, 0xbfb8aa3b, v128")
    a(f"v_exp_f32 v128, v128")
    a(f"v_add_f32 v128, 1.0, v128")
    a(f"v_rcp_f32 v128, v128")
    a("s_mov_b32 exec_lo, 0x01010101")
    a("s_mov_b32 exec_hi, 0x01010101")
    a(f"buffer_store_dword v128, v55, {srd(SWS)}, s{sT3} offen sc1")
    a("s_mov_b64 exec, -1")
    a(f"s_and_b32 s{sT0}, s{sCI}, 7")
    a(f"s_lshl_b32 s{sT0}, s{sT0}, 8")
    a(f"s_add_u32 s{sT0}, s{sT0}, {WS_FK}")
    arr_prep(50, 51)
    a("s_waitcnt vmcnt(0)")
    arr_issue(50, 51, f"s{sT0}")
    arr_finish(50, 51, f"s{sT0}", 128, 0)
    a.label("Lc7")
    a(f"s_cmp_lg_u32 s{sW}, 7")
    a("s_cbranch_scc1 Lc8")
    fc_addr(46)
    f0_addr(44)
    poll(46, 47)
    poll(44, 45)
    a.label("Lc8")
    stamp(11)
    a("s_barrier")
    stamp(12)
    u_dma(sW, 2)
    a("s_waitcnt vmcnt(0) lgkmcnt(0)")
    a("s_barrier")
    stamp(3)
    a("s_setprio 2")
    a(f"s_cmp_lt_u32 s{sW}, 4")
    a("s_cbranch_scc1 Lconv2")
    a("s_setprio 0")
    for x in wo_list(vL16): a(x)
    x_loads()

def conv_body(tiles):
    seq = []
    for b in range(4):
        if tiles[0] == 0:
            for aa in range(8):
                for ti in (3, 2):
                    d = tiles[ti] - aa
                    if d >= 0:
                        seq.append((ti, ("H", 4 * aa + b, 0), ("U", 4 * d - b)))
                        if b == 0 and aa == 0: seq.append((ti, ("D",), ("U", 4 * d)))
                if aa == 5:
                    seq.append((1, ("H", b, 1), ("U", 4 - b)))
                    if b == 0: seq.append((1, ("D",), ("U", 4)))
                if aa == 6:
                    seq.append((0, ("H", b, 1), ("U", -b)))
                    if b == 0: seq.append((0, ("D",), ("U", 0)))
                    seq.append((1, ("H", 4 + b, 1), ("U", -b)))
        else:
            for aa in range(6):
                for ti in (3, 2, 1, 0):
                    d = tiles[ti] - aa
                    if d >= 0:
                        seq.append((ti, ("H", 4 * aa + b, 0), ("U", 4 * d - b)))
                        if b == 0 and aa == 0: seq.append((ti, ("D",), ("U", 4 * d)))
    assert len(seq) == 76
    last = {}; order = []
    for i, (ti, h, u) in enumerate(seq):
        for k in (u, h):
            if k[0] == "D": continue
            if k not in last: order.append(k)
            last[k] = i
    free = list(range(NPOOL))
    where = {}; done_at = {}
    nds = [0]; li = [0]
    def issue(maxn):
        n = 0
        while li[0] < len(order) and free and n < maxn:
            k = order[li[0]]; li[0] += 1
            bfr = free.pop(0); where[k] = bfr
            r = CPOOL + 4 * bfr
            if k[0] == "U":
                a(f"ds_read_b128 {vr(r,4)}, v{vUo if k[1]&1 else vUe} offset:{(k[1]+3)*512}")
                nds[0] += 1; n += 1
            else:
                a(f"ds_read_b64_tr_b16 {vr(r,2)}, v{vH} offset:{128*k[1]+32}")
                a(f"ds_read_b64_tr_b16 {vr(r+2,2)}, v{vH} offset:{128*k[1]}")
                nds[0] += 2; n += 2
            done_at[k] = nds[0]
    issue(10)
    started = set(); known = 0
    wl = wo_list(vL16); wi = 25 if "delayconv" in EXP else 0
    for i, (ti, h, u) in enumerate(seq):
        needn = max(done_at[k] for k in (u, h) if k[0] != "D")
        if needn > known:
            cnt = min(nds[0] - needn, 15)
            a(f"s_waitcnt lgkmcnt({cnt})")
            known = nds[0] - cnt
        d = vr(CACC + 16 * ti, 16)
        hb = CD if h[0] == "D" else CPOOL + 4 * where[h]
        a(f"v_mfma_f32_32x32x16_bf16 {d}, {vr(CPOOL+4*where[u],4)}, {vr(hb,4)}, {d if ti in started else '0'}")
        started.add(ti)
        for k in (u, h):
            if k[0] != "D" and last[k] == i: free.append(where[k])
        issue(2)

def conv_epi(var):
    runs = [[*range(0, 8)], [*range(8, 16)]] if var == 0 else [[*range(16)]]
    out_g = 7 if var == 0 else 15
    in_g = 8 if var == 0 else 0
    SPL = 96
    a(f"buffer_load_dword v{vFT}, v{vFQ}, {srd(SWS)}, 0 offen sc1")
    a("s_nop 7")
    a("s_nop 3")
    for step in (2, 1, 0):
        a("s_mov_b32 exec_lo, 0")
        a("s_mov_b32 exec_hi, 0x80000000")
        a(f"v_mov_b32 v{SPL+step}, v{CACC+4*out_g+step+1}")
        for run in runs:
            for g in reversed(run):
                src = f"v{CACC+4*(g-1)+step+1}" if g != run[0] else "0"
                a(f"v_mov_b32 v{CACC+4*g+step+1}, {src}")
        if step == 0:
            a(f"ds_write_b96 v{vCS}, {vr(SPL,3)}")
            a("v_mov_b32 v100, 1")
            a(f"ds_add_u32 v{vCN}, v100")
        a("s_mov_b64 exec, -1")
        for g in reversed(range(16)):
            r = CACC + 4 * g + step
            a(f"v_add_f32_dpp v{r}, v{r+1}, v{r} wave_ror:1 row_mask:0xf bank_mask:0xf")
    a(f"v_xor_b32 v101, 16, v{vCS}")
    a(f"v_lshl_add_u32 v101, v{vL}, 2, v101")
    PK = 104
    other = [k for k in range(8) if k != in_g // 2]
    for k in other: a(f"v_cvt_pk_bf16_f32 v{PK+k}, v{CACC+8*k}, v{CACC+8*k+4}")
    oh = 1 - in_g // 8
    a(f"ds_write_b128 v{vCW}, {vr(PK+4*oh,4)} offset:{1024*oh}")
    lds_wait(vCN, 100, 2)
    a("s_mov_b64 exec, 7")
    a("ds_read_b32 v100, v101")
    a("s_waitcnt lgkmcnt(0)")
    a(f"v_add_f32 v{CACC+4*in_g}, v{CACC+4*in_g}, v100")
    a("s_mov_b64 exec, -1")
    k = in_g // 2
    a(f"v_cvt_pk_bf16_f32 v{PK+k}, v{CACC+8*k}, v{CACC+8*k+4}")
    a(f"ds_write_b128 v{vCW}, {vr(PK+4*(1-oh),4)} offset:{1024*(1-oh)}")
    T0, T1 = (0, 6) if var == 0 else (2, 4)
    a(f"s_lshl_b32 s{sT5}, s{sCH}, 6")
    a(f"s_add_u32 s{sT4}, s{sT5}, {WS_Y + T0*8*40960}")
    a(f"s_add_u32 s{sT5}, s{sT5}, {WS_Y + T1*8*40960}")
    a(f"s_lshr_b32 s{sT6}, s{sCH}, 5")
    a(f"s_lshl_b32 s{sT6}, s{sT6}, 8")
    a(f"s_add_u32 s{sT6}, s{sT6}, {WS_FY + var*20*256}")

def conv():
    a.label("Lconv")
    a("s_setprio 1")
    a.label("Lconv2")
    a(f"s_cmp_eq_u32 s{sVAR}, 1")
    a("s_cbranch_scc1 Lconvy")
    conv_body([0, 1, 6, 7])
    stamp(4)
    conv_epi(0)
    a("s_branch Lconve")
    a.label("Lconvy")
    conv_body([2, 3, 4, 5])
    stamp(4)
    conv_epi(1)
    a.label("Lconve")
    for n in range(2):
        a(f"ds_read_b64_tr_b16 {vr(136+4*n,2)}, v{vCT} offset:{1024*n}")
        a(f"ds_read_b64_tr_b16 {vr(138+4*n,2)}, v{vCT} offset:{1024*n+64}")
    arr_prep(152, 153)
    for n in range(2):
        a(f"s_waitcnt lgkmcnt({2-2*n})")
        a(f"buffer_store_dwordx4 {vr(136+4*n,4)}, v{vCY}, {srd(SWS)}, s{sT5 if n else sT4} offen sc1")
    stamp(13)
    a(f"s_cmp_ge_u32 s{sW}, 4")
    a("s_cbranch_scc1 Ls3b")
    a("s_waitcnt vmcnt(0)")
    arr_issue(152, 153, f"s{sT6}")
    arr_finish(152, 153, f"s{sT6}", 32, 0)
    a("s_setprio 0")

def s3():
    a.label("Ls3")
    a.c("S3")
    PQ, RAW, KF = 32, 52, 116
    plan = []
    for i in range(4):
        for st in range(2):
            for jh in range(2):
                du0 = 4 * (i + st) + 2 * jh - 5 * i
                plan.append((i, st, jh, du0, 0 <= du0 <= 4, 0 <= du0 + 1 <= 4))
    sPD = sT2
    def fl(): a(f"buffer_load_dword v{vFT}, v{vFQ}, {srd(SWS)}, 0 offen sc1")
    def pql():
        for f in range(4): a(f"buffer_load_dwordx4 {vr(PQ+4*f,4)}, v{vL16}, {srd(SWS)}, s{sPQO} offen offset:{1024*f} sc1")
        a(f"buffer_load_dwordx4 {vr(PQ+16,4)}, v{vL16}, {srd(SWS)}, s{sT1} offen sc1")
    def pre():
        for (i, st, jh, du0, v0ok, v1ok) in plan:
            if v0ok != v1ok:
                for j in range(4): a(f"v_mov_b32 v{RAW+16*i+8*st+4*jh+j}, 0")
        a(f"s_add_u32 s{sT1}, s{sPQO}, 4096")
        a(f"s_add_u32 s{sT3}, s{sKVO}, {2*KVH}")
        a(f"s_mov_b32 s{sPD}, 0")
        a(f"s_mov_b32 s{sCNT}, 0x40000")
    wl = wo_list(vL16)
    for x in wl: a(x)
    a.label("Ls3x")
    x_loads()
    a("s_setprio 1")
    pre()
    a(f"s_mov_b32 s{sUD}, 0")
    a("s_branch Ls3lp")
    a.label("Ls3b")
    pre()
    a(f"s_mov_b32 s{sUD}, 2")
    a("s_waitcnt vmcnt(2)")
    a("s_branch Ls3ev")
    a.label("Ls3sl")
    a("s_sleep 2")
    a.label("Ls3lp")
    fl()
    a("s_waitcnt vmcnt(0)")
    a(f"s_cmp_eq_u32 s{sUD}, 0")
    a("s_cbranch_scc1 Ls3ev")
    a(f"s_sub_u32 s{sUD}, s{sUD}, 1")
    a(f"s_cmp_eq_u32 s{sUD}, 0")
    a("s_cbranch_scc1 Ls3af")
    arr_issue(152, 153, f"s{sT6}")
    a("s_branch Ls3ev")
    a.label("Ls3af")
    arr_finish(152, 153, f"s{sT6}", 32)
    a.label("Ls3ev")
    a(f"v_cmp_ne_u32 vcc, s{sTAG}, v{vFT}")
    a(f"s_sub_u32 s{sCNT}, s{sCNT}, 1")
    a("s_cbranch_scc1 Ls3go")
    a("s_cbranch_vccnz Ls3sl")
    a.label("Ls3go")
    stamp(6)
    pql()
    nload = [0] * 4
    for (i, st, jh, du0, v0ok, v1ok) in plan:
        if not (v0ok or v1ok): continue
        off = (i & 1) * KVH + du0 * 336
        part = v0ok != v1ok
        if part: a(f"s_mov_b32 exec_{'hi' if v0ok else 'lo'}, 0")
        a(f"buffer_load_dwordx4 {vr(RAW+16*i+8*st+4*jh,4)}, v{vKO if i&1 else vKE}, {srd(SWS)}, s{sT3 if i>>1 else sKVO} offen offset:{off} sc1")
        if part: a("s_mov_b64 exec, -1")
        nload[i] += 1
    a(f"s_cmp_lg_u32 s{sUD}, 2")
    a("s_cbranch_scc1 Ls3n2")
    a("s_waitcnt vmcnt(17)")
    arr_issue(152, 153, f"s{sT6}")
    a("s_branch Ls3n3")
    a.label("Ls3n2")
    a(f"buffer_load_dword v{vFT}, v{vFY}, {srd(SWS)}, 0 offen sc1")
    a.label("Ls3n3")
    a(f"buffer_load_dword v{vFT}, v{vFY}, {srd(SWS)}, 0 offen sc1")
    rem = sum(nload) + 2
    for i in range(4):
        rem -= nload[i]
        a(f"s_waitcnt vmcnt({rem})")
        kf = KF + 8 * (i & 1)
        for (i2, st, jh, du0, v0ok, v1ok) in plan:
            if i2 != i: continue
            for j in range(2):
                d = kf + 4 * st + 2 * jh + j; s = RAW + 16 * i + 8 * st + 4 * jh + 2 * j
                if v0ok or v1ok: a(f"v_cvt_pk_bf16_f32 v{d}, v{s}, v{s+1}")
                else: a(f"v_mov_b32 v{d}, 0")
        d = vr(RAW + 16 * i, 16)
        a(f"v_mfma_f32_32x32x16_bf16 {d}, {vr(kf,4)}, {vr(PQ+4*i,4)}, 0")
        a(f"v_mfma_f32_32x32x16_bf16 {d}, {vr(kf+4,4)}, {vr(PQ+4*i+4,4)}, {d}")
    OF = 132
    for i in range(4):
        D = RAW + 16 * i
        a(f"v_add_f32 v{D+12}, s{sEPS}, v{D+12}")
        a(f"v_rcp_f32 v{D+12}, v{D+12}")
        for j in range(8): a(f"v_mul_f32 v{D+j}, v{D+j}, v{D+12}")
        for j in range(4): a(f"v_cvt_pk_bf16_f32 v{OF+4*i+j}, v{D+2*j}, v{D+2*j+1}")
        a(f"ds_write_b128 v{vOW}, {vr(OF+4*i,4)} offset:{1024*i}")
        if i & 1 == 0:
            for j in range(4): a(f"v_mul_f32 v{D+8+j}, v{D+8+j}, v{D+12}")
        else:
            for j in range(4): a(f"v_fmac_f32 v{D-8+j}, v{D+8+j}, v{D+12}")
            for j in range(2): a(f"v_cvt_pk_bf16_f32 v{OF+16+2*(i>>1)+j}, v{D-8+2*j}, v{D-8+2*j+1}")
    a(f"ds_write_b128 v{vOW}, {vr(OF+16,4)} offset:4096")
    a(f"s_cmp_eq_u32 s{sUD}, 0")
    a("s_cbranch_scc1 Ls3n4")
    arr_finish(152, 153, f"s{sT6}", 32, 1)
    a.label("Ls3n4")
    a(f"s_mov_b32 s{sUD}, 1")
    a(f"s_cmp_ge_u32 s{sW}, 5")
    a("s_cbranch_scc1 Ls3y1")
    a("s_waitcnt vmcnt(0)")
    a(f"v_cmp_ne_u32 vcc, s{sTAG}, v{vFT}")
    a(f"s_mov_b32 m0, s{sYM}")
    a("s_cbranch_vccnz Ls3y0")
    a(f"buffer_load_dwordx4 v{vL16}, {srd(SWS)}, s{sYO} offen sc1 lds")
    a(f"buffer_load_dwordx4 v{vL16}, {srd(SWS)}, s{sYO} offen offset:1024 sc1 lds")
    a("s_branch Ls3y1")
    a.label("Ls3y0")
    a(f"s_mov_b32 s{sUD}, 0")
    a(f"buffer_load_dword v{vFT}, v{vFY}, {srd(SWS)}, 0 offen sc1")
    a.label("Ls3y1")
    if "nog3prio" not in EXP:
        a(f"s_cmp_ge_u32 s{sW}, 4")
        a("s_cbranch_scc1 Ls3y2")
        a("s_setprio 2")
        a.label("Ls3y2")
    a("s_waitcnt lgkmcnt(0)")
    a("s_barrier")
    stamp(7)
    a(f"buffer_load_dword v{vG}, v{vGO}, {srd(SWS)}, 0 offen sc1")
    NB = 8; POOL = 32; AP, AR = 64, 80
    def ord_(i): return (vPR, 1024 * i) if i < 15 else (vRR, 1024 * (i - 15))
    for i in range(NB):
        v, o = ord_(i); a(f"ds_read_b128 {vr(POOL+4*i,4)}, v{v} offset:{o}")
    XF = 96
    pre = [f"s_mov_b32 s{sT0}, 0xffff0000"]
    for n, xd in enumerate((vXD, vXD2)):
        for j in range(4):
            pre.append(f"v_lshlrev_b32 v{XF+8*n+2*j}, 16, v{xd+j}")
            pre.append(f"v_and_b32 v{XF+8*n+2*j+1}, s{sT0}, v{xd+j}")
    issued = NB
    log = list(range(NB))
    for i in range(25):
        pos = log.index(i)
        a(f"s_waitcnt lgkmcnt({min(len(log)-1-pos,15)})")
        d = vr(AP if i < 15 else AR, 16)
        a(f"v_mfma_f32_32x32x16_bf16 {d}, {vr(VWO+4*i,4)}, {vr(POOL+4*(i%NB),4)}, {'0' if i in (0,15) else d}")
        if issued < 25:
            v, o = ord_(issued); a(f"ds_read_b128 {vr(POOL+4*(issued%NB),4)}, v{v} offset:{o}"); log.append(issued); issued += 1
        if i < 12:
            for x in pre[3 * i:3 * i + 3]: a(x)
        if i == 14:
            a(f"s_cmp_eq_u32 s{sUD}, 1")
            a("s_cbranch_scc1 Ls3ny")
            poll(vFY, vFT, "issued")
            a(f"buffer_load_dwordx4 v{vL16}, {srd(SWS)}, s{sYO} offen sc1 lds")
            a(f"buffer_load_dwordx4 v{vL16}, {srd(SWS)}, s{sYO} offen offset:1024 sc1 lds")
            a.label("Ls3ny")
        if 19 <= i < 23:
            q = i - 19
            a(f"ds_write_b128 v{vPW+q}, {vr(AP+4*q,4)}"); log.append(-1)
            a(f"v_add_u32 v{vPW+q}, s{sRD}, v{vPW+q}")
    for q in range(4): a(f"ds_write_b128 v{vPW+q}, {vr(AR+4*q,4)}")
    a("s_waitcnt vmcnt(0) lgkmcnt(0)")
    a("s_barrier")
    stamp(8)
    def f_reads(n, R):
        np_ = 3 + n
        for p in range(np_):
            a(f"ds_read_b128 {vr(R+8*p,4)}, v{vPA} offset:{49152*n+4096*p}")
            a(f"ds_read_b128 {vr(R+8*p+4,4)}, v{vPB} offset:{49152*n+4096*p}")
        a(f"ds_read_b64_tr_b16 {vr(R+32,2)}, v{vYT} offset:{8192*n}")
        a(f"ds_read_b64_tr_b16 {vr(R+34,2)}, v{vYT} offset:{8192*n+256}")
    def f_math(n, R, after):
        np_ = 3 + n
        X = XF + 8 * n; YF = R + 36
        a(f"s_waitcnt lgkmcnt({min(after+2*np_+2-4,15)})")
        for j in range(4): a(f"v_pk_add_f32 {vr(R+2*j,2)}, {vr(R+2*j,2)}, {vr(R+8+2*j,2)}")
        a(f"s_waitcnt lgkmcnt({after+2})")
        for p in range(2, np_):
            for j in range(4): a(f"v_pk_add_f32 {vr(R+2*j,2)}, {vr(R+2*j,2)}, {vr(R+8*p+2*j,2)}")
        a(f"s_waitcnt lgkmcnt({after})")
        for j in range(4):
            a(f"v_lshlrev_b32 v{YF+2*j}, 16, v{R+32+j}")
            a(f"v_and_b32 v{YF+2*j+1}, s{sT0}, v{R+32+j}")
        for j in range(4): a(f"v_pk_mul_f32 {vr(X+2*j,2)}, {vr(X+2*j,2)}, {vr(YF+2*j,2)}")
        for j in range(4): a(f"v_pk_add_f32 {vr(R+2*j,2)}, {vr(R+2*j,2)}, {vr(X+2*j,2)} neg_lo:[0,1] neg_hi:[0,1]")
        for j in range(4): a(f"v_pk_fma_f32 {vr(R+2*j,2)}, {vr(R+2*j,2)}, {vr(vG,2)}, {vr(X+2*j,2)} op_sel_hi:[1,0,1]")
        for j in range(4): a(f"v_cvt_pk_bf16_f32 v{R+32+j}, v{R+2*j}, v{R+2*j+1}")
        a(f"buffer_store_dwordx4 {vr(R+32,4)}, v{vOUT}, {srd(SOUT)}, s{sXOFF} offen offset:{256*n}" + (" sc1" if "osc1" in EXP else " nt" if "ont" in EXP else " sc0 sc1" if "osys" in EXP else ""))
    f_reads(0, 32)
    a(f"s_cmp_lt_u32 s{sW}, 2")
    a("s_cbranch_scc1 Lfin2")
    f_math(0, 32, 0)
    a("s_branch Lfin")
    a.label("Lfin2")
    f_reads(1, 112)
    f_math(0, 32, 10)
    f_math(1, 112, 0)
    a.label("Lfin")
    if DIAG:
        a("s_waitcnt vmcnt(0)")
        stamp(9)
        a(f"s_memtime vcc")
        a("s_waitcnt lgkmcnt(0)")
        a(f"s_mov_b32 s{STS+15}, vcc_lo")
        a("v_mov_b32 v2, 0")
        for i in range(16): a(f"v_writelane_b32 v2, s{STS+i}, {i}")
        a(f"v_lshlrev_b32 v3, 2, v{vL}")
        a(f"s_lshl_b32 s{sT0}, s{sBID}, 3")
        a(f"s_add_u32 s{sT0}, s{sT0}, s{sW}")
        a(f"s_lshl_b32 s{sT0}, s{sT0}, 6")
        a(f"s_add_u32 s{sT0}, s{sT0}, {WS_TS}")
        a("s_mov_b64 exec, 0xffff")
        a(f"buffer_store_dword v2, v3, {srd(SWS)}, s{sT0} offen")
        sp = [e for e in EXP if e.startswith("spin")]
        if sp:
            si, wv, lo, hi = [int(x) for x in sp[0][4:].split("_")]
            a(f"s_cmp_lg_u32 s{sW}, {wv}")
            a("s_cbranch_scc1 Lend")
            a(f"s_cmp_lt_u32 s{sIDX}, {lo}")
            a("s_cbranch_scc1 Lend")
            a(f"s_cmp_ge_u32 s{sIDX}, {hi}")
            a("s_cbranch_scc1 Lend")
            if si < 16:
                if "neg" in EXP: a(f"s_sub_u32 s{sT0}, s{sTAG}, s{STS+si}")
                else: a(f"s_sub_u32 s{sT0}, s{STS+si}, s{sTAG}")
                a(f"s_add_u32 s{sT0}, s{sT0}, 5000")
                a(f"s_and_b32 s{sT0}, s{sT0}, 0x7ffffff")
                a(f"s_min_u32 s{sT0}, s{sT0}, 20000")
            else: a(f"s_mov_b32 s{sT0}, 5000")
            a.label("Lspin")
            a("s_memrealtime vcc")
            a("s_waitcnt lgkmcnt(0)")
            a(f"s_sub_u32 s{sT1}, vcc_lo, s{sTAG}")
            a(f"s_and_b32 s{sT1}, s{sT1}, 0x7ffffff")
            a(f"s_cmp_lt_u32 s{sT1}, s{sT0}")
            a("s_cbranch_scc1 Lspin")
        if "dbgts" in EXP:
            a(f"s_cmp_lg_u32 s{sW}, {int([e for e in EXP if e.startswith('wv')][0][2:])}")
            a("s_cbranch_scc1 Lend")
            a(f"s_cmp_ge_u32 s{sIDX}, 16")
            a("s_cbranch_scc1 Lend")
            a("v_cmp_ne_u32 vcc, 0, v2")
            a(f"v_subrev_u32 v2, s{sTAG}, v2")
            a("v_add_u32 v2, 100, v2")
            a("v_and_b32 v2, 0x7ffffff, v2")
            a("v_cndmask_b32 v2, 0, v2, vcc")
            a("s_mov_b64 exec, 0x3fff")
            a(f"buffer_atomic_umax v2, v3, {srd(SDBG)}, 0 offen offset:4 sc1")
    a.label("Lend")
    a("s_endpgm")

entry(); bwave(); awave(); kva(); qa(); ctype(); conv(); s3()

ref = open("cdna_kernels/%s.s.ref" % NAME).read()
head = [l for l in ref.split("\n") if l.startswith(";") and "@launch" not in l]
out = "\n".join(head) + "\n"
out += "; @launch grid=(256,1,1) block=(512,1,1) lds=%d\n" % LDS_BYTES
out += '.amdgcn_target "amdgcn-amd-amdhsa--gfx950"\n.text\n.globl %s_kernel\n.p2align 8\n.type %s_kernel,@function\n%s_kernel:\n' % (NAME, NAME, NAME)
import re
body = a.text()
ntset = []
if "nt" in EXP: ntset += [SK, SV, SH, SWO, SSK, SGW]
if "ntx" in EXP: ntset += [SX, SWQ]
for s_ in ntset:
    body = re.sub(r"(buffer_load_dword\S* [^\n]*%s, [^\n]*?offen(?: offset:\d+)?)( lds)?\n" % re.escape(srd(s_)), lambda m: m.group(1) + " nt" + (m.group(2) or "") + "\n", body)
out += body
out += '''.section .rodata,"a"
.p2align 6
.amdhsa_kernel %s_kernel
  .amdhsa_next_free_vgpr 256
  .amdhsa_next_free_sgpr 102
  .amdhsa_accum_offset 256
  .amdhsa_group_segment_fixed_size 0
  .amdhsa_kernarg_size 104
  .amdhsa_user_sgpr_count 2
  .amdhsa_user_sgpr_kernarg_segment_ptr 1
  .amdhsa_system_sgpr_workgroup_id_x 1
.end_amdhsa_kernel
''' % NAME
dst = [x for x in sys.argv[1:] if not x.startswith("--")]
open(dst[0] if dst else "cdna_kernels/%s.s" % NAME, "w").write(out)
```

```python
import sys
from asmlib import Asm, vr, sr

NAME = "gated_mix__linear_attn_block__ssm_conv_h3__prompt"
DIAG = "--diag" in sys.argv
EXP = [x[6:] for x in sys.argv if x.startswith("--exp=")]

WS_U = 0
WS_PQ = 0x280000
WS_Y = 0x500000
WS_WOP = 0x780000
WS_KV = 0x850000
WS_C = 0x860000
CDELTA = 320 * 256
WS_FK = WS_C
WS_FY = WS_C + 8 * 256
WS_FQ = WS_C + 64 * 256
WS_G = 0x88C000
WS_TS = 0x890000
WS_SIZE = 0x900000
KVH = 1792

NQ = int(([e[2:] for e in EXP if e.startswith("nq")] + ["0"])[0])
NU = 64 + 64 * NQ
SLOT = 36864
L_OFR = 36864
L_KVS = 77824
L_YST = 92160
L_PART = 77824
L_UB = 110592
L_UD = L_UB + 2048
L_HB = 129024
HSTR = 4224
L_SP = 145920
L_CNT = 146048
L_TAG = 146112
L_YT = 146176
L_S0C = 0
L_RPC = 49152
L_GW = L_YT + 10240
LDS_BYTES = L_GW + 2048

SX, SWQ, SWO, SK, SV, SSK, SH, SGW, SOUT, SDBG, SWS = [4 + 4 * i for i in range(11)]
SD = 48
sW, sXCD, sIDX, sRP, sCP, sTAG, sCNT = range(50, 57)
sRB, sCG, sQUAD, sCHL, sLC, sVAR, sCH, sJ, sUD = range(57, 66)
sT0, sT1, sT2, sT3, sT4, sT5, sT6, sT7 = range(66, 74)
sLOG = 74
sCI = 76
sDV = 77
STS = 80
sXOFF, sPQO, sKVO, sTB, sYO, sYM = 96, 97, 98, 99, 100, 101
sCHB = 65
sRD = 3
sWOO = 2
sEPS = 79
sBID = 78
def srd(b): return sr(b, 4)

vL = 0
VWO = 156
vL16, vOW, vPR, vRR, vPW = 1, 2, 3, 4, 5
vKE, vKO, vFK, vFY, vZ, vOUT, vPA, vPB, vYT, vFT, vGO = 9, 10, 11, 12, 13, 14, 15, 16, 17, 18, 19
vXD, vG, vXD2 = 20, 24, 28
vFQ, vFE = 27, 25

a = Asm()
BST = [None]
def stamp(i, force=False):
    if "bst" in EXP and not force and i not in (0, 10): return
    if DIAG:
        a(f"{'s_memtime' if 'cyc' in EXP else 's_memrealtime'} vcc")
        a("s_waitcnt lgkmcnt(0)")
        a(f"s_mov_b32 s{STS+i}, vcc_lo")

def poll(vaddr, vdst, state="none", sleep=2, S=None):
    L = a.newlabel("Lpoll"); D = a.newlabel("Lpd")
    if state != "none":
        if state == "issued": a("s_waitcnt vmcnt(0)")
        a(f"v_cmp_ne_u32 vcc, s{sTAG}, v{vdst}")
        a(f"s_cbranch_vccz {D}")
    a(f"s_mov_b32 s{sCNT}, 0x20000")
    a.label(L)
    a(f"buffer_load_dword v{vdst}, v{vaddr}, {srd(S or SWS)}, 0 offen sc1")
    a("s_waitcnt vmcnt(0)")
    a(f"v_cmp_ne_u32 vcc, s{sTAG}, v{vdst}")
    a(f"s_cbranch_vccz {D}")
    if sleep: a(f"s_sleep {sleep}")
    a(f"s_sub_u32 s{sCNT}, s{sCNT}, 1")
    a(f"s_cbranch_scc0 {L}")
    a.label(D)

def cnt_load(S, vaddr, vdst):
    a(f"buffer_load_dword v{vdst}, v{vaddr}, {srd(S)}, 0 offen sc1")

def tag_get(vz, vdst, state="issued"):
    L = a.newlabel("Ltag"); D = a.newlabel("Ltd")
    if state != "none":
        if state == "issued": a("s_waitcnt vmcnt(0)")
        a(f"v_readfirstlane_b32 s{sTAG}, v{vdst}")
        a(f"s_cmp_lg_u32 s{sTAG}, 0")
        a(f"s_cbranch_scc1 {D}")
    a(f"s_mov_b32 s{sCNT}, 0x20000")
    a.label(L)
    a(f"buffer_load_dword v{vdst}, v{vz}, {srd(SDBG)}, 0 offen sc1")
    a("s_waitcnt vmcnt(0)")
    a(f"v_readfirstlane_b32 s{sTAG}, v{vdst}")
    a(f"s_cmp_lg_u32 s{sTAG}, 0")
    a(f"s_cbranch_scc1 {D}")
    a("s_sleep 2")
    a(f"s_sub_u32 s{sCNT}, s{sCNT}, 1")
    a(f"s_cbranch_scc0 {L}")
    a.label(D)

def tag_lds(vtmp):
    a(f"v_mov_b32 v{vtmp}, {L_TAG}")
    a(f"ds_read_b32 v{vtmp}, v{vtmp}")
    a("s_waitcnt lgkmcnt(0)")
    a(f"v_readfirstlane_b32 s{sTAG}, v{vtmp}")

def arr_prep(vt0, vt1):
    a(f"v_mov_b32 v{vt0}, {CDELTA}")
    a(f"v_mov_b32 v{vt1}, 1")
def arr_issue(vt0, vt1, soff):
    a("s_mov_b64 exec, 1")
    a(f"buffer_atomic_add v{vt1}, v{vt0}, {srd(SWS)}, {soff} offen sc0 sc1")
    a("s_mov_b64 exec, -1")
def arr_finish(vt0, vt1, soff, n, wait=0):
    D = a.newlabel("Lal")
    a(f"s_waitcnt vmcnt({wait})")
    a(f"v_readfirstlane_b32 s{sT7}, v{vt1}")
    a(f"s_cmp_lg_u32 s{sT7}, {n-1}")
    a(f"s_cbranch_scc1 {D}")
    flag_store(vt0, vt1, soff)
    a.label(D)
def flag_store(vt0, vt1, soff):
    a(f"v_mov_b32 v{vt0}, 0")
    a(f"v_mov_b32 v{vt1}, s{sTAG}")
    a("s_mov_b64 exec, 1")
    a(f"buffer_store_dword v{vt1}, v{vt0}, {srd(SWS)}, {soff} offen sc1")
    a("s_mov_b64 exec, -1")

def darr_issue(vz, v1, off):
    a(f"v_mov_b32 v{v1}, 1")
    a("s_mov_b64 exec, 1")
    a(f"buffer_atomic_add v{v1}, v{vz}, {srd(SDBG)}, 0 offen offset:{off} sc0 sc1")
    a("s_mov_b64 exec, -1")
def darr_finish(vz, v1, off, n, wait=0):
    D = a.newlabel("Lda")
    a(f"s_waitcnt vmcnt({wait})")
    a(f"v_readfirstlane_b32 s{sT7}, v{v1}")
    a(f"s_cmp_lg_u32 s{sT7}, {n-1}")
    a(f"s_cbranch_scc1 {D}")
    a(f"v_mov_b32 v{v1}, 1")
    a("s_mov_b64 exec, 1")
    a(f"buffer_store_dword v{v1}, v{vz}, {srd(SDBG)}, 0 offen offset:{128+off} sc1")
    a("s_mov_b64 exec, -1")
    a.label(D)

def lds_arrive(vaddr, vtmp):
    a(f"v_mov_b32 v{vtmp}, 1")
    a("s_mov_b64 exec, 1")
    a(f"ds_add_u32 v{vaddr}, v{vtmp}")
    a("s_mov_b64 exec, -1")
def lds_wait(vaddr, vtmp, target):
    L = a.newlabel("Lls"); D = a.newlabel("Lld")
    a(f"s_mov_b32 s{sCNT}, 0x400000")
    a.label(L)
    a(f"ds_read_b32 v{vtmp}, v{vaddr}")
    a("s_waitcnt lgkmcnt(0)")
    a(f"v_readfirstlane_b32 s{sT7}, v{vtmp}")
    a(f"s_cmp_ge_u32 s{sT7}, {target}")
    a(f"s_cbranch_scc1 {D}")
    a(f"s_sub_u32 s{sCNT}, s{sCNT}, 1")
    a(f"s_cbranch_scc0 {L}")
    a.label(D)

def div20(vq, vr_, vp):
    a(f"v_mul_u32_u24 v{vq}, 3277, v{vp}")
    a(f"v_lshrrev_b32 v{vq}, 16, v{vq}")
    a(f"v_mul_u32_u24 v{vr_}, 20, v{vq}")
    a(f"v_sub_u32 v{vr_}, v{vp}, v{vr_}")
for p in range(1000): assert (p * 3277) >> 16 == p // 20

SIZES = {SX: 2621440, SWQ: 2457600, SWO: 819200, SK: 2621440, SV: 2621440, SSK: 5120, SH: 2621440, SGW: 1280, SOUT: 2621440, SDBG: 256, SWS: WS_SIZE}
def srd_init(lst):
    for s in lst:
        a(f"s_mov_b32 s{s+2}, {SIZES[s]}")
        a(f"s_mov_b32 s{s+3}, 0x20000")
def ka_rest():
    if "ka1" not in EXP: return
    for s, off in ((SK, 32), (SV, 40), (SSK, 48), (SWS, 96), (SDBG, 88), (SH, 56), (SWO, 16), (SGW, 72), (SOUT, 80), (SD, 64)):
        a(f"s_load_dwordx2 {sr(s,2)}, s[0:1], {off}")
def common_scalars():
    a(f"s_mov_b32 s{sLOG}, 0x3fb8aa3b")
    a(f"s_mov_b32 s{sLOG+1}, 0x3fb8aa3b")
    a(f"s_mov_b32 s{sEPS}, 0x358637bd")
    a(f"s_and_b32 s{sT0}, s{sIDX}, 7")
    a(f"s_lshl_b32 s{sCI}, s{sXCD}, 3")
    a(f"s_add_u32 s{sCI}, s{sCI}, s{sT0}")

def entry():
    a.label("Lentry")
    a(f"s_cmp_ge_u32 s2, 256")
    a("s_cbranch_scc1 Lend")
    if DIAG: a(f"s_memrealtime {sr(sT6,2)}")
    a(f"s_getpc_b64 {sr(sT0,2)}")
    a.label("Lpcref")
    a(f"s_lshr_b32 s{sIDX}, s2, 3")
    a(f"s_mul_i32 s{sT2}, s{sIDX}, 9")
    a("v_min_u32 v1, 8, v0")
    a(f"v_add_lshl_u32 v1, v1, s{sT2}, 7")
    a("v_min_u32 v1, Lend-Lpcref, v1")
    a(f"global_load_dword v255, v1, {sr(sT0,2)}")
    for s, off in ((SX, 0), (SWQ, 8), (SK, 32), (SV, 40), (SSK, 48), (SWS, 96), (SDBG, 88), (SH, 56), (SWO, 16), (SGW, 72), (SOUT, 80), (SD, 64)):
        if "ka1" in EXP and off >= 16: continue
        a(f"s_load_dwordx2 {sr(s,2)}, s[0:1], {off}")
    a("v_lshrrev_b32 v1, 6, v0")
    a(f"v_and_b32 v{vL}, 63, v0")
    a(f"v_readfirstlane_b32 s{sW}, v1")
    a(f"s_and_b32 s{sXCD}, s2, 7")
    a(f"s_and_b32 s{sRP}, s2, 3")
    a(f"s_bfe_u32 s{sCP}, s2, 0x10002")
    a(f"s_mov_b32 s{sBID}, s2")
    a(f"s_mov_b32 s{sTAG}, 1")
    a(f"s_and_b32 s{sT0}, s{sIDX}, 3")
    a(f"s_lshl_b32 s{sRB}, s{sRP}, 2")
    a(f"s_add_u32 s{sRB}, s{sRB}, s{sT0}")
    if DIAG:
        for i in range(16): a(f"s_mov_b32 s{STS+i}, 0")
        stamp(0)
        a(f"s_mov_b32 s{STS+10}, s{sT6}")
        a(f"s_memtime vcc")
        a("s_waitcnt lgkmcnt(0)")
        a(f"s_mov_b32 s{STS+14}, vcc_lo")
    a(f"s_cmp_ge_u32 s{sIDX}, 24")
    a("s_cbranch_scc1 Lctype")
    a(f"s_cmp_lt_u32 s{sW}, 4")
    a("s_cbranch_scc1 Lawave")

def s3_setup(split=None):
    a.c("S3 setup")
    sR3, sC3 = sT2, sT3
    a(f"s_lshr_b32 s{sT0}, s{sIDX}, 1")
    a(f"s_lshl_b32 s{sR3}, s{sRP}, 4")
    a(f"s_add_u32 s{sR3}, s{sR3}, s{sT0}")
    a(f"s_and_b32 s{sT0}, s{sIDX}, 1")
    a(f"s_lshl_b32 s{sC3}, s{sCP}, 1")
    a(f"s_add_u32 s{sC3}, s{sC3}, s{sT0}")
    a(f"v_lshlrev_b32 v{vL16}, 4, v{vL}")
    a(f"v_mov_b32 v{vZ}, 0")
    a(f"v_lshrrev_b32 v24, 4, v{vL}")
    a(f"v_and_b32 v25, 3, v{vL}")
    a(f"v_bfe_u32 v26, v{vL}, 2, 2")
    a(f"s_and_b32 s{sT0}, s{sW}, 1")
    a(f"s_lshl_b32 s{sT1}, s{sT0}, 4")
    a("v_lshl_add_u32 v27, v24, 2, v25")
    a(f"v_add_u32 v27, s{sT1}, v27")
    a(f"v_mul_u32_u24 v{vOUT}, 1280, v27")
    a(f"v_lshl_add_u32 v{vOUT}, v26, 4, v{vOUT}")
    a(f"s_mul_i32 s{sXOFF}, s{sR3}, 40960")
    a(f"s_mul_i32 s{sT4}, s{sC3}, 320")
    a(f"s_add_u32 s{sYO}, s{sXOFF}, {WS_Y}")
    a(f"s_add_u32 s{sXOFF}, s{sXOFF}, s{sT4}")
    a(f"s_lshr_b32 s{sT4}, s{sW}, 1")
    a(f"s_lshl_b32 s{sT5}, s{sT4}, 6")
    a(f"s_add_u32 s{sXOFF}, s{sXOFF}, s{sT5}")
    a(f"s_lshl_b32 s{sT5}, s{sR3}, 7")
    a(f"s_add_u32 s{sT5}, s{sT5}, {WS_G}")
    a(f"v_lshlrev_b32 v{vGO}, 2, v27")
    a(f"v_add_u32 v{vGO}, s{sT5}, v{vGO}")
    a(f"v_bfe_u32 v{vPA}, v27, 1, 1")
    a(f"v_and_b32 v{vPB}, 1, v27")
    a(f"v_lshl_or_b32 v{vPA}, v{vPB}, 1, v{vPA}")
    a(f"v_and_or_b32 v{vPA}, v27, 4, v{vPA}")
    a(f"v_lshlrev_b32 v{vPB}, 1, v26")
    a(f"v_xor_b32 v{vPA}, v{vPA}, v{vPB}")
    a(f"v_lshlrev_b32 v{vPA}, 4, v{vPA}")
    a(f"v_lshl_add_u32 v{vPA}, v27, 7, v{vPA}")
    a(f"s_mul_i32 s{sT5}, s{sT4}, 12288")
    a(f"s_add_u32 s{sT5}, s{sT5}, {L_PART}")
    a(f"v_add_u32 v{vPA}, s{sT5}, v{vPA}")
    a(f"v_xor_b32 v{vPB}, 16, v{vPA}")
    a(f"v_lshl_add_u32 v{vYT}, v25, 3, v26")
    a(f"v_lshlrev_b32 v{vYT}, 6, v{vYT}")
    a(f"v_lshl_add_u32 v{vYT}, v24, 3, v{vYT}")
    a(f"s_lshl_b32 s{sT4}, s{sT4}, 11")
    a(f"s_lshl_b32 s{sT1}, s{sT1}, 1")
    a(f"s_add_u32 s{sT4}, s{sT4}, s{sT1}")
    a(f"s_add_u32 s{sT4}, s{sT4}, {L_YT}")
    a(f"v_add_u32 v{vYT}, s{sT4}, v{vYT}")
    if split: split(0)
    a(f"v_and_b32 v24, 31, v{vL}")
    a(f"v_lshrrev_b32 v25, 5, v{vL}")
    a(f"v_bfe_u32 v{vPW}, v24, 1, 1")
    a("v_and_b32 v26, 1, v24")
    a(f"v_lshl_or_b32 v{vPW}, v26, 1, v{vPW}")
    a(f"v_and_or_b32 v{vPW}, v24, 4, v{vPW}")
    a(f"v_xor_b32 v{vPW}, v{vPW}, v25")
    a(f"v_lshlrev_b32 v{vPW}, 4, v{vPW}")
    a(f"v_lshl_add_u32 v{vPW}, v24, 7, v{vPW}")
    a(f"s_lshl_b32 s{sT4}, s{sT0}, 12")
    a(f"s_add_u32 s{sT5}, s{sT5}, s{sT4}")
    a(f"v_add_u32 v{vPW}, s{sT5}, v{vPW}")
    for q in range(1, 4): a(f"v_xor_b32 v{vPW+q}, {32*q}, v{vPW}")
    a(f"s_mul_i32 s{sT4}, s{sW}, 12288")
    a(f"s_add_u32 s{sT4}, s{sT4}, {L_PART+8192}")
    a(f"s_lshl_b32 s{sT1}, s{sW}, 12")
    a(f"s_add_u32 s{sT1}, s{sT1}, {L_PART+49152-16384}")
    a(f"s_cmp_lt_u32 s{sW}, 4")
    a(f"s_cselect_b32 s{sT4}, s{sT4}, s{sT1}")
    a(f"s_sub_u32 s{sRD}, s{sT4}, s{sT5}")
    a(f"s_sub_u32 s{sT1}, s{sW}, 4")
    a(f"s_cmp_lt_u32 s{sW}, 4")
    a(f"s_cselect_b32 s{sT1}, 3, s{sT1}")
    a(f"s_mul_i32 s{sT1}, s{sT1}, {10*1024}")
    a(f"s_add_u32 s{sT1}, s{sT1}, {L_OFR}")
    a(f"v_add_u32 v{vRR}, s{sT1}, v{vL16}")
    a(f"s_mul_i32 s{sT1}, s{sT0}, {15*1024}")
    a(f"s_add_u32 s{sT1}, s{sT1}, {L_OFR}")
    a(f"v_add_u32 v{vPR}, s{sT1}, v{vL16}")
    a(f"s_mul_i32 s{sT1}, s{sW}, 5120")
    a(f"s_add_u32 s{sT4}, s{sT1}, {L_OFR}")
    a(f"v_add_u32 v{vOW}, s{sT4}, v{vL16}")
    a(f"s_add_u32 s{sPQO}, s{sYO}, s{sT1}")
    a(f"s_add_u32 s{sPQO}, s{sPQO}, {(WS_PQ-WS_Y)&0xffffffff}")
    if split: split(1)
    a("v_mul_u32_u24 v25, 336, v25")
    a("v_min_u32 v26, 20, v24")
    a("v_lshl_add_u32 v26, v26, 4, v25")
    a("v_lshrrev_b32 v27, 2, v24")
    a(f"v_mov_b32 v{vFT}, 0x7f000000")
    a("v_cmp_eq_u32 vcc, 5, v27")
    a(f"v_subrev_u32 v{vKO}, 4, v24")
    a(f"v_lshl_add_u32 v{vKO}, v{vKO}, 4, v25")
    a(f"v_cndmask_b32 v{vKE}, v26, v{vFT}, vcc")
    a(f"v_cndmask_b32 v{vKO}, v26, v{vKO}, vcc")
    a("v_cmp_eq_u32 vcc, 4, v27")
    a(f"s_mul_i32 s{sKVO}, s{sW}, {4*KVH}")
    a(f"s_add_u32 s{sKVO}, s{sKVO}, {WS_KV}")
    a(f"v_cndmask_b32 v{vKO}, v{vKO}, v{vFT}, vcc")
    a(f"s_lshl_b32 s{sT1}, s{sW}, 8")
    a(f"s_add_u32 s{sT1}, s{sT1}, {WS_FK}")
    a(f"v_mov_b32 v{vFK}, s{sT1}")
    a(f"s_lshr_b32 s{sT1}, s{sR3}, 1")
    a(f"s_lshl_b32 s{sT1}, s{sT1}, 3")
    a(f"s_add_u32 s{sT1}, s{sT1}, s{sW}")
    a(f"s_lshl_b32 s{sT1}, s{sT1}, 8")
    a(f"s_add_u32 s{sT1}, s{sT1}, {WS_FQ}")
    a(f"v_mov_b32 v{vFQ}, s{sT1}")
    a(f"v_writelane_b32 v{vFK}, s{sT1}, 0")
    a(f"s_lshr_b32 s{sT1}, s{sR3}, 3")
    a(f"s_add_u32 s{sT1}, s{sT1}, 2")
    a(f"s_bfe_u32 s{sT1}, s{sT1}, 0x10002")
    a(f"s_mul_i32 s{sT1}, s{sT1}, 20")
    a(f"s_mul_i32 s{sT4}, s{sC3}, 5")
    a(f"s_min_u32 s{sT5}, s{sW}, 4")
    a(f"s_add_u32 s{sT4}, s{sT4}, s{sT5}")
    a(f"s_add_u32 s{sT1}, s{sT1}, s{sT4}")
    a(f"s_lshl_b32 s{sT1}, s{sT1}, 8")
    a(f"s_add_u32 s{sT1}, s{sT1}, {WS_FY}")
    a(f"v_mov_b32 v{vFY}, s{sT1}")
    a(f"s_lshl_b32 s{sT4}, s{sT4}, 11")
    a(f"s_add_u32 s{sYO}, s{sYO}, s{sT4}")
    a(f"s_lshl_b32 s{sYM}, s{sT5}, 11")
    a(f"s_add_u32 s{sYM}, s{sYM}, {L_YT}")

def x_loads():
    a(f"buffer_load_dwordx4 {vr(vXD,4)}, v{vOUT}, {srd(SX)}, s{sXOFF} offen")
    a(f"s_cmp_lt_u32 s{sW}, 2")
    a("s_cselect_b64 exec, -1, 1")
    a(f"buffer_load_dwordx4 {vr(vXD2,4)}, v{vOUT}, {srd(SX)}, s{sXOFF} offen offset:256")
    a("s_mov_b64 exec, -1")

def wo_prep(vtmp):
    a(f"s_and_b32 s{sT4}, s{sIDX}, 1")
    a(f"s_lshl_b32 s{sT5}, s{sCP}, 1")
    a(f"s_add_u32 s{sT4}, s{sT4}, s{sT5}")
    a(f"s_lshl_b32 s{sT4}, s{sT4}, 3")
    a(f"s_add_u32 s{sT4}, s{sT4}, s{sW}")
    a(f"s_mul_i32 s{sT4}, s{sT4}, 25600")
    a(f"s_add_u32 s{sWOO}, s{sT4}, {WS_WOP}")
    a(f"v_lshlrev_b32 v{vtmp}, 4, v{vL}")
def wo_list(vtmp, order=None):
    out = []
    for i in range(25):
        t = f"buffer_load_dwordx4 {vr(VWO+4*i,4)}, v{vtmp}, {srd(SWS)}, s{sWOO} offen offset:{1024*(i&3)} sc1"
        if (i & 3) == 3: t += f"\ns_add_u32 s{sWOO}, s{sWOO}, 4096"
        out.append(t)
    return out

S0B = 156
def s0_task(st):
    a(f"s_mul_i32 s{sTB}, s{st}, 6554")
    a(f"s_lshr_b32 s{sTB}, s{sTB}, 16")
    a(f"s_mul_i32 s{sCHB}, s{sTB}, 10")
    a(f"s_sub_u32 s{sCHB}, s{st}, s{sCHB}")
for t in range(640): assert (t * 6554) >> 16 == t // 10

def s0_loads(LB=None, init=True):
    a.c("S0 loads")
    B = S0B
    a(f"v_lshrrev_b32 v{B+1}, 3, v{vL}")
    a(f"v_and_b32 v{B+2}, 7, v{vL}")
    a(f"v_mul_u32_u24 v{B+3}, 5120, v{B+1}")
    a(f"v_lshl_add_u32 v{B+3}, v{B+2}, 4, v{B+3}")
    a(f"s_mul_i32 s{sT0}, s{sTB}, 40960")
    a(f"s_lshl_b32 s{sT1}, s{sCHB}, 7")
    a(f"s_add_u32 s{sT0}, s{sT0}, s{sT1}")
    a(f"v_add_u32 v{B+64}, s{sT0}, v{B+3}")
    a(f"v_subrev_u32 v{B+65}, 3840, v{B+64}")
    a(f"v_lshlrev_b32 v{B+66}, 6, v{B+2}")
    a(f"s_lshl_b32 s{sT1}, s{sCHB}, 9")
    if init:
        srd_init([SK, SV, SSK])
        a("s_waitcnt lgkmcnt(0)")
    LB = LB or B
    for i in range(4): a(f"buffer_load_dwordx4 {vr(LB+16+4*i,4)}, v{B+64}, {srd(SK)}, 0 offen offset:{1280*i}")
    for i in range(3): a(f"buffer_load_dwordx4 {vr(LB+4+4*i,4)}, v{B+65}, {srd(SK)}, 0 offen offset:{1280*i}")
    for i in range(4): a(f"buffer_load_dwordx4 {vr(LB+32+4*i,4)}, v{B+64}, {srd(SV)}, 0 offen offset:{1280*i}")
    for i in range(4): a(f"buffer_load_dwordx4 {vr(LB+48+4*i,4)}, v{B+66}, {srd(SSK)}, s{sT1} offen offset:{16*i}")

def s0_addr(s_scr):
    B = S0B
    a(f"v_mul_u32_u24 v{B+67}, 576, v{B+1}")
    a(f"v_lshl_add_u32 v{B+67}, v{B+2}, 4, v{B+67}")
    a(f"v_add_u32 v{B+67}, s{s_scr}, v{B+67}")
    a(f"v_and_b32 v{B+68}, 15, v{vL}")
    a(f"v_mul_u32_u24 v{B+69}, 144, v{B+68}")
    a(f"v_lshrrev_b32 v{B+70}, 4, v{vL}")
    a(f"v_lshl_add_u32 v{B+69}, v{B+70}, 3, v{B+69}")
    a(f"v_add_u32 v{B+69}, s{s_scr}, v{B+69}")
    a(f"s_and_b32 s{sT0}, s{sTB}, 3")
    a(f"v_xor_b32 v{B+68}, s{sT0}, v{B+68}")
    a(f"v_lshlrev_b32 v{B+68}, 4, v{B+68}")
    a(f"v_lshl_add_u32 v{B+68}, v{B+70}, 14, v{B+68}")
    a(f"s_lshl_b32 s{sT0}, s{sCHB}, 18")
    a(f"s_lshl_b32 s{sT1}, s{sTB}, 8")
    a(f"s_add_u32 s{sT0}, s{sT0}, s{sT1}")
    a(f"s_mov_b32 s{sT1}, 0xffff0000")

def s0_compute(split=None, pk=True, LB=None):
    a.c("S0 compute")
    B = S0B
    LB = LB or B
    KF, VF, WF, AC, UO = 112, 126, 134, B + 88, B + 72
    for p in range(4):
        for cc in range(2):
            c = 2 * p + cc
            for h in range(2):
                a(f"v_lshlrev_b32 v{WF+4*h+cc}, 16, v{LB+48+2*c+h}")
                a(f"v_and_b32 v{WF+4*h+2+cc}, s{sT1}, v{LB+48+2*c+h}")
        for r in range(7):
            a(f"v_lshlrev_b32 v{KF+2*r}, 16, v{LB+4+4*r+p}")
            a(f"v_and_b32 v{KF+2*r+1}, s{sT1}, v{LB+4+4*r+p}")
        for r in range(4):
            a(f"v_lshlrev_b32 v{VF+2*r}, 16, v{LB+32+4*r+p}")
            a(f"v_and_b32 v{VF+2*r+1}, s{sT1}, v{LB+32+4*r+p}")
        if pk:
            for i in range(4): a(f"v_pk_mul_f32 {vr(AC+2*i,2)}, {vr(KF+2*(i+3),2)}, {vr(WF,2)}")
            for d in range(1, 4):
                for i in range(4): a(f"v_pk_fma_f32 {vr(AC+2*i,2)}, {vr(KF+2*(i+3-d),2)}, {vr(WF+2*d,2)}, {vr(AC+2*i,2)}")
            for i in range(4): a(f"v_pk_mul_f32 {vr(AC+2*i,2)}, {vr(AC+2*i,2)}, {vr(VF+2*i,2)}")
        else:
            for i in range(8): a(f"v_mul_f32 v{AC+i}, v{KF+6+i}, v{WF+(i&1)}")
            for d in range(1, 4):
                for i in range(8): a(f"v_fmac_f32 v{AC+i}, v{KF+6+i-2*d}, v{WF+2*d+(i&1)}")
            for i in range(8): a(f"v_mul_f32 v{AC+i}, v{AC+i}, v{VF+i}")
        for i in range(4): a(f"v_cvt_pk_bf16_f32 v{UO+4*i+p}, v{AC+2*i}, v{AC+2*i+1}")
        if split: split(p)
    for i in range(4): a(f"ds_write_b128 v{B+67}, {vr(UO+4*i,4)} offset:{144*i}")
    for j in range(4):
        a(f"ds_read_b64_tr_b16 {vr(LB+4+4*j,2)}, v{B+69} offset:{32*j}")
        a(f"ds_read_b64_tr_b16 {vr(LB+6+4*j,2)}, v{B+69} offset:{32*j+2304}")
    for j in range(4):
        a(f"s_waitcnt lgkmcnt({6-2*j})")
        a(f"buffer_store_dwordx4 {vr(LB+4+4*j,4)}, v{B+68}, {srd(SWS)}, s{sT0} offen sc1")
        if j < 3: a(f"s_add_u32 s{sT0}, s{sT0}, 65536")

def f0_off(sd):
    a(f"s_lshl_b32 s{sd}, s{sCHB}, 8")
    a(f"s_add_u32 s{sd}, s{sd}, {WS_F0}")

ACC = 32
FB = [112, 156]
vX0, vX1, vWA, vWX = 148, 149, 150, 154
vA1, vA2, vC16, vG4 = 16, 17, 18, 19
sC, sSL = sT2, sT3

def a_setup():
    a.c("A-wave address setup")
    a(f"s_and_b32 s{sT0}, s{sW}, 1")
    a(f"s_lshr_b32 s{sT1}, s{sW}, 1")
    a(f"v_and_b32 v{vC16}, 15, v{vL}")
    a(f"v_lshrrev_b32 v{vG4}, 4, v{vL}")
    a(f"v_lshrrev_b32 v8, 1, v{vC16}")
    a(f"v_xor_b32 v8, v{vG4}, v8")
    a(f"v_lshlrev_b32 v8, 4, v8")
    a(f"v_lshl_add_u32 v8, v{vC16}, 7, v8")
    a(f"s_lshl_b32 s{sT4}, s{sT1}, 13")
    a(f"v_add_u32 v{vX0}, s{sT4}, v8")
    a(f"v_xor_b32 v{vX1}, 64, v{vX0}")
    a(f"v_bfe_u32 v8, v{vL}, 2, 2")
    a(f"v_lshl_add_u32 v9, v{vG4}, 3, v8")
    a(f"v_and_b32 v10, 1, v{vG4}")
    a(f"v_xor_b32 v10, s{sT0}, v10")
    a(f"v_and_b32 v11, 3, v{vL}")
    a("v_lshlrev_b32 v11, 3, v11")
    a(f"v_lshl_add_u32 v{vWX}, v9, 6, v11")
    a(f"v_lshl_add_u32 v{vWX}, v10, 5, v{vWX}")
    a(f"v_add_u32 v{vWX}, 32768, v{vWX}")
    a("v_lshl_or_b32 v8, v10, 2, v8")
    a("v_lshl_add_u32 v8, v8, 5, v11")
    a("v_lshl_add_u32 v8, v9, 8, v8")
    a(f"v_add_u32 v{vWA}, 16384, v8")
    for tt in range(1, 4): a(f"v_xor_b32 v{vWA+tt}, {32*tt}, v{vWA}")

def a_reads(buf, ks):
    b = FB[buf]
    xs = [f"ds_read_b128 {vr(b+4*rt,4)}, v{vX1 if ks else vX0} offset:{2048*rt}" for rt in range(4)]
    ws = []
    for tt in range(5):
        for sec in range(2):
            if tt < 4: ws.append(f"ds_read_b64_tr_b16 {vr(b+16+4*tt+2*sec,2)}, v{vWA+tt} offset:{ks*8192+sec*1024}")
            else: ws.append(f"ds_read_b64_tr_b16 {vr(b+16+4*tt+2*sec,2)}, v{vWX} offset:{ks*2048+sec*256}")
    return [xs[0], ws[0], ws[1], xs[1], ws[2], ws[3], xs[2], ws[4], ws[5], xs[3]] + ws[6:]

def acc(rt, tt): return ACC + 4 * (rt * 5 + tt)

def a_mfmas(buf, qtype, order=None):
    b = FB[buf]
    out = []
    for (rt, tt) in (order or [(rt, tt) for tt in range(5) for rt in range(4)]):
        d = vr(acc(rt, tt), 4)
        xf = vr(b + 4 * rt, 4); wf = vr(b + 16 + 4 * tt, 4)
        A, B = (wf, xf) if qtype else (xf, wf)
        out.append(f"v_mfma_f32_16x16x32_bf16 {d}, {A}, {B}, {d}")
    return out

def interleave(mf, rd):
    j = 0
    for i, m in enumerate(mf):
        a(m)
        if j < len(rd): a(rd[j]); j += 1
    while j < len(rd): a(rd[j]); j += 1

def a_mainloop(qtype):
    t = "q" if qtype else "k"
    a.c("A main loop")
    a(f"s_mov_b32 s{sC}, 0")
    a(f"s_mov_b32 s{sSL}, 0")
    a(f"s_mov_b32 s{sT6}, {1<<10}")
    if qtype:
        a(f"s_cmp_lt_u32 s{sW}, {NQ}")
        a(f"s_cselect_b32 s{sT6}, {(1<<10)|(1<<1)|(1<<3)}, s{sT6}")
    if "noprio" not in EXP: a("s_setprio 2")
    a("s_waitcnt lgkmcnt(0)")
    if "ast" in EXP: stamp(1, True)
    a("s_barrier")
    stamp(1)
    for r in a_reads(0, 0): a(r)
    book = [
        f"s_add_u32 s{sSL}, s{sSL}, 1\ns_cmp_eq_u32 s{sSL}, 3",
        f"s_mov_b32 s{sT4}, {SLOT}",
        f"s_cselect_b32 s{sT4}, {-2*SLOT & 0xffffffff}, s{sT4}",
        f"s_cselect_b32 s{sSL}, 0, s{sSL}\ns_add_u32 s{sC}, s{sC}, 1",
    ]
    src_ = f"s{sT4}"
    rd = a_reads(1, 1)
    seq = []
    for i, r in enumerate(rd): seq.append(r + ("\n" + book[i - 2] if 2 <= i < 6 else ""))
    seq += [f"v_add_u32 v{vX0}, {src_}, v{vX0}\nv_add_u32 v{vX1}, {src_}, v{vX1}",
            f"v_add_u32 v{vWA}, {src_}, v{vWA}\nv_add_u32 v{vWA+1}, {src_}, v{vWA+1}",
            f"v_add_u32 v{vWA+2}, {src_}, v{vWA+2}\nv_add_u32 v{vWA+3}, {src_}, v{vWA+3}",
            f"v_add_u32 v{vWX}, {src_}, v{vWX}\ns_bitcmp1_b32 s{sT6}, s{sC}"]
    a(".p2align 3")
    a.label(f"Lml{t}")
    a("s_waitcnt lgkmcnt(0)")
    interleave(a_mfmas(0, qtype), seq)
    a("s_waitcnt lgkmcnt(0)")
    a(f"s_cbranch_scc1 Lhook{t}")
    a.label(f"Lhookd{t}")
    if "ast" in EXP:
        a("s_memrealtime vcc")
        a("s_waitcnt lgkmcnt(0)")
        a(f"s_mov_b32 m0, s{sC}")
        a("v_writelane_b32 v29, vcc_lo, m0")
    a("s_barrier")
    interleave(a_mfmas(1, qtype), a_reads(0, 0))
    a(f"s_branch Lml{t}")
    a.label(f"Lhook{t}")
    if qtype:
        a(f"s_cmp_eq_u32 s{sC}, 10")
        a(f"s_cbranch_scc1 Lmx{t}")
        N2 = a.newlabel("Lhk")
        a(f"s_cmp_lg_u32 s{sC}, 1")
        a(f"s_cbranch_scc1 {N2}")
        a("s_waitcnt vmcnt(0)")
        darr_issue(24, 25, 0)
        a(f"s_branch Lhookd{t}")
        a.label(N2)
        darr_finish(24, 25, 0, NU)
        a(f"s_branch Lhookd{t}")
        a.label(f"Lmx{t}")
    if "ast" in EXP:
        for c in range(1, 9): a(f"v_readlane_b32 s{STS+1+c}, v29, {c}")

def acc_zero():
    for i in range(80): a(f"v_mov_b32 v{ACC+i}, 0")

def phi_list(regs, tmp, pk=False):
    out = []
    B = 4
    for i in range(0, len(regs), B):
        batch = regs[i:i + B]
        for j, r in enumerate(batch):
            if pk:
                out.append(f"v_pk_mul_f32 {vr(tmp+2*j,2)}, {vr(r,2)}, {sr(sLOG,2)}"); continue
            out.append(f"v_mul_f32 v{tmp+2*j}, s{sLOG}, v{r}")
            out.append(f"v_mul_f32 v{tmp+2*j+1}, s{sLOG}, v{r+1}")
        for j, r in enumerate(batch):
            out.append(f"v_exp_f32_e64 v{tmp+2*j}, v{tmp+2*j} clamp")
            out.append(f"v_exp_f32_e64 v{tmp+2*j+1}, v{tmp+2*j+1} clamp")
        for j, r in enumerate(batch):
            out.append(f"v_max_f32 v{r}, s{sEPS}, v{r}")
            out.append(f"v_max_f32 v{r+1}, s{sEPS}, v{r+1}")
        for j, r in enumerate(batch):
            if pk:
                out.append(f"v_pk_add_f32 {vr(r,2)}, {vr(r,2)}, {vr(tmp+2*j,2)}"); continue
            out.append(f"v_add_f32 v{r}, v{r}, v{tmp+2*j}")
            out.append(f"v_add_f32 v{r+1}, v{r+1}, v{tmp+2*j+1}")
    return out

def sprinkle(main, extra, every, start=0):
    j = 0
    for i, m in enumerate(main):
        a(m)
        if i >= start and (i - start) % every == every - 1 and j < len(extra):
            a(extra[j]); j += 1
    return extra[j:]

def fc_addr(v):
    a(f"v_and_b32 v{v}, 7, v{vL}")
    a(f"v_lshlrev_b32 v{v}, 8, v{v}")
    a(f"v_add_u32 v{v}, {WS_FC}, v{v}")
def f0_addr(v):
    a(f"s_lshr_b32 s{sT4}, s{sQUAD}, 4")
    a(f"s_lshl_b32 s{sT4}, s{sT4}, 8")
    a(f"s_add_u32 s{sT4}, s{sT4}, {WS_F0}")
    a(f"v_mov_b32 v{v}, s{sT4}")

def awave():
    a.label("Lawave")
    ka_rest()
    a(f"s_cmp_ge_u32 s{sIDX}, 16")
    a("s_cbranch_scc1 Lqa")
    srd_init([SWS, SDBG])
    common_scalars()
    srd_init([SX, SOUT])
    acc_zero()

def kva():
    a(f"s_lshr_b32 s{sT0}, s{sIDX}, 2")
    a(f"s_lshl_b32 s{sCG}, s{sCP}, 2")
    a(f"s_add_u32 s{sCG}, s{sCG}, s{sT0}")
    a_setup()
    a(f"s_mul_i32 s{sT4}, s{sW}, 3584")
    a(f"s_add_u32 s{sT4}, s{sT4}, {L_KVS}")
    a(f"v_mul_u32_u24 v8, 336, v{vG4}")
    a(f"v_add_u32 v8, s{sT4}, v8")
    a(f"v_lshl_add_u32 v{vA1}, v{vC16}, 4, v8")
    a(f"v_add_u32 v9, 8, v{vC16}")
    a(f"v_subrev_u32 v10, 12, v{vC16}")
    a(f"v_cmp_lt_u32 vcc, 11, v{vC16}")
    a("v_cndmask_b32 v9, v9, v10, vcc")
    a(f"v_cmp_eq_u32 vcc, 0, v{vC16}")
    a("v_mov_b32 v10, 20")
    a("v_cndmask_b32 v9, v9, v10, vcc")
    a(f"v_lshl_add_u32 v{vA2}, v9, 4, v8")
    a(f"s_lshl_b32 s{sT4}, s{sT0}, 2")
    a(f"s_add_u32 s{sT4}, s{sT4}, {L_CNT}")
    a(f"v_mov_b32 v20, s{sT4}")
    a(f"s_mul_i32 s{sT4}, s{sT0}, 3584")
    a(f"s_mul_i32 s{sT5}, s{sT1}, {KVH}")
    a(f"s_add_u32 s{sT4}, s{sT4}, s{sT5}")
    a(f"v_lshlrev_b32 v21, 2, v{vL}")
    a(f"s_add_u32 s{sT5}, s{sT4}, {L_KVS}")
    a(f"v_add_u32 v22, s{sT5}, v21")
    a(f"s_mul_i32 s{sT5}, s{sCG}, {4*KVH}")
    a(f"s_add_u32 s{sT4}, s{sT4}, s{sT5}")
    a(f"s_add_u32 s{sCH}, s{sT4}, {WS_KV}")
    a("v_mov_b32 v23, 0x3f803f80")
    a(f"s_lshl_b32 s{sLC}, s{sCG}, 8")
    a(f"s_add_u32 s{sLC}, s{sLC}, {WS_FK}")
    wo_prep(28)
    a_mainloop(False)
    a.c("KV epilogue")
    order = [(rt, tt) for tt in (4, 0, 2, 1, 3) for rt in range(4)]
    mf = a_mfmas(1, False, order)
    for m in mf[:8]: a(m)
    XP = 112
    TM = 12
    TM = 8
    a(f"v_cmp_gt_u32 vcc, 8, v{vC16}")
    def pairs(tt): return sum([[acc(rt, tt), acc(rt, tt) + 2] for rt in range(4)], [])
    def cvts(tt): return [f"v_cvt_pk_bf16_f32 v{acc(rt&2,tt)+2*(rt&1)+h}, v{acc(rt,tt)+2*h}, v{acc(rt,tt)+2*h+1}" for rt in range(4) for h in range(2)]
    L = []
    for rt in range(4):
        for h in range(2): L.append(f"v_cvt_pk_bf16_f32 v{XP+2*rt+h}, v{acc(rt,4)+2*h}, v{acc(rt,4)+2*h+1}")
    for j in range(8): L.append(f"v_cndmask_b32 v{XP+j}, v{XP+j}, v23, vcc")
    L += phi_list(pairs(4)[:4], TM, False)
    for i, m in enumerate(mf[8:]):
        a(m)
        for x in L[2 * i:2 * i + 2]: a(x)
    L = L[24:]
    stamp(2)
    pk = "nopk" not in EXP
    L += phi_list(pairs(4)[4:], TM, pk) + cvts(4) + phi_list(pairs(0), TM, pk) + cvts(0) + cvts(2) + cvts(3)
    if "aspr" in EXP: assert not sprinkle(L, wo_list(28), len(L) // 25)
    else:
        for x in L: a(x)
    def fr(t, p): return XP + 4 * p if t == 5 else acc(2 * p, t)
    prods = [(0, 2), (0, 5), (4, 2), (4, 5), (1, 3), (1, 5), (4, 3)]
    PD = 120
    def pm(lst):
        for p in range(2):
            for i in lst:
                ta, tb = prods[i]
                d = vr(PD + 4 * i, 4)
                a(f"v_mfma_f32_16x16x32_bf16 {d}, {vr(fr(ta,p),4)}, {vr(fr(tb,p),4)}, {'0' if p==0 else d}")
    def wr(i, va, off, mlo, mhi):
        t = ""
        if mlo != -1: t += f"s_mov_b32 exec_lo, {mlo}\ns_mov_b32 exec_hi, {mhi}\n"
        t += f"ds_write_b128 v{va}, {vr(PD+4*i,4)} offset:{off}"
        if mlo != -1: t += "\ns_mov_b64 exec, -1"
        return t
    pm([0, 1, 2, 3, 6])
    W1 = [wr(0, vA1, 0, -1, -1), wr(1, vA2, 0, 0x0f010f01, 0x0f010f01), wr(2, vA1, 4 * 336, 0xffff, 0),
          wr(3, vA2, 4 * 336, 0x0f01, 0), wr(3, vA2, KVH - 336, 0xf0010000, 0), wr(6, vA1, KVH + 64 - 336, 0xffff0000, 0)]
    rest = sprinkle(phi_list(pairs(1)[:4], TM, False) + phi_list(pairs(1)[4:], TM, pk) + cvts(1), W1, 8, 6)
    assert not rest
    pm([4, 5])
    a(wr(4, vA1, KVH + 336 + 64, -1, -1))
    a(wr(5, vA2, KVH + 336, 0xf001f001, 0xf001f001))
    if "econv" in EXP:
        lds_arrive(20, 24)
        lds_wait(20, 24, 2 + 4 * 256)
    else:
        a("s_waitcnt lgkmcnt(0)")
        a("s_barrier")
    for i in range(7):
        a(f"ds_read_b32 v{32+i}, v22 offset:{256*i}")
        a(f"ds_read_b32 v{40+i}, v22 offset:{256*i+7168}")
    stamp(3)
    for i in range(7):
        a(f"s_waitcnt lgkmcnt({12-2*i})")
        a(f"v_add_f32 v{32+i}, v{32+i}, v{40+i}")
        a(f"buffer_atomic_add_f32 v{32+i}, v21, {srd(SWS)}, s{sCH} offen offset:{256*i}")
    arr_prep(48, 49)
    s3_setup()
    a("s_waitcnt vmcnt(0)")
    arr_issue(48, 49, f"s{sLC}")
    arr_finish(48, 49, f"s{sLC}", 64, 0)
    a("s_setprio 0")
    stamp(4)
    a("s_branch Ls3x" if "aspr" in EXP else "s_branch Ls3")

def qa():
    a.label("Lqa")
    common_scalars()
    a(f"s_cmp_ge_u32 s{sW}, {NQ}")
    a("s_cbranch_scc1 Lq1")
    a(f"s_mov_b32 s{sTB}, s{sCI}")
    a(f"s_add_u32 s{sCHB}, s{sW}, {10-NQ}")
    s0_loads()
    a.label("Lq1")
    srd_init([SWS, SDBG, SX, SOUT])
    acc_zero()
    a(f"s_bfe_u32 s{sT0}, s{sIDX}, 0x10002")
    a(f"s_lshl_b32 s{sCG}, s{sCP}, 1")
    a(f"s_add_u32 s{sCG}, s{sCG}, s{sT0}")
    a_setup()
    a(f"v_lshrrev_b32 v8, 1, v{vG4}")
    a(f"v_and_b32 v9, 1, v{vG4}")
    a(f"v_lshlrev_b32 v20, 4, v{vC16}")
    a("v_lshl_add_u32 v20, v9, 9, v20")
    a("v_lshl_add_u32 v21, v8, 3, v20")
    a("v_add_u32 v21, 4096, v21")
    a("v_lshl_add_u32 v20, v8, 10, v20")
    a(f"s_lshl_b32 s{sT4}, s{sRB}, 1")
    a(f"s_add_u32 s{sT4}, s{sT4}, s{sT1}")
    a(f"s_lshl_b32 s{sT5}, s{sCG}, 1")
    a(f"s_add_u32 s{sT5}, s{sT5}, s{sT0}")
    a(f"s_mul_i32 s{sT0}, s{sT4}, {80*1024}")
    a(f"s_mul_i32 s{sT1}, s{sT5}, {5*1024}")
    a(f"s_add_u32 s{sT0}, s{sT0}, s{sT1}")
    a(f"s_add_u32 s{sCH}, s{sT0}, {WS_PQ}")
    a(f"s_add_u32 s{sVAR}, s{sCH}, {40*1024}")
    a(f"s_lshl_b32 s{sT4}, s{sT4}, 3")
    a(f"s_add_u32 s{sT4}, s{sT4}, s{sT5}")
    a(f"s_lshl_b32 s{sT4}, s{sT4}, 8")
    a(f"s_add_u32 s{sLC}, s{sT4}, {WS_FQ}")
    wo_prep(28)
    a("v_mov_b32 v24, 0")
    a(f"s_cmp_ge_u32 s{sW}, {NQ}")
    a("s_cbranch_scc1 Lq2")
    a(f"s_mul_i32 s{sT2}, s{sW}, 4608")
    a(f"s_add_u32 s{sT2}, s{sT2}, {2*SLOT}")
    s0_addr(sT2)
    a("s_waitcnt vmcnt(0)")
    stamp(11)
    s0_compute()
    stamp(12)
    a.label("Lq2")
    a_mainloop(True)
    a.c("Q epilogue")
    order = [(rt, tt) for rt in range(4) for tt in range(5)]
    mf = a_mfmas(1, True, order)
    for m in mf[:9]: a(m)
    L = []
    for rt in range(4):
        regs = []
        for tt in range(5): regs += [acc(rt, tt), acc(rt, tt) + 2]
        L += phi_list(regs, 112, rt > 0 and "nopk" not in EXP)
        O = acc(rt, 0)
        for tt in range(5):
            for h in range(2): L.append(f"v_cvt_pk_bf16_f32 v{O+2*tt+h}, v{acc(rt,tt)+2*h}, v{acc(rt,tt)+2*h+1}")
        so = f"s{sVAR if rt>>1 else sCH}"
        for p in range(2):
            L.append(f"buffer_store_dwordx4 {vr(O+4*p,4)}, v20, {srd(SWS)}, {so} offen offset:{256*(rt&1)+2048*p} sc1")
        L.append(f"buffer_store_dwordx2 {vr(O+8,2)}, v21, {srd(SWS)}, {so} offen offset:{256*(rt&1)} sc1")
    for i, m in enumerate(mf[9:]):
        a(m)
        for x in L[2 * i:2 * i + 2]: a(x)
    L = L[22:]
    stamp(2)
    if "aspr" in EXP: assert not sprinkle(L, wo_list(28), 8)
    else:
        for x in L: a(x)
    stamp(3)
    a("s_barrier")
    a("s_waitcnt vmcnt(0)")
    flag_store(120, 121, f"s{sLC}")
    s3_setup()
    a("s_setprio 0")
    stamp(4)
    a("s_branch Ls3x" if "aspr" in EXP else "s_branch Ls3")

def h_dma(sj, sch0):
    a(f"s_lshr_b32 s{sT4}, s{sj}, 1")
    a(f"s_and_b32 s{sT5}, s{sj}, 1")
    a(f"s_lshl_b32 s{sT5}, s{sT5}, 11")
    a(f"s_add_u32 s{sT6}, s{sch0}, s{sT4}")
    a(f"s_lshl_b32 s{sT6}, s{sT6}, 12")
    a(f"s_add_u32 s{sT6}, s{sT6}, s{sT5}")
    a(f"s_mul_i32 s{sT4}, s{sT4}, {HSTR}")
    a(f"s_add_u32 s{sT4}, s{sT4}, s{sT5}")
    a(f"s_add_u32 m0, s{sT4}, {L_HB+128}")
    a(f"buffer_load_dwordx4 v{vL16}, {srd(SH)}, s{sT6} offen lds")
    a(f"buffer_load_dwordx4 v{vL16}, {srd(SH)}, s{sT6} offen offset:1024 lds")

CACC = 32
CPOOL = 96
NPOOL = 12
CD = 144
vUe, vUo, vH, vCW, vCT, vCS, vCY, vCN = range(148, 156)

def conv_setup(j, chl0, split=None):
    a.c("conv setup")
    a(f"s_lshr_b32 s{sLC}, s{j}, 1")
    a(f"s_and_b32 s{sVAR}, s{j}, 1")
    a(f"s_add_u32 s{sCHL}, s{chl0}, s{sLC}")
    a(f"s_lshl_b32 s{sCH}, s{sQUAD}, 2")
    a(f"s_add_u32 s{sCH}, s{sCH}, s{sCHL}")
    a(f"s_lshl_b32 s{sT4}, s{sCH}, 1")
    a(f"s_and_b32 s{sT4}, s{sT4}, -4")
    a(f"s_load_dword s{sDV}, {sr(SD,2)}, s{sT4}")
    a(f"v_and_b32 v96, 31, v{vL}")
    a(f"v_lshrrev_b32 v97, 5, v{vL}")
    a("v_lshl_add_u32 v98, v97, 2, v96")
    a("v_lshrrev_b32 v99, 2, v98")
    a("v_add_u32 v99, 3, v99")
    a("v_and_b32 v99, 3, v99")
    a(f"v_xor_b32 v99, s{sCHL}, v99")
    a("v_lshlrev_b32 v99, 4, v99")
    a("v_lshl_add_u32 v99, v98, 6, v99")
    a(f"v_add_u32 v{vUe}, {L_UD-28*64}, v99")
    a(f"v_xor_b32 v{vUo}, 32, v{vUe}")
    a(f"v_bfe_u32 v98, v{vL}, 4, 1")
    a(f"v_and_b32 v99, 3, v{vL}")
    a("v_lshl_add_u32 v98, v98, 2, v99")
    a(f"v_bfe_u32 v96, v{vL}, 2, 2")
    a("v_sub_u32 v98, v98, v96")
    a("v_lshlrev_b32 v97, 3, v97")
    a("v_sub_u32 v98, v98, v97")
    a("v_lshlrev_b32 v98, 3, v98")
    a(f"s_mul_i32 s{sT4}, s{sLC}, {HSTR}")
    a(f"s_add_u32 s{sT4}, s{sT4}, {L_HB+128+32}")
    a(f"v_add_u32 v{vH}, s{sT4}, v98")
    a(f"s_lshl_b32 s{sT4}, s{sW}, 11")
    a(f"s_add_u32 s{sT4}, s{sT4}, {L_YST}")
    a(f"v_lshlrev_b32 v{vCW}, 4, v{vL}")
    a(f"v_add_u32 v{vCW}, s{sT4}, v{vCW}")
    if split: split(0)
    a(f"v_lshrrev_b32 v97, 4, v{vL}")
    a("v_lshrrev_b32 v98, 1, v99")
    a("v_lshl_add_u32 v98, v97, 1, v98")
    a("v_lshl_add_u32 v98, v98, 3, v96")
    a("v_lshlrev_b32 v98, 4, v98")
    a("v_and_b32 v99, 1, v99")
    a("v_lshl_add_u32 v98, v99, 3, v98")
    a(f"v_add_u32 v{vCT}, s{sT4}, v98")
    a(f"v_and_b32 v98, 7, v{vL}")
    a(f"v_lshrrev_b32 v99, 5, v{vL}")
    a("v_lshl_add_u32 v98, v98, 1, v99")
    a(f"v_mul_u32_u24 v98, 40960, v98")
    a(f"v_bfe_u32 v99, v{vL}, 3, 2")
    a(f"v_lshl_add_u32 v{vCY}, v99, 4, v98")
    a(f"s_lshl_b32 s{sT4}, s{j}, 4")
    a(f"s_add_u32 s{sT4}, s{sT4}, {L_SP}")
    a(f"v_mov_b32 v{vCS}, s{sT4}")
    a(f"s_lshl_b32 s{sT4}, s{sLC}, 2")
    a(f"s_add_u32 s{sT4}, s{sT4}, {L_CNT+16}")
    a(f"v_mov_b32 v{vCN}, s{sT4}")

def conv_dfrag():
    a("s_waitcnt lgkmcnt(0)")
    a(f"s_and_b32 s{sT4}, s{sCH}, 1")
    a(f"s_lshl_b32 s{sT4}, s{sT4}, 4")
    a(f"s_lshr_b32 s{sDV}, s{sDV}, s{sT4}")
    a(f"s_and_b32 s{sDV}, s{sDV}, 0xffff")
    a(f"v_lshlrev_b32 v98, 2, v{vL}")
    a("v_and_b32 v98, 16, v98")
    a(f"v_lshlrev_b32 v98, v98, s{sDV}")
    a(f"v_and_b32 v99, 59, v{vL}")
    for r in range(4):
        a(f"v_cmp_eq_u32 vcc, {32+8*r}, v99")
        a(f"v_cndmask_b32 v{CD+r}, 0, v98, vcc")

def zero_pads(j):
    a("v_mov_b32 v100, 0")
    a("v_mov_b32 v101, 0")
    a(f"v_lshlrev_b32 v102, 3, v{vL}")
    a(f"s_and_b32 s{sT6}, s{j}, 3")
    a(f"s_lshl_b32 s{sT4}, s{sT6}, 9")
    a(f"s_add_u32 s{sT4}, s{sT4}, {L_UB}")
    a(f"v_add_u32 v103, s{sT4}, v102")
    a("ds_write_b64 v103, v[100:101]")
    a(f"s_mul_i32 s{sT4}, s{sT6}, {HSTR}")
    a(f"s_add_u32 s{sT4}, s{sT4}, {L_HB}")
    a(f"v_add_u32 v103, s{sT4}, v102")
    a("s_mov_b64 exec, 0xffff")
    a("ds_write_b64 v103, v[100:101]")
    a(f"v_add_u32 v103, {L_CNT}, v102")
    a("s_mov_b64 exec, 0xff")
    a("ds_write_b64 v103, v[100:101]")
    a("s_mov_b64 exec, -1")

def u_dma(j, nper):
    a(f"s_mul_i32 s{sT4}, s{j}, {1024*nper}")
    a(f"s_lshl_b32 s{sT5}, s{sQUAD}, 14")
    a(f"s_add_u32 s{sT5}, s{sT5}, s{sT4}")
    a(f"s_add_u32 m0, s{sT4}, {L_UD}")
    for i in range(nper): a(f"buffer_load_dwordx4 v{vL16}, {srd(SWS)}, s{sT5} offen offset:{1024*i} sc1 lds")

def bwave():
    a.c("B wave")
    sXB, sWB, sM, sMW, sROT, sSTEP, sQ2, sQ3 = sCG, sUD, sTB, sRB, sCI, sLOG, sLOG + 1, sEPS
    VX, VW = 32, 36
    a(f"s_sub_u32 s{sJ}, s{sW}, 4")
    a(f"v_lshrrev_b32 v1, 3, v{vL}")
    a(f"v_mul_u32_u24 v1, 1280, v1")
    a(f"v_lshrrev_b32 v2, 4, v{vL}")
    a(f"v_and_b32 v3, 7, v{vL}")
    a("v_xor_b32 v2, v2, v3")
    a(f"v_lshl_add_u32 v{VX}, v2, 4, v1")
    a(f"v_xor_b32 v{VX+1}, 64, v{VX}")
    a(f"v_add_u32 v{VX+1}, {10240-1024}, v{VX+1}")
    a(f"v_add_u32 v{VX+2}, {20480-2048}, v{VX}")
    a(f"v_add_u32 v{VX+3}, {20480-2048}, v{VX+1}")
    a(f"s_lshl_b32 s{sXB}, s{sRB}, 2")
    a(f"s_add_u32 s{sXB}, s{sXB}, s{sJ}")
    a(f"s_mul_i32 s{sXB}, s{sXB}, 40960")
    a(f"s_lshr_b32 s{sT0}, s{sIDX}, 2")
    a(f"s_add_u32 s{sROT}, s{sT0}, s{sIDX}")
    a(f"s_and_b32 s{sROT}, s{sROT}, 3")
    a(f"s_add_u32 s{sM}, s{sRP}, s{sCP}")
    a(f"s_and_b32 s{sM}, s{sM}, 1")
    a(f"s_lshl_b32 s{sM}, s{sM}, 2")
    a(f"s_or_b32 s{sROT}, s{sROT}, s{sM}")
    def chunk_of(sd, srot, step):
        if "nostag" in EXP:
            a(f"s_and_b32 s{sd}, s{srot}, {7 if step < 8 else 1}")
            a(f"s_xor_b32 s{sd}, s{sd}, {step}")
            return
        m0_, x0 = (3, step) if step < 8 else (1, step)
        m1_, x1 = (1, 8 + step) if step < 2 else (7, step - 2)
        a(f"s_bitcmp1_b32 s{srot}, 2")
        a(f"s_cselect_b32 s{sd}, {m1_}, {m0_}")
        a(f"s_cselect_b32 s{sQ2}, {x1}, {x0}")
        a(f"s_and_b32 s{sd}, s{sd}, s{srot}")
        a(f"s_xor_b32 s{sd}, s{sd}, s{sQ2}")
    chunk_of(sSTEP, sROT, 0)
    a(f"s_lshl_b32 s{sM}, s{sJ}, 12")
    srd_init([SX, SWQ])
    def chunk_x(sc):
        a(f"s_mov_b32 m0, s{sM}")
        a(f"s_lshl_b32 s{sQ2}, s{sc}, 7")
        a(f"s_add_u32 s{sQ2}, s{sQ2}, s{sXB}")
        for i in range(4):
            a(f"buffer_load_dwordx4 v{VX+i}, {srd(SX)}, s{sQ2} offen offset:{1024*i} lds")
    def chunk_w(sc):
        a(f"s_add_u32 m0, s{sM}, 16384")
        a(f"s_mul_i32 s{sQ3}, s{sc}, {64*3840}")
        a(f"s_add_u32 s{sQ3}, s{sQ3}, s{sWB}")
        for hf in range(1):
            if hf:
                a(f"s_add_u32 m0, s{sM}, {16384+4096}")
                a(f"s_add_u32 s{sQ3}, s{sQ3}, {16*3840}")
            for i in (0, 1, 4, 2, 3):
                if i == 2: a(f"s_add_u32 m0, s{sM}, {16384+4096*hf}")
                if i == 4: a(f"s_add_u32 m0, s{sMW}, {1024*hf}")
                a(f"buffer_load_dwordx4 v{VW+i}, {srd(SWQ)}, s{sQ3} offen offset:{1024*(i&3)} lds")
    a(f"s_lshl_b32 s{sT1}, s{sCP}, 2")
    a(f"s_add_u32 s{sT1}, s{sT1}, s{sT0}")
    a(f"s_add_u32 s{sT1}, s{sT1}, 8")
    a(f"s_lshl_b32 s{sT0}, s{sT0}, 1")
    a(f"s_lshl_b32 s{sT4}, s{sCP}, 2")
    a(f"s_add_u32 s{sT0}, s{sT0}, s{sT4}")
    a(f"s_sub_u32 s{sT0}, s{sT0}, 8")
    a(f"s_cmp_ge_u32 s{sIDX}, 16")
    a(f"s_cselect_b32 s{sWB}, s{sT0}, s{sT1}")
    a(f"s_cselect_b32 s{sT4}, 10, 5")
    a(f"s_cselect_b32 s{sT5}, 4, 0x50")
    a(f"s_cselect_b32 s{sT6}, 1, 3")
    a(f"s_cselect_b32 s{sT7}, 2, 1")
    a(f"s_cselect_b32 s{sT0}, 1, 0x50")
    a(f"s_cselect_b32 s{sT1}, 8, 2")
    a(f"s_mulk_i32 s{sWB}, 160")
    a(f"s_mul_i32 s{sT2}, s{sJ}, {16*3840}")
    a(f"s_add_u32 s{sWB}, s{sWB}, s{sT2}")
    a(f"s_lshl_b32 s{sMW}, s{sJ}, 10")
    a(f"s_add_u32 s{sMW}, s{sMW}, 32768")
    a(f"v_lshrrev_b32 v14, 4, v{vL}")
    a(f"v_lshrrev_b32 v15, 1, v{vL}")
    a("v_xor_b32 v15, v15, v14")
    a(f"v_and_b32 v16, 1, v{vL}")
    a("v_mul_u32_u24 v14, 240, v14")
    a(f"v_mad_u32_u24 v14, v16, s{sT7}, v14")
    a("v_and_b32 v17, 1, v15")
    a(f"v_mad_u32_u24 v14, v17, s{sT6}, v14")
    a("v_bfe_u32 v17, v15, 1, 1")
    a(f"v_mad_u32_u24 v14, v17, s{sT5}, v14")
    a("v_bfe_u32 v17, v15, 2, 1")
    a(f"v_mad_u32_u24 v18, v17, s{sT4}, v14")
    a(f"v_lshlrev_b32 v{VW}, 4, v18")
    a(f"v_add_u32 v{VW+1}, {15360-1024}, v{VW}")
    a("v_xor_b32 v17, 1, v17")
    a(f"v_mad_u32_u24 v18, v17, s{sT4}, v14")
    a(f"v_lshlrev_b32 v18, 4, v18")
    a(f"v_add_u32 v{VW+2}, {30720-2048}, v18")
    a(f"v_add_u32 v{VW+3}, {46080-3072}, v18")
    a(f"v_lshrrev_b32 v14, 2, v{vL}")
    a("v_mul_u32_u24 v14, 240, v14")
    a(f"v_mad_u32_u24 v14, v16, s{sT0}, v14")
    a(f"v_lshrrev_b32 v17, 4, v{vL}")
    a(f"v_xor_b32 v17, v17, v{vL}")
    a("v_bfe_u32 v17, v17, 1, 1")
    a(f"v_mad_u32_u24 v14, v17, s{sT4}, v14")
    a(f"v_add_lshl_u32 v{VW+4}, v14, s{sT1}, 4")
    a("s_waitcnt lgkmcnt(0)")
    stamp(11)
    chunk_x(sSTEP)
    chunk_w(sSTEP)
    ka_rest()
    stamp(12)
    def issue(step):
        d = SLOT if step % 3 else (-2 * SLOT & 0xffffffff)
        a(f"s_add_u32 s{sM}, s{sM}, {d}")
        a(f"s_add_u32 s{sMW}, s{sMW}, {d}")
        chunk_of(sSTEP, sROT, step)
        if "nodma" in EXP and step >= 2: return
        chunk_x(sSTEP); chunk_w(sSTEP)
    bn = [1]
    def bar(n, nxt=None):
        a(f"s_waitcnt vmcnt({n}) lgkmcnt(0)")
        if "bst" in EXP and "pre" in EXP: stamp(bn[0], True)
        a("s_barrier")
        if "bst" in EXP and "pre" not in EXP: stamp(bn[0], True)
        bn[0] += 1
        if nxt is not None: issue(nxt)
    def g_setup():
        srd_init([SX, SH, SWS, SDBG, SOUT])
        a(f"s_mul_i32 s{sT7}, s{sXCD}, 24")
        a(f"s_add_u32 s{sT7}, s{sT7}, s{sIDX}")
        a(f"s_lshr_b32 s{sQUAD}, s{sT7}, 1")
        a(f"s_add_u32 s{sQUAD}, s{sQUAD}, 64")
        a(f"s_and_b32 s{sT1}, s{sIDX}, 1")
        a(f"s_lshl_b32 s{sT1}, s{sT1}, 1")
        a("s_waitcnt lgkmcnt(0)")
        conv_setup(sJ, sT1)
        s3_setup()
        wo_prep(vL16)
    sGS, sGO = 1, 0
    a("s_waitcnt lgkmcnt(0)")
    a(f"s_bfe_u32 s{sT0}, s{sIDX}, 0x10002")
    a(f"s_lshl_b32 s{sT1}, s{sCP}, 1")
    a(f"s_add_u32 s{sT0}, s{sT0}, s{sT1}")
    a(f"s_lshl_b32 s{sT0}, s{sT0}, 2")
    a(f"s_add_u32 s{sT0}, s{sT0}, s{sJ}")
    a(f"s_and_b32 s{sT2}, s{sIDX}, 3")
    a(f"s_lshl_b32 s{sT3}, s{sRP}, 2")
    a(f"s_add_u32 s{sT2}, s{sT2}, s{sT3}")
    a(f"s_lshl_b32 s{sGO}, s{sT2}, 4")
    a(f"s_add_u32 s{sGO}, s{sGO}, s{sT0}")
    a(f"s_cmp_ge_u32 s{sIDX}, 16")
    a(f"s_cselect_b32 s{sGS}, 1, 0")
    a(f"s_lshl_b32 s{sT0}, s{sT0}, 10")
    a(f"v_lshlrev_b32 v41, 4, v{vL}")
    srd_init([SGW])
    a(f"s_mov_b32 m0, {L_GW}")
    a(f"v_add_u32 v42, s{sT0}, v41")
    a(f"v_add_u32 v55, {2*SLOT}, v42")
    a(f"s_cmp_ge_u32 s{sIDX}, 16")
    a("s_cbranch_scc0 Lbng")
    a(f"buffer_load_dwordx4 v41, {srd(SGW)}, 0 offen lds")
    a(f"buffer_load_dwordx4 v41, {srd(SGW)}, 0 offen offset:1024 lds")
    a.label("Lbng")
    a(f"s_and_b32 s{sT1}, s{sJ}, 1")
    a(f"s_lshl_b32 s{sT1}, s{sT1}, 2")
    a(f"v_xor_b32 v43, s{sT1}, v2")
    a("v_lshlrev_b32 v43, 4, v43")
    a(f"v_add_u32 v43, {L_GW}, v43")
    a("v_mov_b32 v52, 0")
    a("v_mov_b32 v53, 0")
    g_setup()
    a("v_mov_b32 v44, 128")
    a("v_mov_b32 v45, 132")
    zero_pads(sJ)
    conv_dfrag()
    def gate(step):
        D = a.newlabel("Lg")
        a(f"s_cmp_eq_u32 s{sGS}, 0")
        a(f"s_cbranch_scc1 {D}")
        chunk_of(sT0, sROT, step)
        a(f"s_lshl_b32 s{sT0}, s{sT0}, 7")
        a(f"v_add_u32 v54, s{sT0}, v43")
        if step % 3 == 2: a("ds_read_b128 v[56:59], v55")
        else: a(f"ds_read_b128 v[56:59], v42 offset:{SLOT*(step%3)}")
        a("ds_read_b128 v[60:63], v54")
        a("s_waitcnt lgkmcnt(0)")
        for i in range(4): a(f"v_dot2c_f32_bf16 v{52+(i&1)}, v{56+i}, v{60+i}")
        a.label(D)
    issue(1)
    for c in range(0, 8):
        bar(9)
        if c == 0: stamp(1)
        issue(c + 2)
        gate(c)
    a(f"s_mov_b32 s{sEPS}, 0x358637bd")
    a(f"s_sub_u32 s{sT1}, s{sCH}, s{sLC}")
    bar(9)
    a(f"buffer_load_dwordx2 v[46:47], v44, {srd(SDBG)}, 0 offen sc1")
    h_dma(sJ, sT1)
    gate(8)
    a("s_waitcnt vmcnt(3)")
    a("s_barrier")
    a("s_setprio 3")
    gate(9)
    a(f"s_cmp_eq_u32 s{sGS}, 0")
    a("s_cbranch_scc1 Lbg")
    a("v_add_f32 v52, v52, v53")
    for ctl in ("quad_perm:[1,0,3,2]", "quad_perm:[2,3,0,1]", "row_half_mirror"):
        a(f"v_add_f32_dpp v52, v52, v52 {ctl} row_mask:0xf bank_mask:0xf")
    a(f"v_mul_f32 v52, 0xbfb8aa3b, v52")
    a(f"v_exp_f32 v52, v52")
    a(f"v_lshrrev_b32 v53, 1, v{vL}")
    a(f"v_add_f32 v52, 1.0, v52")
    a(f"v_rcp_f32 v52, v52")
    a(f"s_lshl_b32 s{sT0}, s{sGO}, 5")
    a(f"s_add_u32 s{sT0}, s{sT0}, {WS_G}")
    a("s_mov_b32 exec_lo, 0x01010101")
    a("s_mov_b32 exec_hi, 0x01010101")
    a(f"buffer_store_dword v52, v53, {srd(SWS)}, s{sT0} offen sc1")
    a("s_mov_b64 exec, -1")
    a.label("Lbg")
    a("s_setprio 0")
    a("s_waitcnt vmcnt(2)")
    poll(45, 47, "landed", S=SDBG)
    stamp(2)
    a(f"v_mov_b32 v48, {L_CNT+8}")
    a(f"v_readfirstlane_b32 s{sUD}, v46")
    a(f"s_cmp_eq_u32 s{sUD}, 0")
    a("s_cbranch_scc1 Lbl1")
    u_dma(sJ, 4)
    a.label("Lbl1")
    wl = wo_list(vL16)
    for x in wl[:8]: a(x)
    for x in wl[8:16]: a(x)
    a(f"s_cmp_lg_u32 s{sUD}, 0")
    a("s_cbranch_scc1 Lbl2")
    cnt_load(SDBG, 44, 46)
    a.label("Lbl2")
    for x in wl[16:]: a(x)
    x_loads()
    a("s_waitcnt vmcnt(11)")
    a(f"s_cmp_lg_u32 s{sUD}, 0")
    a("s_cbranch_scc1 Lbl3")
    a(f"v_readfirstlane_b32 s{sT0}, v46")
    a(f"s_cmp_eq_u32 s{sT0}, 0")
    a("s_cbranch_scc1 Lbl4")
    u_dma(sJ, 4)
    a("s_barrier")
    a("s_branch Lbl5")
    a.label("Lbl4")
    a("s_barrier")
    poll(44, 46, S=SDBG)
    u_dma(sJ, 4)
    a.label("Lbl5")
    a("s_waitcnt vmcnt(0)")
    lds_arrive(48, 49)
    a("s_branch Lbl6")
    a.label("Lbl3")
    lds_arrive(48, 49)
    a("s_barrier")
    a.label("Lbl6")
    lds_wait(48, 49, 4)
    stamp(3)
    a("s_branch Lconv")

def ctype():
    a.label("Lctype")
    ka_rest()
    common_scalars()
    a(f"s_mov_b32 s{sQUAD}, s{sCI}")
    a(f"s_cmp_ge_u32 s{sW}, 6")
    a("s_cbranch_scc1 Lcaux")
    a(f"s_mov_b32 s{sTB}, s{sCI}")
    a(f"s_mov_b32 s{sCHB}, s{sW}")
    s0_loads()
    srd_init([SX, SWQ, SGW, SH, SWS, SDBG, SOUT])
    zero_pads(sW)
    a(f"s_mov_b32 s{sT1}, 0")
    conv_setup(sW, sT1)
    a(f"s_cmp_ge_u32 s{sW}, {4-NQ}")
    a("s_cbranch_scc1 Lc1")
    a(f"s_add_u32 s{sCHB}, s{sW}, 6")
    s0_loads(28, False)
    a(f"s_mov_b32 s{sCHB}, s{sW}")
    a.label("Lc1")
    s3_setup()
    wo_prep(vL16)
    conv_dfrag()
    a.label("Lcs0")
    a(f"s_mul_i32 s{sT2}, s{sW}, 4608")
    a(f"s_add_u32 s{sT2}, s{sT2}, {L_S0C}")
    s0_addr(sT2)
    a(f"s_cmp_lt_u32 s{sW}, {4-NQ}")
    a("s_cbranch_scc1 Lc2")
    a("s_waitcnt vmcnt(0)")
    a.label("Lc2")
    a("s_waitcnt vmcnt(15)")
    s0_compute()
    stamp(1)
    a(f"s_cmp_ge_u32 s{sW}, {4-NQ}")
    a("s_cbranch_scc1 Lcjoin")
    a(f"s_add_u32 s{sCHB}, s{sW}, 6")
    s0_addr(sT2)
    a("s_waitcnt vmcnt(4)")
    s0_compute(LB=28)
    a("s_branch Lcjoin")

    a.label("Lcaux")
    a("s_setprio 3")
    srd_init([SWO, SWS, SX, SH, SDBG, SOUT])
    a(f"s_sub_u32 s{sUD}, s{sW}, 6")
    a(f"s_lshl_b32 s{sVAR}, s{sCI}, 1")
    a(f"s_add_u32 s{sVAR}, s{sVAR}, s{sUD}")
    for i in range(4): a(f"v_mov_b32 v{52+i}, 0")
    a(f"v_lshlrev_b32 v15, 3, v{vL}")
    a(f"s_lshl_b32 s{sT0}, s{sVAR}, 9")
    a(f"s_add_u32 s{sT0}, s{sT0}, {WS_KV}")
    a("s_waitcnt lgkmcnt(0)")
    a(f"buffer_store_dwordx2 v[52:53], v15, {srd(SWS)}, s{sT0} offen sc1")
    a(f"s_mul_i32 s{sT0}, s{sVAR}, 768")
    a(f"s_add_u32 s{sT0}, s{sT0}, {WS_C}")
    a(f"v_lshlrev_b32 v16, 8, v{vL}")
    a("s_mov_b64 exec, 7")
    a(f"buffer_store_dword v52, v16, {srd(SWS)}, s{sT0} offen sc1")
    a("s_mov_b64 exec, -1")
    a.label("Lcrp")
    sKQ, sF, sCGR = sCHL, sCH, sJ
    a(f"s_lshr_b32 s{sT0}, s{sVAR}, 2")
    a(f"s_and_b32 s{sCGR}, s{sVAR}, 3")
    a(f"s_mul_i32 s{sKQ}, s{sT0}, 52")
    a(f"s_lshr_b32 s{sKQ}, s{sKQ}, 8")
    a(f"s_mul_i32 s{sT1}, s{sKQ}, 5")
    a(f"s_sub_u32 s{sF}, s{sT0}, s{sT1}")
    a(f"s_mul_i32 s{sT0}, s{sF}, 20")
    a(f"s_cmp_eq_u32 s{sF}, 4")
    a(f"s_cselect_b32 s{sT0}, 16, s{sT0}")
    a(f"s_cselect_b32 s{sT2}, 16, 0")
    a(f"s_mul_i32 s{sT1}, s{sKQ}, 80")
    a(f"s_add_u32 s{sT0}, s{sT0}, s{sT1}")
    a(f"s_mul_i32 s{sT0}, s{sT0}, 1280")
    a(f"s_mul_i32 s{sT1}, s{sCGR}, 320")
    a(f"s_add_u32 s{sT0}, s{sT0}, s{sT1}")
    a(f"s_lshr_b32 s{sT3}, s{sVAR}, 7")
    a(f"s_lshl_b32 s{sT3}, s{sT3}, 1")
    a(f"s_add_u32 s{sT3}, s{sT3}, s{sUD}")
    a(f"s_mul_i32 s{sT3}, s{sT3}, 5120")
    a(f"s_add_u32 s{sT3}, s{sT3}, {L_RPC}")
    a("s_waitcnt lgkmcnt(0)")
    for i in range(5):
        a(f"v_add_u32 v14, {64*i}, v{vL}")
        div20(15, 16, 14)
        a("v_lshrrev_b32 v17, 2, v15")
        a(f"v_mad_u32_u24 v15, v17, s{sT2}, v15")
        a("v_mul_u32_u24 v15, 1280, v15")
        a("v_lshl_add_u32 v15, v16, 4, v15")
        a(f"s_add_u32 m0, s{sT3}, {1024*i}")
        a(f"buffer_load_dwordx4 v15, {srd(SWO)}, s{sT0} offen lds")
    a(f"s_add_u32 s{sVAR}, s{sVAR}, 128")
    a(f"s_cmp_lt_u32 s{sVAR}, 160")
    a("s_cbranch_scc1 Lcrp")
    a(f"s_and_b32 s{sVAR}, s{sVAR}, 127")
    a("s_waitcnt vmcnt(0)")
    a.label("Lcrp2")
    sKQ, sF, sCGR = sCHL, sCH, sJ
    a(f"s_lshr_b32 s{sT0}, s{sVAR}, 2")
    a(f"s_and_b32 s{sCGR}, s{sVAR}, 3")
    a(f"s_mul_i32 s{sKQ}, s{sT0}, 52")
    a(f"s_lshr_b32 s{sKQ}, s{sKQ}, 8")
    a(f"s_mul_i32 s{sT1}, s{sKQ}, 5")
    a(f"s_sub_u32 s{sF}, s{sT0}, s{sT1}")
    a(f"s_lshr_b32 s{sT3}, s{sVAR}, 7")
    a(f"s_lshl_b32 s{sT3}, s{sT3}, 1")
    a(f"s_add_u32 s{sT3}, s{sT3}, s{sUD}")
    a(f"s_mul_i32 s{sT3}, s{sT3}, 5120")
    a(f"s_add_u32 s{sT3}, s{sT3}, {L_RPC}")
    a(f"v_lshrrev_b32 v14, 5, v{vL}")
    a(f"v_bfe_u32 v15, v{vL}, 2, 2")
    a("v_lshl_add_u32 v14, v14, 2, v15")
    a("v_mul_u32_u24 v14, 320, v14")
    a(f"v_bfe_u32 v15, v{vL}, 4, 1")
    a("v_lshl_add_u32 v14, v15, 5, v14")
    a(f"v_and_b32 v15, 3, v{vL}")
    a("v_lshl_add_u32 v14, v15, 3, v14")
    a(f"v_add_u32 v14, s{sT3}, v14")
    a(f"s_mul_i32 s{sT0}, s{sKQ}, 5")
    a(f"s_add_u32 s{sT0}, s{sT0}, s{sF}")
    a(f"s_cmp_ge_u32 s{sKQ}, 3")
    a(f"s_cselect_b32 s{sT1}, 10, 0")
    a(f"s_cmp_ge_u32 s{sKQ}, 6")
    a(f"s_cselect_b32 s{sT1}, -15, s{sT1}")
    a(f"s_cselect_b32 s{sT2}, 25, 50")
    a(f"s_add_u32 s{sT0}, s{sT0}, s{sT1}")
    a(f"s_mul_i32 s{sT1}, s{sCGR}, 200")
    a(f"s_add_u32 s{sT0}, s{sT0}, s{sT1}")
    a(f"s_lshl_b32 s{sT0}, s{sT0}, 10")
    a(f"s_add_u32 s{sT0}, s{sT0}, {WS_WOP}")
    a(f"s_lshl_b32 s{sT2}, s{sT2}, 10")
    a(f"s_lshr_b32 s{sT4}, s{sKQ}, 1")
    a(f"s_mul_i32 s{sT4}, s{sT4}, 25")
    a(f"s_and_b32 s{sT5}, s{sKQ}, 1")
    a(f"s_mul_i32 s{sT5}, s{sT5}, 5")
    a(f"s_add_u32 s{sT4}, s{sT4}, s{sT5}")
    a(f"s_add_u32 s{sT4}, s{sT4}, s{sF}")
    a(f"s_add_u32 s{sT4}, s{sT4}, s{sT1}")
    a(f"s_add_u32 s{sT4}, s{sT4}, 115")
    a(f"s_lshl_b32 s{sT4}, s{sT4}, 10")
    a(f"s_add_u32 s{sT4}, s{sT4}, {WS_WOP}")
    a(f"v_lshlrev_b32 v15, 4, v{vL}")
    for t in range(5):
        for jh in range(2): a(f"ds_read_b64_tr_b16 {vr(32+4*t+2*jh,2)}, v14 offset:{jh*2560+t*64}")
    a("s_waitcnt lgkmcnt(0)")
    for t in range(4):
        a(f"buffer_store_dwordx4 {vr(32+4*t,4)}, v15, {srd(SWS)}, s{sT0} offen sc1")
        a(f"s_add_u32 s{sT0}, s{sT0}, s{sT2}")
    a(f"buffer_store_dwordx4 {vr(48,4)}, v15, {srd(SWS)}, s{sT4} offen sc1")
    a(f"s_add_u32 s{sVAR}, s{sVAR}, 128")
    a(f"s_cmp_lt_u32 s{sVAR}, 160")
    a("s_cbranch_scc1 Lcrp2")
    a("v_mov_b32 v60, 0")
    a("s_waitcnt vmcnt(0)")
    darr_issue(60, 61, 4)
    a(f"s_mov_b32 s{sT1}, 0")
    conv_setup(sW, sT1)
    darr_finish(60, 61, 4, 128)
    a("s_setprio 0")
    stamp(1)
    s3_setup()
    wo_prep(vL16)
    conv_dfrag()

    a.label("Lcjoin")
    a("s_waitcnt vmcnt(0)")
    stamp(2)
    a("s_barrier")
    a(f"s_cmp_lg_u32 s{sW}, 7")
    a("s_cbranch_scc1 Lc7")
    darr_issue(vZ, 45, 0)
    a.label("Lc7")
    a(f"s_lshl_b32 s{sT1}, s{sCI}, 2")
    h_dma(sW, sT1)
    a(f"s_cmp_ge_u32 s{sW}, 4")
    a("s_cbranch_scc1 Lc7b")
    a("v_mov_b32 v44, 132")
    poll(44, 46, S=SDBG, sleep=4)
    for x in wo_list(vL16): a(x)
    x_loads()
    a.label("Lc7b")
    a(f"s_cmp_lg_u32 s{sW}, 7")
    a("s_cbranch_scc1 Lc8")
    a("s_setprio 3")
    darr_finish(vZ, 45, 0, NU, 2)
    a(f"v_and_b32 v44, 1, v{vL}")
    a("v_lshl_add_u32 v44, v44, 2, 64")
    a("v_add_u32 v44, 64, v44")
    poll(44, 46, S=SDBG)
    a.label("Lc8")
    stamp(11)
    a("s_barrier")
    stamp(12)
    u_dma(sW, 2)
    a("s_waitcnt vmcnt(0) lgkmcnt(0)")
    a("s_barrier")
    stamp(3)
    a("s_setprio 2")
    a(f"s_cmp_lt_u32 s{sW}, 4")
    a("s_cbranch_scc1 Lconv2")
    a("s_setprio 0")
    for x in wo_list(vL16): a(x)
    x_loads()

def conv_body(tiles):
    seq = []
    for b in range(4):
        if tiles[0] == 0:
            for aa in range(8):
                for ti in (3, 2):
                    d = tiles[ti] - aa
                    if d >= 0:
                        seq.append((ti, ("H", 4 * aa + b, 0), ("U", 4 * d - b)))
                        if b == 0 and aa == 0: seq.append((ti, ("D",), ("U", 4 * d)))
                if aa == 5:
                    seq.append((1, ("H", b, 1), ("U", 4 - b)))
                    if b == 0: seq.append((1, ("D",), ("U", 4)))
                if aa == 6:
                    seq.append((0, ("H", b, 1), ("U", -b)))
                    if b == 0: seq.append((0, ("D",), ("U", 0)))
                    seq.append((1, ("H", 4 + b, 1), ("U", -b)))
        else:
            for aa in range(6):
                for ti in (3, 2, 1, 0):
                    d = tiles[ti] - aa
                    if d >= 0:
                        seq.append((ti, ("H", 4 * aa + b, 0), ("U", 4 * d - b)))
                        if b == 0 and aa == 0: seq.append((ti, ("D",), ("U", 4 * d)))
    assert len(seq) == 76
    last = {}; order = []
    for i, (ti, h, u) in enumerate(seq):
        for k in (u, h):
            if k[0] == "D": continue
            if k not in last: order.append(k)
            last[k] = i
    free = list(range(NPOOL))
    where = {}; done_at = {}
    nds = [0]; li = [0]
    def issue(maxn):
        n = 0
        while li[0] < len(order) and free and n < maxn:
            k = order[li[0]]; li[0] += 1
            bfr = free.pop(0); where[k] = bfr
            r = CPOOL + 4 * bfr
            if k[0] == "U":
                a(f"ds_read_b128 {vr(r,4)}, v{vUo if k[1]&1 else vUe} offset:{(k[1]+3)*512}")
                nds[0] += 1; n += 1
            else:
                a(f"ds_read_b64_tr_b16 {vr(r,2)}, v{vH} offset:{128*k[1]+32}")
                a(f"ds_read_b64_tr_b16 {vr(r+2,2)}, v{vH} offset:{128*k[1]}")
                nds[0] += 2; n += 2
            done_at[k] = nds[0]
    issue(10)
    started = set(); known = 0
    wl = wo_list(vL16); wi = 25 if "delayconv" in EXP else 0
    for i, (ti, h, u) in enumerate(seq):
        needn = max(done_at[k] for k in (u, h) if k[0] != "D")
        if needn > known:
            cnt = min(nds[0] - needn, 15)
            a(f"s_waitcnt lgkmcnt({cnt})")
            known = nds[0] - cnt
        d = vr(CACC + 16 * ti, 16)
        hb = CD if h[0] == "D" else CPOOL + 4 * where[h]
        a(f"v_mfma_f32_32x32x16_bf16 {d}, {vr(CPOOL+4*where[u],4)}, {vr(hb,4)}, {d if ti in started else '0'}")
        started.add(ti)
        for k in (u, h):
            if k[0] != "D" and last[k] == i: free.append(where[k])
        issue(2)

def conv_epi(var):
    runs = [[*range(0, 8)], [*range(8, 16)]] if var == 0 else [[*range(16)]]
    out_g = 7 if var == 0 else 15
    in_g = 8 if var == 0 else 0
    SPL = 96
    a(f"buffer_load_dword v{vFT}, v{vFK}, {srd(SWS)}, 0 offen sc1")
    a("s_nop 7")
    a("s_nop 3")
    for step in (2, 1, 0):
        a("s_mov_b32 exec_lo, 0")
        a("s_mov_b32 exec_hi, 0x80000000")
        a(f"v_mov_b32 v{SPL+step}, v{CACC+4*out_g+step+1}")
        for run in runs:
            for g in reversed(run):
                src = f"v{CACC+4*(g-1)+step+1}" if g != run[0] else "0"
                a(f"v_mov_b32 v{CACC+4*g+step+1}, {src}")
        if step == 0:
            a(f"ds_write_b96 v{vCS}, {vr(SPL,3)}")
            a("v_mov_b32 v100, 1")
            a(f"ds_add_u32 v{vCN}, v100")
        a("s_mov_b64 exec, -1")
        for g in reversed(range(16)):
            r = CACC + 4 * g + step
            a(f"v_add_f32_dpp v{r}, v{r+1}, v{r} wave_ror:1 row_mask:0xf bank_mask:0xf")
    a(f"v_xor_b32 v101, 16, v{vCS}")
    a(f"v_lshl_add_u32 v101, v{vL}, 2, v101")
    PK = 104
    other = [k for k in range(8) if k != in_g // 2]
    for k in other: a(f"v_cvt_pk_bf16_f32 v{PK+k}, v{CACC+8*k}, v{CACC+8*k+4}")
    oh = 1 - in_g // 8
    a(f"ds_write_b128 v{vCW}, {vr(PK+4*oh,4)} offset:{1024*oh}")
    lds_wait(vCN, 100, 2)
    a("s_mov_b64 exec, 7")
    a("ds_read_b32 v100, v101")
    a("s_waitcnt lgkmcnt(0)")
    a(f"v_add_f32 v{CACC+4*in_g}, v{CACC+4*in_g}, v100")
    a("s_mov_b64 exec, -1")
    k = in_g // 2
    a(f"v_cvt_pk_bf16_f32 v{PK+k}, v{CACC+8*k}, v{CACC+8*k+4}")
    a(f"ds_write_b128 v{vCW}, {vr(PK+4*(1-oh),4)} offset:{1024*(1-oh)}")
    T0, T1 = (0, 6) if var == 0 else (2, 4)
    a(f"s_lshl_b32 s{sT5}, s{sCH}, 6")
    a(f"s_add_u32 s{sT4}, s{sT5}, {WS_Y + T0*8*40960}")
    a(f"s_add_u32 s{sT5}, s{sT5}, {WS_Y + T1*8*40960}")
    a(f"s_lshr_b32 s{sT6}, s{sCH}, 5")
    a(f"s_lshl_b32 s{sT6}, s{sT6}, 8")
    a(f"s_add_u32 s{sT6}, s{sT6}, {WS_FY + var*20*256}")

def conv():
    a.label("Lconv")
    a("s_setprio 1")
    a.label("Lconv2")
    a(f"s_cmp_eq_u32 s{sVAR}, 1")
    a("s_cbranch_scc1 Lconvy")
    conv_body([0, 1, 6, 7])
    stamp(4)
    conv_epi(0)
    a("s_branch Lconve")
    a.label("Lconvy")
    conv_body([2, 3, 4, 5])
    stamp(4)
    conv_epi(1)
    a.label("Lconve")
    for n in range(2):
        a(f"ds_read_b64_tr_b16 {vr(136+4*n,2)}, v{vCT} offset:{1024*n}")
        a(f"ds_read_b64_tr_b16 {vr(138+4*n,2)}, v{vCT} offset:{1024*n+64}")
    arr_prep(152, 153)
    for n in range(2):
        a(f"s_waitcnt lgkmcnt({2-2*n})")
        a(f"buffer_store_dwordx4 {vr(136+4*n,4)}, v{vCY}, {srd(SWS)}, s{sT5 if n else sT4} offen sc1")
    stamp(13)
    a("s_branch Ls3b")

def s3():
    a.label("Ls3")
    a.c("S3")
    PQ, RAW, KF = 32, 52, 116
    plan = []
    for i in range(4):
        for st in range(2):
            for jh in range(2):
                du0 = 4 * (i + st) + 2 * jh - 5 * i
                plan.append((i, st, jh, du0, 0 <= du0 <= 4, 0 <= du0 + 1 <= 4))
    sPD = sT2
    def fl(): a(f"buffer_load_dword v{vFT}, v{vFK}, {srd(SWS)}, 0 offen sc1")
    def pql():
        for f in range(4): a(f"buffer_load_dwordx4 {vr(PQ+4*f,4)}, v{vL16}, {srd(SWS)}, s{sPQO} offen offset:{1024*f} sc1")
        a(f"buffer_load_dwordx4 {vr(PQ+16,4)}, v{vL16}, {srd(SWS)}, s{sT1} offen sc1")
    def pre():
        for (i, st, jh, du0, v0ok, v1ok) in plan:
            if v0ok != v1ok:
                for j in range(4): a(f"v_mov_b32 v{RAW+16*i+8*st+4*jh+j}, 0")
        a(f"s_add_u32 s{sT1}, s{sPQO}, 4096")
        a(f"s_add_u32 s{sT3}, s{sKVO}, {2*KVH}")
        a(f"s_mov_b32 s{sPD}, 0")
        a(f"s_mov_b32 s{sCNT}, 0x40000")
    wl = wo_list(vL16)
    for x in wl[:20]: a(x)
    fl()
    for x in wl[20:]: a(x)
    x_loads()
    a("s_setprio 1")
    pre()
    a(f"s_mov_b32 s{sUD}, 0")
    a("s_waitcnt vmcnt(7)")
    a("s_branch Ls3ev")
    a.label("Ls3b")
    pre()
    a(f"s_mov_b32 s{sUD}, 2")
    a("s_waitcnt vmcnt(2)")
    a("s_branch Ls3ev")
    a.label("Ls3sl")
    a("s_sleep 2")
    a.label("Ls3lp")
    fl()
    a("s_waitcnt vmcnt(0)")
    a(f"s_cmp_eq_u32 s{sUD}, 0")
    a("s_cbranch_scc1 Ls3ev")
    a(f"s_sub_u32 s{sUD}, s{sUD}, 1")
    a(f"s_cmp_eq_u32 s{sUD}, 0")
    a("s_cbranch_scc1 Ls3af")
    arr_issue(152, 153, f"s{sT6}")
    a("s_branch Ls3ev")
    a.label("Ls3af")
    arr_finish(152, 153, f"s{sT6}", 32)
    a.label("Ls3ev")
    a(f"v_cmp_ne_u32 vcc, s{sTAG}, v{vFT}")
    a(f"s_sub_u32 s{sCNT}, s{sCNT}, 1")
    a("s_cbranch_scc1 Ls3go")
    a(f"s_cmp_lg_u32 s{sPD}, 0")
    a("s_cbranch_scc1 Ls3k")
    a("s_bitcmp1_b32 vcc_lo, 0")
    a("s_cbranch_scc1 Ls3sl")
    pql()
    a(f"s_mov_b32 s{sPD}, 1")
    a(f"v_readlane_b32 s{sT0}, v{vFK}, 1")
    a(f"v_mov_b32 v{vFK}, s{sT0}")
    a.label("Ls3k")
    a("s_cmp_lg_u32 vcc_hi, 0")
    a("s_cbranch_scc1 Ls3sl")
    a.label("Ls3go")
    stamp(6)
    nload = [0] * 4
    for (i, st, jh, du0, v0ok, v1ok) in plan:
        if not (v0ok or v1ok): continue
        off = (i & 1) * KVH + du0 * 336
        part = v0ok != v1ok
        if part: a(f"s_mov_b32 exec_{'hi' if v0ok else 'lo'}, 0")
        a(f"buffer_load_dwordx4 {vr(RAW+16*i+8*st+4*jh,4)}, v{vKO if i&1 else vKE}, {srd(SWS)}, s{sT3 if i>>1 else sKVO} offen offset:{off} sc1")
        if part: a("s_mov_b64 exec, -1")
        nload[i] += 1
    a(f"s_cmp_lg_u32 s{sUD}, 2")
    a("s_cbranch_scc1 Ls3n2")
    a("s_waitcnt vmcnt(12)")
    arr_issue(152, 153, f"s{sT6}")
    a("s_branch Ls3n3")
    a.label("Ls3n2")
    a(f"buffer_load_dword v{vFT}, v{vFK}, {srd(SWS)}, 0 offen sc1")
    a.label("Ls3n3")
    rem = sum(nload) + 1
    for i in range(4):
        rem -= nload[i]
        a(f"s_waitcnt vmcnt({rem})")
        kf = KF + 8 * (i & 1)
        for (i2, st, jh, du0, v0ok, v1ok) in plan:
            if i2 != i: continue
            for j in range(2):
                d = kf + 4 * st + 2 * jh + j; s = RAW + 16 * i + 8 * st + 4 * jh + 2 * j
                if v0ok or v1ok: a(f"v_cvt_pk_bf16_f32 v{d}, v{s}, v{s+1}")
                else: a(f"v_mov_b32 v{d}, 0")
        d = vr(RAW + 16 * i, 16)
        a(f"v_mfma_f32_32x32x16_bf16 {d}, {vr(kf,4)}, {vr(PQ+4*i,4)}, 0")
        a(f"v_mfma_f32_32x32x16_bf16 {d}, {vr(kf+4,4)}, {vr(PQ+4*i+4,4)}, {d}")
    if "sx" in EXP: stamp(11)
    a(f"s_cmp_eq_u32 s{sUD}, 0")
    a("s_cbranch_scc1 Ls3n4")
    arr_finish(152, 153, f"s{sT6}", 32, 0)
    a.label("Ls3n4")
    a(f"s_cmp_ge_u32 s{sW}, 5")
    a("s_cbranch_scc1 Ls3n5")
    a(f"buffer_load_dword v{vFT}, v{vFY}, {srd(SWS)}, 0 offen sc1")
    a.label("Ls3n5")
    OF = 132
    for i in range(4):
        D = RAW + 16 * i
        a(f"v_add_f32 v{D+12}, s{sEPS}, v{D+12}")
        a(f"v_rcp_f32 v{D+12}, v{D+12}")
        for j in range(8): a(f"v_mul_f32 v{D+j}, v{D+j}, v{D+12}")
        for j in range(4): a(f"v_cvt_pk_bf16_f32 v{OF+4*i+j}, v{D+2*j}, v{D+2*j+1}")
        a(f"ds_write_b128 v{vOW}, {vr(OF+4*i,4)} offset:{1024*i}")
        if i & 1 == 0:
            for j in range(4): a(f"v_mul_f32 v{D+8+j}, v{D+8+j}, v{D+12}")
        else:
            for j in range(4): a(f"v_fmac_f32 v{D-8+j}, v{D+8+j}, v{D+12}")
            for j in range(2): a(f"v_cvt_pk_bf16_f32 v{OF+16+2*(i>>1)+j}, v{D-8+2*j}, v{D-8+2*j+1}")
    a(f"ds_write_b128 v{vOW}, {vr(OF+16,4)} offset:4096")
    a(f"s_mov_b32 s{sUD}, 1")
    a(f"s_cmp_ge_u32 s{sW}, 5")
    a("s_cbranch_scc1 Ls3y1")
    a("s_waitcnt vmcnt(0)")
    a(f"v_cmp_ne_u32 vcc, s{sTAG}, v{vFT}")
    a(f"s_mov_b32 m0, s{sYM}")
    a("s_cbranch_vccnz Ls3y0")
    a(f"buffer_load_dwordx4 v{vL16}, {srd(SWS)}, s{sYO} offen sc1 lds")
    a(f"buffer_load_dwordx4 v{vL16}, {srd(SWS)}, s{sYO} offen offset:1024 sc1 lds")
    a("s_branch Ls3y1")
    a.label("Ls3y0")
    a(f"s_mov_b32 s{sUD}, 0")
    a(f"buffer_load_dword v{vFT}, v{vFY}, {srd(SWS)}, 0 offen sc1")
    a.label("Ls3y1")
    if "nog3prio" not in EXP:
        a(f"s_cmp_ge_u32 s{sW}, 4")
        a("s_cbranch_scc1 Ls3y2")
        a("s_setprio 2")
        a.label("Ls3y2")
    a("s_waitcnt lgkmcnt(0)")
    if "sx" in EXP: stamp(12)
    a("s_barrier")
    stamp(7)
    a(f"buffer_load_dword v{vG}, v{vGO}, {srd(SWS)}, 0 offen sc1")
    NB = 8; POOL = 32; AP, AR = 64, 80
    def ord_(i): return (vPR, 1024 * i) if i < 15 else (vRR, 1024 * (i - 15))
    for i in range(NB):
        v, o = ord_(i); a(f"ds_read_b128 {vr(POOL+4*i,4)}, v{v} offset:{o}")
    XF = 96
    pre = [f"s_mov_b32 s{sT0}, 0xffff0000"]
    for n, xd in enumerate((vXD, vXD2)):
        for j in range(4):
            pre.append(f"v_lshlrev_b32 v{XF+8*n+2*j}, 16, v{xd+j}")
            pre.append(f"v_and_b32 v{XF+8*n+2*j+1}, s{sT0}, v{xd+j}")
    issued = NB
    log = list(range(NB))
    for i in range(25):
        pos = log.index(i)
        a(f"s_waitcnt lgkmcnt({min(len(log)-1-pos,15)})")
        d = vr(AP if i < 15 else AR, 16)
        a(f"v_mfma_f32_32x32x16_bf16 {d}, {vr(VWO+4*i,4)}, {vr(POOL+4*(i%NB),4)}, {'0' if i in (0,15) else d}")
        if issued < 25:
            v, o = ord_(issued); a(f"ds_read_b128 {vr(POOL+4*(issued%NB),4)}, v{v} offset:{o}"); log.append(issued); issued += 1
        if i < 12:
            for x in pre[3 * i:3 * i + 3]: a(x)
        if i == 7:
            a(f"s_cmp_eq_u32 s{sUD}, 1")
            a("s_cbranch_scc1 Ls3ny")
            poll(vFY, vFT, "issued")
            stamp(5)
            a(f"buffer_load_dwordx4 v{vL16}, {srd(SWS)}, s{sYO} offen sc1 lds")
            a(f"buffer_load_dwordx4 v{vL16}, {srd(SWS)}, s{sYO} offen offset:1024 sc1 lds")
            a.label("Ls3ny")
        if 19 <= i < 23:
            q = i - 19
            a(f"ds_write_b128 v{vPW+q}, {vr(AP+4*q,4)}"); log.append(-1)
            a(f"v_add_u32 v{vPW+q}, s{sRD}, v{vPW+q}")
    for q in range(4): a(f"ds_write_b128 v{vPW+q}, {vr(AR+4*q,4)}")
    a("s_waitcnt vmcnt(0) lgkmcnt(0)")
    a("s_barrier")
    stamp(8)
    def f_reads(n, R):
        np_ = 3 + n
        for p in range(np_):
            a(f"ds_read_b128 {vr(R+8*p,4)}, v{vPA} offset:{49152*n+4096*p}")
            a(f"ds_read_b128 {vr(R+8*p+4,4)}, v{vPB} offset:{49152*n+4096*p}")
        a(f"ds_read_b64_tr_b16 {vr(R+32,2)}, v{vYT} offset:{8192*n}")
        a(f"ds_read_b64_tr_b16 {vr(R+34,2)}, v{vYT} offset:{8192*n+256}")
    def f_math(n, R, after):
        np_ = 3 + n
        X = XF + 8 * n; YF = R + 36
        a(f"s_waitcnt lgkmcnt({min(after+2*np_+2-4,15)})")
        for j in range(4): a(f"v_pk_add_f32 {vr(R+2*j,2)}, {vr(R+2*j,2)}, {vr(R+8+2*j,2)}")
        a(f"s_waitcnt lgkmcnt({after+2})")
        for p in range(2, np_):
            for j in range(4): a(f"v_pk_add_f32 {vr(R+2*j,2)}, {vr(R+2*j,2)}, {vr(R+8*p+2*j,2)}")
        a(f"s_waitcnt lgkmcnt({after})")
        for j in range(4):
            a(f"v_lshlrev_b32 v{YF+2*j}, 16, v{R+32+j}")
            a(f"v_and_b32 v{YF+2*j+1}, s{sT0}, v{R+32+j}")
        for j in range(4): a(f"v_pk_mul_f32 {vr(X+2*j,2)}, {vr(X+2*j,2)}, {vr(YF+2*j,2)}")
        for j in range(4): a(f"v_pk_add_f32 {vr(R+2*j,2)}, {vr(R+2*j,2)}, {vr(X+2*j,2)} neg_lo:[0,1] neg_hi:[0,1]")
        for j in range(4): a(f"v_pk_fma_f32 {vr(R+2*j,2)}, {vr(R+2*j,2)}, {vr(vG,2)}, {vr(X+2*j,2)} op_sel_hi:[1,0,1]")
        for j in range(4): a(f"v_cvt_pk_bf16_f32 v{R+32+j}, v{R+2*j}, v{R+2*j+1}")
        a(f"buffer_store_dwordx4 {vr(R+32,4)}, v{vOUT}, {srd(SOUT)}, s{sXOFF} offen offset:{256*n}" + (" sc1" if "osc1" in EXP else " nt" if "ont" in EXP else " sc0 sc1" if "osys" in EXP else ""))
    f_reads(0, 32)
    a(f"s_cmp_lt_u32 s{sW}, 2")
    a("s_cbranch_scc1 Lfin2")
    f_math(0, 32, 0)
    a("s_branch Lfin")
    a.label("Lfin2")
    f_reads(1, 112)
    f_math(0, 32, 10)
    f_math(1, 112, 0)
    a.label("Lfin")
    if DIAG:
        a("s_waitcnt vmcnt(0)")
        stamp(9)
        a(f"s_memtime vcc")
        a("s_waitcnt lgkmcnt(0)")
        a(f"s_mov_b32 s{STS+15}, vcc_lo")
        a("v_mov_b32 v2, 0")
        for i in range(16): a(f"v_writelane_b32 v2, s{STS+i}, {i}")
        a(f"v_lshlrev_b32 v3, 2, v{vL}")
        a(f"s_lshl_b32 s{sT0}, s{sBID}, 3")
        a(f"s_add_u32 s{sT0}, s{sT0}, s{sW}")
        a(f"s_lshl_b32 s{sT0}, s{sT0}, 6")
        a(f"s_add_u32 s{sT0}, s{sT0}, {WS_TS}")
        a("s_mov_b64 exec, 0xffff")
        a(f"buffer_store_dword v2, v3, {srd(SWS)}, s{sT0} offen")
        sp = [e for e in EXP if e.startswith("spin")]
        if sp:
            si, wv, lo, hi = [int(x) for x in sp[0][4:].split("_")]
            a(f"s_cmp_lg_u32 s{sW}, {wv}")
            a("s_cbranch_scc1 Lend")
            a(f"s_cmp_lt_u32 s{sIDX}, {lo}")
            a("s_cbranch_scc1 Lend")
            a(f"s_cmp_ge_u32 s{sIDX}, {hi}")
            a("s_cbranch_scc1 Lend")
            if si < 16:
                if "neg" in EXP: a(f"s_sub_u32 s{sT0}, s{sTAG}, s{STS+si}")
                else: a(f"s_sub_u32 s{sT0}, s{STS+si}, s{sTAG}")
                a(f"s_add_u32 s{sT0}, s{sT0}, 5000")
                a(f"s_and_b32 s{sT0}, s{sT0}, 0x7ffffff")
                a(f"s_min_u32 s{sT0}, s{sT0}, 20000")
            else: a(f"s_mov_b32 s{sT0}, 5000")
            a.label("Lspin")
            a("s_memrealtime vcc")
            a("s_waitcnt lgkmcnt(0)")
            a(f"s_sub_u32 s{sT1}, vcc_lo, s{sTAG}")
            a(f"s_and_b32 s{sT1}, s{sT1}, 0x7ffffff")
            a(f"s_cmp_lt_u32 s{sT1}, s{sT0}")
            a("s_cbranch_scc1 Lspin")
        if "dbgts" in EXP:
            a(f"s_cmp_lg_u32 s{sW}, {int([e for e in EXP if e.startswith('wv')][0][2:])}")
            a("s_cbranch_scc1 Lend")
            a(f"s_cmp_ge_u32 s{sIDX}, 16")
            a("s_cbranch_scc1 Lend")
            a("v_cmp_ne_u32 vcc, 0, v2")
            a(f"v_subrev_u32 v2, s{sTAG}, v2")
            a("v_add_u32 v2, 100, v2")
            a("v_and_b32 v2, 0x7ffffff, v2")
            a("v_cndmask_b32 v2, 0, v2, vcc")
            a("s_mov_b64 exec, 0x3fff")
            a(f"buffer_atomic_umax v2, v3, {srd(SDBG)}, 0 offen offset:4 sc1")
    a.label("Lend")
    a("s_endpgm")

entry(); bwave(); awave(); kva(); qa(); ctype(); conv(); s3()

ref = open("cdna_kernels/%s.s.ref" % NAME).read()
head = [l for l in ref.split("\n") if l.startswith(";") and "@launch" not in l]
out = "\n".join(head) + "\n"
out += "; @launch grid=(256,1,1) block=(512,1,1) lds=%d\n" % LDS_BYTES
out += '.amdgcn_target "amdgcn-amd-amdhsa--gfx950"\n.text\n.globl %s_kernel\n.p2align 8\n.type %s_kernel,@function\n%s_kernel:\n' % (NAME, NAME, NAME)
import re
body = a.text()
ntset = []
if "nt" in EXP: ntset += [SK, SV, SH, SWO, SSK, SGW]
if "ntx" in EXP: ntset += [SX, SWQ]
for s_ in ntset:
    body = re.sub(r"(buffer_load_dword\S* [^\n]*%s, [^\n]*?offen(?: offset:\d+)?)( lds)?\n" % re.escape(srd(s_)), lambda m: m.group(1) + " nt" + (m.group(2) or "") + "\n", body)
out += body
out += '''.section .rodata,"a"
.p2align 6
.amdhsa_kernel %s_kernel
  .amdhsa_next_free_vgpr 256
  .amdhsa_next_free_sgpr 102
  .amdhsa_accum_offset 256
  .amdhsa_group_segment_fixed_size 0
  .amdhsa_kernarg_size 104
  .amdhsa_user_sgpr_count 2
  .amdhsa_user_sgpr_kernarg_segment_ptr 1
  .amdhsa_system_sgpr_workgroup_id_x 1
.end_amdhsa_kernel
''' % NAME
dst = [x for x in sys.argv[1:] if not x.startswith("--")]
open(dst[0] if dst else "cdna_kernels/%s.s" % NAME, "w").write(out)
```

```python
import sys
from asmlib import Asm, vr, sr

NAME = "gated_mix__linear_attn_block__ssm_conv_h3__prompt"
DIAG = "--diag" in sys.argv
EXP = [x[6:] for x in sys.argv if x.startswith("--exp=")]

WS_U = 0
WS_PQ = 0x280000
WS_Y = 0x500000
WS_WOP = 0x780000
WS_KV = 0x850000
WS_C = 0x860000
CDELTA = 320 * 256
WS_FK = WS_C
WS_FY = WS_C + 8 * 256
WS_FQ = WS_C + 64 * 256
WS_G = 0x88C000
WS_TS = 0x890000
WS_SIZE = 0x900000
KVH = 1792

NQ = int(([e[2:] for e in EXP if e.startswith("nq")] + ["0"])[0])
NU = 64 + 64 * NQ
Q0 = int(([e[2:] for e in EXP if e.startswith("q0")] + ["2"])[0])
G0, G1 = 16 + 4 * Q0, 32 - 4 * Q0
SLOT = 36864
L_OFR = 36864
L_KVS = 77824
L_YST = 92160
L_PART = 77824
L_UB = 110592
L_UD = L_UB + 2048
L_HB = 129024
HSTR = 4224
L_SP = 145920
L_CNT = 146048
L_TAG = 146112
L_YT = 146176
L_S0C = 0
L_RPC = 49152
L_GW = L_YT + 10240
LDS_BYTES = L_GW + 2048

SX, SWQ, SWO, SK, SV, SSK, SH, SGW, SOUT, SDBG, SWS = [4 + 4 * i for i in range(11)]
SD = 48
sW, sXCD, sIDX, sRP, sCP, sTAG, sCNT = range(50, 57)
sRB, sCG, sQUAD, sCHL, sLC, sVAR, sCH, sJ, sUD = range(57, 66)
sT0, sT1, sT2, sT3, sT4, sT5, sT6, sT7 = range(66, 74)
sLOG = 74
sCI = 76
sDV = 77
STS = 80
sXOFF, sPQO, sKVO, sTB, sYO, sYM = 96, 97, 98, 99, 100, 101
sCHB = 65
sRD = 3
sWOO = 2
sEPS = 79
sBID = 78
def srd(b): return sr(b, 4)

vL = 0
VWO = 156
vL16, vOW, vPR, vRR, vPW = 1, 2, 3, 4, 5
vKE, vKO, vFK, vFY, vZ, vOUT, vPA, vPB, vYT, vFT, vGO = 9, 10, 11, 12, 13, 14, 15, 16, 17, 18, 19
vXD, vG, vXD2 = 20, 24, 28
vFQ, vFE = 27, 25

a = Asm()
BST = [None]
def stamp(i, force=False):
    if "bst" in EXP and not force and i not in (0, 10): return
    if DIAG:
        a(f"{'s_memtime' if 'cyc' in EXP else 's_memrealtime'} vcc")
        a("s_waitcnt lgkmcnt(0)")
        a(f"s_mov_b32 s{STS+i}, vcc_lo")

def poll(vaddr, vdst, state="none", sleep=2, S=None):
    L = a.newlabel("Lpoll"); D = a.newlabel("Lpd")
    if state != "none":
        if state == "issued": a("s_waitcnt vmcnt(0)")
        a(f"v_cmp_ne_u32 vcc, s{sTAG}, v{vdst}")
        a(f"s_cbranch_vccz {D}")
    a(f"s_mov_b32 s{sCNT}, 0x20000")
    a.label(L)
    a(f"buffer_load_dword v{vdst}, v{vaddr}, {srd(S or SWS)}, 0 offen sc1")
    a("s_waitcnt vmcnt(0)")
    a(f"v_cmp_ne_u32 vcc, s{sTAG}, v{vdst}")
    a(f"s_cbranch_vccz {D}")
    if sleep: a(f"s_sleep {sleep}")
    a(f"s_sub_u32 s{sCNT}, s{sCNT}, 1")
    a(f"s_cbranch_scc0 {L}")
    a.label(D)

def cnt_load(S, vaddr, vdst):
    a(f"buffer_load_dword v{vdst}, v{vaddr}, {srd(S)}, 0 offen sc1")

def tag_get(vz, vdst, state="issued"):
    L = a.newlabel("Ltag"); D = a.newlabel("Ltd")
    if state != "none":
        if state == "issued": a("s_waitcnt vmcnt(0)")
        a(f"v_readfirstlane_b32 s{sTAG}, v{vdst}")
        a(f"s_cmp_lg_u32 s{sTAG}, 0")
        a(f"s_cbranch_scc1 {D}")
    a(f"s_mov_b32 s{sCNT}, 0x20000")
    a.label(L)
    a(f"buffer_load_dword v{vdst}, v{vz}, {srd(SDBG)}, 0 offen sc1")
    a("s_waitcnt vmcnt(0)")
    a(f"v_readfirstlane_b32 s{sTAG}, v{vdst}")
    a(f"s_cmp_lg_u32 s{sTAG}, 0")
    a(f"s_cbranch_scc1 {D}")
    a("s_sleep 2")
    a(f"s_sub_u32 s{sCNT}, s{sCNT}, 1")
    a(f"s_cbranch_scc0 {L}")
    a.label(D)

def tag_lds(vtmp):
    a(f"v_mov_b32 v{vtmp}, {L_TAG}")
    a(f"ds_read_b32 v{vtmp}, v{vtmp}")
    a("s_waitcnt lgkmcnt(0)")
    a(f"v_readfirstlane_b32 s{sTAG}, v{vtmp}")

def arr_prep(vt0, vt1):
    a(f"v_mov_b32 v{vt0}, {CDELTA}")
    a(f"v_mov_b32 v{vt1}, 1")
def arr_issue(vt0, vt1, soff):
    a("s_mov_b64 exec, 1")
    a(f"buffer_atomic_add v{vt1}, v{vt0}, {srd(SWS)}, {soff} offen sc0 sc1")
    a("s_mov_b64 exec, -1")
def arr_finish(vt0, vt1, soff, n, wait=0):
    D = a.newlabel("Lal")
    a(f"s_waitcnt vmcnt({wait})")
    a(f"v_readfirstlane_b32 s{sT7}, v{vt1}")
    a(f"s_cmp_lg_u32 s{sT7}, {n-1}")
    a(f"s_cbranch_scc1 {D}")
    flag_store(vt0, vt1, soff)
    a.label(D)
def flag_store(vt0, vt1, soff):
    a(f"v_mov_b32 v{vt0}, 0")
    a(f"v_mov_b32 v{vt1}, s{sTAG}")
    a("s_mov_b64 exec, 1")
    a(f"buffer_store_dword v{vt1}, v{vt0}, {srd(SWS)}, {soff} offen sc1")
    a("s_mov_b64 exec, -1")

def darr_issue(vz, v1, off):
    a(f"v_mov_b32 v{v1}, 1")
    a("s_mov_b64 exec, 1")
    a(f"buffer_atomic_add v{v1}, v{vz}, {srd(SDBG)}, 0 offen offset:{off} sc0 sc1")
    a("s_mov_b64 exec, -1")
def darr_finish(vz, v1, off, n, wait=0):
    D = a.newlabel("Lda")
    a(f"s_waitcnt vmcnt({wait})")
    a(f"v_readfirstlane_b32 s{sT7}, v{v1}")
    a(f"s_cmp_lg_u32 s{sT7}, {n-1}")
    a(f"s_cbranch_scc1 {D}")
    a(f"v_mov_b32 v{v1}, 1")
    a("s_mov_b64 exec, 1")
    a(f"buffer_store_dword v{v1}, v{vz}, {srd(SDBG)}, 0 offen offset:{128+off} sc1")
    a("s_mov_b64 exec, -1")
    a.label(D)

def lds_arrive(vaddr, vtmp):
    a(f"v_mov_b32 v{vtmp}, 1")
    a("s_mov_b64 exec, 1")
    a(f"ds_add_u32 v{vaddr}, v{vtmp}")
    a("s_mov_b64 exec, -1")
def lds_wait(vaddr, vtmp, target):
    L = a.newlabel("Lls"); D = a.newlabel("Lld")
    a(f"s_mov_b32 s{sCNT}, 0x400000")
    a.label(L)
    a(f"ds_read_b32 v{vtmp}, v{vaddr}")
    a("s_waitcnt lgkmcnt(0)")
    a(f"v_readfirstlane_b32 s{sT7}, v{vtmp}")
    a(f"s_cmp_ge_u32 s{sT7}, {target}")
    a(f"s_cbranch_scc1 {D}")
    a(f"s_sub_u32 s{sCNT}, s{sCNT}, 1")
    a(f"s_cbranch_scc0 {L}")
    a.label(D)

def div20(vq, vr_, vp):
    a(f"v_mul_u32_u24 v{vq}, 3277, v{vp}")
    a(f"v_lshrrev_b32 v{vq}, 16, v{vq}")
    a(f"v_mul_u32_u24 v{vr_}, 20, v{vq}")
    a(f"v_sub_u32 v{vr_}, v{vp}, v{vr_}")
for p in range(1000): assert (p * 3277) >> 16 == p // 20

SIZES = {SX: 2621440, SWQ: 2457600, SWO: 819200, SK: 2621440, SV: 2621440, SSK: 5120, SH: 2621440, SGW: 1280, SOUT: 2621440, SDBG: 256, SWS: WS_SIZE}
def srd_init(lst):
    for s in lst:
        a(f"s_mov_b32 s{s+2}, {SIZES[s]}")
        a(f"s_mov_b32 s{s+3}, 0x20000")
def ka_rest():
    if "ka1" not in EXP: return
    for s, off in ((SK, 32), (SV, 40), (SSK, 48), (SWS, 96), (SDBG, 88), (SH, 56), (SWO, 16), (SGW, 72), (SOUT, 80), (SD, 64)):
        a(f"s_load_dwordx2 {sr(s,2)}, s[0:1], {off}")
def common_scalars():
    a(f"s_mov_b32 s{sLOG}, 0x3fb8aa3b")
    a(f"s_mov_b32 s{sLOG+1}, 0x3fb8aa3b")
    a(f"s_mov_b32 s{sEPS}, 0x358637bd")
    a(f"s_mul_i32 s{sT0}, s{sCP}, {32-G0}")
    a(f"s_lshl_b32 s{sCI}, s{sRP}, 4")
    a(f"s_add_u32 s{sCI}, s{sCI}, s{sT0}")
    a(f"s_add_u32 s{sCI}, s{sCI}, s{sIDX}")
    a(f"s_sub_u32 s{sCI}, s{sCI}, s{sXCD}")

def entry():
    a.label("Lentry")
    a(f"s_cmp_ge_u32 s2, 256")
    a("s_cbranch_scc1 Lend")
    if DIAG: a(f"s_memrealtime {sr(sT6,2)}")
    a(f"s_getpc_b64 {sr(sT0,2)}")
    a.label("Lpcref")
    a(f"s_lshr_b32 s{sIDX}, s2, 3")
    a(f"s_mul_i32 s{sT2}, s{sIDX}, 9")
    a("v_min_u32 v1, 8, v0")
    a(f"v_add_lshl_u32 v1, v1, s{sT2}, 7")
    a("v_min_u32 v1, Lend-Lpcref, v1")
    a(f"global_load_dword v255, v1, {sr(sT0,2)}")
    for s, off in ((SX, 0), (SWQ, 8), (SK, 32), (SV, 40), (SSK, 48), (SWS, 96), (SDBG, 88), (SH, 56), (SWO, 16), (SGW, 72), (SOUT, 80), (SD, 64)):
        if "ka1" in EXP and off >= 16: continue
        a(f"s_load_dwordx2 {sr(s,2)}, s[0:1], {off}")
    a("v_lshrrev_b32 v1, 6, v0")
    a(f"v_and_b32 v{vL}, 63, v0")
    a(f"v_readfirstlane_b32 s{sW}, v1")
    a("s_bitcmp1_b32 s2, 2")
    a(f"s_cselect_b32 s{sXCD}, {G1}, {G0}")
    a(f"s_and_b32 s{sRP}, s2, 3")
    a(f"s_bfe_u32 s{sCP}, s2, 0x10002")
    a(f"s_mov_b32 s{sBID}, s2")
    a(f"s_mov_b32 s{sTAG}, 1")
    a(f"s_and_b32 s{sT0}, s{sIDX}, 3")
    a(f"s_lshl_b32 s{sRB}, s{sRP}, 2")
    a(f"s_add_u32 s{sRB}, s{sRB}, s{sT0}")
    if DIAG:
        for i in range(16): a(f"s_mov_b32 s{STS+i}, 0")
        stamp(0)
        a(f"s_mov_b32 s{STS+10}, s{sT6}")
        a(f"s_memtime vcc")
        a("s_waitcnt lgkmcnt(0)")
        a(f"s_mov_b32 s{STS+14}, vcc_lo")
    a(f"s_cmp_ge_u32 s{sIDX}, s{sXCD}")
    a("s_cbranch_scc1 Lctype")
    a(f"s_cmp_lt_u32 s{sW}, 4")
    a("s_cbranch_scc1 Lawave")

def s3_setup(split=None):
    a.c("S3 setup")
    sR3, sC3 = sT2, sT3
    a(f"s_lshr_b32 s{sT0}, s{sIDX}, 1")
    a(f"s_lshl_b32 s{sR3}, s{sRP}, 4")
    a(f"s_add_u32 s{sR3}, s{sR3}, s{sT0}")
    a(f"s_and_b32 s{sT0}, s{sIDX}, 1")
    a(f"s_lshl_b32 s{sC3}, s{sCP}, 1")
    a(f"s_add_u32 s{sC3}, s{sC3}, s{sT0}")
    a(f"v_lshlrev_b32 v{vL16}, 4, v{vL}")
    a(f"v_mov_b32 v{vZ}, 0")
    a(f"v_lshrrev_b32 v24, 4, v{vL}")
    a(f"v_and_b32 v25, 3, v{vL}")
    a(f"v_bfe_u32 v26, v{vL}, 2, 2")
    a(f"s_and_b32 s{sT0}, s{sW}, 1")
    a(f"s_lshl_b32 s{sT1}, s{sT0}, 4")
    a("v_lshl_add_u32 v27, v24, 2, v25")
    a(f"v_add_u32 v27, s{sT1}, v27")
    a(f"v_mul_u32_u24 v{vOUT}, 1280, v27")
    a(f"v_lshl_add_u32 v{vOUT}, v26, 4, v{vOUT}")
    a(f"s_mul_i32 s{sXOFF}, s{sR3}, 40960")
    a(f"s_mul_i32 s{sT4}, s{sC3}, 320")
    a(f"s_add_u32 s{sYO}, s{sXOFF}, {WS_Y}")
    a(f"s_add_u32 s{sXOFF}, s{sXOFF}, s{sT4}")
    a(f"s_lshr_b32 s{sT4}, s{sW}, 1")
    a(f"s_lshl_b32 s{sT5}, s{sT4}, 6")
    a(f"s_add_u32 s{sXOFF}, s{sXOFF}, s{sT5}")
    a(f"s_lshl_b32 s{sT5}, s{sR3}, 7")
    a(f"s_add_u32 s{sT5}, s{sT5}, {WS_G}")
    a(f"v_lshlrev_b32 v{vGO}, 2, v27")
    a(f"v_add_u32 v{vGO}, s{sT5}, v{vGO}")
    a(f"v_bfe_u32 v{vPA}, v27, 1, 1")
    a(f"v_and_b32 v{vPB}, 1, v27")
    a(f"v_lshl_or_b32 v{vPA}, v{vPB}, 1, v{vPA}")
    a(f"v_and_or_b32 v{vPA}, v27, 4, v{vPA}")
    a(f"v_lshlrev_b32 v{vPB}, 1, v26")
    a(f"v_xor_b32 v{vPA}, v{vPA}, v{vPB}")
    a(f"v_lshlrev_b32 v{vPA}, 4, v{vPA}")
    a(f"v_lshl_add_u32 v{vPA}, v27, 7, v{vPA}")
    a(f"s_mul_i32 s{sT5}, s{sT4}, 12288")
    a(f"s_add_u32 s{sT5}, s{sT5}, {L_PART}")
    a(f"v_add_u32 v{vPA}, s{sT5}, v{vPA}")
    a(f"v_xor_b32 v{vPB}, 16, v{vPA}")
    a(f"v_lshl_add_u32 v{vYT}, v25, 3, v26")
    a(f"v_lshlrev_b32 v{vYT}, 6, v{vYT}")
    a(f"v_lshl_add_u32 v{vYT}, v24, 3, v{vYT}")
    a(f"s_lshl_b32 s{sT4}, s{sT4}, 11")
    a(f"s_lshl_b32 s{sT1}, s{sT1}, 1")
    a(f"s_add_u32 s{sT4}, s{sT4}, s{sT1}")
    a(f"s_add_u32 s{sT4}, s{sT4}, {L_YT}")
    a(f"v_add_u32 v{vYT}, s{sT4}, v{vYT}")
    if split: split(0)
    a(f"v_and_b32 v24, 31, v{vL}")
    a(f"v_lshrrev_b32 v25, 5, v{vL}")
    a(f"v_bfe_u32 v{vPW}, v24, 1, 1")
    a("v_and_b32 v26, 1, v24")
    a(f"v_lshl_or_b32 v{vPW}, v26, 1, v{vPW}")
    a(f"v_and_or_b32 v{vPW}, v24, 4, v{vPW}")
    a(f"v_xor_b32 v{vPW}, v{vPW}, v25")
    a(f"v_lshlrev_b32 v{vPW}, 4, v{vPW}")
    a(f"v_lshl_add_u32 v{vPW}, v24, 7, v{vPW}")
    a(f"s_lshl_b32 s{sT4}, s{sT0}, 12")
    a(f"s_add_u32 s{sT5}, s{sT5}, s{sT4}")
    a(f"v_add_u32 v{vPW}, s{sT5}, v{vPW}")
    for q in range(1, 4): a(f"v_xor_b32 v{vPW+q}, {32*q}, v{vPW}")
    a(f"s_mul_i32 s{sT4}, s{sW}, 12288")
    a(f"s_add_u32 s{sT4}, s{sT4}, {L_PART+8192}")
    a(f"s_lshl_b32 s{sT1}, s{sW}, 12")
    a(f"s_add_u32 s{sT1}, s{sT1}, {L_PART+49152-16384}")
    a(f"s_cmp_lt_u32 s{sW}, 4")
    a(f"s_cselect_b32 s{sT4}, s{sT4}, s{sT1}")
    a(f"s_sub_u32 s{sRD}, s{sT4}, s{sT5}")
    a(f"s_sub_u32 s{sT1}, s{sW}, 4")
    a(f"s_cmp_lt_u32 s{sW}, 4")
    a(f"s_cselect_b32 s{sT1}, 3, s{sT1}")
    a(f"s_mul_i32 s{sT1}, s{sT1}, {10*1024}")
    a(f"s_add_u32 s{sT1}, s{sT1}, {L_OFR}")
    a(f"v_add_u32 v{vRR}, s{sT1}, v{vL16}")
    a(f"s_mul_i32 s{sT1}, s{sT0}, {15*1024}")
    a(f"s_add_u32 s{sT1}, s{sT1}, {L_OFR}")
    a(f"v_add_u32 v{vPR}, s{sT1}, v{vL16}")
    a(f"s_mul_i32 s{sT1}, s{sW}, 5120")
    a(f"s_add_u32 s{sT4}, s{sT1}, {L_OFR}")
    a(f"v_add_u32 v{vOW}, s{sT4}, v{vL16}")
    a(f"s_add_u32 s{sPQO}, s{sYO}, s{sT1}")
    a(f"s_add_u32 s{sPQO}, s{sPQO}, {(WS_PQ-WS_Y)&0xffffffff}")
    if split: split(1)
    a("v_mul_u32_u24 v25, 336, v25")
    a("v_min_u32 v26, 20, v24")
    a("v_lshl_add_u32 v26, v26, 4, v25")
    a("v_lshrrev_b32 v27, 2, v24")
    a(f"v_mov_b32 v{vFT}, 0x7f000000")
    a("v_cmp_eq_u32 vcc, 5, v27")
    a(f"v_subrev_u32 v{vKO}, 4, v24")
    a(f"v_lshl_add_u32 v{vKO}, v{vKO}, 4, v25")
    a(f"v_cndmask_b32 v{vKE}, v26, v{vFT}, vcc")
    a(f"v_cndmask_b32 v{vKO}, v26, v{vKO}, vcc")
    a("v_cmp_eq_u32 vcc, 4, v27")
    a(f"s_mul_i32 s{sKVO}, s{sW}, {4*KVH}")
    a(f"s_add_u32 s{sKVO}, s{sKVO}, {WS_KV}")
    a(f"v_cndmask_b32 v{vKO}, v{vKO}, v{vFT}, vcc")
    a(f"s_lshl_b32 s{sT1}, s{sW}, 8")
    a(f"s_add_u32 s{sT1}, s{sT1}, {WS_FK}")
    a(f"v_mov_b32 v{vFK}, s{sT1}")
    a(f"s_lshr_b32 s{sT1}, s{sR3}, 1")
    a(f"s_lshl_b32 s{sT1}, s{sT1}, 3")
    a(f"s_add_u32 s{sT1}, s{sT1}, s{sW}")
    a(f"s_lshl_b32 s{sT1}, s{sT1}, 8")
    a(f"s_add_u32 s{sT1}, s{sT1}, {WS_FQ}")
    a(f"v_mov_b32 v{vFQ}, s{sT1}")
    a(f"v_writelane_b32 v{vFK}, s{sT1}, 0")
    a(f"s_lshr_b32 s{sT1}, s{sR3}, 3")
    a(f"s_add_u32 s{sT1}, s{sT1}, 2")
    a(f"s_bfe_u32 s{sT1}, s{sT1}, 0x10002")
    a(f"s_mul_i32 s{sT1}, s{sT1}, 20")
    a(f"s_mul_i32 s{sT4}, s{sC3}, 5")
    a(f"s_min_u32 s{sT5}, s{sW}, 4")
    a(f"s_add_u32 s{sT4}, s{sT4}, s{sT5}")
    a(f"s_add_u32 s{sT1}, s{sT1}, s{sT4}")
    a(f"s_lshl_b32 s{sT1}, s{sT1}, 8")
    a(f"s_add_u32 s{sT1}, s{sT1}, {WS_FY}")
    a(f"v_mov_b32 v{vFY}, s{sT1}")
    a(f"s_lshl_b32 s{sT4}, s{sT4}, 11")
    a(f"s_add_u32 s{sYO}, s{sYO}, s{sT4}")
    a(f"s_lshl_b32 s{sYM}, s{sT5}, 11")
    a(f"s_add_u32 s{sYM}, s{sYM}, {L_YT}")

def x_loads():
    a(f"buffer_load_dwordx4 {vr(vXD,4)}, v{vOUT}, {srd(SX)}, s{sXOFF} offen")
    a(f"s_cmp_lt_u32 s{sW}, 2")
    a("s_cselect_b64 exec, -1, 1")
    a(f"buffer_load_dwordx4 {vr(vXD2,4)}, v{vOUT}, {srd(SX)}, s{sXOFF} offen offset:256")
    a("s_mov_b64 exec, -1")

def wo_prep(vtmp):
    a(f"s_and_b32 s{sT4}, s{sIDX}, 1")
    a(f"s_lshl_b32 s{sT5}, s{sCP}, 1")
    a(f"s_add_u32 s{sT4}, s{sT4}, s{sT5}")
    a(f"s_lshl_b32 s{sT4}, s{sT4}, 3")
    a(f"s_add_u32 s{sT4}, s{sT4}, s{sW}")
    a(f"s_mul_i32 s{sT4}, s{sT4}, 25600")
    a(f"s_add_u32 s{sWOO}, s{sT4}, {WS_WOP}")
    a(f"v_lshlrev_b32 v{vtmp}, 4, v{vL}")
def wo_list(vtmp, order=None):
    out = []
    for i in range(25):
        t = f"buffer_load_dwordx4 {vr(VWO+4*i,4)}, v{vtmp}, {srd(SWS)}, s{sWOO} offen offset:{1024*(i&3)} sc1"
        if (i & 3) == 3: t += f"\ns_add_u32 s{sWOO}, s{sWOO}, 4096"
        out.append(t)
    return out

S0B = 156
def s0_task(st):
    a(f"s_mul_i32 s{sTB}, s{st}, 6554")
    a(f"s_lshr_b32 s{sTB}, s{sTB}, 16")
    a(f"s_mul_i32 s{sCHB}, s{sTB}, 10")
    a(f"s_sub_u32 s{sCHB}, s{st}, s{sCHB}")
for t in range(640): assert (t * 6554) >> 16 == t // 10

def s0_loads(LB=None, init=True):
    a.c("S0 loads")
    B = S0B
    a(f"v_lshrrev_b32 v{B+1}, 3, v{vL}")
    a(f"v_and_b32 v{B+2}, 7, v{vL}")
    a(f"v_mul_u32_u24 v{B+3}, 5120, v{B+1}")
    a(f"v_lshl_add_u32 v{B+3}, v{B+2}, 4, v{B+3}")
    a(f"s_mul_i32 s{sT0}, s{sTB}, 40960")
    a(f"s_lshl_b32 s{sT1}, s{sCHB}, 7")
    a(f"s_add_u32 s{sT0}, s{sT0}, s{sT1}")
    a(f"v_add_u32 v{B+64}, s{sT0}, v{B+3}")
    a(f"v_subrev_u32 v{B+65}, 3840, v{B+64}")
    a(f"v_lshlrev_b32 v{B+66}, 6, v{B+2}")
    a(f"s_lshl_b32 s{sT1}, s{sCHB}, 9")
    if init:
        srd_init([SK, SV, SSK])
        a("s_waitcnt lgkmcnt(0)")
    LB = LB or B
    for i in range(4): a(f"buffer_load_dwordx4 {vr(LB+16+4*i,4)}, v{B+64}, {srd(SK)}, 0 offen offset:{1280*i}")
    for i in range(3): a(f"buffer_load_dwordx4 {vr(LB+4+4*i,4)}, v{B+65}, {srd(SK)}, 0 offen offset:{1280*i}")
    for i in range(4): a(f"buffer_load_dwordx4 {vr(LB+32+4*i,4)}, v{B+64}, {srd(SV)}, 0 offen offset:{1280*i}")
    for i in range(4): a(f"buffer_load_dwordx4 {vr(LB+48+4*i,4)}, v{B+66}, {srd(SSK)}, s{sT1} offen offset:{16*i}")

def s0_addr(s_scr):
    B = S0B
    a(f"v_mul_u32_u24 v{B+67}, 576, v{B+1}")
    a(f"v_lshl_add_u32 v{B+67}, v{B+2}, 4, v{B+67}")
    a(f"v_add_u32 v{B+67}, s{s_scr}, v{B+67}")
    a(f"v_and_b32 v{B+68}, 15, v{vL}")
    a(f"v_mul_u32_u24 v{B+69}, 144, v{B+68}")
    a(f"v_lshrrev_b32 v{B+70}, 4, v{vL}")
    a(f"v_lshl_add_u32 v{B+69}, v{B+70}, 3, v{B+69}")
    a(f"v_add_u32 v{B+69}, s{s_scr}, v{B+69}")
    a(f"s_and_b32 s{sT0}, s{sTB}, 3")
    a(f"v_xor_b32 v{B+68}, s{sT0}, v{B+68}")
    a(f"v_lshlrev_b32 v{B+68}, 4, v{B+68}")
    a(f"v_lshl_add_u32 v{B+68}, v{B+70}, 14, v{B+68}")
    a(f"s_lshl_b32 s{sT0}, s{sCHB}, 18")
    a(f"s_lshl_b32 s{sT1}, s{sTB}, 8")
    a(f"s_add_u32 s{sT0}, s{sT0}, s{sT1}")
    a(f"s_mov_b32 s{sT1}, 0xffff0000")

def s0_compute(split=None, pk=True, LB=None):
    a.c("S0 compute")
    B = S0B
    LB = LB or B
    KF, VF, WF, AC, UO = 112, 126, 134, B + 88, B + 72
    for p in range(4):
        for cc in range(2):
            c = 2 * p + cc
            for h in range(2):
                a(f"v_lshlrev_b32 v{WF+4*h+cc}, 16, v{LB+48+2*c+h}")
                a(f"v_and_b32 v{WF+4*h+2+cc}, s{sT1}, v{LB+48+2*c+h}")
        for r in range(7):
            a(f"v_lshlrev_b32 v{KF+2*r}, 16, v{LB+4+4*r+p}")
            a(f"v_and_b32 v{KF+2*r+1}, s{sT1}, v{LB+4+4*r+p}")
        for r in range(4):
            a(f"v_lshlrev_b32 v{VF+2*r}, 16, v{LB+32+4*r+p}")
            a(f"v_and_b32 v{VF+2*r+1}, s{sT1}, v{LB+32+4*r+p}")
        if pk:
            for i in range(4): a(f"v_pk_mul_f32 {vr(AC+2*i,2)}, {vr(KF+2*(i+3),2)}, {vr(WF,2)}")
            for d in range(1, 4):
                for i in range(4): a(f"v_pk_fma_f32 {vr(AC+2*i,2)}, {vr(KF+2*(i+3-d),2)}, {vr(WF+2*d,2)}, {vr(AC+2*i,2)}")
            for i in range(4): a(f"v_pk_mul_f32 {vr(AC+2*i,2)}, {vr(AC+2*i,2)}, {vr(VF+2*i,2)}")
        else:
            for i in range(8): a(f"v_mul_f32 v{AC+i}, v{KF+6+i}, v{WF+(i&1)}")
            for d in range(1, 4):
                for i in range(8): a(f"v_fmac_f32 v{AC+i}, v{KF+6+i-2*d}, v{WF+2*d+(i&1)}")
            for i in range(8): a(f"v_mul_f32 v{AC+i}, v{AC+i}, v{VF+i}")
        for i in range(4): a(f"v_cvt_pk_bf16_f32 v{UO+4*i+p}, v{AC+2*i}, v{AC+2*i+1}")
        if split: split(p)
    for i in range(4): a(f"ds_write_b128 v{B+67}, {vr(UO+4*i,4)} offset:{144*i}")
    for j in range(4):
        a(f"ds_read_b64_tr_b16 {vr(LB+4+4*j,2)}, v{B+69} offset:{32*j}")
        a(f"ds_read_b64_tr_b16 {vr(LB+6+4*j,2)}, v{B+69} offset:{32*j+2304}")
    for j in range(4):
        a(f"s_waitcnt lgkmcnt({6-2*j})")
        a(f"buffer_store_dwordx4 {vr(LB+4+4*j,4)}, v{B+68}, {srd(SWS)}, s{sT0} offen sc1")
        if j < 3: a(f"s_add_u32 s{sT0}, s{sT0}, 65536")

def f0_off(sd):
    a(f"s_lshl_b32 s{sd}, s{sCHB}, 8")
    a(f"s_add_u32 s{sd}, s{sd}, {WS_F0}")

ACC = 32
FB = [112, 156]
vX0, vX1, vWA, vWX = 148, 149, 150, 154
vA1, vA2, vC16, vG4 = 16, 17, 18, 19
sC, sSL = sT2, sT3

def a_setup():
    a.c("A-wave address setup")
    a(f"s_and_b32 s{sT0}, s{sW}, 1")
    a(f"s_lshr_b32 s{sT1}, s{sW}, 1")
    a(f"v_and_b32 v{vC16}, 15, v{vL}")
    a(f"v_lshrrev_b32 v{vG4}, 4, v{vL}")
    a(f"v_lshrrev_b32 v8, 1, v{vC16}")
    a(f"v_xor_b32 v8, v{vG4}, v8")
    a(f"v_lshlrev_b32 v8, 4, v8")
    a(f"v_lshl_add_u32 v8, v{vC16}, 7, v8")
    a(f"s_lshl_b32 s{sT4}, s{sT1}, 13")
    a(f"v_add_u32 v{vX0}, s{sT4}, v8")
    a(f"v_xor_b32 v{vX1}, 64, v{vX0}")
    a(f"v_bfe_u32 v8, v{vL}, 2, 2")
    a(f"v_lshl_add_u32 v9, v{vG4}, 3, v8")
    a(f"v_and_b32 v10, 1, v{vG4}")
    a(f"v_xor_b32 v10, s{sT0}, v10")
    a(f"v_and_b32 v11, 3, v{vL}")
    a("v_lshlrev_b32 v11, 3, v11")
    a(f"v_lshl_add_u32 v{vWX}, v9, 6, v11")
    a(f"v_lshl_add_u32 v{vWX}, v10, 5, v{vWX}")
    a(f"v_add_u32 v{vWX}, 32768, v{vWX}")
    a("v_lshl_or_b32 v8, v10, 2, v8")
    a("v_lshl_add_u32 v8, v8, 5, v11")
    a("v_lshl_add_u32 v8, v9, 8, v8")
    a(f"v_add_u32 v{vWA}, 16384, v8")
    for tt in range(1, 4): a(f"v_xor_b32 v{vWA+tt}, {32*tt}, v{vWA}")

def a_reads(buf, ks):
    b = FB[buf]
    xs = [f"ds_read_b128 {vr(b+4*rt,4)}, v{vX1 if ks else vX0} offset:{2048*rt}" for rt in range(4)]
    ws = []
    for tt in range(5):
        for sec in range(2):
            if tt < 4: ws.append(f"ds_read_b64_tr_b16 {vr(b+16+4*tt+2*sec,2)}, v{vWA+tt} offset:{ks*8192+sec*1024}")
            else: ws.append(f"ds_read_b64_tr_b16 {vr(b+16+4*tt+2*sec,2)}, v{vWX} offset:{ks*2048+sec*256}")
    return [xs[0], ws[0], ws[1], xs[1], ws[2], ws[3], xs[2], ws[4], ws[5], xs[3]] + ws[6:]

def acc(rt, tt): return ACC + 4 * (rt * 5 + tt)

def a_mfmas(buf, qtype, order=None):
    b = FB[buf]
    out = []
    for (rt, tt) in (order or [(rt, tt) for tt in range(5) for rt in range(4)]):
        d = vr(acc(rt, tt), 4)
        xf = vr(b + 4 * rt, 4); wf = vr(b + 16 + 4 * tt, 4)
        A, B = (wf, xf) if qtype else (xf, wf)
        out.append(f"v_mfma_f32_16x16x32_bf16 {d}, {A}, {B}, {d}")
    return out

def interleave(mf, rd):
    j = 0
    for i, m in enumerate(mf):
        a(m)
        if j < len(rd): a(rd[j]); j += 1
    while j < len(rd): a(rd[j]); j += 1

def a_mainloop(qtype):
    t = "q" if qtype else "k"
    a.c("A main loop")
    a(f"s_mov_b32 s{sC}, 0")
    a(f"s_mov_b32 s{sSL}, 0")
    a(f"s_mov_b32 s{sT6}, {1<<10}")
    if qtype:
        a(f"s_cmp_lt_u32 s{sW}, {NQ}")
        a(f"s_cselect_b32 s{sT6}, {(1<<10)|(1<<1)|(1<<3)}, s{sT6}")
    if "noprio" not in EXP: a("s_setprio 2")
    a("s_waitcnt lgkmcnt(0)")
    if "ast" in EXP: stamp(1, True)
    a("s_barrier")
    stamp(1)
    for r in a_reads(0, 0): a(r)
    book = [
        f"s_add_u32 s{sSL}, s{sSL}, 1\ns_cmp_eq_u32 s{sSL}, 3",
        f"s_mov_b32 s{sT4}, {SLOT}",
        f"s_cselect_b32 s{sT4}, {-2*SLOT & 0xffffffff}, s{sT4}",
        f"s_cselect_b32 s{sSL}, 0, s{sSL}\ns_add_u32 s{sC}, s{sC}, 1",
    ]
    src_ = f"s{sT4}"
    rd = a_reads(1, 1)
    seq = []
    for i, r in enumerate(rd): seq.append(r + ("\n" + book[i - 2] if 2 <= i < 6 else ""))
    seq += [f"v_add_u32 v{vX0}, {src_}, v{vX0}\nv_add_u32 v{vX1}, {src_}, v{vX1}",
            f"v_add_u32 v{vWA}, {src_}, v{vWA}\nv_add_u32 v{vWA+1}, {src_}, v{vWA+1}",
            f"v_add_u32 v{vWA+2}, {src_}, v{vWA+2}\nv_add_u32 v{vWA+3}, {src_}, v{vWA+3}",
            f"v_add_u32 v{vWX}, {src_}, v{vWX}\ns_bitcmp1_b32 s{sT6}, s{sC}"]
    a(".p2align 3")
    a.label(f"Lml{t}")
    a("s_waitcnt lgkmcnt(0)")
    interleave(a_mfmas(0, qtype), seq)
    a("s_waitcnt lgkmcnt(0)")
    a(f"s_cbranch_scc1 Lhook{t}")
    a.label(f"Lhookd{t}")
    if "ast" in EXP:
        a("s_memrealtime vcc")
        a("s_waitcnt lgkmcnt(0)")
        a(f"s_mov_b32 m0, s{sC}")
        a("v_writelane_b32 v29, vcc_lo, m0")
    a("s_barrier")
    interleave(a_mfmas(1, qtype), a_reads(0, 0))
    a(f"s_branch Lml{t}")
    a.label(f"Lhook{t}")
    if qtype:
        a(f"s_cmp_eq_u32 s{sC}, 10")
        a(f"s_cbranch_scc1 Lmx{t}")
        N2 = a.newlabel("Lhk")
        a(f"s_cmp_lg_u32 s{sC}, 1")
        a(f"s_cbranch_scc1 {N2}")
        a("s_waitcnt vmcnt(0)")
        darr_issue(24, 25, 0)
        a(f"s_branch Lhookd{t}")
        a.label(N2)
        darr_finish(24, 25, 0, NU)
        a(f"s_branch Lhookd{t}")
        a.label(f"Lmx{t}")
    if "ast" in EXP:
        for c in range(1, 9): a(f"v_readlane_b32 s{STS+1+c}, v29, {c}")

def acc_zero():
    for i in range(80): a(f"v_mov_b32 v{ACC+i}, 0")

def phi_list(regs, tmp, pk=False):
    out = []
    B = 4
    for i in range(0, len(regs), B):
        batch = regs[i:i + B]
        for j, r in enumerate(batch):
            if pk:
                out.append(f"v_pk_mul_f32 {vr(tmp+2*j,2)}, {vr(r,2)}, {sr(sLOG,2)}"); continue
            out.append(f"v_mul_f32 v{tmp+2*j}, s{sLOG}, v{r}")
            out.append(f"v_mul_f32 v{tmp+2*j+1}, s{sLOG}, v{r+1}")
        for j, r in enumerate(batch):
            out.append(f"v_exp_f32_e64 v{tmp+2*j}, v{tmp+2*j} clamp")
            out.append(f"v_exp_f32_e64 v{tmp+2*j+1}, v{tmp+2*j+1} clamp")
        for j, r in enumerate(batch):
            out.append(f"v_max_f32 v{r}, s{sEPS}, v{r}")
            out.append(f"v_max_f32 v{r+1}, s{sEPS}, v{r+1}")
        for j, r in enumerate(batch):
            if pk:
                out.append(f"v_pk_add_f32 {vr(r,2)}, {vr(r,2)}, {vr(tmp+2*j,2)}"); continue
            out.append(f"v_add_f32 v{r}, v{r}, v{tmp+2*j}")
            out.append(f"v_add_f32 v{r+1}, v{r+1}, v{tmp+2*j+1}")
    return out

def sprinkle(main, extra, every, start=0):
    j = 0
    for i, m in enumerate(main):
        a(m)
        if i >= start and (i - start) % every == every - 1 and j < len(extra):
            a(extra[j]); j += 1
    return extra[j:]

def fc_addr(v):
    a(f"v_and_b32 v{v}, 7, v{vL}")
    a(f"v_lshlrev_b32 v{v}, 8, v{v}")
    a(f"v_add_u32 v{v}, {WS_FC}, v{v}")
def f0_addr(v):
    a(f"s_lshr_b32 s{sT4}, s{sQUAD}, 4")
    a(f"s_lshl_b32 s{sT4}, s{sT4}, 8")
    a(f"s_add_u32 s{sT4}, s{sT4}, {WS_F0}")
    a(f"v_mov_b32 v{v}, s{sT4}")

def awave():
    a.label("Lawave")
    ka_rest()
    a(f"s_cmp_ge_u32 s{sIDX}, 16")
    a("s_cbranch_scc1 Lqa")
    srd_init([SWS, SDBG])
    common_scalars()
    srd_init([SX, SOUT])
    acc_zero()

def kva():
    a(f"s_lshr_b32 s{sT0}, s{sIDX}, 2")
    a(f"s_lshl_b32 s{sCG}, s{sCP}, 2")
    a(f"s_add_u32 s{sCG}, s{sCG}, s{sT0}")
    a_setup()
    a(f"s_mul_i32 s{sT4}, s{sW}, 3584")
    a(f"s_add_u32 s{sT4}, s{sT4}, {L_KVS}")
    a(f"v_mul_u32_u24 v8, 336, v{vG4}")
    a(f"v_add_u32 v8, s{sT4}, v8")
    a(f"v_lshl_add_u32 v{vA1}, v{vC16}, 4, v8")
    a(f"v_add_u32 v9, 8, v{vC16}")
    a(f"v_subrev_u32 v10, 12, v{vC16}")
    a(f"v_cmp_lt_u32 vcc, 11, v{vC16}")
    a("v_cndmask_b32 v9, v9, v10, vcc")
    a(f"v_cmp_eq_u32 vcc, 0, v{vC16}")
    a("v_mov_b32 v10, 20")
    a("v_cndmask_b32 v9, v9, v10, vcc")
    a(f"v_lshl_add_u32 v{vA2}, v9, 4, v8")
    a(f"s_lshl_b32 s{sT4}, s{sT0}, 2")
    a(f"s_add_u32 s{sT4}, s{sT4}, {L_CNT}")
    a(f"v_mov_b32 v20, s{sT4}")
    a(f"s_mul_i32 s{sT4}, s{sT0}, 3584")
    a(f"s_mul_i32 s{sT5}, s{sT1}, {KVH}")
    a(f"s_add_u32 s{sT4}, s{sT4}, s{sT5}")
    a(f"v_lshlrev_b32 v21, 2, v{vL}")
    a(f"s_add_u32 s{sT5}, s{sT4}, {L_KVS}")
    a(f"v_add_u32 v22, s{sT5}, v21")
    a(f"s_mul_i32 s{sT5}, s{sCG}, {4*KVH}")
    a(f"s_add_u32 s{sT4}, s{sT4}, s{sT5}")
    a(f"s_add_u32 s{sCH}, s{sT4}, {WS_KV}")
    a("v_mov_b32 v23, 0x3f803f80")
    a(f"s_lshl_b32 s{sLC}, s{sCG}, 8")
    a(f"s_add_u32 s{sLC}, s{sLC}, {WS_FK}")
    wo_prep(28)
    a_mainloop(False)
    a.c("KV epilogue")
    order = [(rt, tt) for tt in (4, 0, 2, 1, 3) for rt in range(4)]
    mf = a_mfmas(1, False, order)
    for m in mf[:8]: a(m)
    XP = 112
    TM = 12
    TM = 8
    a(f"v_cmp_gt_u32 vcc, 8, v{vC16}")
    def pairs(tt): return sum([[acc(rt, tt), acc(rt, tt) + 2] for rt in range(4)], [])
    def cvts(tt): return [f"v_cvt_pk_bf16_f32 v{acc(rt&2,tt)+2*(rt&1)+h}, v{acc(rt,tt)+2*h}, v{acc(rt,tt)+2*h+1}" for rt in range(4) for h in range(2)]
    L = []
    for rt in range(4):
        for h in range(2): L.append(f"v_cvt_pk_bf16_f32 v{XP+2*rt+h}, v{acc(rt,4)+2*h}, v{acc(rt,4)+2*h+1}")
    for j in range(8): L.append(f"v_cndmask_b32 v{XP+j}, v{XP+j}, v23, vcc")
    L += phi_list(pairs(4)[:4], TM, False)
    for i, m in enumerate(mf[8:]):
        a(m)
        for x in L[2 * i:2 * i + 2]: a(x)
    L = L[24:]
    stamp(2)
    pk = "nopk" not in EXP
    L += phi_list(pairs(4)[4:], TM, pk) + cvts(4) + phi_list(pairs(0), TM, pk) + cvts(0) + cvts(2) + cvts(3)
    if "aspr" in EXP: assert not sprinkle(L, wo_list(28), len(L) // 25)
    else:
        for x in L: a(x)
    def fr(t, p): return XP + 4 * p if t == 5 else acc(2 * p, t)
    prods = [(0, 2), (0, 5), (4, 2), (4, 5), (1, 3), (1, 5), (4, 3)]
    PD = 120
    def pm(lst):
        for p in range(2):
            for i in lst:
                ta, tb = prods[i]
                d = vr(PD + 4 * i, 4)
                a(f"v_mfma_f32_16x16x32_bf16 {d}, {vr(fr(ta,p),4)}, {vr(fr(tb,p),4)}, {'0' if p==0 else d}")
    def wr(i, va, off, mlo, mhi):
        t = ""
        if mlo != -1: t += f"s_mov_b32 exec_lo, {mlo}\ns_mov_b32 exec_hi, {mhi}\n"
        t += f"ds_write_b128 v{va}, {vr(PD+4*i,4)} offset:{off}"
        if mlo != -1: t += "\ns_mov_b64 exec, -1"
        return t
    pm([0, 1, 2, 3, 6])
    W1 = [wr(0, vA1, 0, -1, -1), wr(1, vA2, 0, 0x0f010f01, 0x0f010f01), wr(2, vA1, 4 * 336, 0xffff, 0),
          wr(3, vA2, 4 * 336, 0x0f01, 0), wr(3, vA2, KVH - 336, 0xf0010000, 0), wr(6, vA1, KVH + 64 - 336, 0xffff0000, 0)]
    rest = sprinkle(phi_list(pairs(1)[:4], TM, False) + phi_list(pairs(1)[4:], TM, pk) + cvts(1), W1, 8, 6)
    assert not rest
    pm([4, 5])
    a(wr(4, vA1, KVH + 336 + 64, -1, -1))
    a(wr(5, vA2, KVH + 336, 0xf001f001, 0xf001f001))
    if "econv" in EXP:
        lds_arrive(20, 24)
        lds_wait(20, 24, 2 + 4 * 256)
    else:
        a("s_waitcnt lgkmcnt(0)")
        a("s_barrier")
    for i in range(7):
        a(f"ds_read_b32 v{32+i}, v22 offset:{256*i}")
        a(f"ds_read_b32 v{40+i}, v22 offset:{256*i+7168}")
    stamp(3)
    for i in range(7):
        a(f"s_waitcnt lgkmcnt({12-2*i})")
        a(f"v_add_f32 v{32+i}, v{32+i}, v{40+i}")
        a(f"buffer_atomic_add_f32 v{32+i}, v21, {srd(SWS)}, s{sCH} offen offset:{256*i}")
    arr_prep(48, 49)
    s3_setup()
    a("s_waitcnt vmcnt(0)")
    arr_issue(48, 49, f"s{sLC}")
    arr_finish(48, 49, f"s{sLC}", 64, 0)
    a("s_setprio 0")
    stamp(4)
    a("s_branch Ls3x" if "aspr" in EXP else "s_branch Ls3")

def qa():
    a.label("Lqa")
    common_scalars()
    a(f"s_cmp_ge_u32 s{sW}, {NQ}")
    a("s_cbranch_scc1 Lq1")
    a(f"s_mov_b32 s{sTB}, s{sCI}")
    a(f"s_add_u32 s{sCHB}, s{sW}, {10-NQ}")
    s0_loads()
    a.label("Lq1")
    if "qpf" in EXP:
        a(f"v_min_u32 v1, 34, v{vL}")
        a("v_mul_u32_u24 v1, 1280, v1")
        a(f"s_mul_i32 s{sT0}, s{sCI}, 40960")
        a(f"s_lshl_b32 s{sT1}, s{sW}, 7")
        a(f"s_add_u32 s{sT0}, s{sT0}, s{sT1}")
        a(f"s_add_u32 s{sT0}, s{sT0}, 768")
        a(f"v_add_u32 v2, s{sT0}, v1")
        a("v_subrev_u32 v1, 3840, v2")
        srd_init([SK, SV])
        a("s_waitcnt lgkmcnt(0)")
        a(f"buffer_load_dword v250, v1, {srd(SK)}, 0 offen")
        a("s_mov_b32 exec_hi, 0")
        a(f"buffer_load_dword v251, v2, {srd(SV)}, 0 offen")
        a("s_mov_b32 exec_hi, -1")
    srd_init([SWS, SDBG, SX, SOUT])
    acc_zero()
    a(f"s_bfe_u32 s{sT0}, s{sIDX}, 0x20002")
    a(f"s_mul_i32 s{sCG}, s{sCP}, {Q0}")
    a(f"s_add_u32 s{sCG}, s{sCG}, s{sT0}")
    a_setup()
    a(f"v_lshrrev_b32 v8, 1, v{vG4}")
    a(f"v_and_b32 v9, 1, v{vG4}")
    a(f"v_lshlrev_b32 v20, 4, v{vC16}")
    a("v_lshl_add_u32 v20, v9, 9, v20")
    a("v_lshl_add_u32 v21, v8, 3, v20")
    a("v_add_u32 v21, 4096, v21")
    a("v_lshl_add_u32 v20, v8, 10, v20")
    a(f"s_lshl_b32 s{sT4}, s{sRB}, 1")
    a(f"s_add_u32 s{sT4}, s{sT4}, s{sT1}")
    a(f"s_lshl_b32 s{sT5}, s{sCG}, 1")
    a(f"s_add_u32 s{sT5}, s{sT5}, s{sT0}")
    a(f"s_mul_i32 s{sT0}, s{sT4}, {80*1024}")
    a(f"s_mul_i32 s{sT1}, s{sT5}, {5*1024}")
    a(f"s_add_u32 s{sT0}, s{sT0}, s{sT1}")
    a(f"s_add_u32 s{sCH}, s{sT0}, {WS_PQ}")
    a(f"s_add_u32 s{sVAR}, s{sCH}, {40*1024}")
    a(f"s_lshl_b32 s{sT4}, s{sT4}, 3")
    a(f"s_add_u32 s{sT4}, s{sT4}, s{sT5}")
    a(f"s_lshl_b32 s{sT4}, s{sT4}, 8")
    a(f"s_add_u32 s{sLC}, s{sT4}, {WS_FQ}")
    wo_prep(28)
    a("v_mov_b32 v24, 0")
    a(f"s_cmp_ge_u32 s{sW}, {NQ}")
    a("s_cbranch_scc1 Lq2")
    a(f"s_mul_i32 s{sT2}, s{sW}, 4608")
    a(f"s_add_u32 s{sT2}, s{sT2}, {2*SLOT}")
    s0_addr(sT2)
    a("s_waitcnt vmcnt(0)")
    stamp(11)
    s0_compute()
    stamp(12)
    a.label("Lq2")
    a_mainloop(True)
    a.c("Q epilogue")
    order = [(rt, tt) for rt in range(4) for tt in range(5)]
    mf = a_mfmas(1, True, order)
    for m in mf[:9]: a(m)
    L = []
    for rt in range(4):
        regs = []
        for tt in range(5): regs += [acc(rt, tt), acc(rt, tt) + 2]
        L += phi_list(regs, 112, rt > 0 and "nopk" not in EXP)
        O = acc(rt, 0)
        for tt in range(5):
            for h in range(2): L.append(f"v_cvt_pk_bf16_f32 v{O+2*tt+h}, v{acc(rt,tt)+2*h}, v{acc(rt,tt)+2*h+1}")
        so = f"s{sVAR if rt>>1 else sCH}"
        for p in range(2):
            L.append(f"buffer_store_dwordx4 {vr(O+4*p,4)}, v20, {srd(SWS)}, {so} offen offset:{256*(rt&1)+2048*p} sc1")
        L.append(f"buffer_store_dwordx2 {vr(O+8,2)}, v21, {srd(SWS)}, {so} offen offset:{256*(rt&1)} sc1")
    for i, m in enumerate(mf[9:]):
        a(m)
        for x in L[2 * i:2 * i + 2]: a(x)
    L = L[22:]
    stamp(2)
    if "aspr" in EXP: assert not sprinkle(L, wo_list(28), 8)
    else:
        for x in L: a(x)
    stamp(3)
    a("s_barrier")
    a("s_waitcnt vmcnt(0)")
    flag_store(120, 121, f"s{sLC}")
    s3_setup()
    a("s_setprio 0")
    stamp(4)
    a("s_branch Ls3x" if "aspr" in EXP else "s_branch Ls3")

def h_dma(sj, sch0):
    a(f"s_lshr_b32 s{sT4}, s{sj}, 1")
    a(f"s_and_b32 s{sT5}, s{sj}, 1")
    a(f"s_lshl_b32 s{sT5}, s{sT5}, 11")
    a(f"s_add_u32 s{sT6}, s{sch0}, s{sT4}")
    a(f"s_lshl_b32 s{sT6}, s{sT6}, 12")
    a(f"s_add_u32 s{sT6}, s{sT6}, s{sT5}")
    a(f"s_mul_i32 s{sT4}, s{sT4}, {HSTR}")
    a(f"s_add_u32 s{sT4}, s{sT4}, s{sT5}")
    a(f"s_add_u32 m0, s{sT4}, {L_HB+128}")
    a(f"buffer_load_dwordx4 v{vL16}, {srd(SH)}, s{sT6} offen lds")
    a(f"buffer_load_dwordx4 v{vL16}, {srd(SH)}, s{sT6} offen offset:1024 lds")

CACC = 32
CPOOL = 96
NPOOL = 12
CD = 144
vUe, vUo, vH, vCW, vCT, vCS, vCY, vCN = range(148, 156)

def conv_setup(j, chl0, split=None):
    a.c("conv setup")
    a(f"s_lshr_b32 s{sLC}, s{j}, 1")
    a(f"s_and_b32 s{sVAR}, s{j}, 1")
    a(f"s_add_u32 s{sCHL}, s{chl0}, s{sLC}")
    a(f"s_lshl_b32 s{sCH}, s{sQUAD}, 2")
    a(f"s_add_u32 s{sCH}, s{sCH}, s{sCHL}")
    a(f"s_lshl_b32 s{sT4}, s{sCH}, 1")
    a(f"s_and_b32 s{sT4}, s{sT4}, -4")
    a(f"s_load_dword s{sDV}, {sr(SD,2)}, s{sT4}")
    a(f"v_and_b32 v96, 31, v{vL}")
    a(f"v_lshrrev_b32 v97, 5, v{vL}")
    a("v_lshl_add_u32 v98, v97, 2, v96")
    a("v_lshrrev_b32 v99, 2, v98")
    a("v_add_u32 v99, 3, v99")
    a("v_and_b32 v99, 3, v99")
    a(f"v_xor_b32 v99, s{sCHL}, v99")
    a("v_lshlrev_b32 v99, 4, v99")
    a("v_lshl_add_u32 v99, v98, 6, v99")
    a(f"v_add_u32 v{vUe}, {L_UD-28*64}, v99")
    a(f"v_xor_b32 v{vUo}, 32, v{vUe}")
    a(f"v_bfe_u32 v98, v{vL}, 4, 1")
    a(f"v_and_b32 v99, 3, v{vL}")
    a("v_lshl_add_u32 v98, v98, 2, v99")
    a(f"v_bfe_u32 v96, v{vL}, 2, 2")
    a("v_sub_u32 v98, v98, v96")
    a("v_lshlrev_b32 v97, 3, v97")
    a("v_sub_u32 v98, v98, v97")
    a("v_lshlrev_b32 v98, 3, v98")
    a(f"s_mul_i32 s{sT4}, s{sLC}, {HSTR}")
    a(f"s_add_u32 s{sT4}, s{sT4}, {L_HB+128+32}")
    a(f"v_add_u32 v{vH}, s{sT4}, v98")
    a(f"s_lshl_b32 s{sT4}, s{sW}, 11")
    a(f"s_add_u32 s{sT4}, s{sT4}, {L_YST}")
    a(f"v_lshlrev_b32 v{vCW}, 4, v{vL}")
    a(f"v_add_u32 v{vCW}, s{sT4}, v{vCW}")
    if split: split(0)
    a(f"v_lshrrev_b32 v97, 4, v{vL}")
    a("v_lshrrev_b32 v98, 1, v99")
    a("v_lshl_add_u32 v98, v97, 1, v98")
    a("v_lshl_add_u32 v98, v98, 3, v96")
    a("v_lshlrev_b32 v98, 4, v98")
    a("v_and_b32 v99, 1, v99")
    a("v_lshl_add_u32 v98, v99, 3, v98")
    a(f"v_add_u32 v{vCT}, s{sT4}, v98")
    a(f"v_and_b32 v98, 7, v{vL}")
    a(f"v_lshrrev_b32 v99, 5, v{vL}")
    a("v_lshl_add_u32 v98, v98, 1, v99")
    a(f"v_mul_u32_u24 v98, 40960, v98")
    a(f"v_bfe_u32 v99, v{vL}, 3, 2")
    a(f"v_lshl_add_u32 v{vCY}, v99, 4, v98")
    a(f"s_lshl_b32 s{sT4}, s{j}, 4")
    a(f"s_add_u32 s{sT4}, s{sT4}, {L_SP}")
    a(f"v_mov_b32 v{vCS}, s{sT4}")
    a(f"s_lshl_b32 s{sT4}, s{sLC}, 2")
    a(f"s_add_u32 s{sT4}, s{sT4}, {L_CNT+16}")
    a(f"v_mov_b32 v{vCN}, s{sT4}")

def conv_dfrag():
    a("s_waitcnt lgkmcnt(0)")
    a(f"s_and_b32 s{sT4}, s{sCH}, 1")
    a(f"s_lshl_b32 s{sT4}, s{sT4}, 4")
    a(f"s_lshr_b32 s{sDV}, s{sDV}, s{sT4}")
    a(f"s_and_b32 s{sDV}, s{sDV}, 0xffff")
    a(f"v_lshlrev_b32 v98, 2, v{vL}")
    a("v_and_b32 v98, 16, v98")
    a(f"v_lshlrev_b32 v98, v98, s{sDV}")
    a(f"v_and_b32 v99, 59, v{vL}")
    for r in range(4):
        a(f"v_cmp_eq_u32 vcc, {32+8*r}, v99")
        a(f"v_cndmask_b32 v{CD+r}, 0, v98, vcc")

def zero_pads(j):
    a("v_mov_b32 v100, 0")
    a("v_mov_b32 v101, 0")
    a(f"v_lshlrev_b32 v102, 3, v{vL}")
    a(f"s_and_b32 s{sT6}, s{j}, 3")
    a(f"s_lshl_b32 s{sT4}, s{sT6}, 9")
    a(f"s_add_u32 s{sT4}, s{sT4}, {L_UB}")
    a(f"v_add_u32 v103, s{sT4}, v102")
    a("ds_write_b64 v103, v[100:101]")
    a(f"s_mul_i32 s{sT4}, s{sT6}, {HSTR}")
    a(f"s_add_u32 s{sT4}, s{sT4}, {L_HB}")
    a(f"v_add_u32 v103, s{sT4}, v102")
    a("s_mov_b64 exec, 0xffff")
    a("ds_write_b64 v103, v[100:101]")
    a(f"v_add_u32 v103, {L_CNT}, v102")
    a("s_mov_b64 exec, 0xff")
    a("ds_write_b64 v103, v[100:101]")
    a("s_mov_b64 exec, -1")

def u_dma(j, nper):
    a(f"s_mul_i32 s{sT4}, s{j}, {1024*nper}")
    a(f"s_lshl_b32 s{sT5}, s{sQUAD}, 14")
    a(f"s_add_u32 s{sT5}, s{sT5}, s{sT4}")
    a(f"s_add_u32 m0, s{sT4}, {L_UD}")
    for i in range(nper): a(f"buffer_load_dwordx4 v{vL16}, {srd(SWS)}, s{sT5} offen offset:{1024*i} sc1 lds")

def bwave():
    a.c("B wave")
    sXB, sWB, sM, sMW, sROT, sSTEP, sQ2, sQ3 = sCG, sUD, sTB, sRB, sCI, sLOG, sLOG + 1, sEPS
    VX, VW = 32, 36
    a(f"s_sub_u32 s{sJ}, s{sW}, 4")
    a(f"v_lshrrev_b32 v1, 3, v{vL}")
    a(f"v_mul_u32_u24 v1, 1280, v1")
    a(f"v_lshrrev_b32 v2, 4, v{vL}")
    a(f"v_and_b32 v3, 7, v{vL}")
    a("v_xor_b32 v2, v2, v3")
    a(f"v_lshl_add_u32 v{VX}, v2, 4, v1")
    a(f"v_xor_b32 v{VX+1}, 64, v{VX}")
    a(f"v_add_u32 v{VX+1}, {10240-1024}, v{VX+1}")
    a(f"v_add_u32 v{VX+2}, {20480-2048}, v{VX}")
    a(f"v_add_u32 v{VX+3}, {20480-2048}, v{VX+1}")
    a(f"s_lshl_b32 s{sXB}, s{sRB}, 2")
    a(f"s_add_u32 s{sXB}, s{sXB}, s{sJ}")
    a(f"s_mul_i32 s{sXB}, s{sXB}, 40960")
    a(f"s_lshr_b32 s{sT0}, s{sIDX}, 2")
    a(f"s_add_u32 s{sROT}, s{sT0}, s{sIDX}")
    a(f"s_and_b32 s{sROT}, s{sROT}, 3")
    a(f"s_add_u32 s{sM}, s{sRP}, s{sCP}")
    a(f"s_and_b32 s{sM}, s{sM}, 1")
    a(f"s_lshl_b32 s{sM}, s{sM}, 2")
    a(f"s_or_b32 s{sROT}, s{sROT}, s{sM}")
    def chunk_of(sd, srot, step):
        if "nostag" in EXP:
            a(f"s_and_b32 s{sd}, s{srot}, {7 if step < 8 else 1}")
            a(f"s_xor_b32 s{sd}, s{sd}, {step}")
            return
        m0_, x0 = (3, step) if step < 8 else (1, step)
        m1_, x1 = (1, 8 + step) if step < 2 else (7, step - 2)
        a(f"s_bitcmp1_b32 s{srot}, 2")
        a(f"s_cselect_b32 s{sd}, {m1_}, {m0_}")
        a(f"s_cselect_b32 s{sQ2}, {x1}, {x0}")
        a(f"s_and_b32 s{sd}, s{sd}, s{srot}")
        a(f"s_xor_b32 s{sd}, s{sd}, s{sQ2}")
    chunk_of(sSTEP, sROT, 0)
    a(f"s_lshl_b32 s{sM}, s{sJ}, 12")
    srd_init([SX, SWQ])
    def chunk_x(sc):
        a(f"s_mov_b32 m0, s{sM}")
        a(f"s_lshl_b32 s{sQ2}, s{sc}, 7")
        a(f"s_add_u32 s{sQ2}, s{sQ2}, s{sXB}")
        for i in range(4):
            a(f"buffer_load_dwordx4 v{VX+i}, {srd(SX)}, s{sQ2} offen offset:{1024*i} lds")
    def chunk_w(sc):
        a(f"s_add_u32 m0, s{sM}, 16384")
        a(f"s_mul_i32 s{sQ3}, s{sc}, {64*3840}")
        a(f"s_add_u32 s{sQ3}, s{sQ3}, s{sWB}")
        for hf in range(1):
            if hf:
                a(f"s_add_u32 m0, s{sM}, {16384+4096}")
                a(f"s_add_u32 s{sQ3}, s{sQ3}, {16*3840}")
            for i in (0, 1, 4, 2, 3):
                if i == 2: a(f"s_add_u32 m0, s{sM}, {16384+4096*hf}")
                if i == 4: a(f"s_add_u32 m0, s{sMW}, {1024*hf}")
                a(f"buffer_load_dwordx4 v{VW+i}, {srd(SWQ)}, s{sQ3} offen offset:{1024*(i&3)} lds")
    a(f"s_lshl_b32 s{sT1}, s{sCP}, 2")
    a(f"s_add_u32 s{sT1}, s{sT1}, s{sT0}")
    a(f"s_add_u32 s{sT1}, s{sT1}, 8")
    a(f"s_lshl_b32 s{sT0}, s{sT0}, 1")
    a(f"s_mul_i32 s{sT4}, s{sCP}, {2*Q0}")
    a(f"s_add_u32 s{sT0}, s{sT0}, s{sT4}")
    a(f"s_sub_u32 s{sT0}, s{sT0}, 8")
    a(f"s_cmp_ge_u32 s{sIDX}, 16")
    a(f"s_cselect_b32 s{sWB}, s{sT0}, s{sT1}")
    a(f"s_cselect_b32 s{sT4}, 10, 5")
    a(f"s_cselect_b32 s{sT5}, 4, 0x50")
    a(f"s_cselect_b32 s{sT6}, 1, 3")
    a(f"s_cselect_b32 s{sT7}, 2, 1")
    a(f"s_cselect_b32 s{sT0}, 1, 0x50")
    a(f"s_cselect_b32 s{sT1}, 8, 2")
    a(f"s_mulk_i32 s{sWB}, 160")
    a(f"s_mul_i32 s{sT2}, s{sJ}, {16*3840}")
    a(f"s_add_u32 s{sWB}, s{sWB}, s{sT2}")
    a(f"s_lshl_b32 s{sMW}, s{sJ}, 10")
    a(f"s_add_u32 s{sMW}, s{sMW}, 32768")
    a(f"v_lshrrev_b32 v14, 4, v{vL}")
    a(f"v_lshrrev_b32 v15, 1, v{vL}")
    a("v_xor_b32 v15, v15, v14")
    a(f"v_and_b32 v16, 1, v{vL}")
    a("v_mul_u32_u24 v14, 240, v14")
    a(f"v_mad_u32_u24 v14, v16, s{sT7}, v14")
    a("v_and_b32 v17, 1, v15")
    a(f"v_mad_u32_u24 v14, v17, s{sT6}, v14")
    a("v_bfe_u32 v17, v15, 1, 1")
    a(f"v_mad_u32_u24 v14, v17, s{sT5}, v14")
    a("v_bfe_u32 v17, v15, 2, 1")
    a(f"v_mad_u32_u24 v18, v17, s{sT4}, v14")
    a(f"v_lshlrev_b32 v{VW}, 4, v18")
    a(f"v_add_u32 v{VW+1}, {15360-1024}, v{VW}")
    a("v_xor_b32 v17, 1, v17")
    a(f"v_mad_u32_u24 v18, v17, s{sT4}, v14")
    a(f"v_lshlrev_b32 v18, 4, v18")
    a(f"v_add_u32 v{VW+2}, {30720-2048}, v18")
    a(f"v_add_u32 v{VW+3}, {46080-3072}, v18")
    a(f"v_lshrrev_b32 v14, 2, v{vL}")
    a("v_mul_u32_u24 v14, 240, v14")
    a(f"v_mad_u32_u24 v14, v16, s{sT0}, v14")
    a(f"v_lshrrev_b32 v17, 4, v{vL}")
    a(f"v_xor_b32 v17, v17, v{vL}")
    a("v_bfe_u32 v17, v17, 1, 1")
    a(f"v_mad_u32_u24 v14, v17, s{sT4}, v14")
    a(f"v_add_lshl_u32 v{VW+4}, v14, s{sT1}, 4")
    a("s_waitcnt lgkmcnt(0)")
    stamp(11)
    chunk_x(sSTEP)
    chunk_w(sSTEP)
    ka_rest()
    stamp(12)
    def issue(step):
        d = SLOT if step % 3 else (-2 * SLOT & 0xffffffff)
        a(f"s_add_u32 s{sM}, s{sM}, {d}")
        a(f"s_add_u32 s{sMW}, s{sMW}, {d}")
        chunk_of(sSTEP, sROT, step)
        if "nodma" in EXP and step >= 2: return
        chunk_x(sSTEP); chunk_w(sSTEP)
    bn = [1]
    def bar(n, nxt=None):
        a(f"s_waitcnt vmcnt({n}) lgkmcnt(0)")
        if "bst" in EXP and "pre" in EXP: stamp(bn[0], True)
        a("s_barrier")
        if "bst" in EXP and "pre" not in EXP: stamp(bn[0], True)
        bn[0] += 1
        if nxt is not None: issue(nxt)
    def g_setup():
        srd_init([SX, SH, SWS, SDBG, SOUT])
        a(f"s_mul_i32 s{sT7}, s{sRP}, 48")
        a(f"s_mul_i32 s{sT1}, s{sCP}, {G0}")
        a(f"s_add_u32 s{sT7}, s{sT7}, s{sT1}")
        a(f"s_add_u32 s{sT7}, s{sT7}, s{sIDX}")
        a(f"s_lshr_b32 s{sQUAD}, s{sT7}, 1")
        a(f"s_add_u32 s{sQUAD}, s{sQUAD}, 64")
        a(f"s_and_b32 s{sT1}, s{sIDX}, 1")
        a(f"s_lshl_b32 s{sT1}, s{sT1}, 1")
        a("s_waitcnt lgkmcnt(0)")
        conv_setup(sJ, sT1)
        s3_setup()
        wo_prep(vL16)
    sGS, sGO = 1, 0
    a("s_waitcnt lgkmcnt(0)")
    a(f"s_bfe_u32 s{sT0}, s{sIDX}, 0x20002")
    a(f"s_mul_i32 s{sT1}, s{sCP}, {Q0}")
    a(f"s_add_u32 s{sT0}, s{sT0}, s{sT1}")
    a(f"s_lshl_b32 s{sT0}, s{sT0}, 2")
    a(f"s_add_u32 s{sT0}, s{sT0}, s{sJ}")
    a(f"s_and_b32 s{sT2}, s{sIDX}, 3")
    a(f"s_lshl_b32 s{sT3}, s{sRP}, 2")
    a(f"s_add_u32 s{sT2}, s{sT2}, s{sT3}")
    a(f"s_lshl_b32 s{sGO}, s{sT2}, 4")
    a(f"s_add_u32 s{sGO}, s{sGO}, s{sT0}")
    a(f"s_cmp_ge_u32 s{sIDX}, 16")
    a(f"s_cselect_b32 s{sGS}, 1, 0")
    a(f"s_lshl_b32 s{sT0}, s{sT0}, 10")
    a(f"v_lshlrev_b32 v41, 4, v{vL}")
    srd_init([SGW])
    a(f"s_mov_b32 m0, {L_GW}")
    a(f"v_add_u32 v42, s{sT0}, v41")
    a(f"v_add_u32 v55, {2*SLOT}, v42")
    a(f"s_cmp_ge_u32 s{sIDX}, 16")
    a("s_cbranch_scc0 Lbng")
    a(f"buffer_load_dwordx4 v41, {srd(SGW)}, 0 offen lds")
    a(f"buffer_load_dwordx4 v41, {srd(SGW)}, 0 offen offset:1024 lds")
    a.label("Lbng")
    a(f"s_and_b32 s{sT1}, s{sJ}, 1")
    a(f"s_lshl_b32 s{sT1}, s{sT1}, 2")
    a(f"v_xor_b32 v43, s{sT1}, v2")
    a("v_lshlrev_b32 v43, 4, v43")
    a(f"v_add_u32 v43, {L_GW}, v43")
    a("v_mov_b32 v52, 0")
    a("v_mov_b32 v53, 0")
    g_setup()
    a("v_mov_b32 v44, 128")
    a("v_mov_b32 v45, 132")
    zero_pads(sJ)
    conv_dfrag()
    def gate(step):
        D = a.newlabel("Lg")
        a(f"s_cmp_eq_u32 s{sGS}, 0")
        a(f"s_cbranch_scc1 {D}")
        chunk_of(sT0, sROT, step)
        a(f"s_lshl_b32 s{sT0}, s{sT0}, 7")
        a(f"v_add_u32 v54, s{sT0}, v43")
        if step % 3 == 2: a("ds_read_b128 v[56:59], v55")
        else: a(f"ds_read_b128 v[56:59], v42 offset:{SLOT*(step%3)}")
        a("ds_read_b128 v[60:63], v54")
        a("s_waitcnt lgkmcnt(0)")
        for i in range(4): a(f"v_dot2c_f32_bf16 v{52+(i&1)}, v{56+i}, v{60+i}")
        a.label(D)
    issue(1)
    for c in range(0, 8):
        bar(9)
        if c == 0: stamp(1)
        issue(c + 2)
        gate(c)
    a(f"s_mov_b32 s{sEPS}, 0x358637bd")
    a(f"s_sub_u32 s{sT1}, s{sCH}, s{sLC}")
    bar(9)
    a(f"buffer_load_dwordx2 v[46:47], v44, {srd(SDBG)}, 0 offen sc1")
    h_dma(sJ, sT1)
    gate(8)
    a("s_waitcnt vmcnt(3)")
    a("s_barrier")
    a("s_setprio 3")
    gate(9)
    a(f"s_cmp_eq_u32 s{sGS}, 0")
    a("s_cbranch_scc1 Lbg")
    a("v_add_f32 v52, v52, v53")
    for ctl in ("quad_perm:[1,0,3,2]", "quad_perm:[2,3,0,1]", "row_half_mirror"):
        a(f"v_add_f32_dpp v52, v52, v52 {ctl} row_mask:0xf bank_mask:0xf")
    a(f"v_mul_f32 v52, 0xbfb8aa3b, v52")
    a(f"v_exp_f32 v52, v52")
    a(f"v_lshrrev_b32 v53, 1, v{vL}")
    a(f"v_add_f32 v52, 1.0, v52")
    a(f"v_rcp_f32 v52, v52")
    a(f"s_lshl_b32 s{sT0}, s{sGO}, 5")
    a(f"s_add_u32 s{sT0}, s{sT0}, {WS_G}")
    a("s_mov_b32 exec_lo, 0x01010101")
    a("s_mov_b32 exec_hi, 0x01010101")
    a(f"buffer_store_dword v52, v53, {srd(SWS)}, s{sT0} offen sc1")
    a("s_mov_b64 exec, -1")
    a.label("Lbg")
    a("s_setprio 0")
    a("s_waitcnt vmcnt(2)")
    poll(45, 47, "landed", S=SDBG)
    stamp(2)
    a(f"v_mov_b32 v48, {L_CNT+8}")
    a(f"v_readfirstlane_b32 s{sUD}, v46")
    wl = wo_list(vL16)
    a(f"s_cmp_eq_u32 s{sUD}, 0")
    a("s_cbranch_scc1 Lbl1")
    u_dma(sJ, 4)
    for x in wl[:8]: a(x)
    a("s_branch Lbl1b")
    a.label("Lbl1")
    cnt_load(SDBG, 44, 46)
    for x in wl[:8]: a(x)
    a("s_waitcnt vmcnt(8)")
    a(f"v_readfirstlane_b32 s{sUD}, v46")
    a(f"s_cmp_eq_u32 s{sUD}, 0")
    a("s_cbranch_scc1 Lbl1b")
    u_dma(sJ, 4)
    a.label("Lbl1b")
    for x in wl[8:16]: a(x)
    a(f"s_cmp_lg_u32 s{sUD}, 0")
    a("s_cbranch_scc1 Lbl2")
    cnt_load(SDBG, 44, 46)
    a.label("Lbl2")
    for x in wl[16:]: a(x)
    x_loads()
    a("s_waitcnt vmcnt(11)")
    a(f"s_cmp_lg_u32 s{sUD}, 0")
    a("s_cbranch_scc1 Lbl3")
    a(f"v_readfirstlane_b32 s{sT0}, v46")
    a(f"s_cmp_eq_u32 s{sT0}, 0")
    a("s_cbranch_scc1 Lbl4")
    u_dma(sJ, 4)
    a("s_barrier")
    a("s_branch Lbl5")
    a.label("Lbl4")
    a("s_barrier")
    poll(44, 46, S=SDBG)
    u_dma(sJ, 4)
    a.label("Lbl5")
    a("s_waitcnt vmcnt(0)")
    lds_arrive(48, 49)
    a("s_branch Lbl6")
    a.label("Lbl3")
    lds_arrive(48, 49)
    a("s_barrier")
    a.label("Lbl6")
    lds_wait(48, 49, 4)
    stamp(3)
    a("s_branch Lconv")

def ctype():
    a.label("Lctype")
    ka_rest()
    common_scalars()
    a(f"s_mov_b32 s{sQUAD}, s{sCI}")
    a(f"s_cmp_ge_u32 s{sW}, 6")
    a("s_cbranch_scc1 Lcaux")
    a(f"s_mov_b32 s{sTB}, s{sCI}")
    a(f"s_mov_b32 s{sCHB}, s{sW}")
    s0_loads()
    srd_init([SWS])
    a(f"s_cmp_ge_u32 s{sW}, {4-NQ}")
    a("s_cbranch_scc1 Lc1")
    a(f"s_add_u32 s{sCHB}, s{sW}, 6")
    s0_loads(28, False)
    a(f"s_mov_b32 s{sCHB}, s{sW}")
    a.label("Lc1")
    a.label("Lcs0")
    a(f"s_mul_i32 s{sT2}, s{sW}, 4608")
    a(f"s_add_u32 s{sT2}, s{sT2}, {L_S0C}")
    s0_addr(sT2)
    a(f"s_cmp_lt_u32 s{sW}, {4-NQ}")
    a("s_cbranch_scc1 Lc2")
    a("s_waitcnt vmcnt(0)")
    a.label("Lc2")
    a("s_waitcnt vmcnt(15)")
    s0_compute()
    stamp(1)
    a(f"s_cmp_ge_u32 s{sW}, {4-NQ}")
    a("s_cbranch_scc1 Lcjoin")
    a(f"s_add_u32 s{sCHB}, s{sW}, 6")
    s0_addr(sT2)
    a("s_waitcnt vmcnt(4)")
    s0_compute(LB=28)
    a("s_branch Lcjoin")

    a.label("Lcaux")
    a("s_setprio 3")
    srd_init([SWO, SWS, SDBG])
    a(f"s_sub_u32 s{sUD}, s{sW}, 6")
    a(f"s_lshl_b32 s{sVAR}, s{sCI}, 1")
    a(f"s_add_u32 s{sVAR}, s{sVAR}, s{sUD}")
    for i in range(4): a(f"v_mov_b32 v{52+i}, 0")
    a(f"v_lshlrev_b32 v15, 3, v{vL}")
    a(f"s_lshl_b32 s{sT0}, s{sVAR}, 9")
    a(f"s_add_u32 s{sT0}, s{sT0}, {WS_KV}")
    a("s_waitcnt lgkmcnt(0)")
    a(f"buffer_store_dwordx2 v[52:53], v15, {srd(SWS)}, s{sT0} offen sc1")
    a(f"s_mul_i32 s{sT0}, s{sVAR}, 768")
    a(f"s_add_u32 s{sT0}, s{sT0}, {WS_C}")
    a(f"v_lshlrev_b32 v16, 8, v{vL}")
    a("s_mov_b64 exec, 7")
    a(f"buffer_store_dword v52, v16, {srd(SWS)}, s{sT0} offen sc1")
    a("s_mov_b64 exec, -1")
    a.label("Lcrp")
    sKQ, sF, sCGR = sCHL, sCH, sJ
    a(f"s_lshr_b32 s{sT0}, s{sVAR}, 2")
    a(f"s_and_b32 s{sCGR}, s{sVAR}, 3")
    a(f"s_mul_i32 s{sKQ}, s{sT0}, 52")
    a(f"s_lshr_b32 s{sKQ}, s{sKQ}, 8")
    a(f"s_mul_i32 s{sT1}, s{sKQ}, 5")
    a(f"s_sub_u32 s{sF}, s{sT0}, s{sT1}")
    a(f"s_mul_i32 s{sT0}, s{sF}, 20")
    a(f"s_cmp_eq_u32 s{sF}, 4")
    a(f"s_cselect_b32 s{sT0}, 16, s{sT0}")
    a(f"s_cselect_b32 s{sT2}, 16, 0")
    a(f"s_mul_i32 s{sT1}, s{sKQ}, 80")
    a(f"s_add_u32 s{sT0}, s{sT0}, s{sT1}")
    a(f"s_mul_i32 s{sT0}, s{sT0}, 1280")
    a(f"s_mul_i32 s{sT1}, s{sCGR}, 320")
    a(f"s_add_u32 s{sT0}, s{sT0}, s{sT1}")
    a(f"s_lshr_b32 s{sT3}, s{sVAR}, 7")
    a(f"s_lshl_b32 s{sT3}, s{sT3}, 1")
    a(f"s_add_u32 s{sT3}, s{sT3}, s{sUD}")
    a(f"s_mul_i32 s{sT3}, s{sT3}, 5120")
    a(f"s_add_u32 s{sT3}, s{sT3}, {L_RPC}")
    a("s_waitcnt lgkmcnt(0)")
    for i in range(5):
        a(f"v_add_u32 v14, {64*i}, v{vL}")
        div20(15, 16, 14)
        a("v_lshrrev_b32 v17, 2, v15")
        a(f"v_mad_u32_u24 v15, v17, s{sT2}, v15")
        a("v_mul_u32_u24 v15, 1280, v15")
        a("v_lshl_add_u32 v15, v16, 4, v15")
        a(f"s_add_u32 m0, s{sT3}, {1024*i}")
        a(f"buffer_load_dwordx4 v15, {srd(SWO)}, s{sT0} offen lds")
    a(f"s_add_u32 s{sVAR}, s{sVAR}, 128")
    a(f"s_cmp_lt_u32 s{sVAR}, 160")
    a("s_cbranch_scc1 Lcrp")
    a(f"s_and_b32 s{sVAR}, s{sVAR}, 127")
    a("s_waitcnt vmcnt(0)")
    a.label("Lcrp2")
    sKQ, sF, sCGR = sCHL, sCH, sJ
    a(f"s_lshr_b32 s{sT0}, s{sVAR}, 2")
    a(f"s_and_b32 s{sCGR}, s{sVAR}, 3")
    a(f"s_mul_i32 s{sKQ}, s{sT0}, 52")
    a(f"s_lshr_b32 s{sKQ}, s{sKQ}, 8")
    a(f"s_mul_i32 s{sT1}, s{sKQ}, 5")
    a(f"s_sub_u32 s{sF}, s{sT0}, s{sT1}")
    a(f"s_lshr_b32 s{sT3}, s{sVAR}, 7")
    a(f"s_lshl_b32 s{sT3}, s{sT3}, 1")
    a(f"s_add_u32 s{sT3}, s{sT3}, s{sUD}")
    a(f"s_mul_i32 s{sT3}, s{sT3}, 5120")
    a(f"s_add_u32 s{sT3}, s{sT3}, {L_RPC}")
    a(f"v_lshrrev_b32 v14, 5, v{vL}")
    a(f"v_bfe_u32 v15, v{vL}, 2, 2")
    a("v_lshl_add_u32 v14, v14, 2, v15")
    a("v_mul_u32_u24 v14, 320, v14")
    a(f"v_bfe_u32 v15, v{vL}, 4, 1")
    a("v_lshl_add_u32 v14, v15, 5, v14")
    a(f"v_and_b32 v15, 3, v{vL}")
    a("v_lshl_add_u32 v14, v15, 3, v14")
    a(f"v_add_u32 v14, s{sT3}, v14")
    a(f"s_mul_i32 s{sT0}, s{sKQ}, 5")
    a(f"s_add_u32 s{sT0}, s{sT0}, s{sF}")
    a(f"s_cmp_ge_u32 s{sKQ}, 3")
    a(f"s_cselect_b32 s{sT1}, 10, 0")
    a(f"s_cmp_ge_u32 s{sKQ}, 6")
    a(f"s_cselect_b32 s{sT1}, -15, s{sT1}")
    a(f"s_cselect_b32 s{sT2}, 25, 50")
    a(f"s_add_u32 s{sT0}, s{sT0}, s{sT1}")
    a(f"s_mul_i32 s{sT1}, s{sCGR}, 200")
    a(f"s_add_u32 s{sT0}, s{sT0}, s{sT1}")
    a(f"s_lshl_b32 s{sT0}, s{sT0}, 10")
    a(f"s_add_u32 s{sT0}, s{sT0}, {WS_WOP}")
    a(f"s_lshl_b32 s{sT2}, s{sT2}, 10")
    a(f"s_lshr_b32 s{sT4}, s{sKQ}, 1")
    a(f"s_mul_i32 s{sT4}, s{sT4}, 25")
    a(f"s_and_b32 s{sT5}, s{sKQ}, 1")
    a(f"s_mul_i32 s{sT5}, s{sT5}, 5")
    a(f"s_add_u32 s{sT4}, s{sT4}, s{sT5}")
    a(f"s_add_u32 s{sT4}, s{sT4}, s{sF}")
    a(f"s_add_u32 s{sT4}, s{sT4}, s{sT1}")
    a(f"s_add_u32 s{sT4}, s{sT4}, 115")
    a(f"s_lshl_b32 s{sT4}, s{sT4}, 10")
    a(f"s_add_u32 s{sT4}, s{sT4}, {WS_WOP}")
    a(f"v_lshlrev_b32 v15, 4, v{vL}")
    for t in range(5):
        for jh in range(2): a(f"ds_read_b64_tr_b16 {vr(32+4*t+2*jh,2)}, v14 offset:{jh*2560+t*64}")
    a("s_waitcnt lgkmcnt(0)")
    for t in range(4):
        a(f"buffer_store_dwordx4 {vr(32+4*t,4)}, v15, {srd(SWS)}, s{sT0} offen sc1")
        a(f"s_add_u32 s{sT0}, s{sT0}, s{sT2}")
    a(f"buffer_store_dwordx4 {vr(48,4)}, v15, {srd(SWS)}, s{sT4} offen sc1")
    a(f"s_add_u32 s{sVAR}, s{sVAR}, 128")
    a(f"s_cmp_lt_u32 s{sVAR}, 160")
    a("s_cbranch_scc1 Lcrp2")
    a("v_mov_b32 v60, 0")
    a("s_waitcnt vmcnt(0)")
    darr_issue(60, 61, 4)
    darr_finish(60, 61, 4, 128)
    a("s_setprio 0")
    stamp(1)

    a.label("Lcjoin")
    srd_init([SX, SH, SDBG, SOUT])
    a("v_mov_b32 v104, 0")
    a("s_waitcnt vmcnt(0)")
    stamp(2)
    a("s_barrier")
    a(f"s_cmp_lg_u32 s{sW}, 7")
    a("s_cbranch_scc1 Lc7")
    a("s_setprio 3")
    darr_issue(104, 45, 0)
    darr_finish(104, 45, 0, NU, 0)
    a("s_setprio 0")
    a.label("Lc7")
    zero_pads(sW)
    a(f"s_mov_b32 s{sT1}, 0")
    conv_setup(sW, sT1)
    s3_setup()
    wo_prep(vL16)
    a(f"s_lshl_b32 s{sT1}, s{sCI}, 2")
    h_dma(sW, sT1)
    conv_dfrag()
    a(f"s_cmp_ge_u32 s{sW}, 4")
    a("s_cbranch_scc1 Lc7b")
    a("v_mov_b32 v44, 132")
    poll(44, 46, S=SDBG, sleep=4)
    for x in wo_list(vL16): a(x)
    x_loads()
    a.label("Lc7b")
    a(f"s_cmp_lg_u32 s{sW}, 7")
    a("s_cbranch_scc1 Lc8")
    a("s_setprio 3")
    a(f"v_and_b32 v44, 1, v{vL}")
    a("v_lshl_add_u32 v44, v44, 2, 64")
    a("v_add_u32 v44, 64, v44")
    poll(44, 46, S=SDBG)
    stamp(11)
    a(f"s_lshl_b32 s{sT5}, s{sQUAD}, 14")
    for q in range(4):
        a(f"s_mov_b32 m0, {L_UD + 4096*q}")
        for i in range(4): a(f"buffer_load_dwordx4 v{vL16}, {srd(SWS)}, s{sT5} offen offset:{1024*i} sc1 lds")
        if q < 3: a(f"s_add_u32 s{sT5}, s{sT5}, 4096")
    a.label("Lc8")
    a(f"s_cmp_lt_u32 s{sW}, 4")
    a("s_cbranch_scc1 Lc9")
    a("s_waitcnt vmcnt(0)")
    a.label("Lc9")
    a("s_waitcnt lgkmcnt(0)")
    stamp(12)
    a("s_barrier")
    stamp(3)
    a("s_setprio 2")
    a(f"s_cmp_lt_u32 s{sW}, 4")
    a("s_cbranch_scc1 Lconv2")
    a("s_setprio 0")
    for x in wo_list(vL16): a(x)
    x_loads()

def conv_body(tiles):
    seq = []
    for b in range(4):
        if tiles[0] == 0:
            for aa in range(8):
                for ti in (3, 2):
                    d = tiles[ti] - aa
                    if d >= 0:
                        seq.append((ti, ("H", 4 * aa + b, 0), ("U", 4 * d - b)))
                        if b == 0 and aa == 0: seq.append((ti, ("D",), ("U", 4 * d)))
                if aa == 5:
                    seq.append((1, ("H", b, 1), ("U", 4 - b)))
                    if b == 0: seq.append((1, ("D",), ("U", 4)))
                if aa == 6:
                    seq.append((0, ("H", b, 1), ("U", -b)))
                    if b == 0: seq.append((0, ("D",), ("U", 0)))
                    seq.append((1, ("H", 4 + b, 1), ("U", -b)))
        else:
            for aa in range(6):
                for ti in (3, 2, 1, 0):
                    d = tiles[ti] - aa
                    if d >= 0:
                        seq.append((ti, ("H", 4 * aa + b, 0), ("U", 4 * d - b)))
                        if b == 0 and aa == 0: seq.append((ti, ("D",), ("U", 4 * d)))
    assert len(seq) == 76
    last = {}; order = []
    for i, (ti, h, u) in enumerate(seq):
        for k in (u, h):
            if k[0] == "D": continue
            if k not in last: order.append(k)
            last[k] = i
    free = list(range(NPOOL))
    where = {}; done_at = {}
    nds = [0]; li = [0]
    def issue(maxn):
        n = 0
        while li[0] < len(order) and free and n < maxn:
            k = order[li[0]]; li[0] += 1
            bfr = free.pop(0); where[k] = bfr
            r = CPOOL + 4 * bfr
            if k[0] == "U":
                a(f"ds_read_b128 {vr(r,4)}, v{vUo if k[1]&1 else vUe} offset:{(k[1]+3)*512}")
                nds[0] += 1; n += 1
            else:
                a(f"ds_read_b64_tr_b16 {vr(r,2)}, v{vH} offset:{128*k[1]+32}")
                a(f"ds_read_b64_tr_b16 {vr(r+2,2)}, v{vH} offset:{128*k[1]}")
                nds[0] += 2; n += 2
            done_at[k] = nds[0]
    issue(10)
    started = set(); known = 0
    wl = wo_list(vL16); wi = 25 if "delayconv" in EXP else 0
    for i, (ti, h, u) in enumerate(seq):
        needn = max(done_at[k] for k in (u, h) if k[0] != "D")
        if needn > known:
            cnt = min(nds[0] - needn, 15)
            a(f"s_waitcnt lgkmcnt({cnt})")
            known = nds[0] - cnt
        d = vr(CACC + 16 * ti, 16)
        hb = CD if h[0] == "D" else CPOOL + 4 * where[h]
        a(f"v_mfma_f32_32x32x16_bf16 {d}, {vr(CPOOL+4*where[u],4)}, {vr(hb,4)}, {d if ti in started else '0'}")
        started.add(ti)
        for k in (u, h):
            if k[0] != "D" and last[k] == i: free.append(where[k])
        issue(2)

def conv_epi(var):
    runs = [[*range(0, 8)], [*range(8, 16)]] if var == 0 else [[*range(16)]]
    out_g = 7 if var == 0 else 15
    in_g = 8 if var == 0 else 0
    SPL = 96
    a(f"buffer_load_dword v{vFT}, v{vFK}, {srd(SWS)}, 0 offen sc1")
    a("s_nop 7")
    a("s_nop 3")
    for step in (2, 1, 0):
        a("s_mov_b32 exec_lo, 0")
        a("s_mov_b32 exec_hi, 0x80000000")
        a(f"v_mov_b32 v{SPL+step}, v{CACC+4*out_g+step+1}")
        for run in runs:
            for g in reversed(run):
                src = f"v{CACC+4*(g-1)+step+1}" if g != run[0] else "0"
                a(f"v_mov_b32 v{CACC+4*g+step+1}, {src}")
        if step == 0:
            a(f"ds_write_b96 v{vCS}, {vr(SPL,3)}")
            a("v_mov_b32 v100, 1")
            a(f"ds_add_u32 v{vCN}, v100")
        a("s_mov_b64 exec, -1")
        for g in reversed(range(16)):
            r = CACC + 4 * g + step
            a(f"v_add_f32_dpp v{r}, v{r+1}, v{r} wave_ror:1 row_mask:0xf bank_mask:0xf")
    a(f"v_xor_b32 v101, 16, v{vCS}")
    a(f"v_lshl_add_u32 v101, v{vL}, 2, v101")
    PK = 104
    other = [k for k in range(8) if k != in_g // 2]
    for k in other: a(f"v_cvt_pk_bf16_f32 v{PK+k}, v{CACC+8*k}, v{CACC+8*k+4}")
    oh = 1 - in_g // 8
    a(f"ds_write_b128 v{vCW}, {vr(PK+4*oh,4)} offset:{1024*oh}")
    lds_wait(vCN, 100, 2)
    a("s_mov_b64 exec, 7")
    a("ds_read_b32 v100, v101")
    a("s_waitcnt lgkmcnt(0)")
    a(f"v_add_f32 v{CACC+4*in_g}, v{CACC+4*in_g}, v100")
    a("s_mov_b64 exec, -1")
    k = in_g // 2
    a(f"v_cvt_pk_bf16_f32 v{PK+k}, v{CACC+8*k}, v{CACC+8*k+4}")
    a(f"ds_write_b128 v{vCW}, {vr(PK+4*(1-oh),4)} offset:{1024*(1-oh)}")
    T0, T1 = (0, 6) if var == 0 else (2, 4)
    a(f"s_lshl_b32 s{sT5}, s{sCH}, 6")
    a(f"s_add_u32 s{sT4}, s{sT5}, {WS_Y + T0*8*40960}")
    a(f"s_add_u32 s{sT5}, s{sT5}, {WS_Y + T1*8*40960}")
    a(f"s_lshr_b32 s{sT6}, s{sCH}, 5")
    a(f"s_lshl_b32 s{sT6}, s{sT6}, 8")
    a(f"s_add_u32 s{sT6}, s{sT6}, {WS_FY + var*20*256}")

def conv():
    a.label("Lconv")
    a("s_setprio 1")
    a.label("Lconv2")
    a(f"s_cmp_eq_u32 s{sVAR}, 1")
    a("s_cbranch_scc1 Lconvy")
    conv_body([0, 1, 6, 7])
    stamp(4)
    conv_epi(0)
    a("s_branch Lconve")
    a.label("Lconvy")
    conv_body([2, 3, 4, 5])
    stamp(4)
    conv_epi(1)
    a.label("Lconve")
    for n in range(2):
        a(f"ds_read_b64_tr_b16 {vr(136+4*n,2)}, v{vCT} offset:{1024*n}")
        a(f"ds_read_b64_tr_b16 {vr(138+4*n,2)}, v{vCT} offset:{1024*n+64}")
    arr_prep(152, 153)
    for n in range(2):
        a(f"s_waitcnt lgkmcnt({2-2*n})")
        a(f"buffer_store_dwordx4 {vr(136+4*n,4)}, v{vCY}, {srd(SWS)}, s{sT5 if n else sT4} offen sc1")
    stamp(13)
    a("s_branch Ls3b")

def s3():
    a.label("Ls3")
    a.c("S3")
    PQ, RAW, KF = 32, 52, 116
    plan = []
    for i in range(4):
        for st in range(2):
            for jh in range(2):
                du0 = 4 * (i + st) + 2 * jh - 5 * i
                plan.append((i, st, jh, du0, 0 <= du0 <= 4, 0 <= du0 + 1 <= 4))
    sPD = sT2
    def fl(): a(f"buffer_load_dword v{vFT}, v{vFK}, {srd(SWS)}, 0 offen sc1")
    def pql():
        for f in range(4): a(f"buffer_load_dwordx4 {vr(PQ+4*f,4)}, v{vL16}, {srd(SWS)}, s{sPQO} offen offset:{1024*f} sc1")
        a(f"buffer_load_dwordx4 {vr(PQ+16,4)}, v{vL16}, {srd(SWS)}, s{sT1} offen sc1")
    def pre():
        for (i, st, jh, du0, v0ok, v1ok) in plan:
            if v0ok != v1ok:
                for j in range(4): a(f"v_mov_b32 v{RAW+16*i+8*st+4*jh+j}, 0")
        a(f"s_add_u32 s{sT1}, s{sPQO}, 4096")
        a(f"s_add_u32 s{sT3}, s{sKVO}, {2*KVH}")
        a(f"s_mov_b32 s{sPD}, 0")
        a(f"s_mov_b32 s{sCNT}, 0x40000")
    wl = wo_list(vL16)
    for x in wl[:20]: a(x)
    fl()
    for x in wl[20:]: a(x)
    x_loads()
    a("s_setprio 1")
    pre()
    a(f"s_mov_b32 s{sUD}, 0")
    a("s_waitcnt vmcnt(7)")
    a("s_branch Ls3ev")
    a.label("Ls3b")
    pre()
    a(f"s_mov_b32 s{sUD}, 2")
    a("s_waitcnt vmcnt(2)")
    a("s_branch Ls3ev")
    a.label("Ls3sl")
    a("s_sleep 2")
    a.label("Ls3lp")
    fl()
    a("s_waitcnt vmcnt(0)")
    a(f"s_cmp_eq_u32 s{sUD}, 0")
    a("s_cbranch_scc1 Ls3ev")
    a(f"s_sub_u32 s{sUD}, s{sUD}, 1")
    a(f"s_cmp_eq_u32 s{sUD}, 0")
    a("s_cbranch_scc1 Ls3af")
    arr_issue(152, 153, f"s{sT6}")
    a("s_branch Ls3ev")
    a.label("Ls3af")
    arr_finish(152, 153, f"s{sT6}", 32)
    a.label("Ls3ev")
    a(f"v_cmp_ne_u32 vcc, s{sTAG}, v{vFT}")
    a(f"s_sub_u32 s{sCNT}, s{sCNT}, 1")
    a("s_cbranch_scc1 Ls3go")
    a(f"s_cmp_lg_u32 s{sPD}, 0")
    a("s_cbranch_scc1 Ls3k")
    a("s_bitcmp1_b32 vcc_lo, 0")
    a("s_cbranch_scc1 Ls3sl")
    pql()
    a(f"s_mov_b32 s{sPD}, 1")
    a(f"v_readlane_b32 s{sT0}, v{vFK}, 1")
    a(f"v_mov_b32 v{vFK}, s{sT0}")
    a.label("Ls3k")
    a("s_cmp_lg_u32 vcc_hi, 0")
    a("s_cbranch_scc1 Ls3sl")
    a.label("Ls3go")
    stamp(6)
    nload = [0] * 4
    for (i, st, jh, du0, v0ok, v1ok) in plan:
        if not (v0ok or v1ok): continue
        off = (i & 1) * KVH + du0 * 336
        part = v0ok != v1ok
        if part: a(f"s_mov_b32 exec_{'hi' if v0ok else 'lo'}, 0")
        a(f"buffer_load_dwordx4 {vr(RAW+16*i+8*st+4*jh,4)}, v{vKO if i&1 else vKE}, {srd(SWS)}, s{sT3 if i>>1 else sKVO} offen offset:{off} sc1")
        if part: a("s_mov_b64 exec, -1")
        nload[i] += 1
    a(f"s_cmp_lg_u32 s{sUD}, 2")
    a("s_cbranch_scc1 Ls3n2")
    a("s_waitcnt vmcnt(12)")
    arr_issue(152, 153, f"s{sT6}")
    a("s_branch Ls3n3")
    a.label("Ls3n2")
    a(f"buffer_load_dword v{vFT}, v{vFK}, {srd(SWS)}, 0 offen sc1")
    a.label("Ls3n3")
    rem = sum(nload) + 1
    for i in range(4):
        rem -= nload[i]
        a(f"s_waitcnt vmcnt({rem})")
        kf = KF + 8 * (i & 1)
        for (i2, st, jh, du0, v0ok, v1ok) in plan:
            if i2 != i: continue
            for j in range(2):
                d = kf + 4 * st + 2 * jh + j; s = RAW + 16 * i + 8 * st + 4 * jh + 2 * j
                if v0ok or v1ok: a(f"v_cvt_pk_bf16_f32 v{d}, v{s}, v{s+1}")
                else: a(f"v_mov_b32 v{d}, 0")
        d = vr(RAW + 16 * i, 16)
        a(f"v_mfma_f32_32x32x16_bf16 {d}, {vr(kf,4)}, {vr(PQ+4*i,4)}, 0")
        a(f"v_mfma_f32_32x32x16_bf16 {d}, {vr(kf+4,4)}, {vr(PQ+4*i+4,4)}, {d}")
    if "sx" in EXP: stamp(11)
    a(f"s_cmp_eq_u32 s{sUD}, 0")
    a("s_cbranch_scc1 Ls3n4")
    arr_finish(152, 153, f"s{sT6}", 32, 0)
    a.label("Ls3n4")
    a(f"s_cmp_ge_u32 s{sW}, 5")
    a("s_cbranch_scc1 Ls3n5")
    a(f"buffer_load_dword v{vFT}, v{vFY}, {srd(SWS)}, 0 offen sc1")
    a.label("Ls3n5")
    OF = 132
    for i in range(4):
        D = RAW + 16 * i
        a(f"v_add_f32 v{D+12}, s{sEPS}, v{D+12}")
        a(f"v_rcp_f32 v{D+12}, v{D+12}")
        for j in range(8): a(f"v_mul_f32 v{D+j}, v{D+j}, v{D+12}")
        for j in range(4): a(f"v_cvt_pk_bf16_f32 v{OF+4*i+j}, v{D+2*j}, v{D+2*j+1}")
        a(f"ds_write_b128 v{vOW}, {vr(OF+4*i,4)} offset:{1024*i}")
        if i & 1 == 0:
            for j in range(4): a(f"v_mul_f32 v{D+8+j}, v{D+8+j}, v{D+12}")
        else:
            for j in range(4): a(f"v_fmac_f32 v{D-8+j}, v{D+8+j}, v{D+12}")
            for j in range(2): a(f"v_cvt_pk_bf16_f32 v{OF+16+2*(i>>1)+j}, v{D-8+2*j}, v{D-8+2*j+1}")
    a(f"ds_write_b128 v{vOW}, {vr(OF+16,4)} offset:4096")
    a(f"s_mov_b32 s{sUD}, 1")
    a(f"s_cmp_ge_u32 s{sW}, 5")
    a("s_cbranch_scc1 Ls3y1")
    a("s_waitcnt vmcnt(0)")
    a(f"v_cmp_ne_u32 vcc, s{sTAG}, v{vFT}")
    a(f"s_mov_b32 m0, s{sYM}")
    a("s_cbranch_vccnz Ls3y0")
    a(f"buffer_load_dwordx4 v{vL16}, {srd(SWS)}, s{sYO} offen sc1 lds")
    a(f"buffer_load_dwordx4 v{vL16}, {srd(SWS)}, s{sYO} offen offset:1024 sc1 lds")
    a("s_branch Ls3y1")
    a.label("Ls3y0")
    a(f"s_mov_b32 s{sUD}, 0")
    a(f"buffer_load_dword v{vFT}, v{vFY}, {srd(SWS)}, 0 offen sc1")
    a.label("Ls3y1")
    if "nog3prio" not in EXP:
        a(f"s_cmp_ge_u32 s{sW}, 4")
        a("s_cbranch_scc1 Ls3y2")
        a("s_setprio 2")
        a.label("Ls3y2")
    a("s_waitcnt lgkmcnt(0)")
    if "sx" in EXP: stamp(12)
    a("s_barrier")
    stamp(7)
    a(f"buffer_load_dword v{vG}, v{vGO}, {srd(SWS)}, 0 offen sc1")
    NB = 8; POOL = 32; AP, AR = 64, 80
    def ord_(i): return (vPR, 1024 * i) if i < 15 else (vRR, 1024 * (i - 15))
    for i in range(NB):
        v, o = ord_(i); a(f"ds_read_b128 {vr(POOL+4*i,4)}, v{v} offset:{o}")
    XF = 96
    pre = [f"s_mov_b32 s{sT0}, 0xffff0000"]
    for n, xd in enumerate((vXD, vXD2)):
        for j in range(4):
            pre.append(f"v_lshlrev_b32 v{XF+8*n+2*j}, 16, v{xd+j}")
            pre.append(f"v_and_b32 v{XF+8*n+2*j+1}, s{sT0}, v{xd+j}")
    issued = NB
    log = list(range(NB))
    for i in range(25):
        pos = log.index(i)
        a(f"s_waitcnt lgkmcnt({min(len(log)-1-pos,15)})")
        d = vr(AP if i < 15 else AR, 16)
        a(f"v_mfma_f32_32x32x16_bf16 {d}, {vr(VWO+4*i,4)}, {vr(POOL+4*(i%NB),4)}, {'0' if i in (0,15) else d}")
        if issued < 25:
            v, o = ord_(issued); a(f"ds_read_b128 {vr(POOL+4*(issued%NB),4)}, v{v} offset:{o}"); log.append(issued); issued += 1
        if i < 12:
            for x in pre[3 * i:3 * i + 3]: a(x)
        if i == 7:
            a(f"s_cmp_eq_u32 s{sUD}, 1")
            a("s_cbranch_scc1 Ls3ny")
            poll(vFY, vFT, "issued")
            stamp(5)
            a(f"buffer_load_dwordx4 v{vL16}, {srd(SWS)}, s{sYO} offen sc1 lds")
            a(f"buffer_load_dwordx4 v{vL16}, {srd(SWS)}, s{sYO} offen offset:1024 sc1 lds")
            a.label("Ls3ny")
        if 19 <= i < 23:
            q = i - 19
            a(f"ds_write_b128 v{vPW+q}, {vr(AP+4*q,4)}"); log.append(-1)
            a(f"v_add_u32 v{vPW+q}, s{sRD}, v{vPW+q}")
    for q in range(4): a(f"ds_write_b128 v{vPW+q}, {vr(AR+4*q,4)}")
    a("s_waitcnt vmcnt(0) lgkmcnt(0)")
    a("s_barrier")
    stamp(8)
    def f_reads(n, R):
        np_ = 3 + n
        for p in range(np_):
            a(f"ds_read_b128 {vr(R+8*p,4)}, v{vPA} offset:{49152*n+4096*p}")
            a(f"ds_read_b128 {vr(R+8*p+4,4)}, v{vPB} offset:{49152*n+4096*p}")
        a(f"ds_read_b64_tr_b16 {vr(R+32,2)}, v{vYT} offset:{8192*n}")
        a(f"ds_read_b64_tr_b16 {vr(R+34,2)}, v{vYT} offset:{8192*n+256}")
    def f_math(n, R, after):
        np_ = 3 + n
        X = XF + 8 * n; YF = R + 36
        a(f"s_waitcnt lgkmcnt({min(after+2*np_+2-4,15)})")
        for j in range(4): a(f"v_pk_add_f32 {vr(R+2*j,2)}, {vr(R+2*j,2)}, {vr(R+8+2*j,2)}")
        a(f"s_waitcnt lgkmcnt({after+2})")
        for p in range(2, np_):
            for j in range(4): a(f"v_pk_add_f32 {vr(R+2*j,2)}, {vr(R+2*j,2)}, {vr(R+8*p+2*j,2)}")
        a(f"s_waitcnt lgkmcnt({after})")
        for j in range(4):
            a(f"v_lshlrev_b32 v{YF+2*j}, 16, v{R+32+j}")
            a(f"v_and_b32 v{YF+2*j+1}, s{sT0}, v{R+32+j}")
        for j in range(4): a(f"v_pk_mul_f32 {vr(X+2*j,2)}, {vr(X+2*j,2)}, {vr(YF+2*j,2)}")
        for j in range(4): a(f"v_pk_add_f32 {vr(R+2*j,2)}, {vr(R+2*j,2)}, {vr(X+2*j,2)} neg_lo:[0,1] neg_hi:[0,1]")
        for j in range(4): a(f"v_pk_fma_f32 {vr(R+2*j,2)}, {vr(R+2*j,2)}, {vr(vG,2)}, {vr(X+2*j,2)} op_sel_hi:[1,0,1]")
        for j in range(4): a(f"v_cvt_pk_bf16_f32 v{R+32+j}, v{R+2*j}, v{R+2*j+1}")
        a(f"buffer_store_dwordx4 {vr(R+32,4)}, v{vOUT}, {srd(SOUT)}, s{sXOFF} offen offset:{256*n}" + (" sc1" if "osc1" in EXP else " nt" if "ont" in EXP else " sc0 sc1" if "osys" in EXP else ""))
    f_reads(0, 32)
    a(f"s_cmp_lt_u32 s{sW}, 2")
    a("s_cbranch_scc1 Lfin2")
    f_math(0, 32, 0)
    a("s_branch Lfin")
    a.label("Lfin2")
    f_reads(1, 112)
    f_math(0, 32, 10)
    f_math(1, 112, 0)
    a.label("Lfin")
    if DIAG:
        a("s_waitcnt vmcnt(0)")
        stamp(9)
        a(f"s_memtime vcc")
        a("s_waitcnt lgkmcnt(0)")
        a(f"s_mov_b32 s{STS+15}, vcc_lo")
        a("v_mov_b32 v2, 0")
        for i in range(16): a(f"v_writelane_b32 v2, s{STS+i}, {i}")
        a(f"v_lshlrev_b32 v3, 2, v{vL}")
        a(f"s_lshl_b32 s{sT0}, s{sBID}, 3")
        a(f"s_add_u32 s{sT0}, s{sT0}, s{sW}")
        a(f"s_lshl_b32 s{sT0}, s{sT0}, 6")
        a(f"s_add_u32 s{sT0}, s{sT0}, {WS_TS}")
        a("s_mov_b64 exec, 0xffff")
        a(f"buffer_store_dword v2, v3, {srd(SWS)}, s{sT0} offen")
        sp = [e for e in EXP if e.startswith("spin")]
        if sp:
            si, wv, lo, hi = [int(x) for x in sp[0][4:].split("_")]
            a(f"s_cmp_lg_u32 s{sW}, {wv}")
            a("s_cbranch_scc1 Lend")
            a(f"s_cmp_lt_u32 s{sIDX}, {lo}")
            a("s_cbranch_scc1 Lend")
            a(f"s_cmp_ge_u32 s{sIDX}, {hi}")
            a("s_cbranch_scc1 Lend")
            a.label("Lspin")
            a("s_memrealtime vcc")
            a("s_waitcnt lgkmcnt(0)")
            a(f"s_sub_u32 s{sT1}, vcc_lo, s{STS+si}")
            a(f"s_cmp_lt_u32 s{sT1}, 5000")
            a("s_cbranch_scc1 Lspin")
        if "dbgts" in EXP:
            a(f"s_cmp_lg_u32 s{sW}, {int([e for e in EXP if e.startswith('wv')][0][2:])}")
            a("s_cbranch_scc1 Lend")
            a(f"s_cmp_ge_u32 s{sIDX}, 16")
            a("s_cbranch_scc1 Lend")
            a("v_cmp_ne_u32 vcc, 0, v2")
            a(f"v_subrev_u32 v2, s{sTAG}, v2")
            a("v_add_u32 v2, 100, v2")
            a("v_and_b32 v2, 0x7ffffff, v2")
            a("v_cndmask_b32 v2, 0, v2, vcc")
            a("s_mov_b64 exec, 0x3fff")
            a(f"buffer_atomic_umax v2, v3, {srd(SDBG)}, 0 offen offset:4 sc1")
    a.label("Lend")
    a("s_endpgm")

entry(); bwave(); awave(); kva(); qa(); ctype(); conv(); s3()

ref = open("cdna_kernels/%s.s.ref" % NAME).read()
head = [l for l in ref.split("\n") if l.startswith(";") and "@launch" not in l]
out = "\n".join(head) + "\n"
out += "; @launch grid=(256,1,1) block=(512,1,1) lds=%d\n" % LDS_BYTES
out += '.amdgcn_target "amdgcn-amd-amdhsa--gfx950"\n.text\n.globl %s_kernel\n.p2align 8\n.type %s_kernel,@function\n%s_kernel:\n' % (NAME, NAME, NAME)
import re
body = a.text()
ntset = []
if "nt" in EXP: ntset += [SK, SV, SH, SWO, SSK, SGW]
if "ntx" in EXP: ntset += [SX, SWQ]
for s_ in ntset:
    body = re.sub(r"(buffer_load_dword\S* [^\n]*%s, [^\n]*?offen(?: offset:\d+)?)( lds)?\n" % re.escape(srd(s_)), lambda m: m.group(1) + " nt" + (m.group(2) or "") + "\n", body)
out += body
out += '''.section .rodata,"a"
.p2align 6
.amdhsa_kernel %s_kernel
  .amdhsa_next_free_vgpr 256
  .amdhsa_next_free_sgpr 102
  .amdhsa_accum_offset 256
  .amdhsa_group_segment_fixed_size 0
  .amdhsa_kernarg_size 104
  .amdhsa_user_sgpr_count 2
  .amdhsa_user_sgpr_kernarg_segment_ptr 1
  .amdhsa_system_sgpr_workgroup_id_x 1
.end_amdhsa_kernel
''' % NAME
dst = [x for x in sys.argv[1:] if not x.startswith("--")]
open(dst[0] if dst else "cdna_kernels/%s.s" % NAME, "w").write(out)
```

```python
import sys
from asmlib import Asm, vr, sr

NAME = "gated_mix__linear_attn_block__ssm_conv_h3__prompt"
DIAG = "--diag" in sys.argv
EXP = [x[6:] for x in sys.argv if x.startswith("--exp=")]

WS_U = 0
WS_PQ = 0x280000
WS_Y = 0x500000
WS_WOP = 0x780000
WS_KV = 0x850000
WS_C = 0x860000
CDELTA = 320 * 256
WS_FK = WS_C
WS_FY = WS_C + 8 * 256
WS_FQ = WS_C + 64 * 256
WS_G = 0x88C000
WS_TS = 0x890000
WS_SIZE = 0x900000
KVH = 1792

NQ = int(([e[2:] for e in EXP if e.startswith("nq")] + ["0"])[0])
NU = 64 + 64 * NQ
Q0 = int(([e[2:] for e in EXP if e.startswith("q0")] + ["2"])[0])
G0, G1 = 16 + 4 * Q0, 32 - 4 * Q0
SLOT = 36864
L_OFR = 36864
L_KVS = 77824
L_YST = 92160
L_PART = 77824
L_UB = 110592
L_UD = L_UB + 2048
L_HB = 129024
HSTR = 4224
L_SP = 145920
L_CNT = 146048
L_TAG = 146112
L_YT = 146176
L_S0C = 0
L_RPC = 49152
L_GW = L_YT + 10240
LDS_BYTES = L_GW + 2048

SX, SWQ, SWO, SK, SV, SSK, SH, SGW, SOUT, SDBG, SWS = [4 + 4 * i for i in range(11)]
SD = 48
sW, sXCD, sIDX, sRP, sCP, sTAG, sCNT = range(50, 57)
sRB, sCG, sQUAD, sCHL, sLC, sVAR, sCH, sJ, sUD = range(57, 66)
sT0, sT1, sT2, sT3, sT4, sT5, sT6, sT7 = range(66, 74)
sLOG = 74
sCI = 76
sDV = 77
STS = 80
sXOFF, sPQO, sKVO, sTB, sYO, sYM = 96, 97, 98, 99, 100, 101
sCHB = 65
sRD = 3
sWOO = 2
sEPS = 79
sBID = 78
def srd(b): return sr(b, 4)

vL = 0
VWO = 156
vL16, vOW, vPR, vRR, vPW = 1, 2, 3, 4, 5
vKE, vKO, vFK, vFY, vZ, vOUT, vPA, vPB, vYT, vFT, vGO = 9, 10, 11, 12, 13, 14, 15, 16, 17, 18, 19
vXD, vG, vXD2 = 20, 24, 28
vFQ, vFE = 27, 25

a = Asm()
BST = [None]
CST = set()
def stamp(i, force=False):
    if "bst" in EXP and not force and i not in (0, 10): return
    if "cst" in EXP and i in (5, 6, 7, 8):
        if i in CST: return
        CST.add(i)
    if DIAG:
        a(f"{'s_memtime' if 'cyc' in EXP else 's_memrealtime'} vcc")
        a("s_waitcnt lgkmcnt(0)")
        a(f"s_mov_b32 s{STS+i}, vcc_lo")

def poll(vaddr, vdst, state="none", sleep=2, S=None):
    L = a.newlabel("Lpoll"); D = a.newlabel("Lpd")
    if state != "none":
        if state == "issued": a("s_waitcnt vmcnt(0)")
        a(f"v_cmp_ne_u32 vcc, s{sTAG}, v{vdst}")
        a(f"s_cbranch_vccz {D}")
    a(f"s_mov_b32 s{sCNT}, 0x20000")
    a.label(L)
    a(f"buffer_load_dword v{vdst}, v{vaddr}, {srd(S or SWS)}, 0 offen sc1")
    a("s_waitcnt vmcnt(0)")
    a(f"v_cmp_ne_u32 vcc, s{sTAG}, v{vdst}")
    a(f"s_cbranch_vccz {D}")
    if sleep: a(f"s_sleep {sleep}")
    a(f"s_sub_u32 s{sCNT}, s{sCNT}, 1")
    a(f"s_cbranch_scc0 {L}")
    a.label(D)

def cnt_load(S, vaddr, vdst):
    a(f"buffer_load_dword v{vdst}, v{vaddr}, {srd(S)}, 0 offen sc1")

def tag_get(vz, vdst, state="issued"):
    L = a.newlabel("Ltag"); D = a.newlabel("Ltd")
    if state != "none":
        if state == "issued": a("s_waitcnt vmcnt(0)")
        a(f"v_readfirstlane_b32 s{sTAG}, v{vdst}")
        a(f"s_cmp_lg_u32 s{sTAG}, 0")
        a(f"s_cbranch_scc1 {D}")
    a(f"s_mov_b32 s{sCNT}, 0x20000")
    a.label(L)
    a(f"buffer_load_dword v{vdst}, v{vz}, {srd(SDBG)}, 0 offen sc1")
    a("s_waitcnt vmcnt(0)")
    a(f"v_readfirstlane_b32 s{sTAG}, v{vdst}")
    a(f"s_cmp_lg_u32 s{sTAG}, 0")
    a(f"s_cbranch_scc1 {D}")
    a("s_sleep 2")
    a(f"s_sub_u32 s{sCNT}, s{sCNT}, 1")
    a(f"s_cbranch_scc0 {L}")
    a.label(D)

def tag_lds(vtmp):
    a(f"v_mov_b32 v{vtmp}, {L_TAG}")
    a(f"ds_read_b32 v{vtmp}, v{vtmp}")
    a("s_waitcnt lgkmcnt(0)")
    a(f"v_readfirstlane_b32 s{sTAG}, v{vtmp}")

def arr_prep(vt0, vt1):
    a(f"v_mov_b32 v{vt0}, {CDELTA}")
    a(f"v_mov_b32 v{vt1}, 1")
def arr_issue(vt0, vt1, soff):
    a("s_mov_b64 exec, 1")
    a(f"buffer_atomic_add v{vt1}, v{vt0}, {srd(SWS)}, {soff} offen sc0 sc1")
    a("s_mov_b64 exec, -1")
def arr_finish(vt0, vt1, soff, n, wait=0):
    D = a.newlabel("Lal")
    a(f"s_waitcnt vmcnt({wait})")
    a(f"v_readfirstlane_b32 s{sT7}, v{vt1}")
    a(f"s_cmp_lg_u32 s{sT7}, {n-1}")
    a(f"s_cbranch_scc1 {D}")
    flag_store(vt0, vt1, soff)
    a.label(D)
def flag_store(vt0, vt1, soff):
    a(f"v_mov_b32 v{vt0}, 0")
    a(f"v_mov_b32 v{vt1}, s{sTAG}")
    a("s_mov_b64 exec, 1")
    a(f"buffer_store_dword v{vt1}, v{vt0}, {srd(SWS)}, {soff} offen sc1")
    a("s_mov_b64 exec, -1")

def darr_issue(vz, v1, off):
    a(f"v_mov_b32 v{v1}, 1")
    a("s_mov_b64 exec, 1")
    a(f"buffer_atomic_add v{v1}, v{vz}, {srd(SDBG)}, 0 offen offset:{off} sc0 sc1")
    a("s_mov_b64 exec, -1")
def darr_finish(vz, v1, off, n, wait=0):
    D = a.newlabel("Lda")
    a(f"s_waitcnt vmcnt({wait})")
    a(f"v_readfirstlane_b32 s{sT7}, v{v1}")
    a(f"s_cmp_lg_u32 s{sT7}, {n-1}")
    a(f"s_cbranch_scc1 {D}")
    a(f"v_mov_b32 v{v1}, 1")
    a("s_mov_b64 exec, 1")
    a(f"buffer_store_dword v{v1}, v{vz}, {srd(SDBG)}, 0 offen offset:{128+off} sc1")
    a("s_mov_b64 exec, -1")
    a.label(D)

def lds_arrive(vaddr, vtmp):
    a(f"v_mov_b32 v{vtmp}, 1")
    a("s_mov_b64 exec, 1")
    a(f"ds_add_u32 v{vaddr}, v{vtmp}")
    a("s_mov_b64 exec, -1")
def lds_wait(vaddr, vtmp, target):
    L = a.newlabel("Lls"); D = a.newlabel("Lld")
    a(f"s_mov_b32 s{sCNT}, 0x400000")
    a.label(L)
    a(f"ds_read_b32 v{vtmp}, v{vaddr}")
    a("s_waitcnt lgkmcnt(0)")
    a(f"v_readfirstlane_b32 s{sT7}, v{vtmp}")
    a(f"s_cmp_ge_u32 s{sT7}, {target}")
    a(f"s_cbranch_scc1 {D}")
    a(f"s_sub_u32 s{sCNT}, s{sCNT}, 1")
    a(f"s_cbranch_scc0 {L}")
    a.label(D)

def div20(vq, vr_, vp):
    a(f"v_mul_u32_u24 v{vq}, 3277, v{vp}")
    a(f"v_lshrrev_b32 v{vq}, 16, v{vq}")
    a(f"v_mul_u32_u24 v{vr_}, 20, v{vq}")
    a(f"v_sub_u32 v{vr_}, v{vp}, v{vr_}")
for p in range(1000): assert (p * 3277) >> 16 == p // 20

SIZES = {SX: 2621440, SWQ: 2457600, SWO: 819200, SK: 2621440, SV: 2621440, SSK: 5120, SH: 2621440, SGW: 1280, SOUT: 2621440, SDBG: 256, SWS: WS_SIZE}
def srd_init(lst):
    for s in lst:
        a(f"s_mov_b32 s{s+2}, {SIZES[s]}")
        a(f"s_mov_b32 s{s+3}, 0x20000")
def ka_rest():
    if "ka1" not in EXP: return
    for s, off in ((SK, 32), (SV, 40), (SSK, 48), (SWS, 96), (SDBG, 88), (SH, 56), (SWO, 16), (SGW, 72), (SOUT, 80), (SD, 64)):
        a(f"s_load_dwordx2 {sr(s,2)}, s[0:1], {off}")
def common_scalars():
    a(f"s_mov_b32 s{sLOG}, 0x3fb8aa3b")
    a(f"s_mov_b32 s{sLOG+1}, 0x3fb8aa3b")
    a(f"s_mov_b32 s{sEPS}, 0x358637bd")
    a(f"s_mul_i32 s{sT0}, s{sCP}, {32-G0}")
    a(f"s_lshl_b32 s{sCI}, s{sRP}, 4")
    a(f"s_add_u32 s{sCI}, s{sCI}, s{sT0}")
    a(f"s_add_u32 s{sCI}, s{sCI}, s{sIDX}")
    a(f"s_sub_u32 s{sCI}, s{sCI}, s{sXCD}")

def entry():
    a.label("Lentry")
    a(f"s_cmp_ge_u32 s2, 256")
    a("s_cbranch_scc1 Lend")
    if DIAG: a(f"s_memrealtime {sr(sT6,2)}")
    a(f"s_getpc_b64 {sr(sT0,2)}")
    a.label("Lpcref")
    a(f"s_lshr_b32 s{sIDX}, s2, 3")
    a(f"s_mul_i32 s{sT2}, s{sIDX}, 9")
    a("v_min_u32 v1, 8, v0")
    a(f"v_add_lshl_u32 v1, v1, s{sT2}, 7")
    a("v_min_u32 v1, Lend-Lpcref, v1")
    a(f"global_load_dword v255, v1, {sr(sT0,2)}")
    for s, off in ((SX, 0), (SWQ, 8), (SK, 32), (SV, 40), (SSK, 48), (SWS, 96), (SDBG, 88), (SH, 56), (SWO, 16), (SGW, 72), (SOUT, 80), (SD, 64)):
        if "ka1" in EXP and off >= 16: continue
        a(f"s_load_dwordx2 {sr(s,2)}, s[0:1], {off}")
    a("v_lshrrev_b32 v1, 6, v0")
    a(f"v_and_b32 v{vL}, 63, v0")
    a(f"v_readfirstlane_b32 s{sW}, v1")
    a("s_bitcmp1_b32 s2, 2")
    a(f"s_cselect_b32 s{sXCD}, {G1}, {G0}")
    a(f"s_and_b32 s{sRP}, s2, 3")
    a(f"s_bfe_u32 s{sCP}, s2, 0x10002")
    a(f"s_mov_b32 s{sBID}, s2")
    a(f"s_mov_b32 s{sTAG}, 1")
    a(f"s_and_b32 s{sT0}, s{sIDX}, 3")
    a(f"s_lshl_b32 s{sRB}, s{sRP}, 2")
    a(f"s_add_u32 s{sRB}, s{sRB}, s{sT0}")
    if DIAG:
        for i in range(16): a(f"s_mov_b32 s{STS+i}, 0")
        stamp(0)
        a(f"s_mov_b32 s{STS+10}, s{sT6}")
        a(f"s_memtime vcc")
        a("s_waitcnt lgkmcnt(0)")
        a(f"s_mov_b32 s{STS+14}, vcc_lo")
    a(f"s_cmp_ge_u32 s{sIDX}, s{sXCD}")
    a("s_cbranch_scc1 Lctype")
    a(f"s_cmp_lt_u32 s{sW}, 4")
    a("s_cbranch_scc1 Lawave")

def s3_setup(split=None):
    a.c("S3 setup")
    sR3, sC3 = sT2, sT3
    a(f"s_lshr_b32 s{sT0}, s{sIDX}, 1")
    a(f"s_lshl_b32 s{sR3}, s{sRP}, 4")
    a(f"s_add_u32 s{sR3}, s{sR3}, s{sT0}")
    a(f"s_and_b32 s{sT0}, s{sIDX}, 1")
    a(f"s_lshl_b32 s{sC3}, s{sCP}, 1")
    a(f"s_add_u32 s{sC3}, s{sC3}, s{sT0}")
    a(f"v_lshlrev_b32 v{vL16}, 4, v{vL}")
    a(f"v_mov_b32 v{vZ}, 0")
    a(f"v_lshrrev_b32 v24, 4, v{vL}")
    a(f"v_and_b32 v25, 3, v{vL}")
    a(f"v_bfe_u32 v26, v{vL}, 2, 2")
    a(f"s_and_b32 s{sT0}, s{sW}, 1")
    a(f"s_lshl_b32 s{sT1}, s{sT0}, 4")
    a("v_lshl_add_u32 v27, v24, 2, v25")
    a(f"v_add_u32 v27, s{sT1}, v27")
    a(f"v_mul_u32_u24 v{vOUT}, 1280, v27")
    a(f"v_lshl_add_u32 v{vOUT}, v26, 4, v{vOUT}")
    a(f"s_mul_i32 s{sXOFF}, s{sR3}, 40960")
    a(f"s_mul_i32 s{sT4}, s{sC3}, 320")
    a(f"s_add_u32 s{sYO}, s{sXOFF}, {WS_Y}")
    a(f"s_add_u32 s{sXOFF}, s{sXOFF}, s{sT4}")
    a(f"s_lshr_b32 s{sT4}, s{sW}, 1")
    a(f"s_lshl_b32 s{sT5}, s{sT4}, 6")
    a(f"s_add_u32 s{sXOFF}, s{sXOFF}, s{sT5}")
    a(f"s_lshl_b32 s{sT5}, s{sR3}, 7")
    a(f"s_add_u32 s{sT5}, s{sT5}, {WS_G}")
    a(f"v_lshlrev_b32 v{vGO}, 2, v27")
    a(f"v_add_u32 v{vGO}, s{sT5}, v{vGO}")
    a(f"v_bfe_u32 v{vPA}, v27, 1, 1")
    a(f"v_and_b32 v{vPB}, 1, v27")
    a(f"v_lshl_or_b32 v{vPA}, v{vPB}, 1, v{vPA}")
    a(f"v_and_or_b32 v{vPA}, v27, 4, v{vPA}")
    a(f"v_lshlrev_b32 v{vPB}, 1, v26")
    a(f"v_xor_b32 v{vPA}, v{vPA}, v{vPB}")
    a(f"v_lshlrev_b32 v{vPA}, 4, v{vPA}")
    a(f"v_lshl_add_u32 v{vPA}, v27, 7, v{vPA}")
    a(f"s_mul_i32 s{sT5}, s{sT4}, 12288")
    a(f"s_add_u32 s{sT5}, s{sT5}, {L_PART}")
    a(f"v_add_u32 v{vPA}, s{sT5}, v{vPA}")
    a(f"v_xor_b32 v{vPB}, 16, v{vPA}")
    a(f"v_lshl_add_u32 v{vYT}, v25, 3, v26")
    a(f"v_lshlrev_b32 v{vYT}, 6, v{vYT}")
    a(f"v_lshl_add_u32 v{vYT}, v24, 3, v{vYT}")
    a(f"s_lshl_b32 s{sT4}, s{sT4}, 11")
    a(f"s_lshl_b32 s{sT1}, s{sT1}, 1")
    a(f"s_add_u32 s{sT4}, s{sT4}, s{sT1}")
    a(f"s_add_u32 s{sT4}, s{sT4}, {L_YT}")
    a(f"v_add_u32 v{vYT}, s{sT4}, v{vYT}")
    if split: split(0)
    a(f"v_and_b32 v24, 31, v{vL}")
    a(f"v_lshrrev_b32 v25, 5, v{vL}")
    a(f"v_bfe_u32 v{vPW}, v24, 1, 1")
    a("v_and_b32 v26, 1, v24")
    a(f"v_lshl_or_b32 v{vPW}, v26, 1, v{vPW}")
    a(f"v_and_or_b32 v{vPW}, v24, 4, v{vPW}")
    a(f"v_xor_b32 v{vPW}, v{vPW}, v25")
    a(f"v_lshlrev_b32 v{vPW}, 4, v{vPW}")
    a(f"v_lshl_add_u32 v{vPW}, v24, 7, v{vPW}")
    a(f"s_lshl_b32 s{sT4}, s{sT0}, 12")
    a(f"s_add_u32 s{sT5}, s{sT5}, s{sT4}")
    a(f"v_add_u32 v{vPW}, s{sT5}, v{vPW}")
    for q in range(1, 4): a(f"v_xor_b32 v{vPW+q}, {32*q}, v{vPW}")
    a(f"s_mul_i32 s{sT4}, s{sW}, 12288")
    a(f"s_add_u32 s{sT4}, s{sT4}, {L_PART+8192}")
    a(f"s_lshl_b32 s{sT1}, s{sW}, 12")
    a(f"s_add_u32 s{sT1}, s{sT1}, {L_PART+49152-16384}")
    a(f"s_cmp_lt_u32 s{sW}, 4")
    a(f"s_cselect_b32 s{sT4}, s{sT4}, s{sT1}")
    a(f"s_sub_u32 s{sRD}, s{sT4}, s{sT5}")
    a(f"s_sub_u32 s{sT1}, s{sW}, 4")
    a(f"s_cmp_lt_u32 s{sW}, 4")
    a(f"s_cselect_b32 s{sT1}, 3, s{sT1}")
    a(f"s_mul_i32 s{sT1}, s{sT1}, {10*1024}")
    a(f"s_add_u32 s{sT1}, s{sT1}, {L_OFR}")
    a(f"v_add_u32 v{vRR}, s{sT1}, v{vL16}")
    a(f"s_mul_i32 s{sT1}, s{sT0}, {15*1024}")
    a(f"s_add_u32 s{sT1}, s{sT1}, {L_OFR}")
    a(f"v_add_u32 v{vPR}, s{sT1}, v{vL16}")
    a(f"s_mul_i32 s{sT1}, s{sW}, 5120")
    a(f"s_add_u32 s{sT4}, s{sT1}, {L_OFR}")
    a(f"v_add_u32 v{vOW}, s{sT4}, v{vL16}")
    a(f"s_add_u32 s{sPQO}, s{sYO}, s{sT1}")
    a(f"s_add_u32 s{sPQO}, s{sPQO}, {(WS_PQ-WS_Y)&0xffffffff}")
    if split: split(1)
    a("v_mul_u32_u24 v25, 336, v25")
    a("v_min_u32 v26, 20, v24")
    a("v_lshl_add_u32 v26, v26, 4, v25")
    a("v_lshrrev_b32 v27, 2, v24")
    a(f"v_mov_b32 v{vFT}, 0x7f000000")
    a("v_cmp_eq_u32 vcc, 5, v27")
    a(f"v_subrev_u32 v{vKO}, 4, v24")
    a(f"v_lshl_add_u32 v{vKO}, v{vKO}, 4, v25")
    a(f"v_cndmask_b32 v{vKE}, v26, v{vFT}, vcc")
    a(f"v_cndmask_b32 v{vKO}, v26, v{vKO}, vcc")
    a("v_cmp_eq_u32 vcc, 4, v27")
    a(f"s_mul_i32 s{sKVO}, s{sW}, {4*KVH}")
    a(f"s_add_u32 s{sKVO}, s{sKVO}, {WS_KV}")
    a(f"v_cndmask_b32 v{vKO}, v{vKO}, v{vFT}, vcc")
    a(f"s_lshl_b32 s{sT1}, s{sW}, 8")
    a(f"s_add_u32 s{sT1}, s{sT1}, {WS_FK}")
    a(f"v_mov_b32 v{vFK}, s{sT1}")
    a(f"s_lshr_b32 s{sT1}, s{sR3}, 1")
    a(f"s_lshl_b32 s{sT1}, s{sT1}, 3")
    a(f"s_add_u32 s{sT1}, s{sT1}, s{sW}")
    a(f"s_lshl_b32 s{sT1}, s{sT1}, 8")
    a(f"s_add_u32 s{sT1}, s{sT1}, {WS_FQ}")
    a(f"v_mov_b32 v{vFQ}, s{sT1}")
    a(f"v_writelane_b32 v{vFK}, s{sT1}, 0")
    a(f"s_lshr_b32 s{sT1}, s{sR3}, 3")
    a(f"s_add_u32 s{sT1}, s{sT1}, 2")
    a(f"s_bfe_u32 s{sT1}, s{sT1}, 0x10002")
    a(f"s_mul_i32 s{sT1}, s{sT1}, 20")
    a(f"s_mul_i32 s{sT4}, s{sC3}, 5")
    a(f"s_min_u32 s{sT5}, s{sW}, 4")
    a(f"s_add_u32 s{sT4}, s{sT4}, s{sT5}")
    a(f"s_add_u32 s{sT1}, s{sT1}, s{sT4}")
    a(f"s_lshl_b32 s{sT1}, s{sT1}, 8")
    a(f"s_add_u32 s{sT1}, s{sT1}, {WS_FY}")
    a(f"v_mov_b32 v{vFY}, s{sT1}")
    a(f"s_lshl_b32 s{sT4}, s{sT4}, 11")
    a(f"s_add_u32 s{sYO}, s{sYO}, s{sT4}")
    a(f"s_lshl_b32 s{sYM}, s{sT5}, 11")
    a(f"s_add_u32 s{sYM}, s{sYM}, {L_YT}")

def x_loads():
    a(f"buffer_load_dwordx4 {vr(vXD,4)}, v{vOUT}, {srd(SX)}, s{sXOFF} offen")
    a(f"s_cmp_lt_u32 s{sW}, 2")
    a("s_cselect_b64 exec, -1, 1")
    a(f"buffer_load_dwordx4 {vr(vXD2,4)}, v{vOUT}, {srd(SX)}, s{sXOFF} offen offset:256")
    a("s_mov_b64 exec, -1")

def wo_prep(vtmp):
    a(f"s_and_b32 s{sT4}, s{sIDX}, 1")
    a(f"s_lshl_b32 s{sT5}, s{sCP}, 1")
    a(f"s_add_u32 s{sT4}, s{sT4}, s{sT5}")
    a(f"s_lshl_b32 s{sT4}, s{sT4}, 3")
    a(f"s_add_u32 s{sT4}, s{sT4}, s{sW}")
    a(f"s_mul_i32 s{sT4}, s{sT4}, 25600")
    a(f"s_add_u32 s{sWOO}, s{sT4}, {WS_WOP}")
    a(f"v_lshlrev_b32 v{vtmp}, 4, v{vL}")
def wo_list(vtmp, order=None):
    out = []
    for i in range(25):
        t = f"buffer_load_dwordx4 {vr(VWO+4*i,4)}, v{vtmp}, {srd(SWS)}, s{sWOO} offen offset:{1024*(i&3)} sc1"
        if (i & 3) == 3: t += f"\ns_add_u32 s{sWOO}, s{sWOO}, 4096"
        out.append(t)
    return out

S0B = 156
def s0_task(st):
    a(f"s_mul_i32 s{sTB}, s{st}, 6554")
    a(f"s_lshr_b32 s{sTB}, s{sTB}, 16")
    a(f"s_mul_i32 s{sCHB}, s{sTB}, 10")
    a(f"s_sub_u32 s{sCHB}, s{st}, s{sCHB}")
for t in range(640): assert (t * 6554) >> 16 == t // 10

def s0_loads(LB=None, init=True):
    a.c("S0 loads")
    B = S0B
    a(f"v_lshrrev_b32 v{B+1}, 3, v{vL}")
    a(f"v_and_b32 v{B+2}, 7, v{vL}")
    a(f"v_mul_u32_u24 v{B+3}, 5120, v{B+1}")
    a(f"v_lshl_add_u32 v{B+3}, v{B+2}, 4, v{B+3}")
    a(f"s_mul_i32 s{sT0}, s{sTB}, 40960")
    a(f"s_lshl_b32 s{sT1}, s{sCHB}, 7")
    a(f"s_add_u32 s{sT0}, s{sT0}, s{sT1}")
    a(f"v_add_u32 v{B+64}, s{sT0}, v{B+3}")
    a(f"v_subrev_u32 v{B+65}, 3840, v{B+64}")
    a(f"v_lshlrev_b32 v{B+66}, 6, v{B+2}")
    a(f"s_lshl_b32 s{sT1}, s{sCHB}, 9")
    if init:
        srd_init([SK, SV, SSK])
        a("s_waitcnt lgkmcnt(0)")
    LB = LB or B
    for i in range(4): a(f"buffer_load_dwordx4 {vr(LB+16+4*i,4)}, v{B+64}, {srd(SK)}, 0 offen offset:{1280*i}")
    for i in range(3): a(f"buffer_load_dwordx4 {vr(LB+4+4*i,4)}, v{B+65}, {srd(SK)}, 0 offen offset:{1280*i}")
    for i in range(4): a(f"buffer_load_dwordx4 {vr(LB+32+4*i,4)}, v{B+64}, {srd(SV)}, 0 offen offset:{1280*i}")
    for i in range(4): a(f"buffer_load_dwordx4 {vr(LB+48+4*i,4)}, v{B+66}, {srd(SSK)}, s{sT1} offen offset:{16*i}")

def s0_addr(s_scr):
    B = S0B
    a(f"v_mul_u32_u24 v{B+67}, 576, v{B+1}")
    a(f"v_lshl_add_u32 v{B+67}, v{B+2}, 4, v{B+67}")
    a(f"v_add_u32 v{B+67}, s{s_scr}, v{B+67}")
    a(f"v_and_b32 v{B+68}, 15, v{vL}")
    a(f"v_mul_u32_u24 v{B+69}, 144, v{B+68}")
    a(f"v_lshrrev_b32 v{B+70}, 4, v{vL}")
    a(f"v_lshl_add_u32 v{B+69}, v{B+70}, 3, v{B+69}")
    a(f"v_add_u32 v{B+69}, s{s_scr}, v{B+69}")
    a(f"s_and_b32 s{sT0}, s{sTB}, 3")
    a(f"v_xor_b32 v{B+68}, s{sT0}, v{B+68}")
    a(f"v_lshlrev_b32 v{B+68}, 4, v{B+68}")
    a(f"v_lshl_add_u32 v{B+68}, v{B+70}, 14, v{B+68}")
    a(f"s_lshl_b32 s{sT0}, s{sCHB}, 18")
    a(f"s_lshl_b32 s{sT1}, s{sTB}, 8")
    a(f"s_add_u32 s{sT0}, s{sT0}, s{sT1}")
    a(f"s_mov_b32 s{sT1}, 0xffff0000")

def s0_compute(split=None, pk=True, LB=None):
    a.c("S0 compute")
    B = S0B
    LB = LB or B
    KF, VF, WF, AC, UO = 112, 126, 134, B + 88, B + 72
    for p in range(4):
        for cc in range(2):
            c = 2 * p + cc
            for h in range(2):
                a(f"v_lshlrev_b32 v{WF+4*h+cc}, 16, v{LB+48+2*c+h}")
                a(f"v_and_b32 v{WF+4*h+2+cc}, s{sT1}, v{LB+48+2*c+h}")
        for r in range(7):
            a(f"v_lshlrev_b32 v{KF+2*r}, 16, v{LB+4+4*r+p}")
            a(f"v_and_b32 v{KF+2*r+1}, s{sT1}, v{LB+4+4*r+p}")
        for r in range(4):
            a(f"v_lshlrev_b32 v{VF+2*r}, 16, v{LB+32+4*r+p}")
            a(f"v_and_b32 v{VF+2*r+1}, s{sT1}, v{LB+32+4*r+p}")
        if pk:
            for i in range(4): a(f"v_pk_mul_f32 {vr(AC+2*i,2)}, {vr(KF+2*(i+3),2)}, {vr(WF,2)}")
            for d in range(1, 4):
                for i in range(4): a(f"v_pk_fma_f32 {vr(AC+2*i,2)}, {vr(KF+2*(i+3-d),2)}, {vr(WF+2*d,2)}, {vr(AC+2*i,2)}")
            for i in range(4): a(f"v_pk_mul_f32 {vr(AC+2*i,2)}, {vr(AC+2*i,2)}, {vr(VF+2*i,2)}")
        else:
            for i in range(8): a(f"v_mul_f32 v{AC+i}, v{KF+6+i}, v{WF+(i&1)}")
            for d in range(1, 4):
                for i in range(8): a(f"v_fmac_f32 v{AC+i}, v{KF+6+i-2*d}, v{WF+2*d+(i&1)}")
            for i in range(8): a(f"v_mul_f32 v{AC+i}, v{AC+i}, v{VF+i}")
        for i in range(4): a(f"v_cvt_pk_bf16_f32 v{UO+4*i+p}, v{AC+2*i}, v{AC+2*i+1}")
        if split: split(p)
    for i in range(4): a(f"ds_write_b128 v{B+67}, {vr(UO+4*i,4)} offset:{144*i}")
    for j in range(4):
        a(f"ds_read_b64_tr_b16 {vr(LB+4+4*j,2)}, v{B+69} offset:{32*j}")
        a(f"ds_read_b64_tr_b16 {vr(LB+6+4*j,2)}, v{B+69} offset:{32*j+2304}")
    for j in range(4):
        a(f"s_waitcnt lgkmcnt({6-2*j})")
        a(f"buffer_store_dwordx4 {vr(LB+4+4*j,4)}, v{B+68}, {srd(SWS)}, s{sT0} offen sc1")
        if j < 3: a(f"s_add_u32 s{sT0}, s{sT0}, 65536")

def f0_off(sd):
    a(f"s_lshl_b32 s{sd}, s{sCHB}, 8")
    a(f"s_add_u32 s{sd}, s{sd}, {WS_F0}")

ACC = 32
FB = [112, 156]
vX0, vX1, vWA, vWX = 148, 149, 150, 154
vA1, vA2, vC16, vG4 = 16, 17, 18, 19
sC, sSL = sT2, sT3

def a_setup():
    a.c("A-wave address setup")
    a(f"s_and_b32 s{sT0}, s{sW}, 1")
    a(f"s_lshr_b32 s{sT1}, s{sW}, 1")
    a(f"v_and_b32 v{vC16}, 15, v{vL}")
    a(f"v_lshrrev_b32 v{vG4}, 4, v{vL}")
    a(f"v_lshrrev_b32 v8, 1, v{vC16}")
    a(f"v_xor_b32 v8, v{vG4}, v8")
    a(f"v_lshlrev_b32 v8, 4, v8")
    a(f"v_lshl_add_u32 v8, v{vC16}, 7, v8")
    a(f"s_lshl_b32 s{sT4}, s{sT1}, 13")
    a(f"v_add_u32 v{vX0}, s{sT4}, v8")
    a(f"v_xor_b32 v{vX1}, 64, v{vX0}")
    a(f"v_bfe_u32 v8, v{vL}, 2, 2")
    a(f"v_lshl_add_u32 v9, v{vG4}, 3, v8")
    a(f"v_and_b32 v10, 1, v{vG4}")
    a(f"v_xor_b32 v10, s{sT0}, v10")
    a(f"v_and_b32 v11, 3, v{vL}")
    a("v_lshlrev_b32 v11, 3, v11")
    a(f"v_lshl_add_u32 v{vWX}, v9, 6, v11")
    a(f"v_lshl_add_u32 v{vWX}, v10, 5, v{vWX}")
    a(f"v_add_u32 v{vWX}, 32768, v{vWX}")
    a("v_lshl_or_b32 v8, v10, 2, v8")
    a("v_lshl_add_u32 v8, v8, 5, v11")
    a("v_lshl_add_u32 v8, v9, 8, v8")
    a(f"v_add_u32 v{vWA}, 16384, v8")
    for tt in range(1, 4): a(f"v_xor_b32 v{vWA+tt}, {32*tt}, v{vWA}")

def a_reads(buf, ks):
    b = FB[buf]
    xs = [f"ds_read_b128 {vr(b+4*rt,4)}, v{vX1 if ks else vX0} offset:{2048*rt}" for rt in range(4)]
    ws = []
    for tt in range(5):
        for sec in range(2):
            if tt < 4: ws.append(f"ds_read_b64_tr_b16 {vr(b+16+4*tt+2*sec,2)}, v{vWA+tt} offset:{ks*8192+sec*1024}")
            else: ws.append(f"ds_read_b64_tr_b16 {vr(b+16+4*tt+2*sec,2)}, v{vWX} offset:{ks*2048+sec*256}")
    return [xs[0], ws[0], ws[1], xs[1], ws[2], ws[3], xs[2], ws[4], ws[5], xs[3]] + ws[6:]

def acc(rt, tt): return ACC + 4 * (rt * 5 + tt)

def a_mfmas(buf, qtype, order=None):
    b = FB[buf]
    out = []
    for (rt, tt) in (order or [(rt, tt) for tt in range(5) for rt in range(4)]):
        d = vr(acc(rt, tt), 4)
        xf = vr(b + 4 * rt, 4); wf = vr(b + 16 + 4 * tt, 4)
        A, B = (wf, xf) if qtype else (xf, wf)
        out.append(f"v_mfma_f32_16x16x32_bf16 {d}, {A}, {B}, {d}")
    return out

def interleave(mf, rd):
    j = 0
    for i, m in enumerate(mf):
        a(m)
        if j < len(rd): a(rd[j]); j += 1
    while j < len(rd): a(rd[j]); j += 1

def a_mainloop(qtype):
    t = "q" if qtype else "k"
    a.c("A main loop")
    a(f"s_mov_b32 s{sC}, 0")
    a(f"s_mov_b32 s{sSL}, 0")
    a(f"s_mov_b32 s{sT6}, {1<<10}")
    if qtype:
        a(f"s_cmp_lt_u32 s{sW}, {NQ}")
        a(f"s_cselect_b32 s{sT6}, {(1<<10)|(1<<1)|(1<<3)}, s{sT6}")
    if "noprio" not in EXP: a("s_setprio 2")
    a("s_waitcnt lgkmcnt(0)")
    if "ast" in EXP: stamp(1, True)
    a("s_barrier")
    stamp(1)
    for r in a_reads(0, 0): a(r)
    book = [
        f"s_add_u32 s{sSL}, s{sSL}, 1\ns_cmp_eq_u32 s{sSL}, 3",
        f"s_mov_b32 s{sT4}, {SLOT}",
        f"s_cselect_b32 s{sT4}, {-2*SLOT & 0xffffffff}, s{sT4}",
        f"s_cselect_b32 s{sSL}, 0, s{sSL}\ns_add_u32 s{sC}, s{sC}, 1",
    ]
    src_ = f"s{sT4}"
    rd = a_reads(1, 1)
    seq = []
    for i, r in enumerate(rd): seq.append(r + ("\n" + book[i - 2] if 2 <= i < 6 else ""))
    seq += [f"v_add_u32 v{vX0}, {src_}, v{vX0}\nv_add_u32 v{vX1}, {src_}, v{vX1}",
            f"v_add_u32 v{vWA}, {src_}, v{vWA}\nv_add_u32 v{vWA+1}, {src_}, v{vWA+1}",
            f"v_add_u32 v{vWA+2}, {src_}, v{vWA+2}\nv_add_u32 v{vWA+3}, {src_}, v{vWA+3}",
            f"v_add_u32 v{vWX}, {src_}, v{vWX}\ns_bitcmp1_b32 s{sT6}, s{sC}"]
    a(".p2align 3")
    a.label(f"Lml{t}")
    a("s_waitcnt lgkmcnt(0)")
    interleave(a_mfmas(0, qtype), seq)
    a("s_waitcnt lgkmcnt(0)")
    a(f"s_cbranch_scc1 Lhook{t}")
    a.label(f"Lhookd{t}")
    if "ast" in EXP:
        a("s_memrealtime vcc")
        a("s_waitcnt lgkmcnt(0)")
        a(f"s_mov_b32 m0, s{sC}")
        a("v_writelane_b32 v29, vcc_lo, m0")
    a("s_barrier")
    interleave(a_mfmas(1, qtype), a_reads(0, 0))
    a(f"s_branch Lml{t}")
    a.label(f"Lhook{t}")
    if qtype:
        a(f"s_cmp_eq_u32 s{sC}, 10")
        a(f"s_cbranch_scc1 Lmx{t}")
        N2 = a.newlabel("Lhk")
        a(f"s_cmp_lg_u32 s{sC}, 1")
        a(f"s_cbranch_scc1 {N2}")
        a("s_waitcnt vmcnt(0)")
        darr_issue(24, 25, 0)
        a(f"s_branch Lhookd{t}")
        a.label(N2)
        darr_finish(24, 25, 0, NU)
        a(f"s_branch Lhookd{t}")
        a.label(f"Lmx{t}")
    if "ast" in EXP:
        for c in range(1, 9): a(f"v_readlane_b32 s{STS+1+c}, v29, {c}")

def acc_zero():
    for i in range(80): a(f"v_mov_b32 v{ACC+i}, 0")

def phi_list(regs, tmp, pk=False):
    out = []
    B = 4
    for i in range(0, len(regs), B):
        batch = regs[i:i + B]
        for j, r in enumerate(batch):
            if pk:
                out.append(f"v_pk_mul_f32 {vr(tmp+2*j,2)}, {vr(r,2)}, {sr(sLOG,2)}"); continue
            out.append(f"v_mul_f32 v{tmp+2*j}, s{sLOG}, v{r}")
            out.append(f"v_mul_f32 v{tmp+2*j+1}, s{sLOG}, v{r+1}")
        for j, r in enumerate(batch):
            out.append(f"v_exp_f32_e64 v{tmp+2*j}, v{tmp+2*j} clamp")
            out.append(f"v_exp_f32_e64 v{tmp+2*j+1}, v{tmp+2*j+1} clamp")
        for j, r in enumerate(batch):
            out.append(f"v_max_f32 v{r}, s{sEPS}, v{r}")
            out.append(f"v_max_f32 v{r+1}, s{sEPS}, v{r+1}")
        for j, r in enumerate(batch):
            if pk:
                out.append(f"v_pk_add_f32 {vr(r,2)}, {vr(r,2)}, {vr(tmp+2*j,2)}"); continue
            out.append(f"v_add_f32 v{r}, v{r}, v{tmp+2*j}")
            out.append(f"v_add_f32 v{r+1}, v{r+1}, v{tmp+2*j+1}")
    return out

def sprinkle(main, extra, every, start=0):
    j = 0
    for i, m in enumerate(main):
        a(m)
        if i >= start and (i - start) % every == every - 1 and j < len(extra):
            a(extra[j]); j += 1
    return extra[j:]

def fc_addr(v):
    a(f"v_and_b32 v{v}, 7, v{vL}")
    a(f"v_lshlrev_b32 v{v}, 8, v{v}")
    a(f"v_add_u32 v{v}, {WS_FC}, v{v}")
def f0_addr(v):
    a(f"s_lshr_b32 s{sT4}, s{sQUAD}, 4")
    a(f"s_lshl_b32 s{sT4}, s{sT4}, 8")
    a(f"s_add_u32 s{sT4}, s{sT4}, {WS_F0}")
    a(f"v_mov_b32 v{v}, s{sT4}")

def awave():
    a.label("Lawave")
    ka_rest()
    a(f"s_cmp_ge_u32 s{sIDX}, 16")
    a("s_cbranch_scc1 Lqa")
    srd_init([SWS, SDBG])
    common_scalars()
    srd_init([SX, SOUT])
    acc_zero()

def kva():
    a(f"s_lshr_b32 s{sT0}, s{sIDX}, 2")
    a(f"s_lshl_b32 s{sCG}, s{sCP}, 2")
    a(f"s_add_u32 s{sCG}, s{sCG}, s{sT0}")
    a_setup()
    a(f"s_mul_i32 s{sT4}, s{sW}, 3584")
    a(f"s_add_u32 s{sT4}, s{sT4}, {L_KVS}")
    a(f"v_mul_u32_u24 v8, 336, v{vG4}")
    a(f"v_add_u32 v8, s{sT4}, v8")
    a(f"v_lshl_add_u32 v{vA1}, v{vC16}, 4, v8")
    a(f"v_add_u32 v9, 8, v{vC16}")
    a(f"v_subrev_u32 v10, 12, v{vC16}")
    a(f"v_cmp_lt_u32 vcc, 11, v{vC16}")
    a("v_cndmask_b32 v9, v9, v10, vcc")
    a(f"v_cmp_eq_u32 vcc, 0, v{vC16}")
    a("v_mov_b32 v10, 20")
    a("v_cndmask_b32 v9, v9, v10, vcc")
    a(f"v_lshl_add_u32 v{vA2}, v9, 4, v8")
    a(f"s_lshl_b32 s{sT4}, s{sT0}, 2")
    a(f"s_add_u32 s{sT4}, s{sT4}, {L_CNT}")
    a(f"v_mov_b32 v20, s{sT4}")
    a(f"s_mul_i32 s{sT4}, s{sT0}, 3584")
    a(f"s_mul_i32 s{sT5}, s{sT1}, {KVH}")
    a(f"s_add_u32 s{sT4}, s{sT4}, s{sT5}")
    a(f"v_lshlrev_b32 v21, 2, v{vL}")
    a(f"s_add_u32 s{sT5}, s{sT4}, {L_KVS}")
    a(f"v_add_u32 v22, s{sT5}, v21")
    a(f"s_mul_i32 s{sT5}, s{sCG}, {4*KVH}")
    a(f"s_add_u32 s{sT4}, s{sT4}, s{sT5}")
    a(f"s_add_u32 s{sCH}, s{sT4}, {WS_KV}")
    a("v_mov_b32 v23, 0x3f803f80")
    a(f"s_lshl_b32 s{sLC}, s{sCG}, 8")
    a(f"s_add_u32 s{sLC}, s{sLC}, {WS_FK}")
    wo_prep(28)
    a_mainloop(False)
    a.c("KV epilogue")
    order = [(rt, tt) for tt in (4, 0, 2, 1, 3) for rt in range(4)]
    mf = a_mfmas(1, False, order)
    for m in mf[:8]: a(m)
    XP = 112
    TM = 12
    TM = 8
    a(f"v_cmp_gt_u32 vcc, 8, v{vC16}")
    def pairs(tt): return sum([[acc(rt, tt), acc(rt, tt) + 2] for rt in range(4)], [])
    def cvts(tt): return [f"v_cvt_pk_bf16_f32 v{acc(rt&2,tt)+2*(rt&1)+h}, v{acc(rt,tt)+2*h}, v{acc(rt,tt)+2*h+1}" for rt in range(4) for h in range(2)]
    L = []
    for rt in range(4):
        for h in range(2): L.append(f"v_cvt_pk_bf16_f32 v{XP+2*rt+h}, v{acc(rt,4)+2*h}, v{acc(rt,4)+2*h+1}")
    for j in range(8): L.append(f"v_cndmask_b32 v{XP+j}, v{XP+j}, v23, vcc")
    L += phi_list(pairs(4)[:4], TM, False)
    for i, m in enumerate(mf[8:]):
        a(m)
        for x in L[2 * i:2 * i + 2]: a(x)
    L = L[24:]
    stamp(2)
    pk = "nopk" not in EXP
    L += phi_list(pairs(4)[4:], TM, pk) + cvts(4) + phi_list(pairs(0), TM, pk) + cvts(0) + cvts(2) + cvts(3)
    if "aspr" in EXP: assert not sprinkle(L, wo_list(28), len(L) // 25)
    else:
        for x in L: a(x)
    def fr(t, p): return XP + 4 * p if t == 5 else acc(2 * p, t)
    prods = [(0, 2), (0, 5), (4, 2), (4, 5), (1, 3), (1, 5), (4, 3)]
    PD = 120
    def pm(lst):
        for p in range(2):
            for i in lst:
                ta, tb = prods[i]
                d = vr(PD + 4 * i, 4)
                a(f"v_mfma_f32_16x16x32_bf16 {d}, {vr(fr(ta,p),4)}, {vr(fr(tb,p),4)}, {'0' if p==0 else d}")
    def wr(i, va, off, mlo, mhi):
        t = ""
        if mlo != -1: t += f"s_mov_b32 exec_lo, {mlo}\ns_mov_b32 exec_hi, {mhi}\n"
        t += f"ds_write_b128 v{va}, {vr(PD+4*i,4)} offset:{off}"
        if mlo != -1: t += "\ns_mov_b64 exec, -1"
        return t
    pm([0, 1, 2, 3, 6])
    W1 = [wr(0, vA1, 0, -1, -1), wr(1, vA2, 0, 0x0f010f01, 0x0f010f01), wr(2, vA1, 4 * 336, 0xffff, 0),
          wr(3, vA2, 4 * 336, 0x0f01, 0), wr(3, vA2, KVH - 336, 0xf0010000, 0), wr(6, vA1, KVH + 64 - 336, 0xffff0000, 0)]
    rest = sprinkle(phi_list(pairs(1)[:4], TM, False) + phi_list(pairs(1)[4:], TM, pk) + cvts(1), W1, 8, 6)
    assert not rest
    pm([4, 5])
    a(wr(4, vA1, KVH + 336 + 64, -1, -1))
    a(wr(5, vA2, KVH + 336, 0xf001f001, 0xf001f001))
    if "econv" in EXP:
        lds_arrive(20, 24)
        lds_wait(20, 24, 2 + 4 * 256)
    else:
        a("s_waitcnt lgkmcnt(0)")
        a("s_barrier")
    for i in range(7):
        a(f"ds_read_b32 v{32+i}, v22 offset:{256*i}")
        a(f"ds_read_b32 v{40+i}, v22 offset:{256*i+7168}")
    stamp(3)
    for i in range(7):
        a(f"s_waitcnt lgkmcnt({12-2*i})")
        a(f"v_add_f32 v{32+i}, v{32+i}, v{40+i}")
        a(f"buffer_atomic_add_f32 v{32+i}, v21, {srd(SWS)}, s{sCH} offen offset:{256*i}")
    arr_prep(48, 49)
    s3_setup()
    a("s_waitcnt vmcnt(0)")
    arr_issue(48, 49, f"s{sLC}")
    arr_finish(48, 49, f"s{sLC}", 64, 0)
    a("s_setprio 0")
    stamp(4)
    a("s_branch Ls3x" if "aspr" in EXP else "s_branch Ls3")

def qa():
    a.label("Lqa")
    common_scalars()
    a(f"s_cmp_ge_u32 s{sW}, {NQ}")
    a("s_cbranch_scc1 Lq1")
    a(f"s_mov_b32 s{sTB}, s{sCI}")
    a(f"s_add_u32 s{sCHB}, s{sW}, {10-NQ}")
    s0_loads()
    a.label("Lq1")
    if "qpf" in EXP:
        a(f"v_min_u32 v1, 34, v{vL}")
        a("v_mul_u32_u24 v1, 1280, v1")
        a(f"s_mul_i32 s{sT0}, s{sCI}, 40960")
        a(f"s_lshl_b32 s{sT1}, s{sW}, 7")
        a(f"s_add_u32 s{sT0}, s{sT0}, s{sT1}")
        a(f"s_add_u32 s{sT0}, s{sT0}, 768")
        a(f"v_add_u32 v2, s{sT0}, v1")
        a("v_subrev_u32 v1, 3840, v2")
        srd_init([SK, SV])
        a("s_waitcnt lgkmcnt(0)")
        a(f"buffer_load_dword v250, v1, {srd(SK)}, 0 offen")
        a("s_mov_b32 exec_hi, 0")
        a(f"buffer_load_dword v251, v2, {srd(SV)}, 0 offen")
        a("s_mov_b32 exec_hi, -1")
    srd_init([SWS, SDBG, SX, SOUT])
    acc_zero()
    a(f"s_bfe_u32 s{sT0}, s{sIDX}, 0x20002")
    a(f"s_mul_i32 s{sCG}, s{sCP}, {Q0}")
    a(f"s_add_u32 s{sCG}, s{sCG}, s{sT0}")
    a_setup()
    a(f"v_lshrrev_b32 v8, 1, v{vG4}")
    a(f"v_and_b32 v9, 1, v{vG4}")
    a(f"v_lshlrev_b32 v20, 4, v{vC16}")
    a("v_lshl_add_u32 v20, v9, 9, v20")
    a("v_lshl_add_u32 v21, v8, 3, v20")
    a("v_add_u32 v21, 4096, v21")
    a("v_lshl_add_u32 v20, v8, 10, v20")
    a(f"s_lshl_b32 s{sT4}, s{sRB}, 1")
    a(f"s_add_u32 s{sT4}, s{sT4}, s{sT1}")
    a(f"s_lshl_b32 s{sT5}, s{sCG}, 1")
    a(f"s_add_u32 s{sT5}, s{sT5}, s{sT0}")
    a(f"s_mul_i32 s{sT0}, s{sT4}, {80*1024}")
    a(f"s_mul_i32 s{sT1}, s{sT5}, {5*1024}")
    a(f"s_add_u32 s{sT0}, s{sT0}, s{sT1}")
    a(f"s_add_u32 s{sCH}, s{sT0}, {WS_PQ}")
    a(f"s_add_u32 s{sVAR}, s{sCH}, {40*1024}")
    a(f"s_lshl_b32 s{sT4}, s{sT4}, 3")
    a(f"s_add_u32 s{sT4}, s{sT4}, s{sT5}")
    a(f"s_lshl_b32 s{sT4}, s{sT4}, 8")
    a(f"s_add_u32 s{sLC}, s{sT4}, {WS_FQ}")
    wo_prep(28)
    a("v_mov_b32 v24, 0")
    a(f"s_cmp_ge_u32 s{sW}, {NQ}")
    a("s_cbranch_scc1 Lq2")
    a(f"s_mul_i32 s{sT2}, s{sW}, 4608")
    a(f"s_add_u32 s{sT2}, s{sT2}, {2*SLOT}")
    s0_addr(sT2)
    a("s_waitcnt vmcnt(0)")
    stamp(11)
    s0_compute()
    stamp(12)
    a.label("Lq2")
    a_mainloop(True)
    a.c("Q epilogue")
    order = [(rt, tt) for rt in range(4) for tt in range(5)]
    mf = a_mfmas(1, True, order)
    for m in mf[:9]: a(m)
    L = []
    for rt in range(4):
        regs = []
        for tt in range(5): regs += [acc(rt, tt), acc(rt, tt) + 2]
        L += phi_list(regs, 112, rt > 0 and "nopk" not in EXP)
        O = acc(rt, 0)
        for tt in range(5):
            for h in range(2): L.append(f"v_cvt_pk_bf16_f32 v{O+2*tt+h}, v{acc(rt,tt)+2*h}, v{acc(rt,tt)+2*h+1}")
        so = f"s{sVAR if rt>>1 else sCH}"
        for p in range(2):
            L.append(f"buffer_store_dwordx4 {vr(O+4*p,4)}, v20, {srd(SWS)}, {so} offen offset:{256*(rt&1)+2048*p} sc1")
        L.append(f"buffer_store_dwordx2 {vr(O+8,2)}, v21, {srd(SWS)}, {so} offen offset:{256*(rt&1)} sc1")
    for i, m in enumerate(mf[9:]):
        a(m)
        for x in L[2 * i:2 * i + 2]: a(x)
    L = L[22:]
    stamp(2)
    if "aspr" in EXP: assert not sprinkle(L, wo_list(28), 8)
    else:
        for x in L: a(x)
    stamp(3)
    a("s_barrier")
    a("s_waitcnt vmcnt(0)")
    flag_store(120, 121, f"s{sLC}")
    s3_setup()
    a("s_setprio 0")
    stamp(4)
    a("s_branch Ls3x" if "aspr" in EXP else "s_branch Ls3")

def h_dma(sj, sch0):
    a(f"s_lshr_b32 s{sT4}, s{sj}, 1")
    a(f"s_and_b32 s{sT5}, s{sj}, 1")
    a(f"s_lshl_b32 s{sT5}, s{sT5}, 11")
    a(f"s_add_u32 s{sT6}, s{sch0}, s{sT4}")
    a(f"s_lshl_b32 s{sT6}, s{sT6}, 12")
    a(f"s_add_u32 s{sT6}, s{sT6}, s{sT5}")
    a(f"s_mul_i32 s{sT4}, s{sT4}, {HSTR}")
    a(f"s_add_u32 s{sT4}, s{sT4}, s{sT5}")
    a(f"s_add_u32 m0, s{sT4}, {L_HB+128}")
    a(f"buffer_load_dwordx4 v{vL16}, {srd(SH)}, s{sT6} offen lds")
    a(f"buffer_load_dwordx4 v{vL16}, {srd(SH)}, s{sT6} offen offset:1024 lds")

CACC = 32
CPOOL = 96
NPOOL = 12
CD = 144
vUe, vUo, vH, vCW, vCT, vCS, vCY, vCN = range(148, 156)

def conv_setup(j, chl0, split=None):
    a.c("conv setup")
    a(f"s_lshr_b32 s{sLC}, s{j}, 1")
    a(f"s_and_b32 s{sVAR}, s{j}, 1")
    a(f"s_add_u32 s{sCHL}, s{chl0}, s{sLC}")
    a(f"s_lshl_b32 s{sCH}, s{sQUAD}, 2")
    a(f"s_add_u32 s{sCH}, s{sCH}, s{sCHL}")
    a(f"s_lshl_b32 s{sT4}, s{sCH}, 1")
    a(f"s_and_b32 s{sT4}, s{sT4}, -4")
    a(f"s_load_dword s{sDV}, {sr(SD,2)}, s{sT4}")
    a(f"v_and_b32 v96, 31, v{vL}")
    a(f"v_lshrrev_b32 v97, 5, v{vL}")
    a("v_lshl_add_u32 v98, v97, 2, v96")
    a("v_lshrrev_b32 v99, 2, v98")
    a("v_add_u32 v99, 3, v99")
    a("v_and_b32 v99, 3, v99")
    a(f"v_xor_b32 v99, s{sCHL}, v99")
    a("v_lshlrev_b32 v99, 4, v99")
    a("v_lshl_add_u32 v99, v98, 6, v99")
    a(f"v_add_u32 v{vUe}, {L_UD-28*64}, v99")
    a(f"v_xor_b32 v{vUo}, 32, v{vUe}")
    a(f"v_bfe_u32 v98, v{vL}, 4, 1")
    a(f"v_and_b32 v99, 3, v{vL}")
    a("v_lshl_add_u32 v98, v98, 2, v99")
    a(f"v_bfe_u32 v96, v{vL}, 2, 2")
    a("v_sub_u32 v98, v98, v96")
    a("v_lshlrev_b32 v97, 3, v97")
    a("v_sub_u32 v98, v98, v97")
    a("v_lshlrev_b32 v98, 3, v98")
    a(f"s_mul_i32 s{sT4}, s{sLC}, {HSTR}")
    a(f"s_add_u32 s{sT4}, s{sT4}, {L_HB+128+32}")
    a(f"v_add_u32 v{vH}, s{sT4}, v98")
    a(f"s_lshl_b32 s{sT4}, s{sW}, 11")
    a(f"s_add_u32 s{sT4}, s{sT4}, {L_YST}")
    a(f"v_lshlrev_b32 v{vCW}, 4, v{vL}")
    a(f"v_add_u32 v{vCW}, s{sT4}, v{vCW}")
    if split: split(0)
    a(f"v_lshrrev_b32 v97, 4, v{vL}")
    a("v_lshrrev_b32 v98, 1, v99")
    a("v_lshl_add_u32 v98, v97, 1, v98")
    a("v_lshl_add_u32 v98, v98, 3, v96")
    a("v_lshlrev_b32 v98, 4, v98")
    a("v_and_b32 v99, 1, v99")
    a("v_lshl_add_u32 v98, v99, 3, v98")
    a(f"v_add_u32 v{vCT}, s{sT4}, v98")
    a(f"v_and_b32 v98, 7, v{vL}")
    a(f"v_lshrrev_b32 v99, 5, v{vL}")
    a("v_lshl_add_u32 v98, v98, 1, v99")
    a(f"v_mul_u32_u24 v98, 40960, v98")
    a(f"v_bfe_u32 v99, v{vL}, 3, 2")
    a(f"v_lshl_add_u32 v{vCY}, v99, 4, v98")
    a(f"s_lshl_b32 s{sT4}, s{j}, 4")
    a(f"s_add_u32 s{sT4}, s{sT4}, {L_SP}")
    a(f"v_mov_b32 v{vCS}, s{sT4}")
    a(f"s_lshl_b32 s{sT4}, s{sLC}, 2")
    a(f"s_add_u32 s{sT4}, s{sT4}, {L_CNT+16}")
    a(f"v_mov_b32 v{vCN}, s{sT4}")

def conv_dfrag():
    a("s_waitcnt lgkmcnt(0)")
    a(f"s_and_b32 s{sT4}, s{sCH}, 1")
    a(f"s_lshl_b32 s{sT4}, s{sT4}, 4")
    a(f"s_lshr_b32 s{sDV}, s{sDV}, s{sT4}")
    a(f"s_and_b32 s{sDV}, s{sDV}, 0xffff")
    a(f"v_lshlrev_b32 v98, 2, v{vL}")
    a("v_and_b32 v98, 16, v98")
    a(f"v_lshlrev_b32 v98, v98, s{sDV}")
    a(f"v_and_b32 v99, 59, v{vL}")
    for r in range(4):
        a(f"v_cmp_eq_u32 vcc, {32+8*r}, v99")
        a(f"v_cndmask_b32 v{CD+r}, 0, v98, vcc")

def zero_pads(j):
    a("v_mov_b32 v100, 0")
    a("v_mov_b32 v101, 0")
    a(f"v_lshlrev_b32 v102, 3, v{vL}")
    a(f"s_and_b32 s{sT6}, s{j}, 3")
    a(f"s_lshl_b32 s{sT4}, s{sT6}, 9")
    a(f"s_add_u32 s{sT4}, s{sT4}, {L_UB}")
    a(f"v_add_u32 v103, s{sT4}, v102")
    a("ds_write_b64 v103, v[100:101]")
    a(f"s_mul_i32 s{sT4}, s{sT6}, {HSTR}")
    a(f"s_add_u32 s{sT4}, s{sT4}, {L_HB}")
    a(f"v_add_u32 v103, s{sT4}, v102")
    a("s_mov_b64 exec, 0xffff")
    a("ds_write_b64 v103, v[100:101]")
    a(f"v_add_u32 v103, {L_CNT}, v102")
    a("s_mov_b64 exec, 0xff")
    a("ds_write_b64 v103, v[100:101]")
    a("s_mov_b64 exec, -1")

def u_dma(j, nper):
    a(f"s_mul_i32 s{sT4}, s{j}, {1024*nper}")
    a(f"s_lshl_b32 s{sT5}, s{sQUAD}, 14")
    a(f"s_add_u32 s{sT5}, s{sT5}, s{sT4}")
    a(f"s_add_u32 m0, s{sT4}, {L_UD}")
    for i in range(nper): a(f"buffer_load_dwordx4 v{vL16}, {srd(SWS)}, s{sT5} offen offset:{1024*i} sc1 lds")

def bwave():
    a.c("B wave")
    sXB, sWB, sM, sMW, sROT, sSTEP, sQ2, sQ3 = sCG, sUD, sTB, sRB, sCI, sLOG, sLOG + 1, sEPS
    VX, VW = 32, 36
    a(f"s_sub_u32 s{sJ}, s{sW}, 4")
    a(f"v_lshrrev_b32 v1, 3, v{vL}")
    a(f"v_mul_u32_u24 v1, 1280, v1")
    a(f"v_lshrrev_b32 v2, 4, v{vL}")
    a(f"v_and_b32 v3, 7, v{vL}")
    a("v_xor_b32 v2, v2, v3")
    a(f"v_lshl_add_u32 v{VX}, v2, 4, v1")
    a(f"v_xor_b32 v{VX+1}, 64, v{VX}")
    a(f"v_add_u32 v{VX+1}, {10240-1024}, v{VX+1}")
    a(f"v_add_u32 v{VX+2}, {20480-2048}, v{VX}")
    a(f"v_add_u32 v{VX+3}, {20480-2048}, v{VX+1}")
    a(f"s_lshl_b32 s{sXB}, s{sRB}, 2")
    a(f"s_add_u32 s{sXB}, s{sXB}, s{sJ}")
    a(f"s_mul_i32 s{sXB}, s{sXB}, 40960")
    a(f"s_lshr_b32 s{sT0}, s{sIDX}, 2")
    a(f"s_add_u32 s{sROT}, s{sT0}, s{sIDX}")
    a(f"s_and_b32 s{sROT}, s{sROT}, 3")
    a(f"s_add_u32 s{sM}, s{sRP}, s{sCP}")
    a(f"s_and_b32 s{sM}, s{sM}, 1")
    a(f"s_lshl_b32 s{sM}, s{sM}, 2")
    a(f"s_or_b32 s{sROT}, s{sROT}, s{sM}")
    def chunk_of(sd, srot, step):
        if "nostag" in EXP:
            a(f"s_and_b32 s{sd}, s{srot}, {7 if step < 8 else 1}")
            a(f"s_xor_b32 s{sd}, s{sd}, {step}")
            return
        m0_, x0 = (3, step) if step < 8 else (1, step)
        m1_, x1 = (1, 8 + step) if step < 2 else (7, step - 2)
        a(f"s_bitcmp1_b32 s{srot}, 2")
        a(f"s_cselect_b32 s{sd}, {m1_}, {m0_}")
        a(f"s_cselect_b32 s{sQ2}, {x1}, {x0}")
        a(f"s_and_b32 s{sd}, s{sd}, s{srot}")
        a(f"s_xor_b32 s{sd}, s{sd}, s{sQ2}")
    chunk_of(sSTEP, sROT, 0)
    a(f"s_lshl_b32 s{sM}, s{sJ}, 12")
    srd_init([SX, SWQ])
    def chunk_x(sc):
        a(f"s_mov_b32 m0, s{sM}")
        a(f"s_lshl_b32 s{sQ2}, s{sc}, 7")
        a(f"s_add_u32 s{sQ2}, s{sQ2}, s{sXB}")
        for i in range(4):
            a(f"buffer_load_dwordx4 v{VX+i}, {srd(SX)}, s{sQ2} offen offset:{1024*i} lds")
    def chunk_w(sc):
        a(f"s_add_u32 m0, s{sM}, 16384")
        a(f"s_mul_i32 s{sQ3}, s{sc}, {64*3840}")
        a(f"s_add_u32 s{sQ3}, s{sQ3}, s{sWB}")
        for hf in range(1):
            if hf:
                a(f"s_add_u32 m0, s{sM}, {16384+4096}")
                a(f"s_add_u32 s{sQ3}, s{sQ3}, {16*3840}")
            for i in (0, 1, 4, 2, 3):
                if i == 2: a(f"s_add_u32 m0, s{sM}, {16384+4096*hf}")
                if i == 4: a(f"s_add_u32 m0, s{sMW}, {1024*hf}")
                a(f"buffer_load_dwordx4 v{VW+i}, {srd(SWQ)}, s{sQ3} offen offset:{1024*(i&3)} lds")
    a(f"s_lshl_b32 s{sT1}, s{sCP}, 2")
    a(f"s_add_u32 s{sT1}, s{sT1}, s{sT0}")
    a(f"s_add_u32 s{sT1}, s{sT1}, 8")
    a(f"s_lshl_b32 s{sT0}, s{sT0}, 1")
    a(f"s_mul_i32 s{sT4}, s{sCP}, {2*Q0}")
    a(f"s_add_u32 s{sT0}, s{sT0}, s{sT4}")
    a(f"s_sub_u32 s{sT0}, s{sT0}, 8")
    a(f"s_cmp_ge_u32 s{sIDX}, 16")
    a(f"s_cselect_b32 s{sWB}, s{sT0}, s{sT1}")
    a(f"s_cselect_b32 s{sT4}, 10, 5")
    a(f"s_cselect_b32 s{sT5}, 4, 0x50")
    a(f"s_cselect_b32 s{sT6}, 1, 3")
    a(f"s_cselect_b32 s{sT7}, 2, 1")
    a(f"s_cselect_b32 s{sT0}, 1, 0x50")
    a(f"s_cselect_b32 s{sT1}, 8, 2")
    a(f"s_mulk_i32 s{sWB}, 160")
    a(f"s_mul_i32 s{sT2}, s{sJ}, {16*3840}")
    a(f"s_add_u32 s{sWB}, s{sWB}, s{sT2}")
    a(f"s_lshl_b32 s{sMW}, s{sJ}, 10")
    a(f"s_add_u32 s{sMW}, s{sMW}, 32768")
    a(f"v_lshrrev_b32 v14, 4, v{vL}")
    a(f"v_lshrrev_b32 v15, 1, v{vL}")
    a("v_xor_b32 v15, v15, v14")
    a(f"v_and_b32 v16, 1, v{vL}")
    a("v_mul_u32_u24 v14, 240, v14")
    a(f"v_mad_u32_u24 v14, v16, s{sT7}, v14")
    a("v_and_b32 v17, 1, v15")
    a(f"v_mad_u32_u24 v14, v17, s{sT6}, v14")
    a("v_bfe_u32 v17, v15, 1, 1")
    a(f"v_mad_u32_u24 v14, v17, s{sT5}, v14")
    a("v_bfe_u32 v17, v15, 2, 1")
    a(f"v_mad_u32_u24 v18, v17, s{sT4}, v14")
    a(f"v_lshlrev_b32 v{VW}, 4, v18")
    a(f"v_add_u32 v{VW+1}, {15360-1024}, v{VW}")
    a("v_xor_b32 v17, 1, v17")
    a(f"v_mad_u32_u24 v18, v17, s{sT4}, v14")
    a(f"v_lshlrev_b32 v18, 4, v18")
    a(f"v_add_u32 v{VW+2}, {30720-2048}, v18")
    a(f"v_add_u32 v{VW+3}, {46080-3072}, v18")
    a(f"v_lshrrev_b32 v14, 2, v{vL}")
    a("v_mul_u32_u24 v14, 240, v14")
    a(f"v_mad_u32_u24 v14, v16, s{sT0}, v14")
    a(f"v_lshrrev_b32 v17, 4, v{vL}")
    a(f"v_xor_b32 v17, v17, v{vL}")
    a("v_bfe_u32 v17, v17, 1, 1")
    a(f"v_mad_u32_u24 v14, v17, s{sT4}, v14")
    a(f"v_add_lshl_u32 v{VW+4}, v14, s{sT1}, 4")
    a("s_waitcnt lgkmcnt(0)")
    stamp(11)
    chunk_x(sSTEP)
    chunk_w(sSTEP)
    ka_rest()
    stamp(12)
    def issue(step):
        d = SLOT if step % 3 else (-2 * SLOT & 0xffffffff)
        a(f"s_add_u32 s{sM}, s{sM}, {d}")
        a(f"s_add_u32 s{sMW}, s{sMW}, {d}")
        chunk_of(sSTEP, sROT, step)
        if "nodma" in EXP and step >= 2: return
        chunk_x(sSTEP); chunk_w(sSTEP)
    bn = [1]
    def bar(n, nxt=None):
        a(f"s_waitcnt vmcnt({n}) lgkmcnt(0)")
        if "bst" in EXP and "pre" in EXP: stamp(bn[0], True)
        a("s_barrier")
        if "bst" in EXP and "pre" not in EXP: stamp(bn[0], True)
        bn[0] += 1
        if nxt is not None: issue(nxt)
    def g_setup():
        srd_init([SX, SH, SWS, SDBG, SOUT])
        a(f"s_mul_i32 s{sT7}, s{sRP}, 48")
        a(f"s_mul_i32 s{sT1}, s{sCP}, {G0}")
        a(f"s_add_u32 s{sT7}, s{sT7}, s{sT1}")
        a(f"s_add_u32 s{sT7}, s{sT7}, s{sIDX}")
        a(f"s_lshr_b32 s{sQUAD}, s{sT7}, 1")
        a(f"s_add_u32 s{sQUAD}, s{sQUAD}, 64")
        a(f"s_and_b32 s{sT1}, s{sIDX}, 1")
        a(f"s_lshl_b32 s{sT1}, s{sT1}, 1")
        a("s_waitcnt lgkmcnt(0)")
        conv_setup(sJ, sT1)
        s3_setup()
        wo_prep(vL16)
    sGS, sGO = 1, 0
    a("s_waitcnt lgkmcnt(0)")
    a(f"s_bfe_u32 s{sT0}, s{sIDX}, 0x20002")
    a(f"s_mul_i32 s{sT1}, s{sCP}, {Q0}")
    a(f"s_add_u32 s{sT0}, s{sT0}, s{sT1}")
    a(f"s_lshl_b32 s{sT0}, s{sT0}, 2")
    a(f"s_add_u32 s{sT0}, s{sT0}, s{sJ}")
    a(f"s_and_b32 s{sT2}, s{sIDX}, 3")
    a(f"s_lshl_b32 s{sT3}, s{sRP}, 2")
    a(f"s_add_u32 s{sT2}, s{sT2}, s{sT3}")
    a(f"s_lshl_b32 s{sGO}, s{sT2}, 4")
    a(f"s_add_u32 s{sGO}, s{sGO}, s{sT0}")
    a(f"s_cmp_ge_u32 s{sIDX}, 16")
    a(f"s_cselect_b32 s{sGS}, 1, 0")
    a(f"s_lshl_b32 s{sT0}, s{sT0}, 10")
    a(f"v_lshlrev_b32 v41, 4, v{vL}")
    srd_init([SGW])
    a(f"s_mov_b32 m0, {L_GW}")
    a(f"v_add_u32 v42, s{sT0}, v41")
    a(f"v_add_u32 v55, {2*SLOT}, v42")
    a(f"s_cmp_ge_u32 s{sIDX}, 16")
    a("s_cbranch_scc0 Lbng")
    a(f"buffer_load_dwordx4 v41, {srd(SGW)}, 0 offen lds")
    a(f"buffer_load_dwordx4 v41, {srd(SGW)}, 0 offen offset:1024 lds")
    a.label("Lbng")
    a(f"s_and_b32 s{sT1}, s{sJ}, 1")
    a(f"s_lshl_b32 s{sT1}, s{sT1}, 2")
    a(f"v_xor_b32 v43, s{sT1}, v2")
    a("v_lshlrev_b32 v43, 4, v43")
    a(f"v_add_u32 v43, {L_GW}, v43")
    a("v_mov_b32 v52, 0")
    a("v_mov_b32 v53, 0")
    g_setup()
    a("v_mov_b32 v44, 128")
    a("v_mov_b32 v45, 132")
    zero_pads(sJ)
    conv_dfrag()
    def gate(step):
        D = a.newlabel("Lg")
        a(f"s_cmp_eq_u32 s{sGS}, 0")
        a(f"s_cbranch_scc1 {D}")
        chunk_of(sT0, sROT, step)
        a(f"s_lshl_b32 s{sT0}, s{sT0}, 7")
        a(f"v_add_u32 v54, s{sT0}, v43")
        if step % 3 == 2: a("ds_read_b128 v[56:59], v55")
        else: a(f"ds_read_b128 v[56:59], v42 offset:{SLOT*(step%3)}")
        a("ds_read_b128 v[60:63], v54")
        a("s_waitcnt lgkmcnt(0)")
        for i in range(4): a(f"v_dot2c_f32_bf16 v{52+(i&1)}, v{56+i}, v{60+i}")
        a.label(D)
    issue(1)
    for c in range(0, 8):
        bar(9)
        if c == 0: stamp(1)
        issue(c + 2)
        gate(c)
    a(f"s_mov_b32 s{sEPS}, 0x358637bd")
    a(f"s_sub_u32 s{sT1}, s{sCH}, s{sLC}")
    bar(9)
    a(f"buffer_load_dwordx2 v[46:47], v44, {srd(SDBG)}, 0 offen sc1")
    h_dma(sJ, sT1)
    gate(8)
    a("s_waitcnt vmcnt(3)")
    a("s_barrier")
    a("s_setprio 3")
    gate(9)
    a(f"s_cmp_eq_u32 s{sGS}, 0")
    a("s_cbranch_scc1 Lbg")
    a("v_add_f32 v52, v52, v53")
    for ctl in ("quad_perm:[1,0,3,2]", "quad_perm:[2,3,0,1]", "row_half_mirror"):
        a(f"v_add_f32_dpp v52, v52, v52 {ctl} row_mask:0xf bank_mask:0xf")
    a(f"v_mul_f32 v52, 0xbfb8aa3b, v52")
    a(f"v_exp_f32 v52, v52")
    a(f"v_lshrrev_b32 v53, 1, v{vL}")
    a(f"v_add_f32 v52, 1.0, v52")
    a(f"v_rcp_f32 v52, v52")
    a(f"s_lshl_b32 s{sT0}, s{sGO}, 5")
    a(f"s_add_u32 s{sT0}, s{sT0}, {WS_G}")
    a("s_mov_b32 exec_lo, 0x01010101")
    a("s_mov_b32 exec_hi, 0x01010101")
    a(f"buffer_store_dword v52, v53, {srd(SWS)}, s{sT0} offen sc1")
    a("s_mov_b64 exec, -1")
    a.label("Lbg")
    a("s_setprio 0")
    a("s_waitcnt vmcnt(2)")
    poll(45, 47, "landed", S=SDBG)
    stamp(2)
    a(f"v_mov_b32 v48, {L_CNT+8}")
    a(f"v_readfirstlane_b32 s{sUD}, v46")
    wl = wo_list(vL16)
    a(f"s_cmp_eq_u32 s{sUD}, 0")
    a("s_cbranch_scc1 Lbl1")
    u_dma(sJ, 4)
    for x in wl[:8]: a(x)
    a("s_branch Lbl1b")
    a.label("Lbl1")
    cnt_load(SDBG, 44, 46)
    for x in wl[:8]: a(x)
    a("s_waitcnt vmcnt(8)")
    a(f"v_readfirstlane_b32 s{sUD}, v46")
    a(f"s_cmp_eq_u32 s{sUD}, 0")
    a("s_cbranch_scc1 Lbl1b")
    u_dma(sJ, 4)
    a.label("Lbl1b")
    for x in wl[8:16]: a(x)
    a(f"s_cmp_lg_u32 s{sUD}, 0")
    a("s_cbranch_scc1 Lbl2")
    cnt_load(SDBG, 44, 46)
    a.label("Lbl2")
    for x in wl[16:]: a(x)
    x_loads()
    a("s_waitcnt vmcnt(11)")
    a(f"s_cmp_lg_u32 s{sUD}, 0")
    a("s_cbranch_scc1 Lbl3")
    a(f"v_readfirstlane_b32 s{sT0}, v46")
    a(f"s_cmp_eq_u32 s{sT0}, 0")
    a("s_cbranch_scc1 Lbl4")
    u_dma(sJ, 4)
    a("s_barrier")
    a("s_branch Lbl5")
    a.label("Lbl4")
    a("s_barrier")
    poll(44, 46, S=SDBG)
    u_dma(sJ, 4)
    a.label("Lbl5")
    a("s_waitcnt vmcnt(0)")
    lds_arrive(48, 49)
    a("s_branch Lbl6")
    a.label("Lbl3")
    lds_arrive(48, 49)
    a("s_barrier")
    a.label("Lbl6")
    lds_wait(48, 49, 4)
    stamp(3)
    a("s_branch Lconv")

def ctype():
    a.label("Lctype")
    ka_rest()
    common_scalars()
    a(f"s_mov_b32 s{sQUAD}, s{sCI}")
    a(f"s_cmp_ge_u32 s{sW}, 6")
    a("s_cbranch_scc1 Lcaux")
    a(f"s_mov_b32 s{sTB}, s{sCI}")
    a(f"s_mov_b32 s{sCHB}, s{sW}")
    s0_loads()
    srd_init([SWS])
    a(f"s_cmp_ge_u32 s{sW}, {4-NQ}")
    a("s_cbranch_scc1 Lc1")
    a(f"s_add_u32 s{sCHB}, s{sW}, 6")
    s0_loads(28, False)
    a(f"s_mov_b32 s{sCHB}, s{sW}")
    a.label("Lc1")
    a.label("Lcs0")
    a(f"s_mul_i32 s{sT2}, s{sW}, 4608")
    a(f"s_add_u32 s{sT2}, s{sT2}, {L_S0C}")
    s0_addr(sT2)
    a(f"s_cmp_lt_u32 s{sW}, {4-NQ}")
    a("s_cbranch_scc1 Lc2")
    a("s_waitcnt vmcnt(0)")
    a.label("Lc2")
    if "cst" in EXP: stamp(5)
    a("s_waitcnt vmcnt(15)")
    if "cst" in EXP: stamp(6)
    s0_compute()
    stamp(1)
    a(f"s_cmp_ge_u32 s{sW}, {4-NQ}")
    a("s_cbranch_scc1 Lcjoin")
    a(f"s_add_u32 s{sCHB}, s{sW}, 6")
    s0_addr(sT2)
    a("s_waitcnt vmcnt(4)")
    if "cst" in EXP: stamp(7)
    s0_compute(LB=28)
    if "cst" in EXP: stamp(8)
    a("s_branch Lcjoin")

    a.label("Lcaux")
    a("s_setprio 3")
    srd_init([SWO, SWS, SDBG])
    a(f"s_sub_u32 s{sUD}, s{sW}, 6")
    a(f"s_lshl_b32 s{sVAR}, s{sCI}, 1")
    a(f"s_add_u32 s{sVAR}, s{sVAR}, s{sUD}")
    for i in range(4): a(f"v_mov_b32 v{52+i}, 0")
    a(f"v_lshlrev_b32 v15, 3, v{vL}")
    a(f"s_lshl_b32 s{sT0}, s{sVAR}, 9")
    a(f"s_add_u32 s{sT0}, s{sT0}, {WS_KV}")
    a("s_waitcnt lgkmcnt(0)")
    a(f"buffer_store_dwordx2 v[52:53], v15, {srd(SWS)}, s{sT0} offen sc1")
    a(f"s_mul_i32 s{sT0}, s{sVAR}, 768")
    a(f"s_add_u32 s{sT0}, s{sT0}, {WS_C}")
    a(f"v_lshlrev_b32 v16, 8, v{vL}")
    a("s_mov_b64 exec, 7")
    a(f"buffer_store_dword v52, v16, {srd(SWS)}, s{sT0} offen sc1")
    a("s_mov_b64 exec, -1")
    a.label("Lcrp")
    sKQ, sF, sCGR = sCHL, sCH, sJ
    a(f"s_lshr_b32 s{sT0}, s{sVAR}, 2")
    a(f"s_and_b32 s{sCGR}, s{sVAR}, 3")
    a(f"s_mul_i32 s{sKQ}, s{sT0}, 52")
    a(f"s_lshr_b32 s{sKQ}, s{sKQ}, 8")
    a(f"s_mul_i32 s{sT1}, s{sKQ}, 5")
    a(f"s_sub_u32 s{sF}, s{sT0}, s{sT1}")
    a(f"s_mul_i32 s{sT0}, s{sF}, 20")
    a(f"s_cmp_eq_u32 s{sF}, 4")
    a(f"s_cselect_b32 s{sT0}, 16, s{sT0}")
    a(f"s_cselect_b32 s{sT2}, 16, 0")
    a(f"s_mul_i32 s{sT1}, s{sKQ}, 80")
    a(f"s_add_u32 s{sT0}, s{sT0}, s{sT1}")
    a(f"s_mul_i32 s{sT0}, s{sT0}, 1280")
    a(f"s_mul_i32 s{sT1}, s{sCGR}, 320")
    a(f"s_add_u32 s{sT0}, s{sT0}, s{sT1}")
    a(f"s_lshr_b32 s{sT3}, s{sVAR}, 7")
    a(f"s_lshl_b32 s{sT3}, s{sT3}, 1")
    a(f"s_add_u32 s{sT3}, s{sT3}, s{sUD}")
    a(f"s_mul_i32 s{sT3}, s{sT3}, 5120")
    a(f"s_add_u32 s{sT3}, s{sT3}, {L_RPC}")
    a("s_waitcnt lgkmcnt(0)")
    for i in range(5):
        a(f"v_add_u32 v14, {64*i}, v{vL}")
        div20(15, 16, 14)
        a("v_lshrrev_b32 v17, 2, v15")
        a(f"v_mad_u32_u24 v15, v17, s{sT2}, v15")
        a("v_mul_u32_u24 v15, 1280, v15")
        a("v_lshl_add_u32 v15, v16, 4, v15")
        a(f"s_add_u32 m0, s{sT3}, {1024*i}")
        a(f"buffer_load_dwordx4 v15, {srd(SWO)}, s{sT0} offen lds")
    a(f"s_add_u32 s{sVAR}, s{sVAR}, 128")
    a(f"s_cmp_lt_u32 s{sVAR}, 160")
    a("s_cbranch_scc1 Lcrp")
    a(f"s_and_b32 s{sVAR}, s{sVAR}, 127")
    a("s_waitcnt vmcnt(0)")
    a.label("Lcrp2")
    sKQ, sF, sCGR = sCHL, sCH, sJ
    a(f"s_lshr_b32 s{sT0}, s{sVAR}, 2")
    a(f"s_and_b32 s{sCGR}, s{sVAR}, 3")
    a(f"s_mul_i32 s{sKQ}, s{sT0}, 52")
    a(f"s_lshr_b32 s{sKQ}, s{sKQ}, 8")
    a(f"s_mul_i32 s{sT1}, s{sKQ}, 5")
    a(f"s_sub_u32 s{sF}, s{sT0}, s{sT1}")
    a(f"s_lshr_b32 s{sT3}, s{sVAR}, 7")
    a(f"s_lshl_b32 s{sT3}, s{sT3}, 1")
    a(f"s_add_u32 s{sT3}, s{sT3}, s{sUD}")
    a(f"s_mul_i32 s{sT3}, s{sT3}, 5120")
    a(f"s_add_u32 s{sT3}, s{sT3}, {L_RPC}")
    a(f"v_lshrrev_b32 v14, 5, v{vL}")
    a(f"v_bfe_u32 v15, v{vL}, 2, 2")
    a("v_lshl_add_u32 v14, v14, 2, v15")
    a("v_mul_u32_u24 v14, 320, v14")
    a(f"v_bfe_u32 v15, v{vL}, 4, 1")
    a("v_lshl_add_u32 v14, v15, 5, v14")
    a(f"v_and_b32 v15, 3, v{vL}")
    a("v_lshl_add_u32 v14, v15, 3, v14")
    a(f"v_add_u32 v14, s{sT3}, v14")
    a(f"s_mul_i32 s{sT0}, s{sKQ}, 5")
    a(f"s_add_u32 s{sT0}, s{sT0}, s{sF}")
    a(f"s_cmp_ge_u32 s{sKQ}, 3")
    a(f"s_cselect_b32 s{sT1}, 10, 0")
    a(f"s_cmp_ge_u32 s{sKQ}, 6")
    a(f"s_cselect_b32 s{sT1}, -15, s{sT1}")
    a(f"s_cselect_b32 s{sT2}, 25, 50")
    a(f"s_add_u32 s{sT0}, s{sT0}, s{sT1}")
    a(f"s_mul_i32 s{sT1}, s{sCGR}, 200")
    a(f"s_add_u32 s{sT0}, s{sT0}, s{sT1}")
    a(f"s_lshl_b32 s{sT0}, s{sT0}, 10")
    a(f"s_add_u32 s{sT0}, s{sT0}, {WS_WOP}")
    a(f"s_lshl_b32 s{sT2}, s{sT2}, 10")
    a(f"s_lshr_b32 s{sT4}, s{sKQ}, 1")
    a(f"s_mul_i32 s{sT4}, s{sT4}, 25")
    a(f"s_and_b32 s{sT5}, s{sKQ}, 1")
    a(f"s_mul_i32 s{sT5}, s{sT5}, 5")
    a(f"s_add_u32 s{sT4}, s{sT4}, s{sT5}")
    a(f"s_add_u32 s{sT4}, s{sT4}, s{sF}")
    a(f"s_add_u32 s{sT4}, s{sT4}, s{sT1}")
    a(f"s_add_u32 s{sT4}, s{sT4}, 115")
    a(f"s_lshl_b32 s{sT4}, s{sT4}, 10")
    a(f"s_add_u32 s{sT4}, s{sT4}, {WS_WOP}")
    a(f"v_lshlrev_b32 v15, 4, v{vL}")
    for t in range(5):
        for jh in range(2): a(f"ds_read_b64_tr_b16 {vr(32+4*t+2*jh,2)}, v14 offset:{jh*2560+t*64}")
    a("s_waitcnt lgkmcnt(0)")
    for t in range(4):
        a(f"buffer_store_dwordx4 {vr(32+4*t,4)}, v15, {srd(SWS)}, s{sT0} offen sc1")
        a(f"s_add_u32 s{sT0}, s{sT0}, s{sT2}")
    a(f"buffer_store_dwordx4 {vr(48,4)}, v15, {srd(SWS)}, s{sT4} offen sc1")
    a(f"s_add_u32 s{sVAR}, s{sVAR}, 128")
    a(f"s_cmp_lt_u32 s{sVAR}, 160")
    a("s_cbranch_scc1 Lcrp2")
    a("v_mov_b32 v60, 0")
    a("s_waitcnt vmcnt(0)")
    darr_issue(60, 61, 4)
    darr_finish(60, 61, 4, 128)
    a("s_setprio 0")
    stamp(1)

    a.label("Lcjoin")
    srd_init([SX, SH, SDBG, SOUT])
    a("v_mov_b32 v104, 0")
    a("s_waitcnt vmcnt(0)")
    stamp(2)
    a("s_barrier")
    a(f"s_cmp_lg_u32 s{sW}, 7")
    a("s_cbranch_scc1 Lc7")
    a("s_setprio 3")
    darr_issue(104, 45, 0)
    darr_finish(104, 45, 0, NU, 0)
    a("s_setprio 0")
    a.label("Lc7")
    zero_pads(sW)
    a(f"s_mov_b32 s{sT1}, 0")
    conv_setup(sW, sT1)
    s3_setup()
    wo_prep(vL16)
    a(f"s_lshl_b32 s{sT1}, s{sCI}, 2")
    h_dma(sW, sT1)
    conv_dfrag()
    a(f"s_cmp_ge_u32 s{sW}, 4")
    a("s_cbranch_scc1 Lc7b")
    a("v_mov_b32 v44, 132")
    poll(44, 46, S=SDBG, sleep=4)
    for x in wo_list(vL16): a(x)
    x_loads()
    a.label("Lc7b")
    a(f"s_cmp_lg_u32 s{sW}, 7")
    a("s_cbranch_scc1 Lc8")
    a("s_setprio 3")
    a(f"v_and_b32 v44, 1, v{vL}")
    a("v_lshl_add_u32 v44, v44, 2, 64")
    a("v_add_u32 v44, 64, v44")
    poll(44, 46, S=SDBG)
    stamp(11)
    a(f"s_lshl_b32 s{sT5}, s{sQUAD}, 14")
    for q in range(4):
        a(f"s_mov_b32 m0, {L_UD + 4096*q}")
        for i in range(4): a(f"buffer_load_dwordx4 v{vL16}, {srd(SWS)}, s{sT5} offen offset:{1024*i} sc1 lds")
        if q < 3: a(f"s_add_u32 s{sT5}, s{sT5}, 4096")
    a.label("Lc8")
    a(f"s_cmp_lt_u32 s{sW}, 4")
    a("s_cbranch_scc1 Lc9")
    a("s_waitcnt vmcnt(0)")
    a.label("Lc9")
    a("s_waitcnt lgkmcnt(0)")
    stamp(12)
    a("s_barrier")
    stamp(3)
    a("s_setprio 2")
    a(f"s_cmp_lt_u32 s{sW}, 4")
    a("s_cbranch_scc1 Lconv2")
    a("s_setprio 0")
    for x in wo_list(vL16): a(x)
    x_loads()

def conv_body(tiles):
    seq = []
    for b in range(4):
        if tiles[0] == 0:
            for aa in range(8):
                for ti in (3, 2):
                    d = tiles[ti] - aa
                    if d >= 0:
                        seq.append((ti, ("H", 4 * aa + b, 0), ("U", 4 * d - b)))
                        if b == 0 and aa == 0: seq.append((ti, ("D",), ("U", 4 * d)))
                if aa == 5:
                    seq.append((1, ("H", b, 1), ("U", 4 - b)))
                    if b == 0: seq.append((1, ("D",), ("U", 4)))
                if aa == 6:
                    seq.append((0, ("H", b, 1), ("U", -b)))
                    if b == 0: seq.append((0, ("D",), ("U", 0)))
                    seq.append((1, ("H", 4 + b, 1), ("U", -b)))
        else:
            for aa in range(6):
                for ti in (3, 2, 1, 0):
                    d = tiles[ti] - aa
                    if d >= 0:
                        seq.append((ti, ("H", 4 * aa + b, 0), ("U", 4 * d - b)))
                        if b == 0 and aa == 0: seq.append((ti, ("D",), ("U", 4 * d)))
    assert len(seq) == 76
    last = {}; order = []
    for i, (ti, h, u) in enumerate(seq):
        for k in (u, h):
            if k[0] == "D": continue
            if k not in last: order.append(k)
            last[k] = i
    free = list(range(NPOOL))
    where = {}; done_at = {}
    nds = [0]; li = [0]
    def issue(maxn):
        n = 0
        while li[0] < len(order) and free and n < maxn:
            k = order[li[0]]; li[0] += 1
            bfr = free.pop(0); where[k] = bfr
            r = CPOOL + 4 * bfr
            if k[0] == "U":
                a(f"ds_read_b128 {vr(r,4)}, v{vUo if k[1]&1 else vUe} offset:{(k[1]+3)*512}")
                nds[0] += 1; n += 1
            else:
                a(f"ds_read_b64_tr_b16 {vr(r,2)}, v{vH} offset:{128*k[1]+32}")
                a(f"ds_read_b64_tr_b16 {vr(r+2,2)}, v{vH} offset:{128*k[1]}")
                nds[0] += 2; n += 2
            done_at[k] = nds[0]
    issue(10)
    started = set(); known = 0
    wl = wo_list(vL16); wi = 25 if "delayconv" in EXP else 0
    for i, (ti, h, u) in enumerate(seq):
        needn = max(done_at[k] for k in (u, h) if k[0] != "D")
        if needn > known:
            cnt = min(nds[0] - needn, 15)
            a(f"s_waitcnt lgkmcnt({cnt})")
            known = nds[0] - cnt
        d = vr(CACC + 16 * ti, 16)
        hb = CD if h[0] == "D" else CPOOL + 4 * where[h]
        a(f"v_mfma_f32_32x32x16_bf16 {d}, {vr(CPOOL+4*where[u],4)}, {vr(hb,4)}, {d if ti in started else '0'}")
        started.add(ti)
        for k in (u, h):
            if k[0] != "D" and last[k] == i: free.append(where[k])
        issue(2)

def conv_epi(var):
    runs = [[*range(0, 8)], [*range(8, 16)]] if var == 0 else [[*range(16)]]
    out_g = 7 if var == 0 else 15
    in_g = 8 if var == 0 else 0
    SPL = 96
    a(f"buffer_load_dword v{vFT}, v{vFK}, {srd(SWS)}, 0 offen sc1")
    a("s_nop 7")
    a("s_nop 3")
    for step in (2, 1, 0):
        a("s_mov_b32 exec_lo, 0")
        a("s_mov_b32 exec_hi, 0x80000000")
        a(f"v_mov_b32 v{SPL+step}, v{CACC+4*out_g+step+1}")
        for run in runs:
            for g in reversed(run):
                src = f"v{CACC+4*(g-1)+step+1}" if g != run[0] else "0"
                a(f"v_mov_b32 v{CACC+4*g+step+1}, {src}")
        if step == 0:
            a(f"ds_write_b96 v{vCS}, {vr(SPL,3)}")
            a("v_mov_b32 v100, 1")
            a(f"ds_add_u32 v{vCN}, v100")
        a("s_mov_b64 exec, -1")
        for g in reversed(range(16)):
            r = CACC + 4 * g + step
            a(f"v_add_f32_dpp v{r}, v{r+1}, v{r} wave_ror:1 row_mask:0xf bank_mask:0xf")
    a(f"v_xor_b32 v101, 16, v{vCS}")
    a(f"v_lshl_add_u32 v101, v{vL}, 2, v101")
    PK = 104
    other = [k for k in range(8) if k != in_g // 2]
    for k in other: a(f"v_cvt_pk_bf16_f32 v{PK+k}, v{CACC+8*k}, v{CACC+8*k+4}")
    oh = 1 - in_g // 8
    a(f"ds_write_b128 v{vCW}, {vr(PK+4*oh,4)} offset:{1024*oh}")
    lds_wait(vCN, 100, 2)
    a("s_mov_b64 exec, 7")
    a("ds_read_b32 v100, v101")
    a("s_waitcnt lgkmcnt(0)")
    a(f"v_add_f32 v{CACC+4*in_g}, v{CACC+4*in_g}, v100")
    a("s_mov_b64 exec, -1")
    k = in_g // 2
    a(f"v_cvt_pk_bf16_f32 v{PK+k}, v{CACC+8*k}, v{CACC+8*k+4}")
    a(f"ds_write_b128 v{vCW}, {vr(PK+4*(1-oh),4)} offset:{1024*(1-oh)}")
    T0, T1 = (0, 6) if var == 0 else (2, 4)
    a(f"s_lshl_b32 s{sT5}, s{sCH}, 6")
    a(f"s_add_u32 s{sT4}, s{sT5}, {WS_Y + T0*8*40960}")
    a(f"s_add_u32 s{sT5}, s{sT5}, {WS_Y + T1*8*40960}")
    a(f"s_lshr_b32 s{sT6}, s{sCH}, 5")
    a(f"s_lshl_b32 s{sT6}, s{sT6}, 8")
    a(f"s_add_u32 s{sT6}, s{sT6}, {WS_FY + var*20*256}")

def conv():
    a.label("Lconv")
    a("s_setprio 1")
    a.label("Lconv2")
    a(f"s_cmp_eq_u32 s{sVAR}, 1")
    a("s_cbranch_scc1 Lconvy")
    conv_body([0, 1, 6, 7])
    stamp(4)
    conv_epi(0)
    a("s_branch Lconve")
    a.label("Lconvy")
    conv_body([2, 3, 4, 5])
    stamp(4)
    conv_epi(1)
    a.label("Lconve")
    for n in range(2):
        a(f"ds_read_b64_tr_b16 {vr(136+4*n,2)}, v{vCT} offset:{1024*n}")
        a(f"ds_read_b64_tr_b16 {vr(138+4*n,2)}, v{vCT} offset:{1024*n+64}")
    arr_prep(152, 153)
    for n in range(2):
        a(f"s_waitcnt lgkmcnt({2-2*n})")
        a(f"buffer_store_dwordx4 {vr(136+4*n,4)}, v{vCY}, {srd(SWS)}, s{sT5 if n else sT4} offen sc1")
    stamp(13)
    a("s_branch Ls3b")

def s3():
    a.label("Ls3")
    a.c("S3")
    PQ, RAW, KF = 32, 52, 116
    plan = []
    for i in range(4):
        for st in range(2):
            for jh in range(2):
                du0 = 4 * (i + st) + 2 * jh - 5 * i
                plan.append((i, st, jh, du0, 0 <= du0 <= 4, 0 <= du0 + 1 <= 4))
    sPD = sT2
    def fl(): a(f"buffer_load_dword v{vFT}, v{vFK}, {srd(SWS)}, 0 offen sc1")
    def pql():
        for f in range(4): a(f"buffer_load_dwordx4 {vr(PQ+4*f,4)}, v{vL16}, {srd(SWS)}, s{sPQO} offen offset:{1024*f} sc1")
        a(f"buffer_load_dwordx4 {vr(PQ+16,4)}, v{vL16}, {srd(SWS)}, s{sT1} offen sc1")
    def pre():
        for (i, st, jh, du0, v0ok, v1ok) in plan:
            if v0ok != v1ok:
                for j in range(4): a(f"v_mov_b32 v{RAW+16*i+8*st+4*jh+j}, 0")
        a(f"s_add_u32 s{sT1}, s{sPQO}, 4096")
        a(f"s_add_u32 s{sT3}, s{sKVO}, {2*KVH}")
        a(f"s_mov_b32 s{sPD}, 0")
        a(f"s_mov_b32 s{sCNT}, 0x40000")
    wl = wo_list(vL16)
    for x in wl[:20]: a(x)
    fl()
    for x in wl[20:]: a(x)
    x_loads()
    a("s_setprio 1")
    pre()
    a(f"s_mov_b32 s{sUD}, 0")
    a("s_waitcnt vmcnt(7)")
    a("s_branch Ls3ev")
    a.label("Ls3b")
    pre()
    a(f"s_mov_b32 s{sUD}, 2")
    a("s_waitcnt vmcnt(2)")
    a("s_branch Ls3ev")
    a.label("Ls3sl")
    a("s_sleep 2")
    a.label("Ls3lp")
    fl()
    a("s_waitcnt vmcnt(0)")
    a(f"s_cmp_eq_u32 s{sUD}, 0")
    a("s_cbranch_scc1 Ls3ev")
    a(f"s_sub_u32 s{sUD}, s{sUD}, 1")
    a(f"s_cmp_eq_u32 s{sUD}, 0")
    a("s_cbranch_scc1 Ls3af")
    arr_issue(152, 153, f"s{sT6}")
    a("s_branch Ls3ev")
    a.label("Ls3af")
    arr_finish(152, 153, f"s{sT6}", 32)
    a.label("Ls3ev")
    a(f"v_cmp_ne_u32 vcc, s{sTAG}, v{vFT}")
    a(f"s_sub_u32 s{sCNT}, s{sCNT}, 1")
    a("s_cbranch_scc1 Ls3go")
    a(f"s_cmp_lg_u32 s{sPD}, 0")
    a("s_cbranch_scc1 Ls3k")
    a("s_bitcmp1_b32 vcc_lo, 0")
    a("s_cbranch_scc1 Ls3sl")
    pql()
    a(f"s_mov_b32 s{sPD}, 1")
    a(f"v_readlane_b32 s{sT0}, v{vFK}, 1")
    a(f"v_mov_b32 v{vFK}, s{sT0}")
    a.label("Ls3k")
    a("s_cmp_lg_u32 vcc_hi, 0")
    a("s_cbranch_scc1 Ls3sl")
    a.label("Ls3go")
    stamp(6)
    nload = [0] * 4
    for (i, st, jh, du0, v0ok, v1ok) in plan:
        if not (v0ok or v1ok): continue
        off = (i & 1) * KVH + du0 * 336
        part = v0ok != v1ok
        if part: a(f"s_mov_b32 exec_{'hi' if v0ok else 'lo'}, 0")
        a(f"buffer_load_dwordx4 {vr(RAW+16*i+8*st+4*jh,4)}, v{vKO if i&1 else vKE}, {srd(SWS)}, s{sT3 if i>>1 else sKVO} offen offset:{off} sc1")
        if part: a("s_mov_b64 exec, -1")
        nload[i] += 1
    a(f"s_cmp_lg_u32 s{sUD}, 2")
    a("s_cbranch_scc1 Ls3n2")
    a("s_waitcnt vmcnt(12)")
    arr_issue(152, 153, f"s{sT6}")
    a("s_branch Ls3n3")
    a.label("Ls3n2")
    a(f"buffer_load_dword v{vFT}, v{vFK}, {srd(SWS)}, 0 offen sc1")
    a.label("Ls3n3")
    rem = sum(nload) + 1
    for i in range(4):
        rem -= nload[i]
        a(f"s_waitcnt vmcnt({rem})")
        kf = KF + 8 * (i & 1)
        for (i2, st, jh, du0, v0ok, v1ok) in plan:
            if i2 != i: continue
            for j in range(2):
                d = kf + 4 * st + 2 * jh + j; s = RAW + 16 * i + 8 * st + 4 * jh + 2 * j
                if v0ok or v1ok: a(f"v_cvt_pk_bf16_f32 v{d}, v{s}, v{s+1}")
                else: a(f"v_mov_b32 v{d}, 0")
        d = vr(RAW + 16 * i, 16)
        a(f"v_mfma_f32_32x32x16_bf16 {d}, {vr(kf,4)}, {vr(PQ+4*i,4)}, 0")
        a(f"v_mfma_f32_32x32x16_bf16 {d}, {vr(kf+4,4)}, {vr(PQ+4*i+4,4)}, {d}")
    if "sx" in EXP: stamp(11)
    a(f"s_cmp_eq_u32 s{sUD}, 0")
    a("s_cbranch_scc1 Ls3n4")
    arr_finish(152, 153, f"s{sT6}", 32, 0)
    a.label("Ls3n4")
    a(f"s_cmp_ge_u32 s{sW}, 5")
    a("s_cbranch_scc1 Ls3n5")
    a(f"buffer_load_dword v{vFT}, v{vFY}, {srd(SWS)}, 0 offen sc1")
    a.label("Ls3n5")
    OF = 132
    for i in range(4):
        D = RAW + 16 * i
        a(f"v_add_f32 v{D+12}, s{sEPS}, v{D+12}")
        a(f"v_rcp_f32 v{D+12}, v{D+12}")
        for j in range(8): a(f"v_mul_f32 v{D+j}, v{D+j}, v{D+12}")
        for j in range(4): a(f"v_cvt_pk_bf16_f32 v{OF+4*i+j}, v{D+2*j}, v{D+2*j+1}")
        a(f"ds_write_b128 v{vOW}, {vr(OF+4*i,4)} offset:{1024*i}")
        if i & 1 == 0:
            for j in range(4): a(f"v_mul_f32 v{D+8+j}, v{D+8+j}, v{D+12}")
        else:
            for j in range(4): a(f"v_fmac_f32 v{D-8+j}, v{D+8+j}, v{D+12}")
            for j in range(2): a(f"v_cvt_pk_bf16_f32 v{OF+16+2*(i>>1)+j}, v{D-8+2*j}, v{D-8+2*j+1}")
    a(f"ds_write_b128 v{vOW}, {vr(OF+16,4)} offset:4096")
    a(f"s_mov_b32 s{sUD}, 1")
    a(f"s_cmp_ge_u32 s{sW}, 5")
    a("s_cbranch_scc1 Ls3y1")
    a("s_waitcnt vmcnt(0)")
    a(f"v_cmp_ne_u32 vcc, s{sTAG}, v{vFT}")
    a(f"s_mov_b32 m0, s{sYM}")
    a("s_cbranch_vccnz Ls3y0")
    a(f"buffer_load_dwordx4 v{vL16}, {srd(SWS)}, s{sYO} offen sc1 lds")
    a(f"buffer_load_dwordx4 v{vL16}, {srd(SWS)}, s{sYO} offen offset:1024 sc1 lds")
    a("s_branch Ls3y1")
    a.label("Ls3y0")
    a(f"s_mov_b32 s{sUD}, 0")
    a(f"buffer_load_dword v{vFT}, v{vFY}, {srd(SWS)}, 0 offen sc1")
    a.label("Ls3y1")
    if "nog3prio" not in EXP:
        a(f"s_cmp_ge_u32 s{sW}, 4")
        a("s_cbranch_scc1 Ls3y2")
        a("s_setprio 2")
        a.label("Ls3y2")
    a("s_waitcnt lgkmcnt(0)")
    if "sx" in EXP: stamp(12)
    a("s_barrier")
    stamp(7)
    a(f"buffer_load_dword v{vG}, v{vGO}, {srd(SWS)}, 0 offen sc1")
    NB = 8; POOL = 32; AP, AR = 64, 80
    def ord_(i): return (vPR, 1024 * i) if i < 15 else (vRR, 1024 * (i - 15))
    for i in range(NB):
        v, o = ord_(i); a(f"ds_read_b128 {vr(POOL+4*i,4)}, v{v} offset:{o}")
    XF = 96
    pre = [f"s_mov_b32 s{sT0}, 0xffff0000"]
    for n, xd in enumerate((vXD, vXD2)):
        for j in range(4):
            pre.append(f"v_lshlrev_b32 v{XF+8*n+2*j}, 16, v{xd+j}")
            pre.append(f"v_and_b32 v{XF+8*n+2*j+1}, s{sT0}, v{xd+j}")
    issued = NB
    log = list(range(NB))
    for i in range(25):
        pos = log.index(i)
        a(f"s_waitcnt lgkmcnt({min(len(log)-1-pos,15)})")
        d = vr(AP if i < 15 else AR, 16)
        a(f"v_mfma_f32_32x32x16_bf16 {d}, {vr(VWO+4*i,4)}, {vr(POOL+4*(i%NB),4)}, {'0' if i in (0,15) else d}")
        if issued < 25:
            v, o = ord_(issued); a(f"ds_read_b128 {vr(POOL+4*(issued%NB),4)}, v{v} offset:{o}"); log.append(issued); issued += 1
        if i < 12:
            for x in pre[3 * i:3 * i + 3]: a(x)
        if i == 7:
            a(f"s_cmp_eq_u32 s{sUD}, 1")
            a("s_cbranch_scc1 Ls3ny")
            poll(vFY, vFT, "issued")
            stamp(5)
            a(f"buffer_load_dwordx4 v{vL16}, {srd(SWS)}, s{sYO} offen sc1 lds")
            a(f"buffer_load_dwordx4 v{vL16}, {srd(SWS)}, s{sYO} offen offset:1024 sc1 lds")
            a.label("Ls3ny")
        if 19 <= i < 23:
            q = i - 19
            a(f"ds_write_b128 v{vPW+q}, {vr(AP+4*q,4)}"); log.append(-1)
            a(f"v_add_u32 v{vPW+q}, s{sRD}, v{vPW+q}")
    for q in range(4): a(f"ds_write_b128 v{vPW+q}, {vr(AR+4*q,4)}")
    a("s_waitcnt vmcnt(0) lgkmcnt(0)")
    a("s_barrier")
    stamp(8)
    def f_reads(n, R):
        np_ = 3 + n
        for p in range(np_):
            a(f"ds_read_b128 {vr(R+8*p,4)}, v{vPA} offset:{49152*n+4096*p}")
            a(f"ds_read_b128 {vr(R+8*p+4,4)}, v{vPB} offset:{49152*n+4096*p}")
        a(f"ds_read_b64_tr_b16 {vr(R+32,2)}, v{vYT} offset:{8192*n}")
        a(f"ds_read_b64_tr_b16 {vr(R+34,2)}, v{vYT} offset:{8192*n+256}")
    def f_math(n, R, after):
        np_ = 3 + n
        X = XF + 8 * n; YF = R + 36
        a(f"s_waitcnt lgkmcnt({min(after+2*np_+2-4,15)})")
        for j in range(4): a(f"v_pk_add_f32 {vr(R+2*j,2)}, {vr(R+2*j,2)}, {vr(R+8+2*j,2)}")
        a(f"s_waitcnt lgkmcnt({after+2})")
        for p in range(2, np_):
            for j in range(4): a(f"v_pk_add_f32 {vr(R+2*j,2)}, {vr(R+2*j,2)}, {vr(R+8*p+2*j,2)}")
        a(f"s_waitcnt lgkmcnt({after})")
        for j in range(4):
            a(f"v_lshlrev_b32 v{YF+2*j}, 16, v{R+32+j}")
            a(f"v_and_b32 v{YF+2*j+1}, s{sT0}, v{R+32+j}")
        for j in range(4): a(f"v_pk_mul_f32 {vr(X+2*j,2)}, {vr(X+2*j,2)}, {vr(YF+2*j,2)}")
        for j in range(4): a(f"v_pk_add_f32 {vr(R+2*j,2)}, {vr(R+2*j,2)}, {vr(X+2*j,2)} neg_lo:[0,1] neg_hi:[0,1]")
        for j in range(4): a(f"v_pk_fma_f32 {vr(R+2*j,2)}, {vr(R+2*j,2)}, {vr(vG,2)}, {vr(X+2*j,2)} op_sel_hi:[1,0,1]")
        for j in range(4): a(f"v_cvt_pk_bf16_f32 v{R+32+j}, v{R+2*j}, v{R+2*j+1}")
        a(f"buffer_store_dwordx4 {vr(R+32,4)}, v{vOUT}, {srd(SOUT)}, s{sXOFF} offen offset:{256*n}" + (" sc1" if "osc1" in EXP else " nt" if "ont" in EXP else " sc0 sc1" if "osys" in EXP else ""))
    f_reads(0, 32)
    a(f"s_cmp_lt_u32 s{sW}, 2")
    a("s_cbranch_scc1 Lfin2")
    f_math(0, 32, 0)
    a("s_branch Lfin")
    a.label("Lfin2")
    f_reads(1, 112)
    f_math(0, 32, 10)
    f_math(1, 112, 0)
    a.label("Lfin")
    if DIAG:
        a("s_waitcnt vmcnt(0)")
        stamp(9)
        a(f"s_memtime vcc")
        a("s_waitcnt lgkmcnt(0)")
        a(f"s_mov_b32 s{STS+15}, vcc_lo")
        a("v_mov_b32 v2, 0")
        for i in range(16): a(f"v_writelane_b32 v2, s{STS+i}, {i}")
        a(f"v_lshlrev_b32 v3, 2, v{vL}")
        a(f"s_lshl_b32 s{sT0}, s{sBID}, 3")
        a(f"s_add_u32 s{sT0}, s{sT0}, s{sW}")
        a(f"s_lshl_b32 s{sT0}, s{sT0}, 6")
        a(f"s_add_u32 s{sT0}, s{sT0}, {WS_TS}")
        a("s_mov_b64 exec, 0xffff")
        a(f"buffer_store_dword v2, v3, {srd(SWS)}, s{sT0} offen")
        sp = [e for e in EXP if e.startswith("spin")]
        if sp:
            si, wv, lo, hi = [int(x) for x in sp[0][4:].split("_")]
            a(f"s_cmp_lg_u32 s{sW}, {wv}")
            a("s_cbranch_scc1 Lend")
            a(f"s_cmp_lt_u32 s{sIDX}, {lo}")
            a("s_cbranch_scc1 Lend")
            a(f"s_cmp_ge_u32 s{sIDX}, {hi}")
            a("s_cbranch_scc1 Lend")
            a.label("Lspin")
            a("s_memrealtime vcc")
            a("s_waitcnt lgkmcnt(0)")
            a(f"s_sub_u32 s{sT1}, vcc_lo, s{STS+si}")
            a(f"s_cmp_lt_u32 s{sT1}, 5000")
            a("s_cbranch_scc1 Lspin")
        if "dbgts" in EXP:
            a(f"s_cmp_lg_u32 s{sW}, {int([e for e in EXP if e.startswith('wv')][0][2:])}")
            a("s_cbranch_scc1 Lend")
            a(f"s_cmp_ge_u32 s{sIDX}, 16")
            a("s_cbranch_scc1 Lend")
            a("v_cmp_ne_u32 vcc, 0, v2")
            a(f"v_subrev_u32 v2, s{sTAG}, v2")
            a("v_add_u32 v2, 100, v2")
            a("v_and_b32 v2, 0x7ffffff, v2")
            a("v_cndmask_b32 v2, 0, v2, vcc")
            a("s_mov_b64 exec, 0x3fff")
            a(f"buffer_atomic_umax v2, v3, {srd(SDBG)}, 0 offen offset:4 sc1")
    a.label("Lend")
    a("s_endpgm")

entry(); bwave(); awave(); kva(); qa(); ctype(); conv(); s3()

ref = open("cdna_kernels/%s.s.ref" % NAME).read()
head = [l for l in ref.split("\n") if l.startswith(";") and "@launch" not in l]
out = "\n".join(head) + "\n"
out += "; @launch grid=(256,1,1) block=(512,1,1) lds=%d\n" % LDS_BYTES
out += '.amdgcn_target "amdgcn-amd-amdhsa--gfx950"\n.text\n.globl %s_kernel\n.p2align 8\n.type %s_kernel,@function\n%s_kernel:\n' % (NAME, NAME, NAME)
import re
body = a.text()
ntset = []
if "nt" in EXP: ntset += [SK, SV, SH, SWO, SSK, SGW]
if "ntx" in EXP: ntset += [SX, SWQ]
for s_ in ntset:
    body = re.sub(r"(buffer_load_dword\S* [^\n]*%s, [^\n]*?offen(?: offset:\d+)?)( lds)?\n" % re.escape(srd(s_)), lambda m: m.group(1) + " nt" + (m.group(2) or "") + "\n", body)
out += body
out += '''.section .rodata,"a"
.p2align 6
.amdhsa_kernel %s_kernel
  .amdhsa_next_free_vgpr 256
  .amdhsa_next_free_sgpr 102
  .amdhsa_accum_offset 256
  .amdhsa_group_segment_fixed_size 0
  .amdhsa_kernarg_size 104
  .amdhsa_user_sgpr_count 2
  .amdhsa_user_sgpr_kernarg_segment_ptr 1
  .amdhsa_system_sgpr_workgroup_id_x 1
.end_amdhsa_kernel
''' % NAME
dst = [x for x in sys.argv[1:] if not x.startswith("--")]
open(dst[0] if dst else "cdna_kernels/%s.s" % NAME, "w").write(out)
```

```python
import sys
from asmlib import Asm, vr, sr

NAME = "gated_mix__linear_attn_block__ssm_conv_h3__prompt"
DIAG = "--diag" in sys.argv
EXP = [x[6:] for x in sys.argv if x.startswith("--exp=")]

WOFF = int(([e[4:] for e in EXP if e.startswith("woff")] + ["0"])[0]) << 20
WS_U = 0
WS_PQ = 0x280000 + WOFF
WS_Y = 0x500000 + WOFF
WS_WOP = 0x780000 + WOFF
WS_KV = 0x850000 + WOFF
WS_C = 0x860000 + WOFF
CDELTA = 320 * 256
WS_FK = WS_C
WS_FY = WS_C + 8 * 256
WS_FQ = WS_C + 64 * 256
WS_G = 0x88C000 + WOFF
WS_TS = 0x890000 + WOFF
WS_SIZE = 0x900000 + WOFF
KVH = 1792

NQ = int(([e[2:] for e in EXP if e.startswith("nq")] + ["0"])[0])
NU = 64 + 64 * NQ
Q0 = int(([e[2:] for e in EXP if e.startswith("q0")] + ["2"])[0])
G0, G1 = 16 + 4 * Q0, 32 - 4 * Q0
SLOT = 36864
L_OFR = 36864
L_KVS = 77824
L_YST = 92160
L_PART = 77824
L_UB = 110592
L_UD = L_UB + 2048
L_HB = 129024
HSTR = 4224
L_SP = 145920
L_CNT = 146048
L_TAG = 146112
L_YT = 146176
L_S0C = 0
L_RPC = 49152
L_GW = L_YT + 10240
LDS_BYTES = L_GW + 2048

SX, SWQ, SWO, SK, SV, SSK, SH, SGW, SOUT, SDBG, SWS = [4 + 4 * i for i in range(11)]
SD = 48
sW, sXCD, sIDX, sRP, sCP, sTAG, sCNT = range(50, 57)
sRB, sCG, sQUAD, sCHL, sLC, sVAR, sCH, sJ, sUD = range(57, 66)
sT0, sT1, sT2, sT3, sT4, sT5, sT6, sT7 = range(66, 74)
sLOG = 74
sCI = 76
sDV = 77
STS = 80
sXOFF, sPQO, sKVO, sTB, sYO, sYM = 96, 97, 98, 99, 100, 101
sCHB = 65
sRD = 3
sWOO = 2
sEPS = 79
sBID = 78
def srd(b): return sr(b, 4)

vL = 0
VWO = 156
vL16, vOW, vPR, vRR, vPW = 1, 2, 3, 4, 5
vKE, vKO, vFK, vFY, vZ, vOUT, vPA, vPB, vYT, vFT, vGO = 9, 10, 11, 12, 13, 14, 15, 16, 17, 18, 19
vXD, vG, vXD2 = 20, 24, 28
vFQ, vFE = 27, 25

a = Asm()
BST = [None]
def stamp(i, force=False):
    if "bst" in EXP and not force and i not in (0, 10): return
    if DIAG:
        a(f"{'s_memtime' if 'cyc' in EXP else 's_memrealtime'} vcc")
        a("s_waitcnt lgkmcnt(0)")
        a(f"s_mov_b32 s{STS+i}, vcc_lo")

def poll(vaddr, vdst, state="none", sleep=2, S=None):
    L = a.newlabel("Lpoll"); D = a.newlabel("Lpd")
    if state != "none":
        if state == "issued": a("s_waitcnt vmcnt(0)")
        a(f"v_cmp_ne_u32 vcc, s{sTAG}, v{vdst}")
        a(f"s_cbranch_vccz {D}")
    a(f"s_mov_b32 s{sCNT}, 0x20000")
    a.label(L)
    a(f"buffer_load_dword v{vdst}, v{vaddr}, {srd(S or SWS)}, 0 offen sc1")
    a("s_waitcnt vmcnt(0)")
    a(f"v_cmp_ne_u32 vcc, s{sTAG}, v{vdst}")
    a(f"s_cbranch_vccz {D}")
    if sleep: a(f"s_sleep {sleep}")
    a(f"s_sub_u32 s{sCNT}, s{sCNT}, 1")
    a(f"s_cbranch_scc0 {L}")
    a.label(D)

def cnt_load(S, vaddr, vdst):
    a(f"buffer_load_dword v{vdst}, v{vaddr}, {srd(S)}, 0 offen sc1")

def tag_get(vz, vdst, state="issued"):
    L = a.newlabel("Ltag"); D = a.newlabel("Ltd")
    if state != "none":
        if state == "issued": a("s_waitcnt vmcnt(0)")
        a(f"v_readfirstlane_b32 s{sTAG}, v{vdst}")
        a(f"s_cmp_lg_u32 s{sTAG}, 0")
        a(f"s_cbranch_scc1 {D}")
    a(f"s_mov_b32 s{sCNT}, 0x20000")
    a.label(L)
    a(f"buffer_load_dword v{vdst}, v{vz}, {srd(SDBG)}, 0 offen sc1")
    a("s_waitcnt vmcnt(0)")
    a(f"v_readfirstlane_b32 s{sTAG}, v{vdst}")
    a(f"s_cmp_lg_u32 s{sTAG}, 0")
    a(f"s_cbranch_scc1 {D}")
    a("s_sleep 2")
    a(f"s_sub_u32 s{sCNT}, s{sCNT}, 1")
    a(f"s_cbranch_scc0 {L}")
    a.label(D)

def tag_lds(vtmp):
    a(f"v_mov_b32 v{vtmp}, {L_TAG}")
    a(f"ds_read_b32 v{vtmp}, v{vtmp}")
    a("s_waitcnt lgkmcnt(0)")
    a(f"v_readfirstlane_b32 s{sTAG}, v{vtmp}")

def arr_prep(vt0, vt1):
    a(f"v_mov_b32 v{vt0}, {CDELTA}")
    a(f"v_mov_b32 v{vt1}, 1")
def arr_issue(vt0, vt1, soff):
    a("s_mov_b64 exec, 1")
    a(f"buffer_atomic_add v{vt1}, v{vt0}, {srd(SWS)}, {soff} offen sc0 sc1")
    a("s_mov_b64 exec, -1")
def arr_finish(vt0, vt1, soff, n, wait=0):
    D = a.newlabel("Lal")
    a(f"s_waitcnt vmcnt({wait})")
    a(f"v_readfirstlane_b32 s{sT7}, v{vt1}")
    a(f"s_cmp_lg_u32 s{sT7}, {n-1}")
    a(f"s_cbranch_scc1 {D}")
    flag_store(vt0, vt1, soff)
    a.label(D)
def flag_store(vt0, vt1, soff):
    a(f"v_mov_b32 v{vt0}, 0")
    a(f"v_mov_b32 v{vt1}, s{sTAG}")
    a("s_mov_b64 exec, 1")
    a(f"buffer_store_dword v{vt1}, v{vt0}, {srd(SWS)}, {soff} offen sc1")
    a("s_mov_b64 exec, -1")

def darr_issue(vz, v1, off):
    a(f"v_mov_b32 v{v1}, 1")
    a("s_mov_b64 exec, 1")
    a(f"buffer_atomic_add v{v1}, v{vz}, {srd(SDBG)}, 0 offen offset:{off} sc0 sc1")
    a("s_mov_b64 exec, -1")
def darr_finish(vz, v1, off, n, wait=0):
    D = a.newlabel("Lda")
    a(f"s_waitcnt vmcnt({wait})")
    a(f"v_readfirstlane_b32 s{sT7}, v{v1}")
    a(f"s_cmp_lg_u32 s{sT7}, {n-1}")
    a(f"s_cbranch_scc1 {D}")
    a(f"v_mov_b32 v{v1}, 1")
    a("s_mov_b64 exec, 1")
    a(f"buffer_store_dword v{v1}, v{vz}, {srd(SDBG)}, 0 offen offset:{128+off} sc1")
    a("s_mov_b64 exec, -1")
    a.label(D)

def lds_arrive(vaddr, vtmp):
    a(f"v_mov_b32 v{vtmp}, 1")
    a("s_mov_b64 exec, 1")
    a(f"ds_add_u32 v{vaddr}, v{vtmp}")
    a("s_mov_b64 exec, -1")
def lds_wait(vaddr, vtmp, target):
    L = a.newlabel("Lls"); D = a.newlabel("Lld")
    a(f"s_mov_b32 s{sCNT}, 0x400000")
    a.label(L)
    a(f"ds_read_b32 v{vtmp}, v{vaddr}")
    a("s_waitcnt lgkmcnt(0)")
    a(f"v_readfirstlane_b32 s{sT7}, v{vtmp}")
    a(f"s_cmp_ge_u32 s{sT7}, {target}")
    a(f"s_cbranch_scc1 {D}")
    a(f"s_sub_u32 s{sCNT}, s{sCNT}, 1")
    a(f"s_cbranch_scc0 {L}")
    a.label(D)

def div20(vq, vr_, vp):
    a(f"v_mul_u32_u24 v{vq}, 3277, v{vp}")
    a(f"v_lshrrev_b32 v{vq}, 16, v{vq}")
    a(f"v_mul_u32_u24 v{vr_}, 20, v{vq}")
    a(f"v_sub_u32 v{vr_}, v{vp}, v{vr_}")
for p in range(1000): assert (p * 3277) >> 16 == p // 20

SIZES = {SX: 2621440, SWQ: 2457600, SWO: 819200, SK: 2621440, SV: 2621440, SSK: 5120, SH: 2621440, SGW: 1280, SOUT: 2621440, SDBG: 256, SWS: WS_SIZE}
def srd_init(lst):
    for s in lst:
        a(f"s_mov_b32 s{s+2}, {SIZES[s]}")
        a(f"s_mov_b32 s{s+3}, 0x20000")
def ka_rest():
    if "ka1" not in EXP: return
    for s, off in ((SK, 32), (SV, 40), (SSK, 48), (SWS, 96), (SDBG, 88), (SH, 56), (SWO, 16), (SGW, 72), (SOUT, 80), (SD, 64)):
        a(f"s_load_dwordx2 {sr(s,2)}, s[0:1], {off}")
def common_scalars():
    a(f"s_mov_b32 s{sLOG}, 0x3fb8aa3b")
    a(f"s_mov_b32 s{sLOG+1}, 0x3fb8aa3b")
    a(f"s_mov_b32 s{sEPS}, 0x358637bd")
    a(f"s_mul_i32 s{sT0}, s{sCP}, {32-G0}")
    a(f"s_lshl_b32 s{sCI}, s{sRP}, 4")
    a(f"s_add_u32 s{sCI}, s{sCI}, s{sT0}")
    a(f"s_add_u32 s{sCI}, s{sCI}, s{sIDX}")
    a(f"s_sub_u32 s{sCI}, s{sCI}, s{sXCD}")

def entry():
    a.label("Lentry")
    a(f"s_cmp_ge_u32 s2, 256")
    a("s_cbranch_scc1 Lend")
    if DIAG: a(f"s_memrealtime {sr(sT6,2)}")
    a(f"s_getpc_b64 {sr(sT0,2)}")
    a.label("Lpcref")
    a(f"s_lshr_b32 s{sIDX}, s2, 3")
    a(f"s_mul_i32 s{sT2}, s{sIDX}, 9")
    a("v_min_u32 v1, 8, v0")
    a(f"v_add_lshl_u32 v1, v1, s{sT2}, 7")
    a("v_min_u32 v1, Lend-Lpcref, v1")
    if "nocpf" not in EXP: a(f"global_load_dword v255, v1, {sr(sT0,2)}")
    for s, off in ((SX, 0), (SWQ, 8), (SK, 32), (SV, 40), (SSK, 48), (SWS, 96), (SDBG, 88), (SH, 56), (SWO, 16), (SGW, 72), (SOUT, 80), (SD, 64)):
        if "ka1" in EXP and off >= 16: continue
        a(f"s_load_dwordx2 {sr(s,2)}, s[0:1], {off}")
    a("v_lshrrev_b32 v1, 6, v0")
    a(f"v_and_b32 v{vL}, 63, v0")
    a(f"v_readfirstlane_b32 s{sW}, v1")
    a("s_bitcmp1_b32 s2, 2")
    a(f"s_cselect_b32 s{sXCD}, {G1}, {G0}")
    a(f"s_and_b32 s{sRP}, s2, 3")
    a(f"s_bfe_u32 s{sCP}, s2, 0x10002")
    a(f"s_mov_b32 s{sBID}, s2")
    a(f"s_mov_b32 s{sTAG}, 1")
    a(f"s_and_b32 s{sT0}, s{sIDX}, 3")
    a(f"s_lshl_b32 s{sRB}, s{sRP}, 2")
    a(f"s_add_u32 s{sRB}, s{sRB}, s{sT0}")
    if DIAG:
        for i in range(16): a(f"s_mov_b32 s{STS+i}, 0")
        stamp(0)
        a(f"s_mov_b32 s{STS+10}, s{sT6}")
        a(f"s_memtime vcc")
        a("s_waitcnt lgkmcnt(0)")
        a(f"s_mov_b32 s{STS+14}, vcc_lo")
    a(f"s_cmp_ge_u32 s{sIDX}, s{sXCD}")
    a("s_cbranch_scc1 Lctype")
    a(f"s_cmp_lt_u32 s{sW}, 4")
    a("s_cbranch_scc1 Lawave")

def s3_setup(split=None):
    a.c("S3 setup")
    sR3, sC3 = sT2, sT3
    a(f"s_lshr_b32 s{sT0}, s{sIDX}, 1")
    a(f"s_lshl_b32 s{sR3}, s{sRP}, 4")
    a(f"s_add_u32 s{sR3}, s{sR3}, s{sT0}")
    a(f"s_and_b32 s{sT0}, s{sIDX}, 1")
    a(f"s_lshl_b32 s{sC3}, s{sCP}, 1")
    a(f"s_add_u32 s{sC3}, s{sC3}, s{sT0}")
    a(f"v_lshlrev_b32 v{vL16}, 4, v{vL}")
    a(f"v_mov_b32 v{vZ}, 0")
    a(f"v_lshrrev_b32 v24, 4, v{vL}")
    a(f"v_and_b32 v25, 3, v{vL}")
    a(f"v_bfe_u32 v26, v{vL}, 2, 2")
    a(f"s_and_b32 s{sT0}, s{sW}, 1")
    a(f"s_lshl_b32 s{sT1}, s{sT0}, 4")
    a("v_lshl_add_u32 v27, v24, 2, v25")
    a(f"v_add_u32 v27, s{sT1}, v27")
    a(f"v_mul_u32_u24 v{vOUT}, 1280, v27")
    a(f"v_lshl_add_u32 v{vOUT}, v26, 4, v{vOUT}")
    a(f"s_mul_i32 s{sXOFF}, s{sR3}, 40960")
    a(f"s_mul_i32 s{sT4}, s{sC3}, 320")
    a(f"s_add_u32 s{sYO}, s{sXOFF}, {WS_Y}")
    a(f"s_add_u32 s{sXOFF}, s{sXOFF}, s{sT4}")
    a(f"s_lshr_b32 s{sT4}, s{sW}, 1")
    a(f"s_lshl_b32 s{sT5}, s{sT4}, 6")
    a(f"s_add_u32 s{sXOFF}, s{sXOFF}, s{sT5}")
    a(f"s_lshl_b32 s{sT5}, s{sR3}, 7")
    a(f"s_add_u32 s{sT5}, s{sT5}, {WS_G}")
    a(f"v_lshlrev_b32 v{vGO}, 2, v27")
    a(f"v_add_u32 v{vGO}, s{sT5}, v{vGO}")
    a(f"v_bfe_u32 v{vPA}, v27, 1, 1")
    a(f"v_and_b32 v{vPB}, 1, v27")
    a(f"v_lshl_or_b32 v{vPA}, v{vPB}, 1, v{vPA}")
    a(f"v_and_or_b32 v{vPA}, v27, 4, v{vPA}")
    a(f"v_lshlrev_b32 v{vPB}, 1, v26")
    a(f"v_xor_b32 v{vPA}, v{vPA}, v{vPB}")
    a(f"v_lshlrev_b32 v{vPA}, 4, v{vPA}")
    a(f"v_lshl_add_u32 v{vPA}, v27, 7, v{vPA}")
    a(f"s_mul_i32 s{sT5}, s{sT4}, 12288")
    a(f"s_add_u32 s{sT5}, s{sT5}, {L_PART}")
    a(f"v_add_u32 v{vPA}, s{sT5}, v{vPA}")
    a(f"v_xor_b32 v{vPB}, 16, v{vPA}")
    a(f"v_lshl_add_u32 v{vYT}, v25, 3, v26")
    a(f"v_lshlrev_b32 v{vYT}, 6, v{vYT}")
    a(f"v_lshl_add_u32 v{vYT}, v24, 3, v{vYT}")
    a(f"s_lshl_b32 s{sT4}, s{sT4}, 11")
    a(f"s_lshl_b32 s{sT1}, s{sT1}, 1")
    a(f"s_add_u32 s{sT4}, s{sT4}, s{sT1}")
    a(f"s_add_u32 s{sT4}, s{sT4}, {L_YT}")
    a(f"v_add_u32 v{vYT}, s{sT4}, v{vYT}")
    if split: split(0)
    a(f"v_and_b32 v24, 31, v{vL}")
    a(f"v_lshrrev_b32 v25, 5, v{vL}")
    a(f"v_bfe_u32 v{vPW}, v24, 1, 1")
    a("v_and_b32 v26, 1, v24")
    a(f"v_lshl_or_b32 v{vPW}, v26, 1, v{vPW}")
    a(f"v_and_or_b32 v{vPW}, v24, 4, v{vPW}")
    a(f"v_xor_b32 v{vPW}, v{vPW}, v25")
    a(f"v_lshlrev_b32 v{vPW}, 4, v{vPW}")
    a(f"v_lshl_add_u32 v{vPW}, v24, 7, v{vPW}")
    a(f"s_lshl_b32 s{sT4}, s{sT0}, 12")
    a(f"s_add_u32 s{sT5}, s{sT5}, s{sT4}")
    a(f"v_add_u32 v{vPW}, s{sT5}, v{vPW}")
    for q in range(1, 4): a(f"v_xor_b32 v{vPW+q}, {32*q}, v{vPW}")
    a(f"s_mul_i32 s{sT4}, s{sW}, 12288")
    a(f"s_add_u32 s{sT4}, s{sT4}, {L_PART+8192}")
    a(f"s_lshl_b32 s{sT1}, s{sW}, 12")
    a(f"s_add_u32 s{sT1}, s{sT1}, {L_PART+49152-16384}")
    a(f"s_cmp_lt_u32 s{sW}, 4")
    a(f"s_cselect_b32 s{sT4}, s{sT4}, s{sT1}")
    a(f"s_sub_u32 s{sRD}, s{sT4}, s{sT5}")
    a(f"s_sub_u32 s{sT1}, s{sW}, 4")
    a(f"s_cmp_lt_u32 s{sW}, 4")
    a(f"s_cselect_b32 s{sT1}, 3, s{sT1}")
    a(f"s_mul_i32 s{sT1}, s{sT1}, {10*1024}")
    a(f"s_add_u32 s{sT1}, s{sT1}, {L_OFR}")
    a(f"v_add_u32 v{vRR}, s{sT1}, v{vL16}")
    a(f"s_mul_i32 s{sT1}, s{sT0}, {15*1024}")
    a(f"s_add_u32 s{sT1}, s{sT1}, {L_OFR}")
    a(f"v_add_u32 v{vPR}, s{sT1}, v{vL16}")
    a(f"s_mul_i32 s{sT1}, s{sW}, 5120")
    a(f"s_add_u32 s{sT4}, s{sT1}, {L_OFR}")
    a(f"v_add_u32 v{vOW}, s{sT4}, v{vL16}")
    a(f"s_add_u32 s{sPQO}, s{sYO}, s{sT1}")
    a(f"s_add_u32 s{sPQO}, s{sPQO}, {(WS_PQ-WS_Y)&0xffffffff}")
    if split: split(1)
    a("v_mul_u32_u24 v25, 336, v25")
    a("v_min_u32 v26, 20, v24")
    a("v_lshl_add_u32 v26, v26, 4, v25")
    a("v_lshrrev_b32 v27, 2, v24")
    a(f"v_mov_b32 v{vFT}, 0x7f000000")
    a("v_cmp_eq_u32 vcc, 5, v27")
    a(f"v_subrev_u32 v{vKO}, 4, v24")
    a(f"v_lshl_add_u32 v{vKO}, v{vKO}, 4, v25")
    a(f"v_cndmask_b32 v{vKE}, v26, v{vFT}, vcc")
    a(f"v_cndmask_b32 v{vKO}, v26, v{vKO}, vcc")
    a("v_cmp_eq_u32 vcc, 4, v27")
    a(f"s_mul_i32 s{sKVO}, s{sW}, {4*KVH}")
    a(f"s_add_u32 s{sKVO}, s{sKVO}, {WS_KV}")
    a(f"v_cndmask_b32 v{vKO}, v{vKO}, v{vFT}, vcc")
    a(f"s_lshl_b32 s{sT1}, s{sW}, 8")
    a(f"s_add_u32 s{sT1}, s{sT1}, {WS_FK}")
    a(f"v_mov_b32 v{vFK}, s{sT1}")
    a(f"s_lshr_b32 s{sT1}, s{sR3}, 1")
    a(f"s_lshl_b32 s{sT1}, s{sT1}, 3")
    a(f"s_add_u32 s{sT1}, s{sT1}, s{sW}")
    a(f"s_lshl_b32 s{sT1}, s{sT1}, 8")
    a(f"s_add_u32 s{sT1}, s{sT1}, {WS_FQ}")
    a(f"v_mov_b32 v{vFQ}, s{sT1}")
    a(f"v_writelane_b32 v{vFK}, s{sT1}, 0")
    a(f"s_lshr_b32 s{sT1}, s{sR3}, 3")
    a(f"s_add_u32 s{sT1}, s{sT1}, 2")
    a(f"s_bfe_u32 s{sT1}, s{sT1}, 0x10002")
    a(f"s_mul_i32 s{sT1}, s{sT1}, 20")
    a(f"s_mul_i32 s{sT4}, s{sC3}, 5")
    a(f"s_min_u32 s{sT5}, s{sW}, 4")
    a(f"s_add_u32 s{sT4}, s{sT4}, s{sT5}")
    a(f"s_add_u32 s{sT1}, s{sT1}, s{sT4}")
    a(f"s_lshl_b32 s{sT1}, s{sT1}, 8")
    a(f"s_add_u32 s{sT1}, s{sT1}, {WS_FY}")
    a(f"v_mov_b32 v{vFY}, s{sT1}")
    a(f"s_lshl_b32 s{sT4}, s{sT4}, 11")
    a(f"s_add_u32 s{sYO}, s{sYO}, s{sT4}")
    a(f"s_lshl_b32 s{sYM}, s{sT5}, 11")
    a(f"s_add_u32 s{sYM}, s{sYM}, {L_YT}")

def x_loads():
    a(f"buffer_load_dwordx4 {vr(vXD,4)}, v{vOUT}, {srd(SX)}, s{sXOFF} offen")
    a(f"s_cmp_lt_u32 s{sW}, 2")
    a("s_cselect_b64 exec, -1, 1")
    a(f"buffer_load_dwordx4 {vr(vXD2,4)}, v{vOUT}, {srd(SX)}, s{sXOFF} offen offset:256")
    a("s_mov_b64 exec, -1")

def wo_prep(vtmp):
    a(f"s_and_b32 s{sT4}, s{sIDX}, 1")
    a(f"s_lshl_b32 s{sT5}, s{sCP}, 1")
    a(f"s_add_u32 s{sT4}, s{sT4}, s{sT5}")
    a(f"s_lshl_b32 s{sT4}, s{sT4}, 3")
    a(f"s_add_u32 s{sT4}, s{sT4}, s{sW}")
    a(f"s_mul_i32 s{sT4}, s{sT4}, 25600")
    a(f"s_add_u32 s{sWOO}, s{sT4}, {WS_WOP}")
    a(f"v_lshlrev_b32 v{vtmp}, 4, v{vL}")
def wo_list(vtmp, order=None):
    out = []
    for i in range(25):
        t = f"buffer_load_dwordx4 {vr(VWO+4*i,4)}, v{vtmp}, {srd(SWS)}, s{sWOO} offen offset:{1024*(i&3)} sc1"
        if (i & 3) == 3: t += f"\ns_add_u32 s{sWOO}, s{sWOO}, 4096"
        out.append(t)
    return out

S0B = 156
def s0_task(st):
    a(f"s_mul_i32 s{sTB}, s{st}, 6554")
    a(f"s_lshr_b32 s{sTB}, s{sTB}, 16")
    a(f"s_mul_i32 s{sCHB}, s{sTB}, 10")
    a(f"s_sub_u32 s{sCHB}, s{st}, s{sCHB}")
for t in range(640): assert (t * 6554) >> 16 == t // 10

def s0_loads(LB=None, init=True):
    a.c("S0 loads")
    B = S0B
    a(f"v_lshrrev_b32 v{B+1}, 3, v{vL}")
    a(f"v_and_b32 v{B+2}, 7, v{vL}")
    a(f"v_mul_u32_u24 v{B+3}, 5120, v{B+1}")
    a(f"v_lshl_add_u32 v{B+3}, v{B+2}, 4, v{B+3}")
    a(f"s_mul_i32 s{sT0}, s{sTB}, 40960")
    a(f"s_lshl_b32 s{sT1}, s{sCHB}, 7")
    a(f"s_add_u32 s{sT0}, s{sT0}, s{sT1}")
    a(f"v_add_u32 v{B+64}, s{sT0}, v{B+3}")
    a(f"v_subrev_u32 v{B+65}, 3840, v{B+64}")
    a(f"v_lshlrev_b32 v{B+66}, 6, v{B+2}")
    a(f"s_lshl_b32 s{sT1}, s{sCHB}, 9")
    if init:
        srd_init([SK, SV, SSK])
        a("s_waitcnt lgkmcnt(0)")
    LB = LB or B
    for i in range(4): a(f"buffer_load_dwordx4 {vr(LB+16+4*i,4)}, v{B+64}, {srd(SK)}, 0 offen offset:{1280*i}")
    for i in range(3): a(f"buffer_load_dwordx4 {vr(LB+4+4*i,4)}, v{B+65}, {srd(SK)}, 0 offen offset:{1280*i}")
    for i in range(4): a(f"buffer_load_dwordx4 {vr(LB+32+4*i,4)}, v{B+64}, {srd(SV)}, 0 offen offset:{1280*i}")
    for i in range(4): a(f"buffer_load_dwordx4 {vr(LB+48+4*i,4)}, v{B+66}, {srd(SSK)}, s{sT1} offen offset:{16*i}")

def s0_addr(s_scr):
    B = S0B
    a(f"v_mul_u32_u24 v{B+67}, 576, v{B+1}")
    a(f"v_lshl_add_u32 v{B+67}, v{B+2}, 4, v{B+67}")
    a(f"v_add_u32 v{B+67}, s{s_scr}, v{B+67}")
    a(f"v_and_b32 v{B+68}, 15, v{vL}")
    a(f"v_mul_u32_u24 v{B+69}, 144, v{B+68}")
    a(f"v_lshrrev_b32 v{B+70}, 4, v{vL}")
    a(f"v_lshl_add_u32 v{B+69}, v{B+70}, 3, v{B+69}")
    a(f"v_add_u32 v{B+69}, s{s_scr}, v{B+69}")
    a(f"s_and_b32 s{sT0}, s{sTB}, 3")
    a(f"v_xor_b32 v{B+68}, s{sT0}, v{B+68}")
    a(f"v_lshlrev_b32 v{B+68}, 4, v{B+68}")
    a(f"v_lshl_add_u32 v{B+68}, v{B+70}, 14, v{B+68}")
    a(f"s_lshl_b32 s{sT0}, s{sCHB}, 18")
    a(f"s_lshl_b32 s{sT1}, s{sTB}, 8")
    a(f"s_add_u32 s{sT0}, s{sT0}, s{sT1}")
    if WOFF: a(f"s_add_u32 s{sT0}, s{sT0}, {WOFF}")
    a(f"s_mov_b32 s{sT1}, 0xffff0000")

def s0_compute(split=None, pk=True, LB=None):
    a.c("S0 compute")
    B = S0B
    LB = LB or B
    KF, VF, WF, AC, UO = 112, 126, 134, B + 88, B + 72
    for p in range(4):
        for cc in range(2):
            c = 2 * p + cc
            for h in range(2):
                a(f"v_lshlrev_b32 v{WF+4*h+cc}, 16, v{LB+48+2*c+h}")
                a(f"v_and_b32 v{WF+4*h+2+cc}, s{sT1}, v{LB+48+2*c+h}")
        for r in range(7):
            a(f"v_lshlrev_b32 v{KF+2*r}, 16, v{LB+4+4*r+p}")
            a(f"v_and_b32 v{KF+2*r+1}, s{sT1}, v{LB+4+4*r+p}")
        for r in range(4):
            a(f"v_lshlrev_b32 v{VF+2*r}, 16, v{LB+32+4*r+p}")
            a(f"v_and_b32 v{VF+2*r+1}, s{sT1}, v{LB+32+4*r+p}")
        if pk:
            for i in range(4): a(f"v_pk_mul_f32 {vr(AC+2*i,2)}, {vr(KF+2*(i+3),2)}, {vr(WF,2)}")
            for d in range(1, 4):
                for i in range(4): a(f"v_pk_fma_f32 {vr(AC+2*i,2)}, {vr(KF+2*(i+3-d),2)}, {vr(WF+2*d,2)}, {vr(AC+2*i,2)}")
            for i in range(4): a(f"v_pk_mul_f32 {vr(AC+2*i,2)}, {vr(AC+2*i,2)}, {vr(VF+2*i,2)}")
        else:
            for i in range(8): a(f"v_mul_f32 v{AC+i}, v{KF+6+i}, v{WF+(i&1)}")
            for d in range(1, 4):
                for i in range(8): a(f"v_fmac_f32 v{AC+i}, v{KF+6+i-2*d}, v{WF+2*d+(i&1)}")
            for i in range(8): a(f"v_mul_f32 v{AC+i}, v{AC+i}, v{VF+i}")
        for i in range(4): a(f"v_cvt_pk_bf16_f32 v{UO+4*i+p}, v{AC+2*i}, v{AC+2*i+1}")
        if split: split(p)
    for i in range(4): a(f"ds_write_b128 v{B+67}, {vr(UO+4*i,4)} offset:{144*i}")
    for j in range(4):
        a(f"ds_read_b64_tr_b16 {vr(LB+4+4*j,2)}, v{B+69} offset:{32*j}")
        a(f"ds_read_b64_tr_b16 {vr(LB+6+4*j,2)}, v{B+69} offset:{32*j+2304}")
    for j in range(4):
        a(f"s_waitcnt lgkmcnt({6-2*j})")
        a(f"buffer_store_dwordx4 {vr(LB+4+4*j,4)}, v{B+68}, {srd(SWS)}, s{sT0} offen sc1")
        if j < 3: a(f"s_add_u32 s{sT0}, s{sT0}, 65536")

def f0_off(sd):
    a(f"s_lshl_b32 s{sd}, s{sCHB}, 8")
    a(f"s_add_u32 s{sd}, s{sd}, {WS_F0}")

ACC = 32
FB = [112, 156]
vX0, vX1, vWA, vWX = 148, 149, 150, 154
vA1, vA2, vC16, vG4 = 16, 17, 18, 19
sC, sSL = sT2, sT3

def a_setup():
    a.c("A-wave address setup")
    a(f"s_and_b32 s{sT0}, s{sW}, 1")
    a(f"s_lshr_b32 s{sT1}, s{sW}, 1")
    a(f"v_and_b32 v{vC16}, 15, v{vL}")
    a(f"v_lshrrev_b32 v{vG4}, 4, v{vL}")
    a(f"v_lshrrev_b32 v8, 1, v{vC16}")
    a(f"v_xor_b32 v8, v{vG4}, v8")
    a(f"v_lshlrev_b32 v8, 4, v8")
    a(f"v_lshl_add_u32 v8, v{vC16}, 7, v8")
    a(f"s_lshl_b32 s{sT4}, s{sT1}, 13")
    a(f"v_add_u32 v{vX0}, s{sT4}, v8")
    a(f"v_xor_b32 v{vX1}, 64, v{vX0}")
    a(f"v_bfe_u32 v8, v{vL}, 2, 2")
    a(f"v_lshl_add_u32 v9, v{vG4}, 3, v8")
    a(f"v_and_b32 v10, 1, v{vG4}")
    a(f"v_xor_b32 v10, s{sT0}, v10")
    a(f"v_and_b32 v11, 3, v{vL}")
    a("v_lshlrev_b32 v11, 3, v11")
    a(f"v_lshl_add_u32 v{vWX}, v9, 6, v11")
    a(f"v_lshl_add_u32 v{vWX}, v10, 5, v{vWX}")
    a(f"v_add_u32 v{vWX}, 32768, v{vWX}")
    a("v_lshl_or_b32 v8, v10, 2, v8")
    a("v_lshl_add_u32 v8, v8, 5, v11")
    a("v_lshl_add_u32 v8, v9, 8, v8")
    a(f"v_add_u32 v{vWA}, 16384, v8")
    for tt in range(1, 4): a(f"v_xor_b32 v{vWA+tt}, {32*tt}, v{vWA}")

def a_reads(buf, ks):
    b = FB[buf]
    xs = [f"ds_read_b128 {vr(b+4*rt,4)}, v{vX1 if ks else vX0} offset:{2048*rt}" for rt in range(4)]
    ws = []
    for tt in range(5):
        for sec in range(2):
            if tt < 4: ws.append(f"ds_read_b64_tr_b16 {vr(b+16+4*tt+2*sec,2)}, v{vWA+tt} offset:{ks*8192+sec*1024}")
            else: ws.append(f"ds_read_b64_tr_b16 {vr(b+16+4*tt+2*sec,2)}, v{vWX} offset:{ks*2048+sec*256}")
    return [xs[0], ws[0], ws[1], xs[1], ws[2], ws[3], xs[2], ws[4], ws[5], xs[3]] + ws[6:]

def acc(rt, tt): return ACC + 4 * (rt * 5 + tt)

def a_mfmas(buf, qtype, order=None):
    b = FB[buf]
    out = []
    for (rt, tt) in (order or [(rt, tt) for tt in range(5) for rt in range(4)]):
        d = vr(acc(rt, tt), 4)
        xf = vr(b + 4 * rt, 4); wf = vr(b + 16 + 4 * tt, 4)
        A, B = (wf, xf) if qtype else (xf, wf)
        out.append(f"v_mfma_f32_16x16x32_bf16 {d}, {A}, {B}, {d}")
    return out

def interleave(mf, rd):
    j = 0
    for i, m in enumerate(mf):
        a(m)
        if j < len(rd): a(rd[j]); j += 1
    while j < len(rd): a(rd[j]); j += 1

def a_mainloop(qtype):
    t = "q" if qtype else "k"
    a.c("A main loop")
    a(f"s_mov_b32 s{sC}, 0")
    a(f"s_mov_b32 s{sSL}, 0")
    a(f"s_mov_b32 s{sT6}, {1<<10}")
    if qtype:
        a(f"s_cmp_lt_u32 s{sW}, {NQ}")
        a(f"s_cselect_b32 s{sT6}, {(1<<10)|(1<<1)|(1<<3)}, s{sT6}")
    if "noprio" not in EXP: a("s_setprio 2")
    a("s_waitcnt lgkmcnt(0)")
    if "ast" in EXP: stamp(1, True)
    a("s_barrier")
    stamp(1)
    for r in a_reads(0, 0): a(r)
    book = [
        f"s_add_u32 s{sSL}, s{sSL}, 1\ns_cmp_eq_u32 s{sSL}, 3",
        f"s_mov_b32 s{sT4}, {SLOT}",
        f"s_cselect_b32 s{sT4}, {-2*SLOT & 0xffffffff}, s{sT4}",
        f"s_cselect_b32 s{sSL}, 0, s{sSL}\ns_add_u32 s{sC}, s{sC}, 1",
    ]
    src_ = f"s{sT4}"
    rd = a_reads(1, 1)
    seq = []
    for i, r in enumerate(rd): seq.append(r + ("\n" + book[i - 2] if 2 <= i < 6 else ""))
    seq += [f"v_add_u32 v{vX0}, {src_}, v{vX0}\nv_add_u32 v{vX1}, {src_}, v{vX1}",
            f"v_add_u32 v{vWA}, {src_}, v{vWA}\nv_add_u32 v{vWA+1}, {src_}, v{vWA+1}",
            f"v_add_u32 v{vWA+2}, {src_}, v{vWA+2}\nv_add_u32 v{vWA+3}, {src_}, v{vWA+3}",
            f"v_add_u32 v{vWX}, {src_}, v{vWX}\ns_bitcmp1_b32 s{sT6}, s{sC}"]
    a(".p2align 3")
    a.label(f"Lml{t}")
    a("s_waitcnt lgkmcnt(0)")
    interleave(a_mfmas(0, qtype), seq)
    a("s_waitcnt lgkmcnt(0)")
    a(f"s_cbranch_scc1 Lhook{t}")
    a.label(f"Lhookd{t}")
    if "ast" in EXP:
        a("s_memrealtime vcc")
        a("s_waitcnt lgkmcnt(0)")
        a(f"s_mov_b32 m0, s{sC}")
        a("v_writelane_b32 v29, vcc_lo, m0")
    a("s_barrier")
    interleave(a_mfmas(1, qtype), a_reads(0, 0))
    a(f"s_branch Lml{t}")
    a.label(f"Lhook{t}")
    if qtype:
        a(f"s_cmp_eq_u32 s{sC}, 10")
        a(f"s_cbranch_scc1 Lmx{t}")
        N2 = a.newlabel("Lhk")
        a(f"s_cmp_lg_u32 s{sC}, 1")
        a(f"s_cbranch_scc1 {N2}")
        a("s_waitcnt vmcnt(0)")
        darr_issue(24, 25, 0)
        a(f"s_branch Lhookd{t}")
        a.label(N2)
        darr_finish(24, 25, 0, NU)
        a(f"s_branch Lhookd{t}")
        a.label(f"Lmx{t}")
    if "ast" in EXP:
        for c in range(1, 9): a(f"v_readlane_b32 s{STS+1+c}, v29, {c}")

def acc_zero():
    for i in range(80): a(f"v_mov_b32 v{ACC+i}, 0")

def phi_list(regs, tmp, pk=False):
    out = []
    B = 4
    for i in range(0, len(regs), B):
        batch = regs[i:i + B]
        for j, r in enumerate(batch):
            if pk:
                out.append(f"v_pk_mul_f32 {vr(tmp+2*j,2)}, {vr(r,2)}, {sr(sLOG,2)}"); continue
            out.append(f"v_mul_f32 v{tmp+2*j}, s{sLOG}, v{r}")
            out.append(f"v_mul_f32 v{tmp+2*j+1}, s{sLOG}, v{r+1}")
        for j, r in enumerate(batch):
            out.append(f"v_exp_f32_e64 v{tmp+2*j}, v{tmp+2*j} clamp")
            out.append(f"v_exp_f32_e64 v{tmp+2*j+1}, v{tmp+2*j+1} clamp")
        for j, r in enumerate(batch):
            out.append(f"v_max_f32 v{r}, s{sEPS}, v{r}")
            out.append(f"v_max_f32 v{r+1}, s{sEPS}, v{r+1}")
        for j, r in enumerate(batch):
            if pk:
                out.append(f"v_pk_add_f32 {vr(r,2)}, {vr(r,2)}, {vr(tmp+2*j,2)}"); continue
            out.append(f"v_add_f32 v{r}, v{r}, v{tmp+2*j}")
            out.append(f"v_add_f32 v{r+1}, v{r+1}, v{tmp+2*j+1}")
    return out

def sprinkle(main, extra, every, start=0):
    j = 0
    for i, m in enumerate(main):
        a(m)
        if i >= start and (i - start) % every == every - 1 and j < len(extra):
            a(extra[j]); j += 1
    return extra[j:]

def fc_addr(v):
    a(f"v_and_b32 v{v}, 7, v{vL}")
    a(f"v_lshlrev_b32 v{v}, 8, v{v}")
    a(f"v_add_u32 v{v}, {WS_FC}, v{v}")
def f0_addr(v):
    a(f"s_lshr_b32 s{sT4}, s{sQUAD}, 4")
    a(f"s_lshl_b32 s{sT4}, s{sT4}, 8")
    a(f"s_add_u32 s{sT4}, s{sT4}, {WS_F0}")
    a(f"v_mov_b32 v{v}, s{sT4}")

def awave():
    a.label("Lawave")
    ka_rest()
    a(f"s_cmp_ge_u32 s{sIDX}, 16")
    a("s_cbranch_scc1 Lqa")
    srd_init([SWS, SDBG])
    common_scalars()
    srd_init([SX, SOUT])
    acc_zero()

def kva():
    a(f"s_lshr_b32 s{sT0}, s{sIDX}, 2")
    a(f"s_lshl_b32 s{sCG}, s{sCP}, 2")
    a(f"s_add_u32 s{sCG}, s{sCG}, s{sT0}")
    a_setup()
    a(f"s_mul_i32 s{sT4}, s{sW}, 3584")
    a(f"s_add_u32 s{sT4}, s{sT4}, {L_KVS}")
    a(f"v_mul_u32_u24 v8, 336, v{vG4}")
    a(f"v_add_u32 v8, s{sT4}, v8")
    a(f"v_lshl_add_u32 v{vA1}, v{vC16}, 4, v8")
    a(f"v_add_u32 v9, 8, v{vC16}")
    a(f"v_subrev_u32 v10, 12, v{vC16}")
    a(f"v_cmp_lt_u32 vcc, 11, v{vC16}")
    a("v_cndmask_b32 v9, v9, v10, vcc")
    a(f"v_cmp_eq_u32 vcc, 0, v{vC16}")
    a("v_mov_b32 v10, 20")
    a("v_cndmask_b32 v9, v9, v10, vcc")
    a(f"v_lshl_add_u32 v{vA2}, v9, 4, v8")
    a(f"s_lshl_b32 s{sT4}, s{sT0}, 2")
    a(f"s_add_u32 s{sT4}, s{sT4}, {L_CNT}")
    a(f"v_mov_b32 v20, s{sT4}")
    a(f"s_mul_i32 s{sT4}, s{sT0}, 3584")
    a(f"s_mul_i32 s{sT5}, s{sT1}, {KVH}")
    a(f"s_add_u32 s{sT4}, s{sT4}, s{sT5}")
    a(f"v_lshlrev_b32 v21, 2, v{vL}")
    a(f"s_add_u32 s{sT5}, s{sT4}, {L_KVS}")
    a(f"v_add_u32 v22, s{sT5}, v21")
    a(f"s_mul_i32 s{sT5}, s{sCG}, {4*KVH}")
    a(f"s_add_u32 s{sT4}, s{sT4}, s{sT5}")
    a(f"s_add_u32 s{sCH}, s{sT4}, {WS_KV}")
    a("v_mov_b32 v23, 0x3f803f80")
    a(f"s_lshl_b32 s{sLC}, s{sCG}, 8")
    a(f"s_add_u32 s{sLC}, s{sLC}, {WS_FK}")
    wo_prep(28)
    a_mainloop(False)
    a.c("KV epilogue")
    order = [(rt, tt) for tt in (4, 0, 2, 1, 3) for rt in range(4)]
    mf = a_mfmas(1, False, order)
    for m in mf[:8]: a(m)
    XP = 112
    TM = 12
    TM = 8
    a(f"v_cmp_gt_u32 vcc, 8, v{vC16}")
    def pairs(tt): return sum([[acc(rt, tt), acc(rt, tt) + 2] for rt in range(4)], [])
    def cvts(tt): return [f"v_cvt_pk_bf16_f32 v{acc(rt&2,tt)+2*(rt&1)+h}, v{acc(rt,tt)+2*h}, v{acc(rt,tt)+2*h+1}" for rt in range(4) for h in range(2)]
    L = []
    for rt in range(4):
        for h in range(2): L.append(f"v_cvt_pk_bf16_f32 v{XP+2*rt+h}, v{acc(rt,4)+2*h}, v{acc(rt,4)+2*h+1}")
    for j in range(8): L.append(f"v_cndmask_b32 v{XP+j}, v{XP+j}, v23, vcc")
    L += phi_list(pairs(4)[:4], TM, False)
    for i, m in enumerate(mf[8:]):
        a(m)
        for x in L[2 * i:2 * i + 2]: a(x)
    L = L[24:]
    stamp(2)
    pk = "nopk" not in EXP
    L += phi_list(pairs(4)[4:], TM, pk) + cvts(4) + phi_list(pairs(0), TM, pk) + cvts(0) + cvts(2) + cvts(3)
    if "aspr" in EXP: assert not sprinkle(L, wo_list(28), len(L) // 25)
    else:
        for x in L: a(x)
    def fr(t, p): return XP + 4 * p if t == 5 else acc(2 * p, t)
    prods = [(0, 2), (0, 5), (4, 2), (4, 5), (1, 3), (1, 5), (4, 3)]
    PD = 120
    def pm(lst):
        for p in range(2):
            for i in lst:
                ta, tb = prods[i]
                d = vr(PD + 4 * i, 4)
                a(f"v_mfma_f32_16x16x32_bf16 {d}, {vr(fr(ta,p),4)}, {vr(fr(tb,p),4)}, {'0' if p==0 else d}")
    def wr(i, va, off, mlo, mhi):
        t = ""
        if mlo != -1: t += f"s_mov_b32 exec_lo, {mlo}\ns_mov_b32 exec_hi, {mhi}\n"
        t += f"ds_write_b128 v{va}, {vr(PD+4*i,4)} offset:{off}"
        if mlo != -1: t += "\ns_mov_b64 exec, -1"
        return t
    pm([0, 1, 2, 3, 6])
    W1 = [wr(0, vA1, 0, -1, -1), wr(1, vA2, 0, 0x0f010f01, 0x0f010f01), wr(2, vA1, 4 * 336, 0xffff, 0),
          wr(3, vA2, 4 * 336, 0x0f01, 0), wr(3, vA2, KVH - 336, 0xf0010000, 0), wr(6, vA1, KVH + 64 - 336, 0xffff0000, 0)]
    rest = sprinkle(phi_list(pairs(1)[:4], TM, False) + phi_list(pairs(1)[4:], TM, pk) + cvts(1), W1, 8, 6)
    assert not rest
    pm([4, 5])
    a(wr(4, vA1, KVH + 336 + 64, -1, -1))
    a(wr(5, vA2, KVH + 336, 0xf001f001, 0xf001f001))
    if "econv" in EXP:
        lds_arrive(20, 24)
        lds_wait(20, 24, 2 + 4 * 256)
    else:
        a("s_waitcnt lgkmcnt(0)")
        a("s_barrier")
    for i in range(7):
        a(f"ds_read_b32 v{32+i}, v22 offset:{256*i}")
        a(f"ds_read_b32 v{40+i}, v22 offset:{256*i+7168}")
    stamp(3)
    for i in range(7):
        a(f"s_waitcnt lgkmcnt({12-2*i})")
        a(f"v_add_f32 v{32+i}, v{32+i}, v{40+i}")
        a(f"buffer_atomic_add_f32 v{32+i}, v21, {srd(SWS)}, s{sCH} offen offset:{256*i}")
    arr_prep(48, 49)
    s3_setup()
    a("s_waitcnt vmcnt(0)")
    arr_issue(48, 49, f"s{sLC}")
    arr_finish(48, 49, f"s{sLC}", 64, 0)
    a("s_setprio 0")
    stamp(4)
    a("s_branch Ls3x" if "aspr" in EXP else "s_branch Ls3")

def qa():
    a.label("Lqa")
    common_scalars()
    a(f"s_cmp_ge_u32 s{sW}, {NQ}")
    a("s_cbranch_scc1 Lq1")
    a(f"s_mov_b32 s{sTB}, s{sCI}")
    a(f"s_add_u32 s{sCHB}, s{sW}, {10-NQ}")
    s0_loads()
    a.label("Lq1")
    if "qpf" in EXP:
        a(f"v_min_u32 v1, 34, v{vL}")
        a("v_mul_u32_u24 v1, 1280, v1")
        a(f"s_mul_i32 s{sT0}, s{sCI}, 40960")
        a(f"s_lshl_b32 s{sT1}, s{sW}, 7")
        a(f"s_add_u32 s{sT0}, s{sT0}, s{sT1}")
        a(f"s_add_u32 s{sT0}, s{sT0}, 768")
        a(f"v_add_u32 v2, s{sT0}, v1")
        a("v_subrev_u32 v1, 3840, v2")
        srd_init([SK, SV])
        a("s_waitcnt lgkmcnt(0)")
        a(f"buffer_load_dword v250, v1, {srd(SK)}, 0 offen")
        a("s_mov_b32 exec_hi, 0")
        a(f"buffer_load_dword v251, v2, {srd(SV)}, 0 offen")
        a("s_mov_b32 exec_hi, -1")
    srd_init([SWS, SDBG, SX, SOUT])
    acc_zero()
    a(f"s_bfe_u32 s{sT0}, s{sIDX}, 0x20002")
    a(f"s_mul_i32 s{sCG}, s{sCP}, {Q0}")
    a(f"s_add_u32 s{sCG}, s{sCG}, s{sT0}")
    a_setup()
    a(f"v_lshrrev_b32 v8, 1, v{vG4}")
    a(f"v_and_b32 v9, 1, v{vG4}")
    a(f"v_lshlrev_b32 v20, 4, v{vC16}")
    a("v_lshl_add_u32 v20, v9, 9, v20")
    a("v_lshl_add_u32 v21, v8, 3, v20")
    a("v_add_u32 v21, 4096, v21")
    a("v_lshl_add_u32 v20, v8, 10, v20")
    a(f"s_lshl_b32 s{sT4}, s{sRB}, 1")
    a(f"s_add_u32 s{sT4}, s{sT4}, s{sT1}")
    a(f"s_lshl_b32 s{sT5}, s{sCG}, 1")
    a(f"s_add_u32 s{sT5}, s{sT5}, s{sT0}")
    a(f"s_mul_i32 s{sT0}, s{sT4}, {80*1024}")
    a(f"s_mul_i32 s{sT1}, s{sT5}, {5*1024}")
    a(f"s_add_u32 s{sT0}, s{sT0}, s{sT1}")
    a(f"s_add_u32 s{sCH}, s{sT0}, {WS_PQ}")
    a(f"s_add_u32 s{sVAR}, s{sCH}, {40*1024}")
    a(f"s_lshl_b32 s{sT4}, s{sT4}, 3")
    a(f"s_add_u32 s{sT4}, s{sT4}, s{sT5}")
    a(f"s_lshl_b32 s{sT4}, s{sT4}, 8")
    a(f"s_add_u32 s{sLC}, s{sT4}, {WS_FQ}")
    wo_prep(28)
    a("v_mov_b32 v24, 0")
    a(f"s_cmp_ge_u32 s{sW}, {NQ}")
    a("s_cbranch_scc1 Lq2")
    a(f"s_mul_i32 s{sT2}, s{sW}, 4608")
    a(f"s_add_u32 s{sT2}, s{sT2}, {2*SLOT}")
    s0_addr(sT2)
    a("s_waitcnt vmcnt(0)")
    stamp(11)
    s0_compute()
    stamp(12)
    a.label("Lq2")
    a_mainloop(True)
    a.c("Q epilogue")
    order = [(rt, tt) for rt in range(4) for tt in range(5)]
    mf = a_mfmas(1, True, order)
    for m in mf[:9]: a(m)
    L = []
    for rt in range(4):
        regs = []
        for tt in range(5): regs += [acc(rt, tt), acc(rt, tt) + 2]
        L += phi_list(regs, 112, rt > 0 and "nopk" not in EXP)
        O = acc(rt, 0)
        for tt in range(5):
            for h in range(2): L.append(f"v_cvt_pk_bf16_f32 v{O+2*tt+h}, v{acc(rt,tt)+2*h}, v{acc(rt,tt)+2*h+1}")
        so = f"s{sVAR if rt>>1 else sCH}"
        for p in range(2):
            L.append(f"buffer_store_dwordx4 {vr(O+4*p,4)}, v20, {srd(SWS)}, {so} offen offset:{256*(rt&1)+2048*p} sc1")
        L.append(f"buffer_store_dwordx2 {vr(O+8,2)}, v21, {srd(SWS)}, {so} offen offset:{256*(rt&1)} sc1")
    for i, m in enumerate(mf[9:]):
        a(m)
        for x in L[2 * i:2 * i + 2]: a(x)
    L = L[22:]
    stamp(2)
    if "aspr" in EXP: assert not sprinkle(L, wo_list(28), 8)
    else:
        for x in L: a(x)
    stamp(3)
    a("s_barrier")
    a("s_waitcnt vmcnt(0)")
    flag_store(120, 121, f"s{sLC}")
    s3_setup()
    a("s_setprio 0")
    stamp(4)
    a("s_branch Ls3x" if "aspr" in EXP else "s_branch Ls3")

def h_dma(sj, sch0):
    a(f"s_lshr_b32 s{sT4}, s{sj}, 1")
    a(f"s_and_b32 s{sT5}, s{sj}, 1")
    a(f"s_lshl_b32 s{sT5}, s{sT5}, 11")
    a(f"s_add_u32 s{sT6}, s{sch0}, s{sT4}")
    a(f"s_lshl_b32 s{sT6}, s{sT6}, 12")
    a(f"s_add_u32 s{sT6}, s{sT6}, s{sT5}")
    a(f"s_mul_i32 s{sT4}, s{sT4}, {HSTR}")
    a(f"s_add_u32 s{sT4}, s{sT4}, s{sT5}")
    a(f"s_add_u32 m0, s{sT4}, {L_HB+128}")
    a(f"buffer_load_dwordx4 v{vL16}, {srd(SH)}, s{sT6} offen lds")
    a(f"buffer_load_dwordx4 v{vL16}, {srd(SH)}, s{sT6} offen offset:1024 lds")

CACC = 32
CPOOL = 96
NPOOL = 12
CD = 144
vUe, vUo, vH, vCW, vCT, vCS, vCY, vCN = range(148, 156)

def conv_setup(j, chl0, split=None):
    a.c("conv setup")
    a(f"s_lshr_b32 s{sLC}, s{j}, 1")
    a(f"s_and_b32 s{sVAR}, s{j}, 1")
    a(f"s_add_u32 s{sCHL}, s{chl0}, s{sLC}")
    a(f"s_lshl_b32 s{sCH}, s{sQUAD}, 2")
    a(f"s_add_u32 s{sCH}, s{sCH}, s{sCHL}")
    a(f"s_lshl_b32 s{sT4}, s{sCH}, 1")
    a(f"s_and_b32 s{sT4}, s{sT4}, -4")
    a(f"s_load_dword s{sDV}, {sr(SD,2)}, s{sT4}")
    a(f"v_and_b32 v96, 31, v{vL}")
    a(f"v_lshrrev_b32 v97, 5, v{vL}")
    a("v_lshl_add_u32 v98, v97, 2, v96")
    a("v_lshrrev_b32 v99, 2, v98")
    a("v_add_u32 v99, 3, v99")
    a("v_and_b32 v99, 3, v99")
    a(f"v_xor_b32 v99, s{sCHL}, v99")
    a("v_lshlrev_b32 v99, 4, v99")
    a("v_lshl_add_u32 v99, v98, 6, v99")
    a(f"v_add_u32 v{vUe}, {L_UD-28*64}, v99")
    a(f"v_xor_b32 v{vUo}, 32, v{vUe}")
    a(f"v_bfe_u32 v98, v{vL}, 4, 1")
    a(f"v_and_b32 v99, 3, v{vL}")
    a("v_lshl_add_u32 v98, v98, 2, v99")
    a(f"v_bfe_u32 v96, v{vL}, 2, 2")
    a("v_sub_u32 v98, v98, v96")
    a("v_lshlrev_b32 v97, 3, v97")
    a("v_sub_u32 v98, v98, v97")
    a("v_lshlrev_b32 v98, 3, v98")
    a(f"s_mul_i32 s{sT4}, s{sLC}, {HSTR}")
    a(f"s_add_u32 s{sT4}, s{sT4}, {L_HB+128+32}")
    a(f"v_add_u32 v{vH}, s{sT4}, v98")
    a(f"s_lshl_b32 s{sT4}, s{sW}, 11")
    a(f"s_add_u32 s{sT4}, s{sT4}, {L_YST}")
    a(f"v_lshlrev_b32 v{vCW}, 4, v{vL}")
    a(f"v_add_u32 v{vCW}, s{sT4}, v{vCW}")
    if split: split(0)
    a(f"v_lshrrev_b32 v97, 4, v{vL}")
    a("v_lshrrev_b32 v98, 1, v99")
    a("v_lshl_add_u32 v98, v97, 1, v98")
    a("v_lshl_add_u32 v98, v98, 3, v96")
    a("v_lshlrev_b32 v98, 4, v98")
    a("v_and_b32 v99, 1, v99")
    a("v_lshl_add_u32 v98, v99, 3, v98")
    a(f"v_add_u32 v{vCT}, s{sT4}, v98")
    a(f"v_and_b32 v98, 7, v{vL}")
    a(f"v_lshrrev_b32 v99, 5, v{vL}")
    a("v_lshl_add_u32 v98, v98, 1, v99")
    a(f"v_mul_u32_u24 v98, 40960, v98")
    a(f"v_bfe_u32 v99, v{vL}, 3, 2")
    a(f"v_lshl_add_u32 v{vCY}, v99, 4, v98")
    a(f"s_lshl_b32 s{sT4}, s{j}, 4")
    a(f"s_add_u32 s{sT4}, s{sT4}, {L_SP}")
    a(f"v_mov_b32 v{vCS}, s{sT4}")
    a(f"s_lshl_b32 s{sT4}, s{sLC}, 2")
    a(f"s_add_u32 s{sT4}, s{sT4}, {L_CNT+16}")
    a(f"v_mov_b32 v{vCN}, s{sT4}")

def conv_dfrag():
    a("s_waitcnt lgkmcnt(0)")
    a(f"s_and_b32 s{sT4}, s{sCH}, 1")
    a(f"s_lshl_b32 s{sT4}, s{sT4}, 4")
    a(f"s_lshr_b32 s{sDV}, s{sDV}, s{sT4}")
    a(f"s_and_b32 s{sDV}, s{sDV}, 0xffff")
    a(f"v_lshlrev_b32 v98, 2, v{vL}")
    a("v_and_b32 v98, 16, v98")
    a(f"v_lshlrev_b32 v98, v98, s{sDV}")
    a(f"v_and_b32 v99, 59, v{vL}")
    for r in range(4):
        a(f"v_cmp_eq_u32 vcc, {32+8*r}, v99")
        a(f"v_cndmask_b32 v{CD+r}, 0, v98, vcc")

def zero_pads(j):
    a("v_mov_b32 v100, 0")
    a("v_mov_b32 v101, 0")
    a(f"v_lshlrev_b32 v102, 3, v{vL}")
    a(f"s_and_b32 s{sT6}, s{j}, 3")
    a(f"s_lshl_b32 s{sT4}, s{sT6}, 9")
    a(f"s_add_u32 s{sT4}, s{sT4}, {L_UB}")
    a(f"v_add_u32 v103, s{sT4}, v102")
    a("ds_write_b64 v103, v[100:101]")
    a(f"s_mul_i32 s{sT4}, s{sT6}, {HSTR}")
    a(f"s_add_u32 s{sT4}, s{sT4}, {L_HB}")
    a(f"v_add_u32 v103, s{sT4}, v102")
    a("s_mov_b64 exec, 0xffff")
    a("ds_write_b64 v103, v[100:101]")
    a(f"v_add_u32 v103, {L_CNT}, v102")
    a("s_mov_b64 exec, 0xff")
    a("ds_write_b64 v103, v[100:101]")
    a("s_mov_b64 exec, -1")

def u_dma(j, nper):
    a(f"s_mul_i32 s{sT4}, s{j}, {1024*nper}")
    a(f"s_lshl_b32 s{sT5}, s{sQUAD}, 14")
    if WOFF: a(f"s_add_u32 s{sT5}, s{sT5}, {WOFF}")
    a(f"s_add_u32 s{sT5}, s{sT5}, s{sT4}")
    a(f"s_add_u32 m0, s{sT4}, {L_UD}")
    for i in range(nper): a(f"buffer_load_dwordx4 v{vL16}, {srd(SWS)}, s{sT5} offen offset:{1024*i} sc1 lds")

def bwave():
    a.c("B wave")
    sXB, sWB, sM, sMW, sROT, sSTEP, sQ2, sQ3 = sCG, sUD, sTB, sRB, sCI, sLOG, sLOG + 1, sEPS
    VX, VW = 32, 36
    a(f"s_sub_u32 s{sJ}, s{sW}, 4")
    a(f"v_lshrrev_b32 v1, 3, v{vL}")
    a(f"v_mul_u32_u24 v1, 1280, v1")
    a(f"v_lshrrev_b32 v2, 4, v{vL}")
    a(f"v_and_b32 v3, 7, v{vL}")
    a("v_xor_b32 v2, v2, v3")
    a(f"v_lshl_add_u32 v{VX}, v2, 4, v1")
    a(f"v_xor_b32 v{VX+1}, 64, v{VX}")
    a(f"v_add_u32 v{VX+1}, {10240-1024}, v{VX+1}")
    a(f"v_add_u32 v{VX+2}, {20480-2048}, v{VX}")
    a(f"v_add_u32 v{VX+3}, {20480-2048}, v{VX+1}")
    a(f"s_lshl_b32 s{sXB}, s{sRB}, 2")
    a(f"s_add_u32 s{sXB}, s{sXB}, s{sJ}")
    a(f"s_mul_i32 s{sXB}, s{sXB}, 40960")
    a(f"s_lshr_b32 s{sT0}, s{sIDX}, 2")
    a(f"s_add_u32 s{sROT}, s{sT0}, s{sIDX}")
    a(f"s_and_b32 s{sROT}, s{sROT}, 3")
    a(f"s_add_u32 s{sM}, s{sRP}, s{sCP}")
    a(f"s_and_b32 s{sM}, s{sM}, 1")
    a(f"s_lshl_b32 s{sM}, s{sM}, 2")
    a(f"s_or_b32 s{sROT}, s{sROT}, s{sM}")
    def chunk_of(sd, srot, step):
        if "nostag" in EXP:
            a(f"s_and_b32 s{sd}, s{srot}, {7 if step < 8 else 1}")
            a(f"s_xor_b32 s{sd}, s{sd}, {step}")
            return
        m0_, x0 = (3, step) if step < 8 else (1, step)
        m1_, x1 = (1, 8 + step) if step < 2 else (7, step - 2)
        a(f"s_bitcmp1_b32 s{srot}, 2")
        a(f"s_cselect_b32 s{sd}, {m1_}, {m0_}")
        a(f"s_cselect_b32 s{sQ2}, {x1}, {x0}")
        a(f"s_and_b32 s{sd}, s{sd}, s{srot}")
        a(f"s_xor_b32 s{sd}, s{sd}, s{sQ2}")
    chunk_of(sSTEP, sROT, 0)
    a(f"s_lshl_b32 s{sM}, s{sJ}, 12")
    srd_init([SX, SWQ])
    def chunk_x(sc):
        a(f"s_mov_b32 m0, s{sM}")
        a(f"s_lshl_b32 s{sQ2}, s{sc}, 7")
        a(f"s_add_u32 s{sQ2}, s{sQ2}, s{sXB}")
        for i in range(4):
            a(f"buffer_load_dwordx4 v{VX+i}, {srd(SX)}, s{sQ2} offen offset:{1024*i} lds")
    def chunk_w(sc):
        a(f"s_add_u32 m0, s{sM}, 16384")
        a(f"s_mul_i32 s{sQ3}, s{sc}, {64*3840}")
        a(f"s_add_u32 s{sQ3}, s{sQ3}, s{sWB}")
        for hf in range(1):
            if hf:
                a(f"s_add_u32 m0, s{sM}, {16384+4096}")
                a(f"s_add_u32 s{sQ3}, s{sQ3}, {16*3840}")
            for i in (0, 1, 4, 2, 3):
                if i == 2: a(f"s_add_u32 m0, s{sM}, {16384+4096*hf}")
                if i == 4: a(f"s_add_u32 m0, s{sMW}, {1024*hf}")
                a(f"buffer_load_dwordx4 v{VW+i}, {srd(SWQ)}, s{sQ3} offen offset:{1024*(i&3)} lds")
    a(f"s_lshl_b32 s{sT1}, s{sCP}, 2")
    a(f"s_add_u32 s{sT1}, s{sT1}, s{sT0}")
    a(f"s_add_u32 s{sT1}, s{sT1}, 8")
    a(f"s_lshl_b32 s{sT0}, s{sT0}, 1")
    a(f"s_mul_i32 s{sT4}, s{sCP}, {2*Q0}")
    a(f"s_add_u32 s{sT0}, s{sT0}, s{sT4}")
    a(f"s_sub_u32 s{sT0}, s{sT0}, 8")
    a(f"s_cmp_ge_u32 s{sIDX}, 16")
    a(f"s_cselect_b32 s{sWB}, s{sT0}, s{sT1}")
    a(f"s_cselect_b32 s{sT4}, 10, 5")
    a(f"s_cselect_b32 s{sT5}, 4, 0x50")
    a(f"s_cselect_b32 s{sT6}, 1, 3")
    a(f"s_cselect_b32 s{sT7}, 2, 1")
    a(f"s_cselect_b32 s{sT0}, 1, 0x50")
    a(f"s_cselect_b32 s{sT1}, 8, 2")
    a(f"s_mulk_i32 s{sWB}, 160")
    a(f"s_mul_i32 s{sT2}, s{sJ}, {16*3840}")
    a(f"s_add_u32 s{sWB}, s{sWB}, s{sT2}")
    a(f"s_lshl_b32 s{sMW}, s{sJ}, 10")
    a(f"s_add_u32 s{sMW}, s{sMW}, 32768")
    a(f"v_lshrrev_b32 v14, 4, v{vL}")
    a(f"v_lshrrev_b32 v15, 1, v{vL}")
    a("v_xor_b32 v15, v15, v14")
    a(f"v_and_b32 v16, 1, v{vL}")
    a("v_mul_u32_u24 v14, 240, v14")
    a(f"v_mad_u32_u24 v14, v16, s{sT7}, v14")
    a("v_and_b32 v17, 1, v15")
    a(f"v_mad_u32_u24 v14, v17, s{sT6}, v14")
    a("v_bfe_u32 v17, v15, 1, 1")
    a(f"v_mad_u32_u24 v14, v17, s{sT5}, v14")
    a("v_bfe_u32 v17, v15, 2, 1")
    a(f"v_mad_u32_u24 v18, v17, s{sT4}, v14")
    a(f"v_lshlrev_b32 v{VW}, 4, v18")
    a(f"v_add_u32 v{VW+1}, {15360-1024}, v{VW}")
    a("v_xor_b32 v17, 1, v17")
    a(f"v_mad_u32_u24 v18, v17, s{sT4}, v14")
    a(f"v_lshlrev_b32 v18, 4, v18")
    a(f"v_add_u32 v{VW+2}, {30720-2048}, v18")
    a(f"v_add_u32 v{VW+3}, {46080-3072}, v18")
    a(f"v_lshrrev_b32 v14, 2, v{vL}")
    a("v_mul_u32_u24 v14, 240, v14")
    a(f"v_mad_u32_u24 v14, v16, s{sT0}, v14")
    a(f"v_lshrrev_b32 v17, 4, v{vL}")
    a(f"v_xor_b32 v17, v17, v{vL}")
    a("v_bfe_u32 v17, v17, 1, 1")
    a(f"v_mad_u32_u24 v14, v17, s{sT4}, v14")
    a(f"v_add_lshl_u32 v{VW+4}, v14, s{sT1}, 4")
    a("s_waitcnt lgkmcnt(0)")
    stamp(11)
    chunk_x(sSTEP)
    chunk_w(sSTEP)
    ka_rest()
    stamp(12)
    def issue(step):
        d = SLOT if step % 3 else (-2 * SLOT & 0xffffffff)
        a(f"s_add_u32 s{sM}, s{sM}, {d}")
        a(f"s_add_u32 s{sMW}, s{sMW}, {d}")
        chunk_of(sSTEP, sROT, step)
        if "nodma" in EXP and step >= 2: return
        chunk_x(sSTEP); chunk_w(sSTEP)
    bn = [1]
    def bar(n, nxt=None):
        a(f"s_waitcnt vmcnt({n}) lgkmcnt(0)")
        if "bst" in EXP and "pre" in EXP: stamp(bn[0], True)
        a("s_barrier")
        if "bst" in EXP and "pre" not in EXP: stamp(bn[0], True)
        bn[0] += 1
        if nxt is not None: issue(nxt)
    def g_setup():
        srd_init([SX, SH, SWS, SDBG, SOUT])
        a(f"s_mul_i32 s{sT7}, s{sRP}, 48")
        a(f"s_mul_i32 s{sT1}, s{sCP}, {G0}")
        a(f"s_add_u32 s{sT7}, s{sT7}, s{sT1}")
        a(f"s_add_u32 s{sT7}, s{sT7}, s{sIDX}")
        a(f"s_lshr_b32 s{sQUAD}, s{sT7}, 1")
        a(f"s_add_u32 s{sQUAD}, s{sQUAD}, 64")
        a(f"s_and_b32 s{sT1}, s{sIDX}, 1")
        a(f"s_lshl_b32 s{sT1}, s{sT1}, 1")
        a("s_waitcnt lgkmcnt(0)")
        conv_setup(sJ, sT1)
        s3_setup()
        wo_prep(vL16)
    sGS, sGO = 1, 0
    a("s_waitcnt lgkmcnt(0)")
    a(f"s_bfe_u32 s{sT0}, s{sIDX}, 0x20002")
    a(f"s_mul_i32 s{sT1}, s{sCP}, {Q0}")
    a(f"s_add_u32 s{sT0}, s{sT0}, s{sT1}")
    a(f"s_lshl_b32 s{sT0}, s{sT0}, 2")
    a(f"s_add_u32 s{sT0}, s{sT0}, s{sJ}")
    a(f"s_and_b32 s{sT2}, s{sIDX}, 3")
    a(f"s_lshl_b32 s{sT3}, s{sRP}, 2")
    a(f"s_add_u32 s{sT2}, s{sT2}, s{sT3}")
    a(f"s_lshl_b32 s{sGO}, s{sT2}, 4")
    a(f"s_add_u32 s{sGO}, s{sGO}, s{sT0}")
    a(f"s_cmp_ge_u32 s{sIDX}, 16")
    a(f"s_cselect_b32 s{sGS}, 1, 0")
    a(f"s_lshl_b32 s{sT0}, s{sT0}, 10")
    a(f"v_lshlrev_b32 v41, 4, v{vL}")
    srd_init([SGW])
    a(f"s_mov_b32 m0, {L_GW}")
    a(f"v_add_u32 v42, s{sT0}, v41")
    a(f"v_add_u32 v55, {2*SLOT}, v42")
    a(f"s_cmp_ge_u32 s{sIDX}, 16")
    a("s_cbranch_scc0 Lbng")
    a(f"buffer_load_dwordx4 v41, {srd(SGW)}, 0 offen lds")
    a(f"buffer_load_dwordx4 v41, {srd(SGW)}, 0 offen offset:1024 lds")
    a.label("Lbng")
    a(f"s_and_b32 s{sT1}, s{sJ}, 1")
    a(f"s_lshl_b32 s{sT1}, s{sT1}, 2")
    a(f"v_xor_b32 v43, s{sT1}, v2")
    a("v_lshlrev_b32 v43, 4, v43")
    a(f"v_add_u32 v43, {L_GW}, v43")
    a("v_mov_b32 v52, 0")
    a("v_mov_b32 v53, 0")
    g_setup()
    a("v_mov_b32 v44, 128")
    a("v_mov_b32 v45, 132")
    zero_pads(sJ)
    conv_dfrag()
    def gate(step):
        D = a.newlabel("Lg")
        a(f"s_cmp_eq_u32 s{sGS}, 0")
        a(f"s_cbranch_scc1 {D}")
        chunk_of(sT0, sROT, step)
        a(f"s_lshl_b32 s{sT0}, s{sT0}, 7")
        a(f"v_add_u32 v54, s{sT0}, v43")
        if step % 3 == 2: a("ds_read_b128 v[56:59], v55")
        else: a(f"ds_read_b128 v[56:59], v42 offset:{SLOT*(step%3)}")
        a("ds_read_b128 v[60:63], v54")
        a("s_waitcnt lgkmcnt(0)")
        for i in range(4): a(f"v_dot2c_f32_bf16 v{52+(i&1)}, v{56+i}, v{60+i}")
        a.label(D)
    issue(1)
    for c in range(0, 8):
        bar(9)
        if c == 0: stamp(1)
        issue(c + 2)
        gate(c)
    a(f"s_mov_b32 s{sEPS}, 0x358637bd")
    a(f"s_sub_u32 s{sT1}, s{sCH}, s{sLC}")
    bar(9)
    a(f"buffer_load_dwordx2 v[46:47], v44, {srd(SDBG)}, 0 offen sc1")
    h_dma(sJ, sT1)
    gate(8)
    a("s_waitcnt vmcnt(3)")
    a("s_barrier")
    a("s_setprio 3")
    gate(9)
    a(f"s_cmp_eq_u32 s{sGS}, 0")
    a("s_cbranch_scc1 Lbg")
    a("v_add_f32 v52, v52, v53")
    for ctl in ("quad_perm:[1,0,3,2]", "quad_perm:[2,3,0,1]", "row_half_mirror"):
        a(f"v_add_f32_dpp v52, v52, v52 {ctl} row_mask:0xf bank_mask:0xf")
    a(f"v_mul_f32 v52, 0xbfb8aa3b, v52")
    a(f"v_exp_f32 v52, v52")
    a(f"v_lshrrev_b32 v53, 1, v{vL}")
    a(f"v_add_f32 v52, 1.0, v52")
    a(f"v_rcp_f32 v52, v52")
    a(f"s_lshl_b32 s{sT0}, s{sGO}, 5")
    a(f"s_add_u32 s{sT0}, s{sT0}, {WS_G}")
    a("s_mov_b32 exec_lo, 0x01010101")
    a("s_mov_b32 exec_hi, 0x01010101")
    a(f"buffer_store_dword v52, v53, {srd(SWS)}, s{sT0} offen sc1")
    a("s_mov_b64 exec, -1")
    a.label("Lbg")
    a("s_setprio 0")
    a("s_waitcnt vmcnt(2)")
    poll(45, 47, "landed", S=SDBG)
    stamp(2)
    a(f"v_mov_b32 v48, {L_CNT+8}")
    a(f"v_readfirstlane_b32 s{sUD}, v46")
    wl = wo_list(vL16)
    a(f"s_cmp_eq_u32 s{sUD}, 0")
    a("s_cbranch_scc1 Lbl1")
    u_dma(sJ, 4)
    for x in wl[:8]: a(x)
    a("s_branch Lbl1b")
    a.label("Lbl1")
    cnt_load(SDBG, 44, 46)
    for x in wl[:8]: a(x)
    a("s_waitcnt vmcnt(8)")
    a(f"v_readfirstlane_b32 s{sUD}, v46")
    a(f"s_cmp_eq_u32 s{sUD}, 0")
    a("s_cbranch_scc1 Lbl1b")
    u_dma(sJ, 4)
    a.label("Lbl1b")
    for x in wl[8:16]: a(x)
    a(f"s_cmp_lg_u32 s{sUD}, 0")
    a("s_cbranch_scc1 Lbl2")
    cnt_load(SDBG, 44, 46)
    a.label("Lbl2")
    for x in wl[16:]: a(x)
    x_loads()
    a("s_waitcnt vmcnt(11)")
    a(f"s_cmp_lg_u32 s{sUD}, 0")
    a("s_cbranch_scc1 Lbl3")
    a(f"v_readfirstlane_b32 s{sT0}, v46")
    a(f"s_cmp_eq_u32 s{sT0}, 0")
    a("s_cbranch_scc1 Lbl4")
    u_dma(sJ, 4)
    a("s_barrier")
    a("s_branch Lbl5")
    a.label("Lbl4")
    a("s_barrier")
    poll(44, 46, S=SDBG)
    u_dma(sJ, 4)
    a.label("Lbl5")
    a("s_waitcnt vmcnt(0)")
    lds_arrive(48, 49)
    a("s_branch Lbl6")
    a.label("Lbl3")
    lds_arrive(48, 49)
    a("s_barrier")
    a.label("Lbl6")
    lds_wait(48, 49, 4)
    stamp(3)
    a("s_branch Lconv")

def ctype():
    a.label("Lctype")
    ka_rest()
    common_scalars()
    a(f"s_mov_b32 s{sQUAD}, s{sCI}")
    a(f"s_cmp_ge_u32 s{sW}, 6")
    a("s_cbranch_scc1 Lcaux")
    a(f"s_mov_b32 s{sTB}, s{sCI}")
    a(f"s_mov_b32 s{sCHB}, s{sW}")
    s0_loads()
    srd_init([SWS])
    a(f"s_cmp_ge_u32 s{sW}, {4-NQ}")
    a("s_cbranch_scc1 Lc1")
    a(f"s_add_u32 s{sCHB}, s{sW}, 6")
    s0_loads(28, False)
    a(f"s_mov_b32 s{sCHB}, s{sW}")
    a.label("Lc1")
    a.label("Lcs0")
    a(f"s_mul_i32 s{sT2}, s{sW}, 4608")
    a(f"s_add_u32 s{sT2}, s{sT2}, {L_S0C}")
    s0_addr(sT2)
    a(f"s_cmp_lt_u32 s{sW}, {4-NQ}")
    a("s_cbranch_scc1 Lc2")
    a("s_waitcnt vmcnt(0)")
    a.label("Lc2")
    a("s_waitcnt vmcnt(15)")
    s0_compute()
    stamp(1)
    a(f"s_cmp_ge_u32 s{sW}, {4-NQ}")
    a("s_cbranch_scc1 Lcjoin")
    a(f"s_add_u32 s{sCHB}, s{sW}, 6")
    s0_addr(sT2)
    a("s_waitcnt vmcnt(4)")
    s0_compute(LB=28)
    a("s_branch Lcjoin")

    a.label("Lcaux")
    a("s_setprio 3")
    srd_init([SWO, SWS, SDBG])
    a(f"s_sub_u32 s{sUD}, s{sW}, 6")
    a(f"s_lshl_b32 s{sVAR}, s{sCI}, 1")
    a(f"s_add_u32 s{sVAR}, s{sVAR}, s{sUD}")
    for i in range(4): a(f"v_mov_b32 v{52+i}, 0")
    a(f"v_lshlrev_b32 v15, 3, v{vL}")
    a(f"s_lshl_b32 s{sT0}, s{sVAR}, 9")
    a(f"s_add_u32 s{sT0}, s{sT0}, {WS_KV}")
    a("s_waitcnt lgkmcnt(0)")
    a(f"buffer_store_dwordx2 v[52:53], v15, {srd(SWS)}, s{sT0} offen sc1")
    a(f"s_mul_i32 s{sT0}, s{sVAR}, 768")
    a(f"s_add_u32 s{sT0}, s{sT0}, {WS_C}")
    a(f"v_lshlrev_b32 v16, 8, v{vL}")
    a("s_mov_b64 exec, 7")
    a(f"buffer_store_dword v52, v16, {srd(SWS)}, s{sT0} offen sc1")
    a("s_mov_b64 exec, -1")
    a.label("Lcrp")
    sKQ, sF, sCGR = sCHL, sCH, sJ
    a(f"s_lshr_b32 s{sT0}, s{sVAR}, 2")
    a(f"s_and_b32 s{sCGR}, s{sVAR}, 3")
    a(f"s_mul_i32 s{sKQ}, s{sT0}, 52")
    a(f"s_lshr_b32 s{sKQ}, s{sKQ}, 8")
    a(f"s_mul_i32 s{sT1}, s{sKQ}, 5")
    a(f"s_sub_u32 s{sF}, s{sT0}, s{sT1}")
    a(f"s_mul_i32 s{sT0}, s{sF}, 20")
    a(f"s_cmp_eq_u32 s{sF}, 4")
    a(f"s_cselect_b32 s{sT0}, 16, s{sT0}")
    a(f"s_cselect_b32 s{sT2}, 16, 0")
    a(f"s_mul_i32 s{sT1}, s{sKQ}, 80")
    a(f"s_add_u32 s{sT0}, s{sT0}, s{sT1}")
    a(f"s_mul_i32 s{sT0}, s{sT0}, 1280")
    a(f"s_mul_i32 s{sT1}, s{sCGR}, 320")
    a(f"s_add_u32 s{sT0}, s{sT0}, s{sT1}")
    a(f"s_lshr_b32 s{sT3}, s{sVAR}, 7")
    a(f"s_lshl_b32 s{sT3}, s{sT3}, 1")
    a(f"s_add_u32 s{sT3}, s{sT3}, s{sUD}")
    a(f"s_mul_i32 s{sT3}, s{sT3}, 5120")
    a(f"s_add_u32 s{sT3}, s{sT3}, {L_RPC}")
    a("s_waitcnt lgkmcnt(0)")
    for i in range(5):
        a(f"v_add_u32 v14, {64*i}, v{vL}")
        div20(15, 16, 14)
        a("v_lshrrev_b32 v17, 2, v15")
        a(f"v_mad_u32_u24 v15, v17, s{sT2}, v15")
        a("v_mul_u32_u24 v15, 1280, v15")
        a("v_lshl_add_u32 v15, v16, 4, v15")
        a(f"s_add_u32 m0, s{sT3}, {1024*i}")
        a(f"buffer_load_dwordx4 v15, {srd(SWO)}, s{sT0} offen lds")
    a(f"s_add_u32 s{sVAR}, s{sVAR}, 128")
    a(f"s_cmp_lt_u32 s{sVAR}, 160")
    a("s_cbranch_scc1 Lcrp")
    a(f"s_and_b32 s{sVAR}, s{sVAR}, 127")
    a("s_waitcnt vmcnt(0)")
    a.label("Lcrp2")
    sKQ, sF, sCGR = sCHL, sCH, sJ
    a(f"s_lshr_b32 s{sT0}, s{sVAR}, 2")
    a(f"s_and_b32 s{sCGR}, s{sVAR}, 3")
    a(f"s_mul_i32 s{sKQ}, s{sT0}, 52")
    a(f"s_lshr_b32 s{sKQ}, s{sKQ}, 8")
    a(f"s_mul_i32 s{sT1}, s{sKQ}, 5")
    a(f"s_sub_u32 s{sF}, s{sT0}, s{sT1}")
    a(f"s_lshr_b32 s{sT3}, s{sVAR}, 7")
    a(f"s_lshl_b32 s{sT3}, s{sT3}, 1")
    a(f"s_add_u32 s{sT3}, s{sT3}, s{sUD}")
    a(f"s_mul_i32 s{sT3}, s{sT3}, 5120")
    a(f"s_add_u32 s{sT3}, s{sT3}, {L_RPC}")
    a(f"v_lshrrev_b32 v14, 5, v{vL}")
    a(f"v_bfe_u32 v15, v{vL}, 2, 2")
    a("v_lshl_add_u32 v14, v14, 2, v15")
    a("v_mul_u32_u24 v14, 320, v14")
    a(f"v_bfe_u32 v15, v{vL}, 4, 1")
    a("v_lshl_add_u32 v14, v15, 5, v14")
    a(f"v_and_b32 v15, 3, v{vL}")
    a("v_lshl_add_u32 v14, v15, 3, v14")
    a(f"v_add_u32 v14, s{sT3}, v14")
    a(f"s_mul_i32 s{sT0}, s{sKQ}, 5")
    a(f"s_add_u32 s{sT0}, s{sT0}, s{sF}")
    a(f"s_cmp_ge_u32 s{sKQ}, 3")
    a(f"s_cselect_b32 s{sT1}, 10, 0")
    a(f"s_cmp_ge_u32 s{sKQ}, 6")
    a(f"s_cselect_b32 s{sT1}, -15, s{sT1}")
    a(f"s_cselect_b32 s{sT2}, 25, 50")
    a(f"s_add_u32 s{sT0}, s{sT0}, s{sT1}")
    a(f"s_mul_i32 s{sT1}, s{sCGR}, 200")
    a(f"s_add_u32 s{sT0}, s{sT0}, s{sT1}")
    a(f"s_lshl_b32 s{sT0}, s{sT0}, 10")
    a(f"s_add_u32 s{sT0}, s{sT0}, {WS_WOP}")
    a(f"s_lshl_b32 s{sT2}, s{sT2}, 10")
    a(f"s_lshr_b32 s{sT4}, s{sKQ}, 1")
    a(f"s_mul_i32 s{sT4}, s{sT4}, 25")
    a(f"s_and_b32 s{sT5}, s{sKQ}, 1")
    a(f"s_mul_i32 s{sT5}, s{sT5}, 5")
    a(f"s_add_u32 s{sT4}, s{sT4}, s{sT5}")
    a(f"s_add_u32 s{sT4}, s{sT4}, s{sF}")
    a(f"s_add_u32 s{sT4}, s{sT4}, s{sT1}")
    a(f"s_add_u32 s{sT4}, s{sT4}, 115")
    a(f"s_lshl_b32 s{sT4}, s{sT4}, 10")
    a(f"s_add_u32 s{sT4}, s{sT4}, {WS_WOP}")
    a(f"v_lshlrev_b32 v15, 4, v{vL}")
    for t in range(5):
        for jh in range(2): a(f"ds_read_b64_tr_b16 {vr(32+4*t+2*jh,2)}, v14 offset:{jh*2560+t*64}")
    a("s_waitcnt lgkmcnt(0)")
    for t in range(4):
        a(f"buffer_store_dwordx4 {vr(32+4*t,4)}, v15, {srd(SWS)}, s{sT0} offen sc1")
        a(f"s_add_u32 s{sT0}, s{sT0}, s{sT2}")
    a(f"buffer_store_dwordx4 {vr(48,4)}, v15, {srd(SWS)}, s{sT4} offen sc1")
    a(f"s_add_u32 s{sVAR}, s{sVAR}, 128")
    a(f"s_cmp_lt_u32 s{sVAR}, 160")
    a("s_cbranch_scc1 Lcrp2")
    a("v_mov_b32 v60, 0")
    a("s_waitcnt vmcnt(0)")
    darr_issue(60, 61, 4)
    darr_finish(60, 61, 4, 128)
    a("s_setprio 0")
    stamp(1)

    a.label("Lcjoin")
    srd_init([SX, SH, SDBG, SOUT])
    a("v_mov_b32 v104, 0")
    a("s_waitcnt vmcnt(0)")
    stamp(2)
    a("s_barrier")
    a(f"s_cmp_lg_u32 s{sW}, 7")
    a("s_cbranch_scc1 Lc7")
    a("s_setprio 3")
    darr_issue(104, 45, 0)
    darr_finish(104, 45, 0, NU, 0)
    a("s_setprio 0")
    a.label("Lc7")
    zero_pads(sW)
    a(f"s_mov_b32 s{sT1}, 0")
    conv_setup(sW, sT1)
    s3_setup()
    wo_prep(vL16)
    a(f"s_lshl_b32 s{sT1}, s{sCI}, 2")
    h_dma(sW, sT1)
    conv_dfrag()
    a(f"s_cmp_ge_u32 s{sW}, 4")
    a("s_cbranch_scc1 Lc7b")
    a("v_mov_b32 v44, 132")
    poll(44, 46, S=SDBG, sleep=4)
    for x in wo_list(vL16): a(x)
    x_loads()
    a.label("Lc7b")
    a(f"s_cmp_lg_u32 s{sW}, 7")
    a("s_cbranch_scc1 Lc8")
    a("s_setprio 3")
    a(f"v_and_b32 v44, 1, v{vL}")
    a("v_lshl_add_u32 v44, v44, 2, 64")
    a("v_add_u32 v44, 64, v44")
    poll(44, 46, S=SDBG)
    stamp(11)
    a(f"s_lshl_b32 s{sT5}, s{sQUAD}, 14")
    if WOFF: a(f"s_add_u32 s{sT5}, s{sT5}, {WOFF}")
    for q in range(4):
        a(f"s_mov_b32 m0, {L_UD + 4096*q}")
        for i in range(4): a(f"buffer_load_dwordx4 v{vL16}, {srd(SWS)}, s{sT5} offen offset:{1024*i} sc1 lds")
        if q < 3: a(f"s_add_u32 s{sT5}, s{sT5}, 4096")
    a.label("Lc8")
    a(f"s_cmp_lt_u32 s{sW}, 4")
    a("s_cbranch_scc1 Lc9")
    a("s_waitcnt vmcnt(0)")
    a.label("Lc9")
    a("s_waitcnt lgkmcnt(0)")
    stamp(12)
    a("s_barrier")
    stamp(3)
    a("s_setprio 2")
    a(f"s_cmp_lt_u32 s{sW}, 4")
    a("s_cbranch_scc1 Lconv2")
    a("s_setprio 0")
    for x in wo_list(vL16): a(x)
    x_loads()

def conv_body(tiles):
    seq = []
    for b in range(4):
        if tiles[0] == 0:
            for aa in range(8):
                for ti in (3, 2):
                    d = tiles[ti] - aa
                    if d >= 0:
                        seq.append((ti, ("H", 4 * aa + b, 0), ("U", 4 * d - b)))
                        if b == 0 and aa == 0: seq.append((ti, ("D",), ("U", 4 * d)))
                if aa == 5:
                    seq.append((1, ("H", b, 1), ("U", 4 - b)))
                    if b == 0: seq.append((1, ("D",), ("U", 4)))
                if aa == 6:
                    seq.append((0, ("H", b, 1), ("U", -b)))
                    if b == 0: seq.append((0, ("D",), ("U", 0)))
                    seq.append((1, ("H", 4 + b, 1), ("U", -b)))
        else:
            for aa in range(6):
                for ti in (3, 2, 1, 0):
                    d = tiles[ti] - aa
                    if d >= 0:
                        seq.append((ti, ("H", 4 * aa + b, 0), ("U", 4 * d - b)))
                        if b == 0 and aa == 0: seq.append((ti, ("D",), ("U", 4 * d)))
    assert len(seq) == 76
    last = {}; order = []
    for i, (ti, h, u) in enumerate(seq):
        for k in (u, h):
            if k[0] == "D": continue
            if k not in last: order.append(k)
            last[k] = i
    free = list(range(NPOOL))
    where = {}; done_at = {}
    nds = [0]; li = [0]
    def issue(maxn):
        n = 0
        while li[0] < len(order) and free and n < maxn:
            k = order[li[0]]; li[0] += 1
            bfr = free.pop(0); where[k] = bfr
            r = CPOOL + 4 * bfr
            if k[0] == "U":
                a(f"ds_read_b128 {vr(r,4)}, v{vUo if k[1]&1 else vUe} offset:{(k[1]+3)*512}")
                nds[0] += 1; n += 1
            else:
                a(f"ds_read_b64_tr_b16 {vr(r,2)}, v{vH} offset:{128*k[1]+32}")
                a(f"ds_read_b64_tr_b16 {vr(r+2,2)}, v{vH} offset:{128*k[1]}")
                nds[0] += 2; n += 2
            done_at[k] = nds[0]
    issue(10)
    started = set(); known = 0
    wl = wo_list(vL16); wi = 25 if "delayconv" in EXP else 0
    for i, (ti, h, u) in enumerate(seq):
        needn = max(done_at[k] for k in (u, h) if k[0] != "D")
        if needn > known:
            cnt = min(nds[0] - needn, 15)
            a(f"s_waitcnt lgkmcnt({cnt})")
            known = nds[0] - cnt
        d = vr(CACC + 16 * ti, 16)
        hb = CD if h[0] == "D" else CPOOL + 4 * where[h]
        a(f"v_mfma_f32_32x32x16_bf16 {d}, {vr(CPOOL+4*where[u],4)}, {vr(hb,4)}, {d if ti in started else '0'}")
        started.add(ti)
        for k in (u, h):
            if k[0] != "D" and last[k] == i: free.append(where[k])
        issue(2)

def conv_epi(var):
    runs = [[*range(0, 8)], [*range(8, 16)]] if var == 0 else [[*range(16)]]
    out_g = 7 if var == 0 else 15
    in_g = 8 if var == 0 else 0
    SPL = 96
    a(f"buffer_load_dword v{vFT}, v{vFK}, {srd(SWS)}, 0 offen sc1")
    a("s_nop 7")
    a("s_nop 3")
    for step in (2, 1, 0):
        a("s_mov_b32 exec_lo, 0")
        a("s_mov_b32 exec_hi, 0x80000000")
        a(f"v_mov_b32 v{SPL+step}, v{CACC+4*out_g+step+1}")
        for run in runs:
            for g in reversed(run):
                src = f"v{CACC+4*(g-1)+step+1}" if g != run[0] else "0"
                a(f"v_mov_b32 v{CACC+4*g+step+1}, {src}")
        if step == 0:
            a(f"ds_write_b96 v{vCS}, {vr(SPL,3)}")
            a("v_mov_b32 v100, 1")
            a(f"ds_add_u32 v{vCN}, v100")
        a("s_mov_b64 exec, -1")
        for g in reversed(range(16)):
            r = CACC + 4 * g + step
            a(f"v_add_f32_dpp v{r}, v{r+1}, v{r} wave_ror:1 row_mask:0xf bank_mask:0xf")
    a(f"v_xor_b32 v101, 16, v{vCS}")
    a(f"v_lshl_add_u32 v101, v{vL}, 2, v101")
    PK = 104
    other = [k for k in range(8) if k != in_g // 2]
    for k in other: a(f"v_cvt_pk_bf16_f32 v{PK+k}, v{CACC+8*k}, v{CACC+8*k+4}")
    oh = 1 - in_g // 8
    a(f"ds_write_b128 v{vCW}, {vr(PK+4*oh,4)} offset:{1024*oh}")
    lds_wait(vCN, 100, 2)
    a("s_mov_b64 exec, 7")
    a("ds_read_b32 v100, v101")
    a("s_waitcnt lgkmcnt(0)")
    a(f"v_add_f32 v{CACC+4*in_g}, v{CACC+4*in_g}, v100")
    a("s_mov_b64 exec, -1")
    k = in_g // 2
    a(f"v_cvt_pk_bf16_f32 v{PK+k}, v{CACC+8*k}, v{CACC+8*k+4}")
    a(f"ds_write_b128 v{vCW}, {vr(PK+4*(1-oh),4)} offset:{1024*(1-oh)}")
    T0, T1 = (0, 6) if var == 0 else (2, 4)
    a(f"s_lshl_b32 s{sT5}, s{sCH}, 6")
    a(f"s_add_u32 s{sT4}, s{sT5}, {WS_Y + T0*8*40960}")
    a(f"s_add_u32 s{sT5}, s{sT5}, {WS_Y + T1*8*40960}")
    a(f"s_lshr_b32 s{sT6}, s{sCH}, 5")
    a(f"s_lshl_b32 s{sT6}, s{sT6}, 8")
    a(f"s_add_u32 s{sT6}, s{sT6}, {WS_FY + var*20*256}")

def conv():
    a.label("Lconv")
    a("s_setprio 1")
    a.label("Lconv2")
    a(f"s_cmp_eq_u32 s{sVAR}, 1")
    a("s_cbranch_scc1 Lconvy")
    conv_body([0, 1, 6, 7])
    stamp(4)
    conv_epi(0)
    a("s_branch Lconve")
    a.label("Lconvy")
    conv_body([2, 3, 4, 5])
    stamp(4)
    conv_epi(1)
    a.label("Lconve")
    for n in range(2):
        a(f"ds_read_b64_tr_b16 {vr(136+4*n,2)}, v{vCT} offset:{1024*n}")
        a(f"ds_read_b64_tr_b16 {vr(138+4*n,2)}, v{vCT} offset:{1024*n+64}")
    arr_prep(152, 153)
    for n in range(2):
        a(f"s_waitcnt lgkmcnt({2-2*n})")
        a(f"buffer_store_dwordx4 {vr(136+4*n,4)}, v{vCY}, {srd(SWS)}, s{sT5 if n else sT4} offen sc1")
    stamp(13)
    a("s_branch Ls3b")

def s3():
    a.label("Ls3")
    a.c("S3")
    PQ, RAW, KF = 32, 52, 116
    plan = []
    for i in range(4):
        for st in range(2):
            for jh in range(2):
                du0 = 4 * (i + st) + 2 * jh - 5 * i
                plan.append((i, st, jh, du0, 0 <= du0 <= 4, 0 <= du0 + 1 <= 4))
    sPD = sT2
    def fl(): a(f"buffer_load_dword v{vFT}, v{vFK}, {srd(SWS)}, 0 offen sc1")
    def pql():
        for f in range(4): a(f"buffer_load_dwordx4 {vr(PQ+4*f,4)}, v{vL16}, {srd(SWS)}, s{sPQO} offen offset:{1024*f} sc1")
        a(f"buffer_load_dwordx4 {vr(PQ+16,4)}, v{vL16}, {srd(SWS)}, s{sT1} offen sc1")
    def pre():
        for (i, st, jh, du0, v0ok, v1ok) in plan:
            if v0ok != v1ok:
                for j in range(4): a(f"v_mov_b32 v{RAW+16*i+8*st+4*jh+j}, 0")
        a(f"s_add_u32 s{sT1}, s{sPQO}, 4096")
        a(f"s_add_u32 s{sT3}, s{sKVO}, {2*KVH}")
        a(f"s_mov_b32 s{sPD}, 0")
        a(f"s_mov_b32 s{sCNT}, 0x40000")
    wl = wo_list(vL16)
    for x in wl[:20]: a(x)
    fl()
    for x in wl[20:]: a(x)
    x_loads()
    a("s_setprio 1")
    pre()
    a(f"s_mov_b32 s{sUD}, 0")
    a("s_waitcnt vmcnt(7)")
    a("s_branch Ls3ev")
    a.label("Ls3b")
    pre()
    a(f"s_mov_b32 s{sUD}, 2")
    a("s_waitcnt vmcnt(2)")
    a("s_branch Ls3ev")
    a.label("Ls3sl")
    a("s_sleep 2")
    a.label("Ls3lp")
    fl()
    a("s_waitcnt vmcnt(0)")
    a(f"s_cmp_eq_u32 s{sUD}, 0")
    a("s_cbranch_scc1 Ls3ev")
    a(f"s_sub_u32 s{sUD}, s{sUD}, 1")
    a(f"s_cmp_eq_u32 s{sUD}, 0")
    a("s_cbranch_scc1 Ls3af")
    arr_issue(152, 153, f"s{sT6}")
    a("s_branch Ls3ev")
    a.label("Ls3af")
    arr_finish(152, 153, f"s{sT6}", 32)
    a.label("Ls3ev")
    a(f"v_cmp_ne_u32 vcc, s{sTAG}, v{vFT}")
    a(f"s_sub_u32 s{sCNT}, s{sCNT}, 1")
    a("s_cbranch_scc1 Ls3go")
    a(f"s_cmp_lg_u32 s{sPD}, 0")
    a("s_cbranch_scc1 Ls3k")
    a("s_bitcmp1_b32 vcc_lo, 0")
    a("s_cbranch_scc1 Ls3sl")
    pql()
    a(f"s_mov_b32 s{sPD}, 1")
    a(f"v_readlane_b32 s{sT0}, v{vFK}, 1")
    a(f"v_mov_b32 v{vFK}, s{sT0}")
    a.label("Ls3k")
    a("s_cmp_lg_u32 vcc_hi, 0")
    a("s_cbranch_scc1 Ls3sl")
    a.label("Ls3go")
    stamp(6)
    nload = [0] * 4
    for (i, st, jh, du0, v0ok, v1ok) in plan:
        if not (v0ok or v1ok): continue
        off = (i & 1) * KVH + du0 * 336
        part = v0ok != v1ok
        if part: a(f"s_mov_b32 exec_{'hi' if v0ok else 'lo'}, 0")
        a(f"buffer_load_dwordx4 {vr(RAW+16*i+8*st+4*jh,4)}, v{vKO if i&1 else vKE}, {srd(SWS)}, s{sT3 if i>>1 else sKVO} offen offset:{off} sc1")
        if part: a("s_mov_b64 exec, -1")
        nload[i] += 1
    a(f"s_cmp_lg_u32 s{sUD}, 2")
    a("s_cbranch_scc1 Ls3n2")
    a("s_waitcnt vmcnt(12)")
    arr_issue(152, 153, f"s{sT6}")
    a("s_branch Ls3n3")
    a.label("Ls3n2")
    a(f"buffer_load_dword v{vFT}, v{vFK}, {srd(SWS)}, 0 offen sc1")
    a.label("Ls3n3")
    rem = sum(nload) + 1
    for i in range(4):
        rem -= nload[i]
        a(f"s_waitcnt vmcnt({rem})")
        kf = KF + 8 * (i & 1)
        for (i2, st, jh, du0, v0ok, v1ok) in plan:
            if i2 != i: continue
            for j in range(2):
                d = kf + 4 * st + 2 * jh + j; s = RAW + 16 * i + 8 * st + 4 * jh + 2 * j
                if v0ok or v1ok: a(f"v_cvt_pk_bf16_f32 v{d}, v{s}, v{s+1}")
                else: a(f"v_mov_b32 v{d}, 0")
        d = vr(RAW + 16 * i, 16)
        a(f"v_mfma_f32_32x32x16_bf16 {d}, {vr(kf,4)}, {vr(PQ+4*i,4)}, 0")
        a(f"v_mfma_f32_32x32x16_bf16 {d}, {vr(kf+4,4)}, {vr(PQ+4*i+4,4)}, {d}")
    if "sx" in EXP: stamp(11)
    a(f"s_cmp_eq_u32 s{sUD}, 0")
    a("s_cbranch_scc1 Ls3n4")
    arr_finish(152, 153, f"s{sT6}", 32, 0)
    a.label("Ls3n4")
    a(f"s_cmp_ge_u32 s{sW}, 5")
    a("s_cbranch_scc1 Ls3n5")
    a(f"buffer_load_dword v{vFT}, v{vFY}, {srd(SWS)}, 0 offen sc1")
    a.label("Ls3n5")
    OF = 132
    for i in range(4):
        D = RAW + 16 * i
        a(f"v_add_f32 v{D+12}, s{sEPS}, v{D+12}")
        a(f"v_rcp_f32 v{D+12}, v{D+12}")
        for j in range(8): a(f"v_mul_f32 v{D+j}, v{D+j}, v{D+12}")
        for j in range(4): a(f"v_cvt_pk_bf16_f32 v{OF+4*i+j}, v{D+2*j}, v{D+2*j+1}")
        a(f"ds_write_b128 v{vOW}, {vr(OF+4*i,4)} offset:{1024*i}")
        if i & 1 == 0:
            for j in range(4): a(f"v_mul_f32 v{D+8+j}, v{D+8+j}, v{D+12}")
        else:
            for j in range(4): a(f"v_fmac_f32 v{D-8+j}, v{D+8+j}, v{D+12}")
            for j in range(2): a(f"v_cvt_pk_bf16_f32 v{OF+16+2*(i>>1)+j}, v{D-8+2*j}, v{D-8+2*j+1}")
    a(f"ds_write_b128 v{vOW}, {vr(OF+16,4)} offset:4096")
    a(f"s_mov_b32 s{sUD}, 1")
    a(f"s_cmp_ge_u32 s{sW}, 5")
    a("s_cbranch_scc1 Ls3y1")
    a("s_waitcnt vmcnt(0)")
    a(f"v_cmp_ne_u32 vcc, s{sTAG}, v{vFT}")
    a(f"s_mov_b32 m0, s{sYM}")
    a("s_cbranch_vccnz Ls3y0")
    a(f"buffer_load_dwordx4 v{vL16}, {srd(SWS)}, s{sYO} offen sc1 lds")
    a(f"buffer_load_dwordx4 v{vL16}, {srd(SWS)}, s{sYO} offen offset:1024 sc1 lds")
    a("s_branch Ls3y1")
    a.label("Ls3y0")
    a(f"s_mov_b32 s{sUD}, 0")
    a(f"buffer_load_dword v{vFT}, v{vFY}, {srd(SWS)}, 0 offen sc1")
    a.label("Ls3y1")
    if "nog3prio" not in EXP:
        a(f"s_cmp_ge_u32 s{sW}, 4")
        a("s_cbranch_scc1 Ls3y2")
        a("s_setprio 2")
        a.label("Ls3y2")
    a("s_waitcnt lgkmcnt(0)")
    if "sx" in EXP: stamp(12)
    a("s_barrier")
    stamp(7)
    a(f"buffer_load_dword v{vG}, v{vGO}, {srd(SWS)}, 0 offen sc1")
    NB = 8; POOL = 32; AP, AR = 64, 80
    def ord_(i): return (vPR, 1024 * i) if i < 15 else (vRR, 1024 * (i - 15))
    for i in range(NB):
        v, o = ord_(i); a(f"ds_read_b128 {vr(POOL+4*i,4)}, v{v} offset:{o}")
    XF = 96
    pre = [f"s_mov_b32 s{sT0}, 0xffff0000"]
    for n, xd in enumerate((vXD, vXD2)):
        for j in range(4):
            pre.append(f"v_lshlrev_b32 v{XF+8*n+2*j}, 16, v{xd+j}")
            pre.append(f"v_and_b32 v{XF+8*n+2*j+1}, s{sT0}, v{xd+j}")
    issued = NB
    log = list(range(NB))
    for i in range(25):
        pos = log.index(i)
        a(f"s_waitcnt lgkmcnt({min(len(log)-1-pos,15)})")
        d = vr(AP if i < 15 else AR, 16)
        a(f"v_mfma_f32_32x32x16_bf16 {d}, {vr(VWO+4*i,4)}, {vr(POOL+4*(i%NB),4)}, {'0' if i in (0,15) else d}")
        if issued < 25:
            v, o = ord_(issued); a(f"ds_read_b128 {vr(POOL+4*(issued%NB),4)}, v{v} offset:{o}"); log.append(issued); issued += 1
        if i < 12:
            for x in pre[3 * i:3 * i + 3]: a(x)
        if i == 7:
            a(f"s_cmp_eq_u32 s{sUD}, 1")
            a("s_cbranch_scc1 Ls3ny")
            poll(vFY, vFT, "issued")
            stamp(5)
            a(f"buffer_load_dwordx4 v{vL16}, {srd(SWS)}, s{sYO} offen sc1 lds")
            a(f"buffer_load_dwordx4 v{vL16}, {srd(SWS)}, s{sYO} offen offset:1024 sc1 lds")
            a.label("Ls3ny")
        if 19 <= i < 23:
            q = i - 19
            a(f"ds_write_b128 v{vPW+q}, {vr(AP+4*q,4)}"); log.append(-1)
            a(f"v_add_u32 v{vPW+q}, s{sRD}, v{vPW+q}")
    for q in range(4): a(f"ds_write_b128 v{vPW+q}, {vr(AR+4*q,4)}")
    a("s_waitcnt vmcnt(0) lgkmcnt(0)")
    a("s_barrier")
    stamp(8)
    def f_reads(n, R):
        np_ = 3 + n
        for p in range(np_):
            a(f"ds_read_b128 {vr(R+8*p,4)}, v{vPA} offset:{49152*n+4096*p}")
            a(f"ds_read_b128 {vr(R+8*p+4,4)}, v{vPB} offset:{49152*n+4096*p}")
        a(f"ds_read_b64_tr_b16 {vr(R+32,2)}, v{vYT} offset:{8192*n}")
        a(f"ds_read_b64_tr_b16 {vr(R+34,2)}, v{vYT} offset:{8192*n+256}")
    def f_math(n, R, after):
        np_ = 3 + n
        X = XF + 8 * n; YF = R + 36
        a(f"s_waitcnt lgkmcnt({min(after+2*np_+2-4,15)})")
        for j in range(4): a(f"v_pk_add_f32 {vr(R+2*j,2)}, {vr(R+2*j,2)}, {vr(R+8+2*j,2)}")
        a(f"s_waitcnt lgkmcnt({after+2})")
        for p in range(2, np_):
            for j in range(4): a(f"v_pk_add_f32 {vr(R+2*j,2)}, {vr(R+2*j,2)}, {vr(R+8*p+2*j,2)}")
        a(f"s_waitcnt lgkmcnt({after})")
        for j in range(4):
            a(f"v_lshlrev_b32 v{YF+2*j}, 16, v{R+32+j}")
            a(f"v_and_b32 v{YF+2*j+1}, s{sT0}, v{R+32+j}")
        for j in range(4): a(f"v_pk_mul_f32 {vr(X+2*j,2)}, {vr(X+2*j,2)}, {vr(YF+2*j,2)}")
        for j in range(4): a(f"v_pk_add_f32 {vr(R+2*j,2)}, {vr(R+2*j,2)}, {vr(X+2*j,2)} neg_lo:[0,1] neg_hi:[0,1]")
        for j in range(4): a(f"v_pk_fma_f32 {vr(R+2*j,2)}, {vr(R+2*j,2)}, {vr(vG,2)}, {vr(X+2*j,2)} op_sel_hi:[1,0,1]")
        for j in range(4): a(f"v_cvt_pk_bf16_f32 v{R+32+j}, v{R+2*j}, v{R+2*j+1}")
        a(f"buffer_store_dwordx4 {vr(R+32,4)}, v{vOUT}, {srd(SOUT)}, s{sXOFF} offen offset:{256*n}" + (" sc1" if "osc1" in EXP else " nt" if "ont" in EXP else " sc0 sc1" if "osys" in EXP else ""))
    f_reads(0, 32)
    a(f"s_cmp_lt_u32 s{sW}, 2")
    a("s_cbranch_scc1 Lfin2")
    f_math(0, 32, 0)
    a("s_branch Lfin")
    a.label("Lfin2")
    f_reads(1, 112)
    f_math(0, 32, 10)
    f_math(1, 112, 0)
    a.label("Lfin")
    if DIAG:
        a("s_waitcnt vmcnt(0)")
        stamp(9)
        a(f"s_memtime vcc")
        a("s_waitcnt lgkmcnt(0)")
        a(f"s_mov_b32 s{STS+15}, vcc_lo")
        a("v_mov_b32 v2, 0")
        for i in range(16): a(f"v_writelane_b32 v2, s{STS+i}, {i}")
        a(f"v_lshlrev_b32 v3, 2, v{vL}")
        a(f"s_lshl_b32 s{sT0}, s{sBID}, 3")
        a(f"s_add_u32 s{sT0}, s{sT0}, s{sW}")
        a(f"s_lshl_b32 s{sT0}, s{sT0}, 6")
        a(f"s_add_u32 s{sT0}, s{sT0}, {WS_TS}")
        a("s_mov_b64 exec, 0xffff")
        a(f"buffer_store_dword v2, v3, {srd(SWS)}, s{sT0} offen")
        sp = [e for e in EXP if e.startswith("spin")]
        if sp:
            si, wv, lo, hi = [int(x) for x in sp[0][4:].split("_")]
            a(f"s_cmp_lg_u32 s{sW}, {wv}")
            a("s_cbranch_scc1 Lend")
            a(f"s_cmp_lt_u32 s{sIDX}, {lo}")
            a("s_cbranch_scc1 Lend")
            a(f"s_cmp_ge_u32 s{sIDX}, {hi}")
            a("s_cbranch_scc1 Lend")
            a.label("Lspin")
            a("s_memrealtime vcc")
            a("s_waitcnt lgkmcnt(0)")
            a(f"s_sub_u32 s{sT1}, vcc_lo, s{STS+si}")
            a(f"s_cmp_lt_u32 s{sT1}, 5000")
            a("s_cbranch_scc1 Lspin")
        if "dbgts" in EXP:
            a(f"s_cmp_lg_u32 s{sW}, {int([e for e in EXP if e.startswith('wv')][0][2:])}")
            a("s_cbranch_scc1 Lend")
            a(f"s_cmp_ge_u32 s{sIDX}, 16")
            a("s_cbranch_scc1 Lend")
            a("v_cmp_ne_u32 vcc, 0, v2")
            a(f"v_subrev_u32 v2, s{sTAG}, v2")
            a("v_add_u32 v2, 100, v2")
            a("v_and_b32 v2, 0x7ffffff, v2")
            a("v_cndmask_b32 v2, 0, v2, vcc")
            a("s_mov_b64 exec, 0x3fff")
            a(f"buffer_atomic_umax v2, v3, {srd(SDBG)}, 0 offen offset:4 sc1")
    a.label("Lend")
    a("s_endpgm")

entry(); bwave(); awave(); kva(); qa(); ctype(); conv(); s3()

ref = open("cdna_kernels/%s.s.ref" % NAME).read()
head = [l for l in ref.split("\n") if l.startswith(";") and "@launch" not in l]
out = "\n".join(head) + "\n"
out += "; @launch grid=(256,1,1) block=(512,1,1) lds=%d\n" % LDS_BYTES
out += '.amdgcn_target "amdgcn-amd-amdhsa--gfx950"\n.text\n.globl %s_kernel\n.p2align 8\n.type %s_kernel,@function\n%s_kernel:\n' % (NAME, NAME, NAME)
import re
body = a.text()
ntset = []
if "nt" in EXP: ntset += [SK, SV, SH, SWO, SSK, SGW]
if "ntx" in EXP: ntset += [SX, SWQ]
for s_ in ntset:
    body = re.sub(r"(buffer_load_dword\S* [^\n]*%s, [^\n]*?offen(?: offset:\d+)?)( lds)?\n" % re.escape(srd(s_)), lambda m: m.group(1) + " nt" + (m.group(2) or "") + "\n", body)
out += body
out += '''.section .rodata,"a"
.p2align 6
.amdhsa_kernel %s_kernel
  .amdhsa_next_free_vgpr 256
  .amdhsa_next_free_sgpr 102
  .amdhsa_accum_offset 256
  .amdhsa_group_segment_fixed_size 0
  .amdhsa_kernarg_size 104
  .amdhsa_user_sgpr_count 2
  .amdhsa_user_sgpr_kernarg_segment_ptr 1
  .amdhsa_system_sgpr_workgroup_id_x 1
.end_amdhsa_kernel
''' % NAME
dst = [x for x in sys.argv[1:] if not x.startswith("--")]
open(dst[0] if dst else "cdna_kernels/%s.s" % NAME, "w").write(out)
```

```python
import sys
from asmlib import Asm, vr, sr

NAME = "gated_mix__linear_attn_block__ssm_conv_h3__prompt"
DIAG = "--diag" in sys.argv
EXP = [x[6:] for x in sys.argv if x.startswith("--exp=")]

WOFF = int(([e[4:] for e in EXP if e.startswith("woff")] + ["0"])[0]) << 20
WS_U = 0
WS_PQ = 0x280000 + WOFF
WS_Y = 0x500000 + WOFF
WS_WOP = 0x780000 + WOFF
WS_KV = 0x850000 + WOFF
WS_C = 0x860000 + WOFF
CDELTA = 320 * 256
WS_FK = WS_C
WS_FY = WS_C + 8 * 256
WS_FQ = WS_C + 64 * 256
WS_G = 0x88C000 + WOFF
WS_TS = 0x890000 + WOFF
WS_SIZE = 0x900000 + WOFF
KVH = 1792

NQ = int(([e[2:] for e in EXP if e.startswith("nq")] + ["0"])[0])
NU = 64 + 64 * NQ
Q0 = int(([e[2:] for e in EXP if e.startswith("q0")] + ["2"])[0])
G0, G1 = 16 + 4 * Q0, 32 - 4 * Q0
SLOT = 36864
L_OFR = 36864
L_KVS = 77824
L_YST = 92160
L_PART = 77824
L_UB = 110592
L_UD = L_UB + 2048
L_HB = 129024
HSTR = 4224
L_SP = 145920
L_CNT = 146048
L_TAG = 146112
L_YT = 146176
L_S0C = 0
L_RPC = 49152
L_GW = L_YT + 10240
LDS_BYTES = L_GW + 2048

SX, SWQ, SWO, SK, SV, SSK, SH, SGW, SOUT, SDBG, SWS = [4 + 4 * i for i in range(11)]
SD = 48
sW, sXCD, sIDX, sRP, sCP, sTAG, sCNT = range(50, 57)
sRB, sCG, sQUAD, sCHL, sLC, sVAR, sCH, sJ, sUD = range(57, 66)
sT0, sT1, sT2, sT3, sT4, sT5, sT6, sT7 = range(66, 74)
sLOG = 74
sCI = 76
sDV = 77
STS = 80
sXOFF, sPQO, sKVO, sTB, sYO, sYM = 96, 97, 98, 99, 100, 101
sCHB = 65
sRD = 3
sWOO = 2
sEPS = 79
sBID = 78
def srd(b): return sr(b, 4)

vL = 0
VWO = 156
vL16, vOW, vPR, vRR, vPW = 1, 2, 3, 4, 5
vKE, vKO, vFK, vFY, vZ, vOUT, vPA, vPB, vYT, vFT, vGO = 9, 10, 11, 12, 13, 14, 15, 16, 17, 18, 19
vXD, vG, vXD2 = 20, 24, 28
vFQ, vFE = 27, 25

a = Asm()
BST = [None]
def stamp(i, force=False):
    if "bst" in EXP and not force and i not in (0, 10): return
    if DIAG:
        a(f"{'s_memtime' if 'cyc' in EXP else 's_memrealtime'} vcc")
        a("s_waitcnt lgkmcnt(0)")
        a(f"s_mov_b32 s{STS+i}, vcc_lo")

def poll(vaddr, vdst, state="none", sleep=2, S=None):
    L = a.newlabel("Lpoll"); D = a.newlabel("Lpd")
    if state != "none":
        if state == "issued": a("s_waitcnt vmcnt(0)")
        a(f"v_cmp_ne_u32 vcc, s{sTAG}, v{vdst}")
        a(f"s_cbranch_vccz {D}")
    a(f"s_mov_b32 s{sCNT}, 0x20000")
    a.label(L)
    a(f"buffer_load_dword v{vdst}, v{vaddr}, {srd(S or SWS)}, 0 offen sc1")
    a("s_waitcnt vmcnt(0)")
    a(f"v_cmp_ne_u32 vcc, s{sTAG}, v{vdst}")
    a(f"s_cbranch_vccz {D}")
    if sleep: a(f"s_sleep {sleep}")
    a(f"s_sub_u32 s{sCNT}, s{sCNT}, 1")
    a(f"s_cbranch_scc0 {L}")
    a.label(D)

def cnt_load(S, vaddr, vdst):
    a(f"buffer_load_dword v{vdst}, v{vaddr}, {srd(S)}, 0 offen sc1")

def tag_get(vz, vdst, state="issued"):
    L = a.newlabel("Ltag"); D = a.newlabel("Ltd")
    if state != "none":
        if state == "issued": a("s_waitcnt vmcnt(0)")
        a(f"v_readfirstlane_b32 s{sTAG}, v{vdst}")
        a(f"s_cmp_lg_u32 s{sTAG}, 0")
        a(f"s_cbranch_scc1 {D}")
    a(f"s_mov_b32 s{sCNT}, 0x20000")
    a.label(L)
    a(f"buffer_load_dword v{vdst}, v{vz}, {srd(SDBG)}, 0 offen sc1")
    a("s_waitcnt vmcnt(0)")
    a(f"v_readfirstlane_b32 s{sTAG}, v{vdst}")
    a(f"s_cmp_lg_u32 s{sTAG}, 0")
    a(f"s_cbranch_scc1 {D}")
    a("s_sleep 2")
    a(f"s_sub_u32 s{sCNT}, s{sCNT}, 1")
    a(f"s_cbranch_scc0 {L}")
    a.label(D)

def tag_lds(vtmp):
    a(f"v_mov_b32 v{vtmp}, {L_TAG}")
    a(f"ds_read_b32 v{vtmp}, v{vtmp}")
    a("s_waitcnt lgkmcnt(0)")
    a(f"v_readfirstlane_b32 s{sTAG}, v{vtmp}")

def arr_prep(vt0, vt1):
    a(f"v_mov_b32 v{vt0}, {CDELTA}")
    a(f"v_mov_b32 v{vt1}, 1")
def arr_issue(vt0, vt1, soff):
    a("s_mov_b64 exec, 1")
    a(f"buffer_atomic_add v{vt1}, v{vt0}, {srd(SWS)}, {soff} offen sc0 sc1")
    a("s_mov_b64 exec, -1")
def arr_finish(vt0, vt1, soff, n, wait=0):
    D = a.newlabel("Lal")
    a(f"s_waitcnt vmcnt({wait})")
    a(f"v_readfirstlane_b32 s{sT7}, v{vt1}")
    a(f"s_cmp_lg_u32 s{sT7}, {n-1}")
    a(f"s_cbranch_scc1 {D}")
    flag_store(vt0, vt1, soff)
    a.label(D)
def flag_store(vt0, vt1, soff):
    a(f"v_mov_b32 v{vt0}, 0")
    a(f"v_mov_b32 v{vt1}, s{sTAG}")
    a("s_mov_b64 exec, 1")
    a(f"buffer_store_dword v{vt1}, v{vt0}, {srd(SWS)}, {soff} offen sc1")
    a("s_mov_b64 exec, -1")

def darr_issue(vz, v1, off):
    a(f"v_mov_b32 v{v1}, 1")
    a("s_mov_b64 exec, 1")
    a(f"buffer_atomic_add v{v1}, v{vz}, {srd(SDBG)}, 0 offen offset:{off} sc0 sc1")
    a("s_mov_b64 exec, -1")
def darr_finish(vz, v1, off, n, wait=0):
    D = a.newlabel("Lda")
    a(f"s_waitcnt vmcnt({wait})")
    a(f"v_readfirstlane_b32 s{sT7}, v{v1}")
    a(f"s_cmp_lg_u32 s{sT7}, {n-1}")
    a(f"s_cbranch_scc1 {D}")
    a(f"v_mov_b32 v{v1}, 1")
    a("s_mov_b64 exec, 1")
    a(f"buffer_store_dword v{v1}, v{vz}, {srd(SDBG)}, 0 offen offset:{128+off} sc1")
    a("s_mov_b64 exec, -1")
    a.label(D)

def lds_arrive(vaddr, vtmp):
    a(f"v_mov_b32 v{vtmp}, 1")
    a("s_mov_b64 exec, 1")
    a(f"ds_add_u32 v{vaddr}, v{vtmp}")
    a("s_mov_b64 exec, -1")
def lds_wait(vaddr, vtmp, target):
    L = a.newlabel("Lls"); D = a.newlabel("Lld")
    a(f"s_mov_b32 s{sCNT}, 0x400000")
    a.label(L)
    a(f"ds_read_b32 v{vtmp}, v{vaddr}")
    a("s_waitcnt lgkmcnt(0)")
    a(f"v_readfirstlane_b32 s{sT7}, v{vtmp}")
    a(f"s_cmp_ge_u32 s{sT7}, {target}")
    a(f"s_cbranch_scc1 {D}")
    a(f"s_sub_u32 s{sCNT}, s{sCNT}, 1")
    a(f"s_cbranch_scc0 {L}")
    a.label(D)

def div20(vq, vr_, vp):
    a(f"v_mul_u32_u24 v{vq}, 3277, v{vp}")
    a(f"v_lshrrev_b32 v{vq}, 16, v{vq}")
    a(f"v_mul_u32_u24 v{vr_}, 20, v{vq}")
    a(f"v_sub_u32 v{vr_}, v{vp}, v{vr_}")
for p in range(1000): assert (p * 3277) >> 16 == p // 20

SIZES = {SX: 2621440, SWQ: 2457600, SWO: 819200, SK: 2621440, SV: 2621440, SSK: 5120, SH: 2621440, SGW: 1280, SOUT: 2621440, SDBG: 256, SWS: WS_SIZE}
def srd_init(lst):
    for s in lst:
        a(f"s_mov_b32 s{s+2}, {SIZES[s]}")
        a(f"s_mov_b32 s{s+3}, 0x20000")
def ka_rest():
    if "ka1" not in EXP: return
    for s, off in ((SK, 32), (SV, 40), (SSK, 48), (SWS, 96), (SDBG, 88), (SH, 56), (SWO, 16), (SGW, 72), (SOUT, 80), (SD, 64)):
        a(f"s_load_dwordx2 {sr(s,2)}, s[0:1], {off}")
def common_scalars():
    a(f"s_mov_b32 s{sLOG}, 0x3fb8aa3b")
    a(f"s_mov_b32 s{sLOG+1}, 0x3fb8aa3b")
    a(f"s_mov_b32 s{sEPS}, 0x358637bd")
    a(f"s_mul_i32 s{sT0}, s{sCP}, {32-G0}")
    a(f"s_lshl_b32 s{sCI}, s{sRP}, 4")
    a(f"s_add_u32 s{sCI}, s{sCI}, s{sT0}")
    a(f"s_add_u32 s{sCI}, s{sCI}, s{sIDX}")
    a(f"s_sub_u32 s{sCI}, s{sCI}, s{sXCD}")

def entry():
    a.label("Lentry")
    a(f"s_cmp_ge_u32 s2, 256")
    a("s_cbranch_scc1 Lend")
    if "scr" in EXP:
        a("s_and_b32 s3, s2, 31")
        a("s_lshl_b32 s3, s3, 3")
        a("s_lshr_b32 s2, s2, 5")
        a("s_or_b32 s2, s2, s3")
    if DIAG: a(f"s_memrealtime {sr(sT6,2)}")
    a(f"s_getpc_b64 {sr(sT0,2)}")
    a.label("Lpcref")
    a(f"s_lshr_b32 s{sIDX}, s2, 3")
    a(f"s_mul_i32 s{sT2}, s{sIDX}, 9")
    a("v_min_u32 v1, 8, v0")
    a(f"v_add_lshl_u32 v1, v1, s{sT2}, 7")
    a("v_min_u32 v1, Lend-Lpcref, v1")
    if "nocpf" not in EXP: a(f"global_load_dword v255, v1, {sr(sT0,2)}")
    for s, off in ((SX, 0), (SWQ, 8), (SK, 32), (SV, 40), (SSK, 48), (SWS, 96), (SDBG, 88), (SH, 56), (SWO, 16), (SGW, 72), (SOUT, 80), (SD, 64)):
        if "ka1" in EXP and off >= 16: continue
        a(f"s_load_dwordx2 {sr(s,2)}, s[0:1], {off}")
    a("v_lshrrev_b32 v1, 6, v0")
    a(f"v_and_b32 v{vL}, 63, v0")
    a(f"v_readfirstlane_b32 s{sW}, v1")
    a("s_bitcmp1_b32 s2, 2")
    a(f"s_cselect_b32 s{sXCD}, {G1}, {G0}")
    a(f"s_and_b32 s{sRP}, s2, 3")
    a(f"s_bfe_u32 s{sCP}, s2, 0x10002")
    a(f"s_mov_b32 s{sBID}, s2")
    a(f"s_mov_b32 s{sTAG}, 1")
    a(f"s_and_b32 s{sT0}, s{sIDX}, 3")
    a(f"s_lshl_b32 s{sRB}, s{sRP}, 2")
    a(f"s_add_u32 s{sRB}, s{sRB}, s{sT0}")
    if DIAG:
        for i in range(16): a(f"s_mov_b32 s{STS+i}, 0")
        stamp(0)
        a(f"s_mov_b32 s{STS+10}, s{sT6}")
        a(f"s_memtime vcc")
        a("s_waitcnt lgkmcnt(0)")
        a(f"s_mov_b32 s{STS+14}, vcc_lo")
    a(f"s_cmp_ge_u32 s{sIDX}, s{sXCD}")
    a("s_cbranch_scc1 Lctype")
    a(f"s_cmp_lt_u32 s{sW}, 4")
    a("s_cbranch_scc1 Lawave")

def s3_setup(split=None):
    a.c("S3 setup")
    sR3, sC3 = sT2, sT3
    a(f"s_lshr_b32 s{sT0}, s{sIDX}, 1")
    a(f"s_lshl_b32 s{sR3}, s{sRP}, 4")
    a(f"s_add_u32 s{sR3}, s{sR3}, s{sT0}")
    a(f"s_and_b32 s{sT0}, s{sIDX}, 1")
    a(f"s_lshl_b32 s{sC3}, s{sCP}, 1")
    a(f"s_add_u32 s{sC3}, s{sC3}, s{sT0}")
    a(f"v_lshlrev_b32 v{vL16}, 4, v{vL}")
    a(f"v_mov_b32 v{vZ}, 0")
    a(f"v_lshrrev_b32 v24, 4, v{vL}")
    a(f"v_and_b32 v25, 3, v{vL}")
    a(f"v_bfe_u32 v26, v{vL}, 2, 2")
    a(f"s_and_b32 s{sT0}, s{sW}, 1")
    a(f"s_lshl_b32 s{sT1}, s{sT0}, 4")
    a("v_lshl_add_u32 v27, v24, 2, v25")
    a(f"v_add_u32 v27, s{sT1}, v27")
    a(f"v_mul_u32_u24 v{vOUT}, 1280, v27")
    a(f"v_lshl_add_u32 v{vOUT}, v26, 4, v{vOUT}")
    a(f"s_mul_i32 s{sXOFF}, s{sR3}, 40960")
    a(f"s_mul_i32 s{sT4}, s{sC3}, 320")
    a(f"s_add_u32 s{sYO}, s{sXOFF}, {WS_Y}")
    a(f"s_add_u32 s{sXOFF}, s{sXOFF}, s{sT4}")
    a(f"s_lshr_b32 s{sT4}, s{sW}, 1")
    a(f"s_lshl_b32 s{sT5}, s{sT4}, 6")
    a(f"s_add_u32 s{sXOFF}, s{sXOFF}, s{sT5}")
    a(f"s_lshl_b32 s{sT5}, s{sR3}, 7")
    a(f"s_add_u32 s{sT5}, s{sT5}, {WS_G}")
    a(f"v_lshlrev_b32 v{vGO}, 2, v27")
    a(f"v_add_u32 v{vGO}, s{sT5}, v{vGO}")
    a(f"v_bfe_u32 v{vPA}, v27, 1, 1")
    a(f"v_and_b32 v{vPB}, 1, v27")
    a(f"v_lshl_or_b32 v{vPA}, v{vPB}, 1, v{vPA}")
    a(f"v_and_or_b32 v{vPA}, v27, 4, v{vPA}")
    a(f"v_lshlrev_b32 v{vPB}, 1, v26")
    a(f"v_xor_b32 v{vPA}, v{vPA}, v{vPB}")
    a(f"v_lshlrev_b32 v{vPA}, 4, v{vPA}")
    a(f"v_lshl_add_u32 v{vPA}, v27, 7, v{vPA}")
    a(f"s_mul_i32 s{sT5}, s{sT4}, 12288")
    a(f"s_add_u32 s{sT5}, s{sT5}, {L_PART}")
    a(f"v_add_u32 v{vPA}, s{sT5}, v{vPA}")
    a(f"v_xor_b32 v{vPB}, 16, v{vPA}")
    a(f"v_lshl_add_u32 v{vYT}, v25, 3, v26")
    a(f"v_lshlrev_b32 v{vYT}, 6, v{vYT}")
    a(f"v_lshl_add_u32 v{vYT}, v24, 3, v{vYT}")
    a(f"s_lshl_b32 s{sT4}, s{sT4}, 11")
    a(f"s_lshl_b32 s{sT1}, s{sT1}, 1")
    a(f"s_add_u32 s{sT4}, s{sT4}, s{sT1}")
    a(f"s_add_u32 s{sT4}, s{sT4}, {L_YT}")
    a(f"v_add_u32 v{vYT}, s{sT4}, v{vYT}")
    if split: split(0)
    a(f"v_and_b32 v24, 31, v{vL}")
    a(f"v_lshrrev_b32 v25, 5, v{vL}")
    a(f"v_bfe_u32 v{vPW}, v24, 1, 1")
    a("v_and_b32 v26, 1, v24")
    a(f"v_lshl_or_b32 v{vPW}, v26, 1, v{vPW}")
    a(f"v_and_or_b32 v{vPW}, v24, 4, v{vPW}")
    a(f"v_xor_b32 v{vPW}, v{vPW}, v25")
    a(f"v_lshlrev_b32 v{vPW}, 4, v{vPW}")
    a(f"v_lshl_add_u32 v{vPW}, v24, 7, v{vPW}")
    a(f"s_lshl_b32 s{sT4}, s{sT0}, 12")
    a(f"s_add_u32 s{sT5}, s{sT5}, s{sT4}")
    a(f"v_add_u32 v{vPW}, s{sT5}, v{vPW}")
    for q in range(1, 4): a(f"v_xor_b32 v{vPW+q}, {32*q}, v{vPW}")
    a(f"s_mul_i32 s{sT4}, s{sW}, 12288")
    a(f"s_add_u32 s{sT4}, s{sT4}, {L_PART+8192}")
    a(f"s_lshl_b32 s{sT1}, s{sW}, 12")
    a(f"s_add_u32 s{sT1}, s{sT1}, {L_PART+49152-16384}")
    a(f"s_cmp_lt_u32 s{sW}, 4")
    a(f"s_cselect_b32 s{sT4}, s{sT4}, s{sT1}")
    a(f"s_sub_u32 s{sRD}, s{sT4}, s{sT5}")
    a(f"s_sub_u32 s{sT1}, s{sW}, 4")
    a(f"s_cmp_lt_u32 s{sW}, 4")
    a(f"s_cselect_b32 s{sT1}, 3, s{sT1}")
    a(f"s_mul_i32 s{sT1}, s{sT1}, {10*1024}")
    a(f"s_add_u32 s{sT1}, s{sT1}, {L_OFR}")
    a(f"v_add_u32 v{vRR}, s{sT1}, v{vL16}")
    a(f"s_mul_i32 s{sT1}, s{sT0}, {15*1024}")
    a(f"s_add_u32 s{sT1}, s{sT1}, {L_OFR}")
    a(f"v_add_u32 v{vPR}, s{sT1}, v{vL16}")
    a(f"s_mul_i32 s{sT1}, s{sW}, 5120")
    a(f"s_add_u32 s{sT4}, s{sT1}, {L_OFR}")
    a(f"v_add_u32 v{vOW}, s{sT4}, v{vL16}")
    a(f"s_add_u32 s{sPQO}, s{sYO}, s{sT1}")
    a(f"s_add_u32 s{sPQO}, s{sPQO}, {(WS_PQ-WS_Y)&0xffffffff}")
    if split: split(1)
    a("v_mul_u32_u24 v25, 336, v25")
    a("v_min_u32 v26, 20, v24")
    a("v_lshl_add_u32 v26, v26, 4, v25")
    a("v_lshrrev_b32 v27, 2, v24")
    a(f"v_mov_b32 v{vFT}, 0x7f000000")
    a("v_cmp_eq_u32 vcc, 5, v27")
    a(f"v_subrev_u32 v{vKO}, 4, v24")
    a(f"v_lshl_add_u32 v{vKO}, v{vKO}, 4, v25")
    a(f"v_cndmask_b32 v{vKE}, v26, v{vFT}, vcc")
    a(f"v_cndmask_b32 v{vKO}, v26, v{vKO}, vcc")
    a("v_cmp_eq_u32 vcc, 4, v27")
    a(f"s_mul_i32 s{sKVO}, s{sW}, {4*KVH}")
    a(f"s_add_u32 s{sKVO}, s{sKVO}, {WS_KV}")
    a(f"v_cndmask_b32 v{vKO}, v{vKO}, v{vFT}, vcc")
    a(f"s_lshl_b32 s{sT1}, s{sW}, 8")
    a(f"s_add_u32 s{sT1}, s{sT1}, {WS_FK}")
    a(f"v_mov_b32 v{vFK}, s{sT1}")
    a(f"s_lshr_b32 s{sT1}, s{sR3}, 1")
    a(f"s_lshl_b32 s{sT1}, s{sT1}, 3")
    a(f"s_add_u32 s{sT1}, s{sT1}, s{sW}")
    a(f"s_lshl_b32 s{sT1}, s{sT1}, 8")
    a(f"s_add_u32 s{sT1}, s{sT1}, {WS_FQ}")
    a(f"v_mov_b32 v{vFQ}, s{sT1}")
    a(f"v_writelane_b32 v{vFK}, s{sT1}, 0")
    a(f"s_lshr_b32 s{sT1}, s{sR3}, 3")
    a(f"s_add_u32 s{sT1}, s{sT1}, 2")
    a(f"s_bfe_u32 s{sT1}, s{sT1}, 0x10002")
    a(f"s_mul_i32 s{sT1}, s{sT1}, 20")
    a(f"s_mul_i32 s{sT4}, s{sC3}, 5")
    a(f"s_min_u32 s{sT5}, s{sW}, 4")
    a(f"s_add_u32 s{sT4}, s{sT4}, s{sT5}")
    a(f"s_add_u32 s{sT1}, s{sT1}, s{sT4}")
    a(f"s_lshl_b32 s{sT1}, s{sT1}, 8")
    a(f"s_add_u32 s{sT1}, s{sT1}, {WS_FY}")
    a(f"v_mov_b32 v{vFY}, s{sT1}")
    a(f"s_lshl_b32 s{sT4}, s{sT4}, 11")
    a(f"s_add_u32 s{sYO}, s{sYO}, s{sT4}")
    a(f"s_lshl_b32 s{sYM}, s{sT5}, 11")
    a(f"s_add_u32 s{sYM}, s{sYM}, {L_YT}")

def x_loads():
    a(f"buffer_load_dwordx4 {vr(vXD,4)}, v{vOUT}, {srd(SX)}, s{sXOFF} offen")
    a(f"s_cmp_lt_u32 s{sW}, 2")
    a("s_cselect_b64 exec, -1, 1")
    a(f"buffer_load_dwordx4 {vr(vXD2,4)}, v{vOUT}, {srd(SX)}, s{sXOFF} offen offset:256")
    a("s_mov_b64 exec, -1")

def wo_prep(vtmp):
    a(f"s_and_b32 s{sT4}, s{sIDX}, 1")
    a(f"s_lshl_b32 s{sT5}, s{sCP}, 1")
    a(f"s_add_u32 s{sT4}, s{sT4}, s{sT5}")
    a(f"s_lshl_b32 s{sT4}, s{sT4}, 3")
    a(f"s_add_u32 s{sT4}, s{sT4}, s{sW}")
    a(f"s_mul_i32 s{sT4}, s{sT4}, 25600")
    a(f"s_add_u32 s{sWOO}, s{sT4}, {WS_WOP}")
    a(f"v_lshlrev_b32 v{vtmp}, 4, v{vL}")
def wo_list(vtmp, order=None):
    out = []
    for i in range(25):
        t = f"buffer_load_dwordx4 {vr(VWO+4*i,4)}, v{vtmp}, {srd(SWS)}, s{sWOO} offen offset:{1024*(i&3)} sc1"
        if (i & 3) == 3: t += f"\ns_add_u32 s{sWOO}, s{sWOO}, 4096"
        out.append(t)
    return out

S0B = 156
def s0_task(st):
    a(f"s_mul_i32 s{sTB}, s{st}, 6554")
    a(f"s_lshr_b32 s{sTB}, s{sTB}, 16")
    a(f"s_mul_i32 s{sCHB}, s{sTB}, 10")
    a(f"s_sub_u32 s{sCHB}, s{st}, s{sCHB}")
for t in range(640): assert (t * 6554) >> 16 == t // 10

def s0_loads(LB=None, init=True):
    a.c("S0 loads")
    B = S0B
    a(f"v_lshrrev_b32 v{B+1}, 3, v{vL}")
    a(f"v_and_b32 v{B+2}, 7, v{vL}")
    a(f"v_mul_u32_u24 v{B+3}, 5120, v{B+1}")
    a(f"v_lshl_add_u32 v{B+3}, v{B+2}, 4, v{B+3}")
    a(f"s_mul_i32 s{sT0}, s{sTB}, 40960")
    a(f"s_lshl_b32 s{sT1}, s{sCHB}, 7")
    a(f"s_add_u32 s{sT0}, s{sT0}, s{sT1}")
    a(f"v_add_u32 v{B+64}, s{sT0}, v{B+3}")
    a(f"v_subrev_u32 v{B+65}, 3840, v{B+64}")
    a(f"v_lshlrev_b32 v{B+66}, 6, v{B+2}")
    a(f"s_lshl_b32 s{sT1}, s{sCHB}, 9")
    if init:
        srd_init([SK, SV, SSK])
        a("s_waitcnt lgkmcnt(0)")
    LB = LB or B
    for i in range(4): a(f"buffer_load_dwordx4 {vr(LB+16+4*i,4)}, v{B+64}, {srd(SK)}, 0 offen offset:{1280*i}")
    for i in range(3): a(f"buffer_load_dwordx4 {vr(LB+4+4*i,4)}, v{B+65}, {srd(SK)}, 0 offen offset:{1280*i}")
    for i in range(4): a(f"buffer_load_dwordx4 {vr(LB+32+4*i,4)}, v{B+64}, {srd(SV)}, 0 offen offset:{1280*i}")
    for i in range(4): a(f"buffer_load_dwordx4 {vr(LB+48+4*i,4)}, v{B+66}, {srd(SSK)}, s{sT1} offen offset:{16*i}")

def s0_addr(s_scr):
    B = S0B
    a(f"v_mul_u32_u24 v{B+67}, 576, v{B+1}")
    a(f"v_lshl_add_u32 v{B+67}, v{B+2}, 4, v{B+67}")
    a(f"v_add_u32 v{B+67}, s{s_scr}, v{B+67}")
    a(f"v_and_b32 v{B+68}, 15, v{vL}")
    a(f"v_mul_u32_u24 v{B+69}, 144, v{B+68}")
    a(f"v_lshrrev_b32 v{B+70}, 4, v{vL}")
    a(f"v_lshl_add_u32 v{B+69}, v{B+70}, 3, v{B+69}")
    a(f"v_add_u32 v{B+69}, s{s_scr}, v{B+69}")
    a(f"s_and_b32 s{sT0}, s{sTB}, 3")
    a(f"v_xor_b32 v{B+68}, s{sT0}, v{B+68}")
    a(f"v_lshlrev_b32 v{B+68}, 4, v{B+68}")
    a(f"v_lshl_add_u32 v{B+68}, v{B+70}, 14, v{B+68}")
    a(f"s_lshl_b32 s{sT0}, s{sCHB}, 18")
    a(f"s_lshl_b32 s{sT1}, s{sTB}, 8")
    a(f"s_add_u32 s{sT0}, s{sT0}, s{sT1}")
    if WOFF: a(f"s_add_u32 s{sT0}, s{sT0}, {WOFF}")
    a(f"s_mov_b32 s{sT1}, 0xffff0000")

def s0_compute(split=None, pk=True, LB=None):
    a.c("S0 compute")
    B = S0B
    LB = LB or B
    KF, VF, WF, AC, UO = 112, 126, 134, B + 88, B + 72
    for p in range(4):
        for cc in range(2):
            c = 2 * p + cc
            for h in range(2):
                a(f"v_lshlrev_b32 v{WF+4*h+cc}, 16, v{LB+48+2*c+h}")
                a(f"v_and_b32 v{WF+4*h+2+cc}, s{sT1}, v{LB+48+2*c+h}")
        for r in range(7):
            a(f"v_lshlrev_b32 v{KF+2*r}, 16, v{LB+4+4*r+p}")
            a(f"v_and_b32 v{KF+2*r+1}, s{sT1}, v{LB+4+4*r+p}")
        for r in range(4):
            a(f"v_lshlrev_b32 v{VF+2*r}, 16, v{LB+32+4*r+p}")
            a(f"v_and_b32 v{VF+2*r+1}, s{sT1}, v{LB+32+4*r+p}")
        if pk:
            for i in range(4): a(f"v_pk_mul_f32 {vr(AC+2*i,2)}, {vr(KF+2*(i+3),2)}, {vr(WF,2)}")
            for d in range(1, 4):
                for i in range(4): a(f"v_pk_fma_f32 {vr(AC+2*i,2)}, {vr(KF+2*(i+3-d),2)}, {vr(WF+2*d,2)}, {vr(AC+2*i,2)}")
            for i in range(4): a(f"v_pk_mul_f32 {vr(AC+2*i,2)}, {vr(AC+2*i,2)}, {vr(VF+2*i,2)}")
        else:
            for i in range(8): a(f"v_mul_f32 v{AC+i}, v{KF+6+i}, v{WF+(i&1)}")
            for d in range(1, 4):
                for i in range(8): a(f"v_fmac_f32 v{AC+i}, v{KF+6+i-2*d}, v{WF+2*d+(i&1)}")
            for i in range(8): a(f"v_mul_f32 v{AC+i}, v{AC+i}, v{VF+i}")
        for i in range(4): a(f"v_cvt_pk_bf16_f32 v{UO+4*i+p}, v{AC+2*i}, v{AC+2*i+1}")
        if split: split(p)
    for i in range(4): a(f"ds_write_b128 v{B+67}, {vr(UO+4*i,4)} offset:{144*i}")
    for j in range(4):
        a(f"ds_read_b64_tr_b16 {vr(LB+4+4*j,2)}, v{B+69} offset:{32*j}")
        a(f"ds_read_b64_tr_b16 {vr(LB+6+4*j,2)}, v{B+69} offset:{32*j+2304}")
    for j in range(4):
        a(f"s_waitcnt lgkmcnt({6-2*j})")
        a(f"buffer_store_dwordx4 {vr(LB+4+4*j,4)}, v{B+68}, {srd(SWS)}, s{sT0} offen sc1")
        if j < 3: a(f"s_add_u32 s{sT0}, s{sT0}, 65536")

def f0_off(sd):
    a(f"s_lshl_b32 s{sd}, s{sCHB}, 8")
    a(f"s_add_u32 s{sd}, s{sd}, {WS_F0}")

ACC = 32
FB = [112, 156]
vX0, vX1, vWA, vWX = 148, 149, 150, 154
vA1, vA2, vC16, vG4 = 16, 17, 18, 19
sC, sSL = sT2, sT3

def a_setup():
    a.c("A-wave address setup")
    a(f"s_and_b32 s{sT0}, s{sW}, 1")
    a(f"s_lshr_b32 s{sT1}, s{sW}, 1")
    a(f"v_and_b32 v{vC16}, 15, v{vL}")
    a(f"v_lshrrev_b32 v{vG4}, 4, v{vL}")
    a(f"v_lshrrev_b32 v8, 1, v{vC16}")
    a(f"v_xor_b32 v8, v{vG4}, v8")
    a(f"v_lshlrev_b32 v8, 4, v8")
    a(f"v_lshl_add_u32 v8, v{vC16}, 7, v8")
    a(f"s_lshl_b32 s{sT4}, s{sT1}, 13")
    a(f"v_add_u32 v{vX0}, s{sT4}, v8")
    a(f"v_xor_b32 v{vX1}, 64, v{vX0}")
    a(f"v_bfe_u32 v8, v{vL}, 2, 2")
    a(f"v_lshl_add_u32 v9, v{vG4}, 3, v8")
    a(f"v_and_b32 v10, 1, v{vG4}")
    a(f"v_xor_b32 v10, s{sT0}, v10")
    a(f"v_and_b32 v11, 3, v{vL}")
    a("v_lshlrev_b32 v11, 3, v11")
    a(f"v_lshl_add_u32 v{vWX}, v9, 6, v11")
    a(f"v_lshl_add_u32 v{vWX}, v10, 5, v{vWX}")
    a(f"v_add_u32 v{vWX}, 32768, v{vWX}")
    a("v_lshl_or_b32 v8, v10, 2, v8")
    a("v_lshl_add_u32 v8, v8, 5, v11")
    a("v_lshl_add_u32 v8, v9, 8, v8")
    a(f"v_add_u32 v{vWA}, 16384, v8")
    for tt in range(1, 4): a(f"v_xor_b32 v{vWA+tt}, {32*tt}, v{vWA}")

def a_reads(buf, ks):
    b = FB[buf]
    xs = [f"ds_read_b128 {vr(b+4*rt,4)}, v{vX1 if ks else vX0} offset:{2048*rt}" for rt in range(4)]
    ws = []
    for tt in range(5):
        for sec in range(2):
            if tt < 4: ws.append(f"ds_read_b64_tr_b16 {vr(b+16+4*tt+2*sec,2)}, v{vWA+tt} offset:{ks*8192+sec*1024}")
            else: ws.append(f"ds_read_b64_tr_b16 {vr(b+16+4*tt+2*sec,2)}, v{vWX} offset:{ks*2048+sec*256}")
    return [xs[0], ws[0], ws[1], xs[1], ws[2], ws[3], xs[2], ws[4], ws[5], xs[3]] + ws[6:]

def acc(rt, tt): return ACC + 4 * (rt * 5 + tt)

def a_mfmas(buf, qtype, order=None):
    b = FB[buf]
    out = []
    for (rt, tt) in (order or [(rt, tt) for tt in range(5) for rt in range(4)]):
        d = vr(acc(rt, tt), 4)
        xf = vr(b + 4 * rt, 4); wf = vr(b + 16 + 4 * tt, 4)
        A, B = (wf, xf) if qtype else (xf, wf)
        out.append(f"v_mfma_f32_16x16x32_bf16 {d}, {A}, {B}, {d}")
    return out

def interleave(mf, rd):
    j = 0
    for i, m in enumerate(mf):
        a(m)
        if j < len(rd): a(rd[j]); j += 1
    while j < len(rd): a(rd[j]); j += 1

def a_mainloop(qtype):
    t = "q" if qtype else "k"
    a.c("A main loop")
    a(f"s_mov_b32 s{sC}, 0")
    a(f"s_mov_b32 s{sSL}, 0")
    a(f"s_mov_b32 s{sT6}, {1<<10}")
    if qtype:
        a(f"s_cmp_lt_u32 s{sW}, {NQ}")
        a(f"s_cselect_b32 s{sT6}, {(1<<10)|(1<<1)|(1<<3)}, s{sT6}")
    if "noprio" not in EXP: a("s_setprio 2")
    a("s_waitcnt lgkmcnt(0)")
    if "ast" in EXP: stamp(1, True)
    a("s_barrier")
    stamp(1)
    for r in a_reads(0, 0): a(r)
    book = [
        f"s_add_u32 s{sSL}, s{sSL}, 1\ns_cmp_eq_u32 s{sSL}, 3",
        f"s_mov_b32 s{sT4}, {SLOT}",
        f"s_cselect_b32 s{sT4}, {-2*SLOT & 0xffffffff}, s{sT4}",
        f"s_cselect_b32 s{sSL}, 0, s{sSL}\ns_add_u32 s{sC}, s{sC}, 1",
    ]
    src_ = f"s{sT4}"
    rd = a_reads(1, 1)
    seq = []
    for i, r in enumerate(rd): seq.append(r + ("\n" + book[i - 2] if 2 <= i < 6 else ""))
    seq += [f"v_add_u32 v{vX0}, {src_}, v{vX0}\nv_add_u32 v{vX1}, {src_}, v{vX1}",
            f"v_add_u32 v{vWA}, {src_}, v{vWA}\nv_add_u32 v{vWA+1}, {src_}, v{vWA+1}",
            f"v_add_u32 v{vWA+2}, {src_}, v{vWA+2}\nv_add_u32 v{vWA+3}, {src_}, v{vWA+3}",
            f"v_add_u32 v{vWX}, {src_}, v{vWX}\ns_bitcmp1_b32 s{sT6}, s{sC}"]
    a(".p2align 3")
    a.label(f"Lml{t}")
    a("s_waitcnt lgkmcnt(0)")
    interleave(a_mfmas(0, qtype), seq)
    a("s_waitcnt lgkmcnt(0)")
    a(f"s_cbranch_scc1 Lhook{t}")
    a.label(f"Lhookd{t}")
    if "ast" in EXP:
        a("s_memrealtime vcc")
        a("s_waitcnt lgkmcnt(0)")
        a(f"s_mov_b32 m0, s{sC}")
        a("v_writelane_b32 v29, vcc_lo, m0")
    a("s_barrier")
    interleave(a_mfmas(1, qtype), a_reads(0, 0))
    a(f"s_branch Lml{t}")
    a.label(f"Lhook{t}")
    if qtype:
        a(f"s_cmp_eq_u32 s{sC}, 10")
        a(f"s_cbranch_scc1 Lmx{t}")
        N2 = a.newlabel("Lhk")
        a(f"s_cmp_lg_u32 s{sC}, 1")
        a(f"s_cbranch_scc1 {N2}")
        a("s_waitcnt vmcnt(0)")
        darr_issue(24, 25, 0)
        a(f"s_branch Lhookd{t}")
        a.label(N2)
        darr_finish(24, 25, 0, NU)
        a(f"s_branch Lhookd{t}")
        a.label(f"Lmx{t}")
    if "ast" in EXP:
        for c in range(1, 9): a(f"v_readlane_b32 s{STS+1+c}, v29, {c}")

def acc_zero():
    for i in range(80): a(f"v_mov_b32 v{ACC+i}, 0")

def phi_list(regs, tmp, pk=False):
    out = []
    B = 4
    for i in range(0, len(regs), B):
        batch = regs[i:i + B]
        for j, r in enumerate(batch):
            if pk:
                out.append(f"v_pk_mul_f32 {vr(tmp+2*j,2)}, {vr(r,2)}, {sr(sLOG,2)}"); continue
            out.append(f"v_mul_f32 v{tmp+2*j}, s{sLOG}, v{r}")
            out.append(f"v_mul_f32 v{tmp+2*j+1}, s{sLOG}, v{r+1}")
        for j, r in enumerate(batch):
            out.append(f"v_exp_f32_e64 v{tmp+2*j}, v{tmp+2*j} clamp")
            out.append(f"v_exp_f32_e64 v{tmp+2*j+1}, v{tmp+2*j+1} clamp")
        for j, r in enumerate(batch):
            out.append(f"v_max_f32 v{r}, s{sEPS}, v{r}")
            out.append(f"v_max_f32 v{r+1}, s{sEPS}, v{r+1}")
        for j, r in enumerate(batch):
            if pk:
                out.append(f"v_pk_add_f32 {vr(r,2)}, {vr(r,2)}, {vr(tmp+2*j,2)}"); continue
            out.append(f"v_add_f32 v{r}, v{r}, v{tmp+2*j}")
            out.append(f"v_add_f32 v{r+1}, v{r+1}, v{tmp+2*j+1}")
    return out

def sprinkle(main, extra, every, start=0):
    j = 0
    for i, m in enumerate(main):
        a(m)
        if i >= start and (i - start) % every == every - 1 and j < len(extra):
            a(extra[j]); j += 1
    return extra[j:]

def fc_addr(v):
    a(f"v_and_b32 v{v}, 7, v{vL}")
    a(f"v_lshlrev_b32 v{v}, 8, v{v}")
    a(f"v_add_u32 v{v}, {WS_FC}, v{v}")
def f0_addr(v):
    a(f"s_lshr_b32 s{sT4}, s{sQUAD}, 4")
    a(f"s_lshl_b32 s{sT4}, s{sT4}, 8")
    a(f"s_add_u32 s{sT4}, s{sT4}, {WS_F0}")
    a(f"v_mov_b32 v{v}, s{sT4}")

def awave():
    a.label("Lawave")
    ka_rest()
    a(f"s_cmp_ge_u32 s{sIDX}, 16")
    a("s_cbranch_scc1 Lqa")
    srd_init([SWS, SDBG])
    common_scalars()
    srd_init([SX, SOUT])
    acc_zero()

def kva():
    a(f"s_lshr_b32 s{sT0}, s{sIDX}, 2")
    a(f"s_lshl_b32 s{sCG}, s{sCP}, 2")
    a(f"s_add_u32 s{sCG}, s{sCG}, s{sT0}")
    a_setup()
    a(f"s_mul_i32 s{sT4}, s{sW}, 3584")
    a(f"s_add_u32 s{sT4}, s{sT4}, {L_KVS}")
    a(f"v_mul_u32_u24 v8, 336, v{vG4}")
    a(f"v_add_u32 v8, s{sT4}, v8")
    a(f"v_lshl_add_u32 v{vA1}, v{vC16}, 4, v8")
    a(f"v_add_u32 v9, 8, v{vC16}")
    a(f"v_subrev_u32 v10, 12, v{vC16}")
    a(f"v_cmp_lt_u32 vcc, 11, v{vC16}")
    a("v_cndmask_b32 v9, v9, v10, vcc")
    a(f"v_cmp_eq_u32 vcc, 0, v{vC16}")
    a("v_mov_b32 v10, 20")
    a("v_cndmask_b32 v9, v9, v10, vcc")
    a(f"v_lshl_add_u32 v{vA2}, v9, 4, v8")
    a(f"s_lshl_b32 s{sT4}, s{sT0}, 2")
    a(f"s_add_u32 s{sT4}, s{sT4}, {L_CNT}")
    a(f"v_mov_b32 v20, s{sT4}")
    a(f"s_mul_i32 s{sT4}, s{sT0}, 3584")
    a(f"s_mul_i32 s{sT5}, s{sT1}, {KVH}")
    a(f"s_add_u32 s{sT4}, s{sT4}, s{sT5}")
    a(f"v_lshlrev_b32 v21, 2, v{vL}")
    a(f"s_add_u32 s{sT5}, s{sT4}, {L_KVS}")
    a(f"v_add_u32 v22, s{sT5}, v21")
    a(f"s_mul_i32 s{sT5}, s{sCG}, {4*KVH}")
    a(f"s_add_u32 s{sT4}, s{sT4}, s{sT5}")
    a(f"s_add_u32 s{sCH}, s{sT4}, {WS_KV}")
    a("v_mov_b32 v23, 0x3f803f80")
    a(f"s_lshl_b32 s{sLC}, s{sCG}, 8")
    a(f"s_add_u32 s{sLC}, s{sLC}, {WS_FK}")
    wo_prep(28)
    a_mainloop(False)
    a.c("KV epilogue")
    order = [(rt, tt) for tt in (4, 0, 2, 1, 3) for rt in range(4)]
    mf = a_mfmas(1, False, order)
    for m in mf[:8]: a(m)
    XP = 112
    TM = 12
    TM = 8
    a(f"v_cmp_gt_u32 vcc, 8, v{vC16}")
    def pairs(tt): return sum([[acc(rt, tt), acc(rt, tt) + 2] for rt in range(4)], [])
    def cvts(tt): return [f"v_cvt_pk_bf16_f32 v{acc(rt&2,tt)+2*(rt&1)+h}, v{acc(rt,tt)+2*h}, v{acc(rt,tt)+2*h+1}" for rt in range(4) for h in range(2)]
    L = []
    for rt in range(4):
        for h in range(2): L.append(f"v_cvt_pk_bf16_f32 v{XP+2*rt+h}, v{acc(rt,4)+2*h}, v{acc(rt,4)+2*h+1}")
    for j in range(8): L.append(f"v_cndmask_b32 v{XP+j}, v{XP+j}, v23, vcc")
    L += phi_list(pairs(4)[:4], TM, False)
    for i, m in enumerate(mf[8:]):
        a(m)
        for x in L[2 * i:2 * i + 2]: a(x)
    L = L[24:]
    stamp(2)
    pk = "nopk" not in EXP
    L += phi_list(pairs(4)[4:], TM, pk) + cvts(4) + phi_list(pairs(0), TM, pk) + cvts(0) + cvts(2) + cvts(3)
    if "aspr" in EXP: assert not sprinkle(L, wo_list(28), len(L) // 25)
    else:
        for x in L: a(x)
    def fr(t, p): return XP + 4 * p if t == 5 else acc(2 * p, t)
    prods = [(0, 2), (0, 5), (4, 2), (4, 5), (1, 3), (1, 5), (4, 3)]
    PD = 120
    def pm(lst):
        for p in range(2):
            for i in lst:
                ta, tb = prods[i]
                d = vr(PD + 4 * i, 4)
                a(f"v_mfma_f32_16x16x32_bf16 {d}, {vr(fr(ta,p),4)}, {vr(fr(tb,p),4)}, {'0' if p==0 else d}")
    def wr(i, va, off, mlo, mhi):
        t = ""
        if mlo != -1: t += f"s_mov_b32 exec_lo, {mlo}\ns_mov_b32 exec_hi, {mhi}\n"
        t += f"ds_write_b128 v{va}, {vr(PD+4*i,4)} offset:{off}"
        if mlo != -1: t += "\ns_mov_b64 exec, -1"
        return t
    pm([0, 1, 2, 3, 6])
    W1 = [wr(0, vA1, 0, -1, -1), wr(1, vA2, 0, 0x0f010f01, 0x0f010f01), wr(2, vA1, 4 * 336, 0xffff, 0),
          wr(3, vA2, 4 * 336, 0x0f01, 0), wr(3, vA2, KVH - 336, 0xf0010000, 0), wr(6, vA1, KVH + 64 - 336, 0xffff0000, 0)]
    rest = sprinkle(phi_list(pairs(1)[:4], TM, False) + phi_list(pairs(1)[4:], TM, pk) + cvts(1), W1, 8, 6)
    assert not rest
    pm([4, 5])
    a(wr(4, vA1, KVH + 336 + 64, -1, -1))
    a(wr(5, vA2, KVH + 336, 0xf001f001, 0xf001f001))
    if "econv" in EXP:
        lds_arrive(20, 24)
        lds_wait(20, 24, 2 + 4 * 256)
    else:
        a("s_waitcnt lgkmcnt(0)")
        a("s_barrier")
    for i in range(7):
        a(f"ds_read_b32 v{32+i}, v22 offset:{256*i}")
        a(f"ds_read_b32 v{40+i}, v22 offset:{256*i+7168}")
    stamp(3)
    for i in range(7):
        a(f"s_waitcnt lgkmcnt({12-2*i})")
        a(f"v_add_f32 v{32+i}, v{32+i}, v{40+i}")
        a(f"buffer_atomic_add_f32 v{32+i}, v21, {srd(SWS)}, s{sCH} offen offset:{256*i}")
    arr_prep(48, 49)
    s3_setup()
    a("s_waitcnt vmcnt(0)")
    arr_issue(48, 49, f"s{sLC}")
    arr_finish(48, 49, f"s{sLC}", 64, 0)
    a("s_setprio 0")
    stamp(4)
    a("s_branch Ls3x" if "aspr" in EXP else "s_branch Ls3")

def qa():
    a.label("Lqa")
    common_scalars()
    a(f"s_cmp_ge_u32 s{sW}, {NQ}")
    a("s_cbranch_scc1 Lq1")
    a(f"s_mov_b32 s{sTB}, s{sCI}")
    a(f"s_add_u32 s{sCHB}, s{sW}, {10-NQ}")
    s0_loads()
    a.label("Lq1")
    if "qpf" in EXP:
        a(f"v_min_u32 v1, 34, v{vL}")
        a("v_mul_u32_u24 v1, 1280, v1")
        a(f"s_mul_i32 s{sT0}, s{sCI}, 40960")
        a(f"s_lshl_b32 s{sT1}, s{sW}, 7")
        a(f"s_add_u32 s{sT0}, s{sT0}, s{sT1}")
        a(f"s_add_u32 s{sT0}, s{sT0}, 768")
        a(f"v_add_u32 v2, s{sT0}, v1")
        a("v_subrev_u32 v1, 3840, v2")
        srd_init([SK, SV])
        a("s_waitcnt lgkmcnt(0)")
        a(f"buffer_load_dword v250, v1, {srd(SK)}, 0 offen")
        a("s_mov_b32 exec_hi, 0")
        a(f"buffer_load_dword v251, v2, {srd(SV)}, 0 offen")
        a("s_mov_b32 exec_hi, -1")
    srd_init([SWS, SDBG, SX, SOUT])
    acc_zero()
    a(f"s_bfe_u32 s{sT0}, s{sIDX}, 0x20002")
    a(f"s_mul_i32 s{sCG}, s{sCP}, {Q0}")
    a(f"s_add_u32 s{sCG}, s{sCG}, s{sT0}")
    a_setup()
    a(f"v_lshrrev_b32 v8, 1, v{vG4}")
    a(f"v_and_b32 v9, 1, v{vG4}")
    a(f"v_lshlrev_b32 v20, 4, v{vC16}")
    a("v_lshl_add_u32 v20, v9, 9, v20")
    a("v_lshl_add_u32 v21, v8, 3, v20")
    a("v_add_u32 v21, 4096, v21")
    a("v_lshl_add_u32 v20, v8, 10, v20")
    a(f"s_lshl_b32 s{sT4}, s{sRB}, 1")
    a(f"s_add_u32 s{sT4}, s{sT4}, s{sT1}")
    a(f"s_lshl_b32 s{sT5}, s{sCG}, 1")
    a(f"s_add_u32 s{sT5}, s{sT5}, s{sT0}")
    a(f"s_mul_i32 s{sT0}, s{sT4}, {80*1024}")
    a(f"s_mul_i32 s{sT1}, s{sT5}, {5*1024}")
    a(f"s_add_u32 s{sT0}, s{sT0}, s{sT1}")
    a(f"s_add_u32 s{sCH}, s{sT0}, {WS_PQ}")
    a(f"s_add_u32 s{sVAR}, s{sCH}, {40*1024}")
    a(f"s_lshl_b32 s{sT4}, s{sT4}, 3")
    a(f"s_add_u32 s{sT4}, s{sT4}, s{sT5}")
    a(f"s_lshl_b32 s{sT4}, s{sT4}, 8")
    a(f"s_add_u32 s{sLC}, s{sT4}, {WS_FQ}")
    wo_prep(28)
    a("v_mov_b32 v24, 0")
    a(f"s_cmp_ge_u32 s{sW}, {NQ}")
    a("s_cbranch_scc1 Lq2")
    a(f"s_mul_i32 s{sT2}, s{sW}, 4608")
    a(f"s_add_u32 s{sT2}, s{sT2}, {2*SLOT}")
    s0_addr(sT2)
    a("s_waitcnt vmcnt(0)")
    stamp(11)
    s0_compute()
    stamp(12)
    a.label("Lq2")
    a_mainloop(True)
    a.c("Q epilogue")
    order = [(rt, tt) for rt in range(4) for tt in range(5)]
    mf = a_mfmas(1, True, order)
    for m in mf[:9]: a(m)
    L = []
    for rt in range(4):
        regs = []
        for tt in range(5): regs += [acc(rt, tt), acc(rt, tt) + 2]
        L += phi_list(regs, 112, rt > 0 and "nopk" not in EXP)
        O = acc(rt, 0)
        for tt in range(5):
            for h in range(2): L.append(f"v_cvt_pk_bf16_f32 v{O+2*tt+h}, v{acc(rt,tt)+2*h}, v{acc(rt,tt)+2*h+1}")
        so = f"s{sVAR if rt>>1 else sCH}"
        for p in range(2):
            L.append(f"buffer_store_dwordx4 {vr(O+4*p,4)}, v20, {srd(SWS)}, {so} offen offset:{256*(rt&1)+2048*p} sc1")
        L.append(f"buffer_store_dwordx2 {vr(O+8,2)}, v21, {srd(SWS)}, {so} offen offset:{256*(rt&1)} sc1")
    for i, m in enumerate(mf[9:]):
        a(m)
        for x in L[2 * i:2 * i + 2]: a(x)
    L = L[22:]
    stamp(2)
    if "aspr" in EXP: assert not sprinkle(L, wo_list(28), 8)
    else:
        for x in L: a(x)
    stamp(3)
    a("s_barrier")
    a("s_waitcnt vmcnt(0)")
    flag_store(120, 121, f"s{sLC}")
    s3_setup()
    a("s_setprio 0")
    stamp(4)
    a("s_branch Ls3x" if "aspr" in EXP else "s_branch Ls3")

def h_dma(sj, sch0):
    a(f"s_lshr_b32 s{sT4}, s{sj}, 1")
    a(f"s_and_b32 s{sT5}, s{sj}, 1")
    a(f"s_lshl_b32 s{sT5}, s{sT5}, 11")
    a(f"s_add_u32 s{sT6}, s{sch0}, s{sT4}")
    a(f"s_lshl_b32 s{sT6}, s{sT6}, 12")
    a(f"s_add_u32 s{sT6}, s{sT6}, s{sT5}")
    a(f"s_mul_i32 s{sT4}, s{sT4}, {HSTR}")
    a(f"s_add_u32 s{sT4}, s{sT4}, s{sT5}")
    a(f"s_add_u32 m0, s{sT4}, {L_HB+128}")
    a(f"buffer_load_dwordx4 v{vL16}, {srd(SH)}, s{sT6} offen lds")
    a(f"buffer_load_dwordx4 v{vL16}, {srd(SH)}, s{sT6} offen offset:1024 lds")

CACC = 32
CPOOL = 96
NPOOL = 12
CD = 144
vUe, vUo, vH, vCW, vCT, vCS, vCY, vCN = range(148, 156)

def conv_setup(j, chl0, split=None):
    a.c("conv setup")
    a(f"s_lshr_b32 s{sLC}, s{j}, 1")
    a(f"s_and_b32 s{sVAR}, s{j}, 1")
    a(f"s_add_u32 s{sCHL}, s{chl0}, s{sLC}")
    a(f"s_lshl_b32 s{sCH}, s{sQUAD}, 2")
    a(f"s_add_u32 s{sCH}, s{sCH}, s{sCHL}")
    a(f"s_lshl_b32 s{sT4}, s{sCH}, 1")
    a(f"s_and_b32 s{sT4}, s{sT4}, -4")
    a(f"s_load_dword s{sDV}, {sr(SD,2)}, s{sT4}")
    a(f"v_and_b32 v96, 31, v{vL}")
    a(f"v_lshrrev_b32 v97, 5, v{vL}")
    a("v_lshl_add_u32 v98, v97, 2, v96")
    a("v_lshrrev_b32 v99, 2, v98")
    a("v_add_u32 v99, 3, v99")
    a("v_and_b32 v99, 3, v99")
    a(f"v_xor_b32 v99, s{sCHL}, v99")
    a("v_lshlrev_b32 v99, 4, v99")
    a("v_lshl_add_u32 v99, v98, 6, v99")
    a(f"v_add_u32 v{vUe}, {L_UD-28*64}, v99")
    a(f"v_xor_b32 v{vUo}, 32, v{vUe}")
    a(f"v_bfe_u32 v98, v{vL}, 4, 1")
    a(f"v_and_b32 v99, 3, v{vL}")
    a("v_lshl_add_u32 v98, v98, 2, v99")
    a(f"v_bfe_u32 v96, v{vL}, 2, 2")
    a("v_sub_u32 v98, v98, v96")
    a("v_lshlrev_b32 v97, 3, v97")
    a("v_sub_u32 v98, v98, v97")
    a("v_lshlrev_b32 v98, 3, v98")
    a(f"s_mul_i32 s{sT4}, s{sLC}, {HSTR}")
    a(f"s_add_u32 s{sT4}, s{sT4}, {L_HB+128+32}")
    a(f"v_add_u32 v{vH}, s{sT4}, v98")
    a(f"s_lshl_b32 s{sT4}, s{sW}, 11")
    a(f"s_add_u32 s{sT4}, s{sT4}, {L_YST}")
    a(f"v_lshlrev_b32 v{vCW}, 4, v{vL}")
    a(f"v_add_u32 v{vCW}, s{sT4}, v{vCW}")
    if split: split(0)
    a(f"v_lshrrev_b32 v97, 4, v{vL}")
    a("v_lshrrev_b32 v98, 1, v99")
    a("v_lshl_add_u32 v98, v97, 1, v98")
    a("v_lshl_add_u32 v98, v98, 3, v96")
    a("v_lshlrev_b32 v98, 4, v98")
    a("v_and_b32 v99, 1, v99")
    a("v_lshl_add_u32 v98, v99, 3, v98")
    a(f"v_add_u32 v{vCT}, s{sT4}, v98")
    a(f"v_and_b32 v98, 7, v{vL}")
    a(f"v_lshrrev_b32 v99, 5, v{vL}")
    a("v_lshl_add_u32 v98, v98, 1, v99")
    a(f"v_mul_u32_u24 v98, 40960, v98")
    a(f"v_bfe_u32 v99, v{vL}, 3, 2")
    a(f"v_lshl_add_u32 v{vCY}, v99, 4, v98")
    a(f"s_lshl_b32 s{sT4}, s{j}, 4")
    a(f"s_add_u32 s{sT4}, s{sT4}, {L_SP}")
    a(f"v_mov_b32 v{vCS}, s{sT4}")
    a(f"s_lshl_b32 s{sT4}, s{sLC}, 2")
    a(f"s_add_u32 s{sT4}, s{sT4}, {L_CNT+16}")
    a(f"v_mov_b32 v{vCN}, s{sT4}")

def conv_dfrag():
    a("s_waitcnt lgkmcnt(0)")
    a(f"s_and_b32 s{sT4}, s{sCH}, 1")
    a(f"s_lshl_b32 s{sT4}, s{sT4}, 4")
    a(f"s_lshr_b32 s{sDV}, s{sDV}, s{sT4}")
    a(f"s_and_b32 s{sDV}, s{sDV}, 0xffff")
    a(f"v_lshlrev_b32 v98, 2, v{vL}")
    a("v_and_b32 v98, 16, v98")
    a(f"v_lshlrev_b32 v98, v98, s{sDV}")
    a(f"v_and_b32 v99, 59, v{vL}")
    for r in range(4):
        a(f"v_cmp_eq_u32 vcc, {32+8*r}, v99")
        a(f"v_cndmask_b32 v{CD+r}, 0, v98, vcc")

def zero_pads(j):
    a("v_mov_b32 v100, 0")
    a("v_mov_b32 v101, 0")
    a(f"v_lshlrev_b32 v102, 3, v{vL}")
    a(f"s_and_b32 s{sT6}, s{j}, 3")
    a(f"s_lshl_b32 s{sT4}, s{sT6}, 9")
    a(f"s_add_u32 s{sT4}, s{sT4}, {L_UB}")
    a(f"v_add_u32 v103, s{sT4}, v102")
    a("ds_write_b64 v103, v[100:101]")
    a(f"s_mul_i32 s{sT4}, s{sT6}, {HSTR}")
    a(f"s_add_u32 s{sT4}, s{sT4}, {L_HB}")
    a(f"v_add_u32 v103, s{sT4}, v102")
    a("s_mov_b64 exec, 0xffff")
    a("ds_write_b64 v103, v[100:101]")
    a(f"v_add_u32 v103, {L_CNT}, v102")
    a("s_mov_b64 exec, 0xff")
    a("ds_write_b64 v103, v[100:101]")
    a("s_mov_b64 exec, -1")

def u_dma(j, nper):
    a(f"s_mul_i32 s{sT4}, s{j}, {1024*nper}")
    a(f"s_lshl_b32 s{sT5}, s{sQUAD}, 14")
    if WOFF: a(f"s_add_u32 s{sT5}, s{sT5}, {WOFF}")
    a(f"s_add_u32 s{sT5}, s{sT5}, s{sT4}")
    a(f"s_add_u32 m0, s{sT4}, {L_UD}")
    for i in range(nper): a(f"buffer_load_dwordx4 v{vL16}, {srd(SWS)}, s{sT5} offen offset:{1024*i} sc1 lds")

def bwave():
    a.c("B wave")
    sXB, sWB, sM, sMW, sROT, sSTEP, sQ2, sQ3 = sCG, sUD, sTB, sRB, sCI, sLOG, sLOG + 1, sEPS
    VX, VW = 32, 36
    a(f"s_sub_u32 s{sJ}, s{sW}, 4")
    a(f"v_lshrrev_b32 v1, 3, v{vL}")
    a(f"v_mul_u32_u24 v1, 1280, v1")
    a(f"v_lshrrev_b32 v2, 4, v{vL}")
    a(f"v_and_b32 v3, 7, v{vL}")
    a("v_xor_b32 v2, v2, v3")
    a(f"v_lshl_add_u32 v{VX}, v2, 4, v1")
    a(f"v_xor_b32 v{VX+1}, 64, v{VX}")
    a(f"v_add_u32 v{VX+1}, {10240-1024}, v{VX+1}")
    a(f"v_add_u32 v{VX+2}, {20480-2048}, v{VX}")
    a(f"v_add_u32 v{VX+3}, {20480-2048}, v{VX+1}")
    a(f"s_lshl_b32 s{sXB}, s{sRB}, 2")
    a(f"s_add_u32 s{sXB}, s{sXB}, s{sJ}")
    a(f"s_mul_i32 s{sXB}, s{sXB}, 40960")
    a(f"s_lshr_b32 s{sT0}, s{sIDX}, 2")
    a(f"s_add_u32 s{sROT}, s{sT0}, s{sIDX}")
    a(f"s_and_b32 s{sROT}, s{sROT}, 3")
    a(f"s_add_u32 s{sM}, s{sRP}, s{sCP}")
    a(f"s_and_b32 s{sM}, s{sM}, 1")
    a(f"s_lshl_b32 s{sM}, s{sM}, 2")
    a(f"s_or_b32 s{sROT}, s{sROT}, s{sM}")
    def chunk_of(sd, srot, step):
        if "nostag" in EXP:
            a(f"s_and_b32 s{sd}, s{srot}, {7 if step < 8 else 1}")
            a(f"s_xor_b32 s{sd}, s{sd}, {step}")
            return
        m0_, x0 = (3, step) if step < 8 else (1, step)
        m1_, x1 = (1, 8 + step) if step < 2 else (7, step - 2)
        a(f"s_bitcmp1_b32 s{srot}, 2")
        a(f"s_cselect_b32 s{sd}, {m1_}, {m0_}")
        a(f"s_cselect_b32 s{sQ2}, {x1}, {x0}")
        a(f"s_and_b32 s{sd}, s{sd}, s{srot}")
        a(f"s_xor_b32 s{sd}, s{sd}, s{sQ2}")
    chunk_of(sSTEP, sROT, 0)
    a(f"s_lshl_b32 s{sM}, s{sJ}, 12")
    srd_init([SX, SWQ])
    def chunk_x(sc):
        a(f"s_mov_b32 m0, s{sM}")
        a(f"s_lshl_b32 s{sQ2}, s{sc}, 7")
        a(f"s_add_u32 s{sQ2}, s{sQ2}, s{sXB}")
        for i in range(4):
            a(f"buffer_load_dwordx4 v{VX+i}, {srd(SX)}, s{sQ2} offen offset:{1024*i} lds")
    def chunk_w(sc):
        a(f"s_add_u32 m0, s{sM}, 16384")
        a(f"s_mul_i32 s{sQ3}, s{sc}, {64*3840}")
        a(f"s_add_u32 s{sQ3}, s{sQ3}, s{sWB}")
        for hf in range(1):
            if hf:
                a(f"s_add_u32 m0, s{sM}, {16384+4096}")
                a(f"s_add_u32 s{sQ3}, s{sQ3}, {16*3840}")
            for i in (0, 1, 4, 2, 3):
                if i == 2: a(f"s_add_u32 m0, s{sM}, {16384+4096*hf}")
                if i == 4: a(f"s_add_u32 m0, s{sMW}, {1024*hf}")
                a(f"buffer_load_dwordx4 v{VW+i}, {srd(SWQ)}, s{sQ3} offen offset:{1024*(i&3)} lds")
    a(f"s_lshl_b32 s{sT1}, s{sCP}, 2")
    a(f"s_add_u32 s{sT1}, s{sT1}, s{sT0}")
    a(f"s_add_u32 s{sT1}, s{sT1}, 8")
    a(f"s_lshl_b32 s{sT0}, s{sT0}, 1")
    a(f"s_mul_i32 s{sT4}, s{sCP}, {2*Q0}")
    a(f"s_add_u32 s{sT0}, s{sT0}, s{sT4}")
    a(f"s_sub_u32 s{sT0}, s{sT0}, 8")
    a(f"s_cmp_ge_u32 s{sIDX}, 16")
    a(f"s_cselect_b32 s{sWB}, s{sT0}, s{sT1}")
    a(f"s_cselect_b32 s{sT4}, 10, 5")
    a(f"s_cselect_b32 s{sT5}, 4, 0x50")
    a(f"s_cselect_b32 s{sT6}, 1, 3")
    a(f"s_cselect_b32 s{sT7}, 2, 1")
    a(f"s_cselect_b32 s{sT0}, 1, 0x50")
    a(f"s_cselect_b32 s{sT1}, 8, 2")
    a(f"s_mulk_i32 s{sWB}, 160")
    a(f"s_mul_i32 s{sT2}, s{sJ}, {16*3840}")
    a(f"s_add_u32 s{sWB}, s{sWB}, s{sT2}")
    a(f"s_lshl_b32 s{sMW}, s{sJ}, 10")
    a(f"s_add_u32 s{sMW}, s{sMW}, 32768")
    a(f"v_lshrrev_b32 v14, 4, v{vL}")
    a(f"v_lshrrev_b32 v15, 1, v{vL}")
    a("v_xor_b32 v15, v15, v14")
    a(f"v_and_b32 v16, 1, v{vL}")
    a("v_mul_u32_u24 v14, 240, v14")
    a(f"v_mad_u32_u24 v14, v16, s{sT7}, v14")
    a("v_and_b32 v17, 1, v15")
    a(f"v_mad_u32_u24 v14, v17, s{sT6}, v14")
    a("v_bfe_u32 v17, v15, 1, 1")
    a(f"v_mad_u32_u24 v14, v17, s{sT5}, v14")
    a("v_bfe_u32 v17, v15, 2, 1")
    a(f"v_mad_u32_u24 v18, v17, s{sT4}, v14")
    a(f"v_lshlrev_b32 v{VW}, 4, v18")
    a(f"v_add_u32 v{VW+1}, {15360-1024}, v{VW}")
    a("v_xor_b32 v17, 1, v17")
    a(f"v_mad_u32_u24 v18, v17, s{sT4}, v14")
    a(f"v_lshlrev_b32 v18, 4, v18")
    a(f"v_add_u32 v{VW+2}, {30720-2048}, v18")
    a(f"v_add_u32 v{VW+3}, {46080-3072}, v18")
    a(f"v_lshrrev_b32 v14, 2, v{vL}")
    a("v_mul_u32_u24 v14, 240, v14")
    a(f"v_mad_u32_u24 v14, v16, s{sT0}, v14")
    a(f"v_lshrrev_b32 v17, 4, v{vL}")
    a(f"v_xor_b32 v17, v17, v{vL}")
    a("v_bfe_u32 v17, v17, 1, 1")
    a(f"v_mad_u32_u24 v14, v17, s{sT4}, v14")
    a(f"v_add_lshl_u32 v{VW+4}, v14, s{sT1}, 4")
    a("s_waitcnt lgkmcnt(0)")
    stamp(11)
    chunk_x(sSTEP)
    chunk_w(sSTEP)
    ka_rest()
    stamp(12)
    def issue(step):
        d = SLOT if step % 3 else (-2 * SLOT & 0xffffffff)
        a(f"s_add_u32 s{sM}, s{sM}, {d}")
        a(f"s_add_u32 s{sMW}, s{sMW}, {d}")
        chunk_of(sSTEP, sROT, step)
        if "nodma" in EXP and step >= 2: return
        chunk_x(sSTEP); chunk_w(sSTEP)
    bn = [1]
    def bar(n, nxt=None):
        a(f"s_waitcnt vmcnt({n}) lgkmcnt(0)")
        if "bst" in EXP and "pre" in EXP: stamp(bn[0], True)
        a("s_barrier")
        if "bst" in EXP and "pre" not in EXP: stamp(bn[0], True)
        bn[0] += 1
        if nxt is not None: issue(nxt)
    def g_setup():
        srd_init([SX, SH, SWS, SDBG, SOUT])
        a(f"s_mul_i32 s{sT7}, s{sRP}, 48")
        a(f"s_mul_i32 s{sT1}, s{sCP}, {G0}")
        a(f"s_add_u32 s{sT7}, s{sT7}, s{sT1}")
        a(f"s_add_u32 s{sT7}, s{sT7}, s{sIDX}")
        a(f"s_lshr_b32 s{sQUAD}, s{sT7}, 1")
        a(f"s_add_u32 s{sQUAD}, s{sQUAD}, 64")
        a(f"s_and_b32 s{sT1}, s{sIDX}, 1")
        a(f"s_lshl_b32 s{sT1}, s{sT1}, 1")
        a("s_waitcnt lgkmcnt(0)")
        conv_setup(sJ, sT1)
        s3_setup()
        wo_prep(vL16)
    sGS, sGO = 1, 0
    a("s_waitcnt lgkmcnt(0)")
    a(f"s_bfe_u32 s{sT0}, s{sIDX}, 0x20002")
    a(f"s_mul_i32 s{sT1}, s{sCP}, {Q0}")
    a(f"s_add_u32 s{sT0}, s{sT0}, s{sT1}")
    a(f"s_lshl_b32 s{sT0}, s{sT0}, 2")
    a(f"s_add_u32 s{sT0}, s{sT0}, s{sJ}")
    a(f"s_and_b32 s{sT2}, s{sIDX}, 3")
    a(f"s_lshl_b32 s{sT3}, s{sRP}, 2")
    a(f"s_add_u32 s{sT2}, s{sT2}, s{sT3}")
    a(f"s_lshl_b32 s{sGO}, s{sT2}, 4")
    a(f"s_add_u32 s{sGO}, s{sGO}, s{sT0}")
    a(f"s_cmp_ge_u32 s{sIDX}, 16")
    a(f"s_cselect_b32 s{sGS}, 1, 0")
    a(f"s_lshl_b32 s{sT0}, s{sT0}, 10")
    a(f"v_lshlrev_b32 v41, 4, v{vL}")
    srd_init([SGW])
    a(f"s_mov_b32 m0, {L_GW}")
    a(f"v_add_u32 v42, s{sT0}, v41")
    a(f"v_add_u32 v55, {2*SLOT}, v42")
    a(f"s_cmp_ge_u32 s{sIDX}, 16")
    a("s_cbranch_scc0 Lbng")
    a(f"buffer_load_dwordx4 v41, {srd(SGW)}, 0 offen lds")
    a(f"buffer_load_dwordx4 v41, {srd(SGW)}, 0 offen offset:1024 lds")
    a.label("Lbng")
    a(f"s_and_b32 s{sT1}, s{sJ}, 1")
    a(f"s_lshl_b32 s{sT1}, s{sT1}, 2")
    a(f"v_xor_b32 v43, s{sT1}, v2")
    a("v_lshlrev_b32 v43, 4, v43")
    a(f"v_add_u32 v43, {L_GW}, v43")
    a("v_mov_b32 v52, 0")
    a("v_mov_b32 v53, 0")
    g_setup()
    a("v_mov_b32 v44, 128")
    a("v_mov_b32 v45, 132")
    zero_pads(sJ)
    conv_dfrag()
    def gate(step):
        D = a.newlabel("Lg")
        a(f"s_cmp_eq_u32 s{sGS}, 0")
        a(f"s_cbranch_scc1 {D}")
        chunk_of(sT0, sROT, step)
        a(f"s_lshl_b32 s{sT0}, s{sT0}, 7")
        a(f"v_add_u32 v54, s{sT0}, v43")
        if step % 3 == 2: a("ds_read_b128 v[56:59], v55")
        else: a(f"ds_read_b128 v[56:59], v42 offset:{SLOT*(step%3)}")
        a("ds_read_b128 v[60:63], v54")
        a("s_waitcnt lgkmcnt(0)")
        for i in range(4): a(f"v_dot2c_f32_bf16 v{52+(i&1)}, v{56+i}, v{60+i}")
        a.label(D)
    issue(1)
    for c in range(0, 8):
        bar(9)
        if c == 0: stamp(1)
        issue(c + 2)
        gate(c)
    a(f"s_mov_b32 s{sEPS}, 0x358637bd")
    a(f"s_sub_u32 s{sT1}, s{sCH}, s{sLC}")
    bar(9)
    a(f"buffer_load_dwordx2 v[46:47], v44, {srd(SDBG)}, 0 offen sc1")
    h_dma(sJ, sT1)
    gate(8)
    a("s_waitcnt vmcnt(3)")
    a("s_barrier")
    a("s_setprio 3")
    gate(9)
    a(f"s_cmp_eq_u32 s{sGS}, 0")
    a("s_cbranch_scc1 Lbg")
    a("v_add_f32 v52, v52, v53")
    for ctl in ("quad_perm:[1,0,3,2]", "quad_perm:[2,3,0,1]", "row_half_mirror"):
        a(f"v_add_f32_dpp v52, v52, v52 {ctl} row_mask:0xf bank_mask:0xf")
    a(f"v_mul_f32 v52, 0xbfb8aa3b, v52")
    a(f"v_exp_f32 v52, v52")
    a(f"v_lshrrev_b32 v53, 1, v{vL}")
    a(f"v_add_f32 v52, 1.0, v52")
    a(f"v_rcp_f32 v52, v52")
    a(f"s_lshl_b32 s{sT0}, s{sGO}, 5")
    a(f"s_add_u32 s{sT0}, s{sT0}, {WS_G}")
    a("s_mov_b32 exec_lo, 0x01010101")
    a("s_mov_b32 exec_hi, 0x01010101")
    a(f"buffer_store_dword v52, v53, {srd(SWS)}, s{sT0} offen sc1")
    a("s_mov_b64 exec, -1")
    a.label("Lbg")
    a("s_setprio 0")
    a("s_waitcnt vmcnt(2)")
    poll(45, 47, "landed", S=SDBG)
    stamp(2)
    a(f"v_mov_b32 v48, {L_CNT+8}")
    a(f"v_readfirstlane_b32 s{sUD}, v46")
    wl = wo_list(vL16)
    a(f"s_cmp_eq_u32 s{sUD}, 0")
    a("s_cbranch_scc1 Lbl1")
    u_dma(sJ, 4)
    for x in wl[:8]: a(x)
    a("s_branch Lbl1b")
    a.label("Lbl1")
    cnt_load(SDBG, 44, 46)
    for x in wl[:8]: a(x)
    a("s_waitcnt vmcnt(8)")
    a(f"v_readfirstlane_b32 s{sUD}, v46")
    a(f"s_cmp_eq_u32 s{sUD}, 0")
    a("s_cbranch_scc1 Lbl1b")
    u_dma(sJ, 4)
    a.label("Lbl1b")
    for x in wl[8:16]: a(x)
    a(f"s_cmp_lg_u32 s{sUD}, 0")
    a("s_cbranch_scc1 Lbl2")
    cnt_load(SDBG, 44, 46)
    a.label("Lbl2")
    for x in wl[16:]: a(x)
    x_loads()
    a("s_waitcnt vmcnt(11)")
    a(f"s_cmp_lg_u32 s{sUD}, 0")
    a("s_cbranch_scc1 Lbl3")
    a(f"v_readfirstlane_b32 s{sT0}, v46")
    a(f"s_cmp_eq_u32 s{sT0}, 0")
    a("s_cbranch_scc1 Lbl4")
    u_dma(sJ, 4)
    a("s_barrier")
    a("s_branch Lbl5")
    a.label("Lbl4")
    a("s_barrier")
    poll(44, 46, S=SDBG)
    u_dma(sJ, 4)
    a.label("Lbl5")
    a("s_waitcnt vmcnt(0)")
    lds_arrive(48, 49)
    a("s_branch Lbl6")
    a.label("Lbl3")
    lds_arrive(48, 49)
    a("s_barrier")
    a.label("Lbl6")
    lds_wait(48, 49, 4)
    stamp(3)
    a("s_branch Lconv")

def ctype():
    a.label("Lctype")
    ka_rest()
    common_scalars()
    a(f"s_mov_b32 s{sQUAD}, s{sCI}")
    a(f"s_cmp_ge_u32 s{sW}, 6")
    a("s_cbranch_scc1 Lcaux")
    a(f"s_mov_b32 s{sTB}, s{sCI}")
    a(f"s_mov_b32 s{sCHB}, s{sW}")
    s0_loads()
    srd_init([SWS])
    a(f"s_cmp_ge_u32 s{sW}, {4-NQ}")
    a("s_cbranch_scc1 Lc1")
    a(f"s_add_u32 s{sCHB}, s{sW}, 6")
    s0_loads(28, False)
    a(f"s_mov_b32 s{sCHB}, s{sW}")
    a.label("Lc1")
    a.label("Lcs0")
    a(f"s_mul_i32 s{sT2}, s{sW}, 4608")
    a(f"s_add_u32 s{sT2}, s{sT2}, {L_S0C}")
    s0_addr(sT2)
    a(f"s_cmp_lt_u32 s{sW}, {4-NQ}")
    a("s_cbranch_scc1 Lc2")
    a("s_waitcnt vmcnt(0)")
    a.label("Lc2")
    a("s_waitcnt vmcnt(15)")
    s0_compute()
    stamp(1)
    a(f"s_cmp_ge_u32 s{sW}, {4-NQ}")
    a("s_cbranch_scc1 Lcjoin")
    a(f"s_add_u32 s{sCHB}, s{sW}, 6")
    s0_addr(sT2)
    a("s_waitcnt vmcnt(4)")
    s0_compute(LB=28)
    a("s_branch Lcjoin")

    a.label("Lcaux")
    a("s_setprio 3")
    srd_init([SWO, SWS, SDBG])
    a(f"s_sub_u32 s{sUD}, s{sW}, 6")
    a(f"s_lshl_b32 s{sVAR}, s{sCI}, 1")
    a(f"s_add_u32 s{sVAR}, s{sVAR}, s{sUD}")
    for i in range(4): a(f"v_mov_b32 v{52+i}, 0")
    a(f"v_lshlrev_b32 v15, 3, v{vL}")
    a(f"s_lshl_b32 s{sT0}, s{sVAR}, 9")
    a(f"s_add_u32 s{sT0}, s{sT0}, {WS_KV}")
    a("s_waitcnt lgkmcnt(0)")
    a(f"buffer_store_dwordx2 v[52:53], v15, {srd(SWS)}, s{sT0} offen sc1")
    a(f"s_mul_i32 s{sT0}, s{sVAR}, 768")
    a(f"s_add_u32 s{sT0}, s{sT0}, {WS_C}")
    a(f"v_lshlrev_b32 v16, 8, v{vL}")
    a("s_mov_b64 exec, 7")
    a(f"buffer_store_dword v52, v16, {srd(SWS)}, s{sT0} offen sc1")
    a("s_mov_b64 exec, -1")
    a.label("Lcrp")
    sKQ, sF, sCGR = sCHL, sCH, sJ
    a(f"s_lshr_b32 s{sT0}, s{sVAR}, 2")
    a(f"s_and_b32 s{sCGR}, s{sVAR}, 3")
    a(f"s_mul_i32 s{sKQ}, s{sT0}, 52")
    a(f"s_lshr_b32 s{sKQ}, s{sKQ}, 8")
    a(f"s_mul_i32 s{sT1}, s{sKQ}, 5")
    a(f"s_sub_u32 s{sF}, s{sT0}, s{sT1}")
    a(f"s_mul_i32 s{sT0}, s{sF}, 20")
    a(f"s_cmp_eq_u32 s{sF}, 4")
    a(f"s_cselect_b32 s{sT0}, 16, s{sT0}")
    a(f"s_cselect_b32 s{sT2}, 16, 0")
    a(f"s_mul_i32 s{sT1}, s{sKQ}, 80")
    a(f"s_add_u32 s{sT0}, s{sT0}, s{sT1}")
    a(f"s_mul_i32 s{sT0}, s{sT0}, 1280")
    a(f"s_mul_i32 s{sT1}, s{sCGR}, 320")
    a(f"s_add_u32 s{sT0}, s{sT0}, s{sT1}")
    a(f"s_lshr_b32 s{sT3}, s{sVAR}, 7")
    a(f"s_lshl_b32 s{sT3}, s{sT3}, 1")
    a(f"s_add_u32 s{sT3}, s{sT3}, s{sUD}")
    a(f"s_mul_i32 s{sT3}, s{sT3}, 5120")
    a(f"s_add_u32 s{sT3}, s{sT3}, {L_RPC}")
    a("s_waitcnt lgkmcnt(0)")
    for i in range(5):
        a(f"v_add_u32 v14, {64*i}, v{vL}")
        div20(15, 16, 14)
        a("v_lshrrev_b32 v17, 2, v15")
        a(f"v_mad_u32_u24 v15, v17, s{sT2}, v15")
        a("v_mul_u32_u24 v15, 1280, v15")
        a("v_lshl_add_u32 v15, v16, 4, v15")
        a(f"s_add_u32 m0, s{sT3}, {1024*i}")
        a(f"buffer_load_dwordx4 v15, {srd(SWO)}, s{sT0} offen lds")
    a(f"s_add_u32 s{sVAR}, s{sVAR}, 128")
    a(f"s_cmp_lt_u32 s{sVAR}, 160")
    a("s_cbranch_scc1 Lcrp")
    a(f"s_and_b32 s{sVAR}, s{sVAR}, 127")
    a("s_waitcnt vmcnt(0)")
    a.label("Lcrp2")
    sKQ, sF, sCGR = sCHL, sCH, sJ
    a(f"s_lshr_b32 s{sT0}, s{sVAR}, 2")
    a(f"s_and_b32 s{sCGR}, s{sVAR}, 3")
    a(f"s_mul_i32 s{sKQ}, s{sT0}, 52")
    a(f"s_lshr_b32 s{sKQ}, s{sKQ}, 8")
    a(f"s_mul_i32 s{sT1}, s{sKQ}, 5")
    a(f"s_sub_u32 s{sF}, s{sT0}, s{sT1}")
    a(f"s_lshr_b32 s{sT3}, s{sVAR}, 7")
    a(f"s_lshl_b32 s{sT3}, s{sT3}, 1")
    a(f"s_add_u32 s{sT3}, s{sT3}, s{sUD}")
    a(f"s_mul_i32 s{sT3}, s{sT3}, 5120")
    a(f"s_add_u32 s{sT3}, s{sT3}, {L_RPC}")
    a(f"v_lshrrev_b32 v14, 5, v{vL}")
    a(f"v_bfe_u32 v15, v{vL}, 2, 2")
    a("v_lshl_add_u32 v14, v14, 2, v15")
    a("v_mul_u32_u24 v14, 320, v14")
    a(f"v_bfe_u32 v15, v{vL}, 4, 1")
    a("v_lshl_add_u32 v14, v15, 5, v14")
    a(f"v_and_b32 v15, 3, v{vL}")
    a("v_lshl_add_u32 v14, v15, 3, v14")
    a(f"v_add_u32 v14, s{sT3}, v14")
    a(f"s_mul_i32 s{sT0}, s{sKQ}, 5")
    a(f"s_add_u32 s{sT0}, s{sT0}, s{sF}")
    a(f"s_cmp_ge_u32 s{sKQ}, 3")
    a(f"s_cselect_b32 s{sT1}, 10, 0")
    a(f"s_cmp_ge_u32 s{sKQ}, 6")
    a(f"s_cselect_b32 s{sT1}, -15, s{sT1}")
    a(f"s_cselect_b32 s{sT2}, 25, 50")
    a(f"s_add_u32 s{sT0}, s{sT0}, s{sT1}")
    a(f"s_mul_i32 s{sT1}, s{sCGR}, 200")
    a(f"s_add_u32 s{sT0}, s{sT0}, s{sT1}")
    a(f"s_lshl_b32 s{sT0}, s{sT0}, 10")
    a(f"s_add_u32 s{sT0}, s{sT0}, {WS_WOP}")
    a(f"s_lshl_b32 s{sT2}, s{sT2}, 10")
    a(f"s_lshr_b32 s{sT4}, s{sKQ}, 1")
    a(f"s_mul_i32 s{sT4}, s{sT4}, 25")
    a(f"s_and_b32 s{sT5}, s{sKQ}, 1")
    a(f"s_mul_i32 s{sT5}, s{sT5}, 5")
    a(f"s_add_u32 s{sT4}, s{sT4}, s{sT5}")
    a(f"s_add_u32 s{sT4}, s{sT4}, s{sF}")
    a(f"s_add_u32 s{sT4}, s{sT4}, s{sT1}")
    a(f"s_add_u32 s{sT4}, s{sT4}, 115")
    a(f"s_lshl_b32 s{sT4}, s{sT4}, 10")
    a(f"s_add_u32 s{sT4}, s{sT4}, {WS_WOP}")
    a(f"v_lshlrev_b32 v15, 4, v{vL}")
    for t in range(5):
        for jh in range(2): a(f"ds_read_b64_tr_b16 {vr(32+4*t+2*jh,2)}, v14 offset:{jh*2560+t*64}")
    a("s_waitcnt lgkmcnt(0)")
    for t in range(4):
        a(f"buffer_store_dwordx4 {vr(32+4*t,4)}, v15, {srd(SWS)}, s{sT0} offen sc1")
        a(f"s_add_u32 s{sT0}, s{sT0}, s{sT2}")
    a(f"buffer_store_dwordx4 {vr(48,4)}, v15, {srd(SWS)}, s{sT4} offen sc1")
    a(f"s_add_u32 s{sVAR}, s{sVAR}, 128")
    a(f"s_cmp_lt_u32 s{sVAR}, 160")
    a("s_cbranch_scc1 Lcrp2")
    a("v_mov_b32 v60, 0")
    a("s_waitcnt vmcnt(0)")
    darr_issue(60, 61, 4)
    darr_finish(60, 61, 4, 128)
    a("s_setprio 0")
    stamp(1)

    a.label("Lcjoin")
    srd_init([SX, SH, SDBG, SOUT])
    a("v_mov_b32 v104, 0")
    a("s_waitcnt vmcnt(0)")
    stamp(2)
    a("s_barrier")
    a(f"s_cmp_lg_u32 s{sW}, 7")
    a("s_cbranch_scc1 Lc7")
    a("s_setprio 3")
    darr_issue(104, 45, 0)
    darr_finish(104, 45, 0, NU, 0)
    a("s_setprio 0")
    a.label("Lc7")
    zero_pads(sW)
    a(f"s_mov_b32 s{sT1}, 0")
    conv_setup(sW, sT1)
    s3_setup()
    wo_prep(vL16)
    a(f"s_lshl_b32 s{sT1}, s{sCI}, 2")
    h_dma(sW, sT1)
    conv_dfrag()
    a(f"s_cmp_ge_u32 s{sW}, 4")
    a("s_cbranch_scc1 Lc7b")
    a("v_mov_b32 v44, 132")
    poll(44, 46, S=SDBG, sleep=4)
    for x in wo_list(vL16): a(x)
    x_loads()
    a.label("Lc7b")
    a(f"s_cmp_lg_u32 s{sW}, 7")
    a("s_cbranch_scc1 Lc8")
    a("s_setprio 3")
    a(f"v_and_b32 v44, 1, v{vL}")
    a("v_lshl_add_u32 v44, v44, 2, 64")
    a("v_add_u32 v44, 64, v44")
    poll(44, 46, S=SDBG)
    stamp(11)
    a(f"s_lshl_b32 s{sT5}, s{sQUAD}, 14")
    if WOFF: a(f"s_add_u32 s{sT5}, s{sT5}, {WOFF}")
    for q in range(4):
        a(f"s_mov_b32 m0, {L_UD + 4096*q}")
        for i in range(4): a(f"buffer_load_dwordx4 v{vL16}, {srd(SWS)}, s{sT5} offen offset:{1024*i} sc1 lds")
        if q < 3: a(f"s_add_u32 s{sT5}, s{sT5}, 4096")
    a.label("Lc8")
    a(f"s_cmp_lt_u32 s{sW}, 4")
    a("s_cbranch_scc1 Lc9")
    a("s_waitcnt vmcnt(0)")
    a.label("Lc9")
    a("s_waitcnt lgkmcnt(0)")
    stamp(12)
    a("s_barrier")
    stamp(3)
    a("s_setprio 2")
    a(f"s_cmp_lt_u32 s{sW}, 4")
    a("s_cbranch_scc1 Lconv2")
    a("s_setprio 0")
    for x in wo_list(vL16): a(x)
    x_loads()

def conv_body(tiles):
    seq = []
    for b in range(4):
        if tiles[0] == 0:
            for aa in range(8):
                for ti in (3, 2):
                    d = tiles[ti] - aa
                    if d >= 0:
                        seq.append((ti, ("H", 4 * aa + b, 0), ("U", 4 * d - b)))
                        if b == 0 and aa == 0: seq.append((ti, ("D",), ("U", 4 * d)))
                if aa == 5:
                    seq.append((1, ("H", b, 1), ("U", 4 - b)))
                    if b == 0: seq.append((1, ("D",), ("U", 4)))
                if aa == 6:
                    seq.append((0, ("H", b, 1), ("U", -b)))
                    if b == 0: seq.append((0, ("D",), ("U", 0)))
                    seq.append((1, ("H", 4 + b, 1), ("U", -b)))
        else:
            for aa in range(6):
                for ti in (3, 2, 1, 0):
                    d = tiles[ti] - aa
                    if d >= 0:
                        seq.append((ti, ("H", 4 * aa + b, 0), ("U", 4 * d - b)))
                        if b == 0 and aa == 0: seq.append((ti, ("D",), ("U", 4 * d)))
    assert len(seq) == 76
    last = {}; order = []
    for i, (ti, h, u) in enumerate(seq):
        for k in (u, h):
            if k[0] == "D": continue
            if k not in last: order.append(k)
            last[k] = i
    free = list(range(NPOOL))
    where = {}; done_at = {}
    nds = [0]; li = [0]
    def issue(maxn):
        n = 0
        while li[0] < len(order) and free and n < maxn:
            k = order[li[0]]; li[0] += 1
            bfr = free.pop(0); where[k] = bfr
            r = CPOOL + 4 * bfr
            if k[0] == "U":
                a(f"ds_read_b128 {vr(r,4)}, v{vUo if k[1]&1 else vUe} offset:{(k[1]+3)*512}")
                nds[0] += 1; n += 1
            else:
                a(f"ds_read_b64_tr_b16 {vr(r,2)}, v{vH} offset:{128*k[1]+32}")
                a(f"ds_read_b64_tr_b16 {vr(r+2,2)}, v{vH} offset:{128*k[1]}")
                nds[0] += 2; n += 2
            done_at[k] = nds[0]
    issue(10)
    started = set(); known = 0
    wl = wo_list(vL16); wi = 25 if "delayconv" in EXP else 0
    for i, (ti, h, u) in enumerate(seq):
        needn = max(done_at[k] for k in (u, h) if k[0] != "D")
        if needn > known:
            cnt = min(nds[0] - needn, 15)
            a(f"s_waitcnt lgkmcnt({cnt})")
            known = nds[0] - cnt
        d = vr(CACC + 16 * ti, 16)
        hb = CD if h[0] == "D" else CPOOL + 4 * where[h]
        a(f"v_mfma_f32_32x32x16_bf16 {d}, {vr(CPOOL+4*where[u],4)}, {vr(hb,4)}, {d if ti in started else '0'}")
        started.add(ti)
        for k in (u, h):
            if k[0] != "D" and last[k] == i: free.append(where[k])
        issue(2)

def conv_epi(var):
    runs = [[*range(0, 8)], [*range(8, 16)]] if var == 0 else [[*range(16)]]
    out_g = 7 if var == 0 else 15
    in_g = 8 if var == 0 else 0
    SPL = 96
    a(f"buffer_load_dword v{vFT}, v{vFK}, {srd(SWS)}, 0 offen sc1")
    a("s_nop 7")
    a("s_nop 3")
    for step in (2, 1, 0):
        a("s_mov_b32 exec_lo, 0")
        a("s_mov_b32 exec_hi, 0x80000000")
        a(f"v_mov_b32 v{SPL+step}, v{CACC+4*out_g+step+1}")
        for run in runs:
            for g in reversed(run):
                src = f"v{CACC+4*(g-1)+step+1}" if g != run[0] else "0"
                a(f"v_mov_b32 v{CACC+4*g+step+1}, {src}")
        if step == 0:
            a(f"ds_write_b96 v{vCS}, {vr(SPL,3)}")
            a("v_mov_b32 v100, 1")
            a(f"ds_add_u32 v{vCN}, v100")
        a("s_mov_b64 exec, -1")
        for g in reversed(range(16)):
            r = CACC + 4 * g + step
            a(f"v_add_f32_dpp v{r}, v{r+1}, v{r} wave_ror:1 row_mask:0xf bank_mask:0xf")
    a(f"v_xor_b32 v101, 16, v{vCS}")
    a(f"v_lshl_add_u32 v101, v{vL}, 2, v101")
    PK = 104
    other = [k for k in range(8) if k != in_g // 2]
    for k in other: a(f"v_cvt_pk_bf16_f32 v{PK+k}, v{CACC+8*k}, v{CACC+8*k+4}")
    oh = 1 - in_g // 8
    a(f"ds_write_b128 v{vCW}, {vr(PK+4*oh,4)} offset:{1024*oh}")
    lds_wait(vCN, 100, 2)
    a("s_mov_b64 exec, 7")
    a("ds_read_b32 v100, v101")
    a("s_waitcnt lgkmcnt(0)")
    a(f"v_add_f32 v{CACC+4*in_g}, v{CACC+4*in_g}, v100")
    a("s_mov_b64 exec, -1")
    k = in_g // 2
    a(f"v_cvt_pk_bf16_f32 v{PK+k}, v{CACC+8*k}, v{CACC+8*k+4}")
    a(f"ds_write_b128 v{vCW}, {vr(PK+4*(1-oh),4)} offset:{1024*(1-oh)}")
    T0, T1 = (0, 6) if var == 0 else (2, 4)
    a(f"s_lshl_b32 s{sT5}, s{sCH}, 6")
    a(f"s_add_u32 s{sT4}, s{sT5}, {WS_Y + T0*8*40960}")
    a(f"s_add_u32 s{sT5}, s{sT5}, {WS_Y + T1*8*40960}")
    a(f"s_lshr_b32 s{sT6}, s{sCH}, 5")
    a(f"s_lshl_b32 s{sT6}, s{sT6}, 8")
    a(f"s_add_u32 s{sT6}, s{sT6}, {WS_FY + var*20*256}")

def conv():
    a.label("Lconv")
    a("s_setprio 1")
    a.label("Lconv2")
    a(f"s_cmp_eq_u32 s{sVAR}, 1")
    a("s_cbranch_scc1 Lconvy")
    conv_body([0, 1, 6, 7])
    stamp(4)
    conv_epi(0)
    a("s_branch Lconve")
    a.label("Lconvy")
    conv_body([2, 3, 4, 5])
    stamp(4)
    conv_epi(1)
    a.label("Lconve")
    for n in range(2):
        a(f"ds_read_b64_tr_b16 {vr(136+4*n,2)}, v{vCT} offset:{1024*n}")
        a(f"ds_read_b64_tr_b16 {vr(138+4*n,2)}, v{vCT} offset:{1024*n+64}")
    arr_prep(152, 153)
    for n in range(2):
        a(f"s_waitcnt lgkmcnt({2-2*n})")
        a(f"buffer_store_dwordx4 {vr(136+4*n,4)}, v{vCY}, {srd(SWS)}, s{sT5 if n else sT4} offen sc1")
    stamp(13)
    a("s_branch Ls3b")

def s3():
    a.label("Ls3")
    a.c("S3")
    PQ, RAW, KF = 32, 52, 116
    plan = []
    for i in range(4):
        for st in range(2):
            for jh in range(2):
                du0 = 4 * (i + st) + 2 * jh - 5 * i
                plan.append((i, st, jh, du0, 0 <= du0 <= 4, 0 <= du0 + 1 <= 4))
    sPD = sT2
    def fl(): a(f"buffer_load_dword v{vFT}, v{vFK}, {srd(SWS)}, 0 offen sc1")
    def pql():
        for f in range(4): a(f"buffer_load_dwordx4 {vr(PQ+4*f,4)}, v{vL16}, {srd(SWS)}, s{sPQO} offen offset:{1024*f} sc1")
        a(f"buffer_load_dwordx4 {vr(PQ+16,4)}, v{vL16}, {srd(SWS)}, s{sT1} offen sc1")
    def pre():
        for (i, st, jh, du0, v0ok, v1ok) in plan:
            if v0ok != v1ok:
                for j in range(4): a(f"v_mov_b32 v{RAW+16*i+8*st+4*jh+j}, 0")
        a(f"s_add_u32 s{sT1}, s{sPQO}, 4096")
        a(f"s_add_u32 s{sT3}, s{sKVO}, {2*KVH}")
        a(f"s_mov_b32 s{sPD}, 0")
        a(f"s_mov_b32 s{sCNT}, 0x40000")
    wl = wo_list(vL16)
    for x in wl[:20]: a(x)
    fl()
    for x in wl[20:]: a(x)
    x_loads()
    a("s_setprio 1")
    pre()
    a(f"s_mov_b32 s{sUD}, 0")
    a("s_waitcnt vmcnt(7)")
    a("s_branch Ls3ev")
    a.label("Ls3b")
    pre()
    a(f"s_mov_b32 s{sUD}, 2")
    a("s_waitcnt vmcnt(2)")
    a("s_branch Ls3ev")
    a.label("Ls3sl")
    a("s_sleep 2")
    a.label("Ls3lp")
    fl()
    a("s_waitcnt vmcnt(0)")
    a(f"s_cmp_eq_u32 s{sUD}, 0")
    a("s_cbranch_scc1 Ls3ev")
    a(f"s_sub_u32 s{sUD}, s{sUD}, 1")
    a(f"s_cmp_eq_u32 s{sUD}, 0")
    a("s_cbranch_scc1 Ls3af")
    arr_issue(152, 153, f"s{sT6}")
    a("s_branch Ls3ev")
    a.label("Ls3af")
    arr_finish(152, 153, f"s{sT6}", 32)
    a.label("Ls3ev")
    a(f"v_cmp_ne_u32 vcc, s{sTAG}, v{vFT}")
    a(f"s_sub_u32 s{sCNT}, s{sCNT}, 1")
    a("s_cbranch_scc1 Ls3go")
    a(f"s_cmp_lg_u32 s{sPD}, 0")
    a("s_cbranch_scc1 Ls3k")
    a("s_bitcmp1_b32 vcc_lo, 0")
    a("s_cbranch_scc1 Ls3sl")
    pql()
    a(f"s_mov_b32 s{sPD}, 1")
    a(f"v_readlane_b32 s{sT0}, v{vFK}, 1")
    a(f"v_mov_b32 v{vFK}, s{sT0}")
    a.label("Ls3k")
    a("s_cmp_lg_u32 vcc_hi, 0")
    a("s_cbranch_scc1 Ls3sl")
    a.label("Ls3go")
    stamp(6)
    nload = [0] * 4
    for (i, st, jh, du0, v0ok, v1ok) in plan:
        if not (v0ok or v1ok): continue
        off = (i & 1) * KVH + du0 * 336
        part = v0ok != v1ok
        if part: a(f"s_mov_b32 exec_{'hi' if v0ok else 'lo'}, 0")
        a(f"buffer_load_dwordx4 {vr(RAW+16*i+8*st+4*jh,4)}, v{vKO if i&1 else vKE}, {srd(SWS)}, s{sT3 if i>>1 else sKVO} offen offset:{off} sc1")
        if part: a("s_mov_b64 exec, -1")
        nload[i] += 1
    a(f"s_cmp_lg_u32 s{sUD}, 2")
    a("s_cbranch_scc1 Ls3n2")
    a("s_waitcnt vmcnt(12)")
    arr_issue(152, 153, f"s{sT6}")
    a("s_branch Ls3n3")
    a.label("Ls3n2")
    a(f"buffer_load_dword v{vFT}, v{vFK}, {srd(SWS)}, 0 offen sc1")
    a.label("Ls3n3")
    rem = sum(nload) + 1
    for i in range(4):
        rem -= nload[i]
        a(f"s_waitcnt vmcnt({rem})")
        kf = KF + 8 * (i & 1)
        for (i2, st, jh, du0, v0ok, v1ok) in plan:
            if i2 != i: continue
            for j in range(2):
                d = kf + 4 * st + 2 * jh + j; s = RAW + 16 * i + 8 * st + 4 * jh + 2 * j
                if v0ok or v1ok: a(f"v_cvt_pk_bf16_f32 v{d}, v{s}, v{s+1}")
                else: a(f"v_mov_b32 v{d}, 0")
        d = vr(RAW + 16 * i, 16)
        a(f"v_mfma_f32_32x32x16_bf16 {d}, {vr(kf,4)}, {vr(PQ+4*i,4)}, 0")
        a(f"v_mfma_f32_32x32x16_bf16 {d}, {vr(kf+4,4)}, {vr(PQ+4*i+4,4)}, {d}")
    if "sx" in EXP: stamp(11)
    a(f"s_cmp_eq_u32 s{sUD}, 0")
    a("s_cbranch_scc1 Ls3n4")
    arr_finish(152, 153, f"s{sT6}", 32, 0)
    a.label("Ls3n4")
    a(f"s_cmp_ge_u32 s{sW}, 5")
    a("s_cbranch_scc1 Ls3n5")
    a(f"buffer_load_dword v{vFT}, v{vFY}, {srd(SWS)}, 0 offen sc1")
    a.label("Ls3n5")
    OF = 132
    for i in range(4):
        D = RAW + 16 * i
        a(f"v_add_f32 v{D+12}, s{sEPS}, v{D+12}")
        a(f"v_rcp_f32 v{D+12}, v{D+12}")
        for j in range(8): a(f"v_mul_f32 v{D+j}, v{D+j}, v{D+12}")
        for j in range(4): a(f"v_cvt_pk_bf16_f32 v{OF+4*i+j}, v{D+2*j}, v{D+2*j+1}")
        a(f"ds_write_b128 v{vOW}, {vr(OF+4*i,4)} offset:{1024*i}")
        if i & 1 == 0:
            for j in range(4): a(f"v_mul_f32 v{D+8+j}, v{D+8+j}, v{D+12}")
        else:
            for j in range(4): a(f"v_fmac_f32 v{D-8+j}, v{D+8+j}, v{D+12}")
            for j in range(2): a(f"v_cvt_pk_bf16_f32 v{OF+16+2*(i>>1)+j}, v{D-8+2*j}, v{D-8+2*j+1}")
    a(f"ds_write_b128 v{vOW}, {vr(OF+16,4)} offset:4096")
    a(f"s_mov_b32 s{sUD}, 1")
    a(f"s_cmp_ge_u32 s{sW}, 5")
    a("s_cbranch_scc1 Ls3y1")
    a("s_waitcnt vmcnt(0)")
    a(f"v_cmp_ne_u32 vcc, s{sTAG}, v{vFT}")
    a(f"s_mov_b32 m0, s{sYM}")
    a("s_cbranch_vccnz Ls3y0")
    a(f"buffer_load_dwordx4 v{vL16}, {srd(SWS)}, s{sYO} offen sc1 lds")
    a(f"buffer_load_dwordx4 v{vL16}, {srd(SWS)}, s{sYO} offen offset:1024 sc1 lds")
    a("s_branch Ls3y1")
    a.label("Ls3y0")
    a(f"s_mov_b32 s{sUD}, 0")
    a(f"buffer_load_dword v{vFT}, v{vFY}, {srd(SWS)}, 0 offen sc1")
    a.label("Ls3y1")
    if "nog3prio" not in EXP:
        a(f"s_cmp_ge_u32 s{sW}, 4")
        a("s_cbranch_scc1 Ls3y2")
        a("s_setprio 2")
        a.label("Ls3y2")
    a("s_waitcnt lgkmcnt(0)")
    if "sx" in EXP: stamp(12)
    a("s_barrier")
    stamp(7)
    a(f"buffer_load_dword v{vG}, v{vGO}, {srd(SWS)}, 0 offen sc1")
    NB = 8; POOL = 32; AP, AR = 64, 80
    def ord_(i): return (vPR, 1024 * i) if i < 15 else (vRR, 1024 * (i - 15))
    for i in range(NB):
        v, o = ord_(i); a(f"ds_read_b128 {vr(POOL+4*i,4)}, v{v} offset:{o}")
    XF = 96
    pre = [f"s_mov_b32 s{sT0}, 0xffff0000"]
    for n, xd in enumerate((vXD, vXD2)):
        for j in range(4):
            pre.append(f"v_lshlrev_b32 v{XF+8*n+2*j}, 16, v{xd+j}")
            pre.append(f"v_and_b32 v{XF+8*n+2*j+1}, s{sT0}, v{xd+j}")
    issued = NB
    log = list(range(NB))
    for i in range(25):
        pos = log.index(i)
        a(f"s_waitcnt lgkmcnt({min(len(log)-1-pos,15)})")
        d = vr(AP if i < 15 else AR, 16)
        a(f"v_mfma_f32_32x32x16_bf16 {d}, {vr(VWO+4*i,4)}, {vr(POOL+4*(i%NB),4)}, {'0' if i in (0,15) else d}")
        if issued < 25:
            v, o = ord_(issued); a(f"ds_read_b128 {vr(POOL+4*(issued%NB),4)}, v{v} offset:{o}"); log.append(issued); issued += 1
        if i < 12:
            for x in pre[3 * i:3 * i + 3]: a(x)
        if i == 7:
            a(f"s_cmp_eq_u32 s{sUD}, 1")
            a("s_cbranch_scc1 Ls3ny")
            poll(vFY, vFT, "issued")
            stamp(5)
            a(f"buffer_load_dwordx4 v{vL16}, {srd(SWS)}, s{sYO} offen sc1 lds")
            a(f"buffer_load_dwordx4 v{vL16}, {srd(SWS)}, s{sYO} offen offset:1024 sc1 lds")
            a.label("Ls3ny")
        if 19 <= i < 23:
            q = i - 19
            a(f"ds_write_b128 v{vPW+q}, {vr(AP+4*q,4)}"); log.append(-1)
            a(f"v_add_u32 v{vPW+q}, s{sRD}, v{vPW+q}")
    for q in range(4): a(f"ds_write_b128 v{vPW+q}, {vr(AR+4*q,4)}")
    a("s_waitcnt vmcnt(0) lgkmcnt(0)")
    a("s_barrier")
    stamp(8)
    def f_reads(n, R):
        np_ = 3 + n
        for p in range(np_):
            a(f"ds_read_b128 {vr(R+8*p,4)}, v{vPA} offset:{49152*n+4096*p}")
            a(f"ds_read_b128 {vr(R+8*p+4,4)}, v{vPB} offset:{49152*n+4096*p}")
        a(f"ds_read_b64_tr_b16 {vr(R+32,2)}, v{vYT} offset:{8192*n}")
        a(f"ds_read_b64_tr_b16 {vr(R+34,2)}, v{vYT} offset:{8192*n+256}")
    def f_math(n, R, after):
        np_ = 3 + n
        X = XF + 8 * n; YF = R + 36
        a(f"s_waitcnt lgkmcnt({min(after+2*np_+2-4,15)})")
        for j in range(4): a(f"v_pk_add_f32 {vr(R+2*j,2)}, {vr(R+2*j,2)}, {vr(R+8+2*j,2)}")
        a(f"s_waitcnt lgkmcnt({after+2})")
        for p in range(2, np_):
            for j in range(4): a(f"v_pk_add_f32 {vr(R+2*j,2)}, {vr(R+2*j,2)}, {vr(R+8*p+2*j,2)}")
        a(f"s_waitcnt lgkmcnt({after})")
        for j in range(4):
            a(f"v_lshlrev_b32 v{YF+2*j}, 16, v{R+32+j}")
            a(f"v_and_b32 v{YF+2*j+1}, s{sT0}, v{R+32+j}")
        for j in range(4): a(f"v_pk_mul_f32 {vr(X+2*j,2)}, {vr(X+2*j,2)}, {vr(YF+2*j,2)}")
        for j in range(4): a(f"v_pk_add_f32 {vr(R+2*j,2)}, {vr(R+2*j,2)}, {vr(X+2*j,2)} neg_lo:[0,1] neg_hi:[0,1]")
        for j in range(4): a(f"v_pk_fma_f32 {vr(R+2*j,2)}, {vr(R+2*j,2)}, {vr(vG,2)}, {vr(X+2*j,2)} op_sel_hi:[1,0,1]")
        for j in range(4): a(f"v_cvt_pk_bf16_f32 v{R+32+j}, v{R+2*j}, v{R+2*j+1}")
        a(f"buffer_store_dwordx4 {vr(R+32,4)}, v{vOUT}, {srd(SOUT)}, s{sXOFF} offen offset:{256*n}" + (" sc1" if "osc1" in EXP else " nt" if "ont" in EXP else " sc0 sc1" if "osys" in EXP else ""))
    f_reads(0, 32)
    a(f"s_cmp_lt_u32 s{sW}, 2")
    a("s_cbranch_scc1 Lfin2")
    f_math(0, 32, 0)
    a("s_branch Lfin")
    a.label("Lfin2")
    f_reads(1, 112)
    f_math(0, 32, 10)
    f_math(1, 112, 0)
    a.label("Lfin")
    if DIAG:
        a("s_waitcnt vmcnt(0)")
        stamp(9)
        a(f"s_memtime vcc")
        a("s_waitcnt lgkmcnt(0)")
        a(f"s_mov_b32 s{STS+15}, vcc_lo")
        a("v_mov_b32 v2, 0")
        for i in range(16): a(f"v_writelane_b32 v2, s{STS+i}, {i}")
        a(f"v_lshlrev_b32 v3, 2, v{vL}")
        a(f"s_lshl_b32 s{sT0}, s{sBID}, 3")
        a(f"s_add_u32 s{sT0}, s{sT0}, s{sW}")
        a(f"s_lshl_b32 s{sT0}, s{sT0}, 6")
        a(f"s_add_u32 s{sT0}, s{sT0}, {WS_TS}")
        a("s_mov_b64 exec, 0xffff")
        a(f"buffer_store_dword v2, v3, {srd(SWS)}, s{sT0} offen")
        sp = [e for e in EXP if e.startswith("spin")]
        if sp:
            si, wv, lo, hi = [int(x) for x in sp[0][4:].split("_")]
            a(f"s_cmp_lg_u32 s{sW}, {wv}")
            a("s_cbranch_scc1 Lend")
            a(f"s_cmp_lt_u32 s{sIDX}, {lo}")
            a("s_cbranch_scc1 Lend")
            a(f"s_cmp_ge_u32 s{sIDX}, {hi}")
            a("s_cbranch_scc1 Lend")
            a.label("Lspin")
            a("s_memrealtime vcc")
            a("s_waitcnt lgkmcnt(0)")
            a(f"s_sub_u32 s{sT1}, vcc_lo, s{STS+si}")
            a(f"s_cmp_lt_u32 s{sT1}, 5000")
            a("s_cbranch_scc1 Lspin")
        if "dbgts" in EXP:
            a(f"s_cmp_lg_u32 s{sW}, {int([e for e in EXP if e.startswith('wv')][0][2:])}")
            a("s_cbranch_scc1 Lend")
            a(f"s_cmp_ge_u32 s{sIDX}, 16")
            a("s_cbranch_scc1 Lend")
            a("v_cmp_ne_u32 vcc, 0, v2")
            a(f"v_subrev_u32 v2, s{sTAG}, v2")
            a("v_add_u32 v2, 100, v2")
            a("v_and_b32 v2, 0x7ffffff, v2")
            a("v_cndmask_b32 v2, 0, v2, vcc")
            a("s_mov_b64 exec, 0x3fff")
            a(f"buffer_atomic_umax v2, v3, {srd(SDBG)}, 0 offen offset:4 sc1")
    a.label("Lend")
    a("s_endpgm")

entry(); bwave(); awave(); kva(); qa(); ctype(); conv(); s3()

ref = open("cdna_kernels/%s.s.ref" % NAME).read()
head = [l for l in ref.split("\n") if l.startswith(";") and "@launch" not in l]
out = "\n".join(head) + "\n"
out += "; @launch grid=(256,1,1) block=(512,1,1) lds=%d\n" % LDS_BYTES
out += '.amdgcn_target "amdgcn-amd-amdhsa--gfx950"\n.text\n.globl %s_kernel\n.p2align 8\n.type %s_kernel,@function\n%s_kernel:\n' % (NAME, NAME, NAME)
import re
body = a.text()
ntset = []
if "nt" in EXP: ntset += [SK, SV, SH, SWO, SSK, SGW]
if "ntx" in EXP: ntset += [SX, SWQ]
for s_ in ntset:
    body = re.sub(r"(buffer_load_dword\S* [^\n]*%s, [^\n]*?offen(?: offset:\d+)?)( lds)?\n" % re.escape(srd(s_)), lambda m: m.group(1) + " nt" + (m.group(2) or "") + "\n", body)
out += body
out += '''.section .rodata,"a"
.p2align 6
.amdhsa_kernel %s_kernel
  .amdhsa_next_free_vgpr 256
  .amdhsa_next_free_sgpr 102
  .amdhsa_accum_offset 256
  .amdhsa_group_segment_fixed_size 0
  .amdhsa_kernarg_size 104
  .amdhsa_user_sgpr_count 2
  .amdhsa_user_sgpr_kernarg_segment_ptr 1
  .amdhsa_system_sgpr_workgroup_id_x 1
.end_amdhsa_kernel
''' % NAME
dst = [x for x in sys.argv[1:] if not x.startswith("--")]
open(dst[0] if dst else "cdna_kernels/%s.s" % NAME, "w").write(out)
```

```python
import sys
from asmlib import Asm, vr, sr

NAME = "gated_mix__linear_attn_block__ssm_conv_h3__prompt"
DIAG = "--diag" in sys.argv
EXP = [x[6:] for x in sys.argv if x.startswith("--exp=")]

WOFF = int(([e[4:] for e in EXP if e.startswith("woff")] + ["0"])[0]) << 20
WS_U = 0
WS_PQ = 0x280000 + WOFF
WS_Y = 0x500000 + WOFF
WS_WOP = 0x780000 + WOFF
WS_KV = 0x850000 + WOFF
WS_C = 0x860000 + WOFF
CDELTA = 320 * 256
WS_FK = WS_C
WS_FY = WS_C + 8 * 256
WS_FQ = WS_C + 64 * 256
WS_G = 0x88C000 + WOFF
WS_TS = 0x890000 + WOFF
WS_SIZE = 0x900000 + WOFF
KVH = 1792

NQ = int(([e[2:] for e in EXP if e.startswith("nq")] + ["0"])[0])
NU = 64 + 64 * NQ
Q0 = int(([e[2:] for e in EXP if e.startswith("q0")] + ["2"])[0])
G0, G1 = 16 + 4 * Q0, 32 - 4 * Q0
SLOT = 36864
L_OFR = 36864
L_KVS = 77824
L_YST = 92160
L_PART = 77824
L_UB = 110592
L_UD = L_UB + 2048
L_HB = 129024
HSTR = 4224
L_SP = 145920
L_CNT = 146048
L_TAG = 146112
L_YT = 146176
L_S0C = 0
L_RPC = 49152
L_GW = L_YT + 10240
LDS_BYTES = L_GW + 2048

SX, SWQ, SWO, SK, SV, SSK, SH, SGW, SOUT, SDBG, SWS = [4 + 4 * i for i in range(11)]
SD = 48
sW, sXCD, sIDX, sRP, sCP, sTAG, sCNT = range(50, 57)
sRB, sCG, sQUAD, sCHL, sLC, sVAR, sCH, sJ, sUD = range(57, 66)
sT0, sT1, sT2, sT3, sT4, sT5, sT6, sT7 = range(66, 74)
sLOG = 74
sCI = 76
sDV = 77
STS = 80
sXOFF, sPQO, sKVO, sTB, sYO, sYM = 96, 97, 98, 99, 100, 101
sCHB = 65
sRD = 3
sWOO = 2
sEPS = 79
sBID = 78
def srd(b): return sr(b, 4)

vL = 0
VWO = 156
vL16, vOW, vPR, vRR, vPW = 1, 2, 3, 4, 5
vKE, vKO, vFK, vFY, vZ, vOUT, vPA, vPB, vYT, vFT, vGO = 9, 10, 11, 12, 13, 14, 15, 16, 17, 18, 19
vXD, vG, vXD2 = 20, 24, 28
vFQ, vFE = 27, 25

a = Asm()
BST = [None]
def stamp(i, force=False):
    if "bst" in EXP and not force and i not in (0, 10): return
    if DIAG:
        a(f"{'s_memtime' if 'cyc' in EXP else 's_memrealtime'} vcc")
        a("s_waitcnt lgkmcnt(0)")
        a(f"s_mov_b32 s{STS+i}, vcc_lo")

def poll(vaddr, vdst, state="none", sleep=2, S=None):
    L = a.newlabel("Lpoll"); D = a.newlabel("Lpd")
    if state != "none":
        if state == "issued": a("s_waitcnt vmcnt(0)")
        a(f"v_cmp_ne_u32 vcc, s{sTAG}, v{vdst}")
        a(f"s_cbranch_vccz {D}")
    a(f"s_mov_b32 s{sCNT}, 0x20000")
    a.label(L)
    a(f"buffer_load_dword v{vdst}, v{vaddr}, {srd(S or SWS)}, 0 offen sc1")
    a("s_waitcnt vmcnt(0)")
    a(f"v_cmp_ne_u32 vcc, s{sTAG}, v{vdst}")
    a(f"s_cbranch_vccz {D}")
    if sleep: a(f"s_sleep {sleep}")
    a(f"s_sub_u32 s{sCNT}, s{sCNT}, 1")
    a(f"s_cbranch_scc0 {L}")
    a.label(D)

def cnt_load(S, vaddr, vdst):
    a(f"buffer_load_dword v{vdst}, v{vaddr}, {srd(S)}, 0 offen sc1")

def tag_get(vz, vdst, state="issued"):
    L = a.newlabel("Ltag"); D = a.newlabel("Ltd")
    if state != "none":
        if state == "issued": a("s_waitcnt vmcnt(0)")
        a(f"v_readfirstlane_b32 s{sTAG}, v{vdst}")
        a(f"s_cmp_lg_u32 s{sTAG}, 0")
        a(f"s_cbranch_scc1 {D}")
    a(f"s_mov_b32 s{sCNT}, 0x20000")
    a.label(L)
    a(f"buffer_load_dword v{vdst}, v{vz}, {srd(SDBG)}, 0 offen sc1")
    a("s_waitcnt vmcnt(0)")
    a(f"v_readfirstlane_b32 s{sTAG}, v{vdst}")
    a(f"s_cmp_lg_u32 s{sTAG}, 0")
    a(f"s_cbranch_scc1 {D}")
    a("s_sleep 2")
    a(f"s_sub_u32 s{sCNT}, s{sCNT}, 1")
    a(f"s_cbranch_scc0 {L}")
    a.label(D)

def tag_lds(vtmp):
    a(f"v_mov_b32 v{vtmp}, {L_TAG}")
    a(f"ds_read_b32 v{vtmp}, v{vtmp}")
    a("s_waitcnt lgkmcnt(0)")
    a(f"v_readfirstlane_b32 s{sTAG}, v{vtmp}")

def arr_prep(vt0, vt1):
    a(f"v_mov_b32 v{vt0}, {CDELTA}")
    a(f"v_mov_b32 v{vt1}, 1")
def arr_issue(vt0, vt1, soff):
    a("s_mov_b64 exec, 1")
    a(f"buffer_atomic_add v{vt1}, v{vt0}, {srd(SWS)}, {soff} offen sc0 sc1")
    a("s_mov_b64 exec, -1")
def arr_finish(vt0, vt1, soff, n, wait=0):
    D = a.newlabel("Lal")
    a(f"s_waitcnt vmcnt({wait})")
    a(f"v_readfirstlane_b32 s{sT7}, v{vt1}")
    a(f"s_cmp_lg_u32 s{sT7}, {n-1}")
    a(f"s_cbranch_scc1 {D}")
    flag_store(vt0, vt1, soff)
    a.label(D)
def flag_store(vt0, vt1, soff):
    a(f"v_mov_b32 v{vt0}, 0")
    a(f"v_mov_b32 v{vt1}, s{sTAG}")
    a("s_mov_b64 exec, 1")
    a(f"buffer_store_dword v{vt1}, v{vt0}, {srd(SWS)}, {soff} offen sc1")
    a("s_mov_b64 exec, -1")

def darr_issue(vz, v1, off):
    a(f"v_mov_b32 v{v1}, 1")
    a("s_mov_b64 exec, 1")
    a(f"buffer_atomic_add v{v1}, v{vz}, {srd(SDBG)}, 0 offen offset:{off} sc0 sc1")
    a("s_mov_b64 exec, -1")
def darr_finish(vz, v1, off, n, wait=0):
    D = a.newlabel("Lda")
    a(f"s_waitcnt vmcnt({wait})")
    a(f"v_readfirstlane_b32 s{sT7}, v{v1}")
    a(f"s_cmp_lg_u32 s{sT7}, {n-1}")
    a(f"s_cbranch_scc1 {D}")
    a(f"v_mov_b32 v{v1}, 1")
    a("s_mov_b64 exec, 1")
    a(f"buffer_store_dword v{v1}, v{vz}, {srd(SDBG)}, 0 offen offset:{128+off} sc1")
    a("s_mov_b64 exec, -1")
    a.label(D)

def lds_arrive(vaddr, vtmp):
    a(f"v_mov_b32 v{vtmp}, 1")
    a("s_mov_b64 exec, 1")
    a(f"ds_add_u32 v{vaddr}, v{vtmp}")
    a("s_mov_b64 exec, -1")
def lds_wait(vaddr, vtmp, target):
    L = a.newlabel("Lls"); D = a.newlabel("Lld")
    a(f"s_mov_b32 s{sCNT}, 0x400000")
    a.label(L)
    a(f"ds_read_b32 v{vtmp}, v{vaddr}")
    a("s_waitcnt lgkmcnt(0)")
    a(f"v_readfirstlane_b32 s{sT7}, v{vtmp}")
    a(f"s_cmp_ge_u32 s{sT7}, {target}")
    a(f"s_cbranch_scc1 {D}")
    a(f"s_sub_u32 s{sCNT}, s{sCNT}, 1")
    a(f"s_cbranch_scc0 {L}")
    a.label(D)

def div20(vq, vr_, vp):
    a(f"v_mul_u32_u24 v{vq}, 3277, v{vp}")
    a(f"v_lshrrev_b32 v{vq}, 16, v{vq}")
    a(f"v_mul_u32_u24 v{vr_}, 20, v{vq}")
    a(f"v_sub_u32 v{vr_}, v{vp}, v{vr_}")
for p in range(1000): assert (p * 3277) >> 16 == p // 20

SIZES = {SX: 2621440, SWQ: 2457600, SWO: 819200, SK: 2621440, SV: 2621440, SSK: 5120, SH: 2621440, SGW: 1280, SOUT: 2621440, SDBG: 256, SWS: WS_SIZE}
def srd_init(lst):
    for s in lst:
        a(f"s_mov_b32 s{s+2}, {SIZES[s]}")
        a(f"s_mov_b32 s{s+3}, 0x20000")
def ka_rest():
    if "ka1" not in EXP: return
    for s, off in ((SK, 32), (SV, 40), (SSK, 48), (SWS, 96), (SDBG, 88), (SH, 56), (SWO, 16), (SGW, 72), (SOUT, 80), (SD, 64)):
        a(f"s_load_dwordx2 {sr(s,2)}, s[0:1], {off}")
def common_scalars():
    a(f"s_mov_b32 s{sLOG}, 0x3fb8aa3b")
    a(f"s_mov_b32 s{sLOG+1}, 0x3fb8aa3b")
    a(f"s_mov_b32 s{sEPS}, 0x358637bd")
    a(f"s_mul_i32 s{sT0}, s{sCP}, {32-G0}")
    a(f"s_lshl_b32 s{sCI}, s{sRP}, 4")
    a(f"s_add_u32 s{sCI}, s{sCI}, s{sT0}")
    a(f"s_add_u32 s{sCI}, s{sCI}, s{sIDX}")
    a(f"s_sub_u32 s{sCI}, s{sCI}, s{sXCD}")

def entry():
    a.label("Lentry")
    a(f"s_cmp_ge_u32 s2, 256")
    a("s_cbranch_scc1 Lend")
    if "scr" in EXP:
        a("s_and_b32 s3, s2, 31")
        a("s_lshl_b32 s3, s3, 3")
        a("s_lshr_b32 s2, s2, 5")
        a("s_or_b32 s2, s2, s3")
    if DIAG: a(f"s_memrealtime {sr(sT6,2)}")
    a(f"s_getpc_b64 {sr(sT0,2)}")
    a.label("Lpcref")
    a(f"s_lshr_b32 s{sIDX}, s2, 3")
    a(f"s_mul_i32 s{sT2}, s{sIDX}, 9")
    a("v_min_u32 v1, 8, v0")
    a(f"v_add_lshl_u32 v1, v1, s{sT2}, 7")
    a("v_min_u32 v1, Lend-Lpcref, v1")
    if "nocpf" not in EXP: a(f"global_load_dword v255, v1, {sr(sT0,2)}")
    for s, off in ((SX, 0), (SWQ, 8), (SK, 32), (SV, 40), (SSK, 48), (SWS, 96), (SDBG, 88), (SH, 56), (SWO, 16), (SGW, 72), (SOUT, 80), (SD, 64)):
        if "ka1" in EXP and off >= 16: continue
        a(f"s_load_dwordx2 {sr(s,2)}, s[0:1], {off}")
    a("v_lshrrev_b32 v1, 6, v0")
    a(f"v_and_b32 v{vL}, 63, v0")
    a(f"v_readfirstlane_b32 s{sW}, v1")
    a("s_bitcmp1_b32 s2, 2")
    a(f"s_cselect_b32 s{sXCD}, {G1}, {G0}")
    a(f"s_and_b32 s{sRP}, s2, 3")
    a(f"s_bfe_u32 s{sCP}, s2, 0x10002")
    a(f"s_mov_b32 s{sBID}, s2")
    a(f"s_mov_b32 s{sTAG}, 1")
    a(f"s_and_b32 s{sT0}, s{sIDX}, 3")
    a(f"s_lshl_b32 s{sRB}, s{sRP}, 2")
    a(f"s_add_u32 s{sRB}, s{sRB}, s{sT0}")
    if DIAG:
        for i in range(16): a(f"s_mov_b32 s{STS+i}, 0")
        stamp(0)
        a(f"s_mov_b32 s{STS+10}, s{sT6}")
        a(f"s_memtime vcc")
        a("s_waitcnt lgkmcnt(0)")
        a(f"s_mov_b32 s{STS+14}, vcc_lo")
    a(f"s_cmp_ge_u32 s{sIDX}, s{sXCD}")
    a("s_cbranch_scc1 Lctype")
    a(f"s_cmp_lt_u32 s{sW}, 4")
    a("s_cbranch_scc1 Lawave")

def s3_setup(split=None):
    a.c("S3 setup")
    sR3, sC3 = sT2, sT3
    a(f"s_lshr_b32 s{sT0}, s{sIDX}, 1")
    a(f"s_lshl_b32 s{sR3}, s{sRP}, 4")
    a(f"s_add_u32 s{sR3}, s{sR3}, s{sT0}")
    a(f"s_and_b32 s{sT0}, s{sIDX}, 1")
    a(f"s_lshl_b32 s{sC3}, s{sCP}, 1")
    a(f"s_add_u32 s{sC3}, s{sC3}, s{sT0}")
    a(f"v_lshlrev_b32 v{vL16}, 4, v{vL}")
    a(f"v_mov_b32 v{vZ}, 0")
    a(f"v_lshrrev_b32 v24, 4, v{vL}")
    a(f"v_and_b32 v25, 3, v{vL}")
    a(f"v_bfe_u32 v26, v{vL}, 2, 2")
    a(f"s_and_b32 s{sT0}, s{sW}, 1")
    a(f"s_lshl_b32 s{sT1}, s{sT0}, 4")
    a("v_lshl_add_u32 v27, v24, 2, v25")
    a(f"v_add_u32 v27, s{sT1}, v27")
    a(f"v_mul_u32_u24 v{vOUT}, 1280, v27")
    a(f"v_lshl_add_u32 v{vOUT}, v26, 4, v{vOUT}")
    a(f"s_mul_i32 s{sXOFF}, s{sR3}, 40960")
    a(f"s_mul_i32 s{sT4}, s{sC3}, 320")
    a(f"s_add_u32 s{sYO}, s{sXOFF}, {WS_Y}")
    a(f"s_add_u32 s{sXOFF}, s{sXOFF}, s{sT4}")
    a(f"s_lshr_b32 s{sT4}, s{sW}, 1")
    a(f"s_lshl_b32 s{sT5}, s{sT4}, 6")
    a(f"s_add_u32 s{sXOFF}, s{sXOFF}, s{sT5}")
    a(f"s_lshl_b32 s{sT5}, s{sR3}, 7")
    a(f"s_add_u32 s{sT5}, s{sT5}, {WS_G}")
    a(f"v_lshlrev_b32 v{vGO}, 2, v27")
    a(f"v_add_u32 v{vGO}, s{sT5}, v{vGO}")
    a(f"v_bfe_u32 v{vPA}, v27, 1, 1")
    a(f"v_and_b32 v{vPB}, 1, v27")
    a(f"v_lshl_or_b32 v{vPA}, v{vPB}, 1, v{vPA}")
    a(f"v_and_or_b32 v{vPA}, v27, 4, v{vPA}")
    a(f"v_lshlrev_b32 v{vPB}, 1, v26")
    a(f"v_xor_b32 v{vPA}, v{vPA}, v{vPB}")
    a(f"v_lshlrev_b32 v{vPA}, 4, v{vPA}")
    a(f"v_lshl_add_u32 v{vPA}, v27, 7, v{vPA}")
    a(f"s_mul_i32 s{sT5}, s{sT4}, 12288")
    a(f"s_add_u32 s{sT5}, s{sT5}, {L_PART}")
    a(f"v_add_u32 v{vPA}, s{sT5}, v{vPA}")
    a(f"v_xor_b32 v{vPB}, 16, v{vPA}")
    a(f"v_lshl_add_u32 v{vYT}, v25, 3, v26")
    a(f"v_lshlrev_b32 v{vYT}, 6, v{vYT}")
    a(f"v_lshl_add_u32 v{vYT}, v24, 3, v{vYT}")
    a(f"s_lshl_b32 s{sT4}, s{sT4}, 11")
    a(f"s_lshl_b32 s{sT1}, s{sT1}, 1")
    a(f"s_add_u32 s{sT4}, s{sT4}, s{sT1}")
    a(f"s_add_u32 s{sT4}, s{sT4}, {L_YT}")
    a(f"v_add_u32 v{vYT}, s{sT4}, v{vYT}")
    if split: split(0)
    a(f"v_and_b32 v24, 31, v{vL}")
    a(f"v_lshrrev_b32 v25, 5, v{vL}")
    a(f"v_bfe_u32 v{vPW}, v24, 1, 1")
    a("v_and_b32 v26, 1, v24")
    a(f"v_lshl_or_b32 v{vPW}, v26, 1, v{vPW}")
    a(f"v_and_or_b32 v{vPW}, v24, 4, v{vPW}")
    a(f"v_xor_b32 v{vPW}, v{vPW}, v25")
    a(f"v_lshlrev_b32 v{vPW}, 4, v{vPW}")
    a(f"v_lshl_add_u32 v{vPW}, v24, 7, v{vPW}")
    a(f"s_lshl_b32 s{sT4}, s{sT0}, 12")
    a(f"s_add_u32 s{sT5}, s{sT5}, s{sT4}")
    a(f"v_add_u32 v{vPW}, s{sT5}, v{vPW}")
    for q in range(1, 4): a(f"v_xor_b32 v{vPW+q}, {32*q}, v{vPW}")
    a(f"s_mul_i32 s{sT4}, s{sW}, 12288")
    a(f"s_add_u32 s{sT4}, s{sT4}, {L_PART+8192}")
    a(f"s_lshl_b32 s{sT1}, s{sW}, 12")
    a(f"s_add_u32 s{sT1}, s{sT1}, {L_PART+49152-16384}")
    a(f"s_cmp_lt_u32 s{sW}, 4")
    a(f"s_cselect_b32 s{sT4}, s{sT4}, s{sT1}")
    a(f"s_sub_u32 s{sRD}, s{sT4}, s{sT5}")
    a(f"s_sub_u32 s{sT1}, s{sW}, 4")
    a(f"s_cmp_lt_u32 s{sW}, 4")
    a(f"s_cselect_b32 s{sT1}, 3, s{sT1}")
    a(f"s_mul_i32 s{sT1}, s{sT1}, {10*1024}")
    a(f"s_add_u32 s{sT1}, s{sT1}, {L_OFR}")
    a(f"v_add_u32 v{vRR}, s{sT1}, v{vL16}")
    a(f"s_mul_i32 s{sT1}, s{sT0}, {15*1024}")
    a(f"s_add_u32 s{sT1}, s{sT1}, {L_OFR}")
    a(f"v_add_u32 v{vPR}, s{sT1}, v{vL16}")
    a(f"s_mul_i32 s{sT1}, s{sW}, 5120")
    a(f"s_add_u32 s{sT4}, s{sT1}, {L_OFR}")
    a(f"v_add_u32 v{vOW}, s{sT4}, v{vL16}")
    a(f"s_add_u32 s{sPQO}, s{sYO}, s{sT1}")
    a(f"s_add_u32 s{sPQO}, s{sPQO}, {(WS_PQ-WS_Y)&0xffffffff}")
    if split: split(1)
    a("v_mul_u32_u24 v25, 336, v25")
    a("v_min_u32 v26, 20, v24")
    a("v_lshl_add_u32 v26, v26, 4, v25")
    a("v_lshrrev_b32 v27, 2, v24")
    a(f"v_mov_b32 v{vFT}, 0x7f000000")
    a("v_cmp_eq_u32 vcc, 5, v27")
    a(f"v_subrev_u32 v{vKO}, 4, v24")
    a(f"v_lshl_add_u32 v{vKO}, v{vKO}, 4, v25")
    a(f"v_cndmask_b32 v{vKE}, v26, v{vFT}, vcc")
    a(f"v_cndmask_b32 v{vKO}, v26, v{vKO}, vcc")
    a("v_cmp_eq_u32 vcc, 4, v27")
    a(f"s_mul_i32 s{sKVO}, s{sW}, {4*KVH}")
    a(f"s_add_u32 s{sKVO}, s{sKVO}, {WS_KV}")
    a(f"v_cndmask_b32 v{vKO}, v{vKO}, v{vFT}, vcc")
    a(f"s_lshl_b32 s{sT1}, s{sW}, 8")
    a(f"s_add_u32 s{sT1}, s{sT1}, {WS_FK}")
    a(f"v_mov_b32 v{vFK}, s{sT1}")
    a(f"s_lshr_b32 s{sT1}, s{sR3}, 1")
    a(f"s_lshl_b32 s{sT1}, s{sT1}, 3")
    a(f"s_add_u32 s{sT1}, s{sT1}, s{sW}")
    a(f"s_lshl_b32 s{sT1}, s{sT1}, 8")
    a(f"s_add_u32 s{sT1}, s{sT1}, {WS_FQ}")
    a(f"v_mov_b32 v{vFQ}, s{sT1}")
    a(f"v_writelane_b32 v{vFK}, s{sT1}, 0")
    a(f"s_lshr_b32 s{sT1}, s{sR3}, 3")
    a(f"s_add_u32 s{sT1}, s{sT1}, 2")
    a(f"s_bfe_u32 s{sT1}, s{sT1}, 0x10002")
    a(f"s_mul_i32 s{sT1}, s{sT1}, 20")
    a(f"s_mul_i32 s{sT4}, s{sC3}, 5")
    a(f"s_min_u32 s{sT5}, s{sW}, 4")
    a(f"s_add_u32 s{sT4}, s{sT4}, s{sT5}")
    a(f"s_add_u32 s{sT1}, s{sT1}, s{sT4}")
    a(f"s_lshl_b32 s{sT1}, s{sT1}, 8")
    a(f"s_add_u32 s{sT1}, s{sT1}, {WS_FY}")
    a(f"v_mov_b32 v{vFY}, s{sT1}")
    a(f"s_lshl_b32 s{sT4}, s{sT4}, 11")
    a(f"s_add_u32 s{sYO}, s{sYO}, s{sT4}")
    a(f"s_lshl_b32 s{sYM}, s{sT5}, 11")
    a(f"s_add_u32 s{sYM}, s{sYM}, {L_YT}")

def x_loads():
    a(f"buffer_load_dwordx4 {vr(vXD,4)}, v{vOUT}, {srd(SX)}, s{sXOFF} offen")
    a(f"s_cmp_lt_u32 s{sW}, 2")
    a("s_cselect_b64 exec, -1, 1")
    a(f"buffer_load_dwordx4 {vr(vXD2,4)}, v{vOUT}, {srd(SX)}, s{sXOFF} offen offset:256")
    a("s_mov_b64 exec, -1")

def wo_prep(vtmp):
    a(f"s_and_b32 s{sT4}, s{sIDX}, 1")
    a(f"s_lshl_b32 s{sT5}, s{sCP}, 1")
    a(f"s_add_u32 s{sT4}, s{sT4}, s{sT5}")
    a(f"s_lshl_b32 s{sT4}, s{sT4}, 3")
    a(f"s_add_u32 s{sT4}, s{sT4}, s{sW}")
    a(f"s_mul_i32 s{sT4}, s{sT4}, 25600")
    a(f"s_add_u32 s{sWOO}, s{sT4}, {WS_WOP}")
    a(f"v_lshlrev_b32 v{vtmp}, 4, v{vL}")
def wo_list(vtmp, order=None):
    out = []
    for i in range(25):
        t = f"buffer_load_dwordx4 {vr(VWO+4*i,4)}, v{vtmp}, {srd(SWS)}, s{sWOO} offen offset:{1024*(i&3)} sc1"
        if (i & 3) == 3: t += f"\ns_add_u32 s{sWOO}, s{sWOO}, 4096"
        out.append(t)
    return out

S0B = 156
def s0_task(st):
    a(f"s_mul_i32 s{sTB}, s{st}, 6554")
    a(f"s_lshr_b32 s{sTB}, s{sTB}, 16")
    a(f"s_mul_i32 s{sCHB}, s{sTB}, 10")
    a(f"s_sub_u32 s{sCHB}, s{st}, s{sCHB}")
for t in range(640): assert (t * 6554) >> 16 == t // 10

def s0_loads(LB=None, init=True):
    a.c("S0 loads")
    B = S0B
    a(f"v_lshrrev_b32 v{B+1}, 3, v{vL}")
    a(f"v_and_b32 v{B+2}, 7, v{vL}")
    a(f"v_mul_u32_u24 v{B+3}, 5120, v{B+1}")
    a(f"v_lshl_add_u32 v{B+3}, v{B+2}, 4, v{B+3}")
    a(f"s_mul_i32 s{sT0}, s{sTB}, 40960")
    a(f"s_lshl_b32 s{sT1}, s{sCHB}, 7")
    a(f"s_add_u32 s{sT0}, s{sT0}, s{sT1}")
    a(f"v_add_u32 v{B+64}, s{sT0}, v{B+3}")
    a(f"v_subrev_u32 v{B+65}, 3840, v{B+64}")
    a(f"v_lshlrev_b32 v{B+66}, 6, v{B+2}")
    a(f"s_lshl_b32 s{sT1}, s{sCHB}, 9")
    if init:
        srd_init([SK, SV, SSK])
        a("s_waitcnt lgkmcnt(0)")
    LB = LB or B
    for i in range(4): a(f"buffer_load_dwordx4 {vr(LB+16+4*i,4)}, v{B+64}, {srd(SK)}, 0 offen offset:{1280*i}")
    for i in range(3): a(f"buffer_load_dwordx4 {vr(LB+4+4*i,4)}, v{B+65}, {srd(SK)}, 0 offen offset:{1280*i}")
    for i in range(4): a(f"buffer_load_dwordx4 {vr(LB+32+4*i,4)}, v{B+64}, {srd(SV)}, 0 offen offset:{1280*i}")
    for i in range(4): a(f"buffer_load_dwordx4 {vr(LB+48+4*i,4)}, v{B+66}, {srd(SSK)}, s{sT1} offen offset:{16*i}")

def s0_addr(s_scr):
    B = S0B
    a(f"v_mul_u32_u24 v{B+67}, 576, v{B+1}")
    a(f"v_lshl_add_u32 v{B+67}, v{B+2}, 4, v{B+67}")
    a(f"v_add_u32 v{B+67}, s{s_scr}, v{B+67}")
    a(f"v_and_b32 v{B+68}, 15, v{vL}")
    a(f"v_mul_u32_u24 v{B+69}, 144, v{B+68}")
    a(f"v_lshrrev_b32 v{B+70}, 4, v{vL}")
    a(f"v_lshl_add_u32 v{B+69}, v{B+70}, 3, v{B+69}")
    a(f"v_add_u32 v{B+69}, s{s_scr}, v{B+69}")
    a(f"s_and_b32 s{sT0}, s{sTB}, 3")
    a(f"v_xor_b32 v{B+68}, s{sT0}, v{B+68}")
    a(f"v_lshlrev_b32 v{B+68}, 4, v{B+68}")
    a(f"v_lshl_add_u32 v{B+68}, v{B+70}, 14, v{B+68}")
    a(f"s_lshl_b32 s{sT0}, s{sCHB}, 18")
    a(f"s_lshl_b32 s{sT1}, s{sTB}, 8")
    a(f"s_add_u32 s{sT0}, s{sT0}, s{sT1}")
    if WOFF: a(f"s_add_u32 s{sT0}, s{sT0}, {WOFF}")
    a(f"s_mov_b32 s{sT1}, 0xffff0000")

def s0_compute(split=None, pk=True, LB=None):
    a.c("S0 compute")
    B = S0B
    LB = LB or B
    KF, VF, WF, AC, UO = 112, 126, 134, B + 88, B + 72
    for p in range(4):
        for cc in range(2):
            c = 2 * p + cc
            for h in range(2):
                a(f"v_lshlrev_b32 v{WF+4*h+cc}, 16, v{LB+48+2*c+h}")
                a(f"v_and_b32 v{WF+4*h+2+cc}, s{sT1}, v{LB+48+2*c+h}")
        for r in range(7):
            a(f"v_lshlrev_b32 v{KF+2*r}, 16, v{LB+4+4*r+p}")
            a(f"v_and_b32 v{KF+2*r+1}, s{sT1}, v{LB+4+4*r+p}")
        for r in range(4):
            a(f"v_lshlrev_b32 v{VF+2*r}, 16, v{LB+32+4*r+p}")
            a(f"v_and_b32 v{VF+2*r+1}, s{sT1}, v{LB+32+4*r+p}")
        if pk:
            for i in range(4): a(f"v_pk_mul_f32 {vr(AC+2*i,2)}, {vr(KF+2*(i+3),2)}, {vr(WF,2)}")
            for d in range(1, 4):
                for i in range(4): a(f"v_pk_fma_f32 {vr(AC+2*i,2)}, {vr(KF+2*(i+3-d),2)}, {vr(WF+2*d,2)}, {vr(AC+2*i,2)}")
            for i in range(4): a(f"v_pk_mul_f32 {vr(AC+2*i,2)}, {vr(AC+2*i,2)}, {vr(VF+2*i,2)}")
        else:
            for i in range(8): a(f"v_mul_f32 v{AC+i}, v{KF+6+i}, v{WF+(i&1)}")
            for d in range(1, 4):
                for i in range(8): a(f"v_fmac_f32 v{AC+i}, v{KF+6+i-2*d}, v{WF+2*d+(i&1)}")
            for i in range(8): a(f"v_mul_f32 v{AC+i}, v{AC+i}, v{VF+i}")
        for i in range(4): a(f"v_cvt_pk_bf16_f32 v{UO+4*i+p}, v{AC+2*i}, v{AC+2*i+1}")
        if split: split(p)
    for i in range(4): a(f"ds_write_b128 v{B+67}, {vr(UO+4*i,4)} offset:{144*i}")
    for j in range(4):
        a(f"ds_read_b64_tr_b16 {vr(LB+4+4*j,2)}, v{B+69} offset:{32*j}")
        a(f"ds_read_b64_tr_b16 {vr(LB+6+4*j,2)}, v{B+69} offset:{32*j+2304}")
    for j in range(4):
        a(f"s_waitcnt lgkmcnt({6-2*j})")
        a(f"buffer_store_dwordx4 {vr(LB+4+4*j,4)}, v{B+68}, {srd(SWS)}, s{sT0} offen sc1")
        if j < 3: a(f"s_add_u32 s{sT0}, s{sT0}, 65536")

def f0_off(sd):
    a(f"s_lshl_b32 s{sd}, s{sCHB}, 8")
    a(f"s_add_u32 s{sd}, s{sd}, {WS_F0}")

ACC = 32
FB = [112, 156]
vX0, vX1, vWA, vWX = 148, 149, 150, 154
vA1, vA2, vC16, vG4 = 16, 17, 18, 19
sC, sSL = sT2, sT3

def a_setup():
    a.c("A-wave address setup")
    a(f"s_and_b32 s{sT0}, s{sW}, 1")
    a(f"s_lshr_b32 s{sT1}, s{sW}, 1")
    a(f"v_and_b32 v{vC16}, 15, v{vL}")
    a(f"v_lshrrev_b32 v{vG4}, 4, v{vL}")
    a(f"v_lshrrev_b32 v8, 1, v{vC16}")
    a(f"v_xor_b32 v8, v{vG4}, v8")
    a(f"v_lshlrev_b32 v8, 4, v8")
    a(f"v_lshl_add_u32 v8, v{vC16}, 7, v8")
    a(f"s_lshl_b32 s{sT4}, s{sT1}, 13")
    a(f"v_add_u32 v{vX0}, s{sT4}, v8")
    a(f"v_xor_b32 v{vX1}, 64, v{vX0}")
    a(f"v_bfe_u32 v8, v{vL}, 2, 2")
    a(f"v_lshl_add_u32 v9, v{vG4}, 3, v8")
    a(f"v_and_b32 v10, 1, v{vG4}")
    a(f"v_xor_b32 v10, s{sT0}, v10")
    a(f"v_and_b32 v11, 3, v{vL}")
    a("v_lshlrev_b32 v11, 3, v11")
    a(f"v_lshl_add_u32 v{vWX}, v9, 6, v11")
    a(f"v_lshl_add_u32 v{vWX}, v10, 5, v{vWX}")
    a(f"v_add_u32 v{vWX}, 32768, v{vWX}")
    a("v_lshl_or_b32 v8, v10, 2, v8")
    a("v_lshl_add_u32 v8, v8, 5, v11")
    a("v_lshl_add_u32 v8, v9, 8, v8")
    a(f"v_add_u32 v{vWA}, 16384, v8")
    for tt in range(1, 4): a(f"v_xor_b32 v{vWA+tt}, {32*tt}, v{vWA}")

def a_reads(buf, ks):
    b = FB[buf]
    xs = [f"ds_read_b128 {vr(b+4*rt,4)}, v{vX1 if ks else vX0} offset:{2048*rt}" for rt in range(4)]
    ws = []
    for tt in range(5):
        for sec in range(2):
            if tt < 4: ws.append(f"ds_read_b64_tr_b16 {vr(b+16+4*tt+2*sec,2)}, v{vWA+tt} offset:{ks*8192+sec*1024}")
            else: ws.append(f"ds_read_b64_tr_b16 {vr(b+16+4*tt+2*sec,2)}, v{vWX} offset:{ks*2048+sec*256}")
    return [xs[0], ws[0], ws[1], xs[1], ws[2], ws[3], xs[2], ws[4], ws[5], xs[3]] + ws[6:]

def acc(rt, tt): return ACC + 4 * (rt * 5 + tt)

def a_mfmas(buf, qtype, order=None):
    b = FB[buf]
    out = []
    for (rt, tt) in (order or [(rt, tt) for tt in range(5) for rt in range(4)]):
        d = vr(acc(rt, tt), 4)
        xf = vr(b + 4 * rt, 4); wf = vr(b + 16 + 4 * tt, 4)
        A, B = (wf, xf) if qtype else (xf, wf)
        out.append(f"v_mfma_f32_16x16x32_bf16 {d}, {A}, {B}, {d}")
    return out

def interleave(mf, rd):
    j = 0
    for i, m in enumerate(mf):
        a(m)
        if j < len(rd): a(rd[j]); j += 1
    while j < len(rd): a(rd[j]); j += 1

def a_mainloop(qtype):
    t = "q" if qtype else "k"
    a.c("A main loop")
    a(f"s_mov_b32 s{sC}, 0")
    a(f"s_mov_b32 s{sSL}, 0")
    a(f"s_mov_b32 s{sT6}, {1<<10}")
    if qtype:
        a(f"s_cmp_lt_u32 s{sW}, {NQ}")
        a(f"s_cselect_b32 s{sT6}, {(1<<10)|(1<<1)|(1<<3)}, s{sT6}")
    if "noprio" not in EXP: a("s_setprio 2")
    a("s_waitcnt lgkmcnt(0)")
    if "ast" in EXP: stamp(1, True)
    a("s_barrier")
    stamp(1)
    for r in a_reads(0, 0): a(r)
    book = [
        f"s_add_u32 s{sSL}, s{sSL}, 1\ns_cmp_eq_u32 s{sSL}, 3",
        f"s_mov_b32 s{sT4}, {SLOT}",
        f"s_cselect_b32 s{sT4}, {-2*SLOT & 0xffffffff}, s{sT4}",
        f"s_cselect_b32 s{sSL}, 0, s{sSL}\ns_add_u32 s{sC}, s{sC}, 1",
    ]
    src_ = f"s{sT4}"
    rd = a_reads(1, 1)
    seq = []
    for i, r in enumerate(rd): seq.append(r + ("\n" + book[i - 2] if 2 <= i < 6 else ""))
    seq += [f"v_add_u32 v{vX0}, {src_}, v{vX0}\nv_add_u32 v{vX1}, {src_}, v{vX1}",
            f"v_add_u32 v{vWA}, {src_}, v{vWA}\nv_add_u32 v{vWA+1}, {src_}, v{vWA+1}",
            f"v_add_u32 v{vWA+2}, {src_}, v{vWA+2}\nv_add_u32 v{vWA+3}, {src_}, v{vWA+3}",
            f"v_add_u32 v{vWX}, {src_}, v{vWX}\ns_bitcmp1_b32 s{sT6}, s{sC}"]
    a(".p2align 3")
    a.label(f"Lml{t}")
    a("s_waitcnt lgkmcnt(0)")
    interleave(a_mfmas(0, qtype), seq)
    a("s_waitcnt lgkmcnt(0)")
    a(f"s_cbranch_scc1 Lhook{t}")
    a.label(f"Lhookd{t}")
    if "ast" in EXP:
        a("s_memrealtime vcc")
        a("s_waitcnt lgkmcnt(0)")
        a(f"s_mov_b32 m0, s{sC}")
        a("v_writelane_b32 v29, vcc_lo, m0")
    a("s_barrier")
    interleave(a_mfmas(1, qtype), a_reads(0, 0))
    a(f"s_branch Lml{t}")
    a.label(f"Lhook{t}")
    if qtype:
        a(f"s_cmp_eq_u32 s{sC}, 10")
        a(f"s_cbranch_scc1 Lmx{t}")
        N2 = a.newlabel("Lhk")
        a(f"s_cmp_lg_u32 s{sC}, 1")
        a(f"s_cbranch_scc1 {N2}")
        a("s_waitcnt vmcnt(0)")
        darr_issue(24, 25, 0)
        a(f"s_branch Lhookd{t}")
        a.label(N2)
        darr_finish(24, 25, 0, NU)
        a(f"s_branch Lhookd{t}")
        a.label(f"Lmx{t}")
    if "ast" in EXP:
        for c in range(1, 9): a(f"v_readlane_b32 s{STS+1+c}, v29, {c}")

def acc_zero():
    for i in range(80): a(f"v_mov_b32 v{ACC+i}, 0")

def phi_list(regs, tmp, pk=False):
    out = []
    B = 4
    for i in range(0, len(regs), B):
        batch = regs[i:i + B]
        for j, r in enumerate(batch):
            if pk:
                out.append(f"v_pk_mul_f32 {vr(tmp+2*j,2)}, {vr(r,2)}, {sr(sLOG,2)}"); continue
            out.append(f"v_mul_f32 v{tmp+2*j}, s{sLOG}, v{r}")
            out.append(f"v_mul_f32 v{tmp+2*j+1}, s{sLOG}, v{r+1}")
        for j, r in enumerate(batch):
            out.append(f"v_exp_f32_e64 v{tmp+2*j}, v{tmp+2*j} clamp")
            out.append(f"v_exp_f32_e64 v{tmp+2*j+1}, v{tmp+2*j+1} clamp")
        for j, r in enumerate(batch):
            out.append(f"v_max_f32 v{r}, s{sEPS}, v{r}")
            out.append(f"v_max_f32 v{r+1}, s{sEPS}, v{r+1}")
        for j, r in enumerate(batch):
            if pk:
                out.append(f"v_pk_add_f32 {vr(r,2)}, {vr(r,2)}, {vr(tmp+2*j,2)}"); continue
            out.append(f"v_add_f32 v{r}, v{r}, v{tmp+2*j}")
            out.append(f"v_add_f32 v{r+1}, v{r+1}, v{tmp+2*j+1}")
    return out

def sprinkle(main, extra, every, start=0):
    j = 0
    for i, m in enumerate(main):
        a(m)
        if i >= start and (i - start) % every == every - 1 and j < len(extra):
            a(extra[j]); j += 1
    return extra[j:]

def fc_addr(v):
    a(f"v_and_b32 v{v}, 7, v{vL}")
    a(f"v_lshlrev_b32 v{v}, 8, v{v}")
    a(f"v_add_u32 v{v}, {WS_FC}, v{v}")
def f0_addr(v):
    a(f"s_lshr_b32 s{sT4}, s{sQUAD}, 4")
    a(f"s_lshl_b32 s{sT4}, s{sT4}, 8")
    a(f"s_add_u32 s{sT4}, s{sT4}, {WS_F0}")
    a(f"v_mov_b32 v{v}, s{sT4}")

def awave():
    a.label("Lawave")
    ka_rest()
    a(f"s_cmp_ge_u32 s{sIDX}, 16")
    a("s_cbranch_scc1 Lqa")
    srd_init([SWS, SDBG])
    common_scalars()
    srd_init([SX, SOUT])
    acc_zero()

def kva():
    a(f"s_lshr_b32 s{sT0}, s{sIDX}, 2")
    a(f"s_lshl_b32 s{sCG}, s{sCP}, 2")
    a(f"s_add_u32 s{sCG}, s{sCG}, s{sT0}")
    a_setup()
    a(f"s_mul_i32 s{sT4}, s{sW}, 3584")
    a(f"s_add_u32 s{sT4}, s{sT4}, {L_KVS}")
    a(f"v_mul_u32_u24 v8, 336, v{vG4}")
    a(f"v_add_u32 v8, s{sT4}, v8")
    a(f"v_lshl_add_u32 v{vA1}, v{vC16}, 4, v8")
    a(f"v_add_u32 v9, 8, v{vC16}")
    a(f"v_subrev_u32 v10, 12, v{vC16}")
    a(f"v_cmp_lt_u32 vcc, 11, v{vC16}")
    a("v_cndmask_b32 v9, v9, v10, vcc")
    a(f"v_cmp_eq_u32 vcc, 0, v{vC16}")
    a("v_mov_b32 v10, 20")
    a("v_cndmask_b32 v9, v9, v10, vcc")
    a(f"v_lshl_add_u32 v{vA2}, v9, 4, v8")
    a(f"s_lshl_b32 s{sT4}, s{sT0}, 2")
    a(f"s_add_u32 s{sT4}, s{sT4}, {L_CNT}")
    a(f"v_mov_b32 v20, s{sT4}")
    a(f"s_mul_i32 s{sT4}, s{sT0}, 3584")
    a(f"s_mul_i32 s{sT5}, s{sT1}, {KVH}")
    a(f"s_add_u32 s{sT4}, s{sT4}, s{sT5}")
    a(f"v_lshlrev_b32 v21, 2, v{vL}")
    a(f"s_add_u32 s{sT5}, s{sT4}, {L_KVS}")
    a(f"v_add_u32 v22, s{sT5}, v21")
    a(f"s_mul_i32 s{sT5}, s{sCG}, {4*KVH}")
    a(f"s_add_u32 s{sT4}, s{sT4}, s{sT5}")
    a(f"s_add_u32 s{sCH}, s{sT4}, {WS_KV}")
    a("v_mov_b32 v23, 0x3f803f80")
    a(f"s_lshl_b32 s{sLC}, s{sCG}, 8")
    a(f"s_add_u32 s{sLC}, s{sLC}, {WS_FK}")
    wo_prep(28)
    a_mainloop(False)
    a.c("KV epilogue")
    order = [(rt, tt) for tt in (4, 0, 2, 1, 3) for rt in range(4)]
    mf = a_mfmas(1, False, order)
    for m in mf[:8]: a(m)
    XP = 112
    TM = 12
    TM = 8
    a(f"v_cmp_gt_u32 vcc, 8, v{vC16}")
    def pairs(tt): return sum([[acc(rt, tt), acc(rt, tt) + 2] for rt in range(4)], [])
    def cvts(tt): return [f"v_cvt_pk_bf16_f32 v{acc(rt&2,tt)+2*(rt&1)+h}, v{acc(rt,tt)+2*h}, v{acc(rt,tt)+2*h+1}" for rt in range(4) for h in range(2)]
    L = []
    for rt in range(4):
        for h in range(2): L.append(f"v_cvt_pk_bf16_f32 v{XP+2*rt+h}, v{acc(rt,4)+2*h}, v{acc(rt,4)+2*h+1}")
    for j in range(8): L.append(f"v_cndmask_b32 v{XP+j}, v{XP+j}, v23, vcc")
    L += phi_list(pairs(4)[:4], TM, False)
    for i, m in enumerate(mf[8:]):
        a(m)
        for x in L[2 * i:2 * i + 2]: a(x)
    L = L[24:]
    stamp(2)
    pk = "nopk" not in EXP
    L += phi_list(pairs(4)[4:], TM, pk) + cvts(4) + phi_list(pairs(0), TM, pk) + cvts(0) + cvts(2) + cvts(3)
    if "aspr" in EXP: assert not sprinkle(L, wo_list(28), len(L) // 25)
    else:
        for x in L: a(x)
    def fr(t, p): return XP + 4 * p if t == 5 else acc(2 * p, t)
    prods = [(0, 2), (0, 5), (4, 2), (4, 5), (1, 3), (1, 5), (4, 3)]
    PD = 120
    def pm(lst):
        for p in range(2):
            for i in lst:
                ta, tb = prods[i]
                d = vr(PD + 4 * i, 4)
                a(f"v_mfma_f32_16x16x32_bf16 {d}, {vr(fr(ta,p),4)}, {vr(fr(tb,p),4)}, {'0' if p==0 else d}")
    def wr(i, va, off, mlo, mhi):
        t = ""
        if mlo != -1: t += f"s_mov_b32 exec_lo, {mlo}\ns_mov_b32 exec_hi, {mhi}\n"
        t += f"ds_write_b128 v{va}, {vr(PD+4*i,4)} offset:{off}"
        if mlo != -1: t += "\ns_mov_b64 exec, -1"
        return t
    pm([0, 1, 2, 3, 6])
    W1 = [wr(0, vA1, 0, -1, -1), wr(1, vA2, 0, 0x0f010f01, 0x0f010f01), wr(2, vA1, 4 * 336, 0xffff, 0),
          wr(3, vA2, 4 * 336, 0x0f01, 0), wr(3, vA2, KVH - 336, 0xf0010000, 0), wr(6, vA1, KVH + 64 - 336, 0xffff0000, 0)]
    rest = sprinkle(phi_list(pairs(1)[:4], TM, False) + phi_list(pairs(1)[4:], TM, pk) + cvts(1), W1, 8, 6)
    assert not rest
    pm([4, 5])
    a(wr(4, vA1, KVH + 336 + 64, -1, -1))
    a(wr(5, vA2, KVH + 336, 0xf001f001, 0xf001f001))
    if "econv" in EXP:
        lds_arrive(20, 24)
        lds_wait(20, 24, 2 + 4 * 256)
    else:
        a("s_waitcnt lgkmcnt(0)")
        a("s_barrier")
    for i in range(7):
        a(f"ds_read_b32 v{32+i}, v22 offset:{256*i}")
        a(f"ds_read_b32 v{40+i}, v22 offset:{256*i+7168}")
    stamp(3)
    for i in range(7):
        a(f"s_waitcnt lgkmcnt({12-2*i})")
        a(f"v_add_f32 v{32+i}, v{32+i}, v{40+i}")
        a(f"buffer_atomic_add_f32 v{32+i}, v21, {srd(SWS)}, s{sCH} offen offset:{256*i}")
    arr_prep(48, 49)
    s3_setup()
    a("s_waitcnt vmcnt(0)")
    arr_issue(48, 49, f"s{sLC}")
    arr_finish(48, 49, f"s{sLC}", 64, 0)
    a("s_setprio 0")
    stamp(4)
    a("s_branch Ls3x" if "aspr" in EXP else "s_branch Ls3")

def qa():
    a.label("Lqa")
    common_scalars()
    a(f"s_cmp_ge_u32 s{sW}, {NQ}")
    a("s_cbranch_scc1 Lq1")
    a(f"s_mov_b32 s{sTB}, s{sCI}")
    a(f"s_add_u32 s{sCHB}, s{sW}, {10-NQ}")
    s0_loads()
    a.label("Lq1")
    if "qpf" in EXP:
        a(f"v_min_u32 v1, 34, v{vL}")
        a("v_mul_u32_u24 v1, 1280, v1")
        a(f"s_mul_i32 s{sT0}, s{sCI}, 40960")
        a(f"s_lshl_b32 s{sT1}, s{sW}, 7")
        a(f"s_add_u32 s{sT0}, s{sT0}, s{sT1}")
        a(f"s_add_u32 s{sT0}, s{sT0}, 768")
        a(f"v_add_u32 v2, s{sT0}, v1")
        a("v_subrev_u32 v1, 3840, v2")
        srd_init([SK, SV])
        a("s_waitcnt lgkmcnt(0)")
        a(f"buffer_load_dword v250, v1, {srd(SK)}, 0 offen")
        a("s_mov_b32 exec_hi, 0")
        a(f"buffer_load_dword v251, v2, {srd(SV)}, 0 offen")
        a("s_mov_b32 exec_hi, -1")
    srd_init([SWS, SDBG, SX, SOUT])
    acc_zero()
    a(f"s_bfe_u32 s{sT0}, s{sIDX}, 0x20002")
    a(f"s_mul_i32 s{sCG}, s{sCP}, {Q0}")
    a(f"s_add_u32 s{sCG}, s{sCG}, s{sT0}")
    a_setup()
    a(f"v_lshrrev_b32 v8, 1, v{vG4}")
    a(f"v_and_b32 v9, 1, v{vG4}")
    a(f"v_lshlrev_b32 v20, 4, v{vC16}")
    a("v_lshl_add_u32 v20, v9, 9, v20")
    a("v_lshl_add_u32 v21, v8, 3, v20")
    a("v_add_u32 v21, 4096, v21")
    a("v_lshl_add_u32 v20, v8, 10, v20")
    a(f"s_lshl_b32 s{sT4}, s{sRB}, 1")
    a(f"s_add_u32 s{sT4}, s{sT4}, s{sT1}")
    a(f"s_lshl_b32 s{sT5}, s{sCG}, 1")
    a(f"s_add_u32 s{sT5}, s{sT5}, s{sT0}")
    a(f"s_mul_i32 s{sT0}, s{sT4}, {80*1024}")
    a(f"s_mul_i32 s{sT1}, s{sT5}, {5*1024}")
    a(f"s_add_u32 s{sT0}, s{sT0}, s{sT1}")
    a(f"s_add_u32 s{sCH}, s{sT0}, {WS_PQ}")
    a(f"s_add_u32 s{sVAR}, s{sCH}, {40*1024}")
    a(f"s_lshl_b32 s{sT4}, s{sT4}, 3")
    a(f"s_add_u32 s{sT4}, s{sT4}, s{sT5}")
    a(f"s_lshl_b32 s{sT4}, s{sT4}, 8")
    a(f"s_add_u32 s{sLC}, s{sT4}, {WS_FQ}")
    wo_prep(28)
    a("v_mov_b32 v24, 0")
    a(f"s_cmp_ge_u32 s{sW}, {NQ}")
    a("s_cbranch_scc1 Lq2")
    a(f"s_mul_i32 s{sT2}, s{sW}, 4608")
    a(f"s_add_u32 s{sT2}, s{sT2}, {2*SLOT}")
    s0_addr(sT2)
    a("s_waitcnt vmcnt(0)")
    stamp(11)
    s0_compute()
    stamp(12)
    a.label("Lq2")
    a_mainloop(True)
    a.c("Q epilogue")
    order = [(rt, tt) for rt in range(4) for tt in range(5)]
    mf = a_mfmas(1, True, order)
    for m in mf[:9]: a(m)
    L = []
    for rt in range(4):
        regs = []
        for tt in range(5): regs += [acc(rt, tt), acc(rt, tt) + 2]
        L += phi_list(regs, 112, rt > 0 and "nopk" not in EXP)
        O = acc(rt, 0)
        for tt in range(5):
            for h in range(2): L.append(f"v_cvt_pk_bf16_f32 v{O+2*tt+h}, v{acc(rt,tt)+2*h}, v{acc(rt,tt)+2*h+1}")
        so = f"s{sVAR if rt>>1 else sCH}"
        for p in range(2):
            L.append(f"buffer_store_dwordx4 {vr(O+4*p,4)}, v20, {srd(SWS)}, {so} offen offset:{256*(rt&1)+2048*p} sc1")
        L.append(f"buffer_store_dwordx2 {vr(O+8,2)}, v21, {srd(SWS)}, {so} offen offset:{256*(rt&1)} sc1")
    for i, m in enumerate(mf[9:]):
        a(m)
        for x in L[2 * i:2 * i + 2]: a(x)
    L = L[22:]
    stamp(2)
    if "aspr" in EXP: assert not sprinkle(L, wo_list(28), 8)
    else:
        for x in L: a(x)
    stamp(3)
    a("s_barrier")
    a("s_waitcnt vmcnt(0)")
    flag_store(120, 121, f"s{sLC}")
    s3_setup()
    a("s_setprio 0")
    stamp(4)
    a("s_branch Ls3x" if "aspr" in EXP else "s_branch Ls3")

def h_dma(sj, sch0):
    a(f"s_lshr_b32 s{sT4}, s{sj}, 1")
    a(f"s_and_b32 s{sT5}, s{sj}, 1")
    a(f"s_lshl_b32 s{sT5}, s{sT5}, 11")
    a(f"s_add_u32 s{sT6}, s{sch0}, s{sT4}")
    a(f"s_lshl_b32 s{sT6}, s{sT6}, 12")
    a(f"s_add_u32 s{sT6}, s{sT6}, s{sT5}")
    a(f"s_mul_i32 s{sT4}, s{sT4}, {HSTR}")
    a(f"s_add_u32 s{sT4}, s{sT4}, s{sT5}")
    a(f"s_add_u32 m0, s{sT4}, {L_HB+128}")
    a(f"buffer_load_dwordx4 v{vL16}, {srd(SH)}, s{sT6} offen lds")
    a(f"buffer_load_dwordx4 v{vL16}, {srd(SH)}, s{sT6} offen offset:1024 lds")

CACC = 32
CPOOL = 96
NPOOL = 12
CD = 144
vUe, vUo, vH, vCW, vCT, vCS, vCY, vCN = range(148, 156)

def conv_setup(j, chl0, split=None):
    a.c("conv setup")
    a(f"s_lshr_b32 s{sLC}, s{j}, 1")
    a(f"s_and_b32 s{sVAR}, s{j}, 1")
    a(f"s_add_u32 s{sCHL}, s{chl0}, s{sLC}")
    a(f"s_lshl_b32 s{sCH}, s{sQUAD}, 2")
    a(f"s_add_u32 s{sCH}, s{sCH}, s{sCHL}")
    a(f"s_lshl_b32 s{sT4}, s{sCH}, 1")
    a(f"s_and_b32 s{sT4}, s{sT4}, -4")
    a(f"s_load_dword s{sDV}, {sr(SD,2)}, s{sT4}")
    a(f"v_and_b32 v96, 31, v{vL}")
    a(f"v_lshrrev_b32 v97, 5, v{vL}")
    a("v_lshl_add_u32 v98, v97, 2, v96")
    a("v_lshrrev_b32 v99, 2, v98")
    a("v_add_u32 v99, 3, v99")
    a("v_and_b32 v99, 3, v99")
    a(f"v_xor_b32 v99, s{sCHL}, v99")
    a("v_lshlrev_b32 v99, 4, v99")
    a("v_lshl_add_u32 v99, v98, 6, v99")
    a(f"v_add_u32 v{vUe}, {L_UD-28*64}, v99")
    a(f"v_xor_b32 v{vUo}, 32, v{vUe}")
    a(f"v_bfe_u32 v98, v{vL}, 4, 1")
    a(f"v_and_b32 v99, 3, v{vL}")
    a("v_lshl_add_u32 v98, v98, 2, v99")
    a(f"v_bfe_u32 v96, v{vL}, 2, 2")
    a("v_sub_u32 v98, v98, v96")
    a("v_lshlrev_b32 v97, 3, v97")
    a("v_sub_u32 v98, v98, v97")
    a("v_lshlrev_b32 v98, 3, v98")
    a(f"s_mul_i32 s{sT4}, s{sLC}, {HSTR}")
    a(f"s_add_u32 s{sT4}, s{sT4}, {L_HB+128+32}")
    a(f"v_add_u32 v{vH}, s{sT4}, v98")
    a(f"s_lshl_b32 s{sT4}, s{sW}, 11")
    a(f"s_add_u32 s{sT4}, s{sT4}, {L_YST}")
    a(f"v_lshlrev_b32 v{vCW}, 4, v{vL}")
    a(f"v_add_u32 v{vCW}, s{sT4}, v{vCW}")
    if split: split(0)
    a(f"v_lshrrev_b32 v97, 4, v{vL}")
    a("v_lshrrev_b32 v98, 1, v99")
    a("v_lshl_add_u32 v98, v97, 1, v98")
    a("v_lshl_add_u32 v98, v98, 3, v96")
    a("v_lshlrev_b32 v98, 4, v98")
    a("v_and_b32 v99, 1, v99")
    a("v_lshl_add_u32 v98, v99, 3, v98")
    a(f"v_add_u32 v{vCT}, s{sT4}, v98")
    a(f"v_and_b32 v98, 7, v{vL}")
    a(f"v_lshrrev_b32 v99, 5, v{vL}")
    a("v_lshl_add_u32 v98, v98, 1, v99")
    a(f"v_mul_u32_u24 v98, 40960, v98")
    a(f"v_bfe_u32 v99, v{vL}, 3, 2")
    a(f"v_lshl_add_u32 v{vCY}, v99, 4, v98")
    a(f"s_lshl_b32 s{sT4}, s{j}, 4")
    a(f"s_add_u32 s{sT4}, s{sT4}, {L_SP}")
    a(f"v_mov_b32 v{vCS}, s{sT4}")
    a(f"s_lshl_b32 s{sT4}, s{sLC}, 2")
    a(f"s_add_u32 s{sT4}, s{sT4}, {L_CNT+16}")
    a(f"v_mov_b32 v{vCN}, s{sT4}")

def conv_dfrag():
    a("s_waitcnt lgkmcnt(0)")
    a(f"s_and_b32 s{sT4}, s{sCH}, 1")
    a(f"s_lshl_b32 s{sT4}, s{sT4}, 4")
    a(f"s_lshr_b32 s{sDV}, s{sDV}, s{sT4}")
    a(f"s_and_b32 s{sDV}, s{sDV}, 0xffff")
    a(f"v_lshlrev_b32 v98, 2, v{vL}")
    a("v_and_b32 v98, 16, v98")
    a(f"v_lshlrev_b32 v98, v98, s{sDV}")
    a(f"v_and_b32 v99, 59, v{vL}")
    for r in range(4):
        a(f"v_cmp_eq_u32 vcc, {32+8*r}, v99")
        a(f"v_cndmask_b32 v{CD+r}, 0, v98, vcc")

def zero_pads(j):
    a("v_mov_b32 v100, 0")
    a("v_mov_b32 v101, 0")
    a(f"v_lshlrev_b32 v102, 3, v{vL}")
    a(f"s_and_b32 s{sT6}, s{j}, 3")
    a(f"s_lshl_b32 s{sT4}, s{sT6}, 9")
    a(f"s_add_u32 s{sT4}, s{sT4}, {L_UB}")
    a(f"v_add_u32 v103, s{sT4}, v102")
    a("ds_write_b64 v103, v[100:101]")
    a(f"s_mul_i32 s{sT4}, s{sT6}, {HSTR}")
    a(f"s_add_u32 s{sT4}, s{sT4}, {L_HB}")
    a(f"v_add_u32 v103, s{sT4}, v102")
    a("s_mov_b64 exec, 0xffff")
    a("ds_write_b64 v103, v[100:101]")
    a(f"v_add_u32 v103, {L_CNT}, v102")
    a("s_mov_b64 exec, 0xff")
    a("ds_write_b64 v103, v[100:101]")
    a("s_mov_b64 exec, -1")

def u_dma(j, nper):
    a(f"s_mul_i32 s{sT4}, s{j}, {1024*nper}")
    a(f"s_lshl_b32 s{sT5}, s{sQUAD}, 14")
    if WOFF: a(f"s_add_u32 s{sT5}, s{sT5}, {WOFF}")
    a(f"s_add_u32 s{sT5}, s{sT5}, s{sT4}")
    a(f"s_add_u32 m0, s{sT4}, {L_UD}")
    for i in range(nper): a(f"buffer_load_dwordx4 v{vL16}, {srd(SWS)}, s{sT5} offen offset:{1024*i} sc1 lds")

def bwave():
    a.c("B wave")
    sXB, sWB, sM, sMW, sROT, sSTEP, sQ2, sQ3 = sCG, sUD, sTB, sRB, sCI, sLOG, sLOG + 1, sEPS
    VX, VW = 32, 36
    a(f"s_sub_u32 s{sJ}, s{sW}, 4")
    a(f"v_lshrrev_b32 v1, 3, v{vL}")
    a(f"v_mul_u32_u24 v1, 1280, v1")
    a(f"v_lshrrev_b32 v2, 4, v{vL}")
    a(f"v_and_b32 v3, 7, v{vL}")
    a("v_xor_b32 v2, v2, v3")
    a(f"v_lshl_add_u32 v{VX}, v2, 4, v1")
    a(f"v_xor_b32 v{VX+1}, 64, v{VX}")
    a(f"v_add_u32 v{VX+1}, {10240-1024}, v{VX+1}")
    a(f"v_add_u32 v{VX+2}, {20480-2048}, v{VX}")
    a(f"v_add_u32 v{VX+3}, {20480-2048}, v{VX+1}")
    a(f"s_lshl_b32 s{sXB}, s{sRB}, 2")
    a(f"s_add_u32 s{sXB}, s{sXB}, s{sJ}")
    a(f"s_mul_i32 s{sXB}, s{sXB}, 40960")
    a(f"s_lshr_b32 s{sT0}, s{sIDX}, 2")
    a(f"s_add_u32 s{sROT}, s{sT0}, s{sIDX}")
    a(f"s_and_b32 s{sROT}, s{sROT}, 3")
    a(f"s_add_u32 s{sM}, s{sRP}, s{sCP}")
    a(f"s_and_b32 s{sM}, s{sM}, 1")
    a(f"s_lshl_b32 s{sM}, s{sM}, 2")
    a(f"s_or_b32 s{sROT}, s{sROT}, s{sM}")
    def chunk_of(sd, srot, step):
        if "nostag" in EXP:
            a(f"s_and_b32 s{sd}, s{srot}, {7 if step < 8 else 1}")
            a(f"s_xor_b32 s{sd}, s{sd}, {step}")
            return
        m0_, x0 = (3, step) if step < 8 else (1, step)
        m1_, x1 = (1, 8 + step) if step < 2 else (7, step - 2)
        a(f"s_bitcmp1_b32 s{srot}, 2")
        a(f"s_cselect_b32 s{sd}, {m1_}, {m0_}")
        a(f"s_cselect_b32 s{sQ2}, {x1}, {x0}")
        a(f"s_and_b32 s{sd}, s{sd}, s{srot}")
        a(f"s_xor_b32 s{sd}, s{sd}, s{sQ2}")
    chunk_of(sSTEP, sROT, 0)
    a(f"s_lshl_b32 s{sM}, s{sJ}, 12")
    srd_init([SX, SWQ])
    def chunk_x(sc):
        a(f"s_mov_b32 m0, s{sM}")
        a(f"s_lshl_b32 s{sQ2}, s{sc}, 7")
        a(f"s_add_u32 s{sQ2}, s{sQ2}, s{sXB}")
        for i in range(4):
            a(f"buffer_load_dwordx4 v{VX+i}, {srd(SX)}, s{sQ2} offen offset:{1024*i} lds")
    def chunk_w(sc):
        a(f"s_add_u32 m0, s{sM}, 16384")
        a(f"s_mul_i32 s{sQ3}, s{sc}, {64*3840}")
        a(f"s_add_u32 s{sQ3}, s{sQ3}, s{sWB}")
        for hf in range(1):
            if hf:
                a(f"s_add_u32 m0, s{sM}, {16384+4096}")
                a(f"s_add_u32 s{sQ3}, s{sQ3}, {16*3840}")
            for i in (0, 1, 4, 2, 3):
                if i == 2: a(f"s_add_u32 m0, s{sM}, {16384+4096*hf}")
                if i == 4: a(f"s_add_u32 m0, s{sMW}, {1024*hf}")
                a(f"buffer_load_dwordx4 v{VW+i}, {srd(SWQ)}, s{sQ3} offen offset:{1024*(i&3)} lds")
    a(f"s_lshl_b32 s{sT1}, s{sCP}, 2")
    a(f"s_add_u32 s{sT1}, s{sT1}, s{sT0}")
    a(f"s_add_u32 s{sT1}, s{sT1}, 8")
    a(f"s_lshl_b32 s{sT0}, s{sT0}, 1")
    a(f"s_mul_i32 s{sT4}, s{sCP}, {2*Q0}")
    a(f"s_add_u32 s{sT0}, s{sT0}, s{sT4}")
    a(f"s_sub_u32 s{sT0}, s{sT0}, 8")
    a(f"s_cmp_ge_u32 s{sIDX}, 16")
    a(f"s_cselect_b32 s{sWB}, s{sT0}, s{sT1}")
    a(f"s_cselect_b32 s{sT4}, 10, 5")
    a(f"s_cselect_b32 s{sT5}, 4, 0x50")
    a(f"s_cselect_b32 s{sT6}, 1, 3")
    a(f"s_cselect_b32 s{sT7}, 2, 1")
    a(f"s_cselect_b32 s{sT0}, 1, 0x50")
    a(f"s_cselect_b32 s{sT1}, 8, 2")
    a(f"s_mulk_i32 s{sWB}, 160")
    a(f"s_mul_i32 s{sT2}, s{sJ}, {16*3840}")
    a(f"s_add_u32 s{sWB}, s{sWB}, s{sT2}")
    a(f"s_lshl_b32 s{sMW}, s{sJ}, 10")
    a(f"s_add_u32 s{sMW}, s{sMW}, 32768")
    a(f"v_lshrrev_b32 v14, 4, v{vL}")
    a(f"v_lshrrev_b32 v15, 1, v{vL}")
    a("v_xor_b32 v15, v15, v14")
    a(f"v_and_b32 v16, 1, v{vL}")
    a("v_mul_u32_u24 v14, 240, v14")
    a(f"v_mad_u32_u24 v14, v16, s{sT7}, v14")
    a("v_and_b32 v17, 1, v15")
    a(f"v_mad_u32_u24 v14, v17, s{sT6}, v14")
    a("v_bfe_u32 v17, v15, 1, 1")
    a(f"v_mad_u32_u24 v14, v17, s{sT5}, v14")
    a("v_bfe_u32 v17, v15, 2, 1")
    a(f"v_mad_u32_u24 v18, v17, s{sT4}, v14")
    a(f"v_lshlrev_b32 v{VW}, 4, v18")
    a(f"v_add_u32 v{VW+1}, {15360-1024}, v{VW}")
    a("v_xor_b32 v17, 1, v17")
    a(f"v_mad_u32_u24 v18, v17, s{sT4}, v14")
    a(f"v_lshlrev_b32 v18, 4, v18")
    a(f"v_add_u32 v{VW+2}, {30720-2048}, v18")
    a(f"v_add_u32 v{VW+3}, {46080-3072}, v18")
    a(f"v_lshrrev_b32 v14, 2, v{vL}")
    a("v_mul_u32_u24 v14, 240, v14")
    a(f"v_mad_u32_u24 v14, v16, s{sT0}, v14")
    a(f"v_lshrrev_b32 v17, 4, v{vL}")
    a(f"v_xor_b32 v17, v17, v{vL}")
    a("v_bfe_u32 v17, v17, 1, 1")
    a(f"v_mad_u32_u24 v14, v17, s{sT4}, v14")
    a(f"v_add_lshl_u32 v{VW+4}, v14, s{sT1}, 4")
    a("s_waitcnt lgkmcnt(0)")
    stamp(11)
    chunk_x(sSTEP)
    chunk_w(sSTEP)
    ka_rest()
    stamp(12)
    def issue(step):
        d = SLOT if step % 3 else (-2 * SLOT & 0xffffffff)
        a(f"s_add_u32 s{sM}, s{sM}, {d}")
        a(f"s_add_u32 s{sMW}, s{sMW}, {d}")
        chunk_of(sSTEP, sROT, step)
        if "nodma" in EXP and step >= 2: return
        chunk_x(sSTEP); chunk_w(sSTEP)
    bn = [1]
    def bar(n, nxt=None):
        a(f"s_waitcnt vmcnt({n}) lgkmcnt(0)")
        if "bst" in EXP and "pre" in EXP: stamp(bn[0], True)
        a("s_barrier")
        if "bst" in EXP and "pre" not in EXP: stamp(bn[0], True)
        bn[0] += 1
        if nxt is not None: issue(nxt)
    def g_setup():
        srd_init([SX, SH, SWS, SDBG, SOUT])
        a(f"s_mul_i32 s{sT7}, s{sRP}, 48")
        a(f"s_mul_i32 s{sT1}, s{sCP}, {G0}")
        a(f"s_add_u32 s{sT7}, s{sT7}, s{sT1}")
        a(f"s_add_u32 s{sT7}, s{sT7}, s{sIDX}")
        a(f"s_lshr_b32 s{sQUAD}, s{sT7}, 1")
        a(f"s_add_u32 s{sQUAD}, s{sQUAD}, 64")
        a(f"s_and_b32 s{sT1}, s{sIDX}, 1")
        a(f"s_lshl_b32 s{sT1}, s{sT1}, 1")
        a("s_waitcnt lgkmcnt(0)")
        conv_setup(sJ, sT1)
        s3_setup()
        wo_prep(vL16)
    sGS, sGO = 1, 0
    a("s_waitcnt lgkmcnt(0)")
    a(f"s_bfe_u32 s{sT0}, s{sIDX}, 0x20002")
    a(f"s_mul_i32 s{sT1}, s{sCP}, {Q0}")
    a(f"s_add_u32 s{sT0}, s{sT0}, s{sT1}")
    a(f"s_lshl_b32 s{sT0}, s{sT0}, 2")
    a(f"s_add_u32 s{sT0}, s{sT0}, s{sJ}")
    a(f"s_and_b32 s{sT2}, s{sIDX}, 3")
    a(f"s_lshl_b32 s{sT3}, s{sRP}, 2")
    a(f"s_add_u32 s{sT2}, s{sT2}, s{sT3}")
    a(f"s_lshl_b32 s{sGO}, s{sT2}, 4")
    a(f"s_add_u32 s{sGO}, s{sGO}, s{sT0}")
    a(f"s_cmp_ge_u32 s{sIDX}, 16")
    a(f"s_cselect_b32 s{sGS}, 1, 0")
    a(f"s_lshl_b32 s{sT0}, s{sT0}, 10")
    a(f"v_lshlrev_b32 v41, 4, v{vL}")
    srd_init([SGW])
    a(f"s_mov_b32 m0, {L_GW}")
    a(f"v_add_u32 v42, s{sT0}, v41")
    a(f"v_add_u32 v55, {2*SLOT}, v42")
    a(f"s_cmp_ge_u32 s{sIDX}, 16")
    a("s_cbranch_scc0 Lbng")
    a(f"buffer_load_dwordx4 v41, {srd(SGW)}, 0 offen lds")
    a(f"buffer_load_dwordx4 v41, {srd(SGW)}, 0 offen offset:1024 lds")
    a.label("Lbng")
    a(f"s_and_b32 s{sT1}, s{sJ}, 1")
    a(f"s_lshl_b32 s{sT1}, s{sT1}, 2")
    a(f"v_xor_b32 v43, s{sT1}, v2")
    a("v_lshlrev_b32 v43, 4, v43")
    a(f"v_add_u32 v43, {L_GW}, v43")
    a("v_mov_b32 v52, 0")
    a("v_mov_b32 v53, 0")
    g_setup()
    a("v_mov_b32 v44, 128")
    a("v_mov_b32 v45, 132")
    zero_pads(sJ)
    conv_dfrag()
    def gate(step):
        D = a.newlabel("Lg")
        a(f"s_cmp_eq_u32 s{sGS}, 0")
        a(f"s_cbranch_scc1 {D}")
        chunk_of(sT0, sROT, step)
        a(f"s_lshl_b32 s{sT0}, s{sT0}, 7")
        a(f"v_add_u32 v54, s{sT0}, v43")
        if step % 3 == 2: a("ds_read_b128 v[56:59], v55")
        else: a(f"ds_read_b128 v[56:59], v42 offset:{SLOT*(step%3)}")
        a("ds_read_b128 v[60:63], v54")
        a("s_waitcnt lgkmcnt(0)")
        for i in range(4): a(f"v_dot2c_f32_bf16 v{52+(i&1)}, v{56+i}, v{60+i}")
        a.label(D)
    if "bprio" in EXP: a("s_setprio 3")
    issue(1)
    for c in range(0, 8):
        bar(9)
        if c == 0: stamp(1)
        issue(c + 2)
        gate(c)
    a(f"s_mov_b32 s{sEPS}, 0x358637bd")
    a(f"s_sub_u32 s{sT1}, s{sCH}, s{sLC}")
    bar(9)
    a(f"buffer_load_dwordx2 v[46:47], v44, {srd(SDBG)}, 0 offen sc1")
    h_dma(sJ, sT1)
    gate(8)
    a("s_waitcnt vmcnt(3)")
    a("s_barrier")
    a("s_setprio 3")
    gate(9)
    a(f"s_cmp_eq_u32 s{sGS}, 0")
    a("s_cbranch_scc1 Lbg")
    a("v_add_f32 v52, v52, v53")
    for ctl in ("quad_perm:[1,0,3,2]", "quad_perm:[2,3,0,1]", "row_half_mirror"):
        a(f"v_add_f32_dpp v52, v52, v52 {ctl} row_mask:0xf bank_mask:0xf")
    a(f"v_mul_f32 v52, 0xbfb8aa3b, v52")
    a(f"v_exp_f32 v52, v52")
    a(f"v_lshrrev_b32 v53, 1, v{vL}")
    a(f"v_add_f32 v52, 1.0, v52")
    a(f"v_rcp_f32 v52, v52")
    a(f"s_lshl_b32 s{sT0}, s{sGO}, 5")
    a(f"s_add_u32 s{sT0}, s{sT0}, {WS_G}")
    a("s_mov_b32 exec_lo, 0x01010101")
    a("s_mov_b32 exec_hi, 0x01010101")
    a(f"buffer_store_dword v52, v53, {srd(SWS)}, s{sT0} offen sc1")
    a("s_mov_b64 exec, -1")
    a.label("Lbg")
    a("s_setprio 0")
    a("s_waitcnt vmcnt(2)")
    poll(45, 47, "landed", S=SDBG)
    stamp(2)
    a(f"v_mov_b32 v48, {L_CNT+8}")
    a(f"v_readfirstlane_b32 s{sUD}, v46")
    wl = wo_list(vL16)
    a(f"s_cmp_eq_u32 s{sUD}, 0")
    a("s_cbranch_scc1 Lbl1")
    u_dma(sJ, 4)
    for x in wl[:8]: a(x)
    a("s_branch Lbl1b")
    a.label("Lbl1")
    cnt_load(SDBG, 44, 46)
    for x in wl[:8]: a(x)
    a("s_waitcnt vmcnt(8)")
    a(f"v_readfirstlane_b32 s{sUD}, v46")
    a(f"s_cmp_eq_u32 s{sUD}, 0")
    a("s_cbranch_scc1 Lbl1b")
    u_dma(sJ, 4)
    a.label("Lbl1b")
    for x in wl[8:16]: a(x)
    a(f"s_cmp_lg_u32 s{sUD}, 0")
    a("s_cbranch_scc1 Lbl2")
    cnt_load(SDBG, 44, 46)
    a.label("Lbl2")
    for x in wl[16:]: a(x)
    x_loads()
    a("s_waitcnt vmcnt(11)")
    a(f"s_cmp_lg_u32 s{sUD}, 0")
    a("s_cbranch_scc1 Lbl3")
    a(f"v_readfirstlane_b32 s{sT0}, v46")
    a(f"s_cmp_eq_u32 s{sT0}, 0")
    a("s_cbranch_scc1 Lbl4")
    u_dma(sJ, 4)
    a("s_barrier")
    a("s_branch Lbl5")
    a.label("Lbl4")
    a("s_barrier")
    poll(44, 46, S=SDBG)
    u_dma(sJ, 4)
    a.label("Lbl5")
    a("s_waitcnt vmcnt(0)")
    lds_arrive(48, 49)
    a("s_branch Lbl6")
    a.label("Lbl3")
    lds_arrive(48, 49)
    a("s_barrier")
    a.label("Lbl6")
    lds_wait(48, 49, 4)
    stamp(3)
    a("s_branch Lconv")

def ctype():
    a.label("Lctype")
    ka_rest()
    common_scalars()
    a(f"s_mov_b32 s{sQUAD}, s{sCI}")
    a(f"s_cmp_ge_u32 s{sW}, 6")
    a("s_cbranch_scc1 Lcaux")
    a(f"s_mov_b32 s{sTB}, s{sCI}")
    a(f"s_mov_b32 s{sCHB}, s{sW}")
    s0_loads()
    srd_init([SWS])
    a(f"s_cmp_ge_u32 s{sW}, {4-NQ}")
    a("s_cbranch_scc1 Lc1")
    a(f"s_add_u32 s{sCHB}, s{sW}, 6")
    s0_loads(28, False)
    a(f"s_mov_b32 s{sCHB}, s{sW}")
    a.label("Lc1")
    a.label("Lcs0")
    a(f"s_mul_i32 s{sT2}, s{sW}, 4608")
    a(f"s_add_u32 s{sT2}, s{sT2}, {L_S0C}")
    s0_addr(sT2)
    a(f"s_cmp_lt_u32 s{sW}, {4-NQ}")
    a("s_cbranch_scc1 Lc2")
    a("s_waitcnt vmcnt(0)")
    a.label("Lc2")
    a("s_waitcnt vmcnt(15)")
    s0_compute()
    stamp(1)
    a(f"s_cmp_ge_u32 s{sW}, {4-NQ}")
    a("s_cbranch_scc1 Lcjoin")
    a(f"s_add_u32 s{sCHB}, s{sW}, 6")
    s0_addr(sT2)
    a("s_waitcnt vmcnt(4)")
    s0_compute(LB=28)
    a("s_branch Lcjoin")

    a.label("Lcaux")
    a("s_setprio 3")
    srd_init([SWO, SWS, SDBG])
    a(f"s_sub_u32 s{sUD}, s{sW}, 6")
    a(f"s_lshl_b32 s{sVAR}, s{sCI}, 1")
    a(f"s_add_u32 s{sVAR}, s{sVAR}, s{sUD}")
    for i in range(4): a(f"v_mov_b32 v{52+i}, 0")
    a(f"v_lshlrev_b32 v15, 3, v{vL}")
    a(f"s_lshl_b32 s{sT0}, s{sVAR}, 9")
    a(f"s_add_u32 s{sT0}, s{sT0}, {WS_KV}")
    a("s_waitcnt lgkmcnt(0)")
    a(f"buffer_store_dwordx2 v[52:53], v15, {srd(SWS)}, s{sT0} offen sc1")
    a(f"s_mul_i32 s{sT0}, s{sVAR}, 768")
    a(f"s_add_u32 s{sT0}, s{sT0}, {WS_C}")
    a(f"v_lshlrev_b32 v16, 8, v{vL}")
    a("s_mov_b64 exec, 7")
    a(f"buffer_store_dword v52, v16, {srd(SWS)}, s{sT0} offen sc1")
    a("s_mov_b64 exec, -1")
    a.label("Lcrp")
    sKQ, sF, sCGR = sCHL, sCH, sJ
    a(f"s_lshr_b32 s{sT0}, s{sVAR}, 2")
    a(f"s_and_b32 s{sCGR}, s{sVAR}, 3")
    a(f"s_mul_i32 s{sKQ}, s{sT0}, 52")
    a(f"s_lshr_b32 s{sKQ}, s{sKQ}, 8")
    a(f"s_mul_i32 s{sT1}, s{sKQ}, 5")
    a(f"s_sub_u32 s{sF}, s{sT0}, s{sT1}")
    a(f"s_mul_i32 s{sT0}, s{sF}, 20")
    a(f"s_cmp_eq_u32 s{sF}, 4")
    a(f"s_cselect_b32 s{sT0}, 16, s{sT0}")
    a(f"s_cselect_b32 s{sT2}, 16, 0")
    a(f"s_mul_i32 s{sT1}, s{sKQ}, 80")
    a(f"s_add_u32 s{sT0}, s{sT0}, s{sT1}")
    a(f"s_mul_i32 s{sT0}, s{sT0}, 1280")
    a(f"s_mul_i32 s{sT1}, s{sCGR}, 320")
    a(f"s_add_u32 s{sT0}, s{sT0}, s{sT1}")
    a(f"s_lshr_b32 s{sT3}, s{sVAR}, 7")
    a(f"s_lshl_b32 s{sT3}, s{sT3}, 1")
    a(f"s_add_u32 s{sT3}, s{sT3}, s{sUD}")
    a(f"s_mul_i32 s{sT3}, s{sT3}, 5120")
    a(f"s_add_u32 s{sT3}, s{sT3}, {L_RPC}")
    a("s_waitcnt lgkmcnt(0)")
    for i in range(5):
        a(f"v_add_u32 v14, {64*i}, v{vL}")
        div20(15, 16, 14)
        a("v_lshrrev_b32 v17, 2, v15")
        a(f"v_mad_u32_u24 v15, v17, s{sT2}, v15")
        a("v_mul_u32_u24 v15, 1280, v15")
        a("v_lshl_add_u32 v15, v16, 4, v15")
        a(f"s_add_u32 m0, s{sT3}, {1024*i}")
        a(f"buffer_load_dwordx4 v15, {srd(SWO)}, s{sT0} offen lds")
    a(f"s_add_u32 s{sVAR}, s{sVAR}, 128")
    a(f"s_cmp_lt_u32 s{sVAR}, 160")
    a("s_cbranch_scc1 Lcrp")
    a(f"s_and_b32 s{sVAR}, s{sVAR}, 127")
    a("s_waitcnt vmcnt(0)")
    a.label("Lcrp2")
    sKQ, sF, sCGR = sCHL, sCH, sJ
    a(f"s_lshr_b32 s{sT0}, s{sVAR}, 2")
    a(f"s_and_b32 s{sCGR}, s{sVAR}, 3")
    a(f"s_mul_i32 s{sKQ}, s{sT0}, 52")
    a(f"s_lshr_b32 s{sKQ}, s{sKQ}, 8")
    a(f"s_mul_i32 s{sT1}, s{sKQ}, 5")
    a(f"s_sub_u32 s{sF}, s{sT0}, s{sT1}")
    a(f"s_lshr_b32 s{sT3}, s{sVAR}, 7")
    a(f"s_lshl_b32 s{sT3}, s{sT3}, 1")
    a(f"s_add_u32 s{sT3}, s{sT3}, s{sUD}")
    a(f"s_mul_i32 s{sT3}, s{sT3}, 5120")
    a(f"s_add_u32 s{sT3}, s{sT3}, {L_RPC}")
    a(f"v_lshrrev_b32 v14, 5, v{vL}")
    a(f"v_bfe_u32 v15, v{vL}, 2, 2")
    a("v_lshl_add_u32 v14, v14, 2, v15")
    a("v_mul_u32_u24 v14, 320, v14")
    a(f"v_bfe_u32 v15, v{vL}, 4, 1")
    a("v_lshl_add_u32 v14, v15, 5, v14")
    a(f"v_and_b32 v15, 3, v{vL}")
    a("v_lshl_add_u32 v14, v15, 3, v14")
    a(f"v_add_u32 v14, s{sT3}, v14")
    a(f"s_mul_i32 s{sT0}, s{sKQ}, 5")
    a(f"s_add_u32 s{sT0}, s{sT0}, s{sF}")
    a(f"s_cmp_ge_u32 s{sKQ}, 3")
    a(f"s_cselect_b32 s{sT1}, 10, 0")
    a(f"s_cmp_ge_u32 s{sKQ}, 6")
    a(f"s_cselect_b32 s{sT1}, -15, s{sT1}")
    a(f"s_cselect_b32 s{sT2}, 25, 50")
    a(f"s_add_u32 s{sT0}, s{sT0}, s{sT1}")
    a(f"s_mul_i32 s{sT1}, s{sCGR}, 200")
    a(f"s_add_u32 s{sT0}, s{sT0}, s{sT1}")
    a(f"s_lshl_b32 s{sT0}, s{sT0}, 10")
    a(f"s_add_u32 s{sT0}, s{sT0}, {WS_WOP}")
    a(f"s_lshl_b32 s{sT2}, s{sT2}, 10")
    a(f"s_lshr_b32 s{sT4}, s{sKQ}, 1")
    a(f"s_mul_i32 s{sT4}, s{sT4}, 25")
    a(f"s_and_b32 s{sT5}, s{sKQ}, 1")
    a(f"s_mul_i32 s{sT5}, s{sT5}, 5")
    a(f"s_add_u32 s{sT4}, s{sT4}, s{sT5}")
    a(f"s_add_u32 s{sT4}, s{sT4}, s{sF}")
    a(f"s_add_u32 s{sT4}, s{sT4}, s{sT1}")
    a(f"s_add_u32 s{sT4}, s{sT4}, 115")
    a(f"s_lshl_b32 s{sT4}, s{sT4}, 10")
    a(f"s_add_u32 s{sT4}, s{sT4}, {WS_WOP}")
    a(f"v_lshlrev_b32 v15, 4, v{vL}")
    for t in range(5):
        for jh in range(2): a(f"ds_read_b64_tr_b16 {vr(32+4*t+2*jh,2)}, v14 offset:{jh*2560+t*64}")
    a("s_waitcnt lgkmcnt(0)")
    for t in range(4):
        a(f"buffer_store_dwordx4 {vr(32+4*t,4)}, v15, {srd(SWS)}, s{sT0} offen sc1")
        a(f"s_add_u32 s{sT0}, s{sT0}, s{sT2}")
    a(f"buffer_store_dwordx4 {vr(48,4)}, v15, {srd(SWS)}, s{sT4} offen sc1")
    a(f"s_add_u32 s{sVAR}, s{sVAR}, 128")
    a(f"s_cmp_lt_u32 s{sVAR}, 160")
    a("s_cbranch_scc1 Lcrp2")
    a("v_mov_b32 v60, 0")
    a("s_waitcnt vmcnt(0)")
    darr_issue(60, 61, 4)
    a("s_setprio 0")
    srd_init([SX, SH, SOUT])
    zero_pads(sW)
    a(f"s_mov_b32 s{sT1}, 0")
    conv_setup(sW, sT1)
    s3_setup()
    wo_prep(vL16)
    darr_finish(60, 61, 4, 128)
    stamp(1)
    a("s_barrier")
    a(f"s_cmp_lg_u32 s{sW}, 7")
    a("s_cbranch_scc1 Lc7")
    a("s_setprio 3")
    darr_issue(60, 61, 0)
    a(f"s_lshl_b32 s{sT1}, s{sCI}, 2")
    h_dma(sW, sT1)
    conv_dfrag()
    darr_finish(60, 61, 0, NU, 2)
    a(f"v_and_b32 v44, 1, v{vL}")
    a("v_lshl_add_u32 v44, v44, 2, 64")
    a("v_add_u32 v44, 64, v44")
    poll(44, 46, S=SDBG)
    stamp(11)
    a(f"s_lshl_b32 s{sT5}, s{sQUAD}, 14")
    if WOFF: a(f"s_add_u32 s{sT5}, s{sT5}, {WOFF}")
    for q in range(4):
        a(f"s_mov_b32 m0, {L_UD + 4096*q}")
        for i in range(4): a(f"buffer_load_dwordx4 v{vL16}, {srd(SWS)}, s{sT5} offen offset:{1024*i} sc1 lds")
        if q < 3: a(f"s_add_u32 s{sT5}, s{sT5}, 4096")
    a("s_branch Lc8")

    a.label("Lcjoin")
    srd_init([SX, SH, SDBG, SOUT])
    a("s_waitcnt vmcnt(0)")
    stamp(2)
    a("s_barrier")
    zero_pads(sW)
    a(f"s_mov_b32 s{sT1}, 0")
    conv_setup(sW, sT1)
    s3_setup()
    wo_prep(vL16)
    a.label("Lc7")
    a(f"s_lshl_b32 s{sT1}, s{sCI}, 2")
    h_dma(sW, sT1)
    conv_dfrag()
    a.label("Lc8")
    a("s_waitcnt vmcnt(0) lgkmcnt(0)")
    stamp(12)
    a("s_barrier")
    stamp(3)
    a("s_setprio 2")
    a(f"s_cmp_lt_u32 s{sW}, 4")
    a("s_cbranch_scc1 Lconv2")
    a("s_setprio 0")
    for x in wo_list(vL16): a(x)
    x_loads()

def conv_body(tiles):
    seq = []
    for b in range(4):
        if tiles[0] == 0:
            for aa in range(8):
                for ti in (3, 2):
                    d = tiles[ti] - aa
                    if d >= 0:
                        seq.append((ti, ("H", 4 * aa + b, 0), ("U", 4 * d - b)))
                        if b == 0 and aa == 0: seq.append((ti, ("D",), ("U", 4 * d)))
                if aa == 5:
                    seq.append((1, ("H", b, 1), ("U", 4 - b)))
                    if b == 0: seq.append((1, ("D",), ("U", 4)))
                if aa == 6:
                    seq.append((0, ("H", b, 1), ("U", -b)))
                    if b == 0: seq.append((0, ("D",), ("U", 0)))
                    seq.append((1, ("H", 4 + b, 1), ("U", -b)))
        else:
            for aa in range(6):
                for ti in (3, 2, 1, 0):
                    d = tiles[ti] - aa
                    if d >= 0:
                        seq.append((ti, ("H", 4 * aa + b, 0), ("U", 4 * d - b)))
                        if b == 0 and aa == 0: seq.append((ti, ("D",), ("U", 4 * d)))
    assert len(seq) == 76
    last = {}; order = []
    for i, (ti, h, u) in enumerate(seq):
        for k in (u, h):
            if k[0] == "D": continue
            if k not in last: order.append(k)
            last[k] = i
    free = list(range(NPOOL))
    where = {}; done_at = {}
    nds = [0]; li = [0]
    def issue(maxn):
        n = 0
        while li[0] < len(order) and free and n < maxn:
            k = order[li[0]]; li[0] += 1
            bfr = free.pop(0); where[k] = bfr
            r = CPOOL + 4 * bfr
            if k[0] == "U":
                a(f"ds_read_b128 {vr(r,4)}, v{vUo if k[1]&1 else vUe} offset:{(k[1]+3)*512}")
                nds[0] += 1; n += 1
            else:
                a(f"ds_read_b64_tr_b16 {vr(r,2)}, v{vH} offset:{128*k[1]+32}")
                a(f"ds_read_b64_tr_b16 {vr(r+2,2)}, v{vH} offset:{128*k[1]}")
                nds[0] += 2; n += 2
            done_at[k] = nds[0]
    issue(10)
    started = set(); known = 0
    wl = wo_list(vL16); wi = 25 if "delayconv" in EXP else 0
    for i, (ti, h, u) in enumerate(seq):
        needn = max(done_at[k] for k in (u, h) if k[0] != "D")
        if needn > known:
            cnt = min(nds[0] - needn, 15)
            a(f"s_waitcnt lgkmcnt({cnt})")
            known = nds[0] - cnt
        d = vr(CACC + 16 * ti, 16)
        hb = CD if h[0] == "D" else CPOOL + 4 * where[h]
        a(f"v_mfma_f32_32x32x16_bf16 {d}, {vr(CPOOL+4*where[u],4)}, {vr(hb,4)}, {d if ti in started else '0'}")
        started.add(ti)
        for k in (u, h):
            if k[0] != "D" and last[k] == i: free.append(where[k])
        issue(2)

def conv_epi(var):
    runs = [[*range(0, 8)], [*range(8, 16)]] if var == 0 else [[*range(16)]]
    out_g = 7 if var == 0 else 15
    in_g = 8 if var == 0 else 0
    SPL = 96
    a(f"buffer_load_dword v{vFT}, v{vFK}, {srd(SWS)}, 0 offen sc1")
    a("s_nop 7")
    a("s_nop 3")
    for step in (2, 1, 0):
        a("s_mov_b32 exec_lo, 0")
        a("s_mov_b32 exec_hi, 0x80000000")
        a(f"v_mov_b32 v{SPL+step}, v{CACC+4*out_g+step+1}")
        for run in runs:
            for g in reversed(run):
                src = f"v{CACC+4*(g-1)+step+1}" if g != run[0] else "0"
                a(f"v_mov_b32 v{CACC+4*g+step+1}, {src}")
        if step == 0:
            a(f"ds_write_b96 v{vCS}, {vr(SPL,3)}")
            a("v_mov_b32 v100, 1")
            a(f"ds_add_u32 v{vCN}, v100")
        a("s_mov_b64 exec, -1")
        for g in reversed(range(16)):
            r = CACC + 4 * g + step
            a(f"v_add_f32_dpp v{r}, v{r+1}, v{r} wave_ror:1 row_mask:0xf bank_mask:0xf")
    a(f"v_xor_b32 v101, 16, v{vCS}")
    a(f"v_lshl_add_u32 v101, v{vL}, 2, v101")
    PK = 104
    other = [k for k in range(8) if k != in_g // 2]
    for k in other: a(f"v_cvt_pk_bf16_f32 v{PK+k}, v{CACC+8*k}, v{CACC+8*k+4}")
    oh = 1 - in_g // 8
    a(f"ds_write_b128 v{vCW}, {vr(PK+4*oh,4)} offset:{1024*oh}")
    lds_wait(vCN, 100, 2)
    a("s_mov_b64 exec, 7")
    a("ds_read_b32 v100, v101")
    a("s_waitcnt lgkmcnt(0)")
    a(f"v_add_f32 v{CACC+4*in_g}, v{CACC+4*in_g}, v100")
    a("s_mov_b64 exec, -1")
    k = in_g // 2
    a(f"v_cvt_pk_bf16_f32 v{PK+k}, v{CACC+8*k}, v{CACC+8*k+4}")
    a(f"ds_write_b128 v{vCW}, {vr(PK+4*(1-oh),4)} offset:{1024*(1-oh)}")
    T0, T1 = (0, 6) if var == 0 else (2, 4)
    a(f"s_lshl_b32 s{sT5}, s{sCH}, 6")
    a(f"s_add_u32 s{sT4}, s{sT5}, {WS_Y + T0*8*40960}")
    a(f"s_add_u32 s{sT5}, s{sT5}, {WS_Y + T1*8*40960}")
    a(f"s_lshr_b32 s{sT6}, s{sCH}, 5")
    a(f"s_lshl_b32 s{sT6}, s{sT6}, 8")
    a(f"s_add_u32 s{sT6}, s{sT6}, {WS_FY + var*20*256}")

def conv():
    a.label("Lconv")
    a("s_setprio 1")
    a.label("Lconv2")
    a(f"s_cmp_eq_u32 s{sVAR}, 1")
    a("s_cbranch_scc1 Lconvy")
    conv_body([0, 1, 6, 7])
    stamp(4)
    conv_epi(0)
    a("s_branch Lconve")
    a.label("Lconvy")
    conv_body([2, 3, 4, 5])
    stamp(4)
    conv_epi(1)
    a.label("Lconve")
    for n in range(2):
        a(f"ds_read_b64_tr_b16 {vr(136+4*n,2)}, v{vCT} offset:{1024*n}")
        a(f"ds_read_b64_tr_b16 {vr(138+4*n,2)}, v{vCT} offset:{1024*n+64}")
    arr_prep(152, 153)
    for n in range(2):
        a(f"s_waitcnt lgkmcnt({2-2*n})")
        a(f"buffer_store_dwordx4 {vr(136+4*n,4)}, v{vCY}, {srd(SWS)}, s{sT5 if n else sT4} offen sc1")
    stamp(13)
    a(f"s_cmp_ge_u32 s{sW}, 4")
    a("s_cbranch_scc1 Ls3b")
    a("s_setprio 0")
    a(f"s_mov_b32 s{sUD}, 2")
    a("s_branch Ls3c")

def s3():
    a.label("Ls3")
    a.c("S3")
    PQ, RAW, KF = 32, 52, 116
    plan = []
    for i in range(4):
        for st in range(2):
            for jh in range(2):
                du0 = 4 * (i + st) + 2 * jh - 5 * i
                plan.append((i, st, jh, du0, 0 <= du0 <= 4, 0 <= du0 + 1 <= 4))
    sPD = sT2
    def fl(): a(f"buffer_load_dword v{vFT}, v{vFK}, {srd(SWS)}, 0 offen sc1")
    def pql():
        for f in range(4): a(f"buffer_load_dwordx4 {vr(PQ+4*f,4)}, v{vL16}, {srd(SWS)}, s{sPQO} offen offset:{1024*f} sc1")
        a(f"buffer_load_dwordx4 {vr(PQ+16,4)}, v{vL16}, {srd(SWS)}, s{sT1} offen sc1")
    def pre():
        for (i, st, jh, du0, v0ok, v1ok) in plan:
            if v0ok != v1ok:
                for j in range(4): a(f"v_mov_b32 v{RAW+16*i+8*st+4*jh+j}, 0")
        a(f"s_add_u32 s{sT1}, s{sPQO}, 4096")
        a(f"s_add_u32 s{sT3}, s{sKVO}, {2*KVH}")
        a(f"s_mov_b32 s{sPD}, 0")
        a(f"s_mov_b32 s{sCNT}, 0x40000")
    wl = wo_list(vL16)
    a(f"s_mov_b32 s{sUD}, 0")
    a.label("Ls3c")
    for x in wl[:20]: a(x)
    fl()
    for x in wl[20:]: a(x)
    x_loads()
    a("s_setprio 1")
    pre()
    a("s_waitcnt vmcnt(7)")
    a("s_branch Ls3lq")
    a.label("Ls3b")
    pre()
    a(f"s_mov_b32 s{sUD}, 2")
    a("s_waitcnt vmcnt(2)")
    a("s_branch Ls3ev")
    a.label("Ls3sl")
    a("s_sleep 2")
    a.label("Ls3lp")
    fl()
    a("s_waitcnt vmcnt(0)")
    a.label("Ls3lq")
    a(f"s_cmp_eq_u32 s{sUD}, 0")
    a("s_cbranch_scc1 Ls3ev")
    a(f"s_sub_u32 s{sUD}, s{sUD}, 1")
    a(f"s_cmp_eq_u32 s{sUD}, 0")
    a("s_cbranch_scc1 Ls3af")
    arr_issue(152, 153, f"s{sT6}")
    a("s_branch Ls3ev")
    a.label("Ls3af")
    arr_finish(152, 153, f"s{sT6}", 32)
    a.label("Ls3ev")
    a(f"v_cmp_ne_u32 vcc, s{sTAG}, v{vFT}")
    a(f"s_sub_u32 s{sCNT}, s{sCNT}, 1")
    a("s_cbranch_scc1 Ls3go")
    a(f"s_cmp_lg_u32 s{sPD}, 0")
    a("s_cbranch_scc1 Ls3k")
    a("s_bitcmp1_b32 vcc_lo, 0")
    a("s_cbranch_scc1 Ls3sl")
    pql()
    a(f"s_mov_b32 s{sPD}, 1")
    a(f"v_readlane_b32 s{sT0}, v{vFK}, 1")
    a(f"v_mov_b32 v{vFK}, s{sT0}")
    a.label("Ls3k")
    a("s_cmp_lg_u32 vcc_hi, 0")
    a("s_cbranch_scc1 Ls3sl")
    a.label("Ls3go")
    stamp(6)
    nload = [0] * 4
    for (i, st, jh, du0, v0ok, v1ok) in plan:
        if not (v0ok or v1ok): continue
        off = (i & 1) * KVH + du0 * 336
        part = v0ok != v1ok
        if part: a(f"s_mov_b32 exec_{'hi' if v0ok else 'lo'}, 0")
        a(f"buffer_load_dwordx4 {vr(RAW+16*i+8*st+4*jh,4)}, v{vKO if i&1 else vKE}, {srd(SWS)}, s{sT3 if i>>1 else sKVO} offen offset:{off} sc1")
        if part: a("s_mov_b64 exec, -1")
        nload[i] += 1
    a(f"s_cmp_lg_u32 s{sUD}, 2")
    a("s_cbranch_scc1 Ls3n2")
    a("s_waitcnt vmcnt(12)")
    arr_issue(152, 153, f"s{sT6}")
    a("s_branch Ls3n3")
    a.label("Ls3n2")
    a(f"buffer_load_dword v{vFT}, v{vFK}, {srd(SWS)}, 0 offen sc1")
    a.label("Ls3n3")
    rem = sum(nload) + 1
    for i in range(4):
        rem -= nload[i]
        a(f"s_waitcnt vmcnt({rem})")
        kf = KF + 8 * (i & 1)
        for (i2, st, jh, du0, v0ok, v1ok) in plan:
            if i2 != i: continue
            for j in range(2):
                d = kf + 4 * st + 2 * jh + j; s = RAW + 16 * i + 8 * st + 4 * jh + 2 * j
                if v0ok or v1ok: a(f"v_cvt_pk_bf16_f32 v{d}, v{s}, v{s+1}")
                else: a(f"v_mov_b32 v{d}, 0")
        d = vr(RAW + 16 * i, 16)
        a(f"v_mfma_f32_32x32x16_bf16 {d}, {vr(kf,4)}, {vr(PQ+4*i,4)}, 0")
        a(f"v_mfma_f32_32x32x16_bf16 {d}, {vr(kf+4,4)}, {vr(PQ+4*i+4,4)}, {d}")
    if "sx" in EXP: stamp(11)
    a(f"s_cmp_eq_u32 s{sUD}, 0")
    a("s_cbranch_scc1 Ls3n4")
    arr_finish(152, 153, f"s{sT6}", 32, 0)
    a.label("Ls3n4")
    a(f"s_cmp_ge_u32 s{sW}, 5")
    a("s_cbranch_scc1 Ls3n5")
    a(f"buffer_load_dword v{vFT}, v{vFY}, {srd(SWS)}, 0 offen sc1")
    a.label("Ls3n5")
    OF = 132
    for i in range(4):
        D = RAW + 16 * i
        a(f"v_add_f32 v{D+12}, s{sEPS}, v{D+12}")
        a(f"v_rcp_f32 v{D+12}, v{D+12}")
        for j in range(8): a(f"v_mul_f32 v{D+j}, v{D+j}, v{D+12}")
        for j in range(4): a(f"v_cvt_pk_bf16_f32 v{OF+4*i+j}, v{D+2*j}, v{D+2*j+1}")
        a(f"ds_write_b128 v{vOW}, {vr(OF+4*i,4)} offset:{1024*i}")
        if i & 1 == 0:
            for j in range(4): a(f"v_mul_f32 v{D+8+j}, v{D+8+j}, v{D+12}")
        else:
            for j in range(4): a(f"v_fmac_f32 v{D-8+j}, v{D+8+j}, v{D+12}")
            for j in range(2): a(f"v_cvt_pk_bf16_f32 v{OF+16+2*(i>>1)+j}, v{D-8+2*j}, v{D-8+2*j+1}")
    a(f"ds_write_b128 v{vOW}, {vr(OF+16,4)} offset:4096")
    a(f"s_mov_b32 s{sUD}, 1")
    a(f"s_cmp_ge_u32 s{sW}, 5")
    a("s_cbranch_scc1 Ls3y1")
    a("s_waitcnt vmcnt(0)")
    a(f"v_cmp_ne_u32 vcc, s{sTAG}, v{vFT}")
    a(f"s_mov_b32 m0, s{sYM}")
    a("s_cbranch_vccnz Ls3y0")
    a(f"buffer_load_dwordx4 v{vL16}, {srd(SWS)}, s{sYO} offen sc1 lds")
    a(f"buffer_load_dwordx4 v{vL16}, {srd(SWS)}, s{sYO} offen offset:1024 sc1 lds")
    a("s_branch Ls3y1")
    a.label("Ls3y0")
    a(f"s_mov_b32 s{sUD}, 0")
    a(f"buffer_load_dword v{vFT}, v{vFY}, {srd(SWS)}, 0 offen sc1")
    a.label("Ls3y1")
    if "nog3prio" not in EXP:
        a(f"s_cmp_ge_u32 s{sW}, 4")
        a("s_cbranch_scc1 Ls3y2")
        a("s_setprio 2")
        a.label("Ls3y2")
    a("s_waitcnt lgkmcnt(0)")
    if "sx" in EXP: stamp(12)
    a("s_barrier")
    stamp(7)
    a(f"buffer_load_dword v{vG}, v{vGO}, {srd(SWS)}, 0 offen sc1")
    NB = 8; POOL = 32; AP, AR = 64, 80
    def ord_(i): return (vPR, 1024 * i) if i < 15 else (vRR, 1024 * (i - 15))
    for i in range(NB):
        v, o = ord_(i); a(f"ds_read_b128 {vr(POOL+4*i,4)}, v{v} offset:{o}")
    XF = 96
    pre = [f"s_mov_b32 s{sT0}, 0xffff0000"]
    for n, xd in enumerate((vXD, vXD2)):
        for j in range(4):
            pre.append(f"v_lshlrev_b32 v{XF+8*n+2*j}, 16, v{xd+j}")
            pre.append(f"v_and_b32 v{XF+8*n+2*j+1}, s{sT0}, v{xd+j}")
    issued = NB
    log = list(range(NB))
    for i in range(25):
        pos = log.index(i)
        a(f"s_waitcnt lgkmcnt({min(len(log)-1-pos,15)})")
        d = vr(AP if i < 15 else AR, 16)
        a(f"v_mfma_f32_32x32x16_bf16 {d}, {vr(VWO+4*i,4)}, {vr(POOL+4*(i%NB),4)}, {'0' if i in (0,15) else d}")
        if issued < 25:
            v, o = ord_(issued); a(f"ds_read_b128 {vr(POOL+4*(issued%NB),4)}, v{v} offset:{o}"); log.append(issued); issued += 1
        if i < 12:
            for x in pre[3 * i:3 * i + 3]: a(x)
        if i == 7:
            a(f"s_cmp_eq_u32 s{sUD}, 1")
            a("s_cbranch_scc1 Ls3ny")
            poll(vFY, vFT, "issued")
            stamp(5)
            a(f"buffer_load_dwordx4 v{vL16}, {srd(SWS)}, s{sYO} offen sc1 lds")
            a(f"buffer_load_dwordx4 v{vL16}, {srd(SWS)}, s{sYO} offen offset:1024 sc1 lds")
            a.label("Ls3ny")
        if 19 <= i < 23:
            q = i - 19
            a(f"ds_write_b128 v{vPW+q}, {vr(AP+4*q,4)}"); log.append(-1)
            a(f"v_add_u32 v{vPW+q}, s{sRD}, v{vPW+q}")
    for q in range(4): a(f"ds_write_b128 v{vPW+q}, {vr(AR+4*q,4)}")
    a("s_waitcnt vmcnt(0) lgkmcnt(0)")
    a("s_barrier")
    stamp(8)
    def f_reads(n, R):
        np_ = 3 + n
        for p in range(np_):
            a(f"ds_read_b128 {vr(R+8*p,4)}, v{vPA} offset:{49152*n+4096*p}")
            a(f"ds_read_b128 {vr(R+8*p+4,4)}, v{vPB} offset:{49152*n+4096*p}")
        a(f"ds_read_b64_tr_b16 {vr(R+32,2)}, v{vYT} offset:{8192*n}")
        a(f"ds_read_b64_tr_b16 {vr(R+34,2)}, v{vYT} offset:{8192*n+256}")
    def f_math(n, R, after):
        np_ = 3 + n
        X = XF + 8 * n; YF = R + 36
        a(f"s_waitcnt lgkmcnt({min(after+2*np_+2-4,15)})")
        for j in range(4): a(f"v_pk_add_f32 {vr(R+2*j,2)}, {vr(R+2*j,2)}, {vr(R+8+2*j,2)}")
        a(f"s_waitcnt lgkmcnt({after+2})")
        for p in range(2, np_):
            for j in range(4): a(f"v_pk_add_f32 {vr(R+2*j,2)}, {vr(R+2*j,2)}, {vr(R+8*p+2*j,2)}")
        a(f"s_waitcnt lgkmcnt({after})")
        for j in range(4):
            a(f"v_lshlrev_b32 v{YF+2*j}, 16, v{R+32+j}")
            a(f"v_and_b32 v{YF+2*j+1}, s{sT0}, v{R+32+j}")
        for j in range(4): a(f"v_pk_mul_f32 {vr(X+2*j,2)}, {vr(X+2*j,2)}, {vr(YF+2*j,2)}")
        for j in range(4): a(f"v_pk_add_f32 {vr(R+2*j,2)}, {vr(R+2*j,2)}, {vr(X+2*j,2)} neg_lo:[0,1] neg_hi:[0,1]")
        for j in range(4): a(f"v_pk_fma_f32 {vr(R+2*j,2)}, {vr(R+2*j,2)}, {vr(vG,2)}, {vr(X+2*j,2)} op_sel_hi:[1,0,1]")
        for j in range(4): a(f"v_cvt_pk_bf16_f32 v{R+32+j}, v{R+2*j}, v{R+2*j+1}")
        a(f"buffer_store_dwordx4 {vr(R+32,4)}, v{vOUT}, {srd(SOUT)}, s{sXOFF} offen offset:{256*n}" + (" sc1" if "osc1" in EXP else " nt" if "ont" in EXP else " sc0 sc1" if "osys" in EXP else ""))
    f_reads(0, 32)
    a(f"s_cmp_lt_u32 s{sW}, 2")
    a("s_cbranch_scc1 Lfin2")
    f_math(0, 32, 0)
    a("s_branch Lfin")
    a.label("Lfin2")
    f_reads(1, 112)
    f_math(0, 32, 10)
    f_math(1, 112, 0)
    a.label("Lfin")
    if DIAG:
        a("s_waitcnt vmcnt(0)")
        stamp(9)
        a(f"s_memtime vcc")
        a("s_waitcnt lgkmcnt(0)")
        a(f"s_mov_b32 s{STS+15}, vcc_lo")
        a("v_mov_b32 v2, 0")
        for i in range(16): a(f"v_writelane_b32 v2, s{STS+i}, {i}")
        a(f"v_lshlrev_b32 v3, 2, v{vL}")
        a(f"s_lshl_b32 s{sT0}, s{sBID}, 3")
        a(f"s_add_u32 s{sT0}, s{sT0}, s{sW}")
        a(f"s_lshl_b32 s{sT0}, s{sT0}, 6")
        a(f"s_add_u32 s{sT0}, s{sT0}, {WS_TS}")
        a("s_mov_b64 exec, 0xffff")
        a(f"buffer_store_dword v2, v3, {srd(SWS)}, s{sT0} offen")
        sp = [e for e in EXP if e.startswith("spin")]
        if sp:
            si, wv, lo, hi = [int(x) for x in sp[0][4:].split("_")]
            a(f"s_cmp_lg_u32 s{sW}, {wv}")
            a("s_cbranch_scc1 Lend")
            a(f"s_cmp_lt_u32 s{sIDX}, {lo}")
            a("s_cbranch_scc1 Lend")
            a(f"s_cmp_ge_u32 s{sIDX}, {hi}")
            a("s_cbranch_scc1 Lend")
            a.label("Lspin")
            a("s_memrealtime vcc")
            a("s_waitcnt lgkmcnt(0)")
            a(f"s_sub_u32 s{sT1}, vcc_lo, s{STS+si}")
            a(f"s_cmp_lt_u32 s{sT1}, 5000")
            a("s_cbranch_scc1 Lspin")
        if "dbgts" in EXP:
            a(f"s_cmp_lg_u32 s{sW}, {int([e for e in EXP if e.startswith('wv')][0][2:])}")
            a("s_cbranch_scc1 Lend")
            a(f"s_cmp_ge_u32 s{sIDX}, 16")
            a("s_cbranch_scc1 Lend")
            a("v_cmp_ne_u32 vcc, 0, v2")
            a(f"v_subrev_u32 v2, s{sTAG}, v2")
            a("v_add_u32 v2, 100, v2")
            a("v_and_b32 v2, 0x7ffffff, v2")
            a("v_cndmask_b32 v2, 0, v2, vcc")
            a("s_mov_b64 exec, 0x3fff")
            a(f"buffer_atomic_umax v2, v3, {srd(SDBG)}, 0 offen offset:4 sc1")
    a.label("Lend")
    a("s_endpgm")

entry(); bwave(); awave(); kva(); qa(); ctype(); conv(); s3()

ref = open("cdna_kernels/%s.s.ref" % NAME).read()
head = [l for l in ref.split("\n") if l.startswith(";") and "@launch" not in l]
out = "\n".join(head) + "\n"
out += "; @launch grid=(256,1,1) block=(512,1,1) lds=%d\n" % LDS_BYTES
out += '.amdgcn_target "amdgcn-amd-amdhsa--gfx950"\n.text\n.globl %s_kernel\n.p2align 8\n.type %s_kernel,@function\n%s_kernel:\n' % (NAME, NAME, NAME)
import re
body = a.text()
ntset = []
if "nt" in EXP: ntset += [SK, SV, SH, SWO, SSK, SGW]
if "ntx" in EXP: ntset += [SX, SWQ]
for s_ in ntset:
    body = re.sub(r"(buffer_load_dword\S* [^\n]*%s, [^\n]*?offen(?: offset:\d+)?)( lds)?\n" % re.escape(srd(s_)), lambda m: m.group(1) + " nt" + (m.group(2) or "") + "\n", body)
out += body
out += '''.section .rodata,"a"
.p2align 6
.amdhsa_kernel %s_kernel
  .amdhsa_next_free_vgpr 256
  .amdhsa_next_free_sgpr 102
  .amdhsa_accum_offset 256
  .amdhsa_group_segment_fixed_size 0
  .amdhsa_kernarg_size 104
  .amdhsa_user_sgpr_count 2
  .amdhsa_user_sgpr_kernarg_segment_ptr 1
  .amdhsa_system_sgpr_workgroup_id_x 1
.end_amdhsa_kernel
''' % NAME
dst = [x for x in sys.argv[1:] if not x.startswith("--")]
open(dst[0] if dst else "cdna_kernels/%s.s" % NAME, "w").write(out)
```

```python
import sys
from asmlib import Asm, vr, sr

NAME = "gated_mix__linear_attn_block__ssm_conv_h3__prompt"
DIAG = "--diag" in sys.argv
EXP = [x[6:] for x in sys.argv if x.startswith("--exp=")]

WOFF = int(([e[4:] for e in EXP if e.startswith("woff")] + ["0"])[0]) << 20
WS_U = 0
WS_PQ = 0x280000 + WOFF
WS_Y = 0x500000 + WOFF
WS_WOP = 0x780000 + WOFF
WS_KV = 0x850000 + WOFF
WS_C = 0x860000 + WOFF
CDELTA = 320 * 256
WS_FK = WS_C
WS_FY = WS_C + 8 * 256
WS_FQ = WS_C + 64 * 256
WS_G = 0x88C000 + WOFF
WS_TS = 0x890000 + WOFF
WS_SIZE = 0x900000 + WOFF
KVH = 1792

NQ = int(([e[2:] for e in EXP if e.startswith("nq")] + ["0"])[0])
NU = 64 + 64 * NQ
N1 = int(([e[2:] for e in EXP if e.startswith("n1")] + ["8"])[0])
Q0 = int(([e[2:] for e in EXP if e.startswith("q0")] + ["2"])[0])
G0, G1 = 16 + 4 * Q0, 32 - 4 * Q0
SLOT = 36864
L_OFR = 36864
L_KVS = 77824
L_YST = 92160
L_PART = 77824
L_UB = 110592
L_UD = L_UB + 2048
L_HB = 129024
HSTR = 4224
L_SP = 145920
L_CNT = 146048
L_TAG = 146112
L_YT = 146176
L_S0C = 0
L_RPC = 49152
L_GW = L_YT + 10240
LDS_BYTES = L_GW + 2048

SX, SWQ, SWO, SK, SV, SSK, SH, SGW, SOUT, SDBG, SWS = [4 + 4 * i for i in range(11)]
SD = 48
sW, sXCD, sIDX, sRP, sCP, sTAG, sCNT = range(50, 57)
sRB, sCG, sQUAD, sCHL, sLC, sVAR, sCH, sJ, sUD = range(57, 66)
sT0, sT1, sT2, sT3, sT4, sT5, sT6, sT7 = range(66, 74)
sLOG = 74
sCI = 76
sDV = 77
STS = 80
sXOFF, sPQO, sKVO, sTB, sYO, sYM = 96, 97, 98, 99, 100, 101
sCHB = 65
sRD = 3
sWOO = 2
sEPS = 79
sBID = 78
def srd(b): return sr(b, 4)

vL = 0
VWO = 156
vL16, vOW, vPR, vRR, vPW = 1, 2, 3, 4, 5
vKE, vKO, vFK, vFY, vZ, vOUT, vPA, vPB, vYT, vFT, vGO = 9, 10, 11, 12, 13, 14, 15, 16, 17, 18, 19
vXD, vG, vXD2 = 20, 24, 28
vFQ, vFE = 27, 25

a = Asm()
BST = [None]
def stamp(i, force=False):
    if "bst" in EXP and not force and i not in (0, 10): return
    if DIAG:
        a(f"{'s_memtime' if 'cyc' in EXP else 's_memrealtime'} vcc")
        a("s_waitcnt lgkmcnt(0)")
        a(f"s_mov_b32 s{STS+i}, vcc_lo")

def poll(vaddr, vdst, state="none", sleep=2, S=None):
    L = a.newlabel("Lpoll"); D = a.newlabel("Lpd")
    if state != "none":
        if state == "issued": a("s_waitcnt vmcnt(0)")
        a(f"v_cmp_ne_u32 vcc, s{sTAG}, v{vdst}")
        a(f"s_cbranch_vccz {D}")
    a(f"s_mov_b32 s{sCNT}, 0x20000")
    a.label(L)
    a(f"buffer_load_dword v{vdst}, v{vaddr}, {srd(S or SWS)}, 0 offen sc1")
    a("s_waitcnt vmcnt(0)")
    a(f"v_cmp_ne_u32 vcc, s{sTAG}, v{vdst}")
    a(f"s_cbranch_vccz {D}")
    if sleep: a(f"s_sleep {sleep}")
    a(f"s_sub_u32 s{sCNT}, s{sCNT}, 1")
    a(f"s_cbranch_scc0 {L}")
    a.label(D)

def cnt_load(S, vaddr, vdst):
    a(f"buffer_load_dword v{vdst}, v{vaddr}, {srd(S)}, 0 offen sc1")

def tag_get(vz, vdst, state="issued"):
    L = a.newlabel("Ltag"); D = a.newlabel("Ltd")
    if state != "none":
        if state == "issued": a("s_waitcnt vmcnt(0)")
        a(f"v_readfirstlane_b32 s{sTAG}, v{vdst}")
        a(f"s_cmp_lg_u32 s{sTAG}, 0")
        a(f"s_cbranch_scc1 {D}")
    a(f"s_mov_b32 s{sCNT}, 0x20000")
    a.label(L)
    a(f"buffer_load_dword v{vdst}, v{vz}, {srd(SDBG)}, 0 offen sc1")
    a("s_waitcnt vmcnt(0)")
    a(f"v_readfirstlane_b32 s{sTAG}, v{vdst}")
    a(f"s_cmp_lg_u32 s{sTAG}, 0")
    a(f"s_cbranch_scc1 {D}")
    a("s_sleep 2")
    a(f"s_sub_u32 s{sCNT}, s{sCNT}, 1")
    a(f"s_cbranch_scc0 {L}")
    a.label(D)

def tag_lds(vtmp):
    a(f"v_mov_b32 v{vtmp}, {L_TAG}")
    a(f"ds_read_b32 v{vtmp}, v{vtmp}")
    a("s_waitcnt lgkmcnt(0)")
    a(f"v_readfirstlane_b32 s{sTAG}, v{vtmp}")

def arr_prep(vt0, vt1):
    a(f"v_mov_b32 v{vt0}, {CDELTA}")
    a(f"v_mov_b32 v{vt1}, 1")
def arr_issue(vt0, vt1, soff):
    a("s_mov_b64 exec, 1")
    a(f"buffer_atomic_add v{vt1}, v{vt0}, {srd(SWS)}, {soff} offen sc0 sc1")
    a("s_mov_b64 exec, -1")
def arr_finish(vt0, vt1, soff, n, wait=0):
    D = a.newlabel("Lal")
    a(f"s_waitcnt vmcnt({wait})")
    a(f"v_readfirstlane_b32 s{sT7}, v{vt1}")
    a(f"s_cmp_lg_u32 s{sT7}, {n-1}")
    a(f"s_cbranch_scc1 {D}")
    flag_store(vt0, vt1, soff)
    a.label(D)
def flag_store(vt0, vt1, soff):
    a(f"v_mov_b32 v{vt0}, 0")
    a(f"v_mov_b32 v{vt1}, s{sTAG}")
    a("s_mov_b64 exec, 1")
    a(f"buffer_store_dword v{vt1}, v{vt0}, {srd(SWS)}, {soff} offen sc1")
    a("s_mov_b64 exec, -1")

def darr_issue(vz, v1, off):
    a(f"v_mov_b32 v{v1}, 1")
    a("s_mov_b64 exec, 1")
    a(f"buffer_atomic_add v{v1}, v{vz}, {srd(SDBG)}, 0 offen offset:{off} sc0 sc1")
    a("s_mov_b64 exec, -1")
def darr_finish(vz, v1, off, n, wait=0):
    D = a.newlabel("Lda")
    a(f"s_waitcnt vmcnt({wait})")
    a(f"v_readfirstlane_b32 s{sT7}, v{v1}")
    a(f"s_cmp_lg_u32 s{sT7}, {n-1}")
    a(f"s_cbranch_scc1 {D}")
    a(f"v_mov_b32 v{v1}, 1")
    a("s_mov_b64 exec, 1")
    a(f"buffer_store_dword v{v1}, v{vz}, {srd(SDBG)}, 0 offen offset:{128+off} sc1")
    a("s_mov_b64 exec, -1")
    a.label(D)

def lds_arrive(vaddr, vtmp):
    a(f"v_mov_b32 v{vtmp}, 1")
    a("s_mov_b64 exec, 1")
    a(f"ds_add_u32 v{vaddr}, v{vtmp}")
    a("s_mov_b64 exec, -1")
def lds_wait(vaddr, vtmp, target):
    L = a.newlabel("Lls"); D = a.newlabel("Lld")
    a(f"s_mov_b32 s{sCNT}, 0x400000")
    a.label(L)
    a(f"ds_read_b32 v{vtmp}, v{vaddr}")
    a("s_waitcnt lgkmcnt(0)")
    a(f"v_readfirstlane_b32 s{sT7}, v{vtmp}")
    a(f"s_cmp_ge_u32 s{sT7}, {target}")
    a(f"s_cbranch_scc1 {D}")
    a(f"s_sub_u32 s{sCNT}, s{sCNT}, 1")
    a(f"s_cbranch_scc0 {L}")
    a.label(D)

def div20(vq, vr_, vp):
    a(f"v_mul_u32_u24 v{vq}, 3277, v{vp}")
    a(f"v_lshrrev_b32 v{vq}, 16, v{vq}")
    a(f"v_mul_u32_u24 v{vr_}, 20, v{vq}")
    a(f"v_sub_u32 v{vr_}, v{vp}, v{vr_}")
for p in range(1000): assert (p * 3277) >> 16 == p // 20

SIZES = {SX: 2621440, SWQ: 2457600, SWO: 819200, SK: 2621440, SV: 2621440, SSK: 5120, SH: 2621440, SGW: 1280, SOUT: 2621440, SDBG: 256, SWS: WS_SIZE}
def srd_init(lst):
    for s in lst:
        a(f"s_mov_b32 s{s+2}, {SIZES[s]}")
        a(f"s_mov_b32 s{s+3}, 0x20000")
def ka_rest():
    if "ka1" not in EXP: return
    for s, off in ((SK, 32), (SV, 40), (SSK, 48), (SWS, 96), (SDBG, 88), (SH, 56), (SWO, 16), (SGW, 72), (SOUT, 80), (SD, 64)):
        a(f"s_load_dwordx2 {sr(s,2)}, s[0:1], {off}")
def common_scalars():
    a(f"s_mov_b32 s{sLOG}, 0x3fb8aa3b")
    a(f"s_mov_b32 s{sLOG+1}, 0x3fb8aa3b")
    a(f"s_mov_b32 s{sEPS}, 0x358637bd")
    a(f"s_mul_i32 s{sT0}, s{sCP}, {32-G0}")
    a(f"s_lshl_b32 s{sCI}, s{sRP}, 4")
    a(f"s_add_u32 s{sCI}, s{sCI}, s{sT0}")
    a(f"s_add_u32 s{sCI}, s{sCI}, s{sIDX}")
    a(f"s_sub_u32 s{sCI}, s{sCI}, s{sXCD}")

def entry():
    a.label("Lentry")
    a(f"s_cmp_ge_u32 s2, 256")
    a("s_cbranch_scc1 Lend")
    if "scr" in EXP:
        a("s_and_b32 s3, s2, 31")
        a("s_lshl_b32 s3, s3, 3")
        a("s_lshr_b32 s2, s2, 5")
        a("s_or_b32 s2, s2, s3")
    if DIAG: a(f"s_memrealtime {sr(sT6,2)}")
    a(f"s_getpc_b64 {sr(sT0,2)}")
    a.label("Lpcref")
    a(f"s_lshr_b32 s{sIDX}, s2, 3")
    a(f"s_mul_i32 s{sT2}, s{sIDX}, 9")
    a("v_min_u32 v1, 8, v0")
    a(f"v_add_lshl_u32 v1, v1, s{sT2}, 7")
    a("v_min_u32 v1, Lend-Lpcref, v1")
    if "nocpf" not in EXP: a(f"global_load_dword v255, v1, {sr(sT0,2)}")
    for s, off in ((SX, 0), (SWQ, 8), (SK, 32), (SV, 40), (SSK, 48), (SWS, 96), (SDBG, 88), (SH, 56), (SWO, 16), (SGW, 72), (SOUT, 80), (SD, 64)):
        if "ka1" in EXP and off >= 16: continue
        a(f"s_load_dwordx2 {sr(s,2)}, s[0:1], {off}")
    a("v_lshrrev_b32 v1, 6, v0")
    a(f"v_and_b32 v{vL}, 63, v0")
    a(f"v_readfirstlane_b32 s{sW}, v1")
    a("s_bitcmp1_b32 s2, 2")
    a(f"s_cselect_b32 s{sXCD}, {G1}, {G0}")
    a(f"s_and_b32 s{sRP}, s2, 3")
    a(f"s_bfe_u32 s{sCP}, s2, 0x10002")
    a(f"s_mov_b32 s{sBID}, s2")
    a(f"s_mov_b32 s{sTAG}, 1")
    a(f"s_and_b32 s{sT0}, s{sIDX}, 3")
    a(f"s_lshl_b32 s{sRB}, s{sRP}, 2")
    a(f"s_add_u32 s{sRB}, s{sRB}, s{sT0}")
    if DIAG:
        for i in range(16): a(f"s_mov_b32 s{STS+i}, 0")
        stamp(0)
        a(f"s_mov_b32 s{STS+10}, s{sT6}")
        a(f"s_memtime vcc")
        a("s_waitcnt lgkmcnt(0)")
        a(f"s_mov_b32 s{STS+14}, vcc_lo")
    a(f"s_cmp_ge_u32 s{sIDX}, s{sXCD}")
    a("s_cbranch_scc1 Lctype")
    a(f"s_cmp_lt_u32 s{sW}, 4")
    a("s_cbranch_scc1 Lawave")

def s3_setup(split=None):
    a.c("S3 setup")
    sR3, sC3 = sT2, sT3
    a(f"s_lshr_b32 s{sT0}, s{sIDX}, 1")
    a(f"s_lshl_b32 s{sR3}, s{sRP}, 4")
    a(f"s_add_u32 s{sR3}, s{sR3}, s{sT0}")
    a(f"s_and_b32 s{sT0}, s{sIDX}, 1")
    a(f"s_lshl_b32 s{sC3}, s{sCP}, 1")
    a(f"s_add_u32 s{sC3}, s{sC3}, s{sT0}")
    a(f"v_lshlrev_b32 v{vL16}, 4, v{vL}")
    a(f"v_mov_b32 v{vZ}, 0")
    a(f"v_and_b32 v24, 31, v{vL}")
    a(f"v_lshrrev_b32 v25, 5, v{vL}")
    a(f"s_and_b32 s{sT0}, s{sW}, 3")
    a(f"s_lshl_b32 s{sT1}, s{sT0}, 6")
    a(f"s_lshl_b32 s{sT4}, s{sT0}, 4")
    a(f"s_add_u32 s{sT4}, s{sT4}, 256")
    a(f"s_cmp_lt_u32 s{sW}, 4")
    a(f"s_cselect_b32 s{sT1}, s{sT1}, s{sT4}")
    a(f"s_cselect_b32 s{sT5}, 4, 3")
    a(f"v_mul_u32_u24 v{vOUT}, 1280, v24")
    a(f"v_lshl_add_u32 v{vOUT}, v25, s{sT5}, v{vOUT}")
    a(f"s_mul_i32 s{sXOFF}, s{sR3}, 40960")
    a(f"s_mul_i32 s{sT4}, s{sC3}, 320")
    a(f"s_add_u32 s{sYO}, s{sXOFF}, {WS_Y}")
    a(f"s_add_u32 s{sXOFF}, s{sXOFF}, s{sT4}")
    a(f"s_add_u32 s{sXOFF}, s{sXOFF}, s{sT1}")
    a(f"s_lshl_b32 s{sT5}, s{sR3}, 7")
    a(f"s_add_u32 s{sT5}, s{sT5}, {WS_G}")
    a(f"v_lshlrev_b32 v{vGO}, 2, v24")
    a(f"v_add_u32 v{vGO}, s{sT5}, v{vGO}")
    a(f"v_bfe_u32 v26, v{vL}, 2, 2")
    a("v_lshl_add_u32 v26, v25, 2, v26")
    a(f"v_lshlrev_b32 v{vYT}, 6, v26")
    a(f"v_bfe_u32 v26, v{vL}, 4, 1")
    a(f"v_lshl_add_u32 v{vYT}, v26, 5, v{vYT}")
    a(f"v_and_b32 v26, 3, v{vL}")
    a(f"v_lshl_add_u32 v{vYT}, v26, 3, v{vYT}")
    a(f"s_lshl_b32 s{sT1}, s{sT1}, 5")
    a(f"s_add_u32 s{sT1}, s{sT1}, {L_YT}")
    a(f"v_add_u32 v{vYT}, s{sT1}, v{vYT}")
    a(f"s_lshl_b32 s{sT1}, s{sT0}, 12")
    a(f"s_add_u32 s{sT1}, s{sT1}, {L_PART}")
    a(f"v_add_u32 v{vPW}, s{sT1}, v{vL16}")
    a(f"s_lshl_b32 s{sT1}, s{sT0}, 10")
    a(f"s_add_u32 s{sT1}, s{sT1}, {L_PART+16384}")
    a(f"v_add_u32 v{vPA}, s{sT1}, v{vL16}")
    a(f"s_mul_i32 s{sT1}, s{sT0}, {10*1024}")
    a(f"s_add_u32 s{sT1}, s{sT1}, {L_OFR}")
    a(f"v_add_u32 v{vRR}, s{sT1}, v{vL16}")
    a(f"v_add_u32 v{vPR}, {L_OFR}, v{vL16}")
    a(f"s_mul_i32 s{sT1}, s{sW}, 5120")
    a(f"s_add_u32 s{sT4}, s{sT1}, {L_OFR}")
    a(f"v_add_u32 v{vOW}, s{sT4}, v{vL16}")
    a(f"s_add_u32 s{sPQO}, s{sYO}, s{sT1}")
    a(f"s_add_u32 s{sPQO}, s{sPQO}, {(WS_PQ-WS_Y)&0xffffffff}")
    a("v_mul_u32_u24 v25, 336, v25")
    a("v_min_u32 v26, 20, v24")
    a("v_lshl_add_u32 v26, v26, 4, v25")
    a("v_lshrrev_b32 v27, 2, v24")
    a(f"v_mov_b32 v{vFT}, 0x7f000000")
    a("v_cmp_eq_u32 vcc, 5, v27")
    a(f"v_subrev_u32 v{vKO}, 4, v24")
    a(f"v_lshl_add_u32 v{vKO}, v{vKO}, 4, v25")
    a(f"v_cndmask_b32 v{vKE}, v26, v{vFT}, vcc")
    a(f"v_cndmask_b32 v{vKO}, v26, v{vKO}, vcc")
    a("v_cmp_eq_u32 vcc, 4, v27")
    a(f"s_mul_i32 s{sKVO}, s{sW}, {4*KVH}")
    a(f"s_add_u32 s{sKVO}, s{sKVO}, {WS_KV}")
    a(f"v_cndmask_b32 v{vKO}, v{vKO}, v{vFT}, vcc")
    a(f"s_lshl_b32 s{sT1}, s{sW}, 8")
    a(f"s_add_u32 s{sT1}, s{sT1}, {WS_FK}")
    a(f"v_mov_b32 v{vFK}, s{sT1}")
    a(f"s_lshr_b32 s{sT1}, s{sR3}, 1")
    a(f"s_lshl_b32 s{sT1}, s{sT1}, 3")
    a(f"s_add_u32 s{sT1}, s{sT1}, s{sW}")
    a(f"s_lshl_b32 s{sT1}, s{sT1}, 8")
    a(f"s_add_u32 s{sT1}, s{sT1}, {WS_FQ}")
    a(f"v_mov_b32 v{vFQ}, s{sT1}")
    a(f"v_writelane_b32 v{vFK}, s{sT1}, 0")
    a(f"s_lshr_b32 s{sT1}, s{sR3}, 3")
    a(f"s_add_u32 s{sT1}, s{sT1}, 2")
    a(f"s_bfe_u32 s{sT1}, s{sT1}, 0x10002")
    a(f"s_mul_i32 s{sT1}, s{sT1}, 20")
    a(f"s_mul_i32 s{sT4}, s{sC3}, 5")
    a(f"s_add_u32 s{sT1}, s{sT1}, s{sT4}")
    a(f"s_lshl_b32 s{sT1}, s{sT1}, 8")
    a(f"s_add_u32 s{sT1}, s{sT1}, {WS_FY + 4*256}")
    a(f"v_mov_b32 v{vFY}, s{sT1}")
    a(f"s_lshl_b32 s{sT5}, s{sT0}, 8")
    a(f"s_add_u32 s{sT1}, s{sT1}, s{sT5}")
    a(f"s_sub_u32 s{sT1}, s{sT1}, {4*256}")
    a(f"v_writelane_b32 v{vFY}, s{sT1}, 0")
    a(f"s_lshl_b32 s{sT4}, s{sT4}, 11")
    a(f"s_add_u32 s{sYO}, s{sYO}, s{sT4}")
    a(f"s_lshl_b32 s{sYM}, s{sT0}, 11")

def x_loads():
    E = a.newlabel("Lxe"); D = a.newlabel("Lxd")
    a(f"s_cmp_ge_u32 s{sW}, 4")
    a(f"s_cbranch_scc1 {E}")
    a(f"buffer_load_dwordx4 {vr(vXD,4)}, v{vOUT}, {srd(SX)}, s{sXOFF} offen")
    a(f"buffer_load_dwordx4 {vr(vXD2,4)}, v{vOUT}, {srd(SX)}, s{sXOFF} offen offset:32")
    a(f"s_branch {D}")
    a.label(E)
    a(f"buffer_load_dword v{vXD}, v{vOUT}, {srd(SX)}, s{sXOFF} offen")
    a(f"buffer_load_dword v{vXD+1}, v{vOUT}, {srd(SX)}, s{sXOFF} offen offset:4")
    a.label(D)

def wo_prep(vtmp):
    a(f"s_and_b32 s{sT4}, s{sIDX}, 1")
    a(f"s_lshl_b32 s{sT5}, s{sCP}, 1")
    a(f"s_add_u32 s{sT4}, s{sT4}, s{sT5}")
    a(f"s_lshl_b32 s{sT4}, s{sT4}, 3")
    a(f"s_add_u32 s{sT4}, s{sT4}, s{sW}")
    a(f"s_mul_i32 s{sT4}, s{sT4}, 25600")
    a(f"s_add_u32 s{sWOO}, s{sT4}, {WS_WOP}")
    a(f"v_lshlrev_b32 v{vtmp}, 4, v{vL}")
def wo_list(vtmp, order=None):
    out = []
    for i in range(25):
        t = f"buffer_load_dwordx4 {vr(VWO+4*i,4)}, v{vtmp}, {srd(SWS)}, s{sWOO} offen offset:{1024*(i&3)} sc1"
        if (i & 3) == 3: t += f"\ns_add_u32 s{sWOO}, s{sWOO}, 4096"
        out.append(t)
    return out

S0B = 156
def s0_task(st):
    a(f"s_mul_i32 s{sTB}, s{st}, 6554")
    a(f"s_lshr_b32 s{sTB}, s{sTB}, 16")
    a(f"s_mul_i32 s{sCHB}, s{sTB}, 10")
    a(f"s_sub_u32 s{sCHB}, s{st}, s{sCHB}")
for t in range(640): assert (t * 6554) >> 16 == t // 10

def s0_loads(LB=None, init=True):
    a.c("S0 loads")
    B = S0B
    a(f"v_lshrrev_b32 v{B+1}, 3, v{vL}")
    a(f"v_and_b32 v{B+2}, 7, v{vL}")
    a(f"v_mul_u32_u24 v{B+3}, 5120, v{B+1}")
    a(f"v_lshl_add_u32 v{B+3}, v{B+2}, 4, v{B+3}")
    a(f"s_mul_i32 s{sT0}, s{sTB}, 40960")
    a(f"s_lshl_b32 s{sT1}, s{sCHB}, 7")
    a(f"s_add_u32 s{sT0}, s{sT0}, s{sT1}")
    a(f"v_add_u32 v{B+64}, s{sT0}, v{B+3}")
    a(f"v_subrev_u32 v{B+65}, 3840, v{B+64}")
    a(f"v_lshlrev_b32 v{B+66}, 6, v{B+2}")
    a(f"s_lshl_b32 s{sT1}, s{sCHB}, 9")
    if init:
        srd_init([SK, SV, SSK])
        a("s_waitcnt lgkmcnt(0)")
    LB = LB or B
    for i in range(4): a(f"buffer_load_dwordx4 {vr(LB+16+4*i,4)}, v{B+64}, {srd(SK)}, 0 offen offset:{1280*i}")
    for i in range(3): a(f"buffer_load_dwordx4 {vr(LB+4+4*i,4)}, v{B+65}, {srd(SK)}, 0 offen offset:{1280*i}")
    for i in range(4): a(f"buffer_load_dwordx4 {vr(LB+32+4*i,4)}, v{B+64}, {srd(SV)}, 0 offen offset:{1280*i}")
    for i in range(4): a(f"buffer_load_dwordx4 {vr(LB+48+4*i,4)}, v{B+66}, {srd(SSK)}, s{sT1} offen offset:{16*i}")

def s0_addr(s_scr):
    B = S0B
    a(f"v_mul_u32_u24 v{B+67}, 576, v{B+1}")
    a(f"v_lshl_add_u32 v{B+67}, v{B+2}, 4, v{B+67}")
    a(f"v_add_u32 v{B+67}, s{s_scr}, v{B+67}")
    a(f"v_and_b32 v{B+68}, 15, v{vL}")
    a(f"v_mul_u32_u24 v{B+69}, 144, v{B+68}")
    a(f"v_lshrrev_b32 v{B+70}, 4, v{vL}")
    a(f"v_lshl_add_u32 v{B+69}, v{B+70}, 3, v{B+69}")
    a(f"v_add_u32 v{B+69}, s{s_scr}, v{B+69}")
    a(f"s_and_b32 s{sT0}, s{sTB}, 3")
    a(f"v_xor_b32 v{B+68}, s{sT0}, v{B+68}")
    a(f"v_lshlrev_b32 v{B+68}, 4, v{B+68}")
    a(f"v_lshl_add_u32 v{B+68}, v{B+70}, 14, v{B+68}")
    a(f"s_lshl_b32 s{sT0}, s{sCHB}, 18")
    a(f"s_lshl_b32 s{sT1}, s{sTB}, 8")
    a(f"s_add_u32 s{sT0}, s{sT0}, s{sT1}")
    if WOFF: a(f"s_add_u32 s{sT0}, s{sT0}, {WOFF}")
    a(f"s_mov_b32 s{sT1}, 0xffff0000")

def s0_compute(split=None, pk=True, LB=None):
    a.c("S0 compute")
    B = S0B
    LB = LB or B
    KF, VF, WF, AC, UO = 112, 126, 134, B + 88, B + 72
    for p in range(4):
        for cc in range(2):
            c = 2 * p + cc
            for h in range(2):
                a(f"v_lshlrev_b32 v{WF+4*h+cc}, 16, v{LB+48+2*c+h}")
                a(f"v_and_b32 v{WF+4*h+2+cc}, s{sT1}, v{LB+48+2*c+h}")
        for r in range(7):
            a(f"v_lshlrev_b32 v{KF+2*r}, 16, v{LB+4+4*r+p}")
            a(f"v_and_b32 v{KF+2*r+1}, s{sT1}, v{LB+4+4*r+p}")
        for r in range(4):
            a(f"v_lshlrev_b32 v{VF+2*r}, 16, v{LB+32+4*r+p}")
            a(f"v_and_b32 v{VF+2*r+1}, s{sT1}, v{LB+32+4*r+p}")
        if pk:
            for i in range(4): a(f"v_pk_mul_f32 {vr(AC+2*i,2)}, {vr(KF+2*(i+3),2)}, {vr(WF,2)}")
            for d in range(1, 4):
                for i in range(4): a(f"v_pk_fma_f32 {vr(AC+2*i,2)}, {vr(KF+2*(i+3-d),2)}, {vr(WF+2*d,2)}, {vr(AC+2*i,2)}")
            for i in range(4): a(f"v_pk_mul_f32 {vr(AC+2*i,2)}, {vr(AC+2*i,2)}, {vr(VF+2*i,2)}")
        else:
            for i in range(8): a(f"v_mul_f32 v{AC+i}, v{KF+6+i}, v{WF+(i&1)}")
            for d in range(1, 4):
                for i in range(8): a(f"v_fmac_f32 v{AC+i}, v{KF+6+i-2*d}, v{WF+2*d+(i&1)}")
            for i in range(8): a(f"v_mul_f32 v{AC+i}, v{AC+i}, v{VF+i}")
        for i in range(4): a(f"v_cvt_pk_bf16_f32 v{UO+4*i+p}, v{AC+2*i}, v{AC+2*i+1}")
        if split: split(p)
    for i in range(4): a(f"ds_write_b128 v{B+67}, {vr(UO+4*i,4)} offset:{144*i}")
    for j in range(4):
        a(f"ds_read_b64_tr_b16 {vr(LB+4+4*j,2)}, v{B+69} offset:{32*j}")
        a(f"ds_read_b64_tr_b16 {vr(LB+6+4*j,2)}, v{B+69} offset:{32*j+2304}")
    for j in range(4):
        a(f"s_waitcnt lgkmcnt({6-2*j})")
        a(f"buffer_store_dwordx4 {vr(LB+4+4*j,4)}, v{B+68}, {srd(SWS)}, s{sT0} offen sc1")
        if j < 3: a(f"s_add_u32 s{sT0}, s{sT0}, 65536")

def f0_off(sd):
    a(f"s_lshl_b32 s{sd}, s{sCHB}, 8")
    a(f"s_add_u32 s{sd}, s{sd}, {WS_F0}")

ACC = 32
FB = [112, 156]
vX0, vX1, vWA, vWX = 148, 149, 150, 154
vA1, vA2, vC16, vG4 = 16, 17, 18, 19
sC, sSL = sT2, sT3

def a_setup():
    a.c("A-wave address setup")
    a(f"s_and_b32 s{sT0}, s{sW}, 1")
    a(f"s_lshr_b32 s{sT1}, s{sW}, 1")
    a(f"v_and_b32 v{vC16}, 15, v{vL}")
    a(f"v_lshrrev_b32 v{vG4}, 4, v{vL}")
    a(f"v_lshrrev_b32 v8, 1, v{vC16}")
    a(f"v_xor_b32 v8, v{vG4}, v8")
    a(f"v_lshlrev_b32 v8, 4, v8")
    a(f"v_lshl_add_u32 v8, v{vC16}, 7, v8")
    a(f"s_lshl_b32 s{sT4}, s{sT1}, 13")
    a(f"v_add_u32 v{vX0}, s{sT4}, v8")
    a(f"v_xor_b32 v{vX1}, 64, v{vX0}")
    a(f"v_bfe_u32 v8, v{vL}, 2, 2")
    a(f"v_lshl_add_u32 v9, v{vG4}, 3, v8")
    a(f"v_and_b32 v10, 1, v{vG4}")
    a(f"v_xor_b32 v10, s{sT0}, v10")
    a(f"v_and_b32 v11, 3, v{vL}")
    a("v_lshlrev_b32 v11, 3, v11")
    a(f"v_lshl_add_u32 v{vWX}, v9, 6, v11")
    a(f"v_lshl_add_u32 v{vWX}, v10, 5, v{vWX}")
    a(f"v_add_u32 v{vWX}, 32768, v{vWX}")
    a("v_lshl_or_b32 v8, v10, 2, v8")
    a("v_lshl_add_u32 v8, v8, 5, v11")
    a("v_lshl_add_u32 v8, v9, 8, v8")
    a(f"v_add_u32 v{vWA}, 16384, v8")
    for tt in range(1, 4): a(f"v_xor_b32 v{vWA+tt}, {32*tt}, v{vWA}")

def a_reads(buf, ks):
    b = FB[buf]
    xs = [f"ds_read_b128 {vr(b+4*rt,4)}, v{vX1 if ks else vX0} offset:{2048*rt}" for rt in range(4)]
    ws = []
    for tt in range(5):
        for sec in range(2):
            if tt < 4: ws.append(f"ds_read_b64_tr_b16 {vr(b+16+4*tt+2*sec,2)}, v{vWA+tt} offset:{ks*8192+sec*1024}")
            else: ws.append(f"ds_read_b64_tr_b16 {vr(b+16+4*tt+2*sec,2)}, v{vWX} offset:{ks*2048+sec*256}")
    return [xs[0], ws[0], ws[1], xs[1], ws[2], ws[3], xs[2], ws[4], ws[5], xs[3]] + ws[6:]

def acc(rt, tt): return ACC + 4 * (rt * 5 + tt)

def a_mfmas(buf, qtype, order=None):
    b = FB[buf]
    out = []
    for (rt, tt) in (order or [(rt, tt) for tt in range(5) for rt in range(4)]):
        d = vr(acc(rt, tt), 4)
        xf = vr(b + 4 * rt, 4); wf = vr(b + 16 + 4 * tt, 4)
        A, B = (wf, xf) if qtype else (xf, wf)
        out.append(f"v_mfma_f32_16x16x32_bf16 {d}, {A}, {B}, {d}")
    return out

def interleave(mf, rd):
    j = 0
    for i, m in enumerate(mf):
        a(m)
        if j < len(rd): a(rd[j]); j += 1
    while j < len(rd): a(rd[j]); j += 1

def a_mainloop(qtype):
    t = "q" if qtype else "k"
    a.c("A main loop")
    a(f"s_mov_b32 s{sC}, 0")
    a(f"s_mov_b32 s{sSL}, 0")
    a(f"s_mov_b32 s{sT6}, {1<<10}")
    if qtype:
        a(f"s_cmp_lt_u32 s{sW}, {NQ}")
        a(f"s_cselect_b32 s{sT6}, {(1<<10)|(1<<1)|(1<<3)}, s{sT6}")
    if "prio" in EXP: a("s_setprio 2")
    a("s_waitcnt lgkmcnt(0)")
    if "ast" in EXP: stamp(1, True)
    a("s_barrier")
    stamp(1)
    for r in a_reads(0, 0): a(r)
    book = [
        f"s_add_u32 s{sSL}, s{sSL}, 1\ns_cmp_eq_u32 s{sSL}, 3",
        f"s_mov_b32 s{sT4}, {SLOT}",
        f"s_cselect_b32 s{sT4}, {-2*SLOT & 0xffffffff}, s{sT4}",
        f"s_cselect_b32 s{sSL}, 0, s{sSL}\ns_add_u32 s{sC}, s{sC}, 1",
    ]
    src_ = f"s{sT4}"
    rd = a_reads(1, 1)
    seq = []
    for i, r in enumerate(rd): seq.append(r + ("\n" + book[i - 2] if 2 <= i < 6 else ""))
    seq += [f"v_add_u32 v{vX0}, {src_}, v{vX0}\nv_add_u32 v{vX1}, {src_}, v{vX1}",
            f"v_add_u32 v{vWA}, {src_}, v{vWA}\nv_add_u32 v{vWA+1}, {src_}, v{vWA+1}",
            f"v_add_u32 v{vWA+2}, {src_}, v{vWA+2}\nv_add_u32 v{vWA+3}, {src_}, v{vWA+3}",
            f"v_add_u32 v{vWX}, {src_}, v{vWX}\ns_bitcmp1_b32 s{sT6}, s{sC}"]
    a(".p2align 3")
    a.label(f"Lml{t}")
    a("s_waitcnt lgkmcnt(0)")
    interleave(a_mfmas(0, qtype), seq)
    a("s_waitcnt lgkmcnt(0)")
    a(f"s_cbranch_scc1 Lhook{t}")
    a.label(f"Lhookd{t}")
    if "ast" in EXP:
        a("s_memrealtime vcc")
        a("s_waitcnt lgkmcnt(0)")
        a(f"s_mov_b32 m0, s{sC}")
        a("v_writelane_b32 v29, vcc_lo, m0")
    a("s_barrier")
    interleave(a_mfmas(1, qtype), a_reads(0, 0))
    a(f"s_branch Lml{t}")
    a.label(f"Lhook{t}")
    if qtype:
        a(f"s_cmp_eq_u32 s{sC}, 10")
        a(f"s_cbranch_scc1 Lmx{t}")
        N2 = a.newlabel("Lhk")
        a(f"s_cmp_lg_u32 s{sC}, 1")
        a(f"s_cbranch_scc1 {N2}")
        a("s_waitcnt vmcnt(0)")
        darr_issue(24, 25, 0)
        a(f"s_branch Lhookd{t}")
        a.label(N2)
        darr_finish(24, 25, 0, NU)
        a(f"s_branch Lhookd{t}")
        a.label(f"Lmx{t}")
    if "ast" in EXP:
        for c in range(1, 9): a(f"v_readlane_b32 s{STS+1+c}, v29, {c}")

def acc_zero():
    for i in range(80): a(f"v_mov_b32 v{ACC+i}, 0")

def phi_list(regs, tmp, pk=False):
    out = []
    B = 4
    for i in range(0, len(regs), B):
        batch = regs[i:i + B]
        for j, r in enumerate(batch):
            if pk:
                out.append(f"v_pk_mul_f32 {vr(tmp+2*j,2)}, {vr(r,2)}, {sr(sLOG,2)}"); continue
            out.append(f"v_mul_f32 v{tmp+2*j}, s{sLOG}, v{r}")
            out.append(f"v_mul_f32 v{tmp+2*j+1}, s{sLOG}, v{r+1}")
        for j, r in enumerate(batch):
            out.append(f"v_exp_f32_e64 v{tmp+2*j}, v{tmp+2*j} clamp")
            out.append(f"v_exp_f32_e64 v{tmp+2*j+1}, v{tmp+2*j+1} clamp")
        for j, r in enumerate(batch):
            out.append(f"v_max_f32 v{r}, s{sEPS}, v{r}")
            out.append(f"v_max_f32 v{r+1}, s{sEPS}, v{r+1}")
        for j, r in enumerate(batch):
            if pk:
                out.append(f"v_pk_add_f32 {vr(r,2)}, {vr(r,2)}, {vr(tmp+2*j,2)}"); continue
            out.append(f"v_add_f32 v{r}, v{r}, v{tmp+2*j}")
            out.append(f"v_add_f32 v{r+1}, v{r+1}, v{tmp+2*j+1}")
    return out

def sprinkle(main, extra, every, start=0):
    j = 0
    for i, m in enumerate(main):
        a(m)
        if i >= start and (i - start) % every == every - 1 and j < len(extra):
            a(extra[j]); j += 1
    return extra[j:]

def fc_addr(v):
    a(f"v_and_b32 v{v}, 7, v{vL}")
    a(f"v_lshlrev_b32 v{v}, 8, v{v}")
    a(f"v_add_u32 v{v}, {WS_FC}, v{v}")
def f0_addr(v):
    a(f"s_lshr_b32 s{sT4}, s{sQUAD}, 4")
    a(f"s_lshl_b32 s{sT4}, s{sT4}, 8")
    a(f"s_add_u32 s{sT4}, s{sT4}, {WS_F0}")
    a(f"v_mov_b32 v{v}, s{sT4}")

def awave():
    a.label("Lawave")
    ka_rest()
    a(f"s_cmp_ge_u32 s{sIDX}, 16")
    a("s_cbranch_scc1 Lqa")
    srd_init([SWS, SDBG])
    common_scalars()
    srd_init([SX, SOUT])
    acc_zero()

def kva():
    a(f"s_lshr_b32 s{sT0}, s{sIDX}, 2")
    a(f"s_lshl_b32 s{sCG}, s{sCP}, 2")
    a(f"s_add_u32 s{sCG}, s{sCG}, s{sT0}")
    a_setup()
    a(f"s_mul_i32 s{sT4}, s{sW}, 3584")
    a(f"s_add_u32 s{sT4}, s{sT4}, {L_KVS}")
    a(f"v_mul_u32_u24 v8, 336, v{vG4}")
    a(f"v_add_u32 v8, s{sT4}, v8")
    a(f"v_lshl_add_u32 v{vA1}, v{vC16}, 4, v8")
    a(f"v_add_u32 v9, 8, v{vC16}")
    a(f"v_subrev_u32 v10, 12, v{vC16}")
    a(f"v_cmp_lt_u32 vcc, 11, v{vC16}")
    a("v_cndmask_b32 v9, v9, v10, vcc")
    a(f"v_cmp_eq_u32 vcc, 0, v{vC16}")
    a("v_mov_b32 v10, 20")
    a("v_cndmask_b32 v9, v9, v10, vcc")
    a(f"v_lshl_add_u32 v{vA2}, v9, 4, v8")
    a(f"s_lshl_b32 s{sT4}, s{sT0}, 2")
    a(f"s_add_u32 s{sT4}, s{sT4}, {L_CNT}")
    a(f"v_mov_b32 v20, s{sT4}")
    a(f"s_mul_i32 s{sT4}, s{sT0}, 3584")
    a(f"s_mul_i32 s{sT5}, s{sT1}, {KVH}")
    a(f"s_add_u32 s{sT4}, s{sT4}, s{sT5}")
    a(f"v_lshlrev_b32 v21, 2, v{vL}")
    a(f"s_add_u32 s{sT5}, s{sT4}, {L_KVS}")
    a(f"v_add_u32 v22, s{sT5}, v21")
    a(f"s_mul_i32 s{sT5}, s{sCG}, {4*KVH}")
    a(f"s_add_u32 s{sT4}, s{sT4}, s{sT5}")
    a(f"s_add_u32 s{sCH}, s{sT4}, {WS_KV}")
    a("v_mov_b32 v23, 0x3f803f80")
    a(f"s_lshl_b32 s{sLC}, s{sCG}, 8")
    a(f"s_add_u32 s{sLC}, s{sLC}, {WS_FK}")
    wo_prep(28)
    a_mainloop(False)
    a.c("KV epilogue")
    order = [(rt, tt) for tt in (4, 0, 2, 1, 3) for rt in range(4)]
    mf = a_mfmas(1, False, order)
    for m in mf[:8]: a(m)
    XP = 112
    TM = 12
    TM = 8
    a(f"v_cmp_gt_u32 vcc, 8, v{vC16}")
    def pairs(tt): return sum([[acc(rt, tt), acc(rt, tt) + 2] for rt in range(4)], [])
    def cvts(tt): return [f"v_cvt_pk_bf16_f32 v{acc(rt&2,tt)+2*(rt&1)+h}, v{acc(rt,tt)+2*h}, v{acc(rt,tt)+2*h+1}" for rt in range(4) for h in range(2)]
    L = []
    for rt in range(4):
        for h in range(2): L.append(f"v_cvt_pk_bf16_f32 v{XP+2*rt+h}, v{acc(rt,4)+2*h}, v{acc(rt,4)+2*h+1}")
    for j in range(8): L.append(f"v_cndmask_b32 v{XP+j}, v{XP+j}, v23, vcc")
    L += phi_list(pairs(4)[:4], TM, False)
    for i, m in enumerate(mf[8:]):
        a(m)
        for x in L[2 * i:2 * i + 2]: a(x)
    L = L[24:]
    stamp(2)
    pk = "nopk" not in EXP
    L += phi_list(pairs(4)[4:], TM, pk) + cvts(4) + phi_list(pairs(0), TM, pk) + cvts(0) + cvts(2) + cvts(3)
    if "aspr" in EXP: assert not sprinkle(L, wo_list(28), len(L) // 25)
    else:
        for x in L: a(x)
    def fr(t, p): return XP + 4 * p if t == 5 else acc(2 * p, t)
    prods = [(0, 2), (0, 5), (4, 2), (4, 5), (1, 3), (1, 5), (4, 3)]
    PD = 120
    def pm(lst):
        for p in range(2):
            for i in lst:
                ta, tb = prods[i]
                d = vr(PD + 4 * i, 4)
                a(f"v_mfma_f32_16x16x32_bf16 {d}, {vr(fr(ta,p),4)}, {vr(fr(tb,p),4)}, {'0' if p==0 else d}")
    def wr(i, va, off, mlo, mhi):
        t = ""
        if mlo != -1: t += f"s_mov_b32 exec_lo, {mlo}\ns_mov_b32 exec_hi, {mhi}\n"
        t += f"ds_write_b128 v{va}, {vr(PD+4*i,4)} offset:{off}"
        if mlo != -1: t += "\ns_mov_b64 exec, -1"
        return t
    pm([0, 1, 2, 3, 6])
    W1 = [wr(0, vA1, 0, -1, -1), wr(1, vA2, 0, 0x0f010f01, 0x0f010f01), wr(2, vA1, 4 * 336, 0xffff, 0),
          wr(3, vA2, 4 * 336, 0x0f01, 0), wr(3, vA2, KVH - 336, 0xf0010000, 0), wr(6, vA1, KVH + 64 - 336, 0xffff0000, 0)]
    rest = sprinkle(phi_list(pairs(1)[:4], TM, False) + phi_list(pairs(1)[4:], TM, pk) + cvts(1), W1, 8, 6)
    assert not rest
    pm([4, 5])
    a(wr(4, vA1, KVH + 336 + 64, -1, -1))
    a(wr(5, vA2, KVH + 336, 0xf001f001, 0xf001f001))
    if "econv" in EXP:
        lds_arrive(20, 24)
        lds_wait(20, 24, 2 + 4 * 256)
    else:
        a("s_waitcnt lgkmcnt(0)")
        a("s_barrier")
    for i in range(7):
        a(f"ds_read_b32 v{32+i}, v22 offset:{256*i}")
        a(f"ds_read_b32 v{40+i}, v22 offset:{256*i+7168}")
    stamp(3)
    for i in range(7):
        a(f"s_waitcnt lgkmcnt({12-2*i})")
        a(f"v_add_f32 v{32+i}, v{32+i}, v{40+i}")
        a(f"buffer_atomic_add_f32 v{32+i}, v21, {srd(SWS)}, s{sCH} offen offset:{256*i}")
    arr_prep(48, 49)
    s3_setup()
    a("s_waitcnt vmcnt(0)")
    arr_issue(48, 49, f"s{sLC}")
    arr_finish(48, 49, f"s{sLC}", 64, 0)
    a("s_setprio 0")
    stamp(4)
    a("s_branch Ls3x" if "aspr" in EXP else "s_branch Ls3")

def qa():
    a.label("Lqa")
    common_scalars()
    a(f"s_cmp_ge_u32 s{sW}, {NQ}")
    a("s_cbranch_scc1 Lq1")
    a(f"s_mov_b32 s{sTB}, s{sCI}")
    a(f"s_add_u32 s{sCHB}, s{sW}, {10-NQ}")
    s0_loads()
    a.label("Lq1")
    if "qpf" in EXP:
        a(f"v_min_u32 v1, 34, v{vL}")
        a("v_mul_u32_u24 v1, 1280, v1")
        a(f"s_mul_i32 s{sT0}, s{sCI}, 40960")
        a(f"s_lshl_b32 s{sT1}, s{sW}, 7")
        a(f"s_add_u32 s{sT0}, s{sT0}, s{sT1}")
        a(f"s_add_u32 s{sT0}, s{sT0}, 768")
        a(f"v_add_u32 v2, s{sT0}, v1")
        a("v_subrev_u32 v1, 3840, v2")
        srd_init([SK, SV])
        a("s_waitcnt lgkmcnt(0)")
        a(f"buffer_load_dword v250, v1, {srd(SK)}, 0 offen")
        a("s_mov_b32 exec_hi, 0")
        a(f"buffer_load_dword v251, v2, {srd(SV)}, 0 offen")
        a("s_mov_b32 exec_hi, -1")
    srd_init([SWS, SDBG, SX, SOUT])
    acc_zero()
    a(f"s_bfe_u32 s{sT0}, s{sIDX}, 0x20002")
    a(f"s_mul_i32 s{sCG}, s{sCP}, {Q0}")
    a(f"s_add_u32 s{sCG}, s{sCG}, s{sT0}")
    a_setup()
    a(f"v_lshrrev_b32 v8, 1, v{vG4}")
    a(f"v_and_b32 v9, 1, v{vG4}")
    a(f"v_lshlrev_b32 v20, 4, v{vC16}")
    a("v_lshl_add_u32 v20, v9, 9, v20")
    a("v_lshl_add_u32 v21, v8, 3, v20")
    a("v_add_u32 v21, 4096, v21")
    a("v_lshl_add_u32 v20, v8, 10, v20")
    a(f"s_lshl_b32 s{sT4}, s{sRB}, 1")
    a(f"s_add_u32 s{sT4}, s{sT4}, s{sT1}")
    a(f"s_lshl_b32 s{sT5}, s{sCG}, 1")
    a(f"s_add_u32 s{sT5}, s{sT5}, s{sT0}")
    a(f"s_mul_i32 s{sT0}, s{sT4}, {80*1024}")
    a(f"s_mul_i32 s{sT1}, s{sT5}, {5*1024}")
    a(f"s_add_u32 s{sT0}, s{sT0}, s{sT1}")
    a(f"s_add_u32 s{sCH}, s{sT0}, {WS_PQ}")
    a(f"s_add_u32 s{sVAR}, s{sCH}, {40*1024}")
    a(f"s_lshl_b32 s{sT4}, s{sT4}, 3")
    a(f"s_add_u32 s{sT4}, s{sT4}, s{sT5}")
    a(f"s_lshl_b32 s{sT4}, s{sT4}, 8")
    a(f"s_add_u32 s{sLC}, s{sT4}, {WS_FQ}")
    wo_prep(28)
    a("v_mov_b32 v24, 0")
    a(f"s_cmp_ge_u32 s{sW}, {NQ}")
    a("s_cbranch_scc1 Lq2")
    a(f"s_mul_i32 s{sT2}, s{sW}, 4608")
    a(f"s_add_u32 s{sT2}, s{sT2}, {2*SLOT}")
    s0_addr(sT2)
    a("s_waitcnt vmcnt(0)")
    stamp(11)
    s0_compute()
    stamp(12)
    a.label("Lq2")
    a_mainloop(True)
    a.c("Q epilogue")
    order = [(rt, tt) for rt in range(4) for tt in range(5)]
    mf = a_mfmas(1, True, order)
    for m in mf[:9]: a(m)
    L = []
    for rt in range(4):
        regs = []
        for tt in range(5): regs += [acc(rt, tt), acc(rt, tt) + 2]
        L += phi_list(regs, 112, rt > 0 and "nopk" not in EXP)
        O = acc(rt, 0)
        for tt in range(5):
            for h in range(2): L.append(f"v_cvt_pk_bf16_f32 v{O+2*tt+h}, v{acc(rt,tt)+2*h}, v{acc(rt,tt)+2*h+1}")
        so = f"s{sVAR if rt>>1 else sCH}"
        for p in range(2):
            L.append(f"buffer_store_dwordx4 {vr(O+4*p,4)}, v20, {srd(SWS)}, {so} offen offset:{256*(rt&1)+2048*p} sc1")
        L.append(f"buffer_store_dwordx2 {vr(O+8,2)}, v21, {srd(SWS)}, {so} offen offset:{256*(rt&1)} sc1")
    for i, m in enumerate(mf[9:]):
        a(m)
        for x in L[2 * i:2 * i + 2]: a(x)
    L = L[22:]
    stamp(2)
    if "aspr" in EXP: assert not sprinkle(L, wo_list(28), 8)
    else:
        for x in L: a(x)
    stamp(3)
    a("s_barrier")
    a("s_waitcnt vmcnt(0)")
    flag_store(120, 121, f"s{sLC}")
    s3_setup()
    a("s_setprio 0")
    stamp(4)
    a("s_branch Ls3x" if "aspr" in EXP else "s_branch Ls3")

def h_dma(sj, sch0):
    a(f"s_lshr_b32 s{sT4}, s{sj}, 1")
    a(f"s_and_b32 s{sT5}, s{sj}, 1")
    a(f"s_lshl_b32 s{sT5}, s{sT5}, 11")
    a(f"s_add_u32 s{sT6}, s{sch0}, s{sT4}")
    a(f"s_lshl_b32 s{sT6}, s{sT6}, 12")
    a(f"s_add_u32 s{sT6}, s{sT6}, s{sT5}")
    a(f"s_mul_i32 s{sT4}, s{sT4}, {HSTR}")
    a(f"s_add_u32 s{sT4}, s{sT4}, s{sT5}")
    a(f"s_add_u32 m0, s{sT4}, {L_HB+128}")
    a(f"buffer_load_dwordx4 v{vL16}, {srd(SH)}, s{sT6} offen lds")
    a(f"buffer_load_dwordx4 v{vL16}, {srd(SH)}, s{sT6} offen offset:1024 lds")

CACC = 32
CPOOL = 96
NPOOL = 12
CD = 144
vUe, vUo, vH, vCW, vCT, vCS, vCY, vCN = range(148, 156)

def conv_setup(j, chl0, split=None):
    a.c("conv setup")
    a(f"s_lshr_b32 s{sLC}, s{j}, 1")
    a(f"s_and_b32 s{sVAR}, s{j}, 1")
    a(f"s_add_u32 s{sCHL}, s{chl0}, s{sLC}")
    a(f"s_lshl_b32 s{sCH}, s{sQUAD}, 2")
    a(f"s_add_u32 s{sCH}, s{sCH}, s{sCHL}")
    a(f"s_lshl_b32 s{sT4}, s{sCH}, 1")
    a(f"s_and_b32 s{sT4}, s{sT4}, -4")
    a(f"s_load_dword s{sDV}, {sr(SD,2)}, s{sT4}")
    a(f"v_and_b32 v96, 31, v{vL}")
    a(f"v_lshrrev_b32 v97, 5, v{vL}")
    a("v_lshl_add_u32 v98, v97, 2, v96")
    a("v_lshrrev_b32 v99, 2, v98")
    a("v_add_u32 v99, 3, v99")
    a("v_and_b32 v99, 3, v99")
    a(f"v_xor_b32 v99, s{sCHL}, v99")
    a("v_lshlrev_b32 v99, 4, v99")
    a("v_lshl_add_u32 v99, v98, 6, v99")
    a(f"v_add_u32 v{vUe}, {L_UD-28*64}, v99")
    a(f"v_xor_b32 v{vUo}, 32, v{vUe}")
    a(f"v_bfe_u32 v98, v{vL}, 4, 1")
    a(f"v_and_b32 v99, 3, v{vL}")
    a("v_lshl_add_u32 v98, v98, 2, v99")
    a(f"v_bfe_u32 v96, v{vL}, 2, 2")
    a("v_sub_u32 v98, v98, v96")
    a("v_lshlrev_b32 v97, 3, v97")
    a("v_sub_u32 v98, v98, v97")
    a("v_lshlrev_b32 v98, 3, v98")
    a(f"s_mul_i32 s{sT4}, s{sLC}, {HSTR}")
    a(f"s_add_u32 s{sT4}, s{sT4}, {L_HB+128+32}")
    a(f"v_add_u32 v{vH}, s{sT4}, v98")
    a(f"s_lshl_b32 s{sT4}, s{sW}, 11")
    a(f"s_add_u32 s{sT4}, s{sT4}, {L_YST}")
    a(f"v_lshlrev_b32 v{vCW}, 4, v{vL}")
    a(f"v_add_u32 v{vCW}, s{sT4}, v{vCW}")
    if split: split(0)
    a(f"v_lshrrev_b32 v97, 4, v{vL}")
    a("v_lshrrev_b32 v98, 1, v99")
    a("v_lshl_add_u32 v98, v97, 1, v98")
    a("v_lshl_add_u32 v98, v98, 3, v96")
    a("v_lshlrev_b32 v98, 4, v98")
    a("v_and_b32 v99, 1, v99")
    a("v_lshl_add_u32 v98, v99, 3, v98")
    a(f"v_add_u32 v{vCT}, s{sT4}, v98")
    a(f"v_and_b32 v98, 7, v{vL}")
    a(f"v_lshrrev_b32 v99, 5, v{vL}")
    a("v_lshl_add_u32 v98, v98, 1, v99")
    a(f"v_mul_u32_u24 v98, 40960, v98")
    a(f"v_bfe_u32 v99, v{vL}, 3, 2")
    a(f"v_lshl_add_u32 v{vCY}, v99, 4, v98")
    a(f"s_lshl_b32 s{sT4}, s{j}, 4")
    a(f"s_add_u32 s{sT4}, s{sT4}, {L_SP}")
    a(f"v_mov_b32 v{vCS}, s{sT4}")
    a(f"s_lshl_b32 s{sT4}, s{sLC}, 2")
    a(f"s_add_u32 s{sT4}, s{sT4}, {L_CNT+16}")
    a(f"v_mov_b32 v{vCN}, s{sT4}")

def conv_dfrag():
    a("s_waitcnt lgkmcnt(0)")
    a(f"s_and_b32 s{sT4}, s{sCH}, 1")
    a(f"s_lshl_b32 s{sT4}, s{sT4}, 4")
    a(f"s_lshr_b32 s{sDV}, s{sDV}, s{sT4}")
    a(f"s_and_b32 s{sDV}, s{sDV}, 0xffff")
    a(f"v_lshlrev_b32 v98, 2, v{vL}")
    a("v_and_b32 v98, 16, v98")
    a(f"v_lshlrev_b32 v98, v98, s{sDV}")
    a(f"v_and_b32 v99, 59, v{vL}")
    for r in range(4):
        a(f"v_cmp_eq_u32 vcc, {32+8*r}, v99")
        a(f"v_cndmask_b32 v{CD+r}, 0, v98, vcc")

def zero_pads(j):
    a("v_mov_b32 v100, 0")
    a("v_mov_b32 v101, 0")
    a(f"v_lshlrev_b32 v102, 3, v{vL}")
    a(f"s_and_b32 s{sT6}, s{j}, 3")
    a(f"s_lshl_b32 s{sT4}, s{sT6}, 9")
    a(f"s_add_u32 s{sT4}, s{sT4}, {L_UB}")
    a(f"v_add_u32 v103, s{sT4}, v102")
    a("ds_write_b64 v103, v[100:101]")
    a(f"s_mul_i32 s{sT4}, s{sT6}, {HSTR}")
    a(f"s_add_u32 s{sT4}, s{sT4}, {L_HB}")
    a(f"v_add_u32 v103, s{sT4}, v102")
    a("s_mov_b64 exec, 0xffff")
    a("ds_write_b64 v103, v[100:101]")
    a(f"v_add_u32 v103, {L_CNT}, v102")
    a("s_mov_b64 exec, 0xff")
    a("ds_write_b64 v103, v[100:101]")
    a("s_mov_b64 exec, -1")

def u_dma(j, nper):
    a(f"s_mul_i32 s{sT4}, s{j}, {1024*nper}")
    a(f"s_lshl_b32 s{sT5}, s{sQUAD}, 14")
    if WOFF: a(f"s_add_u32 s{sT5}, s{sT5}, {WOFF}")
    a(f"s_add_u32 s{sT5}, s{sT5}, s{sT4}")
    a(f"s_add_u32 m0, s{sT4}, {L_UD}")
    for i in range(nper): a(f"buffer_load_dwordx4 v{vL16}, {srd(SWS)}, s{sT5} offen offset:{1024*i} sc1 lds")

def bwave():
    a.c("B wave")
    sXB, sWB, sM, sMW, sROT, sSTEP, sQ2, sQ3 = sCG, sUD, sTB, sRB, sCI, sLOG, sLOG + 1, sEPS
    VX, VW = 32, 36
    a(f"s_sub_u32 s{sJ}, s{sW}, 4")
    a(f"v_lshrrev_b32 v1, 3, v{vL}")
    a(f"v_mul_u32_u24 v1, 1280, v1")
    a(f"v_lshrrev_b32 v2, 4, v{vL}")
    a(f"v_and_b32 v3, 7, v{vL}")
    a("v_xor_b32 v2, v2, v3")
    a(f"v_lshl_add_u32 v{VX}, v2, 4, v1")
    a(f"v_xor_b32 v{VX+1}, 64, v{VX}")
    a(f"v_add_u32 v{VX+1}, {10240-1024}, v{VX+1}")
    a(f"v_add_u32 v{VX+2}, {20480-2048}, v{VX}")
    a(f"v_add_u32 v{VX+3}, {20480-2048}, v{VX+1}")
    a(f"s_lshl_b32 s{sXB}, s{sRB}, 2")
    a(f"s_add_u32 s{sXB}, s{sXB}, s{sJ}")
    a(f"s_mul_i32 s{sXB}, s{sXB}, 40960")
    a(f"s_lshr_b32 s{sT0}, s{sIDX}, 2")
    a(f"s_add_u32 s{sROT}, s{sT0}, s{sIDX}")
    a(f"s_and_b32 s{sROT}, s{sROT}, 3")
    a(f"s_add_u32 s{sM}, s{sRP}, s{sCP}")
    a(f"s_and_b32 s{sM}, s{sM}, 1")
    a(f"s_lshl_b32 s{sM}, s{sM}, 2")
    a(f"s_or_b32 s{sROT}, s{sROT}, s{sM}")
    def chunk_of(sd, srot, step):
        if "nostag" in EXP:
            a(f"s_and_b32 s{sd}, s{srot}, {7 if step < 8 else 1}")
            a(f"s_xor_b32 s{sd}, s{sd}, {step}")
            return
        m0_, x0 = (3, step) if step < 8 else (1, step)
        m1_, x1 = (1, 8 + step) if step < 2 else (7, step - 2)
        a(f"s_bitcmp1_b32 s{srot}, 2")
        a(f"s_cselect_b32 s{sd}, {m1_}, {m0_}")
        a(f"s_cselect_b32 s{sQ2}, {x1}, {x0}")
        a(f"s_and_b32 s{sd}, s{sd}, s{srot}")
        a(f"s_xor_b32 s{sd}, s{sd}, s{sQ2}")
    chunk_of(sSTEP, sROT, 0)
    a(f"s_lshl_b32 s{sM}, s{sJ}, 12")
    srd_init([SX, SWQ])
    def chunk_x(sc):
        a(f"s_mov_b32 m0, s{sM}")
        a(f"s_lshl_b32 s{sQ2}, s{sc}, 7")
        a(f"s_add_u32 s{sQ2}, s{sQ2}, s{sXB}")
        for i in range(4):
            a(f"buffer_load_dwordx4 v{VX+i}, {srd(SX)}, s{sQ2} offen offset:{1024*i} lds")
    def chunk_w(sc):
        a(f"s_add_u32 m0, s{sM}, 16384")
        a(f"s_mul_i32 s{sQ3}, s{sc}, {64*3840}")
        a(f"s_add_u32 s{sQ3}, s{sQ3}, s{sWB}")
        for hf in range(1):
            if hf:
                a(f"s_add_u32 m0, s{sM}, {16384+4096}")
                a(f"s_add_u32 s{sQ3}, s{sQ3}, {16*3840}")
            for i in (0, 1, 4, 2, 3):
                if i == 2: a(f"s_add_u32 m0, s{sM}, {16384+4096*hf}")
                if i == 4: a(f"s_add_u32 m0, s{sMW}, {1024*hf}")
                a(f"buffer_load_dwordx4 v{VW+i}, {srd(SWQ)}, s{sQ3} offen offset:{1024*(i&3)} lds")
    a(f"s_lshl_b32 s{sT1}, s{sCP}, 2")
    a(f"s_add_u32 s{sT1}, s{sT1}, s{sT0}")
    a(f"s_add_u32 s{sT1}, s{sT1}, 8")
    a(f"s_lshl_b32 s{sT0}, s{sT0}, 1")
    a(f"s_mul_i32 s{sT4}, s{sCP}, {2*Q0}")
    a(f"s_add_u32 s{sT0}, s{sT0}, s{sT4}")
    a(f"s_sub_u32 s{sT0}, s{sT0}, 8")
    a(f"s_cmp_ge_u32 s{sIDX}, 16")
    a(f"s_cselect_b32 s{sWB}, s{sT0}, s{sT1}")
    a(f"s_cselect_b32 s{sT4}, 10, 5")
    a(f"s_cselect_b32 s{sT5}, 4, 0x50")
    a(f"s_cselect_b32 s{sT6}, 1, 3")
    a(f"s_cselect_b32 s{sT7}, 2, 1")
    a(f"s_cselect_b32 s{sT0}, 1, 0x50")
    a(f"s_cselect_b32 s{sT1}, 8, 2")
    a(f"s_mulk_i32 s{sWB}, 160")
    a(f"s_mul_i32 s{sT2}, s{sJ}, {16*3840}")
    a(f"s_add_u32 s{sWB}, s{sWB}, s{sT2}")
    a(f"s_lshl_b32 s{sMW}, s{sJ}, 10")
    a(f"s_add_u32 s{sMW}, s{sMW}, 32768")
    a(f"v_lshrrev_b32 v14, 4, v{vL}")
    a(f"v_lshrrev_b32 v15, 1, v{vL}")
    a("v_xor_b32 v15, v15, v14")
    a(f"v_and_b32 v16, 1, v{vL}")
    a("v_mul_u32_u24 v14, 240, v14")
    a(f"v_mad_u32_u24 v14, v16, s{sT7}, v14")
    a("v_and_b32 v17, 1, v15")
    a(f"v_mad_u32_u24 v14, v17, s{sT6}, v14")
    a("v_bfe_u32 v17, v15, 1, 1")
    a(f"v_mad_u32_u24 v14, v17, s{sT5}, v14")
    a("v_bfe_u32 v17, v15, 2, 1")
    a(f"v_mad_u32_u24 v18, v17, s{sT4}, v14")
    a(f"v_lshlrev_b32 v{VW}, 4, v18")
    a(f"v_add_u32 v{VW+1}, {15360-1024}, v{VW}")
    a("v_xor_b32 v17, 1, v17")
    a(f"v_mad_u32_u24 v18, v17, s{sT4}, v14")
    a(f"v_lshlrev_b32 v18, 4, v18")
    a(f"v_add_u32 v{VW+2}, {30720-2048}, v18")
    a(f"v_add_u32 v{VW+3}, {46080-3072}, v18")
    a(f"v_lshrrev_b32 v14, 2, v{vL}")
    a("v_mul_u32_u24 v14, 240, v14")
    a(f"v_mad_u32_u24 v14, v16, s{sT0}, v14")
    a(f"v_lshrrev_b32 v17, 4, v{vL}")
    a(f"v_xor_b32 v17, v17, v{vL}")
    a("v_bfe_u32 v17, v17, 1, 1")
    a(f"v_mad_u32_u24 v14, v17, s{sT4}, v14")
    a(f"v_add_lshl_u32 v{VW+4}, v14, s{sT1}, 4")
    a("s_waitcnt lgkmcnt(0)")
    stamp(11)
    chunk_x(sSTEP)
    chunk_w(sSTEP)
    ka_rest()
    stamp(12)
    def issue(step):
        d = SLOT if step % 3 else (-2 * SLOT & 0xffffffff)
        a(f"s_add_u32 s{sM}, s{sM}, {d}")
        a(f"s_add_u32 s{sMW}, s{sMW}, {d}")
        chunk_of(sSTEP, sROT, step)
        if "nodma" in EXP and step >= 2: return
        chunk_x(sSTEP); chunk_w(sSTEP)
    bn = [1]
    def bar(n, nxt=None):
        a(f"s_waitcnt vmcnt({n}) lgkmcnt(0)")
        if "bst" in EXP and "pre" in EXP: stamp(bn[0], True)
        a("s_barrier")
        if "bst" in EXP and "pre" not in EXP: stamp(bn[0], True)
        bn[0] += 1
        if nxt is not None: issue(nxt)
    def g_setup():
        srd_init([SX, SH, SWS, SDBG, SOUT])
        a(f"s_mul_i32 s{sT7}, s{sRP}, 48")
        a(f"s_mul_i32 s{sT1}, s{sCP}, {G0}")
        a(f"s_add_u32 s{sT7}, s{sT7}, s{sT1}")
        a(f"s_add_u32 s{sT7}, s{sT7}, s{sIDX}")
        a(f"s_lshr_b32 s{sQUAD}, s{sT7}, 1")
        a(f"s_add_u32 s{sQUAD}, s{sQUAD}, 64")
        a(f"s_and_b32 s{sT1}, s{sIDX}, 1")
        a(f"s_lshl_b32 s{sT1}, s{sT1}, 1")
        a("s_waitcnt lgkmcnt(0)")
        conv_setup(sJ, sT1)
        s3_setup()
        wo_prep(vL16)
    sGS, sGO = 1, 0
    a("s_waitcnt lgkmcnt(0)")
    a(f"s_bfe_u32 s{sT0}, s{sIDX}, 0x20002")
    a(f"s_mul_i32 s{sT1}, s{sCP}, {Q0}")
    a(f"s_add_u32 s{sT0}, s{sT0}, s{sT1}")
    a(f"s_lshl_b32 s{sT0}, s{sT0}, 2")
    a(f"s_add_u32 s{sT0}, s{sT0}, s{sJ}")
    a(f"s_and_b32 s{sT2}, s{sIDX}, 3")
    a(f"s_lshl_b32 s{sT3}, s{sRP}, 2")
    a(f"s_add_u32 s{sT2}, s{sT2}, s{sT3}")
    a(f"s_lshl_b32 s{sGO}, s{sT2}, 4")
    a(f"s_add_u32 s{sGO}, s{sGO}, s{sT0}")
    a(f"s_cmp_ge_u32 s{sIDX}, 16")
    a(f"s_cselect_b32 s{sGS}, 1, 0")
    a(f"s_lshl_b32 s{sT0}, s{sT0}, 10")
    a(f"v_lshlrev_b32 v41, 4, v{vL}")
    srd_init([SGW])
    a(f"s_mov_b32 m0, {L_GW}")
    a(f"v_add_u32 v42, s{sT0}, v41")
    a(f"v_add_u32 v55, {2*SLOT}, v42")
    a(f"s_cmp_ge_u32 s{sIDX}, 16")
    a("s_cbranch_scc0 Lbng")
    a(f"buffer_load_dwordx4 v41, {srd(SGW)}, 0 offen lds")
    a(f"buffer_load_dwordx4 v41, {srd(SGW)}, 0 offen offset:1024 lds")
    a.label("Lbng")
    a(f"s_and_b32 s{sT1}, s{sJ}, 1")
    a(f"s_lshl_b32 s{sT1}, s{sT1}, 2")
    a(f"v_xor_b32 v43, s{sT1}, v2")
    a("v_lshlrev_b32 v43, 4, v43")
    a(f"v_add_u32 v43, {L_GW}, v43")
    a("v_mov_b32 v52, 0")
    a("v_mov_b32 v53, 0")
    g_setup()
    a("v_mov_b32 v44, 128")
    a("v_mov_b32 v45, 132")
    zero_pads(sJ)
    conv_dfrag()
    def gate(step):
        D = a.newlabel("Lg")
        a(f"s_cmp_eq_u32 s{sGS}, 0")
        a(f"s_cbranch_scc1 {D}")
        chunk_of(sT0, sROT, step)
        a(f"s_lshl_b32 s{sT0}, s{sT0}, 7")
        a(f"v_add_u32 v54, s{sT0}, v43")
        if step % 3 == 2: a("ds_read_b128 v[56:59], v55")
        else: a(f"ds_read_b128 v[56:59], v42 offset:{SLOT*(step%3)}")
        a("ds_read_b128 v[60:63], v54")
        a("s_waitcnt lgkmcnt(0)")
        for i in range(4): a(f"v_dot2c_f32_bf16 v{52+(i&1)}, v{56+i}, v{60+i}")
        a.label(D)
    if "bprio" in EXP: a("s_setprio 3")
    issue(1)
    for c in range(0, 8):
        bar(9)
        if c == 0: stamp(1)
        issue(c + 2)
        gate(c)
    a(f"s_mov_b32 s{sEPS}, 0x358637bd")
    a(f"s_sub_u32 s{sT1}, s{sCH}, s{sLC}")
    bar(9)
    a(f"buffer_load_dwordx2 v[46:47], v44, {srd(SDBG)}, 0 offen sc1")
    h_dma(sJ, sT1)
    gate(8)
    a("s_waitcnt vmcnt(3)")
    a("s_barrier")
    a("s_setprio 3")
    gate(9)
    a(f"s_cmp_eq_u32 s{sGS}, 0")
    a("s_cbranch_scc1 Lbg")
    a("v_add_f32 v52, v52, v53")
    for ctl in ("quad_perm:[1,0,3,2]", "quad_perm:[2,3,0,1]", "row_half_mirror"):
        a(f"v_add_f32_dpp v52, v52, v52 {ctl} row_mask:0xf bank_mask:0xf")
    a(f"v_mul_f32 v52, 0xbfb8aa3b, v52")
    a(f"v_exp_f32 v52, v52")
    a(f"v_lshrrev_b32 v53, 1, v{vL}")
    a(f"v_add_f32 v52, 1.0, v52")
    a(f"v_rcp_f32 v52, v52")
    a(f"s_lshl_b32 s{sT0}, s{sGO}, 5")
    a(f"s_add_u32 s{sT0}, s{sT0}, {WS_G}")
    a("s_mov_b32 exec_lo, 0x01010101")
    a("s_mov_b32 exec_hi, 0x01010101")
    a(f"buffer_store_dword v52, v53, {srd(SWS)}, s{sT0} offen sc1")
    a("s_mov_b64 exec, -1")
    a.label("Lbg")
    a("s_setprio 0")
    a("s_waitcnt vmcnt(2)")
    poll(45, 47, "landed", S=SDBG)
    stamp(2)
    a(f"v_mov_b32 v48, {L_CNT+8}")
    a(f"v_readfirstlane_b32 s{sUD}, v46")
    wl = wo_list(vL16)
    a(f"s_cmp_eq_u32 s{sUD}, 0")
    a("s_cbranch_scc1 Lbl1")
    u_dma(sJ, 4)
    for x in wl[:8]: a(x)
    a("s_branch Lbl1b")
    a.label("Lbl1")
    cnt_load(SDBG, 44, 46)
    for x in wl[:8]: a(x)
    a("s_waitcnt vmcnt(8)")
    a(f"v_readfirstlane_b32 s{sUD}, v46")
    a(f"s_cmp_eq_u32 s{sUD}, 0")
    a("s_cbranch_scc1 Lbl1b")
    u_dma(sJ, 4)
    a.label("Lbl1b")
    for x in wl[8:16]: a(x)
    a(f"s_cmp_lg_u32 s{sUD}, 0")
    a("s_cbranch_scc1 Lbl2")
    cnt_load(SDBG, 44, 46)
    a.label("Lbl2")
    for x in wl[16:]: a(x)
    x_loads()
    a("s_waitcnt vmcnt(11)")
    a(f"s_cmp_lg_u32 s{sUD}, 0")
    a("s_cbranch_scc1 Lbl3")
    a(f"v_readfirstlane_b32 s{sT0}, v46")
    a(f"s_cmp_eq_u32 s{sT0}, 0")
    a("s_cbranch_scc1 Lbl4")
    u_dma(sJ, 4)
    a("s_barrier")
    a("s_branch Lbl5")
    a.label("Lbl4")
    a("s_barrier")
    poll(44, 46, S=SDBG)
    u_dma(sJ, 4)
    a.label("Lbl5")
    a("s_waitcnt vmcnt(0)")
    lds_arrive(48, 49)
    a("s_branch Lbl6")
    a.label("Lbl3")
    lds_arrive(48, 49)
    a("s_barrier")
    a.label("Lbl6")
    lds_wait(48, 49, 4)
    stamp(3)
    a("s_branch Lconv")

def ctype():
    a.label("Lctype")
    ka_rest()
    common_scalars()
    a(f"s_mov_b32 s{sQUAD}, s{sCI}")
    a(f"s_cmp_ge_u32 s{sW}, 6")
    a("s_cbranch_scc1 Lcaux")
    a(f"s_mov_b32 s{sTB}, s{sCI}")
    a(f"s_mov_b32 s{sCHB}, s{sW}")
    s0_loads()
    srd_init([SWS])
    a(f"s_cmp_ge_u32 s{sW}, {4-NQ}")
    a("s_cbranch_scc1 Lc1")
    a(f"s_add_u32 s{sCHB}, s{sW}, 6")
    s0_loads(28, False)
    a(f"s_mov_b32 s{sCHB}, s{sW}")
    a.label("Lc1")
    a.label("Lcs0")
    a(f"s_mul_i32 s{sT2}, s{sW}, 4608")
    a(f"s_add_u32 s{sT2}, s{sT2}, {L_S0C}")
    s0_addr(sT2)
    a(f"s_cmp_lt_u32 s{sW}, {4-NQ}")
    a("s_cbranch_scc1 Lc2")
    a("s_waitcnt vmcnt(0)")
    a.label("Lc2")
    a("s_waitcnt vmcnt(15)")
    s0_compute()
    stamp(1)
    a(f"s_cmp_ge_u32 s{sW}, {4-NQ}")
    a("s_cbranch_scc1 Lcjoin")
    a(f"s_add_u32 s{sCHB}, s{sW}, 6")
    s0_addr(sT2)
    a("s_waitcnt vmcnt(4)")
    s0_compute(LB=28)
    a("s_branch Lcjoin")

    a.label("Lcaux")
    a("s_setprio 3")
    srd_init([SWO, SWS, SDBG])
    a(f"s_sub_u32 s{sUD}, s{sW}, 6")
    a(f"s_lshl_b32 s{sVAR}, s{sCI}, 1")
    a(f"s_add_u32 s{sVAR}, s{sVAR}, s{sUD}")
    for i in range(4): a(f"v_mov_b32 v{52+i}, 0")
    a(f"v_lshlrev_b32 v15, 3, v{vL}")
    a(f"s_lshl_b32 s{sT0}, s{sVAR}, 9")
    a(f"s_add_u32 s{sT0}, s{sT0}, {WS_KV}")
    a("s_waitcnt lgkmcnt(0)")
    a(f"buffer_store_dwordx2 v[52:53], v15, {srd(SWS)}, s{sT0} offen sc1")
    a(f"s_mul_i32 s{sT0}, s{sVAR}, 768")
    a(f"s_add_u32 s{sT0}, s{sT0}, {WS_C}")
    a(f"v_lshlrev_b32 v16, 8, v{vL}")
    a("s_mov_b64 exec, 7")
    a(f"buffer_store_dword v52, v16, {srd(SWS)}, s{sT0} offen sc1")
    a("s_mov_b64 exec, -1")
    a.label("Lcrp")
    sKQ, sF, sCGR = sCHL, sCH, sJ
    a(f"s_lshr_b32 s{sT0}, s{sVAR}, 2")
    a(f"s_and_b32 s{sCGR}, s{sVAR}, 3")
    a(f"s_mul_i32 s{sKQ}, s{sT0}, 52")
    a(f"s_lshr_b32 s{sKQ}, s{sKQ}, 8")
    a(f"s_mul_i32 s{sT1}, s{sKQ}, 5")
    a(f"s_sub_u32 s{sF}, s{sT0}, s{sT1}")
    a(f"s_mul_i32 s{sT0}, s{sF}, 20")
    a(f"s_cmp_eq_u32 s{sF}, 4")
    a(f"s_cselect_b32 s{sT0}, 16, s{sT0}")
    a(f"s_cselect_b32 s{sT2}, 16, 0")
    a(f"s_mul_i32 s{sT1}, s{sKQ}, 80")
    a(f"s_add_u32 s{sT0}, s{sT0}, s{sT1}")
    a(f"s_mul_i32 s{sT0}, s{sT0}, 1280")
    a(f"s_mul_i32 s{sT1}, s{sCGR}, 320")
    a(f"s_add_u32 s{sT0}, s{sT0}, s{sT1}")
    a(f"s_lshr_b32 s{sT3}, s{sVAR}, 7")
    a(f"s_lshl_b32 s{sT3}, s{sT3}, 1")
    a(f"s_add_u32 s{sT3}, s{sT3}, s{sUD}")
    a(f"s_mul_i32 s{sT3}, s{sT3}, 5120")
    a(f"s_add_u32 s{sT3}, s{sT3}, {L_RPC}")
    a("s_waitcnt lgkmcnt(0)")
    for i in range(5):
        a(f"v_add_u32 v14, {64*i}, v{vL}")
        div20(15, 16, 14)
        a("v_lshrrev_b32 v17, 2, v15")
        a(f"v_mad_u32_u24 v15, v17, s{sT2}, v15")
        a("v_mul_u32_u24 v15, 1280, v15")
        a("v_lshl_add_u32 v15, v16, 4, v15")
        a(f"s_add_u32 m0, s{sT3}, {1024*i}")
        a(f"buffer_load_dwordx4 v15, {srd(SWO)}, s{sT0} offen lds")
    a(f"s_add_u32 s{sVAR}, s{sVAR}, 128")
    a(f"s_cmp_lt_u32 s{sVAR}, 160")
    a("s_cbranch_scc1 Lcrp")
    a(f"s_and_b32 s{sVAR}, s{sVAR}, 127")
    a("s_waitcnt vmcnt(0)")
    a.label("Lcrp2")
    sKQ, sF, sCGR = sCHL, sCH, sJ
    a(f"s_lshr_b32 s{sT0}, s{sVAR}, 2")
    a(f"s_and_b32 s{sCGR}, s{sVAR}, 3")
    a(f"s_mul_i32 s{sKQ}, s{sT0}, 52")
    a(f"s_lshr_b32 s{sKQ}, s{sKQ}, 8")
    a(f"s_mul_i32 s{sT1}, s{sKQ}, 5")
    a(f"s_sub_u32 s{sF}, s{sT0}, s{sT1}")
    a(f"s_lshr_b32 s{sT3}, s{sVAR}, 7")
    a(f"s_lshl_b32 s{sT3}, s{sT3}, 1")
    a(f"s_add_u32 s{sT3}, s{sT3}, s{sUD}")
    a(f"s_mul_i32 s{sT3}, s{sT3}, 5120")
    a(f"s_add_u32 s{sT3}, s{sT3}, {L_RPC}")
    a(f"v_lshrrev_b32 v14, 5, v{vL}")
    a(f"v_bfe_u32 v15, v{vL}, 2, 2")
    a("v_lshl_add_u32 v14, v14, 2, v15")
    a("v_mul_u32_u24 v14, 320, v14")
    a(f"v_bfe_u32 v15, v{vL}, 4, 1")
    a("v_lshl_add_u32 v14, v15, 5, v14")
    a(f"v_and_b32 v15, 3, v{vL}")
    a("v_lshl_add_u32 v14, v15, 3, v14")
    a(f"v_add_u32 v14, s{sT3}, v14")
    a(f"s_mul_i32 s{sT0}, s{sKQ}, 5")
    a(f"s_add_u32 s{sT0}, s{sT0}, s{sF}")
    a(f"s_cmp_ge_u32 s{sKQ}, 5")
    a(f"s_cselect_b32 s{sT1}, 0x4b, 0")
    a(f"s_mov_b32 s{sT2}, 25")
    a(f"s_add_u32 s{sT0}, s{sT0}, s{sT1}")
    a(f"s_mul_i32 s{sT1}, s{sCGR}, 200")
    a(f"s_add_u32 s{sT0}, s{sT0}, s{sT1}")
    a(f"s_lshl_b32 s{sT0}, s{sT0}, 10")
    a(f"s_add_u32 s{sT0}, s{sT0}, {WS_WOP}")
    a(f"s_lshl_b32 s{sT2}, s{sT2}, 10")
    a(f"s_lshr_b32 s{sT4}, s{sKQ}, 1")
    a(f"s_mul_i32 s{sT4}, s{sT4}, 25")
    a(f"s_and_b32 s{sT5}, s{sKQ}, 1")
    a(f"s_mul_i32 s{sT5}, s{sT5}, 5")
    a(f"s_add_u32 s{sT4}, s{sT4}, s{sT5}")
    a(f"s_add_u32 s{sT4}, s{sT4}, s{sF}")
    a(f"s_add_u32 s{sT4}, s{sT4}, s{sT1}")
    a(f"s_add_u32 s{sT4}, s{sT4}, 115")
    a(f"s_lshl_b32 s{sT4}, s{sT4}, 10")
    a(f"s_add_u32 s{sT4}, s{sT4}, {WS_WOP}")
    a(f"v_lshlrev_b32 v15, 4, v{vL}")
    for t in range(5):
        for jh in range(2): a(f"ds_read_b64_tr_b16 {vr(32+4*t+2*jh,2)}, v14 offset:{jh*2560+t*64}")
    a("s_waitcnt lgkmcnt(0)")
    for t in range(4):
        a(f"buffer_store_dwordx4 {vr(32+4*t,4)}, v15, {srd(SWS)}, s{sT0} offen sc1")
        a(f"s_add_u32 s{sT0}, s{sT0}, s{sT2}")
    a(f"buffer_store_dwordx4 {vr(48,4)}, v15, {srd(SWS)}, s{sT4} offen sc1")
    a(f"s_add_u32 s{sVAR}, s{sVAR}, 128")
    a(f"s_cmp_lt_u32 s{sVAR}, 160")
    a("s_cbranch_scc1 Lcrp2")
    a("v_mov_b32 v60, 0")
    a("s_waitcnt vmcnt(0)")
    darr_issue(60, 61, 4)
    a("s_setprio 0")
    srd_init([SX, SH, SOUT])
    zero_pads(sW)
    a(f"s_mov_b32 s{sT1}, 0")
    conv_setup(sW, sT1)
    s3_setup()
    wo_prep(vL16)
    darr_finish(60, 61, 4, 128)
    stamp(1)
    a("s_barrier")
    a(f"s_cmp_lg_u32 s{sW}, 7")
    a("s_cbranch_scc1 Lc7")
    a("s_setprio 3")
    darr_issue(60, 61, 0)
    a(f"s_lshl_b32 s{sT1}, s{sCI}, 2")
    h_dma(sW, sT1)
    conv_dfrag()
    darr_finish(60, 61, 0, NU, 2)
    a(f"v_and_b32 v44, 1, v{vL}")
    a("v_lshl_add_u32 v44, v44, 2, 64")
    a("v_add_u32 v44, 64, v44")
    poll(44, 46, S=SDBG)
    stamp(11)
    a(f"s_lshl_b32 s{sT5}, s{sQUAD}, 14")
    if WOFF: a(f"s_add_u32 s{sT5}, s{sT5}, {WOFF}")
    for q in range(4):
        a(f"s_mov_b32 m0, {L_UD + 4096*q}")
        for i in range(4): a(f"buffer_load_dwordx4 v{vL16}, {srd(SWS)}, s{sT5} offen offset:{1024*i} sc1 lds")
        if q < 3: a(f"s_add_u32 s{sT5}, s{sT5}, 4096")
    a("s_branch Lc8")

    a.label("Lcjoin")
    srd_init([SX, SH, SDBG, SOUT])
    a("s_waitcnt vmcnt(0)")
    stamp(2)
    a("s_barrier")
    zero_pads(sW)
    a(f"s_mov_b32 s{sT1}, 0")
    conv_setup(sW, sT1)
    s3_setup()
    wo_prep(vL16)
    a.label("Lc7")
    a(f"s_lshl_b32 s{sT1}, s{sCI}, 2")
    h_dma(sW, sT1)
    conv_dfrag()
    a.label("Lc8")
    a("s_waitcnt vmcnt(0) lgkmcnt(0)")
    stamp(12)
    a("s_barrier")
    stamp(3)
    a("s_setprio 2")
    a(f"s_cmp_lt_u32 s{sW}, 4")
    a("s_cbranch_scc1 Lconv2")
    a("s_setprio 0")
    for x in wo_list(vL16): a(x)
    x_loads()

def conv_body(tiles):
    seq = []
    for b in range(4):
        if tiles[0] == 0:
            for aa in range(8):
                for ti in (3, 2):
                    d = tiles[ti] - aa
                    if d >= 0:
                        seq.append((ti, ("H", 4 * aa + b, 0), ("U", 4 * d - b)))
                        if b == 0 and aa == 0: seq.append((ti, ("D",), ("U", 4 * d)))
                if aa == 5:
                    seq.append((1, ("H", b, 1), ("U", 4 - b)))
                    if b == 0: seq.append((1, ("D",), ("U", 4)))
                if aa == 6:
                    seq.append((0, ("H", b, 1), ("U", -b)))
                    if b == 0: seq.append((0, ("D",), ("U", 0)))
                    seq.append((1, ("H", 4 + b, 1), ("U", -b)))
        else:
            for aa in range(6):
                for ti in (3, 2, 1, 0):
                    d = tiles[ti] - aa
                    if d >= 0:
                        seq.append((ti, ("H", 4 * aa + b, 0), ("U", 4 * d - b)))
                        if b == 0 and aa == 0: seq.append((ti, ("D",), ("U", 4 * d)))
    assert len(seq) == 76
    last = {}; order = []
    for i, (ti, h, u) in enumerate(seq):
        for k in (u, h):
            if k[0] == "D": continue
            if k not in last: order.append(k)
            last[k] = i
    free = list(range(NPOOL))
    where = {}; done_at = {}
    nds = [0]; li = [0]
    def issue(maxn):
        n = 0
        while li[0] < len(order) and free and n < maxn:
            k = order[li[0]]; li[0] += 1
            bfr = free.pop(0); where[k] = bfr
            r = CPOOL + 4 * bfr
            if k[0] == "U":
                a(f"ds_read_b128 {vr(r,4)}, v{vUo if k[1]&1 else vUe} offset:{(k[1]+3)*512}")
                nds[0] += 1; n += 1
            else:
                a(f"ds_read_b64_tr_b16 {vr(r,2)}, v{vH} offset:{128*k[1]+32}")
                a(f"ds_read_b64_tr_b16 {vr(r+2,2)}, v{vH} offset:{128*k[1]}")
                nds[0] += 2; n += 2
            done_at[k] = nds[0]
    issue(10)
    started = set(); known = 0
    wl = wo_list(vL16); wi = 25 if "delayconv" in EXP else 0
    for i, (ti, h, u) in enumerate(seq):
        needn = max(done_at[k] for k in (u, h) if k[0] != "D")
        if needn > known:
            cnt = min(nds[0] - needn, 15)
            a(f"s_waitcnt lgkmcnt({cnt})")
            known = nds[0] - cnt
        d = vr(CACC + 16 * ti, 16)
        hb = CD if h[0] == "D" else CPOOL + 4 * where[h]
        a(f"v_mfma_f32_32x32x16_bf16 {d}, {vr(CPOOL+4*where[u],4)}, {vr(hb,4)}, {d if ti in started else '0'}")
        started.add(ti)
        for k in (u, h):
            if k[0] != "D" and last[k] == i: free.append(where[k])
        issue(2)

def conv_epi(var):
    runs = [[*range(0, 8)], [*range(8, 16)]] if var == 0 else [[*range(16)]]
    out_g = 7 if var == 0 else 15
    in_g = 8 if var == 0 else 0
    SPL = 96
    a(f"buffer_load_dword v{vFT}, v{vFK}, {srd(SWS)}, 0 offen sc1")
    a("s_nop 7")
    a("s_nop 3")
    for step in (2, 1, 0):
        a("s_mov_b32 exec_lo, 0")
        a("s_mov_b32 exec_hi, 0x80000000")
        a(f"v_mov_b32 v{SPL+step}, v{CACC+4*out_g+step+1}")
        for run in runs:
            for g in reversed(run):
                src = f"v{CACC+4*(g-1)+step+1}" if g != run[0] else "0"
                a(f"v_mov_b32 v{CACC+4*g+step+1}, {src}")
        if step == 0:
            a(f"ds_write_b96 v{vCS}, {vr(SPL,3)}")
            a("v_mov_b32 v100, 1")
            a(f"ds_add_u32 v{vCN}, v100")
        a("s_mov_b64 exec, -1")
        for g in reversed(range(16)):
            r = CACC + 4 * g + step
            a(f"v_add_f32_dpp v{r}, v{r+1}, v{r} wave_ror:1 row_mask:0xf bank_mask:0xf")
    a(f"v_xor_b32 v101, 16, v{vCS}")
    a(f"v_lshl_add_u32 v101, v{vL}, 2, v101")
    PK = 104
    other = [k for k in range(8) if k != in_g // 2]
    for k in other: a(f"v_cvt_pk_bf16_f32 v{PK+k}, v{CACC+8*k}, v{CACC+8*k+4}")
    oh = 1 - in_g // 8
    a(f"ds_write_b128 v{vCW}, {vr(PK+4*oh,4)} offset:{1024*oh}")
    lds_wait(vCN, 100, 2)
    a("s_mov_b64 exec, 7")
    a("ds_read_b32 v100, v101")
    a("s_waitcnt lgkmcnt(0)")
    a(f"v_add_f32 v{CACC+4*in_g}, v{CACC+4*in_g}, v100")
    a("s_mov_b64 exec, -1")
    k = in_g // 2
    a(f"v_cvt_pk_bf16_f32 v{PK+k}, v{CACC+8*k}, v{CACC+8*k+4}")
    a(f"ds_write_b128 v{vCW}, {vr(PK+4*(1-oh),4)} offset:{1024*(1-oh)}")
    T0, T1 = (0, 6) if var == 0 else (2, 4)
    a(f"s_lshl_b32 s{sT5}, s{sCH}, 6")
    a(f"s_add_u32 s{sT4}, s{sT5}, {WS_Y + T0*8*40960}")
    a(f"s_add_u32 s{sT5}, s{sT5}, {WS_Y + T1*8*40960}")
    a(f"s_lshr_b32 s{sT6}, s{sCH}, 5")
    a(f"s_lshl_b32 s{sT6}, s{sT6}, 8")
    a(f"s_add_u32 s{sT6}, s{sT6}, {WS_FY + var*20*256}")

def conv():
    a.label("Lconv")
    a("s_setprio 1")
    a.label("Lconv2")
    a(f"s_cmp_eq_u32 s{sVAR}, 1")
    a("s_cbranch_scc1 Lconvy")
    conv_body([0, 1, 6, 7])
    stamp(4)
    conv_epi(0)
    a("s_branch Lconve")
    a.label("Lconvy")
    conv_body([2, 3, 4, 5])
    stamp(4)
    conv_epi(1)
    a.label("Lconve")
    for n in range(2):
        a(f"ds_read_b64_tr_b16 {vr(136+4*n,2)}, v{vCT} offset:{1024*n}")
        a(f"ds_read_b64_tr_b16 {vr(138+4*n,2)}, v{vCT} offset:{1024*n+64}")
    arr_prep(152, 153)
    for n in range(2):
        a(f"s_waitcnt lgkmcnt({2-2*n})")
        a(f"buffer_store_dwordx4 {vr(136+4*n,4)}, v{vCY}, {srd(SWS)}, s{sT5 if n else sT4} offen sc1")
    stamp(13)
    a(f"s_cmp_ge_u32 s{sW}, 4")
    a("s_cbranch_scc1 Ls3b")
    a("s_setprio 0")
    a(f"s_mov_b32 s{sUD}, 2")
    a("s_branch Ls3c")

def s3():
    a.label("Ls3")
    a.c("S3")
    PQ, RAW, KF = 32, 52, 116
    plan = []
    for i in range(4):
        for st in range(2):
            for jh in range(2):
                du0 = 4 * (i + st) + 2 * jh - 5 * i
                plan.append((i, st, jh, du0, 0 <= du0 <= 4, 0 <= du0 + 1 <= 4))
    sPD = sT2
    def fl(): a(f"buffer_load_dword v{vFT}, v{vFK}, {srd(SWS)}, 0 offen sc1")
    def pql():
        for f in range(4): a(f"buffer_load_dwordx4 {vr(PQ+4*f,4)}, v{vL16}, {srd(SWS)}, s{sPQO} offen offset:{1024*f} sc1")
        a(f"buffer_load_dwordx4 {vr(PQ+16,4)}, v{vL16}, {srd(SWS)}, s{sT1} offen sc1")
    def pre():
        for (i, st, jh, du0, v0ok, v1ok) in plan:
            if v0ok != v1ok:
                for j in range(4): a(f"v_mov_b32 v{RAW+16*i+8*st+4*jh+j}, 0")
        a(f"s_add_u32 s{sT1}, s{sPQO}, 4096")
        a(f"s_add_u32 s{sT3}, s{sKVO}, {2*KVH}")
        a(f"s_mov_b32 s{sPD}, 0")
        a(f"s_mov_b32 s{sCNT}, 0x40000")
    wl = wo_list(vL16)
    a(f"s_mov_b32 s{sUD}, 0")
    a.label("Ls3c")
    for x in wl[:N1-5]: a(x)
    fl()
    for x in wl[N1-5:N1]: a(x)
    x_loads()
    a("s_setprio 1")
    pre()
    a("s_waitcnt vmcnt(7)")
    a("s_branch Ls3lq")
    a.label("Ls3b")
    pre()
    a(f"s_mov_b32 s{sUD}, 2")
    a("s_waitcnt vmcnt(2)")
    a("s_branch Ls3ev")
    a.label("Ls3sl")
    a("s_sleep 2")
    a.label("Ls3lp")
    fl()
    a("s_waitcnt vmcnt(0)")
    a.label("Ls3lq")
    a(f"s_cmp_eq_u32 s{sUD}, 0")
    a("s_cbranch_scc1 Ls3ev")
    a(f"s_sub_u32 s{sUD}, s{sUD}, 1")
    a(f"s_cmp_eq_u32 s{sUD}, 0")
    a("s_cbranch_scc1 Ls3af")
    arr_issue(152, 153, f"s{sT6}")
    a("s_branch Ls3ev")
    a.label("Ls3af")
    arr_finish(152, 153, f"s{sT6}", 32)
    a.label("Ls3ev")
    a(f"v_cmp_ne_u32 vcc, s{sTAG}, v{vFT}")
    a(f"s_sub_u32 s{sCNT}, s{sCNT}, 1")
    a("s_cbranch_scc1 Ls3go")
    a(f"s_cmp_lg_u32 s{sPD}, 0")
    a("s_cbranch_scc1 Ls3k")
    a("s_bitcmp1_b32 vcc_lo, 0")
    a("s_cbranch_scc1 Ls3sl")
    pql()
    a(f"s_mov_b32 s{sPD}, 1")
    a(f"v_readlane_b32 s{sT0}, v{vFK}, 1")
    a(f"v_mov_b32 v{vFK}, s{sT0}")
    a.label("Ls3k")
    a("s_cmp_lg_u32 vcc_hi, 0")
    a("s_cbranch_scc1 Ls3sl")
    a.label("Ls3go")
    a(f"s_cmp_lg_u32 s{sUD}, 2")
    a("s_cbranch_scc1 Ls3n2")
    a("s_waitcnt vmcnt(5)")
    arr_issue(152, 153, f"s{sT6}")
    a.label("Ls3n2")
    stamp(6)
    nload = [0] * 4
    for (i, st, jh, du0, v0ok, v1ok) in plan:
        if not (v0ok or v1ok): continue
        off = (i & 1) * KVH + du0 * 336
        part = v0ok != v1ok
        if part: a(f"s_mov_b32 exec_{'hi' if v0ok else 'lo'}, 0")
        a(f"buffer_load_dwordx4 {vr(RAW+16*i+8*st+4*jh,4)}, v{vKO if i&1 else vKE}, {srd(SWS)}, s{sT3 if i>>1 else sKVO} offen offset:{off} sc1")
        if part: a("s_mov_b64 exec, -1")
        nload[i] += 1
    a(f"s_cmp_eq_u32 s{sUD}, 0")
    a("s_cbranch_scc1 Ls3n4")
    arr_finish(152, 153, f"s{sT6}", 32, 12)
    a.label("Ls3n4")
    rem = sum(nload)
    for i in range(4):
        rem -= nload[i]
        a(f"s_waitcnt vmcnt({rem})")
        kf = KF + 8 * (i & 1)
        for (i2, st, jh, du0, v0ok, v1ok) in plan:
            if i2 != i: continue
            for j in range(2):
                d = kf + 4 * st + 2 * jh + j; s = RAW + 16 * i + 8 * st + 4 * jh + 2 * j
                if v0ok or v1ok: a(f"v_cvt_pk_bf16_f32 v{d}, v{s}, v{s+1}")
                else: a(f"v_mov_b32 v{d}, 0")
        d = vr(RAW + 16 * i, 16)
        a(f"v_mfma_f32_32x32x16_bf16 {d}, {vr(kf,4)}, {vr(PQ+4*i,4)}, 0")
        a(f"v_mfma_f32_32x32x16_bf16 {d}, {vr(kf+4,4)}, {vr(PQ+4*i+4,4)}, {d}")
    if "sx" in EXP: stamp(11)
    OF = 132
    for i in range(4):
        D = RAW + 16 * i
        a(f"v_add_f32 v{D+12}, s{sEPS}, v{D+12}")
        a(f"v_rcp_f32 v{D+12}, v{D+12}")
        for j in range(8): a(f"v_mul_f32 v{D+j}, v{D+j}, v{D+12}")
        for j in range(4): a(f"v_cvt_pk_bf16_f32 v{OF+4*i+j}, v{D+2*j}, v{D+2*j+1}")
        a(f"ds_write_b128 v{vOW}, {vr(OF+4*i,4)} offset:{1024*i}")
        if i & 1 == 0:
            for j in range(4): a(f"v_mul_f32 v{D+8+j}, v{D+8+j}, v{D+12}")
        else:
            for j in range(4): a(f"v_fmac_f32 v{D-8+j}, v{D+8+j}, v{D+12}")
            for j in range(2): a(f"v_cvt_pk_bf16_f32 v{OF+16+2*(i>>1)+j}, v{D-8+2*j}, v{D-8+2*j+1}")
    a(f"ds_write_b128 v{vOW}, {vr(OF+16,4)} offset:4096")
    a(f"s_mov_b32 s{sT0}, 0xffff0000")
    a(f"s_cmp_lt_u32 s{sW}, 4")
    a("s_cbranch_scc1 Llate")
    NB = 8; POOL = 32; AP, AR = 64, 80
    XF, YR, YF = 96, 112, 120
    def gemm(early):
        def ord_(i):
            if not early: return (vPR, 1024 * i)
            return (vPR, 1024 * (25 + i)) if i < 15 else (vRR, 1024 * (i - 15))
        for i in range(NB):
            v, o = ord_(i); a(f"ds_read_b128 {vr(POOL+4*i,4)}, v{v} offset:{o}")
        pre = []
        if not early:
            for x in wl[N1:]: a(x)
            for xd in (vXD, vXD2):
                pre.append(f"v_permlane32_swap_b32 v{xd}, v{xd+2}")
                pre.append(f"v_permlane32_swap_b32 v{xd+1}, v{xd+3}")
            for n, xd in enumerate((vXD, vXD2)):
                for j in range(4):
                    pre.append(f"v_lshlrev_b32 v{XF+8*n+2*j}, 16, v{xd+j}")
                    pre.append(f"v_and_b32 v{XF+8*n+2*j+1}, s{sT0}, v{xd+j}")
        issued = NB
        log = list(range(NB))
        for i in range(25):
            pos = log.index(i)
            w = f"s_waitcnt lgkmcnt({min(len(log)-1-pos,15)})"
            if not early and i >= N1: w = f"s_waitcnt vmcnt({24-i}) lgkmcnt({min(len(log)-1-pos,15)})"
            a(w)
            d = vr(AR if (early and i >= 15) else AP, 16)
            a(f"v_mfma_f32_32x32x16_bf16 {d}, {vr(VWO+4*i,4)}, {vr(POOL+4*(i%NB),4)}, {'0' if i == 0 or (early and i == 15) else d}")
            if issued < 25:
                v, o = ord_(issued); a(f"ds_read_b128 {vr(POOL+4*(issued%NB),4)}, v{v} offset:{o}"); log.append(issued); issued += 1
            for x in pre[2 * i:2 * i + 2]: a(x)
            if early and i == 12: a(f"buffer_load_dword v{vFT}, v{vFY}, {srd(SWS)}, 0 offen sc1")
            if early and 19 <= i < 23:
                q = i - 19
                a(f"ds_write_b128 v{vPW}, {vr(AP+4*q,4)} offset:{1024*q}"); log.append(-1)
    osfx = (" sc1" if "osc1" in EXP else "")
    a("s_setprio 2")
    a("s_waitcnt lgkmcnt(0)")
    if "sx" in EXP: stamp(12)
    a("s_barrier")
    stamp(7)
    a(f"buffer_load_dword v{vG}, v{vGO}, {srd(SWS)}, 0 offen sc1")
    gemm(True)
    poll(vFY, vFT, "issued", sleep=1)
    stamp(5)
    a(f"s_add_u32 m0, s{sYM}, {L_YT}")
    a(f"s_add_u32 s{sT1}, s{sYO}, s{sYM}")
    a(f"buffer_load_dwordx4 v{vL16}, {srd(SWS)}, s{sT1} offen sc1 lds")
    a(f"buffer_load_dwordx4 v{vL16}, {srd(SWS)}, s{sT1} offen offset:1024 sc1 lds")
    a(f"s_lshr_b32 s{sT2}, s{sYM}, 2")
    a(f"s_add_u32 s{sT2}, s{sT2}, 8192")
    a(f"s_add_u32 m0, s{sT2}, {L_YT}")
    a(f"s_add_u32 s{sT1}, s{sYO}, s{sT2}")
    a("s_mov_b32 exec_hi, 0")
    a(f"buffer_load_dwordx4 v{vL16}, {srd(SWS)}, s{sT1} offen sc1 lds")
    a("s_mov_b32 exec_hi, -1")
    for q in range(4): a(f"ds_write_b128 v{vPW}, {vr(AR+4*q,4)} offset:{16384+1024*q}")
    for j in range(2):
        a(f"v_lshlrev_b32 v{XF+2*j}, 16, v{vXD+j}")
        a(f"v_and_b32 v{XF+2*j+1}, s{sT0}, v{vXD+j}")
    a("s_waitcnt vmcnt(0) lgkmcnt(0)")
    a("s_barrier")
    stamp(8)
    for p in range(4): a(f"ds_read_b128 {vr(32+4*p,4)}, v{vPA} offset:{4096*p}")
    a(f"ds_read_b64_tr_b16 {vr(YR,2)}, v{vYT}")
    a("s_waitcnt lgkmcnt(1)")
    for j in range(2): a(f"v_pk_add_f32 {vr(32+2*j,2)}, {vr(32+2*j,2)}, {vr(36+2*j,2)}")
    for j in range(2): a(f"v_pk_add_f32 {vr(40+2*j,2)}, {vr(40+2*j,2)}, {vr(44+2*j,2)}")
    for j in range(2): a(f"v_pk_add_f32 {vr(32+2*j,2)}, {vr(32+2*j,2)}, {vr(40+2*j,2)}")
    def fin(R, n):
        a("s_waitcnt lgkmcnt(0)")
        for j in range(n):
            a(f"v_lshlrev_b32 v{YF+2*j}, 16, v{YR+j}")
            a(f"v_and_b32 v{YF+2*j+1}, s{sT0}, v{YR+j}")
        for j in range(n): a(f"v_pk_mul_f32 {vr(XF+2*j,2)}, {vr(XF+2*j,2)}, {vr(YF+2*j,2)}")
        for j in range(n): a(f"v_pk_add_f32 {vr(R+2*j,2)}, {vr(R+2*j,2)}, {vr(XF+2*j,2)} neg_lo:[0,1] neg_hi:[0,1]")
        for j in range(n): a(f"v_pk_fma_f32 {vr(R+2*j,2)}, {vr(R+2*j,2)}, {vr(vG,2)}, {vr(XF+2*j,2)} op_sel_hi:[1,0,1]")
        for j in range(n): a(f"v_cvt_pk_bf16_f32 v{YR+j}, v{R+2*j}, v{R+2*j+1}")
    fin(32, 2)
    a(f"buffer_store_dwordx2 {vr(YR,2)}, v{vOUT}, {srd(SOUT)}, s{sXOFF} offen" + osfx)
    a("s_branch Lfin")
    a.label("Llate")
    a("s_setprio 1")
    a("s_waitcnt lgkmcnt(0)")
    if "sx" in EXP: stamp(12)
    a("s_barrier")
    stamp(7)
    a(f"buffer_load_dword v{vG}, v{vGO}, {srd(SWS)}, 0 offen sc1")
    gemm(False)
    a("s_barrier")
    stamp(8)
    for q in range(4): a(f"ds_read_b128 {vr(32+4*q,4)}, v{vPW} offset:{1024*q}")
    for q in range(4): a(f"ds_read_b64_tr_b16 {vr(YR+2*q,2)}, v{vYT} offset:{512*q}")
    a("s_waitcnt lgkmcnt(4)")
    for j in range(8): a(f"v_pk_add_f32 {vr(AP+2*j,2)}, {vr(AP+2*j,2)}, {vr(32+2*j,2)}")
    fin(AP, 8)
    for h in range(2):
        a(f"v_permlane32_swap_b32 v{YR+4*h}, v{YR+4*h+2}")
        a(f"v_permlane32_swap_b32 v{YR+4*h+1}, v{YR+4*h+3}")
        a(f"buffer_store_dwordx4 {vr(YR+4*h,4)}, v{vOUT}, {srd(SOUT)}, s{sXOFF} offen offset:{32*h}" + osfx)
    a.label("Lfin")
    if DIAG:
        a("s_waitcnt vmcnt(0)")
        stamp(9)
        a(f"s_memtime vcc")
        a("s_waitcnt lgkmcnt(0)")
        a(f"s_mov_b32 s{STS+15}, vcc_lo")
        a("v_mov_b32 v2, 0")
        for i in range(16): a(f"v_writelane_b32 v2, s{STS+i}, {i}")
        a(f"v_lshlrev_b32 v3, 2, v{vL}")
        a(f"s_lshl_b32 s{sT0}, s{sBID}, 3")
        a(f"s_add_u32 s{sT0}, s{sT0}, s{sW}")
        a(f"s_lshl_b32 s{sT0}, s{sT0}, 6")
        a(f"s_add_u32 s{sT0}, s{sT0}, {WS_TS}")
        a("s_mov_b64 exec, 0xffff")
        a(f"buffer_store_dword v2, v3, {srd(SWS)}, s{sT0} offen")
        sp = [e for e in EXP if e.startswith("spin")]
        if sp:
            si, wv, lo, hi = [int(x) for x in sp[0][4:].split("_")]
            a(f"s_cmp_lg_u32 s{sW}, {wv}")
            a("s_cbranch_scc1 Lend")
            a(f"s_cmp_lt_u32 s{sIDX}, {lo}")
            a("s_cbranch_scc1 Lend")
            a(f"s_cmp_ge_u32 s{sIDX}, {hi}")
            a("s_cbranch_scc1 Lend")
            a.label("Lspin")
            a("s_memrealtime vcc")
            a("s_waitcnt lgkmcnt(0)")
            a(f"s_sub_u32 s{sT1}, vcc_lo, s{STS+si}")
            a(f"s_cmp_lt_u32 s{sT1}, 5000")
            a("s_cbranch_scc1 Lspin")
        if "dbgts" in EXP:
            a(f"s_cmp_lg_u32 s{sW}, {int([e for e in EXP if e.startswith('wv')][0][2:])}")
            a("s_cbranch_scc1 Lend")
            a(f"s_cmp_ge_u32 s{sIDX}, 16")
            a("s_cbranch_scc1 Lend")
            a("v_cmp_ne_u32 vcc, 0, v2")
            a(f"v_subrev_u32 v2, s{sTAG}, v2")
            a("v_add_u32 v2, 100, v2")
            a("v_and_b32 v2, 0x7ffffff, v2")
            a("v_cndmask_b32 v2, 0, v2, vcc")
            a("s_mov_b64 exec, 0x3fff")
            a(f"buffer_atomic_umax v2, v3, {srd(SDBG)}, 0 offen offset:4 sc1")
    a.label("Lend")
    a("s_endpgm")

entry(); bwave(); awave(); kva(); qa(); ctype(); conv(); s3()

ref = open("cdna_kernels/%s.s.ref" % NAME).read()
head = [l for l in ref.split("\n") if l.startswith(";") and "@launch" not in l]
out = "\n".join(head) + "\n"
out += "; @launch grid=(256,1,1) block=(512,1,1) lds=%d\n" % LDS_BYTES
out += '.amdgcn_target "amdgcn-amd-amdhsa--gfx950"\n.text\n.globl %s_kernel\n.p2align 8\n.type %s_kernel,@function\n%s_kernel:\n' % (NAME, NAME, NAME)
import re
body = a.text()
ntset = []
if "nt" in EXP: ntset += [SK, SV, SH, SWO, SSK, SGW]
if "ntx" in EXP: ntset += [SX, SWQ]
for s_ in ntset:
    body = re.sub(r"(buffer_load_dword\S* [^\n]*%s, [^\n]*?offen(?: offset:\d+)?)( lds)?\n" % re.escape(srd(s_)), lambda m: m.group(1) + " nt" + (m.group(2) or "") + "\n", body)
out += body
out += '''.section .rodata,"a"
.p2align 6
.amdhsa_kernel %s_kernel
  .amdhsa_next_free_vgpr 256
  .amdhsa_next_free_sgpr 102
  .amdhsa_accum_offset 256
  .amdhsa_group_segment_fixed_size 0
  .amdhsa_kernarg_size 104
  .amdhsa_user_sgpr_count 2
  .amdhsa_user_sgpr_kernarg_segment_ptr 1
  .amdhsa_system_sgpr_workgroup_id_x 1
.end_amdhsa_kernel
''' % NAME
dst = [x for x in sys.argv[1:] if not x.startswith("--")]
open(dst[0] if dst else "cdna_kernels/%s.s" % NAME, "w").write(out)
```

```python
import sys
from asmlib import Asm, vr, sr

NAME = "gated_mix__linear_attn_block__ssm_conv_h3__prompt"
DIAG = "--diag" in sys.argv
EXP = [x[6:] for x in sys.argv if x.startswith("--exp=")]

WOFF = int(([e[4:] for e in EXP if e.startswith("woff")] + ["0"])[0]) << 20
WS_U = 0
WS_PQ = 0x280000 + WOFF
WS_Y = 0x500000 + WOFF
WS_WOP = 0x780000 + WOFF
WS_KV = 0x850000 + WOFF
WS_C = 0x860000 + WOFF
CDELTA = 320 * 256
WS_FK = WS_C
WS_FY = WS_C + 8 * 256
WS_FQ = WS_C + 64 * 256
WS_G = 0x88C000 + WOFF
WS_TS = 0x890000 + WOFF
WS_SIZE = 0x900000 + WOFF
KVH = 1792

NK, NQ, NC = [int(c) for c in ([e[2:] for e in EXP if e.startswith("ns")] + ["046"])[0]]
assert 128 * NK + 64 * NQ + 64 * NC == 640 and NC <= 6
WS_F0 = 0x88E000 + WOFF
sTG = 1
N1 = int(([e[2:] for e in EXP if e.startswith("n1")] + ["8"])[0])
Q0 = int(([e[2:] for e in EXP if e.startswith("q0")] + ["2"])[0])
G0, G1 = 16 + 4 * Q0, 32 - 4 * Q0
SLOT = 36864
L_OFR = 36864
L_KVS = 77824
L_YST = 92160
L_PART = 77824
L_UB = 110592
L_UD = L_UB + 2048
L_HB = 129024
HSTR = 4224
L_SP = 145920
L_CNT = 146048
L_TAG = 146112
L_YT = 146176
L_S0C = 0
L_RPC = 49152
L_GW = L_YT + 10240
LDS_BYTES = L_GW + 2048

SX, SWQ, SWO, SK, SV, SSK, SH, SGW, SOUT, SDBG, SWS = [4 + 4 * i for i in range(11)]
SD = 48
sW, sXCD, sIDX, sRP, sCP, sTAG, sCNT = range(50, 57)
sRB, sCG, sQUAD, sCHL, sLC, sVAR, sCH, sJ, sUD = range(57, 66)
sT0, sT1, sT2, sT3, sT4, sT5, sT6, sT7 = range(66, 74)
sLOG = 74
sCI = 76
sDV = 77
STS = 80
sXOFF, sPQO, sKVO, sTB, sYO, sYM = 96, 97, 98, 99, 100, 101
sCHB = 65
sRD = 3
sWOO = 2
sEPS = 79
sBID = 78
def srd(b): return sr(b, 4)

vL = 0
VWO = 156
vL16, vOW, vPR, vRR, vPW = 1, 2, 3, 4, 5
vKE, vKO, vFK, vFY, vZ, vOUT, vPA, vPB, vYT, vFT, vGO = 9, 10, 11, 12, 13, 14, 15, 16, 17, 18, 19
vXD, vG, vXD2 = 20, 24, 28
vFQ, vFE = 27, 25

a = Asm()
BST = [None]
def stamp(i, force=False):
    if "bst" in EXP and not force and i not in (0, 10): return
    if DIAG:
        a(f"{'s_memtime' if 'cyc' in EXP else 's_memrealtime'} vcc")
        a("s_waitcnt lgkmcnt(0)")
        a(f"s_mov_b32 s{STS+i}, vcc_lo")

def poll(vaddr, vdst, state="none", sleep=2, S=None):
    L = a.newlabel("Lpoll"); D = a.newlabel("Lpd")
    if state != "none":
        if state == "issued": a("s_waitcnt vmcnt(0)")
        a(f"v_cmp_ne_u32 vcc, s{sTAG}, v{vdst}")
        a(f"s_cbranch_vccz {D}")
    a(f"s_mov_b32 s{sCNT}, 0x20000")
    a.label(L)
    a(f"buffer_load_dword v{vdst}, v{vaddr}, {srd(S or SWS)}, 0 offen sc1")
    a("s_waitcnt vmcnt(0)")
    a(f"v_cmp_ne_u32 vcc, s{sTAG}, v{vdst}")
    a(f"s_cbranch_vccz {D}")
    if sleep: a(f"s_sleep {sleep}")
    a(f"s_sub_u32 s{sCNT}, s{sCNT}, 1")
    a(f"s_cbranch_scc0 {L}")
    a.label(D)

def cnt_load(S, vaddr, vdst):
    a(f"buffer_load_dword v{vdst}, v{vaddr}, {srd(S)}, 0 offen sc1")

def tag_get(vz, vdst, state="issued"):
    L = a.newlabel("Ltag"); D = a.newlabel("Ltd")
    if state != "none":
        if state == "issued": a("s_waitcnt vmcnt(0)")
        a(f"v_readfirstlane_b32 s{sTAG}, v{vdst}")
        a(f"s_cmp_lg_u32 s{sTAG}, 0")
        a(f"s_cbranch_scc1 {D}")
    a(f"s_mov_b32 s{sCNT}, 0x20000")
    a.label(L)
    a(f"buffer_load_dword v{vdst}, v{vz}, {srd(SDBG)}, 0 offen sc1")
    a("s_waitcnt vmcnt(0)")
    a(f"v_readfirstlane_b32 s{sTAG}, v{vdst}")
    a(f"s_cmp_lg_u32 s{sTAG}, 0")
    a(f"s_cbranch_scc1 {D}")
    a("s_sleep 2")
    a(f"s_sub_u32 s{sCNT}, s{sCNT}, 1")
    a(f"s_cbranch_scc0 {L}")
    a.label(D)

def tag_lds(vtmp):
    a(f"v_mov_b32 v{vtmp}, {L_TAG}")
    a(f"ds_read_b32 v{vtmp}, v{vtmp}")
    a("s_waitcnt lgkmcnt(0)")
    a(f"v_readfirstlane_b32 s{sTAG}, v{vtmp}")

def arr_prep(vt0, vt1):
    a(f"v_mov_b32 v{vt0}, {CDELTA}")
    a(f"v_mov_b32 v{vt1}, 1")
def arr_issue(vt0, vt1, soff):
    a("s_mov_b64 exec, 1")
    a(f"buffer_atomic_add v{vt1}, v{vt0}, {srd(SWS)}, {soff} offen sc0 sc1")
    a("s_mov_b64 exec, -1")
def arr_finish(vt0, vt1, soff, n, wait=0):
    D = a.newlabel("Lal")
    a(f"s_waitcnt vmcnt({wait})")
    a(f"v_readfirstlane_b32 s{sT7}, v{vt1}")
    a(f"s_cmp_lg_u32 s{sT7}, {n-1}")
    a(f"s_cbranch_scc1 {D}")
    flag_store(vt0, vt1, soff)
    a.label(D)
def flag_store(vt0, vt1, soff):
    a(f"v_mov_b32 v{vt0}, 0")
    a(f"v_mov_b32 v{vt1}, s{sTAG}")
    a("s_mov_b64 exec, 1")
    a(f"buffer_store_dword v{vt1}, v{vt0}, {srd(SWS)}, {soff} offen sc1")
    a("s_mov_b64 exec, -1")

def darr_issue(vz, v1, off):
    a(f"v_mov_b32 v{v1}, 1")
    a("s_mov_b64 exec, 1")
    a(f"buffer_atomic_add v{v1}, v{vz}, {srd(SDBG)}, 0 offen offset:{off} sc0 sc1")
    a("s_mov_b64 exec, -1")
def darr_finish(vz, v1, off, n, wait=0):
    D = a.newlabel("Lda")
    a(f"s_waitcnt vmcnt({wait})")
    a(f"v_readfirstlane_b32 s{sT7}, v{v1}")
    a(f"s_cmp_lg_u32 s{sT7}, {n-1}")
    a(f"s_cbranch_scc1 {D}")
    a(f"v_mov_b32 v{v1}, 1")
    a("s_mov_b64 exec, 1")
    a(f"buffer_store_dword v{v1}, v{vz}, {srd(SDBG)}, 0 offen offset:{128+off} sc1")
    a("s_mov_b64 exec, -1")
    a.label(D)

def lds_arrive(vaddr, vtmp):
    a(f"v_mov_b32 v{vtmp}, 1")
    a("s_mov_b64 exec, 1")
    a(f"ds_add_u32 v{vaddr}, v{vtmp}")
    a("s_mov_b64 exec, -1")
def lds_wait(vaddr, vtmp, target):
    L = a.newlabel("Lls"); D = a.newlabel("Lld")
    a(f"s_mov_b32 s{sCNT}, 0x400000")
    a.label(L)
    a(f"ds_read_b32 v{vtmp}, v{vaddr}")
    a("s_waitcnt lgkmcnt(0)")
    a(f"v_readfirstlane_b32 s{sT7}, v{vtmp}")
    a(f"s_cmp_ge_u32 s{sT7}, {target}")
    a(f"s_cbranch_scc1 {D}")
    a(f"s_sub_u32 s{sCNT}, s{sCNT}, 1")
    a(f"s_cbranch_scc0 {L}")
    a.label(D)

def div20(vq, vr_, vp):
    a(f"v_mul_u32_u24 v{vq}, 3277, v{vp}")
    a(f"v_lshrrev_b32 v{vq}, 16, v{vq}")
    a(f"v_mul_u32_u24 v{vr_}, 20, v{vq}")
    a(f"v_sub_u32 v{vr_}, v{vp}, v{vr_}")
for p in range(1000): assert (p * 3277) >> 16 == p // 20

SIZES = {SX: 2621440, SWQ: 2457600, SWO: 819200, SK: 2621440, SV: 2621440, SSK: 5120, SH: 2621440, SGW: 1280, SOUT: 2621440, SDBG: 256, SWS: WS_SIZE}
def srd_init(lst):
    for s in lst:
        a(f"s_mov_b32 s{s+2}, {SIZES[s]}")
        a(f"s_mov_b32 s{s+3}, 0x20000")
def ka_rest():
    if "ka1" not in EXP: return
    for s, off in ((SK, 32), (SV, 40), (SSK, 48), (SWS, 96), (SDBG, 88), (SH, 56), (SWO, 16), (SGW, 72), (SOUT, 80), (SD, 64)):
        a(f"s_load_dwordx2 {sr(s,2)}, s[0:1], {off}")
def common_scalars():
    a(f"s_mov_b32 s{sLOG}, 0x3fb8aa3b")
    a(f"s_mov_b32 s{sLOG+1}, 0x3fb8aa3b")
    a(f"s_mov_b32 s{sEPS}, 0x358637bd")
    a(f"s_mul_i32 s{sT0}, s{sCP}, {32-G0}")
    a(f"s_lshl_b32 s{sCI}, s{sRP}, 4")
    a(f"s_add_u32 s{sCI}, s{sCI}, s{sT0}")
    a(f"s_add_u32 s{sCI}, s{sCI}, s{sIDX}")
    a(f"s_sub_u32 s{sCI}, s{sCI}, s{sXCD}")

def entry():
    a.label("Lentry")
    a(f"s_cmp_ge_u32 s2, 256")
    a("s_cbranch_scc1 Lend")
    if "scr" in EXP:
        a("s_and_b32 s3, s2, 31")
        a("s_lshl_b32 s3, s3, 3")
        a("s_lshr_b32 s2, s2, 5")
        a("s_or_b32 s2, s2, s3")
    if DIAG: a(f"s_memrealtime {sr(sT6,2)}")
    a(f"s_getpc_b64 {sr(sT0,2)}")
    a.label("Lpcref")
    a(f"s_lshr_b32 s{sIDX}, s2, 3")
    a(f"s_mul_i32 s{sT2}, s{sIDX}, 9")
    a("v_min_u32 v1, 8, v0")
    a(f"v_add_lshl_u32 v1, v1, s{sT2}, 7")
    a("v_min_u32 v1, Lend-Lpcref, v1")
    if "nocpf" not in EXP: a(f"global_load_dword v255, v1, {sr(sT0,2)}")
    for s, off in ((SX, 0), (SWQ, 8), (SK, 32), (SV, 40), (SSK, 48), (SWS, 96), (SDBG, 88), (SH, 56), (SWO, 16), (SGW, 72), (SOUT, 80), (SD, 64)):
        if "ka1" in EXP and off >= 16: continue
        a(f"s_load_dwordx2 {sr(s,2)}, s[0:1], {off}")
    a("v_lshrrev_b32 v1, 6, v0")
    a(f"v_and_b32 v{vL}, 63, v0")
    a(f"v_readfirstlane_b32 s{sW}, v1")
    a("s_bitcmp1_b32 s2, 2")
    a(f"s_cselect_b32 s{sXCD}, {G1}, {G0}")
    a(f"s_and_b32 s{sRP}, s2, 3")
    a(f"s_bfe_u32 s{sCP}, s2, 0x10002")
    a(f"s_mov_b32 s{sBID}, s2")
    a(f"s_mov_b32 s{sTAG}, 1")
    a(f"s_and_b32 s{sT0}, s{sIDX}, 3")
    a(f"s_lshl_b32 s{sRB}, s{sRP}, 2")
    a(f"s_add_u32 s{sRB}, s{sRB}, s{sT0}")
    if DIAG:
        for i in range(16): a(f"s_mov_b32 s{STS+i}, 0")
        stamp(0)
        a(f"s_mov_b32 s{STS+10}, s{sT6}")
        a(f"s_memtime vcc")
        a("s_waitcnt lgkmcnt(0)")
        a(f"s_mov_b32 s{STS+14}, vcc_lo")
    a(f"s_cmp_ge_u32 s{sIDX}, s{sXCD}")
    a("s_cbranch_scc1 Lctype")
    a(f"s_cmp_lt_u32 s{sW}, 4")
    a("s_cbranch_scc1 Lawave")

def s3_setup(split=None):
    a.c("S3 setup")
    sR3, sC3 = sT2, sT3
    a(f"s_lshr_b32 s{sT0}, s{sIDX}, 1")
    a(f"s_lshl_b32 s{sR3}, s{sRP}, 4")
    a(f"s_add_u32 s{sR3}, s{sR3}, s{sT0}")
    a(f"s_and_b32 s{sT0}, s{sIDX}, 1")
    a(f"s_lshl_b32 s{sC3}, s{sCP}, 1")
    a(f"s_add_u32 s{sC3}, s{sC3}, s{sT0}")
    a(f"v_lshlrev_b32 v{vL16}, 4, v{vL}")
    a(f"v_mov_b32 v{vZ}, 0")
    a(f"v_and_b32 v24, 31, v{vL}")
    a(f"v_lshrrev_b32 v25, 5, v{vL}")
    a(f"s_and_b32 s{sT0}, s{sW}, 3")
    a(f"s_lshl_b32 s{sT1}, s{sT0}, 6")
    a(f"s_lshl_b32 s{sT4}, s{sT0}, 4")
    a(f"s_add_u32 s{sT4}, s{sT4}, 256")
    a(f"s_cmp_lt_u32 s{sW}, 4")
    a(f"s_cselect_b32 s{sT1}, s{sT1}, s{sT4}")
    a(f"s_cselect_b32 s{sT5}, 4, 3")
    a(f"v_mul_u32_u24 v{vOUT}, 1280, v24")
    a(f"v_lshl_add_u32 v{vOUT}, v25, s{sT5}, v{vOUT}")
    a(f"s_mul_i32 s{sXOFF}, s{sR3}, 40960")
    a(f"s_mul_i32 s{sT4}, s{sC3}, 320")
    a(f"s_add_u32 s{sYO}, s{sXOFF}, {WS_Y}")
    a(f"s_add_u32 s{sXOFF}, s{sXOFF}, s{sT4}")
    a(f"s_add_u32 s{sXOFF}, s{sXOFF}, s{sT1}")
    a(f"s_lshl_b32 s{sT5}, s{sR3}, 7")
    a(f"s_add_u32 s{sT5}, s{sT5}, {WS_G}")
    a(f"v_lshlrev_b32 v{vGO}, 2, v24")
    a(f"v_add_u32 v{vGO}, s{sT5}, v{vGO}")
    a(f"v_bfe_u32 v26, v{vL}, 2, 2")
    a("v_lshl_add_u32 v26, v25, 2, v26")
    a(f"v_lshlrev_b32 v{vYT}, 6, v26")
    a(f"v_bfe_u32 v26, v{vL}, 4, 1")
    a(f"v_lshl_add_u32 v{vYT}, v26, 5, v{vYT}")
    a(f"v_and_b32 v26, 3, v{vL}")
    a(f"v_lshl_add_u32 v{vYT}, v26, 3, v{vYT}")
    a(f"s_lshl_b32 s{sT1}, s{sT1}, 5")
    a(f"s_add_u32 s{sT1}, s{sT1}, {L_YT}")
    a(f"v_add_u32 v{vYT}, s{sT1}, v{vYT}")
    a(f"s_lshl_b32 s{sT1}, s{sT0}, 12")
    a(f"s_add_u32 s{sT1}, s{sT1}, {L_PART}")
    a(f"v_add_u32 v{vPW}, s{sT1}, v{vL16}")
    a(f"s_lshl_b32 s{sT1}, s{sT0}, 10")
    a(f"s_add_u32 s{sT1}, s{sT1}, {L_PART+16384}")
    a(f"v_add_u32 v{vPA}, s{sT1}, v{vL16}")
    a(f"s_mul_i32 s{sT1}, s{sT0}, {10*1024}")
    a(f"s_add_u32 s{sT1}, s{sT1}, {L_OFR}")
    a(f"v_add_u32 v{vRR}, s{sT1}, v{vL16}")
    a(f"v_add_u32 v{vPR}, {L_OFR}, v{vL16}")
    a(f"s_mul_i32 s{sT1}, s{sW}, 5120")
    a(f"s_add_u32 s{sT4}, s{sT1}, {L_OFR}")
    a(f"v_add_u32 v{vOW}, s{sT4}, v{vL16}")
    a(f"s_add_u32 s{sPQO}, s{sYO}, s{sT1}")
    a(f"s_add_u32 s{sPQO}, s{sPQO}, {(WS_PQ-WS_Y)&0xffffffff}")
    a("v_mul_u32_u24 v25, 336, v25")
    a("v_min_u32 v26, 20, v24")
    a("v_lshl_add_u32 v26, v26, 4, v25")
    a("v_lshrrev_b32 v27, 2, v24")
    a(f"v_mov_b32 v{vFT}, 0x7f000000")
    a("v_cmp_eq_u32 vcc, 5, v27")
    a(f"v_subrev_u32 v{vKO}, 4, v24")
    a(f"v_lshl_add_u32 v{vKO}, v{vKO}, 4, v25")
    a(f"v_cndmask_b32 v{vKE}, v26, v{vFT}, vcc")
    a(f"v_cndmask_b32 v{vKO}, v26, v{vKO}, vcc")
    a("v_cmp_eq_u32 vcc, 4, v27")
    a(f"s_mul_i32 s{sKVO}, s{sW}, {4*KVH}")
    a(f"s_add_u32 s{sKVO}, s{sKVO}, {WS_KV}")
    a(f"v_cndmask_b32 v{vKO}, v{vKO}, v{vFT}, vcc")
    a(f"s_lshl_b32 s{sT1}, s{sW}, 8")
    a(f"s_add_u32 s{sT1}, s{sT1}, {WS_FK}")
    a(f"v_lshrrev_b32 v{vFK}, 5, v{vL}")
    a(f"v_lshlrev_b32 v{vFK}, 10, v{vFK}")
    a(f"v_add_u32 v{vFK}, s{sT1}, v{vFK}")
    a(f"v_mov_b32 v{vFQ}, v{vFK}")
    a(f"s_lshr_b32 s{sT1}, s{sR3}, 1")
    a(f"s_lshl_b32 s{sT1}, s{sT1}, 3")
    a(f"s_add_u32 s{sT1}, s{sT1}, s{sW}")
    a(f"s_lshl_b32 s{sT1}, s{sT1}, 8")
    a(f"s_add_u32 s{sT1}, s{sT1}, {WS_FQ}")
    a(f"v_writelane_b32 v{vFK}, s{sT1}, 0")
    a(f"s_add_u32 s{sT1}, s{sT1}, 1024")
    a(f"v_writelane_b32 v{vFK}, s{sT1}, 1")
    a(f"s_lshr_b32 s{sT1}, s{sR3}, 3")
    a(f"s_add_u32 s{sT1}, s{sT1}, 2")
    a(f"s_bfe_u32 s{sT1}, s{sT1}, 0x10002")
    a(f"s_mul_i32 s{sT1}, s{sT1}, 20")
    a(f"s_mul_i32 s{sT4}, s{sC3}, 5")
    a(f"s_add_u32 s{sT1}, s{sT1}, s{sT4}")
    a(f"s_lshl_b32 s{sT1}, s{sT1}, 8")
    a(f"s_add_u32 s{sT1}, s{sT1}, {WS_FY + 4*256}")
    a(f"v_mov_b32 v{vFY}, s{sT1}")
    a(f"s_lshl_b32 s{sT5}, s{sT0}, 8")
    a(f"s_add_u32 s{sT1}, s{sT1}, s{sT5}")
    a(f"s_sub_u32 s{sT1}, s{sT1}, {4*256}")
    a(f"v_writelane_b32 v{vFY}, s{sT1}, 0")
    a(f"s_lshl_b32 s{sT4}, s{sT4}, 11")
    a(f"s_add_u32 s{sYO}, s{sYO}, s{sT4}")
    a(f"s_lshl_b32 s{sYM}, s{sT0}, 11")

def x_loads():
    E = a.newlabel("Lxe"); D = a.newlabel("Lxd")
    a(f"s_cmp_ge_u32 s{sW}, 4")
    a(f"s_cbranch_scc1 {E}")
    a(f"buffer_load_dwordx4 {vr(vXD,4)}, v{vOUT}, {srd(SX)}, s{sXOFF} offen")
    a(f"buffer_load_dwordx4 {vr(vXD2,4)}, v{vOUT}, {srd(SX)}, s{sXOFF} offen offset:32")
    a(f"s_branch {D}")
    a.label(E)
    a(f"buffer_load_dword v{vXD}, v{vOUT}, {srd(SX)}, s{sXOFF} offen")
    a(f"buffer_load_dword v{vXD+1}, v{vOUT}, {srd(SX)}, s{sXOFF} offen offset:4")
    a.label(D)

def wo_prep(vtmp):
    a(f"s_and_b32 s{sT4}, s{sIDX}, 1")
    a(f"s_lshl_b32 s{sT5}, s{sCP}, 1")
    a(f"s_add_u32 s{sT4}, s{sT4}, s{sT5}")
    a(f"s_lshl_b32 s{sT4}, s{sT4}, 3")
    a(f"s_add_u32 s{sT4}, s{sT4}, s{sW}")
    a(f"s_mul_i32 s{sT4}, s{sT4}, 25600")
    a(f"s_add_u32 s{sWOO}, s{sT4}, {WS_WOP}")
    a(f"v_lshlrev_b32 v{vtmp}, 4, v{vL}")
def wo_list(vtmp, order=None):
    out = []
    for i in range(25):
        t = f"buffer_load_dwordx4 {vr(VWO+4*i,4)}, v{vtmp}, {srd(SWS)}, s{sWOO} offen offset:{1024*(i&3)} sc1"
        if (i & 3) == 3: t += f"\ns_add_u32 s{sWOO}, s{sWOO}, 4096"
        out.append(t)
    return out

S0B = 156
def s0_task(st):
    a(f"s_mul_i32 s{sTB}, s{st}, 6554")
    a(f"s_lshr_b32 s{sTB}, s{sTB}, 16")
    a(f"s_mul_i32 s{sCHB}, s{sTB}, 10")
    a(f"s_sub_u32 s{sCHB}, s{st}, s{sCHB}")
for t in range(640): assert (t * 6554) >> 16 == t // 10

def s0_loads(LB=None, init=True):
    a.c("S0 loads")
    B = S0B
    a(f"v_lshrrev_b32 v{B+1}, 3, v{vL}")
    a(f"v_and_b32 v{B+2}, 7, v{vL}")
    a(f"v_mul_u32_u24 v{B+3}, 5120, v{B+1}")
    a(f"v_lshl_add_u32 v{B+3}, v{B+2}, 4, v{B+3}")
    a(f"s_mul_i32 s{sT0}, s{sTB}, 40960")
    a(f"s_lshl_b32 s{sT1}, s{sCHB}, 7")
    a(f"s_add_u32 s{sT0}, s{sT0}, s{sT1}")
    a(f"v_add_u32 v{B+64}, s{sT0}, v{B+3}")
    a(f"v_subrev_u32 v{B+65}, 3840, v{B+64}")
    a(f"v_lshlrev_b32 v{B+66}, 6, v{B+2}")
    a(f"s_lshl_b32 s{sT1}, s{sCHB}, 9")
    if init:
        srd_init([SK, SV, SSK])
        a("s_waitcnt lgkmcnt(0)")
    LB = LB or B
    for i in range(4): a(f"buffer_load_dwordx4 {vr(LB+16+4*i,4)}, v{B+64}, {srd(SK)}, 0 offen offset:{1280*i}")
    for i in range(3): a(f"buffer_load_dwordx4 {vr(LB+4+4*i,4)}, v{B+65}, {srd(SK)}, 0 offen offset:{1280*i}")
    for i in range(4): a(f"buffer_load_dwordx4 {vr(LB+32+4*i,4)}, v{B+64}, {srd(SV)}, 0 offen offset:{1280*i}")
    for i in range(4): a(f"buffer_load_dwordx4 {vr(LB+48+4*i,4)}, v{B+66}, {srd(SSK)}, s{sT1} offen offset:{16*i}")

def s0_addr(s_scr):
    B = S0B
    a(f"v_mul_u32_u24 v{B+67}, 576, v{B+1}")
    a(f"v_lshl_add_u32 v{B+67}, v{B+2}, 4, v{B+67}")
    a(f"v_add_u32 v{B+67}, s{s_scr}, v{B+67}")
    a(f"v_and_b32 v{B+68}, 15, v{vL}")
    a(f"v_mul_u32_u24 v{B+69}, 144, v{B+68}")
    a(f"v_lshrrev_b32 v{B+70}, 4, v{vL}")
    a(f"v_lshl_add_u32 v{B+69}, v{B+70}, 3, v{B+69}")
    a(f"v_add_u32 v{B+69}, s{s_scr}, v{B+69}")
    a(f"s_and_b32 s{sT0}, s{sTB}, 3")
    a(f"v_xor_b32 v{B+68}, s{sT0}, v{B+68}")
    a(f"v_lshlrev_b32 v{B+68}, 4, v{B+68}")
    a(f"v_lshl_add_u32 v{B+68}, v{B+70}, 14, v{B+68}")
    a(f"s_lshl_b32 s{sT0}, s{sCHB}, 18")
    a(f"s_lshl_b32 s{sT1}, s{sTB}, 8")
    a(f"s_add_u32 s{sT0}, s{sT0}, s{sT1}")
    if WOFF: a(f"s_add_u32 s{sT0}, s{sT0}, {WOFF}")
    a(f"s_mov_b32 s{sT1}, 0xffff0000")

def s0_compute(split=None, pk=True, LB=None):
    a.c("S0 compute")
    B = S0B
    LB = LB or B
    KF, VF, WF, AC, UO = 112, 126, 134, B + 88, B + 72
    for p in range(4):
        for cc in range(2):
            c = 2 * p + cc
            for h in range(2):
                a(f"v_lshlrev_b32 v{WF+4*h+cc}, 16, v{LB+48+2*c+h}")
                a(f"v_and_b32 v{WF+4*h+2+cc}, s{sT1}, v{LB+48+2*c+h}")
        for r in range(7):
            a(f"v_lshlrev_b32 v{KF+2*r}, 16, v{LB+4+4*r+p}")
            a(f"v_and_b32 v{KF+2*r+1}, s{sT1}, v{LB+4+4*r+p}")
        for r in range(4):
            a(f"v_lshlrev_b32 v{VF+2*r}, 16, v{LB+32+4*r+p}")
            a(f"v_and_b32 v{VF+2*r+1}, s{sT1}, v{LB+32+4*r+p}")
        if pk:
            for i in range(4): a(f"v_pk_mul_f32 {vr(AC+2*i,2)}, {vr(KF+2*(i+3),2)}, {vr(WF,2)}")
            for d in range(1, 4):
                for i in range(4): a(f"v_pk_fma_f32 {vr(AC+2*i,2)}, {vr(KF+2*(i+3-d),2)}, {vr(WF+2*d,2)}, {vr(AC+2*i,2)}")
            for i in range(4): a(f"v_pk_mul_f32 {vr(AC+2*i,2)}, {vr(AC+2*i,2)}, {vr(VF+2*i,2)}")
        else:
            for i in range(8): a(f"v_mul_f32 v{AC+i}, v{KF+6+i}, v{WF+(i&1)}")
            for d in range(1, 4):
                for i in range(8): a(f"v_fmac_f32 v{AC+i}, v{KF+6+i-2*d}, v{WF+2*d+(i&1)}")
            for i in range(8): a(f"v_mul_f32 v{AC+i}, v{AC+i}, v{VF+i}")
        for i in range(4): a(f"v_cvt_pk_bf16_f32 v{UO+4*i+p}, v{AC+2*i}, v{AC+2*i+1}")
        if split: split(p)
    for i in range(4): a(f"ds_write_b128 v{B+67}, {vr(UO+4*i,4)} offset:{144*i}")
    for j in range(4):
        a(f"ds_read_b64_tr_b16 {vr(LB+4+4*j,2)}, v{B+69} offset:{32*j}")
        a(f"ds_read_b64_tr_b16 {vr(LB+6+4*j,2)}, v{B+69} offset:{32*j+2304}")
    for j in range(4):
        a(f"s_waitcnt lgkmcnt({6-2*j})")
        a(f"buffer_store_dwordx4 {vr(LB+4+4*j,4)}, v{B+68}, {srd(SWS)}, s{sT0} offen sc1")
        if j < 3: a(f"s_add_u32 s{sT0}, s{sT0}, 65536")

def tg_issue(vz, vd):
    a(f"buffer_load_dword v{vd}, v{vz}, {srd(SDBG)}, 0 offen offset:192 sc1")
def tg_flag(vz, vd, stask):
    L = a.newlabel("Ltg"); D = a.newlabel("Ltd")
    a(f"s_mov_b32 s{sCNT}, 0x20000")
    a.label(L)
    a("s_waitcnt vmcnt(0)")
    a(f"v_readfirstlane_b32 s{sT7}, v{vd}")
    a(f"s_cmp_lg_u32 s{sT7}, 0")
    a(f"s_cbranch_scc1 {D}")
    tg_issue(vz, vd)
    a(f"s_sub_u32 s{sCNT}, s{sCNT}, 1")
    a(f"s_cbranch_scc0 {L}")
    a.label(D)
    a("s_mov_b64 exec, 1")
    a(f"buffer_store_dword v{vd}, v{vz}, {srd(SWS)}, s{stask} offen sc1")
    a("s_mov_b64 exec, -1")

def a_s0_loads(n, base_expr):
    if n == 0: return
    D = a.newlabel("Las")
    a(f"s_cmp_ge_u32 s{sW}, {n}")
    a(f"s_cbranch_scc1 {D}")
    base_expr()
    a(f"s_add_u32 s{sQUAD}, s{sQUAD}, s{sW}")
    s0_task(sQUAD)
    s0_loads()
    a(f"s_lshl_b32 s{sQUAD}, s{sQUAD}, 2")
    a(f"s_add_u32 s{sQUAD}, s{sQUAD}, {WS_F0}")
    a.label(D)
def a_s0_compute(n):
    a("v_mov_b32 v24, 0")
    if n == 0: return
    D = a.newlabel("Lac")
    a(f"s_cmp_ge_u32 s{sW}, {n}")
    a(f"s_cbranch_scc1 {D}")
    a(f"s_mul_i32 s{sT2}, s{sW}, 4608")
    a(f"s_add_u32 s{sT2}, s{sT2}, {2*SLOT}")
    s0_addr(sT2)
    a("s_waitcnt vmcnt(0)")
    stamp(11)
    tg_issue(24, 25)
    s0_compute()
    stamp(12)
    a.label(D)

ACC = 32
FB = [112, 156]
vX0, vX1, vWA, vWX = 148, 149, 150, 154
vA1, vA2, vC16, vG4 = 16, 17, 18, 19
sC, sSL = sT2, sT3

def a_setup():
    a.c("A-wave address setup")
    a(f"s_and_b32 s{sT0}, s{sW}, 1")
    a(f"s_lshr_b32 s{sT1}, s{sW}, 1")
    a(f"v_and_b32 v{vC16}, 15, v{vL}")
    a(f"v_lshrrev_b32 v{vG4}, 4, v{vL}")
    a(f"v_lshrrev_b32 v8, 1, v{vC16}")
    a(f"v_xor_b32 v8, v{vG4}, v8")
    a(f"v_lshlrev_b32 v8, 4, v8")
    a(f"v_lshl_add_u32 v8, v{vC16}, 7, v8")
    a(f"s_lshl_b32 s{sT4}, s{sT1}, 13")
    a(f"v_add_u32 v{vX0}, s{sT4}, v8")
    a(f"v_xor_b32 v{vX1}, 64, v{vX0}")
    a(f"v_bfe_u32 v8, v{vL}, 2, 2")
    a(f"v_lshl_add_u32 v9, v{vG4}, 3, v8")
    a(f"v_and_b32 v10, 1, v{vG4}")
    a(f"v_xor_b32 v10, s{sT0}, v10")
    a(f"v_and_b32 v11, 3, v{vL}")
    a("v_lshlrev_b32 v11, 3, v11")
    a(f"v_lshl_add_u32 v{vWX}, v9, 6, v11")
    a(f"v_lshl_add_u32 v{vWX}, v10, 5, v{vWX}")
    a(f"v_add_u32 v{vWX}, 32768, v{vWX}")
    a("v_lshl_or_b32 v8, v10, 2, v8")
    a("v_lshl_add_u32 v8, v8, 5, v11")
    a("v_lshl_add_u32 v8, v9, 8, v8")
    a(f"v_add_u32 v{vWA}, 16384, v8")
    for tt in range(1, 4): a(f"v_xor_b32 v{vWA+tt}, {32*tt}, v{vWA}")

def a_reads(buf, ks):
    b = FB[buf]
    xs = [f"ds_read_b128 {vr(b+4*rt,4)}, v{vX1 if ks else vX0} offset:{2048*rt}" for rt in range(4)]
    ws = []
    for tt in range(5):
        for sec in range(2):
            if tt < 4: ws.append(f"ds_read_b64_tr_b16 {vr(b+16+4*tt+2*sec,2)}, v{vWA+tt} offset:{ks*8192+sec*1024}")
            else: ws.append(f"ds_read_b64_tr_b16 {vr(b+16+4*tt+2*sec,2)}, v{vWX} offset:{ks*2048+sec*256}")
    return [xs[0], ws[0], ws[1], xs[1], ws[2], ws[3], xs[2], ws[4], ws[5], xs[3]] + ws[6:]

def acc(rt, tt): return ACC + 4 * (rt * 5 + tt)

def a_mfmas(buf, qtype, order=None):
    b = FB[buf]
    out = []
    for (rt, tt) in (order or [(rt, tt) for tt in range(5) for rt in range(4)]):
        d = vr(acc(rt, tt), 4)
        xf = vr(b + 4 * rt, 4); wf = vr(b + 16 + 4 * tt, 4)
        A, B = (wf, xf) if qtype else (xf, wf)
        out.append(f"v_mfma_f32_16x16x32_bf16 {d}, {A}, {B}, {d}")
    return out

def interleave(mf, rd):
    j = 0
    for i, m in enumerate(mf):
        a(m)
        if j < len(rd): a(rd[j]); j += 1
    while j < len(rd): a(rd[j]); j += 1

def a_mainloop(qtype):
    t = "q" if qtype else "k"
    a.c("A main loop")
    a(f"s_mov_b32 s{sC}, 0")
    a(f"s_mov_b32 s{sSL}, 0")
    a(f"s_mov_b32 s{sT6}, {1<<10}")
    a(f"s_cmp_lt_u32 s{sW}, {NQ if qtype else NK}")
    a(f"s_cselect_b32 s{sT6}, {(1<<10)|(1<<1)}, s{sT6}")
    if "prio" in EXP: a("s_setprio 2")
    a("s_waitcnt lgkmcnt(0)")
    if "ast" in EXP: stamp(1, True)
    a("s_barrier")
    stamp(1)
    for r in a_reads(0, 0): a(r)
    book = [
        f"s_add_u32 s{sSL}, s{sSL}, 1\ns_cmp_eq_u32 s{sSL}, 3",
        f"s_mov_b32 s{sT4}, {SLOT}",
        f"s_cselect_b32 s{sT4}, {-2*SLOT & 0xffffffff}, s{sT4}",
        f"s_cselect_b32 s{sSL}, 0, s{sSL}\ns_add_u32 s{sC}, s{sC}, 1",
    ]
    src_ = f"s{sT4}"
    rd = a_reads(1, 1)
    seq = []
    for i, r in enumerate(rd): seq.append(r + ("\n" + book[i - 2] if 2 <= i < 6 else ""))
    seq += [f"v_add_u32 v{vX0}, {src_}, v{vX0}\nv_add_u32 v{vX1}, {src_}, v{vX1}",
            f"v_add_u32 v{vWA}, {src_}, v{vWA}\nv_add_u32 v{vWA+1}, {src_}, v{vWA+1}",
            f"v_add_u32 v{vWA+2}, {src_}, v{vWA+2}\nv_add_u32 v{vWA+3}, {src_}, v{vWA+3}",
            f"v_add_u32 v{vWX}, {src_}, v{vWX}\ns_bitcmp1_b32 s{sT6}, s{sC}"]
    a(".p2align 3")
    a.label(f"Lml{t}")
    a("s_waitcnt lgkmcnt(0)")
    interleave(a_mfmas(0, qtype), seq)
    a("s_waitcnt lgkmcnt(0)")
    a(f"s_cbranch_scc1 Lhook{t}")
    a.label(f"Lhookd{t}")
    if "ast" in EXP:
        a("s_memrealtime vcc")
        a("s_waitcnt lgkmcnt(0)")
        a(f"s_mov_b32 m0, s{sC}")
        a("v_writelane_b32 v29, vcc_lo, m0")
    a("s_barrier")
    interleave(a_mfmas(1, qtype), a_reads(0, 0))
    a(f"s_branch Lml{t}")
    a.label(f"Lhook{t}")
    if (NQ if qtype else NK):
        a(f"s_cmp_eq_u32 s{sC}, 10")
        a(f"s_cbranch_scc1 Lmx{t}")
        tg_flag(24, 25, sQUAD)
        a(f"s_branch Lhookd{t}")
        a.label(f"Lmx{t}")
    if "ast" in EXP:
        for c in range(1, 9): a(f"v_readlane_b32 s{STS+1+c}, v29, {c}")

def acc_zero():
    for i in range(80): a(f"v_mov_b32 v{ACC+i}, 0")

def phi_list(regs, tmp, pk=False):
    out = []
    B = 4
    for i in range(0, len(regs), B):
        batch = regs[i:i + B]
        for j, r in enumerate(batch):
            if pk:
                out.append(f"v_pk_mul_f32 {vr(tmp+2*j,2)}, {vr(r,2)}, {sr(sLOG,2)}"); continue
            out.append(f"v_mul_f32 v{tmp+2*j}, s{sLOG}, v{r}")
            out.append(f"v_mul_f32 v{tmp+2*j+1}, s{sLOG}, v{r+1}")
        for j, r in enumerate(batch):
            out.append(f"v_exp_f32_e64 v{tmp+2*j}, v{tmp+2*j} clamp")
            out.append(f"v_exp_f32_e64 v{tmp+2*j+1}, v{tmp+2*j+1} clamp")
        for j, r in enumerate(batch):
            out.append(f"v_max_f32 v{r}, s{sEPS}, v{r}")
            out.append(f"v_max_f32 v{r+1}, s{sEPS}, v{r+1}")
        for j, r in enumerate(batch):
            if pk:
                out.append(f"v_pk_add_f32 {vr(r,2)}, {vr(r,2)}, {vr(tmp+2*j,2)}"); continue
            out.append(f"v_add_f32 v{r}, v{r}, v{tmp+2*j}")
            out.append(f"v_add_f32 v{r+1}, v{r+1}, v{tmp+2*j+1}")
    return out

def sprinkle(main, extra, every, start=0):
    j = 0
    for i, m in enumerate(main):
        a(m)
        if i >= start and (i - start) % every == every - 1 and j < len(extra):
            a(extra[j]); j += 1
    return extra[j:]

def fc_addr(v):
    a(f"v_and_b32 v{v}, 7, v{vL}")
    a(f"v_lshlrev_b32 v{v}, 8, v{v}")
    a(f"v_add_u32 v{v}, {WS_FC}, v{v}")
def f0_addr(v):
    a(f"s_lshr_b32 s{sT4}, s{sQUAD}, 4")
    a(f"s_lshl_b32 s{sT4}, s{sT4}, 8")
    a(f"s_add_u32 s{sT4}, s{sT4}, {WS_F0}")
    a(f"v_mov_b32 v{v}, s{sT4}")

def awave():
    a.label("Lawave")
    ka_rest()
    a(f"s_cmp_ge_u32 s{sIDX}, 16")
    a("s_cbranch_scc1 Lqa")
    def kb():
        a(f"s_and_b32 s{sQUAD}, s{sBID}, 127")
        a(f"s_mul_i32 s{sQUAD}, s{sQUAD}, {NK}")
    a_s0_loads(NK, kb)
    srd_init([SWS, SDBG])
    common_scalars()
    srd_init([SX, SOUT])
    acc_zero()

def kva():
    a(f"s_lshr_b32 s{sT0}, s{sIDX}, 2")
    a(f"s_lshl_b32 s{sCG}, s{sCP}, 2")
    a(f"s_add_u32 s{sCG}, s{sCG}, s{sT0}")
    a_setup()
    a(f"s_mul_i32 s{sT4}, s{sW}, 3584")
    a(f"s_add_u32 s{sT4}, s{sT4}, {L_KVS}")
    a(f"v_mul_u32_u24 v8, 336, v{vG4}")
    a(f"v_add_u32 v8, s{sT4}, v8")
    a(f"v_lshl_add_u32 v{vA1}, v{vC16}, 4, v8")
    a(f"v_add_u32 v9, 8, v{vC16}")
    a(f"v_subrev_u32 v10, 12, v{vC16}")
    a(f"v_cmp_lt_u32 vcc, 11, v{vC16}")
    a("v_cndmask_b32 v9, v9, v10, vcc")
    a(f"v_cmp_eq_u32 vcc, 0, v{vC16}")
    a("v_mov_b32 v10, 20")
    a("v_cndmask_b32 v9, v9, v10, vcc")
    a(f"v_lshl_add_u32 v{vA2}, v9, 4, v8")
    a(f"s_lshl_b32 s{sT4}, s{sT0}, 2")
    a(f"s_add_u32 s{sT4}, s{sT4}, {L_CNT}")
    a(f"v_mov_b32 v20, s{sT4}")
    a(f"s_mul_i32 s{sT4}, s{sT0}, 3584")
    a(f"s_mul_i32 s{sT5}, s{sT1}, {KVH}")
    a(f"s_add_u32 s{sT4}, s{sT4}, s{sT5}")
    a(f"v_lshlrev_b32 v21, 2, v{vL}")
    a(f"s_add_u32 s{sT5}, s{sT4}, {L_KVS}")
    a(f"v_add_u32 v22, s{sT5}, v21")
    a(f"s_mul_i32 s{sT5}, s{sCG}, {4*KVH}")
    a(f"s_add_u32 s{sT4}, s{sT4}, s{sT5}")
    a(f"s_add_u32 s{sCH}, s{sT4}, {WS_KV}")
    a("v_mov_b32 v23, 0x3f803f80")
    a(f"s_lshl_b32 s{sLC}, s{sCG}, 8")
    a(f"s_add_u32 s{sLC}, s{sLC}, {WS_FK}")
    wo_prep(28)
    a_s0_compute(NK)
    a_mainloop(False)
    a.c("KV epilogue")
    order = [(rt, tt) for tt in (4, 0, 2, 1, 3) for rt in range(4)]
    mf = a_mfmas(1, False, order)
    for m in mf[:8]: a(m)
    XP = 112
    TM = 12
    TM = 8
    a(f"v_cmp_gt_u32 vcc, 8, v{vC16}")
    def pairs(tt): return sum([[acc(rt, tt), acc(rt, tt) + 2] for rt in range(4)], [])
    def cvts(tt): return [f"v_cvt_pk_bf16_f32 v{acc(rt&2,tt)+2*(rt&1)+h}, v{acc(rt,tt)+2*h}, v{acc(rt,tt)+2*h+1}" for rt in range(4) for h in range(2)]
    L = []
    for rt in range(4):
        for h in range(2): L.append(f"v_cvt_pk_bf16_f32 v{XP+2*rt+h}, v{acc(rt,4)+2*h}, v{acc(rt,4)+2*h+1}")
    for j in range(8): L.append(f"v_cndmask_b32 v{XP+j}, v{XP+j}, v23, vcc")
    L += phi_list(pairs(4)[:4], TM, False)
    for i, m in enumerate(mf[8:]):
        a(m)
        for x in L[2 * i:2 * i + 2]: a(x)
    L = L[24:]
    stamp(2)
    pk = "nopk" not in EXP
    L += phi_list(pairs(4)[4:], TM, pk) + cvts(4) + phi_list(pairs(0), TM, pk) + cvts(0) + cvts(2) + cvts(3)
    if "aspr" in EXP: assert not sprinkle(L, wo_list(28), len(L) // 25)
    else:
        for x in L: a(x)
    def fr(t, p): return XP + 4 * p if t == 5 else acc(2 * p, t)
    prods = [(0, 2), (0, 5), (4, 2), (4, 5), (1, 3), (1, 5), (4, 3)]
    PD = 120
    def pm(lst):
        for p in range(2):
            for i in lst:
                ta, tb = prods[i]
                d = vr(PD + 4 * i, 4)
                a(f"v_mfma_f32_16x16x32_bf16 {d}, {vr(fr(ta,p),4)}, {vr(fr(tb,p),4)}, {'0' if p==0 else d}")
    def wr(i, va, off, mlo, mhi):
        t = ""
        if mlo != -1: t += f"s_mov_b32 exec_lo, {mlo}\ns_mov_b32 exec_hi, {mhi}\n"
        t += f"ds_write_b128 v{va}, {vr(PD+4*i,4)} offset:{off}"
        if mlo != -1: t += "\ns_mov_b64 exec, -1"
        return t
    pm([0, 1, 2, 3, 6])
    W1 = [wr(0, vA1, 0, -1, -1), wr(1, vA2, 0, 0x0f010f01, 0x0f010f01), wr(2, vA1, 4 * 336, 0xffff, 0),
          wr(3, vA2, 4 * 336, 0x0f01, 0), wr(3, vA2, KVH - 336, 0xf0010000, 0), wr(6, vA1, KVH + 64 - 336, 0xffff0000, 0)]
    rest = sprinkle(phi_list(pairs(1)[:4], TM, False) + phi_list(pairs(1)[4:], TM, pk) + cvts(1), W1, 8, 6)
    assert not rest
    pm([4, 5])
    a(wr(4, vA1, KVH + 336 + 64, -1, -1))
    a(wr(5, vA2, KVH + 336, 0xf001f001, 0xf001f001))
    if "econv" in EXP:
        lds_arrive(20, 24)
        lds_wait(20, 24, 2 + 4 * 256)
    else:
        a("s_waitcnt lgkmcnt(0)")
        a("s_barrier")
    for i in range(7):
        a(f"ds_read_b32 v{32+i}, v22 offset:{256*i}")
        a(f"ds_read_b32 v{40+i}, v22 offset:{256*i+7168}")
    stamp(3)
    for i in range(7):
        a(f"s_waitcnt lgkmcnt({12-2*i})")
        a(f"v_add_f32 v{32+i}, v{32+i}, v{40+i}")
        a(f"buffer_atomic_add_f32 v{32+i}, v21, {srd(SWS)}, s{sCH} offen offset:{256*i}")
    arr_prep(48, 49)
    s3_setup()
    a("s_waitcnt vmcnt(0)")
    arr_issue(48, 49, f"s{sLC}")
    arr_finish(48, 49, f"s{sLC}", 64, 0)
    a("s_setprio 0")
    stamp(4)
    a("s_branch Ls3x" if "aspr" in EXP else "s_branch Ls3")

def qa():
    a.label("Lqa")
    common_scalars()
    def qb():
        a(f"s_and_b32 s{sQUAD}, s{sBID}, 63")
        a(f"s_mul_i32 s{sQUAD}, s{sQUAD}, {NQ}")
        a(f"s_add_u32 s{sQUAD}, s{sQUAD}, {128*NK}")
    a_s0_loads(NQ, qb)
    srd_init([SWS, SDBG, SX, SOUT])
    acc_zero()
    a(f"s_bfe_u32 s{sT0}, s{sIDX}, 0x20002")
    a(f"s_mul_i32 s{sCG}, s{sCP}, {Q0}")
    a(f"s_add_u32 s{sCG}, s{sCG}, s{sT0}")
    a_setup()
    a(f"v_lshrrev_b32 v8, 1, v{vG4}")
    a(f"v_and_b32 v9, 1, v{vG4}")
    a(f"v_lshlrev_b32 v20, 4, v{vC16}")
    a("v_lshl_add_u32 v20, v9, 9, v20")
    a("v_lshl_add_u32 v21, v8, 3, v20")
    a("v_add_u32 v21, 4096, v21")
    a("v_lshl_add_u32 v20, v8, 10, v20")
    a(f"s_lshl_b32 s{sT4}, s{sRB}, 1")
    a(f"s_add_u32 s{sT4}, s{sT4}, s{sT1}")
    a(f"s_lshl_b32 s{sT5}, s{sCG}, 1")
    a(f"s_add_u32 s{sT5}, s{sT5}, s{sT0}")
    a(f"s_mul_i32 s{sT0}, s{sT4}, {80*1024}")
    a(f"s_mul_i32 s{sT1}, s{sT5}, {5*1024}")
    a(f"s_add_u32 s{sT0}, s{sT0}, s{sT1}")
    a(f"s_add_u32 s{sCH}, s{sT0}, {WS_PQ}")
    a(f"s_add_u32 s{sVAR}, s{sCH}, {40*1024}")
    a(f"s_lshl_b32 s{sT4}, s{sT4}, 3")
    a(f"s_add_u32 s{sT4}, s{sT4}, s{sT5}")
    a(f"s_lshl_b32 s{sT4}, s{sT4}, 8")
    a(f"s_add_u32 s{sLC}, s{sT4}, {WS_FQ}")
    wo_prep(28)
    a_s0_compute(NQ)
    a_mainloop(True)
    a.c("Q epilogue")
    order = [(rt, tt) for rt in range(4) for tt in range(5)]
    mf = a_mfmas(1, True, order)
    for m in mf[:9]: a(m)
    L = []
    for rt in range(4):
        regs = []
        for tt in range(5): regs += [acc(rt, tt), acc(rt, tt) + 2]
        L += phi_list(regs, 112, rt > 0 and "nopk" not in EXP)
        O = acc(rt, 0)
        for tt in range(5):
            for h in range(2): L.append(f"v_cvt_pk_bf16_f32 v{O+2*tt+h}, v{acc(rt,tt)+2*h}, v{acc(rt,tt)+2*h+1}")
        so = f"s{sVAR if rt>>1 else sCH}"
        for p in range(2):
            L.append(f"buffer_store_dwordx4 {vr(O+4*p,4)}, v20, {srd(SWS)}, {so} offen offset:{256*(rt&1)+2048*p} sc1")
        L.append(f"buffer_store_dwordx2 {vr(O+8,2)}, v21, {srd(SWS)}, {so} offen offset:{256*(rt&1)} sc1")
    for i, m in enumerate(mf[9:]):
        a(m)
        for x in L[2 * i:2 * i + 2]: a(x)
    L = L[22:]
    stamp(2)
    if "aspr" in EXP: assert not sprinkle(L, wo_list(28), 8)
    else:
        for x in L: a(x)
    stamp(3)
    a("s_barrier")
    a("s_waitcnt vmcnt(0)")
    flag_store(120, 121, f"s{sLC}")
    s3_setup()
    a("s_setprio 0")
    stamp(4)
    a("s_branch Ls3x" if "aspr" in EXP else "s_branch Ls3")

def h_dma(sj, sch0):
    a(f"s_lshr_b32 s{sT4}, s{sj}, 1")
    a(f"s_and_b32 s{sT5}, s{sj}, 1")
    a(f"s_lshl_b32 s{sT5}, s{sT5}, 11")
    a(f"s_add_u32 s{sT6}, s{sch0}, s{sT4}")
    a(f"s_lshl_b32 s{sT6}, s{sT6}, 12")
    a(f"s_add_u32 s{sT6}, s{sT6}, s{sT5}")
    a(f"s_mul_i32 s{sT4}, s{sT4}, {HSTR}")
    a(f"s_add_u32 s{sT4}, s{sT4}, s{sT5}")
    a(f"s_add_u32 m0, s{sT4}, {L_HB+128}")
    a(f"buffer_load_dwordx4 v{vL16}, {srd(SH)}, s{sT6} offen lds")
    a(f"buffer_load_dwordx4 v{vL16}, {srd(SH)}, s{sT6} offen offset:1024 lds")

CACC = 32
CPOOL = 96
NPOOL = 12
CD = 144
vUe, vUo, vH, vCW, vCT, vCS, vCY, vCN = range(148, 156)

def conv_setup(j, chl0, split=None):
    a.c("conv setup")
    a(f"s_lshr_b32 s{sLC}, s{j}, 1")
    a(f"s_and_b32 s{sVAR}, s{j}, 1")
    a(f"s_add_u32 s{sCHL}, s{chl0}, s{sLC}")
    a(f"s_lshl_b32 s{sCH}, s{sQUAD}, 2")
    a(f"s_add_u32 s{sCH}, s{sCH}, s{sCHL}")
    a(f"s_lshl_b32 s{sT4}, s{sCH}, 1")
    a(f"s_and_b32 s{sT4}, s{sT4}, -4")
    a(f"s_load_dword s{sDV}, {sr(SD,2)}, s{sT4}")
    a(f"v_and_b32 v96, 31, v{vL}")
    a(f"v_lshrrev_b32 v97, 5, v{vL}")
    a("v_lshl_add_u32 v98, v97, 2, v96")
    a("v_lshrrev_b32 v99, 2, v98")
    a("v_add_u32 v99, 3, v99")
    a("v_and_b32 v99, 3, v99")
    a(f"v_xor_b32 v99, s{sCHL}, v99")
    a("v_lshlrev_b32 v99, 4, v99")
    a("v_lshl_add_u32 v99, v98, 6, v99")
    a(f"v_add_u32 v{vUe}, {L_UD-28*64}, v99")
    a(f"v_xor_b32 v{vUo}, 32, v{vUe}")
    a(f"v_bfe_u32 v98, v{vL}, 4, 1")
    a(f"v_and_b32 v99, 3, v{vL}")
    a("v_lshl_add_u32 v98, v98, 2, v99")
    a(f"v_bfe_u32 v96, v{vL}, 2, 2")
    a("v_sub_u32 v98, v98, v96")
    a("v_lshlrev_b32 v97, 3, v97")
    a("v_sub_u32 v98, v98, v97")
    a("v_lshlrev_b32 v98, 3, v98")
    a(f"s_mul_i32 s{sT4}, s{sLC}, {HSTR}")
    a(f"s_add_u32 s{sT4}, s{sT4}, {L_HB+128+32}")
    a(f"v_add_u32 v{vH}, s{sT4}, v98")
    a(f"s_lshl_b32 s{sT4}, s{sW}, 11")
    a(f"s_add_u32 s{sT4}, s{sT4}, {L_YST}")
    a(f"v_lshlrev_b32 v{vCW}, 4, v{vL}")
    a(f"v_add_u32 v{vCW}, s{sT4}, v{vCW}")
    if split: split(0)
    a(f"v_lshrrev_b32 v97, 4, v{vL}")
    a("v_lshrrev_b32 v98, 1, v99")
    a("v_lshl_add_u32 v98, v97, 1, v98")
    a("v_lshl_add_u32 v98, v98, 3, v96")
    a("v_lshlrev_b32 v98, 4, v98")
    a("v_and_b32 v99, 1, v99")
    a("v_lshl_add_u32 v98, v99, 3, v98")
    a(f"v_add_u32 v{vCT}, s{sT4}, v98")
    a(f"v_and_b32 v98, 7, v{vL}")
    a(f"v_lshrrev_b32 v99, 5, v{vL}")
    a("v_lshl_add_u32 v98, v98, 1, v99")
    a(f"v_mul_u32_u24 v98, 40960, v98")
    a(f"v_bfe_u32 v99, v{vL}, 3, 2")
    a(f"v_lshl_add_u32 v{vCY}, v99, 4, v98")
    a(f"s_lshl_b32 s{sT4}, s{j}, 4")
    a(f"s_add_u32 s{sT4}, s{sT4}, {L_SP}")
    a(f"v_mov_b32 v{vCS}, s{sT4}")
    a(f"s_lshl_b32 s{sT4}, s{sLC}, 2")
    a(f"s_add_u32 s{sT4}, s{sT4}, {L_CNT+16}")
    a(f"v_mov_b32 v{vCN}, s{sT4}")

def conv_dfrag():
    a("s_waitcnt lgkmcnt(0)")
    a(f"s_and_b32 s{sT4}, s{sCH}, 1")
    a(f"s_lshl_b32 s{sT4}, s{sT4}, 4")
    a(f"s_lshr_b32 s{sDV}, s{sDV}, s{sT4}")
    a(f"s_and_b32 s{sDV}, s{sDV}, 0xffff")
    a(f"v_lshlrev_b32 v98, 2, v{vL}")
    a("v_and_b32 v98, 16, v98")
    a(f"v_lshlrev_b32 v98, v98, s{sDV}")
    a(f"v_and_b32 v99, 59, v{vL}")
    for r in range(4):
        a(f"v_cmp_eq_u32 vcc, {32+8*r}, v99")
        a(f"v_cndmask_b32 v{CD+r}, 0, v98, vcc")

def zero_pads(j):
    a("v_mov_b32 v100, 0")
    a("v_mov_b32 v101, 0")
    a(f"v_lshlrev_b32 v102, 3, v{vL}")
    a(f"s_and_b32 s{sT6}, s{j}, 3")
    a(f"s_lshl_b32 s{sT4}, s{sT6}, 9")
    a(f"s_add_u32 s{sT4}, s{sT4}, {L_UB}")
    a(f"v_add_u32 v103, s{sT4}, v102")
    a("ds_write_b64 v103, v[100:101]")
    a(f"s_mul_i32 s{sT4}, s{sT6}, {HSTR}")
    a(f"s_add_u32 s{sT4}, s{sT4}, {L_HB}")
    a(f"v_add_u32 v103, s{sT4}, v102")
    a("s_mov_b64 exec, 0xffff")
    a("ds_write_b64 v103, v[100:101]")
    a(f"v_add_u32 v103, {L_CNT}, v102")
    a("s_mov_b64 exec, 0xff")
    a("ds_write_b64 v103, v[100:101]")
    a("s_mov_b64 exec, -1")

def u_dma(j, nper):
    a(f"s_mul_i32 s{sT4}, s{j}, {1024*nper}")
    a(f"s_lshl_b32 s{sT5}, s{sQUAD}, 14")
    if WOFF: a(f"s_add_u32 s{sT5}, s{sT5}, {WOFF}")
    a(f"s_add_u32 s{sT5}, s{sT5}, s{sT4}")
    a(f"s_add_u32 m0, s{sT4}, {L_UD}")
    for i in range(nper): a(f"buffer_load_dwordx4 v{vL16}, {srd(SWS)}, s{sT5} offen offset:{1024*i} sc1 lds")

def bwave():
    a.c("B wave")
    sXB, sWB, sM, sMW, sROT, sSTEP, sQ2, sQ3 = sCG, sUD, sTB, sRB, sCI, sLOG, sLOG + 1, sEPS
    VX, VW = 32, 36
    a(f"s_sub_u32 s{sJ}, s{sW}, 4")
    a(f"v_lshrrev_b32 v1, 3, v{vL}")
    a(f"v_mul_u32_u24 v1, 1280, v1")
    a(f"v_lshrrev_b32 v2, 4, v{vL}")
    a(f"v_and_b32 v3, 7, v{vL}")
    a("v_xor_b32 v2, v2, v3")
    a(f"v_lshl_add_u32 v{VX}, v2, 4, v1")
    a(f"v_xor_b32 v{VX+1}, 64, v{VX}")
    a(f"v_add_u32 v{VX+1}, {10240-1024}, v{VX+1}")
    a(f"v_add_u32 v{VX+2}, {20480-2048}, v{VX}")
    a(f"v_add_u32 v{VX+3}, {20480-2048}, v{VX+1}")
    a(f"s_lshl_b32 s{sXB}, s{sRB}, 2")
    a(f"s_add_u32 s{sXB}, s{sXB}, s{sJ}")
    a(f"s_mul_i32 s{sXB}, s{sXB}, 40960")
    a(f"s_lshr_b32 s{sT0}, s{sIDX}, 2")
    a(f"s_add_u32 s{sROT}, s{sT0}, s{sIDX}")
    a(f"s_and_b32 s{sROT}, s{sROT}, 3")
    a(f"s_add_u32 s{sM}, s{sRP}, s{sCP}")
    a(f"s_and_b32 s{sM}, s{sM}, 1")
    a(f"s_lshl_b32 s{sM}, s{sM}, 2")
    a(f"s_or_b32 s{sROT}, s{sROT}, s{sM}")
    def chunk_of(sd, srot, step):
        if "nostag" in EXP:
            a(f"s_and_b32 s{sd}, s{srot}, {7 if step < 8 else 1}")
            a(f"s_xor_b32 s{sd}, s{sd}, {step}")
            return
        m0_, x0 = (3, step) if step < 8 else (1, step)
        m1_, x1 = (1, 8 + step) if step < 2 else (7, step - 2)
        a(f"s_bitcmp1_b32 s{srot}, 2")
        a(f"s_cselect_b32 s{sd}, {m1_}, {m0_}")
        a(f"s_cselect_b32 s{sQ2}, {x1}, {x0}")
        a(f"s_and_b32 s{sd}, s{sd}, s{srot}")
        a(f"s_xor_b32 s{sd}, s{sd}, s{sQ2}")
    chunk_of(sSTEP, sROT, 0)
    a(f"s_lshl_b32 s{sM}, s{sJ}, 12")
    srd_init([SX, SWQ])
    def chunk_x(sc):
        a(f"s_mov_b32 m0, s{sM}")
        a(f"s_lshl_b32 s{sQ2}, s{sc}, 7")
        a(f"s_add_u32 s{sQ2}, s{sQ2}, s{sXB}")
        for i in range(4):
            a(f"buffer_load_dwordx4 v{VX+i}, {srd(SX)}, s{sQ2} offen offset:{1024*i} lds")
    def chunk_w(sc):
        a(f"s_add_u32 m0, s{sM}, 16384")
        a(f"s_mul_i32 s{sQ3}, s{sc}, {64*3840}")
        a(f"s_add_u32 s{sQ3}, s{sQ3}, s{sWB}")
        for hf in range(1):
            if hf:
                a(f"s_add_u32 m0, s{sM}, {16384+4096}")
                a(f"s_add_u32 s{sQ3}, s{sQ3}, {16*3840}")
            for i in (0, 1, 4, 2, 3):
                if i == 2: a(f"s_add_u32 m0, s{sM}, {16384+4096*hf}")
                if i == 4: a(f"s_add_u32 m0, s{sMW}, {1024*hf}")
                a(f"buffer_load_dwordx4 v{VW+i}, {srd(SWQ)}, s{sQ3} offen offset:{1024*(i&3)} lds")
    a(f"s_lshl_b32 s{sT1}, s{sCP}, 2")
    a(f"s_add_u32 s{sT1}, s{sT1}, s{sT0}")
    a(f"s_add_u32 s{sT1}, s{sT1}, 8")
    a(f"s_lshl_b32 s{sT0}, s{sT0}, 1")
    a(f"s_mul_i32 s{sT4}, s{sCP}, {2*Q0}")
    a(f"s_add_u32 s{sT0}, s{sT0}, s{sT4}")
    a(f"s_sub_u32 s{sT0}, s{sT0}, 8")
    a(f"s_cmp_ge_u32 s{sIDX}, 16")
    a(f"s_cselect_b32 s{sWB}, s{sT0}, s{sT1}")
    a(f"s_cselect_b32 s{sT4}, 10, 5")
    a(f"s_cselect_b32 s{sT5}, 4, 0x50")
    a(f"s_cselect_b32 s{sT6}, 1, 3")
    a(f"s_cselect_b32 s{sT7}, 2, 1")
    a(f"s_cselect_b32 s{sT0}, 1, 0x50")
    a(f"s_cselect_b32 s{sT1}, 8, 2")
    a(f"s_mulk_i32 s{sWB}, 160")
    a(f"s_mul_i32 s{sT2}, s{sJ}, {16*3840}")
    a(f"s_add_u32 s{sWB}, s{sWB}, s{sT2}")
    a(f"s_lshl_b32 s{sMW}, s{sJ}, 10")
    a(f"s_add_u32 s{sMW}, s{sMW}, 32768")
    a(f"v_lshrrev_b32 v14, 4, v{vL}")
    a(f"v_lshrrev_b32 v15, 1, v{vL}")
    a("v_xor_b32 v15, v15, v14")
    a(f"v_and_b32 v16, 1, v{vL}")
    a("v_mul_u32_u24 v14, 240, v14")
    a(f"v_mad_u32_u24 v14, v16, s{sT7}, v14")
    a("v_and_b32 v17, 1, v15")
    a(f"v_mad_u32_u24 v14, v17, s{sT6}, v14")
    a("v_bfe_u32 v17, v15, 1, 1")
    a(f"v_mad_u32_u24 v14, v17, s{sT5}, v14")
    a("v_bfe_u32 v17, v15, 2, 1")
    a(f"v_mad_u32_u24 v18, v17, s{sT4}, v14")
    a(f"v_lshlrev_b32 v{VW}, 4, v18")
    a(f"v_add_u32 v{VW+1}, {15360-1024}, v{VW}")
    a("v_xor_b32 v17, 1, v17")
    a(f"v_mad_u32_u24 v18, v17, s{sT4}, v14")
    a(f"v_lshlrev_b32 v18, 4, v18")
    a(f"v_add_u32 v{VW+2}, {30720-2048}, v18")
    a(f"v_add_u32 v{VW+3}, {46080-3072}, v18")
    a(f"v_lshrrev_b32 v14, 2, v{vL}")
    a("v_mul_u32_u24 v14, 240, v14")
    a(f"v_mad_u32_u24 v14, v16, s{sT0}, v14")
    a(f"v_lshrrev_b32 v17, 4, v{vL}")
    a(f"v_xor_b32 v17, v17, v{vL}")
    a("v_bfe_u32 v17, v17, 1, 1")
    a(f"v_mad_u32_u24 v14, v17, s{sT4}, v14")
    a(f"v_add_lshl_u32 v{VW+4}, v14, s{sT1}, 4")
    a("s_waitcnt lgkmcnt(0)")
    stamp(11)
    chunk_x(sSTEP)
    chunk_w(sSTEP)
    ka_rest()
    stamp(12)
    def issue(step):
        d = SLOT if step % 3 else (-2 * SLOT & 0xffffffff)
        a(f"s_add_u32 s{sM}, s{sM}, {d}")
        a(f"s_add_u32 s{sMW}, s{sMW}, {d}")
        chunk_of(sSTEP, sROT, step)
        if "nodma" in EXP and step >= 2: return
        chunk_x(sSTEP); chunk_w(sSTEP)
    bn = [1]
    def bar(n, nxt=None):
        a(f"s_waitcnt vmcnt({n}) lgkmcnt(0)")
        if "bst" in EXP and "pre" in EXP: stamp(bn[0], True)
        a("s_barrier")
        if "bst" in EXP and "pre" not in EXP: stamp(bn[0], True)
        bn[0] += 1
        if nxt is not None: issue(nxt)
    def g_setup():
        srd_init([SX, SH, SWS, SDBG, SOUT])
        a(f"s_mul_i32 s{sT7}, s{sRP}, 48")
        a(f"s_mul_i32 s{sT1}, s{sCP}, {G0}")
        a(f"s_add_u32 s{sT7}, s{sT7}, s{sT1}")
        a(f"s_add_u32 s{sT7}, s{sT7}, s{sIDX}")
        a(f"s_lshr_b32 s{sQUAD}, s{sT7}, 1")
        a(f"s_add_u32 s{sQUAD}, s{sQUAD}, 64")
        a(f"s_and_b32 s{sT1}, s{sIDX}, 1")
        a(f"s_lshl_b32 s{sT1}, s{sT1}, 1")
        a("s_waitcnt lgkmcnt(0)")
        conv_setup(sJ, sT1)
        s3_setup()
        wo_prep(vL16)
    sGS, sGO = 1, 0
    a("s_waitcnt lgkmcnt(0)")
    a(f"s_bfe_u32 s{sT0}, s{sIDX}, 0x20002")
    a(f"s_mul_i32 s{sT1}, s{sCP}, {Q0}")
    a(f"s_add_u32 s{sT0}, s{sT0}, s{sT1}")
    a(f"s_lshl_b32 s{sT0}, s{sT0}, 2")
    a(f"s_add_u32 s{sT0}, s{sT0}, s{sJ}")
    a(f"s_and_b32 s{sT2}, s{sIDX}, 3")
    a(f"s_lshl_b32 s{sT3}, s{sRP}, 2")
    a(f"s_add_u32 s{sT2}, s{sT2}, s{sT3}")
    a(f"s_lshl_b32 s{sGO}, s{sT2}, 4")
    a(f"s_add_u32 s{sGO}, s{sGO}, s{sT0}")
    a(f"s_cmp_ge_u32 s{sIDX}, 16")
    a(f"s_cselect_b32 s{sGS}, 1, 0")
    a(f"s_lshl_b32 s{sT0}, s{sT0}, 10")
    a(f"v_lshlrev_b32 v41, 4, v{vL}")
    srd_init([SGW])
    a(f"s_mov_b32 m0, {L_GW}")
    a(f"v_add_u32 v42, s{sT0}, v41")
    a(f"v_add_u32 v55, {2*SLOT}, v42")
    a(f"s_cmp_ge_u32 s{sIDX}, 16")
    a("s_cbranch_scc0 Lbng")
    a(f"buffer_load_dwordx4 v41, {srd(SGW)}, 0 offen lds")
    a(f"buffer_load_dwordx4 v41, {srd(SGW)}, 0 offen offset:1024 lds")
    a.label("Lbng")
    a(f"s_and_b32 s{sT1}, s{sJ}, 1")
    a(f"s_lshl_b32 s{sT1}, s{sT1}, 2")
    a(f"v_xor_b32 v43, s{sT1}, v2")
    a("v_lshlrev_b32 v43, 4, v43")
    a(f"v_add_u32 v43, {L_GW}, v43")
    a("v_mov_b32 v52, 0")
    a("v_mov_b32 v53, 0")
    g_setup()
    a("v_mov_b32 v44, 128")
    a("v_mov_b32 v45, 132")
    zero_pads(sJ)
    conv_dfrag()
    def gate(step):
        D = a.newlabel("Lg")
        a(f"s_cmp_eq_u32 s{sGS}, 0")
        a(f"s_cbranch_scc1 {D}")
        chunk_of(sT0, sROT, step)
        a(f"s_lshl_b32 s{sT0}, s{sT0}, 7")
        a(f"v_add_u32 v54, s{sT0}, v43")
        if step % 3 == 2: a("ds_read_b128 v[56:59], v55")
        else: a(f"ds_read_b128 v[56:59], v42 offset:{SLOT*(step%3)}")
        a("ds_read_b128 v[60:63], v54")
        a("s_waitcnt lgkmcnt(0)")
        for i in range(4): a(f"v_dot2c_f32_bf16 v{52+(i&1)}, v{56+i}, v{60+i}")
        a.label(D)
    if "bprio" in EXP: a("s_setprio 3")
    issue(1)
    for c in range(0, 8):
        bar(9)
        if c == 0: stamp(1)
        issue(c + 2)
        gate(c)
    a(f"s_mov_b32 s{sEPS}, 0x358637bd")
    a(f"s_sub_u32 s{sT1}, s{sCH}, s{sLC}")
    bar(9)
    a(f"buffer_load_dwordx2 v[46:47], v44, {srd(SDBG)}, 0 offen sc1")
    h_dma(sJ, sT1)
    gate(8)
    a("s_waitcnt vmcnt(3)")
    a("s_barrier")
    a("s_setprio 3")
    gate(9)
    a(f"s_cmp_eq_u32 s{sGS}, 0")
    a("s_cbranch_scc1 Lbg")
    a("v_add_f32 v52, v52, v53")
    for ctl in ("quad_perm:[1,0,3,2]", "quad_perm:[2,3,0,1]", "row_half_mirror"):
        a(f"v_add_f32_dpp v52, v52, v52 {ctl} row_mask:0xf bank_mask:0xf")
    a(f"v_mul_f32 v52, 0xbfb8aa3b, v52")
    a(f"v_exp_f32 v52, v52")
    a(f"v_lshrrev_b32 v53, 1, v{vL}")
    a(f"v_add_f32 v52, 1.0, v52")
    a(f"v_rcp_f32 v52, v52")
    a(f"s_lshl_b32 s{sT0}, s{sGO}, 5")
    a(f"s_add_u32 s{sT0}, s{sT0}, {WS_G}")
    a("s_mov_b32 exec_lo, 0x01010101")
    a("s_mov_b32 exec_hi, 0x01010101")
    a(f"buffer_store_dword v52, v53, {srd(SWS)}, s{sT0} offen sc1")
    a("s_mov_b64 exec, -1")
    a.label("Lbg")
    a("s_setprio 0")
    a("s_waitcnt vmcnt(2)")
    poll(45, 47, "landed", S=SDBG)
    stamp(2)
    a(f"v_mov_b32 v48, {L_CNT+8}")
    a(f"v_readfirstlane_b32 s{sUD}, v46")
    wl = wo_list(vL16)
    a(f"s_cmp_eq_u32 s{sUD}, 0")
    a("s_cbranch_scc1 Lbl1")
    u_dma(sJ, 4)
    for x in wl[:8]: a(x)
    a("s_branch Lbl1b")
    a.label("Lbl1")
    cnt_load(SDBG, 44, 46)
    for x in wl[:8]: a(x)
    a("s_waitcnt vmcnt(8)")
    a(f"v_readfirstlane_b32 s{sUD}, v46")
    a(f"s_cmp_eq_u32 s{sUD}, 0")
    a("s_cbranch_scc1 Lbl1b")
    u_dma(sJ, 4)
    a.label("Lbl1b")
    for x in wl[8:16]: a(x)
    a(f"s_cmp_lg_u32 s{sUD}, 0")
    a("s_cbranch_scc1 Lbl2")
    cnt_load(SDBG, 44, 46)
    a.label("Lbl2")
    for x in wl[16:]: a(x)
    x_loads()
    a("s_waitcnt vmcnt(11)")
    a(f"s_cmp_lg_u32 s{sUD}, 0")
    a("s_cbranch_scc1 Lbl3")
    a(f"v_readfirstlane_b32 s{sT0}, v46")
    a(f"s_cmp_eq_u32 s{sT0}, 0")
    a("s_cbranch_scc1 Lbl4")
    u_dma(sJ, 4)
    a("s_barrier")
    a("s_branch Lbl5")
    a.label("Lbl4")
    a("s_barrier")
    poll(44, 46, S=SDBG)
    u_dma(sJ, 4)
    a.label("Lbl5")
    a("s_waitcnt vmcnt(0)")
    lds_arrive(48, 49)
    a("s_branch Lbl6")
    a.label("Lbl3")
    lds_arrive(48, 49)
    a("s_barrier")
    a.label("Lbl6")
    lds_wait(48, 49, 4)
    stamp(3)
    a("s_branch Lconv")

def ctype():
    a.label("Lctype")
    ka_rest()
    common_scalars()
    a(f"s_mov_b32 s{sQUAD}, s{sCI}")
    a(f"s_cmp_ge_u32 s{sW}, 6")
    a("s_cbranch_scc1 Lcaux")
    a(f"s_cmp_ge_u32 s{sW}, {NC}")
    a("s_cbranch_scc1 Lc1")
    a(f"s_mul_i32 s{sCG}, s{sCI}, {NC}")
    a(f"s_add_u32 s{sCG}, s{sCG}, s{sW}")
    a(f"s_add_u32 s{sCG}, s{sCG}, {128*NK + 64*NQ}")
    s0_task(sCG)
    s0_loads()
    srd_init([SWS, SDBG])
    a(f"s_lshl_b32 s{sCG}, s{sCG}, 2")
    a(f"s_add_u32 s{sCG}, s{sCG}, {WS_F0}")
    a(f"s_mul_i32 s{sT2}, s{sW}, 4608")
    a(f"s_add_u32 s{sT2}, s{sT2}, {L_S0C}")
    s0_addr(sT2)
    a("v_mov_b32 v104, 0")
    a("s_waitcnt vmcnt(0)")
    tg_issue(104, 105)
    s0_compute()
    tg_flag(104, 105, sCG)
    a.label("Lc1")
    a("s_branch Lcjoin")

    a.label("Lcaux")
    a("s_setprio 3")
    srd_init([SWO, SWS, SDBG])
    a(f"s_sub_u32 s{sUD}, s{sW}, 6")
    a(f"s_lshl_b32 s{sVAR}, s{sCI}, 1")
    a(f"s_add_u32 s{sVAR}, s{sVAR}, s{sUD}")
    for i in range(4): a(f"v_mov_b32 v{52+i}, 0")
    a(f"v_lshlrev_b32 v15, 3, v{vL}")
    a(f"s_lshl_b32 s{sT0}, s{sVAR}, 9")
    a(f"s_add_u32 s{sT0}, s{sT0}, {WS_KV}")
    a(f"s_memrealtime {sr(sT2,2)}")
    a("s_waitcnt lgkmcnt(0)")
    a(f"s_lshl_b32 s{sT3}, s{sT3}, 27")
    a(f"s_xor_b32 s{sTG}, s{sT2}, s{sT3}")
    a(f"s_or_b32 s{sTG}, s{sTG}, 1")
    a(f"s_cmp_lg_u32 s{sVAR}, 0")
    a("s_cbranch_scc1 Lcnt")
    a(f"v_mov_b32 v16, s{sTG}")
    a("s_mov_b64 exec, 1")
    a(f"buffer_store_dword v16, v52, {srd(SDBG)}, 0 offen offset:192 sc1")
    a("s_mov_b64 exec, -1")
    a.label("Lcnt")
    a(f"buffer_store_dwordx2 v[52:53], v15, {srd(SWS)}, s{sT0} offen sc1")
    a(f"s_mul_i32 s{sT0}, s{sVAR}, 768")
    a(f"s_add_u32 s{sT0}, s{sT0}, {WS_C}")
    a(f"v_lshlrev_b32 v16, 8, v{vL}")
    a("s_mov_b64 exec, 7")
    a(f"buffer_store_dword v52, v16, {srd(SWS)}, s{sT0} offen sc1")
    a("s_mov_b64 exec, -1")
    a.label("Lcrp")
    sKQ, sF, sCGR = sCHL, sCH, sJ
    a(f"s_lshr_b32 s{sT0}, s{sVAR}, 2")
    a(f"s_and_b32 s{sCGR}, s{sVAR}, 3")
    a(f"s_mul_i32 s{sKQ}, s{sT0}, 52")
    a(f"s_lshr_b32 s{sKQ}, s{sKQ}, 8")
    a(f"s_mul_i32 s{sT1}, s{sKQ}, 5")
    a(f"s_sub_u32 s{sF}, s{sT0}, s{sT1}")
    a(f"s_mul_i32 s{sT0}, s{sF}, 20")
    a(f"s_cmp_eq_u32 s{sF}, 4")
    a(f"s_cselect_b32 s{sT0}, 16, s{sT0}")
    a(f"s_cselect_b32 s{sT2}, 16, 0")
    a(f"s_mul_i32 s{sT1}, s{sKQ}, 80")
    a(f"s_add_u32 s{sT0}, s{sT0}, s{sT1}")
    a(f"s_mul_i32 s{sT0}, s{sT0}, 1280")
    a(f"s_mul_i32 s{sT1}, s{sCGR}, 320")
    a(f"s_add_u32 s{sT0}, s{sT0}, s{sT1}")
    a(f"s_lshr_b32 s{sT3}, s{sVAR}, 7")
    a(f"s_lshl_b32 s{sT3}, s{sT3}, 1")
    a(f"s_add_u32 s{sT3}, s{sT3}, s{sUD}")
    a(f"s_mul_i32 s{sT3}, s{sT3}, 5120")
    a(f"s_add_u32 s{sT3}, s{sT3}, {L_RPC}")
    a("s_waitcnt lgkmcnt(0)")
    for i in range(5):
        a(f"v_add_u32 v14, {64*i}, v{vL}")
        div20(15, 16, 14)
        a("v_lshrrev_b32 v17, 2, v15")
        a(f"v_mad_u32_u24 v15, v17, s{sT2}, v15")
        a("v_mul_u32_u24 v15, 1280, v15")
        a("v_lshl_add_u32 v15, v16, 4, v15")
        a(f"s_add_u32 m0, s{sT3}, {1024*i}")
        a(f"buffer_load_dwordx4 v15, {srd(SWO)}, s{sT0} offen lds")
    a(f"s_add_u32 s{sVAR}, s{sVAR}, 128")
    a(f"s_cmp_lt_u32 s{sVAR}, 160")
    a("s_cbranch_scc1 Lcrp")
    a(f"s_and_b32 s{sVAR}, s{sVAR}, 127")
    a("s_waitcnt vmcnt(0)")
    a.label("Lcrp2")
    sKQ, sF, sCGR = sCHL, sCH, sJ
    a(f"s_lshr_b32 s{sT0}, s{sVAR}, 2")
    a(f"s_and_b32 s{sCGR}, s{sVAR}, 3")
    a(f"s_mul_i32 s{sKQ}, s{sT0}, 52")
    a(f"s_lshr_b32 s{sKQ}, s{sKQ}, 8")
    a(f"s_mul_i32 s{sT1}, s{sKQ}, 5")
    a(f"s_sub_u32 s{sF}, s{sT0}, s{sT1}")
    a(f"s_lshr_b32 s{sT3}, s{sVAR}, 7")
    a(f"s_lshl_b32 s{sT3}, s{sT3}, 1")
    a(f"s_add_u32 s{sT3}, s{sT3}, s{sUD}")
    a(f"s_mul_i32 s{sT3}, s{sT3}, 5120")
    a(f"s_add_u32 s{sT3}, s{sT3}, {L_RPC}")
    a(f"v_lshrrev_b32 v14, 5, v{vL}")
    a(f"v_bfe_u32 v15, v{vL}, 2, 2")
    a("v_lshl_add_u32 v14, v14, 2, v15")
    a("v_mul_u32_u24 v14, 320, v14")
    a(f"v_bfe_u32 v15, v{vL}, 4, 1")
    a("v_lshl_add_u32 v14, v15, 5, v14")
    a(f"v_and_b32 v15, 3, v{vL}")
    a("v_lshl_add_u32 v14, v15, 3, v14")
    a(f"v_add_u32 v14, s{sT3}, v14")
    a(f"s_mul_i32 s{sT0}, s{sKQ}, 5")
    a(f"s_add_u32 s{sT0}, s{sT0}, s{sF}")
    a(f"s_cmp_ge_u32 s{sKQ}, 5")
    a(f"s_cselect_b32 s{sT1}, 0x4b, 0")
    a(f"s_mov_b32 s{sT2}, 25")
    a(f"s_add_u32 s{sT0}, s{sT0}, s{sT1}")
    a(f"s_mul_i32 s{sT1}, s{sCGR}, 200")
    a(f"s_add_u32 s{sT0}, s{sT0}, s{sT1}")
    a(f"s_lshl_b32 s{sT0}, s{sT0}, 10")
    a(f"s_add_u32 s{sT0}, s{sT0}, {WS_WOP}")
    a(f"s_lshl_b32 s{sT2}, s{sT2}, 10")
    a(f"s_lshr_b32 s{sT4}, s{sKQ}, 1")
    a(f"s_mul_i32 s{sT4}, s{sT4}, 25")
    a(f"s_and_b32 s{sT5}, s{sKQ}, 1")
    a(f"s_mul_i32 s{sT5}, s{sT5}, 5")
    a(f"s_add_u32 s{sT4}, s{sT4}, s{sT5}")
    a(f"s_add_u32 s{sT4}, s{sT4}, s{sF}")
    a(f"s_add_u32 s{sT4}, s{sT4}, s{sT1}")
    a(f"s_add_u32 s{sT4}, s{sT4}, 115")
    a(f"s_lshl_b32 s{sT4}, s{sT4}, 10")
    a(f"s_add_u32 s{sT4}, s{sT4}, {WS_WOP}")
    a(f"v_lshlrev_b32 v15, 4, v{vL}")
    for t in range(5):
        for jh in range(2): a(f"ds_read_b64_tr_b16 {vr(32+4*t+2*jh,2)}, v14 offset:{jh*2560+t*64}")
    a("s_waitcnt lgkmcnt(0)")
    for t in range(4):
        a(f"buffer_store_dwordx4 {vr(32+4*t,4)}, v15, {srd(SWS)}, s{sT0} offen sc1")
        a(f"s_add_u32 s{sT0}, s{sT0}, s{sT2}")
    a(f"buffer_store_dwordx4 {vr(48,4)}, v15, {srd(SWS)}, s{sT4} offen sc1")
    a(f"s_add_u32 s{sVAR}, s{sVAR}, 128")
    a(f"s_cmp_lt_u32 s{sVAR}, 160")
    a("s_cbranch_scc1 Lcrp2")
    a("v_mov_b32 v60, 0")
    a("s_waitcnt vmcnt(0)")
    darr_issue(60, 61, 4)
    a("s_setprio 0")
    srd_init([SX, SH, SOUT])
    zero_pads(sW)
    a(f"s_mov_b32 s{sT1}, 0")
    conv_setup(sW, sT1)
    s3_setup()
    wo_prep(vL16)
    darr_finish(60, 61, 4, 128)
    stamp(1)
    a("s_setprio 3")
    a(f"s_lshl_b32 s{sT1}, s{sCI}, 2")
    h_dma(sW, sT1)
    conv_dfrag()
    a(f"s_cmp_eq_u32 s{sW}, 7")
    a("s_cbranch_scc1 Lc6")
    a(f"s_lshl_b32 s{sT0}, s{sCI}, 3")
    a(f"s_add_u32 s{sT0}, s{sT0}, s{sW}")
    a(f"s_cmp_lg_u32 s{sT0}, 6")
    a("s_cbranch_scc1 Lc8")
    a(f"v_min_u32 v63, 31, v{vL}")
    a("v_lshlrev_b32 v63, 4, v63")
    a(f"s_mov_b32 s{sT0}, {WS_F0}")
    a(f"s_mov_b32 s{sCNT}, 0x20000")
    a.label("Lcw")
    a(f"buffer_load_dwordx4 v[64:67], v{vL16}, {srd(SWS)}, s{sT0} offen sc1")
    a(f"buffer_load_dwordx4 v[68:71], v{vL16}, {srd(SWS)}, s{sT0} offen offset:1024 sc1")
    a(f"buffer_load_dwordx4 v[72:75], v63, {srd(SWS)}, s{sT0} offen offset:2048 sc1")
    a("s_waitcnt vmcnt(0)")
    for i in range(12): a(f"v_xor_b32 v{64+i}, s{sTG}, v{64+i}")
    for i in range(5): a(f"v_or3_b32 v64, v64, v{65+2*i}, v{66+2*i}")
    a("v_or_b32 v64, v64, v75")
    a("v_cmp_ne_u32 vcc, 0, v64")
    a("s_cbranch_vccz Lcw2")
    a(f"s_sub_u32 s{sCNT}, s{sCNT}, 1")
    a("s_cbranch_scc0 Lcw")
    a.label("Lcw2")
    a("v_mov_b32 v64, 0")
    a("v_mov_b32 v65, 1")
    a("s_mov_b64 exec, 1")
    a(f"buffer_store_dword v65, v64, {srd(SDBG)}, 0 offen offset:128 sc1")
    a("s_mov_b64 exec, -1")
    a("s_branch Lc8")
    a.label("Lc6")
    a(f"v_and_b32 v44, 1, v{vL}")
    a("v_lshl_add_u32 v44, v44, 2, 64")
    a("v_add_u32 v44, 64, v44")
    poll(44, 46, S=SDBG)
    stamp(11)
    a(f"s_lshl_b32 s{sT5}, s{sQUAD}, 14")
    if WOFF: a(f"s_add_u32 s{sT5}, s{sT5}, {WOFF}")
    for q in range(4):
        a(f"s_mov_b32 m0, {L_UD + 4096*q}")
        for i in range(4): a(f"buffer_load_dwordx4 v{vL16}, {srd(SWS)}, s{sT5} offen offset:{1024*i} sc1 lds")
        if q < 3: a(f"s_add_u32 s{sT5}, s{sT5}, 4096")
    a("s_branch Lc8")

    a.label("Lcjoin")
    srd_init([SX, SH, SWS, SDBG, SOUT])
    a("s_waitcnt lgkmcnt(0)")
    stamp(2)
    zero_pads(sW)
    a(f"s_mov_b32 s{sT1}, 0")
    conv_setup(sW, sT1)
    s3_setup()
    wo_prep(vL16)
    a(f"s_lshl_b32 s{sT1}, s{sCI}, 2")
    h_dma(sW, sT1)
    conv_dfrag()
    a.label("Lc8")
    a("s_waitcnt vmcnt(0) lgkmcnt(0)")
    stamp(12)
    a("s_barrier")
    stamp(3)
    a("s_setprio 2")
    a(f"s_cmp_lt_u32 s{sW}, 4")
    a("s_cbranch_scc1 Lconv2")
    a("s_setprio 0")
    for x in wo_list(vL16): a(x)
    x_loads()

def conv_body(tiles):
    seq = []
    for b in range(4):
        if tiles[0] == 0:
            for aa in range(8):
                for ti in (3, 2):
                    d = tiles[ti] - aa
                    if d >= 0:
                        seq.append((ti, ("H", 4 * aa + b, 0), ("U", 4 * d - b)))
                        if b == 0 and aa == 0: seq.append((ti, ("D",), ("U", 4 * d)))
                if aa == 5:
                    seq.append((1, ("H", b, 1), ("U", 4 - b)))
                    if b == 0: seq.append((1, ("D",), ("U", 4)))
                if aa == 6:
                    seq.append((0, ("H", b, 1), ("U", -b)))
                    if b == 0: seq.append((0, ("D",), ("U", 0)))
                    seq.append((1, ("H", 4 + b, 1), ("U", -b)))
        else:
            for aa in range(6):
                for ti in (3, 2, 1, 0):
                    d = tiles[ti] - aa
                    if d >= 0:
                        seq.append((ti, ("H", 4 * aa + b, 0), ("U", 4 * d - b)))
                        if b == 0 and aa == 0: seq.append((ti, ("D",), ("U", 4 * d)))
    assert len(seq) == 76
    last = {}; order = []
    for i, (ti, h, u) in enumerate(seq):
        for k in (u, h):
            if k[0] == "D": continue
            if k not in last: order.append(k)
            last[k] = i
    free = list(range(NPOOL))
    where = {}; done_at = {}
    nds = [0]; li = [0]
    def issue(maxn):
        n = 0
        while li[0] < len(order) and free and n < maxn:
            k = order[li[0]]; li[0] += 1
            bfr = free.pop(0); where[k] = bfr
            r = CPOOL + 4 * bfr
            if k[0] == "U":
                a(f"ds_read_b128 {vr(r,4)}, v{vUo if k[1]&1 else vUe} offset:{(k[1]+3)*512}")
                nds[0] += 1; n += 1
            else:
                a(f"ds_read_b64_tr_b16 {vr(r,2)}, v{vH} offset:{128*k[1]+32}")
                a(f"ds_read_b64_tr_b16 {vr(r+2,2)}, v{vH} offset:{128*k[1]}")
                nds[0] += 2; n += 2
            done_at[k] = nds[0]
    issue(10)
    started = set(); known = 0
    wl = wo_list(vL16); wi = 25 if "delayconv" in EXP else 0
    for i, (ti, h, u) in enumerate(seq):
        needn = max(done_at[k] for k in (u, h) if k[0] != "D")
        if needn > known:
            cnt = min(nds[0] - needn, 15)
            a(f"s_waitcnt lgkmcnt({cnt})")
            known = nds[0] - cnt
        d = vr(CACC + 16 * ti, 16)
        hb = CD if h[0] == "D" else CPOOL + 4 * where[h]
        a(f"v_mfma_f32_32x32x16_bf16 {d}, {vr(CPOOL+4*where[u],4)}, {vr(hb,4)}, {d if ti in started else '0'}")
        started.add(ti)
        for k in (u, h):
            if k[0] != "D" and last[k] == i: free.append(where[k])
        issue(2)

def conv_epi(var):
    runs = [[*range(0, 8)], [*range(8, 16)]] if var == 0 else [[*range(16)]]
    out_g = 7 if var == 0 else 15
    in_g = 8 if var == 0 else 0
    SPL = 96
    if "noep" not in EXP: a("s_setprio 3")
    a("s_nop 7")
    a("s_nop 3")
    for step in (2, 1, 0):
        a("s_mov_b32 exec_lo, 0")
        a("s_mov_b32 exec_hi, 0x80000000")
        a(f"v_mov_b32 v{SPL+step}, v{CACC+4*out_g+step+1}")
        for run in runs:
            for g in reversed(run):
                src = f"v{CACC+4*(g-1)+step+1}" if g != run[0] else "0"
                a(f"v_mov_b32 v{CACC+4*g+step+1}, {src}")
        if step == 0:
            a(f"ds_write_b96 v{vCS}, {vr(SPL,3)}")
            a("v_mov_b32 v100, 1")
            a(f"ds_add_u32 v{vCN}, v100")
        a("s_mov_b64 exec, -1")
        for g in reversed(range(16)):
            r = CACC + 4 * g + step
            a(f"v_add_f32_dpp v{r}, v{r+1}, v{r} wave_ror:1 row_mask:0xf bank_mask:0xf")
    a(f"v_xor_b32 v101, 16, v{vCS}")
    a(f"v_lshl_add_u32 v101, v{vL}, 2, v101")
    PK = 104
    other = [k for k in range(8) if k != in_g // 2]
    for k in other: a(f"v_cvt_pk_bf16_f32 v{PK+k}, v{CACC+8*k}, v{CACC+8*k+4}")
    oh = 1 - in_g // 8
    a(f"ds_write_b128 v{vCW}, {vr(PK+4*oh,4)} offset:{1024*oh}")
    lds_wait(vCN, 100, 2)
    a("s_mov_b64 exec, 7")
    a("ds_read_b32 v100, v101")
    a("s_waitcnt lgkmcnt(0)")
    a(f"v_add_f32 v{CACC+4*in_g}, v{CACC+4*in_g}, v100")
    a("s_mov_b64 exec, -1")
    k = in_g // 2
    a(f"v_cvt_pk_bf16_f32 v{PK+k}, v{CACC+8*k}, v{CACC+8*k+4}")
    a(f"ds_write_b128 v{vCW}, {vr(PK+4*(1-oh),4)} offset:{1024*(1-oh)}")
    T0, T1 = (0, 6) if var == 0 else (2, 4)
    a(f"s_lshl_b32 s{sT5}, s{sCH}, 6")
    a(f"s_add_u32 s{sT4}, s{sT5}, {WS_Y + T0*8*40960}")
    a(f"s_add_u32 s{sT5}, s{sT5}, {WS_Y + T1*8*40960}")
    a(f"s_lshr_b32 s{sT6}, s{sCH}, 5")
    a(f"s_lshl_b32 s{sT6}, s{sT6}, 8")
    a(f"s_add_u32 s{sT6}, s{sT6}, {WS_FY + var*20*256}")

def conv():
    a.label("Lconv")
    a("s_setprio 1")
    a.label("Lconv2")
    a(f"s_cmp_eq_u32 s{sVAR}, 1")
    a("s_cbranch_scc1 Lconvy")
    conv_body([0, 1, 6, 7])
    stamp(4)
    conv_epi(0)
    a("s_branch Lconve")
    a.label("Lconvy")
    conv_body([2, 3, 4, 5])
    stamp(4)
    conv_epi(1)
    a.label("Lconve")
    for n in range(2):
        a(f"ds_read_b64_tr_b16 {vr(136+4*n,2)}, v{vCT} offset:{1024*n}")
        a(f"ds_read_b64_tr_b16 {vr(138+4*n,2)}, v{vCT} offset:{1024*n+64}")
    arr_prep(152, 153)
    for n in range(2):
        a(f"s_waitcnt lgkmcnt({2-2*n})")
        a(f"buffer_store_dwordx4 {vr(136+4*n,4)}, v{vCY}, {srd(SWS)}, s{sT5 if n else sT4} offen sc1")
    stamp(13)
    a("s_waitcnt vmcnt(0)")
    arr_issue(152, 153, f"s{sT6}")
    arr_finish(152, 153, f"s{sT6}", 32)
    a(f"s_mov_b32 s{sT0}, 0xffff0000")
    a(f"s_cmp_ge_u32 s{sW}, 4")
    a("s_cbranch_scc1 Learly")
    a("s_setprio 0")

def s3():
    a.label("Ls3")
    a.c("S3")
    PQ, RAW, KF = 32, 52, 116
    plan = []
    for i in range(4):
        for st in range(2):
            for jh in range(2):
                du0 = 4 * (i + st) + 2 * jh - 5 * i
                plan.append((i, st, jh, du0, 0 <= du0 <= 4, 0 <= du0 + 1 <= 4))
    sPD = sT2
    assert N1 <= 8
    PQ2, RAW2 = 188, 208
    valid = [p_ for p_ in plan if p_[4] or p_[5]]
    def raw(g, p_): return RAW + 16 * p_[0] + 8 * p_[1] + 4 * p_[2] if g == 0 else RAW2 + 4 * valid.index(p_)
    def fl(): a(f"buffer_load_dword v{vFT}, v{vFK}, {srd(SWS)}, 0 offen sc1")
    def kvl(g):
        a(f"s_add_u32 s{sT4}, s{sKVO}, {16*KVH*g}")
        a(f"s_add_u32 s{sT3}, s{sT4}, {2*KVH}")
        for p_ in valid:
            (i, st, jh, du0, v0ok, v1ok) = p_
            off = (i & 1) * KVH + du0 * 336
            part = v0ok != v1ok
            if part: a(f"s_mov_b32 exec_{'hi' if v0ok else 'lo'}, 0")
            a(f"buffer_load_dwordx4 {vr(raw(g,p_),4)}, v{vKO if i&1 else vKE}, {srd(SWS)}, s{sT3 if i>>1 else sT4} offen offset:{off} sc1")
            if part: a("s_mov_b64 exec, -1")
    OF = 132
    def proc(g, extra):
        pq = PQ2 if g else PQ
        for i in range(4):
            a(f"s_waitcnt vmcnt({9 - 3*i + extra})")
            kf = KF + 8 * (i & 1)
            for p_ in plan:
                if p_[0] != i: continue
                for j in range(2):
                    d = kf + 4 * p_[1] + 2 * p_[2] + j
                    if p_ in valid: a(f"v_cvt_pk_bf16_f32 v{d}, v{raw(g,p_)+2*j}, v{raw(g,p_)+2*j+1}")
                    else: a(f"v_mov_b32 v{d}, 0")
            d = vr(RAW + 16 * i, 16)
            a(f"v_mfma_f32_32x32x16_bf16 {d}, {vr(kf,4)}, {vr(pq+4*i,4)}, 0")
            a(f"v_mfma_f32_32x32x16_bf16 {d}, {vr(kf+4,4)}, {vr(pq+4*i+4,4)}, {d}")
        if g == 1:
            a(f"v_mov_b32 v152, {L_CNT+12}")
            lds_arrive(152, 153)
        for i in range(4):
            D = RAW + 16 * i
            a(f"v_add_f32 v{D+12}, s{sEPS}, v{D+12}")
            a(f"v_rcp_f32 v{D+12}, v{D+12}")
            for j in range(8): a(f"v_mul_f32 v{D+j}, v{D+j}, v{D+12}")
            for j in range(4): a(f"v_cvt_pk_bf16_f32 v{OF+4*i+j}, v{D+2*j}, v{D+2*j+1}")
            a(f"ds_write_b128 v{vOW}, {vr(OF+4*i,4)} offset:{1024*i + 20480*g}")
            if i & 1 == 0:
                for j in range(4): a(f"v_mul_f32 v{D+8+j}, v{D+8+j}, v{D+12}")
            else:
                for j in range(4): a(f"v_fmac_f32 v{D-8+j}, v{D+8+j}, v{D+12}")
                for j in range(2): a(f"v_cvt_pk_bf16_f32 v{OF+16+2*(i>>1)+j}, v{D-8+2*j}, v{D-8+2*j+1}")
        a(f"ds_write_b128 v{vOW}, {vr(OF+16,4)} offset:{4096 + 20480*g}")
    wl = wo_list(vL16)
    fl()
    for x in wl[:N1]: a(x)
    x_loads()
    a("s_setprio 1")
    for g in range(2):
        for p_ in valid:
            if p_[4] != p_[5]:
                for j in range(4): a(f"v_mov_b32 v{raw(g,p_)+j}, 0")
    a(f"s_mov_b32 s{sPD}, 0")
    a(f"s_mov_b32 s{sCNT}, 0x40000")
    a(f"s_waitcnt vmcnt({N1+2})")
    a("s_branch Ls3ev")
    a.label("Ls3sl")
    a("s_sleep 2")
    fl()
    a("s_waitcnt vmcnt(0)")
    a.label("Ls3ev")
    a(f"v_cmp_ne_u32 vcc, s{sTAG}, v{vFT}")
    a(f"s_sub_u32 s{sCNT}, s{sCNT}, 1")
    a("s_cbranch_scc1 Ls3go")
    a(f"s_cmp_lg_u32 s{sPD}, 0")
    a("s_cbranch_scc1 Ls3k")
    a(f"s_and_b32 s{sT0}, vcc_lo, 3")
    a("s_cbranch_scc1 Ls3sl")
    for g in range(2):
        a(f"s_add_u32 s{sT4}, s{sPQO}, {20480*g}")
        a(f"s_add_u32 s{sT1}, s{sT4}, 4096")
        for f in range(4): a(f"buffer_load_dwordx4 {vr((PQ2 if g else PQ)+4*f,4)}, v{vL16}, {srd(SWS)}, s{sT4} offen offset:{1024*f} sc1")
        a(f"buffer_load_dwordx4 {vr((PQ2 if g else PQ)+16,4)}, v{vL16}, {srd(SWS)}, s{sT1} offen sc1")
    a(f"s_mov_b32 s{sPD}, 1")
    a(f"v_mov_b32 v{vFK}, v{vFQ}")
    a.label("Ls3k")
    a("s_bitcmp1_b32 vcc_lo, 2")
    a("s_cbranch_scc1 Ls3sl")
    a.label("Ls3go")
    a(f"s_mov_b32 s{sUD}, vcc_hi")
    stamp(6)
    kvl(0)
    a(f"s_cmp_eq_u32 s{sUD}, 0")
    a("s_cbranch_scc1 Ls3k2")
    fl()
    a("s_waitcnt vmcnt(0)")
    a(f"v_cmp_ne_u32 vcc, s{sTAG}, v{vFT}")
    a(f"s_mov_b32 s{sUD}, vcc_hi")
    a(f"s_cmp_lg_u32 s{sUD}, 0")
    a("s_cbranch_scc1 Ls3p1")
    a.label("Ls3k2")
    kvl(1)
    a.label("Ls3p1")
    proc(0, 12)
    a(f"s_cmp_eq_u32 s{sUD}, 0")
    a("s_cbranch_scc1 Ls3p2")
    poll(vFK, vFT)
    kvl(1)
    a.label("Ls3p2")
    if "sx" in EXP: stamp(11)
    proc(1, 0)
    a(f"s_mov_b32 s{sT0}, 0xffff0000")
    a("s_branch Llate")
    NB = 8; POOL = 32; AP, AR = 64, 80
    XF, YR, YF = 96, 112, 120
    def gemm(early):
        def ord_(i):
            if not early: return (vPR, 1024 * i)
            return (vPR, 1024 * (25 + i)) if i < 15 else (vRR, 1024 * (i - 15))
        for i in range(NB):
            v, o = ord_(i); a(f"ds_read_b128 {vr(POOL+4*i,4)}, v{v} offset:{o}")
        pre = []
        if not early:
            for x in wl[N1:]: a(x)
            for xd in (vXD, vXD2):
                pre.append(f"v_permlane32_swap_b32 v{xd}, v{xd+2}")
                pre.append(f"v_permlane32_swap_b32 v{xd+1}, v{xd+3}")
            for n, xd in enumerate((vXD, vXD2)):
                for j in range(4):
                    pre.append(f"v_lshlrev_b32 v{XF+8*n+2*j}, 16, v{xd+j}")
                    pre.append(f"v_and_b32 v{XF+8*n+2*j+1}, s{sT0}, v{xd+j}")
        issued = NB
        log = list(range(NB))
        for i in range(25):
            pos = log.index(i)
            w = f"s_waitcnt lgkmcnt({min(len(log)-1-pos,15)})"
            if not early and i >= N1: w = f"s_waitcnt vmcnt({24-i}) lgkmcnt({min(len(log)-1-pos,15)})"
            a(w)
            d = vr(AR if (early and i >= 15) else AP, 16)
            a(f"v_mfma_f32_32x32x16_bf16 {d}, {vr(VWO+4*i,4)}, {vr(POOL+4*(i%NB),4)}, {'0' if i == 0 or (early and i == 15) else d}")
            if issued < 25:
                v, o = ord_(issued); a(f"ds_read_b128 {vr(POOL+4*(issued%NB),4)}, v{v} offset:{o}"); log.append(issued); issued += 1
            for x in pre[2 * i:2 * i + 2]: a(x)
            if early and i == 12: a(f"buffer_load_dword v{vFT}, v{vFY}, {srd(SWS)}, 0 offen sc1")
            if early and 19 <= i < 23:
                q = i - 19
                a(f"ds_write_b128 v{vPW}, {vr(AP+4*q,4)} offset:{1024*q}"); log.append(-1)
    osfx = (" sc1" if "osc1" in EXP else "")
    def ydma():
        a(f"s_add_u32 m0, s{sYM}, {L_YT}")
        a(f"s_add_u32 s{sT1}, s{sYO}, s{sYM}")
        a(f"buffer_load_dwordx4 v{vL16}, {srd(SWS)}, s{sT1} offen sc1 lds")
        a(f"buffer_load_dwordx4 v{vL16}, {srd(SWS)}, s{sT1} offen offset:1024 sc1 lds")
        a(f"s_lshr_b32 s{sT2}, s{sYM}, 2")
        a(f"s_add_u32 s{sT2}, s{sT2}, 8192")
        a(f"s_add_u32 m0, s{sT2}, {L_YT}")
        a(f"s_add_u32 s{sT1}, s{sYO}, s{sT2}")
        a("s_mov_b32 exec_hi, 0")
        a(f"buffer_load_dwordx4 v{vL16}, {srd(SWS)}, s{sT1} offen sc1 lds")
        a("s_mov_b32 exec_hi, -1")
    a.label("Learly")
    stamp(6)
    a("s_setprio 2")
    a(f"s_mov_b32 s{sUD}, 0")
    a(f"v_mov_b32 v152, {L_CNT+12}")
    a(f"s_mov_b32 s{sCNT}, 0x40000")
    a.label("Ls3yl")
    a(f"buffer_load_dword v{vFT}, v{vFY}, {srd(SWS)}, 0 offen sc1")
    a("s_waitcnt vmcnt(0)")
    a(f"v_cmp_ne_u32 vcc, s{sTAG}, v{vFT}")
    a("s_cbranch_vccz Ls3yk")
    a("s_sleep 2")
    a("ds_read_b32 v153, v152")
    a("s_waitcnt lgkmcnt(0)")
    a(f"v_readfirstlane_b32 s{sT7}, v153")
    a(f"s_cmp_ge_u32 s{sT7}, 3")
    a("s_cbranch_scc1 Ls3y0")
    a(f"s_sub_u32 s{sCNT}, s{sCNT}, 1")
    a("s_cbranch_scc0 Ls3yl")
    a("s_branch Ls3y0")
    a.label("Ls3yk")
    ydma()
    a(f"s_mov_b32 s{sUD}, 1")
    a.label("Ls3y0")
    a("s_waitcnt lgkmcnt(0)")
    if "sx" in EXP: stamp(12)
    a("s_barrier")
    stamp(7)
    a(f"buffer_load_dword v{vG}, v{vGO}, {srd(SWS)}, 0 offen sc1")
    gemm(True)
    a(f"s_cmp_eq_u32 s{sUD}, 1")
    a("s_nop 7")
    a("s_nop 1")
    a("s_cbranch_scc1 Ls3yd")
    poll(vFY, vFT, "issued", sleep=1)
    stamp(5)
    ydma()
    a.label("Ls3yd")
    for q in range(4): a(f"ds_write_b128 v{vPW}, {vr(AR+4*q,4)} offset:{16384+1024*q}")
    for j in range(2):
        a(f"v_lshlrev_b32 v{XF+2*j}, 16, v{vXD+j}")
        a(f"v_and_b32 v{XF+2*j+1}, s{sT0}, v{vXD+j}")
    a("s_waitcnt vmcnt(0) lgkmcnt(0)")
    a("s_barrier")
    stamp(8)
    for p in range(4): a(f"ds_read_b128 {vr(32+4*p,4)}, v{vPA} offset:{4096*p}")
    a(f"ds_read_b64_tr_b16 {vr(YR,2)}, v{vYT}")
    a("s_waitcnt lgkmcnt(1)")
    for j in range(2): a(f"v_pk_add_f32 {vr(32+2*j,2)}, {vr(32+2*j,2)}, {vr(36+2*j,2)}")
    for j in range(2): a(f"v_pk_add_f32 {vr(40+2*j,2)}, {vr(40+2*j,2)}, {vr(44+2*j,2)}")
    for j in range(2): a(f"v_pk_add_f32 {vr(32+2*j,2)}, {vr(32+2*j,2)}, {vr(40+2*j,2)}")
    def fin(R, n):
        a("s_waitcnt lgkmcnt(0)")
        for j in range(n):
            a(f"v_lshlrev_b32 v{YF+2*j}, 16, v{YR+j}")
            a(f"v_and_b32 v{YF+2*j+1}, s{sT0}, v{YR+j}")
        for j in range(n): a(f"v_pk_mul_f32 {vr(XF+2*j,2)}, {vr(XF+2*j,2)}, {vr(YF+2*j,2)}")
        for j in range(n): a(f"v_pk_add_f32 {vr(R+2*j,2)}, {vr(R+2*j,2)}, {vr(XF+2*j,2)} neg_lo:[0,1] neg_hi:[0,1]")
        for j in range(n): a(f"v_pk_fma_f32 {vr(R+2*j,2)}, {vr(R+2*j,2)}, {vr(vG,2)}, {vr(XF+2*j,2)} op_sel_hi:[1,0,1]")
        for j in range(n): a(f"v_cvt_pk_bf16_f32 v{YR+j}, v{R+2*j}, v{R+2*j+1}")
    fin(32, 2)
    a(f"buffer_store_dwordx2 {vr(YR,2)}, v{vOUT}, {srd(SOUT)}, s{sXOFF} offen" + osfx)
    a("s_branch Lfin")
    a.label("Llate")
    a("s_setprio 1")
    a("s_waitcnt lgkmcnt(0)")
    if "sx" in EXP: stamp(12)
    a("s_barrier")
    stamp(7)
    a(f"buffer_load_dword v{vG}, v{vGO}, {srd(SWS)}, 0 offen sc1")
    gemm(False)
    a("s_barrier")
    stamp(8)
    for q in range(4): a(f"ds_read_b128 {vr(32+4*q,4)}, v{vPW} offset:{1024*q}")
    for q in range(4): a(f"ds_read_b64_tr_b16 {vr(YR+2*q,2)}, v{vYT} offset:{512*q}")
    a("s_waitcnt lgkmcnt(4)")
    for j in range(8): a(f"v_pk_add_f32 {vr(AP+2*j,2)}, {vr(AP+2*j,2)}, {vr(32+2*j,2)}")
    fin(AP, 8)
    for h in range(2):
        a(f"v_permlane32_swap_b32 v{YR+4*h}, v{YR+4*h+2}")
        a(f"v_permlane32_swap_b32 v{YR+4*h+1}, v{YR+4*h+3}")
        a(f"buffer_store_dwordx4 {vr(YR+4*h,4)}, v{vOUT}, {srd(SOUT)}, s{sXOFF} offen offset:{32*h}" + osfx)
    a.label("Lfin")
    if DIAG:
        a("s_waitcnt vmcnt(0)")
        stamp(9)
        a(f"s_memtime vcc")
        a("s_waitcnt lgkmcnt(0)")
        a(f"s_mov_b32 s{STS+15}, vcc_lo")
        a("v_mov_b32 v2, 0")
        for i in range(16): a(f"v_writelane_b32 v2, s{STS+i}, {i}")
        a(f"v_lshlrev_b32 v3, 2, v{vL}")
        a(f"s_lshl_b32 s{sT0}, s{sBID}, 3")
        a(f"s_add_u32 s{sT0}, s{sT0}, s{sW}")
        a(f"s_lshl_b32 s{sT0}, s{sT0}, 6")
        a(f"s_add_u32 s{sT0}, s{sT0}, {WS_TS}")
        a("s_mov_b64 exec, 0xffff")
        a(f"buffer_store_dword v2, v3, {srd(SWS)}, s{sT0} offen")
        sp = [e for e in EXP if e.startswith("spin")]
        if sp:
            si, wv, lo, hi = [int(x) for x in sp[0][4:].split("_")]
            a(f"s_cmp_lg_u32 s{sW}, {wv}")
            a("s_cbranch_scc1 Lend")
            a(f"s_cmp_lt_u32 s{sIDX}, {lo}")
            a("s_cbranch_scc1 Lend")
            a(f"s_cmp_ge_u32 s{sIDX}, {hi}")
            a("s_cbranch_scc1 Lend")
            a.label("Lspin")
            a("s_memrealtime vcc")
            a("s_waitcnt lgkmcnt(0)")
            a(f"s_sub_u32 s{sT1}, vcc_lo, s{STS+si}")
            a(f"s_cmp_lt_u32 s{sT1}, 5000")
            a("s_cbranch_scc1 Lspin")
        if "dbgts" in EXP:
            a(f"s_cmp_lg_u32 s{sW}, {int([e for e in EXP if e.startswith('wv')][0][2:])}")
            a("s_cbranch_scc1 Lend")
            a(f"s_cmp_ge_u32 s{sIDX}, 16")
            a("s_cbranch_scc1 Lend")
            a("v_cmp_ne_u32 vcc, 0, v2")
            a(f"v_subrev_u32 v2, s{sTAG}, v2")
            a("v_add_u32 v2, 100, v2")
            a("v_and_b32 v2, 0x7ffffff, v2")
            a("v_cndmask_b32 v2, 0, v2, vcc")
            a("s_mov_b64 exec, 0x3fff")
            a(f"buffer_atomic_umax v2, v3, {srd(SDBG)}, 0 offen offset:4 sc1")
    a.label("Lend")
    a("s_endpgm")

entry(); bwave(); awave(); kva(); qa(); ctype(); conv(); s3()

ref = open("cdna_kernels/%s.s.ref" % NAME).read()
head = [l for l in ref.split("\n") if l.startswith(";") and "@launch" not in l]
out = "\n".join(head) + "\n"
out += "; @launch grid=(256,1,1) block=(512,1,1) lds=%d\n" % LDS_BYTES
out += '.amdgcn_target "amdgcn-amd-amdhsa--gfx950"\n.text\n.globl %s_kernel\n.p2align 8\n.type %s_kernel,@function\n%s_kernel:\n' % (NAME, NAME, NAME)
import re
body = a.text()
ntset = []
if "nt" in EXP: ntset += [SK, SV, SH, SWO, SSK, SGW]
if "ntx" in EXP: ntset += [SX, SWQ]
for s_ in ntset:
    body = re.sub(r"(buffer_load_dword\S* [^\n]*%s, [^\n]*?offen(?: offset:\d+)?)( lds)?\n" % re.escape(srd(s_)), lambda m: m.group(1) + " nt" + (m.group(2) or "") + "\n", body)
out += body
out += '''.section .rodata,"a"
.p2align 6
.amdhsa_kernel %s_kernel
  .amdhsa_next_free_vgpr 256
  .amdhsa_next_free_sgpr 102
  .amdhsa_accum_offset 256
  .amdhsa_group_segment_fixed_size 0
  .amdhsa_kernarg_size 104
  .amdhsa_user_sgpr_count 2
  .amdhsa_user_sgpr_kernarg_segment_ptr 1
  .amdhsa_system_sgpr_workgroup_id_x 1
.end_amdhsa_kernel
''' % NAME
dst = [x for x in sys.argv[1:] if not x.startswith("--")]
open(dst[0] if dst else "cdna_kernels/%s.s" % NAME, "w").write(out)
```

```python
import sys
from asmlib import Asm, vr, sr

NAME = "gated_mix__linear_attn_block__ssm_conv_h3__prompt"
DIAG = "--diag" in sys.argv
EXP = [x[6:] for x in sys.argv if x.startswith("--exp=")]

WOFF = int(([e[4:] for e in EXP if e.startswith("woff")] + ["0"])[0]) << 20
WS_U = 0
WS_PQ = 0x280000 + WOFF
WS_Y = 0x500000 + WOFF
WS_WOP = 0x780000 + WOFF
WS_KV = 0x850000 + WOFF
WS_C = 0x860000 + WOFF
CDELTA = 320 * 256
WS_FK = WS_C
WS_FY = WS_C + 8 * 256
WS_FQ = WS_C + 64 * 256
WS_G = 0x88C000 + WOFF
WS_TS = 0x890000 + WOFF
WS_SIZE = 0x900000 + WOFF
KVH = 1792

NK, NQ, NC = [int(c) for c in ([e[2:] for e in EXP if e.startswith("ns")] + ["046"])[0]]
assert 128 * NK + 64 * NQ + 64 * NC == 640 and NC <= 6
WS_F0 = 0x88E000 + WOFF
sTG = 1
N1 = int(([e[2:] for e in EXP if e.startswith("n1")] + ["8"])[0])
Q0 = int(([e[2:] for e in EXP if e.startswith("q0")] + ["2"])[0])
G0, G1 = 16 + 4 * Q0, 32 - 4 * Q0
SLOT = 36864
L_OFR = 36864
L_KVS = 77824
L_YST = 92160
L_PART = 77824
L_UB = 110592
L_UD = L_UB + 2048
L_HB = 129024
HSTR = 4224
L_SP = 145920
L_CNT = 146048
L_TAG = 146112
L_YT = 146176
L_S0C = 0
L_RPC = 49152
L_GW = L_YT + 10240
LDS_BYTES = L_GW + 2048

SX, SWQ, SWO, SK, SV, SSK, SH, SGW, SOUT, SDBG, SWS = [4 + 4 * i for i in range(11)]
SD = 48
sW, sXCD, sIDX, sRP, sCP, sTAG, sCNT = range(50, 57)
sRB, sCG, sQUAD, sCHL, sLC, sVAR, sCH, sJ, sUD = range(57, 66)
sT0, sT1, sT2, sT3, sT4, sT5, sT6, sT7 = range(66, 74)
sLOG = 74
sCI = 76
sDV = 77
STS = 80
sXOFF, sPQO, sKVO, sTB, sYO, sYM = 96, 97, 98, 99, 100, 101
sCHB = 65
sRD = 3
sWOO = 2
sEPS = 79
sBID = 78
def srd(b): return sr(b, 4)

vL = 0
VWO = 156
vL16, vOW, vPR, vRR, vPW = 1, 2, 3, 4, 5
vKE, vKO, vFK, vFY, vZ, vOUT, vPA, vPB, vYT, vFT, vGO = 9, 10, 11, 12, 13, 14, 15, 16, 17, 18, 19
vXD, vG, vXD2 = 20, 24, 28
vFQ, vFE = 27, 25

a = Asm()
BST = [None]
def stamp(i, force=False):
    if "bst" in EXP and not force and i not in (0, 10): return
    if DIAG:
        a(f"{'s_memtime' if 'cyc' in EXP else 's_memrealtime'} vcc")
        a("s_waitcnt lgkmcnt(0)")
        a(f"s_mov_b32 s{STS+i}, vcc_lo")

def poll(vaddr, vdst, state="none", sleep=2, S=None):
    L = a.newlabel("Lpoll"); D = a.newlabel("Lpd")
    if state != "none":
        if state == "issued": a("s_waitcnt vmcnt(0)")
        a(f"v_cmp_ne_u32 vcc, s{sTAG}, v{vdst}")
        a(f"s_cbranch_vccz {D}")
    a(f"s_mov_b32 s{sCNT}, 0x20000")
    a.label(L)
    a(f"buffer_load_dword v{vdst}, v{vaddr}, {srd(S or SWS)}, 0 offen sc1")
    a("s_waitcnt vmcnt(0)")
    a(f"v_cmp_ne_u32 vcc, s{sTAG}, v{vdst}")
    a(f"s_cbranch_vccz {D}")
    if sleep: a(f"s_sleep {sleep}")
    a(f"s_sub_u32 s{sCNT}, s{sCNT}, 1")
    a(f"s_cbranch_scc0 {L}")
    a.label(D)

def cnt_load(S, vaddr, vdst):
    a(f"buffer_load_dword v{vdst}, v{vaddr}, {srd(S)}, 0 offen sc1")

def tag_get(vz, vdst, state="issued"):
    L = a.newlabel("Ltag"); D = a.newlabel("Ltd")
    if state != "none":
        if state == "issued": a("s_waitcnt vmcnt(0)")
        a(f"v_readfirstlane_b32 s{sTAG}, v{vdst}")
        a(f"s_cmp_lg_u32 s{sTAG}, 0")
        a(f"s_cbranch_scc1 {D}")
    a(f"s_mov_b32 s{sCNT}, 0x20000")
    a.label(L)
    a(f"buffer_load_dword v{vdst}, v{vz}, {srd(SDBG)}, 0 offen sc1")
    a("s_waitcnt vmcnt(0)")
    a(f"v_readfirstlane_b32 s{sTAG}, v{vdst}")
    a(f"s_cmp_lg_u32 s{sTAG}, 0")
    a(f"s_cbranch_scc1 {D}")
    a("s_sleep 2")
    a(f"s_sub_u32 s{sCNT}, s{sCNT}, 1")
    a(f"s_cbranch_scc0 {L}")
    a.label(D)

def tag_lds(vtmp):
    a(f"v_mov_b32 v{vtmp}, {L_TAG}")
    a(f"ds_read_b32 v{vtmp}, v{vtmp}")
    a("s_waitcnt lgkmcnt(0)")
    a(f"v_readfirstlane_b32 s{sTAG}, v{vtmp}")

def arr_prep(vt0, vt1):
    a(f"v_mov_b32 v{vt0}, {CDELTA}")
    a(f"v_mov_b32 v{vt1}, 1")
def arr_issue(vt0, vt1, soff):
    a("s_mov_b64 exec, 1")
    a(f"buffer_atomic_add v{vt1}, v{vt0}, {srd(SWS)}, {soff} offen sc0 sc1")
    a("s_mov_b64 exec, -1")
def arr_finish(vt0, vt1, soff, n, wait=0):
    D = a.newlabel("Lal")
    a(f"s_waitcnt vmcnt({wait})")
    a(f"v_readfirstlane_b32 s{sT7}, v{vt1}")
    a(f"s_cmp_lg_u32 s{sT7}, {n-1}")
    a(f"s_cbranch_scc1 {D}")
    flag_store(vt0, vt1, soff)
    a.label(D)
def flag_store(vt0, vt1, soff):
    a(f"v_mov_b32 v{vt0}, 0")
    a(f"v_mov_b32 v{vt1}, s{sTAG}")
    a("s_mov_b64 exec, 1")
    a(f"buffer_store_dword v{vt1}, v{vt0}, {srd(SWS)}, {soff} offen sc1")
    a("s_mov_b64 exec, -1")

def darr_issue(vz, v1, off):
    a(f"v_mov_b32 v{v1}, 1")
    a("s_mov_b64 exec, 1")
    a(f"buffer_atomic_add v{v1}, v{vz}, {srd(SDBG)}, 0 offen offset:{off} sc0 sc1")
    a("s_mov_b64 exec, -1")
def darr_finish(vz, v1, off, n, wait=0):
    D = a.newlabel("Lda")
    a(f"s_waitcnt vmcnt({wait})")
    a(f"v_readfirstlane_b32 s{sT7}, v{v1}")
    a(f"s_cmp_lg_u32 s{sT7}, {n-1}")
    a(f"s_cbranch_scc1 {D}")
    a(f"v_mov_b32 v{v1}, 1")
    a("s_mov_b64 exec, 1")
    a(f"buffer_store_dword v{v1}, v{vz}, {srd(SDBG)}, 0 offen offset:{128+off} sc1")
    a("s_mov_b64 exec, -1")
    a.label(D)

def lds_arrive(vaddr, vtmp):
    a(f"v_mov_b32 v{vtmp}, 1")
    a("s_mov_b64 exec, 1")
    a(f"ds_add_u32 v{vaddr}, v{vtmp}")
    a("s_mov_b64 exec, -1")
def lds_wait(vaddr, vtmp, target):
    L = a.newlabel("Lls"); D = a.newlabel("Lld")
    a(f"s_mov_b32 s{sCNT}, 0x400000")
    a.label(L)
    a(f"ds_read_b32 v{vtmp}, v{vaddr}")
    a("s_waitcnt lgkmcnt(0)")
    a(f"v_readfirstlane_b32 s{sT7}, v{vtmp}")
    a(f"s_cmp_ge_u32 s{sT7}, {target}")
    a(f"s_cbranch_scc1 {D}")
    a(f"s_sub_u32 s{sCNT}, s{sCNT}, 1")
    a(f"s_cbranch_scc0 {L}")
    a.label(D)

def div20(vq, vr_, vp):
    a(f"v_mul_u32_u24 v{vq}, 3277, v{vp}")
    a(f"v_lshrrev_b32 v{vq}, 16, v{vq}")
    a(f"v_mul_u32_u24 v{vr_}, 20, v{vq}")
    a(f"v_sub_u32 v{vr_}, v{vp}, v{vr_}")
for p in range(1000): assert (p * 3277) >> 16 == p // 20

SIZES = {SX: 2621440, SWQ: 2457600, SWO: 819200, SK: 2621440, SV: 2621440, SSK: 5120, SH: 2621440, SGW: 1280, SOUT: 2621440, SDBG: 256, SWS: WS_SIZE}
def srd_init(lst):
    for s in lst:
        a(f"s_mov_b32 s{s+2}, {SIZES[s]}")
        a(f"s_mov_b32 s{s+3}, 0x20000")
def ka_rest():
    if "ka1" not in EXP: return
    for s, off in ((SK, 32), (SV, 40), (SSK, 48), (SWS, 96), (SDBG, 88), (SH, 56), (SWO, 16), (SGW, 72), (SOUT, 80), (SD, 64)):
        a(f"s_load_dwordx2 {sr(s,2)}, s[0:1], {off}")
def common_scalars():
    a(f"s_mov_b32 s{sLOG}, 0x3fb8aa3b")
    a(f"s_mov_b32 s{sLOG+1}, 0x3fb8aa3b")
    a(f"s_mov_b32 s{sEPS}, 0x358637bd")
    a(f"s_mul_i32 s{sT0}, s{sCP}, {32-G0}")
    a(f"s_lshl_b32 s{sCI}, s{sRP}, 4")
    a(f"s_add_u32 s{sCI}, s{sCI}, s{sT0}")
    a(f"s_add_u32 s{sCI}, s{sCI}, s{sIDX}")
    a(f"s_sub_u32 s{sCI}, s{sCI}, s{sXCD}")

def entry():
    a.label("Lentry")
    a(f"s_cmp_ge_u32 s2, 256")
    a("s_cbranch_scc1 Lend")
    if "scr" in EXP:
        a("s_and_b32 s3, s2, 31")
        a("s_lshl_b32 s3, s3, 3")
        a("s_lshr_b32 s2, s2, 5")
        a("s_or_b32 s2, s2, s3")
    if DIAG: a(f"s_memrealtime {sr(sT6,2)}")
    a(f"s_getpc_b64 {sr(sT0,2)}")
    a.label("Lpcref")
    a(f"s_lshr_b32 s{sIDX}, s2, 3")
    a(f"s_mul_i32 s{sT2}, s{sIDX}, 9")
    a("v_min_u32 v1, 8, v0")
    a(f"v_add_lshl_u32 v1, v1, s{sT2}, 7")
    a("v_min_u32 v1, Lend-Lpcref, v1")
    if "nocpf" not in EXP: a(f"global_load_dword v255, v1, {sr(sT0,2)}")
    for s, off in ((SX, 0), (SWQ, 8), (SK, 32), (SV, 40), (SSK, 48), (SWS, 96), (SDBG, 88), (SH, 56), (SWO, 16), (SGW, 72), (SOUT, 80), (SD, 64)):
        if "ka1" in EXP and off >= 16: continue
        a(f"s_load_dwordx2 {sr(s,2)}, s[0:1], {off}")
    a("v_lshrrev_b32 v1, 6, v0")
    a(f"v_and_b32 v{vL}, 63, v0")
    a(f"v_readfirstlane_b32 s{sW}, v1")
    a("s_bitcmp1_b32 s2, 2")
    a(f"s_cselect_b32 s{sXCD}, {G1}, {G0}")
    a(f"s_and_b32 s{sRP}, s2, 3")
    a(f"s_bfe_u32 s{sCP}, s2, 0x10002")
    a(f"s_mov_b32 s{sBID}, s2")
    a(f"s_mov_b32 s{sTAG}, 1")
    a(f"s_and_b32 s{sT0}, s{sIDX}, 3")
    a(f"s_lshl_b32 s{sRB}, s{sRP}, 2")
    a(f"s_add_u32 s{sRB}, s{sRB}, s{sT0}")
    if DIAG:
        for i in range(16): a(f"s_mov_b32 s{STS+i}, 0")
        stamp(0)
        a(f"s_mov_b32 s{STS+10}, s{sT6}")
        a(f"s_memtime vcc")
        a("s_waitcnt lgkmcnt(0)")
        a(f"s_mov_b32 s{STS+14}, vcc_lo")
    a(f"s_cmp_ge_u32 s{sIDX}, s{sXCD}")
    a("s_cbranch_scc1 Lctype")
    a(f"s_cmp_lt_u32 s{sW}, 4")
    a("s_cbranch_scc1 Lawave")

def s3_setup(split=None):
    a.c("S3 setup")
    sR3, sC3 = sT2, sT3
    a(f"s_lshr_b32 s{sT0}, s{sIDX}, 1")
    a(f"s_lshl_b32 s{sR3}, s{sRP}, 4")
    a(f"s_add_u32 s{sR3}, s{sR3}, s{sT0}")
    a(f"s_and_b32 s{sT0}, s{sIDX}, 1")
    a(f"s_lshl_b32 s{sC3}, s{sCP}, 1")
    a(f"s_add_u32 s{sC3}, s{sC3}, s{sT0}")
    a(f"v_lshlrev_b32 v{vL16}, 4, v{vL}")
    a(f"v_mov_b32 v{vZ}, 0")
    a(f"v_and_b32 v24, 31, v{vL}")
    a(f"v_lshrrev_b32 v25, 5, v{vL}")
    a(f"s_and_b32 s{sT0}, s{sW}, 3")
    a(f"s_lshl_b32 s{sT1}, s{sT0}, 6")
    a(f"s_lshl_b32 s{sT4}, s{sT0}, 4")
    a(f"s_add_u32 s{sT4}, s{sT4}, 256")
    a(f"s_cmp_lt_u32 s{sW}, 4")
    a(f"s_cselect_b32 s{sT1}, s{sT1}, s{sT4}")
    a(f"s_cselect_b32 s{sT5}, 4, 3")
    a(f"v_mul_u32_u24 v{vOUT}, 1280, v24")
    a(f"v_lshl_add_u32 v{vOUT}, v25, s{sT5}, v{vOUT}")
    a(f"s_mul_i32 s{sXOFF}, s{sR3}, 40960")
    a(f"s_mul_i32 s{sT4}, s{sC3}, 320")
    a(f"s_add_u32 s{sYO}, s{sXOFF}, {WS_Y}")
    a(f"s_add_u32 s{sXOFF}, s{sXOFF}, s{sT4}")
    a(f"s_add_u32 s{sXOFF}, s{sXOFF}, s{sT1}")
    a(f"s_lshl_b32 s{sT5}, s{sR3}, 7")
    a(f"s_add_u32 s{sT5}, s{sT5}, {WS_G}")
    a(f"v_lshlrev_b32 v{vGO}, 2, v24")
    a(f"v_add_u32 v{vGO}, s{sT5}, v{vGO}")
    a(f"v_bfe_u32 v26, v{vL}, 2, 2")
    a("v_lshl_add_u32 v26, v25, 2, v26")
    a(f"v_lshlrev_b32 v{vYT}, 6, v26")
    a(f"v_bfe_u32 v26, v{vL}, 4, 1")
    a(f"v_lshl_add_u32 v{vYT}, v26, 5, v{vYT}")
    a(f"v_and_b32 v26, 3, v{vL}")
    a(f"v_lshl_add_u32 v{vYT}, v26, 3, v{vYT}")
    a(f"s_lshl_b32 s{sT1}, s{sT1}, 5")
    a(f"s_add_u32 s{sT1}, s{sT1}, {L_YT}")
    a(f"v_add_u32 v{vYT}, s{sT1}, v{vYT}")
    a(f"s_lshl_b32 s{sT1}, s{sT0}, 12")
    a(f"s_add_u32 s{sT1}, s{sT1}, {L_PART}")
    a(f"v_add_u32 v{vPW}, s{sT1}, v{vL16}")
    a(f"s_lshl_b32 s{sT1}, s{sT0}, 10")
    a(f"s_add_u32 s{sT1}, s{sT1}, {L_PART+16384}")
    a(f"v_add_u32 v{vPA}, s{sT1}, v{vL16}")
    a(f"s_mul_i32 s{sT1}, s{sT0}, {10*1024}")
    a(f"s_add_u32 s{sT1}, s{sT1}, {L_OFR}")
    a(f"v_add_u32 v{vRR}, s{sT1}, v{vL16}")
    a(f"v_add_u32 v{vPR}, {L_OFR}, v{vL16}")
    a(f"s_mul_i32 s{sT1}, s{sW}, 5120")
    a(f"s_add_u32 s{sT4}, s{sT1}, {L_OFR}")
    a(f"v_add_u32 v{vOW}, s{sT4}, v{vL16}")
    a(f"s_add_u32 s{sPQO}, s{sYO}, s{sT1}")
    a(f"s_add_u32 s{sPQO}, s{sPQO}, {(WS_PQ-WS_Y)&0xffffffff}")
    a("v_mul_u32_u24 v25, 336, v25")
    a("v_min_u32 v26, 20, v24")
    a("v_lshl_add_u32 v26, v26, 4, v25")
    a("v_lshrrev_b32 v27, 2, v24")
    a(f"v_mov_b32 v{vFT}, 0x7f000000")
    a("v_cmp_eq_u32 vcc, 5, v27")
    a(f"v_subrev_u32 v{vKO}, 4, v24")
    a(f"v_lshl_add_u32 v{vKO}, v{vKO}, 4, v25")
    a(f"v_cndmask_b32 v{vKE}, v26, v{vFT}, vcc")
    a(f"v_cndmask_b32 v{vKO}, v26, v{vKO}, vcc")
    a("v_cmp_eq_u32 vcc, 4, v27")
    a(f"s_mul_i32 s{sKVO}, s{sW}, {4*KVH}")
    a(f"s_add_u32 s{sKVO}, s{sKVO}, {WS_KV}")
    a(f"v_cndmask_b32 v{vKO}, v{vKO}, v{vFT}, vcc")
    a(f"s_lshl_b32 s{sT1}, s{sW}, 8")
    a(f"s_add_u32 s{sT1}, s{sT1}, {WS_FK}")
    a(f"v_lshrrev_b32 v{vFK}, 5, v{vL}")
    a(f"v_lshlrev_b32 v{vFK}, 10, v{vFK}")
    a(f"v_add_u32 v{vFK}, s{sT1}, v{vFK}")
    a(f"v_mov_b32 v{vFQ}, v{vFK}")
    a(f"s_lshr_b32 s{sT1}, s{sR3}, 1")
    a(f"s_lshl_b32 s{sT1}, s{sT1}, 3")
    a(f"s_add_u32 s{sT1}, s{sT1}, s{sW}")
    a(f"s_lshl_b32 s{sT1}, s{sT1}, 8")
    a(f"s_add_u32 s{sT1}, s{sT1}, {WS_FQ}")
    a(f"v_writelane_b32 v{vFK}, s{sT1}, 0")
    a(f"s_add_u32 s{sT1}, s{sT1}, 1024")
    a(f"v_writelane_b32 v{vFK}, s{sT1}, 1")
    a(f"s_lshr_b32 s{sT1}, s{sR3}, 3")
    a(f"s_add_u32 s{sT1}, s{sT1}, 2")
    a(f"s_bfe_u32 s{sT1}, s{sT1}, 0x10002")
    a(f"s_mul_i32 s{sT1}, s{sT1}, 20")
    a(f"s_mul_i32 s{sT4}, s{sC3}, 5")
    a(f"s_add_u32 s{sT1}, s{sT1}, s{sT4}")
    a(f"s_lshl_b32 s{sT1}, s{sT1}, 8")
    a(f"s_add_u32 s{sT1}, s{sT1}, {WS_FY + 4*256}")
    a(f"v_mov_b32 v{vFY}, s{sT1}")
    a(f"s_lshl_b32 s{sT5}, s{sT0}, 8")
    a(f"s_add_u32 s{sT1}, s{sT1}, s{sT5}")
    a(f"s_sub_u32 s{sT1}, s{sT1}, {4*256}")
    a(f"v_writelane_b32 v{vFY}, s{sT1}, 0")
    a(f"s_lshl_b32 s{sT4}, s{sT4}, 11")
    a(f"s_add_u32 s{sYO}, s{sYO}, s{sT4}")
    a(f"s_lshl_b32 s{sYM}, s{sT0}, 11")

def x_loads():
    E = a.newlabel("Lxe"); D = a.newlabel("Lxd")
    a(f"s_cmp_ge_u32 s{sW}, 4")
    a(f"s_cbranch_scc1 {E}")
    a(f"buffer_load_dwordx4 {vr(vXD,4)}, v{vOUT}, {srd(SX)}, s{sXOFF} offen")
    a(f"buffer_load_dwordx4 {vr(vXD2,4)}, v{vOUT}, {srd(SX)}, s{sXOFF} offen offset:32")
    a(f"s_branch {D}")
    a.label(E)
    a(f"buffer_load_dword v{vXD}, v{vOUT}, {srd(SX)}, s{sXOFF} offen")
    a(f"buffer_load_dword v{vXD+1}, v{vOUT}, {srd(SX)}, s{sXOFF} offen offset:4")
    a.label(D)

def wo_prep(vtmp):
    a(f"s_and_b32 s{sT4}, s{sIDX}, 1")
    a(f"s_lshl_b32 s{sT5}, s{sCP}, 1")
    a(f"s_add_u32 s{sT4}, s{sT4}, s{sT5}")
    a(f"s_lshl_b32 s{sT4}, s{sT4}, 3")
    a(f"s_add_u32 s{sT4}, s{sT4}, s{sW}")
    a(f"s_mul_i32 s{sT4}, s{sT4}, 25600")
    a(f"s_add_u32 s{sWOO}, s{sT4}, {WS_WOP}")
    a(f"v_lshlrev_b32 v{vtmp}, 4, v{vL}")
def wo_list(vtmp, order=None):
    out = []
    for i in range(25):
        t = f"buffer_load_dwordx4 {vr(VWO+4*i,4)}, v{vtmp}, {srd(SWS)}, s{sWOO} offen offset:{1024*(i&3)} sc1"
        if (i & 3) == 3: t += f"\ns_add_u32 s{sWOO}, s{sWOO}, 4096"
        out.append(t)
    return out

S0B = 156
def s0_task(st):
    a(f"s_mul_i32 s{sTB}, s{st}, 6554")
    a(f"s_lshr_b32 s{sTB}, s{sTB}, 16")
    a(f"s_mul_i32 s{sCHB}, s{sTB}, 10")
    a(f"s_sub_u32 s{sCHB}, s{st}, s{sCHB}")
for t in range(640): assert (t * 6554) >> 16 == t // 10

def s0_loads(LB=None, init=True):
    a.c("S0 loads")
    B = S0B
    a(f"v_lshrrev_b32 v{B+1}, 3, v{vL}")
    a(f"v_and_b32 v{B+2}, 7, v{vL}")
    a(f"v_mul_u32_u24 v{B+3}, 5120, v{B+1}")
    a(f"v_lshl_add_u32 v{B+3}, v{B+2}, 4, v{B+3}")
    a(f"s_mul_i32 s{sT0}, s{sTB}, 40960")
    a(f"s_lshl_b32 s{sT1}, s{sCHB}, 7")
    a(f"s_add_u32 s{sT0}, s{sT0}, s{sT1}")
    a(f"v_add_u32 v{B+64}, s{sT0}, v{B+3}")
    a(f"v_subrev_u32 v{B+65}, 3840, v{B+64}")
    a(f"v_lshlrev_b32 v{B+66}, 6, v{B+2}")
    a(f"s_lshl_b32 s{sT1}, s{sCHB}, 9")
    if init:
        srd_init([SK, SV, SSK])
        a("s_waitcnt lgkmcnt(0)")
    LB = LB or B
    for i in range(4): a(f"buffer_load_dwordx4 {vr(LB+16+4*i,4)}, v{B+64}, {srd(SK)}, 0 offen offset:{1280*i}")
    for i in range(3): a(f"buffer_load_dwordx4 {vr(LB+4+4*i,4)}, v{B+65}, {srd(SK)}, 0 offen offset:{1280*i}")
    for i in range(4): a(f"buffer_load_dwordx4 {vr(LB+32+4*i,4)}, v{B+64}, {srd(SV)}, 0 offen offset:{1280*i}")
    for i in range(4): a(f"buffer_load_dwordx4 {vr(LB+48+4*i,4)}, v{B+66}, {srd(SSK)}, s{sT1} offen offset:{16*i}")

def s0_addr(s_scr):
    B = S0B
    a(f"v_mul_u32_u24 v{B+67}, 576, v{B+1}")
    a(f"v_lshl_add_u32 v{B+67}, v{B+2}, 4, v{B+67}")
    a(f"v_add_u32 v{B+67}, s{s_scr}, v{B+67}")
    a(f"v_and_b32 v{B+68}, 15, v{vL}")
    a(f"v_mul_u32_u24 v{B+69}, 144, v{B+68}")
    a(f"v_lshrrev_b32 v{B+70}, 4, v{vL}")
    a(f"v_lshl_add_u32 v{B+69}, v{B+70}, 3, v{B+69}")
    a(f"v_add_u32 v{B+69}, s{s_scr}, v{B+69}")
    a(f"s_and_b32 s{sT0}, s{sTB}, 3")
    a(f"v_xor_b32 v{B+68}, s{sT0}, v{B+68}")
    a(f"v_lshlrev_b32 v{B+68}, 4, v{B+68}")
    a(f"v_lshl_add_u32 v{B+68}, v{B+70}, 14, v{B+68}")
    a(f"s_lshl_b32 s{sT0}, s{sCHB}, 18")
    a(f"s_lshl_b32 s{sT1}, s{sTB}, 8")
    a(f"s_add_u32 s{sT0}, s{sT0}, s{sT1}")
    if WOFF: a(f"s_add_u32 s{sT0}, s{sT0}, {WOFF}")
    a(f"s_mov_b32 s{sT1}, 0xffff0000")

def s0_compute(split=None, pk=True, LB=None):
    a.c("S0 compute")
    B = S0B
    LB = LB or B
    KF, VF, WF, AC, UO = 112, 126, 134, B + 88, B + 72
    for p in range(4):
        for cc in range(2):
            c = 2 * p + cc
            for h in range(2):
                a(f"v_lshlrev_b32 v{WF+4*h+cc}, 16, v{LB+48+2*c+h}")
                a(f"v_and_b32 v{WF+4*h+2+cc}, s{sT1}, v{LB+48+2*c+h}")
        for r in range(7):
            a(f"v_lshlrev_b32 v{KF+2*r}, 16, v{LB+4+4*r+p}")
            a(f"v_and_b32 v{KF+2*r+1}, s{sT1}, v{LB+4+4*r+p}")
        for r in range(4):
            a(f"v_lshlrev_b32 v{VF+2*r}, 16, v{LB+32+4*r+p}")
            a(f"v_and_b32 v{VF+2*r+1}, s{sT1}, v{LB+32+4*r+p}")
        if pk:
            for i in range(4): a(f"v_pk_mul_f32 {vr(AC+2*i,2)}, {vr(KF+2*(i+3),2)}, {vr(WF,2)}")
            for d in range(1, 4):
                for i in range(4): a(f"v_pk_fma_f32 {vr(AC+2*i,2)}, {vr(KF+2*(i+3-d),2)}, {vr(WF+2*d,2)}, {vr(AC+2*i,2)}")
            for i in range(4): a(f"v_pk_mul_f32 {vr(AC+2*i,2)}, {vr(AC+2*i,2)}, {vr(VF+2*i,2)}")
        else:
            for i in range(8): a(f"v_mul_f32 v{AC+i}, v{KF+6+i}, v{WF+(i&1)}")
            for d in range(1, 4):
                for i in range(8): a(f"v_fmac_f32 v{AC+i}, v{KF+6+i-2*d}, v{WF+2*d+(i&1)}")
            for i in range(8): a(f"v_mul_f32 v{AC+i}, v{AC+i}, v{VF+i}")
        for i in range(4): a(f"v_cvt_pk_bf16_f32 v{UO+4*i+p}, v{AC+2*i}, v{AC+2*i+1}")
        if split: split(p)
    for i in range(4): a(f"ds_write_b128 v{B+67}, {vr(UO+4*i,4)} offset:{144*i}")
    for j in range(4):
        a(f"ds_read_b64_tr_b16 {vr(LB+4+4*j,2)}, v{B+69} offset:{32*j}")
        a(f"ds_read_b64_tr_b16 {vr(LB+6+4*j,2)}, v{B+69} offset:{32*j+2304}")
    for j in range(4):
        a(f"s_waitcnt lgkmcnt({6-2*j})")
        a(f"buffer_store_dwordx4 {vr(LB+4+4*j,4)}, v{B+68}, {srd(SWS)}, s{sT0} offen sc1")
        if j < 3: a(f"s_add_u32 s{sT0}, s{sT0}, 65536")

def tg_issue(vz, vd):
    a(f"buffer_load_dword v{vd}, v{vz}, {srd(SDBG)}, 0 offen offset:192 sc1")
def tg_flag(vz, vd, stask):
    L = a.newlabel("Ltg"); D = a.newlabel("Ltd")
    a(f"s_mov_b32 s{sCNT}, 0x20000")
    a.label(L)
    a("s_waitcnt vmcnt(0)")
    a(f"v_readfirstlane_b32 s{sT7}, v{vd}")
    a(f"s_cmp_lg_u32 s{sT7}, 0")
    a(f"s_cbranch_scc1 {D}")
    tg_issue(vz, vd)
    a(f"s_sub_u32 s{sCNT}, s{sCNT}, 1")
    a(f"s_cbranch_scc0 {L}")
    a.label(D)
    a("s_mov_b64 exec, 1")
    a(f"buffer_store_dword v{vd}, v{vz}, {srd(SWS)}, s{stask} offen sc1")
    a("s_mov_b64 exec, -1")

def a_s0_loads(n, base_expr):
    if n == 0: return
    D = a.newlabel("Las")
    a(f"s_cmp_ge_u32 s{sW}, {n}")
    a(f"s_cbranch_scc1 {D}")
    base_expr()
    a(f"s_add_u32 s{sQUAD}, s{sQUAD}, s{sW}")
    s0_task(sQUAD)
    s0_loads()
    a(f"s_lshl_b32 s{sQUAD}, s{sQUAD}, 2")
    a(f"s_add_u32 s{sQUAD}, s{sQUAD}, {WS_F0}")
    a.label(D)
def a_s0_compute(n):
    a("v_mov_b32 v24, 0")
    if n == 0: return
    D = a.newlabel("Lac")
    a(f"s_cmp_ge_u32 s{sW}, {n}")
    a(f"s_cbranch_scc1 {D}")
    a(f"s_mul_i32 s{sT2}, s{sW}, 4608")
    a(f"s_add_u32 s{sT2}, s{sT2}, {2*SLOT}")
    s0_addr(sT2)
    a("s_waitcnt vmcnt(0)")
    stamp(11)
    tg_issue(24, 25)
    s0_compute()
    stamp(12)
    a.label(D)

ACC = 32
FB = [112, 156]
vX0, vX1, vWA, vWX = 148, 149, 150, 154
vA1, vA2, vC16, vG4 = 16, 17, 18, 19
sC, sSL = sT2, sT3

def a_setup():
    a.c("A-wave address setup")
    a(f"s_and_b32 s{sT0}, s{sW}, 1")
    a(f"s_lshr_b32 s{sT1}, s{sW}, 1")
    a(f"v_and_b32 v{vC16}, 15, v{vL}")
    a(f"v_lshrrev_b32 v{vG4}, 4, v{vL}")
    a(f"v_lshrrev_b32 v8, 1, v{vC16}")
    a(f"v_xor_b32 v8, v{vG4}, v8")
    a(f"v_lshlrev_b32 v8, 4, v8")
    a(f"v_lshl_add_u32 v8, v{vC16}, 7, v8")
    a(f"s_lshl_b32 s{sT4}, s{sT1}, 13")
    a(f"v_add_u32 v{vX0}, s{sT4}, v8")
    a(f"v_xor_b32 v{vX1}, 64, v{vX0}")
    a(f"v_bfe_u32 v8, v{vL}, 2, 2")
    a(f"v_lshl_add_u32 v9, v{vG4}, 3, v8")
    a(f"v_and_b32 v10, 1, v{vG4}")
    a(f"v_xor_b32 v10, s{sT0}, v10")
    a(f"v_and_b32 v11, 3, v{vL}")
    a("v_lshlrev_b32 v11, 3, v11")
    a(f"v_lshl_add_u32 v{vWX}, v9, 6, v11")
    a(f"v_lshl_add_u32 v{vWX}, v10, 5, v{vWX}")
    a(f"v_add_u32 v{vWX}, 32768, v{vWX}")
    a("v_lshl_or_b32 v8, v10, 2, v8")
    a("v_lshl_add_u32 v8, v8, 5, v11")
    a("v_lshl_add_u32 v8, v9, 8, v8")
    a(f"v_add_u32 v{vWA}, 16384, v8")
    for tt in range(1, 4): a(f"v_xor_b32 v{vWA+tt}, {32*tt}, v{vWA}")

def a_reads(buf, ks):
    b = FB[buf]
    xs = [f"ds_read_b128 {vr(b+4*rt,4)}, v{vX1 if ks else vX0} offset:{2048*rt}" for rt in range(4)]
    ws = []
    for tt in range(5):
        for sec in range(2):
            if tt < 4: ws.append(f"ds_read_b64_tr_b16 {vr(b+16+4*tt+2*sec,2)}, v{vWA+tt} offset:{ks*8192+sec*1024}")
            else: ws.append(f"ds_read_b64_tr_b16 {vr(b+16+4*tt+2*sec,2)}, v{vWX} offset:{ks*2048+sec*256}")
    return [xs[0], ws[0], ws[1], xs[1], ws[2], ws[3], xs[2], ws[4], ws[5], xs[3]] + ws[6:]

def acc(rt, tt): return ACC + 4 * (rt * 5 + tt)

def a_mfmas(buf, qtype, order=None):
    b = FB[buf]
    out = []
    for (rt, tt) in (order or [(rt, tt) for tt in range(5) for rt in range(4)]):
        d = vr(acc(rt, tt), 4)
        xf = vr(b + 4 * rt, 4); wf = vr(b + 16 + 4 * tt, 4)
        A, B = (wf, xf) if qtype else (xf, wf)
        out.append(f"v_mfma_f32_16x16x32_bf16 {d}, {A}, {B}, {d}")
    return out

def interleave(mf, rd):
    j = 0
    for i, m in enumerate(mf):
        a(m)
        if j < len(rd): a(rd[j]); j += 1
    while j < len(rd): a(rd[j]); j += 1

def a_mainloop(qtype):
    t = "q" if qtype else "k"
    a.c("A main loop")
    a(f"s_mov_b32 s{sC}, 0")
    a(f"s_mov_b32 s{sSL}, 0")
    a(f"s_mov_b32 s{sT6}, {1<<10}")
    a(f"s_cmp_lt_u32 s{sW}, {NQ if qtype else NK}")
    a(f"s_cselect_b32 s{sT6}, {(1<<10)|(1<<1)}, s{sT6}")
    if "prio" in EXP: a("s_setprio 2")
    a("s_waitcnt lgkmcnt(0)")
    if "ast" in EXP: stamp(1, True)
    a("s_barrier")
    stamp(1)
    for r in a_reads(0, 0): a(r)
    book = [
        f"s_add_u32 s{sSL}, s{sSL}, 1\ns_cmp_eq_u32 s{sSL}, 3",
        f"s_mov_b32 s{sT4}, {SLOT}",
        f"s_cselect_b32 s{sT4}, {-2*SLOT & 0xffffffff}, s{sT4}",
        f"s_cselect_b32 s{sSL}, 0, s{sSL}\ns_add_u32 s{sC}, s{sC}, 1",
    ]
    src_ = f"s{sT4}"
    rd = a_reads(1, 1)
    seq = []
    for i, r in enumerate(rd): seq.append(r + ("\n" + book[i - 2] if 2 <= i < 6 else ""))
    seq += [f"v_add_u32 v{vX0}, {src_}, v{vX0}\nv_add_u32 v{vX1}, {src_}, v{vX1}",
            f"v_add_u32 v{vWA}, {src_}, v{vWA}\nv_add_u32 v{vWA+1}, {src_}, v{vWA+1}",
            f"v_add_u32 v{vWA+2}, {src_}, v{vWA+2}\nv_add_u32 v{vWA+3}, {src_}, v{vWA+3}",
            f"v_add_u32 v{vWX}, {src_}, v{vWX}\ns_bitcmp1_b32 s{sT6}, s{sC}"]
    a(".p2align 3")
    a.label(f"Lml{t}")
    a("s_waitcnt lgkmcnt(0)")
    interleave(a_mfmas(0, qtype), seq)
    a("s_waitcnt lgkmcnt(0)")
    a(f"s_cbranch_scc1 Lhook{t}")
    a.label(f"Lhookd{t}")
    if "ast" in EXP:
        a("s_memrealtime vcc")
        a("s_waitcnt lgkmcnt(0)")
        a(f"s_mov_b32 m0, s{sC}")
        a("v_writelane_b32 v29, vcc_lo, m0")
    a("s_barrier")
    interleave(a_mfmas(1, qtype), a_reads(0, 0))
    a(f"s_branch Lml{t}")
    a.label(f"Lhook{t}")
    if (NQ if qtype else NK):
        a(f"s_cmp_eq_u32 s{sC}, 10")
        a(f"s_cbranch_scc1 Lmx{t}")
        tg_flag(24, 25, sQUAD)
        a(f"s_branch Lhookd{t}")
        a.label(f"Lmx{t}")
    if "ast" in EXP:
        for c in range(1, 9): a(f"v_readlane_b32 s{STS+1+c}, v29, {c}")

def acc_zero():
    for i in range(80): a(f"v_mov_b32 v{ACC+i}, 0")

def phi_list(regs, tmp, pk=False):
    out = []
    B = 4
    for i in range(0, len(regs), B):
        batch = regs[i:i + B]
        for j, r in enumerate(batch):
            if pk:
                out.append(f"v_pk_mul_f32 {vr(tmp+2*j,2)}, {vr(r,2)}, {sr(sLOG,2)}"); continue
            out.append(f"v_mul_f32 v{tmp+2*j}, s{sLOG}, v{r}")
            out.append(f"v_mul_f32 v{tmp+2*j+1}, s{sLOG}, v{r+1}")
        for j, r in enumerate(batch):
            out.append(f"v_exp_f32_e64 v{tmp+2*j}, v{tmp+2*j} clamp")
            out.append(f"v_exp_f32_e64 v{tmp+2*j+1}, v{tmp+2*j+1} clamp")
        for j, r in enumerate(batch):
            out.append(f"v_max_f32 v{r}, s{sEPS}, v{r}")
            out.append(f"v_max_f32 v{r+1}, s{sEPS}, v{r+1}")
        for j, r in enumerate(batch):
            if pk:
                out.append(f"v_pk_add_f32 {vr(r,2)}, {vr(r,2)}, {vr(tmp+2*j,2)}"); continue
            out.append(f"v_add_f32 v{r}, v{r}, v{tmp+2*j}")
            out.append(f"v_add_f32 v{r+1}, v{r+1}, v{tmp+2*j+1}")
    return out

def sprinkle(main, extra, every, start=0):
    j = 0
    for i, m in enumerate(main):
        a(m)
        if i >= start and (i - start) % every == every - 1 and j < len(extra):
            a(extra[j]); j += 1
    return extra[j:]

def fc_addr(v):
    a(f"v_and_b32 v{v}, 7, v{vL}")
    a(f"v_lshlrev_b32 v{v}, 8, v{v}")
    a(f"v_add_u32 v{v}, {WS_FC}, v{v}")
def f0_addr(v):
    a(f"s_lshr_b32 s{sT4}, s{sQUAD}, 4")
    a(f"s_lshl_b32 s{sT4}, s{sT4}, 8")
    a(f"s_add_u32 s{sT4}, s{sT4}, {WS_F0}")
    a(f"v_mov_b32 v{v}, s{sT4}")

def awave():
    a.label("Lawave")
    ka_rest()
    a(f"s_cmp_ge_u32 s{sIDX}, 16")
    a("s_cbranch_scc1 Lqa")
    def kb():
        a(f"s_and_b32 s{sQUAD}, s{sBID}, 127")
        a(f"s_mul_i32 s{sQUAD}, s{sQUAD}, {NK}")
    a_s0_loads(NK, kb)
    srd_init([SWS, SDBG])
    common_scalars()
    srd_init([SX, SOUT])
    acc_zero()

def kva():
    a(f"s_lshr_b32 s{sT0}, s{sIDX}, 2")
    a(f"s_lshl_b32 s{sCG}, s{sCP}, 2")
    a(f"s_add_u32 s{sCG}, s{sCG}, s{sT0}")
    a_setup()
    a(f"s_mul_i32 s{sT4}, s{sW}, 3584")
    a(f"s_add_u32 s{sT4}, s{sT4}, {L_KVS}")
    a(f"v_mul_u32_u24 v8, 336, v{vG4}")
    a(f"v_add_u32 v8, s{sT4}, v8")
    a(f"v_lshl_add_u32 v{vA1}, v{vC16}, 4, v8")
    a(f"v_add_u32 v9, 8, v{vC16}")
    a(f"v_subrev_u32 v10, 12, v{vC16}")
    a(f"v_cmp_lt_u32 vcc, 11, v{vC16}")
    a("v_cndmask_b32 v9, v9, v10, vcc")
    a(f"v_cmp_eq_u32 vcc, 0, v{vC16}")
    a("v_mov_b32 v10, 20")
    a("v_cndmask_b32 v9, v9, v10, vcc")
    a(f"v_lshl_add_u32 v{vA2}, v9, 4, v8")
    a(f"s_lshl_b32 s{sT4}, s{sT0}, 2")
    a(f"s_add_u32 s{sT4}, s{sT4}, {L_CNT}")
    a(f"v_mov_b32 v20, s{sT4}")
    a(f"s_mul_i32 s{sT4}, s{sT0}, 3584")
    a(f"s_mul_i32 s{sT5}, s{sT1}, {KVH}")
    a(f"s_add_u32 s{sT4}, s{sT4}, s{sT5}")
    a(f"v_lshlrev_b32 v21, 2, v{vL}")
    a(f"s_add_u32 s{sT5}, s{sT4}, {L_KVS}")
    a(f"v_add_u32 v22, s{sT5}, v21")
    a(f"s_mul_i32 s{sT5}, s{sCG}, {4*KVH}")
    a(f"s_add_u32 s{sT4}, s{sT4}, s{sT5}")
    a(f"s_add_u32 s{sCH}, s{sT4}, {WS_KV}")
    a("v_mov_b32 v23, 0x3f803f80")
    a(f"s_lshl_b32 s{sLC}, s{sCG}, 8")
    a(f"s_add_u32 s{sLC}, s{sLC}, {WS_FK}")
    wo_prep(28)
    a_s0_compute(NK)
    a_mainloop(False)
    a.c("KV epilogue")
    order = [(rt, tt) for tt in (4, 0, 2, 1, 3) for rt in range(4)]
    mf = a_mfmas(1, False, order)
    for m in mf[:8]: a(m)
    XP = 112
    TM = 12
    TM = 8
    a(f"v_cmp_gt_u32 vcc, 8, v{vC16}")
    def pairs(tt): return sum([[acc(rt, tt), acc(rt, tt) + 2] for rt in range(4)], [])
    def cvts(tt): return [f"v_cvt_pk_bf16_f32 v{acc(rt&2,tt)+2*(rt&1)+h}, v{acc(rt,tt)+2*h}, v{acc(rt,tt)+2*h+1}" for rt in range(4) for h in range(2)]
    L = []
    for rt in range(4):
        for h in range(2): L.append(f"v_cvt_pk_bf16_f32 v{XP+2*rt+h}, v{acc(rt,4)+2*h}, v{acc(rt,4)+2*h+1}")
    for j in range(8): L.append(f"v_cndmask_b32 v{XP+j}, v{XP+j}, v23, vcc")
    L += phi_list(pairs(4)[:4], TM, False)
    for i, m in enumerate(mf[8:]):
        a(m)
        for x in L[2 * i:2 * i + 2]: a(x)
    L = L[24:]
    stamp(2)
    pk = "nopk" not in EXP
    L += phi_list(pairs(4)[4:], TM, pk) + cvts(4) + phi_list(pairs(0), TM, pk) + cvts(0) + cvts(2) + cvts(3)
    if "aspr" in EXP: assert not sprinkle(L, wo_list(28), len(L) // 25)
    else:
        for x in L: a(x)
    def fr(t, p): return XP + 4 * p if t == 5 else acc(2 * p, t)
    prods = [(0, 2), (0, 5), (4, 2), (4, 5), (1, 3), (1, 5), (4, 3)]
    PD = 120
    def pm(lst):
        for p in range(2):
            for i in lst:
                ta, tb = prods[i]
                d = vr(PD + 4 * i, 4)
                a(f"v_mfma_f32_16x16x32_bf16 {d}, {vr(fr(ta,p),4)}, {vr(fr(tb,p),4)}, {'0' if p==0 else d}")
    def wr(i, va, off, mlo, mhi):
        t = ""
        if mlo != -1: t += f"s_mov_b32 exec_lo, {mlo}\ns_mov_b32 exec_hi, {mhi}\n"
        t += f"ds_write_b128 v{va}, {vr(PD+4*i,4)} offset:{off}"
        if mlo != -1: t += "\ns_mov_b64 exec, -1"
        return t
    pm([0, 1, 2, 3, 6])
    W1 = [wr(0, vA1, 0, -1, -1), wr(1, vA2, 0, 0x0f010f01, 0x0f010f01), wr(2, vA1, 4 * 336, 0xffff, 0),
          wr(3, vA2, 4 * 336, 0x0f01, 0), wr(3, vA2, KVH - 336, 0xf0010000, 0), wr(6, vA1, KVH + 64 - 336, 0xffff0000, 0)]
    rest = sprinkle(phi_list(pairs(1)[:4], TM, False) + phi_list(pairs(1)[4:], TM, pk) + cvts(1), W1, 8, 6)
    assert not rest
    pm([4, 5])
    a(wr(4, vA1, KVH + 336 + 64, -1, -1))
    a(wr(5, vA2, KVH + 336, 0xf001f001, 0xf001f001))
    if "econv" in EXP:
        lds_arrive(20, 24)
        lds_wait(20, 24, 2 + 4 * 256)
    else:
        a("s_waitcnt lgkmcnt(0)")
        a("s_barrier")
    for i in range(7):
        a(f"ds_read_b32 v{32+i}, v22 offset:{256*i}")
        a(f"ds_read_b32 v{40+i}, v22 offset:{256*i+7168}")
    stamp(3)
    for i in range(7):
        a(f"s_waitcnt lgkmcnt({12-2*i})")
        a(f"v_add_f32 v{32+i}, v{32+i}, v{40+i}")
        a(f"buffer_atomic_add_f32 v{32+i}, v21, {srd(SWS)}, s{sCH} offen offset:{256*i}")
    arr_prep(48, 49)
    s3_setup()
    a("s_waitcnt vmcnt(0)")
    arr_issue(48, 49, f"s{sLC}")
    arr_finish(48, 49, f"s{sLC}", 64, 0)
    a("s_setprio 0")
    stamp(4)
    a("s_branch Ls3x" if "aspr" in EXP else "s_branch Ls3")

def qa():
    a.label("Lqa")
    common_scalars()
    def qb():
        a(f"s_and_b32 s{sQUAD}, s{sBID}, 63")
        a(f"s_mul_i32 s{sQUAD}, s{sQUAD}, {NQ}")
        a(f"s_add_u32 s{sQUAD}, s{sQUAD}, {128*NK}")
    a_s0_loads(NQ, qb)
    srd_init([SWS, SDBG, SX, SOUT])
    acc_zero()
    a(f"s_bfe_u32 s{sT0}, s{sIDX}, 0x20002")
    a(f"s_mul_i32 s{sCG}, s{sCP}, {Q0}")
    a(f"s_add_u32 s{sCG}, s{sCG}, s{sT0}")
    a_setup()
    a(f"v_lshrrev_b32 v8, 1, v{vG4}")
    a(f"v_and_b32 v9, 1, v{vG4}")
    a(f"v_lshlrev_b32 v20, 4, v{vC16}")
    a("v_lshl_add_u32 v20, v9, 9, v20")
    a("v_lshl_add_u32 v21, v8, 3, v20")
    a("v_add_u32 v21, 4096, v21")
    a("v_lshl_add_u32 v20, v8, 10, v20")
    a(f"s_lshl_b32 s{sT4}, s{sRB}, 1")
    a(f"s_add_u32 s{sT4}, s{sT4}, s{sT1}")
    a(f"s_lshl_b32 s{sT5}, s{sCG}, 1")
    a(f"s_add_u32 s{sT5}, s{sT5}, s{sT0}")
    a(f"s_mul_i32 s{sT0}, s{sT4}, {80*1024}")
    a(f"s_mul_i32 s{sT1}, s{sT5}, {5*1024}")
    a(f"s_add_u32 s{sT0}, s{sT0}, s{sT1}")
    a(f"s_add_u32 s{sCH}, s{sT0}, {WS_PQ}")
    a(f"s_add_u32 s{sVAR}, s{sCH}, {40*1024}")
    a(f"s_lshl_b32 s{sT4}, s{sT4}, 3")
    a(f"s_add_u32 s{sT4}, s{sT4}, s{sT5}")
    a(f"s_lshl_b32 s{sT4}, s{sT4}, 8")
    a(f"s_add_u32 s{sLC}, s{sT4}, {WS_FQ}")
    wo_prep(28)
    a_s0_compute(NQ)
    a_mainloop(True)
    a.c("Q epilogue")
    order = [(rt, tt) for rt in range(4) for tt in range(5)]
    mf = a_mfmas(1, True, order)
    for m in mf[:9]: a(m)
    L = []
    for rt in range(4):
        regs = []
        for tt in range(5): regs += [acc(rt, tt), acc(rt, tt) + 2]
        L += phi_list(regs, 112, rt > 0 and "nopk" not in EXP)
        O = acc(rt, 0)
        for tt in range(5):
            for h in range(2): L.append(f"v_cvt_pk_bf16_f32 v{O+2*tt+h}, v{acc(rt,tt)+2*h}, v{acc(rt,tt)+2*h+1}")
        so = f"s{sVAR if rt>>1 else sCH}"
        for p in range(2):
            L.append(f"buffer_store_dwordx4 {vr(O+4*p,4)}, v20, {srd(SWS)}, {so} offen offset:{256*(rt&1)+2048*p} sc1")
        L.append(f"buffer_store_dwordx2 {vr(O+8,2)}, v21, {srd(SWS)}, {so} offen offset:{256*(rt&1)} sc1")
    for i, m in enumerate(mf[9:]):
        a(m)
        for x in L[2 * i:2 * i + 2]: a(x)
    L = L[22:]
    stamp(2)
    if "aspr" in EXP: assert not sprinkle(L, wo_list(28), 8)
    else:
        for x in L: a(x)
    stamp(3)
    a(f"v_mov_b32 v122, {L_CNT}")
    lds_wait(122, 123, 4)
    a("s_waitcnt vmcnt(0)")
    flag_store(120, 121, f"s{sLC}")
    a("s_barrier")
    s3_setup()
    a("s_setprio 0")
    stamp(4)
    a("s_branch Ls3x" if "aspr" in EXP else "s_branch Ls3")

def h_dma(sj, sch0):
    a(f"s_lshr_b32 s{sT4}, s{sj}, 1")
    a(f"s_and_b32 s{sT5}, s{sj}, 1")
    a(f"s_lshl_b32 s{sT5}, s{sT5}, 11")
    a(f"s_add_u32 s{sT6}, s{sch0}, s{sT4}")
    a(f"s_lshl_b32 s{sT6}, s{sT6}, 12")
    a(f"s_add_u32 s{sT6}, s{sT6}, s{sT5}")
    a(f"s_mul_i32 s{sT4}, s{sT4}, {HSTR}")
    a(f"s_add_u32 s{sT4}, s{sT4}, s{sT5}")
    a(f"s_add_u32 m0, s{sT4}, {L_HB+128}")
    a(f"buffer_load_dwordx4 v{vL16}, {srd(SH)}, s{sT6} offen lds")
    a(f"buffer_load_dwordx4 v{vL16}, {srd(SH)}, s{sT6} offen offset:1024 lds")

CACC = 32
CPOOL = 96
NPOOL = 12
CD = 144
vUe, vUo, vH, vCW, vCT, vCS, vCY, vCN = range(148, 156)

def conv_setup(j, chl0, split=None):
    a.c("conv setup")
    a(f"s_lshr_b32 s{sLC}, s{j}, 1")
    a(f"s_and_b32 s{sVAR}, s{j}, 1")
    a(f"s_add_u32 s{sCHL}, s{chl0}, s{sLC}")
    a(f"s_lshl_b32 s{sCH}, s{sQUAD}, 2")
    a(f"s_add_u32 s{sCH}, s{sCH}, s{sCHL}")
    a(f"s_lshl_b32 s{sT4}, s{sCH}, 1")
    a(f"s_and_b32 s{sT4}, s{sT4}, -4")
    a(f"s_load_dword s{sDV}, {sr(SD,2)}, s{sT4}")
    a(f"v_and_b32 v96, 31, v{vL}")
    a(f"v_lshrrev_b32 v97, 5, v{vL}")
    a("v_lshl_add_u32 v98, v97, 2, v96")
    a("v_lshrrev_b32 v99, 2, v98")
    a("v_add_u32 v99, 3, v99")
    a("v_and_b32 v99, 3, v99")
    a(f"v_xor_b32 v99, s{sCHL}, v99")
    a("v_lshlrev_b32 v99, 4, v99")
    a("v_lshl_add_u32 v99, v98, 6, v99")
    a(f"v_add_u32 v{vUe}, {L_UD-28*64}, v99")
    a(f"v_xor_b32 v{vUo}, 32, v{vUe}")
    a(f"v_bfe_u32 v98, v{vL}, 4, 1")
    a(f"v_and_b32 v99, 3, v{vL}")
    a("v_lshl_add_u32 v98, v98, 2, v99")
    a(f"v_bfe_u32 v96, v{vL}, 2, 2")
    a("v_sub_u32 v98, v98, v96")
    a("v_lshlrev_b32 v97, 3, v97")
    a("v_sub_u32 v98, v98, v97")
    a("v_lshlrev_b32 v98, 3, v98")
    a(f"s_mul_i32 s{sT4}, s{sLC}, {HSTR}")
    a(f"s_add_u32 s{sT4}, s{sT4}, {L_HB+128+32}")
    a(f"v_add_u32 v{vH}, s{sT4}, v98")
    a(f"s_lshl_b32 s{sT4}, s{sW}, 11")
    a(f"s_add_u32 s{sT4}, s{sT4}, {L_YST}")
    a(f"v_lshlrev_b32 v{vCW}, 4, v{vL}")
    a(f"v_add_u32 v{vCW}, s{sT4}, v{vCW}")
    if split: split(0)
    a(f"v_lshrrev_b32 v97, 4, v{vL}")
    a("v_lshrrev_b32 v98, 1, v99")
    a("v_lshl_add_u32 v98, v97, 1, v98")
    a("v_lshl_add_u32 v98, v98, 3, v96")
    a("v_lshlrev_b32 v98, 4, v98")
    a("v_and_b32 v99, 1, v99")
    a("v_lshl_add_u32 v98, v99, 3, v98")
    a(f"v_add_u32 v{vCT}, s{sT4}, v98")
    a(f"v_and_b32 v98, 7, v{vL}")
    a(f"v_lshrrev_b32 v99, 5, v{vL}")
    a("v_lshl_add_u32 v98, v98, 1, v99")
    a(f"v_mul_u32_u24 v98, 40960, v98")
    a(f"v_bfe_u32 v99, v{vL}, 3, 2")
    a(f"v_lshl_add_u32 v{vCY}, v99, 4, v98")
    a(f"s_lshl_b32 s{sT4}, s{j}, 4")
    a(f"s_add_u32 s{sT4}, s{sT4}, {L_SP}")
    a(f"v_mov_b32 v{vCS}, s{sT4}")
    a(f"s_lshl_b32 s{sT4}, s{sLC}, 2")
    a(f"s_add_u32 s{sT4}, s{sT4}, {L_CNT+16}")
    a(f"v_mov_b32 v{vCN}, s{sT4}")

def conv_dfrag():
    a("s_waitcnt lgkmcnt(0)")
    a(f"s_and_b32 s{sT4}, s{sCH}, 1")
    a(f"s_lshl_b32 s{sT4}, s{sT4}, 4")
    a(f"s_lshr_b32 s{sDV}, s{sDV}, s{sT4}")
    a(f"s_and_b32 s{sDV}, s{sDV}, 0xffff")
    a(f"v_lshlrev_b32 v98, 2, v{vL}")
    a("v_and_b32 v98, 16, v98")
    a(f"v_lshlrev_b32 v98, v98, s{sDV}")
    a(f"v_and_b32 v99, 59, v{vL}")
    for r in range(4):
        a(f"v_cmp_eq_u32 vcc, {32+8*r}, v99")
        a(f"v_cndmask_b32 v{CD+r}, 0, v98, vcc")

def zero_pads(j):
    a("v_mov_b32 v100, 0")
    a("v_mov_b32 v101, 0")
    a(f"v_lshlrev_b32 v102, 3, v{vL}")
    a(f"s_and_b32 s{sT6}, s{j}, 3")
    a(f"s_lshl_b32 s{sT4}, s{sT6}, 9")
    a(f"s_add_u32 s{sT4}, s{sT4}, {L_UB}")
    a(f"v_add_u32 v103, s{sT4}, v102")
    a("ds_write_b64 v103, v[100:101]")
    a(f"s_mul_i32 s{sT4}, s{sT6}, {HSTR}")
    a(f"s_add_u32 s{sT4}, s{sT4}, {L_HB}")
    a(f"v_add_u32 v103, s{sT4}, v102")
    a("s_mov_b64 exec, 0xffff")
    a("ds_write_b64 v103, v[100:101]")
    a(f"v_add_u32 v103, {L_CNT}, v102")
    a("s_mov_b64 exec, 0xff")
    a("ds_write_b64 v103, v[100:101]")
    a("s_mov_b64 exec, -1")

def u_dma(j, nper):
    a(f"s_mul_i32 s{sT4}, s{j}, {1024*nper}")
    a(f"s_lshl_b32 s{sT5}, s{sQUAD}, 14")
    if WOFF: a(f"s_add_u32 s{sT5}, s{sT5}, {WOFF}")
    a(f"s_add_u32 s{sT5}, s{sT5}, s{sT4}")
    a(f"s_add_u32 m0, s{sT4}, {L_UD}")
    for i in range(nper): a(f"buffer_load_dwordx4 v{vL16}, {srd(SWS)}, s{sT5} offen offset:{1024*i} sc1 lds")

def bwave():
    a.c("B wave")
    sXB, sWB, sM, sMW, sROT, sSTEP, sQ2, sQ3 = sCG, sUD, sTB, sRB, sCI, sLOG, sLOG + 1, sEPS
    VX, VW = 32, 36
    a(f"s_sub_u32 s{sJ}, s{sW}, 4")
    a(f"v_lshrrev_b32 v1, 3, v{vL}")
    a(f"v_mul_u32_u24 v1, 1280, v1")
    a(f"v_lshrrev_b32 v2, 4, v{vL}")
    a(f"v_and_b32 v3, 7, v{vL}")
    a("v_xor_b32 v2, v2, v3")
    a(f"v_lshl_add_u32 v{VX}, v2, 4, v1")
    a(f"v_xor_b32 v{VX+1}, 64, v{VX}")
    a(f"v_add_u32 v{VX+1}, {10240-1024}, v{VX+1}")
    a(f"v_add_u32 v{VX+2}, {20480-2048}, v{VX}")
    a(f"v_add_u32 v{VX+3}, {20480-2048}, v{VX+1}")
    a(f"s_lshl_b32 s{sXB}, s{sRB}, 2")
    a(f"s_add_u32 s{sXB}, s{sXB}, s{sJ}")
    a(f"s_mul_i32 s{sXB}, s{sXB}, 40960")
    a(f"s_lshr_b32 s{sT0}, s{sIDX}, 2")
    a(f"s_add_u32 s{sROT}, s{sT0}, s{sIDX}")
    a(f"s_and_b32 s{sROT}, s{sROT}, 3")
    a(f"s_add_u32 s{sM}, s{sRP}, s{sCP}")
    a(f"s_and_b32 s{sM}, s{sM}, 1")
    a(f"s_lshl_b32 s{sM}, s{sM}, 2")
    a(f"s_or_b32 s{sROT}, s{sROT}, s{sM}")
    def chunk_of(sd, srot, step):
        if "nostag" in EXP:
            a(f"s_and_b32 s{sd}, s{srot}, {7 if step < 8 else 1}")
            a(f"s_xor_b32 s{sd}, s{sd}, {step}")
            return
        m0_, x0 = (3, step) if step < 8 else (1, step)
        m1_, x1 = (1, 8 + step) if step < 2 else (7, step - 2)
        a(f"s_bitcmp1_b32 s{srot}, 2")
        a(f"s_cselect_b32 s{sd}, {m1_}, {m0_}")
        a(f"s_cselect_b32 s{sQ2}, {x1}, {x0}")
        a(f"s_and_b32 s{sd}, s{sd}, s{srot}")
        a(f"s_xor_b32 s{sd}, s{sd}, s{sQ2}")
    chunk_of(sSTEP, sROT, 0)
    a(f"s_lshl_b32 s{sM}, s{sJ}, 12")
    srd_init([SX, SWQ])
    def chunk_x(sc):
        a(f"s_mov_b32 m0, s{sM}")
        a(f"s_lshl_b32 s{sQ2}, s{sc}, 7")
        a(f"s_add_u32 s{sQ2}, s{sQ2}, s{sXB}")
        for i in range(4):
            a(f"buffer_load_dwordx4 v{VX+i}, {srd(SX)}, s{sQ2} offen offset:{1024*i} lds")
    def chunk_w(sc):
        a(f"s_add_u32 m0, s{sM}, 16384")
        a(f"s_mul_i32 s{sQ3}, s{sc}, {64*3840}")
        a(f"s_add_u32 s{sQ3}, s{sQ3}, s{sWB}")
        for hf in range(1):
            if hf:
                a(f"s_add_u32 m0, s{sM}, {16384+4096}")
                a(f"s_add_u32 s{sQ3}, s{sQ3}, {16*3840}")
            for i in (0, 1, 4, 2, 3):
                if i == 2: a(f"s_add_u32 m0, s{sM}, {16384+4096*hf}")
                if i == 4: a(f"s_add_u32 m0, s{sMW}, {1024*hf}")
                a(f"buffer_load_dwordx4 v{VW+i}, {srd(SWQ)}, s{sQ3} offen offset:{1024*(i&3)} lds")
    a(f"s_lshl_b32 s{sT1}, s{sCP}, 2")
    a(f"s_add_u32 s{sT1}, s{sT1}, s{sT0}")
    a(f"s_add_u32 s{sT1}, s{sT1}, 8")
    a(f"s_lshl_b32 s{sT0}, s{sT0}, 1")
    a(f"s_mul_i32 s{sT4}, s{sCP}, {2*Q0}")
    a(f"s_add_u32 s{sT0}, s{sT0}, s{sT4}")
    a(f"s_sub_u32 s{sT0}, s{sT0}, 8")
    a(f"s_cmp_ge_u32 s{sIDX}, 16")
    a(f"s_cselect_b32 s{sWB}, s{sT0}, s{sT1}")
    a(f"s_cselect_b32 s{sT4}, 10, 5")
    a(f"s_cselect_b32 s{sT5}, 4, 0x50")
    a(f"s_cselect_b32 s{sT6}, 1, 3")
    a(f"s_cselect_b32 s{sT7}, 2, 1")
    a(f"s_cselect_b32 s{sT0}, 1, 0x50")
    a(f"s_cselect_b32 s{sT1}, 8, 2")
    a(f"s_mulk_i32 s{sWB}, 160")
    a(f"s_mul_i32 s{sT2}, s{sJ}, {16*3840}")
    a(f"s_add_u32 s{sWB}, s{sWB}, s{sT2}")
    a(f"s_lshl_b32 s{sMW}, s{sJ}, 10")
    a(f"s_add_u32 s{sMW}, s{sMW}, 32768")
    a(f"v_lshrrev_b32 v14, 4, v{vL}")
    a(f"v_lshrrev_b32 v15, 1, v{vL}")
    a("v_xor_b32 v15, v15, v14")
    a(f"v_and_b32 v16, 1, v{vL}")
    a("v_mul_u32_u24 v14, 240, v14")
    a(f"v_mad_u32_u24 v14, v16, s{sT7}, v14")
    a("v_and_b32 v17, 1, v15")
    a(f"v_mad_u32_u24 v14, v17, s{sT6}, v14")
    a("v_bfe_u32 v17, v15, 1, 1")
    a(f"v_mad_u32_u24 v14, v17, s{sT5}, v14")
    a("v_bfe_u32 v17, v15, 2, 1")
    a(f"v_mad_u32_u24 v18, v17, s{sT4}, v14")
    a(f"v_lshlrev_b32 v{VW}, 4, v18")
    a(f"v_add_u32 v{VW+1}, {15360-1024}, v{VW}")
    a("v_xor_b32 v17, 1, v17")
    a(f"v_mad_u32_u24 v18, v17, s{sT4}, v14")
    a(f"v_lshlrev_b32 v18, 4, v18")
    a(f"v_add_u32 v{VW+2}, {30720-2048}, v18")
    a(f"v_add_u32 v{VW+3}, {46080-3072}, v18")
    a(f"v_lshrrev_b32 v14, 2, v{vL}")
    a("v_mul_u32_u24 v14, 240, v14")
    a(f"v_mad_u32_u24 v14, v16, s{sT0}, v14")
    a(f"v_lshrrev_b32 v17, 4, v{vL}")
    a(f"v_xor_b32 v17, v17, v{vL}")
    a("v_bfe_u32 v17, v17, 1, 1")
    a(f"v_mad_u32_u24 v14, v17, s{sT4}, v14")
    a(f"v_add_lshl_u32 v{VW+4}, v14, s{sT1}, 4")
    a("s_waitcnt lgkmcnt(0)")
    stamp(11)
    chunk_x(sSTEP)
    chunk_w(sSTEP)
    ka_rest()
    stamp(12)
    def issue(step):
        d = SLOT if step % 3 else (-2 * SLOT & 0xffffffff)
        a(f"s_add_u32 s{sM}, s{sM}, {d}")
        a(f"s_add_u32 s{sMW}, s{sMW}, {d}")
        chunk_of(sSTEP, sROT, step)
        if "nodma" in EXP and step >= 2: return
        chunk_x(sSTEP); chunk_w(sSTEP)
    bn = [1]
    def bar(n, nxt=None):
        a(f"s_waitcnt vmcnt({n}) lgkmcnt(0)")
        if "bst" in EXP and "pre" in EXP: stamp(bn[0], True)
        a("s_barrier")
        if "bst" in EXP and "pre" not in EXP: stamp(bn[0], True)
        bn[0] += 1
        if nxt is not None: issue(nxt)
    def g_setup():
        srd_init([SX, SH, SWS, SDBG, SOUT])
        a(f"s_mul_i32 s{sT7}, s{sRP}, 48")
        a(f"s_mul_i32 s{sT1}, s{sCP}, {G0}")
        a(f"s_add_u32 s{sT7}, s{sT7}, s{sT1}")
        a(f"s_add_u32 s{sT7}, s{sT7}, s{sIDX}")
        a(f"s_lshr_b32 s{sQUAD}, s{sT7}, 1")
        a(f"s_add_u32 s{sQUAD}, s{sQUAD}, 64")
        a(f"s_and_b32 s{sT1}, s{sIDX}, 1")
        a(f"s_lshl_b32 s{sT1}, s{sT1}, 1")
        a("s_waitcnt lgkmcnt(0)")
        conv_setup(sJ, sT1)
        s3_setup()
        wo_prep(vL16)
    sGS, sGO = 1, 0
    a("s_waitcnt lgkmcnt(0)")
    a(f"s_bfe_u32 s{sT0}, s{sIDX}, 0x20002")
    a(f"s_mul_i32 s{sT1}, s{sCP}, {Q0}")
    a(f"s_add_u32 s{sT0}, s{sT0}, s{sT1}")
    a(f"s_lshl_b32 s{sT0}, s{sT0}, 2")
    a(f"s_add_u32 s{sT0}, s{sT0}, s{sJ}")
    a(f"s_and_b32 s{sT2}, s{sIDX}, 3")
    a(f"s_lshl_b32 s{sT3}, s{sRP}, 2")
    a(f"s_add_u32 s{sT2}, s{sT2}, s{sT3}")
    a(f"s_lshl_b32 s{sGO}, s{sT2}, 4")
    a(f"s_add_u32 s{sGO}, s{sGO}, s{sT0}")
    a(f"s_cmp_ge_u32 s{sIDX}, 16")
    a(f"s_cselect_b32 s{sGS}, 1, 0")
    a(f"s_lshl_b32 s{sT0}, s{sT0}, 10")
    a(f"v_lshlrev_b32 v41, 4, v{vL}")
    srd_init([SGW])
    a(f"s_mov_b32 m0, {L_GW}")
    a(f"v_add_u32 v42, s{sT0}, v41")
    a(f"v_add_u32 v55, {2*SLOT}, v42")
    a(f"s_cmp_ge_u32 s{sIDX}, 16")
    a("s_cbranch_scc0 Lbng")
    a(f"buffer_load_dwordx4 v41, {srd(SGW)}, 0 offen lds")
    a(f"buffer_load_dwordx4 v41, {srd(SGW)}, 0 offen offset:1024 lds")
    a.label("Lbng")
    a(f"s_and_b32 s{sT1}, s{sJ}, 1")
    a(f"s_lshl_b32 s{sT1}, s{sT1}, 2")
    a(f"v_xor_b32 v43, s{sT1}, v2")
    a("v_lshlrev_b32 v43, 4, v43")
    a(f"v_add_u32 v43, {L_GW}, v43")
    a("v_mov_b32 v52, 0")
    a("v_mov_b32 v53, 0")
    g_setup()
    a("v_mov_b32 v44, 128")
    a("v_mov_b32 v45, 132")
    zero_pads(sJ)
    conv_dfrag()
    def gate(step):
        D = a.newlabel("Lg")
        a(f"s_cmp_eq_u32 s{sGS}, 0")
        a(f"s_cbranch_scc1 {D}")
        chunk_of(sT0, sROT, step)
        a(f"s_lshl_b32 s{sT0}, s{sT0}, 7")
        a(f"v_add_u32 v54, s{sT0}, v43")
        if step % 3 == 2: a("ds_read_b128 v[56:59], v55")
        else: a(f"ds_read_b128 v[56:59], v42 offset:{SLOT*(step%3)}")
        a("ds_read_b128 v[60:63], v54")
        a("s_waitcnt lgkmcnt(0)")
        for i in range(4): a(f"v_dot2c_f32_bf16 v{52+(i&1)}, v{56+i}, v{60+i}")
        a.label(D)
    if "bprio" in EXP: a("s_setprio 3")
    issue(1)
    for c in range(0, 8):
        bar(9)
        if c == 0: stamp(1)
        issue(c + 2)
        gate(c)
    a(f"s_mov_b32 s{sEPS}, 0x358637bd")
    a(f"s_sub_u32 s{sT1}, s{sCH}, s{sLC}")
    bar(9)
    a(f"buffer_load_dwordx2 v[46:47], v44, {srd(SDBG)}, 0 offen sc1")
    h_dma(sJ, sT1)
    gate(8)
    a("s_waitcnt vmcnt(3)")
    a("s_barrier")
    a("s_setprio 3")
    gate(9)
    a(f"s_cmp_eq_u32 s{sGS}, 0")
    a("s_cbranch_scc1 Lbg")
    a("v_add_f32 v52, v52, v53")
    for ctl in ("quad_perm:[1,0,3,2]", "quad_perm:[2,3,0,1]", "row_half_mirror"):
        a(f"v_add_f32_dpp v52, v52, v52 {ctl} row_mask:0xf bank_mask:0xf")
    a(f"v_mul_f32 v52, 0xbfb8aa3b, v52")
    a(f"v_exp_f32 v52, v52")
    a(f"v_lshrrev_b32 v53, 1, v{vL}")
    a(f"v_add_f32 v52, 1.0, v52")
    a(f"v_rcp_f32 v52, v52")
    a(f"s_lshl_b32 s{sT0}, s{sGO}, 5")
    a(f"s_add_u32 s{sT0}, s{sT0}, {WS_G}")
    a("s_mov_b32 exec_lo, 0x01010101")
    a("s_mov_b32 exec_hi, 0x01010101")
    a(f"buffer_store_dword v52, v53, {srd(SWS)}, s{sT0} offen sc1")
    a("s_mov_b64 exec, -1")
    a.label("Lbg")
    a("s_setprio 0")
    a("s_waitcnt vmcnt(2)")
    poll(45, 47, "landed", S=SDBG)
    stamp(2)
    a(f"v_mov_b32 v48, {L_CNT+8}")
    a(f"v_readfirstlane_b32 s{sUD}, v46")
    wl = wo_list(vL16)
    a(f"s_cmp_eq_u32 s{sUD}, 0")
    a("s_cbranch_scc1 Lbl1")
    u_dma(sJ, 4)
    for x in wl[:8]: a(x)
    a("s_branch Lbl1b")
    a.label("Lbl1")
    cnt_load(SDBG, 44, 46)
    for x in wl[:8]: a(x)
    a("s_waitcnt vmcnt(8)")
    a(f"v_readfirstlane_b32 s{sUD}, v46")
    a(f"s_cmp_eq_u32 s{sUD}, 0")
    a("s_cbranch_scc1 Lbl1b")
    u_dma(sJ, 4)
    a.label("Lbl1b")
    a(f"s_cmp_eq_u32 s{sGS}, 0")
    a("s_cbranch_scc1 Lbg1")
    a(f"v_mov_b32 v50, {L_CNT}")
    a("s_waitcnt vmcnt(8)")
    lds_arrive(50, 51)
    a.label("Lbg1")
    for x in wl[8:16]: a(x)
    a(f"s_cmp_lg_u32 s{sUD}, 0")
    a("s_cbranch_scc1 Lbl2")
    cnt_load(SDBG, 44, 46)
    a.label("Lbl2")
    for x in wl[16:]: a(x)
    x_loads()
    a("s_waitcnt vmcnt(11)")
    a(f"s_cmp_lg_u32 s{sUD}, 0")
    a("s_cbranch_scc1 Lbl3")
    a(f"v_readfirstlane_b32 s{sT0}, v46")
    a(f"s_cmp_eq_u32 s{sT0}, 0")
    a("s_cbranch_scc1 Lbl4")
    u_dma(sJ, 4)
    a("s_barrier")
    a("s_branch Lbl5")
    a.label("Lbl4")
    a("s_barrier")
    poll(44, 46, S=SDBG)
    u_dma(sJ, 4)
    a.label("Lbl5")
    a("s_waitcnt vmcnt(0)")
    lds_arrive(48, 49)
    a("s_branch Lbl6")
    a.label("Lbl3")
    lds_arrive(48, 49)
    a("s_barrier")
    a.label("Lbl6")
    lds_wait(48, 49, 4)
    stamp(3)
    a("s_branch Lconv")

def ctype():
    a.label("Lctype")
    ka_rest()
    common_scalars()
    a(f"s_mov_b32 s{sQUAD}, s{sCI}")
    a(f"s_cmp_ge_u32 s{sW}, 6")
    a("s_cbranch_scc1 Lcaux")
    a(f"s_cmp_ge_u32 s{sW}, {NC}")
    a("s_cbranch_scc1 Lc1")
    a(f"s_mul_i32 s{sCG}, s{sCI}, {NC}")
    a(f"s_add_u32 s{sCG}, s{sCG}, s{sW}")
    a(f"s_add_u32 s{sCG}, s{sCG}, {128*NK + 64*NQ}")
    s0_task(sCG)
    s0_loads()
    srd_init([SWS, SDBG])
    a(f"s_lshl_b32 s{sCG}, s{sCG}, 2")
    a(f"s_add_u32 s{sCG}, s{sCG}, {WS_F0}")
    a(f"s_mul_i32 s{sT2}, s{sW}, 4608")
    a(f"s_add_u32 s{sT2}, s{sT2}, {L_S0C}")
    s0_addr(sT2)
    a("v_mov_b32 v104, 0")
    a("s_waitcnt vmcnt(0)")
    tg_issue(104, 105)
    s0_compute()
    tg_flag(104, 105, sCG)
    a.label("Lc1")
    a("s_branch Lcjoin")

    a.label("Lcaux")
    a("s_setprio 3")
    srd_init([SWO, SWS, SDBG])
    a(f"s_sub_u32 s{sUD}, s{sW}, 6")
    a(f"s_lshl_b32 s{sVAR}, s{sCI}, 1")
    a(f"s_add_u32 s{sVAR}, s{sVAR}, s{sUD}")
    for i in range(4): a(f"v_mov_b32 v{52+i}, 0")
    a(f"v_lshlrev_b32 v15, 3, v{vL}")
    a(f"s_lshl_b32 s{sT0}, s{sVAR}, 9")
    a(f"s_add_u32 s{sT0}, s{sT0}, {WS_KV}")
    a(f"s_memrealtime {sr(sT2,2)}")
    a("s_waitcnt lgkmcnt(0)")
    a(f"s_lshl_b32 s{sT3}, s{sT3}, 27")
    a(f"s_xor_b32 s{sTG}, s{sT2}, s{sT3}")
    a(f"s_or_b32 s{sTG}, s{sTG}, 1")
    a(f"s_cmp_lg_u32 s{sVAR}, 0")
    a("s_cbranch_scc1 Lcnt")
    a(f"v_mov_b32 v16, s{sTG}")
    a("s_mov_b64 exec, 1")
    a(f"buffer_store_dword v16, v52, {srd(SDBG)}, 0 offen offset:192 sc1")
    a("s_mov_b64 exec, -1")
    a.label("Lcnt")
    a(f"buffer_store_dwordx2 v[52:53], v15, {srd(SWS)}, s{sT0} offen sc1")
    a(f"s_mul_i32 s{sT0}, s{sVAR}, 768")
    a(f"s_add_u32 s{sT0}, s{sT0}, {WS_C}")
    a(f"v_lshlrev_b32 v16, 8, v{vL}")
    a("s_mov_b64 exec, 7")
    a(f"buffer_store_dword v52, v16, {srd(SWS)}, s{sT0} offen sc1")
    a("s_mov_b64 exec, -1")
    a.label("Lcrp")
    sKQ, sF, sCGR = sCHL, sCH, sJ
    a(f"s_lshr_b32 s{sT0}, s{sVAR}, 2")
    a(f"s_and_b32 s{sCGR}, s{sVAR}, 3")
    a(f"s_mul_i32 s{sKQ}, s{sT0}, 52")
    a(f"s_lshr_b32 s{sKQ}, s{sKQ}, 8")
    a(f"s_mul_i32 s{sT1}, s{sKQ}, 5")
    a(f"s_sub_u32 s{sF}, s{sT0}, s{sT1}")
    a(f"s_mul_i32 s{sT0}, s{sF}, 20")
    a(f"s_cmp_eq_u32 s{sF}, 4")
    a(f"s_cselect_b32 s{sT0}, 16, s{sT0}")
    a(f"s_cselect_b32 s{sT2}, 16, 0")
    a(f"s_mul_i32 s{sT1}, s{sKQ}, 80")
    a(f"s_add_u32 s{sT0}, s{sT0}, s{sT1}")
    a(f"s_mul_i32 s{sT0}, s{sT0}, 1280")
    a(f"s_mul_i32 s{sT1}, s{sCGR}, 320")
    a(f"s_add_u32 s{sT0}, s{sT0}, s{sT1}")
    a(f"s_lshr_b32 s{sT3}, s{sVAR}, 7")
    a(f"s_lshl_b32 s{sT3}, s{sT3}, 1")
    a(f"s_add_u32 s{sT3}, s{sT3}, s{sUD}")
    a(f"s_mul_i32 s{sT3}, s{sT3}, 5120")
    a(f"s_add_u32 s{sT3}, s{sT3}, {L_RPC}")
    a("s_waitcnt lgkmcnt(0)")
    for i in range(5):
        a(f"v_add_u32 v14, {64*i}, v{vL}")
        div20(15, 16, 14)
        a("v_lshrrev_b32 v17, 2, v15")
        a(f"v_mad_u32_u24 v15, v17, s{sT2}, v15")
        a("v_mul_u32_u24 v15, 1280, v15")
        a("v_lshl_add_u32 v15, v16, 4, v15")
        a(f"s_add_u32 m0, s{sT3}, {1024*i}")
        a(f"buffer_load_dwordx4 v15, {srd(SWO)}, s{sT0} offen lds")
    a(f"s_add_u32 s{sVAR}, s{sVAR}, 128")
    a(f"s_cmp_lt_u32 s{sVAR}, 160")
    a("s_cbranch_scc1 Lcrp")
    a(f"s_and_b32 s{sVAR}, s{sVAR}, 127")
    a("s_waitcnt vmcnt(0)")
    a.label("Lcrp2")
    sKQ, sF, sCGR = sCHL, sCH, sJ
    a(f"s_lshr_b32 s{sT0}, s{sVAR}, 2")
    a(f"s_and_b32 s{sCGR}, s{sVAR}, 3")
    a(f"s_mul_i32 s{sKQ}, s{sT0}, 52")
    a(f"s_lshr_b32 s{sKQ}, s{sKQ}, 8")
    a(f"s_mul_i32 s{sT1}, s{sKQ}, 5")
    a(f"s_sub_u32 s{sF}, s{sT0}, s{sT1}")
    a(f"s_lshr_b32 s{sT3}, s{sVAR}, 7")
    a(f"s_lshl_b32 s{sT3}, s{sT3}, 1")
    a(f"s_add_u32 s{sT3}, s{sT3}, s{sUD}")
    a(f"s_mul_i32 s{sT3}, s{sT3}, 5120")
    a(f"s_add_u32 s{sT3}, s{sT3}, {L_RPC}")
    a(f"v_lshrrev_b32 v14, 5, v{vL}")
    a(f"v_bfe_u32 v15, v{vL}, 2, 2")
    a("v_lshl_add_u32 v14, v14, 2, v15")
    a("v_mul_u32_u24 v14, 320, v14")
    a(f"v_bfe_u32 v15, v{vL}, 4, 1")
    a("v_lshl_add_u32 v14, v15, 5, v14")
    a(f"v_and_b32 v15, 3, v{vL}")
    a("v_lshl_add_u32 v14, v15, 3, v14")
    a(f"v_add_u32 v14, s{sT3}, v14")
    a(f"s_mul_i32 s{sT0}, s{sKQ}, 5")
    a(f"s_add_u32 s{sT0}, s{sT0}, s{sF}")
    a(f"s_cmp_ge_u32 s{sKQ}, 5")
    a(f"s_cselect_b32 s{sT1}, 0x4b, 0")
    a(f"s_mov_b32 s{sT2}, 25")
    a(f"s_add_u32 s{sT0}, s{sT0}, s{sT1}")
    a(f"s_mul_i32 s{sT1}, s{sCGR}, 200")
    a(f"s_add_u32 s{sT0}, s{sT0}, s{sT1}")
    a(f"s_lshl_b32 s{sT0}, s{sT0}, 10")
    a(f"s_add_u32 s{sT0}, s{sT0}, {WS_WOP}")
    a(f"s_lshl_b32 s{sT2}, s{sT2}, 10")
    a(f"s_lshr_b32 s{sT4}, s{sKQ}, 1")
    a(f"s_mul_i32 s{sT4}, s{sT4}, 25")
    a(f"s_and_b32 s{sT5}, s{sKQ}, 1")
    a(f"s_mul_i32 s{sT5}, s{sT5}, 5")
    a(f"s_add_u32 s{sT4}, s{sT4}, s{sT5}")
    a(f"s_add_u32 s{sT4}, s{sT4}, s{sF}")
    a(f"s_add_u32 s{sT4}, s{sT4}, s{sT1}")
    a(f"s_add_u32 s{sT4}, s{sT4}, 115")
    a(f"s_lshl_b32 s{sT4}, s{sT4}, 10")
    a(f"s_add_u32 s{sT4}, s{sT4}, {WS_WOP}")
    a(f"v_lshlrev_b32 v15, 4, v{vL}")
    for t in range(5):
        for jh in range(2): a(f"ds_read_b64_tr_b16 {vr(32+4*t+2*jh,2)}, v14 offset:{jh*2560+t*64}")
    a("s_waitcnt lgkmcnt(0)")
    for t in range(4):
        a(f"buffer_store_dwordx4 {vr(32+4*t,4)}, v15, {srd(SWS)}, s{sT0} offen sc1")
        a(f"s_add_u32 s{sT0}, s{sT0}, s{sT2}")
    a(f"buffer_store_dwordx4 {vr(48,4)}, v15, {srd(SWS)}, s{sT4} offen sc1")
    a(f"s_add_u32 s{sVAR}, s{sVAR}, 128")
    a(f"s_cmp_lt_u32 s{sVAR}, 160")
    a("s_cbranch_scc1 Lcrp2")
    a("v_mov_b32 v60, 0")
    a("s_waitcnt vmcnt(0)")
    darr_issue(60, 61, 4)
    a("s_setprio 0")
    srd_init([SX, SH, SOUT])
    zero_pads(sW)
    a(f"s_mov_b32 s{sT1}, 0")
    conv_setup(sW, sT1)
    s3_setup()
    wo_prep(vL16)
    darr_finish(60, 61, 4, 128)
    stamp(1)
    a("s_setprio 3")
    a(f"s_lshl_b32 s{sT1}, s{sCI}, 2")
    h_dma(sW, sT1)
    conv_dfrag()
    a(f"s_cmp_eq_u32 s{sW}, 7")
    a("s_cbranch_scc1 Lc6")
    a(f"s_lshl_b32 s{sT0}, s{sCI}, 3")
    a(f"s_add_u32 s{sT0}, s{sT0}, s{sW}")
    a(f"s_cmp_lg_u32 s{sT0}, 6")
    a("s_cbranch_scc1 Lc8")
    a(f"v_min_u32 v63, 31, v{vL}")
    a("v_lshlrev_b32 v63, 4, v63")
    a(f"s_mov_b32 s{sT0}, {WS_F0}")
    a(f"s_mov_b32 s{sCNT}, 0x20000")
    a.label("Lcw")
    a(f"buffer_load_dwordx4 v[64:67], v{vL16}, {srd(SWS)}, s{sT0} offen sc1")
    a(f"buffer_load_dwordx4 v[68:71], v{vL16}, {srd(SWS)}, s{sT0} offen offset:1024 sc1")
    a(f"buffer_load_dwordx4 v[72:75], v63, {srd(SWS)}, s{sT0} offen offset:2048 sc1")
    a("s_waitcnt vmcnt(0)")
    for i in range(12): a(f"v_xor_b32 v{64+i}, s{sTG}, v{64+i}")
    for i in range(5): a(f"v_or3_b32 v64, v64, v{65+2*i}, v{66+2*i}")
    a("v_or_b32 v64, v64, v75")
    a("v_cmp_ne_u32 vcc, 0, v64")
    a("s_cbranch_vccz Lcw2")
    a(f"s_sub_u32 s{sCNT}, s{sCNT}, 1")
    a("s_cbranch_scc0 Lcw")
    a.label("Lcw2")
    a("v_mov_b32 v64, 0")
    a("v_mov_b32 v65, 1")
    a("s_mov_b64 exec, 1")
    a(f"buffer_store_dword v65, v64, {srd(SDBG)}, 0 offen offset:128 sc1")
    a("s_mov_b64 exec, -1")
    a("s_branch Lc8")
    a.label("Lc6")
    a(f"v_and_b32 v44, 1, v{vL}")
    a("v_lshl_add_u32 v44, v44, 2, 64")
    a("v_add_u32 v44, 64, v44")
    poll(44, 46, S=SDBG)
    stamp(11)
    a(f"s_lshl_b32 s{sT5}, s{sQUAD}, 14")
    if WOFF: a(f"s_add_u32 s{sT5}, s{sT5}, {WOFF}")
    for q in range(4):
        a(f"s_mov_b32 m0, {L_UD + 4096*q}")
        for i in range(4): a(f"buffer_load_dwordx4 v{vL16}, {srd(SWS)}, s{sT5} offen offset:{1024*i} sc1 lds")
        if q < 3: a(f"s_add_u32 s{sT5}, s{sT5}, 4096")
    a("s_branch Lc8")

    a.label("Lcjoin")
    srd_init([SX, SH, SWS, SDBG, SOUT])
    a("s_waitcnt lgkmcnt(0)")
    stamp(2)
    zero_pads(sW)
    a(f"s_mov_b32 s{sT1}, 0")
    conv_setup(sW, sT1)
    s3_setup()
    wo_prep(vL16)
    a(f"s_lshl_b32 s{sT1}, s{sCI}, 2")
    h_dma(sW, sT1)
    conv_dfrag()
    a.label("Lc8")
    a("s_waitcnt vmcnt(0) lgkmcnt(0)")
    stamp(12)
    a("s_barrier")
    stamp(3)
    a("s_setprio 2")
    a(f"s_cmp_lt_u32 s{sW}, 4")
    a("s_cbranch_scc1 Lconv2")
    a("s_setprio 0")
    for x in wo_list(vL16): a(x)
    x_loads()

def conv_body(tiles):
    seq = []
    for b in range(4):
        if tiles[0] == 0:
            for aa in range(8):
                for ti in (3, 2):
                    d = tiles[ti] - aa
                    if d >= 0:
                        seq.append((ti, ("H", 4 * aa + b, 0), ("U", 4 * d - b)))
                        if b == 0 and aa == 0: seq.append((ti, ("D",), ("U", 4 * d)))
                if aa == 5:
                    seq.append((1, ("H", b, 1), ("U", 4 - b)))
                    if b == 0: seq.append((1, ("D",), ("U", 4)))
                if aa == 6:
                    seq.append((0, ("H", b, 1), ("U", -b)))
                    if b == 0: seq.append((0, ("D",), ("U", 0)))
                    seq.append((1, ("H", 4 + b, 1), ("U", -b)))
        else:
            for aa in range(6):
                for ti in (3, 2, 1, 0):
                    d = tiles[ti] - aa
                    if d >= 0:
                        seq.append((ti, ("H", 4 * aa + b, 0), ("U", 4 * d - b)))
                        if b == 0 and aa == 0: seq.append((ti, ("D",), ("U", 4 * d)))
    assert len(seq) == 76
    last = {}; order = []
    for i, (ti, h, u) in enumerate(seq):
        for k in (u, h):
            if k[0] == "D": continue
            if k not in last: order.append(k)
            last[k] = i
    free = list(range(NPOOL))
    where = {}; done_at = {}
    nds = [0]; li = [0]
    def issue(maxn):
        n = 0
        while li[0] < len(order) and free and n < maxn:
            k = order[li[0]]; li[0] += 1
            bfr = free.pop(0); where[k] = bfr
            r = CPOOL + 4 * bfr
            if k[0] == "U":
                a(f"ds_read_b128 {vr(r,4)}, v{vUo if k[1]&1 else vUe} offset:{(k[1]+3)*512}")
                nds[0] += 1; n += 1
            else:
                a(f"ds_read_b64_tr_b16 {vr(r,2)}, v{vH} offset:{128*k[1]+32}")
                a(f"ds_read_b64_tr_b16 {vr(r+2,2)}, v{vH} offset:{128*k[1]}")
                nds[0] += 2; n += 2
            done_at[k] = nds[0]
    issue(10)
    started = set(); known = 0
    wl = wo_list(vL16); wi = 25 if "delayconv" in EXP else 0
    for i, (ti, h, u) in enumerate(seq):
        needn = max(done_at[k] for k in (u, h) if k[0] != "D")
        if needn > known:
            cnt = min(nds[0] - needn, 15)
            a(f"s_waitcnt lgkmcnt({cnt})")
            known = nds[0] - cnt
        d = vr(CACC + 16 * ti, 16)
        hb = CD if h[0] == "D" else CPOOL + 4 * where[h]
        a(f"v_mfma_f32_32x32x16_bf16 {d}, {vr(CPOOL+4*where[u],4)}, {vr(hb,4)}, {d if ti in started else '0'}")
        started.add(ti)
        for k in (u, h):
            if k[0] != "D" and last[k] == i: free.append(where[k])
        issue(2)

def conv_epi(var):
    runs = [[*range(0, 8)], [*range(8, 16)]] if var == 0 else [[*range(16)]]
    out_g = 7 if var == 0 else 15
    in_g = 8 if var == 0 else 0
    SPL = 96
    if "noep" not in EXP: a("s_setprio 3")
    a("s_nop 7")
    a("s_nop 3")
    for step in (2, 1, 0):
        a("s_mov_b32 exec_lo, 0")
        a("s_mov_b32 exec_hi, 0x80000000")
        a(f"v_mov_b32 v{SPL+step}, v{CACC+4*out_g+step+1}")
        for run in runs:
            for g in reversed(run):
                src = f"v{CACC+4*(g-1)+step+1}" if g != run[0] else "0"
                a(f"v_mov_b32 v{CACC+4*g+step+1}, {src}")
        if step == 0:
            a(f"ds_write_b96 v{vCS}, {vr(SPL,3)}")
            a("v_mov_b32 v100, 1")
            a(f"ds_add_u32 v{vCN}, v100")
        a("s_mov_b64 exec, -1")
        for g in reversed(range(16)):
            r = CACC + 4 * g + step
            a(f"v_add_f32_dpp v{r}, v{r+1}, v{r} wave_ror:1 row_mask:0xf bank_mask:0xf")
    a(f"v_xor_b32 v101, 16, v{vCS}")
    a(f"v_lshl_add_u32 v101, v{vL}, 2, v101")
    PK = 104
    other = [k for k in range(8) if k != in_g // 2]
    for k in other: a(f"v_cvt_pk_bf16_f32 v{PK+k}, v{CACC+8*k}, v{CACC+8*k+4}")
    oh = 1 - in_g // 8
    a(f"ds_write_b128 v{vCW}, {vr(PK+4*oh,4)} offset:{1024*oh}")
    lds_wait(vCN, 100, 2)
    a("s_mov_b64 exec, 7")
    a("ds_read_b32 v100, v101")
    a("s_waitcnt lgkmcnt(0)")
    a(f"v_add_f32 v{CACC+4*in_g}, v{CACC+4*in_g}, v100")
    a("s_mov_b64 exec, -1")
    k = in_g // 2
    a(f"v_cvt_pk_bf16_f32 v{PK+k}, v{CACC+8*k}, v{CACC+8*k+4}")
    a(f"ds_write_b128 v{vCW}, {vr(PK+4*(1-oh),4)} offset:{1024*(1-oh)}")
    T0, T1 = (0, 6) if var == 0 else (2, 4)
    a(f"s_lshl_b32 s{sT5}, s{sCH}, 6")
    a(f"s_add_u32 s{sT4}, s{sT5}, {WS_Y + T0*8*40960}")
    a(f"s_add_u32 s{sT5}, s{sT5}, {WS_Y + T1*8*40960}")
    a(f"s_lshr_b32 s{sT6}, s{sCH}, 5")
    a(f"s_lshl_b32 s{sT6}, s{sT6}, 8")
    a(f"s_add_u32 s{sT6}, s{sT6}, {WS_FY + var*20*256}")

def conv():
    a.label("Lconv")
    a("s_setprio 1")
    a.label("Lconv2")
    a(f"s_cmp_eq_u32 s{sVAR}, 1")
    a("s_cbranch_scc1 Lconvy")
    conv_body([0, 1, 6, 7])
    stamp(4)
    conv_epi(0)
    a("s_branch Lconve")
    a.label("Lconvy")
    conv_body([2, 3, 4, 5])
    stamp(4)
    conv_epi(1)
    a.label("Lconve")
    for n in range(2):
        a(f"ds_read_b64_tr_b16 {vr(136+4*n,2)}, v{vCT} offset:{1024*n}")
        a(f"ds_read_b64_tr_b16 {vr(138+4*n,2)}, v{vCT} offset:{1024*n+64}")
    arr_prep(152, 153)
    for n in range(2):
        a(f"s_waitcnt lgkmcnt({2-2*n})")
        a(f"buffer_store_dwordx4 {vr(136+4*n,4)}, v{vCY}, {srd(SWS)}, s{sT5 if n else sT4} offen sc1")
    stamp(13)
    a("s_waitcnt vmcnt(0)")
    arr_issue(152, 153, f"s{sT6}")
    arr_finish(152, 153, f"s{sT6}", 32)
    a(f"s_mov_b32 s{sT0}, 0xffff0000")
    a(f"s_cmp_ge_u32 s{sW}, 4")
    a("s_cbranch_scc1 Learly")
    a("s_setprio 0")

def s3():
    a.label("Ls3")
    a.c("S3")
    PQ, RAW, KF = 32, 52, 116
    plan = []
    for i in range(4):
        for st in range(2):
            for jh in range(2):
                du0 = 4 * (i + st) + 2 * jh - 5 * i
                plan.append((i, st, jh, du0, 0 <= du0 <= 4, 0 <= du0 + 1 <= 4))
    sPD = sT2
    assert N1 <= 8
    PQ2, RAW2 = 188, 208
    valid = [p_ for p_ in plan if p_[4] or p_[5]]
    def raw(g, p_): return RAW + 16 * p_[0] + 8 * p_[1] + 4 * p_[2] if g == 0 else RAW2 + 4 * valid.index(p_)
    def fl(): a(f"buffer_load_dword v{vFT}, v{vFK}, {srd(SWS)}, 0 offen sc1")
    def kvl(g):
        a(f"s_add_u32 s{sT4}, s{sKVO}, {16*KVH*g}")
        a(f"s_add_u32 s{sT3}, s{sT4}, {2*KVH}")
        for p_ in valid:
            (i, st, jh, du0, v0ok, v1ok) = p_
            off = (i & 1) * KVH + du0 * 336
            part = v0ok != v1ok
            if part: a(f"s_mov_b32 exec_{'hi' if v0ok else 'lo'}, 0")
            a(f"buffer_load_dwordx4 {vr(raw(g,p_),4)}, v{vKO if i&1 else vKE}, {srd(SWS)}, s{sT3 if i>>1 else sT4} offen offset:{off} sc1")
            if part: a("s_mov_b64 exec, -1")
    OF = 132
    def proc(g, extra):
        pq = PQ2 if g else PQ
        for i in range(4):
            a(f"s_waitcnt vmcnt({9 - 3*i + extra})")
            kf = KF + 8 * (i & 1)
            for p_ in plan:
                if p_[0] != i: continue
                for j in range(2):
                    d = kf + 4 * p_[1] + 2 * p_[2] + j
                    if p_ in valid: a(f"v_cvt_pk_bf16_f32 v{d}, v{raw(g,p_)+2*j}, v{raw(g,p_)+2*j+1}")
                    else: a(f"v_mov_b32 v{d}, 0")
            d = vr(RAW + 16 * i, 16)
            a(f"v_mfma_f32_32x32x16_bf16 {d}, {vr(kf,4)}, {vr(pq+4*i,4)}, 0")
            a(f"v_mfma_f32_32x32x16_bf16 {d}, {vr(kf+4,4)}, {vr(pq+4*i+4,4)}, {d}")
        if g == 1:
            a(f"v_mov_b32 v152, {L_CNT+12}")
            lds_arrive(152, 153)
        for i in range(4):
            D = RAW + 16 * i
            a(f"v_add_f32 v{D+12}, s{sEPS}, v{D+12}")
            a(f"v_rcp_f32 v{D+12}, v{D+12}")
            for j in range(8): a(f"v_mul_f32 v{D+j}, v{D+j}, v{D+12}")
            for j in range(4): a(f"v_cvt_pk_bf16_f32 v{OF+4*i+j}, v{D+2*j}, v{D+2*j+1}")
            a(f"ds_write_b128 v{vOW}, {vr(OF+4*i,4)} offset:{1024*i + 20480*g}")
            if i & 1 == 0:
                for j in range(4): a(f"v_mul_f32 v{D+8+j}, v{D+8+j}, v{D+12}")
            else:
                for j in range(4): a(f"v_fmac_f32 v{D-8+j}, v{D+8+j}, v{D+12}")
                for j in range(2): a(f"v_cvt_pk_bf16_f32 v{OF+16+2*(i>>1)+j}, v{D-8+2*j}, v{D-8+2*j+1}")
        a(f"ds_write_b128 v{vOW}, {vr(OF+16,4)} offset:{4096 + 20480*g}")
    wl = wo_list(vL16)
    for x in wl[:N1]: a(x)
    x_loads()
    fl()
    a("s_setprio 1")
    for g in range(2):
        for p_ in valid:
            if p_[4] != p_[5]:
                for j in range(4): a(f"v_mov_b32 v{raw(g,p_)+j}, 0")
    a(f"s_mov_b32 s{sPD}, 0")
    a(f"s_mov_b32 s{sCNT}, 0x40000")
    a("s_waitcnt vmcnt(0)")
    a("s_branch Ls3ev")
    a.label("Ls3sl")
    a("s_sleep 2")
    fl()
    a("s_waitcnt vmcnt(0)")
    a.label("Ls3ev")
    a(f"v_cmp_ne_u32 vcc, s{sTAG}, v{vFT}")
    a(f"s_sub_u32 s{sCNT}, s{sCNT}, 1")
    a("s_cbranch_scc1 Ls3go")
    a(f"s_cmp_lg_u32 s{sPD}, 0")
    a("s_cbranch_scc1 Ls3k")
    a(f"s_and_b32 s{sT0}, vcc_lo, 3")
    a("s_cbranch_scc1 Ls3sl")
    for g in range(2):
        a(f"s_add_u32 s{sT4}, s{sPQO}, {20480*g}")
        a(f"s_add_u32 s{sT1}, s{sT4}, 4096")
        for f in range(4): a(f"buffer_load_dwordx4 {vr((PQ2 if g else PQ)+4*f,4)}, v{vL16}, {srd(SWS)}, s{sT4} offen offset:{1024*f} sc1")
        a(f"buffer_load_dwordx4 {vr((PQ2 if g else PQ)+16,4)}, v{vL16}, {srd(SWS)}, s{sT1} offen sc1")
    a(f"s_mov_b32 s{sPD}, 1")
    a(f"v_mov_b32 v{vFK}, v{vFQ}")
    a.label("Ls3k")
    a("s_bitcmp1_b32 vcc_lo, 2")
    a("s_cbranch_scc1 Ls3sl")
    a.label("Ls3go")
    a(f"s_mov_b32 s{sUD}, vcc_hi")
    stamp(6)
    kvl(0)
    a(f"s_cmp_eq_u32 s{sUD}, 0")
    a("s_cbranch_scc1 Ls3k2")
    fl()
    a("s_waitcnt vmcnt(0)")
    a(f"v_cmp_ne_u32 vcc, s{sTAG}, v{vFT}")
    a(f"s_mov_b32 s{sUD}, vcc_hi")
    a(f"s_cmp_lg_u32 s{sUD}, 0")
    a("s_cbranch_scc1 Ls3p1")
    a.label("Ls3k2")
    kvl(1)
    a.label("Ls3p1")
    proc(0, 12)
    a(f"s_cmp_eq_u32 s{sUD}, 0")
    a("s_cbranch_scc1 Ls3p2")
    poll(vFK, vFT)
    kvl(1)
    a.label("Ls3p2")
    if "sx" in EXP: stamp(11)
    proc(1, 0)
    a(f"s_mov_b32 s{sT0}, 0xffff0000")
    a("s_branch Llate")
    NB = 8; POOL = 32; AP, AR = 64, 80
    XF, YR, YF = 96, 112, 120
    def gemm(early):
        def ord_(i):
            if not early: return (vPR, 1024 * i)
            return (vPR, 1024 * (25 + i)) if i < 15 else (vRR, 1024 * (i - 15))
        for i in range(NB):
            v, o = ord_(i); a(f"ds_read_b128 {vr(POOL+4*i,4)}, v{v} offset:{o}")
        pre = []
        if not early:
            for x in wl[N1:]: a(x)
            for xd in (vXD, vXD2):
                pre.append(f"v_permlane32_swap_b32 v{xd}, v{xd+2}")
                pre.append(f"v_permlane32_swap_b32 v{xd+1}, v{xd+3}")
            for n, xd in enumerate((vXD, vXD2)):
                for j in range(4):
                    pre.append(f"v_lshlrev_b32 v{XF+8*n+2*j}, 16, v{xd+j}")
                    pre.append(f"v_and_b32 v{XF+8*n+2*j+1}, s{sT0}, v{xd+j}")
        issued = NB
        log = list(range(NB))
        for i in range(25):
            pos = log.index(i)
            w = f"s_waitcnt lgkmcnt({min(len(log)-1-pos,15)})"
            if not early and i >= N1: w = f"s_waitcnt vmcnt({24-i}) lgkmcnt({min(len(log)-1-pos,15)})"
            a(w)
            d = vr(AR if (early and i >= 15) else AP, 16)
            a(f"v_mfma_f32_32x32x16_bf16 {d}, {vr(VWO+4*i,4)}, {vr(POOL+4*(i%NB),4)}, {'0' if i == 0 or (early and i == 15) else d}")
            if issued < 25:
                v, o = ord_(issued); a(f"ds_read_b128 {vr(POOL+4*(issued%NB),4)}, v{v} offset:{o}"); log.append(issued); issued += 1
            for x in pre[2 * i:2 * i + 2]: a(x)
            if early and i == 12: a(f"buffer_load_dword v{vFT}, v{vFY}, {srd(SWS)}, 0 offen sc1")
            if early and 19 <= i < 23:
                q = i - 19
                a(f"ds_write_b128 v{vPW}, {vr(AP+4*q,4)} offset:{1024*q}"); log.append(-1)
    osfx = (" sc1" if "osc1" in EXP else "")
    def ydma():
        a(f"s_add_u32 m0, s{sYM}, {L_YT}")
        a(f"s_add_u32 s{sT1}, s{sYO}, s{sYM}")
        a(f"buffer_load_dwordx4 v{vL16}, {srd(SWS)}, s{sT1} offen sc1 lds")
        a(f"buffer_load_dwordx4 v{vL16}, {srd(SWS)}, s{sT1} offen offset:1024 sc1 lds")
        a(f"s_lshr_b32 s{sT2}, s{sYM}, 2")
        a(f"s_add_u32 s{sT2}, s{sT2}, 8192")
        a(f"s_add_u32 m0, s{sT2}, {L_YT}")
        a(f"s_add_u32 s{sT1}, s{sYO}, s{sT2}")
        a("s_mov_b32 exec_hi, 0")
        a(f"buffer_load_dwordx4 v{vL16}, {srd(SWS)}, s{sT1} offen sc1 lds")
        a("s_mov_b32 exec_hi, -1")
    a.label("Learly")
    stamp(6)
    a("s_setprio 2")
    a(f"s_mov_b32 s{sUD}, 0")
    a(f"v_mov_b32 v152, {L_CNT+12}")
    a(f"s_mov_b32 s{sCNT}, 0x40000")
    a.label("Ls3yl")
    a(f"buffer_load_dword v{vFT}, v{vFY}, {srd(SWS)}, 0 offen sc1")
    a("s_waitcnt vmcnt(0)")
    a(f"v_cmp_ne_u32 vcc, s{sTAG}, v{vFT}")
    a("s_cbranch_vccz Ls3yk")
    a("s_sleep 2")
    a("ds_read_b32 v153, v152")
    a("s_waitcnt lgkmcnt(0)")
    a(f"v_readfirstlane_b32 s{sT7}, v153")
    a(f"s_cmp_ge_u32 s{sT7}, 3")
    a("s_cbranch_scc1 Ls3y0")
    a(f"s_sub_u32 s{sCNT}, s{sCNT}, 1")
    a("s_cbranch_scc0 Ls3yl")
    a("s_branch Ls3y0")
    a.label("Ls3yk")
    ydma()
    a(f"s_mov_b32 s{sUD}, 1")
    a.label("Ls3y0")
    a("s_waitcnt lgkmcnt(0)")
    if "sx" in EXP: stamp(12)
    a("s_barrier")
    stamp(7)
    a(f"buffer_load_dword v{vG}, v{vGO}, {srd(SWS)}, 0 offen sc1")
    gemm(True)
    a(f"s_cmp_eq_u32 s{sUD}, 1")
    a("s_nop 7")
    a("s_nop 1")
    a("s_cbranch_scc1 Ls3yd")
    poll(vFY, vFT, "issued", sleep=1)
    stamp(5)
    ydma()
    a.label("Ls3yd")
    for q in range(4): a(f"ds_write_b128 v{vPW}, {vr(AR+4*q,4)} offset:{16384+1024*q}")
    for j in range(2):
        a(f"v_lshlrev_b32 v{XF+2*j}, 16, v{vXD+j}")
        a(f"v_and_b32 v{XF+2*j+1}, s{sT0}, v{vXD+j}")
    a("s_waitcnt vmcnt(0) lgkmcnt(0)")
    a("s_barrier")
    stamp(8)
    for p in range(4): a(f"ds_read_b128 {vr(32+4*p,4)}, v{vPA} offset:{4096*p}")
    a(f"ds_read_b64_tr_b16 {vr(YR,2)}, v{vYT}")
    a("s_waitcnt lgkmcnt(1)")
    for j in range(2): a(f"v_pk_add_f32 {vr(32+2*j,2)}, {vr(32+2*j,2)}, {vr(36+2*j,2)}")
    for j in range(2): a(f"v_pk_add_f32 {vr(40+2*j,2)}, {vr(40+2*j,2)}, {vr(44+2*j,2)}")
    for j in range(2): a(f"v_pk_add_f32 {vr(32+2*j,2)}, {vr(32+2*j,2)}, {vr(40+2*j,2)}")
    def fin(R, n):
        a("s_waitcnt lgkmcnt(0)")
        for j in range(n):
            a(f"v_lshlrev_b32 v{YF+2*j}, 16, v{YR+j}")
            a(f"v_and_b32 v{YF+2*j+1}, s{sT0}, v{YR+j}")
        for j in range(n): a(f"v_pk_mul_f32 {vr(XF+2*j,2)}, {vr(XF+2*j,2)}, {vr(YF+2*j,2)}")
        for j in range(n): a(f"v_pk_add_f32 {vr(R+2*j,2)}, {vr(R+2*j,2)}, {vr(XF+2*j,2)} neg_lo:[0,1] neg_hi:[0,1]")
        for j in range(n): a(f"v_pk_fma_f32 {vr(R+2*j,2)}, {vr(R+2*j,2)}, {vr(vG,2)}, {vr(XF+2*j,2)} op_sel_hi:[1,0,1]")
        for j in range(n): a(f"v_cvt_pk_bf16_f32 v{YR+j}, v{R+2*j}, v{R+2*j+1}")
    fin(32, 2)
    a(f"buffer_store_dwordx2 {vr(YR,2)}, v{vOUT}, {srd(SOUT)}, s{sXOFF} offen" + osfx)
    a("s_branch Lfin")
    a.label("Llate")
    a("s_setprio 1")
    a("s_waitcnt lgkmcnt(0)")
    if "sx" in EXP: stamp(12)
    a("s_barrier")
    stamp(7)
    a(f"buffer_load_dword v{vG}, v{vGO}, {srd(SWS)}, 0 offen sc1")
    gemm(False)
    a("s_barrier")
    stamp(8)
    for q in range(4): a(f"ds_read_b128 {vr(32+4*q,4)}, v{vPW} offset:{1024*q}")
    for q in range(4): a(f"ds_read_b64_tr_b16 {vr(YR+2*q,2)}, v{vYT} offset:{512*q}")
    a("s_waitcnt lgkmcnt(4)")
    for j in range(8): a(f"v_pk_add_f32 {vr(AP+2*j,2)}, {vr(AP+2*j,2)}, {vr(32+2*j,2)}")
    fin(AP, 8)
    for h in range(2):
        a(f"v_permlane32_swap_b32 v{YR+4*h}, v{YR+4*h+2}")
        a(f"v_permlane32_swap_b32 v{YR+4*h+1}, v{YR+4*h+3}")
        a(f"buffer_store_dwordx4 {vr(YR+4*h,4)}, v{vOUT}, {srd(SOUT)}, s{sXOFF} offen offset:{32*h}" + osfx)
    a.label("Lfin")
    if DIAG:
        a("s_waitcnt vmcnt(0)")
        stamp(9)
        a(f"s_memtime vcc")
        a("s_waitcnt lgkmcnt(0)")
        a(f"s_mov_b32 s{STS+15}, vcc_lo")
        a("v_mov_b32 v2, 0")
        for i in range(16): a(f"v_writelane_b32 v2, s{STS+i}, {i}")
        a(f"v_lshlrev_b32 v3, 2, v{vL}")
        a(f"s_lshl_b32 s{sT0}, s{sBID}, 3")
        a(f"s_add_u32 s{sT0}, s{sT0}, s{sW}")
        a(f"s_lshl_b32 s{sT0}, s{sT0}, 6")
        a(f"s_add_u32 s{sT0}, s{sT0}, {WS_TS}")
        a("s_mov_b64 exec, 0xffff")
        a(f"buffer_store_dword v2, v3, {srd(SWS)}, s{sT0} offen")
        sp = [e for e in EXP if e.startswith("spin")]
        if sp:
            si, wv, lo, hi = [int(x) for x in sp[0][4:].split("_")]
            a(f"s_cmp_lg_u32 s{sW}, {wv}")
            a("s_cbranch_scc1 Lend")
            a(f"s_cmp_lt_u32 s{sIDX}, {lo}")
            a("s_cbranch_scc1 Lend")
            a(f"s_cmp_ge_u32 s{sIDX}, {hi}")
            a("s_cbranch_scc1 Lend")
            a.label("Lspin")
            a("s_memrealtime vcc")
            a("s_waitcnt lgkmcnt(0)")
            a(f"s_sub_u32 s{sT1}, vcc_lo, s{STS+si}")
            a(f"s_cmp_lt_u32 s{sT1}, 5000")
            a("s_cbranch_scc1 Lspin")
        if "dbgts" in EXP:
            a(f"s_cmp_lg_u32 s{sW}, {int([e for e in EXP if e.startswith('wv')][0][2:])}")
            a("s_cbranch_scc1 Lend")
            a(f"s_cmp_ge_u32 s{sIDX}, 16")
            a("s_cbranch_scc1 Lend")
            a("v_cmp_ne_u32 vcc, 0, v2")
            a(f"v_subrev_u32 v2, s{sTAG}, v2")
            a("v_add_u32 v2, 100, v2")
            a("v_and_b32 v2, 0x7ffffff, v2")
            a("v_cndmask_b32 v2, 0, v2, vcc")
            a("s_mov_b64 exec, 0x3fff")
            a(f"buffer_atomic_umax v2, v3, {srd(SDBG)}, 0 offen offset:4 sc1")
    a.label("Lend")
    a("s_endpgm")

entry(); bwave(); awave(); kva(); qa(); ctype(); conv(); s3()

ref = open("cdna_kernels/%s.s.ref" % NAME).read()
head = [l for l in ref.split("\n") if l.startswith(";") and "@launch" not in l]
out = "\n".join(head) + "\n"
out += "; @launch grid=(256,1,1) block=(512,1,1) lds=%d\n" % LDS_BYTES
out += '.amdgcn_target "amdgcn-amd-amdhsa--gfx950"\n.text\n.globl %s_kernel\n.p2align 8\n.type %s_kernel,@function\n%s_kernel:\n' % (NAME, NAME, NAME)
import re
body = a.text()
ntset = []
if "nt" in EXP: ntset += [SK, SV, SH, SWO, SSK, SGW]
if "ntx" in EXP: ntset += [SX, SWQ]
for s_ in ntset:
    body = re.sub(r"(buffer_load_dword\S* [^\n]*%s, [^\n]*?offen(?: offset:\d+)?)( lds)?\n" % re.escape(srd(s_)), lambda m: m.group(1) + " nt" + (m.group(2) or "") + "\n", body)
out += body
out += '''.section .rodata,"a"
.p2align 6
.amdhsa_kernel %s_kernel
  .amdhsa_next_free_vgpr 256
  .amdhsa_next_free_sgpr 102
  .amdhsa_accum_offset 256
  .amdhsa_group_segment_fixed_size 0
  .amdhsa_kernarg_size 104
  .amdhsa_user_sgpr_count 2
  .amdhsa_user_sgpr_kernarg_segment_ptr 1
  .amdhsa_system_sgpr_workgroup_id_x 1
.end_amdhsa_kernel
''' % NAME
dst = [x for x in sys.argv[1:] if not x.startswith("--")]
open(dst[0] if dst else "cdna_kernels/%s.s" % NAME, "w").write(out)
```

```python
import sys
from asmlib import Asm, vr, sr

NAME = "gated_mix__linear_attn_block__ssm_conv_h3__prompt"
DIAG = "--diag" in sys.argv
EXP = [x[6:] for x in sys.argv if x.startswith("--exp=")]

WOFF = int(([e[4:] for e in EXP if e.startswith("woff")] + ["0"])[0]) << 20
WS_U = 0
WS_PQ = 0x280000 + WOFF
WS_Y = 0x500000 + WOFF
WS_WOP = 0x780000 + WOFF
WS_KV = 0x850000 + WOFF
WS_C = 0x860000 + WOFF
CDELTA = 320 * 256
WS_FK = WS_C
WS_FY = WS_C + 8 * 256
WS_FQ = WS_C + 64 * 256
WS_G = 0x88C000 + WOFF
WS_TS = 0x890000 + WOFF
WS_SIZE = 0x900000 + WOFF
KVH = 1792

NQ = int(([e[2:] for e in EXP if e.startswith("nq")] + ["0"])[0])
NU = 64 + 64 * NQ
N1 = int(([e[2:] for e in EXP if e.startswith("n1")] + ["8"])[0])
Q0 = int(([e[2:] for e in EXP if e.startswith("q0")] + ["2"])[0])
G0, G1 = 16 + 4 * Q0, 32 - 4 * Q0
SLOT = 36864
L_OFR = 36864
L_KVS = 77824
L_YST = 92160
L_PART = 77824
L_UB = 110592
L_UD = L_UB + 2048
L_HB = 129024
HSTR = 4224
L_SP = 145920
L_CNT = 146048
L_TAG = 146112
L_YT = 146176
L_S0C = 0
L_RPC = 49152
L_GW = L_YT + 10240
LDS_BYTES = L_GW + 2048

SX, SWQ, SWO, SK, SV, SSK, SH, SGW, SOUT, SDBG, SWS = [4 + 4 * i for i in range(11)]
SD = 48
sW, sXCD, sIDX, sRP, sCP, sTAG, sCNT = range(50, 57)
sRB, sCG, sQUAD, sCHL, sLC, sVAR, sCH, sJ, sUD = range(57, 66)
sT0, sT1, sT2, sT3, sT4, sT5, sT6, sT7 = range(66, 74)
sLOG = 74
sCI = 76
sDV = 77
STS = 80
sXOFF, sPQO, sKVO, sTB, sYO, sYM = 96, 97, 98, 99, 100, 101
sCHB = 65
sRD = 3
sWOO = 2
sEPS = 79
sBID = 78
def srd(b): return sr(b, 4)

vL = 0
VWO = 156
vL16, vOW, vPR, vRR, vPW = 1, 2, 3, 4, 5
vKE, vKO, vFK, vFY, vZ, vOUT, vPA, vPB, vYT, vFT, vGO = 9, 10, 11, 12, 13, 14, 15, 16, 17, 18, 19
vXD, vG, vXD2 = 20, 24, 28
vFQ, vFE = 27, 25

a = Asm()
BST = [None]
def stamp(i, force=False):
    if "bst" in EXP and not force and i not in (0, 10): return
    if DIAG:
        a(f"{'s_memtime' if 'cyc' in EXP else 's_memrealtime'} vcc")
        a("s_waitcnt lgkmcnt(0)")
        a(f"s_mov_b32 s{STS+i}, vcc_lo")

def poll(vaddr, vdst, state="none", sleep=2, S=None):
    L = a.newlabel("Lpoll"); D = a.newlabel("Lpd")
    if state != "none":
        if state == "issued": a("s_waitcnt vmcnt(0)")
        a(f"v_cmp_ne_u32 vcc, s{sTAG}, v{vdst}")
        a(f"s_cbranch_vccz {D}")
    a(f"s_mov_b32 s{sCNT}, 0x20000")
    a.label(L)
    a(f"buffer_load_dword v{vdst}, v{vaddr}, {srd(S or SWS)}, 0 offen sc1")
    a("s_waitcnt vmcnt(0)")
    a(f"v_cmp_ne_u32 vcc, s{sTAG}, v{vdst}")
    a(f"s_cbranch_vccz {D}")
    if sleep: a(f"s_sleep {sleep}")
    a(f"s_sub_u32 s{sCNT}, s{sCNT}, 1")
    a(f"s_cbranch_scc0 {L}")
    a.label(D)

def cnt_load(S, vaddr, vdst):
    a(f"buffer_load_dword v{vdst}, v{vaddr}, {srd(S)}, 0 offen sc1")

def tag_get(vz, vdst, state="issued"):
    L = a.newlabel("Ltag"); D = a.newlabel("Ltd")
    if state != "none":
        if state == "issued": a("s_waitcnt vmcnt(0)")
        a(f"v_readfirstlane_b32 s{sTAG}, v{vdst}")
        a(f"s_cmp_lg_u32 s{sTAG}, 0")
        a(f"s_cbranch_scc1 {D}")
    a(f"s_mov_b32 s{sCNT}, 0x20000")
    a.label(L)
    a(f"buffer_load_dword v{vdst}, v{vz}, {srd(SDBG)}, 0 offen sc1")
    a("s_waitcnt vmcnt(0)")
    a(f"v_readfirstlane_b32 s{sTAG}, v{vdst}")
    a(f"s_cmp_lg_u32 s{sTAG}, 0")
    a(f"s_cbranch_scc1 {D}")
    a("s_sleep 2")
    a(f"s_sub_u32 s{sCNT}, s{sCNT}, 1")
    a(f"s_cbranch_scc0 {L}")
    a.label(D)

def tag_lds(vtmp):
    a(f"v_mov_b32 v{vtmp}, {L_TAG}")
    a(f"ds_read_b32 v{vtmp}, v{vtmp}")
    a("s_waitcnt lgkmcnt(0)")
    a(f"v_readfirstlane_b32 s{sTAG}, v{vtmp}")

def arr_prep(vt0, vt1):
    a(f"v_mov_b32 v{vt0}, {CDELTA}")
    a(f"v_mov_b32 v{vt1}, 1")
def arr_issue(vt0, vt1, soff):
    a("s_mov_b64 exec, 1")
    a(f"buffer_atomic_add v{vt1}, v{vt0}, {srd(SWS)}, {soff} offen sc0 sc1")
    a("s_mov_b64 exec, -1")
def arr_finish(vt0, vt1, soff, n, wait=0):
    D = a.newlabel("Lal")
    a(f"s_waitcnt vmcnt({wait})")
    a(f"v_readfirstlane_b32 s{sT7}, v{vt1}")
    a(f"s_cmp_lg_u32 s{sT7}, {n-1}")
    a(f"s_cbranch_scc1 {D}")
    flag_store(vt0, vt1, soff)
    a.label(D)
def flag_store(vt0, vt1, soff):
    a(f"v_mov_b32 v{vt0}, 0")
    a(f"v_mov_b32 v{vt1}, s{sTAG}")
    a("s_mov_b64 exec, 1")
    a(f"buffer_store_dword v{vt1}, v{vt0}, {srd(SWS)}, {soff} offen sc1")
    a("s_mov_b64 exec, -1")

def darr_issue(vz, v1, off):
    a(f"v_mov_b32 v{v1}, 1")
    a("s_mov_b64 exec, 1")
    a(f"buffer_atomic_add v{v1}, v{vz}, {srd(SDBG)}, 0 offen offset:{off} sc0 sc1")
    a("s_mov_b64 exec, -1")
def darr_finish(vz, v1, off, n, wait=0):
    D = a.newlabel("Lda")
    a(f"s_waitcnt vmcnt({wait})")
    a(f"v_readfirstlane_b32 s{sT7}, v{v1}")
    a(f"s_cmp_lg_u32 s{sT7}, {n-1}")
    a(f"s_cbranch_scc1 {D}")
    a(f"v_mov_b32 v{v1}, 1")
    a("s_mov_b64 exec, 1")
    a(f"buffer_store_dword v{v1}, v{vz}, {srd(SDBG)}, 0 offen offset:{128+off} sc1")
    a("s_mov_b64 exec, -1")
    a.label(D)

def lds_arrive(vaddr, vtmp):
    a(f"v_mov_b32 v{vtmp}, 1")
    a("s_mov_b64 exec, 1")
    a(f"ds_add_u32 v{vaddr}, v{vtmp}")
    a("s_mov_b64 exec, -1")
def lds_wait(vaddr, vtmp, target):
    L = a.newlabel("Lls"); D = a.newlabel("Lld")
    a(f"s_mov_b32 s{sCNT}, 0x400000")
    a.label(L)
    a(f"ds_read_b32 v{vtmp}, v{vaddr}")
    a("s_waitcnt lgkmcnt(0)")
    a(f"v_readfirstlane_b32 s{sT7}, v{vtmp}")
    a(f"s_cmp_ge_u32 s{sT7}, {target}")
    a(f"s_cbranch_scc1 {D}")
    a(f"s_sub_u32 s{sCNT}, s{sCNT}, 1")
    a(f"s_cbranch_scc0 {L}")
    a.label(D)

def capture(f):
    keep = a.ins; a.ins = []
    f()
    out = [i_.text for i_ in a.ins if i_.cls != "nop" and not i_.text.startswith(";")]
    a.ins = keep
    return out
def slices(lst, n):
    def safe(k):
        ex = [t for t in lst[:k] if "exec" in t]
        if ex and not ex[-1].startswith("s_mov_b64 exec, -1"): return False
        for t in lst[k:]:
            m = t.split()[0]
            if m.startswith(("s_cselect", "s_cbranch", "s_addc")): return False
            if m.startswith(("s_cmp", "s_add", "s_sub", "s_and", "s_or", "s_xor", "s_lshl", "s_lshr", "s_bfe", "s_min", "s_bitcmp")): return True
        return True
    out = []; prev = 0
    for j in range(1, n):
        k = len(lst) * j // n
        while not safe(k): k += 1
        out.append(lst[prev:k]); prev = k
    out.append(lst[prev:])
    return out

def div20(vq, vr_, vp):
    a(f"v_mul_u32_u24 v{vq}, 3277, v{vp}")
    a(f"v_lshrrev_b32 v{vq}, 16, v{vq}")
    a(f"v_mul_u32_u24 v{vr_}, 20, v{vq}")
    a(f"v_sub_u32 v{vr_}, v{vp}, v{vr_}")
for p in range(1000): assert (p * 3277) >> 16 == p // 20

SIZES = {SX: 2621440, SWQ: 2457600, SWO: 819200, SK: 2621440, SV: 2621440, SSK: 5120, SH: 2621440, SGW: 1280, SOUT: 2621440, SDBG: 256, SWS: WS_SIZE}
def srd_init(lst):
    for s in lst:
        a(f"s_mov_b32 s{s+2}, {SIZES[s]}")
        a(f"s_mov_b32 s{s+3}, 0x20000")
def ka_rest():
    if "ka1" not in EXP: return
    for s, off in ((SK, 32), (SV, 40), (SSK, 48), (SWS, 96), (SDBG, 88), (SH, 56), (SWO, 16), (SGW, 72), (SOUT, 80), (SD, 64)):
        a(f"s_load_dwordx2 {sr(s,2)}, s[0:1], {off}")
def common_scalars():
    a(f"s_mov_b32 s{sLOG}, 0x3fb8aa3b")
    a(f"s_mov_b32 s{sLOG+1}, 0x3fb8aa3b")
    a(f"s_mov_b32 s{sEPS}, 0x358637bd")
    a(f"s_mul_i32 s{sT0}, s{sCP}, {32-G0}")
    a(f"s_lshl_b32 s{sCI}, s{sRP}, 4")
    a(f"s_add_u32 s{sCI}, s{sCI}, s{sT0}")
    a(f"s_add_u32 s{sCI}, s{sCI}, s{sIDX}")
    a(f"s_sub_u32 s{sCI}, s{sCI}, s{sXCD}")

def entry():
    a.label("Lentry")
    a(f"s_cmp_ge_u32 s2, 256")
    a("s_cbranch_scc1 Lend")
    if "scr" in EXP:
        a("s_and_b32 s3, s2, 31")
        a("s_lshl_b32 s3, s3, 3")
        a("s_lshr_b32 s2, s2, 5")
        a("s_or_b32 s2, s2, s3")
    if DIAG: a(f"s_memrealtime {sr(sT6,2)}")
    a(f"s_getpc_b64 {sr(sT0,2)}")
    a.label("Lpcref")
    a(f"s_lshr_b32 s{sIDX}, s2, 3")
    a(f"s_mul_i32 s{sT2}, s{sIDX}, 9")
    a("v_min_u32 v1, 8, v0")
    a(f"v_add_lshl_u32 v1, v1, s{sT2}, 7")
    a("v_min_u32 v1, Lend-Lpcref, v1")
    if "nocpf" not in EXP: a(f"global_load_dword v255, v1, {sr(sT0,2)}")
    for s, off in ((SX, 0), (SWQ, 8), (SK, 32), (SV, 40), (SSK, 48), (SWS, 96), (SDBG, 88), (SH, 56), (SWO, 16), (SGW, 72), (SOUT, 80), (SD, 64)):
        if "ka1" in EXP and off >= 16: continue
        a(f"s_load_dwordx2 {sr(s,2)}, s[0:1], {off}")
    a("v_lshrrev_b32 v1, 6, v0")
    a(f"v_and_b32 v{vL}, 63, v0")
    a(f"v_readfirstlane_b32 s{sW}, v1")
    a("s_bitcmp1_b32 s2, 2")
    a(f"s_cselect_b32 s{sXCD}, {G1}, {G0}")
    a(f"s_and_b32 s{sRP}, s2, 3")
    a(f"s_bfe_u32 s{sCP}, s2, 0x10002")
    a(f"s_mov_b32 s{sBID}, s2")
    a(f"s_mov_b32 s{sTAG}, 1")
    a(f"s_and_b32 s{sT0}, s{sIDX}, 3")
    a(f"s_lshl_b32 s{sRB}, s{sRP}, 2")
    a(f"s_add_u32 s{sRB}, s{sRB}, s{sT0}")
    if DIAG:
        for i in range(16): a(f"s_mov_b32 s{STS+i}, 0")
        stamp(0)
        a(f"s_mov_b32 s{STS+10}, s{sT6}")
        a(f"s_memtime vcc")
        a("s_waitcnt lgkmcnt(0)")
        a(f"s_mov_b32 s{STS+14}, vcc_lo")
    a(f"s_cmp_ge_u32 s{sIDX}, s{sXCD}")
    a("s_cbranch_scc1 Lctype")
    a(f"s_cmp_lt_u32 s{sW}, 4")
    a("s_cbranch_scc1 Lawave")

def s3_setup(split=None):
    a.c("S3 setup")
    sR3, sC3 = sT2, sT3
    a(f"s_lshr_b32 s{sT0}, s{sIDX}, 1")
    a(f"s_lshl_b32 s{sR3}, s{sRP}, 4")
    a(f"s_add_u32 s{sR3}, s{sR3}, s{sT0}")
    a(f"s_and_b32 s{sT0}, s{sIDX}, 1")
    a(f"s_lshl_b32 s{sC3}, s{sCP}, 1")
    a(f"s_add_u32 s{sC3}, s{sC3}, s{sT0}")
    a(f"v_lshlrev_b32 v{vL16}, 4, v{vL}")
    a(f"v_mov_b32 v{vZ}, 0")
    a(f"v_and_b32 v24, 31, v{vL}")
    a(f"v_lshrrev_b32 v25, 5, v{vL}")
    a(f"s_and_b32 s{sT0}, s{sW}, 3")
    a(f"s_lshl_b32 s{sT1}, s{sT0}, 6")
    a(f"s_lshl_b32 s{sT4}, s{sT0}, 4")
    a(f"s_add_u32 s{sT4}, s{sT4}, 256")
    a(f"s_cmp_lt_u32 s{sW}, 4")
    a(f"s_cselect_b32 s{sT1}, s{sT1}, s{sT4}")
    a(f"s_cselect_b32 s{sT5}, 4, 3")
    a(f"v_mul_u32_u24 v{vOUT}, 1280, v24")
    a(f"v_lshl_add_u32 v{vOUT}, v25, s{sT5}, v{vOUT}")
    a(f"s_mul_i32 s{sXOFF}, s{sR3}, 40960")
    a(f"s_mul_i32 s{sT4}, s{sC3}, 320")
    a(f"s_add_u32 s{sYO}, s{sXOFF}, {WS_Y}")
    a(f"s_add_u32 s{sXOFF}, s{sXOFF}, s{sT4}")
    a(f"s_add_u32 s{sXOFF}, s{sXOFF}, s{sT1}")
    a(f"s_lshl_b32 s{sT5}, s{sR3}, 7")
    a(f"s_add_u32 s{sT5}, s{sT5}, {WS_G}")
    a(f"v_lshlrev_b32 v{vGO}, 2, v24")
    a(f"v_add_u32 v{vGO}, s{sT5}, v{vGO}")
    a(f"v_bfe_u32 v26, v{vL}, 2, 2")
    a("v_lshl_add_u32 v26, v25, 2, v26")
    a(f"v_lshlrev_b32 v{vYT}, 6, v26")
    a(f"v_bfe_u32 v26, v{vL}, 4, 1")
    a(f"v_lshl_add_u32 v{vYT}, v26, 5, v{vYT}")
    a(f"v_and_b32 v26, 3, v{vL}")
    a(f"v_lshl_add_u32 v{vYT}, v26, 3, v{vYT}")
    a(f"s_lshl_b32 s{sT1}, s{sT1}, 5")
    a(f"s_add_u32 s{sT1}, s{sT1}, {L_YT}")
    a(f"v_add_u32 v{vYT}, s{sT1}, v{vYT}")
    a(f"s_lshl_b32 s{sT1}, s{sT0}, 12")
    a(f"s_add_u32 s{sT1}, s{sT1}, {L_PART}")
    a(f"v_add_u32 v{vPW}, s{sT1}, v{vL16}")
    a(f"s_lshl_b32 s{sT1}, s{sT0}, 10")
    a(f"s_add_u32 s{sT1}, s{sT1}, {L_PART+16384}")
    a(f"v_add_u32 v{vPA}, s{sT1}, v{vL16}")
    a(f"s_mul_i32 s{sT1}, s{sT0}, {10*1024}")
    a(f"s_add_u32 s{sT1}, s{sT1}, {L_OFR}")
    a(f"v_add_u32 v{vRR}, s{sT1}, v{vL16}")
    a(f"v_add_u32 v{vPR}, {L_OFR}, v{vL16}")
    a(f"s_mul_i32 s{sT1}, s{sW}, 5120")
    a(f"s_add_u32 s{sT4}, s{sT1}, {L_OFR}")
    a(f"v_add_u32 v{vOW}, s{sT4}, v{vL16}")
    a(f"s_add_u32 s{sPQO}, s{sYO}, s{sT1}")
    a(f"s_add_u32 s{sPQO}, s{sPQO}, {(WS_PQ-WS_Y)&0xffffffff}")
    a("v_mul_u32_u24 v25, 336, v25")
    a("v_min_u32 v26, 20, v24")
    a("v_lshl_add_u32 v26, v26, 4, v25")
    a("v_lshrrev_b32 v27, 2, v24")
    a(f"v_mov_b32 v{vFT}, 0x7f000000")
    a("v_cmp_eq_u32 vcc, 5, v27")
    a(f"v_subrev_u32 v{vKO}, 4, v24")
    a(f"v_lshl_add_u32 v{vKO}, v{vKO}, 4, v25")
    a(f"v_cndmask_b32 v{vKE}, v26, v{vFT}, vcc")
    a(f"v_cndmask_b32 v{vKO}, v26, v{vKO}, vcc")
    a("v_cmp_eq_u32 vcc, 4, v27")
    a(f"s_mul_i32 s{sKVO}, s{sW}, {4*KVH}")
    a(f"s_add_u32 s{sKVO}, s{sKVO}, {WS_KV}")
    a(f"v_cndmask_b32 v{vKO}, v{vKO}, v{vFT}, vcc")
    a(f"s_lshl_b32 s{sT1}, s{sW}, 8")
    a(f"s_add_u32 s{sT1}, s{sT1}, {WS_FK}")
    a(f"v_lshrrev_b32 v{vFK}, 5, v{vL}")
    a(f"v_lshlrev_b32 v{vFK}, 10, v{vFK}")
    a(f"v_add_u32 v{vFK}, s{sT1}, v{vFK}")
    a(f"v_mov_b32 v{vFQ}, v{vFK}")
    a(f"s_lshr_b32 s{sT1}, s{sR3}, 1")
    a(f"s_lshl_b32 s{sT1}, s{sT1}, 3")
    a(f"s_add_u32 s{sT1}, s{sT1}, s{sW}")
    a(f"s_lshl_b32 s{sT1}, s{sT1}, 8")
    a(f"s_add_u32 s{sT1}, s{sT1}, {WS_FQ}")
    a(f"v_writelane_b32 v{vFK}, s{sT1}, 0")
    a(f"s_add_u32 s{sT1}, s{sT1}, 1024")
    a(f"v_writelane_b32 v{vFK}, s{sT1}, 1")
    a(f"s_lshr_b32 s{sT1}, s{sR3}, 3")
    a(f"s_add_u32 s{sT1}, s{sT1}, 2")
    a(f"s_bfe_u32 s{sT1}, s{sT1}, 0x10002")
    a(f"s_mul_i32 s{sT1}, s{sT1}, 20")
    a(f"s_mul_i32 s{sT4}, s{sC3}, 5")
    a(f"s_add_u32 s{sT1}, s{sT1}, s{sT4}")
    a(f"s_lshl_b32 s{sT1}, s{sT1}, 8")
    a(f"s_add_u32 s{sT1}, s{sT1}, {WS_FY + 4*256}")
    a(f"v_mov_b32 v{vFY}, s{sT1}")
    a(f"s_lshl_b32 s{sT5}, s{sT0}, 8")
    a(f"s_add_u32 s{sT1}, s{sT1}, s{sT5}")
    a(f"s_sub_u32 s{sT1}, s{sT1}, {4*256}")
    a(f"v_writelane_b32 v{vFY}, s{sT1}, 0")
    a(f"s_lshl_b32 s{sT4}, s{sT4}, 11")
    a(f"s_add_u32 s{sYO}, s{sYO}, s{sT4}")
    a(f"s_lshl_b32 s{sYM}, s{sT0}, 11")

def x_loads():
    E = a.newlabel("Lxe"); D = a.newlabel("Lxd")
    a(f"s_cmp_ge_u32 s{sW}, 4")
    a(f"s_cbranch_scc1 {E}")
    a(f"buffer_load_dwordx4 {vr(vXD,4)}, v{vOUT}, {srd(SX)}, s{sXOFF} offen")
    a(f"buffer_load_dwordx4 {vr(vXD2,4)}, v{vOUT}, {srd(SX)}, s{sXOFF} offen offset:32")
    a(f"s_branch {D}")
    a.label(E)
    a(f"buffer_load_dword v{vXD}, v{vOUT}, {srd(SX)}, s{sXOFF} offen")
    a(f"buffer_load_dword v{vXD+1}, v{vOUT}, {srd(SX)}, s{sXOFF} offen offset:4")
    a.label(D)

def wo_prep(vtmp):
    a(f"s_and_b32 s{sT4}, s{sIDX}, 1")
    a(f"s_lshl_b32 s{sT5}, s{sCP}, 1")
    a(f"s_add_u32 s{sT4}, s{sT4}, s{sT5}")
    a(f"s_lshl_b32 s{sT4}, s{sT4}, 3")
    a(f"s_add_u32 s{sT4}, s{sT4}, s{sW}")
    a(f"s_mul_i32 s{sT4}, s{sT4}, 25600")
    a(f"s_add_u32 s{sWOO}, s{sT4}, {WS_WOP}")
    a(f"v_lshlrev_b32 v{vtmp}, 4, v{vL}")
def wo_list(vtmp, order=None):
    out = []
    for i in range(25):
        t = f"buffer_load_dwordx4 {vr(VWO+4*i,4)}, v{vtmp}, {srd(SWS)}, s{sWOO} offen offset:{1024*(i&3)} sc1"
        if (i & 3) == 3: t += f"\ns_add_u32 s{sWOO}, s{sWOO}, 4096"
        out.append(t)
    return out

S0B = 156
def s0_task(st):
    a(f"s_mul_i32 s{sTB}, s{st}, 6554")
    a(f"s_lshr_b32 s{sTB}, s{sTB}, 16")
    a(f"s_mul_i32 s{sCHB}, s{sTB}, 10")
    a(f"s_sub_u32 s{sCHB}, s{st}, s{sCHB}")
for t in range(640): assert (t * 6554) >> 16 == t // 10

def s0_loads(LB=None, init=True):
    a.c("S0 loads")
    B = S0B
    a(f"v_lshrrev_b32 v{B+1}, 3, v{vL}")
    a(f"v_and_b32 v{B+2}, 7, v{vL}")
    a(f"v_mul_u32_u24 v{B+3}, 5120, v{B+1}")
    a(f"v_lshl_add_u32 v{B+3}, v{B+2}, 4, v{B+3}")
    a(f"s_mul_i32 s{sT0}, s{sTB}, 40960")
    a(f"s_lshl_b32 s{sT1}, s{sCHB}, 7")
    a(f"s_add_u32 s{sT0}, s{sT0}, s{sT1}")
    a(f"v_add_u32 v{B+64}, s{sT0}, v{B+3}")
    a(f"v_subrev_u32 v{B+65}, 3840, v{B+64}")
    a(f"v_lshlrev_b32 v{B+66}, 6, v{B+2}")
    a(f"s_lshl_b32 s{sT1}, s{sCHB}, 9")
    if init:
        srd_init([SK, SV, SSK])
        a("s_waitcnt lgkmcnt(0)")
    LB = LB or B
    for i in range(4): a(f"buffer_load_dwordx4 {vr(LB+16+4*i,4)}, v{B+64}, {srd(SK)}, 0 offen offset:{1280*i}")
    for i in range(3): a(f"buffer_load_dwordx4 {vr(LB+4+4*i,4)}, v{B+65}, {srd(SK)}, 0 offen offset:{1280*i}")
    for i in range(4): a(f"buffer_load_dwordx4 {vr(LB+32+4*i,4)}, v{B+64}, {srd(SV)}, 0 offen offset:{1280*i}")
    for i in range(4): a(f"buffer_load_dwordx4 {vr(LB+48+4*i,4)}, v{B+66}, {srd(SSK)}, s{sT1} offen offset:{16*i}")

def s0_addr(s_scr):
    B = S0B
    a(f"v_mul_u32_u24 v{B+67}, 576, v{B+1}")
    a(f"v_lshl_add_u32 v{B+67}, v{B+2}, 4, v{B+67}")
    a(f"v_add_u32 v{B+67}, s{s_scr}, v{B+67}")
    a(f"v_and_b32 v{B+68}, 15, v{vL}")
    a(f"v_mul_u32_u24 v{B+69}, 144, v{B+68}")
    a(f"v_lshrrev_b32 v{B+70}, 4, v{vL}")
    a(f"v_lshl_add_u32 v{B+69}, v{B+70}, 3, v{B+69}")
    a(f"v_add_u32 v{B+69}, s{s_scr}, v{B+69}")
    a(f"s_and_b32 s{sT0}, s{sTB}, 3")
    a(f"v_xor_b32 v{B+68}, s{sT0}, v{B+68}")
    a(f"v_lshlrev_b32 v{B+68}, 4, v{B+68}")
    a(f"v_lshl_add_u32 v{B+68}, v{B+70}, 14, v{B+68}")
    a(f"s_lshl_b32 s{sT0}, s{sCHB}, 18")
    a(f"s_lshl_b32 s{sT1}, s{sTB}, 8")
    a(f"s_add_u32 s{sT0}, s{sT0}, s{sT1}")
    if WOFF: a(f"s_add_u32 s{sT0}, s{sT0}, {WOFF}")
    a(f"s_mov_b32 s{sT1}, 0xffff0000")

def s0_compute(split=None, pk=True, LB=None):
    a.c("S0 compute")
    B = S0B
    LB = LB or B
    KF, VF, WF, AC, UO = 112, 126, 134, B + 88, B + 72
    for p in range(4):
        for cc in range(2):
            c = 2 * p + cc
            for h in range(2):
                a(f"v_lshlrev_b32 v{WF+4*h+cc}, 16, v{LB+48+2*c+h}")
                a(f"v_and_b32 v{WF+4*h+2+cc}, s{sT1}, v{LB+48+2*c+h}")
        for r in range(7):
            a(f"v_lshlrev_b32 v{KF+2*r}, 16, v{LB+4+4*r+p}")
            a(f"v_and_b32 v{KF+2*r+1}, s{sT1}, v{LB+4+4*r+p}")
        for r in range(4):
            a(f"v_lshlrev_b32 v{VF+2*r}, 16, v{LB+32+4*r+p}")
            a(f"v_and_b32 v{VF+2*r+1}, s{sT1}, v{LB+32+4*r+p}")
        if pk:
            for i in range(4): a(f"v_pk_mul_f32 {vr(AC+2*i,2)}, {vr(KF+2*(i+3),2)}, {vr(WF,2)}")
            for d in range(1, 4):
                for i in range(4): a(f"v_pk_fma_f32 {vr(AC+2*i,2)}, {vr(KF+2*(i+3-d),2)}, {vr(WF+2*d,2)}, {vr(AC+2*i,2)}")
            for i in range(4): a(f"v_pk_mul_f32 {vr(AC+2*i,2)}, {vr(AC+2*i,2)}, {vr(VF+2*i,2)}")
        else:
            for i in range(8): a(f"v_mul_f32 v{AC+i}, v{KF+6+i}, v{WF+(i&1)}")
            for d in range(1, 4):
                for i in range(8): a(f"v_fmac_f32 v{AC+i}, v{KF+6+i-2*d}, v{WF+2*d+(i&1)}")
            for i in range(8): a(f"v_mul_f32 v{AC+i}, v{AC+i}, v{VF+i}")
        for i in range(4): a(f"v_cvt_pk_bf16_f32 v{UO+4*i+p}, v{AC+2*i}, v{AC+2*i+1}")
        if split: split(p)
    for i in range(4): a(f"ds_write_b128 v{B+67}, {vr(UO+4*i,4)} offset:{144*i}")
    for j in range(4):
        a(f"ds_read_b64_tr_b16 {vr(LB+4+4*j,2)}, v{B+69} offset:{32*j}")
        a(f"ds_read_b64_tr_b16 {vr(LB+6+4*j,2)}, v{B+69} offset:{32*j+2304}")
    for j in range(4):
        a(f"s_waitcnt lgkmcnt({6-2*j})")
        a(f"buffer_store_dwordx4 {vr(LB+4+4*j,4)}, v{B+68}, {srd(SWS)}, s{sT0} offen sc1")
        if j < 3: a(f"s_add_u32 s{sT0}, s{sT0}, 65536")

def f0_off(sd):
    a(f"s_lshl_b32 s{sd}, s{sCHB}, 8")
    a(f"s_add_u32 s{sd}, s{sd}, {WS_F0}")

ACC = 32
FB = [112, 156]
vX0, vX1, vWA, vWX = 148, 149, 150, 154
vA1, vA2, vC16, vG4 = 16, 17, 18, 19
sC, sSL = sT2, sT3

def a_setup():
    a.c("A-wave address setup")
    a(f"s_and_b32 s{sT0}, s{sW}, 1")
    a(f"s_lshr_b32 s{sT1}, s{sW}, 1")
    a(f"v_and_b32 v{vC16}, 15, v{vL}")
    a(f"v_lshrrev_b32 v{vG4}, 4, v{vL}")
    a(f"v_lshrrev_b32 v8, 1, v{vC16}")
    a(f"v_xor_b32 v8, v{vG4}, v8")
    a(f"v_lshlrev_b32 v8, 4, v8")
    a(f"v_lshl_add_u32 v8, v{vC16}, 7, v8")
    a(f"s_lshl_b32 s{sT4}, s{sT1}, 13")
    a(f"v_add_u32 v{vX0}, s{sT4}, v8")
    a(f"v_xor_b32 v{vX1}, 64, v{vX0}")
    a(f"v_bfe_u32 v8, v{vL}, 2, 2")
    a(f"v_lshl_add_u32 v9, v{vG4}, 3, v8")
    a(f"v_and_b32 v10, 1, v{vG4}")
    a(f"v_xor_b32 v10, s{sT0}, v10")
    a(f"v_and_b32 v11, 3, v{vL}")
    a("v_lshlrev_b32 v11, 3, v11")
    a(f"v_lshl_add_u32 v{vWX}, v9, 6, v11")
    a(f"v_lshl_add_u32 v{vWX}, v10, 5, v{vWX}")
    a(f"v_add_u32 v{vWX}, 32768, v{vWX}")
    a("v_lshl_or_b32 v8, v10, 2, v8")
    a("v_lshl_add_u32 v8, v8, 5, v11")
    a("v_lshl_add_u32 v8, v9, 8, v8")
    a(f"v_add_u32 v{vWA}, 16384, v8")
    for tt in range(1, 4): a(f"v_xor_b32 v{vWA+tt}, {32*tt}, v{vWA}")

def a_reads(buf, ks):
    b = FB[buf]
    xs = [f"ds_read_b128 {vr(b+4*rt,4)}, v{vX1 if ks else vX0} offset:{2048*rt}" for rt in range(4)]
    ws = []
    for tt in range(5):
        for sec in range(2):
            if tt < 4: ws.append(f"ds_read_b64_tr_b16 {vr(b+16+4*tt+2*sec,2)}, v{vWA+tt} offset:{ks*8192+sec*1024}")
            else: ws.append(f"ds_read_b64_tr_b16 {vr(b+16+4*tt+2*sec,2)}, v{vWX} offset:{ks*2048+sec*256}")
    return [xs[0], ws[0], ws[1], xs[1], ws[2], ws[3], xs[2], ws[4], ws[5], xs[3]] + ws[6:]

def acc(rt, tt): return ACC + 4 * (rt * 5 + tt)

def a_mfmas(buf, qtype, order=None):
    b = FB[buf]
    out = []
    for (rt, tt) in (order or [(rt, tt) for tt in range(5) for rt in range(4)]):
        d = vr(acc(rt, tt), 4)
        xf = vr(b + 4 * rt, 4); wf = vr(b + 16 + 4 * tt, 4)
        A, B = (wf, xf) if qtype else (xf, wf)
        out.append(f"v_mfma_f32_16x16x32_bf16 {d}, {A}, {B}, {d}")
    return out

def interleave(mf, rd):
    j = 0
    for i, m in enumerate(mf):
        a(m)
        if j < len(rd): a(rd[j]); j += 1
    while j < len(rd): a(rd[j]); j += 1

def a_mainloop(qtype):
    t = "q" if qtype else "k"
    a.c("A main loop")
    a(f"s_mov_b32 s{sC}, 0")
    a(f"s_mov_b32 s{sSL}, 0")
    a(f"s_mov_b32 s{sT6}, {1<<10}")
    if qtype:
        a(f"s_cmp_lt_u32 s{sW}, {NQ}")
        a(f"s_cselect_b32 s{sT6}, {(1<<10)|(1<<1)|(1<<3)}, s{sT6}")
    if "prio" in EXP: a("s_setprio 2")
    a("s_waitcnt lgkmcnt(0)")
    if "ast" in EXP: stamp(1, True)
    a("s_barrier")
    stamp(1)
    for r in a_reads(0, 0): a(r)
    book = [
        f"s_add_u32 s{sSL}, s{sSL}, 1\ns_cmp_eq_u32 s{sSL}, 3",
        f"s_mov_b32 s{sT4}, {SLOT}",
        f"s_cselect_b32 s{sT4}, {-2*SLOT & 0xffffffff}, s{sT4}",
        f"s_cselect_b32 s{sSL}, 0, s{sSL}\ns_add_u32 s{sC}, s{sC}, 1",
    ]
    src_ = f"s{sT4}"
    rd = a_reads(1, 1)
    seq = []
    for i, r in enumerate(rd): seq.append(r + ("\n" + book[i - 2] if 2 <= i < 6 else ""))
    seq += [f"v_add_u32 v{vX0}, {src_}, v{vX0}\nv_add_u32 v{vX1}, {src_}, v{vX1}",
            f"v_add_u32 v{vWA}, {src_}, v{vWA}\nv_add_u32 v{vWA+1}, {src_}, v{vWA+1}",
            f"v_add_u32 v{vWA+2}, {src_}, v{vWA+2}\nv_add_u32 v{vWA+3}, {src_}, v{vWA+3}",
            f"v_add_u32 v{vWX}, {src_}, v{vWX}\ns_bitcmp1_b32 s{sT6}, s{sC}"]
    a(".p2align 3")
    a.label(f"Lml{t}")
    a("s_waitcnt lgkmcnt(0)")
    interleave(a_mfmas(0, qtype), seq)
    a("s_waitcnt lgkmcnt(0)")
    a(f"s_cbranch_scc1 Lhook{t}")
    a.label(f"Lhookd{t}")
    if "ast" in EXP:
        a("s_memrealtime vcc")
        a("s_waitcnt lgkmcnt(0)")
        a(f"s_mov_b32 m0, s{sC}")
        a("v_writelane_b32 v29, vcc_lo, m0")
    a("s_barrier")
    interleave(a_mfmas(1, qtype), a_reads(0, 0))
    a(f"s_branch Lml{t}")
    a.label(f"Lhook{t}")
    if qtype:
        a(f"s_cmp_eq_u32 s{sC}, 10")
        a(f"s_cbranch_scc1 Lmx{t}")
        N2 = a.newlabel("Lhk")
        a(f"s_cmp_lg_u32 s{sC}, 1")
        a(f"s_cbranch_scc1 {N2}")
        a("s_waitcnt vmcnt(0)")
        darr_issue(24, 25, 0)
        a(f"s_branch Lhookd{t}")
        a.label(N2)
        darr_finish(24, 25, 0, NU)
        a(f"s_branch Lhookd{t}")
        a.label(f"Lmx{t}")
    if "ast" in EXP:
        for c in range(1, 9): a(f"v_readlane_b32 s{STS+1+c}, v29, {c}")

def acc_zero():
    for i in range(80): a(f"v_mov_b32 v{ACC+i}, 0")

def phi_list(regs, tmp, pk=False):
    out = []
    B = 4
    for i in range(0, len(regs), B):
        batch = regs[i:i + B]
        for j, r in enumerate(batch):
            if pk:
                out.append(f"v_pk_mul_f32 {vr(tmp+2*j,2)}, {vr(r,2)}, {sr(sLOG,2)}"); continue
            out.append(f"v_mul_f32 v{tmp+2*j}, s{sLOG}, v{r}")
            out.append(f"v_mul_f32 v{tmp+2*j+1}, s{sLOG}, v{r+1}")
        for j, r in enumerate(batch):
            out.append(f"v_exp_f32_e64 v{tmp+2*j}, v{tmp+2*j} clamp")
            out.append(f"v_exp_f32_e64 v{tmp+2*j+1}, v{tmp+2*j+1} clamp")
        for j, r in enumerate(batch):
            out.append(f"v_max_f32 v{r}, s{sEPS}, v{r}")
            out.append(f"v_max_f32 v{r+1}, s{sEPS}, v{r+1}")
        for j, r in enumerate(batch):
            if pk:
                out.append(f"v_pk_add_f32 {vr(r,2)}, {vr(r,2)}, {vr(tmp+2*j,2)}"); continue
            out.append(f"v_add_f32 v{r}, v{r}, v{tmp+2*j}")
            out.append(f"v_add_f32 v{r+1}, v{r+1}, v{tmp+2*j+1}")
    return out

def sprinkle(main, extra, every, start=0):
    j = 0
    for i, m in enumerate(main):
        a(m)
        if i >= start and (i - start) % every == every - 1 and j < len(extra):
            a(extra[j]); j += 1
    return extra[j:]

def fc_addr(v):
    a(f"v_and_b32 v{v}, 7, v{vL}")
    a(f"v_lshlrev_b32 v{v}, 8, v{v}")
    a(f"v_add_u32 v{v}, {WS_FC}, v{v}")
def f0_addr(v):
    a(f"s_lshr_b32 s{sT4}, s{sQUAD}, 4")
    a(f"s_lshl_b32 s{sT4}, s{sT4}, 8")
    a(f"s_add_u32 s{sT4}, s{sT4}, {WS_F0}")
    a(f"v_mov_b32 v{v}, s{sT4}")

def awave():
    a.label("Lawave")
    ka_rest()
    a(f"s_cmp_ge_u32 s{sIDX}, 16")
    a("s_cbranch_scc1 Lqa")
    srd_init([SWS, SDBG])
    common_scalars()
    srd_init([SX, SOUT])
    acc_zero()

def kva():
    a(f"s_lshr_b32 s{sT0}, s{sIDX}, 2")
    a(f"s_lshl_b32 s{sCG}, s{sCP}, 2")
    a(f"s_add_u32 s{sCG}, s{sCG}, s{sT0}")
    a_setup()
    a(f"s_mul_i32 s{sT4}, s{sW}, 3584")
    a(f"s_add_u32 s{sT4}, s{sT4}, {L_KVS}")
    a(f"v_mul_u32_u24 v8, 336, v{vG4}")
    a(f"v_add_u32 v8, s{sT4}, v8")
    a(f"v_lshl_add_u32 v{vA1}, v{vC16}, 4, v8")
    a(f"v_add_u32 v9, 8, v{vC16}")
    a(f"v_subrev_u32 v10, 12, v{vC16}")
    a(f"v_cmp_lt_u32 vcc, 11, v{vC16}")
    a("v_cndmask_b32 v9, v9, v10, vcc")
    a(f"v_cmp_eq_u32 vcc, 0, v{vC16}")
    a("v_mov_b32 v10, 20")
    a("v_cndmask_b32 v9, v9, v10, vcc")
    a(f"v_lshl_add_u32 v{vA2}, v9, 4, v8")
    a(f"s_lshl_b32 s{sT4}, s{sT0}, 2")
    a(f"s_add_u32 s{sT4}, s{sT4}, {L_CNT}")
    a(f"v_mov_b32 v20, s{sT4}")
    a(f"s_mul_i32 s{sT4}, s{sT0}, 3584")
    a(f"s_mul_i32 s{sT5}, s{sT1}, {KVH}")
    a(f"s_add_u32 s{sT4}, s{sT4}, s{sT5}")
    a(f"v_lshlrev_b32 v21, 2, v{vL}")
    a(f"s_add_u32 s{sT5}, s{sT4}, {L_KVS}")
    a(f"v_add_u32 v22, s{sT5}, v21")
    a(f"s_mul_i32 s{sT5}, s{sCG}, {4*KVH}")
    a(f"s_add_u32 s{sT4}, s{sT4}, s{sT5}")
    a(f"s_add_u32 s{sCH}, s{sT4}, {WS_KV}")
    a("v_mov_b32 v23, 0x3f803f80")
    a(f"s_lshl_b32 s{sLC}, s{sCG}, 8")
    a(f"s_add_u32 s{sLC}, s{sLC}, {WS_FK}")
    wo_prep(28)
    a_mainloop(False)
    a.c("KV epilogue")
    order = [(rt, tt) for tt in (4, 0, 2, 1, 3) for rt in range(4)]
    mf = a_mfmas(1, False, order)
    for m in mf[:8]: a(m)
    XP = 112
    TM = 12
    TM = 8
    a(f"v_cmp_gt_u32 vcc, 8, v{vC16}")
    def pairs(tt): return sum([[acc(rt, tt), acc(rt, tt) + 2] for rt in range(4)], [])
    def cvts(tt): return [f"v_cvt_pk_bf16_f32 v{acc(rt&2,tt)+2*(rt&1)+h}, v{acc(rt,tt)+2*h}, v{acc(rt,tt)+2*h+1}" for rt in range(4) for h in range(2)]
    L = []
    for rt in range(4):
        for h in range(2): L.append(f"v_cvt_pk_bf16_f32 v{XP+2*rt+h}, v{acc(rt,4)+2*h}, v{acc(rt,4)+2*h+1}")
    for j in range(8): L.append(f"v_cndmask_b32 v{XP+j}, v{XP+j}, v23, vcc")
    L += phi_list(pairs(4)[:4], TM, False)
    for i, m in enumerate(mf[8:]):
        a(m)
        for x in L[2 * i:2 * i + 2]: a(x)
    L = L[24:]
    stamp(2)
    pk = "nopk" not in EXP
    L += phi_list(pairs(4)[4:], TM, pk) + cvts(4) + phi_list(pairs(0), TM, pk) + cvts(0) + cvts(2) + cvts(3)
    if "aspr" in EXP: assert not sprinkle(L, wo_list(28), len(L) // 25)
    else:
        for x in L: a(x)
    def fr(t, p): return XP + 4 * p if t == 5 else acc(2 * p, t)
    prods = [(0, 2), (0, 5), (4, 2), (4, 5), (1, 3), (1, 5), (4, 3)]
    PD = 120
    def pm(lst):
        for p in range(2):
            for i in lst:
                ta, tb = prods[i]
                d = vr(PD + 4 * i, 4)
                a(f"v_mfma_f32_16x16x32_bf16 {d}, {vr(fr(ta,p),4)}, {vr(fr(tb,p),4)}, {'0' if p==0 else d}")
    def wr(i, va, off, mlo, mhi):
        t = ""
        if mlo != -1: t += f"s_mov_b32 exec_lo, {mlo}\ns_mov_b32 exec_hi, {mhi}\n"
        t += f"ds_write_b128 v{va}, {vr(PD+4*i,4)} offset:{off}"
        if mlo != -1: t += "\ns_mov_b64 exec, -1"
        return t
    pm([0, 1, 2, 3, 6])
    W1 = [wr(0, vA1, 0, -1, -1), wr(1, vA2, 0, 0x0f010f01, 0x0f010f01), wr(2, vA1, 4 * 336, 0xffff, 0),
          wr(3, vA2, 4 * 336, 0x0f01, 0), wr(3, vA2, KVH - 336, 0xf0010000, 0), wr(6, vA1, KVH + 64 - 336, 0xffff0000, 0)]
    rest = sprinkle(phi_list(pairs(1)[:4], TM, False) + phi_list(pairs(1)[4:], TM, pk) + cvts(1), W1, 8, 6)
    assert not rest
    pm([4, 5])
    a(wr(4, vA1, KVH + 336 + 64, -1, -1))
    a(wr(5, vA2, KVH + 336, 0xf001f001, 0xf001f001))
    if "econv" in EXP:
        lds_arrive(20, 24)
        lds_wait(20, 24, 2 + 4 * 256)
    else:
        a("s_waitcnt lgkmcnt(0)")
        a("s_barrier")
    for i in range(7):
        a(f"ds_read_b32 v{32+i}, v22 offset:{256*i}")
        a(f"ds_read_b32 v{40+i}, v22 offset:{256*i+7168}")
    stamp(3)
    for i in range(7):
        a(f"s_waitcnt lgkmcnt({12-2*i})")
        a(f"v_add_f32 v{32+i}, v{32+i}, v{40+i}")
        a(f"buffer_atomic_add_f32 v{32+i}, v21, {srd(SWS)}, s{sCH} offen offset:{256*i}")
    arr_prep(48, 49)
    s3_setup()
    a("s_waitcnt vmcnt(0)")
    arr_issue(48, 49, f"s{sLC}")
    arr_finish(48, 49, f"s{sLC}", 64, 0)
    a("s_setprio 0")
    stamp(4)
    a("s_branch Ls3x" if "aspr" in EXP else "s_branch Ls3")

def qa():
    a.label("Lqa")
    common_scalars()
    a(f"s_cmp_ge_u32 s{sW}, {NQ}")
    a("s_cbranch_scc1 Lq1")
    a(f"s_mov_b32 s{sTB}, s{sCI}")
    a(f"s_add_u32 s{sCHB}, s{sW}, {10-NQ}")
    s0_loads()
    a.label("Lq1")
    if "qpf" in EXP:
        a(f"v_min_u32 v1, 34, v{vL}")
        a("v_mul_u32_u24 v1, 1280, v1")
        a(f"s_mul_i32 s{sT0}, s{sCI}, 40960")
        a(f"s_lshl_b32 s{sT1}, s{sW}, 7")
        a(f"s_add_u32 s{sT0}, s{sT0}, s{sT1}")
        a(f"s_add_u32 s{sT0}, s{sT0}, 768")
        a(f"v_add_u32 v2, s{sT0}, v1")
        a("v_subrev_u32 v1, 3840, v2")
        srd_init([SK, SV])
        a("s_waitcnt lgkmcnt(0)")
        a(f"buffer_load_dword v250, v1, {srd(SK)}, 0 offen")
        a("s_mov_b32 exec_hi, 0")
        a(f"buffer_load_dword v251, v2, {srd(SV)}, 0 offen")
        a("s_mov_b32 exec_hi, -1")
    srd_init([SWS, SDBG, SX, SOUT])
    acc_zero()
    a(f"s_bfe_u32 s{sT0}, s{sIDX}, 0x20002")
    a(f"s_mul_i32 s{sCG}, s{sCP}, {Q0}")
    a(f"s_add_u32 s{sCG}, s{sCG}, s{sT0}")
    a_setup()
    a(f"v_lshrrev_b32 v8, 1, v{vG4}")
    a(f"v_and_b32 v9, 1, v{vG4}")
    a(f"v_lshlrev_b32 v20, 4, v{vC16}")
    a("v_lshl_add_u32 v20, v9, 9, v20")
    a("v_lshl_add_u32 v21, v8, 3, v20")
    a("v_add_u32 v21, 4096, v21")
    a("v_lshl_add_u32 v20, v8, 10, v20")
    a(f"s_lshl_b32 s{sT4}, s{sRB}, 1")
    a(f"s_add_u32 s{sT4}, s{sT4}, s{sT1}")
    a(f"s_lshl_b32 s{sT5}, s{sCG}, 1")
    a(f"s_add_u32 s{sT5}, s{sT5}, s{sT0}")
    a(f"s_mul_i32 s{sT0}, s{sT4}, {80*1024}")
    a(f"s_mul_i32 s{sT1}, s{sT5}, {5*1024}")
    a(f"s_add_u32 s{sT0}, s{sT0}, s{sT1}")
    a(f"s_add_u32 s{sCH}, s{sT0}, {WS_PQ}")
    a(f"s_add_u32 s{sVAR}, s{sCH}, {40*1024}")
    a(f"s_lshl_b32 s{sT4}, s{sT4}, 3")
    a(f"s_add_u32 s{sT4}, s{sT4}, s{sT5}")
    a(f"s_lshl_b32 s{sT4}, s{sT4}, 8")
    a(f"s_add_u32 s{sLC}, s{sT4}, {WS_FQ}")
    wo_prep(28)
    a("v_mov_b32 v24, 0")
    a(f"s_cmp_ge_u32 s{sW}, {NQ}")
    a("s_cbranch_scc1 Lq2")
    a(f"s_mul_i32 s{sT2}, s{sW}, 4608")
    a(f"s_add_u32 s{sT2}, s{sT2}, {2*SLOT}")
    s0_addr(sT2)
    a("s_waitcnt vmcnt(0)")
    stamp(11)
    s0_compute()
    stamp(12)
    a.label("Lq2")
    a_mainloop(True)
    a.c("Q epilogue")
    order = [(rt, tt) for rt in range(4) for tt in range(5)]
    mf = a_mfmas(1, True, order)
    for m in mf[:9]: a(m)
    L = []
    for rt in range(4):
        regs = []
        for tt in range(5): regs += [acc(rt, tt), acc(rt, tt) + 2]
        L += phi_list(regs, 112, rt > 0 and "nopk" not in EXP)
        O = acc(rt, 0)
        for tt in range(5):
            for h in range(2): L.append(f"v_cvt_pk_bf16_f32 v{O+2*tt+h}, v{acc(rt,tt)+2*h}, v{acc(rt,tt)+2*h+1}")
        so = f"s{sVAR if rt>>1 else sCH}"
        for p in range(2):
            L.append(f"buffer_store_dwordx4 {vr(O+4*p,4)}, v20, {srd(SWS)}, {so} offen offset:{256*(rt&1)+2048*p} sc1")
        L.append(f"buffer_store_dwordx2 {vr(O+8,2)}, v21, {srd(SWS)}, {so} offen offset:{256*(rt&1)} sc1")
    for i, m in enumerate(mf[9:]):
        a(m)
        for x in L[2 * i:2 * i + 2]: a(x)
    L = L[22:]
    stamp(2)
    if "aspr" in EXP: assert not sprinkle(L, wo_list(28), 8)
    else:
        for x in L: a(x)
    stamp(3)
    a(f"v_mov_b32 v122, {L_CNT}")
    lds_wait(122, 123, 4)
    a("s_waitcnt vmcnt(0)")
    flag_store(120, 121, f"s{sLC}")
    a("s_barrier")
    s3_setup()
    a("s_setprio 0")
    stamp(4)
    a("s_branch Ls3x" if "aspr" in EXP else "s_branch Ls3")

def h_dma(sj, sch0):
    a(f"s_lshr_b32 s{sT4}, s{sj}, 1")
    a(f"s_and_b32 s{sT5}, s{sj}, 1")
    a(f"s_lshl_b32 s{sT5}, s{sT5}, 11")
    a(f"s_add_u32 s{sT6}, s{sch0}, s{sT4}")
    a(f"s_lshl_b32 s{sT6}, s{sT6}, 12")
    a(f"s_add_u32 s{sT6}, s{sT6}, s{sT5}")
    a(f"s_mul_i32 s{sT4}, s{sT4}, {HSTR}")
    a(f"s_add_u32 s{sT4}, s{sT4}, s{sT5}")
    a(f"s_add_u32 m0, s{sT4}, {L_HB+128}")
    a(f"buffer_load_dwordx4 v{vL16}, {srd(SH)}, s{sT6} offen lds")
    a(f"buffer_load_dwordx4 v{vL16}, {srd(SH)}, s{sT6} offen offset:1024 lds")

CACC = 32
CPOOL = 96
NPOOL = 12
CD = 144
vUe, vUo, vH, vCW, vCT, vCS, vCY, vCN = range(148, 156)

def conv_setup(j, chl0, split=None):
    a.c("conv setup")
    a(f"s_lshr_b32 s{sLC}, s{j}, 1")
    a(f"s_and_b32 s{sVAR}, s{j}, 1")
    a(f"s_add_u32 s{sCHL}, s{chl0}, s{sLC}")
    a(f"s_lshl_b32 s{sCH}, s{sQUAD}, 2")
    a(f"s_add_u32 s{sCH}, s{sCH}, s{sCHL}")
    a(f"s_lshl_b32 s{sT4}, s{sCH}, 1")
    a(f"s_and_b32 s{sT4}, s{sT4}, -4")
    a(f"s_load_dword s{sDV}, {sr(SD,2)}, s{sT4}")
    a(f"v_and_b32 v96, 31, v{vL}")
    a(f"v_lshrrev_b32 v97, 5, v{vL}")
    a("v_lshl_add_u32 v98, v97, 2, v96")
    a("v_lshrrev_b32 v99, 2, v98")
    a("v_add_u32 v99, 3, v99")
    a("v_and_b32 v99, 3, v99")
    a(f"v_xor_b32 v99, s{sCHL}, v99")
    a("v_lshlrev_b32 v99, 4, v99")
    a("v_lshl_add_u32 v99, v98, 6, v99")
    a(f"v_add_u32 v{vUe}, {L_UD-28*64}, v99")
    a(f"v_xor_b32 v{vUo}, 32, v{vUe}")
    a(f"v_bfe_u32 v98, v{vL}, 4, 1")
    a(f"v_and_b32 v99, 3, v{vL}")
    a("v_lshl_add_u32 v98, v98, 2, v99")
    a(f"v_bfe_u32 v96, v{vL}, 2, 2")
    a("v_sub_u32 v98, v98, v96")
    a("v_lshlrev_b32 v97, 3, v97")
    a("v_sub_u32 v98, v98, v97")
    a("v_lshlrev_b32 v98, 3, v98")
    a(f"s_mul_i32 s{sT4}, s{sLC}, {HSTR}")
    a(f"s_add_u32 s{sT4}, s{sT4}, {L_HB+128+32}")
    a(f"v_add_u32 v{vH}, s{sT4}, v98")
    a(f"s_lshl_b32 s{sT4}, s{sW}, 11")
    a(f"s_add_u32 s{sT4}, s{sT4}, {L_YST}")
    a(f"v_lshlrev_b32 v{vCW}, 4, v{vL}")
    a(f"v_add_u32 v{vCW}, s{sT4}, v{vCW}")
    if split: split(0)
    a(f"v_lshrrev_b32 v97, 4, v{vL}")
    a("v_lshrrev_b32 v98, 1, v99")
    a("v_lshl_add_u32 v98, v97, 1, v98")
    a("v_lshl_add_u32 v98, v98, 3, v96")
    a("v_lshlrev_b32 v98, 4, v98")
    a("v_and_b32 v99, 1, v99")
    a("v_lshl_add_u32 v98, v99, 3, v98")
    a(f"v_add_u32 v{vCT}, s{sT4}, v98")
    a(f"v_and_b32 v98, 7, v{vL}")
    a(f"v_lshrrev_b32 v99, 5, v{vL}")
    a("v_lshl_add_u32 v98, v98, 1, v99")
    a(f"v_mul_u32_u24 v98, 40960, v98")
    a(f"v_bfe_u32 v99, v{vL}, 3, 2")
    a(f"v_lshl_add_u32 v{vCY}, v99, 4, v98")
    a(f"s_lshl_b32 s{sT4}, s{j}, 4")
    a(f"s_add_u32 s{sT4}, s{sT4}, {L_SP}")
    a(f"v_mov_b32 v{vCS}, s{sT4}")
    a(f"s_lshl_b32 s{sT4}, s{sLC}, 2")
    a(f"s_add_u32 s{sT4}, s{sT4}, {L_CNT+16}")
    a(f"v_mov_b32 v{vCN}, s{sT4}")

def conv_dfrag():
    a("s_waitcnt lgkmcnt(0)")
    a(f"s_and_b32 s{sT4}, s{sCH}, 1")
    a(f"s_lshl_b32 s{sT4}, s{sT4}, 4")
    a(f"s_lshr_b32 s{sDV}, s{sDV}, s{sT4}")
    a(f"s_and_b32 s{sDV}, s{sDV}, 0xffff")
    a(f"v_lshlrev_b32 v98, 2, v{vL}")
    a("v_and_b32 v98, 16, v98")
    a(f"v_lshlrev_b32 v98, v98, s{sDV}")
    a(f"v_and_b32 v99, 59, v{vL}")
    for r in range(4):
        a(f"v_cmp_eq_u32 vcc, {32+8*r}, v99")
        a(f"v_cndmask_b32 v{CD+r}, 0, v98, vcc")

def zero_pads(j):
    a("v_mov_b32 v100, 0")
    a("v_mov_b32 v101, 0")
    a(f"v_lshlrev_b32 v102, 3, v{vL}")
    a(f"s_and_b32 s{sT6}, s{j}, 3")
    a(f"s_lshl_b32 s{sT4}, s{sT6}, 9")
    a(f"s_add_u32 s{sT4}, s{sT4}, {L_UB}")
    a(f"v_add_u32 v103, s{sT4}, v102")
    a("ds_write_b64 v103, v[100:101]")
    a(f"s_mul_i32 s{sT4}, s{sT6}, {HSTR}")
    a(f"s_add_u32 s{sT4}, s{sT4}, {L_HB}")
    a(f"v_add_u32 v103, s{sT4}, v102")
    a("s_mov_b64 exec, 0xffff")
    a("ds_write_b64 v103, v[100:101]")
    a(f"v_add_u32 v103, {L_CNT}, v102")
    a("s_mov_b64 exec, 0xff")
    a("ds_write_b64 v103, v[100:101]")
    a("s_mov_b64 exec, -1")

def u_dma(j, nper):
    a(f"s_mul_i32 s{sT4}, s{j}, {1024*nper}")
    a(f"s_lshl_b32 s{sT5}, s{sQUAD}, 14")
    if WOFF: a(f"s_add_u32 s{sT5}, s{sT5}, {WOFF}")
    a(f"s_add_u32 s{sT5}, s{sT5}, s{sT4}")
    a(f"s_add_u32 m0, s{sT4}, {L_UD}")
    for i in range(nper): a(f"buffer_load_dwordx4 v{vL16}, {srd(SWS)}, s{sT5} offen offset:{1024*i} sc1 lds")

def bwave():
    a.c("B wave")
    sXB, sWB, sM, sMW, sROT, sSTEP, sQ2, sQ3 = sCG, sUD, sTB, sRB, sCI, sLOG, sLOG + 1, sEPS
    VX, VW = 32, 36
    a(f"s_sub_u32 s{sJ}, s{sW}, 4")
    a(f"v_lshrrev_b32 v1, 3, v{vL}")
    a(f"v_mul_u32_u24 v1, 1280, v1")
    a(f"v_lshrrev_b32 v2, 4, v{vL}")
    a(f"v_and_b32 v3, 7, v{vL}")
    a("v_xor_b32 v2, v2, v3")
    a(f"v_lshl_add_u32 v{VX}, v2, 4, v1")
    a(f"v_xor_b32 v{VX+1}, 64, v{VX}")
    a(f"v_add_u32 v{VX+1}, {10240-1024}, v{VX+1}")
    a(f"v_add_u32 v{VX+2}, {20480-2048}, v{VX}")
    a(f"v_add_u32 v{VX+3}, {20480-2048}, v{VX+1}")
    a(f"s_lshl_b32 s{sXB}, s{sRB}, 2")
    a(f"s_add_u32 s{sXB}, s{sXB}, s{sJ}")
    a(f"s_mul_i32 s{sXB}, s{sXB}, 40960")
    a(f"s_lshr_b32 s{sT0}, s{sIDX}, 2")
    a(f"s_add_u32 s{sROT}, s{sT0}, s{sIDX}")
    a(f"s_and_b32 s{sROT}, s{sROT}, 3")
    a(f"s_add_u32 s{sM}, s{sRP}, s{sCP}")
    a(f"s_and_b32 s{sM}, s{sM}, 1")
    a(f"s_lshl_b32 s{sM}, s{sM}, 2")
    a(f"s_or_b32 s{sROT}, s{sROT}, s{sM}")
    def chunk_of(sd, srot, step):
        if "nostag" in EXP:
            a(f"s_and_b32 s{sd}, s{srot}, {7 if step < 8 else 1}")
            a(f"s_xor_b32 s{sd}, s{sd}, {step}")
            return
        m0_, x0 = (3, step) if step < 8 else (1, step)
        m1_, x1 = (1, 8 + step) if step < 2 else (7, step - 2)
        a(f"s_bitcmp1_b32 s{srot}, 2")
        a(f"s_cselect_b32 s{sd}, {m1_}, {m0_}")
        a(f"s_cselect_b32 s{sQ2}, {x1}, {x0}")
        a(f"s_and_b32 s{sd}, s{sd}, s{srot}")
        a(f"s_xor_b32 s{sd}, s{sd}, s{sQ2}")
    chunk_of(sSTEP, sROT, 0)
    a(f"s_lshl_b32 s{sM}, s{sJ}, 12")
    srd_init([SX, SWQ])
    def chunk_x(sc):
        a(f"s_mov_b32 m0, s{sM}")
        a(f"s_lshl_b32 s{sQ2}, s{sc}, 7")
        a(f"s_add_u32 s{sQ2}, s{sQ2}, s{sXB}")
        for i in range(4):
            a(f"buffer_load_dwordx4 v{VX+i}, {srd(SX)}, s{sQ2} offen offset:{1024*i} lds")
    def chunk_w(sc):
        a(f"s_add_u32 m0, s{sM}, 16384")
        a(f"s_mul_i32 s{sQ3}, s{sc}, {64*3840}")
        a(f"s_add_u32 s{sQ3}, s{sQ3}, s{sWB}")
        for hf in range(1):
            if hf:
                a(f"s_add_u32 m0, s{sM}, {16384+4096}")
                a(f"s_add_u32 s{sQ3}, s{sQ3}, {16*3840}")
            for i in (0, 1, 4, 2, 3):
                if i == 2: a(f"s_add_u32 m0, s{sM}, {16384+4096*hf}")
                if i == 4: a(f"s_add_u32 m0, s{sMW}, {1024*hf}")
                a(f"buffer_load_dwordx4 v{VW+i}, {srd(SWQ)}, s{sQ3} offen offset:{1024*(i&3)} lds")
    a(f"s_lshl_b32 s{sT1}, s{sCP}, 2")
    a(f"s_add_u32 s{sT1}, s{sT1}, s{sT0}")
    a(f"s_add_u32 s{sT1}, s{sT1}, 8")
    a(f"s_lshl_b32 s{sT0}, s{sT0}, 1")
    a(f"s_mul_i32 s{sT4}, s{sCP}, {2*Q0}")
    a(f"s_add_u32 s{sT0}, s{sT0}, s{sT4}")
    a(f"s_sub_u32 s{sT0}, s{sT0}, 8")
    a(f"s_cmp_ge_u32 s{sIDX}, 16")
    a(f"s_cselect_b32 s{sWB}, s{sT0}, s{sT1}")
    a(f"s_cselect_b32 s{sT4}, 10, 5")
    a(f"s_cselect_b32 s{sT5}, 4, 0x50")
    a(f"s_cselect_b32 s{sT6}, 1, 3")
    a(f"s_cselect_b32 s{sT7}, 2, 1")
    a(f"s_cselect_b32 s{sT0}, 1, 0x50")
    a(f"s_cselect_b32 s{sT1}, 8, 2")
    a(f"s_mulk_i32 s{sWB}, 160")
    a(f"s_mul_i32 s{sT2}, s{sJ}, {16*3840}")
    a(f"s_add_u32 s{sWB}, s{sWB}, s{sT2}")
    a(f"s_lshl_b32 s{sMW}, s{sJ}, 10")
    a(f"s_add_u32 s{sMW}, s{sMW}, 32768")
    a(f"v_lshrrev_b32 v14, 4, v{vL}")
    a(f"v_lshrrev_b32 v15, 1, v{vL}")
    a("v_xor_b32 v15, v15, v14")
    a(f"v_and_b32 v16, 1, v{vL}")
    a("v_mul_u32_u24 v14, 240, v14")
    a(f"v_mad_u32_u24 v14, v16, s{sT7}, v14")
    a("v_and_b32 v17, 1, v15")
    a(f"v_mad_u32_u24 v14, v17, s{sT6}, v14")
    a("v_bfe_u32 v17, v15, 1, 1")
    a(f"v_mad_u32_u24 v14, v17, s{sT5}, v14")
    a("v_bfe_u32 v17, v15, 2, 1")
    a(f"v_mad_u32_u24 v18, v17, s{sT4}, v14")
    a(f"v_lshlrev_b32 v{VW}, 4, v18")
    a(f"v_add_u32 v{VW+1}, {15360-1024}, v{VW}")
    a("v_xor_b32 v17, 1, v17")
    a(f"v_mad_u32_u24 v18, v17, s{sT4}, v14")
    a(f"v_lshlrev_b32 v18, 4, v18")
    a(f"v_add_u32 v{VW+2}, {30720-2048}, v18")
    a(f"v_add_u32 v{VW+3}, {46080-3072}, v18")
    a(f"v_lshrrev_b32 v14, 2, v{vL}")
    a("v_mul_u32_u24 v14, 240, v14")
    a(f"v_mad_u32_u24 v14, v16, s{sT0}, v14")
    a(f"v_lshrrev_b32 v17, 4, v{vL}")
    a(f"v_xor_b32 v17, v17, v{vL}")
    a("v_bfe_u32 v17, v17, 1, 1")
    a(f"v_mad_u32_u24 v14, v17, s{sT4}, v14")
    a(f"v_add_lshl_u32 v{VW+4}, v14, s{sT1}, 4")
    a("s_waitcnt lgkmcnt(0)")
    stamp(11)
    chunk_x(sSTEP)
    chunk_w(sSTEP)
    ka_rest()
    stamp(12)
    def prep(step):
        xo, wo_ = (sT0, sT1) if step & 1 else (sT2, sT3)
        return capture(lambda: (
            chunk_of(sSTEP, sROT, step),
            a(f"s_lshl_b32 s{xo}, s{sSTEP}, 7"),
            a(f"s_add_u32 s{xo}, s{xo}, s{sXB}"),
            a(f"s_mul_i32 s{wo_}, s{sSTEP}, {64*3840}"),
            a(f"s_add_u32 s{wo_}, s{wo_}, s{sWB}")))
    def m0x(step): a(f"s_add_u32 m0, s{sM}, {SLOT*(step%3)}")
    def fire(step):
        xo, wo_ = (sT0, sT1) if step & 1 else (sT2, sT3)
        nx = prep(step + 1) if step < 9 else []
        sl = SLOT * (step % 3)
        for i in range(4):
            a(f"buffer_load_dwordx4 v{VX+i}, {srd(SX)}, s{xo} offen offset:{1024*i} lds")
            if i < 3:
                for x in nx[3 * i:3 * i + 3]: a(x)
        for i in (0, 1, 4, 2, 3):
            if i in (0, 2): a(f"s_add_u32 m0, s{sM}, {sl+16384}")
            if i == 4: a(f"s_add_u32 m0, s{sMW}, {sl}")
            a(f"buffer_load_dwordx4 v{VW+i}, {srd(SWQ)}, s{wo_} offen offset:{1024*(i&3)} lds")
    bn = [1]
    def bar(n, nxt=None):
        a(f"s_waitcnt vmcnt({n})")
        if "bst" in EXP and "pre" in EXP: stamp(bn[0], True)
        a("s_barrier")
        if "bst" in EXP and "pre" not in EXP: stamp(bn[0], True)
        bn[0] += 1
        if nxt is not None: issue(nxt)
    def g_setup():
        srd_init([SX, SH, SWS, SDBG, SOUT])
        a(f"s_mul_i32 s{sT7}, s{sRP}, 48")
        a(f"s_mul_i32 s{sT1}, s{sCP}, {G0}")
        a(f"s_add_u32 s{sT7}, s{sT7}, s{sT1}")
        a(f"s_add_u32 s{sT7}, s{sT7}, s{sIDX}")
        a(f"s_lshr_b32 s{sQUAD}, s{sT7}, 1")
        a(f"s_add_u32 s{sQUAD}, s{sQUAD}, 64")
        a(f"s_and_b32 s{sT1}, s{sIDX}, 1")
        a(f"s_lshl_b32 s{sT1}, s{sT1}, 1")
        a("s_waitcnt lgkmcnt(0)")
        conv_setup(sJ, sT1)
        s3_setup()
        wo_prep(vL16)
    sGS, sGO = 1, 0
    a("s_waitcnt lgkmcnt(0)")
    a(f"s_bfe_u32 s{sT0}, s{sIDX}, 0x20002")
    a(f"s_mul_i32 s{sT1}, s{sCP}, {Q0}")
    a(f"s_add_u32 s{sT0}, s{sT0}, s{sT1}")
    a(f"s_lshl_b32 s{sT0}, s{sT0}, 2")
    a(f"s_add_u32 s{sT0}, s{sT0}, s{sJ}")
    a(f"s_and_b32 s{sT2}, s{sIDX}, 3")
    a(f"s_lshl_b32 s{sT3}, s{sRP}, 2")
    a(f"s_add_u32 s{sT2}, s{sT2}, s{sT3}")
    a(f"s_lshl_b32 s{sGO}, s{sT2}, 4")
    a(f"s_add_u32 s{sGO}, s{sGO}, s{sT0}")
    a(f"s_cmp_ge_u32 s{sIDX}, 16")
    a(f"s_cselect_b32 s{sGS}, 1, 0")
    a(f"s_lshl_b32 s{sT0}, s{sT0}, 10")
    a(f"v_lshlrev_b32 v41, 4, v{vL}")
    srd_init([SGW])
    a(f"s_mov_b32 m0, {L_GW}")
    a(f"v_add_u32 v42, s{sT0}, v41")
    a(f"v_add_u32 v55, {2*SLOT}, v42")
    a(f"s_cmp_ge_u32 s{sIDX}, 16")
    a("s_cbranch_scc0 Lbng")
    a(f"buffer_load_dwordx4 v41, {srd(SGW)}, 0 offen lds")
    a(f"buffer_load_dwordx4 v41, {srd(SGW)}, 0 offen offset:1024 lds")
    a.label("Lbng")
    a(f"s_and_b32 s{sT1}, s{sJ}, 1")
    a(f"s_lshl_b32 s{sT1}, s{sT1}, 2")
    a(f"v_xor_b32 v43, s{sT1}, v2")
    a("v_lshlrev_b32 v43, 4, v43")
    a(f"v_add_u32 v43, {L_GW}, v43")
    a("v_mov_b32 v52, 0")
    a("v_mov_b32 v53, 0")
    def all_setup():
        g_setup()
        a("v_mov_b32 v44, 128")
        a("v_mov_b32 v45, 132")
        zero_pads(sJ)
        conv_dfrag()
    if "sl" not in EXP:
        all_setup(); SL = [[]] * 8
    else: SL = slices(capture(all_setup), 8)
    def gate(step):
        D = a.newlabel("Lg")
        a(f"s_cmp_eq_u32 s{sGS}, 0")
        a(f"s_cbranch_scc1 {D}")
        chunk_of(sSTEP, sROT, step)
        a(f"s_lshl_b32 s{sSTEP}, s{sSTEP}, 7")
        a(f"v_add_u32 v54, s{sSTEP}, v43")
        if step % 3 == 2: a("ds_read_b128 v[56:59], v55")
        else: a(f"ds_read_b128 v[56:59], v42 offset:{SLOT*(step%3)}")
        a("ds_read_b128 v[60:63], v54")
        a("s_waitcnt lgkmcnt(0)")
        for i in range(4): a(f"v_dot2c_f32_bf16 v{52+(i&1)}, v{56+i}, v{60+i}")
        a.label(D)
    if "bprio" in EXP: a("s_setprio 3")
    for x in prep(1): a(x)
    m0x(1)
    fire(1)
    for c in range(0, 8):
        m0x(c + 2)
        bar(9)
        if c == 0: stamp(1)
        fire(c + 2)
        for x in SL[c]: a(x)
        gate(c)
    a(f"s_mov_b32 s{sEPS}, 0x358637bd")
    a(f"s_sub_u32 s{sT1}, s{sCH}, s{sLC}")
    bar(9)
    a(f"buffer_load_dwordx2 v[46:47], v44, {srd(SDBG)}, 0 offen sc1")
    h_dma(sJ, sT1)
    gate(8)
    a("s_waitcnt vmcnt(3)")
    a("s_barrier")
    a("s_setprio 3")
    gate(9)
    a(f"s_cmp_eq_u32 s{sGS}, 0")
    a("s_cbranch_scc1 Lbg")
    a("v_add_f32 v52, v52, v53")
    for ctl in ("quad_perm:[1,0,3,2]", "quad_perm:[2,3,0,1]", "row_half_mirror"):
        a(f"v_add_f32_dpp v52, v52, v52 {ctl} row_mask:0xf bank_mask:0xf")
    a(f"v_mul_f32 v52, 0xbfb8aa3b, v52")
    a(f"v_exp_f32 v52, v52")
    a(f"v_lshrrev_b32 v53, 1, v{vL}")
    a(f"v_add_f32 v52, 1.0, v52")
    a(f"v_rcp_f32 v52, v52")
    a(f"s_lshl_b32 s{sT0}, s{sGO}, 5")
    a(f"s_add_u32 s{sT0}, s{sT0}, {WS_G}")
    a("s_mov_b32 exec_lo, 0x01010101")
    a("s_mov_b32 exec_hi, 0x01010101")
    a(f"buffer_store_dword v52, v53, {srd(SWS)}, s{sT0} offen sc1")
    a("s_mov_b64 exec, -1")
    a.label("Lbg")
    a("s_setprio 0")
    a("s_waitcnt vmcnt(2)")
    poll(45, 47, "landed", S=SDBG)
    stamp(2)
    a(f"v_mov_b32 v48, {L_CNT+8}")
    a(f"v_readfirstlane_b32 s{sUD}, v46")
    wl = wo_list(vL16)
    a(f"s_cmp_eq_u32 s{sUD}, 0")
    a("s_cbranch_scc1 Lbl1")
    u_dma(sJ, 4)
    for x in wl[:8]: a(x)
    a("s_branch Lbl1b")
    a.label("Lbl1")
    cnt_load(SDBG, 44, 46)
    for x in wl[:8]: a(x)
    a("s_waitcnt vmcnt(8)")
    a(f"v_readfirstlane_b32 s{sUD}, v46")
    a(f"s_cmp_eq_u32 s{sUD}, 0")
    a("s_cbranch_scc1 Lbl1b")
    u_dma(sJ, 4)
    a.label("Lbl1b")
    a(f"s_cmp_eq_u32 s{sGS}, 0")
    a("s_cbranch_scc1 Lbg1")
    a(f"v_mov_b32 v50, {L_CNT}")
    a("s_waitcnt vmcnt(8)")
    lds_arrive(50, 51)
    a.label("Lbg1")
    for x in wl[8:16]: a(x)
    a(f"s_cmp_lg_u32 s{sUD}, 0")
    a("s_cbranch_scc1 Lbl2")
    cnt_load(SDBG, 44, 46)
    a.label("Lbl2")
    for x in wl[16:]: a(x)
    x_loads()
    a("s_waitcnt vmcnt(11)")
    a(f"s_cmp_lg_u32 s{sUD}, 0")
    a("s_cbranch_scc1 Lbl3")
    a(f"v_readfirstlane_b32 s{sT0}, v46")
    a(f"s_cmp_eq_u32 s{sT0}, 0")
    a("s_cbranch_scc1 Lbl4")
    u_dma(sJ, 4)
    a("s_barrier")
    a("s_branch Lbl5")
    a.label("Lbl4")
    a("s_barrier")
    poll(44, 46, S=SDBG)
    u_dma(sJ, 4)
    a.label("Lbl5")
    a("s_waitcnt vmcnt(0)")
    lds_arrive(48, 49)
    a("s_branch Lbl6")
    a.label("Lbl3")
    lds_arrive(48, 49)
    a("s_barrier")
    a.label("Lbl6")
    lds_wait(48, 49, 4)
    stamp(3)
    a("s_branch Lconv")

def ctype():
    a.label("Lctype")
    ka_rest()
    common_scalars()
    a(f"s_mov_b32 s{sQUAD}, s{sCI}")
    a(f"s_cmp_ge_u32 s{sW}, 6")
    a("s_cbranch_scc1 Lcaux")
    a(f"s_mov_b32 s{sTB}, s{sCI}")
    a(f"s_mov_b32 s{sCHB}, s{sW}")
    s0_loads()
    srd_init([SWS])
    a(f"s_cmp_ge_u32 s{sW}, {4-NQ}")
    a("s_cbranch_scc1 Lc1")
    a(f"s_add_u32 s{sCHB}, s{sW}, 6")
    s0_loads(28, False)
    a(f"s_mov_b32 s{sCHB}, s{sW}")
    a.label("Lc1")
    a.label("Lcs0")
    a(f"s_mul_i32 s{sT2}, s{sW}, 4608")
    a(f"s_add_u32 s{sT2}, s{sT2}, {L_S0C}")
    s0_addr(sT2)
    a(f"s_cmp_lt_u32 s{sW}, {4-NQ}")
    a("s_cbranch_scc1 Lc2")
    a("s_waitcnt vmcnt(0)")
    a.label("Lc2")
    a("s_waitcnt vmcnt(15)")
    s0_compute()
    stamp(1)
    a(f"s_cmp_ge_u32 s{sW}, {4-NQ}")
    a("s_cbranch_scc1 Lcjoin")
    a(f"s_add_u32 s{sCHB}, s{sW}, 6")
    s0_addr(sT2)
    a("s_waitcnt vmcnt(4)")
    s0_compute(LB=28)
    a("s_branch Lcjoin")

    a.label("Lcaux")
    a("s_setprio 3")
    srd_init([SWO, SWS, SDBG])
    a(f"s_sub_u32 s{sUD}, s{sW}, 6")
    a(f"s_lshl_b32 s{sVAR}, s{sCI}, 1")
    a(f"s_add_u32 s{sVAR}, s{sVAR}, s{sUD}")
    for i in range(4): a(f"v_mov_b32 v{52+i}, 0")
    a(f"v_lshlrev_b32 v15, 3, v{vL}")
    a(f"s_lshl_b32 s{sT0}, s{sVAR}, 9")
    a(f"s_add_u32 s{sT0}, s{sT0}, {WS_KV}")
    a("s_waitcnt lgkmcnt(0)")
    a(f"buffer_store_dwordx2 v[52:53], v15, {srd(SWS)}, s{sT0} offen sc1")
    a(f"s_mul_i32 s{sT0}, s{sVAR}, 768")
    a(f"s_add_u32 s{sT0}, s{sT0}, {WS_C}")
    a(f"v_lshlrev_b32 v16, 8, v{vL}")
    a("s_mov_b64 exec, 7")
    a(f"buffer_store_dword v52, v16, {srd(SWS)}, s{sT0} offen sc1")
    a("s_mov_b64 exec, -1")
    a.label("Lcrp")
    sKQ, sF, sCGR = sCHL, sCH, sJ
    a(f"s_lshr_b32 s{sT0}, s{sVAR}, 2")
    a(f"s_and_b32 s{sCGR}, s{sVAR}, 3")
    a(f"s_mul_i32 s{sKQ}, s{sT0}, 52")
    a(f"s_lshr_b32 s{sKQ}, s{sKQ}, 8")
    a(f"s_mul_i32 s{sT1}, s{sKQ}, 5")
    a(f"s_sub_u32 s{sF}, s{sT0}, s{sT1}")
    a(f"s_mul_i32 s{sT0}, s{sF}, 20")
    a(f"s_cmp_eq_u32 s{sF}, 4")
    a(f"s_cselect_b32 s{sT0}, 16, s{sT0}")
    a(f"s_cselect_b32 s{sT2}, 16, 0")
    a(f"s_mul_i32 s{sT1}, s{sKQ}, 80")
    a(f"s_add_u32 s{sT0}, s{sT0}, s{sT1}")
    a(f"s_mul_i32 s{sT0}, s{sT0}, 1280")
    a(f"s_mul_i32 s{sT1}, s{sCGR}, 320")
    a(f"s_add_u32 s{sT0}, s{sT0}, s{sT1}")
    a(f"s_lshr_b32 s{sT3}, s{sVAR}, 7")
    a(f"s_lshl_b32 s{sT3}, s{sT3}, 1")
    a(f"s_add_u32 s{sT3}, s{sT3}, s{sUD}")
    a(f"s_mul_i32 s{sT3}, s{sT3}, 5120")
    a(f"s_add_u32 s{sT3}, s{sT3}, {L_RPC}")
    a("s_waitcnt lgkmcnt(0)")
    for i in range(5):
        a(f"v_add_u32 v14, {64*i}, v{vL}")
        div20(15, 16, 14)
        a("v_lshrrev_b32 v17, 2, v15")
        a(f"v_mad_u32_u24 v15, v17, s{sT2}, v15")
        a("v_mul_u32_u24 v15, 1280, v15")
        a("v_lshl_add_u32 v15, v16, 4, v15")
        a(f"s_add_u32 m0, s{sT3}, {1024*i}")
        a(f"buffer_load_dwordx4 v15, {srd(SWO)}, s{sT0} offen lds")
    a(f"s_add_u32 s{sVAR}, s{sVAR}, 128")
    a(f"s_cmp_lt_u32 s{sVAR}, 160")
    a("s_cbranch_scc1 Lcrp")
    a(f"s_and_b32 s{sVAR}, s{sVAR}, 127")
    a("s_waitcnt vmcnt(0)")
    a.label("Lcrp2")
    sKQ, sF, sCGR = sCHL, sCH, sJ
    a(f"s_lshr_b32 s{sT0}, s{sVAR}, 2")
    a(f"s_and_b32 s{sCGR}, s{sVAR}, 3")
    a(f"s_mul_i32 s{sKQ}, s{sT0}, 52")
    a(f"s_lshr_b32 s{sKQ}, s{sKQ}, 8")
    a(f"s_mul_i32 s{sT1}, s{sKQ}, 5")
    a(f"s_sub_u32 s{sF}, s{sT0}, s{sT1}")
    a(f"s_lshr_b32 s{sT3}, s{sVAR}, 7")
    a(f"s_lshl_b32 s{sT3}, s{sT3}, 1")
    a(f"s_add_u32 s{sT3}, s{sT3}, s{sUD}")
    a(f"s_mul_i32 s{sT3}, s{sT3}, 5120")
    a(f"s_add_u32 s{sT3}, s{sT3}, {L_RPC}")
    a(f"v_lshrrev_b32 v14, 5, v{vL}")
    a(f"v_bfe_u32 v15, v{vL}, 2, 2")
    a("v_lshl_add_u32 v14, v14, 2, v15")
    a("v_mul_u32_u24 v14, 320, v14")
    a(f"v_bfe_u32 v15, v{vL}, 4, 1")
    a("v_lshl_add_u32 v14, v15, 5, v14")
    a(f"v_and_b32 v15, 3, v{vL}")
    a("v_lshl_add_u32 v14, v15, 3, v14")
    a(f"v_add_u32 v14, s{sT3}, v14")
    a(f"s_mul_i32 s{sT0}, s{sKQ}, 5")
    a(f"s_add_u32 s{sT0}, s{sT0}, s{sF}")
    a(f"s_cmp_ge_u32 s{sKQ}, 5")
    a(f"s_cselect_b32 s{sT1}, 0x4b, 0")
    a(f"s_mov_b32 s{sT2}, 25")
    a(f"s_add_u32 s{sT0}, s{sT0}, s{sT1}")
    a(f"s_mul_i32 s{sT1}, s{sCGR}, 200")
    a(f"s_add_u32 s{sT0}, s{sT0}, s{sT1}")
    a(f"s_lshl_b32 s{sT0}, s{sT0}, 10")
    a(f"s_add_u32 s{sT0}, s{sT0}, {WS_WOP}")
    a(f"s_lshl_b32 s{sT2}, s{sT2}, 10")
    a(f"s_lshr_b32 s{sT4}, s{sKQ}, 1")
    a(f"s_mul_i32 s{sT4}, s{sT4}, 25")
    a(f"s_and_b32 s{sT5}, s{sKQ}, 1")
    a(f"s_mul_i32 s{sT5}, s{sT5}, 5")
    a(f"s_add_u32 s{sT4}, s{sT4}, s{sT5}")
    a(f"s_add_u32 s{sT4}, s{sT4}, s{sF}")
    a(f"s_add_u32 s{sT4}, s{sT4}, s{sT1}")
    a(f"s_add_u32 s{sT4}, s{sT4}, 115")
    a(f"s_lshl_b32 s{sT4}, s{sT4}, 10")
    a(f"s_add_u32 s{sT4}, s{sT4}, {WS_WOP}")
    a(f"v_lshlrev_b32 v15, 4, v{vL}")
    for t in range(5):
        for jh in range(2): a(f"ds_read_b64_tr_b16 {vr(32+4*t+2*jh,2)}, v14 offset:{jh*2560+t*64}")
    a("s_waitcnt lgkmcnt(0)")
    for t in range(4):
        a(f"buffer_store_dwordx4 {vr(32+4*t,4)}, v15, {srd(SWS)}, s{sT0} offen sc1")
        a(f"s_add_u32 s{sT0}, s{sT0}, s{sT2}")
    a(f"buffer_store_dwordx4 {vr(48,4)}, v15, {srd(SWS)}, s{sT4} offen sc1")
    a(f"s_add_u32 s{sVAR}, s{sVAR}, 128")
    a(f"s_cmp_lt_u32 s{sVAR}, 160")
    a("s_cbranch_scc1 Lcrp2")
    a("v_mov_b32 v60, 0")
    a("s_waitcnt vmcnt(0)")
    darr_issue(60, 61, 4)
    a("s_setprio 0")
    srd_init([SX, SH, SOUT])
    zero_pads(sW)
    a(f"s_mov_b32 s{sT1}, 0")
    conv_setup(sW, sT1)
    s3_setup()
    wo_prep(vL16)
    darr_finish(60, 61, 4, 128)
    stamp(1)
    a("s_barrier")
    a(f"s_cmp_lg_u32 s{sW}, 7")
    a("s_cbranch_scc1 Lc7")
    a("s_setprio 3")
    darr_issue(60, 61, 0)
    a(f"s_lshl_b32 s{sT1}, s{sCI}, 2")
    h_dma(sW, sT1)
    conv_dfrag()
    darr_finish(60, 61, 0, NU, 2)
    a(f"v_and_b32 v44, 1, v{vL}")
    a("v_lshl_add_u32 v44, v44, 2, 64")
    a("v_add_u32 v44, 64, v44")
    poll(44, 46, S=SDBG)
    stamp(11)
    a(f"s_lshl_b32 s{sT5}, s{sQUAD}, 14")
    if WOFF: a(f"s_add_u32 s{sT5}, s{sT5}, {WOFF}")
    for q in range(4):
        a(f"s_mov_b32 m0, {L_UD + 4096*q}")
        for i in range(4): a(f"buffer_load_dwordx4 v{vL16}, {srd(SWS)}, s{sT5} offen offset:{1024*i} sc1 lds")
        if q < 3: a(f"s_add_u32 s{sT5}, s{sT5}, 4096")
    a("s_branch Lc8")

    a.label("Lcjoin")
    srd_init([SX, SH, SDBG, SOUT])
    a("s_waitcnt vmcnt(0)")
    stamp(2)
    a("s_barrier")
    zero_pads(sW)
    a(f"s_mov_b32 s{sT1}, 0")
    conv_setup(sW, sT1)
    s3_setup()
    wo_prep(vL16)
    a.label("Lc7")
    a(f"s_lshl_b32 s{sT1}, s{sCI}, 2")
    h_dma(sW, sT1)
    conv_dfrag()
    a.label("Lc8")
    a("s_waitcnt vmcnt(0) lgkmcnt(0)")
    stamp(12)
    a("s_barrier")
    stamp(3)
    a("s_setprio 2")
    a(f"s_cmp_lt_u32 s{sW}, 4")
    a("s_cbranch_scc1 Lconv2")
    a("s_setprio 0")
    for x in wo_list(vL16): a(x)
    x_loads()

def conv_body(tiles):
    seq = []
    for b in range(4):
        if tiles[0] == 0:
            for aa in range(8):
                for ti in (3, 2):
                    d = tiles[ti] - aa
                    if d >= 0:
                        seq.append((ti, ("H", 4 * aa + b, 0), ("U", 4 * d - b)))
                        if b == 0 and aa == 0: seq.append((ti, ("D",), ("U", 4 * d)))
                if aa == 5:
                    seq.append((1, ("H", b, 1), ("U", 4 - b)))
                    if b == 0: seq.append((1, ("D",), ("U", 4)))
                if aa == 6:
                    seq.append((0, ("H", b, 1), ("U", -b)))
                    if b == 0: seq.append((0, ("D",), ("U", 0)))
                    seq.append((1, ("H", 4 + b, 1), ("U", -b)))
        else:
            for aa in range(6):
                for ti in (3, 2, 1, 0):
                    d = tiles[ti] - aa
                    if d >= 0:
                        seq.append((ti, ("H", 4 * aa + b, 0), ("U", 4 * d - b)))
                        if b == 0 and aa == 0: seq.append((ti, ("D",), ("U", 4 * d)))
    assert len(seq) == 76
    last = {}; order = []
    for i, (ti, h, u) in enumerate(seq):
        for k in (u, h):
            if k[0] == "D": continue
            if k not in last: order.append(k)
            last[k] = i
    free = list(range(NPOOL))
    where = {}; done_at = {}
    nds = [0]; li = [0]
    def issue(maxn):
        n = 0
        while li[0] < len(order) and free and n < maxn:
            k = order[li[0]]; li[0] += 1
            bfr = free.pop(0); where[k] = bfr
            r = CPOOL + 4 * bfr
            if k[0] == "U":
                a(f"ds_read_b128 {vr(r,4)}, v{vUo if k[1]&1 else vUe} offset:{(k[1]+3)*512}")
                nds[0] += 1; n += 1
            else:
                a(f"ds_read_b64_tr_b16 {vr(r,2)}, v{vH} offset:{128*k[1]+32}")
                a(f"ds_read_b64_tr_b16 {vr(r+2,2)}, v{vH} offset:{128*k[1]}")
                nds[0] += 2; n += 2
            done_at[k] = nds[0]
    issue(10)
    started = set(); known = 0
    wl = wo_list(vL16); wi = 25 if "delayconv" in EXP else 0
    for i, (ti, h, u) in enumerate(seq):
        needn = max(done_at[k] for k in (u, h) if k[0] != "D")
        if needn > known:
            cnt = min(nds[0] - needn, 15)
            a(f"s_waitcnt lgkmcnt({cnt})")
            known = nds[0] - cnt
        d = vr(CACC + 16 * ti, 16)
        hb = CD if h[0] == "D" else CPOOL + 4 * where[h]
        a(f"v_mfma_f32_32x32x16_bf16 {d}, {vr(CPOOL+4*where[u],4)}, {vr(hb,4)}, {d if ti in started else '0'}")
        started.add(ti)
        for k in (u, h):
            if k[0] != "D" and last[k] == i: free.append(where[k])
        issue(2)

def conv_epi(var):
    runs = [[*range(0, 8)], [*range(8, 16)]] if var == 0 else [[*range(16)]]
    out_g = 7 if var == 0 else 15
    in_g = 8 if var == 0 else 0
    SPL = 96
    if "noep" not in EXP: a("s_setprio 3")
    a("s_nop 7")
    a("s_nop 3")
    for step in (2, 1, 0):
        a("s_mov_b32 exec_lo, 0")
        a("s_mov_b32 exec_hi, 0x80000000")
        a(f"v_mov_b32 v{SPL+step}, v{CACC+4*out_g+step+1}")
        for run in runs:
            for g in reversed(run):
                src = f"v{CACC+4*(g-1)+step+1}" if g != run[0] else "0"
                a(f"v_mov_b32 v{CACC+4*g+step+1}, {src}")
        if step == 0:
            a(f"ds_write_b96 v{vCS}, {vr(SPL,3)}")
            a("v_mov_b32 v100, 1")
            a(f"ds_add_u32 v{vCN}, v100")
        a("s_mov_b64 exec, -1")
        for g in reversed(range(16)):
            r = CACC + 4 * g + step
            a(f"v_add_f32_dpp v{r}, v{r+1}, v{r} wave_ror:1 row_mask:0xf bank_mask:0xf")
    a(f"v_xor_b32 v101, 16, v{vCS}")
    a(f"v_lshl_add_u32 v101, v{vL}, 2, v101")
    PK = 104
    other = [k for k in range(8) if k != in_g // 2]
    for k in other: a(f"v_cvt_pk_bf16_f32 v{PK+k}, v{CACC+8*k}, v{CACC+8*k+4}")
    oh = 1 - in_g // 8
    a(f"ds_write_b128 v{vCW}, {vr(PK+4*oh,4)} offset:{1024*oh}")
    lds_wait(vCN, 100, 2)
    a("s_mov_b64 exec, 7")
    a("ds_read_b32 v100, v101")
    a("s_waitcnt lgkmcnt(0)")
    a(f"v_add_f32 v{CACC+4*in_g}, v{CACC+4*in_g}, v100")
    a("s_mov_b64 exec, -1")
    k = in_g // 2
    a(f"v_cvt_pk_bf16_f32 v{PK+k}, v{CACC+8*k}, v{CACC+8*k+4}")
    a(f"ds_write_b128 v{vCW}, {vr(PK+4*(1-oh),4)} offset:{1024*(1-oh)}")
    T0, T1 = (0, 6) if var == 0 else (2, 4)
    a(f"s_lshl_b32 s{sT5}, s{sCH}, 6")
    a(f"s_add_u32 s{sT4}, s{sT5}, {WS_Y + T0*8*40960}")
    a(f"s_add_u32 s{sT5}, s{sT5}, {WS_Y + T1*8*40960}")
    a(f"s_lshr_b32 s{sT6}, s{sCH}, 5")
    a(f"s_lshl_b32 s{sT6}, s{sT6}, 8")
    a(f"s_add_u32 s{sT6}, s{sT6}, {WS_FY + var*20*256}")

def conv():
    a.label("Lconv")
    a("s_setprio 1")
    a.label("Lconv2")
    a(f"s_cmp_eq_u32 s{sVAR}, 1")
    a("s_cbranch_scc1 Lconvy")
    conv_body([0, 1, 6, 7])
    stamp(4)
    conv_epi(0)
    a("s_branch Lconve")
    a.label("Lconvy")
    conv_body([2, 3, 4, 5])
    stamp(4)
    conv_epi(1)
    a.label("Lconve")
    for n in range(2):
        a(f"ds_read_b64_tr_b16 {vr(136+4*n,2)}, v{vCT} offset:{1024*n}")
        a(f"ds_read_b64_tr_b16 {vr(138+4*n,2)}, v{vCT} offset:{1024*n+64}")
    arr_prep(152, 153)
    for n in range(2):
        a(f"s_waitcnt lgkmcnt({2-2*n})")
        a(f"buffer_store_dwordx4 {vr(136+4*n,4)}, v{vCY}, {srd(SWS)}, s{sT5 if n else sT4} offen sc1")
    stamp(13)
    a(f"s_mov_b32 s{sVAR}, 2")
    a(f"s_cmp_lt_u32 s{sW}, 4")
    a("s_cbranch_scc1 Ls3c")
    a("s_waitcnt vmcnt(0)")
    arr_issue(152, 153, f"s{sT6}")
    arr_finish(152, 153, f"s{sT6}", 32)
    a(f"s_mov_b32 s{sT0}, 0xffff0000")
    a("s_branch Learly")

def s3():
    a.label("Ls3")
    a.c("S3")
    PQ, RAW, KF = 32, 52, 116
    plan = []
    for i in range(4):
        for st in range(2):
            for jh in range(2):
                du0 = 4 * (i + st) + 2 * jh - 5 * i
                plan.append((i, st, jh, du0, 0 <= du0 <= 4, 0 <= du0 + 1 <= 4))
    sPD = sT2
    assert N1 <= 8
    PQ2, RAW2 = 188, 208
    valid = [p_ for p_ in plan if p_[4] or p_[5]]
    def raw(g, p_): return RAW + 16 * p_[0] + 8 * p_[1] + 4 * p_[2] if g == 0 else RAW2 + 4 * valid.index(p_)
    def fl(): a(f"buffer_load_dword v{vFT}, v{vFK}, {srd(SWS)}, 0 offen sc1")
    def kvl(g):
        a(f"s_add_u32 s{sT4}, s{sKVO}, {16*KVH*g}")
        a(f"s_add_u32 s{sT3}, s{sT4}, {2*KVH}")
        for p_ in valid:
            (i, st, jh, du0, v0ok, v1ok) = p_
            off = (i & 1) * KVH + du0 * 336
            part = v0ok != v1ok
            if part: a(f"s_mov_b32 exec_{'hi' if v0ok else 'lo'}, 0")
            a(f"buffer_load_dwordx4 {vr(raw(g,p_),4)}, v{vKO if i&1 else vKE}, {srd(SWS)}, s{sT3 if i>>1 else sT4} offen offset:{off} sc1")
            if part: a("s_mov_b64 exec, -1")
    OF = 132
    def proc(g, extra):
        pq = PQ2 if g else PQ
        for i in range(4):
            a(f"s_waitcnt vmcnt({9 - 3*i + extra})")
            kf = KF + 8 * (i & 1)
            for p_ in plan:
                if p_[0] != i: continue
                for j in range(2):
                    d = kf + 4 * p_[1] + 2 * p_[2] + j
                    if p_ in valid: a(f"v_cvt_pk_bf16_f32 v{d}, v{raw(g,p_)+2*j}, v{raw(g,p_)+2*j+1}")
                    else: a(f"v_mov_b32 v{d}, 0")
            d = vr(RAW + 16 * i, 16)
            a(f"v_mfma_f32_32x32x16_bf16 {d}, {vr(kf,4)}, {vr(pq+4*i,4)}, 0")
            a(f"v_mfma_f32_32x32x16_bf16 {d}, {vr(kf+4,4)}, {vr(pq+4*i+4,4)}, {d}")
        if g == 1:
            a(f"v_mov_b32 v152, {L_CNT+12}")
            lds_arrive(152, 153)
        for i in range(4):
            D = RAW + 16 * i
            a(f"v_add_f32 v{D+12}, s{sEPS}, v{D+12}")
            a(f"v_rcp_f32 v{D+12}, v{D+12}")
            for j in range(8): a(f"v_mul_f32 v{D+j}, v{D+j}, v{D+12}")
            for j in range(4): a(f"v_cvt_pk_bf16_f32 v{OF+4*i+j}, v{D+2*j}, v{D+2*j+1}")
            a(f"ds_write_b128 v{vOW}, {vr(OF+4*i,4)} offset:{1024*i + 20480*g}")
            if i & 1 == 0:
                for j in range(4): a(f"v_mul_f32 v{D+8+j}, v{D+8+j}, v{D+12}")
            else:
                for j in range(4): a(f"v_fmac_f32 v{D-8+j}, v{D+8+j}, v{D+12}")
                for j in range(2): a(f"v_cvt_pk_bf16_f32 v{OF+16+2*(i>>1)+j}, v{D-8+2*j}, v{D-8+2*j+1}")
        a(f"ds_write_b128 v{vOW}, {vr(OF+16,4)} offset:{4096 + 20480*g}")
    wl = wo_list(vL16)
    a(f"s_mov_b32 s{sVAR}, 0")
    a.label("Ls3c")
    for x in wl[:N1]: a(x)
    x_loads()
    fl()
    a("s_setprio 1")
    for g in range(2):
        for p_ in valid:
            if p_[4] != p_[5]:
                for j in range(4): a(f"v_mov_b32 v{raw(g,p_)+j}, 0")
    a(f"s_mov_b32 s{sPD}, 0")
    a(f"s_mov_b32 s{sCNT}, 0x40000")
    a("s_branch Ls3w")
    a.label("Ls3sl")
    a("s_sleep 2")
    fl()
    a.label("Ls3w")
    a("s_waitcnt vmcnt(0)")
    a(f"s_cmp_eq_u32 s{sVAR}, 0")
    a("s_cbranch_scc1 Ls3ev")
    a(f"s_sub_u32 s{sVAR}, s{sVAR}, 1")
    a(f"s_cmp_eq_u32 s{sVAR}, 0")
    a("s_cbranch_scc1 Ls3af")
    arr_issue(152, 153, f"s{sT6}")
    a("s_branch Ls3ev")
    a.label("Ls3af")
    arr_finish(152, 153, f"s{sT6}", 32)
    a.label("Ls3ev")
    a(f"v_cmp_ne_u32 vcc, s{sTAG}, v{vFT}")
    a(f"s_sub_u32 s{sCNT}, s{sCNT}, 1")
    a("s_cbranch_scc1 Ls3go")
    a(f"s_cmp_lg_u32 s{sPD}, 0")
    a("s_cbranch_scc1 Ls3k")
    a(f"s_and_b32 s{sT0}, vcc_lo, 3")
    a("s_cbranch_scc1 Ls3sl")
    for g in range(2):
        a(f"s_add_u32 s{sT4}, s{sPQO}, {20480*g}")
        a(f"s_add_u32 s{sT1}, s{sT4}, 4096")
        for f in range(4): a(f"buffer_load_dwordx4 {vr((PQ2 if g else PQ)+4*f,4)}, v{vL16}, {srd(SWS)}, s{sT4} offen offset:{1024*f} sc1")
        a(f"buffer_load_dwordx4 {vr((PQ2 if g else PQ)+16,4)}, v{vL16}, {srd(SWS)}, s{sT1} offen sc1")
    a(f"s_mov_b32 s{sPD}, 1")
    a(f"v_mov_b32 v{vFK}, v{vFQ}")
    a.label("Ls3k")
    a("s_bitcmp1_b32 vcc_lo, 2")
    a("s_cbranch_scc1 Ls3sl")
    a.label("Ls3go")
    a(f"s_mov_b32 s{sUD}, vcc_hi")
    stamp(6)
    kvl(0)
    a(f"s_cmp_eq_u32 s{sVAR}, 0")
    a("s_cbranch_scc1 Ls3n4")
    arr_finish(152, 153, f"s{sT6}", 32, 12)
    a.label("Ls3n4")
    a(f"s_cmp_eq_u32 s{sUD}, 0")
    a("s_cbranch_scc1 Ls3k2")
    fl()
    a("s_waitcnt vmcnt(0)")
    a(f"v_cmp_ne_u32 vcc, s{sTAG}, v{vFT}")
    a(f"s_mov_b32 s{sUD}, vcc_hi")
    a(f"s_cmp_lg_u32 s{sUD}, 0")
    a("s_cbranch_scc1 Ls3p1")
    a.label("Ls3k2")
    kvl(1)
    a.label("Ls3p1")
    proc(0, 12)
    a(f"s_cmp_eq_u32 s{sUD}, 0")
    a("s_cbranch_scc1 Ls3p2")
    poll(vFK, vFT)
    kvl(1)
    a.label("Ls3p2")
    if "sx" in EXP: stamp(11)
    proc(1, 0)
    a(f"s_mov_b32 s{sT0}, 0xffff0000")
    a("s_branch Llate")
    NB = 8; POOL = 32; AP, AR = 64, 80
    XF, YR, YF = 96, 112, 120
    def gemm(early):
        def ord_(i):
            if not early: return (vPR, 1024 * i)
            return (vPR, 1024 * (25 + i)) if i < 15 else (vRR, 1024 * (i - 15))
        for i in range(NB):
            v, o = ord_(i); a(f"ds_read_b128 {vr(POOL+4*i,4)}, v{v} offset:{o}")
        pre = []
        if not early:
            for x in wl[N1:]: a(x)
            for xd in (vXD, vXD2):
                pre.append(f"v_permlane32_swap_b32 v{xd}, v{xd+2}")
                pre.append(f"v_permlane32_swap_b32 v{xd+1}, v{xd+3}")
            for n, xd in enumerate((vXD, vXD2)):
                for j in range(4):
                    pre.append(f"v_lshlrev_b32 v{XF+8*n+2*j}, 16, v{xd+j}")
                    pre.append(f"v_and_b32 v{XF+8*n+2*j+1}, s{sT0}, v{xd+j}")
        issued = NB
        log = list(range(NB))
        for i in range(25):
            pos = log.index(i)
            w = f"s_waitcnt lgkmcnt({min(len(log)-1-pos,15)})"
            if not early and i >= N1: w = f"s_waitcnt vmcnt({24-i}) lgkmcnt({min(len(log)-1-pos,15)})"
            a(w)
            d = vr(AR if (early and i >= 15) else AP, 16)
            a(f"v_mfma_f32_32x32x16_bf16 {d}, {vr(VWO+4*i,4)}, {vr(POOL+4*(i%NB),4)}, {'0' if i == 0 or (early and i == 15) else d}")
            if issued < 25:
                v, o = ord_(issued); a(f"ds_read_b128 {vr(POOL+4*(issued%NB),4)}, v{v} offset:{o}"); log.append(issued); issued += 1
            for x in pre[2 * i:2 * i + 2]: a(x)
            if early and i == 12: a(f"buffer_load_dword v{vFT}, v{vFY}, {srd(SWS)}, 0 offen sc1")
            if early and 19 <= i < 23:
                q = i - 19
                a(f"ds_write_b128 v{vPW}, {vr(AP+4*q,4)} offset:{1024*q}"); log.append(-1)
    osfx = (" sc1" if "osc1" in EXP else "")
    def ydma():
        a(f"s_add_u32 m0, s{sYM}, {L_YT}")
        a(f"s_add_u32 s{sT1}, s{sYO}, s{sYM}")
        a(f"buffer_load_dwordx4 v{vL16}, {srd(SWS)}, s{sT1} offen sc1 lds")
        a(f"buffer_load_dwordx4 v{vL16}, {srd(SWS)}, s{sT1} offen offset:1024 sc1 lds")
        a(f"s_lshr_b32 s{sT2}, s{sYM}, 2")
        a(f"s_add_u32 s{sT2}, s{sT2}, 8192")
        a(f"s_add_u32 m0, s{sT2}, {L_YT}")
        a(f"s_add_u32 s{sT1}, s{sYO}, s{sT2}")
        a("s_mov_b32 exec_hi, 0")
        a(f"buffer_load_dwordx4 v{vL16}, {srd(SWS)}, s{sT1} offen sc1 lds")
        a("s_mov_b32 exec_hi, -1")
    a.label("Learly")
    stamp(6)
    a("s_setprio 2")
    a(f"s_mov_b32 s{sUD}, 0")
    a(f"v_mov_b32 v152, {L_CNT+12}")
    a(f"s_mov_b32 s{sCNT}, 0x40000")
    a.label("Ls3yl")
    a(f"buffer_load_dword v{vFT}, v{vFY}, {srd(SWS)}, 0 offen sc1")
    a("s_waitcnt vmcnt(0)")
    a(f"v_cmp_ne_u32 vcc, s{sTAG}, v{vFT}")
    a("s_cbranch_vccz Ls3yk")
    a("s_sleep 2")
    a("ds_read_b32 v153, v152")
    a("s_waitcnt lgkmcnt(0)")
    a(f"v_readfirstlane_b32 s{sT7}, v153")
    a(f"s_cmp_ge_u32 s{sT7}, 3")
    a("s_cbranch_scc1 Ls3y0")
    a(f"s_sub_u32 s{sCNT}, s{sCNT}, 1")
    a("s_cbranch_scc0 Ls3yl")
    a("s_branch Ls3y0")
    a.label("Ls3yk")
    ydma()
    a(f"s_mov_b32 s{sUD}, 1")
    a.label("Ls3y0")
    a("s_waitcnt lgkmcnt(0)")
    if "sx" in EXP: stamp(12)
    a("s_barrier")
    stamp(7)
    a(f"buffer_load_dword v{vG}, v{vGO}, {srd(SWS)}, 0 offen sc1")
    gemm(True)
    a(f"s_cmp_eq_u32 s{sUD}, 1")
    a("s_nop 7")
    a("s_nop 1")
    a("s_cbranch_scc1 Ls3yd")
    poll(vFY, vFT, "issued", sleep=1)
    stamp(5)
    ydma()
    a.label("Ls3yd")
    for q in range(4): a(f"ds_write_b128 v{vPW}, {vr(AR+4*q,4)} offset:{16384+1024*q}")
    for j in range(2):
        a(f"v_lshlrev_b32 v{XF+2*j}, 16, v{vXD+j}")
        a(f"v_and_b32 v{XF+2*j+1}, s{sT0}, v{vXD+j}")
    a("s_waitcnt vmcnt(0) lgkmcnt(0)")
    a("s_barrier")
    stamp(8)
    for p in range(4): a(f"ds_read_b128 {vr(32+4*p,4)}, v{vPA} offset:{4096*p}")
    a(f"ds_read_b64_tr_b16 {vr(YR,2)}, v{vYT}")
    a("s_waitcnt lgkmcnt(1)")
    for j in range(2): a(f"v_pk_add_f32 {vr(32+2*j,2)}, {vr(32+2*j,2)}, {vr(36+2*j,2)}")
    for j in range(2): a(f"v_pk_add_f32 {vr(40+2*j,2)}, {vr(40+2*j,2)}, {vr(44+2*j,2)}")
    for j in range(2): a(f"v_pk_add_f32 {vr(32+2*j,2)}, {vr(32+2*j,2)}, {vr(40+2*j,2)}")
    def fin(R, n):
        a("s_waitcnt lgkmcnt(0)")
        for j in range(n):
            a(f"v_lshlrev_b32 v{YF+2*j}, 16, v{YR+j}")
            a(f"v_and_b32 v{YF+2*j+1}, s{sT0}, v{YR+j}")
        for j in range(n): a(f"v_pk_mul_f32 {vr(XF+2*j,2)}, {vr(XF+2*j,2)}, {vr(YF+2*j,2)}")
        for j in range(n): a(f"v_pk_add_f32 {vr(R+2*j,2)}, {vr(R+2*j,2)}, {vr(XF+2*j,2)} neg_lo:[0,1] neg_hi:[0,1]")
        for j in range(n): a(f"v_pk_fma_f32 {vr(R+2*j,2)}, {vr(R+2*j,2)}, {vr(vG,2)}, {vr(XF+2*j,2)} op_sel_hi:[1,0,1]")
        for j in range(n): a(f"v_cvt_pk_bf16_f32 v{YR+j}, v{R+2*j}, v{R+2*j+1}")
    fin(32, 2)
    a(f"buffer_store_dwordx2 {vr(YR,2)}, v{vOUT}, {srd(SOUT)}, s{sXOFF} offen" + osfx)
    a("s_branch Lfin")
    a.label("Llate")
    a("s_setprio 1")
    a("s_waitcnt lgkmcnt(0)")
    if "sx" in EXP: stamp(12)
    a("s_barrier")
    stamp(7)
    a(f"buffer_load_dword v{vG}, v{vGO}, {srd(SWS)}, 0 offen sc1")
    gemm(False)
    a("s_barrier")
    stamp(8)
    for q in range(4): a(f"ds_read_b128 {vr(32+4*q,4)}, v{vPW} offset:{1024*q}")
    for q in range(4): a(f"ds_read_b64_tr_b16 {vr(YR+2*q,2)}, v{vYT} offset:{512*q}")
    a("s_waitcnt lgkmcnt(4)")
    for j in range(8): a(f"v_pk_add_f32 {vr(AP+2*j,2)}, {vr(AP+2*j,2)}, {vr(32+2*j,2)}")
    fin(AP, 8)
    for h in range(2):
        a(f"v_permlane32_swap_b32 v{YR+4*h}, v{YR+4*h+2}")
        a(f"v_permlane32_swap_b32 v{YR+4*h+1}, v{YR+4*h+3}")
        a(f"buffer_store_dwordx4 {vr(YR+4*h,4)}, v{vOUT}, {srd(SOUT)}, s{sXOFF} offen offset:{32*h}" + osfx)
    a.label("Lfin")
    if DIAG:
        a("s_waitcnt vmcnt(0)")
        stamp(9)
        a(f"s_memtime vcc")
        a("s_waitcnt lgkmcnt(0)")
        a(f"s_mov_b32 s{STS+15}, vcc_lo")
        a("v_mov_b32 v2, 0")
        for i in range(16): a(f"v_writelane_b32 v2, s{STS+i}, {i}")
        a(f"v_lshlrev_b32 v3, 2, v{vL}")
        a(f"s_lshl_b32 s{sT0}, s{sBID}, 3")
        a(f"s_add_u32 s{sT0}, s{sT0}, s{sW}")
        a(f"s_lshl_b32 s{sT0}, s{sT0}, 6")
        a(f"s_add_u32 s{sT0}, s{sT0}, {WS_TS}")
        a("s_mov_b64 exec, 0xffff")
        a(f"buffer_store_dword v2, v3, {srd(SWS)}, s{sT0} offen")
        sp = [e for e in EXP if e.startswith("spin")]
        if sp:
            si, wv, lo, hi = [int(x) for x in sp[0][4:].split("_")]
            a(f"s_cmp_lg_u32 s{sW}, {wv}")
            a("s_cbranch_scc1 Lend")
            a(f"s_cmp_lt_u32 s{sIDX}, {lo}")
            a("s_cbranch_scc1 Lend")
            a(f"s_cmp_ge_u32 s{sIDX}, {hi}")
            a("s_cbranch_scc1 Lend")
            a.label("Lspin")
            a("s_memrealtime vcc")
            a("s_waitcnt lgkmcnt(0)")
            a(f"s_sub_u32 s{sT1}, vcc_lo, s{STS+si}")
            a(f"s_cmp_lt_u32 s{sT1}, 5000")
            a("s_cbranch_scc1 Lspin")
        if "dbgts" in EXP:
            a(f"s_cmp_lg_u32 s{sW}, {int([e for e in EXP if e.startswith('wv')][0][2:])}")
            a("s_cbranch_scc1 Lend")
            a(f"s_cmp_ge_u32 s{sIDX}, 16")
            a("s_cbranch_scc1 Lend")
            a("v_cmp_ne_u32 vcc, 0, v2")
            a(f"v_subrev_u32 v2, s{sTAG}, v2")
            a("v_add_u32 v2, 100, v2")
            a("v_and_b32 v2, 0x7ffffff, v2")
            a("v_cndmask_b32 v2, 0, v2, vcc")
            a("s_mov_b64 exec, 0x3fff")
            a(f"buffer_atomic_umax v2, v3, {srd(SDBG)}, 0 offen offset:4 sc1")
    a.label("Lend")
    a("s_endpgm")

entry(); bwave(); awave(); kva(); qa(); ctype(); conv(); s3()

ref = open("cdna_kernels/%s.s.ref" % NAME).read()
head = [l for l in ref.split("\n") if l.startswith(";") and "@launch" not in l]
out = "\n".join(head) + "\n"
out += "; @launch grid=(256,1,1) block=(512,1,1) lds=%d\n" % LDS_BYTES
out += '.amdgcn_target "amdgcn-amd-amdhsa--gfx950"\n.text\n.globl %s_kernel\n.p2align 8\n.type %s_kernel,@function\n%s_kernel:\n' % (NAME, NAME, NAME)
import re
body = a.text()
ntset = []
if "nt" in EXP: ntset += [SK, SV, SH, SWO, SSK, SGW]
if "ntx" in EXP: ntset += [SX, SWQ]
for s_ in ntset:
    body = re.sub(r"(buffer_load_dword\S* [^\n]*%s, [^\n]*?offen(?: offset:\d+)?)( lds)?\n" % re.escape(srd(s_)), lambda m: m.group(1) + " nt" + (m.group(2) or "") + "\n", body)
out += body
out += '''.section .rodata,"a"
.p2align 6
.amdhsa_kernel %s_kernel
  .amdhsa_next_free_vgpr 256
  .amdhsa_next_free_sgpr 102
  .amdhsa_accum_offset 256
  .amdhsa_group_segment_fixed_size 0
  .amdhsa_kernarg_size 104
  .amdhsa_user_sgpr_count 2
  .amdhsa_user_sgpr_kernarg_segment_ptr 1
  .amdhsa_system_sgpr_workgroup_id_x 1
.end_amdhsa_kernel
''' % NAME
dst = [x for x in sys.argv[1:] if not x.startswith("--")]
open(dst[0] if dst else "cdna_kernels/%s.s" % NAME, "w").write(out)
```
